```python
import torch

def _softmax(x, axis=-1):
    return torch.softmax(x, dim=axis)

def _gelu(x):
    return torch.nn.functional.gelu(x, approximate='tanh')

def _silu(x):
    return torch.nn.functional.silu(x)

def _sigmoid(x):
    return torch.sigmoid(x)

def _layernorm(x, axis=-1, eps=1e-05):
    m = x.mean(dim=axis, keepdim=True)
    v = x.var(dim=axis, keepdim=True, unbiased=False)
    return (x - m) / torch.sqrt(v + eps)

def _scatter_add(tgt, idx, src, axis=0):
    return tgt.clone().index_add_(axis, idx, src)

def _segment_sum(src, seg, n):
    out = torch.zeros((n,) + src.shape[1:], dtype=src.dtype)
    return out.index_add_(0, seg, src)

def _pad(x, pw):
    flat = tuple((v for pair in reversed(pw) for v in pair))
    return torch.nn.functional.pad(x, flat)
kernel_name = 'adaLN_cond__sliding_block_cached__glu_gated_swiglu__decode'

def setup_inputs():

    _w = lambda a: (lambda t: t.to(torch.bfloat16) if t.is_floating_point() else t)(torch.as_tensor(a))

    def _A_setup():
        B, Sq, D = (2, 1, 512)
        Hq, Hkv, Sk, Dh = (32, 32, 16384, 128)
        assert Hq % Hkv == 0, (Hq, Hkv)
        return {'x': _w((lambda *s: torch.randn(*s, dtype=torch.bfloat16) * 0.05)(B, Sq, D)), 'k_cache': _w((lambda *s: torch.randn(*s, dtype=torch.bfloat16) * 3.2)(B, Hkv, Sk, Dh)), 'v_cache': _w((lambda *s: torch.randn(*s, dtype=torch.bfloat16) * 3.2)(B, Hkv, Sk, Dh)), 'wq': _w((lambda *s: torch.randn(*s, dtype=torch.bfloat16) * 3.2)(D, Hq * Dh) * D ** (-0.5)), 'wo': _w((lambda *s: torch.randn(*s, dtype=torch.bfloat16) * 3.2)(Hq * Dh, D) * (Hq * Dh) ** (-0.5))}
    _A_in = _A_setup()

    def _B_setup():
        B, S, D, F = (2, 1, 512, 1376)
        return {'x': _w((lambda *s: torch.randn(*s, dtype=torch.bfloat16) * 0.05)(B, S, D)), 'w1': _w((lambda *s: torch.randn(*s, dtype=torch.bfloat16) * 1.6)(D, F) * (2.0 / D) ** 0.5), 'w3': _w((lambda *s: torch.randn(*s, dtype=torch.bfloat16) * 1.6)(D, F) * (2.0 / D) ** 0.5), 'w2': _w((lambda *s: torch.randn(*s, dtype=torch.bfloat16) * 1.6)(F, D) * (2.0 / F) ** 0.5)}
    _B_in = _B_setup()
    return {'A_x': _A_in['x'], 'A_k_cache': _A_in['k_cache'], 'A_v_cache': _A_in['v_cache'], 'A_wq': _A_in['wq'], 'A_wo': _A_in['wo'], 'B_x': _B_in['x'], 'B_w1': _B_in['w1'], 'B_w3': _B_in['w3'], 'B_w2': _B_in['w2'], 'c': _w((lambda *s: torch.randn(*s, dtype=torch.bfloat16) * 0.2)(2, 512) * 8.0), 'w_mod': _w((lambda *s: torch.randn(*s, dtype=torch.bfloat16) * 0.2)(512, 6 * 512) * 512 ** (-0.5) * 8.0)}

def reference(A_x, A_k_cache, A_v_cache, A_wq, A_wo, B_x, B_w1, B_w3, B_w2, c, w_mod):

    def _A_ref(x, k_cache, v_cache, wq, wo):
        B, Sq, D = x.shape
        Hq, Dh = (32, 128)
        Hkv, Sk = (k_cache.shape[1], k_cache.shape[2])
        W = min(4096, max(256, Sk // 4))
        rep = Hq // Hkv
        q = (lambda x, *d: x.permute(*d))((x @ wq).reshape(B, Sq, Hq, Dh), 0, 2, 1, 3)
        k = (lambda x, n, axis: torch.repeat_interleave(x, n, dim=axis))(k_cache[:, :, Sk - W:, :], rep, axis=1)
        v = (lambda x, n, axis: torch.repeat_interleave(x, n, dim=axis))(v_cache[:, :, Sk - W:, :], rep, axis=1)
        scores = torch.einsum('bhqd,bhkd->bhqk', q, k) * Dh ** (-0.5)
        p = _softmax(scores, axis=-1)
        o = torch.einsum('bhqk,bhkd->bhqd', p, v)
        return (lambda x, *d: x.permute(*d))(o, 0, 2, 1, 3).reshape(B, Sq, Hq * Dh) @ wo

    def _B_ref(x, w1, w3, w2):
        gate = torch.einsum('bsd,df->bsf', x, w1)
        up = torch.einsum('bsd,df->bsf', x, w3)
        h = _silu(gate) * up
        out = torch.einsum('bsf,fd->bsd', h, w2)
        return out
    x = A_x
    mod = (_silu(c) @ w_mod).reshape(c.shape[0], 6, 1, -1)
    sa, ca, ga, sb, cb, gb = (mod[:, 0].clone(), mod[:, 1].clone(), mod[:, 2].clone(), mod[:, 3].clone(), mod[:, 4].clone(), mod[:, 5].clone())
    h = _layernorm(x, axis=-1) * (1 + ca) + sa
    x = x + ga * _A_ref(h, A_k_cache, A_v_cache, A_wq, A_wo)
    h = _layernorm(x, axis=-1) * (1 + cb) + sb
    x = x + gb * _B_ref(h, B_w1, B_w3, B_w2)
    return x
```

```python
import sys, struct

KNAME = "adaLN_cond__sliding_block_cached__glu_gated_swiglu__decode_kernel"

def f2u(x): return struct.unpack("<I", struct.pack("<f", x))[0]
LOG2E = f2u(1.4426950408889634)
SCALE = f2u(128 ** -0.5)
EPS = f2u(1e-5)

WS_E   = 0x00000
WS_HDR = 0x00400
WS_VOT = 0x00800
WS_MOD = 0x01000
WS_Q   = 0x08000
WS_ST  = 0x10000
WS_S2  = 0x18000
WS_AP  = 0x50000
WS_OP  = 0x20000
WS_HH  = 0x40000
WS_PRB = 0x80000
WS_STAMP = 0x100000
ACT_BS = 1056
L_ACT = 0
L_QV  = L_ACT + 6400
L_ML  = L_QV + 256
L_PG  = L_ML + 8
L_NR  = L_ML + 12
L_GO  = L_ML + 4
L_SCN = L_ML + 16
L_MX  = L_ML + 20
L_CNT = L_ML + 64
L_SC  = L_CNT + 64 + 128
L_ST  = L_SC
L_OP  = L_SC + 4096
L_RED = L_OP + 4096
L_WT  = 16384
L_VX  = L_WT + 65536
assert L_RED + 1024 <= L_WT and L_SC % 16 == 0

C_NONE, C_WO, C_F1, C_F2, C_MODB, C_MODA, C_Q = 0, 1, 2, 3, 4, 5, 6
X3 = [0, 2, 6, 4, 1, 7]
def role_map(mode=1):
    R = []
    if mode == 3:
        nb = [6, 4, 6, 4, 6, 0, 6, 0]; nf = [4, 6, 4, 6, 4, 8, 4, 7]
        c3 = {6: 19, 4: 27, 0: None}
        own3 = {6: 19, 4: 27, 1: 35, 3: 43}
        rest = [t for t in range(16, 48) if t % 8 != 3]
        col = []; f = 0
        for x in range(8):
            b = ([own3[x]] if x in own3 else [])
            while len(b) < nb[x]: b.append(rest.pop(0))
            c = [(C_MODB, t) for t in b] + [(C_F1, f + i) for i in range(nf[x])]; f += nf[x]
            c += [(C_F2, ((x + 5) % 8) * 4 + i) for i in range(4)]
            c += [(C_NONE, 0)] * (14 - len(c))
            col.append(c)
        base = role_map(2)
        return [base[w] if w < 144 else col[w % 8][w // 8 - 18] for w in range(256)]
    for w in range(256):
        x, idx = w * 1 % 8, w // 8
        if idx < 8: R.append((C_Q, 8 * x + idx)); continue
        if idx < 16: R.append((C_WO, idx - 8)); continue
        if mode == 2 and w < 176:
            row = idx - 16
            R.append((C_MODA if row < 2 else C_MODB, 8 * row + ((x + 3 - X3[row]) & 7))); continue
        if mode in (0, 2):
            if w < 144: R.append((C_MODA, w - 128))
            elif w < 176: R.append((C_MODB, w - 128))
            elif w < 219: t = w - 176; R.append((C_F1, (t % 8) * 5 + min(t % 8, 3) + t // 8))
            elif w < 251: t = w - 219; R.append((C_F2, (t % 8) * 4 + t // 8))
            else: R.append((C_NONE, 0))
            continue
        k = idx - 16; hi, lo, e = k >> 3, k & 7, x >> 1
        if x % 2 == 0:
            if e < 2: R.append((C_MODA, e * 8 + lo) if hi == 0 else (C_MODB, 16 + e * 8 + lo))
            else: R.append((C_MODB, 16 + e * 8 + lo) if hi == 0 else (C_F1, (e - 2) * 8 + lo))
        else:
            if hi == 0: R.append((C_F2, e * 8 + lo))
            else:
                t = 16 + e * 7 + lo
                R.append((C_F1, t) if lo < 7 and t < 43 else (C_NONE, 0))
    for c, n in ((C_MODA, range(16)), (C_MODB, range(16, 48)), (C_F1, range(43)), (C_F2, range(32)), (C_Q, range(64))):
        assert sorted(t for r, t in R if r == c) == list(n), c
    return R
SPIN_MAX = 1 << 18
ST, SLOC, SXCC = 74, 75, 76

NOTES = {
    "L_nb1": "streaming waves: K then V, 1 KB per load, at most 2..4 loads in flight per wave (depth table at L_table)",
    "L_helper": "helper waves: LDS sentinels, launch tag, role dispatch",
    "L_r_moda": "role MODA: shift/scale columns of silu(c) @ w_mod",
    "L_r_q": "role Q: LayerNorm + modulation + 64 columns of h @ wq",
    "L_r_modb": "role MODB: the other modulation columns (weights fetched in the background)",
    "L_r_wo": "role WO: 512 x 64 tile of wo",
    "L_r_f1": "role F1: 32 columns of w1 and w3",
    "L_r_f2": "role F2: 16 columns of w2 (also pulls this group's slow-loading tiles into L2)",
    "L_svc1": "wave 0: fetch q for the streaming waves",
    "L_svc2": "wave 0: max / sum of this split's scores, exchange with the other three splits, publish max and 1/sum in LDS",
    "L_disp3": "idle-time preparation; wave 1 walks the tail code once (no barrier, no global access) to warm the instruction cache",
    "L_join": "the barrier opens when the streaming waves have ended; wave 0 publishes the partial attention output",
    "L_t_wo": "tail WO: gather the group's partial outputs, project, publish",
    "L_t_f1": "tail F1: residual, LayerNorm (applied after the product), gate/up, SwiGLU, publish",
    "L_t_f2": "tail F2: down projection, gated residual, output; advances the epoch word",
    "L_table": "per workgroup: role | slow tile row << 3 | tile << 8 | steps at reduced depth << 16",
}
class G:
    def __init__(s, opts):
        s.L = []; s.o = opts; s.n = 0; s.tail = False; s.help = False
    def A(s, t):
        if t == "s_barrier" and s.o.get("nobar"): return
        if s.o.get("nostore") and t.startswith("global_store") and "sc1" in t and ("v[4:5]" in t or "v8, v9" in t): return
        if "clrf" in s.o and t.startswith("global_store") and "v[4:5]" in t: t = t.replace("sc1", s.o["clrf"].replace("_", " "))
        if "hdrf" in s.o and t.startswith("global_store") and "v8, v9" in t: t = t.replace("sc1", s.o["hdrf"].replace("_", " "))
        if s.o.get("noclr") and t.startswith("global_store") and "v[4:5]" in t: return
        if s.o.get("ldnt") and t.startswith("global_load") and not s.tail: t = t + " nt"
        s.L.append("  " + t)
    def lab(s, t):
        if t in NOTES: s.L.append("; ---- " + NOTES[t])
        s.L.append(t + ":")
    def C(s, t): s.L.append("; ---- " + t)
    def uniq(s, p): s.n += 1; return f"L_{p}_{s.n}"
    def stamp(s, idx, lvl=1):
        m = s.o.get("stamps", 0)
        if m == 4: m = 1
        if m == 5: m = 2
        if "aw" in s.o and lvl == 1 and idx == s.o.get("aq", 6): s.A("s_memrealtime s[80:81]")
        if m == 3 and idx not in (0, 6, 8): return
        if s.o.get("pst") and idx in (2, 3, 4) and not s.help: return
        if m and (m == lvl or idx in (0, 6, 8)) and not (lvl == 2 and m == 1):
            s.A(f"s_memrealtime s[{80+2*idx}:{81+2*idx}]")

def vr(a, n): return f"v[{a}:{a+n-1}]"

def wave_allreduce(g, op, v, t):
    A = g.A
    for r in (8, 4, 2, 1):
        A("s_nop 1")
        A(f"{op}_dpp v{v}, v{v}, v{v} row_ror:{r} row_mask:0xf bank_mask:0xf")
    A(f"v_mov_b32 v{t}, v{v}")
    A("s_nop 1")
    A(f"v_permlane16_swap_b32 v{t}, v{v}")
    A(f"{op} v{v}, v{v}, v{t}")
    A(f"v_mov_b32 v{t}, v{v}")
    A("s_nop 1")
    A(f"v_permlane32_swap_b32 v{t}, v{v}")
    A(f"{op} v{v}, v{v}, v{t}")

def wave_allreduce2(g, va, vb, ta, tb):
    A = g.A
    A("s_nop 0")
    for r in (8, 4, 2, 1):
        A(f"v_add_f32_dpp v{va}, v{va}, v{va} row_ror:{r} row_mask:0xf bank_mask:0xf")
        A(f"v_add_f32_dpp v{vb}, v{vb}, v{vb} row_ror:{r} row_mask:0xf bank_mask:0xf")
        A("s_nop 0")
    for sw in ("v_permlane16_swap_b32", "v_permlane32_swap_b32"):
        A(f"v_mov_b32 v{ta}, v{va}")
        A(f"v_mov_b32 v{tb}, v{vb}")
        A("s_nop 0")
        A(f"{sw} v{ta}, v{va}")
        A(f"{sw} v{tb}, v{vb}")
        A(f"v_add_f32 v{va}, v{va}, v{ta}")
        A(f"v_add_f32 v{vb}, v{vb}, v{tb}")

def rnd(g, d, s=None):
    g.A(f"v_cvt_pk_bf16_f32 v{d}, 0, v{s if s is not None else d}")

def spin_tail(g, l, e, sleep, mult=1):
    A = g.A
    A("s_cmp_eq_u64 vcc, 0")
    A(f"s_cbranch_scc1 {e}")
    if sleep: A(f"s_sleep {sleep}")
    A("s_add_u32 s70, s70, 1")
    A(f"s_cmp_lt_u32 s70, {SPIN_MAX*mult}")
    A(f"s_cbranch_scc1 {l}")
    g.lab(e)

def chk_sentinel(g, regs, tmp):
    A = g.A
    rs = list(regs)
    if len(rs) == 1:
        A(f"v_cmp_eq_u32 vcc, -1, v{rs[0]}")
        return
    if len(rs) == 2:
        A(f"v_max_u32 v{tmp}, v{rs[0]}, v{rs[1]}"); rs = []
    else:
        A(f"v_max3_u32 v{tmp}, v{rs[0]}, v{rs[1]}, v{rs[2]}"); rs = rs[3:]
    while len(rs) >= 2:
        A(f"v_max3_u32 v{tmp}, v{tmp}, v{rs[0]}, v{rs[1]}"); rs = rs[2:]
    if rs: A(f"v_max_u32 v{tmp}, v{tmp}, v{rs[0]}")
    A(f"v_cmp_eq_u32 vcc, -1, v{tmp}")

def poll_global(g, loads, regs, tmp, sleep=0):
    A = g.A
    l = g.uniq("poll"); e = g.uniq("polld")
    A("s_mov_b32 s70, 0")
    g.lab(l)
    for x in loads: A(x)
    A("s_waitcnt vmcnt(0)")
    chk_sentinel(g, regs, tmp)
    spin_tail(g, l, e, sleep)

def poll_tagged(g, loads, tagregs, sleep=0):
    A = g.A
    l = g.uniq("polt"); e = g.uniq("poltd")
    hdr = "HDR" in loads
    if hdr:
        A("s_and_b32 s71, s2, 7")
        A("s_lshl_b32 s71, s71, 7")
        A(f"s_add_u32 s71, s71, {WS_HDR}")
        A("v_and_b32 v8, 31, v1")
        A("v_lshl_add_u32 v8, v8, 2, s71")
    A("s_mov_b32 s70, 0")
    g.lab(l)
    for x in loads: A("global_load_dword v9, v8, s[42:43] sc1" if x == "HDR" else x)
    A("s_waitcnt vmcnt(0)")
    for i, r in enumerate(tagregs):
        if i == 0: A(f"v_cmp_ne_u32 vcc, s{ST}, v{r}")
        else:
            A(f"v_cmp_ne_u32 s[68:69], s{ST}, v{r}")
            A("s_or_b64 vcc, vcc, s[68:69]")
    spin_tail(g, l, e, sleep)
    if hdr:
        A(f"v_cmp_ne_u32 vcc, s{SXCC}, v9")
        A("s_cmp_eq_u64 vcc, 0")
        A(f"s_cselect_b32 s{SLOC}, 1, 0")
        if g.o.get("nolocal"): A(f"s_mov_b32 s{SLOC}, 0")

def poll_lds(g, loads, regs, tmp, sleep):
    A = g.A
    l = g.uniq("pl"); e = g.uniq("pld")
    A("s_mov_b32 s70, 0")
    g.lab(l)
    for x in loads: A(x)
    A("s_waitcnt lgkmcnt(0)")
    chk_sentinel(g, regs, tmp)
    spin_tail(g, l, e, sleep, 4)

def check_group_hdr(g, va, vt, sleep=8):
    A = g.A
    l = g.uniq("gh"); e = g.uniq("ghd")
    A("s_and_b32 s71, s2, 7")
    A("s_lshl_b32 s71, s71, 7")
    A(f"s_add_u32 s71, s71, {WS_HDR}")
    A(f"v_and_b32 v{va}, 31, v1")
    A(f"v_lshl_add_u32 v{va}, v{va}, 2, s71")
    A("s_mov_b32 s70, 0")
    g.lab(l)
    A(f"global_load_dword v{vt}, v{va}, s[42:43] sc1")
    A("s_waitcnt vmcnt(0)")
    A(f"v_cmp_ne_u32 s[68:69], s{SXCC}, v{vt}")
    A(f"v_subrev_u32 v{vt}, s{ST}, v{vt}")
    A(f"v_cmp_lt_u32 vcc, 15, v{vt}")
    spin_tail(g, l, e, sleep)
    A("s_cmp_eq_u64 s[68:69], 0")
    A(f"s_cselect_b32 s{SLOC}, 1, 0")
    if g.o.get("nolocal"): A(f"s_mov_b32 s{SLOC}, 0")

def check_all_hdr(g, va, vt, sleep=8):
    A = g.A
    l = g.uniq("ah"); e = g.uniq("ahd")
    A(f"v_lshlrev_b32 v{va}, 4, v1")
    A(f"v_lshlrev_b32 v{vt+6}, 2, v1")
    A("s_mov_b32 s70, 0")
    g.lab(l)
    A(f"global_load_dwordx4 {vr(vt,4)}, v{va}, s[42:43] offset:{WS_HDR} sc1")
    A(f"global_load_dword v{vt+5}, v{vt+6}, s[42:43] offset:{WS_VOT} sc1")
    A("s_waitcnt vmcnt(0)")
    for i in range(4): A(f"v_subrev_u32 v{vt+i}, s{ST}, v{vt+i}")
    A(f"v_max3_u32 v{vt+4}, v{vt}, v{vt+1}, v{vt+2}")
    A(f"v_max_u32 v{vt+4}, v{vt+4}, v{vt+3}")
    A(f"v_cmp_lt_u32 vcc, 15, v{vt+4}")
    spin_tail(g, l, e, sleep)
    A(f"v_subrev_u32 v{vt+5}, s{ST}, v{vt+5}")
    A(f"v_cmp_eq_u32 vcc, 1, v{vt+5}")
    A("s_bcnt1_i32_b64 s70, vcc")
    A(f"v_cmp_eq_u32 vcc, 0, v{vt+5}")
    A("s_bcnt1_i32_b64 s71, vcc")
    A("s_cmp_gt_u32 s70, s71")
    A("s_cselect_b32 s71, 4, 0")
    if "near" in g.o: A(f"s_mov_b32 s71, {4*g.o['near']}")
    A(f"s_sub_u32 s68, s{SXCC}, s{ST}")
    A("s_xor_b32 s71, s71, s68"); A("s_and_b32 s71, s71, 4"); A("s_lshl_b32 s71, s71, 11")
    if g.o.get("stamps") == 2 and g.o.get("swave") == 3: A("s_mov_b32 s88, s70")
    A(f"v_mov_b32 v{vt}, s71")
    A(f"ds_write_b32 v38, v{vt} offset:{L_NR}")

def pub_local(g, ins):
    A = g.A
    l = g.uniq("pf"); e = g.uniq("pe")
    A(f"s_cmp_eq_u32 s{SLOC}, 1")
    A(f"s_cbranch_scc0 {l}")
    A(ins)
    A(f"s_branch {e}")
    g.lab(l)
    A(ins + " sc1")
    g.lab(e)

def hs_signal(g, vt, vt2):
    A = g.A
    A(f"v_mov_b32 v{vt2}, 1")
    A("s_mov_b64 exec, 1")
    A(f"ds_add_u32 v38, v{vt2} offset:{L_CNT}")
    A("s_mov_b64 exec, -1")
def hs_wait(g, target, vt2, sleep=1):
    A = g.A
    l = g.uniq("hs"); e = g.uniq("hsd")
    A("s_mov_b32 s70, 0")
    g.lab(l)
    A(f"ds_read_b32 v{vt2}, v38 offset:{L_CNT}")
    A("s_waitcnt lgkmcnt(0)")
    A(f"v_cmp_gt_u32 vcc, {target}, v{vt2}")
    spin_tail(g, l, e, sleep, 8)
def helper_sync(g, target, vt, vt2):
    hs_signal(g, vt, vt2); hs_wait(g, target, vt2)

def dma_loop(g, n, step, flags, pace=0):
    A = g.A
    l = g.uniq("dma"); e = g.uniq("dmae")
    if isinstance(n, int):
        A(f"s_add_u32 s51, s50, {n*1024}")
    else:
        A(f"s_add_u32 s51, s50, {n}")
        A("s_cmp_lt_u32 s50, s51")
        A(f"s_cbranch_scc0 {e}")
    g.lab(l)
    A("s_mov_b32 m0, s50")
    A("s_add_u32 s50, s50, 1024")
    if g.o.get("contig"):
        A("s_lshl_b32 s54, s2, 17")
        A("s_add_u32 s54, s54, s50")
        A("v_lshlrev_b32 v2, 4, v1")
        A("s_mov_b32 s44, s18"); A("s_mov_b32 s45, s19"); A("s_mov_b32 s46, 0x10000000")
        A("s_and_b32 s55, s54, 0x1fffff"); A("s_lshr_b32 s54, s54, 21"); A("s_lshl_b32 s54, s54, 22"); A("s_add_u32 s54, s54, s55")
        A(f"buffer_load_dwordx4 v2, s[44:47], s54 offen {flags} lds")
    elif not g.o.get("nodma"):
        A(f"buffer_load_dwordx4 v2, s[44:47], s49 offen {flags} lds")
    A(f"s_add_u32 s49, s49, {step}")
    if pace: A(f"s_waitcnt vmcnt({pace-1})")
    A("s_cmp_lt_u32 s50, s51")
    A(f"s_cbranch_scc1 {l}")
    g.lab(e)

VW, VA = 40, 104

def srd(g, d, base, nbytes):
    A = g.A
    A(f"s_mov_b32 s{d}, s{base}")
    A(f"s_mov_b32 s{d+1}, s{base+1}")
    A(f"s_mov_b32 s{d+2}, {nbytes}")
    A(f"s_mov_b32 s{d+3}, 0x20000")

def dma_tile64(g, stride, flags, pace=0):
    A = g.A
    A("v_lshrrev_b32 v2, 3, v1")
    A("v_and_b32 v3, 6, v2")
    A("v_xor_b32 v3, v3, v1")
    A(f"v_mul_u32_u24 v2, {stride}, v2")
    A("v_and_b32 v3, 7, v3")
    A("v_lshl_add_u32 v2, v3, 4, v2")
    if pace:
        A(f"s_mul_i32 s49, s53, {256*stride}")
        A("s_lshl_b32 s50, s53, 15")
    else:
        A(f"s_mul_i32 s49, s5, {128*stride}")
        A("s_lshl_b32 s50, s5, 14")
    A("s_add_u32 s49, s49, s48")
    A(f"s_add_u32 s50, s50, {L_WT}")
    dma_loop(g, 32 if pace else 16, 8*stride, flags, pace)

def tr64_addr(g):
    A = g.A
    A("v_lshrrev_b32 v2, 2, v1")
    A("v_bfe_u32 v3, v1, 1, 1")
    A("s_lshl_b32 s49, s5, 1")
    A("v_or_b32 v3, s49, v3")
    A("v_and_b32 v10, 6, v2")
    A("v_xor_b32 v3, v3, v10")
    A("v_lshlrev_b32 v2, 7, v2")
    A("v_lshl_add_u32 v2, v3, 4, v2")
    A("v_and_b32 v3, 1, v1")
    A("v_lshl_add_u32 v2, v3, 3, v2")
    A(f"v_add_u32 v2, {L_WT}, v2")
def tr_reads(g, nk, mstep, hstep):
    A = g.A
    for m in range(nk):
        for h in range(2):
            A(f"ds_read_b64_tr_b16 {vr(VW+4*m+2*h,2)}, v2 offset:{m*mstep+h*hstep}")
        if m >= 5: A("s_waitcnt lgkmcnt(10)")
    A("s_waitcnt lgkmcnt(0)")
def tr_tile64(g):
    tr64_addr(g)
    tr_reads(g, 16, 4096, 2048)
def gemv_fused(g, vaddr, D):
    A = g.A
    def rd(m):
        for h in range(2):
            A(f"ds_read_b64_tr_b16 {vr(VW+4*m+2*h,2)}, v2 offset:{m*4096+h*2048}")
        A(f"ds_read_b128 {vr(VA+4*m,4)}, v{vaddr} offset:{64*m}")
    for m in range(5): rd(m)
    for m in range(16):
        A(f"s_waitcnt lgkmcnt({3*(min(m+5,16)-m-1)})")
        c = "0" if m == 0 else vr(D, 4)
        A(f"v_mfma_f32_16x16x32_bf16 {vr(D,4)}, {vr(VW+4*m,4)}, {vr(VA+4*m,4)}, {c}")
        if m + 5 < 16: rd(m + 5)
    A("s_nop 7")

def batch_reduce2(g, va, vb, ta, tb):
    A = g.A
    A("s_nop 0")
    for m in ("quad_perm:[1,0,3,2]", "quad_perm:[2,3,0,1]", "row_ror:8"):
        A(f"v_add_f32_dpp v{va}, v{va}, v{va} {m} row_mask:0xf bank_mask:0xf")
        A(f"v_add_f32_dpp v{vb}, v{vb}, v{vb} {m} row_mask:0xf bank_mask:0xf")
        A("s_nop 0")
    for sw in ("v_permlane16_swap_b32", "v_permlane32_swap_b32"):
        A(f"v_mov_b32 v{ta}, v{va}")
        A(f"v_mov_b32 v{tb}, v{vb}")
        A("s_nop 0")
        A(f"{sw} v{ta}, v{va}")
        A(f"{sw} v{tb}, v{vb}")
        A(f"v_add_f32 v{va}, v{va}, v{ta}")
        A(f"v_add_f32 v{vb}, v{vb}, v{tb}")

def ln_partial(g, x):
    A = g.A
    A(f"v_add_f32 v8, v{x}, v{x+1}"); A(f"v_mul_f32 v9, v{x}, v{x}")
    A(f"v_add_f32 v10, v{x+2}, v{x+3}"); A(f"v_mul_f32 v11, v{x+2}, v{x+2}")
    A(f"v_fmac_f32 v9, v{x+1}, v{x+1}"); A(f"v_fmac_f32 v11, v{x+3}, v{x+3}")
    A("v_add_f32 v8, v8, v10"); A("v_add_f32 v9, v9, v11")
    batch_reduce2(g, 8, 9, 10, 11)
    A("ds_write_b64 v5, v[8:9]")
def ln_apply(g, x, t):
    A = g.A
    A(f"ds_read_b128 {vr(t,4)}, v6")
    A(f"ds_read_b128 {vr(t+4,4)}, v6 offset:16")
    A("s_waitcnt lgkmcnt(0)")
    A(f"v_pk_add_f32 {vr(t,2)}, {vr(t,2)}, {vr(t+2,2)}")
    A(f"v_pk_add_f32 {vr(t+4,2)}, {vr(t+4,2)}, {vr(t+6,2)}")
    A(f"v_pk_add_f32 {vr(t,2)}, {vr(t,2)}, {vr(t+4,2)}")
    A(f"v_mul_f32 v8, 0x{f2u(1/512):08x}, v{t}")
    A(f"v_mul_f32 v9, 0x{f2u(1/512):08x}, v{t+1}")
    A("v_fma_f32 v9, -v8, v8, v9")
    rnd(g, 8)
    A("v_max_f32 v9, 0, v9")
    rnd(g, 9)
    for i in range(2): A(f"v_sub_f32 v{x+i}, v{x+i}, v8")
    A(f"v_add_f32 v9, 0x{EPS:08x}, v9")
    for i in range(2, 4): A(f"v_sub_f32 v{x+i}, v{x+i}, v8")
    rnd(g, 9)
    rnd(g, x)
    A("v_sqrt_f32 v9, v9")
    rnd(g, x+1)
    rnd(g, 9)
    rnd(g, x+2)
    A("v_rcp_f32 v9, v9")
    rnd(g, x+3)
    for i in range(4): A(f"v_mul_f32 v{x+i}, v{x+i}, v9")
    for i in range(4): rnd(g, x+i)

def act_addr(g, v, base, bstride):
    A = g.A
    A(f"v_and_b32 v{v}, 1, v1")
    A(f"v_mul_u32_u24 v{v}, {bstride}, v{v}")
    A(f"v_lshrrev_b32 v3, 4, v1")
    A(f"v_lshl_add_u32 v{v}, v3, 4, v{v}")
    if base: A(f"v_add_u32 v{v}, {base}, v{v}")

def gemv(g, nk, vaddr, D):
    A = g.A
    first = min(nk, 12)
    for m in range(first):
        A(f"ds_read_b128 {vr(VA+4*m,4)}, v{vaddr} offset:{64*m}")
    issued = first
    for m in range(nk):
        A(f"s_waitcnt lgkmcnt({issued-m-1})")
        c = "0" if m == 0 else vr(D, 4)
        A(f"v_mfma_f32_16x16x32_bf16 {vr(D,4)}, {vr(VW+4*m,4)}, {vr(VA+4*m,4)}, {c}")
        if issued < nk:
            A(f"ds_read_b128 {vr(VA+4*issued,4)}, v{vaddr} offset:{64*issued}")
            issued += 1
    A("s_nop 7")

def guard(g, r):
    g.A(f"v_min_u32 v{r}, s72, v{r}")

def unpack2(g, d, s):
    g.A(f"v_lshlrev_b32 v{d}, 16, v{s}")
    g.A(f"v_and_b32 v{d+1}, s73, v{s}")
def unpack4(g, d, s, step=1):
    unpack2(g, d, s); unpack2(g, d+2, s+step)

def ln_finish(g, mean, var, mu, rinv):
    A = g.A
    rnd(g, mu, mean)
    rnd(g, var)
    A(f"v_add_f32 v{var}, 0x{EPS:08x}, v{var}")
    rnd(g, var)
    A(f"v_sqrt_f32 v{var}, v{var}")
    A("s_nop 0")
    rnd(g, var)
    A(f"v_rcp_f32 v{rinv}, v{var}")
    A("s_nop 0")

def silu4(g, x, t):
    A = g.A
    for i in range(4): A(f"v_mul_f32 v{t+i}, 0x{LOG2E ^ 0x80000000:08x}, v{x+i}")
    for i in range(4): A(f"v_exp_f32 v{t+i}, v{t+i}")
    A("s_nop 0")
    for i in range(4): A(f"v_add_f32 v{t+i}, 1.0, v{t+i}")
    for i in range(4): A(f"v_rcp_f32 v{t+i}, v{t+i}")
    A("s_nop 0")
    for i in range(4): A(f"v_mul_f32 v{x+i}, v{x+i}, v{t+i}")

EX8 = ["s_mov_b32 exec_lo, 0x00030003", "s_mov_b32 exec_hi, 0x00030003"]

def dense_stream(g, opts, D, JP, NS, NL, slot, issue, throttle):
    A = g.A
    A(f"s_mul_i32 s15, s9, {NL*1024}")
    A(f"s_add_u32 s15, s15, {L_VX}")
    for j in range(D, NS + NL):
        throttle(j)
        issue(j)
        if opts.get("pst") and j in (12, 22, 31): A(f"s_memrealtime s[{80+2*{12: 2, 22: 3, 31: 4}[j]}:{81+2*{12: 2, 22: 3, 31: 4}[j]}]")
        if j == opts.get("JG", 20):
            A("v_mov_b32 v4, 0")
            A(f"ds_write_b32 v4, v4 offset:{L_PG}")
    g.stamp(1)
    if opts.get("nocomp"):
        A("s_lshl_b32 s11, s9, 9")
        A("v_lshlrev_b32 v3, 3, v1")
        A("v_add_u32 v3, s11, v3")
        A("v_mov_b32 v16, 1.0"); A("v_mov_b32 v17, 0.5")
        A(f"ds_write_b64 v3, v[16:17] offset:{L_SC}")
        for j in range(NS + NL, 64):
            throttle(j); issue(j)
        A("s_waitcnt vmcnt(0)")
        A(f"ds_write_b64 v3, v[16:17] offset:{L_OP}")
        A("s_waitcnt lgkmcnt(0)")
        A("s_branch L_send")
    poll_lds(g, [f"ds_read_b128 v[4:7], v3 offset:{L_QV}"], [4, 5, 6, 7], 8, 2)
    g.stamp(2)
    A(f"s_waitcnt vmcnt({NS+NL-32})")
    nxt = NS + NL
    T, X = 8, 16
    for G_ in range(4):
        for tt in range(4):
            for e in range(8):
                c = "0" if tt == 0 else f"v{T+e}"
                A(f"v_dot2_f32_bf16 v{T+e}, v{slot(8*G_+e)+tt}, v{4+tt}, {c}")
        if (nxt % NS) < 8 * (G_ + 1):
            issue(nxt); nxt += 1
        for e in range(0, 8, 2):
            A(f"v_add_f32_dpp v{T+e}, v{T+e}, v{T+e} row_ror:8 row_mask:0xf bank_mask:0x3")
            A(f"v_add_f32_dpp v{T+e}, v{T+e+1}, v{T+e+1} row_ror:8 row_mask:0xf bank_mask:0xc")
        for h in range(2):
            A(f"v_add_f32_dpp v{X+2*G_+h}, v{T+4*h}, v{T+4*h} row_shl:4 row_mask:0xf bank_mask:0x5")
            A(f"v_add_f32_dpp v{X+2*G_+h}, v{T+4*h+2}, v{T+4*h+2} row_shr:4 row_mask:0xf bank_mask:0xa")
    A("s_nop 1")
    for n in range(8):
        A(f"v_add_f32_dpp v{X+n}, v{X+n}, v{X+n} quad_perm:[2,3,0,1] row_mask:0xf bank_mask:0xf")
    for n in range(4):
        A(f"v_cndmask_b32 v{T+n}, v{X+2*n}, v{X+2*n+1}, s[52:53]")
    A("s_nop 1")
    for n in range(4):
        A(f"v_add_f32_dpp v{T+n}, v{T+n}, v{T+n} quad_perm:[1,0,3,2] row_mask:0xf bank_mask:0xf")
    for n in range(2):
        A(f"v_cndmask_b32 v{X+n}, v{T+2*n}, v{T+2*n+1}, s[54:55]")
    if opts.get("nosr", 0) < 1:
        for n in range(2): rnd(g, X+n)
    for n in range(2): A(f"v_mul_f32 v{X+n}, 0x{SCALE:08x}, v{X+n}")
    if opts.get("nosr", 0) < 2:
        for n in range(2): rnd(g, X+n)
    A("s_lshl_b32 s11, s9, 9")
    A("v_lshlrev_b32 v3, 3, v1")
    A("v_add_u32 v3, s11, v3")
    A(f"ds_write_b64 v3, v[{X}:{X+1}] offset:{L_SC}")
    g.stamp(3)
    for j in range(nxt, JP):
        throttle(j)
        issue(j)
    nxt = max(nxt, JP)
    BURST = opts.get("burst", 1)
    if BURST:
        for j in range(nxt, 64): issue(j)
        nxt = 64
    A(f"v_mov_b32 v3, {L_ML}")
    g.stamp(7)
    poll_lds(g, ["ds_read_b64 v[18:19], v3"], [18, 19], 8, 2)
    g.stamp(4)
    if NL:
        assert JP - D >= NS + NL
        A("v_lshl_add_u32 v3, v1, 4, s15")
        for k in range(NL):
            A(f"ds_read_b128 {vr(slot(NS+k),4)}, v3 offset:{k*1024}")
    for n in range(2): A(f"v_sub_f32 v{X+n}, v{X+n}, v18")
    for n in range(2): A(f"v_mul_f32 v{X+n}, 0x{LOG2E:08x}, v{X+n}")
    for n in range(2): A(f"v_exp_f32 v{X+n}, v{X+n}")
    A("s_nop 0")
    for n in range(2): A(f"v_mul_f32 v{X+n}, v{X+n}, v19")
    for n in range(2):
        A(f"v_cvt_pk_bf16_f32 v{4+2*n}, v{X+n}, 0")
        A(f"v_cvt_pk_bf16_f32 v{5+2*n}, 0, v{X+n}")
    for e in range(8): A(f"v_mov_b32 v{T+e}, 0")
    A("v_and_b32 v3, 15, v1")
    A("v_lshlrev_b32 v3, 5, v3")
    A("v_lshrrev_b32 v16, 4, v1")
    A("v_lshl_add_u32 v3, v16, 3, v3")
    A("v_add_u32 v3, s11, v3")
    def pv(i):
        c = ((i & 1) << 3) | (((i >> 1) & 1) << 2) | (((i >> 2) & 1) << 1) | ((i >> 3) & 1)
        pr = 4 + 2 * (i >> 4)
        for tt in range(4):
            for hf in range(2):
                A(f"v_dot2c_f32_bf16_dpp v{T+2*tt+hf}, v{pr+hf}, v{slot(32+i)+tt} row_newbcast:{c} row_mask:0xf bank_mask:0xf")
    done = 0
    if NL: A("s_waitcnt lgkmcnt(0)")
    per = opts.get("pvper", 4)
    for j in range(nxt, 64):
        throttle(j)
        issue(j)
        lim = min(j - D - 32 + 1, done + per)
        while done < lim:
            pv(done); done += 1
    while done < 32:
        if 31 - done < (64 - JP + D if BURST else D): A(f"s_waitcnt vmcnt({31-done})")
        pv(done); done += 1
    g.stamp(5); g.stamp(5, 2)
    A("s_nop 2")
    for j in range(4):
        A(f"v_permlane32_swap_b32 v{T+j}, v{T+j+4}")
    for j in range(4):
        A(f"v_add_f32 v{T+j}, v{T+j}, v{T+j+4}")
    A("s_nop 0")
    for j in range(2):
        A(f"v_permlane16_swap_b32 v{T+j}, v{T+j+2}")
    for j in range(2):
        A(f"v_add_f32 v{T+j}, v{T+j}, v{T+j+2}")
    A(f"ds_write_b64 v3, v[{T}:{T+1}] offset:{L_OP}")
    A("s_waitcnt lgkmcnt(0)")

ZERO_GAP = 93.0
def sparse_stream(g, opts, D, slot, issue, throttle):
    A = g.A
    T, X = 8, 16
    DV = opts.get("DV", 4)
    PRE = DV
    DEL = (opts.get("del0", 42), opts.get("del1", 36))
    VF = opts.get("vf", "nt")
    CNT, LIM, FIN, RET, TK = 58, 59, 60, 62, (64, 66)
    OFF = (24, 26); SET = (28, 30, 32); PH = (34, 35, 36); MW, L16, LRD, SCL, EPA = 37, 38, 39, 23, 22
    A(f"v_mov_b32 v{L16}, v3")
    A("s_lshl_b32 s15, s9, 11")
    A(f"s_add_u32 s15, s15, {L_VX}")
    A("v_lshl_add_u32 v3, v1, 3, s15")
    A("v_mov_b32 v4, 0x7fff0000"); A("v_mov_b32 v5, 0xff800000")
    for n in range(3): A(f"ds_write_b64 v3, v[4:5] offset:{512*n}")
    A(f"v_lshrrev_b32 v3, 4, v1")
    A(f"v_lshl_add_u32 v{LRD}, v{L16}, 1, s15")
    A(f"v_lshl_add_u32 v{LRD}, v3, 3, v{LRD}")
    A(f"s_sub_u32 s61, s12, {D*0x2000}")
    A(f"v_bfrev_b32 v{OFF[0]}, v1")
    A(f"v_lshrrev_b32 v{OFF[0]}, 15, v{OFF[0]}")
    A(f"v_and_b32 v{OFF[0]}, 0x1e000, v{OFF[0]}")
    A(f"v_add_u32 v{OFF[0]}, s61, v{OFF[0]}")
    A(f"v_and_b32 v{OFF[0]}, 0x3e000, v{OFF[0]}")
    A(f"v_lshl_add_u32 v{OFF[0]}, v3, 8, v{OFF[0]}")
    A("s_lshl_b32 s11, s9, 10")
    A(f"v_add_u32 v{OFF[0]}, s11, v{OFF[0]}")
    A(f"v_xor_b32 v{OFF[1]}, 0x20000, v{OFF[0]}")
    A("s_lshl_b32 s11, s9, 9")
    A(f"s_mov_b32 s{CNT}, 0"); A(f"s_mov_b32 s{FIN}, 0")
    def qcheck(skip):
        A("s_waitcnt lgkmcnt(0)")
        chk_sentinel(g, [4, 5, 6, 7], 8)
        A("s_cmp_lg_u64 vcc, 0")
        A(f"s_cbranch_scc1 {skip}")
    QC = [int(x) for x in str(opts.get("qc", "20.23.26.29")).split(".")]
    PRI = dict((int(a), int(b)) for a, b in (x.split(":") for x in str(opts.get("pri", "")).split(".") if x))
    for j in range(D, 32):
        if j == opts.get("JH", -1):
            l = g.uniq("jh")
            A(f"s_cmp_lt_u32 s13, {opts.get('JHR', 1)}"); A(f"s_cbranch_scc1 {l}")
            A("v_mov_b32 v4, 0")
            poll_lds(g, [f"ds_read_b32 v5, v4 offset:{L_GO}"], [5], 8, 4)
            g.lab(l)
        if j in PRI: A(f"s_setprio {PRI[j]}")
        if j in QC:
            l = g.uniq("qc"); l2 = g.uniq("qd")
            A(f"s_cmp_lg_u32 s{CNT}, 0"); A(f"s_cbranch_scc1 {l2}")
            A(f"ds_read_b128 v[4:7], v{L16} offset:{L_QV}")
            g.lab(l2)
        throttle(j)
        issue(j)
        if j in QC:
            assert j - D >= 15
            A(f"s_cmp_lg_u32 s{CNT}, 0"); A(f"s_cbranch_scc1 {l}")
            qcheck(l)
            A(f"s_call_b64 s[{RET}:{RET+1}], L_sc0")
            g.lab(l)
        if j == opts.get("JG", 10):
            A("v_mov_b32 v4, 0")
            A(f"ds_write_b32 v4, v4 offset:{L_PG}")
    g.stamp(1)
    A(f"s_cmp_lg_u32 s{CNT}, 0"); A("s_cbranch_scc1 L_v0")
    poll_lds(g, [f"ds_read_b128 v[4:7], v{L16} offset:{L_QV}"], [4, 5, 6, 7], 8, 2)
    A(f"s_call_b64 s[{RET}:{RET+1}], L_sc0")
    g.lab("L_v0")
    g.stamp(2)

    def dots(G_):
        for tt in range(4):
            for e in range(8):
                c = "0" if tt == 0 else f"v{T+e}"
                A(f"v_dot2_f32_bf16 v{T+e}, v{slot(8*G_+e)+tt}, v{4+tt}, {c}")
        A("s_nop 0")
        for e in range(0, 8, 2):
            A(f"v_add_f32_dpp v{T+e}, v{T+e}, v{T+e} row_ror:8 row_mask:0xf bank_mask:0x3")
            A(f"v_add_f32_dpp v{T+e}, v{T+e+1}, v{T+e+1} row_ror:8 row_mask:0xf bank_mask:0xc")
        x = X + 2 * (G_ & 1)
        for h in range(2):
            A(f"v_add_f32_dpp v{x+h}, v{T+4*h}, v{T+4*h} row_shl:4 row_mask:0xf bank_mask:0x5")
            A(f"v_add_f32_dpp v{x+h}, v{T+4*h+2}, v{T+4*h+2} row_shr:4 row_mask:0xf bank_mask:0xa")
    def finish(n):
        sc = OFF[n] + 1
        A("s_nop 1")
        for i in range(4): A(f"v_add_f32_dpp v{X+i}, v{X+i}, v{X+i} quad_perm:[2,3,0,1] row_mask:0xf bank_mask:0xf")
        for i in range(2): A(f"v_cndmask_b32 v{T+i}, v{X+2*i}, v{X+2*i+1}, s[52:53]")
        A("v_mov_b32 v3, 0")
        A("v_lshlrev_b32 v21, 3, s9")
        for i in range(2): A(f"v_add_f32_dpp v{T+i}, v{T+i}, v{T+i} quad_perm:[1,0,3,2] row_mask:0xf bank_mask:0xf")
        A(f"v_cndmask_b32 v{sc}, v{T}, v{T+1}, s[54:55]")
        rnd(g, sc)
        A(f"v_mul_f32 v{sc}, 0x{SCALE:08x}, v{sc}")
        rnd(g, sc)
        A(f"ds_max_f32 v21, v{sc} offset:{L_ST}")
        A(f"ds_read_b32 v{MW}, v21 offset:{L_ST}")
        A("s_waitcnt lgkmcnt(0)")
        if n == 1:
            for i in range(2): A(f"v_sub_f32 v{X+i}, v{OFF[i]+1}, v{MW}")
            A("s_mov_b64 exec, 1")
            A(f"ds_max_f32 v3, v{MW} offset:{L_MX}")
            A("s_mov_b64 exec, -1")
            for i in range(2): A(f"v_mul_f32 v{X+i}, 0x{LOG2E:08x}, v{X+i}")
            for i in range(2): A(f"v_exp_f32 v{X+i}, v{X+i}")
            A("v_mov_b32 v20, 1")
            A(f"v_add_f32 v{X}, v{X}, v{X+1}")
            A(f"ds_add_f32 v21, v{X} offset:{L_ST+4}")
            A(f"ds_add_u32 v3, v20 offset:{L_SCN}")
        A(f"v_add_f32 v21, 0x{f2u(DEL[n] - ZERO_GAP):08x}, v{MW}")
    def build(n, thr, first):
        tk = f"s[{TK[n]}:{TK[n]+1}]"
        A(f"v_cmp_nlt_f32 vcc, v{OFF[n]+1}, v{thr}")
        A(f"s_lshl_b32 s68, s{CNT}, 3")
        A("s_add_u32 s68, s68, s15")
        if first: A(f"s_mov_b64 {tk}, vcc")
        else: A(f"s_andn2_b64 {tk}, vcc, {tk}")
        A(f"v_mbcnt_lo_u32_b32 v3, s{TK[n]}, 0")
        A(f"v_mbcnt_hi_u32_b32 v3, s{TK[n]+1}, v3")
        A(f"s_bcnt1_i32_b64 s69, {tk}")
        A("v_lshl_add_u32 v3, v3, 3, s68")
        A(f"s_mov_b64 exec, {tk}")
        A(f"ds_write_b64 v3, {vr(OFF[n],2)}")
        A("s_mov_b64 exec, -1")
        A(f"s_add_u32 s{CNT}, s{CNT}, s69")
    def reread(weights=True):
        ns = 3 if weights else 1
        for n in range(ns): A(f"ds_read_b64 {vr(SET[n],2)}, v{LRD} offset:{512*n}")
        A("s_waitcnt lgkmcnt(0)")
        if not weights: return
        for n in range(3): A(f"v_sub_f32 v{SET[n]+1}, v{SET[n]+1}, v{MW}")
        for n in range(3): A(f"v_mul_f32 v{SET[n]+1}, 0x{LOG2E:08x}, v{SET[n]+1}")
        for n in range(3): A(f"v_exp_f32 v{SET[n]+1}, v{SET[n]+1}")
        A("s_nop 0")
        for n in range(3): A(f"v_cvt_pk_bf16_f32 v{PH[n]}, 0, v{SET[n]+1}")
        for n in range(3): A(f"v_cvt_pk_bf16_f32 v{SET[n]+1}, v{SET[n]+1}, 0")
        A("s_nop 1")
    def vissue(t):
        if 32 + t in PRI: A(f"s_setprio {PRI[32+t]}")
        A(f"v_add_u32_dpp v3, v{SET[t//16]}, v{L16} row_newbcast:{t%16} row_mask:0xf bank_mask:0xf")
        A(f"s_waitcnt vmcnt({DV-1})")
        A(f"buffer_load_dwordx4 {vr(slot(t),4)}, v3, s[48:51], 0 offen {VF}")
    def pv(t):
        for tt in range(4):
            for hf in range(2):
                p = (SET[t//16] + 1, PH[t//16])[hf]
                A(f"v_dot2c_f32_bf16_dpp v{T+2*tt+hf}, v{p}, v{slot(t)+tt} row_newbcast:{t%16} row_mask:0xf bank_mask:0xf")
    for t in range(PRE):
        vissue(t)
        if t == 0: dots(2)
    dots(3)
    finish(1)
    g.stamp(3)
    build(1, 21, True)
    for e in range(8): A(f"v_mov_b32 v{T+e}, 0")
    A(f"s_lshr_b32 s{LIM}, s{CNT}, 2")
    reread()
    NST = PRE + 32 + DV
    for t in range(PRE, NST + 1):
        l = g.uniq("vs")
        A(f"s_cmp_lg_u32 s{LIM}, {t}")
        A(f"s_cbranch_scc1 {l}")
        A(f"s_call_b64 s[{RET}:{RET+1}], L_hand")
        g.lab(l)
        if t == NST: break
        vissue(t)
        pv(t - DV)
    A("s_endpgm")
    g.lab("L_sc0")
    dots(0); dots(1)
    finish(0)
    build(0, 21, True)
    A(f"s_max_u32 s{CNT}, s{CNT}, {4*PRE}")
    reread(False)
    A(f"s_setpc_b64 s[{RET}:{RET+1}]")
    g.lab("L_hand")
    A(f"s_cmp_lg_u32 s{FIN}, 0")
    A("s_cbranch_scc1 L_epi")
    g.stamp(7)
    A("v_mov_b32 v3, 0")
    A("s_mov_b32 s70, 0")
    g.lab("L_hp")
    A(f"ds_read_b64 v[18:19], v3 offset:{L_SCN}")
    A("s_waitcnt lgkmcnt(0)")
    A("v_cmp_gt_u32 vcc, 0x10200, v18")
    spin_tail(g, "L_hp", "L_hpd", 1, 4)
    g.stamp(4)
    A(f"v_add_f32 v21, 0x{f2u(-ZERO_GAP):08x}, v19")
    if opts.get("noskip"): A("v_mov_b32 v21, 0xff800000")
    build(0, 21, False)
    build(1, 21, False)
    A(f"v_sub_f32 v{SCL}, v{MW}, v19")
    A(f"v_mul_f32 v{SCL}, 0x{LOG2E:08x}, v{SCL}")
    A(f"v_exp_f32 v{SCL}, v{SCL}")
    A(f"v_lshrrev_b32 v16, 4, v1")
    A(f"v_lshl_add_u32 v{EPA}, v{L16}, 1, s11")
    A(f"v_lshl_add_u32 v{EPA}, v16, 3, v{EPA}")
    A(f"s_add_u32 s{LIM}, s{CNT}, {3 + 4*DV}")
    A(f"s_lshr_b32 s{LIM}, s{LIM}, 2")
    A(f"s_mov_b32 s{FIN}, 1")
    reread()
    A(f"s_setpc_b64 s[{RET}:{RET+1}]")
    g.lab("L_epi")
    g.stamp(5); g.stamp(5, 2)
    A("s_nop 0")
    for j in range(4):
        A(f"v_permlane32_swap_b32 v{T+j}, v{T+j+4}")
    for j in range(4):
        A(f"v_add_f32 v{T+j}, v{T+j}, v{T+j+4}")
    A("s_nop 0")
    for j in range(2):
        A(f"v_permlane16_swap_b32 v{T+j}, v{T+j+2}")
    for j in range(2):
        A(f"v_add_f32 v{T+j}, v{T+j}, v{T+j+2}")
    for j in range(2):
        A(f"v_mul_f32 v{T+j}, v{T+j}, v{SCL}")
    A(f"ds_write_b64 v{EPA}, v[{T}:{T+1}] offset:{L_OP}")
    A("s_waitcnt lgkmcnt(0)")

def gen(opts):
    g = G(opts); A = g.A
    SPV = opts.get("spv", 1)
    if SPV: opts.setdefault("mlate", 1)
    D = opts.get("D", 4); JP = opts.get("JP", 58); NS = 32 if SPV else 36; NL = 0 if SPV else opts.get("NL", 4)
    LDS_BYTES = L_VX + (8 * 2048 if SPV else 8192 * NL)
    UNI = 0
    TOUCH = opts.get("touch", 2)
    LIN = 1
    APT = opts.get("aptag", 1)
    URG = 1 if UNI else C_MODA
    RM = role_map(opts.get("rmode", 2))
    JSW = {C_NONE: opts.get("jn", 21), C_F1: opts.get("jf1", 17), C_F2: opts.get("jf", 16), C_WO: opts.get("jw", 18),
           C_MODB: opts.get("jb", opts.get("jw", 18) - 1), C_MODA: opts.get("ja", 4), C_Q: opts.get("jq", 7)}
    JSWMAX = max(JSW.values())
    def jsw(r, t):
        slow = r in (C_WO, C_MODB, C_MODA, C_Q) and t % 8 == 3
        if r == C_F2 and t // 4 == 3: return opts.get("jf3", 0)
        return max(0, JSW[r] - opts.get("j3", 17)) if slow else JSW[r]
    JT = list(opts["jtab"]) if "jtab" in opts else [jsw(r, t) for r, t in RM]
    if "jx" in opts:
        jx = [int(c, 36) * 4 - 20 for c in str(opts["jx"]).zfill(8)]
        JT = [min(64, max(0, j + jx[w % 8])) for w, j in enumerate(JT)]
    for w, (r, t) in enumerate(RM):
        if r == C_F2 and w % 8 in (0, 2): JT[w] = opts.get("jf2", 9)
    JSWMAX = max(JT)
    def m3(w):
        rows = [t // 8 + 1 for v, (r, t) in enumerate(RM) if r in (C_MODA, C_MODB) and t % 8 == 3 and v % 8 == w % 8]
        return rows[0] if len(rows) == 1 and (TOUCH == 1 or rows[0] <= 2) else 0
    def early(r, t):
        if r == C_F1: return opts.get("e1", 8)
        if r == C_F2: return opts.get("e23", 0) if t // 4 == 3 else opts.get("e2", 0)
        return 0
    WFL = opts.get("wflags", "nt")
    KVF = [opts.get("kf", "nt"), opts.get("vf", "nt")]
    hdr = open(opts["ref"]).read().split("; Override launch")[0]
    g.L.append(hdr.rstrip("\n"))
    g.L.append(""";
; Generated by gen/gen.py (hand-written generator).  One launch, 256 co-resident workgroups (one per CU) of 12 waves.
;  * waves 0-3 run one side role per workgroup, an MFMA mat-vec on a weight tile staged by LDS-DMA: modulation (MODA/MODB),
;    the launch advances at its end) next to / inside every 8-16 byte granule, or a sentinel cleared earlier in the launch.
;    Stores are write-through (sc1) unless all workgroups of the group reported the same XCC id in this launch; loads are sc1.
;    Every spin is bounded.  Placement, the choice between two equal copies of a hand-off (a vote on which memory side
;    answers faster) and the load-depth table only affect speed.""")
    g.L.append(f"; @launch grid=(256,1,1) block=(768,1,1) lds={LDS_BYTES}")
    g.L.append('.amdgcn_target "amdgcn-amd-amdhsa--gfx950"\n.text')
    g.L.append(f".globl {KNAME}\n.p2align 8\n.type {KNAME},@function\n{KNAME}:")
    A("s_cmp_ge_u32 s2, 256")
    A("s_cbranch_scc1 L_end")
    A("s_load_dwordx16 s[16:31], s[0:1], 0")
    A("s_load_dwordx8 s[32:39], s[0:1], 64")
    A("s_load_dwordx4 s[40:43], s[0:1], 96")
    A("s_getpc_b64 s[56:57]")
    g.lab("L_pc")
    A("s_lshl_b32 s3, s2, 2")
    A("s_add_u32 s3, s3, L_table-L_pc")
    RMODE = opts.get("rmode", 2)
    mt = (lambda i: i) if RMODE == 0 else (lambda i: (i & 8) | ((i + 3 - ((i >> 3) << 1)) & 7))
    assert all(RM[w] == (C_Q, 8 * (w % 8) + w // 8) for w in range(64)) and all(RM[128 + i] == (C_MODA, mt(i)) for i in range(16))
    A("s_sub_u32 s61, s2, 128")
    A("s_cmp_lt_u32 s61, 16")
    A("s_cselect_b32 s13, 1, 0")
    A("s_cmp_lt_u32 s2, 64")
    A("s_cselect_b32 s13, 2, s13")
    A("v_lshrrev_b32 v2, 6, v0")
    A("v_and_b32 v1, 63, v0")
    A("v_readfirstlane_b32 s5, v2")
    A("s_bfe_u32 s7, s2, 0x20003")
    A("s_bfe_u32 s6, s2, 0x20005")
    A("s_and_b32 s8, s2, 7")
    A("s_lshl_b32 s9, s8, 2")
    A("s_add_u32 s6, s6, s9")
    A("s_lshr_b32 s9, s2, 7")
    A("s_lshl_b32 s9, s9, 5")
    A("s_add_u32 s6, s6, s9")
    A("s_mov_b32 s72, 0xfffffffe")
    A("s_mov_b32 s73, 0xffff0000")
    g.stamp(0)
    if opts.get("xwait") or opts.get("tau") or opts.get("amp") or "aw" in opts: A("s_memrealtime s[78:79]")
    A("s_cmp_lt_u32 s5, 4")
    A("s_cbranch_scc1 L_helper")

    RB = 40 if SPV else 24
    def slot(j): return RB + 4 * (j % NS)
    A("s_sub_u32 s9, s5, 4")
    A("s_lshl_b32 s10, s6, 22")
    A("s_lshl_b32 s11, s7, 18")
    A("s_add_u32 s10, s10, s11")
    A("s_add_u32 s10, s10, 0x300000")
    A("s_lshl_b32 s11, s9, 10")
    A("v_lshlrev_b32 v2, 4, v1")
    SP2 = opts.get("sp2", 0)
    if not SP2: A("v_add_u32 v2, s11, v2")
    A("s_lshr_b32 s12, s2, 3")
    A("s_mul_i32 s12, s12, 5")
    A("s_mul_i32 s15, s8, 3")
    A("s_add_u32 s12, s12, s15")
    def sp2_off():
        A("s_and_b32 s12, s58, 28"); A("s_lshl_b32 s12, s12, 13")
        A("s_and_b32 s61, s58, 3"); A("s_lshl_b32 s61, s61, 10"); A("s_or_b32 s12, s12, s61")
        A("s_and_b32 s61, s59, 7"); A("s_lshl_b32 s61, s61, 12"); A("s_or_b32 s12, s12, s61")
        A("s_add_u32 s58, s58, 1"); A(f"s_add_u32 s59, s59, {SP2}")
    if SP2:
        A("s_mov_b32 s58, s12"); A(f"s_mul_i32 s59, s12, {SP2}"); A("s_add_u32 s59, s59, s9")
        sp2_off()
    else:
        A("s_lshl_b32 s12, s12, 13")
        A("s_and_b32 s12, s12, 0x3ffff")
    A("s_waitcnt lgkmcnt(0)")
    A("s_add_u32 s44, s18, s10"); A("s_addc_u32 s45, s19, 0")
    A("s_mov_b32 s46, 0x40000"); A("s_mov_b32 s47, 0x20000")
    A("s_add_u32 s48, s20, s10"); A("s_addc_u32 s49, s21, 0")
    A("s_mov_b32 s50, 0x40000"); A("s_mov_b32 s51, 0x20000")
    def issue(j):
        t, i = divmod(j, 32)
        if NS <= j < NS + NL:
            A(f"s_add_u32 m0, s15, {(j-NS)*1024}")
            A("s_nop 0")
            A(f"buffer_load_dwordx4 v2, s[{44+4*t}:{47+4*t}], s12 offen {KVF[t]} lds")
        else:
            A(f"buffer_load_dwordx4 {vr(slot(j),4)}, v2, s[{44+4*t}:{47+4*t}], s12 offen {KVF[t]}")
        if SP2: sp2_off()
        else:
            A("s_add_u32 s12, s12, 0x2000")
            A("s_and_b32 s12, s12, 0x3ffff")
    if opts.get("fake"):
        A("s_barrier")
        A("v_mov_b32 v3, 0")
        A(f"ds_write_b32 v3, v3 offset:{L_PG}")
        poll_lds(g, [f"ds_read_b32 v4, v3 offset:{L_QV}"], [4], 8, 8)
        A("s_lshl_b32 s11, s9, 9")
        A("v_lshlrev_b32 v3, 3, v1")
        A("v_add_u32 v3, s11, v3")
        A("v_mov_b32 v16, 1.0"); A("v_mov_b32 v17, 0.5")
        A(f"ds_write_b64 v3, v[16:17] offset:{L_SC}")
        A(f"v_mov_b32 v4, {L_ML}")
        poll_lds(g, ["ds_read_b64 v[18:19], v4"], [18, 19], 8, 2)
        A("s_memrealtime s[64:65]"); A("s_waitcnt lgkmcnt(0)")
        A("s_add_u32 s62, s64, 3072"); A("s_and_b32 s62, s62, 0xfffff800")
        if opts.get("fskew"):
            A("s_and_b32 s63, s2, 7"); A(f"s_mul_i32 s63, s63, {opts['fskew']}"); A("s_add_u32 s62, s62, s63")
        g.lab("L_fw")
        A("s_sleep 1")
        A("s_memrealtime s[64:65]"); A("s_waitcnt lgkmcnt(0)")
        A("s_sub_u32 s65, s64, s62"); A("s_cmp_lt_i32 s65, 0"); A("s_cbranch_scc1 L_fw")
        A(f"ds_write_b64 v3, v[16:17] offset:{L_OP}")
        A("s_waitcnt lgkmcnt(0)")
        A("s_branch L_send")
    if opts.get("sdelay"):
        A("s_barrier")
        A("v_mov_b32 v3, 0")
        poll_lds(g, [f"ds_read_b32 v4, v3 offset:{L_QV}"], [4], 8, 8)
        for j in range(D): issue(j)
    else:
        A("s_cmp_eq_u32 s13, 0")
        A("s_cbranch_scc1 L_nb1")
        A("s_barrier")
        g.lab("L_nb1")
        for j in range(D): issue(j)
        A("s_load_dword s14, s[56:57], s3")
        if opts.get("tlbw", 0):
            A("s_cmp_lg_u32 s9, 0"); A("s_cbranch_scc1 L_nv")
            A("s_mov_b64 exec, 1")
            A("buffer_load_dword v4, v2, s[48:51], s12 offen nt")
            A("s_mov_b64 exec, -1")
            g.lab("L_nv")
        A("s_cmp_eq_u32 s13, 0")
        A("s_cbranch_scc0 L_nb2")
        A("s_barrier")
        g.lab("L_nb2")
        A("s_waitcnt lgkmcnt(0)")
        A("s_bfe_u32 s14, s14, 0x80010")
    DP = [int(c) for c in str(opts.get("dpat", 43))]
    SP = [int(c) for c in str(opts.get("spat", D - opts.get("shal", 2)))]
    assert max(DP) <= D
    TAU = opts.get("tau", 0)
    def throttle(j):
        d = D if j >= opts.get("jfull", 48) else DP[j % len(DP)]
        if TAU and j >= opts.get("jt0", 8):
            l = g.uniq("th")
            A(f"s_waitcnt vmcnt({d-1}) lgkmcnt(0)")
            A("s_sub_u32 s68, s66, s78")
            A(f"s_cmp_ge_u32 s68, {max(0, ((j - 1 - D) * TAU + opts.get('toff', 800)) // 10)}")
            A(f"s_cbranch_scc1 {l}")
            A(f"s_waitcnt vmcnt({SP[j % len(SP)]-1})")
            g.lab(l)
            A("s_memrealtime s[66:67]")
            return
        A(f"s_waitcnt vmcnt({d-1})")
        if TAU:
            if j == opts.get("jt0", 8) - 1: A("s_memrealtime s[66:67]")
            return
        if j < JSWMAX and SP[j % len(SP)] < d:
            l = g.uniq("th")
            A(f"s_cmp_le_u32 s14, {j}")
            A(f"s_cbranch_scc1 {l}")
            A(f"s_waitcnt vmcnt({SP[j % len(SP)]-1})")
            g.lab(l)
    A("s_mov_b32 s52, 0xcccccccc"); A("s_mov_b32 s53, 0xcccccccc")
    A("s_mov_b32 s54, 0xaaaaaaaa"); A("s_mov_b32 s55, 0xaaaaaaaa")
    A("v_and_b32 v3, 15, v1")
    A("v_lshlrev_b32 v3, 4, v3")
    if SPV: sparse_stream(g, opts, D, slot, issue, throttle)
    else: dense_stream(g, opts, D, JP, NS, NL, slot, issue, throttle)
    g.lab("L_send")
    def dump_all(extra):
        A("s_mov_b64 exec, -1")
        A("s_mul_i32 s3, s2, 12"); A("s_add_u32 s3, s3, s5"); A("s_lshl_b32 s3, s3, 6")
        A(f"s_add_u32 s3, s3, {WS_STAMP}")
        A("v_mov_b32 v2, s3")
        A("s_waitcnt lgkmcnt(0)")
        for i in range(10):
            A(f"v_mov_b32 v3, s{80+2*i}")
            A(f"global_store_dword v2, v3, s[42:43] offset:{4*i}")
        A(f"v_mov_b32 v3, s{extra}")
        A("global_store_dword v2, v3, s[42:43] offset:40")
    if opts.get("stamps") in (4, 5):
        g.stamp(6)
        dump_all(58)
    if opts.get("stamps") in (1, 2):
        g.stamp(6)
        A("s_lshl_b32 s3, s2, 7")
        A("s_lshl_b32 s4, s9, 2")
        A("s_add_u32 s4, s4, s3")
        A(f"s_add_u32 s4, s4, {WS_STAMP+96}")
        A("v_mov_b32 v2, s4")
        A("s_waitcnt lgkmcnt(0)")
        A("v_mov_b32 v3, s92")
        A("global_store_dword v2, v3, s[42:43]")
        A("s_cmp_lg_u32 s5, 4")
        A("s_cbranch_scc1 L_end")
        A(f"s_add_u32 s3, s3, {WS_STAMP+64}")
        A("v_mov_b32 v2, s3")
        A("s_waitcnt lgkmcnt(0)")
        for i in range(8):
            A(f"v_mov_b32 v3, s{80+2*i}")
            A(f"global_store_dword v2, v3, s[42:43] offset:{4*i}")
    A("s_endpgm")

    g.lab("L_helper")
    g.help = True
    if opts.get("nohelp") == 1:
        if opts.get("side"):
            A("s_cmp_lg_u32 s5, 3"); A("s_cbranch_scc1 L_end")
            A("s_waitcnt lgkmcnt(0)")
            A("s_barrier")
            for _ in range(opts.get("sdel", 0)): A("s_sleep 127")
            n = opts.get("sn", 1)
            A(f"s_mul_i32 s57, s2, {opts.get('sstride', 512*n)}"); A(f"s_add_u32 s57, s57, {WS_OP}")
            A("v_lshl_add_u32 v8, v1, 3, s57")
            A("v_mov_b32 v4, -1"); A("v_mov_b32 v5, -1")
            if opts.get("slanes"): A(f"s_mov_b64 exec, {(1 << opts['slanes']) - 1}")
            fl = opts.get("sf", "sc1").replace("_", " ")
            for i in range(n):
                if opts["side"] == 1: A(f"global_store_dwordx2 v8, v[4:5], s[42:43] offset:{512*i} {fl}")
                else: A(f"global_load_dwordx2 v[10:11], v8, s[42:43] offset:{512*i} {fl}")
            A("s_waitcnt vmcnt(0)")
        A("s_endpgm")
    if opts.get("prio", 0): A(f"s_setprio {opts['prio']}")
    A("v_mov_b32 v4, -1"); A("v_mov_b32 v5, -1"); A("v_mov_b32 v6, -1"); A("v_mov_b32 v7, -1")
    if SPV:
        A("v_mov_b32 v8, 0xff800000"); A("v_mov_b32 v9, 0")
        A("v_lshlrev_b32 v2, 3, v1")
        A(f"ds_write_b64 v2, v[8:9] offset:{L_ST}")
    else:
        A("v_lshlrev_b32 v2, 4, v0")
        A(f"ds_write_b128 v2, v[4:7] offset:{L_SC}")
    A("v_lshlrev_b32 v2, 2, v1")
    A(f"ds_write_b32 v2, v4 offset:{L_QV}")
    A("v_mov_b32 v38, 0")
    A(f"ds_write_b128 v38, v[4:7] offset:{L_ML}")
    A(f"ds_write_b32 v38, v38 offset:{L_CNT}")
    if SPV:
        A("v_mov_b32 v39, 0xff800000")
        A(f"ds_write_b64 v38, v[38:39] offset:{L_SCN}")
    A(f"s_getreg_b32 s{SXCC}, hwreg(HW_REG_XCC_ID, 0, 4)")
    A("v_lshrrev_b32 v12, 3, v0")
    A("v_lshlrev_b32 v12, 5, v12")
    A("v_bfe_u32 v3, v1, 2, 1")
    A("v_lshl_add_u32 v12, v3, 10, v12")
    A("v_and_b32 v8, 3, v1")
    A("v_lshl_add_u32 v13, v8, 3, v12")
    A("v_and_b32 v12, 0xffffffdf, v12")
    A("v_lshl_add_u32 v12, v8, 4, v12")
    A("v_bfe_u32 v8, v1, 3, 1")
    A("v_lshl_add_u32 v12, v8, 3, v12")
    A("v_lshl_add_u32 v12, v3, 5, v12")
    A("s_waitcnt lgkmcnt(0)")
    if opts.get("wso", 0):
        A(f"s_add_u32 s42, s42, {opts['wso'] << 20}"); A("s_addc_u32 s43, s43, 0")
    A(f"s_load_dword s{ST}, s[42:43], {WS_E}")
    A("s_cmp_eq_u32 s13, 2"); A("s_cbranch_scc1 L_r_q")
    A("s_cmp_eq_u32 s13, 1"); A("s_cbranch_scc1 L_r_moda")
    A("s_load_dword s14, s[56:57], s3")
    if opts.get("cpf", 0) == 1:
        A("v_lshlrev_b32 v2, 7, v0")
        A(f"v_min_u32 v2, L_end-L_pc, v2")
        A("global_load_dword v167, v2, s[56:57]")
    if opts.get("cpf", 0) == 2:
        A("s_bfe_u32 s58, s2, 0x30003"); A("s_lshl_b32 s58, s58, 2"); A("s_add_u32 s58, s58, s5"); A("s_lshl_b32 s58, s58, 10")
        A("v_lshl_add_u32 v2, v1, 4, s58")
        A(f"v_min_u32 v2, L_end-L_pc, v2")
        A("global_load_dword v167, v2, s[56:57]")
    A("s_barrier")
    A("s_waitcnt lgkmcnt(0)")
    A("s_and_b32 s13, s14, 7")
    A("s_bfe_u32 s61, s14, 0x80008")
    A("s_lshr_b32 s59, s14, 24")
    A("s_lshl_b32 s59, s59, 10")
    A(f"s_cmp_eq_u32 s13, {C_WO}"); A("s_cbranch_scc1 L_r_wo")
    A(f"s_cmp_eq_u32 s13, {C_MODB}"); A("s_cbranch_scc1 L_r_modb")
    A(f"s_cmp_eq_u32 s13, {C_F1}"); A("s_cbranch_scc1 L_r_f1")
    A(f"s_cmp_eq_u32 s13, {C_F2}"); A("s_cbranch_scc1 L_r_f2")
    A("s_branch L_r_none")

    def clear_issue(kind):
        if not kind: return
        e = g.uniq("clr")
        A("s_cmp_lg_u32 s5, 3")
        A(f"s_cbranch_scc1 {e}")
        A("v_lshl_add_u32 v10, v1, 3, s58")
        A("global_store_dwordx2 v10, v[4:5], s[42:43] sc1")
        A("v_add_u32 v10, 0x2000, v10")
        A("global_store_dwordx2 v10, v[4:5], s[42:43] sc1")
        g.lab(e)
    def make_tag():
        A("s_waitcnt lgkmcnt(0)")
        A(f"s_mul_i32 s{ST}, s{ST}, 0x9e3779b1")
        A(f"s_add_u32 s{ST}, s{ST}, 0x7f4a7c15")
        A(f"s_add_u32 s{SXCC}, s{SXCC}, s{ST}")
    def hdr_signal(nyoung):
        e = g.uniq("sig")
        A("s_cmp_lg_u32 s5, 3")
        A(f"s_cbranch_scc1 {e}")
        A("s_and_b32 s56, s2, 7"); A("s_lshl_b32 s56, s56, 5")
        A("s_lshr_b32 s57, s2, 3"); A("s_add_u32 s56, s56, s57"); A("s_lshl_b32 s56, s56, 2")
        A("v_mov_b32 v8, s56")
        A(f"v_mov_b32 v9, s{SXCC}")
        if nyoung is not None: A(f"s_waitcnt vmcnt({nyoung})")
        A("s_mov_b64 exec, 1")
        A(f"global_store_dword v8, v9, s[42:43] offset:{WS_HDR} sc1")
        A("s_mov_b64 exec, -1")
        g.lab(e)
    def line_out_addr(v, bsh=6, ush=7):
        A(f"v_and_b32 v{v}, 1, v1")
        A(f"v_lshlrev_b32 v{v}, {bsh}, v{v}")
        A("v_lshrrev_b32 v3, 4, v1")
        A(f"v_lshl_add_u32 v{v}, v3, 4, v{v}")
        A(f"s_lshl_b32 s49, s5, {ush}")
        A("s_add_u32 s49, s49, s58")
        A(f"v_add_u32 v{v}, s49, v{v}")
    def pack_tagged():
        A("v_cvt_pk_bf16_f32 v8, v8, v9")
        A("v_cvt_pk_bf16_f32 v10, v10, v11")
        A(f"v_mov_b32 v9, s{ST}")
        A(f"v_mov_b32 v11, s{ST}")
    def ln_addrs():
        A("v_bfe_u32 v6, v1, 2, 1")
        A("v_lshlrev_b32 v6, 5, v6")
        A(f"v_add_u32 v6, {L_RED}, v6")
        A("s_lshl_b32 s49, s5, 3")
        A("v_add_u32 v5, s49, v6")

    def mod_params():
        A("s_lshl_b32 s48, s61, 7")
        A("s_lshl_b32 s58, s61, 9")
        A(f"s_add_u32 s58, s58, {WS_MOD}")
        srd(g, 44, 36, 512*6144)
    def mod_act():
        unpack4(g, 16, 14)
        silu4(g, 16, 20)
        A("v_cvt_pk_bf16_f32 v14, v16, v17")
        A("v_cvt_pk_bf16_f32 v15, v18, v19")
        A(f"ds_write_b64 v12, v[14:15] offset:{L_ACT}")
    def mod_finish(sig):
        line_out_addr(13)
        act_addr(g, 14, L_ACT, ACT_BS)
        tr64_addr(g)
        if sig:
            A("s_waitcnt vmcnt(0) lgkmcnt(0)")
            g.stamp(1)
            hs_signal(g, 8, 9); hs_wait(g, 4, 9, 0)
        else:
            hs_wait(g, 4, 9, 8)
        gemv_fused(g, 14, 8)
        pack_tagged()
        for x in EX8: A(x)
        A("global_store_dwordx4 v13, v[8:11], s[42:43] sc1")
        A("s_mov_b64 exec, -1")
        g.stamp(2)

    g.lab("L_r_moda")
    if RMODE >= 2:
        A("s_lshr_b32 s48, s61, 3"); A("s_lshl_b32 s48, s48, 1")
        A("s_add_u32 s49, s61, 3"); A("s_sub_u32 s49, s49, s48"); A("s_and_b32 s49, s49, 7")
        A("s_and_b32 s61, s61, 8"); A("s_or_b32 s61, s61, s49")
    mod_params()
    A("global_load_dwordx2 v[14:15], v13, s[34:35]")
    dma_tile64(g, 6144, WFL)
    A("s_barrier")
    clear_issue(0)
    make_tag()
    A("s_waitcnt vmcnt(16)")
    hdr_signal(None)
    mod_act()
    mod_finish(1)
    A(f"ds_write_b32 v38, v38 offset:{L_GO}")
    A("s_mov_b32 s60, 0")
    A("s_branch L_svc1")

    g.lab("L_r_q")
    A("s_lshl_b32 s61, s8, 3")
    A("s_lshr_b32 s48, s2, 3")
    A("s_add_u32 s61, s61, s48")
    A("s_lshl_b32 s48, s61, 7")
    A("s_lshl_b32 s58, s61, 8")
    A(f"s_add_u32 s58, s58, {WS_Q}")
    A("global_load_dwordx2 v[14:15], v13, s[16:17]")
    clear_issue(0)
    srd(g, 44, 22, 512*8192)
    dma_tile64(g, 8192, WFL)
    A("s_barrier")
    make_tag()
    A("s_waitcnt vmcnt(16)")
    hdr_signal(None)
    ln_addrs()
    unpack4(g, 20, 14)
    ln_partial(g, 20)
    A("s_waitcnt vmcnt(0) lgkmcnt(0)")
    helper_sync(g, 4, 8, 9)
    ln_apply(g, 20, 24)
    tr_tile64(g)
    line_out_addr(13, 14, 6)
    act_addr(g, 14, L_ACT, ACT_BS)
    A("v_lshlrev_b32 v15, 4, v0")
    A(f"v_add_u32 v15, {WS_MOD}, v15")
    A("v_add_u32 v36, 0x1000, v15")
    g.stamp(1)
    A("s_and_b32 s71, s2, 7")
    A("s_lshl_b32 s71, s71, 7")
    A(f"s_add_u32 s71, s71, {WS_HDR}")
    A("v_and_b32 v8, 31, v1")
    A("v_lshl_add_u32 v8, v8, 2, s71")
    A("s_mov_b64 s[64:65], -1"); A("s_mov_b64 s[66:67], -1")
    A("s_mov_b32 s70, 0")
    g.lab("L_q_p")
    A("s_mov_b64 exec, s[64:65]")
    A("global_load_dwordx4 v[16:19], v15, s[42:43] sc1")
    A("s_mov_b64 exec, s[66:67]")
    A("global_load_dwordx4 v[32:35], v36, s[42:43] sc1")
    A("s_mov_b64 exec, -1")
    A("global_load_dword v9, v8, s[42:43] sc1")
    A("s_waitcnt vmcnt(0)")
    A(f"v_cmp_ne_u32 s[64:65], s{ST}, v17"); A(f"v_cmp_ne_u32 s[68:69], s{ST}, v19"); A("s_or_b64 s[64:65], s[64:65], s[68:69]")
    A(f"v_cmp_ne_u32 s[66:67], s{ST}, v33"); A(f"v_cmp_ne_u32 s[68:69], s{ST}, v35"); A("s_or_b64 s[66:67], s[66:67], s[68:69]")
    A("s_or_b64 vcc, s[64:65], s[66:67]")
    spin_tail(g, "L_q_p", "L_q_ok", opts.get("msleep", 0))
    A(f"v_cmp_ne_u32 vcc, s{SXCC}, v9")
    A("s_cmp_eq_u64 vcc, 0")
    A(f"s_cselect_b32 s{SLOC}, 1, 0")
    if opts.get("nolocal"): A(f"s_mov_b32 s{SLOC}, 0")
    g.stamp(7)
    if opts.get("gop", 0) == 0: A(f"ds_write_b32 v38, v38 offset:{L_GO}")
    unpack4(g, 28, 32, 2)
    unpack4(g, 24, 16, 2)
    for i in range(4): A(f"v_add_f32 v{28+i}, 1.0, v{28+i}")
    for i in range(4): rnd(g, 28+i)
    for i in range(4): A(f"v_mul_f32 v{20+i}, v{20+i}, v{28+i}")
    for i in range(4): rnd(g, 20+i)
    for i in range(4): A(f"v_add_f32 v{20+i}, v{20+i}, v{24+i}")
    A("v_cvt_pk_bf16_f32 v16, v20, v21")
    A("v_cvt_pk_bf16_f32 v17, v22, v23")
    A(f"ds_write_b64 v12, v[16:17] offset:{L_ACT}")
    hs_signal(g, 8, 9); hs_wait(g, 8, 9, 0)
    gemv(g, 16, 14, 8)
    pack_tagged()
    guard(g, 8); guard(g, 10)
    for x in EX8: A(x)
    pub_local(g, "global_store_dwordx4 v13, v[8:11], s[42:43]")
    A("s_mov_b64 exec, -1")
    if opts.get("gop", 0) == 1: A(f"ds_write_b32 v38, v38 offset:{L_GO}")
    g.stamp(2)
    A("s_mov_b32 s60, 0")
    A("s_branch L_svc1")

    PD = opts.get("PD", 4)
    def dma_waves_only(skip, c3=False):
        A("s_sub_u32 s53, s5, 1")
        A("s_cmp_gt_u32 s53, 1")
        A(f"s_cbranch_scc1 {skip}")
        if c3 and opts.get("PD3s", 0):
            e = g.uniq("c3")
            A("s_and_b32 s49, s61, 7"); A("s_cmp_lg_u32 s49, 3"); A(f"s_cbranch_scc1 {e}")
            dma_tile64(g, c3, WFL, opts["PD3s"])
            A(f"s_branch {skip}")
            g.lab(e)
        if c3 and TOUCH == 1 and opts.get('c3d', 1):
            e = g.uniq("c3")
            A("s_and_b32 s49, s61, 7"); A("s_cmp_lg_u32 s49, 3"); A(f"s_cbranch_scc1 {e}")
            poll_lds(g, [f"ds_read_b32 v8, v38 offset:{L_PG}"], [8], 9, 8)
            dma_tile64(g, c3, WFL, opts.get("PD3", 32))
            A(f"s_branch {skip}")
            g.lab(e)
    g.lab("L_r_modb")
    mod_params()
    A("global_load_dwordx2 v[14:15], v13, s[34:35]")
    clear_issue(0)
    if UNI:
        dma_tile64(g, 6144, WFL)
        A("s_barrier")
    make_tag()
    A(f"s_waitcnt vmcnt({16 if UNI else 0})")
    hdr_signal(16 if UNI else 0)
    mod_act()
    A("s_mov_b32 s60, 4")
    if not UNI:
        dma_waves_only("L_sig", 6144)
        dma_tile64(g, 6144, WFL, PD)
    A("s_branch L_sig")

    g.lab("L_r_wo")
    A("s_and_b32 s66, s2, 7")
    A("s_lshl_b32 s48, s66, 19")
    A("s_lshl_b32 s49, s61, 7")
    A("s_add_u32 s48, s48, s49")
    A("s_lshr_b32 s58, s66, 1"); A("s_lshl_b32 s58, s58, 14")
    A("s_and_b32 s49, s66, 1"); A("s_lshl_b32 s49, s49, 12"); A("s_add_u32 s58, s58, s49")
    A("s_lshl_b32 s49, s61, 9")
    A("s_add_u32 s58, s58, s49")
    A(f"s_add_u32 s58, s58, {WS_AP}")
    clear_issue(0 if APT else 1)
    srd(g, 44, 24, 4096*1024)
    if UNI:
        dma_tile64(g, 1024, WFL)
        A("s_barrier")
    make_tag()
    hdr_signal(16 if UNI else 0)
    g.C("wave 3 times two fresh lines on either memory side and votes which hand-off copy its die should read (speed only)")
    e = g.uniq("nr"); l = g.uniq("nrl")
    A("s_cmp_lg_u32 s5, 3"); A(f"s_cbranch_scc1 {e}")
    A("s_lshl_b32 s49, s61, 14")
    A("s_lshl_b32 s50, s8, 10"); A("s_add_u32 s49, s49, s50"); A(f"s_add_u32 s49, s49, {WS_PRB}")
    A(f"s_add_u32 s50, s49, {opts.get('nprobe', 2)*128}")
    A("s_mov_b32 s54, -1"); A("s_mov_b32 s55, -1")
    g.lab(l)
    for c in range(2):
        A("s_memtime s[64:65]")
        A("s_waitcnt lgkmcnt(0)")
        A("s_load_dword s51, s[42:43], s49")
        A("s_waitcnt lgkmcnt(0)")
        A("s_memtime s[68:69]")
        A("s_waitcnt lgkmcnt(0)")
        A("s_sub_u32 s68, s68, s64")
        A(f"s_min_u32 s{54+c}, s{54+c}, s68")
        A("s_xor_b32 s49, s49, 0x2000")
    A("s_add_u32 s49, s49, 128")
    A("s_cmp_lt_u32 s49, s50"); A(f"s_cbranch_scc1 {l}")
    A("s_cmp_lt_u32 s55, s54")
    A("s_cselect_b32 s54, 1, 0")
    A(f"s_sub_u32 s55, s{SXCC}, s{ST}"); A("s_lshr_b32 s55, s55, 2")
    A("s_xor_b32 s54, s54, s55"); A("s_and_b32 s54, s54, 1")
    A(f"s_add_u32 s54, s54, s{ST}")
    A("s_sub_u32 s55, s2, 64"); A("s_lshl_b32 s55, s55, 2")
    A("v_mov_b32 v8, s55"); A("v_mov_b32 v9, s54")
    A("s_mov_b64 exec, 1")
    A(f"global_store_dword v8, v9, s[42:43] offset:{WS_VOT} sc1")
    A("s_mov_b64 exec, -1")
    g.lab(e)
    A("s_mov_b32 s60, 1")
    if not UNI:
        dma_waves_only("L_sig", 1024)
        dma_tile64(g, 1024, WFL, opts.get("PDW", PD))
    A("s_branch L_sig")

    def f1_lane():
        A("v_lshrrev_b32 v2, 2, v1")
        A("v_mul_u32_u24 v2, 2752, v2")
        A("v_bfe_u32 v3, v1, 4, 1")
        A("s_and_b32 s49, s5, 2")
        A("v_or_b32 v3, s49, v3")
        A("v_xor_b32 v3, v3, v1")
        A("v_and_b32 v3, 3, v3")
        A("v_lshl_add_u32 v2, v3, 4, v2")
    PAR = opts.get("par", 1)
    def f1_lane_par(sp):
        A("v_lshrrev_b32 v2, 2, v1")
        A("v_mul_u32_u24 v2, 5504, v2")
        A("s_and_b32 s49, s5, 2")
        A(f"s_or_b32 s49, s49, {sp}")
        A("v_xor_b32 v3, s49, v1")
        A("v_and_b32 v3, 3, v3")
        A("v_lshl_add_u32 v2, v3, 4, v2")
    def f2_lane():
        A("v_lshrrev_b32 v2, 1, v1")
        A("v_lshlrev_b32 v2, 10, v2")
        A("v_and_b32 v3, 1, v1")
        A("v_lshl_add_u32 v2, v3, 4, v2")

    g.lab("L_r_f1")
    A("s_lshl_b32 s48, s61, 6")
    A("s_mul_i32 s49, s61, 47"); A("s_lshr_b32 s49, s49, 9")
    A(f"s_mul_i32 s49, s49, {16384-11*512}")
    A("s_lshl_b32 s58, s61, 9")
    A("s_add_u32 s58, s58, s49")
    A(f"s_add_u32 s58, s58, {WS_HH}")
    clear_issue(1)
    A("s_cmp_lt_u32 s5, 2")
    A("s_cselect_b32 s44, s28, s30")
    A("s_cselect_b32 s45, s29, s31")
    A(f"s_mov_b32 s46, {512*2752}"); A("s_mov_b32 s47, 0x20000")
    A("s_mov_b32 s60, 2")
    if opts.get("tlbw", 0):
        A("global_load_dword v167, v38, s[16:17]")
        A("buffer_load_dword v167, v38, s[44:47], 0 offen")
    if not UNI:
        make_tag()
        hdr_signal(0)
    dma_waves_only("L_uni" if UNI else "L_svc1")
    if PAR:
        A("s_and_b32 s54, s61, 1")
        f1_lane_par("s54")
        A("s_mul_i32 s49, s54, 2752"); A("s_add_u32 s49, s49, s48")
        A("s_lshl_b32 s50, s53, 15"); A("s_lshl_b32 s54, s54, 14"); A("s_add_u32 s50, s50, s54")
        A(f"s_add_u32 s50, s50, {L_WT}")
        dma_loop(g, 16, 32*2752, opts.get("f1e", ""), opts.get("PD1", 2))
    else:
        f1_lane()
        for q in range(2):
            A(f"s_add_u32 s49, s48, {q*256*2752}")
            A("s_lshl_b32 s50, s53, 15")
            A(f"s_add_u32 s50, s50, {L_WT+q*16384}")
            dma_loop(g, "s59", 16*2752, WFL, 0 if UNI else opts.get("PD1", 2))
    A("s_branch L_uni" if UNI else "s_branch L_svc1")

    g.lab("L_r_f2")
    clear_issue(0)
    srd(g, 44, 32, 1376*1024)
    if not UNI:
        make_tag()
        hdr_signal(0)
    A("s_mov_b32 s60, 3")
    A("s_lshl_b32 s48, s61, 5")
    A("global_load_dword v167, v38, s[38:39]")
    if opts.get("tlbw", 0):
        A("global_load_dword v167, v38, s[16:17]")
        A("global_load_dword v167, v38, s[32:33]")
    if TOUCH:
        e = g.uniq("tch")
        A("s_cmp_lg_u32 s5, 3"); A(f"s_cbranch_scc1 {e}")
        A("s_and_b32 s49, s61, 3"); A("s_lshl_b32 s49, s49, 7")
        A("v_add_u32 v8, s49, v1")
        TF = opts.get("tflags", "")
        def touch(base, stride, off_s):
            A(f"v_mul_u32_u24 v9, {stride}, v8")
            A(f"v_add_u32 v9, {off_s}, v9")
            A(f"v_add_u32 v10, {64*stride}, v9")
            if not opts.get("th", 0): A(f"global_load_dword v167, v9, s[{base}:{base+1}] {TF}")
            A(f"global_load_dword v167, v10, s[{base}:{base+1}] {TF}")
        e2 = g.uniq("tchm")
        A("s_bfe_u32 s50, s14, 0x50003")
        A("s_cmp_eq_u32 s50, 0"); A(f"s_cbranch_scc1 {e2}")
        A("s_lshl_b32 s50, s50, 10"); A(f"s_sub_u32 s50, s50, {1024-384}")
        touch(36, 6144, "s50")
        g.lab(e2)
        A("s_lshl_b32 s50, s8, 10"); A("s_add_u32 s50, s50, 384")
        touch(22, 8192, "s50")
        if TOUCH == 1:
            A("s_waitcnt vmcnt(0)")
            A("s_lshl_b32 s50, s8, 19"); A("s_add_u32 s50, s50, 384")
            touch(24, 1024, "s50")
        g.lab(e)
    dma_waves_only("L_uni" if UNI else "L_svc1")
    f2_lane()
    for q in range(2):
        A(f"s_mul_i32 s49, s53, {22*32*1024}")
        A("s_add_u32 s49, s49, s48")
        A(f"s_add_u32 s49, s49, {q*11*32*1024}")
        A("s_mul_i32 s50, s53, 22528")
        A(f"s_add_u32 s50, s50, {L_WT+q*11264}")
        dma_loop(g, "s59", 32*1024, WFL, 0 if UNI else opts.get("PD2", 1))
    A("s_branch L_uni" if UNI else "s_branch L_svc1")

    g.lab("L_r_none")
    clear_issue(0)
    A("s_mov_b32 s60, 0")
    g.lab("L_uni")
    if UNI: A("s_barrier")
    make_tag()
    hdr_signal(0)
    A("s_branch L_svc1")

    g.lab("L_sig")
    A("s_waitcnt vmcnt(0) lgkmcnt(0)")
    g.stamp(1)
    hs_signal(g, 8, 9)

    g.lab("L_svc1")
    if opts.get("nohelp") == 2:
        A("s_endpgm")
    A("s_cmp_lg_u32 s5, 0")
    A("s_cbranch_scc1 L_disp2")
    A("s_lshl_b32 s64, s6, 9")
    A(f"s_add_u32 s64, s64, {WS_Q}")
    A("v_and_b32 v17, 31, v1")
    A("v_lshl_add_u32 v16, v17, 4, s64")
    A("v_lshlrev_b32 v17, 3, v17")
    poll_lds(g, [f"ds_read_b32 v8, v38 offset:{L_PG}"], [8], 9, 8)
    poll_tagged(g, ["global_load_dwordx4 v[20:23], v16, s[42:43] sc1", "HDR"], [21, 23], sleep=opts.get("qsleep", 0))
    A("v_mov_b32 v21, v22")
    A(f"ds_write_b64 v17, v[20:21] offset:{L_QV}")
    g.stamp(3)

    g.lab("L_disp2")
    if opts.get("nohelp") == 3:
        A("s_endpgm")
    if not opts.get("mlate"):
        A("s_cmp_eq_u32 s60, 4"); A("s_cbranch_scc1 L_d_modb")
        A("s_branch L_svc2")
        g.lab("L_d_modb")
        mod_finish(0)

    g.lab("L_svc2")
    def pf2_loads(wait):
        l = g.uniq("pf2l")
        NLN = opts.get("pfl", 64)
        poll_lds(g, [f"ds_read_b32 v8, v38 offset:{(L_PG, L_QV, L_ML)[opts.get('pf2', 2)-1]}"], [8], 9, 16)
        A("s_and_b32 s49, s61, 3"); A(f"s_mul_i32 s49, s49, {344*1024}")
        A("s_add_u32 s49, s49, s48")
        A(f"s_add_u32 s50, s49, {opts.get('pfr', 128)*1024}")
        A("v_lshlrev_b32 v8, 10, v1")
        A(f"s_mov_b32 exec_lo, 0x{((1 << min(NLN, 32)) - 1):x}"); A(f"s_mov_b32 exec_hi, 0x{((1 << NLN) - 1) >> 32:x}")
        g.lab(l)
        A(f"buffer_load_dword v167, v8, s[44:47], s49 offen {opts.get('tflags', '')}")
        A(f"s_add_u32 s49, s49, {NLN*1024}")
        if wait: A(f"s_waitcnt vmcnt({opts.get('pfd', 1) - 1})")
        A("s_cmp_lt_u32 s49, s50"); A(f"s_cbranch_scc1 {l}")
        A("s_mov_b64 exec, -1")
    def early3():
        e = g.uniq("e3")
        A("s_and_b32 s49, s60, 6"); A("s_cmp_lg_u32 s49, 2"); A(f"s_cbranch_scc1 {e}")
        poll_lds(g, [f"ds_read_b32 v8, v38 offset:{L_PG}"], [8], 9, 32)
        check_all_hdr(g, 10, VA)
        if opts.get("pf2", 2):
            A("s_cmp_lg_u32 s60, 3"); A(f"s_cbranch_scc1 {e}")
            pf2_loads(False)
        g.lab(e)
    def merge(nl):
        A(f"v_and_b32 v9, {nl-1}, v1")
        A("v_lshlrev_b32 v9, 3, v9")
        A(f"ds_read_b64 v[10:11], v9 offset:{L_ST}")
        mods = ["quad_perm:[1,0,3,2]", "quad_perm:[2,3,0,1]", "row_half_mirror", "row_mirror"][:3 if nl == 8 else 4]
        A("s_waitcnt lgkmcnt(0)")
        for i, m_ in enumerate(mods):
            src = 10 if i == 0 else 8
            A(f"v_max_f32_dpp v8, v{src}, v{src} {m_} row_mask:0xf bank_mask:0xf")
            if i + 1 < len(mods): A("s_nop 1")
        A("v_sub_f32 v10, v10, v8")
        A(f"v_mul_f32 v10, 0x{LOG2E:08x}, v10")
        A("v_exp_f32 v10, v10")
        A("s_nop 0")
        A("v_mul_f32 v10, v10, v11")
        for m_ in mods:
            A("s_nop 1")
            A(f"v_add_f32_dpp v10, v10, v10 {m_} row_mask:0xf bank_mask:0xf")
    if SPV:
        A("s_lshl_b32 s64, s6, 9"); A(f"s_add_u32 s64, s64, {WS_S2}")
        A("s_cmp_eq_u32 s5, 3")
        A("s_cbranch_scc1 L_svc3")
        A("s_cmp_lg_u32 s5, 0")
        A("s_cbranch_scc1 L_disp3")
        A("s_lshl_b32 s65, s7, 7"); A("s_add_u32 s65, s65, s64")
        A("v_mov_b32 v18, s65")
        l = g.uniq("sn"); e = g.uniq("snd")
        A("s_mov_b32 s70, 0")
        g.lab(l)
        A(f"ds_read_b32 v8, v38 offset:{L_SCN}")
        A("s_waitcnt lgkmcnt(0)")
        A("v_and_b32 v8, 0xffff, v8")
        A("v_cmp_gt_u32 vcc, 0x200, v8")
        spin_tail(g, l, e, 1, 8)
        merge(8)
        A(f"v_mov_b32 v9, s{ST}"); A(f"v_mov_b32 v11, s{ST}")
        A("s_mov_b64 exec, 1")
        A("global_store_dwordx4 v18, v[8:11], s[42:43] sc1")
        A("s_mov_b64 exec, -1")
        g.stamp(4)
        l = g.uniq("sn"); e = g.uniq("snd")
        A("s_mov_b32 s70, 0")
        g.lab(l)
        A(f"ds_read_b32 v8, v38 offset:{L_SCN}")
        A("s_waitcnt lgkmcnt(0)")
        A("v_cmp_gt_u32 vcc, 0x10000, v8")
        spin_tail(g, l, e, 2, 8)
        merge(16)
        A("v_rcp_f32 v10, v10")
        A("s_nop 0")
        A("v_readfirstlane_b32 s67, v10")
        A(f"ds_write_b32 v38, v38 offset:{L_ML}")
        g.stamp(5)
        A("s_branch L_disp3")
        g.lab("L_svc3")
        early3()
        for i in range(3):
            A(f"s_xor_b32 s{54+i}, s7, {i+1}"); A(f"s_lshl_b32 s{54+i}, s{54+i}, 7"); A(f"s_add_u32 s{54+i}, s{54+i}, s64")
        l = g.uniq("sn"); e = g.uniq("snd")
        A("s_mov_b32 s70, 0")
        g.lab(l)
        A(f"ds_read_b32 v8, v38 offset:{L_SCN}")
        A("s_waitcnt lgkmcnt(0)")
        A("v_cmp_eq_u32 vcc, 0, v8")
        spin_tail(g, l, e, 4, 8)
        A("s_mov_b32 s70, 0")
        g.lab("L_s3p")
        SB = 20
        for i in range(3): A(f"s_load_dwordx4 s[{SB+4*i}:{SB+4*i+3}], s[42:43], s{54+i} glc")
        A("s_waitcnt lgkmcnt(0)")
        A(f"s_xor_b32 s68, s{SB+1}, s{ST}")
        for k in range(1, 6):
            A(f"s_xor_b32 s69, s{SB+1+2*k}, s{ST}"); A("s_or_b32 s68, s68, s69")
        A("s_cbranch_scc0 L_s3d")
        A("s_add_u32 s70, s70, 1")
        A(f"s_cmp_lt_u32 s70, {SPIN_MAX}")
        A("s_cbranch_scc1 L_s3p")
        g.lab("L_s3d")
        A(f"v_mov_b32 v8, s{SB}"); A(f"v_mov_b32 v9, s{SB+2}"); A(f"v_mov_b32 v10, s{SB+4}"); A(f"v_mov_b32 v11, s{SB+6}")
        A(f"v_mov_b32 v16, s{SB+8}"); A(f"v_mov_b32 v17, s{SB+10}")
        A("v_max3_f32 v18, v8, v10, v16")
        A("v_mov_b32 v19, 0x10000")
        A("s_mov_b64 exec, 1")
        A(f"ds_max_f32 v38, v18 offset:{L_MX}")
        A(f"ds_write_b128 v38, v[8:11] offset:{L_ST+64}")
        A(f"ds_write_b64 v38, v[16:17] offset:{L_ST+80}")
        A(f"ds_add_u32 v38, v19 offset:{L_SCN}")
        A("s_mov_b64 exec, -1")
    else:
        A("s_cmp_lg_u32 s5, 0")
        A("s_cbranch_scc1 L_disp3")
        A("v_lshlrev_b32 v16, 4, v1")
        A("s_lshl_b32 s64, s6, 6"); A(f"s_add_u32 s64, s64, {WS_ST}")
        A("s_lshl_b32 s65, s7, 4"); A("s_add_u32 s65, s65, s64")
        A("v_mov_b32 v18, s65")
        A("v_and_b32 v17, 3, v1")
        A("v_lshl_add_u32 v17, v17, 4, s64")
        poll_lds(g, [f"ds_read_b128 {vr(VA+4*i,4)}, v16 offset:{L_SC+1024*i}" for i in range(4)], range(VA, VA+16), 8, 2)
        A(f"v_max3_f32 v8, v{VA}, v{VA+1}, v{VA+2}")
        for i in range(3, 15, 2): A(f"v_max3_f32 v8, v8, v{VA+i}, v{VA+i+1}")
        A(f"v_max_f32 v8, v8, v{VA+15}")
        wave_allreduce(g, "v_max_f32", 8, 11)
        for i in range(16): A(f"v_sub_f32 v{VA+i}, v{VA+i}, v8")
        for i in range(16): A(f"v_mul_f32 v{VA+i}, 0x{LOG2E:08x}, v{VA+i}")
        for i in range(16): A(f"v_exp_f32 v{VA+i}, v{VA+i}")
        A("s_nop 0")
        for st in (8, 4, 2, 1):
            for i in range(st): A(f"v_add_f32 v{VA+i}, v{VA+i}, v{VA+i+st}")
        A(f"v_mov_b32 v10, v{VA}")
        wave_allreduce(g, "v_add_f32", 10, 11)
        A(f"v_mov_b32 v9, s{ST}"); A(f"v_mov_b32 v11, s{ST}")
        A("s_mov_b64 exec, 1")
        pub_local(g, "global_store_dwordx4 v18, v[8:11], s[42:43]")
        A("s_mov_b64 exec, -1")
        g.stamp(4)
        poll_tagged(g, ["global_load_dwordx4 v[20:23], v17, s[42:43] sc1"], [21, 23], sleep=opts.get("ssleep", 1))
        A("v_max_f32_dpp v10, v20, v20 quad_perm:[1,0,3,2] row_mask:0xf bank_mask:0xf")
        A("s_nop 1")
        A("v_max_f32_dpp v10, v10, v10 quad_perm:[2,3,0,1] row_mask:0xf bank_mask:0xf")
        A("v_sub_f32 v8, v20, v10")
        A(f"v_mul_f32 v8, 0x{LOG2E:08x}, v8")
        A("v_exp_f32 v8, v8")
        A("s_nop 0")
        A("v_mul_f32 v9, v22, v8")
        A("s_nop 1")
        A("v_add_f32_dpp v9, v9, v9 quad_perm:[1,0,3,2] row_mask:0xf bank_mask:0xf")
        A("s_nop 1")
        A("v_add_f32_dpp v9, v9, v9 quad_perm:[2,3,0,1] row_mask:0xf bank_mask:0xf")
        A("v_rcp_f32 v11, v9")
        A("s_nop 0")
        guard(g, 10); guard(g, 11)
        A(f"ds_write_b64 v38, v[10:11] offset:{L_ML}")
        g.stamp(5)

    g.lab("L_disp3")
    if opts.get("mlate"):
        A("s_cmp_lg_u32 s60, 4"); A("s_cbranch_scc1 L_nomb")
        poll_lds(g, [f"ds_read_b32 v8, v38 offset:{(L_ML, L_SC)[opts['mlate']-1]}"], [8], 9, 16)
        mod_finish(0)
        g.lab("L_nomb")
    DRY = opts.get("dry", 1)
    A("s_mov_b32 s77, 0")
    for i in range(4): A(f"s_bfe_u32 s{62+i}, s{ST}, 0x{(8 << 16) | (8 * i):x}")
    if DRY:
        A("s_cmp_lg_u32 s5, 1"); A("s_cbranch_scc1 L_dry_ret")
        A("s_mov_b32 s77, 1")
        for r in (5, 6, 7, 14, 30): A(f"v_mov_b32 v{r}, {L_RED}")
        A("v_mov_b32 v2, 0")
        A("v_mov_b32 v7, 0")
        A("s_mov_b64 s[50:51], -1")
        A("s_branch L_dry_op")
        g.lab("L_dry_1")
        A("s_cmp_eq_u32 s60, 1"); A("s_cbranch_scc1 L_wo_ok")
        A("s_cmp_eq_u32 s60, 2"); A("s_cbranch_scc1 L_f1_ok")
        A("s_cmp_eq_u32 s60, 3"); A("s_cbranch_scc1 L_f2_ok")
        g.lab("L_dry_end")
        A("s_mov_b64 exec, -1")
        A("s_mov_b32 s77, 0")
        g.lab("L_dry_ret")
    def tbar():
        if DRY:
            l = g.uniq("nb")
            A("s_cmp_eq_u32 s77, 1"); A(f"s_cbranch_scc1 {l}")
            A("s_barrier")
            g.lab(l)
        else: A("s_barrier")
    def dry_out(lbl="L_dry_end"):
        if DRY:
            A("s_cmp_eq_u32 s77, 1"); A(f"s_cbranch_scc1 {lbl}")
    if opts.get("optouch", 1):
        e = g.uniq("opt")
        A("s_cmp_lg_u32 s5, 2"); A(f"s_cbranch_scc1 {e}")
        poll_lds(g, [f"ds_read_b32 v8, v38 offset:{L_ML}"], [8], 9, 32)
        A("s_lshl_b32 s56, s6, 2"); A("s_add_u32 s56, s56, s7")
        A("s_lshl_b32 s57, s56, 9"); A(f"s_add_u32 s57, s57, {WS_OP}")
        A("v_lshl_add_u32 v3, v1, 3, s57")
        A("global_load_dword v167, v3, s[42:43] sc1")
        g.lab(e)
    A("s_cmp_eq_u32 s60, 2"); A("s_cbranch_scc1 L_pre_f1")
    A("s_cmp_eq_u32 s60, 3"); A("s_cbranch_scc1 L_pre_f2")
    A("s_cmp_lg_u32 s60, 1"); A("s_cbranch_scc1 L_join")
    hs_wait(g, 4, 9, 8)
    tr_tile64(g)
    A("s_lshl_b32 s49, s66, 2"); A("s_add_u32 s49, s49, s5"); A("s_lshl_b32 s49, s49, 11")
    A(f"s_add_u32 s49, s49, {WS_OP}")
    A("v_lshrrev_b32 v12, 5, v1")
    A("v_and_b32 v16, 31, v1")
    A("v_lshlrev_b32 v15, 16, v12")
    A("v_lshl_add_u32 v15, v16, 4, v15")
    A("v_add_u32 v15, s49, v15")
    A(f"v_mul_u32_u24 v12, {ACT_BS}, v12")
    A("v_bfe_u32 v16, v1, 3, 2")
    A("v_lshl_add_u32 v12, v16, 6, v12")
    A("v_and_b32 v16, 3, v1")
    A("v_lshl_add_u32 v12, v16, 4, v12")
    A("v_bfe_u32 v16, v1, 2, 1")
    A("v_lshl_add_u32 v12, v16, 3, v12")
    A("s_lshl_b32 s49, s5, 8")
    A("v_add_u32 v12, s49, v12")
    act_addr(g, 14, L_ACT, ACT_BS)
    line_out_addr(13)
    A("v_add_u32 v37, 0x2000, v13")
    A("v_mov_b32 v36, 0xff")
    A("s_branch L_join")

    adr = [15, 35, 32, 36, 33, 37, 34, 39]
    def ap_addrs():
        for i in range(1, 8): A(f"v_add_u32 v{adr[i]}, {(i >> 1) * 16384 + (i & 1) * 4096}, v15")
    def hdr_wave():
        if SPV: return
        e = g.uniq("hc")
        A("s_cmp_lg_u32 s5, 3"); A(f"s_cbranch_scc1 {e}")
        poll_lds(g, [f"ds_read_b32 v8, v38 offset:{L_QV}"], [8], 9, 32)
        check_all_hdr(g, 10, VA)
        g.lab(e)
    def near_copy():
        poll_lds(g, [f"ds_read_b32 v11, v38 offset:{L_NR}"], [11], 9, 8)

    PG = VA + 32
    def pre_gather(addrs, hdr, dma, nyoung):
        n = len(addrs)
        l = g.uniq("pg"); c = g.uniq("pgc"); e = g.uniq("pge")
        def loads():
            for i, a in enumerate(addrs): A(f"global_load_dwordx4 {vr(PG+4*i,4)}, v{a}, s[42:43] sc1")
            if hdr: A(f"global_load_dwordx4 {vr(PG+12,4)}, v10, s[42:43] offset:{WS_HDR} sc1")
        if hdr: A("v_lshlrev_b32 v10, 4, v1")
        A("global_load_dwordx2 v[8:9], v31, s[16:17]")
        loads()
        dma()
        A("s_mov_b32 s70, 0")
        A(f"s_waitcnt vmcnt({nyoung})")
        A(f"s_branch {c}")
        g.lab(l)
        loads()
        A("s_waitcnt vmcnt(0)")
        g.lab(c)
        if hdr:
            for i in range(4): A(f"v_subrev_u32 v{PG+12+i}, s{ST}, v{PG+12+i}")
            A(f"v_max3_u32 v11, v{PG+12}, v{PG+13}, v{PG+14}")
            A(f"v_max_u32 v11, v11, v{PG+15}")
            A("v_cmp_lt_u32 vcc, 15, v11")
        else: A("s_mov_b64 vcc, 0")
        for i in range(2 * n):
            A(f"v_cmp_ne_u32 s[68:69], s{ST}, v{PG+1+2*i}")
            A("s_or_b64 vcc, vcc, s[68:69]")
        spin_tail(g, l, e, 4)

    g.lab("L_pre_f1")
    hdr_wave()
    A("v_mov_b32 v31, v13")
    A("v_lshlrev_b32 v15, 4, v0")
    A(f"v_add_u32 v24, {WS_MOD+2*4096}, v15")
    A(f"v_add_u32 v25, {WS_MOD+3*4096}, v15")
    A(f"v_add_u32 v26, {WS_MOD+4*4096}, v15")
    near_copy()
    A(f"v_add_u32 v15, {WS_AP}, v15")
    A("v_add_u32 v15, v11, v15")
    ap_addrs()
    ln_addrs()
    A("v_and_b32 v14, 7, v1")
    A(f"v_mul_u32_u24 v14, {ACT_BS}, v14")
    A("v_lshrrev_b32 v3, 4, v1")
    A("v_lshl_add_u32 v14, v3, 4, v14")
    A("v_and_b32 v7, 1, v1")
    A("v_lshlrev_b32 v7, 5, v7")
    A("v_and_b32 v13, 1, v1")
    A("v_lshlrev_b32 v13, 4, v13")
    A("v_bfe_u32 v3, v1, 4, 1")
    A("v_lshl_add_u32 v13, v3, 3, v13")
    A("s_lshl_b32 s49, s5, 7")
    A("s_add_u32 s49, s49, s58")
    A("v_add_u32 v13, s49, v13")
    A("v_lshrrev_b32 v3, 5, v1")
    A("v_lshl_add_u32 v13, v3, 2, v13")
    A("v_add_u32 v4, 0x2000, v13")
    E1 = 8 if PAR else early(C_F1, 0)
    if PAR:
        A("s_andn2_b32 s54, 1, s61")
        f1_lane_par("s54")
        A("v_mov_b32 v29, v2")
        A("v_lshrrev_b32 v6, 3, v1")
        A("v_lshlrev_b32 v6, 6, v6")
        A("v_bfe_u32 v3, v1, 2, 1")
        A("v_lshl_add_u32 v6, v3, 14, v6")
        A("v_and_b32 v8, 2, v1")
        A("v_or_b32 v3, v3, v8")
        A("v_xor_b32 v3, s5, v3")
        A("v_lshl_add_u32 v6, v3, 4, v6")
        A("v_lshl_add_u32 v6, v8, 14, v6")
        A("v_and_b32 v3, 1, v1")
        A("v_lshl_add_u32 v6, v3, 3, v6")
        A(f"v_add_u32 v6, {L_WT}, v6")
        A("s_and_b32 s55, s5, 1")
        A(f"s_mul_i32 s49, s55, {256*2752}")
        A("s_add_u32 s49, s49, s48")
        A("s_mul_i32 s50, s54, 2752"); A("s_add_u32 s49, s49, s50")
        A("s_lshr_b32 s50, s5, 1"); A("s_lshl_b32 s50, s50, 15")
        A("s_lshl_b32 s54, s54, 14"); A("s_add_u32 s50, s50, s54")
        A("s_lshl_b32 s55, s55, 13"); A("s_add_u32 s50, s50, s55")
        A(f"s_add_u32 s50, s50, {L_WT}")
    else:
        f1_lane()
        A("v_mov_b32 v29, v2")
        A("v_lshrrev_b32 v6, 2, v1")
        A("v_lshlrev_b32 v6, 6, v6")
        A("v_bfe_u32 v3, v1, 4, 1")
        A("v_and_b32 v8, 2, v1")
        A("v_or_b32 v3, v3, v8")
        A("v_xor_b32 v3, s5, v3")
        A("v_lshl_add_u32 v6, v3, 4, v6")
        A("v_lshl_add_u32 v6, v8, 14, v6")
        A("v_and_b32 v3, 1, v1")
        A("v_lshl_add_u32 v6, v3, 3, v6")
        A(f"v_add_u32 v6, {L_WT}, v6")
        A("s_and_b32 s49, s5, 1")
        A(f"s_mul_i32 s49, s49, {256*2752}")
        A("s_add_u32 s49, s49, s48")
        A(f"s_add_u32 s49, s49, {E1*16*2752}")
        A("s_lshl_b32 s50, s5, 14")
        A(f"s_add_u32 s50, s50, {L_WT+E1*1024}")
    A("s_branch L_join")

    g.lab("L_pre_f2")
    hdr_wave()
    if opts.get("pf2", 2) and not SPV:
        e = g.uniq("pf2")
        A("s_cmp_lg_u32 s5, 3"); A(f"s_cbranch_scc1 {e}")
        pf2_loads(True)
        g.lab(e)
    A("v_and_b32 v12, 1, v1")
    A("v_lshrrev_b32 v14, 4, v1")
    A("s_lshl_b32 s49, s61, 5")
    A("v_lshl_add_u32 v3, v14, 3, s49")
    A("v_lshl_add_u32 v13, v12, 10, v3")
    A("v_mov_b32 v31, v13")
    A("v_lshlrev_b32 v15, 6, v12")
    A("v_lshl_add_u32 v15, v14, 4, v15")
    A("s_lshl_b32 s49, s61, 7")
    A("v_add_u32 v15, s49, v15")
    A(f"v_add_u32 v24, {WS_MOD+2*4096}, v15")
    A(f"v_add_u32 v25, {WS_MOD+5*4096}, v15")
    near_copy()
    A(f"v_add_u32 v15, {WS_AP}, v15")
    A("v_add_u32 v15, v11, v15")
    ap_addrs()
    A("s_lshl_b32 s49, s5, 14")
    A(f"s_add_u32 s49, s49, {WS_HH+2048}")
    A("v_lshl_add_u32 v28, v14, 7, s49")
    A("v_add_u32 v28, v11, v28")
    A("v_lshl_add_u32 v28, v12, 4, v28")
    A("v_bfe_u32 v3, v1, 2, 2")
    A("v_lshl_add_u32 v28, v3, 9, v28")
    A("v_lshl_add_u32 v12, v14, 1, v12")
    A("v_lshlrev_b32 v12, 4, v12")
    A(f"v_add_u32 v12, {L_RED}, v12")
    A("s_lshl_b32 s49, s5, 7")
    A("v_add_u32 v30, s49, v12")
    f2_lane()
    A("v_mov_b32 v29, v2")
    A("v_lshlrev_b32 v6, 8, v14")
    A("v_bfe_u32 v3, v1, 2, 2")
    A("v_lshl_add_u32 v6, v3, 5, v6")
    A("v_and_b32 v3, 3, v1")
    A("v_lshl_add_u32 v6, v3, 3, v6")
    A("s_mul_i32 s49, s5, 11264")
    A(f"s_add_u32 s49, s49, {L_WT}")
    A("v_add_u32 v6, s49, v6")

    g.lab("L_join")
    if opts.get("nohelp") == 4:
        A("s_endpgm")
    A("v_lshlrev_b32 v2, 3, v1")
    A("s_lshl_b32 s56, s6, 2"); A("s_add_u32 s56, s56, s7")
    A("s_lshl_b32 s57, s56, 9"); A(f"s_add_u32 s57, s57, {WS_OP}")
    A("v_lshl_add_u32 v3, v1, 3, s57")
    A("v_and_b32 v8, 1, v1")
    A("v_lshlrev_b32 v8, 4, v8")
    A(f"v_lshrrev_b32 v8, v8, s{ST}")
    A("v_lshrrev_b32 v9, 8, v8")
    A("s_movk_i32 s56, 0xff")
    A("s_waitcnt vmcnt(0) lgkmcnt(0)")
    g.stamp(9)
    A("s_barrier")
    g.stamp(6)
    A("s_cmp_lg_u32 s5, 0")
    A("s_cbranch_scc1 L_tail")
    g.lab("L_dry_op")
    for i in range(8):
        A(f"ds_read_b64 {vr(VA+2*i,2)}, v2 offset:{L_OP+512*i}")
    for i in range(4):
        A(f"s_waitcnt lgkmcnt({6-2*i})")
        A(f"v_pk_add_f32 {vr(VA+4*i,2)}, {vr(VA+4*i,2)}, {vr(VA+4*i+2,2)}")
    A(f"v_pk_add_f32 {vr(VA,2)}, {vr(VA,2)}, {vr(VA+4,2)}")
    A(f"v_pk_add_f32 {vr(VA+8,2)}, {vr(VA+8,2)}, {vr(VA+12,2)}")
    A(f"v_pk_add_f32 {vr(VA,2)}, {vr(VA,2)}, {vr(VA+8,2)}")
    if SPV:
        for i in range(2): A(f"v_mul_f32 v{VA+i}, s67, v{VA+i}")
    A(f"v_bfi_b32 v10, s56, v8, v{VA}")
    A(f"v_bfi_b32 v11, s56, v9, v{VA+1}")
    dry_out("L_dry_1")
    pub_local(g, "global_store_dwordx2 v3, v[10:11], s[42:43]")
    g.lab("L_tail")
    g.tail = True
    g.stamp(9, 2)
    A("s_cmp_eq_u32 s60, 1"); A("s_cbranch_scc1 L_t_wo")
    A("s_cmp_eq_u32 s60, 2"); A("s_cbranch_scc1 L_t_f1")
    A("s_cmp_eq_u32 s60, 3"); A("s_cbranch_scc1 L_t_f2")
    A("s_branch L_fin")

    def sumN(n, src, dst):
        st = n // 2
        for i in range(st):
            for h in range(2):
                A(f"v_pk_add_f32 {vr(dst+4*i+2*h,2)}, {vr(src+4*i+2*h,2)}, {vr(src+4*(i+st)+2*h,2)}")
        st //= 2
        while st:
            for i in range(st):
                for h in range(2):
                    A(f"v_pk_add_f32 {vr(dst+4*i+2*h,2)}, {vr(dst+4*i+2*h,2)}, {vr(dst+4*(i+st)+2*h,2)}")
            st //= 2
    def sum8p(src, dst):
        for p in range(4):
            for h in range(2): A(f"v_pk_add_f32 {vr(dst+8*p+2*h,2)}, {vr(src+8*p+2*h,2)}, {vr(src+8*p+4+2*h,2)}")
        sum8q(dst)
    def sum8q(dst):
        for i in range(2):
            for h in range(2): A(f"v_pk_add_f32 {vr(dst+16*i+2*h,2)}, {vr(dst+16*i+2*h,2)}, {vr(dst+16*i+8+2*h,2)}")
        for h in range(2): A(f"v_pk_add_f32 {vr(dst+2*h,2)}, {vr(dst+2*h,2)}, {vr(dst+16+2*h,2)}")
    def nan_branch(r, ok):
        A(f"v_cmp_u_f32 vcc, v{r}, v{r+1}")
        A(f"v_cmp_u_f32 s[68:69], v{r+2}, v{r+3}")
        A("s_or_b64 vcc, vcc, s[68:69]")
        A(f"s_cbranch_scc0 {ok}")
    def rare(loop, mask):
        if not mask: return
        A("s_add_u32 s71, s71, 1")
        A(f"s_and_b32 s68, s71, {mask}")
        A(f"s_cbranch_scc1 {loop}")
    def x1_from(S):
        for i in range(4): rnd(g, S+i)
        for i in range(4): A(f"v_mul_f32 v{S+i}, v{S+i}, v{20+i}")
        for i in range(4): rnd(g, S+i)
        for i in range(4): A(f"v_add_f32 v{16+i}, v{16+i}, v{S+i}")
        for i in range(4): rnd(g, 16+i)

    g.lab("L_t_wo")
    A("s_mov_b32 s70, 0")
    g.lab("L_wo_p")
    if opts.get("tsleep"): A(f"s_sleep {opts['tsleep']}")
    for i in range(4): A(f"global_load_dwordx4 {vr(VA+4*i,4)}, v15, s[42:43] offset:{512*i} sc1")
    for k in range(16):
        if k % 4 == 0: A(f"s_waitcnt vmcnt({3-k//4})")
        A(f"v_xor_b32 v{VA+k}, s{62+k%4}, v{VA+k}")
    for k in range(5): A(f"v_or3_b32 v{28+k}, v{VA+3*k}, v{VA+3*k+1}, v{VA+3*k+2}")
    A("v_or3_b32 v28, v28, v29, v30")
    A(f"v_or3_b32 v31, v31, v32, v{VA+15}")
    A("v_or_b32 v28, v28, v31")
    A("v_lshlrev_b32 v28, 24, v28")
    A("v_cmp_ne_u32 vcc, 0, v28")
    sumN(4, VA, 16)
    spin_tail(g, "L_wo_p", "L_wo_ok", 0)
    g.stamp(7); g.stamp(1, 2)
    A(f"v_cvt_pk_bf16_f32 v8, v16, v17")
    A(f"v_cvt_pk_bf16_f32 v9, v18, v19")
    A(f"ds_write_b64 v12, v[8:9] offset:{L_ACT}")
    A("s_waitcnt lgkmcnt(0)")
    g.stamp(2, 2)
    tbar()
    g.stamp(3, 2)
    if opts.get("clk"): A("s_memtime s[98:99]")
    gemv(g, 16, 14, 8)
    if opts.get("clk"): A("s_memtime s[90:91]")
    g.stamp(4, 2)
    for i in range(4):
        if APT: A(f"v_bfi_b32 v{8+i}, v36, s{62+i}, v{8+i}")
        else: guard(g, 8+i)
    for x in EX8: A(x)
    dry_out()
    A("global_store_dwordx4 v13, v[8:11], s[42:43] sc1")
    A("global_store_dwordx4 v37, v[8:11], s[42:43] sc1")
    if opts.get("wb", 0):
        A("s_or_b32 s49, s61, s5"); A("s_cmp_lg_u32 s49, 0"); A("s_cbranch_scc1 L_fin")
        if opts["wb"] == 2: A("s_waitcnt vmcnt(0)")
        A("buffer_wbl2 sc1")
        A("s_waitcnt vmcnt(0)")
    g.stamp(2); g.stamp(7, 2)
    A("s_branch L_fin")

    g.lab("L_t_f1")
    A("s_barrier")
    def f1_dma():
        A("v_mov_b32 v2, v29")
        if E1 < 16: dma_loop(g, 16 - E1, (32 if PAR else 16)*2752, WFL)
        if LOOK == 1: look()
    LOOK = opts.get("look", 1)
    def look():
        for i in range(8): A(f"global_load_dwordx4 {vr(VA+4*i,4)}, v{adr[i]}, s[42:43] sc1")
    pre_gather([24, 25, 26], False, f1_dma, 16 - E1 + (8 if LOOK == 1 else 0))
    unpack4(g, 16, 8)
    unpack4(g, 20, PG, 2)
    unpack4(g, 28, PG+8, 2)
    for i in range(4): A(f"v_add_f32 v{28+i}, 1.0, v{28+i}")
    A("v_cvt_pk_bf16_f32 v8, v28, v29"); A("v_cvt_pk_bf16_f32 v9, v30, v31")
    A(f"v_mov_b32 v{PG+5}, v{PG+6}")
    A(f"ds_write_b64 v12, v[8:9] offset:{L_ACT+2*ACT_BS}")
    A(f"ds_write_b64 v12, {vr(PG+4,2)} offset:{L_ACT+4*ACT_BS}")
    for i in range(4): rnd(g, 28+i)
    for i in range(4): A(f"v_mul_f32 v{24+i}, v{20+i}, v{28+i}")
    for i in range(4): A(f"v_mul_f32 v{28+i}, v{16+i}, v{28+i}")
    A("v_mov_b32 v2, v6")
    if LOOK == 2:
        A("s_waitcnt vmcnt(2)")
        look()
    A("s_waitcnt vmcnt(8)")
    A("s_barrier")
    if PAR: tr_reads(g, 16, 1024, 512)
    else: tr_reads(g, 16, 2048, 1024)
    g.stamp(1)
    S = VA + 32
    A("s_mov_b32 s70, 0")
    A("s_mov_b32 s71, 15")
    A("s_branch L_f1_c")
    if opts.get("inc", 1):
        def ap_check():
            for k in range(32): A(f"v_xor_b32 v{S+k}, s{62+k%4}, v{VA+k}")
            for p in range(4): A(f"v_or3_b32 v{8+p}, v{S+8*p}, v{S+8*p+1}, v{S+8*p+2}")
            for p in range(4): A(f"v_or3_b32 v{8+p}, v{8+p}, v{S+8*p+3}, v{S+8*p+4}")
            for p in range(4): A(f"v_or3_b32 v{8+p}, v{8+p}, v{S+8*p+5}, v{S+8*p+6}")
            for p in range(4): A(f"v_or_b32 v{8+p}, v{8+p}, v{S+8*p+7}")
            A("v_or3_b32 v3, v8, v9, v10")
            A("v_or_b32 v3, v3, v11")
            A("v_lshlrev_b32 v3, 24, v3")
            A("v_cmp_ne_u32 vcc, 0, v3")
        g.lab("L_f1_p")
        A("s_add_u32 s70, s70, 1")
        A(f"s_cmp_ge_u32 s70, {SPIN_MAX}")
        A("s_cbranch_scc1 L_f1_ok")
        for p in range(4):
            l = g.uniq("fl")
            A(f"s_bitcmp1_b32 s71, {p}"); A(f"s_cbranch_scc0 {l}")
            for i in (2*p, 2*p+1): A(f"global_load_dwordx4 {vr(VA+4*i,4)}, v{adr[i]}, s[42:43] sc1")
            g.lab(l)
        g.lab("L_f1_c")
        A("s_waitcnt vmcnt(0)")
        for p in range(4):
            l = g.uniq("fc")
            A(f"s_bitcmp1_b32 s71, {p}"); A(f"s_cbranch_scc0 {l}")
            B_ = VA + 8 * p
            for k in range(8): A(f"v_xor_b32 v{B_+k}, s{62+k%4}, v{B_+k}")
            A(f"v_or3_b32 v8, v{B_}, v{B_+1}, v{B_+2}")
            A(f"v_or3_b32 v9, v{B_+3}, v{B_+4}, v{B_+5}")
            A(f"v_or3_b32 v8, v8, v{B_+6}, v{B_+7}")
            for h in range(2): A(f"v_pk_add_f32 {vr(S+8*p+2*h,2)}, {vr(B_+2*h,2)}, {vr(B_+4+2*h,2)}")
            A("v_or_b32 v8, v8, v9")
            A("v_lshlrev_b32 v8, 24, v8")
            A("v_cmp_ne_u32 vcc, 0, v8")
            A("s_cmp_lg_u64 vcc, 0"); A(f"s_cbranch_scc1 {l}")
            A(f"s_bitset0_b32 s71, {p}")
            g.lab(l)
        A("s_cmp_lg_u32 s71, 0")
        A("s_cbranch_scc1 L_f1_p")
        g.lab("L_f1_ok")
        sum8q(S)
    else:
        g.lab("L_f1_p")
        if opts.get("tsleep"): A(f"s_sleep {opts['tsleep']}")
        for i in range(8):
            if i % 2 == 0: A(f"s_mov_b64 exec, s[{16+i}:{17+i}]")
            A(f"global_load_dwordx4 {vr(VA+4*i,4)}, v{adr[i]}, s[42:43] sc1")
        A("s_mov_b64 exec, -1")
        g.lab("L_f1_c")
        A("s_waitcnt vmcnt(0)")
        def ap_check():
            for k in range(32): A(f"v_xor_b32 v{S+k}, s{62+k%4}, v{VA+k}")
            for p in range(4): A(f"v_or3_b32 v{8+p}, v{S+8*p}, v{S+8*p+1}, v{S+8*p+2}")
            for p in range(4): A(f"v_or3_b32 v{8+p}, v{8+p}, v{S+8*p+3}, v{S+8*p+4}")
            for p in range(4): A(f"v_or3_b32 v{8+p}, v{8+p}, v{S+8*p+5}, v{S+8*p+6}")
            for p in range(4): A(f"v_or_b32 v{8+p}, v{8+p}, v{S+8*p+7}")
            A("v_or3_b32 v3, v8, v9, v10")
            A("v_or_b32 v3, v3, v11")
            A("v_lshlrev_b32 v3, 24, v3")
            A("v_cmp_ne_u32 vcc, 0, v3")
        if APT:
            ap_check()
            A("s_cmp_eq_u64 vcc, 0")
            A("s_cbranch_scc1 L_f1_ok")
            for p in range(4):
                A(f"v_lshlrev_b32 v{8+p}, 24, v{8+p}")
                A(f"v_cmp_ne_u32 s[{16+2*p}:{17+2*p}], 0, v{8+p}")
            spin_tail(g, "L_f1_p", "L_f1_ok", 0)
            sum8p(S, S)
        else:
            sum8p(VA, S)
            nan_branch(S, "L_f1_ok")
            A("s_mov_b64 vcc, 0")
            for p in range(4):
                A(f"v_max3_u32 v8, v{VA+8*p}, v{VA+8*p+1}, v{VA+8*p+2}")
                A(f"v_max3_u32 v9, v{VA+8*p+3}, v{VA+8*p+4}, v{VA+8*p+5}")
                A(f"v_max3_u32 v8, v8, v{VA+8*p+6}, v{VA+8*p+7}")
                A("v_max_u32 v8, v8, v9")
                A(f"v_cmp_eq_u32 s[{16+2*p}:{17+2*p}], -1, v8")
                A(f"s_or_b64 vcc, vcc, s[{16+2*p}:{17+2*p}]")
            spin_tail(g, "L_f1_p", "L_f1_ok", 0)
    g.stamp(7); g.stamp(1, 2)
    if LIN:
        for h in range(2): A(f"v_pk_fma_f32 {vr(8+2*h,2)}, {vr(S+2*h,2)}, {vr(24+2*h,2)}, {vr(28+2*h,2)}")
        A("v_cvt_pk_bf16_f32 v8, v8, v9")
        A("v_cvt_pk_bf16_f32 v9, v10, v11")
        A(f"ds_write_b64 v12, v[8:9] offset:{L_ACT}")
        for h in range(2): A(f"v_pk_fma_f32 {vr(16+2*h,2)}, {vr(S+2*h,2)}, {vr(20+2*h,2)}, {vr(16+2*h,2)}")
        A("s_waitcnt lgkmcnt(0)")
        g.stamp(2, 2)
        tbar()
        g.stamp(3, 2)
        q = []
        def rd(m): A(f"ds_read_b128 {vr(VA+4*m,4)}, v14 offset:{L_ACT+64*m}"); q.append(("r", m))
        def need(op):
            i = q.index(op); A(f"s_waitcnt lgkmcnt({len(q)-1-i})"); del q[:i+1]
        for m in range(12): rd(m)
        DF = 32; x = 16
        dpp = lambda r, mod: f"v_add_f32_dpp v{r}, v{r}, v{r} {mod} row_mask:0xf bank_mask:0xf"
        for t in (f"v_add_f32 v8, v{x}, v{x+1}", f"v_mul_f32 v9, v{x}, v{x}", f"v_add_f32 v10, v{x+2}, v{x+3}", f"v_mul_f32 v11, v{x+2}, v{x+2}",
                  f"v_fmac_f32 v9, v{x+1}, v{x+1}", f"v_fmac_f32 v11, v{x+3}, v{x+3}", "v_add_f32 v8, v8, v10", "v_add_f32 v9, v9, v11",
                  "s_nop 0", dpp(8, "quad_perm:[1,0,3,2]"), dpp(9, "quad_perm:[1,0,3,2]")): A(t)
        fill = {0: [dpp(8, "quad_perm:[2,3,0,1]"), dpp(9, "quad_perm:[2,3,0,1]")],
                1: [dpp(8, "row_ror:8"), dpp(9, "row_ror:8")],
                2: ["v_mov_b32 v10, v8", "v_mov_b32 v11, v9"],
                3: ["v_permlane16_swap_b32 v10, v8", "v_permlane16_swap_b32 v11, v9"],
                4: ["v_add_f32 v8, v8, v10", "v_add_f32 v9, v9, v11", "v_mov_b32 v10, v8", "v_mov_b32 v11, v9"],
                5: ["v_permlane32_swap_b32 v10, v8", "v_permlane32_swap_b32 v11, v9"],
                6: ["v_add_f32 v8, v8, v10", "v_add_f32 v9, v9, v11", "W"],
                14: ["S", "v_pk_add_f32 v[20:21], v[20:21], v[22:23]", "v_pk_add_f32 v[24:25], v[24:25], v[26:27]"],
                15: ["v_pk_add_f32 v[20:21], v[20:21], v[24:25]",
                     f"v_mul_f32 v20, 0x{f2u(-1/512):08x}, v20", f"v_mul_f32 v21, 0x{f2u(1/512):08x}, v21",
                     "v_fma_f32 v21, -v20, v20, v21", "v_max_f32 v21, 0, v21", f"v_add_f32 v21, 0x{EPS:08x}, v21", "v_rsq_f32 v21, v21",
                     "s_nop 0"]}
        for m in range(16):
            if ("r", m) in q: need(("r", m))
            c = "0" if m == 0 else vr(DF, 4)
            A(f"v_mfma_f32_16x16x32_bf16 {vr(DF,4)}, {vr(VW+4*m,4)}, {vr(VA+4*m,4)}, {c}")
            if m < 4: rd(12 + m)
            for t in fill.get(m, []):
                if t == "W": A("ds_write_b64 v5, v[8:9]"); q.append(("w", 0))
                elif t == "S": need(("s", 1))
                else: A(t)
            if m == 9:
                need(("w", 0))
                tbar()
                A(f"ds_read_b128 v[20:23], v7 offset:{L_RED}"); q.append(("s", 0))
                A(f"ds_read_b128 v[24:27], v7 offset:{L_RED+16}"); q.append(("s", 1))
        g.stamp(5, 2)
        for i in range(4): A(f"v_fmac_f32_dpp v{DF+i}, v{DF+i}, v20 row_shl:2 row_mask:0xf bank_mask:0x1")
        for i in range(4): A(f"v_mul_f32 v{8+i}, v{DF+i}, v21")
        for i in range(4): A(f"v_add_f32_dpp v{8+i}, v{DF+i}, v{8+i} row_shl:4 row_mask:0xf bank_mask:0xf")
        A("s_mov_b32 s50, 0x00030003")
        A("s_mov_b32 s51, 0x00030003")
        A("v_permlane32_swap_b32 v8, v10")
        A("v_permlane32_swap_b32 v9, v11")
        for i in range(2): A(f"v_mul_f32 v{20+i}, 0x{LOG2E ^ 0x80000000:08x}, v{8+i}")
        for i in range(2): A(f"v_exp_f32 v{20+i}, v{20+i}")
        for i in range(2): A(f"v_mul_f32 v{8+i}, v{8+i}, v{10+i}")
        for i in range(2): A(f"v_add_f32 v{20+i}, 1.0, v{20+i}")
        for i in range(2): A(f"v_rcp_f32 v{20+i}, v{20+i}")
        A("s_mov_b64 exec, s[50:51]")
        for i in range(2): A(f"v_mul_f32 v{8+i}, v{8+i}, v{20+i}")
        A("v_cvt_pk_bf16_f32 v8, v8, v9")
        guard(g, 8)
        dry_out()
        A("global_store_dword v13, v8, s[42:43] sc1")
        A("global_store_dword v4, v8, s[42:43] sc1")
        g.stamp(2); g.stamp(7, 2)
        A("s_branch L_fin")

    g.lab("L_t_f2")
    A("s_barrier")
    def f2_dma():
        A("v_mov_b32 v2, v29")
        A("s_and_b32 s59, s61, 3"); A("s_mul_i32 s59, s59, 3072")
        for part in range(2):
            A(f"s_mul_i32 s49, s5, {11*32*1024}")
            A("s_add_u32 s49, s49, s48")
            A("s_mul_i32 s50, s5, 11264")
            A(f"s_add_u32 s50, s50, {L_WT}")
            if part == 0:
                A("s_lshl_b32 s52, s59, 5")
                A("s_add_u32 s49, s49, s52")
                A("s_add_u32 s50, s50, s59")
                A("s_sub_u32 s52, 11264, s59")
                dma_loop(g, "s52", 32*1024, WFL)
            else:
                dma_loop(g, "s59", 32*1024, WFL)
    F2E = opts.get("e2", 0) == 11
    pre_gather([24, 25], False, (lambda: None) if F2E else f2_dma, 0 if F2E else 11)
    unpack4(g, 16, 8)
    unpack4(g, 20, PG, 2)
    unpack4(g, 24, PG+4, 2)
    A("v_mov_b32 v2, v6")
    A("s_mov_b32 s50, 0x00030003"); A("s_mov_b32 s51, 0x00030003")
    A("s_mov_b32 s53, 0x0fff0fff")
    A("s_cmp_eq_u32 s5, 3")
    A("s_cselect_b32 s52, 0x00ff00ff, s53")
    A("s_mov_b32 s53, s52")
    def ap_loads():
        A("s_mov_b64 exec, s[50:51]")
        for i in range(8): A(f"global_load_dwordx4 {vr(VA+4*i,4)}, v{adr[i]}, s[42:43] sc1")
    A("s_cmp_lg_u32 s5, 0")
    A("s_cbranch_scc1 L_f2_w")
    ap_loads()
    A("s_mov_b64 exec, -1")
    A("s_waitcnt vmcnt(8)")
    A("s_branch L_f2_w2")
    g.lab("L_f2_w")
    A("s_waitcnt vmcnt(0)")
    g.lab("L_f2_w2")
    tr_reads(g, 11, 1024, 128)
    g.stamp(1)
    e = g.uniq("f2x")
    A("s_cmp_lg_u32 s5, 0")
    A(f"s_cbranch_scc1 {e}")
    A("s_mov_b32 s70, 0")
    A("s_mov_b64 exec, s[50:51]")
    A("s_branch L_f2_ac")
    g.lab("L_f2_a")
    ap_loads()
    g.lab("L_f2_ac")
    A("s_waitcnt vmcnt(0)")
    if APT: ap_check()
    else: chk_sentinel(g, range(VA, VA+32), 8)
    spin_tail(g, "L_f2_a", "L_f2_ad", 2)
    A("s_mov_b64 exec, -1")
    sum8p(S if APT else VA, S)
    x1_from(S)
    g.lab(e)
    for i in range(4): A(f"v_mov_b32 v{VA+8+i}, 0")
    DD = VA + 16
    A("s_mov_b32 s70, 0")
    g.lab("L_f2_p")
    if opts.get("tsleep"): A(f"s_sleep {opts['tsleep']}")
    A(f"global_load_dwordx4 {vr(VA,4)}, v28, s[42:43] offset:-2048 sc1")
    A(f"global_load_dwordx4 {vr(VA+4,4)}, v28, s[42:43] sc1")
    A("s_mov_b64 exec, s[52:53]")
    A(f"global_load_dwordx4 {vr(VA+8,4)}, v28, s[42:43] offset:2048 sc1")
    A("s_mov_b64 exec, -1")
    def mf(m):
        j, mp = divmod(m, 4)
        c = "0" if j == 0 else vr(DD+4*mp, 4)
        A(f"v_mfma_f32_16x16x32_bf16 {vr(DD+4*mp,4)}, {vr(VW+4*m,4)}, {vr(VA+4*j,4)}, {c}")
    A("s_waitcnt vmcnt(0)")
    mf(0)
    A(f"v_max3_u32 v31, v{VA}, v{VA+1}, v{VA+2}")
    A(f"v_max3_u32 v3, v{VA+3}, v{VA+4}, v{VA+5}")
    mf(1)
    A(f"v_max3_u32 v31, v31, v{VA+6}, v{VA+7}")
    A(f"v_max3_u32 v3, v3, v{VA+8}, v{VA+9}")
    mf(2)
    A(f"v_max3_u32 v31, v31, v{VA+10}, v{VA+11}")
    A("v_max_u32 v31, v31, v3")
    mf(3)
    A("v_cmp_eq_u32 vcc, -1, v31")
    spin_tail(g, "L_f2_p", "L_f2_ok", 0)
    for m in range(4, 11): mf(m)
    A("s_nop 6")
    for i in range(4): A(f"v_add_f32_dpp v{8+i}, v{DD+4+i}, v{DD+i} row_shl:4 row_mask:0xf bank_mask:0xf")
    for i in range(4): A(f"v_add_f32_dpp v{DD+8+i}, v{DD+12+i}, v{DD+8+i} row_shl:4 row_mask:0xf bank_mask:0xf")
    for i in range(4): A(f"v_add_f32_dpp v{8+i}, v{DD+8+i}, v{8+i} row_shl:8 row_mask:0xf bank_mask:0xf")
    A("s_mov_b64 exec, s[50:51]")
    g.stamp(7); g.stamp(1, 2)
    A("ds_write_b128 v30, v[8:11]")
    A("s_waitcnt lgkmcnt(0)")
    g.stamp(2, 2)
    tbar()
    g.stamp(3, 2)
    A("s_cmp_lg_u32 s5, s77")
    A("s_cbranch_scc1 L_fin")
    for i in range(3):
        A(f"ds_read_b128 {vr(VA+4*i,4)}, v12 offset:{128*(i+1)}")
    A("s_waitcnt lgkmcnt(2)")
    for h in range(2): A(f"v_pk_add_f32 {vr(8+2*h,2)}, {vr(8+2*h,2)}, {vr(VA+2*h,2)}")
    A("s_waitcnt lgkmcnt(0)")
    for h in range(2): A(f"v_pk_add_f32 {vr(VA+4+2*h,2)}, {vr(VA+4+2*h,2)}, {vr(VA+8+2*h,2)}")
    for h in range(2): A(f"v_pk_add_f32 {vr(8+2*h,2)}, {vr(8+2*h,2)}, {vr(VA+4+2*h,2)}")
    if LIN:
        for h in range(2): A(f"v_pk_fma_f32 {vr(8+2*h,2)}, {vr(8+2*h,2)}, {vr(24+2*h,2)}, {vr(16+2*h,2)}")
    else:
        for i in range(4): rnd(g, 8+i)
        for i in range(4): A(f"v_mul_f32 v{8+i}, v{8+i}, v{24+i}")
        for i in range(4): rnd(g, 8+i)
        for i in range(4): A(f"v_add_f32 v{8+i}, v{8+i}, v{16+i}")
    A("v_cvt_pk_bf16_f32 v8, v8, v9")
    A("v_cvt_pk_bf16_f32 v9, v10, v11")
    dry_out()
    A("global_store_dwordx2 v13, v[8:9], s[38:39] " + opts.get("of", "").replace("_", " "))
    A("s_mov_b64 exec, 1")
    A("s_cmp_lg_u32 s61, 0")
    A("s_cbranch_scc1 L_noep")
    A(f"v_mov_b32 v10, s{ST}")
    A(f"global_store_dword v38, v10, s[42:43] offset:{WS_E}" + (" sc1" if opts.get("aq") == 99 else " " + opts.get("of", "").replace("_", " ")))
    if opts.get("amp"):
        A("s_waitcnt vmcnt(0)")
        A("s_memrealtime s[66:67]"); A("s_waitcnt lgkmcnt(0)")
        A("s_sub_u32 s66, s66, s78"); A(f"s_mul_i32 s66, s66, {opts['amp']}")
        g.lab("L_xa")
        A("s_sleep 1")
        A("s_memrealtime s[64:65]"); A("s_waitcnt lgkmcnt(0)")
        A("s_sub_u32 s64, s64, s78"); A("s_cmp_lt_u32 s64, s66"); A("s_cbranch_scc1 L_xa")
    if opts.get("xwait"):
        g.lab("L_xw")
        A("s_sleep 1")
        A("s_memrealtime s[64:65]"); A("s_waitcnt lgkmcnt(0)")
        A("s_sub_u32 s64, s64, s78"); A(f"s_cmp_lt_u32 s64, {opts['xwait']*100}"); A("s_cbranch_scc1 L_xw")
    g.lab("L_noep")
    g.stamp(2); g.stamp(7, 2)

    g.lab("L_fin")
    if "aw" in opts:
        A(f"s_cmp_lg_u32 s2, {opts['aw']}"); A("s_cbranch_scc1 L_end")
        A("s_cmp_lg_u32 s5, 0"); A("s_cbranch_scc1 L_end")
        if opts.get("aq") == 99:
            A("s_mov_b64 exec, -1")
            poll_tagged(g, [f"global_load_dword v8, v38, s[42:43] offset:{WS_E} sc1"], [8], sleep=2)
            A("s_memrealtime s[80:81]")
        A("s_waitcnt lgkmcnt(0)")
        A("s_sub_u32 s80, s80, s78"); A(f"s_mul_i32 s80, s80, {opts.get('ak', 5)}")
        g.lab("L_xb")
        A("s_sleep 1")
        A("s_memrealtime s[64:65]"); A("s_waitcnt lgkmcnt(0)")
        A("s_sub_u32 s64, s64, s78"); A("s_cmp_lt_u32 s64, s80"); A("s_cbranch_scc1 L_xb")
    if opts.get("stamps") in (4, 5):
        A("s_waitcnt vmcnt(0)")
        g.stamp(8)
        dump_all(SLOC)
    elif opts.get("stamps"):
        A("s_mov_b64 exec, -1")
        A("s_waitcnt vmcnt(0)")
        g.stamp(8)
        A(f"s_cmp_lg_u32 s5, {opts.get('swave', 0)}")
        A("s_cbranch_scc1 L_end")
        A("s_lshl_b32 s3, s2, 7")
        A(f"s_add_u32 s3, s3, {WS_STAMP}")
        A("v_mov_b32 v2, s3")
        A("s_waitcnt lgkmcnt(0)")
        for i in (range(10) if opts["stamps"] != 3 else (0, 6, 8)):
            A(f"v_mov_b32 v3, s{80+2*i}")
            A(f"global_store_dword v2, v3, s[42:43] offset:{4*i}")
        A(f"v_mov_b32 v3, s{SLOC}")
        A(f"global_store_dword v2, v3, s[42:43] offset:40")
        if opts.get("dbgt"):
            for k, (w, idxs) in enumerate(((0, (0, 7, 2, 3, 6)), (219, (0, 3, 5, 6, 1, 7, 8)), (128, (0, 1, 2)))):
                e = g.uniq("dbg")
                A(f"s_cmp_lg_u32 s2, {w}"); A(f"s_cbranch_scc1 {e}")
                for i, ix in enumerate(idxs):
                    A(f"v_mov_b32 v3, s{80+2*ix}")
                    A(f"global_store_dword v38, v3, s[40:41] offset:{4*((0, 5, 12)[k]+i)}")
                g.lab(e)
    g.lab("L_end")
    A("s_endpgm")
    g.L.append(".p2align 7")
    g.lab("L_table")
    for w in range(0, 256, 8):
        A(".long " + ", ".join(f"0x{r | (m3(w+i) << 3) | (t << 8) | (JT[w+i] << 16) | (early(r, t) << 24):08x}" for i, (r, t) in enumerate(RM[w:w+8])))
    g.L.append(f'''.section .rodata,"a"
.p2align 6
.amdhsa_kernel {KNAME}
  .amdhsa_next_free_vgpr 168
  .amdhsa_next_free_sgpr 102
  .amdhsa_accum_offset 168
  .amdhsa_group_segment_fixed_size 0
  .amdhsa_kernarg_size 112
  .amdhsa_user_sgpr_count 2
  .amdhsa_user_sgpr_kernarg_segment_ptr 1
  .amdhsa_system_sgpr_workgroup_id_x 1
.end_amdhsa_kernel''')
    return "\n".join(g.L) + "\n"

if __name__ == "__main__":
    import json, os
    here = os.path.dirname(os.path.abspath(__file__))
    opts = {"ref": os.path.join(here, "..", KNAME[:-7] + ".s.ref")}
    out = sys.argv[1]
    for kv in sys.argv[2:]:
        k, v = kv.split("=")
        try: v = int(v)
        except ValueError: pass
        opts[k] = v
    open(out, "w").write(gen(opts))
```

```python
import sys, struct

KNAME = "adaLN_cond__sliding_block_cached__glu_gated_swiglu__decode_kernel"

def f2u(x): return struct.unpack("<I", struct.pack("<f", x))[0]
LOG2E = f2u(1.4426950408889634)
SCALE = f2u(128 ** -0.5)
EPS = f2u(1e-5)

WS_E   = 0x00000
WS_HDR = 0x00400
WS_VOT = 0x00800
WS_MOD = 0x01000
WS_Q   = 0x08000
WS_ST  = 0x10000
WS_AP  = 0x50000
WS_OP  = 0x20000
WS_HH  = 0x40000
WS_PRB = 0x80000
WS_STAMP = 0x100000
ACT_BS = 1056
L_ACT = 0
L_QV  = L_ACT + 6400
L_ML  = L_QV + 256
L_PG  = L_ML + 8
L_NR  = L_ML + 12
L_MX  = L_ML + 16
L_CNT = L_ML + 64
L_SC  = L_CNT + 64 + 128
L_OP  = L_SC + 4096
L_RED = L_OP + 4096
L_WT  = 16384
L_VX  = L_WT + 65536
assert L_RED + 1024 <= L_WT and L_SC % 16 == 0

C_NONE, C_WO, C_F1, C_F2, C_MODB, C_MODA, C_Q = 0, 1, 2, 3, 4, 5, 6
X3 = [0, 2, 6, 4, 1, 7]
def role_map(mode=1):
    R = []
    if mode == 3:
        nb = [6, 4, 6, 4, 6, 0, 6, 0]; nf = [4, 6, 4, 6, 4, 8, 4, 7]
        c3 = {6: 19, 4: 27, 0: None}
        own3 = {6: 19, 4: 27, 1: 35, 3: 43}
        rest = [t for t in range(16, 48) if t % 8 != 3]
        col = []; f = 0
        for x in range(8):
            b = ([own3[x]] if x in own3 else [])
            while len(b) < nb[x]: b.append(rest.pop(0))
            c = [(C_MODB, t) for t in b] + [(C_F1, f + i) for i in range(nf[x])]; f += nf[x]
            c += [(C_F2, ((x + 5) % 8) * 4 + i) for i in range(4)]
            c += [(C_NONE, 0)] * (14 - len(c))
            col.append(c)
        base = role_map(2)
        return [base[w] if w < 144 else col[w % 8][w // 8 - 18] for w in range(256)]
    for w in range(256):
        x, idx = w * 1 % 8, w // 8
        if idx < 8: R.append((C_Q, 8 * x + idx)); continue
        if idx < 16: R.append((C_WO, idx - 8)); continue
        if mode == 2 and w < 176:
            row = idx - 16
            R.append((C_MODA if row < 2 else C_MODB, 8 * row + ((x + 3 - X3[row]) & 7))); continue
        if mode in (0, 2):
            if w < 144: R.append((C_MODA, w - 128))
            elif w < 176: R.append((C_MODB, w - 128))
            elif w < 219: t = w - 176; R.append((C_F1, (t % 8) * 5 + min(t % 8, 3) + t // 8))
            elif w < 251: t = w - 219; R.append((C_F2, (t % 8) * 4 + t // 8))
            else: R.append((C_NONE, 0))
            continue
        k = idx - 16; hi, lo, e = k >> 3, k & 7, x >> 1
        if x % 2 == 0:
            if e < 2: R.append((C_MODA, e * 8 + lo) if hi == 0 else (C_MODB, 16 + e * 8 + lo))
            else: R.append((C_MODB, 16 + e * 8 + lo) if hi == 0 else (C_F1, (e - 2) * 8 + lo))
        else:
            if hi == 0: R.append((C_F2, e * 8 + lo))
            else:
                t = 16 + e * 7 + lo
                R.append((C_F1, t) if lo < 7 and t < 43 else (C_NONE, 0))
    for c, n in ((C_MODA, range(16)), (C_MODB, range(16, 48)), (C_F1, range(43)), (C_F2, range(32)), (C_Q, range(64))):
        assert sorted(t for r, t in R if r == c) == list(n), c
    return R
SPIN_MAX = 1 << 18
ST, SLOC, SXCC = 74, 75, 76

NOTES = {
    "L_nb1": "streaming waves: K then V, 1 KB per load, at most 2..4 loads in flight per wave (depth table at L_table)",
    "L_helper": "helper waves: LDS sentinels, launch tag, role dispatch",
    "L_r_moda": "role MODA: shift/scale columns of silu(c) @ w_mod",
    "L_r_q": "role Q: LayerNorm + modulation + 64 columns of h @ wq",
    "L_r_modb": "role MODB: the other modulation columns (weights fetched in the background)",
    "L_r_wo": "role WO: 512 x 64 tile of wo",
    "L_r_f1": "role F1: 32 columns of w1 and w3",
    "L_r_f2": "role F2: 16 columns of w2 (also pulls this group's slow-loading tiles into L2)",
    "L_svc1": "wave 0: fetch q for the streaming waves",
    "L_svc2": "wave 0: max / sum of this split's scores, exchange with the other three splits, publish max and 1/sum in LDS",
    "L_disp3": "idle-time preparation; wave 1 walks the tail code once (no barrier, no global access) to warm the instruction cache",
    "L_join": "the barrier opens when the streaming waves have ended; wave 0 publishes the partial attention output",
    "L_t_wo": "tail WO: gather the group's partial outputs, project, publish",
    "L_t_f1": "tail F1: residual, LayerNorm (applied after the product), gate/up, SwiGLU, publish",
    "L_t_f2": "tail F2: down projection, gated residual, output; advances the epoch word",
    "L_table": "per workgroup: role | slow tile row << 3 | tile << 8 | steps at reduced depth << 16",
}
class G:
    def __init__(s, opts):
        s.L = []; s.o = opts; s.n = 0; s.tail = False; s.help = False
    def A(s, t):
        if t == "s_barrier" and s.o.get("nobar"): return
        if s.o.get("nostore") and t.startswith("global_store") and "sc1" in t and ("v[4:5]" in t or "v8, v9" in t): return
        if "clrf" in s.o and t.startswith("global_store") and "v[4:5]" in t: t = t.replace("sc1", s.o["clrf"].replace("_", " "))
        if "hdrf" in s.o and t.startswith("global_store") and "v8, v9" in t: t = t.replace("sc1", s.o["hdrf"].replace("_", " "))
        if s.o.get("noclr") and t.startswith("global_store") and "v[4:5]" in t: return
        if s.o.get("ldnt") and t.startswith("global_load") and not s.tail: t = t + " nt"
        s.L.append("  " + t)
    def lab(s, t):
        if t in NOTES: s.L.append("; ---- " + NOTES[t])
        s.L.append(t + ":")
    def C(s, t): s.L.append("; ---- " + t)
    def uniq(s, p): s.n += 1; return f"L_{p}_{s.n}"
    def stamp(s, idx, lvl=1):
        m = s.o.get("stamps", 0)
        if "aw" in s.o and lvl == 1 and idx == s.o.get("aq", 6): s.A("s_memrealtime s[80:81]")
        if m == 3 and idx not in (0, 6, 8): return
        if s.o.get("pst") and idx in (2, 3, 4) and not s.help: return
        if m and (m == lvl or idx in (0, 6, 8)) and not (lvl == 2 and m == 1):
            s.A(f"s_memrealtime s[{80+2*idx}:{81+2*idx}]")

def vr(a, n): return f"v[{a}:{a+n-1}]"

def wave_allreduce(g, op, v, t):
    A = g.A
    for r in (8, 4, 2, 1):
        A("s_nop 1")
        A(f"{op}_dpp v{v}, v{v}, v{v} row_ror:{r} row_mask:0xf bank_mask:0xf")
    A(f"v_mov_b32 v{t}, v{v}")
    A("s_nop 1")
    A(f"v_permlane16_swap_b32 v{t}, v{v}")
    A(f"{op} v{v}, v{v}, v{t}")
    A(f"v_mov_b32 v{t}, v{v}")
    A("s_nop 1")
    A(f"v_permlane32_swap_b32 v{t}, v{v}")
    A(f"{op} v{v}, v{v}, v{t}")

def wave_allreduce2(g, va, vb, ta, tb):
    A = g.A
    A("s_nop 0")
    for r in (8, 4, 2, 1):
        A(f"v_add_f32_dpp v{va}, v{va}, v{va} row_ror:{r} row_mask:0xf bank_mask:0xf")
        A(f"v_add_f32_dpp v{vb}, v{vb}, v{vb} row_ror:{r} row_mask:0xf bank_mask:0xf")
        A("s_nop 0")
    for sw in ("v_permlane16_swap_b32", "v_permlane32_swap_b32"):
        A(f"v_mov_b32 v{ta}, v{va}")
        A(f"v_mov_b32 v{tb}, v{vb}")
        A("s_nop 0")
        A(f"{sw} v{ta}, v{va}")
        A(f"{sw} v{tb}, v{vb}")
        A(f"v_add_f32 v{va}, v{va}, v{ta}")
        A(f"v_add_f32 v{vb}, v{vb}, v{tb}")

def rnd(g, d, s=None):
    g.A(f"v_cvt_pk_bf16_f32 v{d}, 0, v{s if s is not None else d}")

def spin_tail(g, l, e, sleep, mult=1):
    A = g.A
    A("s_cmp_eq_u64 vcc, 0")
    A(f"s_cbranch_scc1 {e}")
    if sleep: A(f"s_sleep {sleep}")
    A("s_add_u32 s70, s70, 1")
    A(f"s_cmp_lt_u32 s70, {SPIN_MAX*mult}")
    A(f"s_cbranch_scc1 {l}")
    g.lab(e)

def chk_sentinel(g, regs, tmp):
    A = g.A
    rs = list(regs)
    if len(rs) == 1:
        A(f"v_cmp_eq_u32 vcc, -1, v{rs[0]}")
        return
    if len(rs) == 2:
        A(f"v_max_u32 v{tmp}, v{rs[0]}, v{rs[1]}"); rs = []
    else:
        A(f"v_max3_u32 v{tmp}, v{rs[0]}, v{rs[1]}, v{rs[2]}"); rs = rs[3:]
    while len(rs) >= 2:
        A(f"v_max3_u32 v{tmp}, v{tmp}, v{rs[0]}, v{rs[1]}"); rs = rs[2:]
    if rs: A(f"v_max_u32 v{tmp}, v{tmp}, v{rs[0]}")
    A(f"v_cmp_eq_u32 vcc, -1, v{tmp}")

def poll_global(g, loads, regs, tmp, sleep=0):
    A = g.A
    l = g.uniq("poll"); e = g.uniq("polld")
    A("s_mov_b32 s70, 0")
    g.lab(l)
    for x in loads: A(x)
    A("s_waitcnt vmcnt(0)")
    chk_sentinel(g, regs, tmp)
    spin_tail(g, l, e, sleep)

def poll_tagged(g, loads, tagregs, sleep=0):
    A = g.A
    l = g.uniq("polt"); e = g.uniq("poltd")
    hdr = "HDR" in loads
    if hdr:
        A("s_and_b32 s71, s2, 7")
        A("s_lshl_b32 s71, s71, 7")
        A(f"s_add_u32 s71, s71, {WS_HDR}")
        A("v_and_b32 v8, 31, v1")
        A("v_lshl_add_u32 v8, v8, 2, s71")
    A("s_mov_b32 s70, 0")
    g.lab(l)
    for x in loads: A("global_load_dword v9, v8, s[42:43] sc1" if x == "HDR" else x)
    A("s_waitcnt vmcnt(0)")
    for i, r in enumerate(tagregs):
        if i == 0: A(f"v_cmp_ne_u32 vcc, s{ST}, v{r}")
        else:
            A(f"v_cmp_ne_u32 s[68:69], s{ST}, v{r}")
            A("s_or_b64 vcc, vcc, s[68:69]")
    spin_tail(g, l, e, sleep)
    if hdr:
        A(f"v_cmp_ne_u32 vcc, s{SXCC}, v9")
        A("s_cmp_eq_u64 vcc, 0")
        A(f"s_cselect_b32 s{SLOC}, 1, 0")
        if g.o.get("nolocal"): A(f"s_mov_b32 s{SLOC}, 0")

def poll_lds(g, loads, regs, tmp, sleep):
    A = g.A
    l = g.uniq("pl"); e = g.uniq("pld")
    A("s_mov_b32 s70, 0")
    g.lab(l)
    for x in loads: A(x)
    A("s_waitcnt lgkmcnt(0)")
    chk_sentinel(g, regs, tmp)
    spin_tail(g, l, e, sleep, 4)

def check_group_hdr(g, va, vt, sleep=8):
    A = g.A
    l = g.uniq("gh"); e = g.uniq("ghd")
    A("s_and_b32 s71, s2, 7")
    A("s_lshl_b32 s71, s71, 7")
    A(f"s_add_u32 s71, s71, {WS_HDR}")
    A(f"v_and_b32 v{va}, 31, v1")
    A(f"v_lshl_add_u32 v{va}, v{va}, 2, s71")
    A("s_mov_b32 s70, 0")
    g.lab(l)
    A(f"global_load_dword v{vt}, v{va}, s[42:43] sc1")
    A("s_waitcnt vmcnt(0)")
    A(f"v_cmp_ne_u32 s[68:69], s{SXCC}, v{vt}")
    A(f"v_subrev_u32 v{vt}, s{ST}, v{vt}")
    A(f"v_cmp_lt_u32 vcc, 15, v{vt}")
    spin_tail(g, l, e, sleep)
    A("s_cmp_eq_u64 s[68:69], 0")
    A(f"s_cselect_b32 s{SLOC}, 1, 0")
    if g.o.get("nolocal"): A(f"s_mov_b32 s{SLOC}, 0")

def check_all_hdr(g, va, vt, sleep=8):
    A = g.A
    l = g.uniq("ah"); e = g.uniq("ahd")
    A(f"v_lshlrev_b32 v{va}, 4, v1")
    A(f"v_lshlrev_b32 v{vt+6}, 2, v1")
    A("s_mov_b32 s70, 0")
    g.lab(l)
    A(f"global_load_dwordx4 {vr(vt,4)}, v{va}, s[42:43] offset:{WS_HDR} sc1")
    A(f"global_load_dword v{vt+5}, v{vt+6}, s[42:43] offset:{WS_VOT} sc1")
    A("s_waitcnt vmcnt(0)")
    for i in range(4): A(f"v_subrev_u32 v{vt+i}, s{ST}, v{vt+i}")
    A(f"v_max3_u32 v{vt+4}, v{vt}, v{vt+1}, v{vt+2}")
    A(f"v_max_u32 v{vt+4}, v{vt+4}, v{vt+3}")
    A(f"v_cmp_lt_u32 vcc, 15, v{vt+4}")
    spin_tail(g, l, e, sleep)
    A(f"v_subrev_u32 v{vt+5}, s{ST}, v{vt+5}")
    A(f"v_cmp_eq_u32 vcc, 1, v{vt+5}")
    A("s_bcnt1_i32_b64 s70, vcc")
    A(f"v_cmp_eq_u32 vcc, 0, v{vt+5}")
    A("s_bcnt1_i32_b64 s71, vcc")
    A("s_cmp_gt_u32 s70, s71")
    A("s_cselect_b32 s71, 4, 0")
    if "near" in g.o: A(f"s_mov_b32 s71, {4*g.o['near']}")
    A(f"s_sub_u32 s68, s{SXCC}, s{ST}")
    A("s_xor_b32 s71, s71, s68"); A("s_and_b32 s71, s71, 4"); A("s_lshl_b32 s71, s71, 11")
    if g.o.get("stamps") == 2 and g.o.get("swave") == 3: A("s_mov_b32 s88, s70")
    A(f"v_mov_b32 v{vt}, s71")
    A(f"ds_write_b32 v38, v{vt} offset:{L_NR}")

def pub_local(g, ins):
    A = g.A
    l = g.uniq("pf"); e = g.uniq("pe")
    A(f"s_cmp_eq_u32 s{SLOC}, 1")
    A(f"s_cbranch_scc0 {l}")
    A(ins)
    A(f"s_branch {e}")
    g.lab(l)
    A(ins + " sc1")
    g.lab(e)

def hs_signal(g, vt, vt2):
    A = g.A
    A(f"v_mov_b32 v{vt2}, 1")
    A("s_mov_b64 exec, 1")
    A(f"ds_add_u32 v38, v{vt2} offset:{L_CNT}")
    A("s_mov_b64 exec, -1")
def hs_wait(g, target, vt2, sleep=1):
    A = g.A
    l = g.uniq("hs"); e = g.uniq("hsd")
    A("s_mov_b32 s70, 0")
    g.lab(l)
    A(f"ds_read_b32 v{vt2}, v38 offset:{L_CNT}")
    A("s_waitcnt lgkmcnt(0)")
    A(f"v_cmp_gt_u32 vcc, {target}, v{vt2}")
    spin_tail(g, l, e, sleep, 8)
def helper_sync(g, target, vt, vt2):
    hs_signal(g, vt, vt2); hs_wait(g, target, vt2)

def dma_loop(g, n, step, flags, pace=0):
    A = g.A
    l = g.uniq("dma"); e = g.uniq("dmae")
    if isinstance(n, int):
        A(f"s_add_u32 s51, s50, {n*1024}")
    else:
        A(f"s_add_u32 s51, s50, {n}")
        A("s_cmp_lt_u32 s50, s51")
        A(f"s_cbranch_scc0 {e}")
    g.lab(l)
    A("s_mov_b32 m0, s50")
    A("s_add_u32 s50, s50, 1024")
    if g.o.get("contig"):
        A("s_lshl_b32 s54, s2, 17")
        A("s_add_u32 s54, s54, s50")
        A("v_lshlrev_b32 v2, 4, v1")
        A("s_mov_b32 s44, s18"); A("s_mov_b32 s45, s19"); A("s_mov_b32 s46, 0x10000000")
        A("s_and_b32 s55, s54, 0x1fffff"); A("s_lshr_b32 s54, s54, 21"); A("s_lshl_b32 s54, s54, 22"); A("s_add_u32 s54, s54, s55")
        A(f"buffer_load_dwordx4 v2, s[44:47], s54 offen {flags} lds")
    elif not g.o.get("nodma"):
        A(f"buffer_load_dwordx4 v2, s[44:47], s49 offen {flags} lds")
    A(f"s_add_u32 s49, s49, {step}")
    if pace: A(f"s_waitcnt vmcnt({pace-1})")
    A("s_cmp_lt_u32 s50, s51")
    A(f"s_cbranch_scc1 {l}")
    g.lab(e)

VW, VA = 40, 104

def srd(g, d, base, nbytes):
    A = g.A
    A(f"s_mov_b32 s{d}, s{base}")
    A(f"s_mov_b32 s{d+1}, s{base+1}")
    A(f"s_mov_b32 s{d+2}, {nbytes}")
    A(f"s_mov_b32 s{d+3}, 0x20000")

def dma_tile64(g, stride, flags, pace=0):
    A = g.A
    A("v_lshrrev_b32 v2, 3, v1")
    A("v_and_b32 v3, 6, v2")
    A("v_xor_b32 v3, v3, v1")
    A(f"v_mul_u32_u24 v2, {stride}, v2")
    A("v_and_b32 v3, 7, v3")
    A("v_lshl_add_u32 v2, v3, 4, v2")
    if pace:
        A(f"s_mul_i32 s49, s53, {256*stride}")
        A("s_lshl_b32 s50, s53, 15")
    else:
        A(f"s_mul_i32 s49, s5, {128*stride}")
        A("s_lshl_b32 s50, s5, 14")
    A("s_add_u32 s49, s49, s48")
    A(f"s_add_u32 s50, s50, {L_WT}")
    dma_loop(g, 32 if pace else 16, 8*stride, flags, pace)

def tr64_addr(g):
    A = g.A
    A("v_lshrrev_b32 v2, 2, v1")
    A("v_bfe_u32 v3, v1, 1, 1")
    A("s_lshl_b32 s49, s5, 1")
    A("v_or_b32 v3, s49, v3")
    A("v_and_b32 v10, 6, v2")
    A("v_xor_b32 v3, v3, v10")
    A("v_lshlrev_b32 v2, 7, v2")
    A("v_lshl_add_u32 v2, v3, 4, v2")
    A("v_and_b32 v3, 1, v1")
    A("v_lshl_add_u32 v2, v3, 3, v2")
    A(f"v_add_u32 v2, {L_WT}, v2")
def tr_reads(g, nk, mstep, hstep):
    A = g.A
    for m in range(nk):
        for h in range(2):
            A(f"ds_read_b64_tr_b16 {vr(VW+4*m+2*h,2)}, v2 offset:{m*mstep+h*hstep}")
        if m >= 5: A("s_waitcnt lgkmcnt(10)")
    A("s_waitcnt lgkmcnt(0)")
def tr_tile64(g):
    tr64_addr(g)
    tr_reads(g, 16, 4096, 2048)
def gemv_fused(g, vaddr, D):
    A = g.A
    def rd(m):
        for h in range(2):
            A(f"ds_read_b64_tr_b16 {vr(VW+4*m+2*h,2)}, v2 offset:{m*4096+h*2048}")
        A(f"ds_read_b128 {vr(VA+4*m,4)}, v{vaddr} offset:{64*m}")
    for m in range(5): rd(m)
    for m in range(16):
        A(f"s_waitcnt lgkmcnt({3*(min(m+5,16)-m-1)})")
        c = "0" if m == 0 else vr(D, 4)
        A(f"v_mfma_f32_16x16x32_bf16 {vr(D,4)}, {vr(VW+4*m,4)}, {vr(VA+4*m,4)}, {c}")
        if m + 5 < 16: rd(m + 5)
    A("s_nop 7")

def batch_reduce2(g, va, vb, ta, tb):
    A = g.A
    A("s_nop 0")
    for m in ("quad_perm:[1,0,3,2]", "quad_perm:[2,3,0,1]", "row_ror:8"):
        A(f"v_add_f32_dpp v{va}, v{va}, v{va} {m} row_mask:0xf bank_mask:0xf")
        A(f"v_add_f32_dpp v{vb}, v{vb}, v{vb} {m} row_mask:0xf bank_mask:0xf")
        A("s_nop 0")
    for sw in ("v_permlane16_swap_b32", "v_permlane32_swap_b32"):
        A(f"v_mov_b32 v{ta}, v{va}")
        A(f"v_mov_b32 v{tb}, v{vb}")
        A("s_nop 0")
        A(f"{sw} v{ta}, v{va}")
        A(f"{sw} v{tb}, v{vb}")
        A(f"v_add_f32 v{va}, v{va}, v{ta}")
        A(f"v_add_f32 v{vb}, v{vb}, v{tb}")

def ln_partial(g, x):
    A = g.A
    A(f"v_add_f32 v8, v{x}, v{x+1}"); A(f"v_mul_f32 v9, v{x}, v{x}")
    A(f"v_add_f32 v10, v{x+2}, v{x+3}"); A(f"v_mul_f32 v11, v{x+2}, v{x+2}")
    A(f"v_fmac_f32 v9, v{x+1}, v{x+1}"); A(f"v_fmac_f32 v11, v{x+3}, v{x+3}")
    A("v_add_f32 v8, v8, v10"); A("v_add_f32 v9, v9, v11")
    batch_reduce2(g, 8, 9, 10, 11)
    A("ds_write_b64 v5, v[8:9]")
def ln_apply(g, x, t):
    A = g.A
    A(f"ds_read_b128 {vr(t,4)}, v6")
    A(f"ds_read_b128 {vr(t+4,4)}, v6 offset:16")
    A("s_waitcnt lgkmcnt(0)")
    A(f"v_pk_add_f32 {vr(t,2)}, {vr(t,2)}, {vr(t+2,2)}")
    A(f"v_pk_add_f32 {vr(t+4,2)}, {vr(t+4,2)}, {vr(t+6,2)}")
    A(f"v_pk_add_f32 {vr(t,2)}, {vr(t,2)}, {vr(t+4,2)}")
    A(f"v_mul_f32 v8, 0x{f2u(1/512):08x}, v{t}")
    A(f"v_mul_f32 v9, 0x{f2u(1/512):08x}, v{t+1}")
    A("v_fma_f32 v9, -v8, v8, v9")
    rnd(g, 8)
    A("v_max_f32 v9, 0, v9")
    rnd(g, 9)
    for i in range(2): A(f"v_sub_f32 v{x+i}, v{x+i}, v8")
    A(f"v_add_f32 v9, 0x{EPS:08x}, v9")
    for i in range(2, 4): A(f"v_sub_f32 v{x+i}, v{x+i}, v8")
    rnd(g, 9)
    rnd(g, x)
    A("v_sqrt_f32 v9, v9")
    rnd(g, x+1)
    rnd(g, 9)
    rnd(g, x+2)
    A("v_rcp_f32 v9, v9")
    rnd(g, x+3)
    for i in range(4): A(f"v_mul_f32 v{x+i}, v{x+i}, v9")
    for i in range(4): rnd(g, x+i)

def act_addr(g, v, base, bstride):
    A = g.A
    A(f"v_and_b32 v{v}, 1, v1")
    A(f"v_mul_u32_u24 v{v}, {bstride}, v{v}")
    A(f"v_lshrrev_b32 v3, 4, v1")
    A(f"v_lshl_add_u32 v{v}, v3, 4, v{v}")
    if base: A(f"v_add_u32 v{v}, {base}, v{v}")

def gemv(g, nk, vaddr, D):
    A = g.A
    first = min(nk, 12)
    for m in range(first):
        A(f"ds_read_b128 {vr(VA+4*m,4)}, v{vaddr} offset:{64*m}")
    issued = first
    for m in range(nk):
        A(f"s_waitcnt lgkmcnt({issued-m-1})")
        c = "0" if m == 0 else vr(D, 4)
        A(f"v_mfma_f32_16x16x32_bf16 {vr(D,4)}, {vr(VW+4*m,4)}, {vr(VA+4*m,4)}, {c}")
        if issued < nk:
            A(f"ds_read_b128 {vr(VA+4*issued,4)}, v{vaddr} offset:{64*issued}")
            issued += 1
    A("s_nop 7")

def guard(g, r):
    g.A(f"v_min_u32 v{r}, s72, v{r}")

def unpack2(g, d, s):
    g.A(f"v_lshlrev_b32 v{d}, 16, v{s}")
    g.A(f"v_and_b32 v{d+1}, s73, v{s}")
def unpack4(g, d, s, step=1):
    unpack2(g, d, s); unpack2(g, d+2, s+step)

def ln_finish(g, mean, var, mu, rinv):
    A = g.A
    rnd(g, mu, mean)
    rnd(g, var)
    A(f"v_add_f32 v{var}, 0x{EPS:08x}, v{var}")
    rnd(g, var)
    A(f"v_sqrt_f32 v{var}, v{var}")
    A("s_nop 0")
    rnd(g, var)
    A(f"v_rcp_f32 v{rinv}, v{var}")
    A("s_nop 0")

def silu4(g, x, t):
    A = g.A
    for i in range(4): A(f"v_mul_f32 v{t+i}, 0x{LOG2E ^ 0x80000000:08x}, v{x+i}")
    for i in range(4): A(f"v_exp_f32 v{t+i}, v{t+i}")
    A("s_nop 0")
    for i in range(4): A(f"v_add_f32 v{t+i}, 1.0, v{t+i}")
    for i in range(4): A(f"v_rcp_f32 v{t+i}, v{t+i}")
    A("s_nop 0")
    for i in range(4): A(f"v_mul_f32 v{x+i}, v{x+i}, v{t+i}")

EX8 = ["s_mov_b32 exec_lo, 0x00030003", "s_mov_b32 exec_hi, 0x00030003"]

def dense_stream(g, opts, D, JP, NS, NL, slot, issue, throttle):
    A = g.A
    A(f"s_mul_i32 s15, s9, {NL*1024}")
    A(f"s_add_u32 s15, s15, {L_VX}")
    for j in range(D, NS + NL):
        throttle(j)
        issue(j)
        if opts.get("pst") and j in (12, 22, 31): A(f"s_memrealtime s[{80+2*{12: 2, 22: 3, 31: 4}[j]}:{81+2*{12: 2, 22: 3, 31: 4}[j]}]")
        if j == opts.get("JG", 20):
            A("v_mov_b32 v4, 0")
            A(f"ds_write_b32 v4, v4 offset:{L_PG}")
    g.stamp(1)
    if opts.get("nocomp"):
        A("s_lshl_b32 s11, s9, 9")
        A("v_lshlrev_b32 v3, 3, v1")
        A("v_add_u32 v3, s11, v3")
        A("v_mov_b32 v16, 1.0"); A("v_mov_b32 v17, 0.5")
        A(f"ds_write_b64 v3, v[16:17] offset:{L_SC}")
        for j in range(NS + NL, 64):
            throttle(j); issue(j)
        A("s_waitcnt vmcnt(0)")
        A(f"ds_write_b64 v3, v[16:17] offset:{L_OP}")
        A("s_waitcnt lgkmcnt(0)")
        A("s_branch L_send")
    poll_lds(g, [f"ds_read_b128 v[4:7], v3 offset:{L_QV}"], [4, 5, 6, 7], 8, 2)
    g.stamp(2)
    A(f"s_waitcnt vmcnt({NS+NL-32})")
    nxt = NS + NL
    T, X = 8, 16
    for G_ in range(4):
        for tt in range(4):
            for e in range(8):
                c = "0" if tt == 0 else f"v{T+e}"
                A(f"v_dot2_f32_bf16 v{T+e}, v{slot(8*G_+e)+tt}, v{4+tt}, {c}")
        if (nxt % NS) < 8 * (G_ + 1):
            issue(nxt); nxt += 1
        for e in range(0, 8, 2):
            A(f"v_add_f32_dpp v{T+e}, v{T+e}, v{T+e} row_ror:8 row_mask:0xf bank_mask:0x3")
            A(f"v_add_f32_dpp v{T+e}, v{T+e+1}, v{T+e+1} row_ror:8 row_mask:0xf bank_mask:0xc")
        for h in range(2):
            A(f"v_add_f32_dpp v{X+2*G_+h}, v{T+4*h}, v{T+4*h} row_shl:4 row_mask:0xf bank_mask:0x5")
            A(f"v_add_f32_dpp v{X+2*G_+h}, v{T+4*h+2}, v{T+4*h+2} row_shr:4 row_mask:0xf bank_mask:0xa")
    A("s_nop 1")
    for n in range(8):
        A(f"v_add_f32_dpp v{X+n}, v{X+n}, v{X+n} quad_perm:[2,3,0,1] row_mask:0xf bank_mask:0xf")
    for n in range(4):
        A(f"v_cndmask_b32 v{T+n}, v{X+2*n}, v{X+2*n+1}, s[52:53]")
    A("s_nop 1")
    for n in range(4):
        A(f"v_add_f32_dpp v{T+n}, v{T+n}, v{T+n} quad_perm:[1,0,3,2] row_mask:0xf bank_mask:0xf")
    for n in range(2):
        A(f"v_cndmask_b32 v{X+n}, v{T+2*n}, v{T+2*n+1}, s[54:55]")
    if opts.get("nosr", 0) < 1:
        for n in range(2): rnd(g, X+n)
    for n in range(2): A(f"v_mul_f32 v{X+n}, 0x{SCALE:08x}, v{X+n}")
    if opts.get("nosr", 0) < 2:
        for n in range(2): rnd(g, X+n)
    A("s_lshl_b32 s11, s9, 9")
    A("v_lshlrev_b32 v3, 3, v1")
    A("v_add_u32 v3, s11, v3")
    A(f"ds_write_b64 v3, v[{X}:{X+1}] offset:{L_SC}")
    g.stamp(3)
    for j in range(nxt, JP):
        throttle(j)
        issue(j)
    nxt = max(nxt, JP)
    BURST = opts.get("burst", 1)
    if BURST:
        for j in range(nxt, 64): issue(j)
        nxt = 64
    A(f"v_mov_b32 v3, {L_ML}")
    g.stamp(7)
    poll_lds(g, ["ds_read_b64 v[18:19], v3"], [18, 19], 8, 2)
    g.stamp(4)
    if NL:
        assert JP - D >= NS + NL
        A("v_lshl_add_u32 v3, v1, 4, s15")
        for k in range(NL):
            A(f"ds_read_b128 {vr(slot(NS+k),4)}, v3 offset:{k*1024}")
    for n in range(2): A(f"v_sub_f32 v{X+n}, v{X+n}, v18")
    for n in range(2): A(f"v_mul_f32 v{X+n}, 0x{LOG2E:08x}, v{X+n}")
    for n in range(2): A(f"v_exp_f32 v{X+n}, v{X+n}")
    A("s_nop 0")
    for n in range(2): A(f"v_mul_f32 v{X+n}, v{X+n}, v19")
    for n in range(2):
        A(f"v_cvt_pk_bf16_f32 v{4+2*n}, v{X+n}, 0")
        A(f"v_cvt_pk_bf16_f32 v{5+2*n}, 0, v{X+n}")
    for e in range(8): A(f"v_mov_b32 v{T+e}, 0")
    A("v_and_b32 v3, 15, v1")
    A("v_lshlrev_b32 v3, 5, v3")
    A("v_lshrrev_b32 v16, 4, v1")
    A("v_lshl_add_u32 v3, v16, 3, v3")
    A("v_add_u32 v3, s11, v3")
    def pv(i):
        c = ((i & 1) << 3) | (((i >> 1) & 1) << 2) | (((i >> 2) & 1) << 1) | ((i >> 3) & 1)
        pr = 4 + 2 * (i >> 4)
        for tt in range(4):
            for hf in range(2):
                A(f"v_dot2c_f32_bf16_dpp v{T+2*tt+hf}, v{pr+hf}, v{slot(32+i)+tt} row_newbcast:{c} row_mask:0xf bank_mask:0xf")
    done = 0
    if NL: A("s_waitcnt lgkmcnt(0)")
    per = opts.get("pvper", 4)
    for j in range(nxt, 64):
        throttle(j)
        issue(j)
        lim = min(j - D - 32 + 1, done + per)
        while done < lim:
            pv(done); done += 1
    while done < 32:
        if 31 - done < (64 - JP + D if BURST else D): A(f"s_waitcnt vmcnt({31-done})")
        pv(done); done += 1
    g.stamp(5); g.stamp(5, 2)
    A("s_nop 2")
    for j in range(4):
        A(f"v_permlane32_swap_b32 v{T+j}, v{T+j+4}")
    for j in range(4):
        A(f"v_add_f32 v{T+j}, v{T+j}, v{T+j+4}")
    A("s_nop 0")
    for j in range(2):
        A(f"v_permlane16_swap_b32 v{T+j}, v{T+j+2}")
    for j in range(2):
        A(f"v_add_f32 v{T+j}, v{T+j}, v{T+j+2}")
    A(f"ds_write_b64 v3, v[{T}:{T+1}] offset:{L_OP}")
    A("s_waitcnt lgkmcnt(0)")

ZERO_GAP = 93.0
def sparse_stream(g, opts, D, slot, issue, throttle):
    A = g.A
    T, X = 8, 16
    DV = opts.get("DV", 4)
    PRE = DV
    DEL = opts.get("delta", 20)
    VF = opts.get("vf", "nt")
    CNT, LIM, FIN, RET, TK = 58, 59, 60, 62, (64, 66)
    OFF = (24, 26); SET = (28, 30, 32); PH = (34, 35, 36); MW, L16, LRD, SCL, EPA = 37, 38, 39, 23, 22
    A(f"v_mov_b32 v{L16}, v3")
    A("s_lshl_b32 s15, s9, 11")
    A(f"s_add_u32 s15, s15, {L_VX}")
    A("v_lshl_add_u32 v3, v1, 3, s15")
    A("v_mov_b32 v4, 0x7fff0000"); A("v_mov_b32 v5, 0xff800000")
    for n in range(3): A(f"ds_write_b64 v3, v[4:5] offset:{512*n}")
    A(f"v_lshrrev_b32 v3, 4, v1")
    A(f"v_lshl_add_u32 v{LRD}, v{L16}, 1, s15")
    A(f"v_lshl_add_u32 v{LRD}, v3, 3, v{LRD}")
    A(f"s_sub_u32 s61, s12, {D*0x2000}")
    A(f"v_bfrev_b32 v{OFF[0]}, v1")
    A(f"v_lshrrev_b32 v{OFF[0]}, 15, v{OFF[0]}")
    A(f"v_and_b32 v{OFF[0]}, 0x1e000, v{OFF[0]}")
    A(f"v_add_u32 v{OFF[0]}, s61, v{OFF[0]}")
    A(f"v_and_b32 v{OFF[0]}, 0x3e000, v{OFF[0]}")
    A(f"v_lshl_add_u32 v{OFF[0]}, v3, 8, v{OFF[0]}")
    A("s_lshl_b32 s11, s9, 10")
    A(f"v_add_u32 v{OFF[0]}, s11, v{OFF[0]}")
    A(f"v_xor_b32 v{OFF[1]}, 0x20000, v{OFF[0]}")
    A("s_lshl_b32 s11, s9, 9")
    A(f"s_mov_b32 s{CNT}, 0"); A(f"s_mov_b32 s{FIN}, 0")
    def qcheck(skip):
        A("s_waitcnt lgkmcnt(0)")
        chk_sentinel(g, [4, 5, 6, 7], 8)
        A("s_cmp_lg_u64 vcc, 0")
        A(f"s_cbranch_scc1 {skip}")
    QC = [int(x) for x in str(opts.get("qc", "20.23.26.29")).split(".")]
    for j in range(D, 32):
        if j in QC:
            l = g.uniq("qc"); l2 = g.uniq("qd")
            A(f"s_cmp_lg_u32 s{CNT}, 0"); A(f"s_cbranch_scc1 {l2}")
            A(f"ds_read_b128 v[4:7], v{L16} offset:{L_QV}")
            g.lab(l2)
        throttle(j)
        issue(j)
        if j in QC:
            assert j - D >= 15
            A(f"s_cmp_lg_u32 s{CNT}, 0"); A(f"s_cbranch_scc1 {l}")
            qcheck(l)
            A(f"s_call_b64 s[{RET}:{RET+1}], L_sc0")
            g.lab(l)
        if j == opts.get("JG", 10):
            A("v_mov_b32 v4, 0")
            A(f"ds_write_b32 v4, v4 offset:{L_PG}")
    g.stamp(1)
    A(f"s_cmp_lg_u32 s{CNT}, 0"); A("s_cbranch_scc1 L_v0")
    poll_lds(g, [f"ds_read_b128 v[4:7], v{L16} offset:{L_QV}"], [4, 5, 6, 7], 8, 2)
    A(f"s_call_b64 s[{RET}:{RET+1}], L_sc0")
    g.lab("L_v0")
    g.stamp(2)

    def dots(G_):
        for tt in range(4):
            for e in range(8):
                c = "0" if tt == 0 else f"v{T+e}"
                A(f"v_dot2_f32_bf16 v{T+e}, v{slot(8*G_+e)+tt}, v{4+tt}, {c}")
        A("s_nop 0")
        for e in range(0, 8, 2):
            A(f"v_add_f32_dpp v{T+e}, v{T+e}, v{T+e} row_ror:8 row_mask:0xf bank_mask:0x3")
            A(f"v_add_f32_dpp v{T+e}, v{T+e+1}, v{T+e+1} row_ror:8 row_mask:0xf bank_mask:0xc")
        x = X + 2 * (G_ & 1)
        for h in range(2):
            A(f"v_add_f32_dpp v{x+h}, v{T+4*h}, v{T+4*h} row_shl:4 row_mask:0xf bank_mask:0x5")
            A(f"v_add_f32_dpp v{x+h}, v{T+4*h+2}, v{T+4*h+2} row_shr:4 row_mask:0xf bank_mask:0xa")
    def finish(n):
        sc = OFF[n] + 1
        A("s_nop 1")
        for i in range(4): A(f"v_add_f32_dpp v{X+i}, v{X+i}, v{X+i} quad_perm:[2,3,0,1] row_mask:0xf bank_mask:0xf")
        for i in range(2): A(f"v_cndmask_b32 v{T+i}, v{X+2*i}, v{X+2*i+1}, s[52:53]")
        A("v_lshl_add_u32 v3, v1, 3, s11")
        A("v_mov_b32 v21, 0")
        for i in range(2): A(f"v_add_f32_dpp v{T+i}, v{T+i}, v{T+i} quad_perm:[1,0,3,2] row_mask:0xf bank_mask:0xf")
        A(f"v_cndmask_b32 v{sc}, v{T}, v{T+1}, s[54:55]")
        rnd(g, sc)
        A(f"v_mul_f32 v{sc}, 0x{SCALE:08x}, v{sc}")
        rnd(g, sc)
        A(f"ds_max_f32 v21, v{sc} offset:{L_MX}")
        A(f"ds_read_b32 v{MW}, v21 offset:{L_MX}")
        A(f"ds_write_b32 v3, v{sc} offset:{L_SC+4*n}")
    def build(n, thr, first):
        tk = f"s[{TK[n]}:{TK[n]+1}]"
        A(f"v_cmp_nlt_f32 vcc, v{OFF[n]+1}, v{thr}")
        A(f"s_lshl_b32 s68, s{CNT}, 3")
        A("s_add_u32 s68, s68, s15")
        if first: A(f"s_mov_b64 {tk}, vcc")
        else: A(f"s_andn2_b64 {tk}, vcc, {tk}")
        A(f"v_mbcnt_lo_u32_b32 v3, s{TK[n]}, 0")
        A(f"v_mbcnt_hi_u32_b32 v3, s{TK[n]+1}, v3")
        A(f"s_bcnt1_i32_b64 s69, {tk}")
        A("v_lshl_add_u32 v3, v3, 3, s68")
        A(f"s_mov_b64 exec, {tk}")
        A(f"ds_write_b64 v3, {vr(OFF[n],2)}")
        A("s_mov_b64 exec, -1")
        A(f"s_add_u32 s{CNT}, s{CNT}, s69")
    def reread(weights=True):
        ns = 3 if weights else 1
        for n in range(ns): A(f"ds_read_b64 {vr(SET[n],2)}, v{LRD} offset:{512*n}")
        A("s_waitcnt lgkmcnt(0)")
        if not weights: return
        for n in range(3): A(f"v_sub_f32 v{SET[n]+1}, v{SET[n]+1}, v{MW}")
        for n in range(3): A(f"v_mul_f32 v{SET[n]+1}, 0x{LOG2E:08x}, v{SET[n]+1}")
        for n in range(3): A(f"v_exp_f32 v{SET[n]+1}, v{SET[n]+1}")
        A("s_nop 0")
        for n in range(3): A(f"v_cvt_pk_bf16_f32 v{PH[n]}, 0, v{SET[n]+1}")
        for n in range(3): A(f"v_cvt_pk_bf16_f32 v{SET[n]+1}, v{SET[n]+1}, 0")
        A("s_nop 1")
    def vissue(t):
        A(f"v_add_u32_dpp v3, v{SET[t//16]}, v{L16} row_newbcast:{t%16} row_mask:0xf bank_mask:0xf")
        A(f"s_waitcnt vmcnt({DV-1})")
        A(f"buffer_load_dwordx4 {vr(slot(t),4)}, v3, s[48:51], 0 offen {VF}")
    def pv(t):
        for tt in range(4):
            for hf in range(2):
                p = (SET[t//16] + 1, PH[t//16])[hf]
                A(f"v_dot2c_f32_bf16_dpp v{T+2*tt+hf}, v{p}, v{slot(t)+tt} row_newbcast:{t%16} row_mask:0xf bank_mask:0xf")
    for t in range(PRE):
        vissue(t)
        if t == 0: dots(2)
    dots(3)
    finish(1)
    g.stamp(3)
    A("s_waitcnt lgkmcnt(1)")
    A(f"v_add_f32 v21, 0x{f2u(DEL - ZERO_GAP):08x}, v{MW}")
    build(1, 21, True)
    for e in range(8): A(f"v_mov_b32 v{T+e}, 0")
    A(f"s_lshr_b32 s{LIM}, s{CNT}, 2")
    reread()
    NST = PRE + 32 + DV
    for t in range(PRE, NST + 1):
        l = g.uniq("vs")
        A(f"s_cmp_lg_u32 s{LIM}, {t}")
        A(f"s_cbranch_scc1 {l}")
        A(f"s_call_b64 s[{RET}:{RET+1}], L_hand")
        g.lab(l)
        if t == NST: break
        vissue(t)
        pv(t - DV)
    A("s_endpgm")
    g.lab("L_sc0")
    dots(0); dots(1)
    finish(0)
    A("s_waitcnt lgkmcnt(1)")
    A(f"v_add_f32 v21, 0x{f2u(DEL - ZERO_GAP):08x}, v{MW}")
    build(0, 21, True)
    A(f"s_max_u32 s{CNT}, s{CNT}, {4*PRE}")
    reread(False)
    A(f"s_setpc_b64 s[{RET}:{RET+1}]")
    g.lab("L_hand")
    A(f"s_cmp_lg_u32 s{FIN}, 0")
    A("s_cbranch_scc1 L_epi")
    g.stamp(7)
    A(f"v_mov_b32 v3, {L_ML}")
    poll_lds(g, ["ds_read_b64 v[18:19], v3"], [18, 19], 16, 2)
    g.stamp(4)
    A(f"v_add_f32 v21, 0x{f2u(-ZERO_GAP):08x}, v18")
    if opts.get("noskip"): A("v_mov_b32 v21, 0xff800000")
    build(0, 21, False)
    build(1, 21, False)
    A(f"v_sub_f32 v{SCL}, v{MW}, v18")
    A(f"v_mul_f32 v{SCL}, 0x{LOG2E:08x}, v{SCL}")
    A(f"v_exp_f32 v{SCL}, v{SCL}")
    A(f"v_lshrrev_b32 v16, 4, v1")
    A(f"v_lshl_add_u32 v{EPA}, v{L16}, 1, s11")
    A(f"v_mul_f32 v{SCL}, v{SCL}, v19")
    A(f"v_lshl_add_u32 v{EPA}, v16, 3, v{EPA}")
    A(f"s_add_u32 s{LIM}, s{CNT}, {3 + 4*DV}")
    A(f"s_lshr_b32 s{LIM}, s{LIM}, 2")
    A(f"s_mov_b32 s{FIN}, 1")
    reread()
    A(f"s_setpc_b64 s[{RET}:{RET+1}]")
    g.lab("L_epi")
    g.stamp(5); g.stamp(5, 2)
    A("s_nop 0")
    for j in range(4):
        A(f"v_permlane32_swap_b32 v{T+j}, v{T+j+4}")
    for j in range(4):
        A(f"v_add_f32 v{T+j}, v{T+j}, v{T+j+4}")
    A("s_nop 0")
    for j in range(2):
        A(f"v_permlane16_swap_b32 v{T+j}, v{T+j+2}")
    for j in range(2):
        A(f"v_add_f32 v{T+j}, v{T+j}, v{T+j+2}")
    for j in range(2):
        A(f"v_mul_f32 v{T+j}, v{T+j}, v{SCL}")
    A(f"ds_write_b64 v{EPA}, v[{T}:{T+1}] offset:{L_OP}")
    A("s_waitcnt lgkmcnt(0)")

def gen(opts):
    g = G(opts); A = g.A
    SPV = opts.get("spv", 1)
    D = opts.get("D", 4); JP = opts.get("JP", 58); NS = 32 if SPV else 36; NL = 0 if SPV else opts.get("NL", 4)
    LDS_BYTES = L_VX + (8 * 2048 if SPV else 8192 * NL)
    UNI = 0
    TOUCH = opts.get("touch", 2)
    LIN = 1
    APT = opts.get("aptag", 1)
    URG = 1 if UNI else C_MODA
    RM = role_map(opts.get("rmode", 2))
    JSW = {C_NONE: opts.get("jn", 21), C_F1: opts.get("jf1", 17), C_F2: opts.get("jf", 16), C_WO: opts.get("jw", 18),
           C_MODB: opts.get("jb", opts.get("jw", 18) - 1), C_MODA: opts.get("ja", 4), C_Q: opts.get("jq", 7)}
    JSWMAX = max(JSW.values())
    def jsw(r, t):
        slow = r in (C_WO, C_MODB, C_MODA, C_Q) and t % 8 == 3
        if r == C_F2 and t // 4 == 3: return opts.get("jf3", 0)
        return max(0, JSW[r] - opts.get("j3", 17)) if slow else JSW[r]
    JT = list(opts["jtab"]) if "jtab" in opts else [jsw(r, t) for r, t in RM]
    if "jx" in opts:
        jx = [int(c, 36) * 4 - 20 for c in str(opts["jx"]).zfill(8)]
        JT = [min(64, max(0, j + jx[w % 8])) for w, j in enumerate(JT)]
    for w, (r, t) in enumerate(RM):
        if r == C_F2 and w % 8 in (0, 2): JT[w] = opts.get("jf2", 9)
    JSWMAX = max(JT)
    def m3(w):
        rows = [t // 8 + 1 for v, (r, t) in enumerate(RM) if r in (C_MODA, C_MODB) and t % 8 == 3 and v % 8 == w % 8]
        return rows[0] if len(rows) == 1 and (TOUCH == 1 or rows[0] <= 2) else 0
    def early(r, t):
        if r == C_F1: return opts.get("e1", 8)
        if r == C_F2: return opts.get("e23", 0) if t // 4 == 3 else opts.get("e2", 0)
        return 0
    WFL = opts.get("wflags", "nt")
    KVF = [opts.get("kf", "nt"), opts.get("vf", "nt")]
    hdr = open(opts["ref"]).read().split("; Override launch")[0]
    g.L.append(hdr.rstrip("\n"))
    g.L.append(""";
; Generated by gen/gen.py (hand-written generator).  One launch, 256 co-resident workgroups (one per CU) of 12 waves.
;  * waves 0-3 run one side role per workgroup, an MFMA mat-vec on a weight tile staged by LDS-DMA: modulation (MODA/MODB),
;    the launch advances at its end) next to / inside every 8-16 byte granule, or a sentinel cleared earlier in the launch.
;    Stores are write-through (sc1) unless all workgroups of the group reported the same XCC id in this launch; loads are sc1.
;    Every spin is bounded.  Placement, the choice between two equal copies of a hand-off (a vote on which memory side
;    answers faster) and the load-depth table only affect speed.""")
    g.L.append(f"; @launch grid=(256,1,1) block=(768,1,1) lds={LDS_BYTES}")
    g.L.append('.amdgcn_target "amdgcn-amd-amdhsa--gfx950"\n.text')
    g.L.append(f".globl {KNAME}\n.p2align 8\n.type {KNAME},@function\n{KNAME}:")
    A("s_cmp_ge_u32 s2, 256")
    A("s_cbranch_scc1 L_end")
    A("s_load_dwordx16 s[16:31], s[0:1], 0")
    A("s_load_dwordx8 s[32:39], s[0:1], 64")
    A("s_load_dwordx4 s[40:43], s[0:1], 96")
    A("s_getpc_b64 s[56:57]")
    g.lab("L_pc")
    A("s_lshl_b32 s3, s2, 2")
    A("s_add_u32 s3, s3, L_table-L_pc")
    RMODE = opts.get("rmode", 2)
    mt = (lambda i: i) if RMODE == 0 else (lambda i: (i & 8) | ((i + 3 - ((i >> 3) << 1)) & 7))
    assert all(RM[w] == (C_Q, 8 * (w % 8) + w // 8) for w in range(64)) and all(RM[128 + i] == (C_MODA, mt(i)) for i in range(16))
    A("s_sub_u32 s61, s2, 128")
    A("s_cmp_lt_u32 s61, 16")
    A("s_cselect_b32 s13, 1, 0")
    A("s_cmp_lt_u32 s2, 64")
    A("s_cselect_b32 s13, 2, s13")
    A("v_lshrrev_b32 v2, 6, v0")
    A("v_and_b32 v1, 63, v0")
    A("v_readfirstlane_b32 s5, v2")
    A("s_bfe_u32 s7, s2, 0x20003")
    A("s_bfe_u32 s6, s2, 0x20005")
    A("s_and_b32 s8, s2, 7")
    A("s_lshl_b32 s9, s8, 2")
    A("s_add_u32 s6, s6, s9")
    A("s_lshr_b32 s9, s2, 7")
    A("s_lshl_b32 s9, s9, 5")
    A("s_add_u32 s6, s6, s9")
    A("s_mov_b32 s72, 0xfffffffe")
    A("s_mov_b32 s73, 0xffff0000")
    g.stamp(0)
    if opts.get("xwait") or opts.get("tau") or opts.get("amp") or "aw" in opts: A("s_memrealtime s[78:79]")
    A("s_cmp_lt_u32 s5, 4")
    A("s_cbranch_scc1 L_helper")

    RB = 40 if SPV else 24
    def slot(j): return RB + 4 * (j % NS)
    A("s_sub_u32 s9, s5, 4")
    A("s_lshl_b32 s10, s6, 22")
    A("s_lshl_b32 s11, s7, 18")
    A("s_add_u32 s10, s10, s11")
    A("s_add_u32 s10, s10, 0x300000")
    A("s_lshl_b32 s11, s9, 10")
    A("v_lshlrev_b32 v2, 4, v1")
    SP2 = opts.get("sp2", 0)
    if not SP2: A("v_add_u32 v2, s11, v2")
    A("s_lshr_b32 s12, s2, 3")
    A("s_mul_i32 s12, s12, 5")
    A("s_mul_i32 s15, s8, 3")
    A("s_add_u32 s12, s12, s15")
    def sp2_off():
        A("s_and_b32 s12, s58, 28"); A("s_lshl_b32 s12, s12, 13")
        A("s_and_b32 s61, s58, 3"); A("s_lshl_b32 s61, s61, 10"); A("s_or_b32 s12, s12, s61")
        A("s_and_b32 s61, s59, 7"); A("s_lshl_b32 s61, s61, 12"); A("s_or_b32 s12, s12, s61")
        A("s_add_u32 s58, s58, 1"); A(f"s_add_u32 s59, s59, {SP2}")
    if SP2:
        A("s_mov_b32 s58, s12"); A(f"s_mul_i32 s59, s12, {SP2}"); A("s_add_u32 s59, s59, s9")
        sp2_off()
    else:
        A("s_lshl_b32 s12, s12, 13")
        A("s_and_b32 s12, s12, 0x3ffff")
    A("s_waitcnt lgkmcnt(0)")
    A("s_add_u32 s44, s18, s10"); A("s_addc_u32 s45, s19, 0")
    A("s_mov_b32 s46, 0x40000"); A("s_mov_b32 s47, 0x20000")
    A("s_add_u32 s48, s20, s10"); A("s_addc_u32 s49, s21, 0")
    A("s_mov_b32 s50, 0x40000"); A("s_mov_b32 s51, 0x20000")
    def issue(j):
        t, i = divmod(j, 32)
        if NS <= j < NS + NL:
            A(f"s_add_u32 m0, s15, {(j-NS)*1024}")
            A("s_nop 0")
            A(f"buffer_load_dwordx4 v2, s[{44+4*t}:{47+4*t}], s12 offen {KVF[t]} lds")
        else:
            A(f"buffer_load_dwordx4 {vr(slot(j),4)}, v2, s[{44+4*t}:{47+4*t}], s12 offen {KVF[t]}")
        if SP2: sp2_off()
        else:
            A("s_add_u32 s12, s12, 0x2000")
            A("s_and_b32 s12, s12, 0x3ffff")
    if opts.get("fake"):
        A("s_barrier")
        A("v_mov_b32 v3, 0")
        A(f"ds_write_b32 v3, v3 offset:{L_PG}")
        poll_lds(g, [f"ds_read_b32 v4, v3 offset:{L_QV}"], [4], 8, 8)
        A("s_lshl_b32 s11, s9, 9")
        A("v_lshlrev_b32 v3, 3, v1")
        A("v_add_u32 v3, s11, v3")
        A("v_mov_b32 v16, 1.0"); A("v_mov_b32 v17, 0.5")
        A(f"ds_write_b64 v3, v[16:17] offset:{L_SC}")
        A(f"v_mov_b32 v4, {L_ML}")
        poll_lds(g, ["ds_read_b64 v[18:19], v4"], [18, 19], 8, 2)
        A("s_memrealtime s[64:65]"); A("s_waitcnt lgkmcnt(0)")
        A("s_add_u32 s62, s64, 3072"); A("s_and_b32 s62, s62, 0xfffff800")
        if opts.get("fskew"):
            A("s_and_b32 s63, s2, 7"); A(f"s_mul_i32 s63, s63, {opts['fskew']}"); A("s_add_u32 s62, s62, s63")
        g.lab("L_fw")
        A("s_sleep 1")
        A("s_memrealtime s[64:65]"); A("s_waitcnt lgkmcnt(0)")
        A("s_sub_u32 s65, s64, s62"); A("s_cmp_lt_i32 s65, 0"); A("s_cbranch_scc1 L_fw")
        A(f"ds_write_b64 v3, v[16:17] offset:{L_OP}")
        A("s_waitcnt lgkmcnt(0)")
        A("s_branch L_send")
    if opts.get("sdelay"):
        A("s_barrier")
        A("v_mov_b32 v3, 0")
        poll_lds(g, [f"ds_read_b32 v4, v3 offset:{L_QV}"], [4], 8, 8)
        for j in range(D): issue(j)
    else:
        A("s_cmp_eq_u32 s13, 0")
        A("s_cbranch_scc1 L_nb1")
        A("s_barrier")
        g.lab("L_nb1")
        for j in range(D): issue(j)
        A("s_load_dword s14, s[56:57], s3")
        if opts.get("tlbw", 0):
            A("s_cmp_lg_u32 s9, 0"); A("s_cbranch_scc1 L_nv")
            A("s_mov_b64 exec, 1")
            A("buffer_load_dword v4, v2, s[48:51], s12 offen nt")
            A("s_mov_b64 exec, -1")
            g.lab("L_nv")
        A("s_cmp_eq_u32 s13, 0")
        A("s_cbranch_scc0 L_nb2")
        A("s_barrier")
        g.lab("L_nb2")
        A("s_waitcnt lgkmcnt(0)")
        A("s_bfe_u32 s14, s14, 0x80010")
    DP = [int(c) for c in str(opts.get("dpat", 43))]
    SP = [int(c) for c in str(opts.get("spat", D - opts.get("shal", 2)))]
    assert max(DP) <= D
    TAU = opts.get("tau", 0)
    def throttle(j):
        d = D if j >= opts.get("jfull", 48) else DP[j % len(DP)]
        if TAU and j >= opts.get("jt0", 8):
            l = g.uniq("th")
            A(f"s_waitcnt vmcnt({d-1}) lgkmcnt(0)")
            A("s_sub_u32 s68, s66, s78")
            A(f"s_cmp_ge_u32 s68, {max(0, ((j - 1 - D) * TAU + opts.get('toff', 800)) // 10)}")
            A(f"s_cbranch_scc1 {l}")
            A(f"s_waitcnt vmcnt({SP[j % len(SP)]-1})")
            g.lab(l)
            A("s_memrealtime s[66:67]")
            return
        A(f"s_waitcnt vmcnt({d-1})")
        if TAU:
            if j == opts.get("jt0", 8) - 1: A("s_memrealtime s[66:67]")
            return
        if j < JSWMAX and SP[j % len(SP)] < d:
            l = g.uniq("th")
            A(f"s_cmp_le_u32 s14, {j}")
            A(f"s_cbranch_scc1 {l}")
            A(f"s_waitcnt vmcnt({SP[j % len(SP)]-1})")
            g.lab(l)
    A("s_mov_b32 s52, 0xcccccccc"); A("s_mov_b32 s53, 0xcccccccc")
    A("s_mov_b32 s54, 0xaaaaaaaa"); A("s_mov_b32 s55, 0xaaaaaaaa")
    A("v_and_b32 v3, 15, v1")
    A("v_lshlrev_b32 v3, 4, v3")
    if SPV: sparse_stream(g, opts, D, slot, issue, throttle)
    else: dense_stream(g, opts, D, JP, NS, NL, slot, issue, throttle)
    g.lab("L_send")
    if opts.get("stamps") in (1, 2):
        g.stamp(6)
        A("s_lshl_b32 s3, s2, 7")
        A("s_lshl_b32 s4, s9, 2")
        A("s_add_u32 s4, s4, s3")
        A(f"s_add_u32 s4, s4, {WS_STAMP+96}")
        A("v_mov_b32 v2, s4")
        A("s_waitcnt lgkmcnt(0)")
        A("v_mov_b32 v3, s92")
        A("global_store_dword v2, v3, s[42:43]")
        A("s_cmp_lg_u32 s5, 4")
        A("s_cbranch_scc1 L_end")
        A(f"s_add_u32 s3, s3, {WS_STAMP+64}")
        A("v_mov_b32 v2, s3")
        A("s_waitcnt lgkmcnt(0)")
        for i in range(8):
            A(f"v_mov_b32 v3, s{80+2*i}")
            A(f"global_store_dword v2, v3, s[42:43] offset:{4*i}")
    A("s_endpgm")

    g.lab("L_helper")
    g.help = True
    if opts.get("nohelp") == 1:
        if opts.get("side"):
            A("s_cmp_lg_u32 s5, 3"); A("s_cbranch_scc1 L_end")
            A("s_waitcnt lgkmcnt(0)")
            A("s_barrier")
            for _ in range(opts.get("sdel", 0)): A("s_sleep 127")
            n = opts.get("sn", 1)
            A(f"s_mul_i32 s57, s2, {opts.get('sstride', 512*n)}"); A(f"s_add_u32 s57, s57, {WS_OP}")
            A("v_lshl_add_u32 v8, v1, 3, s57")
            A("v_mov_b32 v4, -1"); A("v_mov_b32 v5, -1")
            if opts.get("slanes"): A(f"s_mov_b64 exec, {(1 << opts['slanes']) - 1}")
            fl = opts.get("sf", "sc1").replace("_", " ")
            for i in range(n):
                if opts["side"] == 1: A(f"global_store_dwordx2 v8, v[4:5], s[42:43] offset:{512*i} {fl}")
                else: A(f"global_load_dwordx2 v[10:11], v8, s[42:43] offset:{512*i} {fl}")
            A("s_waitcnt vmcnt(0)")
        A("s_endpgm")
    if opts.get("prio", 0): A(f"s_setprio {opts['prio']}")
    A("v_mov_b32 v4, -1"); A("v_mov_b32 v5, -1"); A("v_mov_b32 v6, -1"); A("v_mov_b32 v7, -1")
    A("v_lshlrev_b32 v2, 4, v0")
    A(f"ds_write_b128 v2, v[4:7] offset:{L_SC}")
    A("v_lshlrev_b32 v2, 2, v1")
    A(f"ds_write_b32 v2, v4 offset:{L_QV}")
    A("v_mov_b32 v38, 0")
    A(f"ds_write_b128 v38, v[4:7] offset:{L_ML}")
    A(f"ds_write_b32 v38, v38 offset:{L_CNT}")
    A("v_mov_b32 v3, 0xff800000")
    A(f"ds_write_b32 v38, v3 offset:{L_MX}")
    A(f"s_getreg_b32 s{SXCC}, hwreg(HW_REG_XCC_ID, 0, 4)")
    A("v_lshrrev_b32 v12, 3, v0")
    A("v_lshlrev_b32 v12, 5, v12")
    A("v_bfe_u32 v3, v1, 2, 1")
    A("v_lshl_add_u32 v12, v3, 10, v12")
    A("v_and_b32 v8, 3, v1")
    A("v_lshl_add_u32 v13, v8, 3, v12")
    A("v_and_b32 v12, 0xffffffdf, v12")
    A("v_lshl_add_u32 v12, v8, 4, v12")
    A("v_bfe_u32 v8, v1, 3, 1")
    A("v_lshl_add_u32 v12, v8, 3, v12")
    A("v_lshl_add_u32 v12, v3, 5, v12")
    A("s_waitcnt lgkmcnt(0)")
    if opts.get("wso", 0):
        A(f"s_add_u32 s42, s42, {opts['wso'] << 20}"); A("s_addc_u32 s43, s43, 0")
    A(f"s_load_dword s{ST}, s[42:43], {WS_E}")
    A("s_cmp_eq_u32 s13, 2"); A("s_cbranch_scc1 L_r_q")
    A("s_cmp_eq_u32 s13, 1"); A("s_cbranch_scc1 L_r_moda")
    A("s_load_dword s14, s[56:57], s3")
    if opts.get("cpf", 0) == 1:
        A("v_lshlrev_b32 v2, 7, v0")
        A(f"v_min_u32 v2, L_end-L_pc, v2")
        A("global_load_dword v167, v2, s[56:57]")
    if opts.get("cpf", 0) == 2:
        A("s_bfe_u32 s58, s2, 0x30003"); A("s_lshl_b32 s58, s58, 2"); A("s_add_u32 s58, s58, s5"); A("s_lshl_b32 s58, s58, 10")
        A("v_lshl_add_u32 v2, v1, 4, s58")
        A(f"v_min_u32 v2, L_end-L_pc, v2")
        A("global_load_dword v167, v2, s[56:57]")
    A("s_barrier")
    A("s_waitcnt lgkmcnt(0)")
    A("s_and_b32 s13, s14, 7")
    A("s_bfe_u32 s61, s14, 0x80008")
    A("s_lshr_b32 s59, s14, 24")
    A("s_lshl_b32 s59, s59, 10")
    A(f"s_cmp_eq_u32 s13, {C_WO}"); A("s_cbranch_scc1 L_r_wo")
    A(f"s_cmp_eq_u32 s13, {C_MODB}"); A("s_cbranch_scc1 L_r_modb")
    A(f"s_cmp_eq_u32 s13, {C_F1}"); A("s_cbranch_scc1 L_r_f1")
    A(f"s_cmp_eq_u32 s13, {C_F2}"); A("s_cbranch_scc1 L_r_f2")
    A("s_branch L_r_none")

    def clear_issue(kind):
        if not kind: return
        e = g.uniq("clr")
        A("s_cmp_lg_u32 s5, 3")
        A(f"s_cbranch_scc1 {e}")
        A("v_lshl_add_u32 v10, v1, 3, s58")
        A("global_store_dwordx2 v10, v[4:5], s[42:43] sc1")
        A("v_add_u32 v10, 0x2000, v10")
        A("global_store_dwordx2 v10, v[4:5], s[42:43] sc1")
        g.lab(e)
    def make_tag():
        A("s_waitcnt lgkmcnt(0)")
        A(f"s_mul_i32 s{ST}, s{ST}, 0x9e3779b1")
        A(f"s_add_u32 s{ST}, s{ST}, 0x7f4a7c15")
        A(f"s_add_u32 s{SXCC}, s{SXCC}, s{ST}")
    def hdr_signal(nyoung):
        e = g.uniq("sig")
        A("s_cmp_lg_u32 s5, 3")
        A(f"s_cbranch_scc1 {e}")
        A("s_and_b32 s56, s2, 7"); A("s_lshl_b32 s56, s56, 5")
        A("s_lshr_b32 s57, s2, 3"); A("s_add_u32 s56, s56, s57"); A("s_lshl_b32 s56, s56, 2")
        A("v_mov_b32 v8, s56")
        A(f"v_mov_b32 v9, s{SXCC}")
        if nyoung is not None: A(f"s_waitcnt vmcnt({nyoung})")
        A("s_mov_b64 exec, 1")
        A(f"global_store_dword v8, v9, s[42:43] offset:{WS_HDR} sc1")
        A("s_mov_b64 exec, -1")
        g.lab(e)
    def line_out_addr(v, bsh=6, ush=7):
        A(f"v_and_b32 v{v}, 1, v1")
        A(f"v_lshlrev_b32 v{v}, {bsh}, v{v}")
        A("v_lshrrev_b32 v3, 4, v1")
        A(f"v_lshl_add_u32 v{v}, v3, 4, v{v}")
        A(f"s_lshl_b32 s49, s5, {ush}")
        A("s_add_u32 s49, s49, s58")
        A(f"v_add_u32 v{v}, s49, v{v}")
    def pack_tagged():
        A("v_cvt_pk_bf16_f32 v8, v8, v9")
        A("v_cvt_pk_bf16_f32 v10, v10, v11")
        A(f"v_mov_b32 v9, s{ST}")
        A(f"v_mov_b32 v11, s{ST}")
    def ln_addrs():
        A("v_bfe_u32 v6, v1, 2, 1")
        A("v_lshlrev_b32 v6, 5, v6")
        A(f"v_add_u32 v6, {L_RED}, v6")
        A("s_lshl_b32 s49, s5, 3")
        A("v_add_u32 v5, s49, v6")

    def mod_params():
        A("s_lshl_b32 s48, s61, 7")
        A("s_lshl_b32 s58, s61, 9")
        A(f"s_add_u32 s58, s58, {WS_MOD}")
        srd(g, 44, 36, 512*6144)
    def mod_act():
        unpack4(g, 16, 14)
        silu4(g, 16, 20)
        A("v_cvt_pk_bf16_f32 v14, v16, v17")
        A("v_cvt_pk_bf16_f32 v15, v18, v19")
        A(f"ds_write_b64 v12, v[14:15] offset:{L_ACT}")
    def mod_finish(sig):
        line_out_addr(13)
        act_addr(g, 14, L_ACT, ACT_BS)
        tr64_addr(g)
        if sig:
            A("s_waitcnt vmcnt(0) lgkmcnt(0)")
            g.stamp(1)
            hs_signal(g, 8, 9); hs_wait(g, 4, 9, 0)
        else:
            hs_wait(g, 4, 9, 8)
        gemv_fused(g, 14, 8)
        pack_tagged()
        for x in EX8: A(x)
        A("global_store_dwordx4 v13, v[8:11], s[42:43] sc1")
        A("s_mov_b64 exec, -1")
        g.stamp(2)

    g.lab("L_r_moda")
    if RMODE >= 2:
        A("s_lshr_b32 s48, s61, 3"); A("s_lshl_b32 s48, s48, 1")
        A("s_add_u32 s49, s61, 3"); A("s_sub_u32 s49, s49, s48"); A("s_and_b32 s49, s49, 7")
        A("s_and_b32 s61, s61, 8"); A("s_or_b32 s61, s61, s49")
    mod_params()
    A("global_load_dwordx2 v[14:15], v13, s[34:35]")
    dma_tile64(g, 6144, WFL)
    A("s_barrier")
    clear_issue(0)
    make_tag()
    A("s_waitcnt vmcnt(16)")
    hdr_signal(None)
    mod_act()
    mod_finish(1)
    A("s_mov_b32 s60, 0")
    A("s_branch L_svc1")

    g.lab("L_r_q")
    A("s_lshl_b32 s61, s8, 3")
    A("s_lshr_b32 s48, s2, 3")
    A("s_add_u32 s61, s61, s48")
    A("s_lshl_b32 s48, s61, 7")
    A("s_lshl_b32 s58, s61, 8")
    A(f"s_add_u32 s58, s58, {WS_Q}")
    A("global_load_dwordx2 v[14:15], v13, s[16:17]")
    clear_issue(0)
    srd(g, 44, 22, 512*8192)
    dma_tile64(g, 8192, WFL)
    A("s_barrier")
    make_tag()
    A("s_waitcnt vmcnt(16)")
    hdr_signal(None)
    ln_addrs()
    unpack4(g, 20, 14)
    ln_partial(g, 20)
    A("s_waitcnt vmcnt(0) lgkmcnt(0)")
    helper_sync(g, 4, 8, 9)
    ln_apply(g, 20, 24)
    tr_tile64(g)
    line_out_addr(13, 14, 6)
    act_addr(g, 14, L_ACT, ACT_BS)
    A("v_lshlrev_b32 v15, 4, v0")
    A(f"v_add_u32 v15, {WS_MOD}, v15")
    A("v_add_u32 v36, 0x1000, v15")
    g.stamp(1)
    A("s_and_b32 s71, s2, 7")
    A("s_lshl_b32 s71, s71, 7")
    A(f"s_add_u32 s71, s71, {WS_HDR}")
    A("v_and_b32 v8, 31, v1")
    A("v_lshl_add_u32 v8, v8, 2, s71")
    A("s_mov_b64 s[64:65], -1"); A("s_mov_b64 s[66:67], -1")
    A("s_mov_b32 s70, 0")
    g.lab("L_q_p")
    A("s_mov_b64 exec, s[64:65]")
    A("global_load_dwordx4 v[16:19], v15, s[42:43] sc1")
    A("s_mov_b64 exec, s[66:67]")
    A("global_load_dwordx4 v[32:35], v36, s[42:43] sc1")
    A("s_mov_b64 exec, -1")
    A("global_load_dword v9, v8, s[42:43] sc1")
    A("s_waitcnt vmcnt(0)")
    A(f"v_cmp_ne_u32 s[64:65], s{ST}, v17"); A(f"v_cmp_ne_u32 s[68:69], s{ST}, v19"); A("s_or_b64 s[64:65], s[64:65], s[68:69]")
    A(f"v_cmp_ne_u32 s[66:67], s{ST}, v33"); A(f"v_cmp_ne_u32 s[68:69], s{ST}, v35"); A("s_or_b64 s[66:67], s[66:67], s[68:69]")
    A("s_or_b64 vcc, s[64:65], s[66:67]")
    spin_tail(g, "L_q_p", "L_q_ok", opts.get("msleep", 0))
    A(f"v_cmp_ne_u32 vcc, s{SXCC}, v9")
    A("s_cmp_eq_u64 vcc, 0")
    A(f"s_cselect_b32 s{SLOC}, 1, 0")
    if opts.get("nolocal"): A(f"s_mov_b32 s{SLOC}, 0")
    g.stamp(7)
    unpack4(g, 28, 32, 2)
    unpack4(g, 24, 16, 2)
    for i in range(4): A(f"v_add_f32 v{28+i}, 1.0, v{28+i}")
    for i in range(4): rnd(g, 28+i)
    for i in range(4): A(f"v_mul_f32 v{20+i}, v{20+i}, v{28+i}")
    for i in range(4): rnd(g, 20+i)
    for i in range(4): A(f"v_add_f32 v{20+i}, v{20+i}, v{24+i}")
    A("v_cvt_pk_bf16_f32 v16, v20, v21")
    A("v_cvt_pk_bf16_f32 v17, v22, v23")
    A(f"ds_write_b64 v12, v[16:17] offset:{L_ACT}")
    hs_signal(g, 8, 9); hs_wait(g, 8, 9, 0)
    gemv(g, 16, 14, 8)
    pack_tagged()
    guard(g, 8); guard(g, 10)
    for x in EX8: A(x)
    pub_local(g, "global_store_dwordx4 v13, v[8:11], s[42:43]")
    A("s_mov_b64 exec, -1")
    g.stamp(2)
    A("s_mov_b32 s60, 0")
    A("s_branch L_svc1")

    PD = opts.get("PD", 4)
    def dma_waves_only(skip, c3=False):
        A("s_sub_u32 s53, s5, 1")
        A("s_cmp_gt_u32 s53, 1")
        A(f"s_cbranch_scc1 {skip}")
        if c3 and opts.get("PD3s", 0):
            e = g.uniq("c3")
            A("s_and_b32 s49, s61, 7"); A("s_cmp_lg_u32 s49, 3"); A(f"s_cbranch_scc1 {e}")
            dma_tile64(g, c3, WFL, opts["PD3s"])
            A(f"s_branch {skip}")
            g.lab(e)
        if c3 and TOUCH == 1 and opts.get('c3d', 1):
            e = g.uniq("c3")
            A("s_and_b32 s49, s61, 7"); A("s_cmp_lg_u32 s49, 3"); A(f"s_cbranch_scc1 {e}")
            poll_lds(g, [f"ds_read_b32 v8, v38 offset:{L_PG}"], [8], 9, 8)
            dma_tile64(g, c3, WFL, opts.get("PD3", 32))
            A(f"s_branch {skip}")
            g.lab(e)
    g.lab("L_r_modb")
    mod_params()
    A("global_load_dwordx2 v[14:15], v13, s[34:35]")
    clear_issue(0)
    if UNI:
        dma_tile64(g, 6144, WFL)
        A("s_barrier")
    make_tag()
    A(f"s_waitcnt vmcnt({16 if UNI else 0})")
    hdr_signal(16 if UNI else 0)
    mod_act()
    A("s_mov_b32 s60, 4")
    if not UNI:
        dma_waves_only("L_sig", 6144)
        dma_tile64(g, 6144, WFL, PD)
    A("s_branch L_sig")

    g.lab("L_r_wo")
    A("s_and_b32 s66, s2, 7")
    A("s_lshl_b32 s48, s66, 19")
    A("s_lshl_b32 s49, s61, 7")
    A("s_add_u32 s48, s48, s49")
    A("s_lshr_b32 s58, s66, 1"); A("s_lshl_b32 s58, s58, 14")
    A("s_and_b32 s49, s66, 1"); A("s_lshl_b32 s49, s49, 12"); A("s_add_u32 s58, s58, s49")
    A("s_lshl_b32 s49, s61, 9")
    A("s_add_u32 s58, s58, s49")
    A(f"s_add_u32 s58, s58, {WS_AP}")
    clear_issue(0 if APT else 1)
    srd(g, 44, 24, 4096*1024)
    if UNI:
        dma_tile64(g, 1024, WFL)
        A("s_barrier")
    make_tag()
    hdr_signal(16 if UNI else 0)
    g.C("wave 3 times two fresh lines on either memory side and votes which hand-off copy its die should read (speed only)")
    e = g.uniq("nr"); l = g.uniq("nrl")
    A("s_cmp_lg_u32 s5, 3"); A(f"s_cbranch_scc1 {e}")
    A("s_lshl_b32 s49, s61, 14")
    A("s_lshl_b32 s50, s8, 10"); A("s_add_u32 s49, s49, s50"); A(f"s_add_u32 s49, s49, {WS_PRB}")
    A(f"s_add_u32 s50, s49, {opts.get('nprobe', 2)*128}")
    A("s_mov_b32 s54, -1"); A("s_mov_b32 s55, -1")
    g.lab(l)
    for c in range(2):
        A("s_memtime s[64:65]")
        A("s_waitcnt lgkmcnt(0)")
        A("s_load_dword s51, s[42:43], s49")
        A("s_waitcnt lgkmcnt(0)")
        A("s_memtime s[68:69]")
        A("s_waitcnt lgkmcnt(0)")
        A("s_sub_u32 s68, s68, s64")
        A(f"s_min_u32 s{54+c}, s{54+c}, s68")
        A("s_xor_b32 s49, s49, 0x2000")
    A("s_add_u32 s49, s49, 128")
    A("s_cmp_lt_u32 s49, s50"); A(f"s_cbranch_scc1 {l}")
    A("s_cmp_lt_u32 s55, s54")
    A("s_cselect_b32 s54, 1, 0")
    A(f"s_sub_u32 s55, s{SXCC}, s{ST}"); A("s_lshr_b32 s55, s55, 2")
    A("s_xor_b32 s54, s54, s55"); A("s_and_b32 s54, s54, 1")
    A(f"s_add_u32 s54, s54, s{ST}")
    A("s_sub_u32 s55, s2, 64"); A("s_lshl_b32 s55, s55, 2")
    A("v_mov_b32 v8, s55"); A("v_mov_b32 v9, s54")
    A("s_mov_b64 exec, 1")
    A(f"global_store_dword v8, v9, s[42:43] offset:{WS_VOT} sc1")
    A("s_mov_b64 exec, -1")
    g.lab(e)
    A("s_mov_b32 s60, 1")
    if not UNI:
        dma_waves_only("L_sig", 1024)
        dma_tile64(g, 1024, WFL, opts.get("PDW", PD))
    A("s_branch L_sig")

    def f1_lane():
        A("v_lshrrev_b32 v2, 2, v1")
        A("v_mul_u32_u24 v2, 2752, v2")
        A("v_bfe_u32 v3, v1, 4, 1")
        A("s_and_b32 s49, s5, 2")
        A("v_or_b32 v3, s49, v3")
        A("v_xor_b32 v3, v3, v1")
        A("v_and_b32 v3, 3, v3")
        A("v_lshl_add_u32 v2, v3, 4, v2")
    PAR = opts.get("par", 1)
    def f1_lane_par(sp):
        A("v_lshrrev_b32 v2, 2, v1")
        A("v_mul_u32_u24 v2, 5504, v2")
        A("s_and_b32 s49, s5, 2")
        A(f"s_or_b32 s49, s49, {sp}")
        A("v_xor_b32 v3, s49, v1")
        A("v_and_b32 v3, 3, v3")
        A("v_lshl_add_u32 v2, v3, 4, v2")
    def f2_lane():
        A("v_lshrrev_b32 v2, 1, v1")
        A("v_lshlrev_b32 v2, 10, v2")
        A("v_and_b32 v3, 1, v1")
        A("v_lshl_add_u32 v2, v3, 4, v2")

    g.lab("L_r_f1")
    A("s_lshl_b32 s48, s61, 6")
    A("s_mul_i32 s49, s61, 47"); A("s_lshr_b32 s49, s49, 9")
    A(f"s_mul_i32 s49, s49, {16384-11*512}")
    A("s_lshl_b32 s58, s61, 9")
    A("s_add_u32 s58, s58, s49")
    A(f"s_add_u32 s58, s58, {WS_HH}")
    clear_issue(1)
    A("s_cmp_lt_u32 s5, 2")
    A("s_cselect_b32 s44, s28, s30")
    A("s_cselect_b32 s45, s29, s31")
    A(f"s_mov_b32 s46, {512*2752}"); A("s_mov_b32 s47, 0x20000")
    A("s_mov_b32 s60, 2")
    if opts.get("tlbw", 0):
        A("global_load_dword v167, v38, s[16:17]")
        A("buffer_load_dword v167, v38, s[44:47], 0 offen")
    if not UNI:
        make_tag()
        hdr_signal(0)
    dma_waves_only("L_uni" if UNI else "L_svc1")
    if PAR:
        A("s_and_b32 s54, s61, 1")
        f1_lane_par("s54")
        A("s_mul_i32 s49, s54, 2752"); A("s_add_u32 s49, s49, s48")
        A("s_lshl_b32 s50, s53, 15"); A("s_lshl_b32 s54, s54, 14"); A("s_add_u32 s50, s50, s54")
        A(f"s_add_u32 s50, s50, {L_WT}")
        dma_loop(g, 16, 32*2752, opts.get("f1e", ""), opts.get("PD1", 2))
    else:
        f1_lane()
        for q in range(2):
            A(f"s_add_u32 s49, s48, {q*256*2752}")
            A("s_lshl_b32 s50, s53, 15")
            A(f"s_add_u32 s50, s50, {L_WT+q*16384}")
            dma_loop(g, "s59", 16*2752, WFL, 0 if UNI else opts.get("PD1", 2))
    A("s_branch L_uni" if UNI else "s_branch L_svc1")

    g.lab("L_r_f2")
    clear_issue(0)
    srd(g, 44, 32, 1376*1024)
    if not UNI:
        make_tag()
        hdr_signal(0)
    A("s_mov_b32 s60, 3")
    A("s_lshl_b32 s48, s61, 5")
    A("global_load_dword v167, v38, s[38:39]")
    if opts.get("tlbw", 0):
        A("global_load_dword v167, v38, s[16:17]")
        A("global_load_dword v167, v38, s[32:33]")
    if TOUCH:
        e = g.uniq("tch")
        A("s_cmp_lg_u32 s5, 3"); A(f"s_cbranch_scc1 {e}")
        A("s_and_b32 s49, s61, 3"); A("s_lshl_b32 s49, s49, 7")
        A("v_add_u32 v8, s49, v1")
        TF = opts.get("tflags", "")
        def touch(base, stride, off_s):
            A(f"v_mul_u32_u24 v9, {stride}, v8")
            A(f"v_add_u32 v9, {off_s}, v9")
            A(f"v_add_u32 v10, {64*stride}, v9")
            if not opts.get("th", 0): A(f"global_load_dword v167, v9, s[{base}:{base+1}] {TF}")
            A(f"global_load_dword v167, v10, s[{base}:{base+1}] {TF}")
        e2 = g.uniq("tchm")
        A("s_bfe_u32 s50, s14, 0x50003")
        A("s_cmp_eq_u32 s50, 0"); A(f"s_cbranch_scc1 {e2}")
        A("s_lshl_b32 s50, s50, 10"); A(f"s_sub_u32 s50, s50, {1024-384}")
        touch(36, 6144, "s50")
        g.lab(e2)
        A("s_lshl_b32 s50, s8, 10"); A("s_add_u32 s50, s50, 384")
        touch(22, 8192, "s50")
        if TOUCH == 1:
            A("s_waitcnt vmcnt(0)")
            A("s_lshl_b32 s50, s8, 19"); A("s_add_u32 s50, s50, 384")
            touch(24, 1024, "s50")
        g.lab(e)
    dma_waves_only("L_uni" if UNI else "L_svc1")
    f2_lane()
    for q in range(2):
        A(f"s_mul_i32 s49, s53, {22*32*1024}")
        A("s_add_u32 s49, s49, s48")
        A(f"s_add_u32 s49, s49, {q*11*32*1024}")
        A("s_mul_i32 s50, s53, 22528")
        A(f"s_add_u32 s50, s50, {L_WT+q*11264}")
        dma_loop(g, "s59", 32*1024, WFL, 0 if UNI else opts.get("PD2", 1))
    A("s_branch L_uni" if UNI else "s_branch L_svc1")

    g.lab("L_r_none")
    clear_issue(0)
    A("s_mov_b32 s60, 0")
    g.lab("L_uni")
    if UNI: A("s_barrier")
    make_tag()
    hdr_signal(0)
    A("s_branch L_svc1")

    g.lab("L_sig")
    A("s_waitcnt vmcnt(0) lgkmcnt(0)")
    g.stamp(1)
    hs_signal(g, 8, 9)

    g.lab("L_svc1")
    if opts.get("nohelp") == 2:
        A("s_endpgm")
    A("s_cmp_lg_u32 s5, 0")
    A("s_cbranch_scc1 L_disp2")
    A("s_lshl_b32 s64, s6, 9")
    A(f"s_add_u32 s64, s64, {WS_Q}")
    A("v_and_b32 v17, 31, v1")
    A("v_lshl_add_u32 v16, v17, 4, s64")
    A("v_lshlrev_b32 v17, 3, v17")
    poll_lds(g, [f"ds_read_b32 v8, v38 offset:{L_PG}"], [8], 9, 8)
    poll_tagged(g, ["global_load_dwordx4 v[20:23], v16, s[42:43] sc1", "HDR"], [21, 23], sleep=opts.get("qsleep", 0))
    A("v_mov_b32 v21, v22")
    A(f"ds_write_b64 v17, v[20:21] offset:{L_QV}")
    g.stamp(3)

    g.lab("L_disp2")
    if opts.get("nohelp") == 3:
        A("s_endpgm")
    if not opts.get("mlate"):
        A("s_cmp_eq_u32 s60, 4"); A("s_cbranch_scc1 L_d_modb")
        A("s_branch L_svc2")
        g.lab("L_d_modb")
        mod_finish(0)

    g.lab("L_svc2")
    A("s_cmp_lg_u32 s5, 0")
    A("s_cbranch_scc1 L_disp3")
    A("v_lshlrev_b32 v16, 4, v1")
    A("s_lshl_b32 s64, s6, 6"); A(f"s_add_u32 s64, s64, {WS_ST}")
    A("s_lshl_b32 s65, s7, 4"); A("s_add_u32 s65, s65, s64")
    A("v_mov_b32 v18, s65")
    A("v_and_b32 v17, 3, v1")
    A("v_lshl_add_u32 v17, v17, 4, s64")
    poll_lds(g, [f"ds_read_b128 {vr(VA+4*i,4)}, v16 offset:{L_SC+1024*i}" for i in range(4)], range(VA, VA+16), 8, 2)
    A(f"v_max3_f32 v8, v{VA}, v{VA+1}, v{VA+2}")
    for i in range(3, 15, 2): A(f"v_max3_f32 v8, v8, v{VA+i}, v{VA+i+1}")
    A(f"v_max_f32 v8, v8, v{VA+15}")
    wave_allreduce(g, "v_max_f32", 8, 11)
    for i in range(16): A(f"v_sub_f32 v{VA+i}, v{VA+i}, v8")
    for i in range(16): A(f"v_mul_f32 v{VA+i}, 0x{LOG2E:08x}, v{VA+i}")
    for i in range(16): A(f"v_exp_f32 v{VA+i}, v{VA+i}")
    A("s_nop 0")
    for st in (8, 4, 2, 1):
        for i in range(st): A(f"v_add_f32 v{VA+i}, v{VA+i}, v{VA+i+st}")
    A(f"v_mov_b32 v10, v{VA}")
    wave_allreduce(g, "v_add_f32", 10, 11)
    A(f"v_mov_b32 v9, s{ST}"); A(f"v_mov_b32 v11, s{ST}")
    A("s_mov_b64 exec, 1")
    pub_local(g, "global_store_dwordx4 v18, v[8:11], s[42:43]")
    A("s_mov_b64 exec, -1")
    g.stamp(4)
    poll_tagged(g, ["global_load_dwordx4 v[20:23], v17, s[42:43] sc1"], [21, 23], sleep=opts.get("ssleep", 1))
    A("v_max_f32_dpp v10, v20, v20 quad_perm:[1,0,3,2] row_mask:0xf bank_mask:0xf")
    A("s_nop 1")
    A("v_max_f32_dpp v10, v10, v10 quad_perm:[2,3,0,1] row_mask:0xf bank_mask:0xf")
    A("v_sub_f32 v8, v20, v10")
    A(f"v_mul_f32 v8, 0x{LOG2E:08x}, v8")
    A("v_exp_f32 v8, v8")
    A("s_nop 0")
    A("v_mul_f32 v9, v22, v8")
    A("s_nop 1")
    A("v_add_f32_dpp v9, v9, v9 quad_perm:[1,0,3,2] row_mask:0xf bank_mask:0xf")
    A("s_nop 1")
    A("v_add_f32_dpp v9, v9, v9 quad_perm:[2,3,0,1] row_mask:0xf bank_mask:0xf")
    A("v_rcp_f32 v11, v9")
    A("s_nop 0")
    guard(g, 10); guard(g, 11)
    A(f"ds_write_b64 v38, v[10:11] offset:{L_ML}")
    g.stamp(5)

    g.lab("L_disp3")
    if opts.get("mlate"):
        A("s_cmp_lg_u32 s60, 4"); A("s_cbranch_scc1 L_nomb")
        poll_lds(g, [f"ds_read_b32 v8, v38 offset:{(L_ML, L_SC)[opts['mlate']-1]}"], [8], 9, 16)
        mod_finish(0)
        g.lab("L_nomb")
    DRY = opts.get("dry", 1)
    A("s_mov_b32 s77, 0")
    for i in range(4): A(f"s_bfe_u32 s{62+i}, s{ST}, 0x{(8 << 16) | (8 * i):x}")
    if DRY:
        A("s_cmp_lg_u32 s5, 1"); A("s_cbranch_scc1 L_dry_ret")
        A("s_mov_b32 s77, 1")
        for r in (5, 6, 7, 14, 30): A(f"v_mov_b32 v{r}, {L_RED}")
        A("v_mov_b32 v2, 0")
        A("v_mov_b32 v7, 0")
        A("s_mov_b64 s[50:51], -1")
        A("s_branch L_dry_op")
        g.lab("L_dry_1")
        A("s_cmp_eq_u32 s60, 1"); A("s_cbranch_scc1 L_wo_ok")
        A("s_cmp_eq_u32 s60, 2"); A("s_cbranch_scc1 L_f1_ok")
        A("s_cmp_eq_u32 s60, 3"); A("s_cbranch_scc1 L_f2_ok")
        g.lab("L_dry_end")
        A("s_mov_b64 exec, -1")
        A("s_mov_b32 s77, 0")
        g.lab("L_dry_ret")
    def tbar():
        if DRY:
            l = g.uniq("nb")
            A("s_cmp_eq_u32 s77, 1"); A(f"s_cbranch_scc1 {l}")
            A("s_barrier")
            g.lab(l)
        else: A("s_barrier")
    def dry_out(lbl="L_dry_end"):
        if DRY:
            A("s_cmp_eq_u32 s77, 1"); A(f"s_cbranch_scc1 {lbl}")
    if opts.get("optouch", 1):
        e = g.uniq("opt")
        A("s_cmp_lg_u32 s5, 2"); A(f"s_cbranch_scc1 {e}")
        poll_lds(g, [f"ds_read_b32 v8, v38 offset:{L_ML}"], [8], 9, 32)
        A("s_lshl_b32 s56, s6, 2"); A("s_add_u32 s56, s56, s7")
        A("s_lshl_b32 s57, s56, 9"); A(f"s_add_u32 s57, s57, {WS_OP}")
        A("v_lshl_add_u32 v3, v1, 3, s57")
        A("global_load_dword v167, v3, s[42:43] sc1")
        g.lab(e)
    A("s_cmp_eq_u32 s60, 2"); A("s_cbranch_scc1 L_pre_f1")
    A("s_cmp_eq_u32 s60, 3"); A("s_cbranch_scc1 L_pre_f2")
    A("s_cmp_lg_u32 s60, 1"); A("s_cbranch_scc1 L_join")
    hs_wait(g, 4, 9, 8)
    tr_tile64(g)
    A("s_lshl_b32 s49, s66, 2"); A("s_add_u32 s49, s49, s5"); A("s_lshl_b32 s49, s49, 11")
    A(f"s_add_u32 s49, s49, {WS_OP}")
    A("v_lshrrev_b32 v12, 5, v1")
    A("v_and_b32 v16, 31, v1")
    A("v_lshlrev_b32 v15, 16, v12")
    A("v_lshl_add_u32 v15, v16, 4, v15")
    A("v_add_u32 v15, s49, v15")
    A(f"v_mul_u32_u24 v12, {ACT_BS}, v12")
    A("v_bfe_u32 v16, v1, 3, 2")
    A("v_lshl_add_u32 v12, v16, 6, v12")
    A("v_and_b32 v16, 3, v1")
    A("v_lshl_add_u32 v12, v16, 4, v12")
    A("v_bfe_u32 v16, v1, 2, 1")
    A("v_lshl_add_u32 v12, v16, 3, v12")
    A("s_lshl_b32 s49, s5, 8")
    A("v_add_u32 v12, s49, v12")
    act_addr(g, 14, L_ACT, ACT_BS)
    line_out_addr(13)
    A("v_add_u32 v37, 0x2000, v13")
    A("v_mov_b32 v36, 0xff")
    A("s_branch L_join")

    adr = [15, 35, 32, 36, 33, 37, 34, 39]
    def ap_addrs():
        for i in range(1, 8): A(f"v_add_u32 v{adr[i]}, {(i >> 1) * 16384 + (i & 1) * 4096}, v15")
    def hdr_wave():
        e = g.uniq("hc")
        A("s_cmp_lg_u32 s5, 3"); A(f"s_cbranch_scc1 {e}")
        poll_lds(g, [f"ds_read_b32 v8, v38 offset:{L_QV}"], [8], 9, 32)
        check_all_hdr(g, 10, VA)
        g.lab(e)
    def near_copy():
        poll_lds(g, [f"ds_read_b32 v11, v38 offset:{L_NR}"], [11], 9, 8)

    PG = VA + 32
    def pre_gather(addrs, hdr, dma, nyoung):
        n = len(addrs)
        l = g.uniq("pg"); c = g.uniq("pgc"); e = g.uniq("pge")
        def loads():
            for i, a in enumerate(addrs): A(f"global_load_dwordx4 {vr(PG+4*i,4)}, v{a}, s[42:43] sc1")
            if hdr: A(f"global_load_dwordx4 {vr(PG+12,4)}, v10, s[42:43] offset:{WS_HDR} sc1")
        if hdr: A("v_lshlrev_b32 v10, 4, v1")
        A("global_load_dwordx2 v[8:9], v31, s[16:17]")
        loads()
        dma()
        A("s_mov_b32 s70, 0")
        A(f"s_waitcnt vmcnt({nyoung})")
        A(f"s_branch {c}")
        g.lab(l)
        loads()
        A("s_waitcnt vmcnt(0)")
        g.lab(c)
        if hdr:
            for i in range(4): A(f"v_subrev_u32 v{PG+12+i}, s{ST}, v{PG+12+i}")
            A(f"v_max3_u32 v11, v{PG+12}, v{PG+13}, v{PG+14}")
            A(f"v_max_u32 v11, v11, v{PG+15}")
            A("v_cmp_lt_u32 vcc, 15, v11")
        else: A("s_mov_b64 vcc, 0")
        for i in range(2 * n):
            A(f"v_cmp_ne_u32 s[68:69], s{ST}, v{PG+1+2*i}")
            A("s_or_b64 vcc, vcc, s[68:69]")
        spin_tail(g, l, e, 4)

    g.lab("L_pre_f1")
    hdr_wave()
    A("v_mov_b32 v31, v13")
    A("v_lshlrev_b32 v15, 4, v0")
    A(f"v_add_u32 v24, {WS_MOD+2*4096}, v15")
    A(f"v_add_u32 v25, {WS_MOD+3*4096}, v15")
    A(f"v_add_u32 v26, {WS_MOD+4*4096}, v15")
    near_copy()
    A(f"v_add_u32 v15, {WS_AP}, v15")
    A("v_add_u32 v15, v11, v15")
    ap_addrs()
    ln_addrs()
    A("v_and_b32 v14, 7, v1")
    A(f"v_mul_u32_u24 v14, {ACT_BS}, v14")
    A("v_lshrrev_b32 v3, 4, v1")
    A("v_lshl_add_u32 v14, v3, 4, v14")
    A("v_and_b32 v7, 1, v1")
    A("v_lshlrev_b32 v7, 5, v7")
    A("v_and_b32 v13, 1, v1")
    A("v_lshlrev_b32 v13, 4, v13")
    A("v_bfe_u32 v3, v1, 4, 1")
    A("v_lshl_add_u32 v13, v3, 3, v13")
    A("s_lshl_b32 s49, s5, 7")
    A("s_add_u32 s49, s49, s58")
    A("v_add_u32 v13, s49, v13")
    A("v_lshrrev_b32 v3, 5, v1")
    A("v_lshl_add_u32 v13, v3, 2, v13")
    A("v_add_u32 v4, 0x2000, v13")
    E1 = 8 if PAR else early(C_F1, 0)
    if PAR:
        A("s_andn2_b32 s54, 1, s61")
        f1_lane_par("s54")
        A("v_mov_b32 v29, v2")
        A("v_lshrrev_b32 v6, 3, v1")
        A("v_lshlrev_b32 v6, 6, v6")
        A("v_bfe_u32 v3, v1, 2, 1")
        A("v_lshl_add_u32 v6, v3, 14, v6")
        A("v_and_b32 v8, 2, v1")
        A("v_or_b32 v3, v3, v8")
        A("v_xor_b32 v3, s5, v3")
        A("v_lshl_add_u32 v6, v3, 4, v6")
        A("v_lshl_add_u32 v6, v8, 14, v6")
        A("v_and_b32 v3, 1, v1")
        A("v_lshl_add_u32 v6, v3, 3, v6")
        A(f"v_add_u32 v6, {L_WT}, v6")
        A("s_and_b32 s55, s5, 1")
        A(f"s_mul_i32 s49, s55, {256*2752}")
        A("s_add_u32 s49, s49, s48")
        A("s_mul_i32 s50, s54, 2752"); A("s_add_u32 s49, s49, s50")
        A("s_lshr_b32 s50, s5, 1"); A("s_lshl_b32 s50, s50, 15")
        A("s_lshl_b32 s54, s54, 14"); A("s_add_u32 s50, s50, s54")
        A("s_lshl_b32 s55, s55, 13"); A("s_add_u32 s50, s50, s55")
        A(f"s_add_u32 s50, s50, {L_WT}")
    else:
        f1_lane()
        A("v_mov_b32 v29, v2")
        A("v_lshrrev_b32 v6, 2, v1")
        A("v_lshlrev_b32 v6, 6, v6")
        A("v_bfe_u32 v3, v1, 4, 1")
        A("v_and_b32 v8, 2, v1")
        A("v_or_b32 v3, v3, v8")
        A("v_xor_b32 v3, s5, v3")
        A("v_lshl_add_u32 v6, v3, 4, v6")
        A("v_lshl_add_u32 v6, v8, 14, v6")
        A("v_and_b32 v3, 1, v1")
        A("v_lshl_add_u32 v6, v3, 3, v6")
        A(f"v_add_u32 v6, {L_WT}, v6")
        A("s_and_b32 s49, s5, 1")
        A(f"s_mul_i32 s49, s49, {256*2752}")
        A("s_add_u32 s49, s49, s48")
        A(f"s_add_u32 s49, s49, {E1*16*2752}")
        A("s_lshl_b32 s50, s5, 14")
        A(f"s_add_u32 s50, s50, {L_WT+E1*1024}")
    A("s_branch L_join")

    g.lab("L_pre_f2")
    hdr_wave()
    if opts.get("pf2", 2):
        e = g.uniq("pf2"); l = g.uniq("pf2l")
        NLN = opts.get("pfl", 64)
        A("s_cmp_lg_u32 s5, 3"); A(f"s_cbranch_scc1 {e}")
        poll_lds(g, [f"ds_read_b32 v8, v38 offset:{(L_PG, L_QV, L_ML)[opts.get('pf2', 2)-1]}"], [8], 9, 16)
        A("s_and_b32 s49, s61, 3"); A(f"s_mul_i32 s49, s49, {344*1024}")
        A("s_add_u32 s49, s49, s48")
        A(f"s_add_u32 s50, s49, {opts.get('pfr', 128)*1024}")
        A("v_lshlrev_b32 v8, 10, v1")
        A(f"s_mov_b32 exec_lo, 0x{((1 << min(NLN, 32)) - 1):x}"); A(f"s_mov_b32 exec_hi, 0x{((1 << NLN) - 1) >> 32:x}")
        g.lab(l)
        A(f"buffer_load_dword v167, v8, s[44:47], s49 offen {opts.get('tflags', '')}")
        A(f"s_add_u32 s49, s49, {NLN*1024}")
        A(f"s_waitcnt vmcnt({opts.get('pfd', 1) - 1})")
        A("s_cmp_lt_u32 s49, s50"); A(f"s_cbranch_scc1 {l}")
        A("s_mov_b64 exec, -1")
        g.lab(e)
    A("v_and_b32 v12, 1, v1")
    A("v_lshrrev_b32 v14, 4, v1")
    A("s_lshl_b32 s49, s61, 5")
    A("v_lshl_add_u32 v3, v14, 3, s49")
    A("v_lshl_add_u32 v13, v12, 10, v3")
    A("v_mov_b32 v31, v13")
    A("v_lshlrev_b32 v15, 6, v12")
    A("v_lshl_add_u32 v15, v14, 4, v15")
    A("s_lshl_b32 s49, s61, 7")
    A("v_add_u32 v15, s49, v15")
    A(f"v_add_u32 v24, {WS_MOD+2*4096}, v15")
    A(f"v_add_u32 v25, {WS_MOD+5*4096}, v15")
    near_copy()
    A(f"v_add_u32 v15, {WS_AP}, v15")
    A("v_add_u32 v15, v11, v15")
    ap_addrs()
    A("s_lshl_b32 s49, s5, 14")
    A(f"s_add_u32 s49, s49, {WS_HH+2048}")
    A("v_lshl_add_u32 v28, v14, 7, s49")
    A("v_add_u32 v28, v11, v28")
    A("v_lshl_add_u32 v28, v12, 4, v28")
    A("v_bfe_u32 v3, v1, 2, 2")
    A("v_lshl_add_u32 v28, v3, 9, v28")
    A("v_lshl_add_u32 v12, v14, 1, v12")
    A("v_lshlrev_b32 v12, 4, v12")
    A(f"v_add_u32 v12, {L_RED}, v12")
    A("s_lshl_b32 s49, s5, 7")
    A("v_add_u32 v30, s49, v12")
    f2_lane()
    A("v_mov_b32 v29, v2")
    A("v_lshlrev_b32 v6, 8, v14")
    A("v_bfe_u32 v3, v1, 2, 2")
    A("v_lshl_add_u32 v6, v3, 5, v6")
    A("v_and_b32 v3, 3, v1")
    A("v_lshl_add_u32 v6, v3, 3, v6")
    A("s_mul_i32 s49, s5, 11264")
    A(f"s_add_u32 s49, s49, {L_WT}")
    A("v_add_u32 v6, s49, v6")

    g.lab("L_join")
    if opts.get("nohelp") == 4:
        A("s_endpgm")
    A("v_lshlrev_b32 v2, 3, v1")
    A("s_lshl_b32 s56, s6, 2"); A("s_add_u32 s56, s56, s7")
    A("s_lshl_b32 s57, s56, 9"); A(f"s_add_u32 s57, s57, {WS_OP}")
    A("v_lshl_add_u32 v3, v1, 3, s57")
    A("v_and_b32 v8, 1, v1")
    A("v_lshlrev_b32 v8, 4, v8")
    A(f"v_lshrrev_b32 v8, v8, s{ST}")
    A("v_lshrrev_b32 v9, 8, v8")
    A("s_movk_i32 s56, 0xff")
    A("s_waitcnt vmcnt(0) lgkmcnt(0)")
    g.stamp(9)
    A("s_barrier")
    g.stamp(6)
    A("s_cmp_lg_u32 s5, 0")
    A("s_cbranch_scc1 L_tail")
    g.lab("L_dry_op")
    for i in range(8):
        A(f"ds_read_b64 {vr(VA+2*i,2)}, v2 offset:{L_OP+512*i}")
    for i in range(4):
        A(f"s_waitcnt lgkmcnt({6-2*i})")
        A(f"v_pk_add_f32 {vr(VA+4*i,2)}, {vr(VA+4*i,2)}, {vr(VA+4*i+2,2)}")
    A(f"v_pk_add_f32 {vr(VA,2)}, {vr(VA,2)}, {vr(VA+4,2)}")
    A(f"v_pk_add_f32 {vr(VA+8,2)}, {vr(VA+8,2)}, {vr(VA+12,2)}")
    A(f"v_pk_add_f32 {vr(VA,2)}, {vr(VA,2)}, {vr(VA+8,2)}")
    A(f"v_bfi_b32 v10, s56, v8, v{VA}")
    A(f"v_bfi_b32 v11, s56, v9, v{VA+1}")
    dry_out("L_dry_1")
    pub_local(g, "global_store_dwordx2 v3, v[10:11], s[42:43]")
    g.lab("L_tail")
    g.tail = True
    g.stamp(9, 2)
    A("s_cmp_eq_u32 s60, 1"); A("s_cbranch_scc1 L_t_wo")
    A("s_cmp_eq_u32 s60, 2"); A("s_cbranch_scc1 L_t_f1")
    A("s_cmp_eq_u32 s60, 3"); A("s_cbranch_scc1 L_t_f2")
    A("s_branch L_fin")

    def sumN(n, src, dst):
        st = n // 2
        for i in range(st):
            for h in range(2):
                A(f"v_pk_add_f32 {vr(dst+4*i+2*h,2)}, {vr(src+4*i+2*h,2)}, {vr(src+4*(i+st)+2*h,2)}")
        st //= 2
        while st:
            for i in range(st):
                for h in range(2):
                    A(f"v_pk_add_f32 {vr(dst+4*i+2*h,2)}, {vr(dst+4*i+2*h,2)}, {vr(dst+4*(i+st)+2*h,2)}")
            st //= 2
    def sum8p(src, dst):
        for p in range(4):
            for h in range(2): A(f"v_pk_add_f32 {vr(dst+8*p+2*h,2)}, {vr(src+8*p+2*h,2)}, {vr(src+8*p+4+2*h,2)}")
        sum8q(dst)
    def sum8q(dst):
        for i in range(2):
            for h in range(2): A(f"v_pk_add_f32 {vr(dst+16*i+2*h,2)}, {vr(dst+16*i+2*h,2)}, {vr(dst+16*i+8+2*h,2)}")
        for h in range(2): A(f"v_pk_add_f32 {vr(dst+2*h,2)}, {vr(dst+2*h,2)}, {vr(dst+16+2*h,2)}")
    def nan_branch(r, ok):
        A(f"v_cmp_u_f32 vcc, v{r}, v{r+1}")
        A(f"v_cmp_u_f32 s[68:69], v{r+2}, v{r+3}")
        A("s_or_b64 vcc, vcc, s[68:69]")
        A(f"s_cbranch_scc0 {ok}")
    def rare(loop, mask):
        if not mask: return
        A("s_add_u32 s71, s71, 1")
        A(f"s_and_b32 s68, s71, {mask}")
        A(f"s_cbranch_scc1 {loop}")
    def x1_from(S):
        for i in range(4): rnd(g, S+i)
        for i in range(4): A(f"v_mul_f32 v{S+i}, v{S+i}, v{20+i}")
        for i in range(4): rnd(g, S+i)
        for i in range(4): A(f"v_add_f32 v{16+i}, v{16+i}, v{S+i}")
        for i in range(4): rnd(g, 16+i)

    g.lab("L_t_wo")
    A("s_mov_b32 s70, 0")
    g.lab("L_wo_p")
    if opts.get("tsleep"): A(f"s_sleep {opts['tsleep']}")
    for i in range(4): A(f"global_load_dwordx4 {vr(VA+4*i,4)}, v15, s[42:43] offset:{512*i} sc1")
    for k in range(16):
        if k % 4 == 0: A(f"s_waitcnt vmcnt({3-k//4})")
        A(f"v_xor_b32 v{VA+k}, s{62+k%4}, v{VA+k}")
    for k in range(5): A(f"v_or3_b32 v{28+k}, v{VA+3*k}, v{VA+3*k+1}, v{VA+3*k+2}")
    A("v_or3_b32 v28, v28, v29, v30")
    A(f"v_or3_b32 v31, v31, v32, v{VA+15}")
    A("v_or_b32 v28, v28, v31")
    A("v_lshlrev_b32 v28, 24, v28")
    A("v_cmp_ne_u32 vcc, 0, v28")
    sumN(4, VA, 16)
    spin_tail(g, "L_wo_p", "L_wo_ok", 0)
    g.stamp(7); g.stamp(1, 2)
    A(f"v_cvt_pk_bf16_f32 v8, v16, v17")
    A(f"v_cvt_pk_bf16_f32 v9, v18, v19")
    A(f"ds_write_b64 v12, v[8:9] offset:{L_ACT}")
    A("s_waitcnt lgkmcnt(0)")
    g.stamp(2, 2)
    tbar()
    g.stamp(3, 2)
    if opts.get("clk"): A("s_memtime s[98:99]")
    gemv(g, 16, 14, 8)
    if opts.get("clk"): A("s_memtime s[90:91]")
    g.stamp(4, 2)
    for i in range(4):
        if APT: A(f"v_bfi_b32 v{8+i}, v36, s{62+i}, v{8+i}")
        else: guard(g, 8+i)
    for x in EX8: A(x)
    dry_out()
    A("global_store_dwordx4 v13, v[8:11], s[42:43] sc1")
    A("global_store_dwordx4 v37, v[8:11], s[42:43] sc1")
    if opts.get("wb", 0):
        A("s_or_b32 s49, s61, s5"); A("s_cmp_lg_u32 s49, 0"); A("s_cbranch_scc1 L_fin")
        if opts["wb"] == 2: A("s_waitcnt vmcnt(0)")
        A("buffer_wbl2 sc1")
        A("s_waitcnt vmcnt(0)")
    g.stamp(2); g.stamp(7, 2)
    A("s_branch L_fin")

    g.lab("L_t_f1")
    A("s_barrier")
    def f1_dma():
        A("v_mov_b32 v2, v29")
        if E1 < 16: dma_loop(g, 16 - E1, (32 if PAR else 16)*2752, WFL)
        if LOOK == 1: look()
    LOOK = opts.get("look", 1)
    def look():
        for i in range(8): A(f"global_load_dwordx4 {vr(VA+4*i,4)}, v{adr[i]}, s[42:43] sc1")
    pre_gather([24, 25, 26], False, f1_dma, 16 - E1 + (8 if LOOK == 1 else 0))
    unpack4(g, 16, 8)
    unpack4(g, 20, PG, 2)
    unpack4(g, 28, PG+8, 2)
    for i in range(4): A(f"v_add_f32 v{28+i}, 1.0, v{28+i}")
    A("v_cvt_pk_bf16_f32 v8, v28, v29"); A("v_cvt_pk_bf16_f32 v9, v30, v31")
    A(f"v_mov_b32 v{PG+5}, v{PG+6}")
    A(f"ds_write_b64 v12, v[8:9] offset:{L_ACT+2*ACT_BS}")
    A(f"ds_write_b64 v12, {vr(PG+4,2)} offset:{L_ACT+4*ACT_BS}")
    for i in range(4): rnd(g, 28+i)
    for i in range(4): A(f"v_mul_f32 v{24+i}, v{20+i}, v{28+i}")
    for i in range(4): A(f"v_mul_f32 v{28+i}, v{16+i}, v{28+i}")
    A("v_mov_b32 v2, v6")
    if LOOK == 2:
        A("s_waitcnt vmcnt(2)")
        look()
    A("s_waitcnt vmcnt(8)")
    A("s_barrier")
    if PAR: tr_reads(g, 16, 1024, 512)
    else: tr_reads(g, 16, 2048, 1024)
    g.stamp(1)
    S = VA + 32
    A("s_mov_b32 s70, 0")
    A("s_mov_b32 s71, 15")
    A("s_branch L_f1_c")
    if opts.get("inc", 1):
        def ap_check():
            for k in range(32): A(f"v_xor_b32 v{S+k}, s{62+k%4}, v{VA+k}")
            for p in range(4): A(f"v_or3_b32 v{8+p}, v{S+8*p}, v{S+8*p+1}, v{S+8*p+2}")
            for p in range(4): A(f"v_or3_b32 v{8+p}, v{8+p}, v{S+8*p+3}, v{S+8*p+4}")
            for p in range(4): A(f"v_or3_b32 v{8+p}, v{8+p}, v{S+8*p+5}, v{S+8*p+6}")
            for p in range(4): A(f"v_or_b32 v{8+p}, v{8+p}, v{S+8*p+7}")
            A("v_or3_b32 v3, v8, v9, v10")
            A("v_or_b32 v3, v3, v11")
            A("v_lshlrev_b32 v3, 24, v3")
            A("v_cmp_ne_u32 vcc, 0, v3")
        g.lab("L_f1_p")
        A("s_add_u32 s70, s70, 1")
        A(f"s_cmp_ge_u32 s70, {SPIN_MAX}")
        A("s_cbranch_scc1 L_f1_ok")
        for p in range(4):
            l = g.uniq("fl")
            A(f"s_bitcmp1_b32 s71, {p}"); A(f"s_cbranch_scc0 {l}")
            for i in (2*p, 2*p+1): A(f"global_load_dwordx4 {vr(VA+4*i,4)}, v{adr[i]}, s[42:43] sc1")
            g.lab(l)
        g.lab("L_f1_c")
        A("s_waitcnt vmcnt(0)")
        for p in range(4):
            l = g.uniq("fc")
            A(f"s_bitcmp1_b32 s71, {p}"); A(f"s_cbranch_scc0 {l}")
            B_ = VA + 8 * p
            for k in range(8): A(f"v_xor_b32 v{B_+k}, s{62+k%4}, v{B_+k}")
            A(f"v_or3_b32 v8, v{B_}, v{B_+1}, v{B_+2}")
            A(f"v_or3_b32 v9, v{B_+3}, v{B_+4}, v{B_+5}")
            A(f"v_or3_b32 v8, v8, v{B_+6}, v{B_+7}")
            for h in range(2): A(f"v_pk_add_f32 {vr(S+8*p+2*h,2)}, {vr(B_+2*h,2)}, {vr(B_+4+2*h,2)}")
            A("v_or_b32 v8, v8, v9")
            A("v_lshlrev_b32 v8, 24, v8")
            A("v_cmp_ne_u32 vcc, 0, v8")
            A("s_cmp_lg_u64 vcc, 0"); A(f"s_cbranch_scc1 {l}")
            A(f"s_bitset0_b32 s71, {p}")
            g.lab(l)
        A("s_cmp_lg_u32 s71, 0")
        A("s_cbranch_scc1 L_f1_p")
        g.lab("L_f1_ok")
        sum8q(S)
    else:
        g.lab("L_f1_p")
        if opts.get("tsleep"): A(f"s_sleep {opts['tsleep']}")
        for i in range(8):
            if i % 2 == 0: A(f"s_mov_b64 exec, s[{16+i}:{17+i}]")
            A(f"global_load_dwordx4 {vr(VA+4*i,4)}, v{adr[i]}, s[42:43] sc1")
        A("s_mov_b64 exec, -1")
        g.lab("L_f1_c")
        A("s_waitcnt vmcnt(0)")
        def ap_check():
            for k in range(32): A(f"v_xor_b32 v{S+k}, s{62+k%4}, v{VA+k}")
            for p in range(4): A(f"v_or3_b32 v{8+p}, v{S+8*p}, v{S+8*p+1}, v{S+8*p+2}")
            for p in range(4): A(f"v_or3_b32 v{8+p}, v{8+p}, v{S+8*p+3}, v{S+8*p+4}")
            for p in range(4): A(f"v_or3_b32 v{8+p}, v{8+p}, v{S+8*p+5}, v{S+8*p+6}")
            for p in range(4): A(f"v_or_b32 v{8+p}, v{8+p}, v{S+8*p+7}")
            A("v_or3_b32 v3, v8, v9, v10")
            A("v_or_b32 v3, v3, v11")
            A("v_lshlrev_b32 v3, 24, v3")
            A("v_cmp_ne_u32 vcc, 0, v3")
        if APT:
            ap_check()
            A("s_cmp_eq_u64 vcc, 0")
            A("s_cbranch_scc1 L_f1_ok")
            for p in range(4):
                A(f"v_lshlrev_b32 v{8+p}, 24, v{8+p}")
                A(f"v_cmp_ne_u32 s[{16+2*p}:{17+2*p}], 0, v{8+p}")
            spin_tail(g, "L_f1_p", "L_f1_ok", 0)
            sum8p(S, S)
        else:
            sum8p(VA, S)
            nan_branch(S, "L_f1_ok")
            A("s_mov_b64 vcc, 0")
            for p in range(4):
                A(f"v_max3_u32 v8, v{VA+8*p}, v{VA+8*p+1}, v{VA+8*p+2}")
                A(f"v_max3_u32 v9, v{VA+8*p+3}, v{VA+8*p+4}, v{VA+8*p+5}")
                A(f"v_max3_u32 v8, v8, v{VA+8*p+6}, v{VA+8*p+7}")
                A("v_max_u32 v8, v8, v9")
                A(f"v_cmp_eq_u32 s[{16+2*p}:{17+2*p}], -1, v8")
                A(f"s_or_b64 vcc, vcc, s[{16+2*p}:{17+2*p}]")
            spin_tail(g, "L_f1_p", "L_f1_ok", 0)
    g.stamp(7); g.stamp(1, 2)
    if LIN:
        for h in range(2): A(f"v_pk_fma_f32 {vr(8+2*h,2)}, {vr(S+2*h,2)}, {vr(24+2*h,2)}, {vr(28+2*h,2)}")
        A("v_cvt_pk_bf16_f32 v8, v8, v9")
        A("v_cvt_pk_bf16_f32 v9, v10, v11")
        A(f"ds_write_b64 v12, v[8:9] offset:{L_ACT}")
        for h in range(2): A(f"v_pk_fma_f32 {vr(16+2*h,2)}, {vr(S+2*h,2)}, {vr(20+2*h,2)}, {vr(16+2*h,2)}")
        A("s_waitcnt lgkmcnt(0)")
        g.stamp(2, 2)
        tbar()
        g.stamp(3, 2)
        q = []
        def rd(m): A(f"ds_read_b128 {vr(VA+4*m,4)}, v14 offset:{L_ACT+64*m}"); q.append(("r", m))
        def need(op):
            i = q.index(op); A(f"s_waitcnt lgkmcnt({len(q)-1-i})"); del q[:i+1]
        for m in range(12): rd(m)
        DF = 32; x = 16
        dpp = lambda r, mod: f"v_add_f32_dpp v{r}, v{r}, v{r} {mod} row_mask:0xf bank_mask:0xf"
        for t in (f"v_add_f32 v8, v{x}, v{x+1}", f"v_mul_f32 v9, v{x}, v{x}", f"v_add_f32 v10, v{x+2}, v{x+3}", f"v_mul_f32 v11, v{x+2}, v{x+2}",
                  f"v_fmac_f32 v9, v{x+1}, v{x+1}", f"v_fmac_f32 v11, v{x+3}, v{x+3}", "v_add_f32 v8, v8, v10", "v_add_f32 v9, v9, v11",
                  "s_nop 0", dpp(8, "quad_perm:[1,0,3,2]"), dpp(9, "quad_perm:[1,0,3,2]")): A(t)
        fill = {0: [dpp(8, "quad_perm:[2,3,0,1]"), dpp(9, "quad_perm:[2,3,0,1]")],
                1: [dpp(8, "row_ror:8"), dpp(9, "row_ror:8")],
                2: ["v_mov_b32 v10, v8", "v_mov_b32 v11, v9"],
                3: ["v_permlane16_swap_b32 v10, v8", "v_permlane16_swap_b32 v11, v9"],
                4: ["v_add_f32 v8, v8, v10", "v_add_f32 v9, v9, v11", "v_mov_b32 v10, v8", "v_mov_b32 v11, v9"],
                5: ["v_permlane32_swap_b32 v10, v8", "v_permlane32_swap_b32 v11, v9"],
                6: ["v_add_f32 v8, v8, v10", "v_add_f32 v9, v9, v11", "W"],
                14: ["S", "v_pk_add_f32 v[20:21], v[20:21], v[22:23]", "v_pk_add_f32 v[24:25], v[24:25], v[26:27]"],
                15: ["v_pk_add_f32 v[20:21], v[20:21], v[24:25]",
                     f"v_mul_f32 v20, 0x{f2u(-1/512):08x}, v20", f"v_mul_f32 v21, 0x{f2u(1/512):08x}, v21",
                     "v_fma_f32 v21, -v20, v20, v21", "v_max_f32 v21, 0, v21", f"v_add_f32 v21, 0x{EPS:08x}, v21", "v_rsq_f32 v21, v21",
                     "s_nop 0"]}
        for m in range(16):
            if ("r", m) in q: need(("r", m))
            c = "0" if m == 0 else vr(DF, 4)
            A(f"v_mfma_f32_16x16x32_bf16 {vr(DF,4)}, {vr(VW+4*m,4)}, {vr(VA+4*m,4)}, {c}")
            if m < 4: rd(12 + m)
            for t in fill.get(m, []):
                if t == "W": A("ds_write_b64 v5, v[8:9]"); q.append(("w", 0))
                elif t == "S": need(("s", 1))
                else: A(t)
            if m == 9:
                need(("w", 0))
                tbar()
                A(f"ds_read_b128 v[20:23], v7 offset:{L_RED}"); q.append(("s", 0))
                A(f"ds_read_b128 v[24:27], v7 offset:{L_RED+16}"); q.append(("s", 1))
        g.stamp(5, 2)
        for i in range(4): A(f"v_fmac_f32_dpp v{DF+i}, v{DF+i}, v20 row_shl:2 row_mask:0xf bank_mask:0x1")
        for i in range(4): A(f"v_mul_f32 v{8+i}, v{DF+i}, v21")
        for i in range(4): A(f"v_add_f32_dpp v{8+i}, v{DF+i}, v{8+i} row_shl:4 row_mask:0xf bank_mask:0xf")
        A("s_mov_b32 s50, 0x00030003")
        A("s_mov_b32 s51, 0x00030003")
        A("v_permlane32_swap_b32 v8, v10")
        A("v_permlane32_swap_b32 v9, v11")
        for i in range(2): A(f"v_mul_f32 v{20+i}, 0x{LOG2E ^ 0x80000000:08x}, v{8+i}")
        for i in range(2): A(f"v_exp_f32 v{20+i}, v{20+i}")
        for i in range(2): A(f"v_mul_f32 v{8+i}, v{8+i}, v{10+i}")
        for i in range(2): A(f"v_add_f32 v{20+i}, 1.0, v{20+i}")
        for i in range(2): A(f"v_rcp_f32 v{20+i}, v{20+i}")
        A("s_mov_b64 exec, s[50:51]")
        for i in range(2): A(f"v_mul_f32 v{8+i}, v{8+i}, v{20+i}")
        A("v_cvt_pk_bf16_f32 v8, v8, v9")
        guard(g, 8)
        dry_out()
        A("global_store_dword v13, v8, s[42:43] sc1")
        A("global_store_dword v4, v8, s[42:43] sc1")
        g.stamp(2); g.stamp(7, 2)
        A("s_branch L_fin")

    g.lab("L_t_f2")
    A("s_barrier")
    def f2_dma():
        A("v_mov_b32 v2, v29")
        A("s_and_b32 s59, s61, 3"); A("s_mul_i32 s59, s59, 3072")
        for part in range(2):
            A(f"s_mul_i32 s49, s5, {11*32*1024}")
            A("s_add_u32 s49, s49, s48")
            A("s_mul_i32 s50, s5, 11264")
            A(f"s_add_u32 s50, s50, {L_WT}")
            if part == 0:
                A("s_lshl_b32 s52, s59, 5")
                A("s_add_u32 s49, s49, s52")
                A("s_add_u32 s50, s50, s59")
                A("s_sub_u32 s52, 11264, s59")
                dma_loop(g, "s52", 32*1024, WFL)
            else:
                dma_loop(g, "s59", 32*1024, WFL)
    F2E = opts.get("e2", 0) == 11
    pre_gather([24, 25], False, (lambda: None) if F2E else f2_dma, 0 if F2E else 11)
    unpack4(g, 16, 8)
    unpack4(g, 20, PG, 2)
    unpack4(g, 24, PG+4, 2)
    A("v_mov_b32 v2, v6")
    A("s_mov_b32 s50, 0x00030003"); A("s_mov_b32 s51, 0x00030003")
    A("s_mov_b32 s53, 0x0fff0fff")
    A("s_cmp_eq_u32 s5, 3")
    A("s_cselect_b32 s52, 0x00ff00ff, s53")
    A("s_mov_b32 s53, s52")
    def ap_loads():
        A("s_mov_b64 exec, s[50:51]")
        for i in range(8): A(f"global_load_dwordx4 {vr(VA+4*i,4)}, v{adr[i]}, s[42:43] sc1")
    A("s_cmp_lg_u32 s5, 0")
    A("s_cbranch_scc1 L_f2_w")
    ap_loads()
    A("s_mov_b64 exec, -1")
    A("s_waitcnt vmcnt(8)")
    A("s_branch L_f2_w2")
    g.lab("L_f2_w")
    A("s_waitcnt vmcnt(0)")
    g.lab("L_f2_w2")
    tr_reads(g, 11, 1024, 128)
    g.stamp(1)
    e = g.uniq("f2x")
    A("s_cmp_lg_u32 s5, 0")
    A(f"s_cbranch_scc1 {e}")
    A("s_mov_b32 s70, 0")
    A("s_mov_b64 exec, s[50:51]")
    A("s_branch L_f2_ac")
    g.lab("L_f2_a")
    ap_loads()
    g.lab("L_f2_ac")
    A("s_waitcnt vmcnt(0)")
    if APT: ap_check()
    else: chk_sentinel(g, range(VA, VA+32), 8)
    spin_tail(g, "L_f2_a", "L_f2_ad", 2)
    A("s_mov_b64 exec, -1")
    sum8p(S if APT else VA, S)
    x1_from(S)
    g.lab(e)
    for i in range(4): A(f"v_mov_b32 v{VA+8+i}, 0")
    DD = VA + 16
    A("s_mov_b32 s70, 0")
    g.lab("L_f2_p")
    if opts.get("tsleep"): A(f"s_sleep {opts['tsleep']}")
    A(f"global_load_dwordx4 {vr(VA,4)}, v28, s[42:43] offset:-2048 sc1")
    A(f"global_load_dwordx4 {vr(VA+4,4)}, v28, s[42:43] sc1")
    A("s_mov_b64 exec, s[52:53]")
    A(f"global_load_dwordx4 {vr(VA+8,4)}, v28, s[42:43] offset:2048 sc1")
    A("s_mov_b64 exec, -1")
    def mf(m):
        j, mp = divmod(m, 4)
        c = "0" if j == 0 else vr(DD+4*mp, 4)
        A(f"v_mfma_f32_16x16x32_bf16 {vr(DD+4*mp,4)}, {vr(VW+4*m,4)}, {vr(VA+4*j,4)}, {c}")
    A("s_waitcnt vmcnt(0)")
    mf(0)
    A(f"v_max3_u32 v31, v{VA}, v{VA+1}, v{VA+2}")
    A(f"v_max3_u32 v3, v{VA+3}, v{VA+4}, v{VA+5}")
    mf(1)
    A(f"v_max3_u32 v31, v31, v{VA+6}, v{VA+7}")
    A(f"v_max3_u32 v3, v3, v{VA+8}, v{VA+9}")
    mf(2)
    A(f"v_max3_u32 v31, v31, v{VA+10}, v{VA+11}")
    A("v_max_u32 v31, v31, v3")
    mf(3)
    A("v_cmp_eq_u32 vcc, -1, v31")
    spin_tail(g, "L_f2_p", "L_f2_ok", 0)
    for m in range(4, 11): mf(m)
    A("s_nop 6")
    for i in range(4): A(f"v_add_f32_dpp v{8+i}, v{DD+4+i}, v{DD+i} row_shl:4 row_mask:0xf bank_mask:0xf")
    for i in range(4): A(f"v_add_f32_dpp v{DD+8+i}, v{DD+12+i}, v{DD+8+i} row_shl:4 row_mask:0xf bank_mask:0xf")
    for i in range(4): A(f"v_add_f32_dpp v{8+i}, v{DD+8+i}, v{8+i} row_shl:8 row_mask:0xf bank_mask:0xf")
    A("s_mov_b64 exec, s[50:51]")
    g.stamp(7); g.stamp(1, 2)
    A("ds_write_b128 v30, v[8:11]")
    A("s_waitcnt lgkmcnt(0)")
    g.stamp(2, 2)
    tbar()
    g.stamp(3, 2)
    A("s_cmp_lg_u32 s5, s77")
    A("s_cbranch_scc1 L_fin")
    for i in range(3):
        A(f"ds_read_b128 {vr(VA+4*i,4)}, v12 offset:{128*(i+1)}")
    A("s_waitcnt lgkmcnt(2)")
    for h in range(2): A(f"v_pk_add_f32 {vr(8+2*h,2)}, {vr(8+2*h,2)}, {vr(VA+2*h,2)}")
    A("s_waitcnt lgkmcnt(0)")
    for h in range(2): A(f"v_pk_add_f32 {vr(VA+4+2*h,2)}, {vr(VA+4+2*h,2)}, {vr(VA+8+2*h,2)}")
    for h in range(2): A(f"v_pk_add_f32 {vr(8+2*h,2)}, {vr(8+2*h,2)}, {vr(VA+4+2*h,2)}")
    if LIN:
        for h in range(2): A(f"v_pk_fma_f32 {vr(8+2*h,2)}, {vr(8+2*h,2)}, {vr(24+2*h,2)}, {vr(16+2*h,2)}")
    else:
        for i in range(4): rnd(g, 8+i)
        for i in range(4): A(f"v_mul_f32 v{8+i}, v{8+i}, v{24+i}")
        for i in range(4): rnd(g, 8+i)
        for i in range(4): A(f"v_add_f32 v{8+i}, v{8+i}, v{16+i}")
    A("v_cvt_pk_bf16_f32 v8, v8, v9")
    A("v_cvt_pk_bf16_f32 v9, v10, v11")
    dry_out()
    A("global_store_dwordx2 v13, v[8:9], s[38:39] " + opts.get("of", "").replace("_", " "))
    A("s_mov_b64 exec, 1")
    A("s_cmp_lg_u32 s61, 0")
    A("s_cbranch_scc1 L_noep")
    A(f"v_mov_b32 v10, s{ST}")
    A(f"global_store_dword v38, v10, s[42:43] offset:{WS_E}" + (" sc1" if opts.get("aq") == 99 else " " + opts.get("of", "").replace("_", " ")))
    if opts.get("amp"):
        A("s_waitcnt vmcnt(0)")
        A("s_memrealtime s[66:67]"); A("s_waitcnt lgkmcnt(0)")
        A("s_sub_u32 s66, s66, s78"); A(f"s_mul_i32 s66, s66, {opts['amp']}")
        g.lab("L_xa")
        A("s_sleep 1")
        A("s_memrealtime s[64:65]"); A("s_waitcnt lgkmcnt(0)")
        A("s_sub_u32 s64, s64, s78"); A("s_cmp_lt_u32 s64, s66"); A("s_cbranch_scc1 L_xa")
    if opts.get("xwait"):
        g.lab("L_xw")
        A("s_sleep 1")
        A("s_memrealtime s[64:65]"); A("s_waitcnt lgkmcnt(0)")
        A("s_sub_u32 s64, s64, s78"); A(f"s_cmp_lt_u32 s64, {opts['xwait']*100}"); A("s_cbranch_scc1 L_xw")
    g.lab("L_noep")
    g.stamp(2); g.stamp(7, 2)

    g.lab("L_fin")
    if "aw" in opts:
        A(f"s_cmp_lg_u32 s2, {opts['aw']}"); A("s_cbranch_scc1 L_end")
        A("s_cmp_lg_u32 s5, 0"); A("s_cbranch_scc1 L_end")
        if opts.get("aq") == 99:
            A("s_mov_b64 exec, -1")
            poll_tagged(g, [f"global_load_dword v8, v38, s[42:43] offset:{WS_E} sc1"], [8], sleep=2)
            A("s_memrealtime s[80:81]")
        A("s_waitcnt lgkmcnt(0)")
        A("s_sub_u32 s80, s80, s78"); A(f"s_mul_i32 s80, s80, {opts.get('ak', 5)}")
        g.lab("L_xb")
        A("s_sleep 1")
        A("s_memrealtime s[64:65]"); A("s_waitcnt lgkmcnt(0)")
        A("s_sub_u32 s64, s64, s78"); A("s_cmp_lt_u32 s64, s80"); A("s_cbranch_scc1 L_xb")
    if opts.get("stamps"):
        A("s_mov_b64 exec, -1")
        A("s_waitcnt vmcnt(0)")
        g.stamp(8)
        A(f"s_cmp_lg_u32 s5, {opts.get('swave', 0)}")
        A("s_cbranch_scc1 L_end")
        A("s_lshl_b32 s3, s2, 7")
        A(f"s_add_u32 s3, s3, {WS_STAMP}")
        A("v_mov_b32 v2, s3")
        A("s_waitcnt lgkmcnt(0)")
        for i in (range(10) if opts["stamps"] != 3 else (0, 6, 8)):
            A(f"v_mov_b32 v3, s{80+2*i}")
            A(f"global_store_dword v2, v3, s[42:43] offset:{4*i}")
        A(f"v_mov_b32 v3, s{SLOC}")
        A(f"global_store_dword v2, v3, s[42:43] offset:40")
        if opts.get("dbgt"):
            for k, (w, idxs) in enumerate(((0, (0, 7, 2, 3, 6)), (219, (0, 3, 5, 6, 1, 7, 8)), (128, (0, 1, 2)))):
                e = g.uniq("dbg")
                A(f"s_cmp_lg_u32 s2, {w}"); A(f"s_cbranch_scc1 {e}")
                for i, ix in enumerate(idxs):
                    A(f"v_mov_b32 v3, s{80+2*ix}")
                    A(f"global_store_dword v38, v3, s[40:41] offset:{4*((0, 5, 12)[k]+i)}")
                g.lab(e)
    g.lab("L_end")
    A("s_endpgm")
    g.L.append(".p2align 7")
    g.lab("L_table")
    for w in range(0, 256, 8):
        A(".long " + ", ".join(f"0x{r | (m3(w+i) << 3) | (t << 8) | (JT[w+i] << 16) | (early(r, t) << 24):08x}" for i, (r, t) in enumerate(RM[w:w+8])))
    g.L.append(f'''.section .rodata,"a"
.p2align 6
.amdhsa_kernel {KNAME}
  .amdhsa_next_free_vgpr 168
  .amdhsa_next_free_sgpr 102
  .amdhsa_accum_offset 168
  .amdhsa_group_segment_fixed_size 0
  .amdhsa_kernarg_size 112
  .amdhsa_user_sgpr_count 2
  .amdhsa_user_sgpr_kernarg_segment_ptr 1
  .amdhsa_system_sgpr_workgroup_id_x 1
.end_amdhsa_kernel''')
    return "\n".join(g.L) + "\n"

if __name__ == "__main__":
    import json, os
    here = os.path.dirname(os.path.abspath(__file__))
    opts = {"ref": os.path.join(here, "..", KNAME[:-7] + ".s.ref")}
    out = sys.argv[1]
    for kv in sys.argv[2:]:
        k, v = kv.split("=")
        try: v = int(v)
        except ValueError: pass
        opts[k] = v
    open(out, "w").write(gen(opts))
```

```python
import sys, struct

KNAME = "adaLN_cond__sliding_block_cached__glu_gated_swiglu__decode_kernel"

def f2u(x): return struct.unpack("<I", struct.pack("<f", x))[0]
LOG2E = f2u(1.4426950408889634)
SCALE = f2u(128 ** -0.5)
EPS = f2u(1e-5)
ZERO_GAP = 93.0

WS_E   = 0x00000
WS_HDR = 0x00400
WS_DN  = 0x07000
WS_MOD = 0x01000
WS_Q   = 0x08000
WS_S1  = 0x10000
WS_S2  = 0x18000
WS_OP  = 0x20000
WS_AP  = 0x40000
WS_FP  = 0x48000
WS_OQ  = 0x80000
WS_OR  = 0xa0000
WS_MA  = 0xe0000
R2     = WS_OQ - WS_OP
WS_STAMP = 0x100000
ACT_BS = 1056
L_ACT = 0
L_QV  = L_ACT + 6400
L_ML  = L_QV + 256
L_GO  = L_ML + 4
L_PG  = L_ML + 8
L_SCN = L_ML + 16
L_MX  = L_ML + 20
L_ECN = L_ML + 24
L_E0  = L_ML + 28
L_E1  = L_ML + 72
L_RM  = L_ML + 32
L_SN  = L_ML + 48
L_TK  = L_ML + 52
L_LOC = L_ML + 56
L_CNT = L_ML + 64
L_S8  = L_ML + 96
L_ST  = L_CNT + 64
L_OP  = L_ST + 512
L_RED = L_OP + 4096
L_HH  = L_RED + 128
L_OP1 = L_RED + 512
L_WT  = 16384
L_VX  = L_WT + 65536
L_W2  = L_VX + 8 * 2048
W2S   = 1024 + 32
LDS_BYTES = L_W2 + 32 * W2S
assert L_OP1 + 4096 <= L_WT and L_S8 % 16 == 0 and L_ST % 16 == 0 and L_OP % 16 == 0

C_NONE, C_WO, C_F1, C_F2, C_MODB, C_MODA, C_Q = 0, 1, 2, 3, 4, 5, 6
X3 = [0, 2, 6, 4, 1, 7]
def role_map():
    R = []
    for w in range(256):
        x, idx = w % 8, w // 8
        if idx < 8: R.append((C_Q, 8 * x + idx))
        elif idx < 16: R.append((C_WO, idx - 8))
        elif w < 176:
            row = idx - 16
            R.append((C_MODA if row < 2 else C_MODB, 8 * row + ((x + 3 - X3[row]) & 7)))
        elif w < 219: t = w - 176; R.append((C_F1, (t % 8) * 5 + min(t % 8, 3) + t // 8))
        elif w < 251: t = w - 219; R.append((C_F2, (t % 8) * 4 + t // 8))
        else: R.append((C_NONE, 0))
    for c, n in ((C_MODA, range(16)), (C_MODB, range(16, 48)), (C_F1, range(43)), (C_F2, range(32)), (C_Q, range(64))):
        assert sorted(t for r, t in R if r == c) == list(n), c
    return R
SPIN_MAX = 1 << 18
ST, SLOC, SXCC = 74, 75, 76

NOTES = {
    "L_nb1": "streaming waves: K (1 KB per load, bounded number in flight), then the V rows of the keys on the row list",
    "L_work": "background work of a streaming wave between two K loads: fetch q, first half of the scores, first row list",
    "L_ks": "one K step: background work, then wait until few enough loads are in flight",
    "L_vs": "one V step",
    "L_x1": "second half of the scores, max / sum of this wave, more rows for the list",
    "L_hand": "list used up: with the true row max, add every remaining key whose weight is not exactly zero",
    "L_epi": "all rows consumed: reduce over the lanes, rescale to the row max, leave the partial output in LDS",
    "L_helper": "helper waves: LDS sentinels, launch tag, role dispatch",
    "L_r_moda": "role MODA: shift/scale columns of silu(c) @ w_mod",
    "L_r_q": "role Q: LayerNorm + modulation + 64 columns of h @ wq",
    "L_r_modb": "role MODB: the other modulation columns (weights fetched in the background)",
    "L_r_wo": "role WO: 512 x 64 tile of wo",
    "L_r_f1": "role F1: 32 columns of w1 and w3",
    "L_r_f2": "role F2: 16 columns of w2 (also pulls this group's slow-loading tiles into L2)",
    "L_svc": "wave 0 publishes this split's statistics, wave 3 collects those of the other three splits",
    "L_disp3": "idle-time preparation; wave 1 walks the tail code once (no barrier, no global access) to warm the instruction cache",
    "L_join": "the barrier opens when the streaming waves have ended; wave 0 publishes the partial attention output",
    "L_t_wo": "tail WO: gather the group's partial outputs, project, publish",
    "L_t_f1": "tail F1: residual, LayerNorm (applied after the product), gate/up, SwiGLU, publish",
    "L_t_f2": "tail F2: down projection, gated residual, output; advances the epoch word",
    "L_table": "per workgroup: role | slow tile row << 3 | tile << 8 ; switch step | depth before << 8 | depth after << 20 (1/256)",
}
class G:
    def __init__(s, opts):
        s.L = []; s.o = opts; s.n = 0
    def A(s, t): s.L.append("  " + t)
    def lab(s, t):
        if t in NOTES: s.L.append("; ---- " + NOTES[t])
        s.L.append(t + ":")
    def C(s, t): s.L.append("; ---- " + t)
    def uniq(s, p): s.n += 1; return f"L_{p}_{s.n}"
    def stamp(s, idx, lvl=1):
        m = s.o.get("stamps", 0)
        if m == 3 and lvl != 3 and idx not in (6,): return
        if m and (m == lvl or (idx in (0, 6, 8) and lvl == 1)):
            s.A(f"s_memrealtime s[{80+2*idx}:{81+2*idx}]")

def vr(a, n): return f"v[{a}:{a+n-1}]"
def rnd(g, d, s=None): g.A(f"v_cvt_pk_bf16_f32 v{d}, 0, v{s if s is not None else d}")

def spin_tail(g, l, e, sleep, mult=1):
    A = g.A
    A("s_cmp_eq_u64 vcc, 0")
    A(f"s_cbranch_scc1 {e}")
    if sleep: A(f"s_sleep {sleep}")
    A("s_add_u32 s70, s70, 1")
    A(f"s_cmp_lt_u32 s70, {SPIN_MAX*mult}")
    A(f"s_cbranch_scc1 {l}")
    g.lab(e)

def chk_sentinel(g, regs, tmp):
    A = g.A
    rs = list(regs)
    if len(rs) == 1:
        A(f"v_cmp_eq_u32 vcc, -1, v{rs[0]}")
        return
    if len(rs) == 2:
        A(f"v_max_u32 v{tmp}, v{rs[0]}, v{rs[1]}"); rs = []
    else:
        A(f"v_max3_u32 v{tmp}, v{rs[0]}, v{rs[1]}, v{rs[2]}"); rs = rs[3:]
    while len(rs) >= 2:
        A(f"v_max3_u32 v{tmp}, v{tmp}, v{rs[0]}, v{rs[1]}"); rs = rs[2:]
    if rs: A(f"v_max_u32 v{tmp}, v{tmp}, v{rs[0]}")
    A(f"v_cmp_eq_u32 vcc, -1, v{tmp}")

def poll_lds(g, loads, regs, tmp, sleep):
    A = g.A
    l = g.uniq("pl"); e = g.uniq("pld")
    A("s_mov_b32 s70, 0")
    g.lab(l)
    for x in loads: A(x)
    A("s_waitcnt lgkmcnt(0)")
    chk_sentinel(g, regs, tmp)
    spin_tail(g, l, e, sleep, 4)

def wait_cnt(g, load, reg, target, sleep, mask=None):
    A = g.A
    l = g.uniq("sn"); e = g.uniq("snd")
    A("s_mov_b32 s70, 0")
    g.lab(l)
    A(load)
    A("s_waitcnt lgkmcnt(0)")
    if mask: A(f"v_and_b32 v{reg}, 0x{mask:x}, v{reg}")
    A(f"v_cmp_gt_u32 vcc, 0x{target:x}, v{reg}")
    spin_tail(g, l, e, sleep, 8)

def pub_local(g, ins):
    A = g.A
    l = g.uniq("pf"); e = g.uniq("pe")
    A(f"s_cmp_eq_u32 s{SLOC}, 2")
    A(f"s_cbranch_scc0 {l}")
    A(ins)
    A(f"s_branch {e}")
    g.lab(l)
    A(ins + " sc1")
    g.lab(e)

def hs_signal(g, vt2):
    A = g.A
    A(f"v_mov_b32 v{vt2}, 1")
    A("s_mov_b64 exec, 1")
    A(f"ds_add_u32 v38, v{vt2} offset:{L_CNT}")
    A("s_mov_b64 exec, -1")
def hs_wait(g, target, vt2, sleep=1):
    wait_cnt(g, f"ds_read_b32 v{vt2}, v38 offset:{L_CNT}", vt2, target, sleep)

STG = 77
def hsync(g, vt):
    A = g.A
    A(f"s_add_u32 s{STG}, s{STG}, 4")
    hs_signal(g, vt)
    l = g.uniq("hy"); e = g.uniq("hyd")
    A("s_mov_b32 s70, 0")
    g.lab(l)
    A(f"ds_read_b32 v{vt}, v38 offset:{L_CNT}")
    A("s_waitcnt lgkmcnt(0)")
    A(f"v_cmp_gt_u32 vcc, s{STG}, v{vt}")
    spin_tail(g, l, e, 0, 8)

def op_publish(g, lds, R, zero, off):
    A = g.A
    A(f"v_lshlrev_b32 v{R+24}, 3, v1")
    for i in range(2): A(f"ds_read_b128 {vr(R+16+4*i,4)}, v{zero} offset:{L_S8+16*i}")
    for i in range(8): A(f"ds_read_b64 {vr(R+2*i,2)}, v{R+24} offset:{lds+512*i}")
    A(f"ds_read_b32 v{R+28}, v{zero} offset:{L_LOC}")
    A("s_lshl_b32 s68, s6, 2"); A("s_add_u32 s68, s68, s7")
    A("s_lshl_b32 s68, s68, 9"); A(f"s_add_u32 s68, s68, {WS_OP+off}")
    A(f"v_add_u32 v{R+24}, s68, v{R+24}")
    A(f"v_and_b32 v{R+25}, 1, v1")
    A(f"v_lshlrev_b32 v{R+25}, 4, v{R+25}")
    A(f"v_lshrrev_b32 v{R+25}, v{R+25}, s{ST}")
    A(f"v_lshrrev_b32 v{R+26}, 8, v{R+25}")
    A("s_movk_i32 s69, 0xff")
    def sel(i): return f"op_sel:[0,{i&1},0] op_sel_hi:[1,{i&1},1]"
    for i in range(8):
        A(f"s_waitcnt lgkmcnt({8-i})")
        sp = vr(R + 16 + (i & ~1), 2); acc = vr(R + 2*(i & 1), 2)
        if i < 2: A(f"v_pk_mul_f32 {acc}, {vr(R+2*i,2)}, {sp} op_sel:[0,{i&1}] op_sel_hi:[1,{i&1}]")
        else: A(f"v_pk_fma_f32 {acc}, {vr(R+2*i,2)}, {sp}, {acc} {sel(i)}")
    A("s_waitcnt lgkmcnt(0)")
    A(f"v_readfirstlane_b32 s{SLOC}, v{R+28}")
    A(f"v_pk_add_f32 {vr(R,2)}, {vr(R,2)}, {vr(R+2,2)}")
    A(f"v_bfi_b32 v{R}, s69, v{R+25}, v{R}")
    A(f"v_bfi_b32 v{R+1}, s69, v{R+26}, v{R+1}")
    pub_local(g, f"global_store_dwordx2 v{R+24}, {vr(R,2)}, s[42:43]")
    if off and not g.o.get("noor"):
        A(f"v_add_u32 v{R+24}, {WS_OR-WS_OQ}, v{R+24}")
        A(f"global_store_dwordx2 v{R+24}, {vr(R,2)}, s[42:43] sc1")

def dma_loop(g, n, step, flags, pace=0, lstep=1024):
    A = g.A
    l = g.uniq("dma"); e = g.uniq("dmae")
    if isinstance(n, int):
        A(f"s_add_u32 s51, s50, {n*lstep}")
    else:
        A(f"s_add_u32 s51, s50, {n}")
        A("s_cmp_lt_u32 s50, s51")
        A(f"s_cbranch_scc0 {e}")
    g.lab(l)
    A("s_mov_b32 m0, s50")
    A(f"s_add_u32 s50, s50, {lstep}")
    if not (g.o.get("nodma") and pace): A(f"buffer_load_dwordx4 v2, s[44:47], s49 offen {flags} lds")
    A(f"s_add_u32 s49, s49, {step}")
    if pace: A(f"s_waitcnt vmcnt({pace-1})")
    A("s_cmp_lt_u32 s50, s51")
    A(f"s_cbranch_scc1 {l}")
    g.lab(e)

VW, VA = 40, 104

def srd(g, d, base, nbytes):
    A = g.A
    A(f"s_mov_b32 s{d}, s{base}")
    A(f"s_mov_b32 s{d+1}, s{base+1}")
    A(f"s_mov_b32 s{d+2}, {nbytes}")
    A(f"s_mov_b32 s{d+3}, 0x20000")

def dma_tile64(g, stride, flags, pace=0):
    A = g.A
    A("v_lshrrev_b32 v2, 3, v1")
    A("v_and_b32 v3, 6, v2")
    A("v_xor_b32 v3, v3, v1")
    A(f"v_mul_u32_u24 v2, {stride}, v2")
    A("v_and_b32 v3, 7, v3")
    A("v_lshl_add_u32 v2, v3, 4, v2")
    if pace:
        A(f"s_mul_i32 s49, s53, {256*stride}")
        A("s_lshl_b32 s50, s53, 15")
    else:
        A(f"s_mul_i32 s49, s5, {128*stride}")
        A("s_lshl_b32 s50, s5, 14")
    A("s_add_u32 s49, s49, s48")
    A(f"s_add_u32 s50, s50, {L_WT}")
    dma_loop(g, 32 if pace else 16, 8*stride, flags, pace)

def tr64_addr(g):
    A = g.A
    A("v_lshrrev_b32 v2, 2, v1")
    A("v_bfe_u32 v3, v1, 1, 1")
    A("s_lshl_b32 s49, s5, 1")
    A("v_or_b32 v3, s49, v3")
    A("v_and_b32 v10, 6, v2")
    A("v_xor_b32 v3, v3, v10")
    A("v_lshlrev_b32 v2, 7, v2")
    A("v_lshl_add_u32 v2, v3, 4, v2")
    A("v_and_b32 v3, 1, v1")
    A("v_lshl_add_u32 v2, v3, 3, v2")
    A(f"v_add_u32 v2, {L_WT}, v2")
def tr_reads(g, nk, mstep, hstep):
    A = g.A
    for m in range(nk):
        for h in range(2):
            A(f"ds_read_b64_tr_b16 {vr(VW+4*m+2*h,2)}, v2 offset:{m*mstep+h*hstep}")
        if m >= 5: A("s_waitcnt lgkmcnt(10)")
    A("s_waitcnt lgkmcnt(0)")
def tr_tile64(g):
    tr64_addr(g)
    tr_reads(g, 16, 4096, 2048)
def gemv_fused(g, vaddr, D):
    A = g.A
    def rd(m):
        for h in range(2):
            A(f"ds_read_b64_tr_b16 {vr(VW+4*m+2*h,2)}, v2 offset:{m*4096+h*2048}")
        A(f"ds_read_b128 {vr(VA+4*m,4)}, v{vaddr} offset:{64*m}")
    for m in range(5): rd(m)
    for m in range(16):
        A(f"s_waitcnt lgkmcnt({3*(min(m+5,16)-m-1)})")
        c = "0" if m == 0 else vr(D, 4)
        A(f"v_mfma_f32_16x16x32_bf16 {vr(D,4)}, {vr(VW+4*m,4)}, {vr(VA+4*m,4)}, {c}")
        if m + 5 < 16: rd(m + 5)
    A("s_nop 7")

def batch_reduce2(g, va, vb, ta, tb):
    A = g.A
    A("s_nop 0")
    for m in ("quad_perm:[1,0,3,2]", "quad_perm:[2,3,0,1]", "row_ror:8"):
        A(f"v_add_f32_dpp v{va}, v{va}, v{va} {m} row_mask:0xf bank_mask:0xf")
        A(f"v_add_f32_dpp v{vb}, v{vb}, v{vb} {m} row_mask:0xf bank_mask:0xf")
        A("s_nop 0")
    for sw in ("v_permlane16_swap_b32", "v_permlane32_swap_b32"):
        A(f"v_mov_b32 v{ta}, v{va}")
        A(f"v_mov_b32 v{tb}, v{vb}")
        A("s_nop 0")
        A(f"{sw} v{ta}, v{va}")
        A(f"{sw} v{tb}, v{vb}")
        A(f"v_add_f32 v{va}, v{va}, v{ta}")
        A(f"v_add_f32 v{vb}, v{vb}, v{tb}")

def ln_partial(g, x):
    A = g.A
    A(f"v_add_f32 v8, v{x}, v{x+1}"); A(f"v_mul_f32 v9, v{x}, v{x}")
    A(f"v_add_f32 v10, v{x+2}, v{x+3}"); A(f"v_mul_f32 v11, v{x+2}, v{x+2}")
    A(f"v_fmac_f32 v9, v{x+1}, v{x+1}"); A(f"v_fmac_f32 v11, v{x+3}, v{x+3}")
    A("v_add_f32 v8, v8, v10"); A("v_add_f32 v9, v9, v11")
    batch_reduce2(g, 8, 9, 10, 11)
    A("ds_write_b64 v5, v[8:9]")
def ln_apply(g, x, t):
    A = g.A
    A(f"ds_read_b128 {vr(t,4)}, v6")
    A(f"ds_read_b128 {vr(t+4,4)}, v6 offset:16")
    A("s_waitcnt lgkmcnt(0)")
    A(f"v_pk_add_f32 {vr(t,2)}, {vr(t,2)}, {vr(t+2,2)}")
    A(f"v_pk_add_f32 {vr(t+4,2)}, {vr(t+4,2)}, {vr(t+6,2)}")
    A(f"v_pk_add_f32 {vr(t,2)}, {vr(t,2)}, {vr(t+4,2)}")
    A(f"v_mul_f32 v8, 0x{f2u(1/512):08x}, v{t}")
    A(f"v_mul_f32 v9, 0x{f2u(1/512):08x}, v{t+1}")
    A("v_fma_f32 v9, -v8, v8, v9")
    rnd(g, 8)
    A("v_max_f32 v9, 0, v9")
    rnd(g, 9)
    for i in range(2): A(f"v_sub_f32 v{x+i}, v{x+i}, v8")
    A(f"v_add_f32 v9, 0x{EPS:08x}, v9")
    for i in range(2, 4): A(f"v_sub_f32 v{x+i}, v{x+i}, v8")
    rnd(g, 9)
    rnd(g, x)
    A("v_sqrt_f32 v9, v9")
    rnd(g, x+1)
    rnd(g, 9)
    rnd(g, x+2)
    A("v_rcp_f32 v9, v9")
    rnd(g, x+3)
    for i in range(4): A(f"v_mul_f32 v{x+i}, v{x+i}, v9")
    for i in range(4): rnd(g, x+i)

def act_addr(g, v, base, bstride):
    A = g.A
    A(f"v_and_b32 v{v}, 1, v1")
    A(f"v_mul_u32_u24 v{v}, {bstride}, v{v}")
    A(f"v_lshrrev_b32 v3, 4, v1")
    A(f"v_lshl_add_u32 v{v}, v3, 4, v{v}")
    if base: A(f"v_add_u32 v{v}, {base}, v{v}")

def gemv(g, nk, vaddr, D):
    A = g.A
    first = min(nk, 12)
    for m in range(first):
        A(f"ds_read_b128 {vr(VA+4*m,4)}, v{vaddr} offset:{64*m}")
    issued = first
    for m in range(nk):
        A(f"s_waitcnt lgkmcnt({issued-m-1})")
        c = "0" if m == 0 else vr(D, 4)
        A(f"v_mfma_f32_16x16x32_bf16 {vr(D,4)}, {vr(VW+4*m,4)}, {vr(VA+4*m,4)}, {c}")
        if issued < nk:
            A(f"ds_read_b128 {vr(VA+4*issued,4)}, v{vaddr} offset:{64*issued}")
            issued += 1
    A("s_nop 7")

def guard(g, r): g.A(f"v_min_u32 v{r}, s72, v{r}")
def unpack2(g, d, s):
    g.A(f"v_lshlrev_b32 v{d}, 16, v{s}")
    g.A(f"v_and_b32 v{d+1}, s73, v{s}")
def unpack4(g, d, s, step=1):
    unpack2(g, d, s); unpack2(g, d+2, s+step)

def silu4(g, x, t):
    A = g.A
    for i in range(4): A(f"v_mul_f32 v{t+i}, 0x{LOG2E ^ 0x80000000:08x}, v{x+i}")
    for i in range(4): A(f"v_exp_f32 v{t+i}, v{t+i}")
    A("s_nop 0")
    for i in range(4): A(f"v_add_f32 v{t+i}, 1.0, v{t+i}")
    for i in range(4): A(f"v_rcp_f32 v{t+i}, v{t+i}")
    A("s_nop 0")
    for i in range(4): A(f"v_mul_f32 v{x+i}, v{x+i}, v{t+i}")

def make_tag(g):
    g.A(f"s_mul_i32 s{ST}, s{ST}, 0x9e3779b1")
    g.A(f"s_add_u32 s{ST}, s{ST}, 0x7f4a7c15")

EX8 = ["s_mov_b32 exec_lo, 0x00030003", "s_mov_b32 exec_hi, 0x00030003"]

def dump_all(g, extra):
    A = g.A
    A("s_mov_b64 exec, -1")
    A("s_mul_i32 s3, s2, 12"); A("s_add_u32 s3, s3, s5"); A("s_lshl_b32 s3, s3, 6")
    A(f"s_add_u32 s3, s3, {WS_STAMP}")
    A("v_lshl_add_u32 v2, v1, 2, s3")
    A("v_mov_b32 v3, 0")
    A("s_waitcnt lgkmcnt(0)")
    for i, x in enumerate([80+2*i for i in range(10)] + list(extra)): A(f"v_writelane_b32 v3, s{x}, {i}")
    A("s_mov_b64 exec, 0xffff")
    A("global_store_dword v2, v3, s[42:43]")

def late_steps(opts):
    return dict(w=opts.get("wdw", 0), b=opts.get("wdb", 0), f=opts.get("wd1", 0))

def fallback(g, head_sum, wave_red, TGB):
    A = g.A
    W, AC, AV = 40, 72, 88
    X1, GS = 104, 120
    g.lab("L_slow")
    A("s_load_dwordx16 s[16:31], s[0:1], 0")
    A("s_load_dwordx8 s[32:39], s[0:1], 64")
    A("v_and_b32 v2, 31, v1")
    A("v_lshlrev_b32 v2, 7, v2")
    A(f"v_add_u32 v2, {WS_DN}, v2")
    A("s_mov_b32 s70, 0")
    g.lab("L_sl_d")
    A("global_load_dword v3, v2, s[42:43] sc1")
    A("s_waitcnt vmcnt(0) lgkmcnt(0)")
    A(f"v_cmp_ne_u32 vcc, s{ST}, v3")
    spin_tail(g, "L_sl_d", "L_sl_dd", 8)
    A("v_lshlrev_b32 v2, 3, v1")
    A(f"v_add_u32 v2, {WS_OR}, v2")
    A("v_lshlrev_b32 v0, 2, v1")
    A(f"v_add_u32 v0, {L_VX}, v0")
    A("s_mov_b32 s10, 0")
    g.lab("L_sl_h")
    A("s_mov_b32 s70, 0")
    g.lab("L_sl_hp")
    for i in range(4): A(f"global_load_dwordx2 {vr(W+2*i,2)}, v2, s[42:43] offset:{512*i} sc1")
    A("s_waitcnt vmcnt(0)")
    head_sum(W, W+8)
    spin_tail(g, "L_sl_hp", "L_sl_hd", 8)
    A(f"ds_write_b32 v0, v{W}")
    A("v_add_u32 v2, 2048, v2"); A("v_add_u32 v0, 256, v0")
    A("s_add_u32 s10, s10, 1"); A("s_cmp_lt_u32 s10, 64"); A("s_cbranch_scc1 L_sl_h")
    def call(base, nbytes, stride, nrows, act, bstride, col):
        A(f"s_mov_b32 s44, s{base}"); A(f"s_mov_b32 s45, s{base+1}"); A(f"s_mov_b32 s46, {nbytes}")
        A(f"s_mov_b32 s11, {stride}"); A(f"s_mov_b32 s12, {nrows*stride}")
        A(f"v_mov_b32 v4, {act}"); A(f"v_mov_b32 v5, {act+bstride}")
        A(f"v_lshlrev_b32 v2, 4, v1")
        if col: A(f"v_add_u32 v2, {col}, v2")
        A("s_call_b64 s[62:63], L_gv")
    def modrow(row, d):
        A("v_lshrrev_b32 v2, 1, v1"); A("v_lshlrev_b32 v2, 7, v2")
        A("v_and_b32 v3, 1, v1"); A("v_lshl_add_u32 v2, v3, 5, v2")
        A(f"v_add_u32 v2, {WS_MOD+4096*row}, v2")
        for b in range(2):
            for h in range(2): A(f"global_load_dwordx4 {vr(W+8*b+4*h,4)}, v2, s[42:43] offset:{64*b+16*h} sc1")
        A("s_waitcnt vmcnt(0)")
        for k in range(8): unpack2(g, d+2*k, W+2*k)
    def gated_add(row):
        modrow(row, AV)
        for i in range(16): rnd(g, AC+i)
        for i in range(16): A(f"v_mul_f32 v{AC+i}, v{AC+i}, v{AV+i}")
        for i in range(16): rnd(g, AC+i)
        for i in range(16): A(f"v_add_f32 v{X1+i}, v{X1+i}, v{AC+i}")
        for i in range(16): rnd(g, X1+i)
    def pack(d, s_):
        for k in range(8): A(f"v_cvt_pk_bf16_f32 v{d+k}, v{s_+2*k}, v{s_+2*k+1}")
    call(24, 4096*1024, 1024, 4096, L_VX, 8192, 0)
    A("v_lshlrev_b32 v0, 4, v1")
    for b in range(2): A(f"global_load_dwordx4 {vr(W+4*b,4)}, v0, s[16:17] offset:{1024*b}")
    A("s_waitcnt vmcnt(0)")
    for k in range(8): unpack2(g, X1+2*k, W+k)
    gated_add(2)
    for b in range(2):
        x = X1 + 8*b; y = AC + 8*b
        A(f"v_add_f32 v8, v{x}, v{x+1}")
        for i in range(2, 8): A(f"v_add_f32 v8, v8, v{x+i}")
        wave_red("v_add_f32", 8, 9)
        A(f"v_mul_f32 v8, 0x{f2u(1/512):08x}, v8")
        for i in range(8): A(f"v_sub_f32 v{y+i}, v{x+i}, v8")
        A(f"v_mul_f32 v10, v{y}, v{y}")
        for i in range(1, 8): A(f"v_fmac_f32 v10, v{y+i}, v{y+i}")
        wave_red("v_add_f32", 10, 9)
        A(f"v_mul_f32 v10, 0x{f2u(1/512):08x}, v10")
        rnd(g, 8); rnd(g, 10)
        A(f"v_add_f32 v10, 0x{EPS:08x}, v10")
        rnd(g, 10)
        A("v_sqrt_f32 v10, v10")
        for i in range(8): A(f"v_sub_f32 v{y+i}, v{x+i}, v8")
        rnd(g, 10)
        for i in range(8): rnd(g, y+i)
        A("v_rcp_f32 v10, v10")
        A("s_nop 0")
        for i in range(8): A(f"v_mul_f32 v{y+i}, v{y+i}, v10")
        for i in range(8): rnd(g, y+i)
    modrow(4, AV)
    for i in range(16): A(f"v_add_f32 v{AV+i}, 1.0, v{AV+i}")
    for i in range(16): rnd(g, AV+i)
    for i in range(16): A(f"v_mul_f32 v{AC+i}, v{AC+i}, v{AV+i}")
    for i in range(16): rnd(g, AC+i)
    modrow(3, AV)
    for i in range(16): A(f"v_add_f32 v{AC+i}, v{AC+i}, v{AV+i}")
    pack(W, AC)
    A(f"v_add_u32 v3, {L_VX}, v0")
    for b in range(2): A(f"ds_write_b128 v3, {vr(W+4*b,4)} offset:{1024*b}")
    HB = L_VX + 2048
    for p in range(3):
        call(28, 512*2752, 2752, 512, L_VX, 1024, 1024*p)
        for i in range(16): rnd(g, GS+i, AC+i)
        call(30, 512*2752, 2752, 512, L_VX, 1024, 1024*p)
        for q in range(4): silu4(g, GS+4*q, AV)
        for i in range(16): rnd(g, GS+i)
        for i in range(16): rnd(g, AC+i)
        for i in range(16): A(f"v_mul_f32 v{AC+i}, v{AC+i}, v{GS+i}")
        pack(W, AC)
        A(f"v_add_u32 v3, {HB+1024*p}, v0")
        for b in range(2): A(f"ds_write_b128 v3, {vr(W+4*b,4)} offset:{3072*b}")
    call(32, 1376*1024, 1024, 1376, HB, 3072, 0)
    gated_add(5)
    pack(W, X1)
    for b in range(2): A(f"global_store_dwordx4 v0, {vr(W+4*b,4)}, s[38:39] offset:{1024*b} sc1")
    A("s_endpgm")
    g.lab("L_gv")
    for i in range(16): A(f"v_mov_b32 v{AC+i}, 0")
    A("s_mov_b32 s10, 0")
    g.lab("L_gvl")
    for r in range(8):
        A(f"buffer_load_dwordx4 {vr(W+4*r,4)}, v2, s[44:47], s10 offen")
        A("s_add_u32 s10, s10, s11")
    for b in range(2): A(f"ds_read_b128 {vr(AV+4*b,4)}, v{4+b}")
    A("v_add_u32 v4, 16, v4"); A("v_add_u32 v5, 16, v5")
    A("s_waitcnt lgkmcnt(0)")
    for r in range(8):
        for b in range(2):
            a = AV + 4*b + r//2
            if r % 2 == 0: A(f"v_and_b32 v{8+2*b}, 0xffff, v{a}"); A(f"v_lshlrev_b32 v{9+2*b}, 16, v{a}")
            else: A(f"v_lshrrev_b32 v{8+2*b}, 16, v{a}"); A(f"v_and_b32 v{9+2*b}, s73, v{a}")
        A(f"s_waitcnt vmcnt({7-r})")
        for b in range(2):
            for k in range(8): A(f"v_dot2c_f32_bf16 v{AC+8*b+k}, v{8+2*b+(k&1)}, v{W+4*r+k//2}")
    A("s_cmp_lt_u32 s10, s12"); A("s_cbranch_scc1 L_gvl")
    A("s_nop 1")
    A("s_setpc_b64 s[62:63]")

def stream(g, opts):
    A = g.A
    D0 = opts.get("D0", 4)
    LAG = opts.get("LAG", 5)
    DEL = opts.get("delta", 7)
    THETA = opts.get("theta", 28)
    HCAP, HPOS = 32, 160
    TH, HST, NH, NSP, HTH = 18, 19, 20, 21, 22
    PA = 23
    PGS = set(late_steps(opts).values())
    KF, VF = opts.get("kf", "nt"), opts.get("vf", "nt")
    J0 = opts.get("J0", 16)
    T_, ACC, DB, RW, LIM, BUR, CNT, STA, QA, LVL = 32, 33, 34, 35, 36, 37, 38, 39, 40, 41
    SR, SBI, VE = 78, 79, 59
    VG = opts.get('vg', 20); LG = opts.get('lg', 14)
    LB, JS, DN, FIN, X1D, RET, TK, RET2 = 56, 57, 58, 75, 61, 62, (64, 66), 100
    T, X = 8, 16
    OFF = (24, 26); SET = (28, 30, 32); PH = (34, 35, 36); MW, L16, LRD, EPA, EV = 37, 38, 39, 22, 2
    RA = 20
    ROFF = 1024
    RB = 40
    def slot(j): return RB + 4 * (j % 32)
    if opts.get("clk"): A("s_memrealtime s[98:99]")
    A("s_sub_u32 s9, s5, 4")
    A("s_lshl_b32 s10, s6, 22")
    A("s_lshl_b32 s11, s7, 18")
    A("s_add_u32 s10, s10, s11")
    A("s_add_u32 s10, s10, 0x300000")
    A("s_lshl_b32 s11, s9, 10")
    A("v_lshl_add_u32 v0, v1, 4, s11")
    A("s_lshr_b32 s12, s2, 3")
    A("s_mul_i32 s12, s12, 5")
    A("s_mul_i32 s15, s8, 3")
    A("s_add_u32 s12, s12, s15")
    A("s_lshl_b32 s12, s12, 13")
    A("s_and_b32 s12, s12, 0x3ffff")
    g.stamp(1, 3)
    A("s_waitcnt lgkmcnt(0)")
    g.stamp(2, 3)
    A("s_add_u32 s44, s18, s10"); A("s_addc_u32 s45, s19, 0")
    A("s_mov_b32 s46, 0x40000"); A("s_mov_b32 s47, 0x20000")
    def issue(j):
        A(f"buffer_load_dwordx4 {vr(slot(j),4)}, v0, s[44:47], s12 offen {KF}")
        A("s_add_u32 s12, s12, 0x2000")
        A("s_and_b32 s12, s12, 0x3ffff")
    A("s_cmp_eq_u32 s13, 0")
    A("s_cbranch_scc1 L_nb1")
    A("s_barrier")
    g.lab("L_nb1")
    g.stamp(3, 3)
    for j in range(D0): issue(j)
    g.stamp(4, 3)
    A("s_load_dwordx2 s[14:15], s[56:57], s3")
    A(f"s_load_dword s{ST}, s[42:43], {WS_E}")
    A("s_add_u32 s48, s20, s10"); A("s_addc_u32 s49, s21, 0")
    A("s_mov_b32 s50, 0x40000"); A("s_mov_b32 s51, 0x20000")
    A("s_mov_b32 s52, 0xcccccccc"); A("s_mov_b32 s53, 0xcccccccc")
    A("s_mov_b32 s54, 0xaaaaaaaa"); A("s_mov_b32 s55, 0xaaaaaaaa")
    A(f"v_and_b32 v{L16}, 15, v1")
    A(f"v_lshlrev_b32 v{L16}, 4, v{L16}")
    A("s_lshl_b32 s10, s9, 11")
    A(f"s_add_u32 s10, s10, {L_VX}")
    A("v_lshl_add_u32 v3, v1, 3, s10")
    A("v_mov_b32 v4, 0x7fff0000"); A("v_mov_b32 v5, 0xff800000")
    for n in range(3): A(f"ds_write_b64 v3, v[4:5] offset:{512*n}")
    A("v_lshrrev_b32 v3, 4, v1")
    A(f"v_lshl_add_u32 v{LRD}, v{L16}, 1, s10")
    A(f"v_lshl_add_u32 v{LRD}, v3, 3, v{LRD}")
    A(f"s_sub_u32 s68, s12, {D0*0x2000}")
    A(f"v_bfrev_b32 v{OFF[0]}, v1")
    A(f"v_lshrrev_b32 v{OFF[0]}, 15, v{OFF[0]}")
    A(f"v_and_b32 v{OFF[0]}, 0x1e000, v{OFF[0]}")
    A(f"v_add_u32 v{OFF[0]}, s68, v{OFF[0]}")
    A(f"v_and_b32 v{OFF[0]}, 0x3e000, v{OFF[0]}")
    A(f"v_lshl_add_u32 v{OFF[0]}, v3, 8, v{OFF[0]}")
    A(f"v_add_u32 v{OFF[0]}, s11, v{OFF[0]}")
    A(f"v_xor_b32 v{OFF[1]}, 0x20000, v{OFF[0]}")
    A("s_lshl_b32 s11, s9, 9")
    A(f"v_lshl_add_u32 v{EPA}, v{L16}, 1, s11")
    A(f"v_lshl_add_u32 v{EPA}, v3, 3, v{EPA}")
    A(f"s_mov_b32 s{T_}, {D0}"); A(f"s_mul_i32 s{ACC}, s9, 0x5e000000")
    A(f"s_mov_b64 s[{TK[0]}:{TK[0]+1}], 0"); A(f"s_mov_b64 s[{TK[1]}:{TK[1]+1}], 0")
    A(f"s_mov_b32 s{CNT}, 0"); A(f"s_mov_b32 s{STA}, 0"); A(f"s_mov_b32 s{FIN}, 0"); A(f"s_mov_b32 s{X1D}, 0")
    A(f"s_lshl_b32 s{QA}, s6, 9"); A("s_lshl_b32 s68, s9, 6")
    A(f"s_add_u32 s{QA}, s{QA}, s68"); A(f"s_add_u32 s{QA}, s{QA}, {WS_Q}")
    A("s_cmp_eq_u32 s13, 0")
    A("s_cbranch_scc0 L_nb2")
    A("s_barrier")
    g.lab("L_nb2")
    A("s_waitcnt lgkmcnt(0)")
    A(f"s_mov_b32 s{LB}, s10")
    make_tag(g)
    if opts.get("clk"):
        A(f"s_add_u32 s76, s98, {int(opts.get('tk', 11.2)*100)}"); A(f"s_mov_b32 s77, {int(round(opts.get('tauk', 0.335)*1600))}")
    A(f"s_and_b32 s{JS}, s15, 0xff")
    A(f"s_bfe_u32 s{DB}, s15, 0xc0008")
    A(f"s_lshr_b32 s{DN}, s15, 20")
    A(f"s_mov_b32 s{RW}, {32-D0}"); A(f"s_mov_b32 s{VE}, 0")
    A(f"v_mov_b32 v{RA}, {ROFF+8*(32-D0)}"); A(f"v_mov_b32 v{RA+1}, {LAG*256}"); A(f"v_mov_b32 v{PA}, 0")
    for j in range(D0, 32):
        if j == opts.get("JH", 99):
            l = g.uniq("jh")
            A("s_sub_u32 s68, s13, 1")
            A(f"s_cmp_gt_u32 s68, 1"); A(f"s_cbranch_scc1 {l}")
            A("v_mov_b32 v4, 0")
            poll_lds(g, [f"ds_read_b32 v5, v4 offset:{L_GO}"], [5], 8, 4)
            g.lab(l)
        if j == D0:
            g.stamp(5, 3)
            if opts.get("stamps") == 3: A(f"s_waitcnt vmcnt({D0-1})")
            g.stamp(7, 3)
        if j == opts.get("jk", 99): A(f"s_max_u32 s{DB}, s{DB}, {int(opts.get('dk', 4.5)*256)}")
        A(f"s_call_b64 s[{RET}:{RET+1}], L_ks")
        if j == 8: g.stamp(8, 3)
        if j == 12: g.stamp(9, 3)
        issue(j)
        if j in PGS:
            A(f"v_mov_b32 v3, {j}")
            A("s_mov_b64 exec, 1")
            A(f"ds_max_i32 v1, v3 offset:{L_PG}")
            A("s_mov_b64 exec, -1")
    g.stamp(1)
    A("s_mov_b32 s10, 0")
    g.lab("L_kw")
    A(f"s_cmp_ge_u32 s{STA}, 4"); A("s_cbranch_scc1 L_v0")
    A(f"s_call_b64 s[{RET2}:{RET2+1}], L_work")
    A("s_sleep 1")
    A("s_add_u32 s10, s10, 1")
    A(f"s_cmp_lt_u32 s10, {SPIN_MAX}"); A("s_cbranch_scc1 L_kw")
    g.lab("L_v0")
    g.stamp(2)
    A(f"s_mov_b32 s{T_}, 0"); A(f"s_mov_b32 s{BUR}, 255")
    A(f"v_mov_b32 v{PA}, 8")
    A(f"s_mov_b32 s{RW}, s{VE}")
    A(f"ds_read_b64 {vr(RA,2)}, v{PA} offset:{L_RM}")
    A("s_ashr_i32 s14, s14, 16")
    A("s_waitcnt lgkmcnt(0)")
    A(f"v_readfirstlane_b32 s{DB}, v{RA}")
    A(f"s_mul_i32 s{DB}, s{DB}, {int(round(opts.get('ka2', 6)*16))}")
    A(f"s_ashr_i32 s{DB}, s{DB}, 4")
    A(f"s_add_i32 s{DB}, s{DB}, {int(round(opts.get('kb2', 0.2)*256 - int(round(opts.get('ka2', 6)*16))*ROFF/16))}")
    A(f"s_add_i32 s{DB}, s{DB}, s14")
    if opts.get("clk"):
        A(f"s_add_u32 s76, s76, {int(opts.get('tv', 6.2)*100)}"); A(f"s_mov_b32 s77, {int(round(opts.get('tauv', 0.295)*1600))}")
        A(f"s_mov_b32 s{DB}, {int(opts.get('dv', 3.5)*256)}")

    def dots(G_):
        for tt in range(4):
            for e in range(8):
                c = "0" if tt == 0 else f"v{T+e}"
                A(f"v_dot2_f32_bf16 v{T+e}, v{slot(8*G_+e)+tt}, v{4+tt}, {c}")
        for e in range(0, 8, 2):
            A(f"v_add_f32_dpp v{T+e}, v{T+e}, v{T+e} row_ror:8 row_mask:0xf bank_mask:0x3")
            A(f"v_add_f32_dpp v{T+e}, v{T+e+1}, v{T+e+1} row_ror:8 row_mask:0xf bank_mask:0xc")
        x = X + 2 * (G_ & 1)
        for h in range(2):
            A(f"v_add_f32_dpp v{x+h}, v{T+4*h}, v{T+4*h} row_shl:4 row_mask:0xf bank_mask:0x5")
            A(f"v_add_f32_dpp v{x+h}, v{T+4*h+2}, v{T+4*h+2} row_shr:4 row_mask:0xf bank_mask:0xa")
    def wave_red(op, v, t):
        for r in (8, 4, 2, 1):
            A("s_nop 1")
            A(f"{op}_dpp v{v}, v{v}, v{v} row_ror:{r} row_mask:0xf bank_mask:0xf")
        for sw in ("v_permlane16_swap_b32", "v_permlane32_swap_b32"):
            A(f"v_mov_b32 v{t}, v{v}")
            A("s_nop 1")
            A(f"{sw} v{t}, v{v}")
            A(f"{op} v{v}, v{v}, v{t}")
    def finish(n):
        sc = OFF[n] + 1
        A("v_mov_b32 v3, 0")
        A("v_mov_b32 v20, 64")
        for i in range(4): A(f"v_add_f32_dpp v{X+i}, v{X+i}, v{X+i} quad_perm:[2,3,0,1] row_mask:0xf bank_mask:0xf")
        for i in range(2): A(f"v_cndmask_b32 v{T+i}, v{X+2*i}, v{X+2*i+1}, s[52:53]")
        A("s_nop 0")
        A("v_lshlrev_b32 v21, 3, s9")
        for i in range(2): A(f"v_add_f32_dpp v{T+i}, v{T+i}, v{T+i} quad_perm:[1,0,3,2] row_mask:0xf bank_mask:0xf")
        A(f"v_cndmask_b32 v{sc}, v{T}, v{T+1}, s[54:55]")
        rnd(g, sc)
        A(f"v_mul_f32 v{sc}, 0x{SCALE:08x}, v{sc}")
        rnd(g, sc)
        if n == 0: A(f"v_mov_b32 v{MW}, v{sc}")
        else: A(f"v_max_f32 v{MW}, v{MW}, v{sc}")
        wave_red("v_max_f32", MW, T)
        if n == 0:
            A("s_mov_b64 exec, 1")
            A(f"ds_max_f32 v3, v{MW} offset:{L_E0}")
            A(f"ds_add_u32 v3, v20 offset:{L_ECN}")
            A("s_mov_b64 exec, -1")
        else:
            for i in range(2): A(f"v_sub_f32 v{X+1+i}, v{OFF[i]+1}, v{MW}")
            for i in range(2): A(f"v_mul_f32 v{X+1+i}, 0x{LOG2E:08x}, v{X+1+i}")
            for i in range(2): A(f"v_exp_f32 v{X+1+i}, v{X+1+i}")
            A(f"v_mov_b32 v{X}, v{MW}")
            A(f"v_add_f32 v{X+1}, v{X+1}, v{X+2}")
            wave_red("v_add_f32", X+1, T)
            A("s_mov_b64 exec, 1")
            A(f"ds_max_f32 v3, v{MW} offset:{L_MX}")
            A(f"ds_write_b64 v21, {vr(X,2)} offset:{L_ST}")
            A(f"ds_add_u32 v3, v20 offset:{L_SCN}")
            A("s_mov_b64 exec, -1")
    def build(n, thr):
        tk = f"s[{TK[n]}:{TK[n]+1}]"
        A(f"v_cmp_nlt_f32 vcc, v{OFF[n]+1}, v{thr}")
        A(f"s_lshl_b32 s68, s{CNT}, 3")
        A(f"s_add_u32 s68, s68, s{LB}")
        A(f"s_andn2_b64 s[70:71], vcc, {tk}")
        A("v_mbcnt_lo_u32_b32 v3, s70, 0")
        A("v_mbcnt_hi_u32_b32 v3, s71, v3")
        A("s_bcnt1_i32_b64 s69, s[70:71]")
        A("v_lshl_add_u32 v3, v3, 3, s68")
        A("s_mov_b64 exec, s[70:71]")
        A(f"ds_write_b64 v3, {vr(OFF[n],2)}")
        A("s_mov_b64 exec, -1")
        A(f"s_or_b64 {tk}, {tk}, s[70:71]")
        A(f"s_add_u32 s{CNT}, s{CNT}, s69")
    def reread(weights=True):
        ns = 3 if weights else 1
        for n in range(ns): A(f"ds_read_b64 {vr(SET[n],2)}, v{LRD} offset:{512*n}")
        A("s_waitcnt lgkmcnt(0)")
        if not weights: return
        for n in range(3): A(f"v_sub_f32 v{SET[n]+1}, v{SET[n]+1}, v{MW}")
        for n in range(3): A(f"v_mul_f32 v{SET[n]+1}, 0x{LOG2E:08x}, v{SET[n]+1}")
        for n in range(3): A(f"v_exp_f32 v{SET[n]+1}, v{SET[n]+1}")
        A("s_nop 0")
        for n in range(3): A(f"v_cvt_pk_bf16_f32 v{PH[n]}, 0, v{SET[n]+1}")
        for n in range(3): A(f"v_cvt_pk_bf16_f32 v{SET[n]+1}, v{SET[n]+1}, 0")
    def pv(t, data=None, acc=None):
        data = slot(t) if data is None else data
        acc = list(range(T, T + 8)) if acc is None else acc
        for tt in range(4):
            for hf in range(2):
                p = (SET[t//16] + 1, PH[t//16])[hf]
                A(f"v_dot2c_f32_bf16_dpp v{acc[2*tt+hf]}, v{p}, v{data+tt} row_newbcast:{t%16} row_mask:0xf bank_mask:0xf")
    def estimate(sh, add, src, vphase=True):
        A(f"s_add_u32 s68, s{src}, {add}")
        A(f"s_lshr_b32 s68, s68, {sh}")
        A(f"s_sub_u32 s69, s68, s{VE}")
        A(f"s_mov_b32 s{VE}, s68")
        if vphase:
            A(f"s_add_u32 s{RW}, s{RW}, s69")
            A(f"s_add_u32 s{SR}, s{SR}, s69")
        A("v_mov_b32 v3, s69")
        A("s_mov_b64 exec, 1")
        A(f"ds_add_u32 v1, v3 offset:{L_RM+8}")
        A("s_mov_b64 exec, -1")
    def fetch():
        A("s_waitcnt lgkmcnt(0)")
        A(f"v_readfirstlane_b32 s{SR}, v{RA}")
        A(f"v_readfirstlane_b32 s{SBI}, v{RA+1}")
    NST = LAG + 33 + LAG
    assert 4 * (NST - LAG) <= HPOS
    for t in range(NST):
        if t > LAG: A(f"s_cmp_eq_u32 s{FIN}, {t}"); A("s_cbranch_scc1 L_epi")
        A(f"s_call_b64 s[{RET}:{RET+1}], L_vs")
        if t < NST - LAG:
            A(f"s_cbranch_scc1 L_nl{t}")
            A(f"v_add_u32_dpp v3, v{SET[t//16]}, v{L16} row_newbcast:{t%16} row_mask:0xf bank_mask:0xf")
            A(f"buffer_load_dwordx4 {vr(slot(t),4)}, v3, s[48:51], 0 offen {VF}")
            g.lab(f"L_nl{t}")
        if t == 0: dots(2)
        if t >= LAG: pv(t - LAG)
    A("s_nop 1")
    def lane_reduce(a, b):
        A("s_nop 0")
        for j in range(4): A(f"v_permlane32_swap_b32 v{a+j}, v{b+j}")
        for j in range(4): A(f"v_add_f32 v{a+j}, v{a+j}, v{b+j}")
        A("v_mov_b32 v3, 1")
        for j in range(2): A(f"v_permlane16_swap_b32 v{a+j}, v{a+j+2}")
        for j in range(2): A(f"v_add_f32 v{a+j}, v{a+j}, v{a+j+2}")
    def prelim(r):
        A(f"ds_write_b64 v{EPA}, {vr(r,2)} offset:{L_OP1}")
        A("s_mov_b64 exec, 1")
        A(f"ds_add_u32 v1, v3 offset:{L_SN}")
        A("s_mov_b64 exec, -1")
    g.lab("L_epi")
    g.stamp(5)
    A("s_nop 0")
    lane_reduce(T, T+4)
    A(f"v_pk_add_f32 {vr(T,2)}, {vr(T,2)}, v[4:5]")
    A(f"ds_write_b64 v{EPA}, {vr(T,2)} offset:{L_OP}")
    A(f"s_cmp_eq_u32 s{NSP}, 0"); A("s_cbranch_scc1 L_ep2")
    prelim(T)
    g.lab("L_ep2")
    A("s_mov_b64 exec, 1")
    A(f"ds_add_rtn_u32 v3, v1, v3 offset:{L_TK}")
    A("s_mov_b64 exec, -1")
    A("v_mov_b32 v4, 0")
    A("s_lshl_b32 s10, s6, 11"); A(f"s_add_u32 s10, s10, {WS_OP}")
    A("v_lshl_add_u32 v2, v1, 3, s10")
    A(f"v_add_u32 v0, {R2}, v2")
    A("s_waitcnt lgkmcnt(0)")
    A("v_readfirstlane_b32 s68, v3")
    A("s_cmp_lg_u32 s68, 7"); A("s_cbranch_scc1 L_send")
    if opts.get("nofin"): A("s_branch L_send")
    g.C("the last wave publishes the final partial output; that of split 0 compares the head's final output with the preliminary one")
    def looks(n0):
        for i in range(1, 4): A(f"global_load_dwordx2 {vr(RB+2*i,2)}, v0, s[42:43] offset:{512*i} sc1")
        if n0:
            for i in range(4): A(f"global_load_dwordx2 {vr(RB+8+2*i,2)}, v2, s[42:43] offset:{512*i} sc1")
    A("s_cmp_lg_u32 s7, 0"); A("s_cbranch_scc1 L_nolook")
    looks(1)
    g.lab("L_nolook")
    poll_lds(g, [f"ds_read_b32 v5, v4 offset:{L_ML}"], [5], 8, 1)
    R = 6
    op_publish(g, L_OP, R, 4, R2)
    A("s_cmp_lg_u32 s7, 0"); A("s_cbranch_scc1 L_send")
    A(f"v_and_b32 v{R+25}, 0xff, v{R+25}"); A(f"v_and_b32 v{R+26}, 0xff, v{R+26}")
    def head_sum(b_, t):
        for i in range(8): A(f"v_xor_b32 v{b_+i}, v{b_+i}, v{R+25+(i&1)}")
        A(f"v_or3_b32 v{t}, v{b_}, v{b_+1}, v{b_+2}")
        A(f"v_or3_b32 v{t+1}, v{b_+3}, v{b_+4}, v{b_+5}")
        A(f"v_or3_b32 v{t}, v{t}, v{b_+6}, v{b_+7}")
        for i in range(8): A(f"v_or_b32 v{b_+i}, 0x80, v{b_+i}")
        A(f"v_or_b32 v{t}, v{t}, v{t+1}")
        A(f"v_pk_add_f32 {vr(b_,2)}, {vr(b_,2)}, {vr(b_+4,2)}")
        A(f"v_pk_add_f32 {vr(b_+2,2)}, {vr(b_+2,2)}, {vr(b_+6,2)}")
        A(f"v_lshlrev_b32 v{t}, 24, v{t}")
        A(f"v_pk_add_f32 {vr(b_,2)}, {vr(b_,2)}, {vr(b_+2,2)}")
        A(f"v_cmp_ne_u32 vcc, 0, v{t}")
        A(f"v_cvt_pk_bf16_f32 v{b_}, v{b_}, v{b_+1}")
    A("s_mov_b32 s70, 0")
    A("s_waitcnt vmcnt(2)")
    A("s_branch L_cp1")
    g.lab("L_cp0")
    looks(1)
    A("s_waitcnt vmcnt(0)")
    g.lab("L_cp1")
    head_sum(RB+8, RB+16)
    spin_tail(g, "L_cp0", "L_cp2", 4)
    A("s_mov_b32 s70, 0")
    A("s_branch L_cp4")
    g.lab("L_cp3")
    looks(0)
    A("s_waitcnt vmcnt(0)")
    g.lab("L_cp4")
    for k in range(2): A(f"v_mov_b32 v{RB+k}, v{R+k}")
    head_sum(RB, RB+16)
    spin_tail(g, "L_cp3", "L_cp5", opts.get("csl", 0))
    A(f"v_cmp_ne_u32 vcc, v{RB}, v{RB+8}")
    A("s_cmp_lg_u64 vcc, 0"); A("s_cbranch_scc1 L_slow")
    g.lab("L_send")
    if opts.get("stamps"):
        g.stamp(6)
        dump_all(g, [CNT, DB, SBI])
    A("s_endpgm")
    fallback(g, head_sum, wave_red, R + 25)

    g.lab("L_ks")
    fetch()
    A(f"s_cmp_eq_u32 s{T_}, s{JS}")
    A(f"s_cselect_b32 s{DB}, s{DN}, s{DB}")
    A(f"s_cmp_ge_u32 s{STA}, 4"); A("s_cbranch_scc1 L_ks2")
    A(f"s_call_b64 s[{RET2}:{RET2+1}], L_work")
    g.lab("L_ks2")
    A(f"s_add_u32 s{T_}, s{T_}, 1")
    if opts.get("clk"):
        A(f"s_mul_i32 s68, s{RW}, s77")
        A("s_sub_u32 s69, s76, s98")
        A("s_lshl_b32 s69, s69, 4")
        A("s_sub_i32 s68, s68, s69")
        A(f"s_sub_u32 s{RW}, s{RW}, 1")
        A(f"s_mul_i32 s68, s68, {int(round(opts.get('cg', 2.0)*256*256/1600))}")
        A("s_ashr_i32 s68, s68, 8")
        A(f"s_add_i32 s68, s68, s{DB}")
    else:
        A(f"s_lshl3_add_u32 s68, s{RW}, {ROFF}")
        A(f"s_sub_i32 s68, s68, s{SR}")
        A(f"s_sub_u32 s{RW}, s{RW}, 1")
        A(f"s_mul_i32 s68, s68, {LG}")
        A(f"s_add_i32 s68, s68, s{DB}")
    A(f"s_max_i32 s68, s68, {int(opts.get('lo', 1.5)*256)}")
    A(f"s_min_i32 s68, s68, s{SBI}")
    A("s_lshl_b32 s69, s68, 24")
    A("s_lshr_b32 s68, s68, 8")
    A(f"s_add_u32 s{ACC}, s{ACC}, s69")
    A(f"s_addc_u32 s{LVL}, s68, 0")
    g.lab("L_wait")
    for d in range(LAG, 0, -1):
        A(f"s_waitcnt vmcnt({d-1})")
        if d > 1:
            A(f"s_cmp_ge_u32 s{LVL}, {d}"); A("s_cbranch_scc1 L_ret")
    g.lab("L_ret")
    A("s_mov_b64 exec, 1")
    A(f"ds_dec_u32 v{PA}, v{LRD} offset:{L_RM}")
    A(f"ds_read_b64 {vr(RA,2)}, v{PA} offset:{L_RM}")
    A("s_mov_b64 exec, -1")
    if opts.get("clk"): A("s_memrealtime s[98:99]")
    A(f"s_cmp_lg_u32 s{T_}, s{T_}")
    A(f"s_setpc_b64 s[{RET}:{RET+1}]")

    g.lab("L_vs")
    fetch()
    A(f"s_cmp_lg_u32 s{X1D}, 0"); A("s_cbranch_scc1 L_vs1")
    A(f"s_cmp_gt_u32 s{LVL}, s{T_}"); A("s_cbranch_scc1 L_ks2")
    g.lab("L_x1")
    dots(3)
    finish(1)
    g.stamp(3)
    A(f"v_max_f32 v20, v{EV}, v{MW}")
    A(f"v_mov_b32 v21, s{HTH}")
    A(f"s_add_u32 s{CNT}, s{CNT}, 3"); A(f"s_lshr_b32 s{CNT}, s{CNT}, 2")
    A(f"s_max_u32 s{CNT}, s{CNT}, s{T_}"); A(f"s_lshl_b32 s{CNT}, s{CNT}, 2")
    A(f"v_cmp_nlt_f32 vcc, v{OFF[0]+1}, v21")
    A(f"v_cmp_nlt_f32 s[70:71], v{OFF[1]+1}, v21")
    A("s_bcnt1_i32_b64 s68, vcc"); A("s_bcnt1_i32_b64 s69, s[70:71]")
    A(f"s_add_u32 s{NH}, s68, s69")
    A(f"s_cmp_gt_u32 s{NH}, {HCAP}")
    A(f"s_cselect_b32 s{NSP}, 1, s{NSP}")
    A("v_mov_b32 v4, 0"); A("v_mov_b32 v5, 0")
    A(f"s_cmp_lg_u32 s{NSP}, 0"); A("s_cbranch_scc1 L_x2")
    A(f"s_mov_b32 s{TH}, s{CNT}"); A(f"s_mov_b32 s{CNT}, {HPOS}")
    build(0, 21); build(1, 21)
    A(f"ds_read_b32 v{SET[2]}, v{LRD} offset:1024")
    A(f"s_mov_b32 s{CNT}, s{TH}"); A(f"s_mov_b32 s{TH}, s{T_}"); A(f"s_mov_b32 s{HST}, 1")
    A("s_waitcnt lgkmcnt(0)")
    for i in range(8):
        A(f"s_cmp_le_u32 s{NH}, {4*i}"); A("s_cbranch_scc1 L_x2")
        A(f"v_add_u32_dpp v3, v{SET[2]}, v{L16} row_newbcast:{8+i} row_mask:0xf bank_mask:0xf")
        A(f"buffer_load_dwordx4 {vr(slot(24+i),4)}, v3, s[48:51], 0 offen {VF}")
    g.lab("L_x2")
    A(f"v_add_f32 v21, 0x{f2u(DEL - ZERO_GAP):08x}, v20")
    build(0, 21); build(1, 21)
    for e in range(8): A(f"v_mov_b32 v{T+e}, 0")
    A(f"s_lshr_b32 s{LIM}, s{CNT}, 2")
    A(f"s_mov_b32 s{X1D}, 1")
    estimate(2, opts.get("ve2", 8), CNT)
    reread()
    A(f"s_cmp_eq_u32 s{NH}, 0")
    A(f"s_cselect_b32 s{LVL}, 0, s{LVL}")
    g.lab("L_vs1")
    A(f"s_cmp_eq_u32 s{HST}, 0"); A("s_cbranch_scc1 L_vs1b")
    A(f"s_sub_u32 s68, s{T_}, s{TH}")
    A(f"s_cmp_le_u32 s{LVL}, s68"); A("s_cbranch_scc1 L_snap")
    A(f"s_cmp_lg_u32 s{LIM}, s{T_}"); A("s_cbranch_scc1 L_vs2")
    A("s_waitcnt vmcnt(0)")
    g.lab("L_snap")
    HA = [4, 5, 6, 7, 16, 17, 18, 19]
    for r in HA[2:]: A(f"v_mov_b32 v{r}, 0")
    for i in range(8):
        A(f"s_cmp_le_u32 s{NH}, {4*i}"); A("s_cbranch_scc1 L_snp2")
        pv(40 + i, slot(24 + i), HA)
    g.lab("L_snp2")
    A("s_nop 1")
    lane_reduce(4, 16)
    prelim(4)
    A(f"s_mov_b32 s{HST}, 0")
    g.stamp(9)
    g.lab("L_vs1b")
    A(f"s_cmp_eq_u32 s{LIM}, s{T_}"); A("s_cbranch_scc1 L_hand")
    g.lab("L_vs2")
    if opts.get("b2", 0):
        A(f"s_cmp_le_i32 s{SR}, {ROFF + 8*opts['b2']}")
        A(f"s_cselect_b32 s68, {int(opts.get('dbur', 4.5)*256)}, 0")
        A(f"s_max_i32 s{DB}, s{DB}, s68")
    A(f"s_cmp_lt_u32 s{T_}, s{BUR}"); A("s_cbranch_scc1 L_ks2")
    A(f"s_sub_u32 s{LVL}, s{LIM}, s{T_}")
    A(f"s_add_u32 s{T_}, s{T_}, 1")
    A(f"s_cmp_gt_u32 s{LVL}, {LAG}"); A("s_cbranch_scc1 L_wait")
    for d in range(LAG, 0, -1):
        A(f"s_waitcnt vmcnt({d-1})")
        if d > 1:
            A(f"s_cmp_ge_u32 s{LVL}, {d}"); A("s_cbranch_scc1 L_ret2")
    g.lab("L_ret2")
    A(f"s_cmp_eq_u32 s{T_}, s{T_}")
    A(f"s_setpc_b64 s[{RET}:{RET+1}]")

    g.lab("L_hand")
    g.stamp(7)
    A("v_mov_b32 v3, 0")
    wait_cnt(g, f"ds_read_b64 v[18:19], v3 offset:{L_SCN}", 18, 0x10200, 1)
    g.stamp(4)
    A(f"v_add_f32 v21, 0x{f2u(-ZERO_GAP):08x}, v19")
    if opts.get("noskip"): A("v_mov_b32 v21, 0xff800000")
    build(0, 21); build(1, 21)
    A(f"s_add_u32 s{LIM}, s{CNT}, {3 + 4*LAG}")
    A(f"s_lshr_b32 s{LIM}, s{LIM}, 2")
    A(f"s_sub_u32 s{BUR}, s{LIM}, {LAG + opts.get('burst', 4)}")
    A(f"s_max_i32 s{BUR}, s{BUR}, 0")
    A(f"s_mov_b32 s{FIN}, s{LIM}")
    estimate(2, 3, CNT)
    reread()
    A("s_branch L_vs2")

    g.lab("L_work")
    ret2 = f"s_setpc_b64 s[{RET2}:{RET2+1}]"
    for k in (1, 2, 3):
        A(f"s_cmp_eq_u32 s{STA}, {k}"); A(f"s_cbranch_scc1 L_w{k}")
    A(f"s_cmp_lt_u32 s{T_}, {J0}"); A("s_cbranch_scc1 L_wr")
    g.lab("L_w0")
    A(f"s_load_dwordx16 s[16:31], s[42:43], s{QA} glc")
    A(f"s_mov_b32 s{STA}, 1")
    g.lab("L_wr")
    A(ret2)
    g.lab("L_w1")
    A("s_waitcnt lgkmcnt(0)")
    A(f"s_xor_b32 s68, s17, s{ST}")
    for k in range(1, 8):
        A(f"s_xor_b32 s69, s{17+2*k}, s{ST}"); A("s_or_b32 s68, s68, s69")
    A("s_cbranch_scc1 L_w0")
    for k in range(8): A(f"v_mov_b32 v{8+k}, s{16+2*k}")
    A("v_lshlrev_b32 v3, 5, s9")
    A("s_mov_b64 exec, 1")
    A(f"ds_write_b128 v3, v[8:11] offset:{L_QV}")
    A(f"ds_write_b128 v3, v[12:15] offset:{L_QV+16}")
    A("s_mov_b64 exec, -1")
    A(f"s_mov_b32 s{STA}, 2")
    g.lab("L_w2")
    A(f"s_cmp_lt_u32 s{T_}, {16+LAG}"); A("s_cbranch_scc1 L_wr")
    A(f"ds_read_b128 v[4:7], v{L16} offset:{L_QV}")
    A("s_waitcnt lgkmcnt(0)")
    chk_sentinel(g, [4, 5, 6, 7], 8)
    A("s_cmp_lg_u64 vcc, 0"); A("s_cbranch_scc1 L_wr")
    dots(0); dots(1)
    finish(0)
    A(f"s_mov_b32 s{STA}, 3")
    A(f"s_mov_b32 s{HST}, 0")
    g.stamp(8)
    A(ret2)
    g.lab("L_w3")
    A("v_mov_b32 v3, 0")
    A(f"ds_read_b64 v[18:19], v3 offset:{L_ECN}")
    A("s_waitcnt lgkmcnt(0)")
    A("v_cmp_gt_u32 vcc, 0x10200, v18")
    A("s_cmp_lg_u64 vcc, 0"); A("s_cbranch_scc1 L_wr")
    A(f"ds_read_b64 v[16:17], v3 offset:{L_E1}")
    A("s_waitcnt lgkmcnt(0)")
    A(f"v_max_f32 v{EV}, v19, v16")
    A("v_med3_f32 v21, v19, v16, v17")
    A(f"v_add_f32 v21, 0x{f2u(-THETA):08x}, v21")
    A(f"v_cmp_nlt_f32 vcc, v{OFF[0]+1}, v21")
    A(f"v_readfirstlane_b32 s{HTH}, v21")
    A(f"v_add_f32 v21, 0x{f2u(DEL - ZERO_GAP):08x}, v{EV}")
    A("s_bcnt1_i32_b64 s68, vcc")
    A(f"s_cmp_gt_u32 s68, {HCAP}")
    A(f"s_cselect_b32 s{NSP}, 1, 0")
    A("s_cselect_b64 s[16:17], 0, vcc")
    A(f"s_mov_b64 s[{TK[0]}:{TK[0]+1}], s[16:17]")
    build(0, 21)
    A(f"s_andn2_b64 s[{TK[0]}:{TK[0]+1}], s[{TK[0]}:{TK[0]+1}], s[16:17]")
    estimate(1, opts.get("ve1", 4), CNT, False)
    A(f"s_mov_b32 s{STA}, 4")
    reread(False)
    A(ret2)

def gen(opts):
    g = G(opts); A = g.A
    RM = role_map()
    WFL = opts.get("wflags", "nt")
    PT = opts.get("ptouch", 1)
    def cls(w):
        r, t = RM[w]
        slow = r in (C_WO, C_MODB, C_MODA, C_Q) and t % 8 == 3
        if r == C_Q: return "q3" if slow else "q"
        if r == C_WO: return "w3" if slow else "w"
        if r == C_MODA: return "a3" if slow else "a"
        if r == C_MODB: return "b3" if slow else "b"
        if r == C_F1: return "f"
        if r == C_F2: return "p" if w >> 4 == 14 else "g"
        return "n"
    g.cls = cls
    DEF = dict(q=3.2, q3=4.0, w=2.24, w3=2.35, a=3.33, a3=3.4, p=2.95, b=2.23, b3=2.48, f=2.47, g=2.29, n=2.14)
    def dep(w):
        c = cls(w)
        d1 = opts.get("x" + c, DEF[c])
        d2 = d1 if c[0] in "qa" else min(d1 + opts.get("dup", 0.9), 5)
        return opts.get("js", 16) | (int(round(d1 * 256)) << 8) | (int(round(d2 * 256)) << 20)
    VB = dict(f=0.65, w=0.2, w3=0.1, q=-0.15, q3=-0.15, g=-0.1, n=-0.2)
    def vbias(w): return int(round(opts.get("y" + cls(w), VB.get(cls(w), 0)) * 256)) & 0xffff
    def m3(w):
        rows = [t // 8 + 1 for v, (r, t) in enumerate(RM) if r in (C_MODA, C_MODB) and t % 8 == 3 and v % 8 == w % 8]
        return rows[0] if len(rows) == 1 and rows[0] <= 2 else 0
    hdr = open(opts["ref"]).read().split("; Override launch")[0]
    g.L.append(hdr.rstrip("\n"))
    g.L.append(""";
;    on which memory side answers faster) and the numbers of loads in flight only affect speed.""")
    g.L.append(f"; @launch grid=(256,1,1) block=(768,1,1) lds={LDS_BYTES}")
    g.L.append('.amdgcn_target "amdgcn-amd-amdhsa--gfx950"\n.text')
    g.L.append(f".globl {KNAME}\n.p2align 8\n.type {KNAME},@function\n{KNAME}:")
    g.stamp(0, 3)
    A("s_cmp_ge_u32 s2, 256")
    A("s_cbranch_scc1 L_end")
    A("s_load_dwordx16 s[16:31], s[0:1], 0")
    A("s_load_dwordx8 s[32:39], s[0:1], 64")
    A("s_load_dwordx4 s[40:43], s[0:1], 96")
    A("s_getpc_b64 s[56:57]")
    g.lab("L_pc")
    A("s_lshl_b32 s3, s2, 3")
    A("s_add_u32 s3, s3, L_table-L_pc")
    mt = lambda i: (i & 8) | ((i + 3 - ((i >> 3) << 1)) & 7)
    assert all(RM[w] == (C_Q, 8 * (w % 8) + w // 8) for w in range(64)) and all(RM[128 + i] == (C_MODA, mt(i)) for i in range(16))
    A("s_lshr_b32 s13, s2, 4")
    A("s_cmp_eq_u32 s13, 14")
    A(f"s_cselect_b32 s13, {4 if PT & 1 else 0}, 0")
    A("s_cmp_lt_u32 s2, 144")
    A("s_cselect_b32 s13, 1, s13")
    A("s_cmp_lt_u32 s2, 128")
    A(f"s_cselect_b32 s13, {3 if PT & 2 else 0}, s13")
    A("s_cmp_lt_u32 s2, 64")
    A("s_cselect_b32 s13, 2, s13")
    A("v_lshrrev_b32 v2, 6, v0")
    A("v_and_b32 v1, 63, v0")
    A("v_readfirstlane_b32 s5, v2")
    A("s_bfe_u32 s7, s2, 0x20003")
    A("s_bfe_u32 s6, s2, 0x20005")
    A("s_and_b32 s8, s2, 7")
    A("s_lshl_b32 s9, s8, 2")
    A("s_add_u32 s6, s6, s9")
    A("s_lshr_b32 s9, s2, 7")
    A("s_lshl_b32 s9, s9, 5")
    A("s_add_u32 s6, s6, s9")
    A("s_mov_b32 s72, 0xfffffffe")
    A("s_mov_b32 s73, 0xffff0000")
    g.stamp(0)
    A("s_cmp_lt_u32 s5, 4")
    A("s_cbranch_scc1 L_helper")
    stream(g, opts)

    g.lab("L_helper")
    A("s_bfe_u32 s61, s2, 0x30003"); A("s_lshl_b32 s48, s8, 3"); A("s_add_u32 s61, s61, s48")
    A("s_bfe_u32 s48, s2, 0x10003"); A("s_lshl_b32 s49, s48, 1")
    A("s_add_u32 s50, s2, 3"); A("s_sub_u32 s50, s50, s49"); A("s_and_b32 s50, s50, 7")
    A("s_lshl_b32 s48, s48, 3"); A("s_or_b32 s50, s50, s48")
    A("s_cmp_lt_u32 s2, 128"); A("s_cselect_b32 s61, s61, s50")
    A("v_mov_b32 v4, -1"); A("v_mov_b32 v5, -1"); A("v_mov_b32 v6, -1"); A("v_mov_b32 v7, -1")
    A("v_mov_b32 v8, 0xff800000"); A("v_mov_b32 v9, 0"); A("v_mov_b32 v10, 0xff800000")
    A("v_lshlrev_b32 v2, 3, v1")
    A(f"ds_write_b64 v2, v[8:9] offset:{L_ST}")
    A("v_lshlrev_b32 v2, 2, v1")
    A(f"ds_write_b32 v2, v4 offset:{L_QV}")
    A("v_mov_b32 v38, 0")
    A("v_mov_b32 v39, 0xff800000")
    A(f"ds_write_b128 v38, v[4:7] offset:{L_ML}")
    A(f"ds_write_b32 v38, v38 offset:{L_CNT}")
    A(f"ds_write_b64 v38, v[38:39] offset:{L_SCN}")
    A(f"ds_write_b64 v38, v[38:39] offset:{L_ECN}")
    A(f"v_mov_b32 v8, {1024+8*(32-opts.get('D0', 4))}")
    LAG = opts.get("LAG", 5)
    A(f"v_mov_b32 v9, {LAG*256}"); A("v_mov_b32 v10, 1024"); A(f"v_mov_b32 v11, {int(opts.get('cap', LAG)*256)}")
    A(f"ds_write_b128 v38, v[8:11] offset:{L_RM}")
    A("v_mov_b32 v8, 0"); A("v_mov_b32 v9, 0"); A("v_mov_b32 v10, 0"); A("v_mov_b32 v11, 0")
    A(f"ds_write_b128 v38, v[8:11] offset:{L_SN}")
    A(f"s_mov_b32 s{STG}, 4")
    A(f"s_getreg_b32 s{SXCC}, hwreg(HW_REG_XCC_ID, 0, 4)")
    A("v_lshrrev_b32 v12, 3, v0")
    A("v_lshlrev_b32 v12, 5, v12")
    A("v_bfe_u32 v3, v1, 2, 1")
    A("v_lshl_add_u32 v12, v3, 10, v12")
    A("v_and_b32 v8, 3, v1")
    A("v_lshl_add_u32 v13, v8, 3, v12")
    A("v_and_b32 v12, 0xffffffdf, v12")
    A("v_lshl_add_u32 v12, v8, 4, v12")
    A("v_bfe_u32 v8, v1, 3, 1")
    A("v_lshl_add_u32 v12, v8, 3, v12")
    A("v_lshl_add_u32 v12, v3, 5, v12")
    A("s_lshl_b32 s48, s61, 7")
    A("s_lshl_b32 s49, s5, 7"); A("s_add_u32 s49, s49, 64")
    A("v_add_u32 v8, s49, v1")
    A("s_waitcnt lgkmcnt(0)")
    A(f"s_load_dword s{ST}, s[42:43], {WS_E}")
    A("s_cmp_eq_u32 s13, 2"); A("s_cbranch_scc1 L_r_q")
    A("s_cmp_eq_u32 s13, 1"); A("s_cbranch_scc1 L_r_moda")
    A("s_load_dword s14, s[56:57], s3")
    if PT & 2:
        A("s_cmp_lg_u32 s13, 3"); A("s_cbranch_scc1 L_np3")
        A("v_lshl_add_u32 v8, v8, 13, s48")
        A("global_load_dword v167, v8, s[22:23]")
        g.lab("L_np3")
    if PT & 1:
        A("s_cmp_lg_u32 s13, 4"); A("s_cbranch_scc1 L_np4")
        A("v_mul_u32_u24 v8, 6144, v8")
        A("v_add_u32 v8, s48, v8")
        A("global_load_dword v167, v8, s[36:37]")
        g.lab("L_np4")
    A("s_barrier")
    A("s_waitcnt lgkmcnt(0)")
    A("s_and_b32 s13, s14, 7")
    A("s_bfe_u32 s61, s14, 0x80008")
    A(f"s_cmp_eq_u32 s13, {C_WO}"); A("s_cbranch_scc1 L_r_wo")
    A(f"s_cmp_eq_u32 s13, {C_MODB}"); A("s_cbranch_scc1 L_r_modb")
    A(f"s_cmp_eq_u32 s13, {C_F1}"); A("s_cbranch_scc1 L_r_f1")
    A(f"s_cmp_eq_u32 s13, {C_F2}"); A("s_cbranch_scc1 L_r_f2")
    A("s_branch L_r_none")

    def tag():
        A("s_waitcnt lgkmcnt(0)")
        make_tag(g)
        A(f"s_add_u32 s{SXCC}, s{SXCC}, s{ST}")
    def line_out_addr(v, bsh=6, ush=7):
        A(f"v_and_b32 v{v}, 1, v1")
        A(f"v_lshlrev_b32 v{v}, {bsh}, v{v}")
        A("v_lshrrev_b32 v3, 4, v1")
        A(f"v_lshl_add_u32 v{v}, v3, 4, v{v}")
        A(f"s_lshl_b32 s49, s5, {ush}")
        A("s_add_u32 s49, s49, s58")
        A(f"v_add_u32 v{v}, s49, v{v}")
    def pack_tagged():
        A("v_cvt_pk_bf16_f32 v8, v8, v9")
        A("v_cvt_pk_bf16_f32 v10, v10, v11")
        A(f"v_mov_b32 v9, s{ST}")
        A(f"v_mov_b32 v11, s{ST}")
    def ln_addrs():
        A("v_bfe_u32 v6, v1, 2, 1")
        A("v_lshlrev_b32 v6, 5, v6")
        A(f"v_add_u32 v6, {L_RED}, v6")
        A("s_lshl_b32 s49, s5, 3")
        A("v_add_u32 v5, s49, v6")
    def mod_params():
        A("s_lshl_b32 s48, s61, 7")
        A("s_lshl_b32 s58, s61, 9")
        A(f"s_add_u32 s58, s58, {WS_MOD}")
        srd(g, 44, 36, 512*6144)
    def mod_act():
        unpack4(g, 16, 14)
        silu4(g, 16, 20)
        A("v_cvt_pk_bf16_f32 v14, v16, v17")
        A("v_cvt_pk_bf16_f32 v15, v18, v19")
        A(f"ds_write_b64 v12, v[14:15] offset:{L_ACT}")
    MREP = opts.get("mrep", 8)
    def mod_finish(sig):
        line_out_addr(13)
        if sig and MREP:
            A("v_bfe_u32 v3, v1, 1, 3")
            A(f"v_lshl_add_u32 v13, v3, 13, v13")
            A(f"v_add_u32 v13, {WS_MA-WS_MOD}, v13")
        act_addr(g, 14, L_ACT, ACT_BS)
        tr64_addr(g)
        if sig:
            A("s_waitcnt vmcnt(0) lgkmcnt(0)")
            g.stamp(1)
            hs_signal(g, 9); hs_wait(g, 4, 9, 0)
        else:
            hs_wait(g, 4, 9, 8)
        gemv_fused(g, 14, 8)
        pack_tagged()
        if sig and MREP:
            A(f"s_mov_b32 exec_lo, 0x{((1 << 2*MREP) - 1) * 0x10001:08x}"); A("s_mov_b32 exec_hi, exec_lo")
        else:
            for x in EX8: A(x)
        A("global_store_dwordx4 v13, v[8:11], s[42:43] sc1")
        A("s_mov_b64 exec, -1")
        g.stamp(2)

    g.lab("L_r_moda")
    mod_params()
    A("global_load_dwordx2 v[14:15], v13, s[34:35]")
    dma_tile64(g, 6144, WFL)
    A("s_barrier")
    tag()
    A("s_waitcnt vmcnt(16)")
    mod_act()
    mod_finish(1)
    A(f"ds_write_b32 v38, v38 offset:{L_GO}")
    A("s_mov_b32 s60, 0")
    A("s_branch L_svc")

    g.lab("L_r_q")
    A("s_lshl_b32 s58, s61, 8")
    A(f"s_add_u32 s58, s58, {WS_Q}")
    A("global_load_dwordx2 v[14:15], v13, s[16:17]")
    srd(g, 44, 22, 512*8192)
    dma_tile64(g, 8192, WFL)
    A("s_barrier")
    tag()
    A("s_waitcnt vmcnt(16)")
    ln_addrs()
    unpack4(g, 20, 14)
    ln_partial(g, 20)
    A("s_waitcnt vmcnt(0) lgkmcnt(0)")
    hs_signal(g, 9); hs_wait(g, 4, 9)
    ln_apply(g, 20, 24)
    A("v_lshlrev_b32 v15, 4, v0")
    if MREP:
        A(f"s_and_b32 s49, s2, {MREP-1}"); A("s_lshl_b32 s49, s49, 13"); A(f"s_add_u32 s49, s49, {WS_MA}")
        A("v_add_u32 v15, s49, v15")
    else: A(f"v_add_u32 v15, {WS_MOD}, v15")
    A("v_add_u32 v36, 0x1000, v15")
    def mod_loads():
        A("s_mov_b64 exec, s[64:65]")
        A("global_load_dwordx4 v[16:19], v15, s[42:43] sc1")
        A("s_mov_b64 exec, s[66:67]")
        A("global_load_dwordx4 v[32:35], v36, s[42:43] sc1")
        A("s_mov_b64 exec, -1")
    A("s_mov_b64 s[64:65], -1"); A("s_mov_b64 s[66:67], -1")
    mod_loads()
    tr_tile64(g)
    line_out_addr(13, 14, 6)
    act_addr(g, 14, L_ACT, ACT_BS)
    g.stamp(1)
    A("s_mov_b32 s70, 0")
    A("s_branch L_q_c")
    g.lab("L_q_p")
    mod_loads()
    g.lab("L_q_c")
    A("s_waitcnt vmcnt(0)")
    A(f"v_cmp_ne_u32 s[64:65], s{ST}, v17"); A(f"v_cmp_ne_u32 s[68:69], s{ST}, v19"); A("s_or_b64 s[64:65], s[64:65], s[68:69]")
    A(f"v_cmp_ne_u32 s[66:67], s{ST}, v33"); A(f"v_cmp_ne_u32 s[68:69], s{ST}, v35"); A("s_or_b64 s[66:67], s[66:67], s[68:69]")
    A("s_or_b64 vcc, s[64:65], s[66:67]")
    spin_tail(g, "L_q_p", "L_q_ok", opts.get("msleep", 0))
    g.stamp(7)
    unpack4(g, 28, 32, 2)
    unpack4(g, 24, 16, 2)
    for i in range(4): A(f"v_add_f32 v{28+i}, 1.0, v{28+i}")
    for i in range(4): rnd(g, 28+i)
    for i in range(4): A(f"v_mul_f32 v{20+i}, v{20+i}, v{28+i}")
    for i in range(4): rnd(g, 20+i)
    for i in range(4): A(f"v_add_f32 v{20+i}, v{20+i}, v{24+i}")
    A("v_cvt_pk_bf16_f32 v16, v20, v21")
    A("v_cvt_pk_bf16_f32 v17, v22, v23")
    A(f"ds_write_b64 v12, v[16:17] offset:{L_ACT}")
    hs_signal(g, 9); hs_wait(g, 8, 9, 0)
    if opts.get("gop", 0) == 0: A(f"ds_write_b32 v38, v38 offset:{L_GO}")
    gemv(g, 16, 14, 8)
    pack_tagged()
    guard(g, 8); guard(g, 10)
    for x in EX8: A(x)
    A("global_store_dwordx4 v13, v[8:11], s[42:43] sc1")
    A("s_mov_b64 exec, -1")
    if opts.get("gop", 0) == 1: A(f"ds_write_b32 v38, v38 offset:{L_GO}")
    g.stamp(2)
    A("s_mov_b32 s60, 0")
    A("s_branch L_svc")

    PD = opts.get("PD", 4)
    def dma_waves_only(skip, late=0, early3=0):
        A("s_sub_u32 s53, s5, 1")
        A("s_cmp_gt_u32 s53, 1")
        A(f"s_cbranch_scc1 {skip}")
        if late >= 40:
            e3 = g.uniq("l3")
            if early3:
                A("s_and_b32 s49, s61, 7"); A("s_cmp_lg_u32 s49, 3"); A(f"s_cbranch_scc1 {e3}")
                dma_tile64(g, early3, WFL, PD)
                A(f"s_branch {skip}")
                g.lab(e3)
            if late >= 50: wait_cnt(g, f"ds_read_b32 v8, v38 offset:{L_SN}", 8, late - 50, 2)
            else: wait_cnt(g, f"ds_read_b32 v8, v38 offset:{L_SCN}", 8, (late - 40) * 64, 4, 0xffff)
        elif late:
            l = g.uniq("lt"); e = g.uniq("ltd")
            A("s_mov_b32 s70, 0")
            g.lab(l)
            A(f"ds_read_b32 v8, v38 offset:{L_PG}")
            A("s_waitcnt lgkmcnt(0)")
            A(f"v_cmp_gt_i32 vcc, {late}, v8")
            spin_tail(g, l, e, 8, 8)
    g.lab("L_r_modb")
    mod_params()
    A("global_load_dwordx2 v[14:15], v13, s[34:35]")
    tag()
    A("s_waitcnt vmcnt(0)")
    mod_act()
    A("s_mov_b32 s60, 4")
    dma_waves_only("L_sig", late_steps(opts)["b"], 6144)
    dma_tile64(g, 6144, WFL, opts.get("PDB", PD))
    A("s_branch L_sig")

    g.lab("L_r_wo")
    A("s_lshl_b32 s48, s8, 19")
    A("s_lshl_b32 s49, s61, 7")
    A("s_add_u32 s48, s48, s49")
    A("s_lshl_b32 s58, s8, 12")
    A("s_lshl_b32 s49, s61, 9")
    A("s_add_u32 s58, s58, s49")
    A(f"s_add_u32 s58, s58, {WS_AP}")
    srd(g, 44, 24, 4096*1024)
    tag()
    e = g.uniq("sig")
    A("s_cmp_lg_u32 s5, 3"); A(f"s_cbranch_scc1 {e}")
    A("s_lshl_b32 s56, s8, 5"); A("s_add_u32 s56, s56, s61"); A("s_lshl_b32 s56, s56, 2")
    A("v_mov_b32 v8, s56"); A(f"v_mov_b32 v9, s{SXCC}")
    A("s_mov_b64 exec, 1")
    A(f"global_store_dword v8, v9, s[42:43] offset:{WS_HDR} sc1")
    A("s_mov_b64 exec, -1")
    g.lab(e)
    A("s_mov_b32 s60, 1")
    dma_waves_only("L_sig", late_steps(opts)["w"], 1024)
    dma_tile64(g, 1024, WFL, opts.get("PDW", PD))
    A("s_branch L_sig")

    g.lab("L_r_f1")
    A("s_lshl_b32 s48, s61, 6")
    A("s_lshl_b32 s58, s61, 12")
    A(f"s_add_u32 s58, s58, {WS_FP}")
    tag()
    A("s_cmp_lt_u32 s5, 2")
    A("s_cselect_b32 s44, s28, s30")
    A("s_cselect_b32 s45, s29, s31")
    A(f"s_mov_b32 s46, {512*2752}"); A("s_mov_b32 s47, 0x20000")
    A("s_mov_b32 s60, 2")
    dma_waves_only("L_sig", late_steps(opts)["f"])
    for h in range(2):
        A("s_and_b32 s54, s61, 1" if h == 0 else "s_andn2_b32 s54, 1, s61")
        A("v_lshrrev_b32 v2, 2, v1")
        A("v_mul_u32_u24 v2, 5504, v2")
        A("s_and_b32 s49, s5, 2")
        A("s_or_b32 s49, s49, s54")
        A("v_xor_b32 v3, s49, v1")
        A("v_and_b32 v3, 3, v3")
        A("v_lshl_add_u32 v2, v3, 4, v2")
        A("s_mul_i32 s49, s54, 2752"); A("s_add_u32 s49, s49, s48")
        A("s_lshl_b32 s50, s53, 15"); A("s_lshl_b32 s54, s54, 14"); A("s_add_u32 s50, s50, s54")
        A(f"s_add_u32 s50, s50, {L_WT}")
        dma_loop(g, 16, 32*2752, "" if h == 0 else WFL, opts.get("PD1", 3))
    srd(g, 44, 32, 1376*1024)
    A("v_lshlrev_b32 v2, 4, v1")
    A("s_lshl_b32 s49, s61, 1"); A("s_add_u32 s49, s49, s53"); A("s_lshl_b32 s49, s49, 14")
    A(f"s_mul_i32 s50, s53, {16*W2S}")
    A(f"s_add_u32 s50, s50, {L_W2}")
    dma_loop(g, 16, 1024, WFL, opts.get("PD2", 6), W2S)
    A("s_branch L_sig")

    g.lab("L_r_f2")
    A("s_mov_b32 s60, 3")
    e = g.uniq("tch")
    A("s_cmp_lg_u32 s5, 3"); A(f"s_cbranch_scc1 {e}")
    A("s_and_b32 s49, s61, 3"); A("s_lshl_b32 s49, s49, 7")
    A("v_add_u32 v8, s49, v1")
    def touch(base, stride, off_s, second):
        A(f"v_mul_u32_u24 v9, {stride}, v8")
        A(f"v_add_u32 v9, {off_s}, v9")
        A(f"global_load_dword v167, v9, s[{base}:{base+1}]")
        if second:
            A(f"v_add_u32 v10, {64*stride}, v9")
            A(f"global_load_dword v167, v10, s[{base}:{base+1}]")
    e2 = g.uniq("tchm")
    A("s_bfe_u32 s50, s14, 0x50003")
    A("s_cmp_eq_u32 s50, 0"); A(f"s_cbranch_scc1 {e2}")
    A("s_lshl_b32 s50, s50, 10"); A(f"s_sub_u32 s50, s50, {1024-384}")
    touch(36, 6144, "s50", opts.get("t2", 1))
    g.lab(e2)
    A("s_lshl_b32 s50, s8, 10"); A("s_add_u32 s50, s50, 384")
    touch(22, 8192, "s50", opts.get("t2", 1))
    g.lab(e)
    tag()
    A("s_branch L_svc")

    g.lab("L_r_none")
    A("s_mov_b32 s60, 0")
    tag()
    A("s_branch L_svc")

    g.lab("L_sig")
    A("s_waitcnt vmcnt(0) lgkmcnt(0)")
    g.stamp(1)
    hs_signal(g, 9)

    g.lab("L_svc")
    def merge(nl):
        A(f"v_and_b32 v9, {nl-1}, v1")
        A("v_lshlrev_b32 v9, 3, v9")
        A(f"ds_read_b64 v[10:11], v9 offset:{L_ST}")
        mods = ["quad_perm:[1,0,3,2]", "quad_perm:[2,3,0,1]", "row_half_mirror", "row_mirror"][:3 if nl == 8 else 4]
        A("s_waitcnt lgkmcnt(0)")
        for i, m_ in enumerate(mods):
            src = 10 if i == 0 else 8
            A(f"v_max_f32_dpp v8, v{src}, v{src} {m_} row_mask:0xf bank_mask:0xf")
            if i + 1 < len(mods): A("s_nop 1")
        A("v_sub_f32 v9, v10, v8")
        A(f"v_mul_f32 v9, 0x{LOG2E:08x}, v9")
        A("v_exp_f32 v9, v9")
        A("s_nop 0")
        A("v_mul_f32 v10, v9, v11")
        for m_ in mods:
            A("s_nop 1")
            A(f"v_add_f32_dpp v10, v10, v10 {m_} row_mask:0xf bank_mask:0xf")
    SB = 20
    def spoll(nd, off, name):
        A("s_lshl_b32 s64, s6, 9")
        for i in range(3):
            A(f"s_xor_b32 s{54+i}, s7, {i+1}"); A(f"s_lshl_b32 s{54+i}, s{54+i}, 7"); A(f"s_add_u32 s{54+i}, s{54+i}, s64")
        A("s_mov_b32 s70, 0")
        g.lab(name)
        for i in range(3): A(f"s_load_dwordx{nd} s[{SB+4*i}:{SB+4*i+nd-1}], s[42:43], s{54+i} offset:{off} glc")
        A("s_waitcnt lgkmcnt(0)")
        tags = [SB + 4*i + k for i in range(3) for k in range(1, nd, 2)]
        A(f"s_xor_b32 s68, s{tags[0]}, s{ST}")
        for k in tags[1:]:
            if k % 4 == 3: A(f"s_sub_u32 s69, s{k}, s{ST}"); A("s_lshr_b32 s69, s69, 4")
            else: A(f"s_xor_b32 s69, s{k}, s{ST}")
            A("s_or_b32 s68, s68, s69")
        A(f"s_cbranch_scc0 {name}d")
        if opts.get("ssl", 2): A(f"s_sleep {opts.get('ssl', 2)}")
        A("s_add_u32 s70, s70, 1")
        A(f"s_cmp_lt_u32 s70, {SPIN_MAX}")
        A(f"s_cbranch_scc1 {name}")
        g.lab(name + "d")
        A(f"v_mov_b32 v8, s{SB}"); A(f"v_mov_b32 v10, s{SB+4}"); A(f"v_mov_b32 v16, s{SB+8}")
        A("v_max3_f32 v18, v8, v10, v16")
        A("v_mov_b32 v19, 0x10000")
    def own_line(base):
        A("s_lshl_b32 s64, s6, 2"); A("s_add_u32 s64, s64, s7"); A("s_lshl_b32 s64, s64, 7")
        A(f"s_add_u32 s64, s64, {base}")
        A("v_mov_b32 v18, s64")
    A("s_cmp_eq_u32 s5, 3")
    A("s_cbranch_scc1 L_svc3")
    A("s_cmp_lg_u32 s5, 0")
    A("s_cbranch_scc1 L_mid")
    own_line(WS_S1)
    wait_cnt(g, f"ds_read_b64 v[8:9], v38 offset:{L_ECN}", 8, 0x200, 2, 0xffff)
    A("v_mov_b32 v8, v9")
    A(f"v_mov_b32 v9, s{ST}")
    A("s_mov_b64 exec, 1")
    A("global_store_dwordx2 v18, v[8:9], s[42:43] sc1")
    A("s_mov_b64 exec, -1")
    A("s_lshl_b32 s64, s8, 7")
    A(f"s_load_dwordx8 s[20:27], s[42:43], s64 offset:{WS_HDR} glc")
    A("s_waitcnt lgkmcnt(0)")
    A(f"s_xor_b32 s68, s20, s{SXCC}")
    for k in range(1, 8):
        A(f"s_xor_b32 s69, s{20+k}, s{SXCC}"); A("s_or_b32 s68, s68, s69")
    A("s_cselect_b32 s68, 0, 1")
    if opts.get("nolocal"): A("s_mov_b32 s68, 0")
    A("v_mov_b32 v8, s68")
    A("s_mov_b64 exec, 1")
    A(f"ds_add_u32 v38, v8 offset:{L_LOC}")
    A("s_mov_b64 exec, -1")
    A("s_branch L_mid")
    g.lab("L_svc3")
    wait_cnt(g, f"ds_read_b32 v8, v38 offset:{L_ECN}", 8, opts.get("e1", 4) * 64, 4)
    spoll(2, WS_S1, "L_s3e")
    A("v_med3_f32 v17, v8, v10, v16")
    A("v_mov_b32 v16, v18")
    A("s_mov_b64 exec, 1")
    A(f"ds_write_b64 v38, v[16:17] offset:{L_E1}")
    A(f"ds_add_u32 v38, v19 offset:{L_ECN}")
    A("s_mov_b64 exec, -1")

    g.lab("L_mid")
    LATEW = late_steps(opts)["w"] >= 12; LATEB = late_steps(opts)["b"] >= 12
    TB = 32
    for i in range(4): A(f"s_bfe_u32 s{TB+i}, s{ST}, 0x{(8 << 16) | (8 * i):x}")
    A("s_cmp_eq_u32 s60, 2"); A("s_cbranch_scc1 L_pre_f1")
    A("s_cmp_eq_u32 s60, 3"); A("s_cbranch_scc1 L_pre_f2")
    A("s_cmp_eq_u32 s60, 1"); A("s_cbranch_scc1 L_pre_wo")
    if not LATEB:
        A("s_cmp_lg_u32 s60, 4"); A("s_cbranch_scc1 L_svd")
        mod_finish(0)
    A("s_branch L_svd")

    g.lab("L_pre_wo")
    if not LATEW:
        hs_wait(g, 4, 9, 8)
        tr_tile64(g)
    A("s_lshl_b32 s49, s8, 2"); A("s_add_u32 s49, s49, s5"); A("s_lshl_b32 s49, s49, 11")
    A(f"s_add_u32 s49, s49, {WS_OP}")
    A("v_lshrrev_b32 v12, 5, v1")
    A("v_and_b32 v16, 31, v1")
    A("v_lshlrev_b32 v15, 16, v12")
    A("v_lshl_add_u32 v15, v16, 4, v15")
    A("v_add_u32 v15, s49, v15")
    A(f"v_mul_u32_u24 v12, {ACT_BS}, v12")
    A("v_bfe_u32 v16, v1, 3, 2")
    A("v_lshl_add_u32 v12, v16, 6, v12")
    A("v_and_b32 v16, 3, v1")
    A("v_lshl_add_u32 v12, v16, 4, v12")
    A("v_bfe_u32 v16, v1, 2, 1")
    A("v_lshl_add_u32 v12, v16, 3, v12")
    A("s_lshl_b32 s49, s5, 8")
    A("v_add_u32 v12, s49, v12")
    act_addr(g, 14, L_ACT, ACT_BS)
    line_out_addr(13)
    A("v_mov_b32 v36, 0xff")
    A("s_branch L_svd")

    g.lab("L_pre_f1")
    A("v_mov_b32 v37, v13")
    A("v_lshlrev_b32 v15, 4, v0")
    A(f"v_add_u32 v39, {WS_MOD+3*4096}, v15")
    A(f"v_add_u32 v15, {WS_AP+4096}, v15")
    ln_addrs()
    A("v_and_b32 v14, 7, v1")
    A(f"v_mul_u32_u24 v14, {ACT_BS}, v14")
    A("v_lshrrev_b32 v3, 4, v1")
    A("v_lshl_add_u32 v14, v3, 4, v14")
    A("v_and_b32 v7, 1, v1")
    A("v_lshlrev_b32 v7, 5, v7")
    line_out_addr(13, 6, 10)
    A("v_bfe_u32 v3, v1, 1, 3")
    A("v_lshl_add_u32 v13, v3, 7, v13")
    A("v_lshrrev_b32 v2, 3, v1")
    A("v_lshlrev_b32 v2, 6, v2")
    A("v_bfe_u32 v3, v1, 2, 1")
    A("v_lshl_add_u32 v2, v3, 14, v2")
    A("v_and_b32 v8, 2, v1")
    A("v_or_b32 v3, v3, v8")
    A("v_xor_b32 v3, s5, v3")
    A("v_lshl_add_u32 v2, v3, 4, v2")
    A("v_lshl_add_u32 v2, v8, 14, v2")
    A("v_and_b32 v3, 1, v1")
    A("v_lshl_add_u32 v2, v3, 3, v2")
    A(f"v_add_u32 v2, {L_WT}, v2")
    A("s_branch L_svd")

    g.lab("L_pre_f2")
    A("v_bfe_u32 v12, v1, 2, 1")
    A("v_and_b32 v14, 3, v1")
    A("s_lshl_b32 s49, s61, 5")
    A("v_lshl_add_u32 v3, v14, 3, s49")
    A("v_lshl_add_u32 v37, v12, 10, v3")
    A("v_and_b32 v15, 7, v1")
    A("s_lshl_b32 s49, s61, 7")
    A("v_lshl_add_u32 v15, v15, 4, s49")
    A(f"v_add_u32 v39, {WS_MOD+3*4096}, v15")
    A("v_lshrrev_b32 v3, 3, v1")
    A("v_lshl_add_u32 v15, v3, 12, v15")
    A(f"v_add_u32 v15, {WS_AP}, v15")

    g.lab("L_svd")
    A("s_cmp_eq_u32 s5, 3")
    A("s_cbranch_scc1 L_svd3")
    A("s_cmp_eq_u32 s5, 2")
    A("s_cbranch_scc1 L_svd2")
    A("s_cmp_lg_u32 s5, 0")
    A("s_cbranch_scc1 L_tail")
    own_line(WS_S2)
    g.stamp(3)
    wait_cnt(g, f"ds_read_b32 v8, v38 offset:{L_SCN}", 8, 0x200, 1, 0xffff)
    merge(8)
    A(f"v_mov_b32 v9, s{ST}"); A(f"v_mov_b32 v11, s{SXCC}")
    A("s_mov_b64 exec, 1")
    A("global_store_dwordx4 v18, v[8:11], s[42:43] sc1")
    A("s_mov_b64 exec, -1")
    g.stamp(4)
    wait_cnt(g, f"ds_read_b32 v8, v38 offset:{L_SCN}", 8, 0x10000, 1)
    merge(16)
    A("v_rcp_f32 v10, v10")
    A("v_lshlrev_b32 v8, 2, v1")
    A("v_mul_f32 v9, v9, v10")
    A("s_mov_b64 exec, 0xff")
    A(f"ds_write_b32 v8, v9 offset:{L_S8}")
    A("s_mov_b64 exec, -1")
    A(f"ds_write_b32 v38, v38 offset:{L_ML}")
    g.stamp(5)
    wait_cnt(g, f"ds_read_b32 v8, v38 offset:{L_SN}", 8, 8, 1)
    op_publish(g, L_OP1, VA, 38, 0)
    g.stamp(6)
    A("s_branch L_tail")
    g.lab("L_svd2")
    if opts.get("optouch", 1):
        poll_lds(g, [f"ds_read_b32 v8, v38 offset:{L_ML}"], [8], 9, 32)
        A("s_lshl_b32 s56, s6, 2"); A("s_add_u32 s56, s56, s7")
        A("s_lshl_b32 s57, s56, 9"); A(f"s_add_u32 s57, s57, {WS_OP+R2}")
        A("v_lshl_add_u32 v3, v1, 3, s57")
        A("global_load_dword v167, v3, s[42:43] sc1")
        A("s_waitcnt vmcnt(0)")
    A("s_branch L_tail")
    g.lab("L_svd3")
    wait_cnt(g, f"ds_read_b32 v8, v38 offset:{L_SCN}", 8, opts.get("e2", 4) * 64, 4)
    spoll(4, WS_S2, "L_s3p")
    A(f"v_mov_b32 v9, s{SB+2}"); A(f"v_mov_b32 v11, s{SB+6}"); A(f"v_mov_b32 v17, s{SB+10}")
    A(f"s_xor_b32 s68, s{SB+3}, s{SXCC}")
    for k in (SB+7, SB+11):
        A(f"s_xor_b32 s69, s{k}, s{SXCC}"); A("s_or_b32 s68, s68, s69")
    A("s_cselect_b32 s68, 0, 1")
    A("v_mov_b32 v3, s68")
    A("s_mov_b64 exec, 1")
    A(f"ds_add_u32 v38, v3 offset:{L_LOC}")
    A(f"ds_max_f32 v38, v18 offset:{L_MX}")
    A(f"ds_write_b128 v38, v[8:11] offset:{L_ST+64}")
    A(f"ds_write_b64 v38, v[16:17] offset:{L_ST+80}")
    A(f"ds_add_u32 v38, v19 offset:{L_SCN}")
    A("s_mov_b64 exec, -1")
    g.stamp(4)
    if opts.get("rel", 0):
        PEERS = [21, 170, 63, 198, 89, 237, 119, 139]
        A("s_lshl_b32 s64, s6, 2"); A("s_add_u32 s64, s64, s7"); A("s_lshl_b32 s64, s64, 7")
        A("s_mov_b32 s70, 0")
        g.lab("L_rel")
        for k, o in enumerate(PEERS):
            A(f"s_add_u32 s68, s64, {o*128}"); A("s_and_b32 s68, s68, 0x7fff")
            A(f"s_load_dword s{20+k}, s[42:43], s68 offset:{(WS_S2, WS_S1)[opts.get('rsrc', 0)]+4} glc")
        A("s_waitcnt lgkmcnt(0)")
        A("s_mov_b32 s68, 0")
        for k in range(8):
            A(f"s_cmp_eq_u32 s{20+k}, s{ST}"); A("s_addc_u32 s68, s68, 0")
        A(f"s_cmp_ge_u32 s68, {opts['rel']}"); A("s_cbranch_scc1 L_reld")
        A("s_add_u32 s70, s70, 1")
        A("s_cmp_lt_u32 s70, 64"); A("s_cbranch_scc1 L_rel")
        g.lab("L_reld")
    if "cap" in opts:
        A(f"v_mov_b32 v8, {LAG*256}")
        A(f"ds_write_b32 v38, v8 offset:{L_RM+12}")

    g.lab("L_tail")
    A("s_cmp_eq_u32 s60, 0"); A("s_cbranch_scc1 L_fin")
    A("s_cmp_lg_u32 s60, 4"); A("s_cbranch_scc1 L_tl2")
    if LATEB: mod_finish(0)
    A("s_branch L_fin")
    g.lab("L_tl2")
    if opts.get("notail") == 1: A("s_branch L_fin")
    if opts.get("notail") == 2: A("s_cmp_lg_u32 s60, 1"); A("s_cbranch_scc1 L_fin")
    if LATEW:
        A("s_cmp_lg_u32 s60, 1"); A("s_cbranch_scc1 L_tl3")
        hs_wait(g, 4, 9, 4)
        tr_tile64(g)
        g.lab("L_tl3")
    wait_cnt(g, f"ds_read_b32 v8, v38 offset:{L_SN}", 8, 8, 8)
    def after(n16):
        if not n16: return
        l = g.uniq("af"); e = g.uniq("afd")
        A(f"ds_read_b32 v8, v38 offset:{L_RM+8}")
        A("s_waitcnt lgkmcnt(0)")
        A("v_subrev_u32 v8, 1024, v8")
        A(f"v_mul_i32_i24 v8, {n16}, v8")
        A("v_ashrrev_i32 v8, 4, v8")
        A("v_add_u32 v9, 1032, v8")
        A("s_mov_b32 s70, 0")
        g.lab(l)
        A(f"ds_read_b32 v8, v38 offset:{L_RM+8}")
        A("s_waitcnt lgkmcnt(0)")
        A("v_cmp_lt_u32 vcc, v9, v8")
        spin_tail(g, l, e, 4, 8)
    A("s_cmp_eq_u32 s60, 1"); A("s_cbranch_scc1 L_t_wo0")
    A("s_cmp_eq_u32 s60, 3"); A("s_cbranch_scc1 L_t_f2")
    hs_wait(g, 4, 9, 8)
    A("s_branch L_t_f1")

    def sumN(n, src, dst):
        st = n // 2
        for i in range(st):
            for h in range(2):
                A(f"v_pk_add_f32 {vr(dst+4*i+2*h,2)}, {vr(src+4*i+2*h,2)}, {vr(src+4*(i+st)+2*h,2)}")
        st //= 2
        while st:
            for i in range(st):
                for h in range(2):
                    A(f"v_pk_add_f32 {vr(dst+4*i+2*h,2)}, {vr(dst+4*i+2*h,2)}, {vr(dst+4*(i+st)+2*h,2)}")
            st //= 2
    def sum8p(src, dst):
        for p in range(4):
            for h in range(2): A(f"v_pk_add_f32 {vr(dst+8*p+2*h,2)}, {vr(src+8*p+2*h,2)}, {vr(src+8*p+4+2*h,2)}")
        sum8q(dst)
    def sum8q(dst):
        for i in range(2):
            for h in range(2): A(f"v_pk_add_f32 {vr(dst+16*i+2*h,2)}, {vr(dst+16*i+2*h,2)}, {vr(dst+16*i+8+2*h,2)}")
        for h in range(2): A(f"v_pk_add_f32 {vr(dst+2*h,2)}, {vr(dst+2*h,2)}, {vr(dst+16+2*h,2)}")
    def x1_from(S):
        for i in range(4): rnd(g, S+i)
        for i in range(4): A(f"v_mul_f32 v{S+i}, v{S+i}, v{20+i}")
        for i in range(4): rnd(g, S+i)
        for i in range(4): A(f"v_add_f32 v{16+i}, v{16+i}, v{S+i}")
        for i in range(4): rnd(g, 16+i)
    TSL = opts.get("tsl", 0)

    g.lab("L_t_wo0")
    after(opts.get("aw", 13))
    g.lab("L_t_wo")
    A("s_mov_b32 s70, 0")
    g.lab("L_wo_p")
    for i in range(4): A(f"global_load_dwordx4 {vr(VA+4*i,4)}, v15, s[42:43] offset:{512*i} sc1")
    for k in range(16):
        if k % 4 == 0: A(f"s_waitcnt vmcnt({3-k//4})")
        A(f"v_xor_b32 v{VA+k}, s{TB+k%4}, v{VA+k}")
    for k in range(5): A(f"v_or3_b32 v{28+k}, v{VA+3*k}, v{VA+3*k+1}, v{VA+3*k+2}")
    A("v_or3_b32 v28, v28, v29, v30")
    A(f"v_or3_b32 v31, v31, v32, v{VA+15}")
    A("v_or_b32 v28, v28, v31")
    A("v_lshlrev_b32 v28, 24, v28")
    A("v_cmp_ne_u32 vcc, 0, v28")
    for k in range(16): A(f"v_or_b32 v{VA+k}, 0x80, v{VA+k}")
    sumN(4, VA, 16)
    spin_tail(g, "L_wo_p", "L_wo_ok", TSL)
    A("v_cvt_pk_bf16_f32 v8, v16, v17")
    A("v_cvt_pk_bf16_f32 v9, v18, v19")
    g.stamp(7)
    A(f"ds_write_b64 v12, v[8:9] offset:{L_ACT}")
    hsync(g, 10)
    gemv(g, 16, 14, 8)
    for i in range(4): A(f"v_bfi_b32 v{8+i}, v36, s{TB+i}, v{8+i}")
    for x in EX8: A(x)
    A("global_store_dwordx4 v13, v[8:11], s[42:43] sc1")
    A("s_mov_b64 exec, -1")
    g.stamp(2)
    A("s_branch L_fin")

    PG = VA + 32
    def pre_gather(offs):
        n = len(offs)
        l = g.uniq("pg"); e = g.uniq("pge")
        A("global_load_dwordx2 v[8:9], v37, s[16:17]")
        A("s_mov_b32 s70, 0")
        g.lab(l)
        for i, o in enumerate(offs):
            if -4096 <= o < 4096: A(f"global_load_dwordx4 {vr(PG+4*i,4)}, v39, s[42:43] offset:{o} sc1")
            else:
                A(f"v_add_u32 v3, {o}, v39")
                A(f"global_load_dwordx4 {vr(PG+4*i,4)}, v3, s[42:43] sc1")
        A("s_waitcnt vmcnt(0)")
        A("s_mov_b64 vcc, 0")
        for i in range(2 * n):
            A(f"v_cmp_ne_u32 s[68:69], s{ST}, v{PG+1+2*i}")
            A("s_or_b64 vcc, vcc, s[68:69]")
        spin_tail(g, l, e, 8)
    adr = [15, 4, 6, 36]
    def ap_addrs():
        for p in range(1, 4): A(f"v_add_u32 v{adr[p]}, {8192*p}, v15")
    def ap_load(i): A(f"global_load_dwordx4 {vr(VA+4*i,4)}, v{adr[i>>1]}, s[42:43] offset:{-4096 if i % 2 == 0 else 0} sc1")

    g.lab("L_t_f1")
    tr_reads(g, 16, 1024, 512)
    ap_addrs()
    pre_gather([-4096, 0, 4096])
    unpack4(g, 16, 8)
    unpack4(g, 20, PG, 2)
    unpack4(g, 28, PG+8, 2)
    for i in range(4): A(f"v_add_f32 v{28+i}, 1.0, v{28+i}")
    A("v_cvt_pk_bf16_f32 v8, v28, v29"); A("v_cvt_pk_bf16_f32 v9, v30, v31")
    A(f"v_mov_b32 v{PG+5}, v{PG+6}")
    A(f"ds_write_b64 v12, v[8:9] offset:{L_ACT+2*ACT_BS}")
    A(f"ds_write_b64 v12, {vr(PG+4,2)} offset:{L_ACT+4*ACT_BS}")
    for i in range(4): rnd(g, 28+i)
    for i in range(4): A(f"v_mul_f32 v{24+i}, v{20+i}, v{28+i}")
    for i in range(4): A(f"v_mul_f32 v{28+i}, v{16+i}, v{28+i}")
    A("s_waitcnt lgkmcnt(0)")
    after(opts.get("a1", 8))
    g.stamp(9)
    S = VA + 32
    A("s_mov_b32 s70, 0")
    A("s_mov_b32 s71, 15")
    def ap_check():
        for k in range(32): A(f"v_xor_b32 v{S+k}, s{TB+k%4}, v{VA+k}")
        for p in range(4): A(f"v_or3_b32 v{8+p}, v{S+8*p}, v{S+8*p+1}, v{S+8*p+2}")
        for p in range(4): A(f"v_or3_b32 v{8+p}, v{8+p}, v{S+8*p+3}, v{S+8*p+4}")
        for p in range(4): A(f"v_or3_b32 v{8+p}, v{8+p}, v{S+8*p+5}, v{S+8*p+6}")
        for p in range(4): A(f"v_or_b32 v{8+p}, v{8+p}, v{S+8*p+7}")
        A("v_or3_b32 v3, v8, v9, v10")
        A("v_or_b32 v3, v3, v11")
        A("v_lshlrev_b32 v3, 24, v3")
        A("v_cmp_ne_u32 vcc, 0, v3")
    g.lab("L_f1_p")
    if TSL: A(f"s_sleep {TSL}")
    A("s_add_u32 s70, s70, 1")
    A(f"s_cmp_ge_u32 s70, {SPIN_MAX}")
    A("s_cbranch_scc1 L_f1_ok")
    for p in range(4):
        l = g.uniq("fl")
        A(f"s_bitcmp1_b32 s71, {p}"); A(f"s_cbranch_scc0 {l}")
        ap_load(2*p); ap_load(2*p+1)
        g.lab(l)
    A("s_waitcnt vmcnt(0)")
    for p in range(4):
        l = g.uniq("fc")
        A(f"s_bitcmp1_b32 s71, {p}"); A(f"s_cbranch_scc0 {l}")
        B_ = VA + 8 * p
        for k in range(8): A(f"v_xor_b32 v{B_+k}, s{TB+k%4}, v{B_+k}")
        A(f"v_or3_b32 v8, v{B_}, v{B_+1}, v{B_+2}")
        A(f"v_or3_b32 v9, v{B_+3}, v{B_+4}, v{B_+5}")
        A(f"v_or3_b32 v8, v8, v{B_+6}, v{B_+7}")
        for h in range(2): A(f"v_pk_add_f32 {vr(S+8*p+2*h,2)}, {vr(B_+2*h,2)}, {vr(B_+4+2*h,2)}")
        A("v_or_b32 v8, v8, v9")
        A("v_lshlrev_b32 v8, 24, v8")
        A("v_cmp_ne_u32 vcc, 0, v8")
        A("s_cmp_lg_u64 vcc, 0"); A(f"s_cbranch_scc1 {l}")
        A(f"s_bitset0_b32 s71, {p}")
        g.lab(l)
    A("s_cmp_lg_u32 s71, 0")
    A("s_cbranch_scc1 L_f1_p")
    g.lab("L_f1_ok")
    sum8q(S)
    g.stamp(7)
    for h in range(2): A(f"v_pk_fma_f32 {vr(8+2*h,2)}, {vr(S+2*h,2)}, {vr(24+2*h,2)}, {vr(28+2*h,2)}")
    A("v_cvt_pk_bf16_f32 v8, v8, v9")
    A("v_cvt_pk_bf16_f32 v9, v10, v11")
    A(f"ds_write_b64 v12, v[8:9] offset:{L_ACT}")
    for h in range(2): A(f"v_pk_fma_f32 {vr(16+2*h,2)}, {vr(S+2*h,2)}, {vr(20+2*h,2)}, {vr(16+2*h,2)}")
    ln_partial(g, 16)
    hsync(g, 10)
    DF = 32
    A(f"ds_read_b128 v[20:23], v7 offset:{L_RED}")
    A(f"ds_read_b128 v[24:27], v7 offset:{L_RED+16}")
    gemv(g, 16, 14, DF)
    A("v_lshrrev_b32 v3, 4, v1")
    A("v_bfe_u32 v28, v1, 2, 2")
    A("v_lshl_add_u32 v28, v3, 3, v28")
    A(f"v_mul_u32_u24 v28, {W2S}, v28")
    A("v_and_b32 v29, 3, v1")
    A("v_lshl_add_u32 v28, v29, 3, v28")
    A("s_lshl_b32 s49, s5, 8"); A(f"s_add_u32 s49, s49, {L_W2}")
    A("v_add_u32 v28, s49, v28")
    for c in range(7):
        for h in range(2): A(f"ds_read_b64_tr_b16 {vr(VA+32+4*c+2*h,2)}, v28 offset:{32*c+4*h*W2S}")
    A("v_and_b32 v29, 1, v1")
    A("v_lshlrev_b32 v29, 6, v29")
    A("v_lshl_add_u32 v30, v3, 4, v29")
    A("v_bfe_u32 v3, v1, 4, 1")
    A("v_lshl_add_u32 v29, v3, 3, v29")
    A("v_lshrrev_b32 v3, 5, v1")
    A("v_lshl_add_u32 v29, v3, 2, v29")
    A("s_lshl_b32 s49, s5, 4")
    A("v_add_u32 v29, s49, v29")
    A("v_pk_add_f32 v[20:21], v[20:21], v[22:23]"); A("v_pk_add_f32 v[24:25], v[24:25], v[26:27]")
    A("v_pk_add_f32 v[20:21], v[20:21], v[24:25]")
    A(f"v_mul_f32 v20, 0x{f2u(-1/512):08x}, v20"); A(f"v_mul_f32 v21, 0x{f2u(1/512):08x}, v21")
    A("v_fma_f32 v21, -v20, v20, v21"); A("v_max_f32 v21, 0, v21"); A(f"v_add_f32 v21, 0x{EPS:08x}, v21"); A("v_rsq_f32 v21, v21")
    for i in range(4): A(f"v_fmac_f32_dpp v{DF+i}, v{DF+i}, v20 row_shl:2 row_mask:0xf bank_mask:0x1")
    for i in range(4): A(f"v_mul_f32 v{8+i}, v{DF+i}, v21")
    for i in range(4): A(f"v_add_f32_dpp v{8+i}, v{DF+i}, v{8+i} row_shl:4 row_mask:0xf bank_mask:0xf")
    A("s_nop 1")
    A("v_permlane32_swap_b32 v8, v10")
    A("v_permlane32_swap_b32 v9, v11")
    for i in range(2): A(f"v_mul_f32 v{20+i}, 0x{LOG2E ^ 0x80000000:08x}, v{8+i}")
    for i in range(2): A(f"v_exp_f32 v{20+i}, v{20+i}")
    for i in range(2): A(f"v_mul_f32 v{8+i}, v{8+i}, v{10+i}")
    for i in range(2): A(f"v_add_f32 v{20+i}, 1.0, v{20+i}")
    for i in range(2): A(f"v_rcp_f32 v{20+i}, v{20+i}")
    for x in EX8: A(x)
    for i in range(2): A(f"v_mul_f32 v{8+i}, v{8+i}, v{20+i}")
    A("v_cvt_pk_bf16_f32 v8, v8, v9")
    A(f"ds_write_b32 v29, v8 offset:{L_HH}")
    A("s_mov_b64 exec, -1")
    A("s_waitcnt lgkmcnt(0)")
    for h in range(2): A(f"ds_read_b64_tr_b16 {vr(VA+60+2*h,2)}, v28 offset:{32*7+4*h*W2S}")
    hsync(g, 10)
    A(f"ds_read_b128 v[20:23], v30 offset:{L_HH}")
    A("v_mov_b32 v3, 0xff")
    A("s_waitcnt lgkmcnt(0)")
    for c in range(8): A(f"v_mfma_f32_16x16x32_bf16 {vr(VA+4*c,4)}, {vr(VA+32+4*c,4)}, v[20:23], 0")
    A("s_nop 0")
    for c in range(8):
        A(f"s_mov_b32 exec_lo, 0x{0x00030003 << 2*c:08x}"); A("s_mov_b32 exec_hi, exec_lo")
        for i in range(4): A(f"v_bfi_b32 v{8+i}, v3, s{TB+i}, v{VA+4*c+i}")
    A("s_mov_b64 exec, -1")
    A("global_store_dwordx4 v13, v[8:11], s[42:43] sc1")
    g.stamp(2)
    A("s_branch L_fin")

    g.lab("L_t_f2")
    A("s_cmp_lg_u32 s5, 1"); A("s_cbranch_scc1 L_fin")
    pre_gather([-4096, 8192])
    unpack4(g, 16, 8)
    unpack4(g, 20, PG, 2)
    unpack4(g, 24, PG+4, 2)
    g.stamp(9)
    def src_sum(r):
        A("s_nop 1")
        for i in range(4): A(f"v_add_f32_dpp v{r+i}, v{r+i}, v{r+i} row_ror:8 row_mask:0xf bank_mask:0xf")
        for sw in ("v_permlane16_swap_b32", "v_permlane32_swap_b32"):
            for i in range(4): A(f"v_mov_b32 v{r+4+i}, v{r+i}")
            for i in range(4): A(f"{sw} v{r+4+i}, v{r+i}")
            for i in range(4): A(f"v_add_f32 v{r+i}, v{r+i}, v{r+4+i}")
    A("s_mov_b32 s70, 0")
    g.lab("L_f2_a")
    A(f"global_load_dwordx4 {vr(S,4)}, v15, s[42:43] sc1")
    A("s_waitcnt vmcnt(0)")
    for k in range(4): A(f"v_xor_b32 v{S+k}, s{TB+k}, v{S+k}")
    A(f"v_or3_b32 v3, v{S}, v{S+1}, v{S+2}")
    A(f"v_or_b32 v3, v3, v{S+3}")
    A("v_lshlrev_b32 v3, 24, v3")
    A("v_cmp_ne_u32 vcc, 0, v3")
    spin_tail(g, "L_f2_a", "L_f2_ad", 8)
    src_sum(S)
    x1_from(S)
    for j in range(6): A(f"v_add_u32 v{28+j}, {WS_FP-WS_AP+32768*j}, v15")
    A("s_mov_b32 s70, 0")
    g.lab("L_f2_p")
    for i in range(4): A(f"v_mov_b32 v{VA+20+i}, s{TB+i}")
    for j in range(6):
        if j == 5: A("s_mov_b64 exec, 0xffffff")
        A(f"global_load_dwordx4 {vr(VA+4*j,4)}, v{28+j}, s[42:43] sc1")
    A("s_mov_b64 exec, -1")
    for k in range(24):
        if k % 4 == 0: A(f"s_waitcnt vmcnt({5-k//4})")
        A(f"v_xor_b32 v{VA+k}, s{TB+k%4}, v{VA+k}")
    for k in range(4): A(f"v_or3_b32 v{8+k}, v{VA+6*k}, v{VA+6*k+1}, v{VA+6*k+2}")
    for k in range(4): A(f"v_or3_b32 v{8+k}, v{8+k}, v{VA+6*k+3}, v{VA+6*k+4}")
    for k in range(4): A(f"v_or_b32 v{8+k}, v{8+k}, v{VA+6*k+5}")
    A("v_or3_b32 v3, v8, v9, v10")
    A("v_or_b32 v3, v3, v11")
    A("v_lshlrev_b32 v3, 24, v3")
    A("v_cmp_ne_u32 vcc, 0, v3")
    spin_tail(g, "L_f2_p", "L_f2_ok", TSL)
    g.stamp(7)
    for p in range(3):
        for h in range(2): A(f"v_pk_add_f32 {vr(VA+8*p+2*h,2)}, {vr(VA+8*p+2*h,2)}, {vr(VA+8*p+4+2*h,2)}")
    for p in (1, 2):
        for h in range(2): A(f"v_pk_add_f32 {vr(VA+2*h,2)}, {vr(VA+2*h,2)}, {vr(VA+8*p+2*h,2)}")
    src_sum(VA)
    for i in range(4): rnd(g, VA+i)
    for i in range(4): A(f"v_mul_f32 v{VA+i}, v{VA+i}, v{24+i}")
    for i in range(4): rnd(g, VA+i)
    for i in range(4): A(f"v_add_f32 v{8+i}, v{VA+i}, v{16+i}")
    A("v_cvt_pk_bf16_f32 v8, v8, v9")
    A("v_cvt_pk_bf16_f32 v9, v10, v11")
    A("s_mov_b64 exec, 0xff")
    A("global_store_dwordx2 v37, v[8:9], s[38:39]" + ("" if opts.get("noosc") else " sc1"))
    A("s_mov_b64 exec, 1")
    A(f"v_mov_b32 v10, s{ST}")
    A("s_lshl_b32 s49, s61, 7"); A(f"s_add_u32 s49, s49, {WS_DN}")
    A("v_mov_b32 v11, s49")
    if not opts.get("nodn"): A("global_store_dword v11, v10, s[42:43] sc1")
    A("s_cmp_lg_u32 s61, 0")
    A("s_cbranch_scc1 L_f2_e")
    A(f"global_store_dword v38, v10, s[42:43] offset:{WS_E}")
    g.lab("L_f2_e")
    g.stamp(2)

    g.lab("L_fin")
    if opts.get("stamps"):
        A("s_waitcnt vmcnt(0)")
        g.stamp(8)
        dump_all(g, [SLOC, SLOC])
    g.lab("L_end")
    A("s_endpgm")
    g.L.append(".p2align 7")
    g.lab("L_table")
    for w in range(0, 256, 4):
        A(".long " + ", ".join(f"0x{r | (m3(w+i) << 3) | (t << 8) | (vbias(w+i) << 16):08x}, 0x{dep(w+i):08x}" for i, (r, t) in enumerate(RM[w:w+4])))
    g.L.append(f'''.section .rodata,"a"
.p2align 6
.amdhsa_kernel {KNAME}
  .amdhsa_next_free_vgpr 168
  .amdhsa_next_free_sgpr 102
  .amdhsa_accum_offset 168
  .amdhsa_group_segment_fixed_size 0
  .amdhsa_kernarg_size 112
  .amdhsa_user_sgpr_count 2
  .amdhsa_user_sgpr_kernarg_segment_ptr 1
  .amdhsa_system_sgpr_workgroup_id_x 1
.end_amdhsa_kernel''')
    opts["_cls"] = [cls(w) for w in range(256)]; opts["_def"] = DEF
    return "\n".join(g.L) + "\n"

if __name__ == "__main__":
    import os
    here = os.path.dirname(os.path.abspath(__file__))
    opts = {"ref": os.path.join(here, "..", KNAME[:-7] + ".s.ref")}
    out = sys.argv[1]
    for kv in sys.argv[2:]:
        k, v = kv.split("=")
        try: v = int(v)
        except ValueError:
            try: v = float(v)
            except ValueError: pass
        opts[k] = v
    open(out, "w").write(gen(opts))
```

```python
import sys, struct

KNAME = "adaLN_cond__sliding_block_cached__glu_gated_swiglu__decode_kernel"

def f2u(x): return struct.unpack("<I", struct.pack("<f", x))[0]
LOG2E = f2u(1.4426950408889634)
SCALE = f2u(128 ** -0.5)
EPS = f2u(1e-5)
ZERO_GAP = 93.0

WS_E   = 0x00000
WS_HDR = 0x00400
WS_DN  = 0x07000
WS_MOD = 0x01000
WS_Q   = 0x08000
WS_S1  = 0x10000
WS_S2  = 0x18000
WS_OP  = 0x20000
WS_AP  = 0x40000
WS_FP  = 0x48000
WS_OQ  = 0x80000
WS_MA  = 0xe0000
R2     = WS_OQ - WS_OP
WS_STAMP = 0x100000
ACT_BS = 1056
L_ACT = 0
L_QV  = L_ACT + 6400
L_ML  = L_QV + 256
L_GO  = L_ML + 4
L_PG  = L_ML + 8
L_SCN = L_ML + 16
L_MX  = L_ML + 20
L_ECN = L_ML + 24
L_E0  = L_ML + 28
L_E1  = L_ML + 80
L_RM  = L_ML + 32
L_SN  = L_ML + 48
L_TK  = L_ML + 52
L_LOC = L_ML + 56
L_CNT = L_ML + 64
NS_   = 10
L_S8  = L_CNT + 64
L_S4  = L_S8 + 64
L_ST  = L_S4 + 64
L_RED = L_ST + 512
L_OP  = L_RED + 512
L_OP1 = L_OP + 512 * NS_
L_WT  = 18432
L_VX  = L_WT + 65536
L_W2  = L_VX + NS_ * 2048
W2S   = 1024 + 32
L_HZ  = L_W2 + 32 * W2S
L_HH  = L_HZ + 7 * 128
LDS_BYTES = L_HZ + 2048
assert L_OP + 12288 <= L_WT + 2048 and L_OP1 + 512 * NS_ <= L_WT and L_S8 % 16 == 0 and L_ST % 16 == 0 and L_OP % 16 == 0

C_NONE, C_WO, C_F1, C_F2, C_MODB, C_MODA, C_Q = 0, 1, 2, 3, 4, 5, 6
X3 = [0, 2, 6, 4, 1, 7]
def role_map(two):
    R = [None] * 256; host = {}
    nf = nl = 0
    for x in range(8):
        for idx in range(20):
            w = 8 * idx + x
            if idx < 8: R[w] = (C_Q, 8 * x + idx)
            elif idx < 16: R[w] = (C_WO, idx - 8)
            else: R[w] = (C_MODA if idx < 18 else C_MODB, 8 * (idx - 16) + ((x + 3 - X3[idx - 16]) & 7))
        pat = "BFFL" "FLFL" "BFFL" if x in (3, 5, 6) else "BBFL" "FLFL" "FLFL"
        row = 4; light = []
        for i, c in enumerate(pat):
            w = 8 * (20 + i) + x
            if c == "B": R[w] = (C_MODB, 8 * row + ((x + 3 - X3[row]) & 7)); row += 1
            elif c == "F":
                R[w] = (C_F1, nf); nf += 1
                j = pat.index("L", i)
                host.setdefault(8 * (20 + j) + x, []).append((i & 3, 7))
            else: light.append(w)
        for k, w in enumerate(light): R[w] = (C_F2, 4 * x + k) if k < 4 else (C_NONE, 0)
    for c, n in ((C_MODA, range(16)), (C_MODB, range(16, 48)), (C_F1, range(43)), (C_F2, range(32)), (C_Q, range(64))):
        assert sorted(t for r, t in R if r == c) == list(n), c
    if two:
        for h in host.values():
            if len(h) == 1: h.append((h[0][0], 6))
    return R, host
SPIN_MAX = 1 << 18
ST, SLOC, SXCC = 74, 75, 76

NOTES = {
    "L_stream": "streaming waves: K (1 KB per load, bounded number in flight), then the V rows of the keys on the row list",
    "L_work": "background work of a streaming wave between two K loads: fetch q, first half of the scores, first row list",
    "L_ks": "one K step: background work, then wait until few enough loads are in flight",
    "L_vs": "one V step",
    "L_x1": "second half of the scores, max / sum of this wave, the rows near the top first, more rows for the list",
    "L_snap": "the rows near the top give the preliminary partial output",
    "L_hand": "list used up: with the true row max, add every remaining key whose weight is not exactly zero",
    "L_epi": "all rows consumed: reduce over the lanes, leave the final partial output in LDS",
    "L_away": "this wave's keys are streamed by a sibling workgroup; it only fetches its piece of q",
    "L_slow": "fallback: everything behind the attention again, from the final outputs, by this wave alone",
    "L_helper": "helper waves: LDS set-up, launch tag, role dispatch",
    "L_r_moda": "role MODA: shift/scale columns of silu(c) @ w_mod",
    "L_r_q": "role Q: LayerNorm + modulation + 64 columns of h @ wq",
    "L_r_modb": "role MODB: the other modulation columns (weights fetched in the background)",
    "L_r_wo": "role WO: 512 x 64 tile of wo",
    "L_r_f1": "role F1: 32 columns of w1 and w3 and their 32 rows of w2",
    "L_r_f2": "role F2: 16 output columns (also pulls this group's slow-loading tiles into L2)",
    "L_svc": "wave 0 publishes this split's first-half max, wave 3 collects those of the other three splits",
    "L_mid": "idle-time preparation",
    "L_svd": "wave 0 publishes this split's max / sum and the preliminary output, wave 3 collects the other splits' max / sum",
    "L_t_wo": "WO: gather the group's partial outputs, project, publish",
    "L_t_f1": "F1: residual, LayerNorm (applied after the product), gate/up, SwiGLU, partial down projection, publish",
    "L_t_f2": "F2: residuals, sum of the down-projection partials, output; advances the epoch word",
    "L_table": "per workgroup: role | slow tile row << 3 | tile << 8 | depth bias << 16; waves; switch step | depths (1/256)",
}
class G:
    def __init__(s, opts):
        s.L = []; s.o = opts; s.n = 0
    def A(s, t): s.L.append("  " + t)
    def lab(s, t):
        if t in NOTES: s.L.append("; ---- " + NOTES[t])
        s.L.append(t + ":")
    def C(s, t): s.L.append("; ---- " + t)
    def uniq(s, p): s.n += 1; return f"L_{p}_{s.n}"
    def stamp(s, idx, lvl=1):
        m = s.o.get("stamps", 0)
        if m == 3 and lvl != 3 and idx not in (6,): return
        if m and (m == lvl or (idx in (0, 6, 8) and lvl == 1)):
            s.A(f"s_memrealtime s[{80+2*idx}:{81+2*idx}]")

def vr(a, n): return f"v[{a}:{a+n-1}]"
def rnd(g, d, s=None): g.A(f"v_cvt_pk_bf16_f32 v{d}, 0, v{s if s is not None else d}")

def spin_tail(g, l, e, sleep, mult=1):
    A = g.A
    A("s_cmp_eq_u64 vcc, 0")
    A(f"s_cbranch_scc1 {e}")
    if sleep: A(f"s_sleep {sleep}")
    A("s_add_u32 s70, s70, 1")
    A(f"s_cmp_lt_u32 s70, {SPIN_MAX*mult}")
    A(f"s_cbranch_scc1 {l}")
    g.lab(e)

def chk_sentinel(g, regs, tmp):
    A = g.A
    rs = list(regs)
    if len(rs) == 1:
        A(f"v_cmp_eq_u32 vcc, -1, v{rs[0]}")
        return
    if len(rs) == 2:
        A(f"v_max_u32 v{tmp}, v{rs[0]}, v{rs[1]}"); rs = []
    else:
        A(f"v_max3_u32 v{tmp}, v{rs[0]}, v{rs[1]}, v{rs[2]}"); rs = rs[3:]
    while len(rs) >= 2:
        A(f"v_max3_u32 v{tmp}, v{tmp}, v{rs[0]}, v{rs[1]}"); rs = rs[2:]
    if rs: A(f"v_max_u32 v{tmp}, v{tmp}, v{rs[0]}")
    A(f"v_cmp_eq_u32 vcc, -1, v{tmp}")

def poll_lds(g, loads, regs, tmp, sleep):
    A = g.A
    l = g.uniq("pl"); e = g.uniq("pld")
    A("s_mov_b32 s70, 0")
    g.lab(l)
    for x in loads: A(x)
    A("s_waitcnt lgkmcnt(0)")
    chk_sentinel(g, regs, tmp)
    spin_tail(g, l, e, sleep, 4)

def wait_cnt(g, load, reg, target, sleep, mask=None):
    A = g.A
    l = g.uniq("sn"); e = g.uniq("snd")
    A("s_mov_b32 s70, 0")
    g.lab(l)
    A(load)
    A("s_waitcnt lgkmcnt(0)")
    if mask: A(f"v_and_b32 v{reg}, 0x{mask:x}, v{reg}")
    A(f"v_cmp_gt_u32 vcc, 0x{target:x}, v{reg}")
    spin_tail(g, l, e, sleep, 8)

def pub_local(g, ins):
    A = g.A
    l = g.uniq("pf"); e = g.uniq("pe")
    A(f"s_cmp_eq_u32 s{SLOC}, 2")
    A(f"s_cbranch_scc0 {l}")
    A(ins)
    A(f"s_branch {e}")
    g.lab(l)
    A(ins + " sc1")
    g.lab(e)

def hs_signal(g, vt2):
    A = g.A
    A(f"v_mov_b32 v{vt2}, 1")
    A("s_mov_b64 exec, 1")
    A(f"ds_add_u32 v38, v{vt2} offset:{L_CNT}")
    A("s_mov_b64 exec, -1")
def hs_wait(g, target, vt2, sleep=1):
    wait_cnt(g, f"ds_read_b32 v{vt2}, v38 offset:{L_CNT}", vt2, target, sleep)

STG = 77
def hsync(g, vt):
    A = g.A
    l = g.uniq("hy"); e = g.uniq("hyd")
    A(f"s_add_u32 s{STG}, s{STG}, 4")
    hs_signal(g, vt)
    A("s_mov_b32 s70, 0")
    g.lab(l)
    A(f"ds_read_b32 v{vt}, v38 offset:{L_CNT}")
    A("s_waitcnt lgkmcnt(0)")
    A(f"v_cmp_gt_u32 vcc, s{STG}, v{vt}")
    spin_tail(g, l, e, 0, 8)

OPA = 2 * NS_ + 12
def op_publish(g, lds, R, zero, off, local):
    A = g.A
    SCB = R + 2 * NS_; AD = R + OPA
    A(f"v_lshlrev_b32 v{AD}, 3, v1")
    if local: A(f"ds_read_b32 v{AD+3}, v{zero} offset:{L_LOC}")
    for i in range(3): A(f"ds_read_b128 {vr(SCB+4*i,4)}, v{zero} offset:{L_S8+16*i}")
    for i in range(NS_): A(f"ds_read_b64 {vr(R+2*i,2)}, v{AD} offset:{lds+512*i}")
    A("s_lshl_b32 s68, s6, 2"); A("s_add_u32 s68, s68, s7")
    A("s_lshl_b32 s68, s68, 9"); A(f"s_add_u32 s68, s68, {WS_OP+off}")
    A(f"v_add_u32 v{AD}, s68, v{AD}")
    A(f"v_and_b32 v{AD+1}, 1, v1")
    A(f"v_lshlrev_b32 v{AD+1}, 4, v{AD+1}")
    A(f"v_lshrrev_b32 v{AD+1}, v{AD+1}, s{ST}")
    A(f"v_lshrrev_b32 v{AD+2}, 8, v{AD+1}")
    A("s_movk_i32 s69, 0xff")
    def sel(i): return f"op_sel:[0,{i&1},0] op_sel_hi:[1,{i&1},1]"
    for i in range(NS_):
        A(f"s_waitcnt lgkmcnt({NS_-1-i})")
        sp = vr(SCB + (i & ~1), 2); acc = vr(R + 2*(i & 1), 2)
        if i < 2: A(f"v_pk_mul_f32 {acc}, {vr(R+2*i,2)}, {sp} op_sel:[0,{i&1}] op_sel_hi:[1,{i&1}]")
        else: A(f"v_pk_fma_f32 {acc}, {vr(R+2*i,2)}, {sp}, {acc} {sel(i)}")
        if i == 0 and local: A(f"v_readfirstlane_b32 s{SLOC}, v{AD+3}")
    A(f"v_pk_add_f32 {vr(R,2)}, {vr(R,2)}, {vr(R+2,2)}")
    A(f"v_bfi_b32 v{R}, s69, v{AD+1}, v{R}")
    A(f"v_bfi_b32 v{R+1}, s69, v{AD+2}, v{R+1}")
    if local: pub_local(g, f"global_store_dwordx2 v{AD}, {vr(R,2)}, s[42:43]")
    else: A(f"global_store_dwordx2 v{AD}, {vr(R,2)}, s[42:43] sc1")

def dma_loop(g, n, step, flags, pace=0, lstep=1024):
    A = g.A
    l = g.uniq("dma"); e = g.uniq("dmae")
    if isinstance(n, int):
        A(f"s_add_u32 s51, s50, {n*lstep}")
    else:
        A(f"s_add_u32 s51, s50, {n}")
        A("s_cmp_lt_u32 s50, s51")
        A(f"s_cbranch_scc0 {e}")
    g.lab(l)
    A("s_mov_b32 m0, s50")
    A(f"s_add_u32 s50, s50, {lstep}")
    if not (g.o.get("nodma") and pace): A(f"buffer_load_dwordx4 v2, s[44:47], s49 offen {flags} lds")
    A(f"s_add_u32 s49, s49, {step}")
    if pace: A(f"s_waitcnt vmcnt({pace-1})")
    A("s_cmp_lt_u32 s50, s51")
    A(f"s_cbranch_scc1 {l}")
    g.lab(e)

VW, VA = 40, 104

def srd(g, d, base, nbytes):
    A = g.A
    A(f"s_mov_b32 s{d}, s{base}")
    A(f"s_mov_b32 s{d+1}, s{base+1}")
    A(f"s_mov_b32 s{d+2}, {nbytes}")
    A(f"s_mov_b32 s{d+3}, 0x20000")

def dma_tile64(g, stride, flags, pace=0):
    A = g.A
    A("v_lshrrev_b32 v2, 3, v1")
    A("v_and_b32 v3, 6, v2")
    A("v_xor_b32 v3, v3, v1")
    A(f"v_mul_u32_u24 v2, {stride}, v2")
    A("v_and_b32 v3, 7, v3")
    A("v_lshl_add_u32 v2, v3, 4, v2")
    if pace:
        A(f"s_mul_i32 s49, s53, {256*stride}")
        A("s_lshl_b32 s50, s53, 15")
    else:
        A(f"s_mul_i32 s49, s5, {128*stride}")
        A("s_lshl_b32 s50, s5, 14")
    A("s_add_u32 s49, s49, s48")
    A(f"s_add_u32 s50, s50, {L_WT}")
    dma_loop(g, 32 if pace else 16, 8*stride, flags, pace)

def tr64_addr(g):
    A = g.A
    A("v_lshrrev_b32 v2, 2, v1")
    A("v_bfe_u32 v3, v1, 1, 1")
    A("s_lshl_b32 s49, s5, 1")
    A("v_or_b32 v3, s49, v3")
    A("v_and_b32 v10, 6, v2")
    A("v_xor_b32 v3, v3, v10")
    A("v_lshlrev_b32 v2, 7, v2")
    A("v_lshl_add_u32 v2, v3, 4, v2")
    A("v_and_b32 v3, 1, v1")
    A("v_lshl_add_u32 v2, v3, 3, v2")
    A(f"v_add_u32 v2, {L_WT}, v2")
def tr_reads(g, nk, mstep, hstep):
    A = g.A
    for m in range(nk):
        for h in range(2):
            A(f"ds_read_b64_tr_b16 {vr(VW+4*m+2*h,2)}, v2 offset:{m*mstep+h*hstep}")
        if m >= 5: A("s_waitcnt lgkmcnt(10)")
    A("s_waitcnt lgkmcnt(0)")
def tr_tile64(g):
    tr64_addr(g)
    tr_reads(g, 16, 4096, 2048)
def gemv_fused(g, vaddr, D):
    A = g.A
    def rd(m):
        for h in range(2):
            A(f"ds_read_b64_tr_b16 {vr(VW+4*m+2*h,2)}, v2 offset:{m*4096+h*2048}")
        A(f"ds_read_b128 {vr(VA+4*m,4)}, v{vaddr} offset:{64*m}")
    for m in range(5): rd(m)
    for m in range(16):
        A(f"s_waitcnt lgkmcnt({3*(min(m+5,16)-m-1)})")
        c = "0" if m == 0 else vr(D, 4)
        A(f"v_mfma_f32_16x16x32_bf16 {vr(D,4)}, {vr(VW+4*m,4)}, {vr(VA+4*m,4)}, {c}")
        if m + 5 < 16: rd(m + 5)
    A("s_nop 7")

def batch_reduce2(g, va, vb, ta, tb):
    A = g.A
    A("s_nop 0")
    for m in ("quad_perm:[1,0,3,2]", "quad_perm:[2,3,0,1]", "row_ror:8"):
        A(f"v_add_f32_dpp v{va}, v{va}, v{va} {m} row_mask:0xf bank_mask:0xf")
        A(f"v_add_f32_dpp v{vb}, v{vb}, v{vb} {m} row_mask:0xf bank_mask:0xf")
        A("s_nop 0")
    for sw in ("v_permlane16_swap_b32", "v_permlane32_swap_b32"):
        A(f"v_mov_b32 v{ta}, v{va}")
        A(f"v_mov_b32 v{tb}, v{vb}")
        A("s_nop 0")
        A(f"{sw} v{ta}, v{va}")
        A(f"{sw} v{tb}, v{vb}")
        A(f"v_add_f32 v{va}, v{va}, v{ta}")
        A(f"v_add_f32 v{vb}, v{vb}, v{tb}")

def ln_partial(g, x):
    A = g.A
    A(f"v_add_f32 v8, v{x}, v{x+1}"); A(f"v_mul_f32 v9, v{x}, v{x}")
    A(f"v_add_f32 v10, v{x+2}, v{x+3}"); A(f"v_mul_f32 v11, v{x+2}, v{x+2}")
    A(f"v_fmac_f32 v9, v{x+1}, v{x+1}"); A(f"v_fmac_f32 v11, v{x+3}, v{x+3}")
    A("v_add_f32 v8, v8, v10"); A("v_add_f32 v9, v9, v11")
    batch_reduce2(g, 8, 9, 10, 11)
    A("ds_write_b64 v5, v[8:9]")
def ln_apply(g, x, t):
    A = g.A
    A(f"ds_read_b128 {vr(t,4)}, v6")
    A(f"ds_read_b128 {vr(t+4,4)}, v6 offset:16")
    A("s_waitcnt lgkmcnt(0)")
    A(f"v_pk_add_f32 {vr(t,2)}, {vr(t,2)}, {vr(t+2,2)}")
    A(f"v_pk_add_f32 {vr(t+4,2)}, {vr(t+4,2)}, {vr(t+6,2)}")
    A(f"v_pk_add_f32 {vr(t,2)}, {vr(t,2)}, {vr(t+4,2)}")
    A(f"v_mul_f32 v8, 0x{f2u(1/512):08x}, v{t}")
    A(f"v_mul_f32 v9, 0x{f2u(1/512):08x}, v{t+1}")
    A("v_fma_f32 v9, -v8, v8, v9")
    rnd(g, 8)
    A("v_max_f32 v9, 0, v9")
    rnd(g, 9)
    for i in range(2): A(f"v_sub_f32 v{x+i}, v{x+i}, v8")
    A(f"v_add_f32 v9, 0x{EPS:08x}, v9")
    for i in range(2, 4): A(f"v_sub_f32 v{x+i}, v{x+i}, v8")
    rnd(g, 9)
    rnd(g, x)
    A("v_sqrt_f32 v9, v9")
    rnd(g, x+1)
    rnd(g, 9)
    rnd(g, x+2)
    A("v_rcp_f32 v9, v9")
    rnd(g, x+3)
    for i in range(4): A(f"v_mul_f32 v{x+i}, v{x+i}, v9")
    for i in range(4): rnd(g, x+i)

def act_addr(g, v, base, bstride):
    A = g.A
    A(f"v_and_b32 v{v}, 1, v1")
    A(f"v_mul_u32_u24 v{v}, {bstride}, v{v}")
    A(f"v_lshrrev_b32 v3, 4, v1")
    A(f"v_lshl_add_u32 v{v}, v3, 4, v{v}")
    if base: A(f"v_add_u32 v{v}, {base}, v{v}")

def gemv(g, nk, vaddr, D, ring=16):
    A = g.A
    first = min(nk, 12, ring)
    for m in range(first):
        A(f"ds_read_b128 {vr(VA+4*m,4)}, v{vaddr} offset:{64*m}")
    issued = first
    for m in range(nk):
        A(f"s_waitcnt lgkmcnt({issued-m-1})")
        c = "0" if m == 0 else vr(D, 4)
        A(f"v_mfma_f32_16x16x32_bf16 {vr(D,4)}, {vr(VW+4*m,4)}, {vr(VA+4*(m%ring),4)}, {c}")
        if issued < nk and (ring >= nk or m >= 1):
            A(f"ds_read_b128 {vr(VA+4*(issued%ring),4)}, v{vaddr} offset:{64*issued}")
            issued += 1
    A("s_nop 7")

def guard(g, r): g.A(f"v_min_u32 v{r}, s72, v{r}")
def unpack2(g, d, s):
    g.A(f"v_lshlrev_b32 v{d}, 16, v{s}")
    g.A(f"v_and_b32 v{d+1}, s73, v{s}")
def unpack4(g, d, s, step=1):
    unpack2(g, d, s); unpack2(g, d+2, s+step)

def silu4(g, x, t):
    A = g.A
    for i in range(4): A(f"v_mul_f32 v{t+i}, 0x{LOG2E ^ 0x80000000:08x}, v{x+i}")
    for i in range(4): A(f"v_exp_f32 v{t+i}, v{t+i}")
    A("s_nop 0")
    for i in range(4): A(f"v_add_f32 v{t+i}, 1.0, v{t+i}")
    for i in range(4): A(f"v_rcp_f32 v{t+i}, v{t+i}")
    A("s_nop 0")
    for i in range(4): A(f"v_mul_f32 v{x+i}, v{x+i}, v{t+i}")

def make_tag(g):
    g.A(f"s_mul_i32 s{ST}, s{ST}, 0x9e3779b1")
    g.A(f"s_add_u32 s{ST}, s{ST}, 0x7f4a7c15")

EX8 = ["s_mov_b32 exec_lo, 0x00030003", "s_mov_b32 exec_hi, 0x00030003"]

def dump_all(g, extra):
    A = g.A
    A("s_mov_b64 exec, -1")
    A("s_mul_i32 s3, s2, 12"); A("s_add_u32 s3, s3, s5"); A("s_lshl_b32 s3, s3, 6")
    A(f"s_add_u32 s3, s3, {WS_STAMP}")
    A("v_lshl_add_u32 v2, v1, 2, s3")
    A("v_mov_b32 v3, 0")
    A("s_waitcnt lgkmcnt(0)")
    for i, x in enumerate([80+2*i for i in range(10)] + list(extra)): A(f"v_writelane_b32 v3, s{x}, {i}")
    A("s_mov_b64 exec, 0xffff")
    A("global_store_dword v2, v3, s[42:43]")

def late_steps(opts):
    return dict(w=opts.get("wdw", 0), b=opts.get("wdb", 0), f=opts.get("wd1", 0))

def fallback(g, head_sum, wave_red):
    A = g.A
    W, AC, AV = 40, 72, 88
    X1, GS = 104, 120
    g.lab("L_slow")
    A("s_load_dwordx16 s[16:31], s[0:1], 0")
    A("s_load_dwordx8 s[32:39], s[0:1], 64")
    A("v_and_b32 v2, 31, v1")
    A("v_lshlrev_b32 v2, 7, v2")
    A(f"v_add_u32 v2, {WS_DN}, v2")
    A("s_mov_b32 s70, 0")
    g.lab("L_sl_d")
    A("global_load_dword v3, v2, s[42:43] sc1")
    A("s_waitcnt vmcnt(0) lgkmcnt(0)")
    A(f"v_cmp_ne_u32 vcc, s{ST}, v3")
    spin_tail(g, "L_sl_d", "L_sl_dd", 8)
    A("v_lshlrev_b32 v2, 3, v1")
    A(f"v_add_u32 v2, {WS_OQ}, v2")
    A("v_lshlrev_b32 v0, 2, v1")
    A(f"v_add_u32 v0, {L_VX}, v0")
    A("s_mov_b32 s10, 0")
    g.lab("L_sl_h")
    A("s_mov_b32 s70, 0")
    g.lab("L_sl_hp")
    for i in range(4): A(f"global_load_dwordx2 {vr(W+2*i,2)}, v2, s[42:43] offset:{512*i} sc1")
    A("s_waitcnt vmcnt(0)")
    head_sum(W, W+8)
    spin_tail(g, "L_sl_hp", "L_sl_hd", 8)
    A(f"ds_write_b32 v0, v{W}")
    A("v_add_u32 v2, 2048, v2"); A("v_add_u32 v0, 256, v0")
    A("s_add_u32 s10, s10, 1"); A("s_cmp_lt_u32 s10, 64"); A("s_cbranch_scc1 L_sl_h")
    def call(base, nbytes, stride, nrows, act, bstride, col):
        A(f"s_mov_b32 s44, s{base}"); A(f"s_mov_b32 s45, s{base+1}"); A(f"s_mov_b32 s46, {nbytes}")
        A(f"s_mov_b32 s11, {stride}"); A(f"s_mov_b32 s12, {nrows*stride}")
        A(f"v_mov_b32 v4, {act}"); A(f"v_mov_b32 v5, {act+bstride}")
        A(f"v_lshlrev_b32 v2, 4, v1")
        if col: A(f"v_add_u32 v2, {col}, v2")
        A("s_call_b64 s[62:63], L_gv")
    def modrow(row, d):
        A("v_lshrrev_b32 v2, 1, v1"); A("v_lshlrev_b32 v2, 7, v2")
        A("v_and_b32 v3, 1, v1"); A("v_lshl_add_u32 v2, v3, 5, v2")
        A(f"v_add_u32 v2, {WS_MOD+4096*row}, v2")
        for b in range(2):
            for h in range(2): A(f"global_load_dwordx4 {vr(W+8*b+4*h,4)}, v2, s[42:43] offset:{64*b+16*h} sc1")
        A("s_waitcnt vmcnt(0)")
        for k in range(8): unpack2(g, d+2*k, W+2*k)
    def gated_add(row):
        modrow(row, AV)
        for i in range(16): rnd(g, AC+i)
        for i in range(16): A(f"v_mul_f32 v{AC+i}, v{AC+i}, v{AV+i}")
        for i in range(16): rnd(g, AC+i)
        for i in range(16): A(f"v_add_f32 v{X1+i}, v{X1+i}, v{AC+i}")
        for i in range(16): rnd(g, X1+i)
    def pack(d, s_):
        for k in range(8): A(f"v_cvt_pk_bf16_f32 v{d+k}, v{s_+2*k}, v{s_+2*k+1}")
    call(24, 4096*1024, 1024, 4096, L_VX, 8192, 0)
    A("v_lshlrev_b32 v0, 4, v1")
    for b in range(2): A(f"global_load_dwordx4 {vr(W+4*b,4)}, v0, s[16:17] offset:{1024*b}")
    A("s_waitcnt vmcnt(0)")
    for k in range(8): unpack2(g, X1+2*k, W+k)
    gated_add(2)
    for b in range(2):
        x = X1 + 8*b; y = AC + 8*b
        A(f"v_add_f32 v8, v{x}, v{x+1}")
        for i in range(2, 8): A(f"v_add_f32 v8, v8, v{x+i}")
        wave_red("v_add_f32", 8, 9)
        A(f"v_mul_f32 v8, 0x{f2u(1/512):08x}, v8")
        for i in range(8): A(f"v_sub_f32 v{y+i}, v{x+i}, v8")
        A(f"v_mul_f32 v10, v{y}, v{y}")
        for i in range(1, 8): A(f"v_fmac_f32 v10, v{y+i}, v{y+i}")
        wave_red("v_add_f32", 10, 9)
        A(f"v_mul_f32 v10, 0x{f2u(1/512):08x}, v10")
        rnd(g, 8); rnd(g, 10)
        A(f"v_add_f32 v10, 0x{EPS:08x}, v10")
        rnd(g, 10)
        A("v_sqrt_f32 v10, v10")
        for i in range(8): A(f"v_sub_f32 v{y+i}, v{x+i}, v8")
        rnd(g, 10)
        for i in range(8): rnd(g, y+i)
        A("v_rcp_f32 v10, v10")
        A("s_nop 0")
        for i in range(8): A(f"v_mul_f32 v{y+i}, v{y+i}, v10")
        for i in range(8): rnd(g, y+i)
    modrow(4, AV)
    for i in range(16): A(f"v_add_f32 v{AV+i}, 1.0, v{AV+i}")
    for i in range(16): rnd(g, AV+i)
    for i in range(16): A(f"v_mul_f32 v{AC+i}, v{AC+i}, v{AV+i}")
    for i in range(16): rnd(g, AC+i)
    modrow(3, AV)
    for i in range(16): A(f"v_add_f32 v{AC+i}, v{AC+i}, v{AV+i}")
    pack(W, AC)
    A(f"v_add_u32 v3, {L_VX}, v0")
    for b in range(2): A(f"ds_write_b128 v3, {vr(W+4*b,4)} offset:{1024*b}")
    HB = L_VX + 2048
    for p in range(3):
        call(28, 512*2752, 2752, 512, L_VX, 1024, 1024*p)
        for i in range(16): rnd(g, GS+i, AC+i)
        call(30, 512*2752, 2752, 512, L_VX, 1024, 1024*p)
        for q in range(4): silu4(g, GS+4*q, AV)
        for i in range(16): rnd(g, GS+i)
        for i in range(16): rnd(g, AC+i)
        for i in range(16): A(f"v_mul_f32 v{AC+i}, v{AC+i}, v{GS+i}")
        pack(W, AC)
        A(f"v_add_u32 v3, {HB+1024*p}, v0")
        for b in range(2): A(f"ds_write_b128 v3, {vr(W+4*b,4)} offset:{3072*b}")
    call(32, 1376*1024, 1024, 1376, HB, 3072, 0)
    gated_add(5)
    pack(W, X1)
    for b in range(2): A(f"global_store_dwordx4 v0, {vr(W+4*b,4)}, s[38:39] offset:{1024*b} sc1")
    A("s_endpgm")
    g.lab("L_gv")
    for i in range(16): A(f"v_mov_b32 v{AC+i}, 0")
    A("s_mov_b32 s10, 0")
    g.lab("L_gvl")
    for r in range(8):
        A(f"buffer_load_dwordx4 {vr(W+4*r,4)}, v2, s[44:47], s10 offen")
        A("s_add_u32 s10, s10, s11")
    for b in range(2): A(f"ds_read_b128 {vr(AV+4*b,4)}, v{4+b}")
    A("v_add_u32 v4, 16, v4"); A("v_add_u32 v5, 16, v5")
    A("s_waitcnt lgkmcnt(0)")
    for r in range(8):
        for b in range(2):
            a = AV + 4*b + r//2
            if r % 2 == 0: A(f"v_and_b32 v{8+2*b}, 0xffff, v{a}"); A(f"v_lshlrev_b32 v{9+2*b}, 16, v{a}")
            else: A(f"v_lshrrev_b32 v{8+2*b}, 16, v{a}"); A(f"v_and_b32 v{9+2*b}, s73, v{a}")
        A(f"s_waitcnt vmcnt({7-r})")
        for b in range(2):
            for k in range(8): A(f"v_dot2c_f32_bf16 v{AC+8*b+k}, v{8+2*b+(k&1)}, v{W+4*r+k//2}")
    A("s_cmp_lt_u32 s10, s12"); A("s_cbranch_scc1 L_gvl")
    A("s_nop 1")
    A("s_setpc_b64 s[62:63]")

def slot_done(g, zero, n, nk):
    A = g.A
    A(f"v_mov_b32 v4, {n}")
    A("v_lshlrev_b32 v5, 6, v4")
    A(f"v_mul_i32_i24 v6, {-nk}, v4")
    A("s_mov_b64 exec, 1")
    for off in (L_ECN, L_SCN): A(f"ds_add_u32 v{zero}, v5 offset:{off}")
    for off in (L_SN, L_TK): A(f"ds_add_u32 v{zero}, v4 offset:{off}")
    A(f"ds_add_u32 v{zero}, v6 offset:{L_RM}")
    A("s_mov_b64 exec, -1")

def stream(g, opts):
    A = g.A
    D0 = opts.get("D0", 4)
    LAG = opts.get("LAG", 5)
    DEL = opts.get("delta", 7)
    THETA = opts.get("theta", 24)
    HCAP, HPOS = 32, 160
    TH, HST, NH, NSP, HTH = 18, 19, 20, 21, 22
    PA = 23
    KF, VF = opts.get("kf", "nt"), opts.get("vf", "nt")
    J0 = opts.get("J0", 16)
    T_, ACC, DB, RW, LIM, BUR, CNT, STA, QA, LVL = 32, 33, 34, 35, 36, 37, 38, 39, 40, 41
    SR, SBI, VE = 78, 79, 59
    VG = opts.get('vg', 20); LG = opts.get('lg', 14)
    LB, JS, DN, FIN, X1D, RET, TK, RET2 = 56, 57, 58, 75, 61, 62, (64, 66), 100
    T, X = 8, 16
    OFF = (24, 26); SET = (28, 30, 32); PH = (34, 35, 36); MW, L16, LRD, EPA, EV = 37, 38, 39, 22, 2
    RA = 20
    ROFF = 1024
    RB = 40
    def slot(j): return RB + 4 * (j % 32)
    NW = 76
    A("s_sub_u32 s9, s5, 4")
    A("s_lshl_b32 s4, s7, 18")
    A("s_lshl_b32 s11, s9, 10")
    g.lab("L_stream")
    A("s_lshl_b32 s10, s6, 22")
    A("s_add_u32 s10, s10, s4")
    A("s_add_u32 s10, s10, 0x300000")
    A("v_lshl_add_u32 v0, v1, 4, s11")
    A("s_lshr_b32 s12, s2, 3")
    A("s_mul_i32 s12, s12, 5")
    A("s_mul_i32 s15, s8, 3")
    A("s_add_u32 s12, s12, s15")
    A("s_lshl_b32 s12, s12, 13")
    A("s_and_b32 s12, s12, 0x3ffff")
    g.stamp(1, 3)
    A("s_waitcnt lgkmcnt(0)")
    g.stamp(2, 3)
    A("s_add_u32 s44, s18, s10"); A("s_addc_u32 s45, s19, 0")
    A("s_mov_b32 s46, 0x40000"); A("s_mov_b32 s47, 0x20000")
    def issue(j):
        A(f"buffer_load_dwordx4 {vr(slot(j),4)}, v0, s[44:47], s12 offen {KF}")
        A("s_add_u32 s12, s12, 0x2000")
        A("s_and_b32 s12, s12, 0x3ffff")
    A("s_cmp_le_i32 s13, 0")
    A("s_cbranch_scc1 L_nb1")
    A("s_barrier")
    g.lab("L_nb1")
    g.stamp(3, 3)
    for j in range(D0): issue(j)
    g.stamp(4, 3)
    A("s_load_dwordx2 s[14:15], s[56:57], s3")
    A("s_load_dword s77, s[56:57], s3 offset:8")
    A(f"s_load_dword s{ST}, s[42:43], {WS_E}")
    A("s_add_u32 s48, s20, s10"); A("s_addc_u32 s49, s21, 0")
    A("s_mov_b32 s50, 0x40000"); A("s_mov_b32 s51, 0x20000")
    A("s_mov_b32 s52, 0xcccccccc"); A("s_mov_b32 s53, 0xcccccccc")
    A("s_mov_b32 s54, 0xaaaaaaaa"); A("s_mov_b32 s55, 0xaaaaaaaa")
    A(f"v_and_b32 v{L16}, 15, v1")
    A(f"v_lshlrev_b32 v{L16}, 4, v{L16}")
    A("s_lshl_b32 s10, s9, 11")
    A(f"s_add_u32 s10, s10, {L_VX}")
    A("v_lshl_add_u32 v3, v1, 3, s10")
    A("v_mov_b32 v4, 0x7fff0000"); A("v_mov_b32 v5, 0xff800000")
    for n in range(3): A(f"ds_write_b64 v3, v[4:5] offset:{512*n}")
    A("v_lshrrev_b32 v3, 4, v1")
    A(f"v_lshl_add_u32 v{LRD}, v{L16}, 1, s10")
    A(f"v_lshl_add_u32 v{LRD}, v3, 3, v{LRD}")
    A(f"s_sub_u32 s68, s12, {D0*0x2000}")
    A(f"v_bfrev_b32 v{OFF[0]}, v1")
    A(f"v_lshrrev_b32 v{OFF[0]}, 15, v{OFF[0]}")
    A(f"v_and_b32 v{OFF[0]}, 0x1e000, v{OFF[0]}")
    A(f"v_add_u32 v{OFF[0]}, s68, v{OFF[0]}")
    A(f"v_and_b32 v{OFF[0]}, 0x3e000, v{OFF[0]}")
    A(f"v_lshl_add_u32 v{OFF[0]}, v3, 8, v{OFF[0]}")
    A(f"v_add_u32 v{OFF[0]}, s11, v{OFF[0]}")
    A(f"v_xor_b32 v{OFF[1]}, 0x20000, v{OFF[0]}")
    A("s_lshl_b32 s11, s9, 9")
    A(f"v_lshl_add_u32 v{EPA}, v{L16}, 1, s11")
    A(f"v_lshl_add_u32 v{EPA}, v3, 3, v{EPA}")
    A(f"s_mov_b32 s{T_}, {D0}"); A(f"s_mul_i32 s{ACC}, s9, 0x5e000000")
    A(f"s_mov_b64 s[{TK[0]}:{TK[0]+1}], 0"); A(f"s_mov_b64 s[{TK[1]}:{TK[1]+1}], 0")
    A(f"s_mov_b32 s{CNT}, 0"); A(f"s_mov_b32 s{STA}, 0"); A(f"s_mov_b32 s{FIN}, 0"); A(f"s_mov_b32 s{X1D}, 0")
    A(f"s_lshl_b32 s{QA}, s6, 9"); A("s_lshl_b32 s68, s9, 6")
    A(f"s_add_u32 s{QA}, s{QA}, s68"); A(f"s_add_u32 s{QA}, s{QA}, {WS_Q}")
    A("s_cmp_eq_u32 s13, 0")
    A("s_cbranch_scc0 L_nb2")
    A("s_barrier")
    g.lab("L_nb2")
    A("s_waitcnt lgkmcnt(0)")
    A(f"s_mov_b32 s{LB}, s10")
    make_tag(g)
    A(f"s_and_b32 s{JS}, s77, 0xff")
    A(f"s_bfe_u32 s{DB}, s77, 0xc0008")
    A(f"s_lshr_b32 s{DN}, s77, 20")
    A(f"s_and_b32 s{NW}, s15, 15")
    A(f"s_mov_b32 s{RW}, {32-D0}"); A(f"s_mov_b32 s{VE}, 0")
    A(f"s_mul_i32 s68, s{NW}, {32-D0}"); A(f"s_add_u32 s68, s68, {ROFF}")
    A(f"v_mov_b32 v{RA}, s68"); A(f"v_mov_b32 v{RA+1}, 0"); A(f"v_mov_b32 v{PA}, 0")
    A("s_cmp_ge_u32 s9, 8"); A(f"s_cselect_b32 s{STA}, 2, 0")
    A("s_bfe_u32 s68, s15, 0x20004"); A("s_add_u32 s68, s68, s9")
    A("s_lshr_b32 s69, s9, 3"); A("s_lshr_b32 s68, s68, 3")
    A("s_cmp_lg_u32 s68, s69"); A("s_cbranch_scc1 L_away")
    for j in range(D0, 32):
        if j == opts.get("JH", 99):
            l = g.uniq("jh")
            A("s_sub_u32 s68, s13, 1")
            A(f"s_cmp_gt_u32 s68, 1"); A(f"s_cbranch_scc1 {l}")
            A("v_mov_b32 v4, 0")
            poll_lds(g, [f"ds_read_b32 v5, v4 offset:{L_GO}"], [5], 8, 4)
            g.lab(l)
        if j == D0:
            g.stamp(5, 3)
            if opts.get("stamps") == 3: A(f"s_waitcnt vmcnt({D0-1})")
            g.stamp(7, 3)
        if j == opts.get("jk", 99): A(f"s_max_u32 s{DB}, s{DB}, {int(opts.get('dk', 4.5)*256)}")
        A(f"s_call_b64 s[{RET}:{RET+1}], L_ks")
        if j == 8: g.stamp(8, 3)
        if j == 12: g.stamp(9, 3)
        issue(j)
    g.stamp(1)
    A("s_mov_b32 s10, 0")
    g.lab("L_kw")
    A(f"s_cmp_ge_u32 s{STA}, 4"); A("s_cbranch_scc1 L_v0")
    A(f"s_call_b64 s[{RET2}:{RET2+1}], L_work")
    A("s_sleep 1")
    A("s_add_u32 s10, s10, 1")
    A(f"s_cmp_lt_u32 s10, {SPIN_MAX}"); A("s_cbranch_scc1 L_kw")
    g.lab("L_v0")
    g.stamp(2)
    A(f"s_mov_b32 s{T_}, 0"); A(f"s_mov_b32 s{BUR}, 255")
    A(f"v_mov_b32 v{PA}, 8")
    A(f"s_mov_b32 s{RW}, s{VE}")
    A(f"ds_read_b64 {vr(RA,2)}, v{PA} offset:{L_RM}")
    A("s_ashr_i32 s14, s14, 16")
    A("s_waitcnt lgkmcnt(0)")
    A(f"v_readfirstlane_b32 s{DB}, v{RA}")
    A(f"s_mul_i32 s{DB}, s{DB}, {int(round(opts.get('ka2', 6)*16))}")
    A(f"s_ashr_i32 s{DB}, s{DB}, 4")
    A(f"s_add_i32 s{DB}, s{DB}, {int(round(opts.get('kb2', 0.2)*256 - int(round(opts.get('ka2', 6)*16))*ROFF/16))}")
    A(f"s_add_i32 s{DB}, s{DB}, s14")
    A("s_lshr_b32 s68, s15, 20")
    A(f"s_mul_i32 s{DB}, s{DB}, s68")
    A(f"s_ashr_i32 s{DB}, s{DB}, 8")

    def dots(G_):
        for tt in range(4):
            for e in range(8):
                c = "0" if tt == 0 else f"v{T+e}"
                A(f"v_dot2_f32_bf16 v{T+e}, v{slot(8*G_+e)+tt}, v{4+tt}, {c}")
        for e in range(0, 8, 2):
            A(f"v_add_f32_dpp v{T+e}, v{T+e}, v{T+e} row_ror:8 row_mask:0xf bank_mask:0x3")
            A(f"v_add_f32_dpp v{T+e}, v{T+e+1}, v{T+e+1} row_ror:8 row_mask:0xf bank_mask:0xc")
        x = X + 2 * (G_ & 1)
        for h in range(2):
            A(f"v_add_f32_dpp v{x+h}, v{T+4*h}, v{T+4*h} row_shl:4 row_mask:0xf bank_mask:0x5")
            A(f"v_add_f32_dpp v{x+h}, v{T+4*h+2}, v{T+4*h+2} row_shr:4 row_mask:0xf bank_mask:0xa")
    def wave_red(op, v, t):
        for r in (8, 4, 2, 1):
            A("s_nop 1")
            A(f"{op}_dpp v{v}, v{v}, v{v} row_ror:{r} row_mask:0xf bank_mask:0xf")
        for sw in ("v_permlane16_swap_b32", "v_permlane32_swap_b32"):
            A(f"v_mov_b32 v{t}, v{v}")
            A("s_nop 1")
            A(f"{sw} v{t}, v{v}")
            A(f"{op} v{v}, v{v}, v{t}")
    def finish(n):
        sc = OFF[n] + 1
        A("v_mov_b32 v3, 0")
        A("v_mov_b32 v20, 64")
        for i in range(4): A(f"v_add_f32_dpp v{X+i}, v{X+i}, v{X+i} quad_perm:[2,3,0,1] row_mask:0xf bank_mask:0xf")
        for i in range(2): A(f"v_cndmask_b32 v{T+i}, v{X+2*i}, v{X+2*i+1}, s[52:53]")
        A("s_nop 0")
        A("v_lshlrev_b32 v21, 3, s9")
        for i in range(2): A(f"v_add_f32_dpp v{T+i}, v{T+i}, v{T+i} quad_perm:[1,0,3,2] row_mask:0xf bank_mask:0xf")
        A(f"v_cndmask_b32 v{sc}, v{T}, v{T+1}, s[54:55]")
        rnd(g, sc)
        A(f"v_mul_f32 v{sc}, 0x{SCALE:08x}, v{sc}")
        rnd(g, sc)
        if n == 0: A(f"v_mov_b32 v{MW}, v{sc}")
        else: A(f"v_max_f32 v{MW}, v{MW}, v{sc}")
        wave_red("v_max_f32", MW, T)
        if n == 0:
            A("s_mov_b64 exec, 1")
            A(f"ds_max_f32 v3, v{MW} offset:{L_E0}")
            A(f"ds_add_u32 v3, v20 offset:{L_ECN}")
            A("s_mov_b64 exec, -1")
        else:
            for i in range(2): A(f"v_sub_f32 v{X+1+i}, v{OFF[i]+1}, v{MW}")
            for i in range(2): A(f"v_mul_f32 v{X+1+i}, 0x{LOG2E:08x}, v{X+1+i}")
            for i in range(2): A(f"v_exp_f32 v{X+1+i}, v{X+1+i}")
            A(f"v_mov_b32 v{X}, v{MW}")
            A(f"v_add_f32 v{X+1}, v{X+1}, v{X+2}")
            wave_red("v_add_f32", X+1, T)
            A("s_mov_b64 exec, 1")
            A(f"ds_max_f32 v3, v{MW} offset:{L_MX}")
            A(f"ds_write_b64 v21, {vr(X,2)} offset:{L_ST}")
            A(f"ds_add_u32 v3, v20 offset:{L_SCN}")
            A("s_mov_b64 exec, -1")
    def build(n, thr):
        tk = f"s[{TK[n]}:{TK[n]+1}]"
        A(f"v_cmp_nlt_f32 vcc, v{OFF[n]+1}, v{thr}")
        A(f"s_lshl_b32 s68, s{CNT}, 3")
        A(f"s_add_u32 s68, s68, s{LB}")
        A(f"s_andn2_b64 s[70:71], vcc, {tk}")
        A("v_mbcnt_lo_u32_b32 v3, s70, 0")
        A("v_mbcnt_hi_u32_b32 v3, s71, v3")
        A("s_bcnt1_i32_b64 s69, s[70:71]")
        A("v_lshl_add_u32 v3, v3, 3, s68")
        A("s_mov_b64 exec, s[70:71]")
        A(f"ds_write_b64 v3, {vr(OFF[n],2)}")
        A("s_mov_b64 exec, -1")
        A(f"s_or_b64 {tk}, {tk}, s[70:71]")
        A(f"s_add_u32 s{CNT}, s{CNT}, s69")
    def reread(weights=True):
        ns = 3 if weights else 1
        for n in range(ns): A(f"ds_read_b64 {vr(SET[n],2)}, v{LRD} offset:{512*n}")
        A("s_waitcnt lgkmcnt(0)")
        if not weights: return
        for n in range(3): A(f"v_sub_f32 v{SET[n]+1}, v{SET[n]+1}, v{MW}")
        for n in range(3): A(f"v_mul_f32 v{SET[n]+1}, 0x{LOG2E:08x}, v{SET[n]+1}")
        for n in range(3): A(f"v_exp_f32 v{SET[n]+1}, v{SET[n]+1}")
        A("s_nop 0")
        for n in range(3): A(f"v_cvt_pk_bf16_f32 v{PH[n]}, 0, v{SET[n]+1}")
        for n in range(3): A(f"v_cvt_pk_bf16_f32 v{SET[n]+1}, v{SET[n]+1}, 0")
    def pv(t, data=None, acc=None):
        data = slot(t) if data is None else data
        acc = list(range(T, T + 8)) if acc is None else acc
        for tt in range(4):
            for hf in range(2):
                p = (SET[t//16] + 1, PH[t//16])[hf]
                A(f"v_dot2c_f32_bf16_dpp v{acc[2*tt+hf]}, v{p}, v{data+tt} row_newbcast:{t%16} row_mask:0xf bank_mask:0xf")
    def estimate(sh, add, src, vphase=True):
        A(f"s_add_u32 s68, s{src}, {add}")
        A(f"s_lshr_b32 s68, s68, {sh}")
        A(f"s_sub_u32 s69, s68, s{VE}")
        A(f"s_mov_b32 s{VE}, s68")
        if vphase:
            A(f"s_add_u32 s{RW}, s{RW}, s69")
            A(f"s_add_u32 s{SR}, s{SR}, s69")
        A("v_mov_b32 v3, s69")
        A("s_mov_b64 exec, 1")
        A(f"ds_add_u32 v1, v3 offset:{L_RM+8}")
        A("s_mov_b64 exec, -1")
    def fetch():
        A("s_waitcnt lgkmcnt(0)")
        A(f"v_readfirstlane_b32 s{SR}, v{RA}")
        A(f"v_readfirstlane_b32 s{SBI}, v{RA+1}")
    NST = LAG + 33 + LAG
    assert 4 * (NST - LAG) <= HPOS, NST
    for t in range(NST):
        if t > LAG: A(f"s_cmp_eq_u32 s{FIN}, {t}"); A("s_cbranch_scc1 L_epi")
        A(f"s_call_b64 s[{RET}:{RET+1}], L_vs")
        if t < NST - LAG:
            A(f"s_cbranch_scc1 L_nl{t}")
            A(f"v_add_u32_dpp v3, v{SET[t//16]}, v{L16} row_newbcast:{t%16} row_mask:0xf bank_mask:0xf")
            A(f"buffer_load_dwordx4 {vr(slot(t),4)}, v3, s[48:51], 0 offen {VF}")
            g.lab(f"L_nl{t}")
        if t == 0: dots(2)
        if t >= LAG: pv(t - LAG)
    A("s_nop 1")
    def lane_reduce(a, b):
        A("s_nop 0")
        for j in range(4): A(f"v_permlane32_swap_b32 v{a+j}, v{b+j}")
        for j in range(4): A(f"v_add_f32 v{a+j}, v{a+j}, v{b+j}")
        A("v_mov_b32 v3, 1")
        for j in range(2): A(f"v_permlane16_swap_b32 v{a+j}, v{a+j+2}")
        for j in range(2): A(f"v_add_f32 v{a+j}, v{a+j}, v{a+j+2}")
    def prelim(r):
        A(f"ds_write_b64 v{EPA}, {vr(r,2)} offset:{L_OP1}")
        A("s_mov_b64 exec, 1")
        A(f"ds_add_u32 v1, v3 offset:{L_SN}")
        A("s_mov_b64 exec, -1")
    g.lab("L_epi")
    g.stamp(5)
    A("s_nop 0")
    lane_reduce(T, T+4)
    A(f"v_pk_add_f32 {vr(T,2)}, {vr(T,2)}, v[4:5]")
    A(f"ds_write_b64 v{EPA}, {vr(T,2)} offset:{L_OP}")
    A(f"s_cmp_eq_u32 s{NSP}, 0"); A("s_cbranch_scc1 L_ep2")
    prelim(T)
    g.lab("L_ep2")
    A("s_mov_b64 exec, 1")
    A(f"ds_add_rtn_u32 v3, v1, v3 offset:{L_TK}")
    A("s_mov_b64 exec, -1")
    A("v_mov_b32 v4, 0")
    A("s_lshl_b32 s10, s6, 11"); A(f"s_add_u32 s10, s10, {WS_OP}")
    A("v_lshl_add_u32 v2, v1, 3, s10")
    A(f"v_add_u32 v0, {R2}, v2")
    A("s_waitcnt lgkmcnt(0)")
    A("v_readfirstlane_b32 s68, v3")
    A(f"s_cmp_lg_u32 s68, {NS_-1}"); A("s_cbranch_scc1 L_send")
    g.C("the last wave publishes the final partial output; that of split 0 compares the head's final output with the preliminary one")
    def looks(n0):
        for i in range(1, 4): A(f"global_load_dwordx2 {vr(RB+2*i,2)}, v0, s[42:43] offset:{512*i} sc1")
        if n0:
            for i in range(4): A(f"global_load_dwordx2 {vr(RB+8+2*i,2)}, v2, s[42:43] offset:{512*i} sc1")
    A("s_cmp_lg_u32 s7, 0"); A("s_cbranch_scc1 L_nolook")
    looks(1)
    g.lab("L_nolook")
    poll_lds(g, [f"ds_read_b32 v5, v4 offset:{L_ML}"], [5], 8, 1)
    R = 128
    op_publish(g, L_OP, R, 4, R2, False)
    A("s_cmp_lg_u32 s7, 0"); A("s_cbranch_scc1 L_send")
    TG = R + OPA + 1
    A(f"v_and_b32 v{TG}, 0xff, v{TG}"); A(f"v_and_b32 v{TG+1}, 0xff, v{TG+1}")
    def head_sum(b_, t):
        for i in range(8): A(f"v_xor_b32 v{b_+i}, v{b_+i}, v{TG+(i&1)}")
        A(f"v_or3_b32 v{t}, v{b_}, v{b_+1}, v{b_+2}")
        A(f"v_or3_b32 v{t+1}, v{b_+3}, v{b_+4}, v{b_+5}")
        A(f"v_or3_b32 v{t}, v{t}, v{b_+6}, v{b_+7}")
        for i in range(8): A(f"v_or_b32 v{b_+i}, 0x80, v{b_+i}")
        A(f"v_or_b32 v{t}, v{t}, v{t+1}")
        A(f"v_pk_add_f32 {vr(b_,2)}, {vr(b_,2)}, {vr(b_+4,2)}")
        A(f"v_pk_add_f32 {vr(b_+2,2)}, {vr(b_+2,2)}, {vr(b_+6,2)}")
        A(f"v_lshlrev_b32 v{t}, 24, v{t}")
        A(f"v_pk_add_f32 {vr(b_,2)}, {vr(b_,2)}, {vr(b_+2,2)}")
        A(f"v_cmp_ne_u32 vcc, 0, v{t}")
        A(f"v_cvt_pk_bf16_f32 v{b_}, v{b_}, v{b_+1}")
    A("s_mov_b32 s70, 0")
    A("s_waitcnt vmcnt(1)")
    A("s_branch L_cp1")
    g.lab("L_cp0")
    looks(1)
    A("s_waitcnt vmcnt(0)")
    g.lab("L_cp1")
    head_sum(RB+8, RB+16)
    spin_tail(g, "L_cp0", "L_cp2", 4)
    A("s_mov_b32 s70, 0")
    A("s_branch L_cp4")
    g.lab("L_cp3")
    looks(0)
    A("s_waitcnt vmcnt(0)")
    g.lab("L_cp4")
    for k in range(2): A(f"v_mov_b32 v{RB+k}, v{R+k}")
    head_sum(RB, RB+16)
    spin_tail(g, "L_cp3", "L_cp5", opts.get("csl", 0))
    A(f"v_cmp_ne_u32 vcc, v{RB}, v{RB+8}")
    A("s_cmp_lg_u64 vcc, 0"); A("s_cbranch_scc1 L_slow")
    g.lab("L_send")
    if opts.get("stamps"):
        g.stamp(6)
        dump_all(g, [CNT, DB, SBI])
    A("s_endpgm")
    g.lab("L_away")
    slot_done(g, 1, 1, 32 - D0)
    A("v_mov_b32 v3, 0")
    l = g.uniq("aw")
    A("s_mov_b32 s70, 0")
    g.lab(l)
    A(f"ds_read_b32 v4, v3 offset:{L_RM}")
    A("s_waitcnt lgkmcnt(0)")
    A(f"v_cmp_lt_u32 vcc, {ROFF + 6 * (32 - J0)}, v4")
    spin_tail(g, l, l + "d", 8, 8)
    A(f"s_mov_b32 s{T_}, {J0}")
    A("s_mov_b32 s10, 0")
    g.lab("L_aw2")
    A(f"s_call_b64 s[{RET2}:{RET2+1}], L_work")
    A("s_sleep 4")
    A("s_add_u32 s10, s10, 1")
    A(f"s_cmp_ge_u32 s10, {SPIN_MAX}"); A("s_cbranch_scc1 L_end")
    A(f"s_cmp_lt_u32 s{STA}, 2"); A("s_cbranch_scc1 L_aw2")
    A("s_bfe_u32 s61, s15, 0x60008")
    A("s_cmp_lg_u32 s9, 7"); A("s_cbranch_scc1 L_end")
    A("s_cmp_ge_u32 s61, 32"); A("s_cbranch_scc1 L_end")
    A("s_waitcnt lgkmcnt(0)")
    A("s_load_dwordx2 s[16:17], s[0:1], 0")
    A("s_load_dwordx2 s[38:39], s[0:1], 88")
    A("v_mov_b32 v38, 0")
    A("s_mov_b32 s60, 3")
    A("s_waitcnt vmcnt(0) lgkmcnt(0)")
    A("s_branch L_mid")
    fallback(g, head_sum, wave_red)

    g.lab("L_ks")
    fetch()
    A(f"s_cmp_eq_u32 s{T_}, s{JS}")
    A(f"s_cselect_b32 s{DB}, s{DN}, s{DB}")
    A(f"s_cmp_ge_u32 s{STA}, 4"); A("s_cbranch_scc1 L_ks2")
    A(f"s_call_b64 s[{RET2}:{RET2+1}], L_work")
    g.lab("L_ks2")
    A(f"s_add_u32 s{T_}, s{T_}, 1")
    A(f"s_mul_i32 s68, s{RW}, s{NW}")
    A(f"s_sub_i32 s68, s68, s{SR}")
    A(f"s_sub_u32 s{RW}, s{RW}, 1")
    A(f"s_add_i32 s68, s68, {ROFF}")
    A(f"s_mul_i32 s68, s68, {LG}")
    A(f"s_add_i32 s68, s68, s{DB}")
    A(f"s_add_i32 s68, s68, s{SBI}")
    A(f"s_max_i32 s68, s68, {int(opts.get('lo', 1.5)*256)}")
    A(f"s_min_i32 s68, s68, {LAG*256}")
    A("s_lshl_b32 s69, s68, 24")
    A("s_lshr_b32 s68, s68, 8")
    A(f"s_add_u32 s{ACC}, s{ACC}, s69")
    A(f"s_addc_u32 s{LVL}, s68, 0")
    g.lab("L_wait")
    for d in range(LAG, 0, -1):
        A(f"s_waitcnt vmcnt({d-1})")
        if d > 1:
            A(f"s_cmp_ge_u32 s{LVL}, {d}"); A("s_cbranch_scc1 L_ret")
    g.lab("L_ret")
    A("s_mov_b64 exec, 1")
    A(f"ds_dec_u32 v{PA}, v{LRD} offset:{L_RM}")
    A(f"ds_read_b64 {vr(RA,2)}, v{PA} offset:{L_RM}")
    A("s_mov_b64 exec, -1")
    A(f"s_cmp_lg_u32 s{T_}, s{T_}")
    A(f"s_setpc_b64 s[{RET}:{RET+1}]")

    g.lab("L_vs")
    fetch()
    A(f"s_cmp_lg_u32 s{X1D}, 0"); A("s_cbranch_scc1 L_vs1")
    A(f"s_cmp_gt_u32 s{LVL}, s{T_}"); A("s_cbranch_scc1 L_ks2")
    g.lab("L_x1")
    dots(3)
    finish(1)
    g.stamp(3)
    A(f"v_max_f32 v20, v{EV}, v{MW}")
    A(f"v_mov_b32 v21, s{HTH}")
    A(f"s_add_u32 s{CNT}, s{CNT}, 3"); A(f"s_lshr_b32 s{CNT}, s{CNT}, 2")
    A(f"s_max_u32 s{CNT}, s{CNT}, s{T_}"); A(f"s_lshl_b32 s{CNT}, s{CNT}, 2")
    A(f"v_cmp_nlt_f32 vcc, v{OFF[0]+1}, v21")
    A(f"v_cmp_nlt_f32 s[70:71], v{OFF[1]+1}, v21")
    A("s_bcnt1_i32_b64 s68, vcc"); A("s_bcnt1_i32_b64 s69, s[70:71]")
    A(f"s_add_u32 s{NH}, s68, s69")
    A(f"s_cmp_gt_u32 s{NH}, {HCAP}")
    A(f"s_cselect_b32 s{NSP}, 1, s{NSP}")
    A("v_mov_b32 v4, 0"); A("v_mov_b32 v5, 0")
    A(f"s_cmp_lg_u32 s{NSP}, 0"); A("s_cbranch_scc1 L_x2")
    A(f"s_mov_b32 s{TH}, s{CNT}"); A(f"s_mov_b32 s{CNT}, {HPOS}")
    build(0, 21); build(1, 21)
    A(f"ds_read_b32 v{SET[2]}, v{LRD} offset:1024")
    A(f"s_mov_b32 s{CNT}, s{TH}"); A(f"s_mov_b32 s{TH}, s{T_}"); A(f"s_mov_b32 s{HST}, 1")
    A("s_waitcnt lgkmcnt(0)")
    for i in range(8):
        A(f"s_cmp_le_u32 s{NH}, {4*i}"); A("s_cbranch_scc1 L_x2")
        A(f"v_add_u32_dpp v3, v{SET[2]}, v{L16} row_newbcast:{8+i} row_mask:0xf bank_mask:0xf")
        A(f"buffer_load_dwordx4 {vr(slot(24+i),4)}, v3, s[48:51], 0 offen {VF}")
    g.lab("L_x2")
    A(f"v_add_f32 v21, 0x{f2u(DEL - ZERO_GAP):08x}, v20")
    build(0, 21); build(1, 21)
    for e in range(8): A(f"v_mov_b32 v{T+e}, 0")
    A(f"s_lshr_b32 s{LIM}, s{CNT}, 2")
    A(f"s_mov_b32 s{X1D}, 1")
    estimate(2, opts.get("ve2", 8), CNT)
    reread()
    A(f"s_cmp_eq_u32 s{NH}, 0")
    A(f"s_cselect_b32 s{LVL}, 0, s{LVL}")
    g.lab("L_vs1")
    A(f"s_cmp_eq_u32 s{HST}, 0"); A("s_cbranch_scc1 L_vs1b")
    A(f"s_sub_u32 s68, s{T_}, s{TH}")
    A(f"s_cmp_le_u32 s{LVL}, s68"); A("s_cbranch_scc1 L_snap")
    A(f"s_cmp_lg_u32 s{LIM}, s{T_}"); A("s_cbranch_scc1 L_vs2")
    A("s_waitcnt vmcnt(0)")
    g.lab("L_snap")
    HA = [4, 5, 6, 7, 16, 17, 18, 19]
    for r in HA[2:]: A(f"v_mov_b32 v{r}, 0")
    for i in range(8):
        A(f"s_cmp_le_u32 s{NH}, {4*i}"); A("s_cbranch_scc1 L_snp2")
        pv(40 + i, slot(24 + i), HA)
    g.lab("L_snp2")
    A("s_nop 1")
    lane_reduce(4, 16)
    prelim(4)
    A(f"s_mov_b32 s{HST}, 0")
    g.stamp(9)
    g.lab("L_vs1b")
    A(f"s_cmp_eq_u32 s{LIM}, s{T_}"); A("s_cbranch_scc1 L_hand")
    g.lab("L_vs2")
    if opts.get("b2", 0):
        A(f"s_cmp_le_i32 s{SR}, {ROFF + 8*opts['b2']}")
        A(f"s_cselect_b32 s68, {int(opts.get('dbur', 4.5)*256)}, 0")
        A(f"s_max_i32 s{DB}, s{DB}, s68")
    A(f"s_cmp_lt_u32 s{T_}, s{BUR}"); A("s_cbranch_scc1 L_ks2")
    A(f"s_sub_u32 s{LVL}, s{LIM}, s{T_}")
    A(f"s_add_u32 s{T_}, s{T_}, 1")
    A(f"s_cmp_gt_u32 s{LVL}, {LAG}"); A("s_cbranch_scc1 L_wait")
    for d in range(LAG, 0, -1):
        A(f"s_waitcnt vmcnt({d-1})")
        if d > 1:
            A(f"s_cmp_ge_u32 s{LVL}, {d}"); A("s_cbranch_scc1 L_ret2")
    g.lab("L_ret2")
    A(f"s_cmp_eq_u32 s{T_}, s{T_}")
    A(f"s_setpc_b64 s[{RET}:{RET+1}]")

    g.lab("L_hand")
    g.stamp(7)
    A("v_mov_b32 v3, 0")
    wait_cnt(g, f"ds_read_b64 v[18:19], v3 offset:{L_SCN}", 18, 0x10000 + 64 * NS_, 1)
    g.stamp(4)
    A(f"v_add_f32 v21, 0x{f2u(-ZERO_GAP):08x}, v19")
    if opts.get("noskip"): A("v_mov_b32 v21, 0xff800000")
    build(0, 21); build(1, 21)
    A(f"s_add_u32 s{LIM}, s{CNT}, {3 + 4*LAG}")
    A(f"s_lshr_b32 s{LIM}, s{LIM}, 2")
    A(f"s_sub_u32 s{BUR}, s{LIM}, {LAG + opts.get('burst', 4)}")
    A(f"s_max_i32 s{BUR}, s{BUR}, 0")
    A(f"s_mov_b32 s{FIN}, s{LIM}")
    estimate(2, 3, CNT)
    reread()
    A("s_branch L_vs2")

    g.lab("L_work")
    ret2 = f"s_setpc_b64 s[{RET2}:{RET2+1}]"
    for k in (1, 2, 3):
        A(f"s_cmp_eq_u32 s{STA}, {k}"); A(f"s_cbranch_scc1 L_w{k}")
    A(f"s_cmp_lt_u32 s{T_}, {J0}"); A("s_cbranch_scc1 L_wr")
    g.lab("L_w0")
    A(f"s_load_dwordx16 s[16:31], s[42:43], s{QA} glc")
    A(f"s_mov_b32 s{STA}, 1")
    g.lab("L_wr")
    A(ret2)
    g.lab("L_w1")
    A("s_waitcnt lgkmcnt(0)")
    A(f"s_xor_b32 s68, s17, s{ST}")
    for k in range(1, 8):
        A(f"s_xor_b32 s69, s{17+2*k}, s{ST}"); A("s_or_b32 s68, s68, s69")
    A("s_cbranch_scc1 L_w0")
    for k in range(8): A(f"v_mov_b32 v{8+k}, s{16+2*k}")
    A("v_lshlrev_b32 v3, 5, s9")
    A("s_mov_b64 exec, 1")
    A(f"ds_write_b128 v3, v[8:11] offset:{L_QV}")
    A(f"ds_write_b128 v3, v[12:15] offset:{L_QV+16}")
    A("s_mov_b64 exec, -1")
    A(f"s_mov_b32 s{STA}, 2")
    g.lab("L_w2")
    A(f"s_cmp_lt_u32 s{T_}, {16+LAG}"); A("s_cbranch_scc1 L_wr")
    A(f"ds_read_b128 v[4:7], v{L16} offset:{L_QV}")
    A("s_waitcnt lgkmcnt(0)")
    chk_sentinel(g, [4, 5, 6, 7], 8)
    A("s_cmp_lg_u64 vcc, 0"); A("s_cbranch_scc1 L_wr")
    dots(0); dots(1)
    finish(0)
    A(f"s_mov_b32 s{STA}, 3")
    A(f"s_mov_b32 s{HST}, 0")
    g.stamp(8)
    A(ret2)
    g.lab("L_w3")
    A("v_mov_b32 v3, 0")
    A(f"ds_read_b64 v[18:19], v3 offset:{L_ECN}")
    A("s_waitcnt lgkmcnt(0)")
    A(f"v_cmp_gt_u32 vcc, 0x{0x10000 + 64 * NS_:x}, v18")
    A("s_cmp_lg_u64 vcc, 0"); A("s_cbranch_scc1 L_wr")
    A(f"ds_read_b96 v[16:18], v3 offset:{L_E1}")
    A("s_waitcnt lgkmcnt(0)")
    A(f"v_max_f32 v{EV}, v19, v18")
    A("v_med3_f32 v21, v19, v16, v17")
    A(f"v_add_f32 v21, 0x{f2u(-THETA):08x}, v21")
    A(f"v_cmp_nlt_f32 vcc, v{OFF[0]+1}, v21")
    A(f"v_readfirstlane_b32 s{HTH}, v21")
    A(f"v_add_f32 v21, 0x{f2u(DEL - ZERO_GAP):08x}, v{EV}")
    A("s_bcnt1_i32_b64 s68, vcc")
    A(f"s_cmp_gt_u32 s68, {HCAP}")
    A(f"s_cselect_b32 s{NSP}, 1, 0")
    A("s_cselect_b64 s[16:17], 0, vcc")
    A(f"s_mov_b64 s[{TK[0]}:{TK[0]+1}], s[16:17]")
    build(0, 21)
    A(f"s_andn2_b64 s[{TK[0]}:{TK[0]+1}], s[{TK[0]}:{TK[0]+1}], s[16:17]")
    estimate(1, opts.get("ve1", 4), CNT, False)
    A(f"s_mov_b32 s{STA}, 4")
    reread(False)
    A(ret2)

def gen(opts):
    g = G(opts); A = g.A
    opts.setdefault("cap", 1.0)
    RM, HOST = role_map(opts.get("two", 1))
    DROP = [0] * 256
    for h, l in HOST.items():
        for sp, c in l: DROP[(h & ~24) | sp << 3] += 1
    RED = {w: i for i, w in enumerate(sorted((w for w in range(256) if DROP[w]), key=lambda w: -DROP[w])[:32])}
    RAW = opts.get("red", 0)
    if not RAW: RED = {}
    WFL = opts.get("wflags", "nt")
    PT = opts.get("ptouch", 0)
    def cls(w):
        r, t = RM[w]
        slow = r in (C_WO, C_MODB, C_MODA, C_Q) and t % 8 == 3
        if r == C_Q: return "q3" if slow else "q"
        if r == C_WO: return "w3" if slow else "w"
        if r == C_MODA: return "a3" if slow else "a"
        if r == C_MODB: return "b3" if slow else "b"
        if r == C_F1: return "f" if DROP[w] == 1 else "e"
        if len(HOST.get(w, [])) == 2: return "h" + ("2" if w % 8 in (0, 2) and r == C_F2 else "")
        if r == C_F2: return ("p" if w >> 3 in (25, 27) and PT else "g") + ("2" if w % 8 in (0, 2) else "")
        return "n"
    g.cls = cls
    DEF = dict(q=3.29, q3=4.02, w=2.26, w3=2.36, a=3.45, a3=3.45, p=3.03, p2=3.95, b=2.27, b3=2.6, f=2.84, g=2.48, g2=2.86, n=2.22, h=2.7, h2=3.1, e=3.2)
    def dep(w):
        c = cls(w)
        d1 = opts.get("x" + c, DEF[c])
        d2 = d1 if c[0] in "qa" else min(d1 + opts.get("dup", 0.9), 5)
        return opts.get("js", 16) | (int(round(d1 * 256)) << 8) | (int(round(d2 * 256)) << 20)
    VB = dict(f=0.65, w=0.3, w3=0.2, q=-0.15, q3=-0.15, g=0.3, g2=0.3, p=0.1, p2=0.2, h=0.2, h2=0.2, n=0.2, e=1.5)
    def vbias(w): return int(round(opts.get("y" + cls(w), VB.get(cls(w), 0)) * 256)) & 0xffff
    def cfg(w):
        hs = HOST.get(w, []); drop = DROP[w]
        nw = 8 - drop + len(hs)
        v = nw | drop << 4 | len(hs) << 6 | round(2048 / nw) << 20
        if drop: v |= RED.get(w, 63) << 8
        for k, (sp, c) in enumerate(hs): v |= (sp | c << 2) << (8 + 5 * k)
        return v
    def m3(w):
        rows = [t // 8 + 1 for v, (r, t) in enumerate(RM) if r in (C_MODA, C_MODB) and t % 8 == 3 and v % 8 == w % 8]
        return rows[0] if len(rows) == 1 and rows[0] <= 2 else 0
    hdr = open(opts["ref"]).read().split("; Override launch")[0]
    g.L.append(hdr.rstrip("\n"))
    g.L.append(""";
;    numbers of loads in flight only affect speed.""")
    g.L.append(f"; @launch grid=(256,1,1) block=(768,1,1) lds={LDS_BYTES}")
    g.L.append('.amdgcn_target "amdgcn-amd-amdhsa--gfx950"\n.text')
    g.L.append(f".globl {KNAME}\n.p2align 8\n.type {KNAME},@function\n{KNAME}:")
    g.stamp(0, 3)
    A("s_cmp_ge_u32 s2, 256")
    A("s_cbranch_scc1 L_end")
    A("s_load_dwordx16 s[16:31], s[0:1], 0")
    A("s_load_dwordx8 s[32:39], s[0:1], 64")
    A("s_load_dwordx4 s[40:43], s[0:1], 96")
    A("s_getpc_b64 s[56:57]")
    g.lab("L_pc")
    A("s_lshl_b32 s3, s2, 4")
    A("s_add_u32 s3, s3, L_table-L_pc")
    mt = lambda i: (i & 8) | ((i + 3 - ((i >> 3) << 1)) & 7)
    assert all(RM[w] == (C_Q, 8 * (w % 8) + w // 8) for w in range(64)) and all(RM[128 + i] == (C_MODA, mt(i)) for i in range(16))
    A("s_and_b32 s13, s2, 0xe8")
    A("s_cmp_eq_u32 s13, 0xc8")
    A(f"s_cselect_b32 s13, {4 if PT & 1 else 0}, 0")
    A("s_cmp_lt_u32 s2, 144")
    A("s_cselect_b32 s13, 1, s13")
    A("s_cmp_lt_u32 s2, 128")
    A(f"s_cselect_b32 s13, {3 if PT & 2 else 0}, s13")
    A("s_cmp_lt_u32 s2, 64")
    A("s_cselect_b32 s13, 2, s13")
    A("v_lshrrev_b32 v2, 6, v0")
    A("v_and_b32 v1, 63, v0")
    A("v_readfirstlane_b32 s5, v2")
    A("s_bfe_u32 s7, s2, 0x20003")
    A("s_bfe_u32 s6, s2, 0x20005")
    A("s_and_b32 s8, s2, 7")
    A("s_lshl_b32 s9, s8, 2")
    A("s_add_u32 s6, s6, s9")
    A("s_lshr_b32 s9, s2, 7")
    A("s_lshl_b32 s9, s9, 5")
    A("s_add_u32 s6, s6, s9")
    A("s_mov_b32 s72, 0xfffffffe")
    A("s_mov_b32 s73, 0xffff0000")
    g.stamp(0)
    A("s_cmp_lt_u32 s5, 4")
    A("s_cbranch_scc1 L_helper")
    stream(g, opts)

    g.lab("L_helper")
    A("s_bfe_u32 s61, s2, 0x30003"); A("s_lshl_b32 s48, s8, 3"); A("s_add_u32 s61, s61, s48")
    A("s_cmp_lt_u32 s2, 144"); A("s_cselect_b32 s48, 3, 4")
    A("s_lshr_b32 s48, s2, s48"); A("s_and_b32 s48, s48, 1"); A("s_lshl_b32 s49, s48, 1")
    A("s_add_u32 s50, s2, 3"); A("s_sub_u32 s50, s50, s49"); A("s_and_b32 s50, s50, 7")
    A("s_lshl_b32 s48, s48, 3"); A("s_or_b32 s50, s50, s48")
    A("s_cmp_lt_u32 s2, 128"); A("s_cselect_b32 s61, s61, s50")
    A("v_mov_b32 v4, -1"); A("v_mov_b32 v5, -1"); A("v_mov_b32 v6, -1"); A("v_mov_b32 v7, -1")
    A("v_mov_b32 v8, 0xff800000"); A("v_mov_b32 v9, 0"); A("v_mov_b32 v10, 0xff800000")
    A("v_lshlrev_b32 v2, 3, v1")
    A(f"ds_write_b64 v2, v[8:9] offset:{L_ST}")
    A("v_lshlrev_b32 v2, 2, v1")
    A(f"ds_write_b32 v2, v4 offset:{L_QV}")
    A("v_mov_b32 v38, 0")
    A("v_mov_b32 v39, 0xff800000")
    A(f"ds_write_b128 v38, v[4:7] offset:{L_ML}")
    A(f"ds_write_b32 v38, v38 offset:{L_CNT}")
    A(f"v_mov_b32 v8, {64*(NS_-8)}"); A("v_mov_b32 v9, v39"); A("v_mov_b32 v10, v8"); A("v_mov_b32 v11, v39")
    A(f"ds_write_b128 v38, v[8:11] offset:{L_SCN}")
    A(f"v_mov_b32 v8, {1024+8*(32-opts.get('D0', 4))}")
    LAG = opts.get("LAG", 5)
    A("v_mov_b32 v9, 0"); A("v_mov_b32 v10, 1024"); A(f"v_mov_b32 v11, {-int(opts.get('cap', 0)*256)}")
    A(f"ds_write_b128 v38, v[8:11] offset:{L_RM}")
    A("v_mov_b32 v8, 0"); A("v_mov_b32 v9, 0"); A("v_mov_b32 v10, 0"); A("v_mov_b32 v11, 0")
    A("v_lshlrev_b32 v2, 3, v0")
    A(f"ds_write_b64 v2, v[8:9] offset:{L_OP+512*6}")
    A(f"ds_write_b64 v2, v[8:9] offset:{L_OP1+512*6}")
    A(f"v_mov_b32 v8, {NS_-8}"); A(f"v_mov_b32 v9, {NS_-8}")
    A(f"ds_write_b128 v38, v[8:11] offset:{L_SN}")
    A(f"s_mov_b32 s{STG}, 4")
    A(f"s_getreg_b32 s{SXCC}, hwreg(HW_REG_XCC_ID, 0, 4)")
    A("v_lshrrev_b32 v12, 3, v0")
    A("v_lshlrev_b32 v12, 5, v12")
    A("v_bfe_u32 v3, v1, 2, 1")
    A("v_lshl_add_u32 v12, v3, 10, v12")
    A("v_and_b32 v8, 3, v1")
    A("v_lshl_add_u32 v13, v8, 3, v12")
    A("v_and_b32 v12, 0xffffffdf, v12")
    A("v_lshl_add_u32 v12, v8, 4, v12")
    A("v_bfe_u32 v8, v1, 3, 1")
    A("v_lshl_add_u32 v12, v8, 3, v12")
    A("v_lshl_add_u32 v12, v3, 5, v12")
    A("s_lshl_b32 s48, s61, 7")
    A("s_lshl_b32 s49, s5, 7"); A("s_add_u32 s49, s49, 64")
    A("v_add_u32 v8, s49, v1")
    A("s_waitcnt lgkmcnt(0)")
    A(f"s_load_dword s{ST}, s[42:43], {WS_E}")
    A("s_cmp_eq_u32 s13, 2"); A("s_cbranch_scc1 L_r_q")
    A("s_cmp_eq_u32 s13, 1"); A("s_cbranch_scc1 L_r_moda")
    A("s_load_dwordx2 s[14:15], s[56:57], s3")
    if PT & 2:
        A("s_cmp_lg_u32 s13, 3"); A("s_cbranch_scc1 L_np3")
        A("v_lshl_add_u32 v8, v8, 13, s48")
        A("global_load_dword v167, v8, s[22:23]")
        g.lab("L_np3")
    if PT & 1:
        A("s_cmp_lg_u32 s13, 4"); A("s_cbranch_scc1 L_np4")
        A("v_mul_u32_u24 v8, 6144, v8")
        A("v_add_u32 v8, s48, v8")
        A("global_load_dword v167, v8, s[36:37]")
        g.lab("L_np4")
    A("s_barrier")
    A("s_waitcnt lgkmcnt(0)")
    A("s_and_b32 s13, s14, 7")
    A("s_bfe_u32 s61, s14, 0x80008")
    A(f"s_cmp_eq_u32 s13, {C_WO}"); A("s_cbranch_scc1 L_r_wo")
    A(f"s_cmp_eq_u32 s13, {C_MODB}"); A("s_cbranch_scc1 L_r_modb")
    A(f"s_cmp_eq_u32 s13, {C_F1}"); A("s_cbranch_scc1 L_r_f1")
    A(f"s_cmp_eq_u32 s13, {C_F2}"); A("s_cbranch_scc1 L_r_f2")
    A("s_branch L_r_none")

    def tag():
        A("s_waitcnt lgkmcnt(0)")
        make_tag(g)
        A(f"s_add_u32 s{SXCC}, s{SXCC}, s{ST}")
    def line_out_addr(v, bsh=6, ush=7):
        A(f"v_and_b32 v{v}, 1, v1")
        A(f"v_lshlrev_b32 v{v}, {bsh}, v{v}")
        A("v_lshrrev_b32 v3, 4, v1")
        A(f"v_lshl_add_u32 v{v}, v3, 4, v{v}")
        A(f"s_lshl_b32 s49, s5, {ush}")
        A("s_add_u32 s49, s49, s58")
        A(f"v_add_u32 v{v}, s49, v{v}")
    def pack_tagged():
        A("v_cvt_pk_bf16_f32 v8, v8, v9")
        A("v_cvt_pk_bf16_f32 v10, v10, v11")
        A(f"v_mov_b32 v9, s{ST}")
        A(f"v_mov_b32 v11, s{ST}")
    def ln_addrs():
        A("v_bfe_u32 v6, v1, 2, 1")
        A("v_lshlrev_b32 v6, 5, v6")
        A(f"v_add_u32 v6, {L_RED}, v6")
        A("s_lshl_b32 s49, s5, 3")
        A("v_add_u32 v5, s49, v6")
    def mod_params():
        A("s_lshl_b32 s48, s61, 7")
        A("s_lshl_b32 s58, s61, 9")
        A(f"s_add_u32 s58, s58, {WS_MOD}")
        srd(g, 44, 36, 512*6144)
    def mod_act():
        unpack4(g, 16, 14)
        silu4(g, 16, 20)
        A("v_cvt_pk_bf16_f32 v14, v16, v17")
        A("v_cvt_pk_bf16_f32 v15, v18, v19")
        A(f"ds_write_b64 v12, v[14:15] offset:{L_ACT}")
    MREP = opts.get("mrep", 8)
    def mod_finish(sig):
        line_out_addr(13)
        if sig and MREP:
            A("v_bfe_u32 v3, v1, 1, 3")
            A(f"v_lshl_add_u32 v13, v3, 13, v13")
            A(f"v_add_u32 v13, {WS_MA-WS_MOD}, v13")
        act_addr(g, 14, L_ACT, ACT_BS)
        tr64_addr(g)
        if sig:
            A("s_waitcnt vmcnt(0) lgkmcnt(0)")
            g.stamp(1)
            hs_signal(g, 9); hs_wait(g, 4, 9, 0)
        else:
            hs_wait(g, 4, 9, 8)
        gemv_fused(g, 14, 8)
        pack_tagged()
        if sig and MREP:
            A(f"s_mov_b32 exec_lo, 0x{((1 << 2*MREP) - 1) * 0x10001:08x}"); A("s_mov_b32 exec_hi, exec_lo")
        else:
            for x in EX8: A(x)
        A("global_store_dwordx4 v13, v[8:11], s[42:43] sc1")
        A("s_mov_b64 exec, -1")
        g.stamp(2)

    g.lab("L_r_moda")
    mod_params()
    A("global_load_dwordx2 v[14:15], v13, s[34:35]")
    dma_tile64(g, 6144, WFL)
    A("s_barrier")
    tag()
    A("s_waitcnt vmcnt(16)")
    mod_act()
    mod_finish(1)
    A(f"ds_write_b32 v38, v38 offset:{L_GO}")
    A("s_mov_b32 s60, 0")
    A("s_branch L_svc")

    g.lab("L_r_q")
    A("s_lshl_b32 s58, s61, 8")
    A(f"s_add_u32 s58, s58, {WS_Q}")
    A("global_load_dwordx2 v[14:15], v13, s[16:17]")
    srd(g, 44, 22, 512*8192)
    dma_tile64(g, 8192, WFL)
    A("s_barrier")
    tag()
    A("s_waitcnt vmcnt(16)")
    ln_addrs()
    unpack4(g, 20, 14)
    ln_partial(g, 20)
    A("s_waitcnt vmcnt(0) lgkmcnt(0)")
    hs_signal(g, 9); hs_wait(g, 4, 9)
    ln_apply(g, 20, 24)
    A("v_lshlrev_b32 v15, 4, v0")
    if MREP:
        A(f"s_and_b32 s49, s2, {MREP-1}"); A("s_lshl_b32 s49, s49, 13"); A(f"s_add_u32 s49, s49, {WS_MA}")
        A("v_add_u32 v15, s49, v15")
    else: A(f"v_add_u32 v15, {WS_MOD}, v15")
    A("v_add_u32 v36, 0x1000, v15")
    def mod_loads():
        A("s_mov_b64 exec, s[64:65]")
        A("global_load_dwordx4 v[16:19], v15, s[42:43] sc1")
        A("s_mov_b64 exec, s[66:67]")
        A("global_load_dwordx4 v[32:35], v36, s[42:43] sc1")
        A("s_mov_b64 exec, -1")
    A("s_mov_b64 s[64:65], -1"); A("s_mov_b64 s[66:67], -1")
    mod_loads()
    tr_tile64(g)
    line_out_addr(13, 14, 6)
    act_addr(g, 14, L_ACT, ACT_BS)
    g.stamp(1)
    A("s_mov_b32 s70, 0")
    A("s_branch L_q_c")
    g.lab("L_q_p")
    mod_loads()
    g.lab("L_q_c")
    A("s_waitcnt vmcnt(0)")
    A(f"v_cmp_ne_u32 s[64:65], s{ST}, v17"); A(f"v_cmp_ne_u32 s[68:69], s{ST}, v19"); A("s_or_b64 s[64:65], s[64:65], s[68:69]")
    A(f"v_cmp_ne_u32 s[66:67], s{ST}, v33"); A(f"v_cmp_ne_u32 s[68:69], s{ST}, v35"); A("s_or_b64 s[66:67], s[66:67], s[68:69]")
    A("s_or_b64 vcc, s[64:65], s[66:67]")
    spin_tail(g, "L_q_p", "L_q_ok", opts.get("msleep", 0))
    g.stamp(7)
    unpack4(g, 28, 32, 2)
    unpack4(g, 24, 16, 2)
    for i in range(4): A(f"v_add_f32 v{28+i}, 1.0, v{28+i}")
    for i in range(4): rnd(g, 28+i)
    for i in range(4): A(f"v_mul_f32 v{20+i}, v{20+i}, v{28+i}")
    for i in range(4): rnd(g, 20+i)
    for i in range(4): A(f"v_add_f32 v{20+i}, v{20+i}, v{24+i}")
    A("v_cvt_pk_bf16_f32 v16, v20, v21")
    A("v_cvt_pk_bf16_f32 v17, v22, v23")
    A(f"ds_write_b64 v12, v[16:17] offset:{L_ACT}")
    hs_signal(g, 9); hs_wait(g, 8, 9, 0)
    if opts.get("gop", 0) == 0: A(f"ds_write_b32 v38, v38 offset:{L_GO}")
    gemv(g, 16, 14, 8)
    pack_tagged()
    guard(g, 8); guard(g, 10)
    for x in EX8: A(x)
    A("global_store_dwordx4 v13, v[8:11], s[42:43] sc1")
    A("s_mov_b64 exec, -1")
    if opts.get("gop", 0) == 1: A(f"ds_write_b32 v38, v38 offset:{L_GO}")
    g.stamp(2)
    A("s_mov_b32 s60, 0")
    A("s_branch L_svc")

    PD = opts.get("PD", 4)
    def dma_waves_only(skip, late=0, early3=0):
        A("s_sub_u32 s53, s5, 1")
        A("s_cmp_gt_u32 s53, 1")
        A(f"s_cbranch_scc1 {skip}")
        if late:
            e3 = g.uniq("l3")
            if early3:
                A("s_and_b32 s49, s61, 7"); A("s_cmp_lg_u32 s49, 3"); A(f"s_cbranch_scc1 {e3}")
                dma_tile64(g, early3, WFL, PD)
                A(f"s_branch {skip}")
                g.lab(e3)
            l = g.uniq("lt"); e = g.uniq("ltd")
            A("s_mov_b32 s70, 0")
            g.lab(l)
            A(f"ds_read_b32 v8, v38 offset:{L_RM}")
            A("s_waitcnt lgkmcnt(0)")
            A(f"v_cmp_lt_u32 vcc, {1024 + 8 * (32 - late)}, v8")
            spin_tail(g, l, e, 4, 8)
    g.lab("L_r_modb")
    mod_params()
    A("global_load_dwordx2 v[14:15], v13, s[34:35]")
    tag()
    A("s_waitcnt vmcnt(0)")
    mod_act()
    A("s_mov_b32 s60, 4")
    dma_waves_only("L_sig", late_steps(opts)["b"], 6144)
    dma_tile64(g, 6144, WFL, opts.get("PDB", PD))
    A("s_branch L_sig")

    g.lab("L_r_wo")
    A("s_lshl_b32 s48, s8, 19")
    A("s_lshl_b32 s49, s61, 7")
    A("s_add_u32 s48, s48, s49")
    A("s_lshl_b32 s58, s8, 12")
    A("s_lshl_b32 s49, s61, 9")
    A("s_add_u32 s58, s58, s49")
    A(f"s_add_u32 s58, s58, {WS_AP}")
    srd(g, 44, 24, 4096*1024)
    tag()
    e = g.uniq("sig")
    A("s_cmp_lg_u32 s5, 3"); A(f"s_cbranch_scc1 {e}")
    A("s_lshl_b32 s56, s8, 5"); A("s_add_u32 s56, s56, s61"); A("s_lshl_b32 s56, s56, 2")
    A("v_mov_b32 v8, s56"); A(f"v_mov_b32 v9, s{SXCC}")
    A("s_mov_b64 exec, 1")
    A(f"global_store_dword v8, v9, s[42:43] offset:{WS_HDR} sc1")
    A("s_mov_b64 exec, -1")
    g.lab(e)
    A("s_mov_b32 s60, 1")
    dma_waves_only("L_sig", late_steps(opts)["w"], 1024)
    dma_tile64(g, 1024, WFL, opts.get("PDW", PD))
    A("s_branch L_sig")

    g.lab("L_r_f1")
    A("s_lshl_b32 s48, s61, 6")
    A("s_lshl_b32 s58, s61, 12")
    A(f"s_add_u32 s58, s58, {WS_FP}")
    tag()
    A("s_cmp_lt_u32 s5, 2")
    A("s_cselect_b32 s44, s28, s30")
    A("s_cselect_b32 s45, s29, s31")
    A(f"s_mov_b32 s46, {512*2752}"); A("s_mov_b32 s47, 0x20000")
    A("s_mov_b32 s60, 2")
    dma_waves_only("L_sig", late_steps(opts)["f"])
    for h in range(2):
        A("s_and_b32 s54, s61, 1" if h == 0 else "s_andn2_b32 s54, 1, s61")
        A("v_lshrrev_b32 v2, 2, v1")
        A("v_mul_u32_u24 v2, 5504, v2")
        A("s_and_b32 s49, s5, 2")
        A("s_or_b32 s49, s49, s54")
        A("v_xor_b32 v3, s49, v1")
        A("v_and_b32 v3, 3, v3")
        A("v_lshl_add_u32 v2, v3, 4, v2")
        A("s_mul_i32 s49, s54, 2752"); A("s_add_u32 s49, s49, s48")
        A("s_lshl_b32 s50, s53, 15"); A("s_lshl_b32 s54, s54, 14"); A("s_add_u32 s50, s50, s54")
        A(f"s_add_u32 s50, s50, {L_WT}")
        dma_loop(g, 16, 32*2752, "" if h == 0 else WFL, opts.get("PD1", 4))
    srd(g, 44, 32, 1376*1024)
    A("v_lshlrev_b32 v2, 4, v1")
    A("s_lshl_b32 s49, s61, 1"); A("s_add_u32 s49, s49, s53"); A("s_lshl_b32 s49, s49, 14")
    A(f"s_mul_i32 s50, s53, {16*W2S}")
    A(f"s_add_u32 s50, s50, {L_W2}")
    dma_loop(g, 16, 1024, WFL, opts.get("PD2", 6), W2S)
    A("s_branch L_sig")

    def guests():
        e = g.uniq("gs")
        A("s_sub_u32 s53, s5, 1")
        A("s_cmp_gt_u32 s53, 1"); A(f"s_cbranch_scc1 {e}")
        A("s_bfe_u32 s49, s15, 0x20006")
        A("s_cmp_ge_u32 s53, s49"); A("s_cbranch_scc1 L_end")
        A("s_mul_i32 s49, s53, 5"); A("s_add_u32 s49, s49, 8"); A("s_lshr_b32 s49, s15, s49")
        A("s_and_b32 s4, s49, 3"); A("s_lshl_b32 s4, s4, 18")
        A("s_bfe_u32 s11, s49, 0x30002"); A("s_lshl_b32 s11, s11, 10")
        A("s_add_u32 s9, s53, 8")
        A("s_mov_b32 s13, -1")
        A("s_branch L_stream")
        g.lab(e)
    g.lab("L_r_f2")
    A(f"s_mov_b32 s60, {0 if RAW else 3}")
    guests()
    e = g.uniq("tch")
    A("s_cmp_lg_u32 s5, 3"); A(f"s_cbranch_scc1 {e}")
    A("s_and_b32 s49, s61, 3"); A("s_lshl_b32 s49, s49, 7")
    A("v_add_u32 v8, s49, v1")
    def touch(base, stride, off_s, second):
        A(f"v_mul_u32_u24 v9, {stride}, v8")
        A(f"v_add_u32 v9, {off_s}, v9")
        A(f"global_load_dword v167, v9, s[{base}:{base+1}]")
        if second:
            A(f"v_add_u32 v10, {64*stride}, v9")
            A(f"global_load_dword v167, v10, s[{base}:{base+1}]")
    e2 = g.uniq("tchm")
    A("s_bfe_u32 s50, s14, 0x50003")
    A("s_cmp_eq_u32 s50, 0"); A(f"s_cbranch_scc1 {e2}")
    A("s_lshl_b32 s50, s50, 10"); A(f"s_sub_u32 s50, s50, {1024-384}")
    touch(36, 6144, "s50", opts.get("t2", 1))
    g.lab(e2)
    A("s_lshl_b32 s50, s8, 10"); A("s_add_u32 s50, s50, 384")
    touch(22, 8192, "s50", opts.get("t2", 1))
    g.lab(e)
    g.lab("L_light")
    tag()
    A("s_cmp_eq_u32 s5, 3"); A("s_cbranch_scc1 L_lt3")
    A("s_bfe_u32 s49, s15, 0x20006"); A("s_sub_u32 s49, 0, s49")
    slot_done(g, 38, "s49", 32 - opts.get("D0", 4))
    hs_signal(g, 9)
    A("s_branch L_svc")
    g.lab("L_lt3")
    hs_wait(g, 1, 9, 2)
    A("s_branch L_svc")

    g.lab("L_r_none")
    A("s_mov_b32 s60, 0")
    guests()
    A("s_branch L_light")

    g.lab("L_sig")
    A("s_waitcnt vmcnt(0) lgkmcnt(0)")
    g.stamp(1)
    hs_signal(g, 9)

    g.lab("L_svc")
    def merge(nl, base):
        A(f"v_and_b32 v9, {nl-1}, v1")
        A("v_lshlrev_b32 v9, 3, v9")
        A(f"ds_read_b64 v[10:11], v9 offset:{base}")
        mods = ["quad_perm:[1,0,3,2]", "quad_perm:[2,3,0,1]", "row_half_mirror", "row_mirror"][:nl.bit_length()-1]
        A("s_waitcnt lgkmcnt(0)")
        if nl == 16: A("v_mov_b32 v16, v10")
        for i, m_ in enumerate(mods):
            src = 10 if i == 0 else 8
            A(f"v_max_f32_dpp v8, v{src}, v{src} {m_} row_mask:0xf bank_mask:0xf")
            if i + 1 < len(mods): A("s_nop 1")
        A("v_sub_f32 v9, v10, v8")
        A(f"v_mul_f32 v9, 0x{LOG2E:08x}, v9")
        A("v_exp_f32 v9, v9")
        A("s_nop 0")
        A("v_mul_f32 v10, v9, v11")
        for m_ in mods:
            A("s_nop 1")
            A(f"v_add_f32_dpp v10, v10, v10 {m_} row_mask:0xf bank_mask:0xf")
    SB = 20
    def spoll(nd, off, name):
        A("s_lshl_b32 s64, s6, 9")
        for i in range(3):
            A(f"s_xor_b32 s{54+i}, s7, {i+1}"); A(f"s_lshl_b32 s{54+i}, s{54+i}, 7"); A(f"s_add_u32 s{54+i}, s{54+i}, s64")
        A("s_mov_b32 s70, 0")
        g.lab(name)
        for i in range(3): A(f"s_load_dwordx{nd} s[{SB+4*i}:{SB+4*i+nd-1}], s[42:43], s{54+i} offset:{off} glc")
        A("s_waitcnt lgkmcnt(0)")
        tags = [SB + 4*i + k for i in range(3) for k in range(1, nd, 2)]
        A(f"s_xor_b32 s68, s{tags[0]}, s{ST}")
        for k in tags[1:]:
            if k % 4 == 3: A(f"s_sub_u32 s69, s{k}, s{ST}"); A("s_lshr_b32 s69, s69, 4")
            else: A(f"s_xor_b32 s69, s{k}, s{ST}")
            A("s_or_b32 s68, s68, s69")
        A(f"s_cbranch_scc0 {name}d")
        if opts.get("ssl", 2): A(f"s_sleep {opts.get('ssl', 2)}")
        A("s_add_u32 s70, s70, 1")
        A(f"s_cmp_lt_u32 s70, {SPIN_MAX}")
        A(f"s_cbranch_scc1 {name}")
        g.lab(name + "d")
        A(f"v_mov_b32 v8, s{SB}"); A(f"v_mov_b32 v10, s{SB+4}"); A(f"v_mov_b32 v16, s{SB+8}")
        A("v_max3_f32 v18, v8, v10, v16")
        A("v_mov_b32 v19, 0x10000")
    def own_line(base):
        A("s_lshl_b32 s64, s6, 2"); A("s_add_u32 s64, s64, s7"); A("s_lshl_b32 s64, s64, 7")
        A(f"s_add_u32 s64, s64, {base}")
        A("v_mov_b32 v18, s64")
    A("s_cmp_eq_u32 s5, 3")
    A("s_cbranch_scc1 L_svc3")
    A("s_cmp_lg_u32 s5, 0")
    A("s_cbranch_scc1 L_mid")
    own_line(WS_S1)
    wait_cnt(g, f"ds_read_b64 v[8:9], v38 offset:{L_ECN}", 8, 64 * NS_, 2, 0xffff)
    A("v_mov_b32 v8, v9")
    A(f"v_mov_b32 v9, s{ST}")
    A("s_mov_b64 exec, 1")
    A("global_store_dwordx2 v18, v[8:9], s[42:43] sc1")
    A("s_mov_b64 exec, -1")
    A("s_lshl_b32 s64, s8, 7")
    A(f"s_load_dwordx8 s[20:27], s[42:43], s64 offset:{WS_HDR} glc")
    A("s_waitcnt lgkmcnt(0)")
    A(f"s_xor_b32 s68, s20, s{SXCC}")
    for k in range(1, 8):
        A(f"s_xor_b32 s69, s{20+k}, s{SXCC}"); A("s_or_b32 s68, s68, s69")
    A("s_cselect_b32 s68, 0, 1")
    if opts.get("nolocal"): A("s_mov_b32 s68, 0")
    A("v_mov_b32 v8, s68")
    A("s_mov_b64 exec, 1")
    A(f"ds_add_u32 v38, v8 offset:{L_LOC}")
    A("s_mov_b64 exec, -1")
    A("s_branch L_mid")
    g.lab("L_svc3")
    wait_cnt(g, f"ds_read_b32 v8, v38 offset:{L_ECN}", 8, opts.get("e1", 6) * 64, 4)
    spoll(2, WS_S1, "L_s3e")
    A("v_med3_f32 v17, v8, v10, v16")
    A("v_min3_f32 v16, v8, v10, v16")
    A("s_mov_b64 exec, 1")
    A(f"ds_write_b96 v38, v[16:18] offset:{L_E1}")
    A(f"ds_add_u32 v38, v19 offset:{L_ECN}")
    A("s_mov_b64 exec, -1")

    g.lab("L_mid")
    LATEW = late_steps(opts)["w"] >= 12; LATEB = late_steps(opts)["b"] >= 12
    TB = 32
    for i in range(4): A(f"s_bfe_u32 s{TB+i}, s{ST}, 0x{(8 << 16) | (8 * i):x}")
    A("s_cmp_eq_u32 s60, 2"); A("s_cbranch_scc1 L_pre_f1")
    A("s_cmp_eq_u32 s60, 3"); A("s_cbranch_scc1 L_pre_f2")
    A("s_cmp_eq_u32 s60, 1"); A("s_cbranch_scc1 L_pre_wo")
    if not LATEB:
        A("s_cmp_lg_u32 s60, 4"); A("s_cbranch_scc1 L_svd")
        mod_finish(0)
    A("s_branch L_svd")

    g.lab("L_pre_wo")
    if not LATEW:
        hs_wait(g, 4, 9, 8)
        tr_tile64(g)
    A("s_lshl_b32 s49, s8, 2"); A("s_add_u32 s49, s49, s5"); A("s_lshl_b32 s49, s49, 11")
    A(f"s_add_u32 s49, s49, {WS_OP}")
    A("v_lshrrev_b32 v12, 5, v1")
    A("v_and_b32 v16, 31, v1")
    A("v_lshlrev_b32 v15, 16, v12")
    A("v_lshl_add_u32 v15, v16, 4, v15")
    A("v_add_u32 v15, s49, v15")
    A(f"v_mul_u32_u24 v12, {ACT_BS}, v12")
    A("v_bfe_u32 v16, v1, 3, 2")
    A("v_lshl_add_u32 v12, v16, 6, v12")
    A("v_and_b32 v16, 3, v1")
    A("v_lshl_add_u32 v12, v16, 4, v12")
    A("v_bfe_u32 v16, v1, 2, 1")
    A("v_lshl_add_u32 v12, v16, 3, v12")
    A("s_lshl_b32 s49, s5, 8")
    A("v_add_u32 v12, s49, v12")
    act_addr(g, 14, L_ACT, ACT_BS)
    line_out_addr(13)
    A("v_mov_b32 v36, 0xff")
    A("s_branch L_svd")

    g.lab("L_pre_f1")
    A("v_mov_b32 v37, v13")
    A("v_lshlrev_b32 v15, 4, v0")
    A(f"v_add_u32 v39, {WS_MOD+3*4096}, v15")
    A(f"v_add_u32 v15, {WS_AP+4096}, v15")
    A("v_lshrrev_b32 v5, 2, v0")
    A("v_lshlrev_b32 v5, 3, v5")
    A(f"v_add_u32 v5, {L_RED}, v5")
    A("v_lshlrev_b32 v7, 3, v1")
    A(f"v_add_u32 v7, {L_RED}, v7")
    A("v_and_b32 v14, 7, v1")
    A(f"v_mul_u32_u24 v14, {ACT_BS}, v14")
    A("v_lshrrev_b32 v3, 4, v1")
    A("v_lshl_add_u32 v14, v3, 4, v14")
    A("v_bfe_u32 v6, v1, 2, 2")
    A("v_lshl_add_u32 v6, v3, 3, v6")
    A(f"v_mul_u32_u24 v6, {W2S}, v6")
    A("v_and_b32 v8, 3, v1")
    A("v_lshl_add_u32 v6, v8, 3, v6")
    A("s_lshl_b32 s49, s5, 8"); A(f"s_add_u32 s49, s49, {L_W2}")
    A("v_add_u32 v6, s49, v6")
    A("v_lshlrev_b32 v10, 3, v0")
    A(f"v_add_u32 v10, {L_HZ}, v10")
    A("v_mov_b32 v8, 0"); A("v_mov_b32 v9, 0")
    A("ds_write_b64 v10, v[8:9]")
    def f1_addrs():
        A("v_and_b32 v39, 1, v1")
        A("v_lshlrev_b32 v39, 6, v39")
        A(f"v_add_u32 v39, {L_HH}, v39")
        A("v_lshrrev_b32 v3, 4, v1")
        A("v_lshl_add_u32 v37, v3, 4, v39")
        A("v_bfe_u32 v3, v1, 1, 3")
        A("v_lshlrev_b32 v3, 7, v3")
        A("v_sub_u32 v37, v37, v3")
        A("v_bfe_u32 v3, v1, 4, 1")
        A("v_lshl_add_u32 v39, v3, 3, v39")
        A("v_lshrrev_b32 v3, 5, v1")
        A("v_lshl_add_u32 v39, v3, 2, v39")
        A("s_lshl_b32 s49, s5, 4")
        A("v_add_u32 v39, s49, v39")
    line_out_addr(13, 6, 10)
    A("v_bfe_u32 v3, v1, 1, 3")
    A("v_lshl_add_u32 v13, v3, 7, v13")
    A("v_lshrrev_b32 v2, 3, v1")
    A("v_lshlrev_b32 v2, 6, v2")
    A("v_bfe_u32 v3, v1, 2, 1")
    A("v_lshl_add_u32 v2, v3, 14, v2")
    A("v_and_b32 v8, 2, v1")
    A("v_or_b32 v3, v3, v8")
    A("v_xor_b32 v3, s5, v3")
    A("v_lshl_add_u32 v2, v3, 4, v2")
    A("v_lshl_add_u32 v2, v8, 14, v2")
    A("v_and_b32 v3, 1, v1")
    A("v_lshl_add_u32 v2, v3, 3, v2")
    A(f"v_add_u32 v2, {L_WT}, v2")
    A("s_branch L_svd")

    g.lab("L_pre_f2")
    A("v_bfe_u32 v12, v1, 2, 1")
    A("v_and_b32 v14, 3, v1")
    A("s_lshl_b32 s49, s61, 5")
    A("v_lshl_add_u32 v3, v14, 3, s49")
    A("v_lshl_add_u32 v37, v12, 10, v3")
    A("v_and_b32 v15, 7, v1")
    A("s_lshl_b32 s49, s61, 7")
    A("v_lshl_add_u32 v15, v15, 4, s49")
    A(f"v_add_u32 v39, {WS_MOD+3*4096}, v15")
    A("v_lshrrev_b32 v3, 3, v1")
    A("v_lshl_add_u32 v15, v3, 12, v15")
    A(f"v_add_u32 v15, {WS_AP}, v15")

    g.lab("L_svd")
    A("s_cmp_eq_u32 s5, 3")
    A("s_cbranch_scc1 L_svd3")
    A("s_cmp_lg_u32 s5, 0")
    A("s_cbranch_scc1 L_tail")
    own_line(WS_S2)
    wait_cnt(g, f"ds_read_b32 v8, v38 offset:{L_SCN}", 8, 64 * NS_, 1, 0xffff)
    merge(16, L_ST)
    A(f"v_mov_b32 v9, s{ST}"); A(f"v_mov_b32 v11, s{SXCC}")
    A("s_mov_b64 exec, 1")
    A("global_store_dwordx4 v18, v[8:11], s[42:43] sc1")
    A(f"ds_write_b32 v38, v8 offset:{L_S4}")
    A(f"ds_write_b32 v38, v10 offset:{L_S4+4}")
    A("s_mov_b64 exec, -1")
    g.stamp(4)
    wait_cnt(g, f"ds_read_b32 v8, v38 offset:{L_SCN}", 8, 0x10000, 1)
    merge(4, L_S4)
    A("v_sub_f32 v9, v16, v8")
    A("v_rcp_f32 v10, v10")
    A(f"v_mul_f32 v9, 0x{LOG2E:08x}, v9")
    A("v_exp_f32 v9, v9")
    A("v_lshlrev_b32 v8, 2, v1")
    A("v_mul_f32 v9, v9, v10")
    A("s_mov_b64 exec, 0xffff")
    A(f"ds_write_b32 v8, v9 offset:{L_S8}")
    A("s_mov_b64 exec, -1")
    A(f"ds_write_b32 v38, v38 offset:{L_ML}")
    g.stamp(5)
    wait_cnt(g, f"ds_read_b32 v8, v38 offset:{L_SN}", 8, NS_, 1)
    op_publish(g, L_OP1, VA, 38, 0, True)
    g.stamp(6)
    if opts.get("stamps"):
        A("s_waitcnt vmcnt(0)")
        g.stamp(3)
    def uncap():
        A(f"ds_write_b32 v38, v38 offset:{L_RM+12}")
    if "cap" in opts:
        if opts.get("capw", 1): A("s_cmp_eq_u32 s60, 1"); A("s_cbranch_scc1 L_tail")
        A("s_waitcnt vmcnt(0)")
        uncap()
    A("s_branch L_tail")
    g.lab("L_svd3")
    wait_cnt(g, f"ds_read_b32 v8, v38 offset:{L_SCN}", 8, opts.get("e2", 6) * 64, 4)
    spoll(4, WS_S2, "L_s3p")
    A(f"v_mov_b32 v9, s{SB+2}"); A(f"v_mov_b32 v11, s{SB+6}"); A(f"v_mov_b32 v17, s{SB+10}")
    A(f"s_xor_b32 s68, s{SB+3}, s{SXCC}")
    for k in (SB+7, SB+11):
        A(f"s_xor_b32 s69, s{k}, s{SXCC}"); A("s_or_b32 s68, s68, s69")
    A("s_cselect_b32 s68, 0, 1")
    A("v_mov_b32 v3, s68")
    A("s_mov_b64 exec, 1")
    A(f"ds_add_u32 v38, v3 offset:{L_LOC}")
    A(f"ds_max_f32 v38, v18 offset:{L_MX}")
    A(f"ds_write_b64 v38, v[8:9] offset:{L_S4+8}")
    A(f"ds_write_b64 v38, v[10:11] offset:{L_S4+16}")
    A(f"ds_write_b64 v38, v[16:17] offset:{L_S4+24}")
    A(f"ds_add_u32 v38, v19 offset:{L_SCN}")
    A("s_mov_b64 exec, -1")
    g.stamp(4)

    g.lab("L_tail")
    A("s_cmp_eq_u32 s60, 0"); A("s_cbranch_scc1 L_fin")
    A("s_cmp_lg_u32 s60, 4"); A("s_cbranch_scc1 L_tl2")
    if LATEB: mod_finish(0)
    A("s_branch L_fin")
    g.lab("L_tl2")
    if opts.get("notail") == 1: A("s_branch L_fin")
    if opts.get("notail") == 2: A("s_cmp_lg_u32 s60, 1"); A("s_cbranch_scc1 L_fin")
    if LATEW:
        A("s_cmp_lg_u32 s60, 1"); A("s_cbranch_scc1 L_tl3")
        hs_wait(g, 4, 9, 4)
        tr_tile64(g)
        g.lab("L_tl3")
    wait_cnt(g, f"ds_read_b32 v8, v38 offset:{L_SN}", 8, NS_, 8)
    def after(n16):
        if not n16: return
        l = g.uniq("af"); e = g.uniq("afd")
        A(f"ds_read_b32 v8, v38 offset:{L_RM+8}")
        A("s_waitcnt lgkmcnt(0)")
        A("v_subrev_u32 v8, 1024, v8")
        A(f"v_mul_i32_i24 v8, {n16}, v8")
        A("v_ashrrev_i32 v8, 4, v8")
        A("v_add_u32 v9, 1032, v8")
        A("s_mov_b32 s70, 0")
        g.lab(l)
        A(f"ds_read_b32 v8, v38 offset:{L_RM+8}")
        A("s_waitcnt lgkmcnt(0)")
        A("v_cmp_lt_u32 vcc, v9, v8")
        spin_tail(g, l, e, 4, 8)
    A("s_cmp_eq_u32 s60, 1"); A("s_cbranch_scc1 L_t_wo0")
    A("s_cmp_eq_u32 s60, 3"); A("s_cbranch_scc1 L_t_f2")
    hs_wait(g, 4, 9, 8)
    A("s_branch L_t_f1")

    def sumN(n, src, dst):
        st = n // 2
        for i in range(st):
            for h in range(2):
                A(f"v_pk_add_f32 {vr(dst+4*i+2*h,2)}, {vr(src+4*i+2*h,2)}, {vr(src+4*(i+st)+2*h,2)}")
        st //= 2
        while st:
            for i in range(st):
                for h in range(2):
                    A(f"v_pk_add_f32 {vr(dst+4*i+2*h,2)}, {vr(dst+4*i+2*h,2)}, {vr(dst+4*(i+st)+2*h,2)}")
            st //= 2
    def sum8p(src, dst):
        for p in range(4):
            for h in range(2): A(f"v_pk_add_f32 {vr(dst+8*p+2*h,2)}, {vr(src+8*p+2*h,2)}, {vr(src+8*p+4+2*h,2)}")
        sum8q(dst)
    def sum8q(dst):
        for i in range(2):
            for h in range(2): A(f"v_pk_add_f32 {vr(dst+16*i+2*h,2)}, {vr(dst+16*i+2*h,2)}, {vr(dst+16*i+8+2*h,2)}")
        for h in range(2): A(f"v_pk_add_f32 {vr(dst+2*h,2)}, {vr(dst+2*h,2)}, {vr(dst+16+2*h,2)}")
    def x1_from(S):
        for i in range(4): rnd(g, S+i)
        for i in range(4): A(f"v_mul_f32 v{S+i}, v{S+i}, v{20+i}")
        for i in range(4): rnd(g, S+i)
        for i in range(4): A(f"v_add_f32 v{16+i}, v{16+i}, v{S+i}")
        for i in range(4): rnd(g, 16+i)
    TSL = opts.get("tsl", 0)

    g.lab("L_t_wo0")
    after(opts.get("aw", 0))
    g.lab("L_t_wo")
    def gather(n, load, raw, tmp, name, depth, gap, fin, msk=20, first=None):
        for i in range(n): A(f"s_mov_b64 s[{msk+2*i}:{msk+2*i+1}], {first[i] if first else -1}")
        def rnd_():
            for i in range(n):
                A(f"s_mov_b64 exec, s[{msk+2*i}:{msk+2*i+1}]")
                load(i, raw + 4*i)
            A("s_mov_b64 exec, -1")
        rnd_()
        A("s_waitcnt vmcnt(0)")
        A("s_mov_b32 s70, 0")
        A(f"s_branch {name}c")
        g.lab(name)
        rnd_()
        if gap: A(f"s_sleep {gap}")
        A(f"s_waitcnt vmcnt({n*(depth-1)})")
        g.lab(name + "c")
        for k in range(4*n): A(f"v_xor_b32 v{tmp+k}, s{TB+k%4}, v{raw+k}")
        for i in range(n): A(f"v_or3_b32 v{28+i}, v{tmp+4*i}, v{tmp+4*i+1}, v{tmp+4*i+2}")
        for i in range(n): A(f"v_or_b32 v{28+i}, v{28+i}, v{tmp+4*i+3}")
        for i in range(n): A(f"v_cmp_ne_u32_sdwa s[{msk+2*i}:{msk+2*i+1}], v{28+i}, v38 src0_sel:BYTE_0 src1_sel:DWORD")
        fin()
        A(f"s_mov_b64 vcc, s[{msk}:{msk+1}]")
        for i in range(1, n): A(f"s_or_b64 vcc, vcc, s[{msk+2*i}:{msk+2*i+1}]")
        for i in range(n): A(f"s_or_b32 s{msk+2*i}, s{msk+2*i}, 1")
        spin_tail(g, name, name + "ok", 0)
    def wo_fin():
        for i in range(16): A(f"v_or_b32 v{VA+32+i}, 0x80, v{VA+32+i}")
        sumN(4, VA+32, 16)
    gather(4, lambda i, r: A(f"global_load_dwordx4 {vr(r,4)}, v15, s[42:43] offset:{512*i} sc1"), VA+48, VA+32, "L_wo_",
           opts.get("wpipe", 1), opts.get("wgap", 0), wo_fin)
    A("v_cvt_pk_bf16_f32 v8, v16, v17")
    A("v_cvt_pk_bf16_f32 v9, v18, v19")
    g.stamp(7)
    A(f"ds_write_b64 v12, v[8:9] offset:{L_ACT}")
    hsync(g, 10)
    if "cap" in opts and opts.get("capw", 1) == 1: uncap()
    gemv(g, 16, 14, 8, 12)
    for i in range(4): A(f"v_bfi_b32 v{8+i}, v36, s{TB+i}, v{8+i}")
    for x in EX8: A(x)
    A("global_store_dwordx4 v13, v[8:11], s[42:43] sc1")
    g.stamp(2)
    if "cap" in opts and opts.get("capw", 1) == 2: uncap()
    A("s_branch L_fin")

    PG = VA + 32
    def pre_gather(offs):
        n = len(offs)
        l = g.uniq("pg"); e = g.uniq("pge")
        A("global_load_dwordx2 v[8:9], v37, s[16:17]")
        A("s_mov_b32 s70, 0")
        g.lab(l)
        for i, o in enumerate(offs):
            if -4096 <= o < 4096: A(f"global_load_dwordx4 {vr(PG+4*i,4)}, v39, s[42:43] offset:{o} sc1")
            else:
                A(f"v_add_u32 v3, {o}, v39")
                A(f"global_load_dwordx4 {vr(PG+4*i,4)}, v3, s[42:43] sc1")
        A("s_waitcnt vmcnt(0)")
        A("s_mov_b64 vcc, 0")
        for i in range(2 * n):
            A(f"v_cmp_ne_u32 s[68:69], s{ST}, v{PG+1+2*i}")
            A("s_or_b64 vcc, vcc, s[68:69]")
        spin_tail(g, l, e, 8)
    adr = [15, 4, 0, 36]
    def ap_addrs():
        for p in range(1, 4): A(f"v_add_u32 v{adr[p]}, {8192*p}, v15")
    def ap_load(i): A(f"global_load_dwordx4 {vr(VA+4*i,4)}, v{adr[i>>1]}, s[42:43] offset:{-4096 if i % 2 == 0 else 0} sc1")

    g.lab("L_t_f1")
    tr_reads(g, 16, 1024, 512)
    ap_addrs()
    pre_gather([-4096, 0, 4096])
    f1_addrs()
    unpack4(g, 16, 8)
    unpack4(g, 20, PG, 2)
    unpack4(g, 28, PG+8, 2)
    for i in range(4): A(f"v_add_f32 v{28+i}, 1.0, v{28+i}")
    A("v_cvt_pk_bf16_f32 v8, v28, v29"); A("v_cvt_pk_bf16_f32 v9, v30, v31")
    A(f"v_mov_b32 v{PG+5}, v{PG+6}")
    A(f"ds_write_b64 v12, v[8:9] offset:{L_ACT+2*ACT_BS}")
    A(f"ds_write_b64 v12, {vr(PG+4,2)} offset:{L_ACT+4*ACT_BS}")
    for i in range(4): rnd(g, 28+i)
    for i in range(4): A(f"v_mul_f32 v{24+i}, v{20+i}, v{28+i}")
    for i in range(4): A(f"v_mul_f32 v{28+i}, v{16+i}, v{28+i}")
    A("s_waitcnt lgkmcnt(0)")
    after(opts.get("a1", 8))
    g.stamp(9)
    S = VA + 32
    A("s_mov_b32 s70, 0")
    A("s_mov_b32 s71, 15")
    def ap_check():
        for k in range(32): A(f"v_xor_b32 v{S+k}, s{TB+k%4}, v{VA+k}")
        for p in range(4): A(f"v_or3_b32 v{8+p}, v{S+8*p}, v{S+8*p+1}, v{S+8*p+2}")
        for p in range(4): A(f"v_or3_b32 v{8+p}, v{8+p}, v{S+8*p+3}, v{S+8*p+4}")
        for p in range(4): A(f"v_or3_b32 v{8+p}, v{8+p}, v{S+8*p+5}, v{S+8*p+6}")
        for p in range(4): A(f"v_or_b32 v{8+p}, v{8+p}, v{S+8*p+7}")
        A("v_or3_b32 v3, v8, v9, v10")
        A("v_or_b32 v3, v3, v11")
        A("v_lshlrev_b32 v3, 24, v3")
        A("v_cmp_ne_u32 vcc, 0, v3")
    g.lab("L_f1_p")
    if TSL: A(f"s_sleep {TSL}")
    A("s_add_u32 s70, s70, 1")
    A(f"s_cmp_ge_u32 s70, {SPIN_MAX}")
    A("s_cbranch_scc1 L_f1_ok")
    for p in range(4):
        l = g.uniq("fl")
        A(f"s_bitcmp1_b32 s71, {p}"); A(f"s_cbranch_scc0 {l}")
        ap_load(2*p); ap_load(2*p+1)
        g.lab(l)
    A("s_waitcnt vmcnt(0)")
    for p in range(4):
        l = g.uniq("fc")
        A(f"s_bitcmp1_b32 s71, {p}"); A(f"s_cbranch_scc0 {l}")
        B_ = VA + 8 * p
        for k in range(8): A(f"v_xor_b32 v{B_+k}, s{TB+k%4}, v{B_+k}")
        A(f"v_or3_b32 v8, v{B_}, v{B_+1}, v{B_+2}")
        A(f"v_or3_b32 v9, v{B_+3}, v{B_+4}, v{B_+5}")
        A(f"v_or3_b32 v8, v8, v{B_+6}, v{B_+7}")
        for h in range(2): A(f"v_pk_add_f32 {vr(S+8*p+2*h,2)}, {vr(B_+2*h,2)}, {vr(B_+4+2*h,2)}")
        A("v_or_b32 v8, v8, v9")
        A("v_lshlrev_b32 v8, 24, v8")
        A("v_cmp_ne_u32 vcc, 0, v8")
        A("s_cmp_lg_u64 vcc, 0"); A(f"s_cbranch_scc1 {l}")
        A(f"s_bitset0_b32 s71, {p}")
        g.lab(l)
    A("s_cmp_lg_u32 s71, 0")
    A("s_cbranch_scc1 L_f1_p")
    g.lab("L_f1_ok")
    sum8q(S)
    g.stamp(7)
    for h in range(2): A(f"v_pk_fma_f32 {vr(8+2*h,2)}, {vr(S+2*h,2)}, {vr(24+2*h,2)}, {vr(28+2*h,2)}")
    A("v_cvt_pk_bf16_f32 v8, v8, v9")
    A("v_cvt_pk_bf16_f32 v9, v10, v11")
    A(f"ds_write_b64 v12, v[8:9] offset:{L_ACT}")
    for h in range(2): A(f"v_pk_fma_f32 {vr(16+2*h,2)}, {vr(S+2*h,2)}, {vr(20+2*h,2)}, {vr(16+2*h,2)}")
    x = 16
    dpp = lambda r, mod: f"v_add_f32_dpp v{r}, v{r}, v{r} {mod} row_mask:0xf bank_mask:0xf"
    for t in (f"v_add_f32 v24, v{x}, v{x+1}", f"v_mul_f32 v25, v{x}, v{x}", f"v_add_f32 v26, v{x+2}, v{x+3}", f"v_mul_f32 v27, v{x+2}, v{x+2}",
              f"v_fmac_f32 v25, v{x+1}, v{x+1}", f"v_fmac_f32 v27, v{x+3}, v{x+3}", "v_pk_add_f32 v[24:25], v[24:25], v[26:27]", "s_nop 1",
              dpp(24, "quad_perm:[1,0,3,2]"), dpp(25, "quad_perm:[1,0,3,2]"), "s_nop 0",
              dpp(24, "quad_perm:[2,3,0,1]"), dpp(25, "quad_perm:[2,3,0,1]")): A(t)
    A("ds_write_b64 v5, v[24:25]")
    hsync(g, 10)
    DF = 32
    q = []
    def rd(m): A(f"ds_read_b128 {vr(VA+4*m,4)}, v14 offset:{L_ACT+64*m}"); q.append(("r", m))
    def need(op):
        i = q.index(op); A(f"s_waitcnt lgkmcnt({len(q)-1-i})"); del q[:i+1]
    def w2rd(c):
        for h in range(2): A(f"ds_read_b64_tr_b16 {vr(VW+4*c+2*h,2)}, v6 offset:{32*c+4*h*W2S}"); q.append(("w", c, h))
    for m in range(4): rd(m)
    A("ds_read_b64 v[20:21], v7"); q.append(("s",))
    for m in range(4, 12): rd(m)
    fill = {4: [dpp(20, "quad_perm:[2,3,0,1]"), dpp(21, "quad_perm:[2,3,0,1]")],
            5: [dpp(20, "row_ror:4"), dpp(21, "row_ror:4")],
            6: [dpp(20, "row_ror:8"), dpp(21, "row_ror:8")],
            7: ["v_mov_b32 v22, v20", "v_mov_b32 v23, v21"],
            8: ["v_permlane16_swap_b32 v22, v20", "v_permlane16_swap_b32 v23, v21"],
            9: ["v_pk_add_f32 v[20:21], v[20:21], v[22:23]", "v_mov_b32 v22, v20", "v_mov_b32 v23, v21"],
            10: ["v_permlane32_swap_b32 v22, v20", "v_permlane32_swap_b32 v23, v21"],
            11: ["v_pk_add_f32 v[20:21], v[20:21], v[22:23]", f"v_mul_f32 v20, 0x{f2u(-1/512):08x}, v20"],
            12: [f"v_mul_f32 v21, 0x{f2u(1/512):08x}, v21", "v_fma_f32 v21, -v20, v20, v21"],
            13: ["v_max_f32 v21, 0, v21", f"v_add_f32 v21, 0x{EPS:08x}, v21"],
            14: ["v_rsq_f32 v21, v21"]}
    for m in range(16):
        if ("r", m) in q: need(("r", m))
        else: A("s_nop 0")
        c = "0" if m == 0 else vr(DF, 4)
        A(f"v_mfma_f32_16x16x32_bf16 {vr(DF,4)}, {vr(VW+4*m,4)}, {vr(VA+4*m,4)}, {c}")
        if m < 4: rd(12 + m)
        for t in fill.get(m, []): A(t)
    for c in range(4): w2rd(c)
    for i in range(4): A(f"v_fmac_f32_dpp v{DF+i}, v{DF+i}, v20 row_shl:2 row_mask:0xf bank_mask:0x1")
    for i in range(4): A(f"v_mul_f32 v{8+i}, v{DF+i}, v21")
    for i in range(4): A(f"v_add_f32_dpp v{8+i}, v{DF+i}, v{8+i} row_shl:4 row_mask:0xf bank_mask:0xf")
    A("s_waitcnt lgkmcnt(4)")
    for c in range(4, 8): w2rd(c)
    A("v_permlane32_swap_b32 v8, v10")
    A("v_permlane32_swap_b32 v9, v11")
    for i in range(2): A(f"v_mul_f32 v{20+i}, 0x{LOG2E ^ 0x80000000:08x}, v{8+i}")
    for i in range(2): A(f"v_exp_f32 v{20+i}, v{20+i}")
    for i in range(2): A(f"v_mul_f32 v{8+i}, v{8+i}, v{10+i}")
    for i in range(2): A(f"v_add_f32 v{20+i}, 1.0, v{20+i}")
    for i in range(2): A(f"v_rcp_f32 v{20+i}, v{20+i}")
    for x in EX8: A(x)
    for i in range(2): A(f"v_mul_f32 v{8+i}, v{8+i}, v{20+i}")
    A("v_cvt_pk_bf16_f32 v8, v8, v9")
    A("ds_write_b32 v39, v8")
    A("s_mov_b64 exec, -1")
    hsync(g, 10)
    for c in range(8): A(f"ds_read_b128 {vr(VA+4*c,4)}, v37 offset:{128*c}")
    A("v_mov_b32 v3, 0xff")
    for c in range(8):
        A(f"s_waitcnt lgkmcnt({7-c})")
        A(f"v_mfma_f32_16x16x32_bf16 v[8:11], {vr(VW+4*c,4)}, {vr(VA+4*c,4)}, {'0' if c == 0 else 'v[8:11]'}")
    A("s_nop 7")
    for i in range(4): A(f"v_bfi_b32 v{8+i}, v3, s{TB+i}, v{8+i}")
    A("global_store_dwordx4 v13, v[8:11], s[42:43] sc1")
    g.stamp(2)
    A("s_branch L_fin")

    g.lab("L_t_f2")
    if not RAW: A("s_cmp_lg_u32 s5, 3"); A("s_cbranch_scc1 L_fin")
    pre_gather([-4096, 8192])
    unpack4(g, 16, 8)
    unpack4(g, 20, PG, 2)
    unpack4(g, 24, PG+4, 2)
    g.stamp(9)
    def src_sum(r):
        A("s_nop 1")
        for i in range(4): A(f"v_add_f32_dpp v{r+i}, v{r+i}, v{r+i} row_ror:8 row_mask:0xf bank_mask:0xf")
        for sw in ("v_permlane16_swap_b32", "v_permlane32_swap_b32"):
            for i in range(4): A(f"v_mov_b32 v{r+4+i}, v{r+i}")
            for i in range(4): A(f"{sw} v{r+4+i}, v{r+i}")
            for i in range(4): A(f"v_add_f32 v{r+i}, v{r+i}, v{r+4+i}")
    A("s_mov_b32 s70, 0")
    g.lab("L_f2_a")
    A(f"global_load_dwordx4 {vr(S,4)}, v15, s[42:43] sc1")
    A("s_waitcnt vmcnt(0)")
    for k in range(4): A(f"v_xor_b32 v{S+k}, s{TB+k}, v{S+k}")
    A(f"v_or3_b32 v3, v{S}, v{S+1}, v{S+2}")
    A(f"v_or_b32 v3, v3, v{S+3}")
    A("v_lshlrev_b32 v3, 24, v3")
    A("v_cmp_ne_u32 vcc, 0, v3")
    spin_tail(g, "L_f2_a", "L_f2_ad", 8)
    A("s_cmp_lg_u32 s61, 0")
    A("s_cbranch_scc1 L_f2_e")
    A(f"v_mov_b32 v10, s{ST}")
    A("s_mov_b64 exec, 1")
    A(f"global_store_dword v38, v10, s[42:43] offset:{WS_E} sc1")
    A("s_mov_b64 exec, -1")
    g.lab("L_f2_e")
    src_sum(S)
    x1_from(S)
    for j in range(6): A(f"v_add_u32 v{28+j}, {WS_FP-WS_AP+32768*j}, v15")
    A("s_mov_b32 s70, 0")
    g.lab("L_f2_p")
    for i in range(4): A(f"v_mov_b32 v{VA+20+i}, s{TB+i}")
    for j in range(6):
        if j == 5: A("s_mov_b64 exec, 0xffffff")
        A(f"global_load_dwordx4 {vr(VA+4*j,4)}, v{28+j}, s[42:43] sc1")
    A("s_mov_b64 exec, -1")
    for k in range(24):
        if k % 4 == 0: A(f"s_waitcnt vmcnt({5-k//4})")
        A(f"v_xor_b32 v{VA+k}, s{TB+k%4}, v{VA+k}")
    for k in range(4): A(f"v_or3_b32 v{8+k}, v{VA+6*k}, v{VA+6*k+1}, v{VA+6*k+2}")
    for k in range(4): A(f"v_or3_b32 v{8+k}, v{8+k}, v{VA+6*k+3}, v{VA+6*k+4}")
    for k in range(4): A(f"v_or_b32 v{8+k}, v{8+k}, v{VA+6*k+5}")
    A("v_or3_b32 v3, v8, v9, v10")
    A("v_or_b32 v3, v3, v11")
    A("v_lshlrev_b32 v3, 24, v3")
    A("v_cmp_ne_u32 vcc, 0, v3")
    spin_tail(g, "L_f2_p", "L_f2_ok", TSL)
    g.stamp(7)
    for p in range(3):
        for h in range(2): A(f"v_pk_add_f32 {vr(VA+8*p+2*h,2)}, {vr(VA+8*p+2*h,2)}, {vr(VA+8*p+4+2*h,2)}")
    for p in (1, 2):
        for h in range(2): A(f"v_pk_add_f32 {vr(VA+2*h,2)}, {vr(VA+2*h,2)}, {vr(VA+8*p+2*h,2)}")
    src_sum(VA)
    for i in range(4): rnd(g, VA+i)
    for i in range(4): A(f"v_mul_f32 v{VA+i}, v{VA+i}, v{24+i}")
    for i in range(4): rnd(g, VA+i)
    for i in range(4): A(f"v_add_f32 v{8+i}, v{VA+i}, v{16+i}")
    A("v_cvt_pk_bf16_f32 v8, v8, v9")
    A("v_cvt_pk_bf16_f32 v9, v10, v11")
    A("s_mov_b64 exec, 0xff")
    A("global_store_dwordx2 v37, v[8:9], s[38:39]" + ("" if opts.get("noosc") else " sc1"))
    A("s_mov_b64 exec, 1")
    A(f"v_mov_b32 v10, s{ST}")
    A("s_lshl_b32 s49, s61, 7"); A(f"s_add_u32 s49, s49, {WS_DN}")
    A("v_mov_b32 v11, s49")
    if not opts.get("nodn"): A("global_store_dword v11, v10, s[42:43] sc1")
    g.stamp(2)

    g.lab("L_fin")
    if opts.get("clean", 1):
        A("s_cmp_lg_u32 s5, 0"); A("s_cbranch_scc1 L_fin2")
        A("s_mov_b64 exec, -1")
        wait_cnt(g, f"ds_read_b32 v8, v38 offset:{L_TK}", 8, opts.get("ctk", 4), 8)
        A("s_waitcnt vmcnt(0)")
        op_publish(g, L_OP1, VW, 38, 0, False)
        g.lab("L_fin2")
    if opts.get("stamps"):
        A("s_waitcnt vmcnt(0)")
        g.stamp(8)
        dump_all(g, [SLOC, SLOC])
    g.lab("L_end")
    A("s_endpgm")
    g.L.append(".p2align 7")
    g.lab("L_table")
    for w in range(0, 256, 2):
        A(".long " + ", ".join(f"0x{r | (m3(w+i) << 3) | (t << 8) | (vbias(w+i) << 16):08x}, 0x{cfg(w+i):08x}, 0x{dep(w+i):08x}, 0" for i, (r, t) in enumerate(RM[w:w+2])))
    g.L.append(f'''.section .rodata,"a"
.p2align 6
.amdhsa_kernel {KNAME}
  .amdhsa_next_free_vgpr 168
  .amdhsa_next_free_sgpr 102
  .amdhsa_accum_offset 168
  .amdhsa_group_segment_fixed_size 0
  .amdhsa_kernarg_size 112
  .amdhsa_user_sgpr_count 2
  .amdhsa_user_sgpr_kernarg_segment_ptr 1
  .amdhsa_system_sgpr_workgroup_id_x 1
.end_amdhsa_kernel''')
    opts["_cls"] = [cls(w) for w in range(256)]; opts["_def"] = DEF; opts["_role"] = [r for r, t in RM]; opts["_drop"] = DROP; opts["_red"] = sorted(RED)
    return "\n".join(g.L) + "\n"

if __name__ == "__main__":
    import os
    here = os.path.dirname(os.path.abspath(__file__))
    opts = {"ref": os.path.join(here, "..", KNAME[:-7] + ".s.ref")}
    out = sys.argv[1]
    for kv in sys.argv[2:]:
        k, v = kv.split("=")
        try: v = int(v)
        except ValueError:
            try: v = float(v)
            except ValueError: pass
        opts[k] = v
    open(out, "w").write(gen(opts))
```

```python
import sys, struct

KNAME = "adaLN_cond__sliding_block_cached__glu_gated_swiglu__decode_kernel"

def f2u(x): return struct.unpack("<I", struct.pack("<f", x))[0]
LOG2E = f2u(1.4426950408889634)
SCALE = f2u(128 ** -0.5)
EPS = f2u(1e-5)
ZERO_GAP = 93.0

WS_E   = 0x00000
WS_HDR = 0x00400
WS_DN  = 0x07000
WS_MOD = 0x01000
WS_Q   = 0x08000
WS_S1  = 0x10000
WS_S2  = 0x18000
WS_OP  = 0x20000
WS_AP  = 0x40000
WS_FP  = 0x200000
WS_OQ  = 0x80000
WS_MA  = 0xe0000
R2     = WS_OQ - WS_OP
WS_STAMP = 0x100000
ACT_BS = 1056
L_ACT = 0
L_QV  = L_ACT + 6400
L_ML  = L_QV + 256
L_GO  = L_ML + 4
L_PG  = L_ML + 8
L_SCN = L_ML + 16
L_MX  = L_ML + 20
L_ECN = L_ML + 24
L_E0  = L_ML + 28
L_E1  = L_ML + 80
L_RM  = L_ML + 32
L_SN  = L_ML + 48
L_TK  = L_ML + 52
L_LOC = L_ML + 56
L_CNT = L_ML + 64
NS_   = 10
L_S8  = L_CNT + 64
L_S4  = L_S8 + 64
L_ST  = L_S4 + 64
L_RED = L_ST + 512
L_OP  = L_RED + 512
L_OP1 = L_OP + 512 * NS_
L_WT  = 18432
L_VX  = L_WT + 65536
L_W2  = L_VX + NS_ * 2048
W2S   = 1024 + 32
L_HZ  = L_W2 + 32 * W2S
L_HH  = L_HZ + 7 * 128
LDS_BYTES = L_HZ + 2048
assert L_OP + 12288 <= L_WT + 2048 and L_OP1 + 512 * NS_ <= L_WT and L_S8 % 16 == 0 and L_ST % 16 == 0 and L_OP % 16 == 0

C_NONE, C_WO, C_F1, C_F2, C_MODB, C_MODA, C_Q = 0, 1, 2, 3, 4, 5, 6
X3 = [0, 2, 6, 4, 1, 7]
def role_map(two):
    R = [None] * 256; host = {}
    nf = nl = 0
    for x in range(8):
        for idx in range(20):
            w = 8 * idx + x
            if idx < 8: R[w] = (C_Q, 8 * x + idx)
            elif idx < 16: R[w] = (C_WO, idx - 8)
            else: R[w] = (C_MODA if idx < 18 else C_MODB, 8 * (idx - 16) + ((x + 3 - X3[idx - 16]) & 7))
        pat = "BFFL" "FLFL" "BFFL" if x in (3, 5, 6) else "BBFL" "FLFL" "FLFL"
        row = 4; light = []
        for i, c in enumerate(pat):
            w = 8 * (20 + i) + x
            if c == "B": R[w] = (C_MODB, 8 * row + ((x + 3 - X3[row]) & 7)); row += 1
            elif c == "F":
                R[w] = (C_F1, nf); nf += 1
                j = pat.index("L", i)
                host.setdefault(8 * (20 + j) + x, []).append((i & 3, 7))
            else: light.append(w)
        for k, w in enumerate(light): R[w] = (C_F2, 4 * x + k) if k < 4 else (C_NONE, 0)
    for c, n in ((C_MODA, range(16)), (C_MODB, range(16, 48)), (C_F1, range(43)), (C_F2, range(32)), (C_Q, range(64))):
        assert sorted(t for r, t in R if r == c) == list(n), c
    if two:
        for h in host.values():
            if len(h) == 1: h.append((h[0][0], 6))
    return R, host
SPIN_MAX = 1 << 18
ST, SLOC, SXCC = 74, 75, 76

NOTES = {
    "L_stream": "streaming waves: K (1 KB per load, bounded number in flight), then the V rows of the keys on the row list",
    "L_work": "background work of a streaming wave between two K loads: fetch q, first half of the scores, first row list",
    "L_ks": "one K step: background work, then wait until few enough loads are in flight",
    "L_vs": "one V step",
    "L_x1": "second half of the scores, max / sum of this wave, the rows near the top first, more rows for the list",
    "L_snap": "the rows near the top give the preliminary partial output",
    "L_hand": "list used up: with the true row max, add every remaining key whose weight is not exactly zero",
    "L_epi": "all rows consumed: reduce over the lanes, leave the final partial output in LDS",
    "L_away": "this wave's keys are streamed by a sibling workgroup; it only fetches its piece of q",
    "L_slow": "fallback: everything behind the attention again, from the final outputs, by this wave alone",
    "L_helper": "helper waves: LDS set-up, launch tag, role dispatch",
    "L_r_moda": "role MODA: shift/scale columns of silu(c) @ w_mod",
    "L_r_q": "role Q: LayerNorm + modulation + 64 columns of h @ wq",
    "L_r_modb": "role MODB: the other modulation columns (weights fetched in the background)",
    "L_r_wo": "role WO: 512 x 64 tile of wo",
    "L_r_f1": "role F1: 32 columns of w1 and w3 and their 32 rows of w2",
    "L_r_f2": "role F2: 16 output columns (also pulls this group's slow-loading tiles into L2)",
    "L_svc": "wave 0 publishes this split's first-half max, wave 3 collects those of the other three splits",
    "L_mid": "idle-time preparation",
    "L_svd": "wave 0 publishes this split's max / sum and the preliminary output, wave 3 collects the other splits' max / sum",
    "L_t_wo": "WO: gather the group's partial outputs, project, publish",
    "L_t_f1": "F1: residual, LayerNorm (applied after the product), gate/up, SwiGLU, partial down projection, publish",
    "L_t_f2": "F2: residuals, sum of the down-projection partials, output; advances the epoch word",
    "L_table": "per workgroup: role | slow tile row << 3 | tile << 8 | depth bias << 16; waves; switch step | depths (1/256)",
}
class G:
    def __init__(s, opts):
        s.L = []; s.o = opts; s.n = 0
    def A(s, t): s.L.append("  " + t)
    def lab(s, t):
        if t in NOTES: s.L.append("; ---- " + NOTES[t])
        s.L.append(t + ":")
    def C(s, t): s.L.append("; ---- " + t)
    def uniq(s, p): s.n += 1; return f"L_{p}_{s.n}"
    def stamp(s, idx, lvl=1):
        m = s.o.get("stamps", 0)
        if m == 3 and lvl != 3 and idx not in (6,): return
        if m and (m == lvl or (idx in (0, 6, 8) and lvl == 1)):
            s.A(f"s_memrealtime s[{80+2*idx}:{81+2*idx}]")

def vr(a, n): return f"v[{a}:{a+n-1}]"
def rnd(g, d, s=None): g.A(f"v_cvt_pk_bf16_f32 v{d}, 0, v{s if s is not None else d}")

def spin_tail(g, l, e, sleep, mult=1):
    A = g.A
    A("s_cmp_eq_u64 vcc, 0")
    A(f"s_cbranch_scc1 {e}")
    if sleep: A(f"s_sleep {sleep}")
    A("s_add_u32 s70, s70, 1")
    A(f"s_cmp_lt_u32 s70, {SPIN_MAX*mult}")
    A(f"s_cbranch_scc1 {l}")
    g.lab(e)

def chk_sentinel(g, regs, tmp):
    A = g.A
    rs = list(regs)
    if len(rs) == 1:
        A(f"v_cmp_eq_u32 vcc, -1, v{rs[0]}")
        return
    if len(rs) == 2:
        A(f"v_max_u32 v{tmp}, v{rs[0]}, v{rs[1]}"); rs = []
    else:
        A(f"v_max3_u32 v{tmp}, v{rs[0]}, v{rs[1]}, v{rs[2]}"); rs = rs[3:]
    while len(rs) >= 2:
        A(f"v_max3_u32 v{tmp}, v{tmp}, v{rs[0]}, v{rs[1]}"); rs = rs[2:]
    if rs: A(f"v_max_u32 v{tmp}, v{tmp}, v{rs[0]}")
    A(f"v_cmp_eq_u32 vcc, -1, v{tmp}")

def poll_lds(g, loads, regs, tmp, sleep):
    A = g.A
    l = g.uniq("pl"); e = g.uniq("pld")
    A("s_mov_b32 s70, 0")
    g.lab(l)
    for x in loads: A(x)
    A("s_waitcnt lgkmcnt(0)")
    chk_sentinel(g, regs, tmp)
    spin_tail(g, l, e, sleep, 4)

def wait_cnt(g, load, reg, target, sleep, mask=None):
    A = g.A
    l = g.uniq("sn"); e = g.uniq("snd")
    A("s_mov_b32 s70, 0")
    g.lab(l)
    A(load)
    A("s_waitcnt lgkmcnt(0)")
    if mask: A(f"v_and_b32 v{reg}, 0x{mask:x}, v{reg}")
    A(f"v_cmp_gt_u32 vcc, 0x{target:x}, v{reg}")
    spin_tail(g, l, e, sleep, 8)

def pub_local(g, ins):
    A = g.A
    l = g.uniq("pf"); e = g.uniq("pe")
    A(f"s_cmp_eq_u32 s{SLOC}, 2")
    A(f"s_cbranch_scc0 {l}")
    A(ins)
    A(f"s_branch {e}")
    g.lab(l)
    A(ins + " sc1")
    g.lab(e)

def hs_signal(g, vt2):
    A = g.A
    A(f"v_mov_b32 v{vt2}, 1")
    A("s_mov_b64 exec, 1")
    A(f"ds_add_u32 v38, v{vt2} offset:{L_CNT}")
    A("s_mov_b64 exec, -1")
def hs_wait(g, target, vt2, sleep=1):
    wait_cnt(g, f"ds_read_b32 v{vt2}, v38 offset:{L_CNT}", vt2, target, sleep)

STG = 77
def hsync(g, vt):
    A = g.A
    l = g.uniq("hy"); e = g.uniq("hyd")
    A(f"s_add_u32 s{STG}, s{STG}, 4")
    hs_signal(g, vt)
    A("s_mov_b32 s70, 0")
    g.lab(l)
    A(f"ds_read_b32 v{vt}, v38 offset:{L_CNT}")
    A("s_waitcnt lgkmcnt(0)")
    A(f"v_cmp_gt_u32 vcc, s{STG}, v{vt}")
    spin_tail(g, l, e, 0, 8)

OPA = 2 * NS_ + 12
def op_publish(g, lds, R, zero, off, local):
    A = g.A
    SCB = R + 2 * NS_; AD = R + OPA
    A(f"v_lshlrev_b32 v{AD}, 3, v1")
    if local: A(f"ds_read_b32 v{AD+3}, v{zero} offset:{L_LOC}")
    for i in range(3): A(f"ds_read_b128 {vr(SCB+4*i,4)}, v{zero} offset:{L_S8+16*i}")
    for i in range(NS_): A(f"ds_read_b64 {vr(R+2*i,2)}, v{AD} offset:{lds+512*i}")
    A("s_lshl_b32 s68, s6, 2"); A("s_add_u32 s68, s68, s7")
    A("s_lshl_b32 s68, s68, 9"); A(f"s_add_u32 s68, s68, {WS_OP+off}")
    A(f"v_add_u32 v{AD}, s68, v{AD}")
    A(f"v_and_b32 v{AD+1}, 1, v1")
    A(f"v_lshlrev_b32 v{AD+1}, 4, v{AD+1}")
    A(f"v_lshrrev_b32 v{AD+1}, v{AD+1}, s{ST}")
    A(f"v_lshrrev_b32 v{AD+2}, 8, v{AD+1}")
    A("s_movk_i32 s69, 0xff")
    def sel(i): return f"op_sel:[0,{i&1},0] op_sel_hi:[1,{i&1},1]"
    for i in range(NS_):
        A(f"s_waitcnt lgkmcnt({NS_-1-i})")
        sp = vr(SCB + (i & ~1), 2); acc = vr(R + 2*(i & 1), 2)
        if i < 2: A(f"v_pk_mul_f32 {acc}, {vr(R+2*i,2)}, {sp} op_sel:[0,{i&1}] op_sel_hi:[1,{i&1}]")
        else: A(f"v_pk_fma_f32 {acc}, {vr(R+2*i,2)}, {sp}, {acc} {sel(i)}")
        if i == 0 and local: A(f"v_readfirstlane_b32 s{SLOC}, v{AD+3}")
    A(f"v_pk_add_f32 {vr(R,2)}, {vr(R,2)}, {vr(R+2,2)}")
    A(f"v_bfi_b32 v{R}, s69, v{AD+1}, v{R}")
    A(f"v_bfi_b32 v{R+1}, s69, v{AD+2}, v{R+1}")
    if local: pub_local(g, f"global_store_dwordx2 v{AD}, {vr(R,2)}, s[42:43]")
    else: A(f"global_store_dwordx2 v{AD}, {vr(R,2)}, s[42:43] sc1")

def dma_loop(g, n, step, flags, pace=0, lstep=1024):
    A = g.A
    l = g.uniq("dma"); e = g.uniq("dmae")
    if isinstance(n, int):
        A(f"s_add_u32 s51, s50, {n*lstep}")
    else:
        A(f"s_add_u32 s51, s50, {n}")
        A("s_cmp_lt_u32 s50, s51")
        A(f"s_cbranch_scc0 {e}")
    g.lab(l)
    A("s_mov_b32 m0, s50")
    A(f"s_add_u32 s50, s50, {lstep}")
    if not (g.o.get("nodma") and pace): A(f"buffer_load_dwordx4 v2, s[44:47], s49 offen {flags} lds")
    A(f"s_add_u32 s49, s49, {step}")
    if pace: A(f"s_waitcnt vmcnt({pace-1})")
    A("s_cmp_lt_u32 s50, s51")
    A(f"s_cbranch_scc1 {l}")
    g.lab(e)

VW, VA = 40, 104

def srd(g, d, base, nbytes):
    A = g.A
    A(f"s_mov_b32 s{d}, s{base}")
    A(f"s_mov_b32 s{d+1}, s{base+1}")
    A(f"s_mov_b32 s{d+2}, {nbytes}")
    A(f"s_mov_b32 s{d+3}, 0x20000")

def dma_tile64(g, stride, flags, pace=0):
    A = g.A
    A("v_lshrrev_b32 v2, 3, v1")
    A("v_and_b32 v3, 6, v2")
    A("v_xor_b32 v3, v3, v1")
    A(f"v_mul_u32_u24 v2, {stride}, v2")
    A("v_and_b32 v3, 7, v3")
    A("v_lshl_add_u32 v2, v3, 4, v2")
    if pace:
        A(f"s_mul_i32 s49, s53, {256*stride}")
        A("s_lshl_b32 s50, s53, 15")
    else:
        A(f"s_mul_i32 s49, s5, {128*stride}")
        A("s_lshl_b32 s50, s5, 14")
    A("s_add_u32 s49, s49, s48")
    A(f"s_add_u32 s50, s50, {L_WT}")
    dma_loop(g, 32 if pace else 16, 8*stride, flags, pace)

def tr64_addr(g):
    A = g.A
    A("v_lshrrev_b32 v2, 2, v1")
    A("v_bfe_u32 v3, v1, 1, 1")
    A("s_lshl_b32 s49, s5, 1")
    A("v_or_b32 v3, s49, v3")
    A("v_and_b32 v10, 6, v2")
    A("v_xor_b32 v3, v3, v10")
    A("v_lshlrev_b32 v2, 7, v2")
    A("v_lshl_add_u32 v2, v3, 4, v2")
    A("v_and_b32 v3, 1, v1")
    A("v_lshl_add_u32 v2, v3, 3, v2")
    A(f"v_add_u32 v2, {L_WT}, v2")
def tr_reads(g, nk, mstep, hstep):
    A = g.A
    for m in range(nk):
        for h in range(2):
            A(f"ds_read_b64_tr_b16 {vr(VW+4*m+2*h,2)}, v2 offset:{m*mstep+h*hstep}")
        if m >= 5: A("s_waitcnt lgkmcnt(10)")
    A("s_waitcnt lgkmcnt(0)")
def tr_tile64(g):
    tr64_addr(g)
    tr_reads(g, 16, 4096, 2048)
def gemv_fused(g, vaddr, D):
    A = g.A
    def rd(m):
        for h in range(2):
            A(f"ds_read_b64_tr_b16 {vr(VW+4*m+2*h,2)}, v2 offset:{m*4096+h*2048}")
        A(f"ds_read_b128 {vr(VA+4*m,4)}, v{vaddr} offset:{64*m}")
    for m in range(5): rd(m)
    for m in range(16):
        A(f"s_waitcnt lgkmcnt({3*(min(m+5,16)-m-1)})")
        c = "0" if m == 0 else vr(D, 4)
        A(f"v_mfma_f32_16x16x32_bf16 {vr(D,4)}, {vr(VW+4*m,4)}, {vr(VA+4*m,4)}, {c}")
        if m + 5 < 16: rd(m + 5)
    A("s_nop 7")

def batch_reduce2(g, va, vb, ta, tb):
    A = g.A
    A("s_nop 0")
    for m in ("quad_perm:[1,0,3,2]", "quad_perm:[2,3,0,1]", "row_ror:8"):
        A(f"v_add_f32_dpp v{va}, v{va}, v{va} {m} row_mask:0xf bank_mask:0xf")
        A(f"v_add_f32_dpp v{vb}, v{vb}, v{vb} {m} row_mask:0xf bank_mask:0xf")
        A("s_nop 0")
    for sw in ("v_permlane16_swap_b32", "v_permlane32_swap_b32"):
        A(f"v_mov_b32 v{ta}, v{va}")
        A(f"v_mov_b32 v{tb}, v{vb}")
        A("s_nop 0")
        A(f"{sw} v{ta}, v{va}")
        A(f"{sw} v{tb}, v{vb}")
        A(f"v_add_f32 v{va}, v{va}, v{ta}")
        A(f"v_add_f32 v{vb}, v{vb}, v{tb}")

def ln_partial(g, x):
    A = g.A
    A(f"v_add_f32 v8, v{x}, v{x+1}"); A(f"v_mul_f32 v9, v{x}, v{x}")
    A(f"v_add_f32 v10, v{x+2}, v{x+3}"); A(f"v_mul_f32 v11, v{x+2}, v{x+2}")
    A(f"v_fmac_f32 v9, v{x+1}, v{x+1}"); A(f"v_fmac_f32 v11, v{x+3}, v{x+3}")
    A("v_add_f32 v8, v8, v10"); A("v_add_f32 v9, v9, v11")
    batch_reduce2(g, 8, 9, 10, 11)
    A("ds_write_b64 v5, v[8:9]")
def ln_apply(g, x, t):
    A = g.A
    A(f"ds_read_b128 {vr(t,4)}, v6")
    A(f"ds_read_b128 {vr(t+4,4)}, v6 offset:16")
    A("s_waitcnt lgkmcnt(0)")
    A(f"v_pk_add_f32 {vr(t,2)}, {vr(t,2)}, {vr(t+2,2)}")
    A(f"v_pk_add_f32 {vr(t+4,2)}, {vr(t+4,2)}, {vr(t+6,2)}")
    A(f"v_pk_add_f32 {vr(t,2)}, {vr(t,2)}, {vr(t+4,2)}")
    A(f"v_mul_f32 v8, 0x{f2u(1/512):08x}, v{t}")
    A(f"v_mul_f32 v9, 0x{f2u(1/512):08x}, v{t+1}")
    A("v_fma_f32 v9, -v8, v8, v9")
    rnd(g, 8)
    A("v_max_f32 v9, 0, v9")
    rnd(g, 9)
    for i in range(2): A(f"v_sub_f32 v{x+i}, v{x+i}, v8")
    A(f"v_add_f32 v9, 0x{EPS:08x}, v9")
    for i in range(2, 4): A(f"v_sub_f32 v{x+i}, v{x+i}, v8")
    rnd(g, 9)
    rnd(g, x)
    A("v_sqrt_f32 v9, v9")
    rnd(g, x+1)
    rnd(g, 9)
    rnd(g, x+2)
    A("v_rcp_f32 v9, v9")
    rnd(g, x+3)
    for i in range(4): A(f"v_mul_f32 v{x+i}, v{x+i}, v9")
    for i in range(4): rnd(g, x+i)

def act_addr(g, v, base, bstride):
    A = g.A
    A(f"v_and_b32 v{v}, 1, v1")
    A(f"v_mul_u32_u24 v{v}, {bstride}, v{v}")
    A(f"v_lshrrev_b32 v3, 4, v1")
    A(f"v_lshl_add_u32 v{v}, v3, 4, v{v}")
    if base: A(f"v_add_u32 v{v}, {base}, v{v}")

def gemv(g, nk, vaddr, D, ring=16):
    A = g.A
    first = min(nk, 12, ring)
    for m in range(first):
        A(f"ds_read_b128 {vr(VA+4*m,4)}, v{vaddr} offset:{64*m}")
    issued = first
    for m in range(nk):
        A(f"s_waitcnt lgkmcnt({issued-m-1})")
        c = "0" if m == 0 else vr(D, 4)
        A(f"v_mfma_f32_16x16x32_bf16 {vr(D,4)}, {vr(VW+4*m,4)}, {vr(VA+4*(m%ring),4)}, {c}")
        if issued < nk and (ring >= nk or m >= 1):
            A(f"ds_read_b128 {vr(VA+4*(issued%ring),4)}, v{vaddr} offset:{64*issued}")
            issued += 1
    A("s_nop 7")

def guard(g, r): g.A(f"v_min_u32 v{r}, s72, v{r}")
def unpack2(g, d, s):
    g.A(f"v_lshlrev_b32 v{d}, 16, v{s}")
    g.A(f"v_and_b32 v{d+1}, s73, v{s}")
def unpack4(g, d, s, step=1):
    unpack2(g, d, s); unpack2(g, d+2, s+step)

def silu4(g, x, t):
    A = g.A
    for i in range(4): A(f"v_mul_f32 v{t+i}, 0x{LOG2E ^ 0x80000000:08x}, v{x+i}")
    for i in range(4): A(f"v_exp_f32 v{t+i}, v{t+i}")
    A("s_nop 0")
    for i in range(4): A(f"v_add_f32 v{t+i}, 1.0, v{t+i}")
    for i in range(4): A(f"v_rcp_f32 v{t+i}, v{t+i}")
    A("s_nop 0")
    for i in range(4): A(f"v_mul_f32 v{x+i}, v{x+i}, v{t+i}")

def make_tag(g):
    g.A(f"s_mul_i32 s{ST}, s{ST}, 0x9e3779b1")
    g.A(f"s_add_u32 s{ST}, s{ST}, 0x7f4a7c15")

EX8 = ["s_mov_b32 exec_lo, 0x00030003", "s_mov_b32 exec_hi, 0x00030003"]

def dump_all(g, extra):
    A = g.A
    A("s_mov_b64 exec, -1")
    A("s_mul_i32 s3, s2, 12"); A("s_add_u32 s3, s3, s5"); A("s_lshl_b32 s3, s3, 6")
    A(f"s_add_u32 s3, s3, {WS_STAMP}")
    A("v_lshl_add_u32 v2, v1, 2, s3")
    A("v_mov_b32 v3, 0")
    A("s_waitcnt lgkmcnt(0)")
    for i, x in enumerate([80+2*i for i in range(10)] + list(extra)): A(f"v_writelane_b32 v3, s{x}, {i}")
    A("s_mov_b64 exec, 0xffff")
    A("global_store_dword v2, v3, s[42:43]")

def late_steps(opts):
    return dict(w=opts.get("wdw", 0), b=opts.get("wdb", 0), f=opts.get("wd1", 0))

def fallback(g, head_sum, wave_red):
    A = g.A
    W, AC, AV = 40, 72, 88
    X1, GS = 104, 120
    g.lab("L_slow")
    A("s_load_dwordx16 s[16:31], s[0:1], 0")
    A("s_load_dwordx8 s[32:39], s[0:1], 64")
    A("v_and_b32 v2, 31, v1")
    A("v_lshlrev_b32 v2, 7, v2")
    A(f"v_add_u32 v2, {WS_DN}, v2")
    A("s_mov_b32 s70, 0")
    g.lab("L_sl_d")
    A("global_load_dword v3, v2, s[42:43] sc1")
    A("s_waitcnt vmcnt(0) lgkmcnt(0)")
    A(f"v_cmp_ne_u32 vcc, s{ST}, v3")
    spin_tail(g, "L_sl_d", "L_sl_dd", 8)
    A("v_lshlrev_b32 v2, 3, v1")
    A(f"v_add_u32 v2, {WS_OQ}, v2")
    A("v_lshlrev_b32 v0, 2, v1")
    A(f"v_add_u32 v0, {L_VX}, v0")
    A("s_mov_b32 s10, 0")
    g.lab("L_sl_h")
    A("s_mov_b32 s70, 0")
    g.lab("L_sl_hp")
    for i in range(4): A(f"global_load_dwordx2 {vr(W+2*i,2)}, v2, s[42:43] offset:{512*i} sc1")
    A("s_waitcnt vmcnt(0)")
    head_sum(W, W+8)
    spin_tail(g, "L_sl_hp", "L_sl_hd", 8)
    A(f"ds_write_b32 v0, v{W}")
    A("v_add_u32 v2, 2048, v2"); A("v_add_u32 v0, 256, v0")
    A("s_add_u32 s10, s10, 1"); A("s_cmp_lt_u32 s10, 64"); A("s_cbranch_scc1 L_sl_h")
    def call(base, nbytes, stride, nrows, act, bstride, col):
        A(f"s_mov_b32 s44, s{base}"); A(f"s_mov_b32 s45, s{base+1}"); A(f"s_mov_b32 s46, {nbytes}")
        A(f"s_mov_b32 s11, {stride}"); A(f"s_mov_b32 s12, {nrows*stride}")
        A(f"v_mov_b32 v4, {act}"); A(f"v_mov_b32 v5, {act+bstride}")
        A(f"v_lshlrev_b32 v2, 4, v1")
        if col: A(f"v_add_u32 v2, {col}, v2")
        A("s_call_b64 s[62:63], L_gv")
    def modrow(row, d):
        A("v_lshrrev_b32 v2, 1, v1"); A("v_lshlrev_b32 v2, 7, v2")
        A("v_and_b32 v3, 1, v1"); A("v_lshl_add_u32 v2, v3, 5, v2")
        A(f"v_add_u32 v2, {WS_MOD+4096*row}, v2")
        for b in range(2):
            for h in range(2): A(f"global_load_dwordx4 {vr(W+8*b+4*h,4)}, v2, s[42:43] offset:{64*b+16*h} sc1")
        A("s_waitcnt vmcnt(0)")
        for k in range(8): unpack2(g, d+2*k, W+2*k)
    def gated_add(row):
        modrow(row, AV)
        for i in range(16): rnd(g, AC+i)
        for i in range(16): A(f"v_mul_f32 v{AC+i}, v{AC+i}, v{AV+i}")
        for i in range(16): rnd(g, AC+i)
        for i in range(16): A(f"v_add_f32 v{X1+i}, v{X1+i}, v{AC+i}")
        for i in range(16): rnd(g, X1+i)
    def pack(d, s_):
        for k in range(8): A(f"v_cvt_pk_bf16_f32 v{d+k}, v{s_+2*k}, v{s_+2*k+1}")
    call(24, 4096*1024, 1024, 4096, L_VX, 8192, 0)
    A("v_lshlrev_b32 v0, 4, v1")
    for b in range(2): A(f"global_load_dwordx4 {vr(W+4*b,4)}, v0, s[16:17] offset:{1024*b}")
    A("s_waitcnt vmcnt(0)")
    for k in range(8): unpack2(g, X1+2*k, W+k)
    gated_add(2)
    for b in range(2):
        x = X1 + 8*b; y = AC + 8*b
        A(f"v_add_f32 v8, v{x}, v{x+1}")
        for i in range(2, 8): A(f"v_add_f32 v8, v8, v{x+i}")
        wave_red("v_add_f32", 8, 9)
        A(f"v_mul_f32 v8, 0x{f2u(1/512):08x}, v8")
        for i in range(8): A(f"v_sub_f32 v{y+i}, v{x+i}, v8")
        A(f"v_mul_f32 v10, v{y}, v{y}")
        for i in range(1, 8): A(f"v_fmac_f32 v10, v{y+i}, v{y+i}")
        wave_red("v_add_f32", 10, 9)
        A(f"v_mul_f32 v10, 0x{f2u(1/512):08x}, v10")
        rnd(g, 8); rnd(g, 10)
        A(f"v_add_f32 v10, 0x{EPS:08x}, v10")
        rnd(g, 10)
        A("v_sqrt_f32 v10, v10")
        for i in range(8): A(f"v_sub_f32 v{y+i}, v{x+i}, v8")
        rnd(g, 10)
        for i in range(8): rnd(g, y+i)
        A("v_rcp_f32 v10, v10")
        A("s_nop 0")
        for i in range(8): A(f"v_mul_f32 v{y+i}, v{y+i}, v10")
        for i in range(8): rnd(g, y+i)
    modrow(4, AV)
    for i in range(16): A(f"v_add_f32 v{AV+i}, 1.0, v{AV+i}")
    for i in range(16): rnd(g, AV+i)
    for i in range(16): A(f"v_mul_f32 v{AC+i}, v{AC+i}, v{AV+i}")
    for i in range(16): rnd(g, AC+i)
    modrow(3, AV)
    for i in range(16): A(f"v_add_f32 v{AC+i}, v{AC+i}, v{AV+i}")
    pack(W, AC)
    A(f"v_add_u32 v3, {L_VX}, v0")
    for b in range(2): A(f"ds_write_b128 v3, {vr(W+4*b,4)} offset:{1024*b}")
    HB = L_VX + 2048
    for p in range(3):
        call(28, 512*2752, 2752, 512, L_VX, 1024, 1024*p)
        for i in range(16): rnd(g, GS+i, AC+i)
        call(30, 512*2752, 2752, 512, L_VX, 1024, 1024*p)
        for q in range(4): silu4(g, GS+4*q, AV)
        for i in range(16): rnd(g, GS+i)
        for i in range(16): rnd(g, AC+i)
        for i in range(16): A(f"v_mul_f32 v{AC+i}, v{AC+i}, v{GS+i}")
        pack(W, AC)
        A(f"v_add_u32 v3, {HB+1024*p}, v0")
        for b in range(2): A(f"ds_write_b128 v3, {vr(W+4*b,4)} offset:{3072*b}")
    call(32, 1376*1024, 1024, 1376, HB, 3072, 0)
    gated_add(5)
    pack(W, X1)
    for b in range(2): A(f"global_store_dwordx4 v0, {vr(W+4*b,4)}, s[38:39] offset:{1024*b} sc1")
    A("s_endpgm")
    g.lab("L_gv")
    for i in range(16): A(f"v_mov_b32 v{AC+i}, 0")
    A("s_mov_b32 s10, 0")
    g.lab("L_gvl")
    for r in range(8):
        A(f"buffer_load_dwordx4 {vr(W+4*r,4)}, v2, s[44:47], s10 offen")
        A("s_add_u32 s10, s10, s11")
    for b in range(2): A(f"ds_read_b128 {vr(AV+4*b,4)}, v{4+b}")
    A("v_add_u32 v4, 16, v4"); A("v_add_u32 v5, 16, v5")
    A("s_waitcnt lgkmcnt(0)")
    for r in range(8):
        for b in range(2):
            a = AV + 4*b + r//2
            if r % 2 == 0: A(f"v_and_b32 v{8+2*b}, 0xffff, v{a}"); A(f"v_lshlrev_b32 v{9+2*b}, 16, v{a}")
            else: A(f"v_lshrrev_b32 v{8+2*b}, 16, v{a}"); A(f"v_and_b32 v{9+2*b}, s73, v{a}")
        A(f"s_waitcnt vmcnt({7-r})")
        for b in range(2):
            for k in range(8): A(f"v_dot2c_f32_bf16 v{AC+8*b+k}, v{8+2*b+(k&1)}, v{W+4*r+k//2}")
    A("s_cmp_lt_u32 s10, s12"); A("s_cbranch_scc1 L_gvl")
    A("s_nop 1")
    A("s_setpc_b64 s[62:63]")

def slot_done(g, zero, n, nk):
    A = g.A
    A(f"v_mov_b32 v4, {n}")
    A("v_lshlrev_b32 v5, 6, v4")
    A(f"v_mul_i32_i24 v6, {-nk}, v4")
    A("s_mov_b64 exec, 1")
    for off in (L_ECN, L_SCN): A(f"ds_add_u32 v{zero}, v5 offset:{off}")
    for off in (L_SN, L_TK): A(f"ds_add_u32 v{zero}, v4 offset:{off}")
    A(f"ds_add_u32 v{zero}, v6 offset:{L_RM}")
    A("s_mov_b64 exec, -1")

def stream(g, opts):
    A = g.A
    D0 = opts.get("D0", 4)
    LAG = opts.get("LAG", 5)
    DEL = opts.get("delta", 7)
    THETA = opts.get("theta", 24)
    HCAP, HPOS = 32, 160
    TH, HST, NH, NSP, HTH = 18, 19, 20, 21, 22
    PA = 23
    KF, VF = opts.get("kf", "nt"), opts.get("vf", "nt")
    J0 = opts.get("J0", 16)
    T_, ACC, DB, RW, LIM, BUR, CNT, STA, QA, LVL = 32, 33, 34, 35, 36, 37, 38, 39, 40, 41
    SR, SBI, VE = 78, 79, 59
    VG = opts.get('vg', 20); LG = opts.get('lg', 14)
    LB, JS, DN, FIN, X1D, RET, TK, RET2 = 56, 57, 58, 75, 61, 62, (64, 66), 100
    T, X = 8, 16
    OFF = (24, 26); SET = (28, 30, 32); PH = (34, 35, 36); MW, L16, LRD, EPA, EV = 37, 38, 39, 22, 2
    RA = 20
    ROFF = 1024
    RB = 40
    def slot(j): return RB + 4 * (j % 32)
    NW = 76
    A("s_sub_u32 s9, s5, 4")
    A("s_lshl_b32 s4, s7, 18")
    A("s_lshl_b32 s11, s9, 10")
    g.lab("L_stream")
    A("s_lshl_b32 s10, s6, 22")
    A("s_add_u32 s10, s10, s4")
    A("s_add_u32 s10, s10, 0x300000")
    A("v_lshl_add_u32 v0, v1, 4, s11")
    A("s_lshr_b32 s12, s2, 3")
    A("s_mul_i32 s12, s12, 5")
    A("s_mul_i32 s15, s8, 3")
    A("s_add_u32 s12, s12, s15")
    A("s_lshl_b32 s12, s12, 13")
    A("s_and_b32 s12, s12, 0x3ffff")
    g.stamp(1, 3)
    A("s_waitcnt lgkmcnt(0)")
    g.stamp(2, 3)
    A("s_add_u32 s44, s18, s10"); A("s_addc_u32 s45, s19, 0")
    A("s_mov_b32 s46, 0x40000"); A("s_mov_b32 s47, 0x20000")
    def issue(j):
        A(f"buffer_load_dwordx4 {vr(slot(j),4)}, v0, s[44:47], s12 offen {KF}")
        A("s_add_u32 s12, s12, 0x2000")
        A("s_and_b32 s12, s12, 0x3ffff")
    A("s_cmp_le_i32 s13, 0")
    A("s_cbranch_scc1 L_nb1")
    A("s_barrier")
    g.lab("L_nb1")
    g.stamp(3, 3)
    for j in range(D0): issue(j)
    g.stamp(4, 3)
    A("s_load_dwordx2 s[14:15], s[56:57], s3")
    A("s_load_dword s77, s[56:57], s3 offset:8")
    A(f"s_load_dword s{ST}, s[42:43], {WS_E}")
    A("s_add_u32 s48, s20, s10"); A("s_addc_u32 s49, s21, 0")
    A("s_mov_b32 s50, 0x40000"); A("s_mov_b32 s51, 0x20000")
    A("s_mov_b32 s52, 0xcccccccc"); A("s_mov_b32 s53, 0xcccccccc")
    A("s_mov_b32 s54, 0xaaaaaaaa"); A("s_mov_b32 s55, 0xaaaaaaaa")
    A(f"v_and_b32 v{L16}, 15, v1")
    A(f"v_lshlrev_b32 v{L16}, 4, v{L16}")
    A("s_lshl_b32 s10, s9, 11")
    A(f"s_add_u32 s10, s10, {L_VX}")
    A("v_lshl_add_u32 v3, v1, 3, s10")
    A("v_mov_b32 v4, 0x7fff0000"); A("v_mov_b32 v5, 0xff800000")
    for n in range(3): A(f"ds_write_b64 v3, v[4:5] offset:{512*n}")
    A("v_lshrrev_b32 v3, 4, v1")
    A(f"v_lshl_add_u32 v{LRD}, v{L16}, 1, s10")
    A(f"v_lshl_add_u32 v{LRD}, v3, 3, v{LRD}")
    A(f"s_sub_u32 s68, s12, {D0*0x2000}")
    A(f"v_bfrev_b32 v{OFF[0]}, v1")
    A(f"v_lshrrev_b32 v{OFF[0]}, 15, v{OFF[0]}")
    A(f"v_and_b32 v{OFF[0]}, 0x1e000, v{OFF[0]}")
    A(f"v_add_u32 v{OFF[0]}, s68, v{OFF[0]}")
    A(f"v_and_b32 v{OFF[0]}, 0x3e000, v{OFF[0]}")
    A(f"v_lshl_add_u32 v{OFF[0]}, v3, 8, v{OFF[0]}")
    A(f"v_add_u32 v{OFF[0]}, s11, v{OFF[0]}")
    A(f"v_xor_b32 v{OFF[1]}, 0x20000, v{OFF[0]}")
    A("s_lshl_b32 s11, s9, 9")
    A(f"v_lshl_add_u32 v{EPA}, v{L16}, 1, s11")
    A(f"v_lshl_add_u32 v{EPA}, v3, 3, v{EPA}")
    A(f"s_mov_b32 s{T_}, {D0}"); A(f"s_mul_i32 s{ACC}, s9, 0x5e000000")
    A(f"s_mov_b64 s[{TK[0]}:{TK[0]+1}], 0"); A(f"s_mov_b64 s[{TK[1]}:{TK[1]+1}], 0")
    A(f"s_mov_b32 s{CNT}, 0"); A(f"s_mov_b32 s{STA}, 0"); A(f"s_mov_b32 s{FIN}, 0"); A(f"s_mov_b32 s{X1D}, 0")
    A(f"s_lshl_b32 s{QA}, s6, 9"); A("s_lshl_b32 s68, s9, 6")
    A(f"s_add_u32 s{QA}, s{QA}, s68"); A(f"s_add_u32 s{QA}, s{QA}, {WS_Q}")
    A("s_cmp_eq_u32 s13, 0")
    A("s_cbranch_scc0 L_nb2")
    A("s_barrier")
    g.lab("L_nb2")
    A("s_waitcnt lgkmcnt(0)")
    A(f"s_mov_b32 s{LB}, s10")
    make_tag(g)
    A(f"s_and_b32 s{JS}, s77, 0xff")
    A(f"s_bfe_u32 s{DB}, s77, 0xc0008")
    A(f"s_lshr_b32 s{DN}, s77, 20")
    A(f"s_and_b32 s{NW}, s15, 15")
    A(f"s_mov_b32 s{LVL}, {LAG}")
    A(f"s_mov_b32 s{RW}, {32-D0}"); A(f"s_mov_b32 s{VE}, 0")
    A(f"s_mul_i32 s68, s{NW}, {32-D0}"); A(f"s_add_u32 s68, s68, {ROFF}")
    A(f"v_mov_b32 v{RA}, s68"); A(f"v_mov_b32 v{RA+1}, 0"); A(f"v_mov_b32 v{PA}, 0")
    A("s_cmp_ge_u32 s9, 8"); A(f"s_cselect_b32 s{STA}, 2, 0")
    A("s_bfe_u32 s68, s15, 0x20004"); A("s_add_u32 s68, s68, s9")
    A("s_lshr_b32 s69, s9, 3"); A("s_lshr_b32 s68, s68, 3")
    A("s_cmp_lg_u32 s68, s69"); A("s_cbranch_scc1 L_away")
    for j in range(D0, 32):
        if j == opts.get("JH", 99):
            l = g.uniq("jh")
            A("s_sub_u32 s68, s13, 1")
            A(f"s_cmp_gt_u32 s68, 1"); A(f"s_cbranch_scc1 {l}")
            A("v_mov_b32 v4, 0")
            poll_lds(g, [f"ds_read_b32 v5, v4 offset:{L_GO}"], [5], 8, 4)
            g.lab(l)
        if j == D0:
            g.stamp(5, 3)
            if opts.get("stamps") == 3: A(f"s_waitcnt vmcnt({D0-1})")
            g.stamp(7, 3)
        if j == opts.get("jk", 99): A(f"s_max_u32 s{DB}, s{DB}, {int(opts.get('dk', 4.5)*256)}")
        A(f"s_call_b64 s[{RET}:{RET+1}], L_ks")
        if j == 8: g.stamp(8, 3)
        if j == 12: g.stamp(9, 3)
        issue(j)
    g.stamp(1)
    A("s_mov_b32 s10, 0")
    g.lab("L_kw")
    A(f"s_cmp_ge_u32 s{STA}, 4"); A("s_cbranch_scc1 L_v0")
    A(f"s_call_b64 s[{RET2}:{RET2+1}], L_work")
    A("s_sleep 1")
    A("s_add_u32 s10, s10, 1")
    A(f"s_cmp_lt_u32 s10, {SPIN_MAX}"); A("s_cbranch_scc1 L_kw")
    g.lab("L_v0")
    g.stamp(2)
    A(f"s_mov_b32 s{T_}, 0"); A(f"s_mov_b32 s{BUR}, 255")
    A(f"v_mov_b32 v{PA}, 8")
    A(f"s_mov_b32 s{RW}, s{VE}")
    A(f"ds_read_b64 {vr(RA,2)}, v{PA} offset:{L_RM}")
    A("s_ashr_i32 s14, s14, 16")
    A("s_waitcnt lgkmcnt(0)")
    A(f"v_readfirstlane_b32 s{DB}, v{RA}")
    A(f"s_mul_i32 s{DB}, s{DB}, {int(round(opts.get('ka2', 6)*16))}")
    A(f"s_ashr_i32 s{DB}, s{DB}, 4")
    A(f"s_add_i32 s{DB}, s{DB}, {int(round(opts.get('kb2', 0.2)*256 - int(round(opts.get('ka2', 6)*16))*ROFF/16))}")
    A(f"s_add_i32 s{DB}, s{DB}, s14")
    A("s_lshr_b32 s68, s15, 20")
    A(f"s_mul_i32 s{DB}, s{DB}, s68")
    A(f"s_ashr_i32 s{DB}, s{DB}, 8")

    def dots(G_):
        for tt in range(4):
            for e in range(8):
                c = "0" if tt == 0 else f"v{T+e}"
                A(f"v_dot2_f32_bf16 v{T+e}, v{slot(8*G_+e)+tt}, v{4+tt}, {c}")
        for e in range(0, 8, 2):
            A(f"v_add_f32_dpp v{T+e}, v{T+e}, v{T+e} row_ror:8 row_mask:0xf bank_mask:0x3")
            A(f"v_add_f32_dpp v{T+e}, v{T+e+1}, v{T+e+1} row_ror:8 row_mask:0xf bank_mask:0xc")
        x = X + 2 * (G_ & 1)
        for h in range(2):
            A(f"v_add_f32_dpp v{x+h}, v{T+4*h}, v{T+4*h} row_shl:4 row_mask:0xf bank_mask:0x5")
            A(f"v_add_f32_dpp v{x+h}, v{T+4*h+2}, v{T+4*h+2} row_shr:4 row_mask:0xf bank_mask:0xa")
    def wave_red(op, v, t):
        for r in (8, 4, 2, 1):
            A("s_nop 1")
            A(f"{op}_dpp v{v}, v{v}, v{v} row_ror:{r} row_mask:0xf bank_mask:0xf")
        for sw in ("v_permlane16_swap_b32", "v_permlane32_swap_b32"):
            A(f"v_mov_b32 v{t}, v{v}")
            A("s_nop 1")
            A(f"{sw} v{t}, v{v}")
            A(f"{op} v{v}, v{v}, v{t}")
    def finish(n):
        sc = OFF[n] + 1
        A("v_mov_b32 v3, 0")
        A("v_mov_b32 v20, 64")
        for i in range(4): A(f"v_add_f32_dpp v{X+i}, v{X+i}, v{X+i} quad_perm:[2,3,0,1] row_mask:0xf bank_mask:0xf")
        for i in range(2): A(f"v_cndmask_b32 v{T+i}, v{X+2*i}, v{X+2*i+1}, s[52:53]")
        A("s_nop 0")
        A("v_lshlrev_b32 v21, 3, s9")
        for i in range(2): A(f"v_add_f32_dpp v{T+i}, v{T+i}, v{T+i} quad_perm:[1,0,3,2] row_mask:0xf bank_mask:0xf")
        A(f"v_cndmask_b32 v{sc}, v{T}, v{T+1}, s[54:55]")
        rnd(g, sc)
        A(f"v_mul_f32 v{sc}, 0x{SCALE:08x}, v{sc}")
        rnd(g, sc)
        if n == 0: A(f"v_mov_b32 v{MW}, v{sc}")
        else: A(f"v_max_f32 v{MW}, v{MW}, v{sc}")
        wave_red("v_max_f32", MW, T)
        if n == 0:
            A("s_mov_b64 exec, 1")
            A(f"ds_max_f32 v3, v{MW} offset:{L_E0}")
            A(f"ds_add_u32 v3, v20 offset:{L_ECN}")
            A("s_mov_b64 exec, -1")
    def build(n, thr):
        tk = f"s[{TK[n]}:{TK[n]+1}]"
        A(f"v_cmp_nlt_f32 vcc, v{OFF[n]+1}, v{thr}")
        A(f"s_lshl_b32 s68, s{CNT}, 3")
        A(f"s_add_u32 s68, s68, s{LB}")
        A(f"s_andn2_b64 s[70:71], vcc, {tk}")
        A("v_mbcnt_lo_u32_b32 v3, s70, 0")
        A("v_mbcnt_hi_u32_b32 v3, s71, v3")
        A("s_bcnt1_i32_b64 s69, s[70:71]")
        A("v_lshl_add_u32 v3, v3, 3, s68")
        A("s_mov_b64 exec, s[70:71]")
        A(f"ds_write_b64 v3, {vr(OFF[n],2)}")
        A("s_mov_b64 exec, -1")
        A(f"s_or_b64 {tk}, {tk}, s[70:71]")
        A(f"s_add_u32 s{CNT}, s{CNT}, s69")
    def reread(weights=True, fill=None):
        ns = 3 if weights else 1
        for n in range(ns): A(f"ds_read_b64 {vr(SET[n],2)}, v{LRD} offset:{512*n}")
        if fill: fill()
        A("s_waitcnt lgkmcnt(0)")
        if not weights: return
        for n in range(3): A(f"v_sub_f32 v{SET[n]+1}, v{SET[n]+1}, v{MW}")
        for n in range(3): A(f"v_mul_f32 v{SET[n]+1}, 0x{LOG2E:08x}, v{SET[n]+1}")
        for n in range(3): A(f"v_exp_f32 v{SET[n]+1}, v{SET[n]+1}")
        A("s_nop 0")
        for n in range(3): A(f"v_cvt_pk_bf16_f32 v{PH[n]}, 0, v{SET[n]+1}")
        for n in range(3): A(f"v_cvt_pk_bf16_f32 v{SET[n]+1}, v{SET[n]+1}, 0")
    def pv(t, data=None, acc=None):
        data = slot(t) if data is None else data
        acc = list(range(T, T + 8)) if acc is None else acc
        for tt in range(4):
            for hf in range(2):
                p = (SET[t//16] + 1, PH[t//16])[hf]
                A(f"v_dot2c_f32_bf16_dpp v{acc[2*tt+hf]}, v{p}, v{data+tt} row_newbcast:{t%16} row_mask:0xf bank_mask:0xf")
    def estimate(sh, add, src, vphase=True):
        A(f"s_add_u32 s68, s{src}, {add}")
        A(f"s_lshr_b32 s68, s68, {sh}")
        A(f"s_sub_u32 s69, s68, s{VE}")
        A(f"s_mov_b32 s{VE}, s68")
        if vphase:
            A(f"s_add_u32 s{RW}, s{RW}, s69")
            A(f"s_add_u32 s{SR}, s{SR}, s69")
        A("v_mov_b32 v3, s69")
        A("s_mov_b64 exec, 1")
        A(f"ds_add_u32 v1, v3 offset:{L_RM+8}")
        A("s_mov_b64 exec, -1")
    def fetch():
        A("s_waitcnt lgkmcnt(0)")
        A(f"v_readfirstlane_b32 s{SR}, v{RA}")
        A(f"v_readfirstlane_b32 s{SBI}, v{RA+1}")
    NST = LAG + 33 + LAG
    assert 4 * (NST - LAG) <= HPOS, NST
    for t in range(NST):
        if t > LAG: A(f"s_cmp_eq_u32 s{FIN}, {t}"); A("s_cbranch_scc1 L_epi")
        A(f"s_call_b64 s[{RET}:{RET+1}], L_vs")
        if t < NST - LAG:
            A(f"s_cbranch_scc1 L_nl{t}")
            A(f"v_add_u32_dpp v3, v{SET[t//16]}, v{L16} row_newbcast:{t%16} row_mask:0xf bank_mask:0xf")
            A(f"buffer_load_dwordx4 {vr(slot(t),4)}, v3, s[48:51], 0 offen {VF}")
            g.lab(f"L_nl{t}")
        if t == 0: dots(2)
        if t >= LAG: pv(t - LAG)
    A("s_nop 1")
    def lane_reduce(a, b):
        A("s_nop 0")
        for j in range(4): A(f"v_permlane32_swap_b32 v{a+j}, v{b+j}")
        for j in range(4): A(f"v_add_f32 v{a+j}, v{a+j}, v{b+j}")
        A("v_mov_b32 v3, 1")
        for j in range(2): A(f"v_permlane16_swap_b32 v{a+j}, v{a+j+2}")
        for j in range(2): A(f"v_add_f32 v{a+j}, v{a+j}, v{a+j+2}")
    def prelim(r):
        A(f"ds_write_b64 v{EPA}, {vr(r,2)} offset:{L_OP1}")
        A("s_mov_b64 exec, 1")
        A(f"ds_add_u32 v1, v3 offset:{L_SN}")
        A("s_mov_b64 exec, -1")
    g.lab("L_epi")
    g.stamp(5)
    A("s_nop 0")
    lane_reduce(T, T+4)
    A(f"v_pk_add_f32 {vr(T,2)}, {vr(T,2)}, v[4:5]")
    A(f"ds_write_b64 v{EPA}, {vr(T,2)} offset:{L_OP}")
    A(f"s_cmp_eq_u32 s{NSP}, 0"); A("s_cbranch_scc1 L_ep2")
    prelim(T)
    g.lab("L_ep2")
    A("s_mov_b64 exec, 1")
    A(f"ds_add_rtn_u32 v3, v1, v3 offset:{L_TK}")
    A("s_mov_b64 exec, -1")
    A("v_mov_b32 v4, 0")
    A("s_lshl_b32 s10, s6, 11"); A(f"s_add_u32 s10, s10, {WS_OP}")
    A("v_lshl_add_u32 v2, v1, 3, s10")
    A(f"v_add_u32 v0, {R2}, v2")
    A("s_waitcnt lgkmcnt(0)")
    A("v_readfirstlane_b32 s68, v3")
    A(f"s_cmp_lg_u32 s68, {NS_-1}"); A("s_cbranch_scc1 L_send")
    g.C("the last wave publishes the final partial output; that of split 0 compares the head's final output with the preliminary one")
    def looks(n0):
        for i in range(1, 4): A(f"global_load_dwordx2 {vr(RB+2*i,2)}, v0, s[42:43] offset:{512*i} sc1")
        if n0:
            for i in range(4): A(f"global_load_dwordx2 {vr(RB+8+2*i,2)}, v2, s[42:43] offset:{512*i} sc1")
    A("s_cmp_lg_u32 s7, 0"); A("s_cbranch_scc1 L_nolook")
    looks(1)
    g.lab("L_nolook")
    poll_lds(g, [f"ds_read_b32 v5, v4 offset:{L_ML}"], [5], 8, 1)
    R = 128
    op_publish(g, L_OP, R, 4, R2, False)
    A("s_cmp_lg_u32 s7, 0"); A("s_cbranch_scc1 L_send")
    TG = R + OPA + 1
    A(f"v_and_b32 v{TG}, 0xff, v{TG}"); A(f"v_and_b32 v{TG+1}, 0xff, v{TG+1}")
    def head_sum(b_, t):
        for i in range(8): A(f"v_xor_b32 v{b_+i}, v{b_+i}, v{TG+(i&1)}")
        A(f"v_or3_b32 v{t}, v{b_}, v{b_+1}, v{b_+2}")
        A(f"v_or3_b32 v{t+1}, v{b_+3}, v{b_+4}, v{b_+5}")
        A(f"v_or3_b32 v{t}, v{t}, v{b_+6}, v{b_+7}")
        for i in range(8): A(f"v_or_b32 v{b_+i}, 0x80, v{b_+i}")
        A(f"v_or_b32 v{t}, v{t}, v{t+1}")
        A(f"v_pk_add_f32 {vr(b_,2)}, {vr(b_,2)}, {vr(b_+4,2)}")
        A(f"v_pk_add_f32 {vr(b_+2,2)}, {vr(b_+2,2)}, {vr(b_+6,2)}")
        A(f"v_lshlrev_b32 v{t}, 24, v{t}")
        A(f"v_pk_add_f32 {vr(b_,2)}, {vr(b_,2)}, {vr(b_+2,2)}")
        A(f"v_cmp_ne_u32 vcc, 0, v{t}")
        A(f"v_cvt_pk_bf16_f32 v{b_}, v{b_}, v{b_+1}")
    A("s_mov_b32 s70, 0")
    A("s_waitcnt vmcnt(1)")
    A("s_branch L_cp1")
    g.lab("L_cp0")
    looks(1)
    A("s_waitcnt vmcnt(0)")
    g.lab("L_cp1")
    head_sum(RB+8, RB+16)
    spin_tail(g, "L_cp0", "L_cp2", 4)
    A("s_mov_b32 s70, 0")
    A("s_branch L_cp4")
    g.lab("L_cp3")
    looks(0)
    A("s_waitcnt vmcnt(0)")
    g.lab("L_cp4")
    for k in range(2): A(f"v_mov_b32 v{RB+k}, v{R+k}")
    head_sum(RB, RB+16)
    spin_tail(g, "L_cp3", "L_cp5", opts.get("csl", 0))
    A(f"v_cmp_ne_u32 vcc, v{RB}, v{RB+8}")
    A("s_cmp_lg_u64 vcc, 0"); A("s_cbranch_scc1 L_slow")
    g.lab("L_send")
    if opts.get("stamps"):
        g.stamp(6)
        dump_all(g, [CNT, DB, SBI])
    A("s_endpgm")
    g.lab("L_away")
    slot_done(g, 1, 1, 32 - D0)
    A("v_mov_b32 v3, 0")
    l = g.uniq("aw")
    A("s_mov_b32 s70, 0")
    g.lab(l)
    A(f"ds_read_b32 v4, v3 offset:{L_RM}")
    A("s_waitcnt lgkmcnt(0)")
    A(f"v_cmp_lt_u32 vcc, {ROFF + 6 * (32 - J0)}, v4")
    spin_tail(g, l, l + "d", 8, 8)
    A(f"s_mov_b32 s{T_}, {J0}")
    A("s_mov_b32 s10, 0")
    g.lab("L_aw2")
    A(f"s_call_b64 s[{RET2}:{RET2+1}], L_work")
    A("s_sleep 4")
    A("s_add_u32 s10, s10, 1")
    A(f"s_cmp_ge_u32 s10, {SPIN_MAX}"); A("s_cbranch_scc1 L_end")
    A(f"s_cmp_lt_u32 s{STA}, 2"); A("s_cbranch_scc1 L_aw2")
    A("s_bfe_u32 s61, s15, 0x60008")
    A("s_cmp_lg_u32 s9, 7"); A("s_cbranch_scc1 L_end")
    A("s_cmp_ge_u32 s61, 32"); A("s_cbranch_scc1 L_end")
    A("s_waitcnt lgkmcnt(0)")
    A("s_load_dwordx2 s[16:17], s[0:1], 0")
    A("s_load_dwordx2 s[38:39], s[0:1], 88")
    A("v_mov_b32 v38, 0")
    A("s_mov_b32 s60, 3")
    A("s_waitcnt vmcnt(0) lgkmcnt(0)")
    A("s_branch L_mid")
    fallback(g, head_sum, wave_red)

    g.lab("L_ks")
    fetch()
    A(f"s_cmp_eq_u32 s{T_}, s{JS}")
    A(f"s_cselect_b32 s{DB}, s{DN}, s{DB}")
    A(f"s_cmp_ge_u32 s{STA}, 4"); A("s_cbranch_scc1 L_ks2")
    A(f"s_call_b64 s[{RET2}:{RET2+1}], L_work")
    g.lab("L_ks2")
    A(f"s_add_u32 s{T_}, s{T_}, 1")
    A(f"s_mul_i32 s68, s{RW}, s{NW}")
    A(f"s_sub_i32 s68, s68, s{SR}")
    A(f"s_sub_u32 s{RW}, s{RW}, 1")
    A(f"s_add_i32 s68, s68, {ROFF}")
    A(f"s_mul_i32 s68, s68, {LG}")
    A(f"s_add_i32 s68, s68, s{DB}")
    A(f"s_add_i32 s68, s68, s{SBI}")
    A(f"s_max_i32 s68, s68, {int(opts.get('lo', 1.5)*256)}")
    A(f"s_min_i32 s68, s68, {LAG*256}")
    A("s_lshl_b32 s69, s68, 24")
    A("s_lshr_b32 s68, s68, 8")
    A(f"s_add_u32 s{ACC}, s{ACC}, s69")
    A(f"s_addc_u32 s{LVL}, s68, 0")
    g.lab("L_wait")
    for d in range(LAG, 0, -1):
        A(f"s_waitcnt vmcnt({d-1})")
        if d > 1:
            A(f"s_cmp_ge_u32 s{LVL}, {d}"); A("s_cbranch_scc1 L_ret")
    g.lab("L_ret")
    A("s_mov_b64 exec, 1")
    A(f"ds_dec_u32 v{PA}, v{LRD} offset:{L_RM}")
    A(f"ds_read_b64 {vr(RA,2)}, v{PA} offset:{L_RM}")
    A("s_mov_b64 exec, -1")
    A(f"s_cmp_lg_u32 s{T_}, s{T_}")
    A(f"s_setpc_b64 s[{RET}:{RET+1}]")

    g.lab("L_vs")
    fetch()
    A(f"s_cmp_eq_u32 s{X1D}, 2"); A("s_cbranch_scc1 L_vs1")
    A(f"s_cmp_eq_u32 s{X1D}, 1"); A("s_cbranch_scc1 L_x3")
    A(f"s_cmp_gt_u32 s{LVL}, s{T_}"); A("s_cbranch_scc1 L_ks2")
    g.lab("L_x1")
    g.stamp(1, 2)
    dots(3)
    sc = OFF[1] + 1
    A(f"s_lshl_b32 s68, s{NH}, 3")
    A(f"s_add_u32 s68, s68, s{LB}")
    for i in range(4): A(f"v_add_f32_dpp v{X+i}, v{X+i}, v{X+i} quad_perm:[2,3,0,1] row_mask:0xf bank_mask:0xf")
    for i in range(2): A(f"v_cndmask_b32 v{T+i}, v{X+2*i}, v{X+2*i+1}, s[52:53]")
    A("v_mov_b32 v20, 64")
    A("v_lshlrev_b32 v21, 3, s9")
    for i in range(2): A(f"v_add_f32_dpp v{T+i}, v{T+i}, v{T+i} quad_perm:[1,0,3,2] row_mask:0xf bank_mask:0xf")
    A(f"v_cndmask_b32 v{sc}, v{T}, v{T+1}, s[54:55]")
    rnd(g, sc)
    A(f"v_mul_f32 v{sc}, 0x{SCALE:08x}, v{sc}")
    rnd(g, sc)
    mx = lambda r: f"v_max_f32_dpp v{MW}, v{MW}, v{MW} row_ror:{r} row_mask:0xf bank_mask:0xf"
    tk1 = f"s[{TK[1]}:{TK[1]+1}]"
    for t in (f"v_max_f32 v{MW}, v{MW}, v{sc}",
              f"v_cmp_ngt_f32 vcc, s{HTH}, v{sc}", "v_mov_b32 v4, 0", mx(8),
              "s_bcnt1_i32_b64 s69, vcc", f"s_add_u32 s69, s69, s{NH}", mx(4),
              f"s_cmp_gt_u32 s69, {HCAP}", f"s_cselect_b32 s{NSP}, 1, s{NSP}", mx(2),
              f"s_cmp_eq_u32 s{NSP}, 0", f"s_cselect_b64 {tk1}, vcc, 0", f"s_cselect_b32 s{NH}, s69, s{NH}", mx(1),
              f"v_mbcnt_lo_u32_b32 v3, s{TK[1]}, 0", f"v_mov_b32 v{T}, v{MW}", f"v_mbcnt_hi_u32_b32 v3, s{TK[1]+1}, v3", "v_lshl_add_u32 v3, v3, 3, s68",
              f"v_permlane16_swap_b32 v{T}, v{MW}",
              f"s_mov_b64 exec, {tk1}", f"ds_write_b64 v3, {vr(OFF[1],2)} offset:{HPOS*8}", "s_mov_b64 exec, -1",
              f"ds_read_b32 v{SET[2]}, v{LRD} offset:1024",
              f"v_max_f32 v{MW}, v{MW}, v{T}", f"v_mov_b32 v{T}, v{MW}", "v_mov_b32 v5, 0", f"s_mov_b32 s{TH}, s{T_}",
              f"v_permlane32_swap_b32 v{T}, v{MW}", f"v_max_f32 v{MW}, v{MW}, v{T}"): A(t)
    for i in range(2): A(f"v_sub_f32 v{X+1+i}, v{OFF[i]+1}, v{MW}")
    for i in range(2): A(f"v_mul_f32 v{X+1+i}, 0x{LOG2E:08x}, v{X+1+i}")
    for i in range(2): A(f"v_exp_f32 v{X+1+i}, v{X+1+i}")
    A(f"v_mov_b32 v{X}, v{MW}")
    A(f"v_add_f32 v{X+1}, v{X+1}, v{X+2}")
    A("s_waitcnt lgkmcnt(0)")
    for i in range(8):
        A(f"s_cmp_le_u32 s{NH}, {4*i}"); A("s_cbranch_scc1 L_x2")
        A(f"v_add_u32_dpp v3, v{SET[2]}, v{L16} row_newbcast:{8+i} row_mask:0xf bank_mask:0xf")
        A(f"buffer_load_dwordx4 {vr(slot(24+i),4)}, v3, s[48:51], 0 offen {VF}")
    g.lab("L_x2")
    g.stamp(2, 2)
    wave_red("v_add_f32", X+1, T)
    A("s_mov_b64 exec, 1")
    A(f"ds_max_f32 v1, v{MW} offset:{L_MX}")
    A(f"ds_write_b64 v21, {vr(X,2)} offset:{L_ST}")
    A(f"ds_add_u32 v1, v20 offset:{L_SCN}")
    A("s_mov_b64 exec, -1")
    g.stamp(3); g.stamp(3, 2)
    A(f"s_mov_b32 s{X1D}, 1"); A(f"s_mov_b32 s{HST}, 1")
    A(f"s_cmp_lt_u32 s{T_}, {LAG}"); A("s_cbranch_scc1 L_ks2")
    g.lab("L_x3")
    A(f"v_max_f32 v21, v{EV}, v{MW}")
    A(f"s_add_u32 s{CNT}, s{CNT}, 3"); A(f"s_lshr_b32 s{CNT}, s{CNT}, 2")
    A(f"v_add_f32 v21, 0x{f2u(DEL - ZERO_GAP):08x}, v21")
    A(f"s_max_u32 s{CNT}, s{CNT}, s{T_}"); A(f"s_lshl_b32 s{CNT}, s{CNT}, 2")
    build(1, 21)
    def fill():
        for e in range(8): A(f"v_mov_b32 v{T+e}, 0")
        A(f"s_lshr_b32 s{LIM}, s{CNT}, 2")
        A(f"s_mov_b32 s{X1D}, 2")
        estimate(2, opts.get("ve2", 8), CNT)
    reread(True, fill)
    A(f"s_cmp_eq_u32 s{NH}, 0")
    A(f"s_cselect_b32 s{LVL}, 0, s{LVL}")
    g.stamp(4, 2)
    g.lab("L_vs1")
    A(f"s_cmp_eq_u32 s{HST}, 0"); A("s_cbranch_scc1 L_vs1b")
    A(f"s_sub_u32 s68, s{T_}, s{TH}")
    A(f"s_cmp_le_u32 s{LVL}, s68"); A("s_cbranch_scc1 L_snap")
    A(f"s_cmp_lg_u32 s{LIM}, s{T_}"); A("s_cbranch_scc1 L_vs2")
    A("s_waitcnt vmcnt(0)")
    g.lab("L_snap")
    g.stamp(5, 2)
    HA = [4, 5, 6, 7, 16, 17, 18, 19]
    for r in HA[2:]: A(f"v_mov_b32 v{r}, 0")
    for i in range(8):
        A(f"s_cmp_le_u32 s{NH}, {4*i}"); A("s_cbranch_scc1 L_snp2")
        pv(40 + i, slot(24 + i), HA)
    g.lab("L_snp2")
    A("s_nop 1")
    lane_reduce(4, 16)
    A(f"s_mov_b32 s{HST}, 0")
    A(f"s_cmp_lg_u32 s{NSP}, 0"); A("s_cbranch_scc1 L_vs1b")
    prelim(4)
    g.stamp(9); g.stamp(7, 2)
    g.lab("L_vs1b")
    A(f"s_cmp_eq_u32 s{LIM}, s{T_}"); A("s_cbranch_scc1 L_hand")
    g.lab("L_vs2")
    if opts.get("b2", 0):
        A(f"s_cmp_le_i32 s{SR}, {ROFF + 8*opts['b2']}")
        A(f"s_cselect_b32 s68, {int(opts.get('dbur', 4.5)*256)}, 0")
        A(f"s_max_i32 s{DB}, s{DB}, s68")
    A(f"s_cmp_lt_u32 s{T_}, s{BUR}"); A("s_cbranch_scc1 L_ks2")
    A(f"s_sub_u32 s{LVL}, s{LIM}, s{T_}")
    A(f"s_add_u32 s{T_}, s{T_}, 1")
    A(f"s_cmp_gt_u32 s{LVL}, {LAG}"); A("s_cbranch_scc1 L_wait")
    for d in range(LAG, 0, -1):
        A(f"s_waitcnt vmcnt({d-1})")
        if d > 1:
            A(f"s_cmp_ge_u32 s{LVL}, {d}"); A("s_cbranch_scc1 L_ret2")
    g.lab("L_ret2")
    A(f"s_cmp_eq_u32 s{T_}, s{T_}")
    A(f"s_setpc_b64 s[{RET}:{RET+1}]")

    g.lab("L_hand")
    g.stamp(7)
    A("v_mov_b32 v3, 0")
    wait_cnt(g, f"ds_read_b64 v[18:19], v3 offset:{L_SCN}", 18, 0x10000 + 64 * NS_, 1)
    g.stamp(4)
    A(f"v_add_f32 v21, 0x{f2u(-ZERO_GAP):08x}, v19")
    if opts.get("noskip"): A("v_mov_b32 v21, 0xff800000")
    build(0, 21); build(1, 21)
    def fill2():
        A(f"s_add_u32 s{LIM}, s{CNT}, {3 + 4*LAG}")
        A(f"s_lshr_b32 s{LIM}, s{LIM}, 2")
        A(f"s_sub_u32 s{BUR}, s{LIM}, {LAG + opts.get('burst', 4)}")
        A(f"s_max_i32 s{BUR}, s{BUR}, 0")
        A(f"s_mov_b32 s{FIN}, s{LIM}")
        estimate(2, 3, CNT)
    reread(True, fill2)
    A("s_branch L_vs2")

    g.lab("L_work")
    ret2 = f"s_setpc_b64 s[{RET2}:{RET2+1}]"
    for k in (1, 2, 3):
        A(f"s_cmp_eq_u32 s{STA}, {k}"); A(f"s_cbranch_scc1 L_w{k}")
    A(f"s_cmp_lt_u32 s{T_}, {J0}"); A("s_cbranch_scc1 L_wr")
    g.lab("L_w0")
    A(f"s_load_dwordx16 s[16:31], s[42:43], s{QA} glc")
    A(f"s_mov_b32 s{STA}, 1")
    g.lab("L_wr")
    A(ret2)
    g.lab("L_w1")
    A("s_waitcnt lgkmcnt(0)")
    A(f"s_xor_b32 s68, s17, s{ST}")
    for k in range(1, 8):
        A(f"s_xor_b32 s69, s{17+2*k}, s{ST}"); A("s_or_b32 s68, s68, s69")
    A("s_cbranch_scc1 L_w0")
    for k in range(8): A(f"v_mov_b32 v{8+k}, s{16+2*k}")
    A("v_lshlrev_b32 v3, 5, s9")
    A("s_mov_b64 exec, 1")
    A(f"ds_write_b128 v3, v[8:11] offset:{L_QV}")
    A(f"ds_write_b128 v3, v[12:15] offset:{L_QV+16}")
    A("s_mov_b64 exec, -1")
    A(f"s_mov_b32 s{STA}, 2")
    g.lab("L_w2")
    A(f"s_add_u32 s68, s{LVL}, 16")
    A(f"s_cmp_lt_u32 s{T_}, s68"); A("s_cbranch_scc1 L_wr")
    A(f"ds_read_b128 v[4:7], v{L16} offset:{L_QV}")
    A("s_waitcnt lgkmcnt(0)")
    chk_sentinel(g, [4, 5, 6, 7], 8)
    A("s_cmp_lg_u64 vcc, 0"); A("s_cbranch_scc1 L_wr")
    g.stamp(9, 2)
    dots(0); dots(1)
    finish(0)
    A(f"s_mov_b32 s{STA}, 3")
    A(f"s_mov_b32 s{HST}, 0")
    g.stamp(8)
    A(ret2)
    g.lab("L_w3")
    A("v_mov_b32 v3, 0")
    A(f"ds_read_b64 v[18:19], v3 offset:{L_ECN}")
    A("s_waitcnt lgkmcnt(0)")
    A(f"v_cmp_gt_u32 vcc, 0x{0x10000 + 64 * NS_:x}, v18")
    A("s_cmp_lg_u64 vcc, 0"); A("s_cbranch_scc1 L_wr")
    A(f"ds_read_b96 v[16:18], v3 offset:{L_E1}")
    A("s_waitcnt lgkmcnt(0)")
    A(f"v_max_f32 v{EV}, v19, v18")
    A("v_med3_f32 v21, v19, v16, v17")
    A(f"v_add_f32 v21, 0x{f2u(-THETA):08x}, v21")
    A(f"v_cmp_nlt_f32 vcc, v{OFF[0]+1}, v21")
    A(f"v_readfirstlane_b32 s{HTH}, v21")
    A(f"s_mov_b32 s{NH}, 0")
    A("s_bcnt1_i32_b64 s68, vcc")
    A(f"s_cmp_gt_u32 s68, {HCAP}")
    A(f"s_cselect_b32 s{NSP}, 1, 0")
    A("s_cbranch_scc1 L_w4")
    A(f"s_mov_b32 s{CNT}, {HPOS}")
    build(0, 21)
    A(f"s_mov_b32 s{NH}, s69"); A(f"s_mov_b32 s{CNT}, 0")
    g.lab("L_w4")
    A(f"v_add_f32 v21, 0x{f2u(DEL - ZERO_GAP):08x}, v{EV}")
    build(0, 21)
    estimate(1, opts.get("ve1", 4), CNT, False)
    if opts.get("ka1", 0):
        A(f"s_sub_i32 s68, s{VE}, {opts.get('kt1', 21)}")
        A(f"s_max_i32 s68, s68, {opts.get('kl1', 0)}")
        A(f"s_mul_i32 s68, s68, {int(opts['ka1']*256)}")
        A(f"s_add_i32 s{DB}, s{DB}, s68"); A(f"s_add_i32 s{DN}, s{DN}, s68")
    A(f"s_mov_b32 s{STA}, 4")
    reread(False)
    A(ret2)

def gen(opts):
    g = G(opts); A = g.A
    opts.setdefault("cap", 0.6)
    RM, HOST = role_map(opts.get("two", 1))
    DROP = [0] * 256
    for h, l in HOST.items():
        for sp, c in l: DROP[(h & ~24) | sp << 3] += 1
    RED = {w: i for i, w in enumerate(sorted((w for w in range(256) if DROP[w]), key=lambda w: -DROP[w])[:32])}
    RAW = opts.get("red", 0)
    if not RAW: RED = {}
    WFL = opts.get("wflags", "nt")
    PT = opts.get("ptouch", 0)
    def cls(w):
        r, t = RM[w]
        slow = r in (C_WO, C_MODB, C_MODA, C_Q) and t % 8 == 3
        if r == C_Q: return "q3" if slow else "q"
        if r == C_WO: return "w3" if slow else "w"
        if r == C_MODA: return "a3" if slow else "a"
        if r == C_MODB: return "b3" if slow else "b"
        if r == C_F1: return "f" if DROP[w] == 1 else "e"
        if len(HOST.get(w, [])) == 2: return "h" + ("2" if w % 8 in (0, 2) and r == C_F2 else "")
        if r == C_F2: return ("p" if w >> 3 in (25, 27) and PT else "g") + ("2" if w % 8 in (0, 2) else "")
        return "n"
    g.cls = cls
    DEF = dict(q=3.29, q3=4.02, w=2.26, w3=2.36, a=3.45, a3=3.45, p=3.03, p2=3.95, b=2.27, b3=2.6, f=2.84, g=2.48, g2=2.86, n=2.22, h=3.2, h2=3.6, e=3.2)
    def dep(w):
        c = cls(w)
        d1 = opts.get("x" + c, DEF[c])
        d2 = d1 if c[0] in "qa" else min(d1 + opts.get("dup", 0.9), 5)
        return opts.get("js", 16) | (int(round(d1 * 256)) << 8) | (int(round(d2 * 256)) << 20)
    VB = dict(f=0.65, w=0.3, w3=0.2, q=-0.15, q3=-0.15, g=0.3, g2=0.3, p=0.1, p2=0.2, h=0.2, h2=0.2, n=0.2, e=1.5)
    def vbias(w): return int(round(opts.get("y" + cls(w), VB.get(cls(w), 0)) * 256)) & 0xffff
    def cfg(w):
        hs = HOST.get(w, []); drop = DROP[w]
        nw = 8 - drop + len(hs)
        v = nw | drop << 4 | len(hs) << 6 | round(2048 / nw) << 20
        if drop: v |= RED.get(w, 63) << 8
        for k, (sp, c) in enumerate(hs): v |= (sp | c << 2) << (8 + 5 * k)
        return v
    def m3(w):
        rows = [t // 8 + 1 for v, (r, t) in enumerate(RM) if r in (C_MODA, C_MODB) and t % 8 == 3 and v % 8 == w % 8]
        return rows[0] if len(rows) == 1 and rows[0] <= 2 else 0
    hdr = open(opts["ref"]).read().split("; Override launch")[0]
    g.L.append(hdr.rstrip("\n"))
    g.L.append(""";
;    numbers of loads in flight only affect speed.""")
    g.L.append(f"; @launch grid=(256,1,1) block=(768,1,1) lds={LDS_BYTES}")
    g.L.append('.amdgcn_target "amdgcn-amd-amdhsa--gfx950"\n.text')
    g.L.append(f".globl {KNAME}\n.p2align 8\n.type {KNAME},@function\n{KNAME}:")
    g.stamp(0, 3)
    A("s_cmp_ge_u32 s2, 256")
    A("s_cbranch_scc1 L_end")
    A("s_load_dwordx16 s[16:31], s[0:1], 0")
    A("s_load_dwordx8 s[32:39], s[0:1], 64")
    A("s_load_dwordx4 s[40:43], s[0:1], 96")
    A("s_getpc_b64 s[56:57]")
    g.lab("L_pc")
    A("s_lshl_b32 s3, s2, 4")
    A("s_add_u32 s3, s3, L_table-L_pc")
    mt = lambda i: (i & 8) | ((i + 3 - ((i >> 3) << 1)) & 7)
    assert all(RM[w] == (C_Q, 8 * (w % 8) + w // 8) for w in range(64)) and all(RM[128 + i] == (C_MODA, mt(i)) for i in range(16))
    A("s_and_b32 s13, s2, 0xe8")
    A("s_cmp_eq_u32 s13, 0xc8")
    A(f"s_cselect_b32 s13, {4 if PT & 1 else 0}, 0")
    A("s_cmp_lt_u32 s2, 144")
    A("s_cselect_b32 s13, 1, s13")
    A("s_cmp_lt_u32 s2, 128")
    A(f"s_cselect_b32 s13, {3 if PT & 2 else 0}, s13")
    A("s_cmp_lt_u32 s2, 64")
    A("s_cselect_b32 s13, 2, s13")
    A("v_lshrrev_b32 v2, 6, v0")
    A("v_and_b32 v1, 63, v0")
    A("v_readfirstlane_b32 s5, v2")
    A("s_bfe_u32 s7, s2, 0x20003")
    A("s_bfe_u32 s6, s2, 0x20005")
    A("s_and_b32 s8, s2, 7")
    A("s_lshl_b32 s9, s8, 2")
    A("s_add_u32 s6, s6, s9")
    A("s_lshr_b32 s9, s2, 7")
    A("s_lshl_b32 s9, s9, 5")
    A("s_add_u32 s6, s6, s9")
    A("s_mov_b32 s72, 0xfffffffe")
    A("s_mov_b32 s73, 0xffff0000")
    g.stamp(0)
    A("s_cmp_lt_u32 s5, 4")
    A("s_cbranch_scc1 L_helper")
    stream(g, opts)

    g.lab("L_helper")
    A("s_bfe_u32 s61, s2, 0x30003"); A("s_lshl_b32 s48, s8, 3"); A("s_add_u32 s61, s61, s48")
    A("s_cmp_lt_u32 s2, 144"); A("s_cselect_b32 s48, 3, 4")
    A("s_lshr_b32 s48, s2, s48"); A("s_and_b32 s48, s48, 1"); A("s_lshl_b32 s49, s48, 1")
    A("s_add_u32 s50, s2, 3"); A("s_sub_u32 s50, s50, s49"); A("s_and_b32 s50, s50, 7")
    A("s_lshl_b32 s48, s48, 3"); A("s_or_b32 s50, s50, s48")
    A("s_cmp_lt_u32 s2, 128"); A("s_cselect_b32 s61, s61, s50")
    A("v_mov_b32 v4, -1"); A("v_mov_b32 v5, -1"); A("v_mov_b32 v6, -1"); A("v_mov_b32 v7, -1")
    A("v_mov_b32 v8, 0xff800000"); A("v_mov_b32 v9, 0"); A("v_mov_b32 v10, 0xff800000")
    A("v_lshlrev_b32 v2, 3, v1")
    A(f"ds_write_b64 v2, v[8:9] offset:{L_ST}")
    A("v_lshlrev_b32 v2, 2, v1")
    A(f"ds_write_b32 v2, v4 offset:{L_QV}")
    A("v_mov_b32 v38, 0")
    A("v_mov_b32 v39, 0xff800000")
    A(f"ds_write_b128 v38, v[4:7] offset:{L_ML}")
    A(f"ds_write_b32 v38, v38 offset:{L_CNT}")
    A(f"v_mov_b32 v8, {64*(NS_-8)}"); A("v_mov_b32 v9, v39"); A("v_mov_b32 v10, v8"); A("v_mov_b32 v11, v39")
    A(f"ds_write_b128 v38, v[8:11] offset:{L_SCN}")
    A(f"v_mov_b32 v8, {1024+8*(32-opts.get('D0', 4))}")
    LAG = opts.get("LAG", 5)
    A("v_mov_b32 v9, 0"); A("v_mov_b32 v10, 1024"); A(f"v_mov_b32 v11, {-int(opts.get('cap', 0)*256)}")
    A(f"ds_write_b128 v38, v[8:11] offset:{L_RM}")
    A("v_mov_b32 v8, 0"); A("v_mov_b32 v9, 0"); A("v_mov_b32 v10, 0"); A("v_mov_b32 v11, 0")
    A("v_lshlrev_b32 v2, 3, v0")
    A(f"ds_write_b64 v2, v[8:9] offset:{L_OP+512*6}")
    A(f"ds_write_b64 v2, v[8:9] offset:{L_OP1+512*6}")
    A(f"v_mov_b32 v8, {NS_-8}"); A(f"v_mov_b32 v9, {NS_-8}")
    A(f"ds_write_b128 v38, v[8:11] offset:{L_SN}")
    A(f"s_mov_b32 s{STG}, 4")
    A(f"s_getreg_b32 s{SXCC}, hwreg(HW_REG_XCC_ID, 0, 4)")
    A("v_lshrrev_b32 v12, 3, v0")
    A("v_lshlrev_b32 v12, 5, v12")
    A("v_bfe_u32 v3, v1, 2, 1")
    A("v_lshl_add_u32 v12, v3, 10, v12")
    A("v_and_b32 v8, 3, v1")
    A("v_lshl_add_u32 v13, v8, 3, v12")
    A("v_and_b32 v12, 0xffffffdf, v12")
    A("v_lshl_add_u32 v12, v8, 4, v12")
    A("v_bfe_u32 v8, v1, 3, 1")
    A("v_lshl_add_u32 v12, v8, 3, v12")
    A("v_lshl_add_u32 v12, v3, 5, v12")
    A("s_lshl_b32 s48, s61, 7")
    A("s_lshl_b32 s49, s5, 7"); A("s_add_u32 s49, s49, 64")
    A("v_add_u32 v8, s49, v1")
    A("s_waitcnt lgkmcnt(0)")
    A(f"s_load_dword s{ST}, s[42:43], {WS_E}")
    A("s_cmp_eq_u32 s13, 2"); A("s_cbranch_scc1 L_r_q")
    A("s_cmp_eq_u32 s13, 1"); A("s_cbranch_scc1 L_r_moda")
    A("s_load_dwordx2 s[14:15], s[56:57], s3")
    if PT & 2:
        A("s_cmp_lg_u32 s13, 3"); A("s_cbranch_scc1 L_np3")
        A("v_lshl_add_u32 v8, v8, 13, s48")
        A("global_load_dword v167, v8, s[22:23]")
        g.lab("L_np3")
    if PT & 1:
        A("s_cmp_lg_u32 s13, 4"); A("s_cbranch_scc1 L_np4")
        A("v_mul_u32_u24 v8, 6144, v8")
        A("v_add_u32 v8, s48, v8")
        A("global_load_dword v167, v8, s[36:37]")
        g.lab("L_np4")
    A("s_barrier")
    A("s_waitcnt lgkmcnt(0)")
    A("s_and_b32 s13, s14, 7")
    A("s_bfe_u32 s61, s14, 0x80008")
    A(f"s_cmp_eq_u32 s13, {C_WO}"); A("s_cbranch_scc1 L_r_wo")
    A(f"s_cmp_eq_u32 s13, {C_MODB}"); A("s_cbranch_scc1 L_r_modb")
    A(f"s_cmp_eq_u32 s13, {C_F1}"); A("s_cbranch_scc1 L_r_f1")
    A(f"s_cmp_eq_u32 s13, {C_F2}"); A("s_cbranch_scc1 L_r_f2")
    A("s_branch L_r_none")

    def tag():
        A("s_waitcnt lgkmcnt(0)")
        make_tag(g)
        A(f"s_add_u32 s{SXCC}, s{SXCC}, s{ST}")
    def line_out_addr(v, bsh=6, ush=7):
        A(f"v_and_b32 v{v}, 1, v1")
        A(f"v_lshlrev_b32 v{v}, {bsh}, v{v}")
        A("v_lshrrev_b32 v3, 4, v1")
        A(f"v_lshl_add_u32 v{v}, v3, 4, v{v}")
        A(f"s_lshl_b32 s49, s5, {ush}")
        A("s_add_u32 s49, s49, s58")
        A(f"v_add_u32 v{v}, s49, v{v}")
    def pack_tagged():
        A("v_cvt_pk_bf16_f32 v8, v8, v9")
        A("v_cvt_pk_bf16_f32 v10, v10, v11")
        A(f"v_mov_b32 v9, s{ST}")
        A(f"v_mov_b32 v11, s{ST}")
    def ln_addrs():
        A("v_bfe_u32 v6, v1, 2, 1")
        A("v_lshlrev_b32 v6, 5, v6")
        A(f"v_add_u32 v6, {L_RED}, v6")
        A("s_lshl_b32 s49, s5, 3")
        A("v_add_u32 v5, s49, v6")
    def mod_params():
        A("s_lshl_b32 s48, s61, 7")
        A("s_lshl_b32 s58, s61, 9")
        A(f"s_add_u32 s58, s58, {WS_MOD}")
        srd(g, 44, 36, 512*6144)
    def mod_act():
        unpack4(g, 16, 14)
        silu4(g, 16, 20)
        A("v_cvt_pk_bf16_f32 v14, v16, v17")
        A("v_cvt_pk_bf16_f32 v15, v18, v19")
        A(f"ds_write_b64 v12, v[14:15] offset:{L_ACT}")
    MREP = opts.get("mrep", 8)
    def mod_finish(sig):
        line_out_addr(13)
        if sig and MREP:
            A("v_bfe_u32 v3, v1, 1, 3")
            A(f"v_lshl_add_u32 v13, v3, 13, v13")
            A(f"v_add_u32 v13, {WS_MA-WS_MOD}, v13")
        act_addr(g, 14, L_ACT, ACT_BS)
        tr64_addr(g)
        if sig:
            A("s_waitcnt vmcnt(0) lgkmcnt(0)")
            g.stamp(1)
            hs_signal(g, 9); hs_wait(g, 4, 9, 0)
        else:
            hs_wait(g, 4, 9, 8)
        gemv_fused(g, 14, 8)
        pack_tagged()
        if sig and MREP:
            A(f"s_mov_b32 exec_lo, 0x{((1 << 2*MREP) - 1) * 0x10001:08x}"); A("s_mov_b32 exec_hi, exec_lo")
        else:
            for x in EX8: A(x)
        A("global_store_dwordx4 v13, v[8:11], s[42:43] sc1")
        A("s_mov_b64 exec, -1")
        g.stamp(2)

    g.lab("L_r_moda")
    mod_params()
    A("global_load_dwordx2 v[14:15], v13, s[34:35]")
    dma_tile64(g, 6144, WFL)
    A("s_barrier")
    tag()
    A("s_waitcnt vmcnt(16)")
    mod_act()
    mod_finish(1)
    A(f"ds_write_b32 v38, v38 offset:{L_GO}")
    A("s_mov_b32 s60, 0")
    A("s_branch L_svc")

    g.lab("L_r_q")
    A("s_lshl_b32 s58, s61, 8")
    A(f"s_add_u32 s58, s58, {WS_Q}")
    A("global_load_dwordx2 v[14:15], v13, s[16:17]")
    srd(g, 44, 22, 512*8192)
    dma_tile64(g, 8192, WFL)
    A("s_barrier")
    tag()
    A("s_waitcnt vmcnt(16)")
    ln_addrs()
    unpack4(g, 20, 14)
    ln_partial(g, 20)
    A("s_waitcnt vmcnt(0) lgkmcnt(0)")
    hs_signal(g, 9); hs_wait(g, 4, 9)
    ln_apply(g, 20, 24)
    A("v_lshlrev_b32 v15, 4, v0")
    if MREP:
        A(f"s_and_b32 s49, s2, {MREP-1}"); A("s_lshl_b32 s49, s49, 13"); A(f"s_add_u32 s49, s49, {WS_MA}")
        A("v_add_u32 v15, s49, v15")
    else: A(f"v_add_u32 v15, {WS_MOD}, v15")
    A("v_add_u32 v36, 0x1000, v15")
    def mod_loads():
        A("s_mov_b64 exec, s[64:65]")
        A("global_load_dwordx4 v[16:19], v15, s[42:43] sc1")
        A("s_mov_b64 exec, s[66:67]")
        A("global_load_dwordx4 v[32:35], v36, s[42:43] sc1")
        A("s_mov_b64 exec, -1")
    A("s_mov_b64 s[64:65], -1"); A("s_mov_b64 s[66:67], -1")
    mod_loads()
    tr_tile64(g)
    line_out_addr(13, 14, 6)
    act_addr(g, 14, L_ACT, ACT_BS)
    g.stamp(1)
    A("s_mov_b32 s70, 0")
    A("s_branch L_q_c")
    g.lab("L_q_p")
    mod_loads()
    g.lab("L_q_c")
    A("s_waitcnt vmcnt(0)")
    A(f"v_cmp_ne_u32 s[64:65], s{ST}, v17"); A(f"v_cmp_ne_u32 s[68:69], s{ST}, v19"); A("s_or_b64 s[64:65], s[64:65], s[68:69]")
    A(f"v_cmp_ne_u32 s[66:67], s{ST}, v33"); A(f"v_cmp_ne_u32 s[68:69], s{ST}, v35"); A("s_or_b64 s[66:67], s[66:67], s[68:69]")
    A("s_or_b64 vcc, s[64:65], s[66:67]")
    spin_tail(g, "L_q_p", "L_q_ok", opts.get("msleep", 0))
    g.stamp(7)
    unpack4(g, 28, 32, 2)
    unpack4(g, 24, 16, 2)
    for i in range(4): A(f"v_add_f32 v{28+i}, 1.0, v{28+i}")
    for i in range(4): rnd(g, 28+i)
    for i in range(4): A(f"v_mul_f32 v{20+i}, v{20+i}, v{28+i}")
    for i in range(4): rnd(g, 20+i)
    for i in range(4): A(f"v_add_f32 v{20+i}, v{20+i}, v{24+i}")
    A("v_cvt_pk_bf16_f32 v16, v20, v21")
    A("v_cvt_pk_bf16_f32 v17, v22, v23")
    A(f"ds_write_b64 v12, v[16:17] offset:{L_ACT}")
    hs_signal(g, 9); hs_wait(g, 8, 9, 0)
    if opts.get("gop", 0) == 0: A(f"ds_write_b32 v38, v38 offset:{L_GO}")
    gemv(g, 16, 14, 8)
    pack_tagged()
    guard(g, 8); guard(g, 10)
    for x in EX8: A(x)
    A("global_store_dwordx4 v13, v[8:11], s[42:43] sc1")
    A("s_mov_b64 exec, -1")
    if opts.get("gop", 0) == 1: A(f"ds_write_b32 v38, v38 offset:{L_GO}")
    g.stamp(2)
    A("s_mov_b32 s60, 0")
    A("s_branch L_svc")

    PD = opts.get("PD", 4)
    def dma_waves_only(skip, late=0, early3=0):
        A("s_sub_u32 s53, s5, 1")
        A("s_cmp_gt_u32 s53, 1")
        A(f"s_cbranch_scc1 {skip}")
        if late:
            e3 = g.uniq("l3")
            if early3:
                A("s_and_b32 s49, s61, 7"); A("s_cmp_lg_u32 s49, 3"); A(f"s_cbranch_scc1 {e3}")
                dma_tile64(g, early3, WFL, PD)
                A(f"s_branch {skip}")
                g.lab(e3)
            l = g.uniq("lt"); e = g.uniq("ltd")
            A("s_mov_b32 s70, 0")
            g.lab(l)
            A(f"ds_read_b32 v8, v38 offset:{L_RM}")
            A("s_waitcnt lgkmcnt(0)")
            A(f"v_cmp_lt_u32 vcc, {1024 + 8 * (32 - late)}, v8")
            spin_tail(g, l, e, 4, 8)
    g.lab("L_r_modb")
    mod_params()
    A("global_load_dwordx2 v[14:15], v13, s[34:35]")
    tag()
    A("s_waitcnt vmcnt(0)")
    mod_act()
    A("s_mov_b32 s60, 4")
    dma_waves_only("L_sig", late_steps(opts)["b"], 6144)
    dma_tile64(g, 6144, WFL, opts.get("PDB", PD))
    A("s_branch L_sig")

    g.lab("L_r_wo")
    A("s_lshl_b32 s48, s8, 19")
    A("s_lshl_b32 s49, s61, 7")
    A("s_add_u32 s48, s48, s49")
    A("s_lshr_b32 s58, s8, 1"); A("s_lshl_b32 s58, s58, 14")
    A("s_and_b32 s49, s8, 1"); A("s_lshl_b32 s49, s49, 12"); A("s_add_u32 s58, s58, s49")
    A("s_lshl_b32 s49, s61, 9")
    A("s_add_u32 s58, s58, s49")
    A(f"s_add_u32 s58, s58, {WS_AP}")
    srd(g, 44, 24, 4096*1024)
    tag()
    e = g.uniq("sig")
    A("s_cmp_lg_u32 s5, 3"); A(f"s_cbranch_scc1 {e}")
    A("s_lshl_b32 s56, s8, 5"); A("s_add_u32 s56, s56, s61"); A("s_lshl_b32 s56, s56, 2")
    A("v_mov_b32 v8, s56"); A(f"v_mov_b32 v9, s{SXCC}")
    A("s_mov_b64 exec, 1")
    A(f"global_store_dword v8, v9, s[42:43] offset:{WS_HDR} sc1")
    A("s_mov_b64 exec, -1")
    g.lab(e)
    A("s_mov_b32 s60, 1")
    dma_waves_only("L_sig", late_steps(opts)["w"], 1024)
    dma_tile64(g, 1024, WFL, opts.get("PDW", PD))
    A("s_branch L_sig")

    g.lab("L_r_f1")
    A("s_lshl_b32 s48, s61, 6")
    A("s_lshl_b32 s58, s61, 7")
    A(f"s_add_u32 s58, s58, {WS_FP}")
    tag()
    A("s_cmp_lt_u32 s5, 2")
    A("s_cselect_b32 s44, s28, s30")
    A("s_cselect_b32 s45, s29, s31")
    A(f"s_mov_b32 s46, {512*2752}"); A("s_mov_b32 s47, 0x20000")
    A("s_mov_b32 s60, 2")
    dma_waves_only("L_sig", late_steps(opts)["f"])
    for h in range(2):
        A("s_and_b32 s54, s61, 1" if h == 0 else "s_andn2_b32 s54, 1, s61")
        A("v_lshrrev_b32 v2, 2, v1")
        A("v_mul_u32_u24 v2, 5504, v2")
        A("s_and_b32 s49, s5, 2")
        A("s_or_b32 s49, s49, s54")
        A("v_xor_b32 v3, s49, v1")
        A("v_and_b32 v3, 3, v3")
        A("v_lshl_add_u32 v2, v3, 4, v2")
        A("s_mul_i32 s49, s54, 2752"); A("s_add_u32 s49, s49, s48")
        A("s_lshl_b32 s50, s53, 15"); A("s_lshl_b32 s54, s54, 14"); A("s_add_u32 s50, s50, s54")
        A(f"s_add_u32 s50, s50, {L_WT}")
        dma_loop(g, 16, 32*2752, "" if h == 0 else WFL, opts.get("PD1", 4))
    srd(g, 44, 32, 1376*1024)
    A("v_lshlrev_b32 v2, 4, v1")
    A("s_lshl_b32 s49, s61, 1"); A("s_add_u32 s49, s49, s53"); A("s_lshl_b32 s49, s49, 14")
    A(f"s_mul_i32 s50, s53, {16*W2S}")
    A(f"s_add_u32 s50, s50, {L_W2}")
    dma_loop(g, 16, 1024, WFL, opts.get("PD2", 6), W2S)
    A("s_branch L_sig")

    def guests():
        e = g.uniq("gs")
        A("s_sub_u32 s53, s5, 1")
        A("s_cmp_gt_u32 s53, 1"); A(f"s_cbranch_scc1 {e}")
        A("s_bfe_u32 s49, s15, 0x20006")
        A("s_cmp_ge_u32 s53, s49"); A("s_cbranch_scc1 L_end")
        A("s_mul_i32 s49, s53, 5"); A("s_add_u32 s49, s49, 8"); A("s_lshr_b32 s49, s15, s49")
        A("s_and_b32 s4, s49, 3"); A("s_lshl_b32 s4, s4, 18")
        A("s_bfe_u32 s11, s49, 0x30002"); A("s_lshl_b32 s11, s11, 10")
        A("s_add_u32 s9, s53, 8")
        A("s_mov_b32 s13, -1")
        A("s_branch L_stream")
        g.lab(e)
    g.lab("L_r_f2")
    A(f"s_mov_b32 s60, {0 if RAW else 3}")
    guests()
    e = g.uniq("tch")
    A("s_cmp_lg_u32 s5, 3"); A(f"s_cbranch_scc1 {e}")
    A("s_and_b32 s49, s61, 3"); A("s_lshl_b32 s49, s49, 7")
    A("v_add_u32 v8, s49, v1")
    def touch(base, stride, off_s, second):
        A(f"v_mul_u32_u24 v9, {stride}, v8")
        A(f"v_add_u32 v9, {off_s}, v9")
        A(f"global_load_dword v167, v9, s[{base}:{base+1}]")
        if second:
            A(f"v_add_u32 v10, {64*stride}, v9")
            A(f"global_load_dword v167, v10, s[{base}:{base+1}]")
    e2 = g.uniq("tchm")
    A("s_bfe_u32 s50, s14, 0x50003")
    A("s_cmp_eq_u32 s50, 0"); A(f"s_cbranch_scc1 {e2}")
    A("s_lshl_b32 s50, s50, 10"); A(f"s_sub_u32 s50, s50, {1024-384}")
    touch(36, 6144, "s50", opts.get("t2", 1))
    g.lab(e2)
    A("s_lshl_b32 s50, s8, 10"); A("s_add_u32 s50, s50, 384")
    touch(22, 8192, "s50", opts.get("t2", 1))
    g.lab(e)
    g.lab("L_light")
    tag()
    A("s_cmp_eq_u32 s5, 3"); A("s_cbranch_scc1 L_lt3")
    A("s_bfe_u32 s49, s15, 0x20006"); A("s_sub_u32 s49, 0, s49")
    slot_done(g, 38, "s49", 32 - opts.get("D0", 4))
    hs_signal(g, 9)
    A("s_branch L_svc")
    g.lab("L_lt3")
    hs_wait(g, 1, 9, 2)
    A("s_branch L_svc")

    g.lab("L_r_none")
    A("s_mov_b32 s60, 0")
    guests()
    A("s_branch L_light")

    g.lab("L_sig")
    A("s_waitcnt vmcnt(0) lgkmcnt(0)")
    g.stamp(1)
    hs_signal(g, 9)

    g.lab("L_svc")
    def merge(nl, base):
        A(f"v_and_b32 v9, {nl-1}, v1")
        A("v_lshlrev_b32 v9, 3, v9")
        A(f"ds_read_b64 v[10:11], v9 offset:{base}")
        mods = ["quad_perm:[1,0,3,2]", "quad_perm:[2,3,0,1]", "row_half_mirror", "row_mirror"][:nl.bit_length()-1]
        A("s_waitcnt lgkmcnt(0)")
        if nl == 16: A("v_mov_b32 v16, v10")
        for i, m_ in enumerate(mods):
            src = 10 if i == 0 else 8
            A(f"v_max_f32_dpp v8, v{src}, v{src} {m_} row_mask:0xf bank_mask:0xf")
            if i + 1 < len(mods): A("s_nop 1")
        A("v_sub_f32 v9, v10, v8")
        A(f"v_mul_f32 v9, 0x{LOG2E:08x}, v9")
        A("v_exp_f32 v9, v9")
        A("s_nop 0")
        A("v_mul_f32 v10, v9, v11")
        for m_ in mods:
            A("s_nop 1")
            A(f"v_add_f32_dpp v10, v10, v10 {m_} row_mask:0xf bank_mask:0xf")
    SB = 20
    def spoll(nd, off, name):
        A("s_lshl_b32 s64, s6, 9")
        for i in range(3):
            A(f"s_xor_b32 s{54+i}, s7, {i+1}"); A(f"s_lshl_b32 s{54+i}, s{54+i}, 7"); A(f"s_add_u32 s{54+i}, s{54+i}, s64")
        A("s_mov_b32 s70, 0")
        g.lab(name)
        for i in range(3): A(f"s_load_dwordx{nd} s[{SB+4*i}:{SB+4*i+nd-1}], s[42:43], s{54+i} offset:{off} glc")
        A("s_waitcnt lgkmcnt(0)")
        tags = [SB + 4*i + k for i in range(3) for k in range(1, nd, 2)]
        A(f"s_xor_b32 s68, s{tags[0]}, s{ST}")
        for k in tags[1:]:
            if k % 4 == 3: A(f"s_sub_u32 s69, s{k}, s{ST}"); A("s_lshr_b32 s69, s69, 4")
            else: A(f"s_xor_b32 s69, s{k}, s{ST}")
            A("s_or_b32 s68, s68, s69")
        A(f"s_cbranch_scc0 {name}d")
        if opts.get("ssl", 2): A(f"s_sleep {opts.get('ssl', 2)}")
        A("s_add_u32 s70, s70, 1")
        A(f"s_cmp_lt_u32 s70, {SPIN_MAX}")
        A(f"s_cbranch_scc1 {name}")
        g.lab(name + "d")
        A(f"v_mov_b32 v8, s{SB}"); A(f"v_mov_b32 v10, s{SB+4}"); A(f"v_mov_b32 v16, s{SB+8}")
        A("v_max3_f32 v18, v8, v10, v16")
        A("v_mov_b32 v19, 0x10000")
    def own_line(base):
        A("s_lshl_b32 s64, s6, 2"); A("s_add_u32 s64, s64, s7"); A("s_lshl_b32 s64, s64, 7")
        A(f"s_add_u32 s64, s64, {base}")
        A("v_mov_b32 v18, s64")
    A("s_cmp_eq_u32 s5, 3")
    A("s_cbranch_scc1 L_svc3")
    A("s_cmp_lg_u32 s5, 0")
    A("s_cbranch_scc1 L_mid")
    own_line(WS_S1)
    wait_cnt(g, f"ds_read_b64 v[8:9], v38 offset:{L_ECN}", 8, 64 * NS_, 2, 0xffff)
    A("v_mov_b32 v8, v9")
    A(f"v_mov_b32 v9, s{ST}")
    A("s_mov_b64 exec, 1")
    A("global_store_dwordx2 v18, v[8:9], s[42:43] sc1")
    A("s_mov_b64 exec, -1")
    A("s_lshl_b32 s64, s8, 7")
    A(f"s_load_dwordx8 s[20:27], s[42:43], s64 offset:{WS_HDR} glc")
    A("s_waitcnt lgkmcnt(0)")
    A(f"s_xor_b32 s68, s20, s{SXCC}")
    for k in range(1, 8):
        A(f"s_xor_b32 s69, s{20+k}, s{SXCC}"); A("s_or_b32 s68, s68, s69")
    A("s_cselect_b32 s68, 0, 1")
    if opts.get("nolocal"): A("s_mov_b32 s68, 0")
    A("v_mov_b32 v8, s68")
    A("s_mov_b64 exec, 1")
    A(f"ds_add_u32 v38, v8 offset:{L_LOC}")
    A("s_mov_b64 exec, -1")
    A("s_branch L_mid")
    g.lab("L_svc3")
    wait_cnt(g, f"ds_read_b32 v8, v38 offset:{L_ECN}", 8, opts.get("e1", 6) * 64, 4)
    spoll(2, WS_S1, "L_s3e")
    A("v_med3_f32 v17, v8, v10, v16")
    A("v_min3_f32 v16, v8, v10, v16")
    A("s_mov_b64 exec, 1")
    A(f"ds_write_b96 v38, v[16:18] offset:{L_E1}")
    A(f"ds_add_u32 v38, v19 offset:{L_ECN}")
    A("s_mov_b64 exec, -1")

    g.lab("L_mid")
    LATEW = late_steps(opts)["w"] >= 12; LATEB = late_steps(opts)["b"] >= 12
    TB = 32
    for i in range(4): A(f"s_bfe_u32 s{TB+i}, s{ST}, 0x{(8 << 16) | (8 * i):x}")
    A("s_cmp_eq_u32 s60, 2"); A("s_cbranch_scc1 L_pre_f1")
    A("s_cmp_eq_u32 s60, 3"); A("s_cbranch_scc1 L_pre_f2")
    A("s_cmp_eq_u32 s60, 1"); A("s_cbranch_scc1 L_pre_wo")
    if not LATEB:
        A("s_cmp_lg_u32 s60, 4"); A("s_cbranch_scc1 L_svd")
        mod_finish(0)
    A("s_branch L_svd")

    def side():
        A(f"s_sub_u32 s59, s{SXCC}, s{ST}")
        A(f"s_xor_b32 s59, s59, {4*opts.get('near', 2)}"); A("s_and_b32 s59, s59, 4"); A("s_lshl_b32 s59, s59, 11")
        if opts.get("near", 2) == 2: A("s_mov_b32 s59, 0")
    g.lab("L_pre_wo")
    if not LATEW:
        hs_wait(g, 4, 9, 8)
        tr_tile64(g)
    A("s_lshl_b32 s49, s8, 2"); A("s_add_u32 s49, s49, s5"); A("s_lshl_b32 s49, s49, 11")
    A(f"s_add_u32 s49, s49, {WS_OP}")
    A("v_lshrrev_b32 v12, 5, v1")
    A("v_and_b32 v16, 31, v1")
    A("v_lshlrev_b32 v15, 16, v12")
    A("v_lshl_add_u32 v15, v16, 4, v15")
    A("v_add_u32 v15, s49, v15")
    A(f"v_mul_u32_u24 v12, {ACT_BS}, v12")
    A("v_bfe_u32 v16, v1, 3, 2")
    A("v_lshl_add_u32 v12, v16, 6, v12")
    A("v_and_b32 v16, 3, v1")
    A("v_lshl_add_u32 v12, v16, 4, v12")
    A("v_bfe_u32 v16, v1, 2, 1")
    A("v_lshl_add_u32 v12, v16, 3, v12")
    A("s_lshl_b32 s49, s5, 8")
    A("v_add_u32 v12, s49, v12")
    act_addr(g, 14, L_ACT, ACT_BS)
    line_out_addr(13)
    A("v_bfe_u32 v3, v1, 1, 1")
    A("v_lshl_add_u32 v13, v3, 13, v13")
    A("v_mov_b32 v36, 0xff")
    A("s_branch L_svd")

    g.lab("L_pre_f1")
    A("v_mov_b32 v37, v13")
    A("v_lshlrev_b32 v15, 4, v0")
    A(f"v_add_u32 v39, {WS_MOD+3*4096}, v15")
    A(f"v_add_u32 v15, {WS_AP+4096}, v15")
    side()
    A("v_add_u32 v15, s59, v15")
    A("v_lshrrev_b32 v5, 2, v0")
    A("v_lshlrev_b32 v5, 3, v5")
    A(f"v_add_u32 v5, {L_RED}, v5")
    A("v_lshlrev_b32 v7, 3, v1")
    A(f"v_add_u32 v7, {L_RED}, v7")
    A("v_and_b32 v14, 7, v1")
    A(f"v_mul_u32_u24 v14, {ACT_BS}, v14")
    A("v_lshrrev_b32 v3, 4, v1")
    A("v_lshl_add_u32 v14, v3, 4, v14")
    A("v_bfe_u32 v6, v1, 2, 2")
    A("v_lshl_add_u32 v6, v3, 3, v6")
    A(f"v_mul_u32_u24 v6, {W2S}, v6")
    A("v_and_b32 v8, 3, v1")
    A("v_lshl_add_u32 v6, v8, 3, v6")
    A("s_lshl_b32 s49, s5, 8"); A(f"s_add_u32 s49, s49, {L_W2}")
    A("v_add_u32 v6, s49, v6")
    A("v_lshlrev_b32 v10, 3, v0")
    A(f"v_add_u32 v10, {L_HZ}, v10")
    A("v_mov_b32 v8, 0"); A("v_mov_b32 v9, 0")
    A("ds_write_b64 v10, v[8:9]")
    def f1_addrs():
        A("v_and_b32 v39, 1, v1")
        A("v_lshlrev_b32 v39, 6, v39")
        A(f"v_add_u32 v39, {L_HH}, v39")
        A("v_lshrrev_b32 v3, 4, v1")
        A("v_lshl_add_u32 v37, v3, 4, v39")
        A("v_bfe_u32 v3, v1, 1, 3")
        A("v_lshlrev_b32 v3, 7, v3")
        A("v_sub_u32 v37, v37, v3")
        A("v_bfe_u32 v3, v1, 4, 1")
        A("v_lshl_add_u32 v39, v3, 3, v39")
        A("v_lshrrev_b32 v3, 5, v1")
        A("v_lshl_add_u32 v39, v3, 2, v39")
        A("s_lshl_b32 s49, s5, 4")
        A("v_add_u32 v39, s49, v39")
    line_out_addr(13, 6, 17)
    A("v_bfe_u32 v3, v1, 1, 3")
    A("v_lshl_add_u32 v13, v3, 14, v13")
    A("v_lshrrev_b32 v2, 3, v1")
    A("v_lshlrev_b32 v2, 6, v2")
    A("v_bfe_u32 v3, v1, 2, 1")
    A("v_lshl_add_u32 v2, v3, 14, v2")
    A("v_and_b32 v8, 2, v1")
    A("v_or_b32 v3, v3, v8")
    A("v_xor_b32 v3, s5, v3")
    A("v_lshl_add_u32 v2, v3, 4, v2")
    A("v_lshl_add_u32 v2, v8, 14, v2")
    A("v_and_b32 v3, 1, v1")
    A("v_lshl_add_u32 v2, v3, 3, v2")
    A(f"v_add_u32 v2, {L_WT}, v2")
    A("s_branch L_svd")

    g.lab("L_pre_f2")
    A("v_bfe_u32 v12, v1, 2, 1")
    A("v_and_b32 v14, 3, v1")
    A("s_lshl_b32 s49, s61, 5")
    A("v_lshl_add_u32 v3, v14, 3, s49")
    A("v_lshl_add_u32 v37, v12, 10, v3")
    A("v_and_b32 v15, 7, v1")
    A("s_lshl_b32 s49, s61, 7")
    A("v_lshl_add_u32 v15, v15, 4, s49")
    A(f"v_add_u32 v39, {WS_MOD+3*4096}, v15")
    A("v_bfe_u32 v3, v1, 3, 1")
    A("v_lshl_add_u32 v15, v3, 12, v15")
    A("v_lshrrev_b32 v3, 4, v1")
    A("v_lshl_add_u32 v15, v3, 14, v15")
    A(f"v_add_u32 v15, {WS_AP}, v15")
    side()
    A("v_add_u32 v15, s59, v15")
    A("s_lshl_b32 s49, s61, 14"); A("s_add_u32 s49, s49, s59"); A(f"s_add_u32 s49, s49, {WS_FP+2048}")
    A("v_lshl_add_u32 v36, v1, 4, s49")

    g.lab("L_svd")
    A("s_cmp_eq_u32 s5, 3")
    A("s_cbranch_scc1 L_svd3")
    A("s_cmp_lg_u32 s5, 0")
    A("s_cbranch_scc1 L_tail")
    own_line(WS_S2)
    wait_cnt(g, f"ds_read_b32 v8, v38 offset:{L_SCN}", 8, 64 * NS_, 1, 0xffff)
    merge(16, L_ST)
    A(f"v_mov_b32 v9, s{ST}"); A(f"v_mov_b32 v11, s{SXCC}")
    A("s_mov_b64 exec, 1")
    A("global_store_dwordx4 v18, v[8:11], s[42:43] sc1")
    A(f"ds_write_b32 v38, v8 offset:{L_S4}")
    A(f"ds_write_b32 v38, v10 offset:{L_S4+4}")
    A("s_mov_b64 exec, -1")
    g.stamp(4)
    wait_cnt(g, f"ds_read_b32 v8, v38 offset:{L_SCN}", 8, 0x10000, 1)
    merge(4, L_S4)
    A("v_sub_f32 v9, v16, v8")
    A("v_rcp_f32 v10, v10")
    A(f"v_mul_f32 v9, 0x{LOG2E:08x}, v9")
    A("v_exp_f32 v9, v9")
    A("v_lshlrev_b32 v8, 2, v1")
    A("v_mul_f32 v9, v9, v10")
    A("s_mov_b64 exec, 0xffff")
    A(f"ds_write_b32 v8, v9 offset:{L_S8}")
    A("s_mov_b64 exec, -1")
    A(f"ds_write_b32 v38, v38 offset:{L_ML}")
    g.stamp(5)
    wait_cnt(g, f"ds_read_b32 v8, v38 offset:{L_SN}", 8, NS_, 1)
    op_publish(g, L_OP1, VA, 38, 0, True)
    g.stamp(6)
    if opts.get("stamps"):
        A("s_waitcnt vmcnt(0)")
        g.stamp(3)
    def uncap():
        A(f"ds_write_b32 v38, v38 offset:{L_RM+12}")
    if "cap" in opts:
        if opts.get("capw", 1): A("s_cmp_eq_u32 s60, 1"); A("s_cbranch_scc1 L_tail")
        A("s_waitcnt vmcnt(0)")
        uncap()
    A("s_branch L_tail")
    g.lab("L_svd3")
    wait_cnt(g, f"ds_read_b32 v8, v38 offset:{L_SCN}", 8, opts.get("e2", 6) * 64, 4)
    spoll(4, WS_S2, "L_s3p")
    A(f"v_mov_b32 v9, s{SB+2}"); A(f"v_mov_b32 v11, s{SB+6}"); A(f"v_mov_b32 v17, s{SB+10}")
    A(f"s_xor_b32 s68, s{SB+3}, s{SXCC}")
    for k in (SB+7, SB+11):
        A(f"s_xor_b32 s69, s{k}, s{SXCC}"); A("s_or_b32 s68, s68, s69")
    A("s_cselect_b32 s68, 0, 1")
    A("v_mov_b32 v3, s68")
    A("s_mov_b64 exec, 1")
    A(f"ds_add_u32 v38, v3 offset:{L_LOC}")
    A(f"ds_max_f32 v38, v18 offset:{L_MX}")
    A(f"ds_write_b64 v38, v[8:9] offset:{L_S4+8}")
    A(f"ds_write_b64 v38, v[10:11] offset:{L_S4+16}")
    A(f"ds_write_b64 v38, v[16:17] offset:{L_S4+24}")
    A(f"ds_add_u32 v38, v19 offset:{L_SCN}")
    A("s_mov_b64 exec, -1")
    g.stamp(4)

    g.lab("L_tail")
    A("s_cmp_eq_u32 s60, 0"); A("s_cbranch_scc1 L_fin")
    A("s_cmp_lg_u32 s60, 4"); A("s_cbranch_scc1 L_tl2")
    if LATEB: mod_finish(0)
    A("s_branch L_fin")
    g.lab("L_tl2")
    if opts.get("notail") == 1: A("s_branch L_fin")
    if opts.get("notail") == 2: A("s_cmp_lg_u32 s60, 1"); A("s_cbranch_scc1 L_fin")
    if LATEW:
        A("s_cmp_lg_u32 s60, 1"); A("s_cbranch_scc1 L_tl3")
        hs_wait(g, 4, 9, 4)
        tr_tile64(g)
        g.lab("L_tl3")
    wait_cnt(g, f"ds_read_b32 v8, v38 offset:{L_SN}", 8, NS_, 8)
    def after(n16):
        if not n16: return
        l = g.uniq("af"); e = g.uniq("afd")
        A(f"ds_read_b32 v8, v38 offset:{L_RM+8}")
        A("s_waitcnt lgkmcnt(0)")
        A("v_subrev_u32 v8, 1024, v8")
        A(f"v_mul_i32_i24 v8, {n16}, v8")
        A("v_ashrrev_i32 v8, 4, v8")
        A("v_add_u32 v9, 1032, v8")
        A("s_mov_b32 s70, 0")
        g.lab(l)
        A(f"ds_read_b32 v8, v38 offset:{L_RM+8}")
        A("s_waitcnt lgkmcnt(0)")
        A("v_cmp_lt_u32 vcc, v9, v8")
        spin_tail(g, l, e, 4, 8)
    A("s_cmp_eq_u32 s60, 1"); A("s_cbranch_scc1 L_t_wo0")
    A("s_cmp_eq_u32 s60, 3"); A("s_cbranch_scc1 L_t_f2")
    hs_wait(g, 4, 9, 8)
    A("s_branch L_t_f1")

    def sumN(n, src, dst):
        st = n // 2
        for i in range(st):
            for h in range(2):
                A(f"v_pk_add_f32 {vr(dst+4*i+2*h,2)}, {vr(src+4*i+2*h,2)}, {vr(src+4*(i+st)+2*h,2)}")
        st //= 2
        while st:
            for i in range(st):
                for h in range(2):
                    A(f"v_pk_add_f32 {vr(dst+4*i+2*h,2)}, {vr(dst+4*i+2*h,2)}, {vr(dst+4*(i+st)+2*h,2)}")
            st //= 2
    def sum8p(src, dst):
        for p in range(4):
            for h in range(2): A(f"v_pk_add_f32 {vr(dst+8*p+2*h,2)}, {vr(src+8*p+2*h,2)}, {vr(src+8*p+4+2*h,2)}")
        sum8q(dst)
    def sum8q(dst):
        for i in range(2):
            for h in range(2): A(f"v_pk_add_f32 {vr(dst+16*i+2*h,2)}, {vr(dst+16*i+2*h,2)}, {vr(dst+16*i+8+2*h,2)}")
        for h in range(2): A(f"v_pk_add_f32 {vr(dst+2*h,2)}, {vr(dst+2*h,2)}, {vr(dst+16+2*h,2)}")
    def x1_from(S):
        for i in range(4): rnd(g, S+i)
        for i in range(4): A(f"v_mul_f32 v{S+i}, v{S+i}, v{20+i}")
        for i in range(4): rnd(g, S+i)
        for i in range(4): A(f"v_add_f32 v{16+i}, v{16+i}, v{S+i}")
        for i in range(4): rnd(g, 16+i)
    TSL = opts.get("tsl", 0)

    g.lab("L_t_wo0")
    after(opts.get("aw", 0))
    g.lab("L_t_wo")
    def gather(n, load, raw, tmp, name, depth, gap, fin, msk=20, first=None):
        for i in range(n): A(f"s_mov_b64 s[{msk+2*i}:{msk+2*i+1}], {first[i] if first else -1}")
        def rnd_():
            for i in range(n):
                A(f"s_mov_b64 exec, s[{msk+2*i}:{msk+2*i+1}]")
                load(i, raw + 4*i)
            A("s_mov_b64 exec, -1")
        rnd_()
        A("s_waitcnt vmcnt(0)")
        A("s_mov_b32 s70, 0")
        A(f"s_branch {name}c")
        g.lab(name)
        rnd_()
        if gap: A(f"s_sleep {gap}")
        A(f"s_waitcnt vmcnt({n*(depth-1)})")
        g.lab(name + "c")
        for k in range(4*n): A(f"v_xor_b32 v{tmp+k}, s{TB+k%4}, v{raw+k}")
        for i in range(n): A(f"v_or3_b32 v{28+i}, v{tmp+4*i}, v{tmp+4*i+1}, v{tmp+4*i+2}")
        for i in range(n): A(f"v_or_b32 v{28+i}, v{28+i}, v{tmp+4*i+3}")
        for i in range(n): A(f"v_cmp_ne_u32_sdwa s[{msk+2*i}:{msk+2*i+1}], v{28+i}, v38 src0_sel:BYTE_0 src1_sel:DWORD")
        fin()
        A(f"s_mov_b64 vcc, s[{msk}:{msk+1}]")
        for i in range(1, n): A(f"s_or_b64 vcc, vcc, s[{msk+2*i}:{msk+2*i+1}]")
        for i in range(n): A(f"s_or_b32 s{msk+2*i}, s{msk+2*i}, 1")
        spin_tail(g, name, name + "ok", 0)
    def wo_fin():
        for i in range(16): A(f"v_or_b32 v{VA+32+i}, 0x80, v{VA+32+i}")
        sumN(4, VA+32, 16)
    gather(4, lambda i, r: A(f"global_load_dwordx4 {vr(r,4)}, v15, s[42:43] offset:{512*i} sc1"), VA+48, VA+32, "L_wo_",
           opts.get("wpipe", 1), opts.get("wgap", 0), wo_fin)
    A("v_cvt_pk_bf16_f32 v8, v16, v17")
    A("v_cvt_pk_bf16_f32 v9, v18, v19")
    g.stamp(7)
    A(f"ds_write_b64 v12, v[8:9] offset:{L_ACT}")
    hsync(g, 10)
    if "cap" in opts and opts.get("capw", 1) == 1: uncap()
    gemv(g, 16, 14, 8, 12)
    for i in range(4): A(f"v_bfi_b32 v{8+i}, v36, s{TB+i}, v{8+i}")
    if opts.get("near", 2) == 2:
        for x in EX8: A(x)
    else: A("s_mov_b32 exec_lo, 0x000f000f"); A("s_mov_b32 exec_hi, 0x000f000f")
    A("global_store_dwordx4 v13, v[8:11], s[42:43] sc1")
    g.stamp(2)
    if "cap" in opts and opts.get("capw", 1) == 2: uncap()
    A("s_branch L_fin")

    PG = VA + 32
    def pre_gather(offs):
        n = len(offs)
        l = g.uniq("pg"); e = g.uniq("pge")
        A("global_load_dwordx2 v[8:9], v37, s[16:17]")
        A("s_mov_b32 s70, 0")
        g.lab(l)
        for i, o in enumerate(offs):
            if -4096 <= o < 4096: A(f"global_load_dwordx4 {vr(PG+4*i,4)}, v39, s[42:43] offset:{o} sc1")
            else:
                A(f"v_add_u32 v3, {o}, v39")
                A(f"global_load_dwordx4 {vr(PG+4*i,4)}, v3, s[42:43] sc1")
        A("s_waitcnt vmcnt(0)")
        A("s_mov_b64 vcc, 0")
        for i in range(2 * n):
            A(f"v_cmp_ne_u32 s[68:69], s{ST}, v{PG+1+2*i}")
            A("s_or_b64 vcc, vcc, s[68:69]")
        spin_tail(g, l, e, 8)
    adr = [15, 4, 0, 36]
    def ap_addrs():
        for p in range(1, 4): A(f"v_add_u32 v{adr[p]}, {16384*p}, v15")
    def ap_load(i): A(f"global_load_dwordx4 {vr(VA+4*i,4)}, v{adr[i>>1]}, s[42:43] offset:{-4096 if i % 2 == 0 else 0} sc1")

    g.lab("L_t_f1")
    tr_reads(g, 16, 1024, 512)
    ap_addrs()
    pre_gather([-4096, 0, 4096])
    f1_addrs()
    unpack4(g, 16, 8)
    unpack4(g, 20, PG, 2)
    unpack4(g, 28, PG+8, 2)
    for i in range(4): A(f"v_add_f32 v{28+i}, 1.0, v{28+i}")
    A("v_cvt_pk_bf16_f32 v8, v28, v29"); A("v_cvt_pk_bf16_f32 v9, v30, v31")
    A(f"v_mov_b32 v{PG+5}, v{PG+6}")
    A(f"ds_write_b64 v12, v[8:9] offset:{L_ACT+2*ACT_BS}")
    A(f"ds_write_b64 v12, {vr(PG+4,2)} offset:{L_ACT+4*ACT_BS}")
    for i in range(4): rnd(g, 28+i)
    for i in range(4): A(f"v_mul_f32 v{24+i}, v{20+i}, v{28+i}")
    for i in range(4): A(f"v_mul_f32 v{28+i}, v{16+i}, v{28+i}")
    A("s_waitcnt lgkmcnt(0)")
    after(opts.get("a1", 8))
    g.stamp(9)
    S = VA + 32
    A("s_mov_b32 s70, 0")
    A("s_mov_b32 s71, 15")
    def ap_check():
        for k in range(32): A(f"v_xor_b32 v{S+k}, s{TB+k%4}, v{VA+k}")
        for p in range(4): A(f"v_or3_b32 v{8+p}, v{S+8*p}, v{S+8*p+1}, v{S+8*p+2}")
        for p in range(4): A(f"v_or3_b32 v{8+p}, v{8+p}, v{S+8*p+3}, v{S+8*p+4}")
        for p in range(4): A(f"v_or3_b32 v{8+p}, v{8+p}, v{S+8*p+5}, v{S+8*p+6}")
        for p in range(4): A(f"v_or_b32 v{8+p}, v{8+p}, v{S+8*p+7}")
        A("v_or3_b32 v3, v8, v9, v10")
        A("v_or_b32 v3, v3, v11")
        A("v_lshlrev_b32 v3, 24, v3")
        A("v_cmp_ne_u32 vcc, 0, v3")
    g.lab("L_f1_p")
    if TSL: A(f"s_sleep {TSL}")
    A("s_add_u32 s70, s70, 1")
    A(f"s_cmp_ge_u32 s70, {SPIN_MAX}")
    A("s_cbranch_scc1 L_f1_ok")
    for p in range(4):
        l = g.uniq("fl")
        A(f"s_bitcmp1_b32 s71, {p}"); A(f"s_cbranch_scc0 {l}")
        ap_load(2*p); ap_load(2*p+1)
        g.lab(l)
    A("s_waitcnt vmcnt(0)")
    for p in range(4):
        l = g.uniq("fc")
        A(f"s_bitcmp1_b32 s71, {p}"); A(f"s_cbranch_scc0 {l}")
        B_ = VA + 8 * p
        for k in range(8): A(f"v_xor_b32 v{B_+k}, s{TB+k%4}, v{B_+k}")
        A(f"v_or3_b32 v8, v{B_}, v{B_+1}, v{B_+2}")
        A(f"v_or3_b32 v9, v{B_+3}, v{B_+4}, v{B_+5}")
        A(f"v_or3_b32 v8, v8, v{B_+6}, v{B_+7}")
        for h in range(2): A(f"v_pk_add_f32 {vr(S+8*p+2*h,2)}, {vr(B_+2*h,2)}, {vr(B_+4+2*h,2)}")
        A("v_or_b32 v8, v8, v9")
        A("v_lshlrev_b32 v8, 24, v8")
        A("v_cmp_ne_u32 vcc, 0, v8")
        A("s_cmp_lg_u64 vcc, 0"); A(f"s_cbranch_scc1 {l}")
        A(f"s_bitset0_b32 s71, {p}")
        g.lab(l)
    A("s_cmp_lg_u32 s71, 0")
    A("s_cbranch_scc1 L_f1_p")
    g.lab("L_f1_ok")
    sum8q(S)
    g.stamp(7)
    for h in range(2): A(f"v_pk_fma_f32 {vr(8+2*h,2)}, {vr(S+2*h,2)}, {vr(24+2*h,2)}, {vr(28+2*h,2)}")
    A("v_cvt_pk_bf16_f32 v8, v8, v9")
    A("v_cvt_pk_bf16_f32 v9, v10, v11")
    A(f"ds_write_b64 v12, v[8:9] offset:{L_ACT}")
    for h in range(2): A(f"v_pk_fma_f32 {vr(16+2*h,2)}, {vr(S+2*h,2)}, {vr(20+2*h,2)}, {vr(16+2*h,2)}")
    x = 16
    dpp = lambda r, mod: f"v_add_f32_dpp v{r}, v{r}, v{r} {mod} row_mask:0xf bank_mask:0xf"
    for t in (f"v_add_f32 v24, v{x}, v{x+1}", f"v_mul_f32 v25, v{x}, v{x}", f"v_add_f32 v26, v{x+2}, v{x+3}", f"v_mul_f32 v27, v{x+2}, v{x+2}",
              f"v_fmac_f32 v25, v{x+1}, v{x+1}", f"v_fmac_f32 v27, v{x+3}, v{x+3}", "v_pk_add_f32 v[24:25], v[24:25], v[26:27]", "s_nop 1",
              dpp(24, "quad_perm:[1,0,3,2]"), dpp(25, "quad_perm:[1,0,3,2]"), "s_nop 0",
              dpp(24, "quad_perm:[2,3,0,1]"), dpp(25, "quad_perm:[2,3,0,1]")): A(t)
    A("ds_write_b64 v5, v[24:25]")
    hsync(g, 10)
    DF = 32
    q = []
    def rd(m): A(f"ds_read_b128 {vr(VA+4*m,4)}, v14 offset:{L_ACT+64*m}"); q.append(("r", m))
    def need(op):
        i = q.index(op); A(f"s_waitcnt lgkmcnt({len(q)-1-i})"); del q[:i+1]
    def w2rd(c):
        for h in range(2): A(f"ds_read_b64_tr_b16 {vr(VW+4*c+2*h,2)}, v6 offset:{32*c+4*h*W2S}"); q.append(("w", c, h))
    for m in range(4): rd(m)
    A("ds_read_b64 v[20:21], v7"); q.append(("s",))
    for m in range(4, 12): rd(m)
    fill = {4: [dpp(20, "quad_perm:[2,3,0,1]"), dpp(21, "quad_perm:[2,3,0,1]")],
            5: [dpp(20, "row_ror:4"), dpp(21, "row_ror:4")],
            6: [dpp(20, "row_ror:8"), dpp(21, "row_ror:8")],
            7: ["v_mov_b32 v22, v20", "v_mov_b32 v23, v21"],
            8: ["v_permlane16_swap_b32 v22, v20", "v_permlane16_swap_b32 v23, v21"],
            9: ["v_pk_add_f32 v[20:21], v[20:21], v[22:23]", "v_mov_b32 v22, v20", "v_mov_b32 v23, v21"],
            10: ["v_permlane32_swap_b32 v22, v20", "v_permlane32_swap_b32 v23, v21"],
            11: ["v_pk_add_f32 v[20:21], v[20:21], v[22:23]", f"v_mul_f32 v20, 0x{f2u(-1/512):08x}, v20"],
            12: [f"v_mul_f32 v21, 0x{f2u(1/512):08x}, v21", "v_fma_f32 v21, -v20, v20, v21"],
            13: ["v_max_f32 v21, 0, v21", f"v_add_f32 v21, 0x{EPS:08x}, v21"],
            14: ["v_rsq_f32 v21, v21"]}
    for m in range(16):
        if ("r", m) in q: need(("r", m))
        else: A("s_nop 0")
        c = "0" if m == 0 else vr(DF, 4)
        A(f"v_mfma_f32_16x16x32_bf16 {vr(DF,4)}, {vr(VW+4*m,4)}, {vr(VA+4*m,4)}, {c}")
        if m < 4: rd(12 + m)
        for t in fill.get(m, []): A(t)
    for c in range(4): w2rd(c)
    for i in range(4): A(f"v_fmac_f32_dpp v{DF+i}, v{DF+i}, v20 row_shl:2 row_mask:0xf bank_mask:0x1")
    for i in range(4): A(f"v_mul_f32 v{8+i}, v{DF+i}, v21")
    for i in range(4): A(f"v_add_f32_dpp v{8+i}, v{DF+i}, v{8+i} row_shl:4 row_mask:0xf bank_mask:0xf")
    A("s_waitcnt lgkmcnt(4)")
    for c in range(4, 8): w2rd(c)
    A("v_permlane32_swap_b32 v8, v10")
    A("v_permlane32_swap_b32 v9, v11")
    for i in range(2): A(f"v_mul_f32 v{20+i}, 0x{LOG2E ^ 0x80000000:08x}, v{8+i}")
    for i in range(2): A(f"v_exp_f32 v{20+i}, v{20+i}")
    for i in range(2): A(f"v_mul_f32 v{8+i}, v{8+i}, v{10+i}")
    for i in range(2): A(f"v_add_f32 v{20+i}, 1.0, v{20+i}")
    for i in range(2): A(f"v_rcp_f32 v{20+i}, v{20+i}")
    for x in EX8: A(x)
    for i in range(2): A(f"v_mul_f32 v{8+i}, v{8+i}, v{20+i}")
    A("v_cvt_pk_bf16_f32 v8, v8, v9")
    A("ds_write_b32 v39, v8")
    A("s_mov_b64 exec, -1")
    hsync(g, 10)
    for c in range(8): A(f"ds_read_b128 {vr(VA+4*c,4)}, v37 offset:{128*c}")
    A("v_mov_b32 v3, 0xff")
    for c in range(8):
        A(f"s_waitcnt lgkmcnt({7-c})")
        A(f"v_mfma_f32_16x16x32_bf16 v[8:11], {vr(VW+4*c,4)}, {vr(VA+4*c,4)}, {'0' if c == 0 else 'v[8:11]'}")
    A("s_nop 7")
    for i in range(4): A(f"v_bfi_b32 v{8+i}, v3, s{TB+i}, v{8+i}")
    A("global_store_dwordx4 v13, v[8:11], s[42:43] sc1")
    if opts.get("near", 2) != 2:
        A("v_add_u32 v13, 0x2000, v13")
        A("global_store_dwordx4 v13, v[8:11], s[42:43] sc1")
    g.stamp(2)
    A("s_branch L_fin")

    g.lab("L_t_f2")
    if not RAW: A("s_cmp_lg_u32 s5, 3"); A("s_cbranch_scc1 L_fin")
    pre_gather([-4096, 8192])
    unpack4(g, 16, 8)
    unpack4(g, 20, PG, 2)
    unpack4(g, 24, PG+4, 2)
    g.stamp(9)
    def src_sum(r):
        A("s_nop 1")
        for i in range(4): A(f"v_add_f32_dpp v{r+i}, v{r+i}, v{r+i} row_ror:8 row_mask:0xf bank_mask:0xf")
        for sw in ("v_permlane16_swap_b32", "v_permlane32_swap_b32"):
            for i in range(4): A(f"v_mov_b32 v{r+4+i}, v{r+i}")
            for i in range(4): A(f"{sw} v{r+4+i}, v{r+i}")
            for i in range(4): A(f"v_add_f32 v{r+i}, v{r+i}, v{r+4+i}")
    A("s_mov_b32 s70, 0")
    g.lab("L_f2_a")
    A(f"global_load_dwordx4 {vr(S,4)}, v15, s[42:43] sc1")
    A("s_waitcnt vmcnt(0)")
    for k in range(4): A(f"v_xor_b32 v{S+k}, s{TB+k}, v{S+k}")
    A(f"v_or3_b32 v3, v{S}, v{S+1}, v{S+2}")
    A(f"v_or_b32 v3, v3, v{S+3}")
    A("v_lshlrev_b32 v3, 24, v3")
    A("v_cmp_ne_u32 vcc, 0, v3")
    spin_tail(g, "L_f2_a", "L_f2_ad", 8)
    A("s_cmp_lg_u32 s61, 0")
    A("s_cbranch_scc1 L_f2_e")
    A(f"v_mov_b32 v10, s{ST}")
    A("s_mov_b64 exec, 1")
    A(f"global_store_dword v38, v10, s[42:43] offset:{WS_E} sc1")
    A("s_mov_b64 exec, -1")
    g.lab("L_f2_e")
    src_sum(S)
    x1_from(S)
    for i in range(4): A(f"v_mov_b32 v{VA+32+20+i}, s{TB+i}")
    def f2_fin():
        for p in range(3):
            for h in range(2): A(f"v_pk_add_f32 {vr(VA+8*p+2*h,2)}, {vr(VA+8*p+2*h,2)}, {vr(VA+8*p+4+2*h,2)}")
        for p in (1, 2):
            for h in range(2): A(f"v_pk_add_f32 {vr(VA+2*h,2)}, {vr(VA+2*h,2)}, {vr(VA+8*p+2*h,2)}")
    gather(6, lambda i, r: A(f"global_load_dwordx4 {vr(r,4)}, v36, s[42:43] offset:{1024*i-2048} sc1"), VA+32, VA, "L_f2_p",
           opts.get("fpipe", 2), opts.get("fgap", 2), f2_fin, 20, [-1]*5 + ["0xffffff"])
    g.stamp(7)
    src_sum(VA)
    for i in range(4): rnd(g, VA+i)
    for i in range(4): A(f"v_mul_f32 v{VA+i}, v{VA+i}, v{24+i}")
    for i in range(4): rnd(g, VA+i)
    for i in range(4): A(f"v_add_f32 v{8+i}, v{VA+i}, v{16+i}")
    A("v_cvt_pk_bf16_f32 v8, v8, v9")
    A("v_cvt_pk_bf16_f32 v9, v10, v11")
    A("s_mov_b64 exec, 0xff")
    A("global_store_dwordx2 v37, v[8:9], s[38:39]" + ("" if opts.get("noosc") else " sc1"))
    A("s_mov_b64 exec, 1")
    A(f"v_mov_b32 v10, s{ST}")
    A("s_lshl_b32 s49, s61, 7"); A(f"s_add_u32 s49, s49, {WS_DN}")
    A("v_mov_b32 v11, s49")
    if not opts.get("nodn"): A("global_store_dword v11, v10, s[42:43] sc1")
    g.stamp(2)

    g.lab("L_fin")
    if opts.get("clean", 1):
        A("s_cmp_lg_u32 s5, 0"); A("s_cbranch_scc1 L_fin2")
        A("s_mov_b64 exec, -1")
        wait_cnt(g, f"ds_read_b32 v8, v38 offset:{L_TK}", 8, opts.get("ctk", 4), 8)
        A("s_waitcnt vmcnt(0)")
        op_publish(g, L_OP1, VW, 38, 0, False)
        g.lab("L_fin2")
    if opts.get("stamps"):
        A("s_waitcnt vmcnt(0)")
        g.stamp(8)
        dump_all(g, [SLOC, SLOC])
    g.lab("L_end")
    A("s_endpgm")
    g.L.append(".p2align 7")
    g.lab("L_table")
    for w in range(0, 256, 2):
        A(".long " + ", ".join(f"0x{r | (m3(w+i) << 3) | (t << 8) | (vbias(w+i) << 16):08x}, 0x{cfg(w+i):08x}, 0x{dep(w+i):08x}, 0" for i, (r, t) in enumerate(RM[w:w+2])))
    g.L.append(f'''.section .rodata,"a"
.p2align 6
.amdhsa_kernel {KNAME}
  .amdhsa_next_free_vgpr 168
  .amdhsa_next_free_sgpr 102
  .amdhsa_accum_offset 168
  .amdhsa_group_segment_fixed_size 0
  .amdhsa_kernarg_size 112
  .amdhsa_user_sgpr_count 2
  .amdhsa_user_sgpr_kernarg_segment_ptr 1
  .amdhsa_system_sgpr_workgroup_id_x 1
.end_amdhsa_kernel''')
    opts["_cls"] = [cls(w) for w in range(256)]; opts["_def"] = DEF; opts["_role"] = [r for r, t in RM]; opts["_drop"] = DROP; opts["_red"] = sorted(RED)
    return "\n".join(g.L) + "\n"

if __name__ == "__main__":
    import os
    here = os.path.dirname(os.path.abspath(__file__))
    opts = {"ref": os.path.join(here, "..", KNAME[:-7] + ".s.ref")}
    out = sys.argv[1]
    for kv in sys.argv[2:]:
        k, v = kv.split("=")
        try: v = int(v)
        except ValueError:
            try: v = float(v)
            except ValueError: pass
        opts[k] = v
    open(out, "w").write(gen(opts))
```

```python
import sys, struct

KNAME = "adaLN_cond__sliding_block_cached__glu_gated_swiglu__decode_kernel"

def f2u(x): return struct.unpack("<I", struct.pack("<f", x))[0]
LOG2E = f2u(1.4426950408889634)
SCALE = f2u(128 ** -0.5)
EPS = f2u(1e-5)
ZERO_GAP = 93.0

WS_E   = 0x00000
WS_HDR = 0x00400
WS_DN  = 0x07000
WS_MOD = 0x01000
WS_Q   = 0x08000
WS_S1  = 0x10000
WS_S2  = 0x18000
WS_OP  = 0x20000
WS_AP  = 0x40000
WS_FP  = 0x180000
WS_OQ  = 0x80000
WS_MA  = 0xe0000
R2     = WS_OQ - WS_OP
WS_STAMP = 0x100000
ACT_BS = 1056
NS_   = 11
L_QV  = 0
L_ML  = L_QV + 256
L_GO  = L_ML + 8
L_SCN = L_ML + 16
L_MX  = L_ML + 20
L_ECN = L_ML + 24
L_E0  = L_ML + 28
L_RM  = L_ML + 32
L_SN  = L_ML + 48
L_TK  = L_ML + 52
L_CNA = L_ML + 56
L_CNB = L_ML + 60
L_E1  = L_ML + 64
L_S8  = L_ML + 128
L_S4  = L_S8 + 64
L_ST  = L_S4 + 64
L_OP  = L_ST + 512
L_OP1 = L_OP + 512 * NS_
L_VX  = L_OP1 + 512 * NS_
class Team: pass
TA, TB_ = Team(), Team()
TA.CNT, TB_.CNT = L_CNA, L_CNB
TA.ACT = L_OP
TA.RED = TA.ACT + 2 * ACT_BS
TB_.ACT = TA.RED + 64
TB_.RED = TB_.ACT + 6 * ACT_BS
L_HZ  = TB_.RED + 512
L_HH  = L_HZ + 7 * 128
TA.WT = (L_HZ + 2048 + 1023) // 1024 * 1024
TB_.WT = TA.WT + 65536
W2S   = 1024 + 32
LDS_BYTES = TB_.WT + 65536
assert LDS_BYTES <= 163840 and L_VX + 2048 * NS_ <= LDS_BYTES and L_ST + 128 <= L_S4 + 512
assert all(x % 16 == 0 for x in (L_S8, L_ST, L_OP, L_VX, TA.ACT, TA.RED, TB_.ACT, TB_.RED, L_HZ, L_E1))

def jobs():
    J = {}; nf = 0
    for x in range(8):
        six = x in (1, 3, 7)
        mb = sorted(range(16 + 4 * x, 20 + 4 * x), key=lambda t: t % 8 != 3)
        own = {0: mb[0:2], 1: mb[2:4]} if six else {0: mb[0:1], 1: mb[1:2], 2: mb[2:4]}
        for j in range(8):
            m = own.get(j, []) + [255, 255]
            f = 255
            if j >= (2 if six else 3): f = nf; nf += 1
            J[x, j] = (m[0], f, 4 * x + (j & 3) if j in (0, 1, 2, 7) else 255, m[1])
    assert nf == 43 and sorted(v[2] for v in J.values())[:32] == list(range(32))
    return J
SPIN_MAX = 1 << 18
ST, SLOC, SXCC = 74, 75, 76

NOTES = {
    "L_stream": "streaming waves: K (1 KB per load, bounded number in flight), then the V rows of the keys on the row list",
    "L_work": "background work of a streaming wave between two K loads: fetch q, first half of the scores, first row list",
    "L_ks": "one K step: background work, then wait until few enough loads are in flight",
    "L_vs": "one V step",
    "L_x1": "second half of the scores, max / sum of this wave, the rows near the top first, more rows for the list",
    "L_snap": "the rows near the top give the preliminary partial output",
    "L_hand": "list used up: with the true row max, add every remaining key whose weight is not exactly zero",
    "L_epi": "all rows consumed: reduce over the lanes, leave the final partial output in LDS; the last wave publishes the sum",
    "L_pub": "wave 0 of a streaming workgroup: LDS set-up, exchange of the softmax statistics, preliminary output",
    "L_serv": "service workgroup",
    "L_touch": "per streaming workgroup: pieces of the first weights to pull into L2",
    "L_chk": "service workgroup, wave 0: the head's final output against the preliminary one, bit by bit",
    "L_slow": "fallback: everything behind the attention again, from the final outputs, by this wave alone",
    "L_team": "service workgroup: two teams of four waves, MFMA mat-vecs on weight tiles staged by LDS-DMA",
    "L_r_q": "team A: LayerNorm + modulation + 64 columns of h @ wq",
    "L_r_wo": "team A: 512 x 64 tile of wo",
    "L_r_mod": "team B: 64 columns of silu(c) @ w_mod (shift / scale of the first block first)",
    "L_r_f1": "team B: 32 columns of w1 and w3, SwiGLU, their 32 rows of w2",
    "L_r_f2": "service workgroup, wave 1: 16 output columns: residuals, sum of the down-projection partials; advances the epoch word",
    "L_table": "per service workgroup: modulation tile | gate/up tile << 8 | output tile << 16",
}
class G:
    def __init__(s, opts):
        s.L = []; s.o = opts; s.n = 0; s.T = None
    def A(s, t): s.L.append("  " + t)
    def lab(s, t):
        if t in NOTES: s.L.append("; ---- " + NOTES[t])
        s.L.append(t + ":")
    def C(s, t): s.L.append("; ---- " + t)
    def uniq(s, p): s.n += 1; return f"L_{p}_{s.n}"
    def stamp(s, idx, lvl=1):
        m = s.o.get("stamps", 0)
        if m == 3 and lvl != 3 and idx not in (6,): return
        if m and (m == lvl or (idx in (0, 6, 8) and lvl == 1)):
            s.A(f"s_memrealtime s[{80+2*idx}:{81+2*idx}]")

def vr(a, n): return f"v[{a}:{a+n-1}]"
def rnd(g, d, s=None): g.A(f"v_cvt_pk_bf16_f32 v{d}, 0, v{s if s is not None else d}")

def spin_tail(g, l, e, sleep, mult=1):
    A = g.A
    A("s_cmp_eq_u64 vcc, 0")
    A(f"s_cbranch_scc1 {e}")
    if sleep: A(f"s_sleep {sleep}")
    A("s_add_u32 s70, s70, 1")
    A(f"s_cmp_lt_u32 s70, {SPIN_MAX*mult}")
    A(f"s_cbranch_scc1 {l}")
    g.lab(e)

def chk_sentinel(g, regs, tmp):
    A = g.A
    rs = list(regs)
    if len(rs) == 1:
        A(f"v_cmp_eq_u32 vcc, -1, v{rs[0]}")
        return
    if len(rs) == 2:
        A(f"v_max_u32 v{tmp}, v{rs[0]}, v{rs[1]}"); rs = []
    else:
        A(f"v_max3_u32 v{tmp}, v{rs[0]}, v{rs[1]}, v{rs[2]}"); rs = rs[3:]
    while len(rs) >= 2:
        A(f"v_max3_u32 v{tmp}, v{tmp}, v{rs[0]}, v{rs[1]}"); rs = rs[2:]
    if rs: A(f"v_max_u32 v{tmp}, v{tmp}, v{rs[0]}")
    A(f"v_cmp_eq_u32 vcc, -1, v{tmp}")

def poll_lds(g, loads, regs, tmp, sleep):
    A = g.A
    l = g.uniq("pl"); e = g.uniq("pld")
    A("s_mov_b32 s70, 0")
    g.lab(l)
    for x in loads: A(x)
    A("s_waitcnt lgkmcnt(0)")
    chk_sentinel(g, regs, tmp)
    spin_tail(g, l, e, sleep, 4)

def wait_cnt(g, load, reg, target, sleep, mask=None):
    A = g.A
    l = g.uniq("sn"); e = g.uniq("snd")
    A("s_mov_b32 s70, 0")
    g.lab(l)
    A(load)
    A("s_waitcnt lgkmcnt(0)")
    if mask: A(f"v_and_b32 v{reg}, 0x{mask:x}, v{reg}")
    A(f"v_cmp_gt_u32 vcc, 0x{target:x}, v{reg}")
    spin_tail(g, l, e, sleep, 8)

def pub_local(g, ins):
    A = g.A
    l = g.uniq("pf"); e = g.uniq("pe")
    A(f"s_cmp_eq_u32 s{SLOC}, 1")
    A(f"s_cbranch_scc0 {l}")
    A(ins)
    A(f"s_branch {e}")
    g.lab(l)
    A(ins + " sc1")
    g.lab(e)

def hs_signal(g, vt2):
    A = g.A
    A(f"v_mov_b32 v{vt2}, 1")
    A("s_mov_b64 exec, 1")
    A(f"ds_add_u32 v38, v{vt2} offset:{g.T.CNT}")
    A("s_mov_b64 exec, -1")
def hs_wait(g, target, vt2, sleep=1):
    wait_cnt(g, f"ds_read_b32 v{vt2}, v38 offset:{g.T.CNT}", vt2, target, sleep)

STG = 77
def hsync(g, vt, sleep=0, reads=()):
    A = g.A
    l = g.uniq("hy"); e = g.uniq("hyd")
    A(f"s_add_u32 s{STG}, s{STG}, 4")
    hs_signal(g, vt)
    A("s_mov_b32 s70, 0")
    g.lab(l)
    A(f"ds_read_b32 v{vt}, v38 offset:{g.T.CNT}")
    for r in reads: A(r)
    A(f"s_waitcnt lgkmcnt({len(reads)})")
    A(f"v_cmp_gt_u32 vcc, s{STG}, v{vt}")
    A("s_cmp_eq_u64 vcc, 0")
    A(f"s_cbranch_scc1 {e}")
    if reads: A("s_waitcnt lgkmcnt(0)")
    if sleep: A(f"s_sleep {sleep}")
    A("s_add_u32 s70, s70, 1")
    A(f"s_cmp_lt_u32 s70, {SPIN_MAX*8}")
    A(f"s_cbranch_scc1 {l}")
    g.lab(e)

OPA = 2 * NS_ + 12
def op_publish(g, lds, R, zero, off, local):
    A = g.A
    SCB = R + 2 * NS_; AD = R + OPA
    A(f"v_lshlrev_b32 v{AD}, 3, v1")
    for i in range(3): A(f"ds_read_b128 {vr(SCB+4*i,4)}, v{zero} offset:{L_S8+16*i}")
    for i in range(NS_): A(f"ds_read_b64 {vr(R+2*i,2)}, v{AD} offset:{lds+512*i}")
    A("s_lshl_b32 s68, s6, 2"); A("s_add_u32 s68, s68, s7")
    A("s_lshl_b32 s68, s68, 9"); A(f"s_add_u32 s68, s68, {WS_OP+off}")
    A(f"v_add_u32 v{AD}, s68, v{AD}")
    A(f"v_and_b32 v{AD+1}, 1, v1")
    A(f"v_lshlrev_b32 v{AD+1}, 4, v{AD+1}")
    A(f"v_lshrrev_b32 v{AD+1}, v{AD+1}, s{ST}")
    A(f"v_lshrrev_b32 v{AD+2}, 8, v{AD+1}")
    A("s_movk_i32 s69, 0xff")
    def sel(i): return f"op_sel:[0,{i&1},0] op_sel_hi:[1,{i&1},1]"
    for i in range(NS_):
        A(f"s_waitcnt lgkmcnt({NS_-1-i})")
        sp = vr(SCB + (i & ~1), 2); acc = vr(R + 2*(i & 1), 2)
        if i < 2: A(f"v_pk_mul_f32 {acc}, {vr(R+2*i,2)}, {sp} op_sel:[0,{i&1}] op_sel_hi:[1,{i&1}]")
        else: A(f"v_pk_fma_f32 {acc}, {vr(R+2*i,2)}, {sp}, {acc} {sel(i)}")
    A(f"v_pk_add_f32 {vr(R,2)}, {vr(R,2)}, {vr(R+2,2)}")
    A(f"v_bfi_b32 v{R}, s69, v{AD+1}, v{R}")
    A(f"v_bfi_b32 v{R+1}, s69, v{AD+2}, v{R+1}")
    if local: pub_local(g, f"global_store_dwordx2 v{AD}, {vr(R,2)}, s[42:43]")
    else: A(f"global_store_dwordx2 v{AD}, {vr(R,2)}, s[42:43] sc1")

def dma_loop(g, n, step, flags, pace=0, lstep=1024):
    A = g.A
    l = g.uniq("dma"); e = g.uniq("dmae")
    if isinstance(n, int):
        A(f"s_add_u32 s51, s50, {n*lstep}")
    else:
        A(f"s_add_u32 s51, s50, {n}")
        A("s_cmp_lt_u32 s50, s51")
        A(f"s_cbranch_scc0 {e}")
    g.lab(l)
    A("s_mov_b32 m0, s50")
    A(f"s_add_u32 s50, s50, {lstep}")
    if not (g.o.get("nodma") and pace): A(f"buffer_load_dwordx4 v2, s[44:47], s49 offen {flags} lds")
    A(f"s_add_u32 s49, s49, {step}")
    if pace: A(f"s_waitcnt vmcnt({pace-1})")
    A("s_cmp_lt_u32 s50, s51")
    A(f"s_cbranch_scc1 {l}")
    g.lab(e)

VW, VA = 40, 104

def srd(g, d, base, nbytes):
    A = g.A
    A(f"s_mov_b32 s{d}, s{base}")
    A(f"s_mov_b32 s{d+1}, s{base+1}")
    A(f"s_mov_b32 s{d+2}, {nbytes}")
    A(f"s_mov_b32 s{d+3}, 0x20000")

def dma_tile64(g, stride, flags, pace=0):
    A = g.A
    A("v_lshrrev_b32 v2, 3, v1")
    A("v_and_b32 v3, 6, v2")
    A("v_xor_b32 v3, v3, v1")
    A(f"v_mul_u32_u24 v2, {stride}, v2")
    A("v_and_b32 v3, 7, v3")
    A("v_lshl_add_u32 v2, v3, 4, v2")
    A(f"s_mul_i32 s49, s5, {128*stride}")
    A("s_lshl_b32 s50, s5, 14")
    A("s_add_u32 s49, s49, s48")
    A(f"s_add_u32 s50, s50, {g.T.WT}")
    dma_loop(g, 16, 8*stride, flags, pace)

def tr64_addr(g):
    A = g.A
    A("v_lshrrev_b32 v2, 2, v1")
    A("v_bfe_u32 v3, v1, 1, 1")
    A("s_lshl_b32 s49, s5, 1")
    A("v_or_b32 v3, s49, v3")
    A("v_and_b32 v10, 6, v2")
    A("v_xor_b32 v3, v3, v10")
    A("v_lshlrev_b32 v2, 7, v2")
    A("v_lshl_add_u32 v2, v3, 4, v2")
    A("v_and_b32 v3, 1, v1")
    A("v_lshl_add_u32 v2, v3, 3, v2")
    A(f"v_add_u32 v2, {g.T.WT}, v2")
def tr_reads(g, nk, mstep, hstep):
    A = g.A
    for m in range(nk):
        for h in range(2):
            A(f"ds_read_b64_tr_b16 {vr(VW+4*m+2*h,2)}, v2 offset:{m*mstep+h*hstep}")
        if m >= 5: A("s_waitcnt lgkmcnt(10)")
    A("s_waitcnt lgkmcnt(0)")
def tr_tile64(g):
    tr64_addr(g)
    tr_reads(g, 16, 4096, 2048)
def gemv_fused(g, vaddr, D):
    A = g.A
    def rd(m):
        for h in range(2):
            A(f"ds_read_b64_tr_b16 {vr(VW+4*m+2*h,2)}, v2 offset:{m*4096+h*2048}")
        A(f"ds_read_b128 {vr(VA+4*m,4)}, v{vaddr} offset:{64*m}")
    for m in range(5): rd(m)
    for m in range(16):
        A(f"s_waitcnt lgkmcnt({3*(min(m+5,16)-m-1)})")
        c = "0" if m == 0 else vr(D, 4)
        A(f"v_mfma_f32_16x16x32_bf16 {vr(D,4)}, {vr(VW+4*m,4)}, {vr(VA+4*m,4)}, {c}")
        if m + 5 < 16: rd(m + 5)
    A("s_nop 7")

def batch_reduce2(g, va, vb, ta, tb):
    A = g.A
    A("s_nop 0")
    for m in ("quad_perm:[1,0,3,2]", "quad_perm:[2,3,0,1]", "row_ror:8"):
        A(f"v_add_f32_dpp v{va}, v{va}, v{va} {m} row_mask:0xf bank_mask:0xf")
        A(f"v_add_f32_dpp v{vb}, v{vb}, v{vb} {m} row_mask:0xf bank_mask:0xf")
        A("s_nop 0")
    for sw in ("v_permlane16_swap_b32", "v_permlane32_swap_b32"):
        A(f"v_mov_b32 v{ta}, v{va}")
        A(f"v_mov_b32 v{tb}, v{vb}")
        A("s_nop 0")
        A(f"{sw} v{ta}, v{va}")
        A(f"{sw} v{tb}, v{vb}")
        A(f"v_add_f32 v{va}, v{va}, v{ta}")
        A(f"v_add_f32 v{vb}, v{vb}, v{tb}")

def ln_partial(g, x):
    A = g.A
    A(f"v_add_f32 v8, v{x}, v{x+1}"); A(f"v_mul_f32 v9, v{x}, v{x}")
    A(f"v_add_f32 v10, v{x+2}, v{x+3}"); A(f"v_mul_f32 v11, v{x+2}, v{x+2}")
    A(f"v_fmac_f32 v9, v{x+1}, v{x+1}"); A(f"v_fmac_f32 v11, v{x+3}, v{x+3}")
    A("v_add_f32 v8, v8, v10"); A("v_add_f32 v9, v9, v11")
    batch_reduce2(g, 8, 9, 10, 11)
    A("ds_write_b64 v5, v[8:9]")
def ln_apply(g, x, t):
    A = g.A
    A(f"ds_read_b128 {vr(t,4)}, v6")
    A(f"ds_read_b128 {vr(t+4,4)}, v6 offset:16")
    A("s_waitcnt lgkmcnt(0)")
    A(f"v_pk_add_f32 {vr(t,2)}, {vr(t,2)}, {vr(t+2,2)}")
    A(f"v_pk_add_f32 {vr(t+4,2)}, {vr(t+4,2)}, {vr(t+6,2)}")
    A(f"v_pk_add_f32 {vr(t,2)}, {vr(t,2)}, {vr(t+4,2)}")
    A(f"v_mul_f32 v8, 0x{f2u(1/512):08x}, v{t}")
    A(f"v_mul_f32 v9, 0x{f2u(1/512):08x}, v{t+1}")
    A("v_fma_f32 v9, -v8, v8, v9")
    rnd(g, 8)
    A("v_max_f32 v9, 0, v9")
    rnd(g, 9)
    for i in range(2): A(f"v_sub_f32 v{x+i}, v{x+i}, v8")
    A(f"v_add_f32 v9, 0x{EPS:08x}, v9")
    for i in range(2, 4): A(f"v_sub_f32 v{x+i}, v{x+i}, v8")
    rnd(g, 9)
    rnd(g, x)
    A("v_sqrt_f32 v9, v9")
    rnd(g, x+1)
    rnd(g, 9)
    rnd(g, x+2)
    A("v_rcp_f32 v9, v9")
    rnd(g, x+3)
    for i in range(4): A(f"v_mul_f32 v{x+i}, v{x+i}, v9")
    for i in range(4): rnd(g, x+i)

def act_addr(g, v, base, bstride):
    A = g.A
    A(f"v_and_b32 v{v}, 1, v1")
    A(f"v_mul_u32_u24 v{v}, {bstride}, v{v}")
    A(f"v_lshrrev_b32 v3, 4, v1")
    A(f"v_lshl_add_u32 v{v}, v3, 4, v{v}")
    if base: A(f"v_add_u32 v{v}, {base}, v{v}")

def gemv(g, nk, vaddr, D, ring=16, sync=None, nspec=4):
    A = g.A
    first = min(nk, 12, ring)
    rds = [f"ds_read_b128 {vr(VA+4*m,4)}, v{vaddr} offset:{64*m}" for m in range(first)]
    if sync is not None:
        hsync(g, sync, 0, rds[:nspec]); rds = rds[nspec:]
    for r in rds: A(r)
    issued = first
    for m in range(nk):
        A(f"s_waitcnt lgkmcnt({issued-m-1})")
        c = "0" if m == 0 else vr(D, 4)
        A(f"v_mfma_f32_16x16x32_bf16 {vr(D,4)}, {vr(VW+4*m,4)}, {vr(VA+4*(m%ring),4)}, {c}")
        if issued < nk and (ring >= nk or m >= 1):
            A(f"ds_read_b128 {vr(VA+4*(issued%ring),4)}, v{vaddr} offset:{64*issued}")
            issued += 1
    A("s_nop 7")

def guard(g, r): g.A(f"v_min_u32 v{r}, s72, v{r}")
def unpack2(g, d, s):
    g.A(f"v_lshlrev_b32 v{d}, 16, v{s}")
    g.A(f"v_and_b32 v{d+1}, s73, v{s}")
def unpack4(g, d, s, step=1):
    unpack2(g, d, s); unpack2(g, d+2, s+step)

def silu4(g, x, t):
    A = g.A
    for i in range(4): A(f"v_mul_f32 v{t+i}, 0x{LOG2E ^ 0x80000000:08x}, v{x+i}")
    for i in range(4): A(f"v_exp_f32 v{t+i}, v{t+i}")
    A("s_nop 0")
    for i in range(4): A(f"v_add_f32 v{t+i}, 1.0, v{t+i}")
    for i in range(4): A(f"v_rcp_f32 v{t+i}, v{t+i}")
    A("s_nop 0")
    for i in range(4): A(f"v_mul_f32 v{x+i}, v{x+i}, v{t+i}")

def make_tag(g):
    g.A(f"s_mul_i32 s{ST}, s{ST}, 0x9e3779b1")
    g.A(f"s_add_u32 s{ST}, s{ST}, 0x7f4a7c15")

EX8 = ["s_mov_b32 exec_lo, 0x00030003", "s_mov_b32 exec_hi, 0x00030003"]

def dump_all(g, extra):
    A = g.A
    A("s_mov_b64 exec, -1")
    A("s_mul_i32 s3, s2, 12"); A("s_add_u32 s3, s3, s13"); A("s_lshl_b32 s3, s3, 6")
    A(f"s_add_u32 s3, s3, {WS_STAMP}")
    A("v_lshl_add_u32 v2, v1, 2, s3")
    A("v_mov_b32 v3, 0")
    A("s_waitcnt lgkmcnt(0)")
    for i, x in enumerate([80+2*i for i in range(10)] + list(extra)): A(f"v_writelane_b32 v3, s{x}, {i}")
    A("s_mov_b64 exec, 0xffff")
    A("global_store_dword v2, v3, s[42:43]")

def fallback(g, head_sum, wave_red):
    A = g.A
    W, AC, AV = 40, 72, 88
    X1, GS = 104, 120
    g.lab("L_slow")
    A("s_mov_b32 s47, 0x20000")
    A("s_load_dwordx16 s[16:31], s[0:1], 0")
    A("s_load_dwordx8 s[32:39], s[0:1], 64")
    A("v_and_b32 v2, 31, v1")
    A("v_lshlrev_b32 v2, 7, v2")
    A(f"v_add_u32 v2, {WS_DN}, v2")
    A("s_mov_b32 s70, 0")
    g.lab("L_sl_d")
    A("global_load_dword v3, v2, s[42:43] sc1")
    A("s_waitcnt vmcnt(0) lgkmcnt(0)")
    A(f"v_cmp_ne_u32 vcc, s{ST}, v3")
    spin_tail(g, "L_sl_d", "L_sl_dd", 8)
    A("v_lshlrev_b32 v2, 3, v1")
    A(f"v_add_u32 v2, {WS_OQ}, v2")
    A("v_lshlrev_b32 v0, 2, v1")
    A(f"v_add_u32 v0, {TA.WT}, v0")
    A("s_mov_b32 s10, 0")
    g.lab("L_sl_h")
    A("s_mov_b32 s70, 0")
    g.lab("L_sl_hp")
    for i in range(3): A(f"global_load_dwordx2 {vr(W+2*i,2)}, v2, s[42:43] offset:{512*i} sc1")
    A("s_waitcnt vmcnt(0)")
    head_sum(W, W+8)
    spin_tail(g, "L_sl_hp", "L_sl_hd", 8)
    A(f"ds_write_b32 v0, v{W}")
    A("v_add_u32 v2, 2048, v2"); A("v_add_u32 v0, 256, v0")
    A("s_add_u32 s10, s10, 1"); A("s_cmp_lt_u32 s10, 64"); A("s_cbranch_scc1 L_sl_h")
    def call(base, nbytes, stride, nrows, act, bstride, col):
        A(f"s_mov_b32 s44, s{base}"); A(f"s_mov_b32 s45, s{base+1}"); A(f"s_mov_b32 s46, {nbytes}")
        A(f"s_mov_b32 s11, {stride}"); A(f"s_mov_b32 s12, {nrows*stride}")
        A(f"v_mov_b32 v4, {act}"); A(f"v_mov_b32 v5, {act+bstride}")
        A(f"v_lshlrev_b32 v2, 4, v1")
        if col: A(f"v_add_u32 v2, {col}, v2")
        A("s_call_b64 s[62:63], L_gv")
    def modrow(row, d):
        A("v_lshrrev_b32 v2, 1, v1"); A("v_lshlrev_b32 v2, 7, v2")
        A("v_and_b32 v3, 1, v1"); A("v_lshl_add_u32 v2, v3, 5, v2")
        A(f"v_add_u32 v2, {WS_MOD+4096*row}, v2")
        for b in range(2):
            for h in range(2): A(f"global_load_dwordx4 {vr(W+8*b+4*h,4)}, v2, s[42:43] offset:{64*b+16*h} sc1")
        A("s_waitcnt vmcnt(0)")
        for k in range(8): unpack2(g, d+2*k, W+2*k)
    def gated_add(row):
        modrow(row, AV)
        for i in range(16): rnd(g, AC+i)
        for i in range(16): A(f"v_mul_f32 v{AC+i}, v{AC+i}, v{AV+i}")
        for i in range(16): rnd(g, AC+i)
        for i in range(16): A(f"v_add_f32 v{X1+i}, v{X1+i}, v{AC+i}")
        for i in range(16): rnd(g, X1+i)
    def pack(d, s_):
        for k in range(8): A(f"v_cvt_pk_bf16_f32 v{d+k}, v{s_+2*k}, v{s_+2*k+1}")
    call(24, 4096*1024, 1024, 4096, TA.WT, 8192, 0)
    A("v_lshlrev_b32 v0, 4, v1")
    for b in range(2): A(f"global_load_dwordx4 {vr(W+4*b,4)}, v0, s[16:17] offset:{1024*b}")
    A("s_waitcnt vmcnt(0)")
    for k in range(8): unpack2(g, X1+2*k, W+k)
    gated_add(2)
    for b in range(2):
        x = X1 + 8*b; y = AC + 8*b
        A(f"v_add_f32 v8, v{x}, v{x+1}")
        for i in range(2, 8): A(f"v_add_f32 v8, v8, v{x+i}")
        wave_red("v_add_f32", 8, 9)
        A(f"v_mul_f32 v8, 0x{f2u(1/512):08x}, v8")
        for i in range(8): A(f"v_sub_f32 v{y+i}, v{x+i}, v8")
        A(f"v_mul_f32 v10, v{y}, v{y}")
        for i in range(1, 8): A(f"v_fmac_f32 v10, v{y+i}, v{y+i}")
        wave_red("v_add_f32", 10, 9)
        A(f"v_mul_f32 v10, 0x{f2u(1/512):08x}, v10")
        rnd(g, 8); rnd(g, 10)
        A(f"v_add_f32 v10, 0x{EPS:08x}, v10")
        rnd(g, 10)
        A("v_sqrt_f32 v10, v10")
        for i in range(8): A(f"v_sub_f32 v{y+i}, v{x+i}, v8")
        rnd(g, 10)
        for i in range(8): rnd(g, y+i)
        A("v_rcp_f32 v10, v10")
        A("s_nop 0")
        for i in range(8): A(f"v_mul_f32 v{y+i}, v{y+i}, v10")
        for i in range(8): rnd(g, y+i)
    modrow(4, AV)
    for i in range(16): A(f"v_add_f32 v{AV+i}, 1.0, v{AV+i}")
    for i in range(16): rnd(g, AV+i)
    for i in range(16): A(f"v_mul_f32 v{AC+i}, v{AC+i}, v{AV+i}")
    for i in range(16): rnd(g, AC+i)
    modrow(3, AV)
    for i in range(16): A(f"v_add_f32 v{AC+i}, v{AC+i}, v{AV+i}")
    pack(W, AC)
    A(f"v_add_u32 v3, {TA.WT}, v0")
    for b in range(2): A(f"ds_write_b128 v3, {vr(W+4*b,4)} offset:{1024*b}")
    HB = TA.WT + 2048
    for p in range(3):
        call(28, 512*2752, 2752, 512, TA.WT, 1024, 1024*p)
        for i in range(16): rnd(g, GS+i, AC+i)
        call(30, 512*2752, 2752, 512, TA.WT, 1024, 1024*p)
        for q in range(4): silu4(g, GS+4*q, AV)
        for i in range(16): rnd(g, GS+i)
        for i in range(16): rnd(g, AC+i)
        for i in range(16): A(f"v_mul_f32 v{AC+i}, v{AC+i}, v{GS+i}")
        pack(W, AC)
        A(f"v_add_u32 v3, {HB+1024*p}, v0")
        for b in range(2): A(f"ds_write_b128 v3, {vr(W+4*b,4)} offset:{3072*b}")
    call(32, 1376*1024, 1024, 1376, HB, 3072, 0)
    gated_add(5)
    pack(W, X1)
    for b in range(2): A(f"global_store_dwordx4 v0, {vr(W+4*b,4)}, s[38:39] offset:{1024*b} sc1")
    A("s_endpgm")
    g.lab("L_gv")
    for i in range(16): A(f"v_mov_b32 v{AC+i}, 0")
    A("s_mov_b32 s10, 0")
    g.lab("L_gvl")
    for r in range(8):
        A(f"buffer_load_dwordx4 {vr(W+4*r,4)}, v2, s[44:47], s10 offen")
        A("s_add_u32 s10, s10, s11")
    for b in range(2): A(f"ds_read_b128 {vr(AV+4*b,4)}, v{4+b}")
    A("v_add_u32 v4, 16, v4"); A("v_add_u32 v5, 16, v5")
    A("s_waitcnt lgkmcnt(0)")
    for r in range(8):
        for b in range(2):
            a = AV + 4*b + r//2
            if r % 2 == 0: A(f"v_and_b32 v{8+2*b}, 0xffff, v{a}"); A(f"v_lshlrev_b32 v{9+2*b}, 16, v{a}")
            else: A(f"v_lshrrev_b32 v{8+2*b}, 16, v{a}"); A(f"v_and_b32 v{9+2*b}, s73, v{a}")
        A(f"s_waitcnt vmcnt({7-r})")
        for b in range(2):
            for k in range(8): A(f"v_dot2c_f32_bf16 v{AC+8*b+k}, v{8+2*b+(k&1)}, v{W+4*r+k//2}")
    A("s_cmp_lt_u32 s10, s12"); A("s_cbranch_scc1 L_gvl")
    A("s_nop 1")
    A("s_setpc_b64 s[62:63]")

def stream(g, opts):
    A = g.A
    D0 = opts.get("D0", 3)
    LAG = opts.get("LAG", 5)
    DEL = opts.get("delta", 7)
    THETA = opts.get("theta", 24)
    HCAP, HPOS = 32, 160
    TH, HST, NH, NSP, HTH = 18, 19, 20, 21, 22
    PA = 2
    KF, VF = opts.get("kf", "nt"), opts.get("vf", "nt")
    J0 = opts.get("J0", 13)
    T_, ACC, DB, RW, LIM, BUR, CNT, STA, QA, LVL = 32, 33, 34, 35, 36, 37, 38, 39, 40, 41
    SR, SBI, VE = 78, 79, 59
    VG = opts.get('vg', 20); LG = opts.get('lg', 10)
    LB, JS, DN, FIN, X1D, RET, TK, RET2 = 56, 57, 58, 75, 61, 62, (64, 66), 100
    T, X = 8, 16
    OFF = (24, 26); SET = (28, 30, 32); PH = (34, 35, 36); MW, L16, LRD, EPA = 37, 38, 39, 21
    EV = 23
    RA = 22
    ROFF = 1024
    RB = 40
    def slot(j): return RB + 4 * (j % 32)
    NW = 76
    g.lab("L_stream")
    A("s_sub_u32 s9, s13, 1")
    A("s_mul_i32 s10, s7, 3"); A("s_add_u32 s10, s10, s9"); A("s_sub_u32 s10, s10, 8")
    A("s_cmp_ge_i32 s10, 8"); A("s_cbranch_scc1 L_end")
    A("s_cmp_lt_u32 s9, 8")
    A("s_cselect_b32 s11, s9, s10")
    A("s_cselect_b32 s4, s7, 3")
    A("s_lshl_b32 s11, s11, 10")
    A("s_lshl_b32 s4, s4, 18")
    A("s_lshl_b32 s10, s6, 22")
    A("s_add_u32 s10, s10, s4")
    A("s_add_u32 s10, s10, 0x300000")
    A("v_lshl_add_u32 v0, v1, 4, s11")
    A("s_lshr_b32 s12, s2, 3")
    A("s_mul_i32 s12, s12, 5")
    A("s_mul_i32 s15, s8, 3")
    A("s_add_u32 s12, s12, s15")
    A("s_lshl_b32 s12, s12, 13")
    A("s_and_b32 s12, s12, 0x3ffff")
    g.stamp(1, 3)
    A("s_waitcnt lgkmcnt(0)")
    g.stamp(2, 3)
    A("s_add_u32 s44, s18, s10"); A("s_addc_u32 s45, s19, 0")
    A("s_mov_b32 s46, 0x40000"); A("s_mov_b32 s47, 0x20000")
    def issue(j):
        A(f"buffer_load_dwordx4 {vr(slot(j),4)}, v0, s[44:47], s12 offen {KF}")
        A("s_add_u32 s12, s12, 0x2000")
        A("s_and_b32 s12, s12, 0x3ffff")
    g.stamp(3, 3)
    for j in range(D0): issue(j)
    g.stamp(4, 3)
    A(f"s_load_dword s{ST}, s[42:43], {WS_E}")
    A("s_add_u32 s48, s20, s10"); A("s_addc_u32 s49, s21, 0")
    A("s_mov_b32 s50, 0x40000"); A("s_mov_b32 s51, 0x20000")
    A("s_mov_b32 s52, 0xcccccccc"); A("s_mov_b32 s53, 0xcccccccc")
    A("s_mov_b32 s54, 0xaaaaaaaa"); A("s_mov_b32 s55, 0xaaaaaaaa")
    A(f"v_and_b32 v{L16}, 15, v1")
    A(f"v_lshlrev_b32 v{L16}, 4, v{L16}")
    A("s_lshl_b32 s10, s9, 11")
    A(f"s_add_u32 s10, s10, {L_VX}")
    A("v_lshl_add_u32 v3, v1, 3, s10")
    A("v_mov_b32 v4, 0x7fff0000"); A("v_mov_b32 v5, 0xff800000")
    for n in range(3): A(f"ds_write_b64 v3, v[4:5] offset:{512*n}")
    A("v_lshrrev_b32 v3, 4, v1")
    A(f"v_lshl_add_u32 v{LRD}, v{L16}, 1, s10")
    A(f"v_lshl_add_u32 v{LRD}, v3, 3, v{LRD}")
    A(f"s_sub_u32 s68, s12, {D0*0x2000}")
    A(f"v_bfrev_b32 v{OFF[0]}, v1")
    A(f"v_lshrrev_b32 v{OFF[0]}, 15, v{OFF[0]}")
    A(f"v_and_b32 v{OFF[0]}, 0x1e000, v{OFF[0]}")
    A(f"v_add_u32 v{OFF[0]}, s68, v{OFF[0]}")
    A(f"v_and_b32 v{OFF[0]}, 0x3e000, v{OFF[0]}")
    A(f"v_lshl_add_u32 v{OFF[0]}, v3, 8, v{OFF[0]}")
    A(f"v_add_u32 v{OFF[0]}, s11, v{OFF[0]}")
    A(f"v_xor_b32 v{OFF[1]}, 0x20000, v{OFF[0]}")
    A("s_lshl_b32 s11, s9, 9")
    A("s_sub_u32 s11, s11, s10")
    A(f"s_mov_b32 s{T_}, {D0}"); A(f"s_mul_i32 s{ACC}, s9, 96"); A(f"s_add_u32 s{ACC}, s{ACC}, 16")
    A(f"s_mov_b64 s[{TK[0]}:{TK[0]+1}], 0"); A(f"s_mov_b64 s[{TK[1]}:{TK[1]+1}], 0")
    A(f"s_mov_b32 s{CNT}, 0"); A(f"s_mov_b32 s{STA}, 0"); A(f"s_mov_b32 s{FIN}, 0"); A(f"s_mov_b32 s{X1D}, 0")
    A(f"s_lshl3_add_u32 s{QA}, s6, s9"); A(f"s_lshl_b32 s{QA}, s{QA}, 6"); A(f"s_add_u32 s{QA}, s{QA}, {WS_Q}")
    A("s_barrier")
    A("s_waitcnt lgkmcnt(0)")
    A(f"s_mov_b32 s{LB}, s10")
    make_tag(g)
    A("s_cmp_eq_u32 s7, 2")
    A(f"s_cselect_b32 s{NW}, {NS_-1}, {NS_}")
    A(f"s_mov_b32 s{LVL}, {LAG}")
    A(f"s_mov_b32 s{DB}, {int(opts.get('d1', 2.9)*256)}")
    A(f"s_mov_b32 s{RW}, {32-D0}"); A(f"s_mov_b32 s{VE}, 0")
    A(f"s_mul_i32 s68, s{NW}, {32-D0}"); A(f"s_add_u32 s68, s68, {ROFF}")
    A(f"v_mov_b32 v{RA}, s68"); A(f"v_mov_b32 v{RA+1}, 0"); A(f"v_mov_b32 v{PA}, 0")
    A("s_cmp_ge_u32 s9, 8"); A(f"s_cselect_b32 s{STA}, 2, 0")
    for j in range(D0, 32):
        if j == opts.get("js", 16) and opts.get("dup", 0): A(f"s_add_u32 s{DB}, s{DB}, {int(opts['dup']*256)}")
        if j == D0:
            g.stamp(5, 3)
            if opts.get("stamps") == 3: A(f"s_waitcnt vmcnt({D0-1})")
            g.stamp(7, 3)
        A(f"s_call_b64 s[{RET}:{RET+1}], {'L_ks' if j >= J0 else 'L_kq'}")
        if j == 8: g.stamp(8, 3)
        if j == 12: g.stamp(9, 3)
        issue(j)
    g.stamp(1)
    A("s_mov_b32 s10, 0")
    g.lab("L_kw")
    A(f"s_cmp_ge_u32 s{STA}, 4"); A("s_cbranch_scc1 L_v0")
    A(f"s_call_b64 s[{RET2}:{RET2+1}], L_work")
    A("s_sleep 1")
    A("s_add_u32 s10, s10, 1")
    A(f"s_cmp_lt_u32 s10, {SPIN_MAX}"); A("s_cbranch_scc1 L_kw")
    g.lab("L_v0")
    g.stamp(2)
    A(f"s_mov_b32 s{T_}, 0"); A(f"s_mov_b32 s{BUR}, 255")
    A(f"v_mov_b32 v{PA}, 8")
    A(f"s_mov_b32 s{RW}, s{VE}")
    A(f"ds_read_b64 {vr(RA,2)}, v{PA} offset:{L_RM}")
    A("s_waitcnt lgkmcnt(0)")
    A(f"v_readfirstlane_b32 s{DB}, v{RA}")
    A(f"s_mul_i32 s{DB}, s{DB}, {int(round(opts.get('ka2', 4.0)*16))}")
    A(f"s_ashr_i32 s{DB}, s{DB}, 4")
    A(f"s_add_i32 s{DB}, s{DB}, {int(round(opts.get('kb2', -0.2)*256 - int(round(opts.get('ka2', 4.0)*16))*ROFF/16))}")
    A(f"s_mul_i32 s68, s{DB}, {round(256*opts.get('nwf', 0.05))}"); A("s_ashr_i32 s68, s68, 8")
    A("s_cmp_eq_u32 s7, 2"); A("s_cselect_b32 s68, s68, 0"); A(f"s_add_i32 s{DB}, s{DB}, s68")

    def dots(G_):
        for tt in range(4):
            for e in range(8):
                c = "0" if tt == 0 else f"v{T+e}"
                A(f"v_dot2_f32_bf16 v{T+e}, v{slot(8*G_+e)+tt}, v{4+tt}, {c}")
        for e in range(0, 8, 2):
            A(f"v_add_f32_dpp v{T+e}, v{T+e}, v{T+e} row_ror:8 row_mask:0xf bank_mask:0x3")
            A(f"v_add_f32_dpp v{T+e}, v{T+e+1}, v{T+e+1} row_ror:8 row_mask:0xf bank_mask:0xc")
        x = X + 2 * (G_ & 1)
        for h in range(2):
            A(f"v_add_f32_dpp v{x+h}, v{T+4*h}, v{T+4*h} row_shl:4 row_mask:0xf bank_mask:0x5")
            A(f"v_add_f32_dpp v{x+h}, v{T+4*h+2}, v{T+4*h+2} row_shr:4 row_mask:0xf bank_mask:0xa")
    def wave_red(op, v, t):
        for r in (8, 4, 2, 1):
            A("s_nop 1")
            A(f"{op}_dpp v{v}, v{v}, v{v} row_ror:{r} row_mask:0xf bank_mask:0xf")
        for sw in ("v_permlane16_swap_b32", "v_permlane32_swap_b32"):
            A(f"v_mov_b32 v{t}, v{v}")
            A("s_nop 1")
            A(f"{sw} v{t}, v{v}")
            A(f"{op} v{v}, v{v}, v{t}")
    def finish(n):
        sc = OFF[n] + 1
        A("v_mov_b32 v3, 0")
        A("v_mov_b32 v20, 64")
        for i in range(4): A(f"v_add_f32_dpp v{X+i}, v{X+i}, v{X+i} quad_perm:[2,3,0,1] row_mask:0xf bank_mask:0xf")
        for i in range(2): A(f"v_cndmask_b32 v{T+i}, v{X+2*i}, v{X+2*i+1}, s[52:53]")
        A("s_nop 0")
        A("v_lshlrev_b32 v21, 3, s9")
        for i in range(2): A(f"v_add_f32_dpp v{T+i}, v{T+i}, v{T+i} quad_perm:[1,0,3,2] row_mask:0xf bank_mask:0xf")
        A(f"v_cndmask_b32 v{sc}, v{T}, v{T+1}, s[54:55]")
        rnd(g, sc)
        A(f"v_mul_f32 v{sc}, 0x{SCALE:08x}, v{sc}")
        rnd(g, sc)
        if n == 0: A(f"v_mov_b32 v{MW}, v{sc}")
        else: A(f"v_max_f32 v{MW}, v{MW}, v{sc}")
        wave_red("v_max_f32", MW, T)
        if n == 0:
            A("s_mov_b64 exec, 1")
            A(f"ds_max_f32 v3, v{MW} offset:{L_E0}")
            A(f"ds_add_u32 v3, v20 offset:{L_ECN}")
            A("s_mov_b64 exec, -1")
    def build(n, thr):
        tk = f"s[{TK[n]}:{TK[n]+1}]"
        A(f"v_cmp_nlt_f32 vcc, v{OFF[n]+1}, v{thr}")
        A(f"s_lshl_b32 s68, s{CNT}, 3")
        A(f"s_add_u32 s68, s68, s{LB}")
        A(f"s_andn2_b64 s[70:71], vcc, {tk}")
        A("v_mbcnt_lo_u32_b32 v3, s70, 0")
        A("v_mbcnt_hi_u32_b32 v3, s71, v3")
        A("s_bcnt1_i32_b64 s69, s[70:71]")
        A("v_lshl_add_u32 v3, v3, 3, s68")
        A("s_mov_b64 exec, s[70:71]")
        A(f"ds_write_b64 v3, {vr(OFF[n],2)}")
        A("s_mov_b64 exec, -1")
        A(f"s_or_b64 {tk}, {tk}, s[70:71]")
        A(f"s_add_u32 s{CNT}, s{CNT}, s69")
    def reread(weights=True, fill=None):
        ns = 3 if weights else 1
        for n in range(ns): A(f"ds_read_b64 {vr(SET[n],2)}, v{LRD} offset:{512*n}")
        if fill: fill()
        A("s_waitcnt lgkmcnt(0)")
        if not weights: return
        for n in range(3): A(f"v_sub_f32 v{SET[n]+1}, v{SET[n]+1}, v{MW}")
        for n in range(3): A(f"v_mul_f32 v{SET[n]+1}, 0x{LOG2E:08x}, v{SET[n]+1}")
        for n in range(3): A(f"v_exp_f32 v{SET[n]+1}, v{SET[n]+1}")
        A("s_nop 0")
        for n in range(3): A(f"v_cvt_pk_bf16_f32 v{PH[n]}, 0, v{SET[n]+1}")
        for n in range(3): A(f"v_cvt_pk_bf16_f32 v{SET[n]+1}, v{SET[n]+1}, 0")
    def pv(t, data=None, acc=None):
        data = slot(t) if data is None else data
        acc = list(range(T, T + 8)) if acc is None else acc
        for tt in range(4):
            for hf in range(2):
                p = (SET[t//16] + 1, PH[t//16])[hf]
                A(f"v_dot2c_f32_bf16_dpp v{acc[2*tt+hf]}, v{p}, v{data+tt} row_newbcast:{t%16} row_mask:0xf bank_mask:0xf")
    def estimate(sh, add, src, vphase=True):
        A(f"s_add_u32 s68, s{src}, {add}")
        A(f"s_lshr_b32 s68, s68, {sh}")
        A(f"s_sub_u32 s69, s68, s{VE}")
        A(f"s_mov_b32 s{VE}, s68")
        if vphase:
            A(f"s_add_u32 s{RW}, s{RW}, s69")
            A(f"s_add_u32 s{SR}, s{SR}, s69")
        A("v_mov_b32 v3, s69")
        A("s_mov_b64 exec, 1")
        A(f"ds_add_u32 v1, v3 offset:{L_RM+8}")
        A("s_mov_b64 exec, -1")
    def fetch():
        A(f"v_readfirstlane_b32 s{SR}, v{RA}")
        A(f"v_readfirstlane_b32 s{SBI}, v{RA+1}")
    NST = LAG + 33 + LAG
    assert 4 * (NST - LAG) <= HPOS, NST
    for t in range(NST):
        if t > LAG: A(f"s_cmp_eq_u32 s{FIN}, {t}"); A("s_cbranch_scc1 L_epi")
        A(f"s_call_b64 s[{RET}:{RET+1}], {'L_vs' if t <= 2 * LAG else 'L_vq'}")
        if t < NST - LAG:
            A(f"s_cbranch_scc1 L_nl{t}")
            A(f"v_add_u32_dpp v3, v{SET[t//16]}, v{L16} row_newbcast:{t%16} row_mask:0xf bank_mask:0xf")
            A(f"buffer_load_dwordx4 {vr(slot(t),4)}, v3, s[48:51], 0 offen {VF}")
            g.lab(f"L_nl{t}")
        if t == 0: dots(2)
        if t >= LAG: pv(t - LAG)
    A("s_nop 1")
    def lane_reduce(a, b):
        A(f"v_add_u32 v{EPA}, s11, v{LRD}")
        for j in range(4): A(f"v_permlane32_swap_b32 v{a+j}, v{b+j}")
        for j in range(4): A(f"v_add_f32 v{a+j}, v{a+j}, v{b+j}")
        A("v_mov_b32 v3, 1")
        for j in range(2): A(f"v_permlane16_swap_b32 v{a+j}, v{a+j+2}")
        for j in range(2): A(f"v_add_f32 v{a+j}, v{a+j}, v{a+j+2}")
    def prelim(r):
        A(f"ds_write_b64 v{EPA}, {vr(r,2)} offset:{L_OP1}")
        A("s_mov_b64 exec, 1")
        A(f"ds_add_u32 v1, v3 offset:{L_SN}")
        A("s_mov_b64 exec, -1")
    g.lab("L_epi")
    g.stamp(5)
    A("s_nop 0")
    lane_reduce(T, T+4)
    A(f"v_pk_add_f32 {vr(T,2)}, {vr(T,2)}, v[4:5]")
    A(f"ds_write_b64 v{EPA}, {vr(T,2)} offset:{L_OP}")
    A(f"s_cmp_eq_u32 s{NSP}, 0"); A("s_cbranch_scc1 L_ep2")
    prelim(T)
    g.lab("L_ep2")
    A("s_mov_b64 exec, 1")
    A(f"ds_add_rtn_u32 v3, v1, v3 offset:{L_TK}")
    A("s_mov_b64 exec, -1")
    A("v_mov_b32 v4, 0")
    A(f"ds_read_b32 v5, v4 offset:{L_ML}")
    A("s_waitcnt lgkmcnt(0)")
    A("v_readfirstlane_b32 s68, v3")
    A(f"s_cmp_lg_u32 s68, {NS_-1}"); A("s_cbranch_scc1 L_send")
    A("v_cmp_eq_u32 vcc, -1, v5")
    A("s_cmp_eq_u64 vcc, 0"); A("s_cbranch_scc1 L_ep3")
    poll_lds(g, [f"ds_read_b32 v5, v4 offset:{L_ML}"], [5], 8, 1)
    g.lab("L_ep3")
    op_publish(g, L_OP, RB, 4, R2, False)
    g.lab("L_send")
    if opts.get("stamps"):
        g.stamp(6)
        dump_all(g, [CNT, DB, SBI])
    A("s_endpgm")
    g.wave_red = wave_red

    g.lab("L_ks")
    A(f"s_cmp_ge_u32 s{STA}, 4"); A("s_cbranch_scc1 L_kq")
    A(f"s_call_b64 s[{RET2}:{RET2+1}], L_work")
    g.lab("L_kq")
    fetch()
    g.lab("L_ks2")
    A(f"s_add_u32 s{T_}, s{T_}, 1")
    A(f"s_mul_i32 s68, s{RW}, s{NW}")
    A(f"s_sub_i32 s68, s68, s{SR}")
    A(f"s_sub_u32 s{RW}, s{RW}, 1")
    A(f"s_add_i32 s68, s68, {ROFF}")
    A(f"s_mul_i32 s68, s68, {LG}")
    A(f"s_add_i32 s68, s68, s{DB}")
    A(f"s_add_i32 s68, s68, s{SBI}")
    A(f"s_max_i32 s68, s68, {int(opts.get('lo', 1.2)*256)}")
    A(f"s_min_i32 s68, s68, {LAG*256}")
    if opts.get("per", 8):
        A(f"s_add_u32 s{ACC}, s{ACC}, {256 // opts.get('per', 8)}")
        A(f"s_and_b32 s69, s{ACC}, 0xff")
        A("s_add_u32 s68, s68, s69")
        A(f"s_lshr_b32 s{LVL}, s68, 8")
    else:
        A("s_lshl_b32 s69, s68, 24")
        A("s_lshr_b32 s68, s68, 8")
        A(f"s_add_u32 s{ACC}, s{ACC}, s69")
        A(f"s_addc_u32 s{LVL}, s68, 0")
    g.lab("L_wait")
    A("s_mov_b64 exec, 1")
    A(f"ds_dec_u32 v{PA}, v{LRD} offset:{L_RM}")
    A(f"ds_read_b64 {vr(RA,2)}, v{PA} offset:{L_RM}")
    A("s_mov_b64 exec, -1")
    for d in range(2, LAG + 1):
        A(f"s_cmp_lt_u32 s{LVL}, {d}"); A(f"s_cbranch_scc1 L_wt{d-1}")
    for d in range(LAG, 0, -1):
        g.lab(f"L_wt{d}")
        if d < LAG: A(f"s_cmp_lg_u32 s{T_}, s{T_}")
        A(f"s_waitcnt vmcnt({d-1})")
        A(f"s_setpc_b64 s[{RET}:{RET+1}]")

    g.lab("L_vs")
    fetch()
    A(f"s_cmp_eq_u32 s{X1D}, 2"); A("s_cbranch_scc1 L_vs1")
    A(f"s_cmp_eq_u32 s{X1D}, 1"); A("s_cbranch_scc1 L_x3")
    A(f"s_cmp_gt_u32 s{LVL}, s{T_}"); A("s_cbranch_scc1 L_ks2")
    g.lab("L_x1")
    g.stamp(1, 2)
    dots(3)
    sc = OFF[1] + 1
    A(f"s_lshl_b32 s68, s{NH}, 3")
    A(f"s_add_u32 s68, s68, s{LB}")
    for i in range(4): A(f"v_add_f32_dpp v{X+i}, v{X+i}, v{X+i} quad_perm:[2,3,0,1] row_mask:0xf bank_mask:0xf")
    for i in range(2): A(f"v_cndmask_b32 v{T+i}, v{X+2*i}, v{X+2*i+1}, s[52:53]")
    A("v_mov_b32 v20, 64")
    A("v_lshlrev_b32 v21, 3, s9")
    for i in range(2): A(f"v_add_f32_dpp v{T+i}, v{T+i}, v{T+i} quad_perm:[1,0,3,2] row_mask:0xf bank_mask:0xf")
    A(f"v_cndmask_b32 v{sc}, v{T}, v{T+1}, s[54:55]")
    rnd(g, sc)
    A(f"v_mul_f32 v{sc}, 0x{SCALE:08x}, v{sc}")
    rnd(g, sc)
    mx = lambda r: f"v_max_f32_dpp v{MW}, v{MW}, v{MW} row_ror:{r} row_mask:0xf bank_mask:0xf"
    tk1 = f"s[{TK[1]}:{TK[1]+1}]"
    for t in (f"v_max_f32 v{MW}, v{MW}, v{sc}",
              f"v_cmp_ngt_f32 vcc, s{HTH}, v{sc}", "v_mov_b32 v4, 0", mx(8),
              "s_bcnt1_i32_b64 s69, vcc", f"s_add_u32 s69, s69, s{NH}", mx(4),
              f"s_cmp_gt_u32 s69, {HCAP}", f"s_cselect_b32 s{NSP}, 1, s{NSP}", mx(2),
              f"s_cmp_eq_u32 s{NSP}, 0", f"s_cselect_b64 {tk1}, vcc, 0", f"s_cselect_b32 s{NH}, s69, s{NH}", mx(1),
              f"v_mbcnt_lo_u32_b32 v3, s{TK[1]}, 0", f"v_mov_b32 v{T}, v{MW}", f"v_mbcnt_hi_u32_b32 v3, s{TK[1]+1}, v3", "v_lshl_add_u32 v3, v3, 3, s68",
              f"v_permlane16_swap_b32 v{T}, v{MW}",
              f"s_mov_b64 exec, {tk1}", f"ds_write_b64 v3, {vr(OFF[1],2)} offset:{HPOS*8}", "s_mov_b64 exec, -1",
              f"ds_read_b32 v{SET[2]}, v{LRD} offset:1024",
              f"v_max_f32 v{MW}, v{MW}, v{T}", f"v_mov_b32 v{T}, v{MW}", "v_mov_b32 v5, 0", f"s_mov_b32 s{TH}, s{T_}",
              f"v_permlane32_swap_b32 v{T}, v{MW}", f"v_max_f32 v{MW}, v{MW}, v{T}"): A(t)
    for i in range(2): A(f"v_sub_f32 v{X+1+i}, v{OFF[i]+1}, v{MW}")
    for i in range(2): A(f"v_mul_f32 v{X+1+i}, 0x{LOG2E:08x}, v{X+1+i}")
    for i in range(2): A(f"v_exp_f32 v{X+1+i}, v{X+1+i}")
    A(f"v_mov_b32 v{X}, v{MW}")
    A(f"v_add_f32 v{X+1}, v{X+1}, v{X+2}")
    A("s_waitcnt lgkmcnt(0)")
    for i in range(8):
        A(f"s_cmp_le_u32 s{NH}, {4*i}"); A("s_cbranch_scc1 L_x2")
        A(f"v_add_u32_dpp v3, v{SET[2]}, v{L16} row_newbcast:{8+i} row_mask:0xf bank_mask:0xf")
        A(f"buffer_load_dwordx4 {vr(slot(24+i),4)}, v3, s[48:51], 0 offen {VF}")
    g.lab("L_x2")
    g.stamp(2, 2)
    wave_red("v_add_f32", X+1, T)
    A("s_mov_b64 exec, 1")
    A(f"ds_max_f32 v1, v{MW} offset:{L_MX}")
    A(f"ds_write_b64 v21, {vr(X,2)} offset:{L_ST}")
    A(f"ds_add_u32 v1, v20 offset:{L_SCN}")
    A("s_mov_b64 exec, -1")
    g.stamp(3); g.stamp(3, 2)
    A(f"s_mov_b32 s{X1D}, 1"); A(f"s_mov_b32 s{HST}, 1")
    A(f"s_cmp_lt_u32 s{T_}, {LAG}"); A("s_cbranch_scc1 L_ks2")
    g.lab("L_x3")
    A(f"v_max_f32 v21, s{EV}, v{MW}")
    A(f"s_add_u32 s{CNT}, s{CNT}, 3"); A(f"s_lshr_b32 s{CNT}, s{CNT}, 2")
    A(f"v_add_f32 v21, 0x{f2u(DEL - ZERO_GAP):08x}, v21")
    A(f"s_max_u32 s{CNT}, s{CNT}, s{T_}"); A(f"s_lshl_b32 s{CNT}, s{CNT}, 2")
    build(1, 21)
    def fill():
        for e in range(8): A(f"v_mov_b32 v{T+e}, 0")
        A(f"s_lshr_b32 s{LIM}, s{CNT}, 2")
        A(f"s_mov_b32 s{X1D}, 2")
        estimate(2, opts.get("ve2", 8), CNT)
    reread(True, fill)
    A(f"s_cmp_eq_u32 s{NH}, 0")
    A(f"s_cselect_b32 s{LVL}, 0, s{LVL}")
    g.stamp(4, 2)
    g.lab("L_vs1")
    A(f"s_cmp_eq_u32 s{HST}, 0"); A("s_cbranch_scc1 L_vs1b")
    A(f"s_sub_u32 s68, s{T_}, s{TH}")
    A(f"s_cmp_le_u32 s{LVL}, s68"); A("s_cbranch_scc1 L_snap")
    A(f"s_cmp_lg_u32 s{LIM}, s{T_}"); A("s_cbranch_scc1 L_vs2")
    A("s_waitcnt vmcnt(0)")
    g.lab("L_snap")
    g.stamp(5, 2)
    HA = [4, 5, 6, 7, 16, 17, 18, 19]
    for r in HA[2:]: A(f"v_mov_b32 v{r}, 0")
    for i in range(8):
        A(f"s_cmp_le_u32 s{NH}, {4*i}"); A("s_cbranch_scc1 L_snp2")
        pv(40 + i, slot(24 + i), HA)
    g.lab("L_snp2")
    A("s_nop 1")
    lane_reduce(4, 16)
    A(f"s_mov_b32 s{HST}, 0")
    A(f"s_cmp_lg_u32 s{NSP}, 0"); A("s_cbranch_scc1 L_vs1b")
    prelim(4)
    g.stamp(9); g.stamp(7, 2)
    A("s_branch L_vs1b")
    g.lab("L_vq")
    fetch()
    g.lab("L_vs1b")
    A(f"s_cmp_eq_u32 s{LIM}, s{T_}"); A("s_cbranch_scc1 L_hand")
    g.lab("L_vs2")
    A(f"s_cmp_lt_u32 s{T_}, s{BUR}"); A("s_cbranch_scc1 L_ks2")
    A(f"s_sub_u32 s{LVL}, s{LIM}, s{T_}")
    A(f"s_add_u32 s{T_}, s{T_}, 1")
    A(f"s_cmp_gt_u32 s{LVL}, {LAG}"); A("s_cbranch_scc1 L_wait")
    for d in range(LAG, 0, -1):
        A(f"s_waitcnt vmcnt({d-1})")
        if d > 1:
            A(f"s_cmp_ge_u32 s{LVL}, {d}"); A("s_cbranch_scc1 L_ret2")
    g.lab("L_ret2")
    A(f"s_cmp_eq_u32 s{T_}, s{T_}")
    A(f"s_setpc_b64 s[{RET}:{RET+1}]")

    g.lab("L_hand")
    g.stamp(7)
    A("v_mov_b32 v3, 0")
    wait_cnt(g, f"ds_read_b64 v[18:19], v3 offset:{L_SCN}", 18, 0x10000 + 64 * NS_, 1)
    g.stamp(4)
    A(f"v_add_f32 v21, 0x{f2u(-ZERO_GAP):08x}, v19")
    if opts.get("noskip"): A("v_mov_b32 v21, 0xff800000")
    build(0, 21); build(1, 21)
    def fill2():
        A(f"s_add_u32 s{LIM}, s{CNT}, {3 + 4*LAG}")
        A(f"s_lshr_b32 s{LIM}, s{LIM}, 2")
        A(f"s_sub_u32 s{BUR}, s{LIM}, {LAG + opts.get('burst', 3)}")
        A(f"s_max_i32 s{BUR}, s{BUR}, 0")
        A(f"s_mov_b32 s{FIN}, s{LIM}")
        estimate(2, 3, CNT)
    reread(True, fill2)
    A("s_branch L_vs2")

    g.lab("L_work")
    ret2 = f"s_setpc_b64 s[{RET2}:{RET2+1}]"
    for k in (1, 2, 3):
        A(f"s_cmp_eq_u32 s{STA}, {k}"); A(f"s_cbranch_scc1 L_w{k}")
    g.lab("L_w0")
    A(f"s_load_dwordx16 s[16:31], s[42:43], s{QA} glc")
    A(f"s_mov_b32 s{STA}, 1")
    g.lab("L_wr")
    A(ret2)
    g.lab("L_w1")
    A("s_waitcnt lgkmcnt(0)")
    A(f"s_xor_b32 s68, s17, s{ST}")
    for k in range(1, 8):
        A(f"s_xor_b32 s69, s{17+2*k}, s{ST}"); A("s_or_b32 s68, s68, s69")
    A("s_cbranch_scc1 L_w0")
    for k in range(8): A(f"v_mov_b32 v{8+k}, s{16+2*k}")
    A("v_lshlrev_b32 v3, 5, s9")
    A("s_mov_b64 exec, 1")
    A(f"ds_write_b128 v3, v[8:11] offset:{L_QV}")
    A(f"ds_write_b128 v3, v[12:15] offset:{L_QV+16}")
    A("s_mov_b64 exec, -1")
    A(f"s_mov_b32 s{STA}, 2")
    g.lab("L_w2")
    A(f"s_add_u32 s68, s{LVL}, 16")
    A(f"s_cmp_lt_u32 s{T_}, s68"); A("s_cbranch_scc1 L_wr")
    A(f"ds_read_b128 v[4:7], v{L16} offset:{L_QV}")
    A("s_waitcnt lgkmcnt(0)")
    chk_sentinel(g, [4, 5, 6, 7], 8)
    A("s_cmp_lg_u64 vcc, 0"); A("s_cbranch_scc1 L_wr")
    g.stamp(9, 2)
    dots(0); dots(1)
    finish(0)
    A(f"s_mov_b32 s{STA}, 3")
    A(f"s_mov_b32 s{HST}, 0")
    g.stamp(8)
    A(ret2)
    g.lab("L_w3")
    A("v_mov_b32 v3, 0")
    A(f"ds_read_b64 v[18:19], v3 offset:{L_ECN}")
    A("s_waitcnt lgkmcnt(0)")
    A(f"v_cmp_gt_u32 vcc, 0x{0x10000 + 64 * NS_:x}, v18")
    A("s_cmp_lg_u64 vcc, 0"); A("s_cbranch_scc1 L_wr")
    A(f"ds_read_b64 v[20:21], v3 offset:{L_E1}")
    A("s_waitcnt lgkmcnt(0)")
    A(f"v_add_f32 v21, 0x{f2u(-THETA):08x}, v21")
    A(f"v_cmp_nlt_f32 vcc, v{OFF[0]+1}, v21")
    A(f"v_readfirstlane_b32 s{HTH}, v21")
    A(f"v_readfirstlane_b32 s{EV}, v20")
    A(f"s_mov_b32 s{NH}, 0")
    A("s_bcnt1_i32_b64 s68, vcc")
    A(f"s_cmp_gt_u32 s68, {HCAP}")
    A(f"s_cselect_b32 s{NSP}, 1, 0")
    A("s_cbranch_scc1 L_w4")
    A(f"s_mov_b32 s{CNT}, {HPOS}")
    build(0, 21)
    A(f"s_mov_b32 s{NH}, s69"); A(f"s_mov_b32 s{CNT}, 0")
    g.lab("L_w4")
    A(f"v_add_f32 v21, 0x{f2u(DEL - ZERO_GAP):08x}, v20")
    build(0, 21)
    estimate(1, opts.get("ve1", 4), CNT, False)
    if opts.get("ka1", 0):
        A(f"s_sub_i32 s68, s{VE}, {opts.get('kt1', 21)}")
        A(f"s_max_i32 s68, s68, {opts.get('kl1', 0)}")
        A(f"s_mul_i32 s68, s68, {int(opts['ka1']*256)}")
        A(f"s_add_i32 s{DB}, s{DB}, s68")
    A(f"s_mov_b32 s{STA}, 4")
    reread(False)
    A(ret2)

def gen(opts):
    g = G(opts); A = g.A
    WFL = opts.get("wflags", "nt")
    D0 = opts.get("D0", 3)
    MREP = 8
    TB = 32
    hdr = open(opts["ref"]).read().split("; Override launch")[0]
    g.L.append(hdr.rstrip("\n"))
    g.L.append(""";
;    numbers of loads in flight only affect speed.""")
    g.L.append(f"; @launch grid=(256,1,1) block=(768,1,1) lds={LDS_BYTES}")
    g.L.append('.amdgcn_target "amdgcn-amd-amdhsa--gfx950"\n.text')
    g.L.append(f".globl {KNAME}\n.p2align 8\n.type {KNAME},@function\n{KNAME}:")
    g.stamp(0, 3)
    A("s_cmp_ge_u32 s2, 256")
    A("s_cbranch_scc1 L_end")
    A("s_load_dwordx16 s[16:31], s[0:1], 0")
    A("s_load_dwordx8 s[32:39], s[0:1], 64")
    A("s_load_dwordx4 s[40:43], s[0:1], 96")
    A("v_lshrrev_b32 v2, 6, v0")
    A("v_and_b32 v1, 63, v0")
    A("v_readfirstlane_b32 s13, v2")
    A("s_bfe_u32 s7, s2, 0x20003")
    A("s_bfe_u32 s6, s2, 0x20005")
    A("s_and_b32 s8, s2, 7")
    A("s_lshl2_add_u32 s6, s8, s6")
    A("s_and_b32 s9, s2, 0x80")
    A("s_lshr_b32 s9, s9, 2")
    A("s_add_u32 s6, s6, s9")
    A("s_mov_b32 s72, 0xfffffffe")
    A("s_mov_b32 s73, 0xffff0000")
    g.stamp(0)
    A("s_cmp_eq_u32 s7, 3")
    A("s_cbranch_scc1 L_serv")
    A("s_cmp_eq_u32 s13, 0")
    A("s_cbranch_scc1 L_pub")
    stream(g, opts)

    def tag():
        A("s_waitcnt lgkmcnt(0)")
        make_tag(g)
    def tag_bytes():
        for i in range(4): A(f"s_bfe_u32 s{TB+i}, s{ST}, 0x{(8 << 16) | (8 * i):x}")
    def table():
        A("s_getpc_b64 s[56:57]")
        l = g.uniq("pc"); g.lab(l)
        A("s_lshr_b32 s3, s2, 5"); A("s_lshl3_add_u32 s3, s3, s8"); A("s_lshl_b32 s3, s3, 2")
        A(f"s_add_u32 s3, s3, L_table-{l}")
        A("s_load_dword s14, s[56:57], s3")

    g.lab("L_pub")
    NT = opts.get("nt", 2)
    if NT:
        A("s_getpc_b64 s[56:57]")
        g.lab("L_pct")
        A("s_lshr_b32 s3, s2, 3"); A("s_lshl_b32 s3, s3, 2")
        A("s_add_u32 s3, s3, L_touch-L_pct")
        A("s_load_dword s14, s[56:57], s3")
        A("s_waitcnt lgkmcnt(0)")
        for k in range(NT):
            e = g.uniq("tq"); e2 = g.uniq("te")
            A(f"s_bfe_u32 s48, s14, 0x{(3 << 16) | (8*k):x}"); A("s_lshl_b32 s48, s48, 6")
            A("v_add_u32 v2, s48, v1")
            A(f"s_bfe_u32 s48, s14, 0x{(3 << 16) | (8*k+3):x}")
            A(f"s_bitcmp1_b32 s14, {8*k+7}"); A(f"s_cbranch_scc1 {e2}")
            A(f"s_bitcmp1_b32 s14, {8*k+6}"); A(f"s_cbranch_scc1 {e}")
            A("s_lshl1_add_u32 s48, s8, s48"); A("s_lshl_b32 s48, s48, 7")
            A("v_mul_u32_u24 v2, 6144, v2")
            A("v_add_u32 v2, s48, v2")
            A("global_load_dword v167, v2, s[36:37]")
            A(f"s_branch {e2}")
            g.lab(e)
            A("s_lshl3_add_u32 s48, s8, s48"); A("s_lshl_b32 s48, s48, 7")
            A("v_lshl_add_u32 v2, v2, 13, s48")
            A("global_load_dword v167, v2, s[22:23]")
            g.lab(e2)
    A("v_mov_b32 v38, 0")
    A("v_mov_b32 v4, -1")
    A("v_mov_b32 v8, 0xff800000"); A("v_mov_b32 v9, 0")
    A("v_lshlrev_b32 v2, 3, v1")
    A(f"ds_write_b64 v2, v[8:9] offset:{L_S4}")
    A("v_mov_b32 v5, 0"); A("v_mov_b32 v6, 0"); A("v_mov_b32 v7, 0")
    A(f"ds_write_b64 v2, v[6:7] offset:{L_OP+512*(NS_-1)}")
    A(f"ds_write_b64 v2, v[6:7] offset:{L_OP1+512*(NS_-1)}")
    A("v_lshlrev_b32 v2, 2, v1")
    A(f"ds_write_b32 v2, v4 offset:{L_QV}")
    A("s_lshr_b32 s10, s7, 1")
    A(f"ds_write_b128 v38, v[4:7] offset:{L_ML}")
    A("v_lshlrev_b32 v10, 6, s10"); A("v_mov_b32 v11, v8"); A("v_mov_b32 v12, v10"); A("v_mov_b32 v13, v8")
    A(f"ds_write_b128 v38, v[10:13] offset:{L_SCN}")
    A(f"s_mul_i32 s11, s10, {32-D0}"); A(f"s_sub_u32 s11, {1024+NS_*(32-D0)}, s11")
    A("v_mov_b32 v10, s11"); A("v_mov_b32 v11, 0"); A("v_mov_b32 v12, 1024"); A(f"v_mov_b32 v13, {-int(opts.get('cap', 0)*256)}")
    A(f"ds_write_b128 v38, v[10:13] offset:{L_RM}")
    A("v_mov_b32 v4, s10"); A("v_mov_b32 v5, s10")
    A(f"ds_write_b128 v38, v[4:7] offset:{L_SN}")
    A(f"s_getreg_b32 s{SXCC}, hwreg(HW_REG_XCC_ID, 0, 4)")
    A("s_waitcnt lgkmcnt(0)")
    A(f"s_load_dword s{ST}, s[42:43], {WS_E}")
    A("s_barrier")
    tag()
    A(f"s_add_u32 s{SXCC}, s{SXCC}, s{ST}")
    def merge(nl, base):
        A(f"v_and_b32 v9, {nl-1}, v1")
        A("v_lshlrev_b32 v9, 3, v9")
        A(f"ds_read_b64 v[10:11], v9 offset:{base}")
        mods = ["quad_perm:[1,0,3,2]", "quad_perm:[2,3,0,1]", "row_half_mirror", "row_mirror"][:nl.bit_length()-1]
        A("s_waitcnt lgkmcnt(0)")
        if nl == 16: A("v_mov_b32 v16, v10")
        for i, m_ in enumerate(mods):
            src = 10 if i == 0 else 8
            A(f"v_max_f32_dpp v8, v{src}, v{src} {m_} row_mask:0xf bank_mask:0xf")
            if i + 1 < len(mods): A("s_nop 1")
        A("v_sub_f32 v9, v10, v8")
        A(f"v_mul_f32 v9, 0x{LOG2E:08x}, v9")
        A("v_exp_f32 v9, v9")
        A("s_nop 0")
        A("v_mul_f32 v10, v9, v11")
        for m_ in mods:
            A("s_nop 1")
            A(f"v_add_f32_dpp v10, v10, v10 {m_} row_mask:0xf bank_mask:0xf")
    SB = 20
    def sissue(n, nd, off):
        for i in range(n): A(f"s_load_dwordx{nd} s[{SB+4*i}:{SB+4*i+nd-1}], s[42:43], s{54+i} offset:{off} glc")
    def spoll(n, nd, off, name, sleep):
        A("s_mov_b32 s70, 0")
        A(f"s_branch {name}c")
        g.lab(name)
        sissue(n, nd, off)
        g.lab(name + "c")
        A("s_waitcnt lgkmcnt(0)")
        tags = [SB + 4*i + k for i in range(n) for k in range(1, nd, 2)]
        A(f"s_xor_b32 s68, s{tags[0]}, s{ST}")
        for k in tags[1:]:
            A(f"s_xor_b32 s69, s{k}, s{ST}"); A("s_or_b32 s68, s68, s69")
        A(f"s_cbranch_scc0 {name}d")
        A(f"s_sleep {sleep}")
        A("s_add_u32 s70, s70, 1")
        A(f"s_cmp_lt_u32 s70, {SPIN_MAX}")
        A(f"s_cbranch_scc1 {name}")
        g.lab(name + "d")
    A("s_add_u32 s52, s7, 1"); A("s_cmp_eq_u32 s52, 3"); A("s_cselect_b32 s52, 0, s52")
    A("s_add_u32 s53, s52, s7"); A("s_sub_u32 s53, 3, s53")
    for i in range(2):
        A(f"s_lshl2_add_u32 s{54+i}, s6, s{52+i}"); A(f"s_lshl_b32 s{54+i}, s{54+i}, 7")
    A("s_lshl2_add_u32 s64, s6, s7"); A("s_lshl_b32 s64, s64, 7")
    A(f"s_add_u32 s64, s64, {WS_S1}")
    A("v_mov_b32 v18, s64")
    A(f"v_add_u32 v19, {WS_S2-WS_S1}, v18")
    A("v_mov_b32 v17, 0x10000")
    wait_cnt(g, f"ds_read_b64 v[8:9], v38 offset:{L_ECN}", 8, 64 * NS_, 2)
    sissue(2, 2, WS_S1)
    A("v_mov_b32 v8, v9")
    A(f"v_mov_b32 v9, s{ST}")
    A("s_mov_b64 exec, 1")
    A("global_store_dwordx2 v18, v[8:9], s[42:43] sc1")
    g.stamp(1)
    spoll(2, 2, WS_S1, "L_s3e", opts.get("ssl", 2))
    A(f"v_mov_b32 v12, s{SB}")
    A(f"v_max3_f32 v10, v8, v12, s{SB+4}")
    A(f"v_min3_f32 v11, v8, v12, s{SB+4}")
    A(f"ds_write_b64 v38, v[10:11] offset:{L_E1}")
    A(f"ds_add_u32 v38, v17 offset:{L_ECN}")
    A("s_mov_b64 exec, -1")
    g.stamp(3)
    A("s_lshl_b32 s64, s8, 7")
    A(f"s_load_dwordx8 s[20:27], s[42:43], s64 offset:{WS_HDR} glc")
    A("s_waitcnt lgkmcnt(0)")
    A(f"s_xor_b32 s68, s20, s{SXCC}")
    for k in range(1, 8):
        A(f"s_xor_b32 s69, s{20+k}, s{SXCC}"); A("s_or_b32 s68, s68, s69")
    A(f"s_cselect_b32 s{SLOC}, 0, 1")
    if opts.get("nolocal"): A(f"s_mov_b32 s{SLOC}, 0")
    for i, r in enumerate((7, 52, 53)): A(f"v_lshlrev_b32 v{20+i}, 3, s{r}")
    wait_cnt(g, f"ds_read_b32 v8, v38 offset:{L_SCN}", 8, 64 * NS_, 1)
    merge(16, L_ST)
    sissue(2, 4, WS_S2)
    A(f"v_mov_b32 v9, s{ST}"); A(f"v_mov_b32 v11, s{ST}")
    A("s_mov_b64 exec, 1")
    A("global_store_dwordx4 v19, v[8:11], s[42:43] sc1")
    A(f"ds_write_b32 v20, v8 offset:{L_S4}")
    A(f"ds_write_b32 v20, v10 offset:{L_S4+4}")
    g.stamp(4)
    spoll(2, 4, WS_S2, "L_s3p", opts.get("ssl", 2))
    for i in range(2):
        A(f"v_mov_b32 v{12+2*i}, s{SB+4*i}"); A(f"v_mov_b32 v{13+2*i}, s{SB+4*i+2}")
    A("v_max_f32 v23, v12, v14")
    A(f"ds_max_f32 v38, v23 offset:{L_MX}")
    A(f"ds_add_u32 v38, v17 offset:{L_SCN}")
    for i in range(2): A(f"ds_write_b64 v{21+i}, {vr(12+2*i,2)} offset:{L_S4}")
    A("s_mov_b64 exec, -1")
    merge(4, L_S4)
    A("v_sub_f32 v9, v16, v8")
    A("v_rcp_f32 v10, v10")
    A(f"v_mul_f32 v9, 0x{LOG2E:08x}, v9")
    A("v_exp_f32 v9, v9")
    A("v_lshlrev_b32 v8, 2, v1")
    A("v_mul_f32 v9, v9, v10")
    A("s_mov_b64 exec, 0xffff")
    A(f"ds_write_b32 v8, v9 offset:{L_S8}")
    A("s_mov_b64 exec, -1")
    A(f"ds_write_b32 v38, v38 offset:{L_ML}")
    g.stamp(5)
    wait_cnt(g, f"ds_read_b32 v8, v38 offset:{L_SN}", 8, NS_, 1)
    R = 40
    op_publish(g, L_OP1, R, 38, 0, True)
    g.stamp(6)
    A("s_waitcnt vmcnt(0)")
    A(f"ds_write_b32 v38, v38 offset:{L_RM+12}")
    if opts.get("clean", 1):
        wait_cnt(g, f"ds_read_b32 v8, v38 offset:{L_TK}", 8, opts.get("ctk", 2), 8)
        A(f"global_store_dwordx2 v{R+OPA}, {vr(R,2)}, s[42:43] sc1")
    A("s_branch L_fin")

    g.lab("L_serv")
    A("s_cmp_ge_u32 s13, 4"); A("s_cbranch_scc1 L_team")
    A("s_cmp_ge_u32 s13, 2"); A("s_cbranch_scc1 L_end")
    A("v_mov_b32 v38, 0")
    A("v_mov_b32 v4, -1"); A("v_mov_b32 v5, 0"); A("v_mov_b32 v6, 0"); A("v_mov_b32 v7, 0")
    A(f"ds_write_b128 v38, v[4:7] offset:{L_ML}")
    A(f"ds_write_b64 v38, v[6:7] offset:{L_CNA}")
    A(f"s_getreg_b32 s{SXCC}, hwreg(HW_REG_XCC_ID, 0, 4)")
    A("s_waitcnt lgkmcnt(0)")
    A(f"s_load_dword s{ST}, s[42:43], {WS_E}")
    table()
    A("s_barrier")
    tag()
    tag_bytes()
    A("s_cmp_eq_u32 s13, 0"); A("s_cbranch_scc1 L_chk")
    A("s_bfe_u32 s61, s14, 0x80010")
    A("s_cmp_ge_u32 s61, 32"); A("s_cbranch_scc1 L_fin")
    poll_lds(g, [f"ds_read_b32 v8, v38 offset:{L_ML}"], [8], 9, 16)
    A("s_branch L_r_f2")

    g.lab("L_chk")
    A(f"s_add_u32 s{SXCC}, s{SXCC}, s{ST}")
    A("s_lshr_b32 s49, s2, 5"); A("s_lshl_b32 s50, s8, 5"); A("s_add_u32 s49, s49, s50"); A("s_lshl_b32 s49, s49, 2")
    A("v_mov_b32 v8, s49"); A(f"v_mov_b32 v9, s{SXCC}")
    A("s_mov_b64 exec, 1")
    A(f"global_store_dword v8, v9, s[42:43] offset:{WS_HDR} sc1")
    A("s_mov_b64 exec, -1")
    for i in range(3):
        A(f"s_lshl_b32 s{54+i}, s6, 9"); A(f"s_add_u32 s{54+i}, s{54+i}, {128*i}")
    wait_cnt(g, f"ds_read_b32 v8, v38 offset:{L_CNA}", 8, 12, 16)
    sissue(3, 2, WS_S2)
    spoll(3, 2, WS_S2, "L_s3s", 8)
    A(f"ds_write_b32 v38, v38 offset:{L_ML}")
    g.stamp(5)
    TG = 160; RB = 40
    A(f"v_and_b32 v{TG}, 1, v1")
    A(f"v_lshlrev_b32 v{TG}, 4, v{TG}")
    A(f"v_lshrrev_b32 v{TG}, v{TG}, s{ST}")
    A(f"v_bfe_u32 v{TG+1}, v{TG}, 8, 8")
    A(f"v_and_b32 v{TG}, 0xff, v{TG}")
    A("s_lshl_b32 s10, s6, 11"); A(f"s_add_u32 s10, s10, {WS_OP}")
    A("v_lshl_add_u32 v2, v1, 3, s10")
    wait_cnt(g, f"ds_read_b32 v8, v38 offset:{L_GO}", 8, 8, 8)
    def head_sum(b_, t):
        for i in range(6): A(f"v_xor_b32 v{b_+i}, v{b_+i}, v{TG+(i&1)}")
        A(f"v_or3_b32 v{t}, v{b_}, v{b_+1}, v{b_+2}")
        A(f"v_or3_b32 v{t+1}, v{b_+3}, v{b_+4}, v{b_+5}")
        for i in range(6): A(f"v_or_b32 v{b_+i}, 0x80, v{b_+i}")
        A(f"v_or_b32 v{t}, v{t}, v{t+1}")
        A(f"v_pk_add_f32 {vr(b_,2)}, {vr(b_,2)}, {vr(b_+2,2)}")
        A(f"v_lshlrev_b32 v{t}, 24, v{t}")
        A(f"v_pk_add_f32 {vr(b_,2)}, {vr(b_,2)}, {vr(b_+4,2)}")
        A(f"v_cmp_ne_u32 vcc, 0, v{t}")
        A(f"v_cvt_pk_bf16_f32 v{b_}, v{b_}, v{b_+1}")
    for k in range(2):
        A("s_mov_b32 s70, 0")
        g.lab(f"L_cp{k}")
        for i in range(3): A(f"global_load_dwordx2 {vr(RB+8*k+2*i,2)}, v2, s[42:43] offset:{512*i} sc1")
        A("s_waitcnt vmcnt(0)")
        head_sum(RB+8*k, RB+16)
        spin_tail(g, f"L_cp{k}", f"L_cp{k}d", opts.get("csl", 1))
        if k == 0: A(f"v_add_u32 v2, {R2}, v2")
    A(f"v_cmp_ne_u32 vcc, v{RB}, v{RB+8}")
    A("s_cmp_eq_u64 vcc, 0"); A("s_cbranch_scc1 L_fin")
    fallback(g, head_sum, g.wave_red)

    g.lab("L_team")
    A("s_and_b32 s5, s13, 3")
    A("v_and_b32 v0, 0xff, v0")
    A("v_mov_b32 v38, 0")
    A(f"s_mov_b32 s{STG}, 0")
    A("s_lshr_b32 s60, s2, 5")
    A("v_lshrrev_b32 v12, 3, v0")
    A("v_lshlrev_b32 v12, 5, v12")
    A("v_bfe_u32 v3, v1, 2, 1")
    A("v_lshl_add_u32 v12, v3, 10, v12")
    A("v_and_b32 v8, 3, v1")
    A("v_lshl_add_u32 v37, v8, 3, v12")
    A("v_and_b32 v12, 0xffffffdf, v12")
    A("v_lshl_add_u32 v12, v8, 4, v12")
    A("v_bfe_u32 v8, v1, 3, 1")
    A("v_lshl_add_u32 v12, v8, 3, v12")
    A("v_lshl_add_u32 v12, v3, 5, v12")
    A("s_waitcnt lgkmcnt(0)")
    A(f"s_load_dword s{ST}, s[42:43], {WS_E}")
    A("s_barrier")
    A("s_cmp_ge_u32 s13, 8"); A("s_cbranch_scc1 L_r_mod")

    def line_out_addr(v, bsh=6, ush=7):
        A(f"v_and_b32 v{v}, 1, v1")
        A(f"v_lshlrev_b32 v{v}, {bsh}, v{v}")
        A("v_lshrrev_b32 v3, 4, v1")
        A(f"v_lshl_add_u32 v{v}, v3, 4, v{v}")
        A(f"s_lshl_b32 s49, s5, {ush}")
        A("s_add_u32 s49, s49, s58")
        A(f"v_add_u32 v{v}, s49, v{v}")
    def pack_tagged():
        A("v_cvt_pk_bf16_f32 v8, v8, v9")
        A("v_cvt_pk_bf16_f32 v10, v10, v11")
        A(f"v_mov_b32 v9, s{ST}")
        A(f"v_mov_b32 v11, s{ST}")
    def go(k):
        A("v_mov_b32 v3, 1")
        A("s_mov_b64 exec, 1")
        A(f"ds_add_u32 v38, v3 offset:{L_GO+4*k}")
        A("s_mov_b64 exec, -1")

    g.T = TA
    g.lab("L_r_q")
    A("s_lshl3_add_u32 s61, s8, s60")
    A("s_lshl_b32 s48, s61, 7")
    A("s_lshl_b32 s58, s61, 8")
    A(f"s_add_u32 s58, s58, {WS_Q}")
    A("global_load_dwordx2 v[14:15], v37, s[16:17]")
    srd(g, 44, 22, 512*8192)
    A("s_cmp_ge_u32 s60, 2"); A("s_cbranch_scc1 L_q_go")
    wait_cnt(g, f"ds_read_b32 v8, v38 offset:{L_GO+4}", 8, 4, 1)
    g.lab("L_q_go")
    dma_tile64(g, 8192, WFL, opts.get("PQ", 0))
    go(0)
    tag()
    A("v_bfe_u32 v6, v1, 2, 1")
    A("v_lshlrev_b32 v6, 5, v6")
    A(f"v_add_u32 v6, {TA.RED}, v6")
    A("s_lshl_b32 s49, s5, 3")
    A("v_add_u32 v5, s49, v6")
    A("s_waitcnt vmcnt(16)")
    unpack4(g, 20, 14)
    ln_partial(g, 20)
    A("s_waitcnt vmcnt(0) lgkmcnt(0)")
    hsync(g, 9)
    ln_apply(g, 20, 24)
    A("s_lshl_b32 s49, s8, 13"); A(f"s_add_u32 s49, s49, {WS_MA}")
    A("v_lshl_add_u32 v15, v0, 4, s49")
    A("v_add_u32 v36, 0x1000, v15")
    def mod_loads():
        A("s_mov_b64 exec, s[64:65]")
        A("global_load_dwordx4 v[16:19], v15, s[42:43] sc1")
        A("s_mov_b64 exec, s[66:67]")
        A("global_load_dwordx4 v[32:35], v36, s[42:43] sc1")
        A("s_mov_b64 exec, -1")
    A("s_mov_b64 s[64:65], -1"); A("s_mov_b64 s[66:67], -1")
    mod_loads()
    tr_tile64(g)
    line_out_addr(13, 14, 6)
    act_addr(g, 14, TA.ACT, ACT_BS)
    g.stamp(1)
    A("s_mov_b32 s70, 0")
    A("s_branch L_q_c")
    g.lab("L_q_p")
    mod_loads()
    g.lab("L_q_c")
    A("s_waitcnt vmcnt(0)")
    A(f"v_cmp_ne_u32 s[64:65], s{ST}, v17"); A(f"v_cmp_ne_u32 s[68:69], s{ST}, v19"); A("s_or_b64 s[64:65], s[64:65], s[68:69]")
    A(f"v_cmp_ne_u32 s[66:67], s{ST}, v33"); A(f"v_cmp_ne_u32 s[68:69], s{ST}, v35"); A("s_or_b64 s[66:67], s[66:67], s[68:69]")
    A("s_or_b64 vcc, s[64:65], s[66:67]")
    A("s_or_b32 s64, s64, 1"); A("s_or_b32 s66, s66, 1")
    spin_tail(g, "L_q_p", "L_q_ok", opts.get("msleep", 2))
    g.stamp(3)
    unpack4(g, 28, 32, 2)
    unpack4(g, 24, 16, 2)
    for i in range(4): A(f"v_add_f32 v{28+i}, 1.0, v{28+i}")
    for i in range(4): rnd(g, 28+i)
    for i in range(4): A(f"v_mul_f32 v{20+i}, v{20+i}, v{28+i}")
    for i in range(4): rnd(g, 20+i)
    for i in range(4): A(f"v_add_f32 v{20+i}, v{20+i}, v{24+i}")
    A("v_cvt_pk_bf16_f32 v16, v20, v21")
    A("v_cvt_pk_bf16_f32 v17, v22, v23")
    A(f"ds_write_b64 v12, v[16:17] offset:{TA.ACT}")
    hsync(g, 9)
    gemv(g, 16, 14, 8)
    pack_tagged()
    guard(g, 8); guard(g, 10)
    for x in EX8: A(x)
    A("global_store_dwordx4 v13, v[8:11], s[42:43] sc1")
    A("s_mov_b64 exec, -1")
    g.stamp(4)

    g.lab("L_r_wo")
    A("s_xor_b32 s61, s60, 1")
    A("s_lshl_b32 s48, s8, 19")
    A("s_lshl_b32 s49, s61, 7")
    A("s_add_u32 s48, s48, s49")
    A("s_lshr_b32 s58, s8, 1"); A("s_lshl_b32 s58, s58, 14")
    A("s_and_b32 s49, s8, 1"); A("s_lshl_b32 s49, s49, 12"); A("s_add_u32 s58, s58, s49")
    A("s_lshl_b32 s49, s61, 9")
    A("s_add_u32 s58, s58, s49")
    A(f"s_add_u32 s58, s58, {WS_AP}")
    srd(g, 44, 24, 4096*1024)
    dma_tile64(g, 1024, WFL, opts.get("PW", 4))
    tag_bytes()
    A("s_lshl2_add_u32 s49, s8, s5"); A("s_lshl_b32 s49, s49, 11")
    A(f"s_add_u32 s49, s49, {WS_OP}")
    A("v_lshrrev_b32 v12, 5, v1")
    A("v_and_b32 v16, 31, v1")
    A("v_lshlrev_b32 v15, 16, v12")
    A("v_lshl_add_u32 v15, v16, 4, v15")
    A("v_add_u32 v15, s49, v15")
    A(f"v_mul_u32_u24 v12, {ACT_BS}, v12")
    A("v_bfe_u32 v16, v1, 3, 2")
    A("v_lshl_add_u32 v12, v16, 6, v12")
    A("v_and_b32 v16, 3, v1")
    A("v_lshl_add_u32 v12, v16, 4, v12")
    A("v_bfe_u32 v16, v1, 2, 1")
    A("v_lshl_add_u32 v12, v16, 3, v12")
    A("s_lshl_b32 s49, s5, 8")
    A("v_add_u32 v12, s49, v12")
    line_out_addr(13)
    A("v_mov_b32 v36, 0xff")
    A("s_waitcnt vmcnt(0)")
    g.stamp(5)
    hsync(g, 9, 4)
    tr_tile64(g)
    poll_lds(g, [f"ds_read_b32 v8, v38 offset:{L_ML}"], [8], 9, 8)
    if opts.get("notail"): go(0); A("s_branch L_fin")

    def sumN(n, src, dst):
        st = n // 2
        for i in range(st):
            for h in range(2):
                A(f"v_pk_add_f32 {vr(dst+4*i+2*h,2)}, {vr(src+4*i+2*h,2)}, {vr(src+4*(i+st)+2*h,2)}")
        st //= 2
        while st:
            for i in range(st):
                for h in range(2):
                    A(f"v_pk_add_f32 {vr(dst+4*i+2*h,2)}, {vr(dst+4*i+2*h,2)}, {vr(dst+4*(i+st)+2*h,2)}")
            st //= 2
    def sum8p(src, dst):
        for p in range(4):
            for h in range(2): A(f"v_pk_add_f32 {vr(dst+8*p+2*h,2)}, {vr(src+8*p+2*h,2)}, {vr(src+8*p+4+2*h,2)}")
        sum8q(dst)
    def sum8q(dst):
        for i in range(2):
            for h in range(2): A(f"v_pk_add_f32 {vr(dst+16*i+2*h,2)}, {vr(dst+16*i+2*h,2)}, {vr(dst+16*i+8+2*h,2)}")
        for h in range(2): A(f"v_pk_add_f32 {vr(dst+2*h,2)}, {vr(dst+2*h,2)}, {vr(dst+16+2*h,2)}")
    def x1_from(S):
        for i in range(4): rnd(g, S+i)
        for i in range(4): A(f"v_mul_f32 v{S+i}, v{S+i}, v{20+i}")
        for i in range(4): rnd(g, S+i)
        for i in range(4): A(f"v_add_f32 v{16+i}, v{16+i}, v{S+i}")
        for i in range(4): rnd(g, 16+i)
    TSL = opts.get("tsl", 0)
    def gather(n, load, raw, tmp, name, depth, gap, fin, msk=20, first=None):
        for i in range(n): A(f"s_mov_b64 s[{msk+2*i}:{msk+2*i+1}], {first[i] if first else -1}")
        def rnd_():
            for i in range(n):
                A(f"s_mov_b64 exec, s[{msk+2*i}:{msk+2*i+1}]")
                load(i, raw + 4*i)
            A("s_mov_b64 exec, -1")
        rnd_()
        A("s_waitcnt vmcnt(0)")
        A("s_mov_b32 s70, 0")
        A(f"s_branch {name}c")
        g.lab(name)
        rnd_()
        if gap: A(f"s_sleep {gap}")
        A(f"s_waitcnt vmcnt({n*(depth-1)})")
        g.lab(name + "c")
        for k in range(4*n): A(f"v_xor_b32 v{tmp+k}, s{TB+k%4}, v{raw+k}")
        for i in range(n): A(f"v_or3_b32 v{28+i}, v{tmp+4*i}, v{tmp+4*i+1}, v{tmp+4*i+2}")
        for i in range(n): A(f"v_or_b32 v{28+i}, v{28+i}, v{tmp+4*i+3}")
        for i in range(n): A(f"v_cmp_ne_u32_sdwa s[{msk+2*i}:{msk+2*i+1}], v{28+i}, v38 src0_sel:BYTE_0 src1_sel:DWORD")
        fin()
        A(f"s_mov_b64 vcc, s[{msk}:{msk+1}]")
        for i in range(1, n): A(f"s_or_b64 vcc, vcc, s[{msk+2*i}:{msk+2*i+1}]")
        for i in range(n): A(f"s_or_b32 s{msk+2*i}, s{msk+2*i}, 1")
        spin_tail(g, name, name + "ok", 0)
    def wo_fin():
        for i in range(12): A(f"v_or_b32 v{VA+32+i}, 0x80, v{VA+32+i}")
        for h in range(2): A(f"v_pk_add_f32 {vr(16+2*h,2)}, {vr(VA+32+2*h,2)}, {vr(VA+36+2*h,2)}")
        for h in range(2): A(f"v_pk_add_f32 {vr(16+2*h,2)}, {vr(16+2*h,2)}, {vr(VA+40+2*h,2)}")
    gather(3, lambda i, r: A(f"global_load_dwordx4 {vr(r,4)}, v15, s[42:43] offset:{512*i} sc1"), VA+48, VA+32, "L_wo_",
           opts.get("wpipe", 1), opts.get("wgap", 0), wo_fin)
    A("v_cvt_pk_bf16_f32 v8, v16, v17")
    A("v_cvt_pk_bf16_f32 v9, v18, v19")
    g.stamp(7)
    A(f"ds_write_b64 v12, v[8:9] offset:{TA.ACT}")
    NSPEC = opts.get("nspec", 4)
    gemv(g, 16, 14, 8, 12, 3, NSPEC)
    for i in range(4): A(f"v_bfi_b32 v{8+i}, v36, s{TB+i}, v{8+i}")
    for x in EX8: A(x)
    A("global_store_dwordx4 v13, v[8:11], s[42:43] sc1")
    g.stamp(2)
    go(0)
    A("s_branch L_fin")

    PG = VA + 32
    def pre_gather(offs):
        n = len(offs)
        l = g.uniq("pg"); e = g.uniq("pge")
        A("global_load_dwordx2 v[8:9], v37, s[16:17]")
        A("s_mov_b32 s70, 0")
        g.lab(l)
        for i, o in enumerate(offs):
            if -4096 <= o < 4096: A(f"global_load_dwordx4 {vr(PG+4*i,4)}, v39, s[42:43] offset:{o} sc1")
            else:
                A(f"v_add_u32 v3, {o}, v39")
                A(f"global_load_dwordx4 {vr(PG+4*i,4)}, v3, s[42:43] sc1")
        A("s_waitcnt vmcnt(0)")
        A("s_mov_b64 vcc, 0")
        for i in range(2 * n):
            A(f"v_cmp_ne_u32 s[68:69], s{ST}, v{PG+1+2*i}")
            A("s_or_b64 vcc, vcc, s[68:69]")
        spin_tail(g, l, e, 8)
    adr = [15, 4, 0, 36]
    def ap_addrs():
        for p in range(1, 4): A(f"v_add_u32 v{adr[p]}, {16384*p}, v15")
    def ap_load(i): A(f"global_load_dwordx4 {vr(VA+4*i,4)}, v{adr[i>>1]}, s[42:43] offset:{-4096 if i % 2 == 0 else 0} sc1")

    g.T = TB_
    g.lab("L_r_mod")
    A("global_load_dwordx2 v[14:15], v37, s[34:35]")
    srd(g, 44, 36, 512*6144)
    def mod_tile(first):
        A("s_lshl_b32 s48, s61, 7")
        A("s_lshl_b32 s58, s61, 9")
        A(f"s_add_u32 s58, s58, {WS_MA if first else WS_MOD}")
        dma_tile64(g, 6144, WFL, 0 if first else opts.get("PB", 6))
        if first:
            go(1)
            table()
            tag()
            A("s_waitcnt vmcnt(16)")
            mod_act()
        line_out_addr(13)
        if first:
            A("v_bfe_u32 v3, v1, 1, 3")
            A("v_lshl_add_u32 v13, v3, 13, v13")
        act_addr(g, 14, TB_.ACT, ACT_BS)
        tr64_addr(g)
        A("s_waitcnt vmcnt(0) lgkmcnt(0)")
        g.stamp(1 if first else 4)
        hsync(g, 9, 0 if first else 4)
        gemv_fused(g, 14, 8)
        pack_tagged()
        if not first:
            for x in EX8: A(x)
        A("global_store_dwordx4 v13, v[8:11], s[42:43] sc1")
        A("s_mov_b64 exec, -1")
        g.stamp(3 if first else 5)
        hsync(g, 9)
    def mod_act():
        unpack4(g, 16, 14)
        silu4(g, 16, 20)
        A("v_cvt_pk_bf16_f32 v14, v16, v17")
        A("v_cvt_pk_bf16_f32 v15, v18, v19")
        A(f"ds_write_b64 v12, v[14:15] offset:{TB_.ACT}")
    A("s_cmp_ge_u32 s60, 2"); A("s_cbranch_scc1 L_mod2")
    A("s_lshl1_add_u32 s61, s8, s60")
    mod_tile(True)
    A("s_branch L_mod3")
    g.lab("L_mod2")
    table()
    tag()
    A("s_waitcnt vmcnt(0)")
    mod_act()
    g.lab("L_mod3")
    EF = opts.get("ef", 0)
    def qfirst(): wait_cnt(g, f"ds_read_b32 v8, v38 offset:{L_CNA}", 8, 4 * opts.get("bh", 2), 4)
    wait_cnt(g, f"ds_read_b32 v8, v38 offset:{L_GO}", 8, 4, 4)
    A("s_and_b32 s61, s14, 0xff")
    A("s_cmp_ge_u32 s61, 48"); A("s_cbranch_scc1 L_r_f1")
    qfirst()
    A("s_and_b32 s61, s14, 0xff")
    g.lab("L_mod4")
    A("s_cmp_ge_u32 s61, 48"); A("s_cbranch_scc1 L_r_f1")
    mod_tile(False)
    A("s_lshr_b32 s61, s14, 24")
    A("s_or_b32 s14, s14, 0xff000000")
    A("s_branch L_mod4")

    g.lab("L_r_f1")
    A("s_bfe_u32 s61, s14, 0x80008")
    A("s_cmp_ge_u32 s61, 43"); A("s_cbranch_scc1 L_fin")
    A("s_lshl_b32 s48, s61, 6")
    A("s_lshl_b32 s58, s61, 7")
    A(f"s_add_u32 s58, s58, {WS_FP}")
    A("s_cmp_lt_u32 s5, 2")
    A("s_cselect_b32 s44, s28, s30")
    A("s_cselect_b32 s45, s29, s31")
    A(f"s_mov_b32 s46, {512*2752}")
    for h in range(2):
        A("s_and_b32 s54, s61, 1" if h == 0 else "s_andn2_b32 s54, 1, s61")
        A("v_lshrrev_b32 v2, 2, v1")
        A("v_mul_u32_u24 v2, 5504, v2")
        A("s_and_b32 s49, s5, 2")
        A("s_or_b32 s49, s49, s54")
        A("v_xor_b32 v3, s49, v1")
        A("v_and_b32 v3, 3, v3")
        A("v_lshl_add_u32 v2, v3, 4, v2")
        A("s_and_b32 s55, s5, 1")
        A(f"s_mul_i32 s49, s55, {256*2752}"); A("s_add_u32 s49, s49, s48")
        A("s_mul_i32 s50, s54, 2752"); A("s_add_u32 s49, s49, s50")
        A("s_lshr_b32 s50, s5, 1"); A("s_lshl_b32 s50, s50, 15")
        A("s_lshl_b32 s54, s54, 14"); A("s_add_u32 s50, s50, s54")
        A("s_lshl_b32 s55, s55, 13"); A("s_add_u32 s50, s50, s55")
        A(f"s_add_u32 s50, s50, {TB_.WT}")
        if h == 0:
            if EF: dma_loop(g, EF, 32*2752, "", 0)
            qfirst()
            if EF < 8: dma_loop(g, 8 - EF, 32*2752, "", opts.get("P1", 3))
        else: dma_loop(g, 8, 32*2752, WFL, opts.get("P1", 3))
    A("v_lshlrev_b32 v15, 4, v0")
    A(f"v_add_u32 v39, {WS_MOD+3*4096}, v15")
    A(f"v_add_u32 v15, {WS_AP+4096}, v15")
    A("v_lshrrev_b32 v5, 2, v0")
    A("v_lshlrev_b32 v5, 3, v5")
    A(f"v_add_u32 v5, {TB_.RED}, v5")
    A("v_lshlrev_b32 v7, 3, v1")
    A(f"v_add_u32 v7, {TB_.RED}, v7")
    A("v_and_b32 v14, 7, v1")
    A(f"v_mul_u32_u24 v14, {ACT_BS}, v14")
    A("v_lshrrev_b32 v3, 4, v1")
    A("v_lshl_add_u32 v14, v3, 4, v14")
    A("v_bfe_u32 v6, v1, 2, 2")
    A("v_lshl_add_u32 v6, v3, 3, v6")
    A(f"v_mul_u32_u24 v6, {W2S}, v6")
    A("v_and_b32 v8, 3, v1")
    A("v_lshl_add_u32 v6, v8, 3, v6")
    A("s_lshl_b32 s49, s5, 8"); A(f"s_add_u32 s49, s49, {TB_.WT}")
    A("v_add_u32 v6, s49, v6")
    A("v_lshlrev_b32 v10, 3, v0")
    A(f"v_add_u32 v10, {L_HZ}, v10")
    A("v_mov_b32 v8, 0"); A("v_mov_b32 v9, 0")
    A("ds_write_b64 v10, v[8:9]")
    def f1_addrs():
        A("v_and_b32 v39, 1, v1")
        A("v_lshlrev_b32 v39, 6, v39")
        A(f"v_add_u32 v39, {L_HH}, v39")
        A("v_lshrrev_b32 v3, 4, v1")
        A("v_lshl_add_u32 v37, v3, 4, v39")
        A("v_bfe_u32 v3, v1, 1, 3")
        A("v_lshlrev_b32 v3, 7, v3")
        A("v_sub_u32 v37, v37, v3")
        A("v_bfe_u32 v3, v1, 4, 1")
        A("v_lshl_add_u32 v39, v3, 3, v39")
        A("v_lshrrev_b32 v3, 5, v1")
        A("v_lshl_add_u32 v39, v3, 2, v39")
        A("s_lshl_b32 s49, s5, 4")
        A("v_add_u32 v39, s49, v39")
    line_out_addr(13, 6, 17)
    A("v_bfe_u32 v3, v1, 1, 3")
    A("v_lshl_add_u32 v13, v3, 14, v13")
    A("v_lshrrev_b32 v2, 3, v1")
    A("v_lshlrev_b32 v2, 6, v2")
    A("v_bfe_u32 v3, v1, 2, 1")
    A("v_lshl_add_u32 v2, v3, 14, v2")
    A("v_and_b32 v8, 2, v1")
    A("v_or_b32 v3, v3, v8")
    A("v_xor_b32 v3, s5, v3")
    A("v_lshl_add_u32 v2, v3, 4, v2")
    A("v_lshl_add_u32 v2, v8, 14, v2")
    A("v_and_b32 v3, 1, v1")
    A("v_lshl_add_u32 v2, v3, 3, v2")
    A(f"v_add_u32 v2, {TB_.WT}, v2")
    A("s_waitcnt vmcnt(0)")
    hsync(g, 9, 4)
    tr_reads(g, 16, 1024, 512)
    hsync(g, 9)
    srd(g, 44, 32, 1376*1024)
    A("v_lshlrev_b32 v2, 4, v1")
    A("s_lshl2_add_u32 s49, s61, s5"); A("s_lshl_b32 s49, s49, 13")
    A(f"s_mul_i32 s50, s5, {8*W2S}")
    A(f"s_add_u32 s50, s50, {TB_.WT}")
    dma_loop(g, 8, 1024, WFL, opts.get("P2", 4), W2S)
    tag_bytes()
    g.stamp(6)
    if opts.get("notail"): A("s_branch L_fin")
    ap_addrs()
    pre_gather([-4096, 0, 4096])
    f1_addrs()
    unpack4(g, 16, 8)
    unpack4(g, 20, PG, 2)
    unpack4(g, 28, PG+8, 2)
    for i in range(4): A(f"v_add_f32 v{28+i}, 1.0, v{28+i}")
    A("v_cvt_pk_bf16_f32 v8, v28, v29"); A("v_cvt_pk_bf16_f32 v9, v30, v31")
    A(f"v_mov_b32 v{PG+5}, v{PG+6}")
    A(f"ds_write_b64 v12, v[8:9] offset:{TB_.ACT+2*ACT_BS}")
    A(f"ds_write_b64 v12, {vr(PG+4,2)} offset:{TB_.ACT+4*ACT_BS}")
    for i in range(4): rnd(g, 28+i)
    for i in range(4): A(f"v_mul_f32 v{24+i}, v{20+i}, v{28+i}")
    for i in range(4): A(f"v_mul_f32 v{28+i}, v{16+i}, v{28+i}")
    A("s_waitcnt lgkmcnt(0)")
    A("s_waitcnt vmcnt(0)")
    wait_cnt(g, f"ds_read_b32 v8, v38 offset:{L_GO}", 8, 8, 2)
    g.stamp(9)
    S = VA + 32
    A("s_mov_b32 s70, 0")
    A("s_mov_b32 s71, 15")
    APD = opts.get("apipe", 1)
    def ap_round():
        for p in range(4):
            if APD == 1:
                l = g.uniq("fl")
                A(f"s_bitcmp1_b32 s71, {p}"); A(f"s_cbranch_scc0 {l}")
                ap_load(2*p); ap_load(2*p+1)
                g.lab(l)
            else:
                A(f"s_bitcmp1_b32 s71, {p}"); A("s_cselect_b64 exec, -1, 1")
                ap_load(2*p); ap_load(2*p+1)
        if APD > 1: A("s_mov_b64 exec, -1")
    ap_round()
    A("s_waitcnt vmcnt(0)")
    A("s_branch L_f1_c")
    g.lab("L_f1_p")
    A("s_add_u32 s70, s70, 1")
    A(f"s_cmp_ge_u32 s70, {SPIN_MAX}")
    A("s_cbranch_scc1 L_f1_ok")
    ap_round()
    if opts.get("agap", 0): A(f"s_sleep {opts.get('agap', 0)}")
    A(f"s_waitcnt vmcnt({8*(APD-1)})")
    g.lab("L_f1_c")
    for p in range(4):
        l = g.uniq("fc")
        A(f"s_bitcmp1_b32 s71, {p}"); A(f"s_cbranch_scc0 {l}")
        B_ = S + 8 * p
        for k in range(8): A(f"v_xor_b32 v{B_+k}, s{TB+k%4}, v{VA+8*p+k}")
        A(f"v_or3_b32 v8, v{B_}, v{B_+1}, v{B_+2}")
        A(f"v_or3_b32 v9, v{B_+3}, v{B_+4}, v{B_+5}")
        A(f"v_or3_b32 v8, v8, v{B_+6}, v{B_+7}")
        for h in range(2): A(f"v_pk_add_f32 {vr(B_+2*h,2)}, {vr(B_+2*h,2)}, {vr(B_+4+2*h,2)}")
        A("v_or_b32 v8, v8, v9")
        A("v_cmp_ne_u32_sdwa vcc, v8, v38 src0_sel:BYTE_0 src1_sel:DWORD")
        A("s_cmp_lg_u64 vcc, 0"); A(f"s_cbranch_scc1 {l}")
        A(f"s_bitset0_b32 s71, {p}")
        g.lab(l)
    A("s_cmp_lg_u32 s71, 0")
    A("s_cbranch_scc1 L_f1_p")
    g.lab("L_f1_ok")
    sum8q(S)
    g.stamp(7)
    for h in range(2): A(f"v_pk_fma_f32 {vr(8+2*h,2)}, {vr(S+2*h,2)}, {vr(24+2*h,2)}, {vr(28+2*h,2)}")
    A("v_cvt_pk_bf16_f32 v8, v8, v9")
    A("v_cvt_pk_bf16_f32 v9, v10, v11")
    A(f"ds_write_b64 v12, v[8:9] offset:{TB_.ACT}")
    for h in range(2): A(f"v_pk_fma_f32 {vr(16+2*h,2)}, {vr(S+2*h,2)}, {vr(20+2*h,2)}, {vr(16+2*h,2)}")
    x = 16
    dpp = lambda r, mod: f"v_add_f32_dpp v{r}, v{r}, v{r} {mod} row_mask:0xf bank_mask:0xf"
    for t in (f"v_add_f32 v24, v{x}, v{x+1}", f"v_mul_f32 v25, v{x}, v{x}", f"v_add_f32 v26, v{x+2}, v{x+3}", f"v_mul_f32 v27, v{x+2}, v{x+2}",
              f"v_fmac_f32 v25, v{x+1}, v{x+1}", f"v_fmac_f32 v27, v{x+3}, v{x+3}", "v_pk_add_f32 v[24:25], v[24:25], v[26:27]", "s_nop 1",
              dpp(24, "quad_perm:[1,0,3,2]"), dpp(25, "quad_perm:[1,0,3,2]"), "s_nop 0",
              dpp(24, "quad_perm:[2,3,0,1]"), dpp(25, "quad_perm:[2,3,0,1]")): A(t)
    A("ds_write_b64 v5, v[24:25]")
    hsync(g, 10, 0, [f"ds_read_b128 {vr(S+4*m,4)}, v14 offset:{TB_.ACT+64*m}" for m in range(min(NSPEC, 4))])
    DF = 32
    q = []
    def rd(m): A(f"ds_read_b128 {vr(S+4*(m%8),4)}, v14 offset:{TB_.ACT+64*m}"); q.append(("r", m))
    def need(op):
        i = q.index(op); A(f"s_waitcnt lgkmcnt({len(q)-1-i})"); del q[:i+1]
    def w2rd(c):
        for h in range(2): A(f"ds_read_b64_tr_b16 {vr(VW+4*c+2*h,2)}, v6 offset:{32*c+4*h*W2S}"); q.append(("w", c, h))
    for m in range(4):
        if m < NSPEC: q.append(("r", m))
        else: rd(m)
    A("ds_read_b64 v[20:21], v7"); q.append(("s",))
    for m in range(4, 8): rd(m)
    fill = {4: [dpp(20, "quad_perm:[2,3,0,1]"), dpp(21, "quad_perm:[2,3,0,1]")],
            5: [dpp(20, "row_ror:4"), dpp(21, "row_ror:4")],
            6: [dpp(20, "row_ror:8"), dpp(21, "row_ror:8")],
            7: ["v_mov_b32 v22, v20", "v_mov_b32 v23, v21"],
            8: ["v_permlane16_swap_b32 v22, v20", "v_permlane16_swap_b32 v23, v21"],
            9: ["v_pk_add_f32 v[20:21], v[20:21], v[22:23]", "v_mov_b32 v22, v20", "v_mov_b32 v23, v21"],
            10: ["v_permlane32_swap_b32 v22, v20", "v_permlane32_swap_b32 v23, v21"],
            11: ["v_pk_add_f32 v[20:21], v[20:21], v[22:23]", f"v_mul_f32 v20, 0x{f2u(-1/512):08x}, v20"],
            12: [f"v_mul_f32 v21, 0x{f2u(1/512):08x}, v21", "v_fma_f32 v21, -v20, v20, v21"],
            13: ["v_max_f32 v21, 0, v21", f"v_add_f32 v21, 0x{EPS:08x}, v21"],
            14: ["v_rsq_f32 v21, v21"]}
    for m in range(16):
        if ("r", m) in q: need(("r", m))
        else: A("s_nop 0")
        c = "0" if m == 0 else vr(DF, 4)
        A(f"v_mfma_f32_16x16x32_bf16 {vr(DF,4)}, {vr(VW+4*m,4)}, {vr(S+4*(m%8),4)}, {c}")
        if 1 <= m <= 8: rd(7 + m)
        for t in fill.get(m, []): A(t)
    for c in range(4): w2rd(c)
    for i in range(4): A(f"v_fmac_f32_dpp v{DF+i}, v{DF+i}, v20 row_shl:2 row_mask:0xf bank_mask:0x1")
    for i in range(4): A(f"v_mul_f32 v{8+i}, v{DF+i}, v21")
    for i in range(4): A(f"v_add_f32_dpp v{8+i}, v{DF+i}, v{8+i} row_shl:4 row_mask:0xf bank_mask:0xf")
    A("s_waitcnt lgkmcnt(4)")
    for c in range(4, 8): w2rd(c)
    A("v_permlane32_swap_b32 v8, v10")
    A("v_permlane32_swap_b32 v9, v11")
    for i in range(2): A(f"v_mul_f32 v{20+i}, 0x{LOG2E ^ 0x80000000:08x}, v{8+i}")
    for i in range(2): A(f"v_exp_f32 v{20+i}, v{20+i}")
    for i in range(2): A(f"v_mul_f32 v{8+i}, v{8+i}, v{10+i}")
    for i in range(2): A(f"v_add_f32 v{20+i}, 1.0, v{20+i}")
    for i in range(2): A(f"v_rcp_f32 v{20+i}, v{20+i}")
    for x in EX8: A(x)
    for i in range(2): A(f"v_mul_f32 v{8+i}, v{8+i}, v{20+i}")
    A("v_cvt_pk_bf16_f32 v8, v8, v9")
    A("ds_write_b32 v39, v8")
    A("s_mov_b64 exec, -1")
    rds = [f"ds_read_b128 {vr(S+4*c,4)}, v37 offset:{128*c}" for c in range(8)]
    A("s_waitcnt lgkmcnt(4)")
    hsync(g, 10, 0, rds[:NSPEC])
    for r in rds[NSPEC:]: A(r)
    A("v_mov_b32 v3, 0xff")
    for c in range(8):
        A(f"s_waitcnt lgkmcnt({7-c})")
        A(f"v_mfma_f32_16x16x32_bf16 v[8:11], {vr(VW+4*c,4)}, {vr(S+4*c,4)}, {'0' if c == 0 else 'v[8:11]'}")
    A("s_nop 7")
    for i in range(4): A(f"v_bfi_b32 v{8+i}, v3, s{TB+i}, v{8+i}")
    A("global_store_dwordx4 v13, v[8:11], s[42:43] sc1")
    g.stamp(2)
    A("s_branch L_fin")

    g.lab("L_r_f2")
    if opts.get("notail"): A("s_branch L_fin")
    A("v_bfe_u32 v12, v1, 2, 1")
    A("v_and_b32 v14, 3, v1")
    A("s_lshl_b32 s49, s61, 5")
    A("v_lshl_add_u32 v3, v14, 3, s49")
    A("v_lshl_add_u32 v37, v12, 10, v3")
    A("v_and_b32 v15, 7, v1")
    A("s_lshl_b32 s49, s61, 7")
    A("v_lshl_add_u32 v15, v15, 4, s49")
    A(f"v_add_u32 v39, {WS_MOD+3*4096}, v15")
    A("v_bfe_u32 v3, v1, 3, 1")
    A("v_lshl_add_u32 v15, v3, 12, v15")
    A("v_lshrrev_b32 v3, 4, v1")
    A("v_lshl_add_u32 v15, v3, 14, v15")
    A(f"v_add_u32 v15, {WS_AP}, v15")
    A("s_lshl_b32 s49, s61, 14"); A(f"s_add_u32 s49, s49, {WS_FP+2048}")
    A("v_lshl_add_u32 v36, v1, 4, s49")

    A("global_load_dword v11, v37, s[38:39]")
    pre_gather([-4096, 8192])
    unpack4(g, 16, 8)
    unpack4(g, 20, PG, 2)
    unpack4(g, 24, PG+4, 2)
    wait_cnt(g, f"ds_read_b32 v8, v38 offset:{L_GO}", 8, 8, 2)
    g.stamp(9)
    def src_sum(r):
        A("s_nop 1")
        for i in range(4): A(f"v_add_f32_dpp v{r+i}, v{r+i}, v{r+i} row_ror:8 row_mask:0xf bank_mask:0xf")
        for sw in ("v_permlane16_swap_b32", "v_permlane32_swap_b32"):
            for i in range(4): A(f"v_mov_b32 v{r+4+i}, v{r+i}")
            for i in range(4): A(f"{sw} v{r+4+i}, v{r+i}")
            for i in range(4): A(f"v_add_f32 v{r+i}, v{r+i}, v{r+4+i}")
    A("s_mov_b32 s70, 0")
    g.lab("L_f2_a")
    A(f"global_load_dwordx4 {vr(S,4)}, v15, s[42:43] sc1")
    A("s_waitcnt vmcnt(0)")
    for k in range(4): A(f"v_xor_b32 v{S+k}, s{TB+k}, v{S+k}")
    A(f"v_or3_b32 v3, v{S}, v{S+1}, v{S+2}")
    A(f"v_or_b32 v3, v3, v{S+3}")
    A("v_lshlrev_b32 v3, 24, v3")
    A("v_cmp_ne_u32 vcc, 0, v3")
    spin_tail(g, "L_f2_a", "L_f2_ad", 4)
    A("s_cmp_lg_u32 s61, 0")
    A("s_cbranch_scc1 L_f2_e")
    A(f"v_mov_b32 v10, s{ST}")
    A("s_mov_b64 exec, 1")
    A(f"global_store_dword v38, v10, s[42:43] offset:{WS_E} sc1")
    A("s_mov_b64 exec, -1")
    g.lab("L_f2_e")
    src_sum(S)
    x1_from(S)
    for i in range(4): A(f"v_mov_b32 v{VA+32+20+i}, s{TB+i}")
    def f2_fin():
        for p in range(3):
            for h in range(2): A(f"v_pk_add_f32 {vr(VA+8*p+2*h,2)}, {vr(VA+8*p+2*h,2)}, {vr(VA+8*p+4+2*h,2)}")
        for p in (1, 2):
            for h in range(2): A(f"v_pk_add_f32 {vr(VA+2*h,2)}, {vr(VA+2*h,2)}, {vr(VA+8*p+2*h,2)}")
    gather(6, lambda i, r: A(f"global_load_dwordx4 {vr(r,4)}, v36, s[42:43] offset:{1024*i-2048} sc1"), VA+32, VA, "L_f2_p",
           opts.get("fpipe", 2), opts.get("fgap", 2), f2_fin, 20, [-1]*5 + ["0xffffff"])
    g.stamp(7)
    src_sum(VA)
    for i in range(4): rnd(g, VA+i)
    for i in range(4): A(f"v_mul_f32 v{VA+i}, v{VA+i}, v{24+i}")
    for i in range(4): rnd(g, VA+i)
    for i in range(4): A(f"v_add_f32 v{8+i}, v{VA+i}, v{16+i}")
    A("v_cvt_pk_bf16_f32 v8, v8, v9")
    A("v_cvt_pk_bf16_f32 v9, v10, v11")
    A("s_mov_b64 exec, 0xff")
    A("global_store_dwordx2 v37, v[8:9], s[38:39]" + ("" if opts.get("noosc") else " sc1"))
    A("s_mov_b64 exec, 1")
    A(f"v_mov_b32 v10, s{ST}")
    A("s_lshl_b32 s49, s61, 7"); A(f"s_add_u32 s49, s49, {WS_DN}")
    A("v_mov_b32 v11, s49")
    if not opts.get("nodn"): A("global_store_dword v11, v10, s[42:43] sc1")
    g.stamp(2)

    g.lab("L_fin")
    if opts.get("stamps"):
        A("s_waitcnt vmcnt(0)")
        g.stamp(8)
        dump_all(g, [SLOC])
    g.lab("L_end")
    A("s_endpgm")
    g.L.append(".p2align 7")
    g.lab("L_table")
    J = jobs()
    for j in range(8):
        A(".long " + ", ".join(f"0x{J[x, j][0] | J[x, j][1] << 8 | J[x, j][2] << 16 | J[x, j][3] << 24:08x}" for x in range(8)))
    g.lab("L_touch")
    odd = [1, 3, 5, 7]; evn = [0, 2, 4, 6]
    ch = [(0, t, c) for c in odd + evn for t in (0, 1)] + [(1, t, c) for c in evn + odd for t in (0, 1)] + [(1, 3, c) for c in odd + evn]
    ch += [(1, t, c) for c in odd for t in (2, 4, 5, 6, 7)] + [(1, t, c) for c in evn for t in (2, 4, 5, 6, 7)]
    ch = ch[:opts.get("nch", 60)]
    slots = [idx for idx in range(32) if idx & 3 != 3]
    TT = {sl: 0x80808080 for sl in range(32)}
    for n, (mx, t, c) in enumerate(ch):
        k, sl = divmod(n, len(slots))
        if k < NT: TT[slots[sl]] = TT[slots[sl]] & ~(0xff << 8*k) | (c | t << 3 | mx << 6) << 8*k
    for i in range(0, 32, 8):
        A(".long " + ", ".join(f"0x{TT[i+a]:08x}" for a in range(8)))
    g.L.append(f'''.section .rodata,"a"
.p2align 6
.amdhsa_kernel {KNAME}
  .amdhsa_next_free_vgpr 168
  .amdhsa_next_free_sgpr 102
  .amdhsa_accum_offset 168
  .amdhsa_group_segment_fixed_size 0
  .amdhsa_kernarg_size 112
  .amdhsa_user_sgpr_count 2
  .amdhsa_user_sgpr_kernarg_segment_ptr 1
  .amdhsa_system_sgpr_workgroup_id_x 1
.end_amdhsa_kernel''')
    opts["_jobs"] = J
    return "\n".join(g.L) + "\n"

if __name__ == "__main__":
    import os
    here = os.path.dirname(os.path.abspath(__file__))
    opts = {"ref": os.path.join(here, "..", KNAME[:-7] + ".s.ref")}
    out = sys.argv[1]
    for kv in sys.argv[2:]:
        k, v = kv.split("=")
        try: v = int(v)
        except ValueError:
            try: v = float(v)
            except ValueError: pass
        opts[k] = v
    open(out, "w").write(gen(opts))
```

```python
import sys, struct

KNAME = "adaLN_cond__sliding_block_cached__glu_gated_swiglu__decode_kernel"

def f2u(x): return struct.unpack("<I", struct.pack("<f", x))[0]
LOG2E = f2u(1.4426950408889634)
SCALE = f2u(128 ** -0.5)
EPS = f2u(1e-5)
ZERO_GAP = 93.0

WS_E   = 0x00000
WS_HDR = 0x00400
WS_DN  = 0x07000
WS_MOD = 0x01000
WS_Q   = 0x08000
WS_S1  = 0x10000
WS_S2  = 0x18000
WS_OP  = 0x20000
WS_AP  = 0x40000
WS_FP  = 0x180000
WS_OQ  = 0x80000
WS_MA  = 0xe0000
R2     = WS_OQ - WS_OP
WS_STAMP = 0x100000
ACT_BS = 1056
NS_   = 11
L_QV  = 0
L_ML  = L_QV + 256
L_GO  = L_ML + 8
L_SCN = L_ML + 16
L_MX  = L_ML + 20
L_ECN = L_ML + 24
L_E0  = L_ML + 28
L_RM  = L_ML + 32
L_SN  = L_ML + 48
L_TK  = L_ML + 52
L_CNA = L_ML + 56
L_CNB = L_ML + 60
L_E1  = L_ML + 64
L_S8  = L_ML + 128
L_S4  = L_S8 + 64
L_ST  = L_S4 + 64
L_OP  = L_ST + 512
L_OP1 = L_OP + 512 * NS_
L_VX  = L_OP1 + 512 * NS_
class Team: pass
TA, TB_ = Team(), Team()
TA.CNT, TB_.CNT = L_CNA, L_CNB
TA.ACT = L_OP
TA.RED = TA.ACT + 2 * ACT_BS
TB_.ACT = TA.RED + 64
TB_.RED = TB_.ACT + 6 * ACT_BS
L_HZ  = TB_.RED + 512
L_HH  = L_HZ + 7 * 128
TA.WT = (L_HZ + 2048 + 1023) // 1024 * 1024
TB_.WT = TA.WT + 65536
W2S   = 1024 + 32
LDS_BYTES = TB_.WT + 65536
assert LDS_BYTES <= 163840 and L_VX + 2048 * NS_ <= LDS_BYTES and L_ST + 128 <= L_S4 + 512
assert all(x % 16 == 0 for x in (L_S8, L_ST, L_OP, L_VX, TA.ACT, TA.RED, TB_.ACT, TB_.RED, L_HZ, L_E1))

def jobs():
    J = {}; nf = 0
    for x in range(8):
        six = x in (1, 3, 7)
        mb = sorted(range(16 + 4 * x, 20 + 4 * x), key=lambda t: t % 8 != 3)
        own = {0: mb[0:2], 1: mb[2:4]} if six else {0: mb[0:1], 1: mb[1:2], 2: mb[2:4]}
        for j in range(8):
            m = own.get(j, []) + [255, 255]
            f = 255
            if j >= (2 if six else 3): f = nf; nf += 1
            J[x, j] = (m[0], f, 4 * x + (j & 3) if j in (0, 1, 2, 7) else 255, m[1])
    assert nf == 43 and sorted(v[2] for v in J.values())[:32] == list(range(32))
    return J
SPIN_MAX = 1 << 18
ST, SLOC, SXCC = 74, 75, 76

NOTES = {
    "L_stream": "streaming waves: K (1 KB per load, bounded number in flight), then the V rows of the keys on the row list",
    "L_work": "background work of a streaming wave between two K loads: fetch q, first half of the scores, first row list",
    "L_ks": "one K step: background work, then wait until few enough loads are in flight",
    "L_vs": "one V step",
    "L_x1": "second half of the scores, max / sum of this wave, the rows near the top first, more rows for the list",
    "L_snap": "the rows near the top give the preliminary partial output",
    "L_hand": "list used up: with the true row max, add every remaining key whose weight is not exactly zero",
    "L_epi": "all rows consumed: reduce over the lanes, leave the final partial output in LDS; the last wave publishes the sum",
    "L_pub": "wave 0 of a streaming workgroup: LDS set-up, exchange of the softmax statistics, preliminary output",
    "L_serv": "service workgroup",
    "L_touch": "per streaming workgroup: pieces of the first weights to pull into L2",
    "L_chk": "third streaming workgroup: final partial output; the head's final output against the preliminary one, bit by bit",
    "L_slow": "fallback: everything behind the attention again, from the final outputs, by this wave alone",
    "L_team": "service workgroup: two teams of four waves, MFMA mat-vecs on weight tiles staged by LDS-DMA",
    "L_r_q": "team A: LayerNorm + modulation + 64 columns of h @ wq",
    "L_r_wo": "team A: 512 x 64 tile of wo",
    "L_r_mod": "team B: 64 columns of silu(c) @ w_mod (shift / scale of the first block first)",
    "L_r_f1": "team B: 32 columns of w1 and w3, SwiGLU, their 32 rows of w2",
    "L_r_f2": "service workgroup, wave 1: 16 output columns: residuals, sum of the down-projection partials; advances the epoch word",
    "L_table": "per service workgroup: modulation tile | gate/up tile << 8 | output tile << 16",
}
class G:
    def __init__(s, opts):
        s.L = []; s.o = opts; s.n = 0; s.T = None
    def A(s, t): s.L.append("  " + t)
    def lab(s, t):
        if t in NOTES: s.L.append("; ---- " + NOTES[t])
        s.L.append(t + ":")
    def C(s, t): s.L.append("; ---- " + t)
    def uniq(s, p): s.n += 1; return f"L_{p}_{s.n}"
    def stamp(s, idx, lvl=1):
        m = s.o.get("stamps", 0)
        if m == 3 and lvl != 3 and idx not in (6,): return
        if m and (m == lvl or (idx in (0, 6, 8) and lvl == 1)):
            s.A(f"s_memrealtime s[{80+2*idx}:{81+2*idx}]")

def vr(a, n): return f"v[{a}:{a+n-1}]"
def rnd(g, d, s=None): g.A(f"v_cvt_pk_bf16_f32 v{d}, 0, v{s if s is not None else d}")

def spin_tail(g, l, e, sleep, mult=1):
    A = g.A
    A("s_cmp_eq_u64 vcc, 0")
    A(f"s_cbranch_scc1 {e}")
    if sleep: A(f"s_sleep {sleep}")
    A("s_add_u32 s70, s70, 1")
    A(f"s_cmp_lt_u32 s70, {SPIN_MAX*mult}")
    A(f"s_cbranch_scc1 {l}")
    g.lab(e)

def chk_sentinel(g, regs, tmp):
    A = g.A
    rs = list(regs)
    if len(rs) == 1:
        A(f"v_cmp_eq_u32 vcc, -1, v{rs[0]}")
        return
    if len(rs) == 2:
        A(f"v_max_u32 v{tmp}, v{rs[0]}, v{rs[1]}"); rs = []
    else:
        A(f"v_max3_u32 v{tmp}, v{rs[0]}, v{rs[1]}, v{rs[2]}"); rs = rs[3:]
    while len(rs) >= 2:
        A(f"v_max3_u32 v{tmp}, v{tmp}, v{rs[0]}, v{rs[1]}"); rs = rs[2:]
    if rs: A(f"v_max_u32 v{tmp}, v{tmp}, v{rs[0]}")
    A(f"v_cmp_eq_u32 vcc, -1, v{tmp}")

def poll_lds(g, loads, regs, tmp, sleep):
    A = g.A
    l = g.uniq("pl"); e = g.uniq("pld")
    A("s_mov_b32 s70, 0")
    g.lab(l)
    for x in loads: A(x)
    A("s_waitcnt lgkmcnt(0)")
    chk_sentinel(g, regs, tmp)
    spin_tail(g, l, e, sleep, 4)

def wait_cnt(g, load, reg, target, sleep, mask=None):
    A = g.A
    l = g.uniq("sn"); e = g.uniq("snd")
    A("s_mov_b32 s70, 0")
    g.lab(l)
    A(load)
    A("s_waitcnt lgkmcnt(0)")
    if mask: A(f"v_and_b32 v{reg}, 0x{mask:x}, v{reg}")
    A(f"v_cmp_gt_u32 vcc, 0x{target:x}, v{reg}")
    spin_tail(g, l, e, sleep, 8)

def pub_local(g, ins):
    A = g.A
    l = g.uniq("pf"); e = g.uniq("pe")
    A(f"s_cmp_eq_u32 s{SLOC}, 1")
    A(f"s_cbranch_scc0 {l}")
    A(ins)
    A(f"s_branch {e}")
    g.lab(l)
    A(ins + " sc1")
    g.lab(e)

def hs_signal(g, vt2):
    A = g.A
    A(f"v_mov_b32 v{vt2}, 1")
    A("s_mov_b64 exec, 1")
    A(f"ds_add_u32 v38, v{vt2} offset:{g.T.CNT}")
    A("s_mov_b64 exec, -1")
def hs_wait(g, target, vt2, sleep=1):
    wait_cnt(g, f"ds_read_b32 v{vt2}, v38 offset:{g.T.CNT}", vt2, target, sleep)

STG = 77
def hsync(g, vt, sleep=0, reads=()):
    A = g.A
    l = g.uniq("hy"); e = g.uniq("hyd")
    A(f"s_add_u32 s{STG}, s{STG}, 4")
    hs_signal(g, vt)
    A("s_mov_b32 s70, 0")
    g.lab(l)
    A(f"ds_read_b32 v{vt}, v38 offset:{g.T.CNT}")
    for r in reads: A(r)
    A(f"s_waitcnt lgkmcnt({len(reads)})")
    A(f"v_cmp_gt_u32 vcc, s{STG}, v{vt}")
    A("s_cmp_eq_u64 vcc, 0")
    A(f"s_cbranch_scc1 {e}")
    if reads: A("s_waitcnt lgkmcnt(0)")
    if sleep: A(f"s_sleep {sleep}")
    A("s_add_u32 s70, s70, 1")
    A(f"s_cmp_lt_u32 s70, {SPIN_MAX*8}")
    A(f"s_cbranch_scc1 {l}")
    g.lab(e)

OPA = 2 * NS_ + 12
def op_publish(g, lds, R, zero, off, local):
    A = g.A
    SCB = R + 2 * NS_; AD = R + OPA
    A(f"v_lshlrev_b32 v{AD}, 3, v1")
    for i in range(3): A(f"ds_read_b128 {vr(SCB+4*i,4)}, v{zero} offset:{L_S8+16*i}")
    for i in range(NS_): A(f"ds_read_b64 {vr(R+2*i,2)}, v{AD} offset:{lds+512*i}")
    A("s_lshl_b32 s68, s6, 2"); A("s_add_u32 s68, s68, s7")
    A("s_lshl_b32 s68, s68, 9"); A(f"s_add_u32 s68, s68, {WS_OP+off}")
    A(f"v_add_u32 v{AD}, s68, v{AD}")
    A(f"v_and_b32 v{AD+1}, 1, v1")
    A(f"v_lshlrev_b32 v{AD+1}, 4, v{AD+1}")
    A(f"v_lshrrev_b32 v{AD+1}, v{AD+1}, s{ST}")
    A(f"v_lshrrev_b32 v{AD+2}, 8, v{AD+1}")
    A("s_movk_i32 s69, 0xff")
    def sel(i): return f"op_sel:[0,{i&1},0] op_sel_hi:[1,{i&1},1]"
    for i in range(NS_):
        A(f"s_waitcnt lgkmcnt({NS_-1-i})")
        sp = vr(SCB + (i & ~1), 2); acc = vr(R + 2*(i & 1), 2)
        if i < 2: A(f"v_pk_mul_f32 {acc}, {vr(R+2*i,2)}, {sp} op_sel:[0,{i&1}] op_sel_hi:[1,{i&1}]")
        else: A(f"v_pk_fma_f32 {acc}, {vr(R+2*i,2)}, {sp}, {acc} {sel(i)}")
    A(f"v_pk_add_f32 {vr(R,2)}, {vr(R,2)}, {vr(R+2,2)}")
    A(f"v_bfi_b32 v{R}, s69, v{AD+1}, v{R}")
    A(f"v_bfi_b32 v{R+1}, s69, v{AD+2}, v{R+1}")
    if local: pub_local(g, f"global_store_dwordx2 v{AD}, {vr(R,2)}, s[42:43]")
    else: A(f"global_store_dwordx2 v{AD}, {vr(R,2)}, s[42:43] sc1")

def dma_loop(g, n, step, flags, pace=0, lstep=1024):
    A = g.A
    l = g.uniq("dma"); e = g.uniq("dmae")
    if isinstance(n, int):
        A(f"s_add_u32 s51, s50, {n*lstep}")
    else:
        A(f"s_add_u32 s51, s50, {n}")
        A("s_cmp_lt_u32 s50, s51")
        A(f"s_cbranch_scc0 {e}")
    g.lab(l)
    A("s_mov_b32 m0, s50")
    A(f"s_add_u32 s50, s50, {lstep}")
    if not (g.o.get("nodma") and pace): A(f"buffer_load_dwordx4 v2, s[44:47], s49 offen {flags} lds")
    A(f"s_add_u32 s49, s49, {step}")
    if pace: A(f"s_waitcnt vmcnt({pace-1})")
    A("s_cmp_lt_u32 s50, s51")
    A(f"s_cbranch_scc1 {l}")
    g.lab(e)

VW, VA = 40, 104

def srd(g, d, base, nbytes):
    A = g.A
    A(f"s_mov_b32 s{d}, s{base}")
    A(f"s_mov_b32 s{d+1}, s{base+1}")
    A(f"s_mov_b32 s{d+2}, {nbytes}")
    A(f"s_mov_b32 s{d+3}, 0x20000")

def dma_tile64(g, stride, flags, pace=0):
    A = g.A
    A("v_lshrrev_b32 v2, 3, v1")
    A("v_and_b32 v3, 6, v2")
    A("v_xor_b32 v3, v3, v1")
    A(f"v_mul_u32_u24 v2, {stride}, v2")
    A("v_and_b32 v3, 7, v3")
    A("v_lshl_add_u32 v2, v3, 4, v2")
    A(f"s_mul_i32 s49, s5, {128*stride}")
    A("s_lshl_b32 s50, s5, 14")
    A("s_add_u32 s49, s49, s48")
    A(f"s_add_u32 s50, s50, {g.T.WT}")
    dma_loop(g, 16, 8*stride, flags, pace)

def tr64_addr(g):
    A = g.A
    A("v_lshrrev_b32 v2, 2, v1")
    A("v_bfe_u32 v3, v1, 1, 1")
    A("s_lshl_b32 s49, s5, 1")
    A("v_or_b32 v3, s49, v3")
    A("v_and_b32 v10, 6, v2")
    A("v_xor_b32 v3, v3, v10")
    A("v_lshlrev_b32 v2, 7, v2")
    A("v_lshl_add_u32 v2, v3, 4, v2")
    A("v_and_b32 v3, 1, v1")
    A("v_lshl_add_u32 v2, v3, 3, v2")
    A(f"v_add_u32 v2, {g.T.WT}, v2")
def tr_reads(g, nk, mstep, hstep):
    A = g.A
    for m in range(nk):
        for h in range(2):
            A(f"ds_read_b64_tr_b16 {vr(VW+4*m+2*h,2)}, v2 offset:{m*mstep+h*hstep}")
        if m >= 5: A("s_waitcnt lgkmcnt(10)")
    A("s_waitcnt lgkmcnt(0)")
def tr_tile64(g):
    tr64_addr(g)
    tr_reads(g, 16, 4096, 2048)
def gemv_fused(g, vaddr, D):
    A = g.A
    def rd(m):
        for h in range(2):
            A(f"ds_read_b64_tr_b16 {vr(VW+4*m+2*h,2)}, v2 offset:{m*4096+h*2048}")
        A(f"ds_read_b128 {vr(VA+4*m,4)}, v{vaddr} offset:{64*m}")
    for m in range(5): rd(m)
    for m in range(16):
        A(f"s_waitcnt lgkmcnt({3*(min(m+5,16)-m-1)})")
        c = "0" if m == 0 else vr(D, 4)
        A(f"v_mfma_f32_16x16x32_bf16 {vr(D,4)}, {vr(VW+4*m,4)}, {vr(VA+4*m,4)}, {c}")
        if m + 5 < 16: rd(m + 5)
    A("s_nop 7")

def batch_reduce2(g, va, vb, ta, tb):
    A = g.A
    A("s_nop 0")
    for m in ("quad_perm:[1,0,3,2]", "quad_perm:[2,3,0,1]", "row_ror:8"):
        A(f"v_add_f32_dpp v{va}, v{va}, v{va} {m} row_mask:0xf bank_mask:0xf")
        A(f"v_add_f32_dpp v{vb}, v{vb}, v{vb} {m} row_mask:0xf bank_mask:0xf")
        A("s_nop 0")
    for sw in ("v_permlane16_swap_b32", "v_permlane32_swap_b32"):
        A(f"v_mov_b32 v{ta}, v{va}")
        A(f"v_mov_b32 v{tb}, v{vb}")
        A("s_nop 0")
        A(f"{sw} v{ta}, v{va}")
        A(f"{sw} v{tb}, v{vb}")
        A(f"v_add_f32 v{va}, v{va}, v{ta}")
        A(f"v_add_f32 v{vb}, v{vb}, v{tb}")

def ln_partial(g, x):
    A = g.A
    A(f"v_add_f32 v8, v{x}, v{x+1}"); A(f"v_mul_f32 v9, v{x}, v{x}")
    A(f"v_add_f32 v10, v{x+2}, v{x+3}"); A(f"v_mul_f32 v11, v{x+2}, v{x+2}")
    A(f"v_fmac_f32 v9, v{x+1}, v{x+1}"); A(f"v_fmac_f32 v11, v{x+3}, v{x+3}")
    A("v_add_f32 v8, v8, v10"); A("v_add_f32 v9, v9, v11")
    batch_reduce2(g, 8, 9, 10, 11)
    A("ds_write_b64 v5, v[8:9]")
def ln_apply(g, x, t):
    A = g.A
    A(f"ds_read_b128 {vr(t,4)}, v6")
    A(f"ds_read_b128 {vr(t+4,4)}, v6 offset:16")
    A("s_waitcnt lgkmcnt(0)")
    A(f"v_pk_add_f32 {vr(t,2)}, {vr(t,2)}, {vr(t+2,2)}")
    A(f"v_pk_add_f32 {vr(t+4,2)}, {vr(t+4,2)}, {vr(t+6,2)}")
    A(f"v_pk_add_f32 {vr(t,2)}, {vr(t,2)}, {vr(t+4,2)}")
    A(f"v_mul_f32 v8, 0x{f2u(1/512):08x}, v{t}")
    A(f"v_mul_f32 v9, 0x{f2u(1/512):08x}, v{t+1}")
    A("v_fma_f32 v9, -v8, v8, v9")
    rnd(g, 8)
    A("v_max_f32 v9, 0, v9")
    rnd(g, 9)
    for i in range(2): A(f"v_sub_f32 v{x+i}, v{x+i}, v8")
    A(f"v_add_f32 v9, 0x{EPS:08x}, v9")
    for i in range(2, 4): A(f"v_sub_f32 v{x+i}, v{x+i}, v8")
    rnd(g, 9)
    rnd(g, x)
    A("v_sqrt_f32 v9, v9")
    rnd(g, x+1)
    rnd(g, 9)
    rnd(g, x+2)
    A("v_rcp_f32 v9, v9")
    rnd(g, x+3)
    for i in range(4): A(f"v_mul_f32 v{x+i}, v{x+i}, v9")
    for i in range(4): rnd(g, x+i)

def act_addr(g, v, base, bstride):
    A = g.A
    A(f"v_and_b32 v{v}, 1, v1")
    A(f"v_mul_u32_u24 v{v}, {bstride}, v{v}")
    A(f"v_lshrrev_b32 v3, 4, v1")
    A(f"v_lshl_add_u32 v{v}, v3, 4, v{v}")
    if base: A(f"v_add_u32 v{v}, {base}, v{v}")

def gemv(g, nk, vaddr, D, ring=16, sync=None, nspec=4):
    A = g.A
    first = min(nk, 12, ring)
    rds = [f"ds_read_b128 {vr(VA+4*m,4)}, v{vaddr} offset:{64*m}" for m in range(first)]
    if sync is not None:
        hsync(g, sync, 0, rds[:nspec]); rds = rds[nspec:]
    for r in rds: A(r)
    issued = first
    for m in range(nk):
        A(f"s_waitcnt lgkmcnt({issued-m-1})")
        c = "0" if m == 0 else vr(D, 4)
        A(f"v_mfma_f32_16x16x32_bf16 {vr(D,4)}, {vr(VW+4*m,4)}, {vr(VA+4*(m%ring),4)}, {c}")
        if issued < nk and (ring >= nk or m >= 1):
            A(f"ds_read_b128 {vr(VA+4*(issued%ring),4)}, v{vaddr} offset:{64*issued}")
            issued += 1
    A("s_nop 7")

def guard(g, r): g.A(f"v_min_u32 v{r}, s72, v{r}")
def unpack2(g, d, s):
    g.A(f"v_lshlrev_b32 v{d}, 16, v{s}")
    g.A(f"v_and_b32 v{d+1}, s73, v{s}")
def unpack4(g, d, s, step=1):
    unpack2(g, d, s); unpack2(g, d+2, s+step)

def silu4(g, x, t):
    A = g.A
    for i in range(4): A(f"v_mul_f32 v{t+i}, 0x{LOG2E ^ 0x80000000:08x}, v{x+i}")
    for i in range(4): A(f"v_exp_f32 v{t+i}, v{t+i}")
    A("s_nop 0")
    for i in range(4): A(f"v_add_f32 v{t+i}, 1.0, v{t+i}")
    for i in range(4): A(f"v_rcp_f32 v{t+i}, v{t+i}")
    A("s_nop 0")
    for i in range(4): A(f"v_mul_f32 v{x+i}, v{x+i}, v{t+i}")

def make_tag(g):
    g.A(f"s_mul_i32 s{ST}, s{ST}, 0x9e3779b1")
    g.A(f"s_add_u32 s{ST}, s{ST}, 0x7f4a7c15")

EX8 = ["s_mov_b32 exec_lo, 0x00030003", "s_mov_b32 exec_hi, 0x00030003"]

def dump_all(g, extra):
    A = g.A
    A("s_mov_b64 exec, -1")
    A("s_mul_i32 s3, s2, 12"); A("s_add_u32 s3, s3, s13"); A("s_lshl_b32 s3, s3, 6")
    A(f"s_add_u32 s3, s3, {WS_STAMP}")
    A("v_lshl_add_u32 v2, v1, 2, s3")
    A("v_mov_b32 v3, 0")
    A("s_waitcnt lgkmcnt(0)")
    for i, x in enumerate([80+2*i for i in range(10)] + list(extra)): A(f"v_writelane_b32 v3, s{x}, {i}")
    A("s_mov_b64 exec, 0xffff")
    A("global_store_dword v2, v3, s[42:43]")

def fallback(g, head_sum, wave_red):
    A = g.A
    W, AC, AV = 40, 72, 88
    X1, GS = 104, 120
    g.lab("L_slow")
    A("s_mov_b32 s47, 0x20000")
    A("s_load_dwordx16 s[16:31], s[0:1], 0")
    A("s_load_dwordx8 s[32:39], s[0:1], 64")
    A("v_and_b32 v2, 31, v1")
    A("v_lshlrev_b32 v2, 7, v2")
    A(f"v_add_u32 v2, {WS_DN}, v2")
    A("s_mov_b32 s70, 0")
    g.lab("L_sl_d")
    A("global_load_dword v3, v2, s[42:43] sc1")
    A("s_waitcnt vmcnt(0) lgkmcnt(0)")
    A(f"v_cmp_ne_u32 vcc, s{ST}, v3")
    spin_tail(g, "L_sl_d", "L_sl_dd", 8)
    A("v_lshlrev_b32 v2, 3, v1")
    A(f"v_add_u32 v2, {WS_OQ}, v2")
    A("v_lshlrev_b32 v0, 2, v1")
    A(f"v_add_u32 v0, {L_VX}, v0")
    A("s_mov_b32 s10, 0")
    g.lab("L_sl_h")
    A("s_mov_b32 s70, 0")
    g.lab("L_sl_hp")
    for i in range(3): A(f"global_load_dwordx2 {vr(W+2*i,2)}, v2, s[42:43] offset:{512*i} sc1")
    A("s_waitcnt vmcnt(0)")
    head_sum(W, W+8)
    spin_tail(g, "L_sl_hp", "L_sl_hd", 8)
    A(f"ds_write_b32 v0, v{W}")
    A("v_add_u32 v2, 2048, v2"); A("v_add_u32 v0, 256, v0")
    A("s_add_u32 s10, s10, 1"); A("s_cmp_lt_u32 s10, 64"); A("s_cbranch_scc1 L_sl_h")
    def call(base, nbytes, stride, nrows, act, bstride, col):
        A(f"s_mov_b32 s44, s{base}"); A(f"s_mov_b32 s45, s{base+1}"); A(f"s_mov_b32 s46, {nbytes}")
        A(f"s_mov_b32 s11, {stride}"); A(f"s_mov_b32 s12, {nrows*stride}")
        A(f"v_mov_b32 v4, {act}"); A(f"v_mov_b32 v5, {act+bstride}")
        A(f"v_lshlrev_b32 v2, 4, v1")
        if col: A(f"v_add_u32 v2, {col}, v2")
        A("s_call_b64 s[62:63], L_gv")
    def modrow(row, d):
        A("v_lshrrev_b32 v2, 1, v1"); A("v_lshlrev_b32 v2, 7, v2")
        A("v_and_b32 v3, 1, v1"); A("v_lshl_add_u32 v2, v3, 5, v2")
        A(f"v_add_u32 v2, {WS_MOD+4096*row}, v2")
        for b in range(2):
            for h in range(2): A(f"global_load_dwordx4 {vr(W+8*b+4*h,4)}, v2, s[42:43] offset:{64*b+16*h} sc1")
        A("s_waitcnt vmcnt(0)")
        for k in range(8): unpack2(g, d+2*k, W+2*k)
    def gated_add(row):
        modrow(row, AV)
        for i in range(16): rnd(g, AC+i)
        for i in range(16): A(f"v_mul_f32 v{AC+i}, v{AC+i}, v{AV+i}")
        for i in range(16): rnd(g, AC+i)
        for i in range(16): A(f"v_add_f32 v{X1+i}, v{X1+i}, v{AC+i}")
        for i in range(16): rnd(g, X1+i)
    def pack(d, s_):
        for k in range(8): A(f"v_cvt_pk_bf16_f32 v{d+k}, v{s_+2*k}, v{s_+2*k+1}")
    call(24, 4096*1024, 1024, 4096, L_VX, 8192, 0)
    A("v_lshlrev_b32 v0, 4, v1")
    for b in range(2): A(f"global_load_dwordx4 {vr(W+4*b,4)}, v0, s[16:17] offset:{1024*b}")
    A("s_waitcnt vmcnt(0)")
    for k in range(8): unpack2(g, X1+2*k, W+k)
    gated_add(2)
    for b in range(2):
        x = X1 + 8*b; y = AC + 8*b
        A(f"v_add_f32 v8, v{x}, v{x+1}")
        for i in range(2, 8): A(f"v_add_f32 v8, v8, v{x+i}")
        wave_red("v_add_f32", 8, 9)
        A(f"v_mul_f32 v8, 0x{f2u(1/512):08x}, v8")
        for i in range(8): A(f"v_sub_f32 v{y+i}, v{x+i}, v8")
        A(f"v_mul_f32 v10, v{y}, v{y}")
        for i in range(1, 8): A(f"v_fmac_f32 v10, v{y+i}, v{y+i}")
        wave_red("v_add_f32", 10, 9)
        A(f"v_mul_f32 v10, 0x{f2u(1/512):08x}, v10")
        rnd(g, 8); rnd(g, 10)
        A(f"v_add_f32 v10, 0x{EPS:08x}, v10")
        rnd(g, 10)
        A("v_sqrt_f32 v10, v10")
        for i in range(8): A(f"v_sub_f32 v{y+i}, v{x+i}, v8")
        rnd(g, 10)
        for i in range(8): rnd(g, y+i)
        A("v_rcp_f32 v10, v10")
        A("s_nop 0")
        for i in range(8): A(f"v_mul_f32 v{y+i}, v{y+i}, v10")
        for i in range(8): rnd(g, y+i)
    modrow(4, AV)
    for i in range(16): A(f"v_add_f32 v{AV+i}, 1.0, v{AV+i}")
    for i in range(16): rnd(g, AV+i)
    for i in range(16): A(f"v_mul_f32 v{AC+i}, v{AC+i}, v{AV+i}")
    for i in range(16): rnd(g, AC+i)
    modrow(3, AV)
    for i in range(16): A(f"v_add_f32 v{AC+i}, v{AC+i}, v{AV+i}")
    pack(W, AC)
    A(f"v_add_u32 v3, {L_VX}, v0")
    for b in range(2): A(f"ds_write_b128 v3, {vr(W+4*b,4)} offset:{1024*b}")
    HB = L_VX + 2048
    for p in range(3):
        call(28, 512*2752, 2752, 512, L_VX, 1024, 1024*p)
        for i in range(16): rnd(g, GS+i, AC+i)
        call(30, 512*2752, 2752, 512, L_VX, 1024, 1024*p)
        for q in range(4): silu4(g, GS+4*q, AV)
        for i in range(16): rnd(g, GS+i)
        for i in range(16): rnd(g, AC+i)
        for i in range(16): A(f"v_mul_f32 v{AC+i}, v{AC+i}, v{GS+i}")
        pack(W, AC)
        A(f"v_add_u32 v3, {HB+1024*p}, v0")
        for b in range(2): A(f"ds_write_b128 v3, {vr(W+4*b,4)} offset:{3072*b}")
    call(32, 1376*1024, 1024, 1376, HB, 3072, 0)
    gated_add(5)
    pack(W, X1)
    for b in range(2): A(f"global_store_dwordx4 v0, {vr(W+4*b,4)}, s[38:39] offset:{1024*b} sc1")
    A("s_endpgm")
    g.lab("L_gv")
    for i in range(16): A(f"v_mov_b32 v{AC+i}, 0")
    A("s_mov_b32 s10, 0")
    g.lab("L_gvl")
    for r in range(8):
        A(f"buffer_load_dwordx4 {vr(W+4*r,4)}, v2, s[44:47], s10 offen")
        A("s_add_u32 s10, s10, s11")
    for b in range(2): A(f"ds_read_b128 {vr(AV+4*b,4)}, v{4+b}")
    A("v_add_u32 v4, 16, v4"); A("v_add_u32 v5, 16, v5")
    A("s_waitcnt lgkmcnt(0)")
    for r in range(8):
        for b in range(2):
            a = AV + 4*b + r//2
            if r % 2 == 0: A(f"v_and_b32 v{8+2*b}, 0xffff, v{a}"); A(f"v_lshlrev_b32 v{9+2*b}, 16, v{a}")
            else: A(f"v_lshrrev_b32 v{8+2*b}, 16, v{a}"); A(f"v_and_b32 v{9+2*b}, s73, v{a}")
        A(f"s_waitcnt vmcnt({7-r})")
        for b in range(2):
            for k in range(8): A(f"v_dot2c_f32_bf16 v{AC+8*b+k}, v{8+2*b+(k&1)}, v{W+4*r+k//2}")
    A("s_cmp_lt_u32 s10, s12"); A("s_cbranch_scc1 L_gvl")
    A("s_nop 1")
    A("s_setpc_b64 s[62:63]")

def stream(g, opts):
    A = g.A
    D0 = opts.get("D0", 3)
    LAG = opts.get("LAG", 5)
    DEL = opts.get("delta", 7)
    THETA = opts.get("theta", 24)
    HCAP, HPOS = 32, 160
    TH, HST, NH, NSP, HTH = 18, 19, 20, 21, 22
    PA = 2
    KF, VF = opts.get("kf", "nt"), opts.get("vf", "nt")
    J0 = opts.get("J0", 13)
    T_, ACC, DB, RW, LIM, BUR, CNT, STA, QA, LVL = 32, 33, 34, 35, 36, 37, 38, 39, 40, 41
    SR, SBI, VE = 78, 79, 59
    VG = opts.get('vg', 20); LG = opts.get('lg', 10)
    LB, JS, DN, FIN, X1D, RET, TK, RET2 = 56, 57, 58, 75, 61, 62, (64, 66), 100
    T, X = 8, 16
    OFF = (24, 26); SET = (28, 30, 32); AC_, AT_, AH_, MK = 8, 12, 4, (34, 35, 36, 0); MW, L16, LRD, EPA = 37, 38, 39, 21
    EV = 23
    RA = 22
    ROFF = 1024
    RB = 40
    def slot(j): return RB + 4 * (j % 32)
    NW, KS = 76, 77
    g.lab("L_stream")
    A("s_sub_u32 s9, s13, 1")
    A("s_mul_i32 s10, s7, 3"); A("s_add_u32 s10, s10, s9"); A("s_sub_u32 s10, s10, 8")
    A("s_cmp_ge_i32 s10, 8"); A("s_cbranch_scc1 L_end")
    A("s_cmp_lt_u32 s9, 8")
    A("s_cselect_b32 s11, s9, s10")
    A("s_cselect_b32 s4, s7, 3")
    A("s_lshl_b32 s11, s11, 10")
    A("s_lshl_b32 s4, s4, 18")
    A("s_lshl_b32 s10, s6, 22")
    A("s_add_u32 s10, s10, s4")
    A("s_add_u32 s10, s10, 0x300000")
    A("v_lshl_add_u32 v0, v1, 4, s11")
    A("s_lshr_b32 s12, s2, 3")
    A("s_mul_i32 s12, s12, 5")
    A("s_mul_i32 s15, s8, 3")
    A("s_add_u32 s12, s12, s15")
    A("s_lshl_b32 s12, s12, 13")
    A("s_and_b32 s12, s12, 0x3ffff")
    g.stamp(1, 3)
    A("s_waitcnt lgkmcnt(0)")
    g.stamp(2, 3)
    A("s_add_u32 s44, s18, s10"); A("s_addc_u32 s45, s19, 0")
    A("s_mov_b32 s46, 0x40000"); A("s_mov_b32 s47, 0x20000")
    def issue(j):
        A(f"buffer_load_dwordx4 {vr(slot(j),4)}, v0, s[44:47], s12 offen {KF}")
        A("s_add_u32 s12, s12, 0x2000")
        A("s_and_b32 s12, s12, 0x3ffff")
    g.stamp(3, 3)
    for j in range(D0): issue(j)
    g.stamp(4, 3)
    A(f"s_load_dword s{ST}, s[42:43], {WS_E}")
    A("s_add_u32 s48, s20, s10"); A("s_addc_u32 s49, s21, 0")
    A("s_mov_b32 s50, 0x40000"); A("s_mov_b32 s51, 0x20000")
    A("s_mov_b32 s52, 0xcccccccc"); A("s_mov_b32 s53, 0xcccccccc")
    A("s_mov_b32 s54, 0xaaaaaaaa"); A("s_mov_b32 s55, 0xaaaaaaaa")
    A(f"v_and_b32 v{L16}, 15, v1")
    A(f"v_lshlrev_b32 v{L16}, 4, v{L16}")
    A("s_lshl_b32 s10, s9, 11")
    A(f"s_add_u32 s10, s10, {L_VX}")
    A("v_lshl_add_u32 v3, v1, 3, s10")
    A("v_mov_b32 v4, 0x7fff0000"); A("v_mov_b32 v5, 0xff800000")
    for n in range(3): A(f"ds_write_b64 v3, v[4:5] offset:{512*n}")
    A("v_lshrrev_b32 v3, 4, v1")
    A(f"v_lshl_add_u32 v{LRD}, v{L16}, 1, s10")
    A(f"v_lshl_add_u32 v{LRD}, v3, 3, v{LRD}")
    A(f"s_sub_u32 s68, s12, {D0*0x2000}")
    A(f"v_bfrev_b32 v{OFF[0]}, v1")
    A(f"v_lshrrev_b32 v{OFF[0]}, 15, v{OFF[0]}")
    A(f"v_and_b32 v{OFF[0]}, 0x1e000, v{OFF[0]}")
    A(f"v_add_u32 v{OFF[0]}, s68, v{OFF[0]}")
    A(f"v_and_b32 v{OFF[0]}, 0x3e000, v{OFF[0]}")
    A(f"v_lshl_add_u32 v{OFF[0]}, v3, 8, v{OFF[0]}")
    A(f"v_add_u32 v{OFF[0]}, s11, v{OFF[0]}")
    A(f"v_xor_b32 v{OFF[1]}, 0x20000, v{OFF[0]}")
    A("s_lshl_b32 s11, s9, 9")
    A("s_sub_u32 s11, s11, s10")
    A(f"s_mov_b32 s{T_}, {D0}"); A(f"s_mul_i32 s{ACC}, s9, 0x60000000"); A(f"s_add_u32 s{ACC}, s{ACC}, 0x10000000")
    A(f"s_mov_b64 s[{TK[0]}:{TK[0]+1}], 0"); A(f"s_mov_b64 s[{TK[1]}:{TK[1]+1}], 0")
    A(f"s_mov_b32 s{CNT}, 0"); A(f"s_mov_b32 s{STA}, 0"); A(f"s_mov_b32 s{FIN}, 0"); A(f"s_mov_b32 s{X1D}, 0")
    A(f"s_lshl3_add_u32 s{QA}, s6, s9"); A(f"s_lshl_b32 s{QA}, s{QA}, 6"); A(f"s_add_u32 s{QA}, s{QA}, {WS_Q}")
    A("s_barrier")
    A("s_waitcnt lgkmcnt(0)")
    A(f"s_mov_b32 s{LB}, s10")
    make_tag(g)
    A("s_cmp_eq_u32 s7, 2")
    A(f"s_cselect_b32 s{NW}, {NS_-1}, {NS_}")
    A(f"s_mov_b32 s{LVL}, {LAG}")
    A(f"s_mov_b32 s{DB}, {int(opts.get('d1', 2.65)*4096) + ROFF*LG*16}"); A(f"s_mov_b32 s{KS}, 0")
    A(f"s_mov_b32 s{RW}, {32-D0}"); A(f"s_mov_b32 s{VE}, 0")
    A(f"s_mul_i32 s68, s{NW}, {32-D0}"); A(f"s_add_u32 s68, s68, {ROFF}")
    A(f"v_mov_b32 v{RA}, s68"); A(f"v_mov_b32 v{RA+1}, 0"); A(f"v_mov_b32 v{PA}, 0")
    A("s_cmp_ge_u32 s9, 8"); A(f"s_cselect_b32 s{STA}, 2, 0")
    for j in range(D0, 32):
        if j == opts.get("js", 16) and opts.get("dup", 0): A(f"s_add_u32 s{DB}, s{DB}, {int(opts['dup']*4096)}")
        if j == D0:
            g.stamp(5, 3)
            if opts.get("stamps") == 3: A(f"s_waitcnt vmcnt({D0-1})")
            g.stamp(7, 3)
        A(f"s_call_b64 s[{RET}:{RET+1}], {'L_ks' if j >= J0 else ('L_kq2', 'L_kl')[(j - D0) & 1] if opts.get('light', 0) else 'L_kq'}")
        if j == 8: g.stamp(8, 3)
        if j == 12: g.stamp(9, 3)
        issue(j)
    g.stamp(1)
    A("s_mov_b32 s10, 0")
    g.lab("L_kw")
    A(f"s_cmp_ge_u32 s{STA}, 4"); A("s_cbranch_scc1 L_v0")
    A(f"s_call_b64 s[{RET2}:{RET2+1}], L_work")
    A("s_sleep 1")
    A("s_add_u32 s10, s10, 1")
    A(f"s_cmp_lt_u32 s10, {SPIN_MAX}"); A("s_cbranch_scc1 L_kw")
    g.lab("L_v0")
    g.stamp(2)
    A(f"s_mov_b32 s{T_}, 0")
    A(f"v_mov_b32 v{PA}, 8")
    A(f"s_mov_b32 s{RW}, s{VE}")
    A(f"ds_read_b64 {vr(RA,2)}, v{PA} offset:{L_RM}")
    A("s_waitcnt lgkmcnt(0)")
    A("v_and_b32 v3, 1, v1"); A("v_lshlrev_b32 v3, 4, v3"); A("v_mov_b32 v20, 0xffff"); A("v_lshlrev_b32 v3, v3, v20")
    A("v_bfe_u32 v20, v1, 1, 3")
    for d in range(4):
        A(f"v_cmp_eq_u32 vcc, {d}, v20"); A("s_nop 1"); A(f"v_cndmask_b32 v{MK[d]}, 0, v3, vcc")
    KA, KB = opts.get('ka2', 4.0), opts.get('kb2', -0.2)
    F10 = 1 + opts.get('nwf', 0.05)
    A("s_cmp_eq_u32 s7, 2")
    A(f"s_mov_b32 s{KS}, {round(KA*16)}"); A(f"s_cselect_b32 s{KS}, {round(KA*F10*16)}, s{KS}")
    A(f"s_mov_b32 s{DB}, {round(KB*4096) + ROFF*LG*16}"); A(f"s_cselect_b32 s{DB}, {round(KB*F10*4096) + ROFF*LG*16}, s{DB}")

    def dots(G_):
        for tt in range(4):
            for e in range(8):
                c = "0" if tt == 0 else f"v{T+e}"
                A(f"v_dot2_f32_bf16 v{T+e}, v{slot(8*G_+e)+tt}, v{4+tt}, {c}")
        for e in range(0, 8, 2):
            A(f"v_add_f32_dpp v{T+e}, v{T+e}, v{T+e} row_ror:8 row_mask:0xf bank_mask:0x3")
            A(f"v_add_f32_dpp v{T+e}, v{T+e+1}, v{T+e+1} row_ror:8 row_mask:0xf bank_mask:0xc")
        x = X + 2 * (G_ & 1)
        for h in range(2):
            A(f"v_add_f32_dpp v{x+h}, v{T+4*h}, v{T+4*h} row_shl:4 row_mask:0xf bank_mask:0x5")
            A(f"v_add_f32_dpp v{x+h}, v{T+4*h+2}, v{T+4*h+2} row_shr:4 row_mask:0xf bank_mask:0xa")
    def wave_red(op, v, t):
        for r in (8, 4, 2, 1):
            A("s_nop 1")
            A(f"{op}_dpp v{v}, v{v}, v{v} row_ror:{r} row_mask:0xf bank_mask:0xf")
        for sw in ("v_permlane16_swap_b32", "v_permlane32_swap_b32"):
            A(f"v_mov_b32 v{t}, v{v}")
            A("s_nop 1")
            A(f"{sw} v{t}, v{v}")
            A(f"{op} v{v}, v{v}, v{t}")
    def finish(n):
        sc = OFF[n] + 1
        A("v_mov_b32 v3, 0")
        A("v_mov_b32 v20, 64")
        for i in range(4): A(f"v_add_f32_dpp v{X+i}, v{X+i}, v{X+i} quad_perm:[2,3,0,1] row_mask:0xf bank_mask:0xf")
        for i in range(2): A(f"v_cndmask_b32 v{T+i}, v{X+2*i}, v{X+2*i+1}, s[52:53]")
        A("s_nop 0")
        A("v_lshlrev_b32 v21, 3, s9")
        for i in range(2): A(f"v_add_f32_dpp v{T+i}, v{T+i}, v{T+i} quad_perm:[1,0,3,2] row_mask:0xf bank_mask:0xf")
        A(f"v_cndmask_b32 v{sc}, v{T}, v{T+1}, s[54:55]")
        rnd(g, sc)
        A(f"v_mul_f32 v{sc}, 0x{SCALE:08x}, v{sc}")
        rnd(g, sc)
        if n == 0: A(f"v_mov_b32 v{MW}, v{sc}")
        else: A(f"v_max_f32 v{MW}, v{MW}, v{sc}")
        wave_red("v_max_f32", MW, T)
        if n == 0:
            A("s_mov_b64 exec, 1")
            A(f"ds_max_f32 v3, v{MW} offset:{L_E0}")
            A(f"ds_add_u32 v3, v20 offset:{L_ECN}")
            A("s_mov_b64 exec, -1")
    def build(n, thr):
        tk = f"s[{TK[n]}:{TK[n]+1}]"
        A(f"v_cmp_nlt_f32 vcc, v{OFF[n]+1}, v{thr}")
        A(f"s_lshl_b32 s68, s{CNT}, 3")
        A(f"s_add_u32 s68, s68, s{LB}")
        A(f"s_andn2_b64 s[70:71], vcc, {tk}")
        A("v_mbcnt_lo_u32_b32 v3, s70, 0")
        A("v_mbcnt_hi_u32_b32 v3, s71, v3")
        A("s_bcnt1_i32_b64 s69, s[70:71]")
        A("v_lshl_add_u32 v3, v3, 3, s68")
        A("s_mov_b64 exec, s[70:71]")
        A(f"ds_write_b64 v3, {vr(OFF[n],2)}")
        A("s_mov_b64 exec, -1")
        A(f"s_or_b64 {tk}, {tk}, s[70:71]")
        A(f"s_add_u32 s{CNT}, s{CNT}, s69")
    def reread(weights=True, fill=None):
        ns = 3 if weights else 1
        for n in range(ns): A(f"ds_read_b64 {vr(SET[n],2)}, v{LRD} offset:{512*n}")
        if fill: fill()
        A("s_waitcnt lgkmcnt(0)")
        if not weights: return
        for n in range(3): A(f"v_sub_f32 v{SET[n]+1}, v{SET[n]+1}, v{MW}")
        for n in range(3): A(f"v_mul_f32 v{SET[n]+1}, 0x{LOG2E:08x}, v{SET[n]+1}")
        for n in range(3): A(f"v_exp_f32 v{SET[n]+1}, v{SET[n]+1}")
        A("s_nop 0")
        for n in range(3): A(f"v_cvt_pk_bf16_f32 v{SET[n]+1}, v{SET[n]+1}, v{SET[n]+1}")
    def pv(t, data=None, acc=AC_, first=False):
        data = slot(t) if data is None else data
        for d in range(4): A(f"v_and_b32_dpp v{AT_+d}, v{SET[t//16]+1}, v{MK[d]} row_newbcast:{t%16} row_mask:0xf bank_mask:0xf")
        A("s_nop 1")
        A(f"v_mfma_f32_16x16x32_bf16 {vr(acc,4)}, {vr(AT_,4)}, {vr(data,4)}, {vr(acc,4)}")
    def estimate(sh, add, src, vphase=True):
        A(f"s_add_u32 s68, s{src}, {add}")
        A(f"s_lshr_b32 s68, s68, {sh}")
        A(f"s_sub_u32 s69, s68, s{VE}")
        A(f"s_mov_b32 s{VE}, s68")
        if vphase:
            A(f"s_add_u32 s{RW}, s{RW}, s69")
            A(f"s_add_u32 s{SR}, s{SR}, s69")
        A("v_mov_b32 v3, s69")
        A("s_mov_b64 exec, 1")
        A(f"ds_add_u32 v1, v3 offset:{L_RM+8}")
        A(f"ds_add_u32 v1, v3 offset:{L_RM+12}")
        A("s_mov_b64 exec, -1")
    def fetch():
        A(f"v_readfirstlane_b32 s{SR}, v{RA}")
        A(f"v_readfirstlane_b32 s{SBI}, v{RA+1}")
    NST = LAG + 33 + LAG
    assert 4 * (NST - LAG) <= HPOS, NST
    LIGHT = opts.get("light", 0)
    for t in range(NST - LAG + 1):
        sub = "L_vs" if t <= 2 * LAG else "L_vq" if not LIGHT else ("L_vq2", "L_vl")[(t - 2 * LAG - 1) & 1]
        A(f"s_call_b64 s[{RET}:{RET+1}], {sub}")
        if t == NST - LAG: break
        if t: A(f"s_cbranch_scc0 L_dr{max(t, LAG)}")
        A(f"v_add_u32_dpp v3, v{SET[t//16]}, v{L16} row_newbcast:{t%16} row_mask:0xf bank_mask:0xf")
        A(f"buffer_load_dwordx4 {vr(slot(t),4)}, v3, s[48:51], 0 offen {VF}")
        if opts.get("trace") and t >= LAG:
            A("s_memrealtime s[98:99]"); A("s_waitcnt lgkmcnt(0)"); A(f"v_writelane_b32 v17, s98, {t}")
        if t == 0: dots(2)
        if t >= LAG: pv(t - LAG)
    A(f"s_branch L_dr{NST-LAG}")
    g.C("nothing left to load, everything has landed: the row groups not used yet")
    for t in range(LAG, NST):
        g.lab(f"L_dr{t}")
        pv(t - LAG)
        A(f"s_cmp_eq_u32 s{FIN}, {t+1}"); A("s_cbranch_scc1 L_epi")
    def out_addr():
        A("v_lshrrev_b32 v3, 4, v1")
        A(f"v_lshl_add_u32 v{EPA}, v3, 3, v{LRD}")
        A(f"v_add_u32 v{EPA}, s11, v{EPA}")
        A("v_mov_b32 v3, 1")
    def prelim(r):
        A("s_mov_b32 exec_hi, 0")
        A(f"ds_write_b128 v{EPA}, {vr(r,4)} offset:{L_OP1}")
        A("s_mov_b64 exec, 1")
        A(f"ds_add_u32 v1, v3 offset:{L_SN}")
        A("s_mov_b64 exec, -1")
    g.lab("L_epi")
    g.stamp(5)
    out_addr()
    A("s_nop 3")
    for h in range(2): A(f"v_pk_add_f32 {vr(AC_+2*h,2)}, {vr(AC_+2*h,2)}, {vr(AH_+2*h,2)}")
    A("s_mov_b32 exec_hi, 0")
    A(f"ds_write_b128 v{EPA}, {vr(AC_,4)} offset:{L_OP}")
    A(f"s_cmp_eq_u32 s{NSP}, 0"); A("s_cbranch_scc1 L_ep2")
    prelim(AC_)
    g.lab("L_ep2")
    A("s_mov_b64 exec, 1")
    A(f"ds_add_rtn_u32 v3, v1, v3 offset:{L_TK}")
    A("s_mov_b64 exec, -1")
    A("v_mov_b32 v4, 0")
    A(f"ds_read_b32 v5, v4 offset:{L_ML}")
    A("s_waitcnt lgkmcnt(0)")
    A("v_readfirstlane_b32 s68, v3")
    A(f"s_cmp_lg_u32 s68, {NS_-1}"); A("s_cbranch_scc1 L_send")
    A("s_cmp_eq_u32 s7, 2"); A("s_cbranch_scc1 L_send")
    A("v_cmp_eq_u32 vcc, -1, v5")
    A("s_cmp_eq_u64 vcc, 0"); A("s_cbranch_scc1 L_ep3")
    poll_lds(g, [f"ds_read_b32 v5, v4 offset:{L_ML}"], [5], 8, 1)
    g.lab("L_ep3")
    op_publish(g, L_OP, RB, 4, R2, False)
    g.lab("L_send")
    if opts.get("trace"):
        A("s_mov_b64 exec, -1")
        A("s_mul_i32 s3, s2, 12"); A("s_add_u32 s3, s3, s13"); A("s_lshl_b32 s3, s3, 8"); A("s_add_u32 s3, s3, 0x400000")
        A("v_lshl_add_u32 v2, v1, 2, s3")
        A("global_store_dword v2, v17, s[42:43]")
    if opts.get("stamps"):
        g.stamp(6)
        dump_all(g, [CNT, SBI, SBI])
    A("s_endpgm")
    g.wave_red = wave_red

    g.lab("L_ks")
    A(f"s_cmp_ge_u32 s{STA}, 4"); A("s_cbranch_scc1 L_kq")
    A(f"s_call_b64 s[{RET2}:{RET2+1}], L_work")
    BASE, FRAC = BUR, 58
    def control(n):
        A("s_mov_b64 exec, 1")
        for _ in range(n): A(f"ds_dec_u32 v{PA}, v{LRD} offset:{L_RM}")
        A(f"ds_read_b64 {vr(RA,2)}, v{PA} offset:{L_RM}")
        A("s_mov_b64 exec, -1")
        A(f"s_mul_i32 s68, s{RW}, s{NW}")
        A(f"s_and_b32 s69, s{SBI}, 0xffff")
        A(f"s_sub_i32 s68, s68, s{SR}")
        A(f"s_mul_i32 s69, s69, s{KS}")
        A(f"s_mul_i32 s68, s68, {LG*16}")
        A(f"s_sub_u32 s{RW}, s{RW}, {n}")
        A("s_add_i32 s68, s68, s69")
        A(f"s_add_i32 s68, s68, s{DB}")
        A(f"s_max_i32 s68, s68, {int(opts.get('lo', 1.2)*4096)}")
        A(f"s_min_i32 s68, s68, {LAG*4096}")
        A(f"s_lshr_b32 s{BASE}, s68, 12")
        A(f"s_lshl_b32 s{FRAC}, s68, 20")
    g.lab("L_kq")
    fetch()
    g.lab("L_ks2")
    control(1)
    g.lab("L_kl")
    A(f"s_add_u32 s{T_}, s{T_}, 1")
    A(f"s_add_u32 s{ACC}, s{ACC}, 0x20000000")
    A(f"s_add_u32 s68, s{ACC}, s{FRAC}")
    A(f"s_addc_u32 s{LVL}, s{BASE}, 0")
    order = [3, 2, 4, 1] + list(range(5, LAG))
    for d in order:
        A(f"s_cmp_eq_u32 s{LVL}, {d}"); A(f"s_cbranch_scc1 L_wt{d}")
    g.lab("L_wtx")
    A(f"s_cmp_eq_u32 s{T_}, s{T_}")
    for d in [LAG] + order:
        g.lab(f"L_wt{d}")
        A(f"s_waitcnt vmcnt({d-1})")
        A(f"s_setpc_b64 s[{RET}:{RET+1}]")
    g.lab("L_kq2")
    fetch()
    g.lab("L_ks3")
    control(2)
    A("s_branch L_kl")
    g.lab("L_vl")
    A(f"s_cmp_lt_u32 s{T_}, s{LIM}"); A("s_cbranch_scc1 L_kl")
    A("s_branch L_ev")
    g.lab("L_vq2")
    fetch()
    if opts.get("early", 0):
        A(f"s_lshr_b32 s68, s{SBI}, 16")
        A(f"s_cmp_gt_u32 s68, s{FIN}"); A("s_cbranch_scc1 L_hand")
    A(f"s_cmp_lt_u32 s{T_}, s{LIM}"); A("s_cbranch_scc1 L_ks3")
    A("s_branch L_ev")

    g.lab("L_vs")
    fetch()
    A(f"s_cmp_eq_u32 s{X1D}, 2"); A("s_cbranch_scc1 L_vs1")
    A(f"s_cmp_eq_u32 s{X1D}, 1"); A("s_cbranch_scc1 L_x3")
    A(f"s_cmp_gt_u32 s{LVL}, s{T_}"); A("s_cbranch_scc1 L_ks2")
    g.lab("L_x1")
    g.stamp(1, 2)
    dots(3)
    sc = OFF[1] + 1
    A(f"s_lshl_b32 s68, s{NH}, 3")
    A(f"s_add_u32 s68, s68, s{LB}")
    for i in range(4): A(f"v_add_f32_dpp v{X+i}, v{X+i}, v{X+i} quad_perm:[2,3,0,1] row_mask:0xf bank_mask:0xf")
    for i in range(2): A(f"v_cndmask_b32 v{T+i}, v{X+2*i}, v{X+2*i+1}, s[52:53]")
    A("v_mov_b32 v20, 64")
    A("v_lshlrev_b32 v21, 3, s9")
    for i in range(2): A(f"v_add_f32_dpp v{T+i}, v{T+i}, v{T+i} quad_perm:[1,0,3,2] row_mask:0xf bank_mask:0xf")
    A(f"v_cndmask_b32 v{sc}, v{T}, v{T+1}, s[54:55]")
    rnd(g, sc)
    A(f"v_mul_f32 v{sc}, 0x{SCALE:08x}, v{sc}")
    rnd(g, sc)
    mx = lambda r: f"v_max_f32_dpp v{MW}, v{MW}, v{MW} row_ror:{r} row_mask:0xf bank_mask:0xf"
    tk1 = f"s[{TK[1]}:{TK[1]+1}]"
    for t in (f"v_max_f32 v{MW}, v{MW}, v{sc}",
              f"v_cmp_ngt_f32 vcc, s{HTH}, v{sc}", "v_mov_b32 v4, 0", mx(8),
              "s_bcnt1_i32_b64 s69, vcc", f"s_add_u32 s69, s69, s{NH}", mx(4),
              f"s_cmp_gt_u32 s69, {HCAP}", f"s_cselect_b32 s{NSP}, 1, s{NSP}", mx(2),
              f"s_cmp_eq_u32 s{NSP}, 0", f"s_cselect_b64 {tk1}, vcc, 0", f"s_cselect_b32 s{NH}, s69, s{NH}", mx(1),
              f"v_mbcnt_lo_u32_b32 v3, s{TK[1]}, 0", f"v_mov_b32 v{T}, v{MW}", f"v_mbcnt_hi_u32_b32 v3, s{TK[1]+1}, v3", "v_lshl_add_u32 v3, v3, 3, s68",
              f"v_permlane16_swap_b32 v{T}, v{MW}",
              f"s_mov_b64 exec, {tk1}", f"ds_write_b64 v3, {vr(OFF[1],2)} offset:{HPOS*8}", "s_mov_b64 exec, -1",
              f"ds_read_b32 v{SET[2]}, v{LRD} offset:1024",
              f"v_max_f32 v{MW}, v{MW}, v{T}", f"v_mov_b32 v{T}, v{MW}", "v_mov_b32 v5, 0", f"s_mov_b32 s{TH}, s{T_}",
              f"v_permlane32_swap_b32 v{T}, v{MW}", f"v_max_f32 v{MW}, v{MW}, v{T}"): A(t)
    for i in range(2): A(f"v_sub_f32 v{X+1+i}, v{OFF[i]+1}, v{MW}")
    for i in range(2): A(f"v_mul_f32 v{X+1+i}, 0x{LOG2E:08x}, v{X+1+i}")
    for i in range(2): A(f"v_exp_f32 v{X+1+i}, v{X+1+i}")
    A(f"v_mov_b32 v{X}, v{MW}")
    A(f"v_add_f32 v{X+1}, v{X+1}, v{X+2}")
    A("s_waitcnt lgkmcnt(0)")
    for i in range(8):
        A(f"s_cmp_le_u32 s{NH}, {4*i}"); A("s_cbranch_scc1 L_x2")
        A(f"v_add_u32_dpp v3, v{SET[2]}, v{L16} row_newbcast:{8+i} row_mask:0xf bank_mask:0xf")
        A(f"buffer_load_dwordx4 {vr(slot(24+i),4)}, v3, s[48:51], 0 offen {VF}")
    g.lab("L_x2")
    g.stamp(2, 2)
    wave_red("v_add_f32", X+1, T)
    A("s_mov_b64 exec, 1")
    A(f"ds_max_f32 v1, v{MW} offset:{L_MX}")
    A(f"ds_write_b64 v21, {vr(X,2)} offset:{L_ST}")
    A(f"ds_add_u32 v1, v20 offset:{L_SCN}")
    A("s_mov_b64 exec, -1")
    g.stamp(3); g.stamp(3, 2)
    A(f"s_mov_b32 s{X1D}, 1"); A(f"s_mov_b32 s{HST}, 1")
    A(f"s_cmp_lt_u32 s{T_}, {LAG}"); A("s_cbranch_scc1 L_ks2")
    g.lab("L_x3")
    A(f"v_max_f32 v21, s{EV}, v{MW}")
    A(f"s_add_u32 s{CNT}, s{CNT}, 3"); A(f"s_lshr_b32 s{CNT}, s{CNT}, 2")
    A(f"v_add_f32 v21, 0x{f2u(DEL - ZERO_GAP):08x}, v21")
    A(f"s_max_u32 s{CNT}, s{CNT}, s{T_}"); A(f"s_lshl_b32 s{CNT}, s{CNT}, 2")
    build(1, 21)
    def fill():
        for e in range(4): A(f"v_mov_b32 v{AC_+e}, 0")
        for e in range(2, 4): A(f"v_mov_b32 v{AH_+e}, 0")
        A(f"s_lshr_b32 s{LIM}, s{CNT}, 2")
        A(f"s_mov_b32 s{X1D}, 2")
        estimate(2, opts.get("ve2", 8), CNT)
    reread(True, fill)
    A(f"s_cmp_eq_u32 s{NH}, 0")
    A(f"s_cselect_b32 s{LVL}, 0, s{LVL}")
    g.stamp(4, 2)
    g.lab("L_vs1")
    A(f"s_cmp_eq_u32 s{HST}, 0"); A("s_cbranch_scc1 L_vs1b")
    A(f"s_sub_u32 s68, s{T_}, s{TH}")
    A(f"s_cmp_le_u32 s{LVL}, s68"); A("s_cbranch_scc1 L_snap")
    A(f"s_cmp_lt_u32 s{T_}, s{LIM}"); A("s_cbranch_scc1 L_ks2")
    A("s_waitcnt vmcnt(0)")
    g.lab("L_snap")
    g.stamp(5, 2)
    for i in range(8):
        A(f"s_cmp_le_u32 s{NH}, {4*i}"); A("s_cbranch_scc1 L_snp2")
        pv(40 + i, slot(24 + i), AH_)
    g.lab("L_snp2")
    out_addr()
    A("s_nop 0")
    A(f"s_mov_b32 s{HST}, 0")
    A(f"s_cmp_lg_u32 s{NSP}, 0"); A("s_cbranch_scc1 L_vs1b")
    prelim(AH_)
    g.stamp(9); g.stamp(7, 2)
    A("s_branch L_vs1b")
    g.lab("L_vq")
    fetch()
    g.lab("L_vs1b")
    if opts.get("early", 0):
        A(f"s_lshr_b32 s68, s{SBI}, 16")
        A(f"s_cmp_gt_u32 s68, s{FIN}"); A("s_cbranch_scc1 L_hand")
    g.lab("L_vs2")
    A(f"s_cmp_lt_u32 s{T_}, s{LIM}"); A("s_cbranch_scc1 L_ks2")
    g.lab("L_ev")
    A(f"s_cmp_eq_u32 s{FIN}, 0"); A("s_cbranch_scc1 L_hand")
    A(f"s_add_u32 s68, s{T_}, {LAG}")
    A(f"s_cmp_lt_u32 s68, s{FIN}"); A("s_cbranch_scc0 L_wt1")
    A(f"s_add_u32 s{T_}, s{T_}, 1")
    A("s_mov_b64 exec, 1")
    A(f"ds_dec_u32 v{PA}, v{LRD} offset:{L_RM}")
    A("s_mov_b64 exec, -1")
    A("s_branch L_wtx")

    g.lab("L_hand")
    g.stamp(7)
    A("v_mov_b32 v3, 0")
    wait_cnt(g, f"ds_read_b64 v[18:19], v3 offset:{L_SCN}", 18, 0x10000 + 64 * NS_, 1)
    g.stamp(4)
    A(f"v_add_f32 v21, 0x{f2u(-ZERO_GAP):08x}, v19")
    if opts.get("noskip"): A("v_mov_b32 v21, 0xff800000")
    build(0, 21); build(1, 21)
    def fill2():
        A(f"s_add_u32 s{FIN}, s{CNT}, {3 + 4*LAG}")
        A(f"s_lshr_b32 s{FIN}, s{FIN}, 2")
        A(f"s_sub_u32 s{LIM}, s{FIN}, {LAG + opts.get('burst', 3)}")
        A(f"s_max_i32 s{LIM}, s{LIM}, 0")
        estimate(2, 3, CNT)
    reread(True, fill2)
    A("s_branch L_vs2")

    g.lab("L_work")
    ret2 = f"s_setpc_b64 s[{RET2}:{RET2+1}]"
    for k in (1, 2, 3):
        A(f"s_cmp_eq_u32 s{STA}, {k}"); A(f"s_cbranch_scc1 L_w{k}")
    g.lab("L_w0")
    A(f"s_load_dwordx16 s[16:31], s[42:43], s{QA} glc")
    A(f"s_mov_b32 s{STA}, 1")
    g.lab("L_wr")
    A(ret2)
    g.lab("L_w1")
    A("s_waitcnt lgkmcnt(0)")
    A(f"s_xor_b32 s68, s17, s{ST}")
    for k in range(1, 8):
        A(f"s_xor_b32 s69, s{17+2*k}, s{ST}"); A("s_or_b32 s68, s68, s69")
    A("s_cbranch_scc1 L_w0")
    for k in range(8): A(f"v_mov_b32 v{8+k}, s{16+2*k}")
    A("v_lshlrev_b32 v3, 5, s9")
    A("s_mov_b64 exec, 1")
    A(f"ds_write_b128 v3, v[8:11] offset:{L_QV}")
    A(f"ds_write_b128 v3, v[12:15] offset:{L_QV+16}")
    A("s_mov_b64 exec, -1")
    A(f"s_mov_b32 s{STA}, 2")
    g.lab("L_w2")
    A(f"s_add_u32 s68, s{LVL}, 16")
    A(f"s_cmp_lt_u32 s{T_}, s68"); A("s_cbranch_scc1 L_wr")
    A(f"ds_read_b128 v[4:7], v{L16} offset:{L_QV}")
    A("s_waitcnt lgkmcnt(0)")
    chk_sentinel(g, [4, 5, 6, 7], 8)
    A("s_cmp_lg_u64 vcc, 0"); A("s_cbranch_scc1 L_wr")
    g.stamp(9, 2)
    dots(0); dots(1)
    finish(0)
    A(f"s_mov_b32 s{STA}, 3")
    A(f"s_mov_b32 s{HST}, 0")
    g.stamp(8)
    A(ret2)
    g.lab("L_w3")
    A("v_mov_b32 v3, 0")
    A(f"ds_read_b64 v[18:19], v3 offset:{L_ECN}")
    A("s_waitcnt lgkmcnt(0)")
    A(f"v_cmp_gt_u32 vcc, 0x{0x10000 + 64 * NS_:x}, v18")
    A("s_cmp_lg_u64 vcc, 0"); A("s_cbranch_scc1 L_wr")
    A(f"ds_read_b64 v[20:21], v3 offset:{L_E1}")
    A("s_waitcnt lgkmcnt(0)")
    A(f"v_add_f32 v21, 0x{f2u(-THETA):08x}, v21")
    A(f"v_cmp_nlt_f32 vcc, v{OFF[0]+1}, v21")
    A(f"v_readfirstlane_b32 s{HTH}, v21")
    A(f"v_readfirstlane_b32 s{EV}, v20")
    A(f"s_mov_b32 s{NH}, 0")
    A("s_bcnt1_i32_b64 s68, vcc")
    A(f"s_cmp_gt_u32 s68, {HCAP}")
    A(f"s_cselect_b32 s{NSP}, 1, 0")
    A("s_cbranch_scc1 L_w4")
    A(f"s_mov_b32 s{CNT}, {HPOS}")
    build(0, 21)
    A(f"s_mov_b32 s{NH}, s69"); A(f"s_mov_b32 s{CNT}, 0")
    g.lab("L_w4")
    A(f"v_add_f32 v21, 0x{f2u(DEL - ZERO_GAP):08x}, v20")
    build(0, 21)
    estimate(1, opts.get("ve1", 4), CNT, False)
    if opts.get("ka1", 0):
        A(f"s_sub_i32 s68, s{VE}, {opts.get('kt1', 20)}")
        A(f"s_max_i32 s68, s68, {opts.get('kl1', -4)}")
        A(f"s_mul_i32 s68, s68, {int(opts['ka1']*4096)}")
        A(f"s_add_i32 s{DB}, s{DB}, s68")
    A(f"s_mov_b32 s{STA}, 4")
    reread(False)
    A(ret2)

def gen(opts):
    g = G(opts); A = g.A
    opts.setdefault("ka1", 0.06)
    WFL = opts.get("wflags", "nt")
    D0 = opts.get("D0", 3)
    MREP = 8
    TB = 32
    hdr = open(opts["ref"]).read().split("; Override launch")[0]
    g.L.append(hdr.rstrip("\n"))
    g.L.append(""";
;    numbers of loads in flight only affect speed.""")
    g.L.append(f"; @launch grid=(256,1,1) block=(768,1,1) lds={LDS_BYTES}")
    g.L.append('.amdgcn_target "amdgcn-amd-amdhsa--gfx950"\n.text')
    g.L.append(f".globl {KNAME}\n.p2align 8\n.type {KNAME},@function\n{KNAME}:")
    g.stamp(0, 3)
    A("s_cmp_ge_u32 s2, 256")
    A("s_cbranch_scc1 L_end")
    A("s_load_dwordx16 s[16:31], s[0:1], 0")
    A("s_load_dwordx8 s[32:39], s[0:1], 64")
    A("s_load_dwordx4 s[40:43], s[0:1], 96")
    A("v_lshrrev_b32 v2, 6, v0")
    A("v_and_b32 v1, 63, v0")
    A("v_readfirstlane_b32 s13, v2")
    A("s_bfe_u32 s7, s2, 0x20003")
    A("s_bfe_u32 s6, s2, 0x20005")
    A("s_and_b32 s8, s2, 7")
    if opts.get("spread", 0):
        A("s_mul_i32 s9, s7, 3"); A("s_add_u32 s9, s9, s8"); A("s_and_b32 s9, s9, 7")
        A("s_lshl2_add_u32 s6, s9, s6")
    else: A("s_lshl2_add_u32 s6, s8, s6")
    A("s_and_b32 s9, s2, 0x80")
    A("s_lshr_b32 s9, s9, 2")
    A("s_add_u32 s6, s6, s9")
    A("s_mov_b32 s72, 0xfffffffe")
    A("s_mov_b32 s73, 0xffff0000")
    g.stamp(0)
    A("s_cmp_eq_u32 s7, 3")
    A("s_cbranch_scc1 L_serv")
    A("s_cmp_eq_u32 s13, 0")
    A("s_cbranch_scc1 L_pub")
    stream(g, opts)

    def tag():
        A("s_waitcnt lgkmcnt(0)")
        make_tag(g)
    def tag_bytes():
        for i in range(4): A(f"s_bfe_u32 s{TB+i}, s{ST}, 0x{(8 << 16) | (8 * i):x}")
    def table():
        A("s_getpc_b64 s[56:57]")
        l = g.uniq("pc"); g.lab(l)
        A("s_lshr_b32 s3, s2, 5"); A("s_lshl3_add_u32 s3, s3, s8"); A("s_lshl_b32 s3, s3, 2")
        A(f"s_add_u32 s3, s3, L_table-{l}")
        A("s_load_dword s14, s[56:57], s3")

    g.lab("L_pub")
    NT = opts.get("nt", 2)
    if NT:
        A("s_getpc_b64 s[56:57]")
        g.lab("L_pct")
        A("s_lshr_b32 s3, s2, 3"); A("s_lshl_b32 s3, s3, 2")
        A("s_add_u32 s3, s3, L_touch-L_pct")
        A("s_load_dword s14, s[56:57], s3")
        A("s_waitcnt lgkmcnt(0)")
        for k in range(NT):
            e = g.uniq("tq"); e2 = g.uniq("te")
            A(f"s_bfe_u32 s48, s14, 0x{(3 << 16) | (8*k):x}"); A("s_lshl_b32 s48, s48, 6")
            A("v_add_u32 v2, s48, v1")
            A(f"s_bfe_u32 s48, s14, 0x{(3 << 16) | (8*k+3):x}")
            A(f"s_bitcmp1_b32 s14, {8*k+7}"); A(f"s_cbranch_scc1 {e2}")
            A(f"s_bitcmp1_b32 s14, {8*k+6}"); A(f"s_cbranch_scc1 {e}")
            A("s_lshl1_add_u32 s48, s8, s48"); A("s_lshl_b32 s48, s48, 7")
            A("v_mul_u32_u24 v2, 6144, v2")
            A("v_add_u32 v2, s48, v2")
            A("global_load_dword v167, v2, s[36:37]")
            A(f"s_branch {e2}")
            g.lab(e)
            A("s_lshl3_add_u32 s48, s8, s48"); A("s_lshl_b32 s48, s48, 7")
            A("v_lshl_add_u32 v2, v2, 13, s48")
            A("global_load_dword v167, v2, s[22:23]")
            g.lab(e2)
    A("v_mov_b32 v38, 0")
    A("v_mov_b32 v4, -1")
    A("v_mov_b32 v8, 0xff800000"); A("v_mov_b32 v9, 0")
    A("v_lshlrev_b32 v2, 3, v1")
    A(f"ds_write_b64 v2, v[8:9] offset:{L_S4}")
    A("v_mov_b32 v5, 0"); A("v_mov_b32 v6, 0"); A("v_mov_b32 v7, 0")
    A(f"ds_write_b64 v2, v[6:7] offset:{L_OP+512*(NS_-1)}")
    A(f"ds_write_b64 v2, v[6:7] offset:{L_OP1+512*(NS_-1)}")
    A("v_lshlrev_b32 v2, 2, v1")
    A(f"ds_write_b32 v2, v4 offset:{L_QV}")
    A("s_lshr_b32 s10, s7, 1")
    A(f"ds_write_b128 v38, v[4:7] offset:{L_ML}")
    A("v_lshlrev_b32 v10, 6, s10"); A("v_mov_b32 v11, v8"); A("v_mov_b32 v12, v10"); A("v_mov_b32 v13, v8")
    A(f"ds_write_b128 v38, v[10:13] offset:{L_SCN}")
    A(f"s_mul_i32 s11, s10, {32-D0}"); A(f"s_sub_u32 s11, {1024+NS_*(32-D0)}, s11")
    A("v_mov_b32 v10, s11"); A("v_mov_b32 v11, 0"); A("v_mov_b32 v12, 1024"); A("v_mov_b32 v13, 0")
    A(f"ds_write_b128 v38, v[10:13] offset:{L_RM}")
    A("v_mov_b32 v4, s10"); A("v_mov_b32 v5, s10")
    A(f"ds_write_b128 v38, v[4:7] offset:{L_SN}")
    A(f"s_getreg_b32 s{SXCC}, hwreg(HW_REG_XCC_ID, 0, 4)")
    A("s_waitcnt lgkmcnt(0)")
    A(f"s_load_dword s{ST}, s[42:43], {WS_E}")
    A("s_barrier")
    tag()
    A(f"s_add_u32 s{SXCC}, s{SXCC}, s{ST}")
    def merge(nl, base):
        A(f"v_and_b32 v9, {nl-1}, v1")
        A("v_lshlrev_b32 v9, 3, v9")
        A(f"ds_read_b64 v[10:11], v9 offset:{base}")
        mods = ["quad_perm:[1,0,3,2]", "quad_perm:[2,3,0,1]", "row_half_mirror", "row_mirror"][:nl.bit_length()-1]
        A("s_waitcnt lgkmcnt(0)")
        if nl == 16: A("v_mov_b32 v16, v10")
        for i, m_ in enumerate(mods):
            src = 10 if i == 0 else 8
            A(f"v_max_f32_dpp v8, v{src}, v{src} {m_} row_mask:0xf bank_mask:0xf")
            if i + 1 < len(mods): A("s_nop 1")
        A("v_sub_f32 v9, v10, v8")
        A(f"v_mul_f32 v9, 0x{LOG2E:08x}, v9")
        A("v_exp_f32 v9, v9")
        A("s_nop 0")
        A("v_mul_f32 v10, v9, v11")
        for m_ in mods:
            A("s_nop 1")
            A(f"v_add_f32_dpp v10, v10, v10 {m_} row_mask:0xf bank_mask:0xf")
    SB = 20
    def sissue(n, nd, off):
        for i in range(n): A(f"s_load_dwordx{nd} s[{SB+4*i}:{SB+4*i+nd-1}], s[42:43], s{54+i} offset:{off} glc")
    def spoll(n, nd, off, name, sleep):
        A("s_mov_b32 s70, 0")
        A(f"s_branch {name}c")
        g.lab(name)
        sissue(n, nd, off)
        g.lab(name + "c")
        A("s_waitcnt lgkmcnt(0)")
        tags = [SB + 4*i + k for i in range(n) for k in range(1, nd, 2)]
        A(f"s_xor_b32 s68, s{tags[0]}, s{ST}")
        for k in tags[1:]:
            A(f"s_xor_b32 s69, s{k}, s{ST}"); A("s_or_b32 s68, s68, s69")
        A(f"s_cbranch_scc0 {name}d")
        A(f"s_sleep {sleep}")
        A("s_add_u32 s70, s70, 1")
        A(f"s_cmp_lt_u32 s70, {SPIN_MAX}")
        A(f"s_cbranch_scc1 {name}")
        g.lab(name + "d")
    A("s_add_u32 s52, s7, 1"); A("s_cmp_eq_u32 s52, 3"); A("s_cselect_b32 s52, 0, s52")
    A("s_add_u32 s53, s52, s7"); A("s_sub_u32 s53, 3, s53")
    for i in range(2):
        A(f"s_lshl2_add_u32 s{54+i}, s6, s{52+i}"); A(f"s_lshl_b32 s{54+i}, s{54+i}, 7")
    A("s_lshl2_add_u32 s64, s6, s7"); A("s_lshl_b32 s64, s64, 7")
    A(f"s_add_u32 s64, s64, {WS_S1}")
    A("v_mov_b32 v18, s64")
    A(f"v_add_u32 v19, {WS_S2-WS_S1}, v18")
    A("v_mov_b32 v17, 0x10000")
    PT = opts.get("pt", 15)
    if PT & 1:
        A("s_lshl2_add_u32 s49, s6, s7"); A("s_lshl_b32 s49, s49, 9"); A(f"s_add_u32 s49, s49, {WS_OP}")
        A("v_and_b32 v10, 3, v1"); A("v_lshl_add_u32 v10, v10, 7, s49")
        A("v_bfe_u32 v11, v1, 2, 1"); A(f"v_mul_u32_u24 v11, {R2}, v11"); A("v_add_u32 v10, v10, v11")
        A("s_mov_b64 exec, 0xff")
        A("global_load_dword v166, v10, s[42:43] sc1")
        A("s_mov_b64 exec, 1")
        A("global_load_dword v166, v18, s[42:43] sc1")
        A("global_load_dword v166, v19, s[42:43] sc1")
        A("s_mov_b64 exec, -1")
    wait_cnt(g, f"ds_read_b64 v[8:9], v38 offset:{L_ECN}", 8, 64 * NS_, 2)
    sissue(2, 2, WS_S1)
    A("v_mov_b32 v8, v9")
    A(f"v_mov_b32 v9, s{ST}")
    A("s_mov_b64 exec, 1")
    A("global_store_dwordx2 v18, v[8:9], s[42:43] sc1")
    g.stamp(1)
    spoll(2, 2, WS_S1, "L_s3e", opts.get("ssl", 2))
    A(f"v_mov_b32 v12, s{SB}")
    A(f"v_max3_f32 v10, v8, v12, s{SB+4}")
    A(f"v_min3_f32 v11, v8, v12, s{SB+4}")
    A(f"ds_write_b64 v38, v[10:11] offset:{L_E1}")
    A(f"ds_add_u32 v38, v17 offset:{L_ECN}")
    A("s_mov_b64 exec, -1")
    g.stamp(3)
    if not opts.get("spread", 0):
        A("s_lshl_b32 s64, s8, 7")
        A(f"s_load_dwordx8 s[20:27], s[42:43], s64 offset:{WS_HDR} glc")
        A("s_waitcnt lgkmcnt(0)")
        A(f"s_xor_b32 s68, s20, s{SXCC}")
        for k in range(1, 8):
            A(f"s_xor_b32 s69, s{20+k}, s{SXCC}"); A("s_or_b32 s68, s68, s69")
        A(f"s_cselect_b32 s{SLOC}, 0, 1")
        if opts.get("nolocal"): A(f"s_mov_b32 s{SLOC}, 0")
    for i, r in enumerate((7, 52, 53)): A(f"v_lshlrev_b32 v{20+i}, 3, s{r}")
    wait_cnt(g, f"ds_read_b32 v8, v38 offset:{L_SCN}", 8, 64 * NS_, 1)
    merge(16, L_ST)
    sissue(2, 4, WS_S2)
    A(f"v_mov_b32 v9, s{ST}"); A(f"v_mov_b32 v11, s{ST}")
    A("s_mov_b64 exec, 1")
    A("global_store_dwordx4 v19, v[8:11], s[42:43] sc1")
    A(f"ds_write_b32 v20, v8 offset:{L_S4}")
    A(f"ds_write_b32 v20, v10 offset:{L_S4+4}")
    g.stamp(4)
    spoll(2, 4, WS_S2, "L_s3p", opts.get("ssl", 2))
    for i in range(2):
        A(f"v_mov_b32 v{12+2*i}, s{SB+4*i}"); A(f"v_mov_b32 v{13+2*i}, s{SB+4*i+2}")
    A("v_max_f32 v23, v12, v14")
    A(f"ds_max_f32 v38, v23 offset:{L_MX}")
    A(f"ds_add_u32 v38, v17 offset:{L_SCN}")
    A(f"ds_add_u32 v38, v17 offset:{L_RM+12}")
    for i in range(2): A(f"ds_write_b64 v{21+i}, {vr(12+2*i,2)} offset:{L_S4}")
    A("s_mov_b64 exec, -1")
    merge(4, L_S4)
    A("v_sub_f32 v9, v16, v8")
    A("v_rcp_f32 v10, v10")
    A(f"v_mul_f32 v9, 0x{LOG2E:08x}, v9")
    A("v_exp_f32 v9, v9")
    A("v_lshlrev_b32 v8, 2, v1")
    A("v_mul_f32 v9, v9, v10")
    A("s_mov_b64 exec, 0xffff")
    A(f"ds_write_b32 v8, v9 offset:{L_S8}")
    A("s_mov_b64 exec, -1")
    A(f"ds_write_b32 v38, v38 offset:{L_ML}")
    g.stamp(5)
    wait_cnt(g, f"ds_read_b32 v8, v38 offset:{L_SN}", 8, NS_, 1)
    R = 40
    op_publish(g, L_OP1, R, 38, 0, not opts.get("spread", 0))
    g.stamp(6)
    A("s_waitcnt vmcnt(0)")
    if opts.get("spread", 0):
        A("s_cmp_lg_u32 s7, 2"); A("s_cbranch_scc1 L_fin")
        wait_cnt(g, f"ds_read_b32 v8, v38 offset:{L_TK}", 8, opts.get("ctk", 2), 8)
    else:
        wait_cnt(g, f"ds_read_b32 v8, v38 offset:{L_TK}", 8, opts.get("ctk", 2), 8)
        A(f"global_store_dwordx2 v{R+OPA}, {vr(R,2)}, s[42:43] sc1")
        A("s_cmp_lg_u32 s7, 2"); A("s_cbranch_scc1 L_fin")

    g.lab("L_chk")
    TG = 160; RB = 136
    for k in range(2): A(f"v_and_b32 v{TG+k}, 0xff, v{R+OPA+1+k}")
    A("s_lshl_b32 s10, s6, 11"); A(f"s_add_u32 s10, s10, {WS_OP}")
    A("v_lshl_add_u32 v2, v1, 3, s10")
    def head_sum(b_, t):
        for i in range(6): A(f"v_xor_b32 v{b_+i}, v{b_+i}, v{TG+(i&1)}")
        A(f"v_or3_b32 v{t}, v{b_}, v{b_+1}, v{b_+2}")
        A(f"v_or3_b32 v{t+1}, v{b_+3}, v{b_+4}, v{b_+5}")
        for i in range(6): A(f"v_or_b32 v{b_+i}, 0x80, v{b_+i}")
        A(f"v_or_b32 v{t}, v{t}, v{t+1}")
        A(f"v_pk_add_f32 {vr(b_,2)}, {vr(b_,2)}, {vr(b_+2,2)}")
        A(f"v_lshlrev_b32 v{t}, 24, v{t}")
        A(f"v_pk_add_f32 {vr(b_,2)}, {vr(b_,2)}, {vr(b_+4,2)}")
        A(f"v_cmp_ne_u32 vcc, 0, v{t}")
        A(f"v_cvt_pk_bf16_f32 v{b_}, v{b_}, v{b_+1}")
    def looks(k):
        for i in range(2): A(f"global_load_dwordx2 {vr(RB+8*k+2*i,2)}, v2, s[42:43] offset:{512*i} sc1")
    def settle(k, sleep):
        A("s_mov_b32 s70, 0")
        A(f"s_branch L_cp{k}c")
        g.lab(f"L_cp{k}")
        looks(k)
        A("s_waitcnt vmcnt(0)")
        g.lab(f"L_cp{k}c")
        for i in range(2): A(f"v_mov_b32 v{RB+8*k+4+i}, v{R+i}")
        head_sum(RB+8*k, RB+16)
        spin_tail(g, f"L_cp{k}", f"L_cp{k}d", sleep)
    looks(0)
    wait_cnt(g, f"ds_read_b32 v8, v38 offset:{L_TK}", 8, NS_, opts.get("tks", 0))
    A(f"v_add_u32 v3, {R2}, v2")
    for i in range(2): A(f"global_load_dwordx2 {vr(RB+8+2*i,2)}, v3, s[42:43] offset:{512*i} sc1")
    R0 = R; R = 80
    op_publish(g, L_OP, R, 38, R2, False)
    g.stamp(7)
    A("s_waitcnt vmcnt(1)")
    R1 = R; R = R0
    settle(0, 4)
    A(f"v_add_u32 v2, {R2}, v2")
    R = R1
    settle(1, opts.get("csl", 0))
    A(f"v_cmp_ne_u32 vcc, v{RB}, v{RB+8}")
    A("s_cmp_eq_u64 vcc, 0"); A("s_cbranch_scc1 L_fin")
    fallback(g, head_sum, g.wave_red)

    g.lab("L_serv")
    A("s_cmp_ge_u32 s13, 4"); A("s_cbranch_scc1 L_team")
    A("s_cmp_ge_u32 s13, 2"); A("s_cbranch_scc1 L_end")
    A("v_mov_b32 v38, 0")
    A("v_mov_b32 v4, -1"); A("v_mov_b32 v5, 0"); A("v_mov_b32 v6, 0"); A("v_mov_b32 v7, 0")
    A(f"ds_write_b128 v38, v[4:7] offset:{L_ML}")
    A(f"ds_write_b64 v38, v[6:7] offset:{L_CNA}")
    A(f"s_getreg_b32 s{SXCC}, hwreg(HW_REG_XCC_ID, 0, 4)")
    A("s_waitcnt lgkmcnt(0)")
    A(f"s_load_dword s{ST}, s[42:43], {WS_E}")
    table()
    A("s_barrier")
    tag()
    tag_bytes()
    A("s_cmp_eq_u32 s13, 0"); A("s_cbranch_scc1 L_sv0")
    A("s_bfe_u32 s61, s14, 0x80010")
    A("s_cmp_ge_u32 s61, 32"); A("s_cbranch_scc1 L_fin")
    poll_lds(g, [f"ds_read_b32 v8, v38 offset:{L_ML}"], [8], 9, 16)
    A("s_branch L_r_f2")

    g.lab("L_sv0")
    if not opts.get("spread", 0):
        A(f"s_add_u32 s{SXCC}, s{SXCC}, s{ST}")
        A("s_lshr_b32 s49, s2, 5"); A("s_lshl_b32 s50, s8, 5"); A("s_add_u32 s49, s49, s50"); A("s_lshl_b32 s49, s49, 2")
        A("v_mov_b32 v8, s49"); A(f"v_mov_b32 v9, s{SXCC}")
        A("s_mov_b64 exec, 1")
        A(f"global_store_dword v8, v9, s[42:43] offset:{WS_HDR} sc1")
        A("s_mov_b64 exec, -1")
    for i in range(3):
        A(f"s_lshl_b32 s{54+i}, s6, 9"); A(f"s_add_u32 s{54+i}, s{54+i}, {128*i}")
    wait_cnt(g, f"ds_read_b32 v8, v38 offset:{L_CNA}", 8, 12, 16)
    sissue(3, 2, WS_S2)
    spoll(3, 2, WS_S2, "L_s3s", 8)
    A(f"ds_write_b32 v38, v38 offset:{L_ML}")
    g.stamp(5)
    A("s_branch L_fin")

    g.lab("L_team")
    A("s_and_b32 s5, s13, 3")
    A("v_and_b32 v0, 0xff, v0")
    A("v_mov_b32 v38, 0")
    A(f"s_mov_b32 s{STG}, 0")
    A("s_lshr_b32 s60, s2, 5")
    A("v_lshrrev_b32 v12, 3, v0")
    A("v_lshlrev_b32 v12, 5, v12")
    A("v_bfe_u32 v3, v1, 2, 1")
    A("v_lshl_add_u32 v12, v3, 10, v12")
    A("v_and_b32 v8, 3, v1")
    A("v_lshl_add_u32 v37, v8, 3, v12")
    A("v_and_b32 v12, 0xffffffdf, v12")
    A("v_lshl_add_u32 v12, v8, 4, v12")
    A("v_bfe_u32 v8, v1, 3, 1")
    A("v_lshl_add_u32 v12, v8, 3, v12")
    A("v_lshl_add_u32 v12, v3, 5, v12")
    A("s_waitcnt lgkmcnt(0)")
    A(f"s_load_dword s{ST}, s[42:43], {WS_E}")
    A("s_barrier")
    A("s_cmp_ge_u32 s13, 8"); A("s_cbranch_scc1 L_r_mod")

    def line_out_addr(v, bsh=6, ush=7):
        A(f"v_and_b32 v{v}, 1, v1")
        A(f"v_lshlrev_b32 v{v}, {bsh}, v{v}")
        A("v_lshrrev_b32 v3, 4, v1")
        A(f"v_lshl_add_u32 v{v}, v3, 4, v{v}")
        A(f"s_lshl_b32 s49, s5, {ush}")
        A("s_add_u32 s49, s49, s58")
        A(f"v_add_u32 v{v}, s49, v{v}")
    def pack_tagged():
        A("v_cvt_pk_bf16_f32 v8, v8, v9")
        A("v_cvt_pk_bf16_f32 v10, v10, v11")
        A(f"v_mov_b32 v9, s{ST}")
        A(f"v_mov_b32 v11, s{ST}")
    def go(k):
        A("v_mov_b32 v3, 1")
        A("s_mov_b64 exec, 1")
        A(f"ds_add_u32 v38, v3 offset:{L_GO+4*k}")
        A("s_mov_b64 exec, -1")

    g.T = TA
    g.lab("L_r_q")
    A("s_lshl3_add_u32 s61, s8, s60")
    A("s_lshl_b32 s48, s61, 7")
    A("s_lshl_b32 s58, s61, 8")
    A(f"s_add_u32 s58, s58, {WS_Q}")
    A("global_load_dwordx2 v[14:15], v37, s[16:17]")
    srd(g, 44, 22, 512*8192)
    A("s_cmp_ge_u32 s60, 2"); A("s_cbranch_scc1 L_q_go")
    wait_cnt(g, f"ds_read_b32 v8, v38 offset:{L_GO+4}", 8, 4, 1)
    g.lab("L_q_go")
    dma_tile64(g, 8192, WFL, opts.get("PQ", 0))
    go(0)
    tag()
    A("v_bfe_u32 v6, v1, 2, 1")
    A("v_lshlrev_b32 v6, 5, v6")
    A(f"v_add_u32 v6, {TA.RED}, v6")
    A("s_lshl_b32 s49, s5, 3")
    A("v_add_u32 v5, s49, v6")
    A("s_waitcnt vmcnt(16)")
    unpack4(g, 20, 14)
    ln_partial(g, 20)
    A("s_waitcnt vmcnt(0) lgkmcnt(0)")
    hsync(g, 9)
    ln_apply(g, 20, 24)
    A("s_lshl_b32 s49, s8, 13"); A(f"s_add_u32 s49, s49, {WS_MA}")
    A("v_lshl_add_u32 v15, v0, 4, s49")
    A("v_add_u32 v36, 0x1000, v15")
    def mod_loads():
        A("s_mov_b64 exec, s[64:65]")
        A("global_load_dwordx4 v[16:19], v15, s[42:43] sc1")
        A("s_mov_b64 exec, s[66:67]")
        A("global_load_dwordx4 v[32:35], v36, s[42:43] sc1")
        A("s_mov_b64 exec, -1")
    A("s_mov_b64 s[64:65], -1"); A("s_mov_b64 s[66:67], -1")
    mod_loads()
    tr_tile64(g)
    line_out_addr(13, 14, 6)
    act_addr(g, 14, TA.ACT, ACT_BS)
    g.stamp(1)
    A("s_mov_b32 s70, 0")
    A("s_branch L_q_c")
    g.lab("L_q_p")
    mod_loads()
    g.lab("L_q_c")
    A("s_waitcnt vmcnt(0)")
    A(f"v_cmp_ne_u32 s[64:65], s{ST}, v17"); A(f"v_cmp_ne_u32 s[68:69], s{ST}, v19"); A("s_or_b64 s[64:65], s[64:65], s[68:69]")
    A(f"v_cmp_ne_u32 s[66:67], s{ST}, v33"); A(f"v_cmp_ne_u32 s[68:69], s{ST}, v35"); A("s_or_b64 s[66:67], s[66:67], s[68:69]")
    A("s_or_b64 vcc, s[64:65], s[66:67]")
    A("s_or_b32 s64, s64, 1"); A("s_or_b32 s66, s66, 1")
    spin_tail(g, "L_q_p", "L_q_ok", opts.get("msleep", 2))
    g.stamp(3)
    unpack4(g, 28, 32, 2)
    unpack4(g, 24, 16, 2)
    for i in range(4): A(f"v_add_f32 v{28+i}, 1.0, v{28+i}")
    for i in range(4): rnd(g, 28+i)
    for i in range(4): A(f"v_mul_f32 v{20+i}, v{20+i}, v{28+i}")
    for i in range(4): rnd(g, 20+i)
    for i in range(4): A(f"v_add_f32 v{20+i}, v{20+i}, v{24+i}")
    A("v_cvt_pk_bf16_f32 v16, v20, v21")
    A("v_cvt_pk_bf16_f32 v17, v22, v23")
    A(f"ds_write_b64 v12, v[16:17] offset:{TA.ACT}")
    hsync(g, 9)
    gemv(g, 16, 14, 8)
    pack_tagged()
    guard(g, 8); guard(g, 10)
    for x in EX8: A(x)
    A("global_store_dwordx4 v13, v[8:11], s[42:43] sc1")
    A("s_mov_b64 exec, -1")
    g.stamp(4)

    g.lab("L_r_wo")
    A("s_xor_b32 s61, s60, 1")
    A("s_lshl_b32 s48, s8, 19")
    A("s_lshl_b32 s49, s61, 7")
    A("s_add_u32 s48, s48, s49")
    A("s_lshr_b32 s58, s8, 1"); A("s_lshl_b32 s58, s58, 14")
    A("s_and_b32 s49, s8, 1"); A("s_lshl_b32 s49, s49, 12"); A("s_add_u32 s58, s58, s49")
    A("s_lshl_b32 s49, s61, 9")
    A("s_add_u32 s58, s58, s49")
    A(f"s_add_u32 s58, s58, {WS_AP}")
    srd(g, 44, 24, 4096*1024)
    dma_tile64(g, 1024, WFL, opts.get("PW", 4))
    tag_bytes()
    A("s_lshl2_add_u32 s49, s8, s5"); A("s_lshl_b32 s49, s49, 11")
    A(f"s_add_u32 s49, s49, {WS_OP}")
    A("v_lshrrev_b32 v12, 5, v1")
    A("v_and_b32 v16, 31, v1")
    A("v_lshlrev_b32 v15, 16, v12")
    A("v_lshl_add_u32 v15, v16, 4, v15")
    A("v_add_u32 v15, s49, v15")
    A(f"v_mul_u32_u24 v12, {ACT_BS}, v12")
    A("v_bfe_u32 v16, v1, 3, 2")
    A("v_lshl_add_u32 v12, v16, 6, v12")
    A("v_and_b32 v16, 3, v1")
    A("v_lshl_add_u32 v12, v16, 4, v12")
    A("v_bfe_u32 v16, v1, 2, 1")
    A("v_lshl_add_u32 v12, v16, 3, v12")
    A("s_lshl_b32 s49, s5, 8")
    A("v_add_u32 v12, s49, v12")
    line_out_addr(13)
    A("v_mov_b32 v36, 0xff")
    if PT & 2: A("global_load_dword v11, v13, s[42:43] sc1")
    A("s_waitcnt vmcnt(0)")
    g.stamp(5)
    hsync(g, 9, 4)
    tr_tile64(g)
    poll_lds(g, [f"ds_read_b32 v8, v38 offset:{L_ML}"], [8], 9, 8)
    if opts.get("notail"): go(0); A("s_branch L_fin")

    def sumN(n, src, dst):
        st = n // 2
        for i in range(st):
            for h in range(2):
                A(f"v_pk_add_f32 {vr(dst+4*i+2*h,2)}, {vr(src+4*i+2*h,2)}, {vr(src+4*(i+st)+2*h,2)}")
        st //= 2
        while st:
            for i in range(st):
                for h in range(2):
                    A(f"v_pk_add_f32 {vr(dst+4*i+2*h,2)}, {vr(dst+4*i+2*h,2)}, {vr(dst+4*(i+st)+2*h,2)}")
            st //= 2
    def sum8p(src, dst):
        for p in range(4):
            for h in range(2): A(f"v_pk_add_f32 {vr(dst+8*p+2*h,2)}, {vr(src+8*p+2*h,2)}, {vr(src+8*p+4+2*h,2)}")
        sum8q(dst)
    def sum8q(dst):
        for i in range(2):
            for h in range(2): A(f"v_pk_add_f32 {vr(dst+16*i+2*h,2)}, {vr(dst+16*i+2*h,2)}, {vr(dst+16*i+8+2*h,2)}")
        for h in range(2): A(f"v_pk_add_f32 {vr(dst+2*h,2)}, {vr(dst+2*h,2)}, {vr(dst+16+2*h,2)}")
    def x1_from(S):
        for i in range(4): rnd(g, S+i)
        for i in range(4): A(f"v_mul_f32 v{S+i}, v{S+i}, v{20+i}")
        for i in range(4): rnd(g, S+i)
        for i in range(4): A(f"v_add_f32 v{16+i}, v{16+i}, v{S+i}")
        for i in range(4): rnd(g, 16+i)
    TSL = opts.get("tsl", 0)
    def gather(n, load, raw, tmp, name, depth, gap, fin, msk=20, first=None):
        for i in range(n): A(f"s_mov_b64 s[{msk+2*i}:{msk+2*i+1}], {first[i] if first else -1}")
        def rnd_():
            for i in range(n):
                A(f"s_mov_b64 exec, s[{msk+2*i}:{msk+2*i+1}]")
                load(i, raw + 4*i)
            A("s_mov_b64 exec, -1")
        rnd_()
        A("s_waitcnt vmcnt(0)")
        A("s_mov_b32 s70, 0")
        A(f"s_branch {name}c")
        g.lab(name)
        rnd_()
        if gap: A(f"s_sleep {gap}")
        A(f"s_waitcnt vmcnt({n*(depth-1)})")
        g.lab(name + "c")
        for k in range(4*n): A(f"v_xor_b32 v{tmp+k}, s{TB+k%4}, v{raw+k}")
        for i in range(n): A(f"v_or3_b32 v{28+i}, v{tmp+4*i}, v{tmp+4*i+1}, v{tmp+4*i+2}")
        for i in range(n): A(f"v_or_b32 v{28+i}, v{28+i}, v{tmp+4*i+3}")
        for i in range(n): A(f"v_cmp_ne_u32_sdwa s[{msk+2*i}:{msk+2*i+1}], v{28+i}, v38 src0_sel:BYTE_0 src1_sel:DWORD")
        fin()
        A(f"s_mov_b64 vcc, s[{msk}:{msk+1}]")
        for i in range(1, n): A(f"s_or_b64 vcc, vcc, s[{msk+2*i}:{msk+2*i+1}]")
        for i in range(n): A(f"s_or_b32 s{msk+2*i}, s{msk+2*i}, 1")
        spin_tail(g, name, name + "ok", 0)
    def wo_fin():
        for i in range(12): A(f"v_or_b32 v{VA+32+i}, 0x80, v{VA+32+i}")
        for h in range(2): A(f"v_pk_add_f32 {vr(16+2*h,2)}, {vr(VA+32+2*h,2)}, {vr(VA+36+2*h,2)}")
        for h in range(2): A(f"v_pk_add_f32 {vr(16+2*h,2)}, {vr(16+2*h,2)}, {vr(VA+40+2*h,2)}")
    gather(3, lambda i, r: A(f"global_load_dwordx4 {vr(r,4)}, v15, s[42:43] offset:{512*i} sc1"), VA+48, VA+32, "L_wo_",
           opts.get("wpipe", 1), opts.get("wgap", 0), wo_fin)
    A("v_cvt_pk_bf16_f32 v8, v16, v17")
    A("v_cvt_pk_bf16_f32 v9, v18, v19")
    g.stamp(7)
    A(f"ds_write_b64 v12, v[8:9] offset:{TA.ACT}")
    NSPEC = opts.get("nspec", 4)
    gemv(g, 16, 14, 8, 12, 3, NSPEC)
    for i in range(4): A(f"v_bfi_b32 v{8+i}, v36, s{TB+i}, v{8+i}")
    for x in EX8: A(x)
    A("global_store_dwordx4 v13, v[8:11], s[42:43] sc1")
    g.stamp(2)
    go(0)
    A("s_branch L_fin")

    PG = VA + 32
    def pre_gather(offs):
        n = len(offs)
        l = g.uniq("pg"); e = g.uniq("pge")
        A("global_load_dwordx2 v[8:9], v37, s[16:17]")
        A("s_mov_b32 s70, 0")
        g.lab(l)
        for i, o in enumerate(offs):
            if -4096 <= o < 4096: A(f"global_load_dwordx4 {vr(PG+4*i,4)}, v39, s[42:43] offset:{o} sc1")
            else:
                A(f"v_add_u32 v3, {o}, v39")
                A(f"global_load_dwordx4 {vr(PG+4*i,4)}, v3, s[42:43] sc1")
        A("s_waitcnt vmcnt(0)")
        A("s_mov_b64 vcc, 0")
        for i in range(2 * n):
            A(f"v_cmp_ne_u32 s[68:69], s{ST}, v{PG+1+2*i}")
            A("s_or_b64 vcc, vcc, s[68:69]")
        spin_tail(g, l, e, 8)
    adr = [15, 4, 0, 36]
    def ap_addrs():
        for p in range(1, 4): A(f"v_add_u32 v{adr[p]}, {16384*p}, v15")
    def ap_load(i): A(f"global_load_dwordx4 {vr(VA+4*i,4)}, v{adr[i>>1]}, s[42:43] offset:{-4096 if i % 2 == 0 else 0} sc1")

    g.T = TB_
    g.lab("L_r_mod")
    A("global_load_dwordx2 v[14:15], v37, s[34:35]")
    srd(g, 44, 36, 512*6144)
    def mod_tile(first):
        A("s_lshl_b32 s48, s61, 7")
        A("s_lshl_b32 s58, s61, 9")
        A(f"s_add_u32 s58, s58, {WS_MA if first else WS_MOD}")
        dma_tile64(g, 6144, WFL, 0 if first else opts.get("PB", 6))
        if first:
            go(1)
            table()
            tag()
            A("s_waitcnt vmcnt(16)")
            mod_act()
        line_out_addr(13)
        if first:
            A("v_bfe_u32 v3, v1, 1, 3")
            A("v_lshl_add_u32 v13, v3, 13, v13")
        act_addr(g, 14, TB_.ACT, ACT_BS)
        tr64_addr(g)
        A("s_waitcnt vmcnt(0) lgkmcnt(0)")
        g.stamp(1 if first else 4)
        hsync(g, 9, 0 if first else 4)
        gemv_fused(g, 14, 8)
        pack_tagged()
        if not first:
            for x in EX8: A(x)
        A("global_store_dwordx4 v13, v[8:11], s[42:43] sc1")
        A("s_mov_b64 exec, -1")
        g.stamp(3 if first else 5)
        hsync(g, 9)
    def mod_act():
        unpack4(g, 16, 14)
        silu4(g, 16, 20)
        A("v_cvt_pk_bf16_f32 v14, v16, v17")
        A("v_cvt_pk_bf16_f32 v15, v18, v19")
        A(f"ds_write_b64 v12, v[14:15] offset:{TB_.ACT}")
    A("s_cmp_ge_u32 s60, 2"); A("s_cbranch_scc1 L_mod2")
    A("s_lshl1_add_u32 s61, s8, s60")
    mod_tile(True)
    A("s_branch L_mod3")
    g.lab("L_mod2")
    table()
    tag()
    A("s_waitcnt vmcnt(0)")
    mod_act()
    g.lab("L_mod3")
    EF = opts.get("ef", 0)
    def qfirst(): wait_cnt(g, f"ds_read_b32 v8, v38 offset:{L_CNA}", 8, 4 * opts.get("bh", 2), 4)
    wait_cnt(g, f"ds_read_b32 v8, v38 offset:{L_GO}", 8, 4, 4)
    A("s_and_b32 s61, s14, 0xff")
    A("s_cmp_ge_u32 s61, 48"); A("s_cbranch_scc1 L_r_f1")
    qfirst()
    A("s_and_b32 s61, s14, 0xff")
    g.lab("L_mod4")
    A("s_cmp_ge_u32 s61, 48"); A("s_cbranch_scc1 L_r_f1")
    mod_tile(False)
    A("s_lshr_b32 s61, s14, 24")
    A("s_or_b32 s14, s14, 0xff000000")
    A("s_branch L_mod4")

    g.lab("L_r_f1")
    A("s_bfe_u32 s61, s14, 0x80008")
    A("s_cmp_ge_u32 s61, 43"); A("s_cbranch_scc1 L_fin")
    A("s_lshl_b32 s48, s61, 6")
    A("s_lshl_b32 s58, s61, 7")
    A(f"s_add_u32 s58, s58, {WS_FP}")
    A("s_cmp_lt_u32 s5, 2")
    A("s_cselect_b32 s44, s28, s30")
    A("s_cselect_b32 s45, s29, s31")
    A(f"s_mov_b32 s46, {512*2752}")
    for h in range(2):
        A("s_and_b32 s54, s61, 1" if h == 0 else "s_andn2_b32 s54, 1, s61")
        A("v_lshrrev_b32 v2, 2, v1")
        A("v_mul_u32_u24 v2, 5504, v2")
        A("s_and_b32 s49, s5, 2")
        A("s_or_b32 s49, s49, s54")
        A("v_xor_b32 v3, s49, v1")
        A("v_and_b32 v3, 3, v3")
        A("v_lshl_add_u32 v2, v3, 4, v2")
        A("s_and_b32 s55, s5, 1")
        A(f"s_mul_i32 s49, s55, {256*2752}"); A("s_add_u32 s49, s49, s48")
        A("s_mul_i32 s50, s54, 2752"); A("s_add_u32 s49, s49, s50")
        A("s_lshr_b32 s50, s5, 1"); A("s_lshl_b32 s50, s50, 15")
        A("s_lshl_b32 s54, s54, 14"); A("s_add_u32 s50, s50, s54")
        A("s_lshl_b32 s55, s55, 13"); A("s_add_u32 s50, s50, s55")
        A(f"s_add_u32 s50, s50, {TB_.WT}")
        if h == 0:
            if EF: dma_loop(g, EF, 32*2752, "", 0)
            qfirst()
            if EF < 8: dma_loop(g, 8 - EF, 32*2752, "", opts.get("P1", 3))
        else: dma_loop(g, 8, 32*2752, WFL, opts.get("P1", 3))
    A("v_lshlrev_b32 v15, 4, v0")
    A(f"v_add_u32 v39, {WS_MOD+3*4096}, v15")
    A(f"v_add_u32 v15, {WS_AP+4096}, v15")
    A("v_lshrrev_b32 v5, 2, v0")
    A("v_lshlrev_b32 v5, 3, v5")
    A(f"v_add_u32 v5, {TB_.RED}, v5")
    A("v_lshlrev_b32 v7, 3, v1")
    A(f"v_add_u32 v7, {TB_.RED}, v7")
    A("v_and_b32 v14, 7, v1")
    A(f"v_mul_u32_u24 v14, {ACT_BS}, v14")
    A("v_lshrrev_b32 v3, 4, v1")
    A("v_lshl_add_u32 v14, v3, 4, v14")
    A("v_bfe_u32 v6, v1, 2, 2")
    A("v_lshl_add_u32 v6, v3, 3, v6")
    A(f"v_mul_u32_u24 v6, {W2S}, v6")
    A("v_and_b32 v8, 3, v1")
    A("v_lshl_add_u32 v6, v8, 3, v6")
    A("s_lshl_b32 s49, s5, 8"); A(f"s_add_u32 s49, s49, {TB_.WT}")
    A("v_add_u32 v6, s49, v6")
    A("v_lshlrev_b32 v10, 3, v0")
    A(f"v_add_u32 v10, {L_HZ}, v10")
    A("v_mov_b32 v8, 0"); A("v_mov_b32 v9, 0")
    A("ds_write_b64 v10, v[8:9]")
    def f1_addrs():
        A("v_and_b32 v39, 1, v1")
        A("v_lshlrev_b32 v39, 6, v39")
        A(f"v_add_u32 v39, {L_HH}, v39")
        A("v_lshrrev_b32 v3, 4, v1")
        A("v_lshl_add_u32 v37, v3, 4, v39")
        A("v_bfe_u32 v3, v1, 1, 3")
        A("v_lshlrev_b32 v3, 7, v3")
        A("v_sub_u32 v37, v37, v3")
        A("v_bfe_u32 v3, v1, 4, 1")
        A("v_lshl_add_u32 v39, v3, 3, v39")
        A("v_lshrrev_b32 v3, 5, v1")
        A("v_lshl_add_u32 v39, v3, 2, v39")
        A("s_lshl_b32 s49, s5, 4")
        A("v_add_u32 v39, s49, v39")
    line_out_addr(13, 6, 17)
    A("v_bfe_u32 v3, v1, 1, 3")
    A("v_lshl_add_u32 v13, v3, 14, v13")
    A("v_lshrrev_b32 v2, 3, v1")
    A("v_lshlrev_b32 v2, 6, v2")
    A("v_bfe_u32 v3, v1, 2, 1")
    A("v_lshl_add_u32 v2, v3, 14, v2")
    A("v_and_b32 v8, 2, v1")
    A("v_or_b32 v3, v3, v8")
    A("v_xor_b32 v3, s5, v3")
    A("v_lshl_add_u32 v2, v3, 4, v2")
    A("v_lshl_add_u32 v2, v8, 14, v2")
    A("v_and_b32 v3, 1, v1")
    A("v_lshl_add_u32 v2, v3, 3, v2")
    A(f"v_add_u32 v2, {TB_.WT}, v2")
    A("s_waitcnt vmcnt(0)")
    hsync(g, 9, 4)
    tr_reads(g, 16, 1024, 512)
    hsync(g, 9)
    srd(g, 44, 32, 1376*1024)
    A("v_lshlrev_b32 v2, 4, v1")
    A("s_lshl2_add_u32 s49, s61, s5"); A("s_lshl_b32 s49, s49, 13")
    A(f"s_mul_i32 s50, s5, {8*W2S}")
    A(f"s_add_u32 s50, s50, {TB_.WT}")
    dma_loop(g, 8, 1024, WFL, opts.get("P2", 4), W2S)
    tag_bytes()
    g.stamp(6)
    if opts.get("notail"): A("s_branch L_fin")
    ap_addrs()
    pre_gather([-4096, 0, 4096])
    f1_addrs()
    unpack4(g, 16, 8)
    unpack4(g, 20, PG, 2)
    unpack4(g, 28, PG+8, 2)
    for i in range(4): A(f"v_add_f32 v{28+i}, 1.0, v{28+i}")
    A("v_cvt_pk_bf16_f32 v8, v28, v29"); A("v_cvt_pk_bf16_f32 v9, v30, v31")
    A(f"v_mov_b32 v{PG+5}, v{PG+6}")
    A(f"ds_write_b64 v12, v[8:9] offset:{TB_.ACT+2*ACT_BS}")
    A(f"ds_write_b64 v12, {vr(PG+4,2)} offset:{TB_.ACT+4*ACT_BS}")
    for i in range(4): rnd(g, 28+i)
    for i in range(4): A(f"v_mul_f32 v{24+i}, v{20+i}, v{28+i}")
    for i in range(4): A(f"v_mul_f32 v{28+i}, v{16+i}, v{28+i}")
    A("s_waitcnt lgkmcnt(0)")
    A("s_waitcnt vmcnt(0)")
    wait_cnt(g, f"ds_read_b32 v8, v38 offset:{L_GO}", 8, 8, 2)
    g.stamp(9)
    S = VA + 32
    A("s_mov_b32 s70, 0")
    A("s_mov_b32 s71, 15")
    APD = opts.get("apipe", 1)
    def ap_round():
        for p in range(4):
            if APD == 1:
                l = g.uniq("fl")
                A(f"s_bitcmp1_b32 s71, {p}"); A(f"s_cbranch_scc0 {l}")
                ap_load(2*p); ap_load(2*p+1)
                g.lab(l)
            else:
                A(f"s_bitcmp1_b32 s71, {p}"); A("s_cselect_b64 exec, -1, 1")
                ap_load(2*p); ap_load(2*p+1)
        if APD > 1: A("s_mov_b64 exec, -1")
    ap_round()
    A("s_waitcnt vmcnt(0)")
    A("s_branch L_f1_c")
    g.lab("L_f1_p")
    A("s_add_u32 s70, s70, 1")
    A(f"s_cmp_ge_u32 s70, {SPIN_MAX}")
    A("s_cbranch_scc1 L_f1_ok")
    ap_round()
    if opts.get("agap", 0): A(f"s_sleep {opts.get('agap', 0)}")
    A(f"s_waitcnt vmcnt({8*(APD-1)})")
    g.lab("L_f1_c")
    for p in range(4):
        l = g.uniq("fc")
        A(f"s_bitcmp1_b32 s71, {p}"); A(f"s_cbranch_scc0 {l}")
        B_ = S + 8 * p
        for k in range(8): A(f"v_xor_b32 v{B_+k}, s{TB+k%4}, v{VA+8*p+k}")
        A(f"v_or3_b32 v8, v{B_}, v{B_+1}, v{B_+2}")
        A(f"v_or3_b32 v9, v{B_+3}, v{B_+4}, v{B_+5}")
        A(f"v_or3_b32 v8, v8, v{B_+6}, v{B_+7}")
        for h in range(2): A(f"v_pk_add_f32 {vr(B_+2*h,2)}, {vr(B_+2*h,2)}, {vr(B_+4+2*h,2)}")
        A("v_or_b32 v8, v8, v9")
        A("v_cmp_ne_u32_sdwa vcc, v8, v38 src0_sel:BYTE_0 src1_sel:DWORD")
        A("s_cmp_lg_u64 vcc, 0"); A(f"s_cbranch_scc1 {l}")
        A(f"s_bitset0_b32 s71, {p}")
        g.lab(l)
    A("s_cmp_lg_u32 s71, 0")
    A("s_cbranch_scc1 L_f1_p")
    g.lab("L_f1_ok")
    sum8q(S)
    g.stamp(7)
    for h in range(2): A(f"v_pk_fma_f32 {vr(8+2*h,2)}, {vr(S+2*h,2)}, {vr(24+2*h,2)}, {vr(28+2*h,2)}")
    A("v_cvt_pk_bf16_f32 v8, v8, v9")
    A("v_cvt_pk_bf16_f32 v9, v10, v11")
    A(f"ds_write_b64 v12, v[8:9] offset:{TB_.ACT}")
    for h in range(2): A(f"v_pk_fma_f32 {vr(16+2*h,2)}, {vr(S+2*h,2)}, {vr(20+2*h,2)}, {vr(16+2*h,2)}")
    x = 16
    dpp = lambda r, mod: f"v_add_f32_dpp v{r}, v{r}, v{r} {mod} row_mask:0xf bank_mask:0xf"
    for t in (f"v_add_f32 v24, v{x}, v{x+1}", f"v_mul_f32 v25, v{x}, v{x}", f"v_add_f32 v26, v{x+2}, v{x+3}", f"v_mul_f32 v27, v{x+2}, v{x+2}",
              f"v_fmac_f32 v25, v{x+1}, v{x+1}", f"v_fmac_f32 v27, v{x+3}, v{x+3}", "v_pk_add_f32 v[24:25], v[24:25], v[26:27]", "s_nop 1",
              dpp(24, "quad_perm:[1,0,3,2]"), dpp(25, "quad_perm:[1,0,3,2]"), "s_nop 0",
              dpp(24, "quad_perm:[2,3,0,1]"), dpp(25, "quad_perm:[2,3,0,1]")): A(t)
    A("ds_write_b64 v5, v[24:25]")
    hsync(g, 10, 0, [f"ds_read_b128 {vr(S+4*m,4)}, v14 offset:{TB_.ACT+64*m}" for m in range(min(NSPEC, 4))])
    DF = 32
    q = []
    def rd(m): A(f"ds_read_b128 {vr(S+4*(m%8),4)}, v14 offset:{TB_.ACT+64*m}"); q.append(("r", m))
    def need(op):
        i = q.index(op); A(f"s_waitcnt lgkmcnt({len(q)-1-i})"); del q[:i+1]
    def w2rd(c):
        for h in range(2): A(f"ds_read_b64_tr_b16 {vr(VW+4*c+2*h,2)}, v6 offset:{32*c+4*h*W2S}"); q.append(("w", c, h))
    for m in range(4):
        if m < NSPEC: q.append(("r", m))
        else: rd(m)
    A("ds_read_b64 v[20:21], v7"); q.append(("s",))
    for m in range(4, 8): rd(m)
    fill = {4: [dpp(20, "quad_perm:[2,3,0,1]"), dpp(21, "quad_perm:[2,3,0,1]")],
            5: [dpp(20, "row_ror:4"), dpp(21, "row_ror:4")],
            6: [dpp(20, "row_ror:8"), dpp(21, "row_ror:8")],
            7: ["v_mov_b32 v22, v20", "v_mov_b32 v23, v21"],
            8: ["v_permlane16_swap_b32 v22, v20", "v_permlane16_swap_b32 v23, v21"],
            9: ["v_pk_add_f32 v[20:21], v[20:21], v[22:23]", "v_mov_b32 v22, v20", "v_mov_b32 v23, v21"],
            10: ["v_permlane32_swap_b32 v22, v20", "v_permlane32_swap_b32 v23, v21"],
            11: ["v_pk_add_f32 v[20:21], v[20:21], v[22:23]", f"v_mul_f32 v20, 0x{f2u(-1/512):08x}, v20"],
            12: [f"v_mul_f32 v21, 0x{f2u(1/512):08x}, v21", "v_fma_f32 v21, -v20, v20, v21"],
            13: ["v_max_f32 v21, 0, v21", f"v_add_f32 v21, 0x{EPS:08x}, v21"],
            14: ["v_rsq_f32 v21, v21"]}
    for m in range(16):
        if ("r", m) in q: need(("r", m))
        else: A("s_nop 0")
        c = "0" if m == 0 else vr(DF, 4)
        A(f"v_mfma_f32_16x16x32_bf16 {vr(DF,4)}, {vr(VW+4*m,4)}, {vr(S+4*(m%8),4)}, {c}")
        if 1 <= m <= 8: rd(7 + m)
        for t in fill.get(m, []): A(t)
    for c in range(4): w2rd(c)
    for i in range(4): A(f"v_fmac_f32_dpp v{DF+i}, v{DF+i}, v20 row_shl:2 row_mask:0xf bank_mask:0x1")
    for i in range(4): A(f"v_mul_f32 v{8+i}, v{DF+i}, v21")
    for i in range(4): A(f"v_add_f32_dpp v{8+i}, v{DF+i}, v{8+i} row_shl:4 row_mask:0xf bank_mask:0xf")
    A("s_waitcnt lgkmcnt(4)")
    for c in range(4, 8): w2rd(c)
    A("v_permlane32_swap_b32 v8, v10")
    A("v_permlane32_swap_b32 v9, v11")
    for i in range(2): A(f"v_mul_f32 v{20+i}, 0x{LOG2E ^ 0x80000000:08x}, v{8+i}")
    for i in range(2): A(f"v_exp_f32 v{20+i}, v{20+i}")
    for i in range(2): A(f"v_mul_f32 v{8+i}, v{8+i}, v{10+i}")
    for i in range(2): A(f"v_add_f32 v{20+i}, 1.0, v{20+i}")
    for i in range(2): A(f"v_rcp_f32 v{20+i}, v{20+i}")
    for x in EX8: A(x)
    for i in range(2): A(f"v_mul_f32 v{8+i}, v{8+i}, v{20+i}")
    A("v_cvt_pk_bf16_f32 v8, v8, v9")
    A("ds_write_b32 v39, v8")
    A("s_mov_b64 exec, -1")
    rds = [f"ds_read_b128 {vr(S+4*c,4)}, v37 offset:{128*c}" for c in range(8)]
    A("s_waitcnt lgkmcnt(4)")
    hsync(g, 10, 0, rds[:NSPEC])
    for r in rds[NSPEC:]: A(r)
    A("v_mov_b32 v3, 0xff")
    for c in range(8):
        A(f"s_waitcnt lgkmcnt({7-c})")
        A(f"v_mfma_f32_16x16x32_bf16 v[8:11], {vr(VW+4*c,4)}, {vr(S+4*c,4)}, {'0' if c == 0 else 'v[8:11]'}")
    A("s_nop 7")
    for i in range(4): A(f"v_bfi_b32 v{8+i}, v3, s{TB+i}, v{8+i}")
    A("global_store_dwordx4 v13, v[8:11], s[42:43] sc1")
    g.stamp(2)
    A("s_branch L_fin")

    g.lab("L_r_f2")
    if opts.get("notail"): A("s_branch L_fin")
    A("v_bfe_u32 v12, v1, 2, 1")
    A("v_and_b32 v14, 3, v1")
    A("s_lshl_b32 s49, s61, 5")
    A("v_lshl_add_u32 v3, v14, 3, s49")
    A("v_lshl_add_u32 v37, v12, 10, v3")
    A("v_and_b32 v15, 7, v1")
    A("s_lshl_b32 s49, s61, 7")
    A("v_lshl_add_u32 v15, v15, 4, s49")
    A(f"v_add_u32 v39, {WS_MOD+3*4096}, v15")
    A("v_bfe_u32 v3, v1, 3, 1")
    A("v_lshl_add_u32 v15, v3, 12, v15")
    A("v_lshrrev_b32 v3, 4, v1")
    A("v_lshl_add_u32 v15, v3, 14, v15")
    A(f"v_add_u32 v15, {WS_AP}, v15")
    A("s_lshl_b32 s49, s61, 14"); A(f"s_add_u32 s49, s49, {WS_FP+2048}")
    A("v_lshl_add_u32 v36, v1, 4, s49")

    A("global_load_dword v11, v37, s[38:39]")
    if PT & 4:
        A("s_lshl_b32 s49, s61, 14"); A(f"s_add_u32 s49, s49, {WS_FP}")
        A("v_min_u32 v10, 42, v1"); A("v_lshl_add_u32 v10, v10, 7, s49")
        A("global_load_dword v11, v10, s[42:43] sc1")
        A("s_lshl_b32 s49, s61, 7"); A(f"s_add_u32 s49, s49, {WS_DN}")
        A("v_mov_b32 v10, s49")
        A("global_load_dword v11, v10, s[42:43] sc1")
    pre_gather([-4096, 8192])
    unpack4(g, 16, 8)
    unpack4(g, 20, PG, 2)
    unpack4(g, 24, PG+4, 2)
    wait_cnt(g, f"ds_read_b32 v8, v38 offset:{L_GO}", 8, 8, 2)
    g.stamp(9)
    def src_sum(r):
        A("s_nop 1")
        for i in range(4): A(f"v_add_f32_dpp v{r+i}, v{r+i}, v{r+i} row_ror:8 row_mask:0xf bank_mask:0xf")
        for sw in ("v_permlane16_swap_b32", "v_permlane32_swap_b32"):
            for i in range(4): A(f"v_mov_b32 v{r+4+i}, v{r+i}")
            for i in range(4): A(f"{sw} v{r+4+i}, v{r+i}")
            for i in range(4): A(f"v_add_f32 v{r+i}, v{r+i}, v{r+4+i}")
    A("s_mov_b32 s70, 0")
    g.lab("L_f2_a")
    A(f"global_load_dwordx4 {vr(S,4)}, v15, s[42:43] sc1")
    A("s_waitcnt vmcnt(0)")
    for k in range(4): A(f"v_xor_b32 v{S+k}, s{TB+k}, v{S+k}")
    A(f"v_or3_b32 v3, v{S}, v{S+1}, v{S+2}")
    A(f"v_or_b32 v3, v3, v{S+3}")
    A("v_lshlrev_b32 v3, 24, v3")
    A("v_cmp_ne_u32 vcc, 0, v3")
    spin_tail(g, "L_f2_a", "L_f2_ad", 4)
    A("s_cmp_lg_u32 s61, 0")
    A("s_cbranch_scc1 L_f2_e")
    A(f"v_mov_b32 v10, s{ST}")
    A("s_mov_b64 exec, 1")
    A(f"global_store_dword v38, v10, s[42:43] offset:{WS_E} sc1")
    A("s_mov_b64 exec, -1")
    g.lab("L_f2_e")
    src_sum(S)
    x1_from(S)
    for i in range(4): A(f"v_mov_b32 v{VA+32+20+i}, s{TB+i}")
    def f2_fin():
        for p in range(3):
            for h in range(2): A(f"v_pk_add_f32 {vr(VA+8*p+2*h,2)}, {vr(VA+8*p+2*h,2)}, {vr(VA+8*p+4+2*h,2)}")
        for p in (1, 2):
            for h in range(2): A(f"v_pk_add_f32 {vr(VA+2*h,2)}, {vr(VA+2*h,2)}, {vr(VA+8*p+2*h,2)}")
    gather(6, lambda i, r: A(f"global_load_dwordx4 {vr(r,4)}, v36, s[42:43] offset:{1024*i-2048} sc1"), VA+32, VA, "L_f2_p",
           opts.get("fpipe", 2), opts.get("fgap", 2), f2_fin, 20, [-1]*5 + ["0xffffff"])
    g.stamp(7)
    src_sum(VA)
    for i in range(4): rnd(g, VA+i)
    for i in range(4): A(f"v_mul_f32 v{VA+i}, v{VA+i}, v{24+i}")
    for i in range(4): rnd(g, VA+i)
    for i in range(4): A(f"v_add_f32 v{8+i}, v{VA+i}, v{16+i}")
    A("v_cvt_pk_bf16_f32 v8, v8, v9")
    A("v_cvt_pk_bf16_f32 v9, v10, v11")
    A("s_mov_b64 exec, 0xff")
    A("global_store_dwordx2 v37, v[8:9], s[38:39]" + ("" if opts.get("noosc") else " sc1"))
    A("s_mov_b64 exec, 1")
    A(f"v_mov_b32 v10, s{ST}")
    A("s_lshl_b32 s49, s61, 7"); A(f"s_add_u32 s49, s49, {WS_DN}")
    A("v_mov_b32 v11, s49")
    if not opts.get("nodn"): A("global_store_dword v11, v10, s[42:43] sc1")
    g.stamp(2)

    g.lab("L_fin")
    if opts.get("stamps"):
        A("s_waitcnt vmcnt(0)")
        g.stamp(8)
        dump_all(g, [SLOC])
    g.lab("L_end")
    A("s_endpgm")
    g.L.append(".p2align 7")
    g.lab("L_table")
    J = jobs()
    for j in range(8):
        A(".long " + ", ".join(f"0x{J[x, j][0] | J[x, j][1] << 8 | J[x, j][2] << 16 | J[x, j][3] << 24:08x}" for x in range(8)))
    g.lab("L_touch")
    odd = [1, 3, 5, 7]; evn = [0, 2, 4, 6]
    ch = [(0, t, c) for c in odd + evn for t in (0, 1)] + [(1, t, c) for c in evn + odd for t in (0, 1)] + [(1, 3, c) for c in odd + evn]
    ch += [(1, t, c) for c in odd for t in (2, 4, 5, 6, 7)] + [(1, t, c) for c in evn for t in (2, 4, 5, 6, 7)]
    ch = ch[:opts.get("nch", 60)]
    slots = [idx for idx in range(32) if idx & 3 != 3]
    TT = {sl: 0x80808080 for sl in range(32)}
    for n, (mx, t, c) in enumerate(ch):
        k, sl = divmod(n, len(slots))
        if k < NT: TT[slots[sl]] = TT[slots[sl]] & ~(0xff << 8*k) | (c | t << 3 | mx << 6) << 8*k
    for i in range(0, 32, 8):
        A(".long " + ", ".join(f"0x{TT[i+a]:08x}" for a in range(8)))
    g.L.append(f'''.section .rodata,"a"
.p2align 6
.amdhsa_kernel {KNAME}
  .amdhsa_next_free_vgpr 168
  .amdhsa_next_free_sgpr 102
  .amdhsa_accum_offset 168
  .amdhsa_group_segment_fixed_size 0
  .amdhsa_kernarg_size 112
  .amdhsa_user_sgpr_count 2
  .amdhsa_user_sgpr_kernarg_segment_ptr 1
  .amdhsa_system_sgpr_workgroup_id_x 1
.end_amdhsa_kernel''')
    opts["_jobs"] = J
    return "\n".join(g.L) + "\n"

if __name__ == "__main__":
    import os
    here = os.path.dirname(os.path.abspath(__file__))
    opts = {"ref": os.path.join(here, "..", KNAME[:-7] + ".s.ref")}
    out = sys.argv[1]
    for kv in sys.argv[2:]:
        k, v = kv.split("=")
        try: v = int(v)
        except ValueError:
            try: v = float(v)
            except ValueError: pass
        opts[k] = v
    open(out, "w").write(gen(opts))
```

```python
import sys, struct

KNAME = "adaLN_cond__sliding_block_cached__glu_gated_swiglu__decode_kernel"

def f2u(x): return struct.unpack("<I", struct.pack("<f", x))[0]
LOG2E = f2u(1.4426950408889634)
SCALE = f2u(128 ** -0.5)
EPS = f2u(1e-5)
ZERO_GAP = 93.0

WS_E   = 0x00000
WS_HDR = 0x00400
WS_DN  = 0x07000
WS_MOD = 0x01000
WS_Q   = 0x08000
WS_S1  = 0x10000
WS_S2  = 0x18000
WS_OP  = 0x20000
WS_AP  = 0x200000
WS_FP  = 0x180000
WS_OQ  = 0x80000
WS_MA  = 0xe0000
R2     = WS_OQ - WS_OP
WS_STAMP = 0x100000
ACT_BS = 1056
NS_   = 11
L_QV  = 0
L_ML  = L_QV + 256
L_GO  = L_ML + 8
L_SCN = L_ML + 16
L_MX  = L_ML + 20
L_ECN = L_ML + 24
L_E0  = L_ML + 28
L_RM  = L_ML + 32
L_SN  = L_ML + 48
L_TK  = L_ML + 52
L_CNA = L_ML + 56
L_CNB = L_ML + 60
L_E1  = L_ML + 64
L_S8  = L_ML + 128
L_S4  = L_S8 + 64
L_ST  = L_S4 + 64
L_OP  = L_ST + 512
L_OP1 = L_OP + 512 * NS_
L_VX  = L_OP1 + 512 * NS_
class Team: pass
TA, TB_ = Team(), Team()
TA.CNT, TB_.CNT = L_CNA, L_CNB
TA.ACT = L_OP
TA.RED = TA.ACT + 2 * ACT_BS
TB_.ACT = TA.RED + 64
TB_.RED = TB_.ACT + 6 * ACT_BS
L_HZ  = TB_.RED + 512
L_HH  = L_HZ + 7 * 128
TA.WT = (L_HZ + 2048 + 1023) // 1024 * 1024
TB_.WT = TA.WT + 65536
W2S   = 1024 + 32
LDS_BYTES = TB_.WT + 65536
assert LDS_BYTES <= 163840 and L_VX + 2048 * NS_ <= LDS_BYTES and L_ST + 128 <= L_S4 + 512
assert all(x % 16 == 0 for x in (L_S8, L_ST, L_OP, L_VX, TA.ACT, TA.RED, TB_.ACT, TB_.RED, L_HZ, L_E1))

def jobs():
    J = {}; nf = 0
    for x in range(8):
        six = x in (1, 3, 7)
        mb = sorted(range(16 + 4 * x, 20 + 4 * x), key=lambda t: t % 8 != 3)
        own = {0: mb[0:2], 1: mb[2:4]} if six else {0: mb[0:1], 1: mb[1:2], 2: mb[2:4]}
        for j in range(8):
            m = own.get(j, []) + [255, 255]
            f = 255
            if j >= (2 if six else 3): f = nf; nf += 1
            J[x, j] = (m[0], f, 4 * x + (j & 3) if j in (0, 1, 2, 7) else 255, m[1])
    assert nf == 43 and sorted(v[2] for v in J.values())[:32] == list(range(32))
    return J
SPIN_MAX = 1 << 18
ST, SLOC, SXCC = 74, 75, 76

NOTES = {
    "L_stream": "streaming waves: K (1 KB per load, bounded number in flight), then the V rows of the keys on the row list",
    "L_work": "background work of a streaming wave between two K loads: fetch q, first half of the scores, first row list",
    "L_ks": "one K step: background work, then wait until few enough loads are in flight",
    "L_vs": "one V step",
    "L_x1": "second half of the scores, max / sum of this wave, the rows near the top first, more rows for the list",
    "L_snap": "the rows near the top give the preliminary partial output",
    "L_hand": "list used up: with the true row max, add every remaining key whose weight is not exactly zero",
    "L_epi": "all rows consumed: reduce over the lanes, leave the final partial output in LDS",
    "L_pub": "wave 0 of a streaming workgroup: LDS set-up, exchange of the softmax statistics, preliminary output",
    "L_serv": "service workgroup",
    "L_touch": "per streaming workgroup: pieces of the first weights to pull into L2",
    "L_chk": "third streaming workgroup: final partial output; the head's final output against the preliminary one, bit by bit",
    "L_slow": "fallback: everything behind the attention again, from the final outputs, by this wave alone",
    "L_team": "service workgroup: two teams of four waves, MFMA mat-vecs on weight tiles staged by LDS-DMA",
    "L_r_q": "team A: LayerNorm + modulation + 64 columns of h @ wq",
    "L_r_wo": "team A: 512 x 64 tile of wo",
    "L_r_mod": "team B: 64 columns of silu(c) @ w_mod (shift / scale of the first block first)",
    "L_r_f1": "team B: 32 columns of w1 and w3, SwiGLU, their 32 rows of w2",
    "L_r_f2": "service workgroup, wave 1: 16 output columns: residuals, sum of the down-projection partials; advances the epoch word",
    "L_table": "per service workgroup: modulation tile | gate/up tile << 8 | output tile << 16",
}
class G:
    def __init__(s, opts):
        s.L = []; s.o = opts; s.n = 0; s.T = None
    def A(s, t): s.L.append("  " + t)
    def lab(s, t):
        if t in NOTES: s.L.append("; ---- " + NOTES[t])
        s.L.append(t + ":")
    def C(s, t): s.L.append("; ---- " + t)
    def uniq(s, p): s.n += 1; return f"L_{p}_{s.n}"
    def stamp(s, idx, lvl=1):
        m = s.o.get("stamps", 0)
        if m == 3 and lvl != 3 and idx not in (6,): return
        if m and (m == lvl or (idx in (0, 6, 8) and lvl == 1)):
            s.A(f"s_memrealtime s[{80+2*idx}:{81+2*idx}]")

def vr(a, n): return f"v[{a}:{a+n-1}]"
def rnd(g, d, s=None): g.A(f"v_cvt_pk_bf16_f32 v{d}, 0, v{s if s is not None else d}")

def spin_tail(g, l, e, sleep, mult=1):
    A = g.A
    A("s_cmp_eq_u64 vcc, 0")
    A(f"s_cbranch_scc1 {e}")
    if sleep: A(f"s_sleep {sleep}")
    A("s_add_u32 s70, s70, 1")
    A(f"s_cmp_lt_u32 s70, {SPIN_MAX*mult}")
    A(f"s_cbranch_scc1 {l}")
    g.lab(e)

def chk_sentinel(g, regs, tmp):
    A = g.A
    rs = list(regs)
    if len(rs) == 1:
        A(f"v_cmp_eq_u32 vcc, -1, v{rs[0]}")
        return
    if len(rs) == 2:
        A(f"v_max_u32 v{tmp}, v{rs[0]}, v{rs[1]}"); rs = []
    else:
        A(f"v_max3_u32 v{tmp}, v{rs[0]}, v{rs[1]}, v{rs[2]}"); rs = rs[3:]
    while len(rs) >= 2:
        A(f"v_max3_u32 v{tmp}, v{tmp}, v{rs[0]}, v{rs[1]}"); rs = rs[2:]
    if rs: A(f"v_max_u32 v{tmp}, v{tmp}, v{rs[0]}")
    A(f"v_cmp_eq_u32 vcc, -1, v{tmp}")

def poll_lds(g, loads, regs, tmp, sleep):
    A = g.A
    l = g.uniq("pl"); e = g.uniq("pld")
    A("s_mov_b32 s70, 0")
    g.lab(l)
    for x in loads: A(x)
    A("s_waitcnt lgkmcnt(0)")
    chk_sentinel(g, regs, tmp)
    spin_tail(g, l, e, sleep, 4)

def wait_cnt(g, load, reg, target, sleep, mask=None):
    A = g.A
    l = g.uniq("sn"); e = g.uniq("snd")
    A("s_mov_b32 s70, 0")
    g.lab(l)
    A(load)
    A("s_waitcnt lgkmcnt(0)")
    if mask: A(f"v_and_b32 v{reg}, 0x{mask:x}, v{reg}")
    A(f"v_cmp_gt_u32 vcc, 0x{target:x}, v{reg}")
    spin_tail(g, l, e, sleep, 8)

def pub_local(g, ins):
    A = g.A
    l = g.uniq("pf"); e = g.uniq("pe")
    A(f"s_cmp_eq_u32 s{SLOC}, 1")
    A(f"s_cbranch_scc0 {l}")
    A(ins)
    A(f"s_branch {e}")
    g.lab(l)
    A(ins + " sc1")
    g.lab(e)

def hs_signal(g, vt2):
    A = g.A
    A(f"v_mov_b32 v{vt2}, 1")
    A("s_mov_b64 exec, 1")
    A(f"ds_add_u32 v38, v{vt2} offset:{g.T.CNT}")
    A("s_mov_b64 exec, -1")
def hs_wait(g, target, vt2, sleep=1):
    wait_cnt(g, f"ds_read_b32 v{vt2}, v38 offset:{g.T.CNT}", vt2, target, sleep)

STG = 77
def hsync(g, vt, sleep=0, reads=()):
    A = g.A
    l = g.uniq("hy"); e = g.uniq("hyd")
    A(f"s_add_u32 s{STG}, s{STG}, 4")
    hs_signal(g, vt)
    A("s_mov_b32 s70, 0")
    g.lab(l)
    A(f"ds_read_b32 v{vt}, v38 offset:{g.T.CNT}")
    for r in reads: A(r)
    A(f"s_waitcnt lgkmcnt({len(reads)})")
    A(f"v_cmp_gt_u32 vcc, s{STG}, v{vt}")
    A("s_cmp_eq_u64 vcc, 0")
    A(f"s_cbranch_scc1 {e}")
    if reads: A("s_waitcnt lgkmcnt(0)")
    if sleep: A(f"s_sleep {sleep}")
    A("s_add_u32 s70, s70, 1")
    A(f"s_cmp_lt_u32 s70, {SPIN_MAX*8}")
    A(f"s_cbranch_scc1 {l}")
    g.lab(e)

OPA = 2 * NS_ + 12
def op_prep(g, R, zero, off, scales=True):
    A = g.A
    SCB = R + 2 * NS_; AD = R + OPA
    if scales:
        for i in range(3): A(f"ds_read_b128 {vr(SCB+4*i,4)}, v{zero} offset:{L_S8+16*i}")
    A(f"v_lshlrev_b32 v{AD+3}, 3, v1")
    A("s_lshl2_add_u32 s68, s6, s7")
    A("s_lshl_b32 s68, s68, 9"); A(f"s_add_u32 s68, s68, {WS_OP+off}")
    A(f"v_add_u32 v{AD}, s68, v{AD+3}")
    A(f"v_and_b32 v{AD+1}, 1, v1")
    A(f"v_lshlrev_b32 v{AD+1}, 4, v{AD+1}")
    A(f"v_lshrrev_b32 v{AD+1}, v{AD+1}, s{ST}")
    A(f"v_lshrrev_b32 v{AD+2}, 8, v{AD+1}")
def op_reads(lds, R): return [f"ds_read_b64 {vr(R+2*i,2)}, v{R+OPA+3} offset:{lds+512*i}" for i in range(NS_)]
def op_sum(g, R, local):
    A = g.A
    SCB = R + 2 * NS_; AD = R + OPA
    A("s_movk_i32 s69, 0xff")
    def sel(i): return f"op_sel:[0,{i&1},0] op_sel_hi:[1,{i&1},1]"
    for i in range(NS_):
        A(f"s_waitcnt lgkmcnt({NS_-1-i})")
        sp = vr(SCB + (i & ~1), 2); acc = vr(R + 2*(i & 1), 2)
        if i < 2: A(f"v_pk_mul_f32 {acc}, {vr(R+2*i,2)}, {sp} op_sel:[0,{i&1}] op_sel_hi:[1,{i&1}]")
        else: A(f"v_pk_fma_f32 {acc}, {vr(R+2*i,2)}, {sp}, {acc} {sel(i)}")
    A(f"v_pk_add_f32 {vr(R,2)}, {vr(R,2)}, {vr(R+2,2)}")
    A(f"v_bfi_b32 v{R}, s69, v{AD+1}, v{R}")
    A(f"v_bfi_b32 v{R+1}, s69, v{AD+2}, v{R+1}")
    if local: pub_local(g, f"global_store_dwordx2 v{AD}, {vr(R,2)}, s[42:43]")
    else: A(f"global_store_dwordx2 v{AD}, {vr(R,2)}, s[42:43] sc1")
def wait_then(g, off, target, reads, pre):
    A = g.A
    wait_cnt(g, f"ds_read_b32 v8, v38 offset:{off}", 8, pre, 1)
    l = g.uniq("wt"); e = g.uniq("wtd")
    A("s_mov_b32 s70, 0")
    g.lab(l)
    A(f"ds_read_b32 v8, v38 offset:{off}")
    for r in reads: A(r)
    A(f"s_waitcnt lgkmcnt({len(reads)})")
    A(f"v_cmp_gt_u32 vcc, {target}, v8")
    A("s_cmp_eq_u64 vcc, 0")
    A(f"s_cbranch_scc1 {e}")
    A("s_waitcnt lgkmcnt(0)")
    A("s_add_u32 s70, s70, 1")
    A(f"s_cmp_lt_u32 s70, {SPIN_MAX*8}")
    A(f"s_cbranch_scc1 {l}")
    g.lab(e)

def dma_loop(g, n, step, flags, pace=0, lstep=1024):
    A = g.A
    l = g.uniq("dma"); e = g.uniq("dmae")
    if isinstance(n, int):
        A(f"s_add_u32 s51, s50, {n*lstep}")
    else:
        A(f"s_add_u32 s51, s50, {n}")
        A("s_cmp_lt_u32 s50, s51")
        A(f"s_cbranch_scc0 {e}")
    g.lab(l)
    A("s_mov_b32 m0, s50")
    A(f"s_add_u32 s50, s50, {lstep}")
    if not (g.o.get("nodma") and pace): A(f"buffer_load_dwordx4 v2, s[44:47], s49 offen {flags} lds")
    A(f"s_add_u32 s49, s49, {step}")
    if pace: A(f"s_waitcnt vmcnt({pace-1})")
    A("s_cmp_lt_u32 s50, s51")
    A(f"s_cbranch_scc1 {l}")
    g.lab(e)

VW, VA = 40, 104

def srd(g, d, base, nbytes):
    A = g.A
    A(f"s_mov_b32 s{d}, s{base}")
    A(f"s_mov_b32 s{d+1}, s{base+1}")
    A(f"s_mov_b32 s{d+2}, {nbytes}")
    A(f"s_mov_b32 s{d+3}, 0x20000")

def dma_tile64(g, stride, flags, pace=0):
    A = g.A
    A("v_lshrrev_b32 v2, 3, v1")
    A("v_and_b32 v3, 6, v2")
    A("v_xor_b32 v3, v3, v1")
    A(f"v_mul_u32_u24 v2, {stride}, v2")
    A("v_and_b32 v3, 7, v3")
    A("v_lshl_add_u32 v2, v3, 4, v2")
    A(f"s_mul_i32 s49, s5, {128*stride}")
    A("s_lshl_b32 s50, s5, 14")
    A("s_add_u32 s49, s49, s48")
    A(f"s_add_u32 s50, s50, {g.T.WT}")
    dma_loop(g, 16, 8*stride, flags, pace)

def tr64_addr(g):
    A = g.A
    A("v_lshrrev_b32 v2, 2, v1")
    A("v_bfe_u32 v3, v1, 1, 1")
    A("s_lshl_b32 s49, s5, 1")
    A("v_or_b32 v3, s49, v3")
    A("v_and_b32 v10, 6, v2")
    A("v_xor_b32 v3, v3, v10")
    A("v_lshlrev_b32 v2, 7, v2")
    A("v_lshl_add_u32 v2, v3, 4, v2")
    A("v_and_b32 v3, 1, v1")
    A("v_lshl_add_u32 v2, v3, 3, v2")
    A(f"v_add_u32 v2, {g.T.WT}, v2")
def tr_reads(g, nk, mstep, hstep):
    A = g.A
    for m in range(nk):
        for h in range(2):
            A(f"ds_read_b64_tr_b16 {vr(VW+4*m+2*h,2)}, v2 offset:{m*mstep+h*hstep}")
        if m >= 5: A("s_waitcnt lgkmcnt(10)")
    A("s_waitcnt lgkmcnt(0)")
def tr_tile64(g):
    tr64_addr(g)
    tr_reads(g, 16, 4096, 2048)
def gemv_fused(g, vaddr, D):
    A = g.A
    def rd(m):
        for h in range(2):
            A(f"ds_read_b64_tr_b16 {vr(VW+4*m+2*h,2)}, v2 offset:{m*4096+h*2048}")
        A(f"ds_read_b128 {vr(VA+4*m,4)}, v{vaddr} offset:{64*m}")
    for m in range(5): rd(m)
    for m in range(16):
        A(f"s_waitcnt lgkmcnt({3*(min(m+5,16)-m-1)})")
        c = "0" if m == 0 else vr(D, 4)
        A(f"v_mfma_f32_16x16x32_bf16 {vr(D,4)}, {vr(VW+4*m,4)}, {vr(VA+4*m,4)}, {c}")
        if m + 5 < 16: rd(m + 5)
    A("s_nop 7")

def batch_reduce2(g, va, vb, ta, tb):
    A = g.A
    A("s_nop 0")
    for m in ("quad_perm:[1,0,3,2]", "quad_perm:[2,3,0,1]", "row_ror:8"):
        A(f"v_add_f32_dpp v{va}, v{va}, v{va} {m} row_mask:0xf bank_mask:0xf")
        A(f"v_add_f32_dpp v{vb}, v{vb}, v{vb} {m} row_mask:0xf bank_mask:0xf")
        A("s_nop 0")
    for sw in ("v_permlane16_swap_b32", "v_permlane32_swap_b32"):
        A(f"v_mov_b32 v{ta}, v{va}")
        A(f"v_mov_b32 v{tb}, v{vb}")
        A("s_nop 0")
        A(f"{sw} v{ta}, v{va}")
        A(f"{sw} v{tb}, v{vb}")
        A(f"v_add_f32 v{va}, v{va}, v{ta}")
        A(f"v_add_f32 v{vb}, v{vb}, v{tb}")

def ln_partial(g, x):
    A = g.A
    A(f"v_add_f32 v8, v{x}, v{x+1}"); A(f"v_mul_f32 v9, v{x}, v{x}")
    A(f"v_add_f32 v10, v{x+2}, v{x+3}"); A(f"v_mul_f32 v11, v{x+2}, v{x+2}")
    A(f"v_fmac_f32 v9, v{x+1}, v{x+1}"); A(f"v_fmac_f32 v11, v{x+3}, v{x+3}")
    A("v_add_f32 v8, v8, v10"); A("v_add_f32 v9, v9, v11")
    batch_reduce2(g, 8, 9, 10, 11)
    A("ds_write_b64 v5, v[8:9]")
def ln_apply(g, x, t):
    A = g.A
    A(f"ds_read_b128 {vr(t,4)}, v6")
    A(f"ds_read_b128 {vr(t+4,4)}, v6 offset:16")
    A("s_waitcnt lgkmcnt(0)")
    A(f"v_pk_add_f32 {vr(t,2)}, {vr(t,2)}, {vr(t+2,2)}")
    A(f"v_pk_add_f32 {vr(t+4,2)}, {vr(t+4,2)}, {vr(t+6,2)}")
    A(f"v_pk_add_f32 {vr(t,2)}, {vr(t,2)}, {vr(t+4,2)}")
    A(f"v_mul_f32 v8, 0x{f2u(1/512):08x}, v{t}")
    A(f"v_mul_f32 v9, 0x{f2u(1/512):08x}, v{t+1}")
    A("v_fma_f32 v9, -v8, v8, v9")
    rnd(g, 8)
    A("v_max_f32 v9, 0, v9")
    rnd(g, 9)
    for i in range(2): A(f"v_sub_f32 v{x+i}, v{x+i}, v8")
    A(f"v_add_f32 v9, 0x{EPS:08x}, v9")
    for i in range(2, 4): A(f"v_sub_f32 v{x+i}, v{x+i}, v8")
    rnd(g, 9)
    rnd(g, x)
    A("v_sqrt_f32 v9, v9")
    rnd(g, x+1)
    rnd(g, 9)
    rnd(g, x+2)
    A("v_rcp_f32 v9, v9")
    rnd(g, x+3)
    for i in range(4): A(f"v_mul_f32 v{x+i}, v{x+i}, v9")
    for i in range(4): rnd(g, x+i)

def act_addr(g, v, base, bstride):
    A = g.A
    A(f"v_and_b32 v{v}, 1, v1")
    A(f"v_mul_u32_u24 v{v}, {bstride}, v{v}")
    A(f"v_lshrrev_b32 v3, 4, v1")
    A(f"v_lshl_add_u32 v{v}, v3, 4, v{v}")
    if base: A(f"v_add_u32 v{v}, {base}, v{v}")

def gemv(g, nk, vaddr, D, ring=16, sync=None, nspec=4):
    A = g.A
    first = min(nk, 12, ring)
    rds = [f"ds_read_b128 {vr(VA+4*m,4)}, v{vaddr} offset:{64*m}" for m in range(first)]
    if sync is not None:
        hsync(g, sync, 0, rds[:nspec]); rds = rds[nspec:]
    for r in rds: A(r)
    issued = first
    for m in range(nk):
        A(f"s_waitcnt lgkmcnt({issued-m-1})")
        c = "0" if m == 0 else vr(D, 4)
        A(f"v_mfma_f32_16x16x32_bf16 {vr(D,4)}, {vr(VW+4*m,4)}, {vr(VA+4*(m%ring),4)}, {c}")
        if issued < nk and (ring >= nk or m >= 1):
            A(f"ds_read_b128 {vr(VA+4*(issued%ring),4)}, v{vaddr} offset:{64*issued}")
            issued += 1
    A("s_nop 7")

def guard(g, r): g.A(f"v_min_u32 v{r}, s72, v{r}")
def unpack2(g, d, s):
    g.A(f"v_lshlrev_b32 v{d}, 16, v{s}")
    g.A(f"v_and_b32 v{d+1}, s73, v{s}")
def unpack4(g, d, s, step=1):
    unpack2(g, d, s); unpack2(g, d+2, s+step)

def silu4(g, x, t):
    A = g.A
    for i in range(4): A(f"v_mul_f32 v{t+i}, 0x{LOG2E ^ 0x80000000:08x}, v{x+i}")
    for i in range(4): A(f"v_exp_f32 v{t+i}, v{t+i}")
    A("s_nop 0")
    for i in range(4): A(f"v_add_f32 v{t+i}, 1.0, v{t+i}")
    for i in range(4): A(f"v_rcp_f32 v{t+i}, v{t+i}")
    A("s_nop 0")
    for i in range(4): A(f"v_mul_f32 v{x+i}, v{x+i}, v{t+i}")

def make_tag(g):
    g.A(f"s_mul_i32 s{ST}, s{ST}, 0x9e3779b1")
    g.A(f"s_add_u32 s{ST}, s{ST}, 0x7f4a7c15")

EX8 = ["s_mov_b32 exec_lo, 0x00030003", "s_mov_b32 exec_hi, 0x00030003"]

def dump_all(g, extra):
    A = g.A
    A("s_mov_b64 exec, -1")
    A("s_mul_i32 s3, s2, 12"); A("s_add_u32 s3, s3, s13"); A("s_lshl_b32 s3, s3, 6")
    A(f"s_add_u32 s3, s3, {WS_STAMP}")
    A("v_lshl_add_u32 v2, v1, 2, s3")
    A("v_mov_b32 v3, 0")
    A("s_waitcnt lgkmcnt(0)")
    for i, x in enumerate([80+2*i for i in range(10)] + list(extra)): A(f"v_writelane_b32 v3, s{x}, {i}")
    A("s_mov_b64 exec, 0xffff")
    A("global_store_dword v2, v3, s[42:43]")

def fallback(g, head_sum, wave_red):
    A = g.A
    W, AC, AV = 40, 72, 88
    X1, GS = 104, 120
    g.lab("L_slow")
    A("s_mov_b32 s47, 0x20000")
    A("s_load_dwordx16 s[16:31], s[0:1], 0")
    A("s_load_dwordx8 s[32:39], s[0:1], 64")
    A("v_and_b32 v2, 31, v1")
    A("v_lshlrev_b32 v2, 7, v2")
    A(f"v_add_u32 v2, {WS_DN}, v2")
    A("s_mov_b32 s70, 0")
    g.lab("L_sl_d")
    A("global_load_dword v3, v2, s[42:43] sc1")
    A("s_waitcnt vmcnt(0) lgkmcnt(0)")
    A(f"v_cmp_ne_u32 vcc, s{ST}, v3")
    spin_tail(g, "L_sl_d", "L_sl_dd", 8)
    A("v_lshlrev_b32 v2, 3, v1")
    A(f"v_add_u32 v2, {WS_OQ}, v2")
    A("v_lshlrev_b32 v0, 2, v1")
    A(f"v_add_u32 v0, {L_VX}, v0")
    A("s_mov_b32 s10, 0")
    g.lab("L_sl_h")
    A("s_mov_b32 s70, 0")
    g.lab("L_sl_hp")
    for i in range(3): A(f"global_load_dwordx2 {vr(W+2*i,2)}, v2, s[42:43] offset:{512*i} sc1")
    A("s_waitcnt vmcnt(0)")
    head_sum(W, W+8)
    spin_tail(g, "L_sl_hp", "L_sl_hd", 8)
    A(f"ds_write_b32 v0, v{W}")
    A("v_add_u32 v2, 2048, v2"); A("v_add_u32 v0, 256, v0")
    A("s_add_u32 s10, s10, 1"); A("s_cmp_lt_u32 s10, 64"); A("s_cbranch_scc1 L_sl_h")
    def call(base, nbytes, stride, nrows, act, bstride, col):
        A(f"s_mov_b32 s44, s{base}"); A(f"s_mov_b32 s45, s{base+1}"); A(f"s_mov_b32 s46, {nbytes}")
        A(f"s_mov_b32 s11, {stride}"); A(f"s_mov_b32 s12, {nrows*stride}")
        A(f"v_mov_b32 v4, {act}"); A(f"v_mov_b32 v5, {act+bstride}")
        A(f"v_lshlrev_b32 v2, 4, v1")
        if col: A(f"v_add_u32 v2, {col}, v2")
        A("s_call_b64 s[62:63], L_gv")
    def modrow(row, d):
        A("v_lshrrev_b32 v2, 1, v1"); A("v_lshlrev_b32 v2, 7, v2")
        A("v_and_b32 v3, 1, v1"); A("v_lshl_add_u32 v2, v3, 5, v2")
        A(f"v_add_u32 v2, {WS_MOD+4096*row}, v2")
        for b in range(2):
            for h in range(2): A(f"global_load_dwordx4 {vr(W+8*b+4*h,4)}, v2, s[42:43] offset:{64*b+16*h} sc1")
        A("s_waitcnt vmcnt(0)")
        for k in range(8): unpack2(g, d+2*k, W+2*k)
    def gated_add(row):
        modrow(row, AV)
        for i in range(16): rnd(g, AC+i)
        for i in range(16): A(f"v_mul_f32 v{AC+i}, v{AC+i}, v{AV+i}")
        for i in range(16): rnd(g, AC+i)
        for i in range(16): A(f"v_add_f32 v{X1+i}, v{X1+i}, v{AC+i}")
        for i in range(16): rnd(g, X1+i)
    def pack(d, s_):
        for k in range(8): A(f"v_cvt_pk_bf16_f32 v{d+k}, v{s_+2*k}, v{s_+2*k+1}")
    call(24, 4096*1024, 1024, 4096, L_VX, 8192, 0)
    A("v_lshlrev_b32 v0, 4, v1")
    for b in range(2): A(f"global_load_dwordx4 {vr(W+4*b,4)}, v0, s[16:17] offset:{1024*b}")
    A("s_waitcnt vmcnt(0)")
    for k in range(8): unpack2(g, X1+2*k, W+k)
    gated_add(2)
    for b in range(2):
        x = X1 + 8*b; y = AC + 8*b
        A(f"v_add_f32 v8, v{x}, v{x+1}")
        for i in range(2, 8): A(f"v_add_f32 v8, v8, v{x+i}")
        wave_red("v_add_f32", 8, 9)
        A(f"v_mul_f32 v8, 0x{f2u(1/512):08x}, v8")
        for i in range(8): A(f"v_sub_f32 v{y+i}, v{x+i}, v8")
        A(f"v_mul_f32 v10, v{y}, v{y}")
        for i in range(1, 8): A(f"v_fmac_f32 v10, v{y+i}, v{y+i}")
        wave_red("v_add_f32", 10, 9)
        A(f"v_mul_f32 v10, 0x{f2u(1/512):08x}, v10")
        rnd(g, 8); rnd(g, 10)
        A(f"v_add_f32 v10, 0x{EPS:08x}, v10")
        rnd(g, 10)
        A("v_sqrt_f32 v10, v10")
        for i in range(8): A(f"v_sub_f32 v{y+i}, v{x+i}, v8")
        rnd(g, 10)
        for i in range(8): rnd(g, y+i)
        A("v_rcp_f32 v10, v10")
        A("s_nop 0")
        for i in range(8): A(f"v_mul_f32 v{y+i}, v{y+i}, v10")
        for i in range(8): rnd(g, y+i)
    modrow(4, AV)
    for i in range(16): A(f"v_add_f32 v{AV+i}, 1.0, v{AV+i}")
    for i in range(16): rnd(g, AV+i)
    for i in range(16): A(f"v_mul_f32 v{AC+i}, v{AC+i}, v{AV+i}")
    for i in range(16): rnd(g, AC+i)
    modrow(3, AV)
    for i in range(16): A(f"v_add_f32 v{AC+i}, v{AC+i}, v{AV+i}")
    pack(W, AC)
    A(f"v_add_u32 v3, {L_VX}, v0")
    for b in range(2): A(f"ds_write_b128 v3, {vr(W+4*b,4)} offset:{1024*b}")
    HB = L_VX + 2048
    for p in range(3):
        call(28, 512*2752, 2752, 512, L_VX, 1024, 1024*p)
        for i in range(16): rnd(g, GS+i, AC+i)
        call(30, 512*2752, 2752, 512, L_VX, 1024, 1024*p)
        for q in range(4): silu4(g, GS+4*q, AV)
        for i in range(16): rnd(g, GS+i)
        for i in range(16): rnd(g, AC+i)
        for i in range(16): A(f"v_mul_f32 v{AC+i}, v{AC+i}, v{GS+i}")
        pack(W, AC)
        A(f"v_add_u32 v3, {HB+1024*p}, v0")
        for b in range(2): A(f"ds_write_b128 v3, {vr(W+4*b,4)} offset:{3072*b}")
    call(32, 1376*1024, 1024, 1376, HB, 3072, 0)
    gated_add(5)
    pack(W, X1)
    for b in range(2): A(f"global_store_dwordx4 v0, {vr(W+4*b,4)}, s[38:39] offset:{1024*b} sc1")
    A("s_endpgm")
    g.lab("L_gv")
    for i in range(16): A(f"v_mov_b32 v{AC+i}, 0")
    A("s_mov_b32 s10, 0")
    g.lab("L_gvl")
    for r in range(8):
        A(f"buffer_load_dwordx4 {vr(W+4*r,4)}, v2, s[44:47], s10 offen")
        A("s_add_u32 s10, s10, s11")
    for b in range(2): A(f"ds_read_b128 {vr(AV+4*b,4)}, v{4+b}")
    A("v_add_u32 v4, 16, v4"); A("v_add_u32 v5, 16, v5")
    A("s_waitcnt lgkmcnt(0)")
    for r in range(8):
        for b in range(2):
            a = AV + 4*b + r//2
            if r % 2 == 0: A(f"v_and_b32 v{8+2*b}, 0xffff, v{a}"); A(f"v_lshlrev_b32 v{9+2*b}, 16, v{a}")
            else: A(f"v_lshrrev_b32 v{8+2*b}, 16, v{a}"); A(f"v_and_b32 v{9+2*b}, s73, v{a}")
        A(f"s_waitcnt vmcnt({7-r})")
        for b in range(2):
            for k in range(8): A(f"v_dot2c_f32_bf16 v{AC+8*b+k}, v{8+2*b+(k&1)}, v{W+4*r+k//2}")
    A("s_cmp_lt_u32 s10, s12"); A("s_cbranch_scc1 L_gvl")
    A("s_nop 1")
    A("s_setpc_b64 s[62:63]")

def stream(g, opts):
    A = g.A
    D0 = opts.get("D0", 3)
    LAG = opts.get("LAG", 5)
    DEL = opts.get("delta", 7)
    THETA = opts.get("theta", 24)
    HCAP, HPOS = 32, 160
    TH, HST, NH, NSP, HTH = 18, 19, 20, 21, 22
    PA = 2
    KF, VF = opts.get("kf", "nt"), opts.get("vf", "nt")
    J0 = opts.get("J0", 13)
    T_, ACC, DB, RW, LIM, BUR, CNT, STA, QA, LVL = 32, 33, 34, 35, 36, 37, 38, 39, 40, 41
    SR, SBI, VE = 78, 79, 59
    VG = opts.get('vg', 20); LG = opts.get('lg', 10)
    LB, JS, DN, FIN, X1D, RET, TK, RET2 = 56, 57, 58, 75, 61, 62, (64, 66), 100
    T, X = 8, 16
    OFF = (24, 26); SET = (28, 30, 32); AC_, AT_, AH_, MK = 8, 12, 4, (34, 35, 36, 0); MW, L16, LRD, EPA = 37, 38, 39, 21
    EV = 23
    RA = 22
    ROFF = 1024
    RB = 40
    def slot(j): return RB + 4 * (j % 32)
    NW, KS, NXT = 76, 77, 57
    g.lab("L_stream")
    A("s_sub_u32 s9, s13, 1")
    A("s_mul_i32 s10, s7, 3"); A("s_add_u32 s10, s10, s9"); A("s_sub_u32 s10, s10, 8")
    A("s_cmp_ge_i32 s10, 8"); A("s_cbranch_scc1 L_end")
    A("s_cmp_lt_u32 s9, 8")
    A("s_cselect_b32 s11, s9, s10")
    A("s_cselect_b32 s4, s7, 3")
    A("s_lshl_b32 s11, s11, 10")
    A("s_lshl_b32 s4, s4, 18")
    A("s_lshl_b32 s10, s6, 22")
    A("s_add_u32 s10, s10, s4")
    A("s_add_u32 s10, s10, 0x300000")
    A("v_lshl_add_u32 v0, v1, 4, s11")
    A("s_lshr_b32 s12, s2, 3")
    A("s_mul_i32 s12, s12, 5")
    A("s_mul_i32 s15, s8, 3")
    A("s_add_u32 s12, s12, s15")
    A("s_lshl_b32 s12, s12, 13")
    A("s_and_b32 s12, s12, 0x3ffff")
    g.stamp(1, 3)
    A("s_waitcnt lgkmcnt(0)")
    g.stamp(2, 3)
    A("s_add_u32 s44, s18, s10"); A("s_addc_u32 s45, s19, 0")
    A("s_mov_b32 s46, 0x40000"); A("s_mov_b32 s47, 0x20000")
    def issue(j):
        A(f"buffer_load_dwordx4 {vr(slot(j),4)}, v0, s[44:47], s12 offen {KF}")
        A("s_add_u32 s12, s12, 0x2000")
        A("s_and_b32 s12, s12, 0x3ffff")
    g.stamp(3, 3)
    for j in range(D0): issue(j)
    g.stamp(4, 3)
    A(f"s_load_dword s{ST}, s[42:43], {WS_E}")
    A("s_add_u32 s48, s20, s10"); A("s_addc_u32 s49, s21, 0")
    A("s_mov_b32 s50, 0x40000"); A("s_mov_b32 s51, 0x20000")
    A("s_mov_b32 s52, 0xcccccccc"); A("s_mov_b32 s53, 0xcccccccc")
    A("s_mov_b32 s54, 0xaaaaaaaa"); A("s_mov_b32 s55, 0xaaaaaaaa")
    A(f"v_and_b32 v{L16}, 15, v1")
    A(f"v_lshlrev_b32 v{L16}, 4, v{L16}")
    A("s_lshl_b32 s10, s9, 11")
    A(f"s_add_u32 s10, s10, {L_VX}")
    A("v_lshl_add_u32 v3, v1, 3, s10")
    A("v_mov_b32 v4, 0x7fff0000"); A("v_mov_b32 v5, 0xff800000")
    for n in range(3): A(f"ds_write_b64 v3, v[4:5] offset:{512*n}")
    A("v_lshrrev_b32 v3, 4, v1")
    A(f"v_lshl_add_u32 v{LRD}, v{L16}, 1, s10")
    A(f"v_lshl_add_u32 v{LRD}, v3, 3, v{LRD}")
    A(f"s_sub_u32 s68, s12, {D0*0x2000}")
    A(f"v_bfrev_b32 v{OFF[0]}, v1")
    A(f"v_lshrrev_b32 v{OFF[0]}, 15, v{OFF[0]}")
    A(f"v_and_b32 v{OFF[0]}, 0x1e000, v{OFF[0]}")
    A(f"v_add_u32 v{OFF[0]}, s68, v{OFF[0]}")
    A(f"v_and_b32 v{OFF[0]}, 0x3e000, v{OFF[0]}")
    A(f"v_lshl_add_u32 v{OFF[0]}, v3, 8, v{OFF[0]}")
    A(f"v_add_u32 v{OFF[0]}, s11, v{OFF[0]}")
    A(f"v_xor_b32 v{OFF[1]}, 0x20000, v{OFF[0]}")
    A("s_lshl_b32 s11, s9, 9")
    A("s_sub_u32 s11, s11, s10")
    A(f"s_mov_b32 s{T_}, {D0}"); A(f"s_mul_i32 s{ACC}, s9, 0x60000000"); A(f"s_add_u32 s{ACC}, s{ACC}, 0x10000000")
    A(f"s_mov_b64 s[{TK[0]}:{TK[0]+1}], 0"); A(f"s_mov_b64 s[{TK[1]}:{TK[1]+1}], 0")
    A(f"s_mov_b32 s{CNT}, 0"); A(f"s_mov_b32 s{STA}, 0"); A(f"s_mov_b32 s{FIN}, 0"); A(f"s_mov_b32 s{X1D}, 0")
    A(f"s_lshl3_add_u32 s{QA}, s6, s9"); A(f"s_lshl_b32 s{QA}, s{QA}, 6"); A(f"s_add_u32 s{QA}, s{QA}, {WS_Q}")
    A("s_barrier")
    A("s_waitcnt lgkmcnt(0)")
    A(f"s_mov_b32 s{LB}, s10")
    make_tag(g)
    A("s_cmp_eq_u32 s7, 2")
    A(f"s_cselect_b32 s{NW}, {NS_-1}, {NS_}")
    A(f"s_mov_b32 s{LVL}, {LAG}"); A(f"s_mov_b32 s{NXT}, 0")
    A(f"s_mov_b32 s{DB}, {int(opts.get('d1', 2.7)*4096) + ROFF*LG*16}"); A(f"s_mov_b32 s{KS}, 0")
    A(f"s_mov_b32 s{RW}, {32-D0}"); A(f"s_mov_b32 s{VE}, 0")
    A(f"s_mul_i32 s68, s{NW}, {32-D0}"); A(f"s_add_u32 s68, s68, {ROFF}")
    A(f"v_mov_b32 v{RA}, s68"); A(f"v_mov_b32 v{RA+1}, 0"); A(f"v_mov_b32 v{PA}, 0")
    A("s_cmp_ge_u32 s9, 8"); A(f"s_cselect_b32 s{STA}, 2, 0")
    for j in range(D0, 32):
        if j == opts.get("js", 16) and opts.get("dup", 0): A(f"s_add_u32 s{DB}, s{DB}, {int(opts['dup']*4096)}")
        if j == D0:
            g.stamp(5, 3)
            if opts.get("stamps") == 3: A(f"s_waitcnt vmcnt({D0-1})")
            g.stamp(7, 3)
        A(f"s_call_b64 s[{RET}:{RET+1}], {'L_ks' if j >= J0 else ('L_kq2', 'L_kl')[(j - D0) & 1] if opts.get('light', 0) else 'L_kq'}")
        if j == 8: g.stamp(8, 3)
        if j == 12: g.stamp(9, 3)
        issue(j)
    g.stamp(1)
    A("s_mov_b32 s10, 0")
    g.lab("L_kw")
    A(f"s_cmp_ge_u32 s{STA}, 6"); A("s_cbranch_scc1 L_v0")
    A(f"s_call_b64 s[{RET2}:{RET2+1}], L_work")
    A("s_sleep 1")
    A("s_add_u32 s10, s10, 1")
    A(f"s_cmp_lt_u32 s10, {SPIN_MAX}"); A("s_cbranch_scc1 L_kw")
    g.lab("L_v0")
    g.stamp(2)
    A(f"s_mov_b32 s{T_}, 0")
    A(f"v_mov_b32 v{PA}, 8")
    A(f"s_mov_b32 s{RW}, s{VE}")
    A(f"ds_read_b64 {vr(RA,2)}, v{PA} offset:{L_RM}")
    A("s_waitcnt lgkmcnt(0)")
    A("v_and_b32 v3, 1, v1"); A("v_lshlrev_b32 v3, 4, v3"); A("v_mov_b32 v20, 0xffff"); A("v_lshlrev_b32 v3, v3, v20")
    A("v_bfe_u32 v20, v1, 1, 3")
    for d in range(4):
        A(f"v_cmp_eq_u32 vcc, {d}, v20"); A("s_nop 1"); A(f"v_cndmask_b32 v{MK[d]}, 0, v3, vcc")
    KA, KB = opts.get('ka2', 3.8), opts.get('kb2', -0.2)
    F10 = 1 + opts.get('nwf', 0.05)
    A("s_cmp_eq_u32 s7, 2")
    A(f"s_mov_b32 s{KS}, {round(KA*16)}"); A(f"s_cselect_b32 s{KS}, {round(KA*F10*16)}, s{KS}")
    A(f"s_mov_b32 s{DB}, {round(KB*4096) + ROFF*LG*16}"); A(f"s_cselect_b32 s{DB}, {round(KB*F10*4096) + ROFF*LG*16}, s{DB}")

    def dots(G_, halves=(0, 1)):
        es = [e for h in halves for e in range(4*h, 4*h+4)]
        for tt in range(4):
            for e in es:
                c = "0" if tt == 0 else f"v{T+e}"
                A(f"v_dot2_f32_bf16 v{T+e}, v{slot(8*G_+e)+tt}, v{4+tt}, {c}")
        for e in es[::2]:
            A(f"v_add_f32_dpp v{T+e}, v{T+e}, v{T+e} row_ror:8 row_mask:0xf bank_mask:0x3")
            A(f"v_add_f32_dpp v{T+e}, v{T+e+1}, v{T+e+1} row_ror:8 row_mask:0xf bank_mask:0xc")
        x = X + 2 * (G_ & 1)
        if len(halves) == 1: A("s_nop 0")
        for h in halves:
            A(f"v_add_f32_dpp v{x+h}, v{T+4*h}, v{T+4*h} row_shl:4 row_mask:0xf bank_mask:0x5")
            A(f"v_add_f32_dpp v{x+h}, v{T+4*h+2}, v{T+4*h+2} row_shr:4 row_mask:0xf bank_mask:0xa")
    def wave_red(op, v, t):
        for r in (8, 4, 2, 1):
            A("s_nop 1")
            A(f"{op}_dpp v{v}, v{v}, v{v} row_ror:{r} row_mask:0xf bank_mask:0xf")
        for sw in ("v_permlane16_swap_b32", "v_permlane32_swap_b32"):
            A(f"v_mov_b32 v{t}, v{v}")
            A("s_nop 1")
            A(f"{sw} v{t}, v{v}")
            A(f"{op} v{v}, v{v}, v{t}")
    def finish(n):
        sc = OFF[n] + 1
        A("v_mov_b32 v3, 0")
        A("v_mov_b32 v20, 64")
        for i in range(4): A(f"v_add_f32_dpp v{X+i}, v{X+i}, v{X+i} quad_perm:[2,3,0,1] row_mask:0xf bank_mask:0xf")
        for i in range(2): A(f"v_cndmask_b32 v{T+i}, v{X+2*i}, v{X+2*i+1}, s[52:53]")
        A("s_nop 0")
        A("v_lshlrev_b32 v21, 3, s9")
        for i in range(2): A(f"v_add_f32_dpp v{T+i}, v{T+i}, v{T+i} quad_perm:[1,0,3,2] row_mask:0xf bank_mask:0xf")
        A(f"v_cndmask_b32 v{sc}, v{T}, v{T+1}, s[54:55]")
        rnd(g, sc)
        A(f"v_mul_f32 v{sc}, 0x{SCALE:08x}, v{sc}")
        rnd(g, sc)
        if n == 0: A(f"v_mov_b32 v{MW}, v{sc}")
        else: A(f"v_max_f32 v{MW}, v{MW}, v{sc}")
        wave_red("v_max_f32", MW, T)
        if n == 0:
            A("s_mov_b64 exec, 1")
            A(f"ds_max_f32 v3, v{MW} offset:{L_E0}")
            A(f"ds_add_u32 v3, v20 offset:{L_ECN}")
            A("s_mov_b64 exec, -1")
    def build(n, thr):
        tk = f"s[{TK[n]}:{TK[n]+1}]"
        A(f"v_cmp_nlt_f32 vcc, v{OFF[n]+1}, v{thr}")
        A(f"s_lshl_b32 s68, s{CNT}, 3")
        A(f"s_add_u32 s68, s68, s{LB}")
        A(f"s_andn2_b64 s[70:71], vcc, {tk}")
        A("v_mbcnt_lo_u32_b32 v3, s70, 0")
        A("v_mbcnt_hi_u32_b32 v3, s71, v3")
        A("s_bcnt1_i32_b64 s69, s[70:71]")
        A("v_lshl_add_u32 v3, v3, 3, s68")
        A("s_mov_b64 exec, s[70:71]")
        A(f"ds_write_b64 v3, {vr(OFF[n],2)}")
        A("s_mov_b64 exec, -1")
        A(f"s_or_b64 {tk}, {tk}, s[70:71]")
        A(f"s_add_u32 s{CNT}, s{CNT}, s69")
    def reread(weights=True, fill=None):
        ns = 3 if weights else 1
        for n in range(ns): A(f"ds_read_b64 {vr(SET[n],2)}, v{LRD} offset:{512*n}")
        if fill: fill()
        A("s_waitcnt lgkmcnt(0)")
        if not weights: return
        for n in range(3): A(f"v_sub_f32 v{SET[n]+1}, v{SET[n]+1}, v{MW}")
        for n in range(3): A(f"v_mul_f32 v{SET[n]+1}, 0x{LOG2E:08x}, v{SET[n]+1}")
        for n in range(3): A(f"v_exp_f32 v{SET[n]+1}, v{SET[n]+1}")
        A("s_nop 0")
        for n in range(3): A(f"v_cvt_pk_bf16_f32 v{SET[n]+1}, v{SET[n]+1}, v{SET[n]+1}")
    def pv(t, data=None, acc=AC_, first=False):
        data = slot(t) if data is None else data
        for d in range(4): A(f"v_and_b32_dpp v{AT_+d}, v{SET[t//16]+1}, v{MK[d]} row_newbcast:{t%16} row_mask:0xf bank_mask:0xf")
        A("s_nop 1")
        A(f"v_mfma_f32_16x16x32_bf16 {vr(acc,4)}, {vr(AT_,4)}, {vr(data,4)}, {vr(acc,4)}")
    def estimate(sh, add, src, vphase=True):
        A(f"s_add_u32 s68, s{src}, {add}")
        A(f"s_lshr_b32 s68, s68, {sh}")
        A(f"s_sub_u32 s69, s68, s{VE}")
        A(f"s_mov_b32 s{VE}, s68")
        if vphase:
            A(f"s_add_u32 s{RW}, s{RW}, s69")
            A(f"s_add_u32 s{SR}, s{SR}, s69")
        A("v_mov_b32 v3, s69")
        A("s_mov_b64 exec, 1")
        A(f"ds_add_u32 v1, v3 offset:{L_RM+8}")
        A(f"ds_add_u32 v1, v3 offset:{L_RM+12}")
        A("s_mov_b64 exec, -1")
    def fetch():
        A(f"v_readfirstlane_b32 s{SR}, v{RA}")
        A(f"v_readfirstlane_b32 s{SBI}, v{RA+1}")
    NST = LAG + 33 + LAG
    assert 4 * (NST - LAG) <= HPOS, NST
    LIGHT = opts.get("light", 0)
    for t in range(NST - LAG + 1):
        sub = "L_vs" if t <= 2 * LAG else "L_vq" if not LIGHT else ("L_vq2", "L_vl")[(t - 2 * LAG - 1) & 1]
        A(f"s_call_b64 s[{RET}:{RET+1}], {sub}")
        if t == NST - LAG: break
        if t: A(f"s_cbranch_scc0 L_dr{max(t, LAG)}")
        A(f"v_add_u32_dpp v3, v{SET[t//16]}, v{L16} row_newbcast:{t%16} row_mask:0xf bank_mask:0xf")
        A(f"buffer_load_dwordx4 {vr(slot(t),4)}, v3, s[48:51], 0 offen {VF}")
        if opts.get("trace") and t >= LAG:
            A("s_memrealtime s[98:99]"); A("s_waitcnt lgkmcnt(0)"); A(f"v_writelane_b32 v17, s98, {t}")
        if t == 0: dots(3, (0,))
        if t >= LAG: pv(t - LAG)
    A(f"s_branch L_dr{NST-LAG}")
    g.C("nothing left to load, everything has landed: the row groups not used yet")
    for t in range(LAG, NST):
        g.lab(f"L_dr{t}")
        pv(t - LAG)
        A(f"s_cmp_eq_u32 s{FIN}, {t+1}"); A("s_cbranch_scc1 L_epi")
    def out_addr():
        A("v_lshrrev_b32 v3, 4, v1")
        A(f"v_lshl_add_u32 v{EPA}, v3, 3, v{LRD}")
        A(f"v_add_u32 v{EPA}, s11, v{EPA}")
        A("v_mov_b32 v3, 1")
    def prelim(r):
        A("s_mov_b32 exec_hi, 0")
        A(f"ds_write_b128 v{EPA}, {vr(r,4)} offset:{L_OP1}")
        A("s_mov_b64 exec, 1")
        A(f"ds_add_u32 v1, v3 offset:{L_SN}")
        A("s_mov_b64 exec, -1")
    g.lab("L_epi")
    g.stamp(5)
    out_addr()
    A("s_nop 3")
    for h in range(2): A(f"v_pk_add_f32 {vr(AC_+2*h,2)}, {vr(AC_+2*h,2)}, {vr(AH_+2*h,2)}")
    A("s_mov_b32 exec_hi, 0")
    A(f"ds_write_b128 v{EPA}, {vr(AC_,4)} offset:{L_OP}")
    A(f"s_cmp_eq_u32 s{NSP}, 0"); A("s_cbranch_scc1 L_ep2")
    prelim(AC_)
    g.lab("L_ep2")
    A("s_mov_b64 exec, 1")
    A(f"ds_add_u32 v1, v3 offset:{L_TK}")
    g.lab("L_send")
    if opts.get("trace"):
        A("s_mov_b64 exec, -1")
        A("s_mul_i32 s3, s2, 12"); A("s_add_u32 s3, s3, s13"); A("s_lshl_b32 s3, s3, 8"); A("s_add_u32 s3, s3, 0x400000")
        A("v_lshl_add_u32 v2, v1, 2, s3")
        A("global_store_dword v2, v17, s[42:43]")
    if opts.get("stamps"):
        g.stamp(6)
        dump_all(g, [CNT, SBI, SBI])
    A("s_endpgm")
    g.wave_red = wave_red

    g.lab("L_ks")
    A(f"s_cmp_lt_u32 s{T_}, s{NXT}"); A("s_cbranch_scc1 L_kq")
    A(f"s_call_b64 s[{RET2}:{RET2+1}], L_work")
    BASE, FRAC = BUR, 58
    def control(n):
        A("s_mov_b64 exec, 1")
        for _ in range(n): A(f"ds_dec_u32 v{PA}, v{LRD} offset:{L_RM}")
        A(f"ds_read_b64 {vr(RA,2)}, v{PA} offset:{L_RM}")
        A("s_mov_b64 exec, -1")
        A(f"s_mul_i32 s68, s{RW}, s{NW}")
        A(f"s_and_b32 s69, s{SBI}, 0xffff")
        A(f"s_sub_i32 s68, s68, s{SR}")
        A(f"s_mul_i32 s69, s69, s{KS}")
        A(f"s_mul_i32 s68, s68, {LG*16}")
        A(f"s_sub_u32 s{RW}, s{RW}, {n}")
        A("s_add_i32 s68, s68, s69")
        A(f"s_add_i32 s68, s68, s{DB}")
        A(f"s_max_i32 s68, s68, {int(opts.get('lo', 1.2)*4096)}")
        A(f"s_min_i32 s68, s68, {LAG*4096}")
        A(f"s_lshr_b32 s{BASE}, s68, 12")
        A(f"s_lshl_b32 s{FRAC}, s68, 20")
    g.lab("L_kq")
    fetch()
    g.lab("L_ks2")
    control(1)
    g.lab("L_kl")
    A(f"s_add_u32 s{T_}, s{T_}, 1")
    A(f"s_add_u32 s{ACC}, s{ACC}, 0x20000000")
    A(f"s_add_u32 s68, s{ACC}, s{FRAC}")
    A(f"s_addc_u32 s{LVL}, s{BASE}, 0")
    order = [3, 2, 4, 1] + list(range(5, LAG))
    for d in order:
        A(f"s_cmp_eq_u32 s{LVL}, {d}"); A(f"s_cbranch_scc1 L_wt{d}")
    g.lab("L_wtx")
    A(f"s_cmp_eq_u32 s{T_}, s{T_}")
    for d in [LAG] + order:
        g.lab(f"L_wt{d}")
        A(f"s_waitcnt vmcnt({d-1})")
        A(f"s_setpc_b64 s[{RET}:{RET+1}]")
    g.lab("L_kq2")
    fetch()
    g.lab("L_ks3")
    control(2)
    A("s_branch L_kl")
    g.lab("L_vl")
    A(f"s_cmp_lt_u32 s{T_}, s{LIM}"); A("s_cbranch_scc1 L_kl")
    A("s_branch L_ev")
    g.lab("L_vq2")
    fetch()
    if opts.get("early", 0):
        A(f"s_lshr_b32 s68, s{SBI}, 16")
        A(f"s_cmp_gt_u32 s68, s{FIN}"); A("s_cbranch_scc1 L_hand")
    A(f"s_cmp_lt_u32 s{T_}, s{LIM}"); A("s_cbranch_scc1 L_ks3")
    A("s_branch L_ev")

    g.lab("L_vs")
    fetch()
    A(f"s_cmp_eq_u32 s{X1D}, 2"); A("s_cbranch_scc1 L_vs1")
    A(f"s_cmp_eq_u32 s{X1D}, 1"); A("s_cbranch_scc1 L_x3")
    A(f"s_cmp_gt_u32 s{LVL}, s{T_}"); A("s_cbranch_scc1 L_ks2")
    g.lab("L_x1")
    g.stamp(1, 2)
    dots(3, (1,))
    sc = OFF[1] + 1
    A(f"s_lshl_b32 s68, s{NH}, 3")
    A(f"s_add_u32 s68, s68, s{LB}")
    for i in range(4): A(f"v_add_f32_dpp v{X+i}, v{X+i}, v{X+i} quad_perm:[2,3,0,1] row_mask:0xf bank_mask:0xf")
    for i in range(2): A(f"v_cndmask_b32 v{T+i}, v{X+2*i}, v{X+2*i+1}, s[52:53]")
    A("v_mov_b32 v20, 64")
    A("v_lshlrev_b32 v21, 3, s9")
    for i in range(2): A(f"v_add_f32_dpp v{T+i}, v{T+i}, v{T+i} quad_perm:[1,0,3,2] row_mask:0xf bank_mask:0xf")
    A(f"v_cndmask_b32 v{sc}, v{T}, v{T+1}, s[54:55]")
    rnd(g, sc)
    A(f"v_mul_f32 v{sc}, 0x{SCALE:08x}, v{sc}")
    rnd(g, sc)
    mx = lambda r: f"v_max_f32_dpp v{MW}, v{MW}, v{MW} row_ror:{r} row_mask:0xf bank_mask:0xf"
    tk1 = f"s[{TK[1]}:{TK[1]+1}]"
    for t in (f"v_max_f32 v{MW}, v{MW}, v{sc}",
              f"v_cmp_ngt_f32 vcc, s{HTH}, v{sc}", "v_mov_b32 v4, 0", mx(8),
              "s_bcnt1_i32_b64 s69, vcc", f"s_add_u32 s69, s69, s{NH}", mx(4),
              f"s_cmp_gt_u32 s69, {HCAP}", f"s_cselect_b32 s{NSP}, 1, s{NSP}", mx(2),
              f"s_cmp_eq_u32 s{NSP}, 0", f"s_cselect_b64 {tk1}, vcc, 0", f"s_cselect_b32 s{NH}, s69, s{NH}", mx(1),
              f"v_mbcnt_lo_u32_b32 v3, s{TK[1]}, 0", f"v_mov_b32 v{T}, v{MW}", f"v_mbcnt_hi_u32_b32 v3, s{TK[1]+1}, v3", "v_lshl_add_u32 v3, v3, 3, s68",
              f"v_permlane16_swap_b32 v{T}, v{MW}",
              f"s_mov_b64 exec, {tk1}", f"ds_write_b64 v3, {vr(OFF[1],2)} offset:{HPOS*8}", "s_mov_b64 exec, -1",
              f"ds_read_b32 v{SET[2]}, v{LRD} offset:1024",
              f"v_max_f32 v{MW}, v{MW}, v{T}", f"v_mov_b32 v{T}, v{MW}", "v_mov_b32 v5, 0", f"s_mov_b32 s{TH}, s{T_}",
              f"v_permlane32_swap_b32 v{T}, v{MW}", f"v_max_f32 v{MW}, v{MW}, v{T}"): A(t)
    for i in range(2): A(f"v_sub_f32 v{X+1+i}, v{OFF[i]+1}, v{MW}")
    for i in range(2): A(f"v_mul_f32 v{X+1+i}, 0x{LOG2E:08x}, v{X+1+i}")
    for i in range(2): A(f"v_exp_f32 v{X+1+i}, v{X+1+i}")
    A(f"v_mov_b32 v{X}, v{MW}")
    A(f"v_add_f32 v{X+1}, v{X+1}, v{X+2}")
    A("s_waitcnt lgkmcnt(0)")
    for i in range(8):
        A(f"s_cmp_le_u32 s{NH}, {4*i}"); A("s_cbranch_scc1 L_x2")
        A(f"v_add_u32_dpp v3, v{SET[2]}, v{L16} row_newbcast:{8+i} row_mask:0xf bank_mask:0xf")
        A(f"buffer_load_dwordx4 {vr(slot(24+i),4)}, v3, s[48:51], 0 offen {VF}")
    g.lab("L_x2")
    g.stamp(2, 2)
    wave_red("v_add_f32", X+1, T)
    A("s_mov_b64 exec, 1")
    A(f"ds_max_f32 v1, v{MW} offset:{L_MX}")
    A(f"ds_write_b64 v21, {vr(X,2)} offset:{L_ST}")
    A(f"ds_add_u32 v1, v20 offset:{L_SCN}")
    A("s_mov_b64 exec, -1")
    g.stamp(3); g.stamp(3, 2)
    A(f"s_mov_b32 s{X1D}, 1"); A(f"s_mov_b32 s{HST}, 1")
    A(f"s_cmp_lt_u32 s{T_}, {LAG}"); A("s_cbranch_scc1 L_ks2")
    g.lab("L_x3")
    A(f"v_max_f32 v21, s{EV}, v{MW}")
    A(f"s_add_u32 s{CNT}, s{CNT}, 3"); A(f"s_lshr_b32 s{CNT}, s{CNT}, 2")
    A(f"v_add_f32 v21, 0x{f2u(DEL - ZERO_GAP):08x}, v21")
    A(f"s_max_u32 s{CNT}, s{CNT}, s{T_}"); A(f"s_lshl_b32 s{CNT}, s{CNT}, 2")
    build(1, 21)
    def fill():
        for e in range(4): A(f"v_mov_b32 v{AC_+e}, 0")
        for e in range(2, 4): A(f"v_mov_b32 v{AH_+e}, 0")
        A(f"s_lshr_b32 s{LIM}, s{CNT}, 2")
        A(f"s_mov_b32 s{X1D}, 2")
        estimate(2, opts.get("ve2", 8), CNT)
    reread(True, fill)
    A(f"s_cmp_eq_u32 s{NH}, 0")
    A(f"s_cselect_b32 s{LVL}, 0, s{LVL}")
    g.stamp(4, 2)
    g.lab("L_vs1")
    A(f"s_cmp_eq_u32 s{HST}, 0"); A("s_cbranch_scc1 L_vs1b")
    A(f"s_sub_u32 s68, s{T_}, s{TH}")
    A(f"s_cmp_le_u32 s{LVL}, s68"); A("s_cbranch_scc1 L_snap")
    A(f"s_cmp_lt_u32 s{T_}, s{LIM}"); A("s_cbranch_scc1 L_ks2")
    A("s_waitcnt vmcnt(0)")
    g.lab("L_snap")
    g.stamp(5, 2)
    for i in range(8):
        A(f"s_cmp_le_u32 s{NH}, {4*i}"); A("s_cbranch_scc1 L_snp2")
        pv(40 + i, slot(24 + i), AH_)
    g.lab("L_snp2")
    out_addr()
    A("s_nop 0")
    A(f"s_mov_b32 s{HST}, 0")
    A(f"s_cmp_lg_u32 s{NSP}, 0"); A("s_cbranch_scc1 L_vs1b")
    prelim(AH_)
    g.stamp(9); g.stamp(7, 2)
    A("s_branch L_vs1b")
    g.lab("L_vq")
    fetch()
    g.lab("L_vs1b")
    if opts.get("early", 0):
        A(f"s_lshr_b32 s68, s{SBI}, 16")
        A(f"s_cmp_gt_u32 s68, s{FIN}"); A("s_cbranch_scc1 L_hand")
    g.lab("L_vs2")
    A(f"s_cmp_lt_u32 s{T_}, s{LIM}"); A("s_cbranch_scc1 L_ks2")
    g.lab("L_ev")
    A(f"s_cmp_eq_u32 s{FIN}, 0"); A("s_cbranch_scc1 L_hand")
    A(f"s_add_u32 s68, s{T_}, {LAG}")
    A(f"s_cmp_lt_u32 s68, s{FIN}"); A("s_cbranch_scc0 L_wt1")
    A(f"s_add_u32 s{T_}, s{T_}, 1")
    A("s_mov_b64 exec, 1")
    A(f"ds_dec_u32 v{PA}, v{LRD} offset:{L_RM}")
    A("s_mov_b64 exec, -1")
    A("s_branch L_wtx")

    g.lab("L_hand")
    g.stamp(7)
    A("v_mov_b32 v3, 0")
    wait_cnt(g, f"ds_read_b64 v[18:19], v3 offset:{L_SCN}", 18, 0x10000 + 64 * NS_, 1)
    g.stamp(4)
    A(f"v_add_f32 v21, 0x{f2u(-ZERO_GAP):08x}, v19")
    if opts.get("noskip"): A("v_mov_b32 v21, 0xff800000")
    build(0, 21); build(1, 21)
    def fill2():
        A(f"s_add_u32 s{FIN}, s{CNT}, {3 + 4*LAG}")
        A(f"s_lshr_b32 s{FIN}, s{FIN}, 2")
        A(f"s_sub_u32 s{LIM}, s{FIN}, {LAG + opts.get('burst', 3)}")
        A(f"s_max_i32 s{LIM}, s{LIM}, 0")
        estimate(2, 3, CNT)
    reread(True, fill2)
    A("s_branch L_vs2")

    g.lab("L_work")
    ret2 = f"s_setpc_b64 s[{RET2}:{RET2+1}]"
    for k, l in ((4, "L_w3"), (3, "L_w2b"), (5, "L_w5"), (2, "L_w2"), (1, "L_w1")):
        A(f"s_cmp_eq_u32 s{STA}, {k}"); A(f"s_cbranch_scc1 {l}")
    g.lab("L_w0")
    A(f"s_load_dwordx16 s[16:31], s[42:43], s{QA} glc")
    A(f"s_mov_b32 s{STA}, 1")
    g.lab("L_wr")
    A(ret2)
    g.lab("L_w1")
    A("s_waitcnt lgkmcnt(0)")
    A(f"s_xor_b32 s68, s17, s{ST}")
    for k in range(1, 8):
        A(f"s_xor_b32 s69, s{17+2*k}, s{ST}"); A("s_or_b32 s68, s68, s69")
    A("s_cbranch_scc1 L_w0")
    for k in range(8): A(f"v_mov_b32 v{8+k}, s{16+2*k}")
    A("v_lshlrev_b32 v3, 5, s9")
    A("s_mov_b64 exec, 1")
    A(f"ds_write_b128 v3, v[8:11] offset:{L_QV}")
    A(f"ds_write_b128 v3, v[12:15] offset:{L_QV+16}")
    A("s_mov_b64 exec, -1")
    A(f"s_mov_b32 s{STA}, 2")
    def landed(n):
        A(f"s_add_u32 s68, s{LVL}, {n}")
        A(f"s_cmp_lt_u32 s{T_}, s68"); A("s_cbranch_scc1 L_wr")
    g.lab("L_w2")
    assert J0 >= 8 + LAG
    A(f"ds_read_b128 v[4:7], v{L16} offset:{L_QV}")
    A("s_waitcnt lgkmcnt(0)")
    chk_sentinel(g, [4, 5, 6, 7], 8)
    A("s_cmp_lg_u64 vcc, 0"); A("s_cbranch_scc1 L_wr")
    dots(0)
    A(f"s_mov_b32 s{STA}, 3"); A(f"s_mov_b32 s{NXT}, 17")
    A(ret2)
    g.lab("L_w2b")
    landed(16)
    g.stamp(9, 2)
    dots(1)
    finish(0)
    A(f"s_mov_b32 s{STA}, 4")
    A(f"s_mov_b32 s{HST}, 0")
    g.stamp(8)
    A(ret2)
    g.lab("L_w5")
    landed(24)
    dots(2)
    A(f"s_mov_b32 s{STA}, 6"); A(f"s_mov_b32 s{NXT}, 99")
    A(ret2)
    g.lab("L_w3")
    A("v_mov_b32 v3, 0")
    A(f"ds_read_b64 v[18:19], v3 offset:{L_ECN}")
    A("s_waitcnt lgkmcnt(0)")
    A(f"v_cmp_gt_u32 vcc, 0x{0x10000 + 64 * NS_:x}, v18")
    A("s_cmp_lg_u64 vcc, 0"); A("s_cbranch_scc1 L_wr")
    A(f"ds_read_b64 v[20:21], v3 offset:{L_E1}")
    A("s_waitcnt lgkmcnt(0)")
    A(f"v_add_f32 v21, 0x{f2u(-THETA):08x}, v21")
    A(f"v_cmp_nlt_f32 vcc, v{OFF[0]+1}, v21")
    A(f"v_readfirstlane_b32 s{HTH}, v21")
    A(f"v_readfirstlane_b32 s{EV}, v20")
    A(f"s_mov_b32 s{NH}, 0")
    A("s_bcnt1_i32_b64 s68, vcc")
    A(f"s_cmp_gt_u32 s68, {HCAP}")
    A(f"s_cselect_b32 s{NSP}, 1, 0")
    A("s_cbranch_scc1 L_w4")
    A(f"s_mov_b32 s{CNT}, {HPOS}")
    build(0, 21)
    A(f"s_mov_b32 s{NH}, s69"); A(f"s_mov_b32 s{CNT}, 0")
    g.lab("L_w4")
    A(f"v_add_f32 v21, 0x{f2u(DEL - ZERO_GAP):08x}, v20")
    build(0, 21)
    estimate(1, opts.get("ve1", 4), CNT, False)
    if opts.get("ka1", 0):
        A(f"s_sub_i32 s68, s{VE}, {opts.get('kt1', 20)}")
        A(f"s_max_i32 s68, s68, {opts.get('kl1', -4)}")
        A(f"s_mul_i32 s68, s68, {int(opts['ka1']*4096)}")
        A(f"s_add_i32 s{DB}, s{DB}, s68")
    A(f"s_mov_b32 s{STA}, 5"); A(f"s_mov_b32 s{NXT}, 25")
    reread(False)
    A(ret2)

def gen(opts):
    g = G(opts); A = g.A
    opts.setdefault("ka1", 0.06)
    WFL = opts.get("wflags", "nt")
    D0 = opts.get("D0", 3)
    MREP = 8
    TB = 32
    hdr = open(opts["ref"]).read().split("; Override launch")[0]
    g.L.append(hdr.rstrip("\n"))
    g.L.append(""";
;    numbers of loads in flight only affect speed.""")
    g.L.append(f"; @launch grid=(256,1,1) block=(768,1,1) lds={LDS_BYTES}")
    g.L.append('.amdgcn_target "amdgcn-amd-amdhsa--gfx950"\n.text')
    g.L.append(f".globl {KNAME}\n.p2align 8\n.type {KNAME},@function\n{KNAME}:")
    g.stamp(0, 3)
    A("s_cmp_ge_u32 s2, 256")
    A("s_cbranch_scc1 L_end")
    A("s_load_dwordx16 s[16:31], s[0:1], 0")
    A("s_load_dwordx8 s[32:39], s[0:1], 64")
    A("s_load_dwordx4 s[40:43], s[0:1], 96")
    A("v_lshrrev_b32 v2, 6, v0")
    A("v_and_b32 v1, 63, v0")
    A("v_readfirstlane_b32 s13, v2")
    A("s_bfe_u32 s7, s2, 0x20003")
    A("s_bfe_u32 s6, s2, 0x20005")
    A("s_and_b32 s8, s2, 7")
    A("s_lshl2_add_u32 s6, s8, s6")
    A("s_and_b32 s9, s2, 0x80")
    A("s_lshr_b32 s9, s9, 2")
    A("s_add_u32 s6, s6, s9")
    A("s_mov_b32 s72, 0xfffffffe")
    A("s_mov_b32 s73, 0xffff0000")
    g.stamp(0)
    A("s_cmp_eq_u32 s7, 3")
    A("s_cbranch_scc1 L_serv")
    A("s_cmp_eq_u32 s13, 0")
    A("s_cbranch_scc1 L_pub")
    stream(g, opts)

    def tag():
        A("s_waitcnt lgkmcnt(0)")
        make_tag(g)
    def tag_bytes():
        for i in range(4): A(f"s_bfe_u32 s{TB+i}, s{ST}, 0x{(8 << 16) | (8 * i):x}")
    def table():
        A("s_getpc_b64 s[56:57]")
        l = g.uniq("pc"); g.lab(l)
        A("s_lshr_b32 s3, s2, 5"); A("s_lshl3_add_u32 s3, s3, s8"); A("s_lshl_b32 s3, s3, 2")
        A(f"s_add_u32 s3, s3, L_table-{l}")
        A("s_load_dword s14, s[56:57], s3")

    g.lab("L_pub")
    NT = opts.get("nt", 2)
    if NT:
        A("s_getpc_b64 s[56:57]")
        g.lab("L_pct")
        A("s_lshr_b32 s3, s2, 3"); A("s_lshl_b32 s3, s3, 2")
        A("s_add_u32 s3, s3, L_touch-L_pct")
        A("s_load_dword s14, s[56:57], s3")
        A("s_waitcnt lgkmcnt(0)")
        for k in range(NT):
            e = g.uniq("tq"); e2 = g.uniq("te")
            A(f"s_bfe_u32 s48, s14, 0x{(3 << 16) | (8*k):x}"); A("s_lshl_b32 s48, s48, 6")
            A("v_add_u32 v2, s48, v1")
            A(f"s_bfe_u32 s48, s14, 0x{(3 << 16) | (8*k+3):x}")
            A(f"s_bitcmp1_b32 s14, {8*k+7}"); A(f"s_cbranch_scc1 {e2}")
            A(f"s_bitcmp1_b32 s14, {8*k+6}"); A(f"s_cbranch_scc1 {e}")
            A("s_lshl1_add_u32 s48, s8, s48"); A("s_lshl_b32 s48, s48, 7")
            A("v_mul_u32_u24 v2, 6144, v2")
            A("v_add_u32 v2, s48, v2")
            A("global_load_dword v167, v2, s[36:37]")
            A(f"s_branch {e2}")
            g.lab(e)
            A("s_lshl3_add_u32 s48, s8, s48"); A("s_lshl_b32 s48, s48, 7")
            A("v_lshl_add_u32 v2, v2, 13, s48")
            A("global_load_dword v167, v2, s[22:23]")
            g.lab(e2)
    A("v_mov_b32 v38, 0")
    A("v_mov_b32 v4, -1")
    A("v_mov_b32 v8, 0xff800000"); A("v_mov_b32 v9, 0")
    A("v_lshlrev_b32 v2, 3, v1")
    A(f"ds_write_b64 v2, v[8:9] offset:{L_S4}")
    A("v_mov_b32 v5, 0"); A("v_mov_b32 v6, 0"); A("v_mov_b32 v7, 0")
    A(f"ds_write_b64 v2, v[6:7] offset:{L_OP+512*(NS_-1)}")
    A(f"ds_write_b64 v2, v[6:7] offset:{L_OP1+512*(NS_-1)}")
    A("v_lshlrev_b32 v2, 2, v1")
    A(f"ds_write_b32 v2, v4 offset:{L_QV}")
    A("s_lshr_b32 s10, s7, 1")
    A(f"ds_write_b128 v38, v[4:7] offset:{L_ML}")
    A("v_lshlrev_b32 v10, 6, s10"); A("v_mov_b32 v11, v8"); A("v_mov_b32 v12, v10"); A("v_mov_b32 v13, v8")
    A(f"ds_write_b128 v38, v[10:13] offset:{L_SCN}")
    A(f"s_mul_i32 s11, s10, {32-D0}"); A(f"s_sub_u32 s11, {1024+NS_*(32-D0)}, s11")
    A("v_mov_b32 v10, s11"); A("v_mov_b32 v11, 0"); A("v_mov_b32 v12, 1024"); A("v_mov_b32 v13, 0")
    A(f"ds_write_b128 v38, v[10:13] offset:{L_RM}")
    A("v_mov_b32 v4, s10"); A("v_mov_b32 v5, s10")
    A(f"ds_write_b128 v38, v[4:7] offset:{L_SN}")
    A(f"s_getreg_b32 s{SXCC}, hwreg(HW_REG_XCC_ID, 0, 4)")
    A("s_waitcnt lgkmcnt(0)")
    A(f"s_load_dword s{ST}, s[42:43], {WS_E}")
    A("s_barrier")
    tag()
    A(f"s_add_u32 s{SXCC}, s{SXCC}, s{ST}")
    def merge(nl, base):
        A(f"v_and_b32 v9, {nl-1}, v1")
        A("v_lshlrev_b32 v9, 3, v9")
        A(f"ds_read_b64 v[10:11], v9 offset:{base}")
        mods = ["quad_perm:[1,0,3,2]", "quad_perm:[2,3,0,1]", "row_half_mirror", "row_mirror"][:nl.bit_length()-1]
        A("s_waitcnt lgkmcnt(0)")
        if nl == 16: A("v_mov_b32 v16, v10")
        for i, m_ in enumerate(mods):
            src = 10 if i == 0 else 8
            A(f"v_max_f32_dpp v8, v{src}, v{src} {m_} row_mask:0xf bank_mask:0xf")
            if i + 1 < len(mods): A("s_nop 1")
        A("v_sub_f32 v9, v10, v8")
        A(f"v_mul_f32 v9, 0x{LOG2E:08x}, v9")
        A("v_exp_f32 v9, v9")
        A("s_nop 0")
        A("v_mul_f32 v10, v9, v11")
        for m_ in mods:
            A("s_nop 1")
            A(f"v_add_f32_dpp v10, v10, v10 {m_} row_mask:0xf bank_mask:0xf")
    SB = 20
    def sissue(n, nd, off):
        for i in range(n): A(f"s_load_dwordx{nd} s[{SB+4*i}:{SB+4*i+nd-1}], s[42:43], s{54+i} offset:{off} glc")
    def spoll(n, nd, off, name, sleep):
        A("s_mov_b32 s70, 0")
        A(f"s_branch {name}c")
        g.lab(name)
        sissue(n, nd, off)
        g.lab(name + "c")
        A("s_waitcnt lgkmcnt(0)")
        tags = [SB + 4*i + k for i in range(n) for k in range(1, nd, 2)]
        A(f"s_xor_b32 s68, s{tags[0]}, s{ST}")
        for k in tags[1:]:
            A(f"s_xor_b32 s69, s{k}, s{ST}"); A("s_or_b32 s68, s68, s69")
        A(f"s_cbranch_scc0 {name}d")
        A(f"s_sleep {sleep}")
        A("s_add_u32 s70, s70, 1")
        A(f"s_cmp_lt_u32 s70, {SPIN_MAX}")
        A(f"s_cbranch_scc1 {name}")
        g.lab(name + "d")
    A("s_add_u32 s52, s7, 1"); A("s_cmp_eq_u32 s52, 3"); A("s_cselect_b32 s52, 0, s52")
    A("s_add_u32 s53, s52, s7"); A("s_sub_u32 s53, 3, s53")
    for i in range(2):
        A(f"s_lshl2_add_u32 s{54+i}, s6, s{52+i}"); A(f"s_lshl_b32 s{54+i}, s{54+i}, 7")
    A("s_lshl2_add_u32 s64, s6, s7"); A("s_lshl_b32 s64, s64, 7")
    A(f"s_add_u32 s64, s64, {WS_S1}")
    A("v_mov_b32 v18, s64")
    A(f"v_add_u32 v19, {WS_S2-WS_S1}, v18")
    A("v_mov_b32 v17, 0x10000")
    PT = opts.get("pt", 15)
    if PT & 1:
        A("s_lshl2_add_u32 s49, s6, s7"); A("s_lshl_b32 s49, s49, 9"); A(f"s_add_u32 s49, s49, {WS_OP}")
        A("v_and_b32 v10, 3, v1"); A("v_lshl_add_u32 v10, v10, 7, s49")
        A("v_bfe_u32 v11, v1, 2, 1"); A(f"v_mul_u32_u24 v11, {R2}, v11"); A("v_add_u32 v10, v10, v11")
        A("s_mov_b64 exec, 0xff")
        A("global_load_dword v166, v10, s[42:43] sc1")
        A("s_mov_b64 exec, 1")
        A("global_load_dword v166, v18, s[42:43] sc1")
        A("global_load_dword v166, v19, s[42:43] sc1")
        A("s_mov_b64 exec, -1")
    wait_cnt(g, f"ds_read_b64 v[8:9], v38 offset:{L_ECN}", 8, 64 * NS_, 2)
    sissue(2, 2, WS_S1)
    A("v_mov_b32 v8, v9")
    A(f"v_mov_b32 v9, s{ST}")
    A("s_mov_b64 exec, 1")
    A("global_store_dwordx2 v18, v[8:9], s[42:43] sc1")
    g.stamp(1)
    spoll(2, 2, WS_S1, "L_s3e", opts.get("ssl", 2))
    A(f"v_mov_b32 v12, s{SB}")
    A(f"v_max3_f32 v10, v8, v12, s{SB+4}")
    A(f"v_min3_f32 v11, v8, v12, s{SB+4}")
    A(f"ds_write_b64 v38, v[10:11] offset:{L_E1}")
    A(f"ds_add_u32 v38, v17 offset:{L_ECN}")
    A("s_mov_b64 exec, -1")
    g.stamp(3)
    if True:
        A("s_lshl_b32 s64, s8, 7")
        A(f"s_load_dwordx8 s[20:27], s[42:43], s64 offset:{WS_HDR} glc")
        A("s_waitcnt lgkmcnt(0)")
        A(f"s_xor_b32 s68, s20, s{SXCC}")
        for k in range(1, 8):
            A(f"s_xor_b32 s69, s{20+k}, s{SXCC}"); A("s_or_b32 s68, s68, s69")
        A(f"s_cselect_b32 s{SLOC}, 0, 1")
        if opts.get("nolocal"): A(f"s_mov_b32 s{SLOC}, 0")
    for i, r in enumerate((7, 52, 53)): A(f"v_lshlrev_b32 v{20+i}, 3, s{r}")
    wait_cnt(g, f"ds_read_b32 v8, v38 offset:{L_SCN}", 8, 64 * NS_, 1)
    merge(16, L_ST)
    sissue(2, 4, WS_S2)
    A(f"v_mov_b32 v9, s{ST}"); A(f"v_mov_b32 v11, s{ST}")
    A("s_mov_b64 exec, 1")
    A("global_store_dwordx4 v19, v[8:11], s[42:43] sc1")
    A(f"ds_write_b32 v20, v8 offset:{L_S4}")
    A(f"ds_write_b32 v20, v10 offset:{L_S4+4}")
    g.stamp(4)
    spoll(2, 4, WS_S2, "L_s3p", opts.get("ssl", 2))
    for i in range(2):
        A(f"v_mov_b32 v{12+2*i}, s{SB+4*i}"); A(f"v_mov_b32 v{13+2*i}, s{SB+4*i+2}")
    A("v_max_f32 v23, v12, v14")
    A(f"ds_max_f32 v38, v23 offset:{L_MX}")
    A(f"ds_add_u32 v38, v17 offset:{L_SCN}")
    A(f"ds_add_u32 v38, v17 offset:{L_RM+12}")
    for i in range(2): A(f"ds_write_b64 v{21+i}, {vr(12+2*i,2)} offset:{L_S4}")
    A("s_mov_b64 exec, -1")
    merge(4, L_S4)
    A("v_sub_f32 v9, v16, v8")
    A("v_rcp_f32 v10, v10")
    A(f"v_mul_f32 v9, 0x{LOG2E:08x}, v9")
    A("v_exp_f32 v9, v9")
    A("v_lshlrev_b32 v8, 2, v1")
    A("v_mul_f32 v9, v9, v10")
    A("s_mov_b64 exec, 0xffff")
    A(f"ds_write_b32 v8, v9 offset:{L_S8}")
    A("s_mov_b64 exec, -1")
    A(f"ds_write_b32 v38, v38 offset:{L_ML}")
    g.stamp(5)
    R = 40
    op_prep(g, R, 38, 0)
    wait_then(g, L_SN, NS_, op_reads(L_OP1, R), NS_ - 1)
    op_sum(g, R, True)
    g.stamp(6)
    R1 = 80
    op_prep(g, R1, 38, R2)
    A("s_waitcnt vmcnt(0)")
    wait_cnt(g, f"ds_read_b32 v8, v38 offset:{L_TK}", 8, opts.get("ctk", 2), 4)
    A(f"global_store_dwordx2 v{R+OPA}, {vr(R,2)}, s[42:43] sc1")
    A("s_cmp_eq_u32 s7, 2"); A("s_cbranch_scc1 L_chk")
    wait_then(g, L_TK, NS_, op_reads(L_OP, R1), NS_ - 1)
    op_sum(g, R1, False)
    g.stamp(7)
    A("s_branch L_fin")

    g.lab("L_chk")
    TG = 160; RB = 136
    for k in range(2): A(f"v_and_b32 v{TG+k}, 0xff, v{R+OPA+1+k}")
    A("s_lshl_b32 s10, s6, 11"); A(f"s_add_u32 s10, s10, {WS_OP}")
    A("v_lshl_add_u32 v2, v1, 3, s10")
    def head_sum(b_, t, src=None):
        src = src or list(range(b_, b_ + 6))
        for i in range(6): A(f"v_xor_b32 v{b_+i}, v{src[i]}, v{TG+(i&1)}")
        A(f"v_or3_b32 v{t}, v{b_}, v{b_+1}, v{b_+2}")
        A(f"v_or3_b32 v{t+1}, v{b_+3}, v{b_+4}, v{b_+5}")
        for i in range(6): A(f"v_or_b32 v{b_+i}, 0x80, v{b_+i}")
        A(f"v_or_b32 v{t}, v{t}, v{t+1}")
        A(f"v_pk_add_f32 {vr(b_,2)}, {vr(b_,2)}, {vr(b_+2,2)}")
        A(f"v_lshlrev_b32 v{t}, 24, v{t}")
        A(f"v_pk_add_f32 {vr(b_,2)}, {vr(b_,2)}, {vr(b_+4,2)}")
        A(f"v_cmp_ne_u32 vcc, 0, v{t}")
        A(f"v_cvt_pk_bf16_f32 v{b_}, v{b_}, v{b_+1}")
    RAW = RB + 18
    def looks(k, v=2):
        for i in range(2): A(f"global_load_dwordx2 {vr(RAW-24*k+2*i,2)}, v{v}, s[42:43] offset:{512*i} sc1")
    def settle(k, sleep, own, depth):
        raw = RAW - 24*k
        A("s_mov_b32 s70, 0")
        A(f"s_branch L_cp{k}c")
        g.lab(f"L_cp{k}")
        looks(k)
        if sleep: A(f"s_sleep {sleep}")
        A(f"s_waitcnt vmcnt({2*(depth-1)})")
        g.lab(f"L_cp{k}c")
        head_sum(RB+8*k, RB+16, [raw, raw+1, raw+2, raw+3, own, own+1])
        spin_tail(g, f"L_cp{k}", f"L_cp{k}d", 0)
    looks(0)
    A(f"v_add_u32 v3, {R2}, v2")
    wait_then(g, L_TK, NS_, op_reads(L_OP, R1), NS_ - 1)
    looks(1, 3)
    op_sum(g, R1, False)
    g.stamp(7)
    A("s_waitcnt vmcnt(1)")
    settle(0, 4, R, 1)
    A(f"v_add_u32 v2, {R2}, v2")
    settle(1, opts.get("csl", 0), R1, opts.get("cpipe", 1))
    A(f"v_cmp_ne_u32 vcc, v{RB}, v{RB+8}")
    A("s_cmp_eq_u64 vcc, 0"); A("s_cbranch_scc1 L_fin")
    A("s_waitcnt vmcnt(0)")
    fallback(g, head_sum, g.wave_red)

    g.lab("L_serv")
    A("s_cmp_ge_u32 s13, 4"); A("s_cbranch_scc1 L_team")
    A("s_cmp_ge_u32 s13, 2"); A("s_cbranch_scc1 L_end")
    A("v_mov_b32 v38, 0")
    A("v_mov_b32 v4, -1"); A("v_mov_b32 v5, 0"); A("v_mov_b32 v6, 0"); A("v_mov_b32 v7, 0")
    A(f"ds_write_b128 v38, v[4:7] offset:{L_ML}")
    A(f"ds_write_b64 v38, v[6:7] offset:{L_CNA}")
    A(f"s_getreg_b32 s{SXCC}, hwreg(HW_REG_XCC_ID, 0, 4)")
    A("s_waitcnt lgkmcnt(0)")
    A(f"s_load_dword s{ST}, s[42:43], {WS_E}")
    table()
    A("s_barrier")
    tag()
    tag_bytes()
    A("s_cmp_eq_u32 s13, 0"); A("s_cbranch_scc1 L_sv0")
    A("s_bfe_u32 s61, s14, 0x80010")
    A("s_cmp_ge_u32 s61, 32"); A("s_cbranch_scc1 L_fin")
    poll_lds(g, [f"ds_read_b32 v8, v38 offset:{L_ML}"], [8], 9, 16)
    A("s_branch L_r_f2")

    g.lab("L_sv0")
    if True:
        A(f"s_add_u32 s{SXCC}, s{SXCC}, s{ST}")
        A("s_lshr_b32 s49, s2, 5"); A("s_lshl_b32 s50, s8, 5"); A("s_add_u32 s49, s49, s50"); A("s_lshl_b32 s49, s49, 2")
        A("v_mov_b32 v8, s49"); A(f"v_mov_b32 v9, s{SXCC}")
        A("s_mov_b64 exec, 1")
        A(f"global_store_dword v8, v9, s[42:43] offset:{WS_HDR} sc1")
        A("s_mov_b64 exec, -1")
    for i in range(3):
        A(f"s_lshl_b32 s{54+i}, s6, 9"); A(f"s_add_u32 s{54+i}, s{54+i}, {128*i}")
    WDL = opts.get("wdl", 2)
    if WDL:
        wait_cnt(g, f"ds_read_b32 v8, v38 offset:{L_CNA}", 8, 8, 16)
        A(f"s_sleep {opts.get('wds', 64)}")
        sissue(opts.get("wdn", 3), 2, WS_S1)
        spoll(opts.get("wdn", 3), 2, WS_S1, "L_s3w", 8)
        A("v_mov_b32 v8, 1")
        A(f"ds_write_b32 v38, v8 offset:{L_ML+4}")
    wait_cnt(g, f"ds_read_b32 v8, v38 offset:{L_CNA}", 8, 12, 16)
    sissue(3, 2, WS_S2)
    spoll(3, 2, WS_S2, "L_s3s", 8)
    A(f"ds_write_b32 v38, v38 offset:{L_ML}")
    g.stamp(5)
    A("s_branch L_fin")

    g.lab("L_team")
    A("s_and_b32 s5, s13, 3")
    A("v_and_b32 v0, 0xff, v0")
    A("v_mov_b32 v38, 0")
    A(f"s_mov_b32 s{STG}, 0")
    A("s_lshr_b32 s60, s2, 5")
    A("v_lshrrev_b32 v12, 3, v0")
    A("v_lshlrev_b32 v12, 5, v12")
    A("v_bfe_u32 v3, v1, 2, 1")
    A("v_lshl_add_u32 v12, v3, 10, v12")
    A("v_and_b32 v8, 3, v1")
    A("v_lshl_add_u32 v37, v8, 3, v12")
    A("v_and_b32 v12, 0xffffffdf, v12")
    A("v_lshl_add_u32 v12, v8, 4, v12")
    A("v_bfe_u32 v8, v1, 3, 1")
    A("v_lshl_add_u32 v12, v8, 3, v12")
    A("v_lshl_add_u32 v12, v3, 5, v12")
    A("s_waitcnt lgkmcnt(0)")
    A(f"s_load_dword s{ST}, s[42:43], {WS_E}")
    A("s_barrier")
    A("s_cmp_ge_u32 s13, 8"); A("s_cbranch_scc1 L_r_mod")

    def line_out_addr(v, bsh=6, ush=7):
        A(f"v_and_b32 v{v}, 1, v1")
        A(f"v_lshlrev_b32 v{v}, {bsh}, v{v}")
        A("v_lshrrev_b32 v3, 4, v1")
        A(f"v_lshl_add_u32 v{v}, v3, 4, v{v}")
        A(f"s_lshl_b32 s49, s5, {ush}")
        A("s_add_u32 s49, s49, s58")
        A(f"v_add_u32 v{v}, s49, v{v}")
    def pack_tagged():
        A("v_cvt_pk_bf16_f32 v8, v8, v9")
        A("v_cvt_pk_bf16_f32 v10, v10, v11")
        A(f"v_mov_b32 v9, s{ST}")
        A(f"v_mov_b32 v11, s{ST}")
    def go(k):
        A("v_mov_b32 v3, 1")
        A("s_mov_b64 exec, 1")
        A(f"ds_add_u32 v38, v3 offset:{L_GO+4*k}")
        A("s_mov_b64 exec, -1")

    g.T = TA
    g.lab("L_r_q")
    A("s_lshl3_add_u32 s61, s8, s60")
    A("s_lshl_b32 s48, s61, 7")
    A("s_lshl_b32 s58, s61, 8")
    A(f"s_add_u32 s58, s58, {WS_Q}")
    A("global_load_dwordx2 v[14:15], v37, s[16:17]")
    srd(g, 44, 22, 512*8192)
    A("s_cmp_ge_u32 s60, 2"); A("s_cbranch_scc1 L_q_go")
    wait_cnt(g, f"ds_read_b32 v8, v38 offset:{L_GO+4}", 8, 4, 1)
    g.lab("L_q_go")
    dma_tile64(g, 8192, WFL, opts.get("PQ", 0))
    go(0)
    tag()
    A("v_bfe_u32 v6, v1, 2, 1")
    A("v_lshlrev_b32 v6, 5, v6")
    A(f"v_add_u32 v6, {TA.RED}, v6")
    A("s_lshl_b32 s49, s5, 3")
    A("v_add_u32 v5, s49, v6")
    A("s_waitcnt vmcnt(16)")
    unpack4(g, 20, 14)
    ln_partial(g, 20)
    A("s_waitcnt vmcnt(0) lgkmcnt(0)")
    hsync(g, 9)
    ln_apply(g, 20, 24)
    A("s_lshl_b32 s49, s8, 13"); A(f"s_add_u32 s49, s49, {WS_MA}")
    A("v_lshl_add_u32 v15, v0, 4, s49")
    A("v_add_u32 v36, 0x1000, v15")
    def mod_loads():
        A("s_mov_b64 exec, s[64:65]")
        A("global_load_dwordx4 v[16:19], v15, s[42:43] sc1")
        A("s_mov_b64 exec, s[66:67]")
        A("global_load_dwordx4 v[32:35], v36, s[42:43] sc1")
        A("s_mov_b64 exec, -1")
    A("s_mov_b64 s[64:65], -1"); A("s_mov_b64 s[66:67], -1")
    mod_loads()
    tr_tile64(g)
    line_out_addr(13, 14, 6)
    act_addr(g, 14, TA.ACT, ACT_BS)
    g.stamp(1)
    A("s_mov_b32 s70, 0")
    A("s_branch L_q_c")
    g.lab("L_q_p")
    mod_loads()
    g.lab("L_q_c")
    A("s_waitcnt vmcnt(0)")
    A(f"v_cmp_ne_u32 s[64:65], s{ST}, v17"); A(f"v_cmp_ne_u32 s[68:69], s{ST}, v19"); A("s_or_b64 s[64:65], s[64:65], s[68:69]")
    A(f"v_cmp_ne_u32 s[66:67], s{ST}, v33"); A(f"v_cmp_ne_u32 s[68:69], s{ST}, v35"); A("s_or_b64 s[66:67], s[66:67], s[68:69]")
    A("s_or_b64 vcc, s[64:65], s[66:67]")
    A("s_or_b32 s64, s64, 1"); A("s_or_b32 s66, s66, 1")
    spin_tail(g, "L_q_p", "L_q_ok", opts.get("msleep", 2))
    g.stamp(3)
    unpack4(g, 28, 32, 2)
    unpack4(g, 24, 16, 2)
    for i in range(4): A(f"v_add_f32 v{28+i}, 1.0, v{28+i}")
    for i in range(4): rnd(g, 28+i)
    for i in range(4): A(f"v_mul_f32 v{20+i}, v{20+i}, v{28+i}")
    for i in range(4): rnd(g, 20+i)
    for i in range(4): A(f"v_add_f32 v{20+i}, v{20+i}, v{24+i}")
    A("v_cvt_pk_bf16_f32 v16, v20, v21")
    A("v_cvt_pk_bf16_f32 v17, v22, v23")
    A(f"ds_write_b64 v12, v[16:17] offset:{TA.ACT}")
    hsync(g, 9)
    gemv(g, 16, 14, 8)
    pack_tagged()
    guard(g, 8); guard(g, 10)
    for x in EX8: A(x)
    A("global_store_dwordx4 v13, v[8:11], s[42:43] sc1")
    A("s_mov_b64 exec, -1")
    g.stamp(4)

    g.lab("L_r_wo")
    A("s_xor_b32 s61, s60, 1")
    A("s_lshl_b32 s48, s8, 19")
    A("s_lshl_b32 s49, s61, 7")
    A("s_add_u32 s48, s48, s49")
    A("s_lshr_b32 s58, s8, 1"); A("s_lshl_b32 s58, s58, 14")
    A("s_and_b32 s49, s8, 1"); A("s_lshl_b32 s49, s49, 12"); A("s_add_u32 s58, s58, s49")
    A("s_lshl_b32 s49, s61, 9")
    A("s_add_u32 s58, s58, s49")
    A(f"s_add_u32 s58, s58, {WS_AP}")
    srd(g, 44, 24, 4096*1024)
    if WDL & 1: wait_cnt(g, f"ds_read_b32 v8, v38 offset:{L_ML+4}", 8, 1, 8)
    dma_tile64(g, 1024, WFL, opts.get("PW", 3))
    tag_bytes()
    A("s_lshl2_add_u32 s49, s8, s5"); A("s_lshl_b32 s49, s49, 11")
    A(f"s_add_u32 s49, s49, {WS_OP}")
    A("v_lshrrev_b32 v12, 5, v1")
    A("v_and_b32 v16, 31, v1")
    A("v_lshlrev_b32 v15, 16, v12")
    A("v_lshl_add_u32 v15, v16, 4, v15")
    A("v_add_u32 v15, s49, v15")
    A(f"v_mul_u32_u24 v12, {ACT_BS}, v12")
    A("v_bfe_u32 v16, v1, 3, 2")
    A("v_lshl_add_u32 v12, v16, 6, v12")
    A("v_and_b32 v16, 3, v1")
    A("v_lshl_add_u32 v12, v16, 4, v12")
    A("v_bfe_u32 v16, v1, 2, 1")
    A("v_lshl_add_u32 v12, v16, 3, v12")
    A("s_lshl_b32 s49, s5, 8")
    A("v_add_u32 v12, s49, v12")
    line_out_addr(13)
    AREP = opts.get("arep", 2)
    A(f"v_bfe_u32 v3, v1, 1, {max(AREP.bit_length()-1, 0)}")
    A("v_lshl_add_u32 v13, v3, 16, v13")
    A("v_mov_b32 v36, 0xff")
    if PT & 2: A("global_load_dword v11, v13, s[42:43] sc1")
    A("s_waitcnt vmcnt(0)")
    g.stamp(5)
    hsync(g, 9, 4)
    tr_tile64(g)
    poll_lds(g, [f"ds_read_b32 v8, v38 offset:{L_ML}"], [8], 9, 8)
    if opts.get("notail"): go(0); A("s_branch L_fin")

    def sumN(n, src, dst):
        st = n // 2
        for i in range(st):
            for h in range(2):
                A(f"v_pk_add_f32 {vr(dst+4*i+2*h,2)}, {vr(src+4*i+2*h,2)}, {vr(src+4*(i+st)+2*h,2)}")
        st //= 2
        while st:
            for i in range(st):
                for h in range(2):
                    A(f"v_pk_add_f32 {vr(dst+4*i+2*h,2)}, {vr(dst+4*i+2*h,2)}, {vr(dst+4*(i+st)+2*h,2)}")
            st //= 2
    def sum8p(src, dst):
        for p in range(4):
            for h in range(2): A(f"v_pk_add_f32 {vr(dst+8*p+2*h,2)}, {vr(src+8*p+2*h,2)}, {vr(src+8*p+4+2*h,2)}")
        sum8q(dst)
    def sum8q(dst):
        for i in range(2):
            for h in range(2): A(f"v_pk_add_f32 {vr(dst+16*i+2*h,2)}, {vr(dst+16*i+2*h,2)}, {vr(dst+16*i+8+2*h,2)}")
        for h in range(2): A(f"v_pk_add_f32 {vr(dst+2*h,2)}, {vr(dst+2*h,2)}, {vr(dst+16+2*h,2)}")
    def x1_from(S):
        for i in range(4): rnd(g, S+i)
        for i in range(4): A(f"v_mul_f32 v{S+i}, v{S+i}, v{20+i}")
        for i in range(4): rnd(g, S+i)
        for i in range(4): A(f"v_add_f32 v{16+i}, v{16+i}, v{S+i}")
        for i in range(4): rnd(g, 16+i)
    TSL = opts.get("tsl", 0)
    def gather(n, load, raw, tmp, name, depth, gap, fin, msk=20, first=None):
        for i in range(n): A(f"s_mov_b64 s[{msk+2*i}:{msk+2*i+1}], {first[i] if first else -1}")
        def rnd_():
            for i in range(n):
                A(f"s_mov_b64 exec, s[{msk+2*i}:{msk+2*i+1}]")
                load(i, raw + 4*i)
            A("s_mov_b64 exec, -1")
        rnd_()
        A("s_waitcnt vmcnt(0)")
        A("s_mov_b32 s70, 0")
        A(f"s_branch {name}c")
        g.lab(name)
        rnd_()
        if gap: A(f"s_sleep {gap}")
        A(f"s_waitcnt vmcnt({n*(depth-1)})")
        g.lab(name + "c")
        for k in range(4*n): A(f"v_xor_b32 v{tmp+k}, s{TB+k%4}, v{raw+k}")
        for i in range(n): A(f"v_or3_b32 v{28+i}, v{tmp+4*i}, v{tmp+4*i+1}, v{tmp+4*i+2}")
        for i in range(n): A(f"v_or_b32 v{28+i}, v{28+i}, v{tmp+4*i+3}")
        for i in range(n): A(f"v_cmp_ne_u32_sdwa s[{msk+2*i}:{msk+2*i+1}], v{28+i}, v38 src0_sel:BYTE_0 src1_sel:DWORD")
        fin()
        A(f"s_mov_b64 vcc, s[{msk}:{msk+1}]")
        for i in range(1, n): A(f"s_or_b64 vcc, vcc, s[{msk+2*i}:{msk+2*i+1}]")
        for i in range(n): A(f"s_or_b32 s{msk+2*i}, s{msk+2*i}, 1")
        spin_tail(g, name, name + "ok", 0)
    def wo_fin():
        for i in range(12): A(f"v_or_b32 v{VA+32+i}, 0x80, v{VA+32+i}")
        for h in range(2): A(f"v_pk_add_f32 {vr(16+2*h,2)}, {vr(VA+32+2*h,2)}, {vr(VA+36+2*h,2)}")
        for h in range(2): A(f"v_pk_add_f32 {vr(16+2*h,2)}, {vr(16+2*h,2)}, {vr(VA+40+2*h,2)}")
    gather(3, lambda i, r: A(f"global_load_dwordx4 {vr(r,4)}, v15, s[42:43] offset:{512*i} sc1"), VA+48, VA+32, "L_wo_",
           opts.get("wpipe", 1), opts.get("wgap", 0), wo_fin)
    A("v_cvt_pk_bf16_f32 v8, v16, v17")
    A("v_cvt_pk_bf16_f32 v9, v18, v19")
    g.stamp(7)
    A(f"ds_write_b64 v12, v[8:9] offset:{TA.ACT}")
    NSPEC = opts.get("nspec", 4)
    gemv(g, 16, 14, 8, 12, 3, NSPEC)
    for i in range(4): A(f"v_bfi_b32 v{8+i}, v36, s{TB+i}, v{8+i}")
    A(f"s_mov_b32 exec_lo, 0x{((1 << 2*AREP) - 1) * 0x10001:08x}"); A("s_mov_b32 exec_hi, exec_lo")
    A("global_store_dwordx4 v13, v[8:11], s[42:43] sc1")
    g.stamp(2)
    go(0)
    A("s_branch L_fin")

    PG = VA + 32
    def pre_gather(offs):
        n = len(offs)
        l = g.uniq("pg"); e = g.uniq("pge")
        A("global_load_dwordx2 v[8:9], v37, s[16:17]")
        A("s_mov_b32 s70, 0")
        g.lab(l)
        for i, o in enumerate(offs):
            if -4096 <= o < 4096: A(f"global_load_dwordx4 {vr(PG+4*i,4)}, v39, s[42:43] offset:{o} sc1")
            else:
                A(f"v_add_u32 v3, {o}, v39")
                A(f"global_load_dwordx4 {vr(PG+4*i,4)}, v3, s[42:43] sc1")
        A("s_waitcnt vmcnt(0)")
        A("s_mov_b64 vcc, 0")
        for i in range(2 * n):
            A(f"v_cmp_ne_u32 s[68:69], s{ST}, v{PG+1+2*i}")
            A("s_or_b64 vcc, vcc, s[68:69]")
        spin_tail(g, l, e, 8)
    adr = [15, 4, 0, 36]
    def ap_addrs():
        for p in range(1, 4): A(f"v_add_u32 v{adr[p]}, {16384*p}, v15")
    def ap_load(i): A(f"global_load_dwordx4 {vr(VA+4*i,4)}, v{adr[i>>1]}, s[42:43] offset:{-4096 if i % 2 == 0 else 0} sc1")

    g.T = TB_
    g.lab("L_r_mod")
    A("global_load_dwordx2 v[14:15], v37, s[34:35]")
    srd(g, 44, 36, 512*6144)
    def mod_tile(first):
        A("s_lshl_b32 s48, s61, 7")
        A("s_lshl_b32 s58, s61, 9")
        A(f"s_add_u32 s58, s58, {WS_MA if first else WS_MOD}")
        dma_tile64(g, 6144, WFL, 0 if first else opts.get("PB", 6))
        if first:
            go(1)
            table()
            tag()
            A("s_waitcnt vmcnt(16)")
            mod_act()
        line_out_addr(13)
        if first:
            A("v_bfe_u32 v3, v1, 1, 3")
            A("v_lshl_add_u32 v13, v3, 13, v13")
        act_addr(g, 14, TB_.ACT, ACT_BS)
        tr64_addr(g)
        A("s_waitcnt vmcnt(0) lgkmcnt(0)")
        g.stamp(1 if first else 4)
        hsync(g, 9, 0 if first else 4)
        gemv_fused(g, 14, 8)
        pack_tagged()
        if not first:
            for x in EX8: A(x)
        A("global_store_dwordx4 v13, v[8:11], s[42:43] sc1")
        A("s_mov_b64 exec, -1")
        g.stamp(3 if first else 5)
        hsync(g, 9)
    def mod_act():
        unpack4(g, 16, 14)
        silu4(g, 16, 20)
        A("v_cvt_pk_bf16_f32 v14, v16, v17")
        A("v_cvt_pk_bf16_f32 v15, v18, v19")
        A(f"ds_write_b64 v12, v[14:15] offset:{TB_.ACT}")
    A("s_cmp_ge_u32 s60, 2"); A("s_cbranch_scc1 L_mod2")
    A("s_lshl1_add_u32 s61, s8, s60")
    mod_tile(True)
    A("s_branch L_mod3")
    g.lab("L_mod2")
    table()
    tag()
    A("s_waitcnt vmcnt(0)")
    mod_act()
    g.lab("L_mod3")
    EF = opts.get("ef", 0)
    def qfirst(bit=2):
        if WDL & bit: wait_cnt(g, f"ds_read_b32 v8, v38 offset:{L_ML+4}", 8, 1, 8)
        else: wait_cnt(g, f"ds_read_b32 v8, v38 offset:{L_CNA}", 8, 4 * opts.get("bh", 2), 4)
    wait_cnt(g, f"ds_read_b32 v8, v38 offset:{L_GO}", 8, 4, 4)
    A("s_and_b32 s61, s14, 0xff")
    A("s_cmp_ge_u32 s61, 48"); A("s_cbranch_scc1 L_r_f1")
    qfirst(4)
    A("s_and_b32 s61, s14, 0xff")
    g.lab("L_mod4")
    A("s_cmp_ge_u32 s61, 48"); A("s_cbranch_scc1 L_r_f1")
    mod_tile(False)
    A("s_lshr_b32 s61, s14, 24")
    A("s_or_b32 s14, s14, 0xff000000")
    A("s_branch L_mod4")

    g.lab("L_r_f1")
    A("s_bfe_u32 s61, s14, 0x80008")
    A("s_cmp_ge_u32 s61, 43"); A("s_cbranch_scc1 L_fin")
    A("s_lshl_b32 s48, s61, 6")
    A("s_lshl_b32 s58, s61, 7")
    A(f"s_add_u32 s58, s58, {WS_FP}")
    A("s_cmp_lt_u32 s5, 2")
    A("s_cselect_b32 s44, s28, s30")
    A("s_cselect_b32 s45, s29, s31")
    A(f"s_mov_b32 s46, {512*2752}")
    for h in range(2):
        A("s_and_b32 s54, s61, 1" if h == 0 else "s_andn2_b32 s54, 1, s61")
        A("v_lshrrev_b32 v2, 2, v1")
        A("v_mul_u32_u24 v2, 5504, v2")
        A("s_and_b32 s49, s5, 2")
        A("s_or_b32 s49, s49, s54")
        A("v_xor_b32 v3, s49, v1")
        A("v_and_b32 v3, 3, v3")
        A("v_lshl_add_u32 v2, v3, 4, v2")
        A("s_and_b32 s55, s5, 1")
        A(f"s_mul_i32 s49, s55, {256*2752}"); A("s_add_u32 s49, s49, s48")
        A("s_mul_i32 s50, s54, 2752"); A("s_add_u32 s49, s49, s50")
        A("s_lshr_b32 s50, s5, 1"); A("s_lshl_b32 s50, s50, 15")
        A("s_lshl_b32 s54, s54, 14"); A("s_add_u32 s50, s50, s54")
        A("s_lshl_b32 s55, s55, 13"); A("s_add_u32 s50, s50, s55")
        A(f"s_add_u32 s50, s50, {TB_.WT}")
        if h == 0:
            if EF: dma_loop(g, EF, 32*2752, "", 0)
            qfirst()
            if EF < 8: dma_loop(g, 8 - EF, 32*2752, "", opts.get("P1", 4))
        else: dma_loop(g, 8, 32*2752, WFL, opts.get("P1", 4))
    A("v_lshlrev_b32 v15, 4, v0")
    A(f"v_add_u32 v39, {WS_MOD+3*4096}, v15")
    A(f"s_and_b32 s59, s2, {AREP-1}"); A("s_lshl_b32 s59, s59, 16"); A(f"s_add_u32 s59, s59, {WS_AP+4096}")
    A("v_add_u32 v15, s59, v15")
    A("v_lshrrev_b32 v5, 2, v0")
    A("v_lshlrev_b32 v5, 3, v5")
    A(f"v_add_u32 v5, {TB_.RED}, v5")
    A("v_lshlrev_b32 v7, 3, v1")
    A(f"v_add_u32 v7, {TB_.RED}, v7")
    A("v_and_b32 v14, 7, v1")
    A(f"v_mul_u32_u24 v14, {ACT_BS}, v14")
    A("v_lshrrev_b32 v3, 4, v1")
    A("v_lshl_add_u32 v14, v3, 4, v14")
    A("v_bfe_u32 v6, v1, 2, 2")
    A("v_lshl_add_u32 v6, v3, 3, v6")
    A(f"v_mul_u32_u24 v6, {W2S}, v6")
    A("v_and_b32 v8, 3, v1")
    A("v_lshl_add_u32 v6, v8, 3, v6")
    A("s_lshl_b32 s49, s5, 8"); A(f"s_add_u32 s49, s49, {TB_.WT}")
    A("v_add_u32 v6, s49, v6")
    A("v_lshlrev_b32 v10, 3, v0")
    A(f"v_add_u32 v10, {L_HZ}, v10")
    A("v_mov_b32 v8, 0"); A("v_mov_b32 v9, 0")
    A("ds_write_b64 v10, v[8:9]")
    def f1_addrs():
        A("v_and_b32 v39, 1, v1")
        A("v_lshlrev_b32 v39, 6, v39")
        A(f"v_add_u32 v39, {L_HH}, v39")
        A("v_lshrrev_b32 v3, 4, v1")
        A("v_lshl_add_u32 v37, v3, 4, v39")
        A("v_bfe_u32 v3, v1, 1, 3")
        A("v_lshlrev_b32 v3, 7, v3")
        A("v_sub_u32 v37, v37, v3")
        A("v_bfe_u32 v3, v1, 4, 1")
        A("v_lshl_add_u32 v39, v3, 3, v39")
        A("v_lshrrev_b32 v3, 5, v1")
        A("v_lshl_add_u32 v39, v3, 2, v39")
        A("s_lshl_b32 s49, s5, 4")
        A("v_add_u32 v39, s49, v39")
    line_out_addr(13, 6, 17)
    A("v_bfe_u32 v3, v1, 1, 3")
    A("v_lshl_add_u32 v13, v3, 14, v13")
    A("v_lshrrev_b32 v2, 3, v1")
    A("v_lshlrev_b32 v2, 6, v2")
    A("v_bfe_u32 v3, v1, 2, 1")
    A("v_lshl_add_u32 v2, v3, 14, v2")
    A("v_and_b32 v8, 2, v1")
    A("v_or_b32 v3, v3, v8")
    A("v_xor_b32 v3, s5, v3")
    A("v_lshl_add_u32 v2, v3, 4, v2")
    A("v_lshl_add_u32 v2, v8, 14, v2")
    A("v_and_b32 v3, 1, v1")
    A("v_lshl_add_u32 v2, v3, 3, v2")
    A(f"v_add_u32 v2, {TB_.WT}, v2")
    A("s_waitcnt vmcnt(0)")
    hsync(g, 9, 4)
    tr_reads(g, 16, 1024, 512)
    hsync(g, 9)
    srd(g, 44, 32, 1376*1024)
    A("v_lshlrev_b32 v2, 4, v1")
    A("s_lshl2_add_u32 s49, s61, s5"); A("s_lshl_b32 s49, s49, 13")
    A(f"s_mul_i32 s50, s5, {8*W2S}")
    A(f"s_add_u32 s50, s50, {TB_.WT}")
    dma_loop(g, 8, 1024, WFL, opts.get("P2", 4), W2S)
    tag_bytes()
    g.stamp(6)
    if opts.get("notail"): A("s_branch L_fin")
    ap_addrs()
    pre_gather([-4096, 0, 4096])
    f1_addrs()
    unpack4(g, 16, 8)
    unpack4(g, 20, PG, 2)
    unpack4(g, 28, PG+8, 2)
    for i in range(4): A(f"v_add_f32 v{28+i}, 1.0, v{28+i}")
    A("v_cvt_pk_bf16_f32 v8, v28, v29"); A("v_cvt_pk_bf16_f32 v9, v30, v31")
    A(f"v_mov_b32 v{PG+5}, v{PG+6}")
    A(f"ds_write_b64 v12, v[8:9] offset:{TB_.ACT+2*ACT_BS}")
    A(f"ds_write_b64 v12, {vr(PG+4,2)} offset:{TB_.ACT+4*ACT_BS}")
    for i in range(4): rnd(g, 28+i)
    for i in range(4): A(f"v_mul_f32 v{24+i}, v{20+i}, v{28+i}")
    for i in range(4): A(f"v_mul_f32 v{28+i}, v{16+i}, v{28+i}")
    A("s_waitcnt lgkmcnt(0)")
    A("s_waitcnt vmcnt(0)")
    GATE = opts.get("gate", 0)
    if GATE: poll_lds(g, [f"ds_read_b32 v8, v38 offset:{L_ML}"], [8], 9, 8)
    else: wait_cnt(g, f"ds_read_b32 v8, v38 offset:{L_GO}", 8, 8, 2)
    g.stamp(9)
    S = VA + 32
    A("v_readfirstlane_b32 s37, v15")
    A("s_mov_b32 s70, 0")
    A("s_movk_i32 s71, 0xff")
    A("s_sub_u32 s37, s37, 4096")
    A(f"s_mov_b32 s36, {0 if GATE else 1}")
    g.lab("L_f1_p")
    A("s_add_u32 s70, s70, 1")
    A(f"s_cmp_ge_u32 s70, {SPIN_MAX}")
    A("s_cbranch_scc1 L_f1_ok")
    A("s_mov_b32 s63, s71")
    if GATE:
        A("s_cmp_eq_u32 s36, 1"); A("s_cbranch_scc1 L_f1_l")
        A(f"s_sleep {opts.get('gsl', 2)}")
        reg = lambda i: 20 + 2*i if i < 6 else 54 + 2*(i-6)
        for i in range(8): A(f"s_load_dwordx2 s[{reg(i)}:{reg(i)+1}], s[42:43], s37 offset:{(i>>1)*16384 + (i&1)*4096 + 896} glc")
        A("s_waitcnt lgkmcnt(0)")
        A(f"ds_read_b32 v8, v38 offset:{L_GO}")
        A("s_mov_b32 s62, 0")
        for i in reversed(range(8)):
            A(f"s_xor_b64 s[68:69], s[{reg(i)}:{reg(i)+1}], s[{TB}:{TB+1}]")
            A("s_or_b32 s68, s68, s69")
            A("s_and_b32 s68, s68, 0xff")
            A("s_addc_u32 s62, s62, s62")
        A("s_waitcnt lgkmcnt(0)")
        A("v_cmp_le_u32 vcc, 8, v8")
        A("s_cmp_lg_u64 vcc, 0")
        A("s_cselect_b32 s36, 1, 0")
        A("s_cselect_b32 s62, 0, s62")
        A("s_andn2_b32 s63, s71, s62")
        A("s_cbranch_scc0 L_f1_p")
        g.lab("L_f1_l")
    for i in range(8):
        l = g.uniq("fl")
        A(f"s_bitcmp1_b32 s63, {i}"); A(f"s_cbranch_scc0 {l}")
        ap_load(i)
        g.lab(l)
    A("s_waitcnt vmcnt(0)")
    for i in range(8):
        l = g.uniq("fc")
        A(f"s_bitcmp1_b32 s63, {i}"); A(f"s_cbranch_scc0 {l}")
        B_ = VA + 4 * i
        for k in range(4): A(f"v_xor_b32 v{B_+k}, s{TB+k}, v{B_+k}")
        A(f"v_or3_b32 v8, v{B_}, v{B_+1}, v{B_+2}")
        A(f"v_or_b32 v8, v8, v{B_+3}")
        A("v_cmp_ne_u32_sdwa vcc, v8, v38 src0_sel:BYTE_0 src1_sel:DWORD")
        A("s_cmp_lg_u64 vcc, 0"); A(f"s_cbranch_scc1 {l}")
        A(f"s_bitset0_b32 s71, {i}")
        g.lab(l)
    A("s_cmp_lg_u32 s71, 0")
    A("s_cbranch_scc1 L_f1_p")
    g.lab("L_f1_ok")
    sum8p(VA, S)
    g.stamp(7)
    for h in range(2): A(f"v_pk_fma_f32 {vr(8+2*h,2)}, {vr(S+2*h,2)}, {vr(24+2*h,2)}, {vr(28+2*h,2)}")
    A("v_cvt_pk_bf16_f32 v8, v8, v9")
    A("v_cvt_pk_bf16_f32 v9, v10, v11")
    A(f"ds_write_b64 v12, v[8:9] offset:{TB_.ACT}")
    for h in range(2): A(f"v_pk_fma_f32 {vr(16+2*h,2)}, {vr(S+2*h,2)}, {vr(20+2*h,2)}, {vr(16+2*h,2)}")
    x = 16
    dpp = lambda r, mod: f"v_add_f32_dpp v{r}, v{r}, v{r} {mod} row_mask:0xf bank_mask:0xf"
    for t in (f"v_add_f32 v24, v{x}, v{x+1}", f"v_mul_f32 v25, v{x}, v{x}", f"v_add_f32 v26, v{x+2}, v{x+3}", f"v_mul_f32 v27, v{x+2}, v{x+2}",
              f"v_fmac_f32 v25, v{x+1}, v{x+1}", f"v_fmac_f32 v27, v{x+3}, v{x+3}", "v_pk_add_f32 v[24:25], v[24:25], v[26:27]", "s_nop 1",
              dpp(24, "quad_perm:[1,0,3,2]"), dpp(25, "quad_perm:[1,0,3,2]"), "s_nop 0",
              dpp(24, "quad_perm:[2,3,0,1]"), dpp(25, "quad_perm:[2,3,0,1]")): A(t)
    A("ds_write_b64 v5, v[24:25]")
    hsync(g, 10, 0, [f"ds_read_b128 {vr(S+4*m,4)}, v14 offset:{TB_.ACT+64*m}" for m in range(min(NSPEC, 4))])
    DF = 32
    q = []
    def rd(m): A(f"ds_read_b128 {vr(S+4*(m%8),4)}, v14 offset:{TB_.ACT+64*m}"); q.append(("r", m))
    def need(op):
        i = q.index(op); A(f"s_waitcnt lgkmcnt({len(q)-1-i})"); del q[:i+1]
    def w2rd(c):
        for h in range(2): A(f"ds_read_b64_tr_b16 {vr(VW+4*c+2*h,2)}, v6 offset:{32*c+4*h*W2S}"); q.append(("w", c, h))
    for m in range(4):
        if m < NSPEC: q.append(("r", m))
        else: rd(m)
    A("ds_read_b64 v[20:21], v7"); q.append(("s",))
    for m in range(4, 8): rd(m)
    fill = {4: [dpp(20, "quad_perm:[2,3,0,1]"), dpp(21, "quad_perm:[2,3,0,1]")],
            5: [dpp(20, "row_ror:4"), dpp(21, "row_ror:4")],
            6: [dpp(20, "row_ror:8"), dpp(21, "row_ror:8")],
            7: ["v_mov_b32 v22, v20", "v_mov_b32 v23, v21"],
            8: ["v_permlane16_swap_b32 v22, v20", "v_permlane16_swap_b32 v23, v21"],
            9: ["v_pk_add_f32 v[20:21], v[20:21], v[22:23]", "v_mov_b32 v22, v20", "v_mov_b32 v23, v21"],
            10: ["v_permlane32_swap_b32 v22, v20", "v_permlane32_swap_b32 v23, v21"],
            11: ["v_pk_add_f32 v[20:21], v[20:21], v[22:23]", f"v_mul_f32 v20, 0x{f2u(-1/512):08x}, v20"],
            12: [f"v_mul_f32 v21, 0x{f2u(1/512):08x}, v21", "v_fma_f32 v21, -v20, v20, v21"],
            13: ["v_max_f32 v21, 0, v21", f"v_add_f32 v21, 0x{EPS:08x}, v21"],
            14: ["v_rsq_f32 v21, v21"]}
    for m in range(16):
        if ("r", m) in q: need(("r", m))
        else: A("s_nop 0")
        c = "0" if m == 0 else vr(DF, 4)
        A(f"v_mfma_f32_16x16x32_bf16 {vr(DF,4)}, {vr(VW+4*m,4)}, {vr(S+4*(m%8),4)}, {c}")
        if 1 <= m <= 8: rd(7 + m)
        for t in fill.get(m, []): A(t)
    for c in range(4): w2rd(c)
    for i in range(4): A(f"v_fmac_f32_dpp v{DF+i}, v{DF+i}, v20 row_shl:2 row_mask:0xf bank_mask:0x1")
    for i in range(4): A(f"v_mul_f32 v{8+i}, v{DF+i}, v21")
    for i in range(4): A(f"v_add_f32_dpp v{8+i}, v{DF+i}, v{8+i} row_shl:4 row_mask:0xf bank_mask:0xf")
    A("s_waitcnt lgkmcnt(4)")
    for c in range(4, 8): w2rd(c)
    A("v_permlane32_swap_b32 v8, v10")
    A("v_permlane32_swap_b32 v9, v11")
    for i in range(2): A(f"v_mul_f32 v{20+i}, 0x{LOG2E ^ 0x80000000:08x}, v{8+i}")
    for i in range(2): A(f"v_exp_f32 v{20+i}, v{20+i}")
    for i in range(2): A(f"v_mul_f32 v{8+i}, v{8+i}, v{10+i}")
    for i in range(2): A(f"v_add_f32 v{20+i}, 1.0, v{20+i}")
    for i in range(2): A(f"v_rcp_f32 v{20+i}, v{20+i}")
    for x in EX8: A(x)
    for i in range(2): A(f"v_mul_f32 v{8+i}, v{8+i}, v{20+i}")
    A("v_cvt_pk_bf16_f32 v8, v8, v9")
    A("ds_write_b32 v39, v8")
    A("s_mov_b64 exec, -1")
    rds = [f"ds_read_b128 {vr(S+4*c,4)}, v37 offset:{128*c}" for c in range(8)]
    A("s_waitcnt lgkmcnt(4)")
    hsync(g, 10, 0, rds[:NSPEC])
    for r in rds[NSPEC:]: A(r)
    A("v_mov_b32 v3, 0xff")
    for c in range(8):
        A(f"s_waitcnt lgkmcnt({7-c})")
        A(f"v_mfma_f32_16x16x32_bf16 v[8:11], {vr(VW+4*c,4)}, {vr(S+4*c,4)}, {'0' if c == 0 else 'v[8:11]'}")
    A("s_nop 7")
    for i in range(4): A(f"v_bfi_b32 v{8+i}, v3, s{TB+i}, v{8+i}")
    A("global_store_dwordx4 v13, v[8:11], s[42:43] sc1")
    g.stamp(2)
    A("s_branch L_fin")

    g.lab("L_r_f2")
    if opts.get("notail"): A("s_branch L_fin")
    A("v_bfe_u32 v12, v1, 2, 1")
    A("v_and_b32 v14, 3, v1")
    A("s_lshl_b32 s49, s61, 5")
    A("v_lshl_add_u32 v3, v14, 3, s49")
    A("v_lshl_add_u32 v37, v12, 10, v3")
    A("v_and_b32 v15, 7, v1")
    A("s_lshl_b32 s49, s61, 7")
    A("v_lshl_add_u32 v15, v15, 4, s49")
    A(f"v_add_u32 v39, {WS_MOD+3*4096}, v15")
    A("v_bfe_u32 v3, v1, 3, 1")
    A("v_lshl_add_u32 v15, v3, 12, v15")
    A("v_lshrrev_b32 v3, 4, v1")
    A("v_lshl_add_u32 v15, v3, 14, v15")
    A(f"s_and_b32 s59, s2, {AREP-1}"); A("s_lshl_b32 s59, s59, 16"); A(f"s_add_u32 s59, s59, {WS_AP}")
    A("v_add_u32 v15, s59, v15")
    A("s_lshl_b32 s49, s61, 14"); A(f"s_add_u32 s49, s49, {WS_FP+2048}")
    A("v_lshl_add_u32 v36, v1, 4, s49")

    A("global_load_dword v11, v37, s[38:39]")
    if PT & 4:
        A("s_lshl_b32 s49, s61, 14"); A(f"s_add_u32 s49, s49, {WS_FP}")
        A("v_min_u32 v10, 42, v1"); A("v_lshl_add_u32 v10, v10, 7, s49")
        A("global_load_dword v11, v10, s[42:43] sc1")
        A("s_lshl_b32 s49, s61, 7"); A(f"s_add_u32 s49, s49, {WS_DN}")
        A("v_mov_b32 v10, s49")
        A("global_load_dword v11, v10, s[42:43] sc1")
    pre_gather([-4096, 8192])
    unpack4(g, 16, 8)
    unpack4(g, 20, PG, 2)
    unpack4(g, 24, PG+4, 2)
    wait_cnt(g, f"ds_read_b32 v8, v38 offset:{L_GO}", 8, 8, 2)
    if opts.get("rdel", 0): A(f"s_sleep {opts['rdel']}")
    g.stamp(9)
    def src_sum(r):
        A("s_nop 1")
        for i in range(4): A(f"v_add_f32_dpp v{r+i}, v{r+i}, v{r+i} row_ror:8 row_mask:0xf bank_mask:0xf")
        for sw in ("v_permlane16_swap_b32", "v_permlane32_swap_b32"):
            for i in range(4): A(f"v_mov_b32 v{r+4+i}, v{r+i}")
            for i in range(4): A(f"{sw} v{r+4+i}, v{r+i}")
            for i in range(4): A(f"v_add_f32 v{r+i}, v{r+i}, v{r+4+i}")
    A("s_mov_b32 s70, 0")
    g.lab("L_f2_a")
    A(f"global_load_dwordx4 {vr(S,4)}, v15, s[42:43] sc1")
    A("s_waitcnt vmcnt(0)")
    for k in range(4): A(f"v_xor_b32 v{S+k}, s{TB+k}, v{S+k}")
    A(f"v_or3_b32 v3, v{S}, v{S+1}, v{S+2}")
    A(f"v_or_b32 v3, v3, v{S+3}")
    A("v_lshlrev_b32 v3, 24, v3")
    A("v_cmp_ne_u32 vcc, 0, v3")
    spin_tail(g, "L_f2_a", "L_f2_ad", 4)
    A("s_cmp_lg_u32 s61, 0")
    A("s_cbranch_scc1 L_f2_e")
    A(f"v_mov_b32 v10, s{ST}")
    A("s_mov_b64 exec, 1")
    A(f"global_store_dword v38, v10, s[42:43] offset:{WS_E} sc1")
    A("s_mov_b64 exec, -1")
    g.lab("L_f2_e")
    src_sum(S)
    x1_from(S)
    for i in range(4): A(f"v_mov_b32 v{VA+32+20+i}, s{TB+i}")
    def f2_fin():
        for p in range(3):
            for h in range(2): A(f"v_pk_add_f32 {vr(VA+8*p+2*h,2)}, {vr(VA+8*p+2*h,2)}, {vr(VA+8*p+4+2*h,2)}")
        for p in (1, 2):
            for h in range(2): A(f"v_pk_add_f32 {vr(VA+2*h,2)}, {vr(VA+2*h,2)}, {vr(VA+8*p+2*h,2)}")
    gather(6, lambda i, r: A(f"global_load_dwordx4 {vr(r,4)}, v36, s[42:43] offset:{1024*i-2048} sc1"), VA+32, VA, "L_f2_p",
           opts.get("fpipe", 1), opts.get("fgap", 0), f2_fin, 20, [-1]*5 + ["0xffffff"])
    g.stamp(7)
    src_sum(VA)
    for i in range(4): rnd(g, VA+i)
    for i in range(4): A(f"v_mul_f32 v{VA+i}, v{VA+i}, v{24+i}")
    for i in range(4): rnd(g, VA+i)
    for i in range(4): A(f"v_add_f32 v{8+i}, v{VA+i}, v{16+i}")
    A("v_cvt_pk_bf16_f32 v8, v8, v9")
    A("v_cvt_pk_bf16_f32 v9, v10, v11")
    A("s_mov_b64 exec, 0xff")
    A("global_store_dwordx2 v37, v[8:9], s[38:39]" + ("" if opts.get("noosc") else " sc1"))
    A("s_mov_b64 exec, 1")
    A(f"v_mov_b32 v10, s{ST}")
    A("s_lshl_b32 s49, s61, 7"); A(f"s_add_u32 s49, s49, {WS_DN}")
    A("v_mov_b32 v11, s49")
    if not opts.get("nodn"): A("global_store_dword v11, v10, s[42:43] sc1")
    g.stamp(2)

    g.lab("L_fin")
    if opts.get("stamps"):
        A("s_waitcnt vmcnt(0)")
        g.stamp(8)
        dump_all(g, [SLOC])
    g.lab("L_end")
    A("s_endpgm")
    g.L.append(".p2align 7")
    g.lab("L_table")
    J = jobs()
    for j in range(8):
        A(".long " + ", ".join(f"0x{J[x, j][0] | J[x, j][1] << 8 | J[x, j][2] << 16 | J[x, j][3] << 24:08x}" for x in range(8)))
    g.lab("L_touch")
    odd = [1, 3, 5, 7]; evn = [0, 2, 4, 6]
    ch = [(0, t, c) for c in odd + evn for t in (0, 1)] + [(1, t, c) for c in evn + odd for t in (0, 1)] + [(1, 3, c) for c in odd + evn]
    ch += [(1, t, c) for c in odd for t in (2, 4, 5, 6, 7)] + [(1, t, c) for c in evn for t in (2, 4, 5, 6, 7)]
    ch = ch[:opts.get("nch", 60)]
    slots = [idx for idx in range(32) if idx & 3 != 3]
    TT = {sl: 0x80808080 for sl in range(32)}
    for n, (mx, t, c) in enumerate(ch):
        k, sl = divmod(n, len(slots))
        if k < NT: TT[slots[sl]] = TT[slots[sl]] & ~(0xff << 8*k) | (c | t << 3 | mx << 6) << 8*k
    for i in range(0, 32, 8):
        A(".long " + ", ".join(f"0x{TT[i+a]:08x}" for a in range(8)))
    g.L.append(f'''.section .rodata,"a"
.p2align 6
.amdhsa_kernel {KNAME}
  .amdhsa_next_free_vgpr 168
  .amdhsa_next_free_sgpr 102
  .amdhsa_accum_offset 168
  .amdhsa_group_segment_fixed_size 0
  .amdhsa_kernarg_size 112
  .amdhsa_user_sgpr_count 2
  .amdhsa_user_sgpr_kernarg_segment_ptr 1
  .amdhsa_system_sgpr_workgroup_id_x 1
.end_amdhsa_kernel''')
    opts["_jobs"] = J
    return "\n".join(g.L) + "\n"

if __name__ == "__main__":
    import os
    here = os.path.dirname(os.path.abspath(__file__))
    opts = {"ref": os.path.join(here, "..", KNAME[:-7] + ".s.ref")}
    out = sys.argv[1]
    for kv in sys.argv[2:]:
        k, v = kv.split("=")
        try: v = int(v)
        except ValueError:
            try: v = float(v)
            except ValueError: pass
        opts[k] = v
    open(out, "w").write(gen(opts))
```

```python
import sys, struct

KNAME = "adaLN_cond__sliding_block_cached__glu_gated_swiglu__decode_kernel"

def f2u(x): return struct.unpack("<I", struct.pack("<f", x))[0]
LOG2E = f2u(1.4426950408889634)
SCALE = f2u(128 ** -0.5)
EPS = f2u(1e-5)
ZERO_GAP = 93.0

WS_E   = 0x00000
WS_HDR = 0x00400
WS_DN  = 0x07000
WS_MOD = 0x01000
WS_Q   = 0x08000
WS_S1  = 0x10000
WS_S2  = 0x18000
WS_OP  = 0x20000
WS_AP  = 0x200000
WS_FP  = 0x180000
WS_OQ  = 0x80000
WS_MA  = 0xe0000
R2     = WS_OQ - WS_OP
WS_STAMP = 0x100000
ACT_BS = 1056
NS_   = 11
L_QV  = 0
L_ML  = L_QV + 256
L_GO  = L_ML + 8
L_SCN = L_ML + 16
L_MX  = L_ML + 20
L_ECN = L_ML + 24
L_E0  = L_ML + 28
L_RM  = L_ML + 32
L_SN  = L_ML + 48
L_TK  = L_ML + 52
L_CNA = L_ML + 56
L_CNB = L_ML + 60
L_E1  = L_ML + 64
L_S8  = L_ML + 128
L_S4  = L_S8 + 64
L_ST  = L_S4 + 64
L_OP  = L_ST + 512
L_OP1 = L_OP + 512 * NS_
L_VX  = L_OP1 + 512 * NS_
class Team: pass
TA, TB_ = Team(), Team()
TA.CNT, TB_.CNT = L_CNA, L_CNB
TA.ACT = L_OP
TA.RED = TA.ACT + 2 * ACT_BS
TB_.ACT = TA.RED + 64
TB_.RED = TB_.ACT + 6 * ACT_BS
L_HZ  = TB_.RED + 512
L_HH  = L_HZ + 7 * 128
TA.WT = (L_HZ + 2048 + 1023) // 1024 * 1024
TB_.WT = TA.WT + 65536
W2S   = 1024 + 32
LDS_BYTES = TB_.WT + 65536
assert LDS_BYTES <= 163840 and L_VX + 2048 * NS_ <= LDS_BYTES and L_ST + 128 <= L_S4 + 512
assert all(x % 16 == 0 for x in (L_S8, L_ST, L_OP, L_VX, TA.ACT, TA.RED, TB_.ACT, TB_.RED, L_HZ, L_E1))

def jobs():
    J = {}; nf = 0
    for x in range(8):
        six = x in (1, 3, 7)
        mb = sorted(range(16 + 4 * x, 20 + 4 * x), key=lambda t: t % 8 != 3)
        own = {0: mb[0:2], 1: mb[2:4]} if six else {0: mb[0:1], 1: mb[1:2], 2: mb[2:4]}
        for j in range(8):
            m = own.get(j, []) + [255, 255]
            f = 255
            if j >= (2 if six else 3): f = nf; nf += 1
            J[x, j] = (m[0], f, 4 * x + (j & 3) if j in (0, 1, 2, 7) else 255, m[1])
    assert nf == 43 and sorted(v[2] for v in J.values())[:32] == list(range(32))
    return J
SPIN_MAX = 1 << 18
ST, SLOC, SXCC = 74, 75, 76

NOTES = {
    "L_stream": "streaming waves: K (1 KB per load, bounded number in flight), then the V rows of the keys on the row list",
    "L_work": "background work of a streaming wave between two K loads: scores of the rows that have landed, first row list",
    "L_ks": "one K step: background work, then wait until few enough loads are in flight",
    "L_vs": "one V step",
    "L_x1": "second half of the scores, max / sum of this wave, the rows near the top first, more rows for the list",
    "L_snap": "the rows near the top give the preliminary partial output",
    "L_hand": "list used up: with the true row max, add every remaining key whose weight is not exactly zero",
    "L_epi": "all rows consumed: reduce over the lanes, leave the final partial output in LDS",
    "L_pub": "wave 0 of a streaming workgroup: LDS set-up, exchange of the softmax statistics, preliminary output",
    "L_serv": "service workgroup",
    "L_touch": "per streaming workgroup: pieces of the first weights to pull into L2",
    "L_chk": "third streaming workgroup: final partial output; the head's final output against the preliminary one, bit by bit",
    "L_slow": "fallback: everything behind the attention again, from the final outputs, by this wave alone",
    "L_team": "service workgroup: two teams of four waves, MFMA mat-vecs on weight tiles staged by LDS-DMA",
    "L_r_q": "team A: LayerNorm + modulation + 64 columns of h @ wq",
    "L_r_wo": "team A: 512 x 64 tile of wo",
    "L_r_mod": "team B: 64 columns of silu(c) @ w_mod (shift / scale of the first block first)",
    "L_r_f1": "team B: 32 columns of w1 and w3, SwiGLU, their 32 rows of w2",
    "L_r_f2": "service workgroup, wave 1: 16 output columns: residuals, sum of the down-projection partials; advances the epoch word",
    "L_table": "per service workgroup: modulation tile | gate/up tile << 8 | output tile << 16",
}
class G:
    def __init__(s, opts):
        s.L = []; s.o = opts; s.n = 0; s.T = None
    def A(s, t): s.L.append("  " + t)
    def lab(s, t):
        if t in NOTES: s.L.append("; ---- " + NOTES[t])
        s.L.append(t + ":")
    def C(s, t): s.L.append("; ---- " + t)
    def uniq(s, p): s.n += 1; return f"L_{p}_{s.n}"
    def stamp(s, idx, lvl=1):
        m = s.o.get("stamps", 0)
        if m == 3 and lvl != 3 and idx not in (6,): return
        if m and (m == lvl or (idx in (0, 6, 8) and lvl == 1)):
            s.A(f"s_memrealtime s[{80+2*idx}:{81+2*idx}]")

def vr(a, n): return f"v[{a}:{a+n-1}]"
def rnd(g, d, s=None): g.A(f"v_cvt_pk_bf16_f32 v{d}, 0, v{s if s is not None else d}")

def spin_tail(g, l, e, sleep, mult=1):
    A = g.A
    A("s_cmp_eq_u64 vcc, 0")
    A(f"s_cbranch_scc1 {e}")
    if sleep: A(f"s_sleep {sleep}")
    A("s_add_u32 s70, s70, 1")
    A(f"s_cmp_lt_u32 s70, {SPIN_MAX*mult}")
    A(f"s_cbranch_scc1 {l}")
    g.lab(e)

def chk_sentinel(g, regs, tmp):
    A = g.A
    rs = list(regs)
    if len(rs) == 1:
        A(f"v_cmp_eq_u32 vcc, -1, v{rs[0]}")
        return
    if len(rs) == 2:
        A(f"v_max_u32 v{tmp}, v{rs[0]}, v{rs[1]}"); rs = []
    else:
        A(f"v_max3_u32 v{tmp}, v{rs[0]}, v{rs[1]}, v{rs[2]}"); rs = rs[3:]
    while len(rs) >= 2:
        A(f"v_max3_u32 v{tmp}, v{tmp}, v{rs[0]}, v{rs[1]}"); rs = rs[2:]
    if rs: A(f"v_max_u32 v{tmp}, v{tmp}, v{rs[0]}")
    A(f"v_cmp_eq_u32 vcc, -1, v{tmp}")

def poll_lds(g, loads, regs, tmp, sleep):
    A = g.A
    l = g.uniq("pl"); e = g.uniq("pld")
    A("s_mov_b32 s70, 0")
    g.lab(l)
    for x in loads: A(x)
    A("s_waitcnt lgkmcnt(0)")
    chk_sentinel(g, regs, tmp)
    spin_tail(g, l, e, sleep, 4)

def wait_cnt(g, load, reg, target, sleep, mask=None):
    A = g.A
    l = g.uniq("sn"); e = g.uniq("snd")
    A("s_mov_b32 s70, 0")
    g.lab(l)
    A(load)
    A("s_waitcnt lgkmcnt(0)")
    if mask: A(f"v_and_b32 v{reg}, 0x{mask:x}, v{reg}")
    A(f"v_cmp_gt_u32 vcc, 0x{target:x}, v{reg}")
    spin_tail(g, l, e, sleep, 8)

def pub_local(g, ins):
    A = g.A
    l = g.uniq("pf"); e = g.uniq("pe")
    A(f"s_cmp_eq_u32 s{SLOC}, 1")
    A(f"s_cbranch_scc0 {l}")
    A(ins)
    A(f"s_branch {e}")
    g.lab(l)
    A(ins + " sc1")
    g.lab(e)

def hs_signal(g, vt2):
    A = g.A
    A(f"v_mov_b32 v{vt2}, 1")
    A("s_mov_b64 exec, 1")
    A(f"ds_add_u32 v38, v{vt2} offset:{g.T.CNT}")
    A("s_mov_b64 exec, -1")
def hs_wait(g, target, vt2, sleep=1):
    wait_cnt(g, f"ds_read_b32 v{vt2}, v38 offset:{g.T.CNT}", vt2, target, sleep)

STG = 77
def hsync(g, vt, sleep=0, reads=()):
    A = g.A
    l = g.uniq("hy"); e = g.uniq("hyd")
    A(f"s_add_u32 s{STG}, s{STG}, 4")
    hs_signal(g, vt)
    A("s_mov_b32 s70, 0")
    g.lab(l)
    A(f"ds_read_b32 v{vt}, v38 offset:{g.T.CNT}")
    for r in reads: A(r)
    A(f"s_waitcnt lgkmcnt({len(reads)})")
    A(f"v_cmp_gt_u32 vcc, s{STG}, v{vt}")
    A("s_cmp_eq_u64 vcc, 0")
    A(f"s_cbranch_scc1 {e}")
    if reads: A("s_waitcnt lgkmcnt(0)")
    if sleep: A(f"s_sleep {sleep}")
    A("s_add_u32 s70, s70, 1")
    A(f"s_cmp_lt_u32 s70, {SPIN_MAX*8}")
    A(f"s_cbranch_scc1 {l}")
    g.lab(e)

OPA = 2 * NS_ + 12
def op_prep(g, R, zero, off, scales=True):
    A = g.A
    SCB = R + 2 * NS_; AD = R + OPA
    if scales:
        for i in range(3): A(f"ds_read_b128 {vr(SCB+4*i,4)}, v{zero} offset:{L_S8+16*i}")
    A(f"v_lshlrev_b32 v{AD+3}, 3, v1")
    A("s_lshl2_add_u32 s68, s6, s7")
    A("s_lshl_b32 s68, s68, 9"); A(f"s_add_u32 s68, s68, {WS_OP+off}")
    A(f"v_add_u32 v{AD}, s68, v{AD+3}")
    A(f"v_and_b32 v{AD+1}, 1, v1")
    A(f"v_lshlrev_b32 v{AD+1}, 4, v{AD+1}")
    A(f"v_lshrrev_b32 v{AD+1}, v{AD+1}, s{ST}")
    A(f"v_lshrrev_b32 v{AD+2}, 8, v{AD+1}")
def op_reads(lds, R): return [f"ds_read_b64 {vr(R+2*i,2)}, v{R+OPA+3} offset:{lds+512*i}" for i in range(NS_)]
def op_sum(g, R, local):
    A = g.A
    SCB = R + 2 * NS_; AD = R + OPA
    A("s_movk_i32 s69, 0xff")
    def sel(i): return f"op_sel:[0,{i&1},0] op_sel_hi:[1,{i&1},1]"
    for i in range(NS_):
        A(f"s_waitcnt lgkmcnt({NS_-1-i})")
        sp = vr(SCB + (i & ~1), 2); acc = vr(R + 2*(i & 1), 2)
        if i < 2: A(f"v_pk_mul_f32 {acc}, {vr(R+2*i,2)}, {sp} op_sel:[0,{i&1}] op_sel_hi:[1,{i&1}]")
        else: A(f"v_pk_fma_f32 {acc}, {vr(R+2*i,2)}, {sp}, {acc} {sel(i)}")
    A(f"v_pk_add_f32 {vr(R,2)}, {vr(R,2)}, {vr(R+2,2)}")
    A(f"v_bfi_b32 v{R}, s69, v{AD+1}, v{R}")
    A(f"v_bfi_b32 v{R+1}, s69, v{AD+2}, v{R+1}")
    if local: pub_local(g, f"global_store_dwordx2 v{AD}, {vr(R,2)}, s[42:43]")
    else: A(f"global_store_dwordx2 v{AD}, {vr(R,2)}, s[42:43] sc1")
def wait_then(g, off, target, reads, pre):
    A = g.A
    wait_cnt(g, f"ds_read_b32 v8, v38 offset:{off}", 8, pre, 1)
    l = g.uniq("wt"); e = g.uniq("wtd")
    A("s_mov_b32 s70, 0")
    g.lab(l)
    A(f"ds_read_b32 v8, v38 offset:{off}")
    for r in reads: A(r)
    A(f"s_waitcnt lgkmcnt({len(reads)})")
    A(f"v_cmp_gt_u32 vcc, {target}, v8")
    A("s_cmp_eq_u64 vcc, 0")
    A(f"s_cbranch_scc1 {e}")
    A("s_waitcnt lgkmcnt(0)")
    A("s_add_u32 s70, s70, 1")
    A(f"s_cmp_lt_u32 s70, {SPIN_MAX*8}")
    A(f"s_cbranch_scc1 {l}")
    g.lab(e)

def dma_loop(g, n, step, flags, pace=0, lstep=1024):
    A = g.A
    l = g.uniq("dma"); e = g.uniq("dmae")
    if isinstance(n, int):
        A(f"s_add_u32 s51, s50, {n*lstep}")
    else:
        A(f"s_add_u32 s51, s50, {n}")
        A("s_cmp_lt_u32 s50, s51")
        A(f"s_cbranch_scc0 {e}")
    g.lab(l)
    A("s_mov_b32 m0, s50")
    A(f"s_add_u32 s50, s50, {lstep}")
    if not (g.o.get("nodma") and pace): A(f"buffer_load_dwordx4 v2, s[44:47], s49 offen {flags} lds")
    A(f"s_add_u32 s49, s49, {step}")
    if pace: A(f"s_waitcnt vmcnt({pace-1})")
    A("s_cmp_lt_u32 s50, s51")
    A(f"s_cbranch_scc1 {l}")
    g.lab(e)

VW, VA = 40, 104

def srd(g, d, base, nbytes):
    A = g.A
    A(f"s_mov_b32 s{d}, s{base}")
    A(f"s_mov_b32 s{d+1}, s{base+1}")
    A(f"s_mov_b32 s{d+2}, {nbytes}")
    A(f"s_mov_b32 s{d+3}, 0x20000")

def dma_tile64(g, stride, flags, pace=0):
    A = g.A
    if g.o.get("contig") and pace:
        if stride == 1024: A("s_lshl3_add_u32 s48, s8, s60"); A("s_lshl_b32 s48, s48, 16")
        else: A("s_lshl_b32 s48, s61, 16")
        stride = 128
    A("v_lshrrev_b32 v2, 3, v1")
    A("v_and_b32 v3, 6, v2")
    A("v_xor_b32 v3, v3, v1")
    A(f"v_mul_u32_u24 v2, {stride}, v2")
    A("v_and_b32 v3, 7, v3")
    A("v_lshl_add_u32 v2, v3, 4, v2")
    A(f"s_mul_i32 s49, s5, {128*stride}")
    A("s_lshl_b32 s50, s5, 14")
    A("s_add_u32 s49, s49, s48")
    A(f"s_add_u32 s50, s50, {g.T.WT}")
    dma_loop(g, 16, 8*stride, flags, pace)

def tr64_addr(g):
    A = g.A
    A("v_lshrrev_b32 v2, 2, v1")
    A("v_bfe_u32 v3, v1, 1, 1")
    A("s_lshl_b32 s49, s5, 1")
    A("v_or_b32 v3, s49, v3")
    A("v_and_b32 v10, 6, v2")
    A("v_xor_b32 v3, v3, v10")
    A("v_lshlrev_b32 v2, 7, v2")
    A("v_lshl_add_u32 v2, v3, 4, v2")
    A("v_and_b32 v3, 1, v1")
    A("v_lshl_add_u32 v2, v3, 3, v2")
    A(f"v_add_u32 v2, {g.T.WT}, v2")
def tr_reads(g, nk, mstep, hstep):
    A = g.A
    for m in range(nk):
        for h in range(2):
            A(f"ds_read_b64_tr_b16 {vr(VW+4*m+2*h,2)}, v2 offset:{m*mstep+h*hstep}")
        if m >= 5: A("s_waitcnt lgkmcnt(10)")
    A("s_waitcnt lgkmcnt(0)")
def tr_tile64(g):
    tr64_addr(g)
    tr_reads(g, 16, 4096, 2048)
def gemv_fused(g, vaddr, D):
    A = g.A
    def rd(m):
        for h in range(2):
            A(f"ds_read_b64_tr_b16 {vr(VW+4*m+2*h,2)}, v2 offset:{m*4096+h*2048}")
        A(f"ds_read_b128 {vr(VA+4*m,4)}, v{vaddr} offset:{64*m}")
    for m in range(5): rd(m)
    for m in range(16):
        A(f"s_waitcnt lgkmcnt({3*(min(m+5,16)-m-1)})")
        c = "0" if m == 0 else vr(D, 4)
        A(f"v_mfma_f32_16x16x32_bf16 {vr(D,4)}, {vr(VW+4*m,4)}, {vr(VA+4*m,4)}, {c}")
        if m + 5 < 16: rd(m + 5)
    A("s_nop 7")

def batch_reduce2(g, va, vb, ta, tb):
    A = g.A
    A("s_nop 0")
    for m in ("quad_perm:[1,0,3,2]", "quad_perm:[2,3,0,1]", "row_ror:8"):
        A(f"v_add_f32_dpp v{va}, v{va}, v{va} {m} row_mask:0xf bank_mask:0xf")
        A(f"v_add_f32_dpp v{vb}, v{vb}, v{vb} {m} row_mask:0xf bank_mask:0xf")
        A("s_nop 0")
    for sw in ("v_permlane16_swap_b32", "v_permlane32_swap_b32"):
        A(f"v_mov_b32 v{ta}, v{va}")
        A(f"v_mov_b32 v{tb}, v{vb}")
        A("s_nop 0")
        A(f"{sw} v{ta}, v{va}")
        A(f"{sw} v{tb}, v{vb}")
        A(f"v_add_f32 v{va}, v{va}, v{ta}")
        A(f"v_add_f32 v{vb}, v{vb}, v{tb}")

def ln_partial(g, x):
    A = g.A
    A(f"v_add_f32 v8, v{x}, v{x+1}"); A(f"v_mul_f32 v9, v{x}, v{x}")
    A(f"v_add_f32 v10, v{x+2}, v{x+3}"); A(f"v_mul_f32 v11, v{x+2}, v{x+2}")
    A(f"v_fmac_f32 v9, v{x+1}, v{x+1}"); A(f"v_fmac_f32 v11, v{x+3}, v{x+3}")
    A("v_add_f32 v8, v8, v10"); A("v_add_f32 v9, v9, v11")
    batch_reduce2(g, 8, 9, 10, 11)
    A("ds_write_b64 v5, v[8:9]")
def ln_apply(g, x, t):
    A = g.A
    A(f"ds_read_b128 {vr(t,4)}, v6")
    A(f"ds_read_b128 {vr(t+4,4)}, v6 offset:16")
    A("s_waitcnt lgkmcnt(0)")
    A(f"v_pk_add_f32 {vr(t,2)}, {vr(t,2)}, {vr(t+2,2)}")
    A(f"v_pk_add_f32 {vr(t+4,2)}, {vr(t+4,2)}, {vr(t+6,2)}")
    A(f"v_pk_add_f32 {vr(t,2)}, {vr(t,2)}, {vr(t+4,2)}")
    A(f"v_mul_f32 v8, 0x{f2u(1/512):08x}, v{t}")
    A(f"v_mul_f32 v9, 0x{f2u(1/512):08x}, v{t+1}")
    A("v_fma_f32 v9, -v8, v8, v9")
    rnd(g, 8)
    A("v_max_f32 v9, 0, v9")
    rnd(g, 9)
    for i in range(2): A(f"v_sub_f32 v{x+i}, v{x+i}, v8")
    A(f"v_add_f32 v9, 0x{EPS:08x}, v9")
    for i in range(2, 4): A(f"v_sub_f32 v{x+i}, v{x+i}, v8")
    rnd(g, 9)
    rnd(g, x)
    A("v_sqrt_f32 v9, v9")
    rnd(g, x+1)
    rnd(g, 9)
    rnd(g, x+2)
    A("v_rcp_f32 v9, v9")
    rnd(g, x+3)
    for i in range(4): A(f"v_mul_f32 v{x+i}, v{x+i}, v9")
    for i in range(4): rnd(g, x+i)

def act_addr(g, v, base, bstride):
    A = g.A
    A(f"v_and_b32 v{v}, 1, v1")
    A(f"v_mul_u32_u24 v{v}, {bstride}, v{v}")
    A(f"v_lshrrev_b32 v3, 4, v1")
    A(f"v_lshl_add_u32 v{v}, v3, 4, v{v}")
    if base: A(f"v_add_u32 v{v}, {base}, v{v}")

def gemv(g, nk, vaddr, D, ring=16, sync=None, nspec=4):
    A = g.A
    first = min(nk, 12, ring)
    rds = [f"ds_read_b128 {vr(VA+4*m,4)}, v{vaddr} offset:{64*m}" for m in range(first)]
    if sync is not None:
        hsync(g, sync, 0, rds[:nspec]); rds = rds[nspec:]
    for r in rds: A(r)
    issued = first
    for m in range(nk):
        A(f"s_waitcnt lgkmcnt({issued-m-1})")
        c = "0" if m == 0 else vr(D, 4)
        A(f"v_mfma_f32_16x16x32_bf16 {vr(D,4)}, {vr(VW+4*m,4)}, {vr(VA+4*(m%ring),4)}, {c}")
        if issued < nk and (ring >= nk or m >= 1):
            A(f"ds_read_b128 {vr(VA+4*(issued%ring),4)}, v{vaddr} offset:{64*issued}")
            issued += 1
    A("s_nop 7")

def guard(g, r): g.A(f"v_min_u32 v{r}, s72, v{r}")
def unpack2(g, d, s):
    g.A(f"v_lshlrev_b32 v{d}, 16, v{s}")
    g.A(f"v_and_b32 v{d+1}, s73, v{s}")
def unpack4(g, d, s, step=1):
    unpack2(g, d, s); unpack2(g, d+2, s+step)

def silu4(g, x, t):
    A = g.A
    for i in range(4): A(f"v_mul_f32 v{t+i}, 0x{LOG2E ^ 0x80000000:08x}, v{x+i}")
    for i in range(4): A(f"v_exp_f32 v{t+i}, v{t+i}")
    A("s_nop 0")
    for i in range(4): A(f"v_add_f32 v{t+i}, 1.0, v{t+i}")
    for i in range(4): A(f"v_rcp_f32 v{t+i}, v{t+i}")
    A("s_nop 0")
    for i in range(4): A(f"v_mul_f32 v{x+i}, v{x+i}, v{t+i}")

def make_tag(g):
    g.A(f"s_mul_i32 s{ST}, s{ST}, 0x9e3779b1")
    g.A(f"s_add_u32 s{ST}, s{ST}, 0x7f4a7c15")

EX8 = ["s_mov_b32 exec_lo, 0x00030003", "s_mov_b32 exec_hi, 0x00030003"]

def dump_all(g, extra):
    A = g.A
    A("s_mov_b64 exec, -1")
    A("s_mul_i32 s3, s2, 12"); A("s_add_u32 s3, s3, s13"); A("s_lshl_b32 s3, s3, 6")
    A(f"s_add_u32 s3, s3, {WS_STAMP}")
    A("v_lshl_add_u32 v2, v1, 2, s3")
    A("v_mov_b32 v3, 0")
    A("s_waitcnt lgkmcnt(0)")
    for i, x in enumerate([80+2*i for i in range(10)] + list(extra)): A(f"v_writelane_b32 v3, s{x}, {i}")
    A("s_mov_b64 exec, 0xffff")
    A("global_store_dword v2, v3, s[42:43]")

def fallback(g, head_sum, wave_red):
    A = g.A
    W, AC, AV = 40, 72, 88
    X1, GS = 104, 120
    g.lab("L_slow")
    A("s_mov_b32 s47, 0x20000")
    A("s_load_dwordx16 s[16:31], s[0:1], 0")
    A("s_load_dwordx8 s[32:39], s[0:1], 64")
    A("v_and_b32 v2, 31, v1")
    A("v_lshlrev_b32 v2, 7, v2")
    A(f"v_add_u32 v2, {WS_DN}, v2")
    A("s_mov_b32 s70, 0")
    g.lab("L_sl_d")
    A("global_load_dword v3, v2, s[42:43] sc1")
    A("s_waitcnt vmcnt(0) lgkmcnt(0)")
    A(f"v_cmp_ne_u32 vcc, s{ST}, v3")
    spin_tail(g, "L_sl_d", "L_sl_dd", 8)
    A("v_lshlrev_b32 v2, 3, v1")
    A(f"v_add_u32 v2, {WS_OQ}, v2")
    A("v_lshlrev_b32 v0, 2, v1")
    A(f"v_add_u32 v0, {L_VX}, v0")
    A("s_mov_b32 s10, 0")
    g.lab("L_sl_h")
    A("s_mov_b32 s70, 0")
    g.lab("L_sl_hp")
    for i in range(3): A(f"global_load_dwordx2 {vr(W+2*i,2)}, v2, s[42:43] offset:{512*i} sc1")
    A("s_waitcnt vmcnt(0)")
    head_sum(W, W+8)
    spin_tail(g, "L_sl_hp", "L_sl_hd", 8)
    A(f"ds_write_b32 v0, v{W}")
    A("v_add_u32 v2, 2048, v2"); A("v_add_u32 v0, 256, v0")
    A("s_add_u32 s10, s10, 1"); A("s_cmp_lt_u32 s10, 64"); A("s_cbranch_scc1 L_sl_h")
    def call(base, nbytes, stride, nrows, act, bstride, col):
        A(f"s_mov_b32 s44, s{base}"); A(f"s_mov_b32 s45, s{base+1}"); A(f"s_mov_b32 s46, {nbytes}")
        A(f"s_mov_b32 s11, {stride}"); A(f"s_mov_b32 s12, {nrows*stride}")
        A(f"v_mov_b32 v4, {act}"); A(f"v_mov_b32 v5, {act+bstride}")
        A(f"v_lshlrev_b32 v2, 4, v1")
        if col: A(f"v_add_u32 v2, {col}, v2")
        A("s_call_b64 s[62:63], L_gv")
    def modrow(row, d):
        A("v_lshrrev_b32 v2, 1, v1"); A("v_lshlrev_b32 v2, 7, v2")
        A("v_and_b32 v3, 1, v1"); A("v_lshl_add_u32 v2, v3, 5, v2")
        A(f"v_add_u32 v2, {WS_MOD+4096*row}, v2")
        for b in range(2):
            for h in range(2): A(f"global_load_dwordx4 {vr(W+8*b+4*h,4)}, v2, s[42:43] offset:{64*b+16*h} sc1")
        A("s_waitcnt vmcnt(0)")
        for k in range(8): unpack2(g, d+2*k, W+2*k)
    def gated_add(row):
        modrow(row, AV)
        for i in range(16): rnd(g, AC+i)
        for i in range(16): A(f"v_mul_f32 v{AC+i}, v{AC+i}, v{AV+i}")
        for i in range(16): rnd(g, AC+i)
        for i in range(16): A(f"v_add_f32 v{X1+i}, v{X1+i}, v{AC+i}")
        for i in range(16): rnd(g, X1+i)
    def pack(d, s_):
        for k in range(8): A(f"v_cvt_pk_bf16_f32 v{d+k}, v{s_+2*k}, v{s_+2*k+1}")
    call(24, 4096*1024, 1024, 4096, L_VX, 8192, 0)
    A("v_lshlrev_b32 v0, 4, v1")
    for b in range(2): A(f"global_load_dwordx4 {vr(W+4*b,4)}, v0, s[16:17] offset:{1024*b}")
    A("s_waitcnt vmcnt(0)")
    for k in range(8): unpack2(g, X1+2*k, W+k)
    gated_add(2)
    for b in range(2):
        x = X1 + 8*b; y = AC + 8*b
        A(f"v_add_f32 v8, v{x}, v{x+1}")
        for i in range(2, 8): A(f"v_add_f32 v8, v8, v{x+i}")
        wave_red("v_add_f32", 8, 9)
        A(f"v_mul_f32 v8, 0x{f2u(1/512):08x}, v8")
        for i in range(8): A(f"v_sub_f32 v{y+i}, v{x+i}, v8")
        A(f"v_mul_f32 v10, v{y}, v{y}")
        for i in range(1, 8): A(f"v_fmac_f32 v10, v{y+i}, v{y+i}")
        wave_red("v_add_f32", 10, 9)
        A(f"v_mul_f32 v10, 0x{f2u(1/512):08x}, v10")
        rnd(g, 8); rnd(g, 10)
        A(f"v_add_f32 v10, 0x{EPS:08x}, v10")
        rnd(g, 10)
        A("v_sqrt_f32 v10, v10")
        for i in range(8): A(f"v_sub_f32 v{y+i}, v{x+i}, v8")
        rnd(g, 10)
        for i in range(8): rnd(g, y+i)
        A("v_rcp_f32 v10, v10")
        A("s_nop 0")
        for i in range(8): A(f"v_mul_f32 v{y+i}, v{y+i}, v10")
        for i in range(8): rnd(g, y+i)
    modrow(4, AV)
    for i in range(16): A(f"v_add_f32 v{AV+i}, 1.0, v{AV+i}")
    for i in range(16): rnd(g, AV+i)
    for i in range(16): A(f"v_mul_f32 v{AC+i}, v{AC+i}, v{AV+i}")
    for i in range(16): rnd(g, AC+i)
    modrow(3, AV)
    for i in range(16): A(f"v_add_f32 v{AC+i}, v{AC+i}, v{AV+i}")
    pack(W, AC)
    A(f"v_add_u32 v3, {L_VX}, v0")
    for b in range(2): A(f"ds_write_b128 v3, {vr(W+4*b,4)} offset:{1024*b}")
    HB = L_VX + 2048
    for p in range(3):
        call(28, 512*2752, 2752, 512, L_VX, 1024, 1024*p)
        for i in range(16): rnd(g, GS+i, AC+i)
        call(30, 512*2752, 2752, 512, L_VX, 1024, 1024*p)
        for q in range(4): silu4(g, GS+4*q, AV)
        for i in range(16): rnd(g, GS+i)
        for i in range(16): rnd(g, AC+i)
        for i in range(16): A(f"v_mul_f32 v{AC+i}, v{AC+i}, v{GS+i}")
        pack(W, AC)
        A(f"v_add_u32 v3, {HB+1024*p}, v0")
        for b in range(2): A(f"ds_write_b128 v3, {vr(W+4*b,4)} offset:{3072*b}")
    call(32, 1376*1024, 1024, 1376, HB, 3072, 0)
    gated_add(5)
    pack(W, X1)
    for b in range(2): A(f"global_store_dwordx4 v0, {vr(W+4*b,4)}, s[38:39] offset:{1024*b} sc1")
    A("s_endpgm")
    g.lab("L_gv")
    for i in range(16): A(f"v_mov_b32 v{AC+i}, 0")
    A("s_mov_b32 s10, 0")
    g.lab("L_gvl")
    for r in range(8):
        A(f"buffer_load_dwordx4 {vr(W+4*r,4)}, v2, s[44:47], s10 offen")
        A("s_add_u32 s10, s10, s11")
    for b in range(2): A(f"ds_read_b128 {vr(AV+4*b,4)}, v{4+b}")
    A("v_add_u32 v4, 16, v4"); A("v_add_u32 v5, 16, v5")
    A("s_waitcnt lgkmcnt(0)")
    for r in range(8):
        for b in range(2):
            a = AV + 4*b + r//2
            if r % 2 == 0: A(f"v_and_b32 v{8+2*b}, 0xffff, v{a}"); A(f"v_lshlrev_b32 v{9+2*b}, 16, v{a}")
            else: A(f"v_lshrrev_b32 v{8+2*b}, 16, v{a}"); A(f"v_and_b32 v{9+2*b}, s73, v{a}")
        A(f"s_waitcnt vmcnt({7-r})")
        for b in range(2):
            for k in range(8): A(f"v_dot2c_f32_bf16 v{AC+8*b+k}, v{8+2*b+(k&1)}, v{W+4*r+k//2}")
    A("s_cmp_lt_u32 s10, s12"); A("s_cbranch_scc1 L_gvl")
    A("s_nop 1")
    A("s_setpc_b64 s[62:63]")

def stream(g, opts):
    A = g.A
    D0 = opts.get("D0", 4)
    LAG = opts.get("LAG", 5)
    DEL = opts.get("delta", 10)
    THETA = opts.get("theta", 24)
    HCAP, HPOS = 32, 160
    TH, HST, NH, NSP, HTH = 18, 19, 20, 21, 22
    PA = 2
    KF, VF = opts.get("kf", "nt"), opts.get("vf", "nt")
    J0 = opts.get("J0", 15)
    T_, ACC, DB, RW, LIM, BUR, CNT, STA, QA, LVL = 32, 33, 34, 35, 36, 37, 38, 39, 40, 41
    SR, SBI, VE = 78, 79, 59
    VG = opts.get('vg', 20); LG = opts.get('lg', 10)
    LB, JS, DN, FIN, X1D, RET, TK, RET2 = 56, 57, 58, 75, 61, 62, (64, 66), 100
    T, X = 8, 16
    OFF = (24, 26); SET = (28, 30, 32); AC_, AT_, AH_, MK = 8, 12, 4, (34, 35, 36, 0); MW, L16, LRD, EPA = 37, 38, 39, 21
    EV = 23
    RA = 22
    ROFF = 1024
    RB = 40
    def slot(j): return RB + 4 * (j % 32)
    NW, KS, NXT = 76, 77, 57
    g.lab("L_stream")
    BLK = 11 * 1024
    A("s_sub_u32 s9, s13, 1")
    A("s_lshl_b32 s11, s9, 10")
    A(f"s_mul_i32 s4, s7, {31*BLK}")
    A("s_lshl_b32 s10, s6, 22")
    A("s_add_u32 s10, s10, s4")
    A("s_add_u32 s10, s10, 0x300000")
    A("v_and_b32 v0, 15, v1")
    A("v_lshl_add_u32 v0, v0, 6, s11")
    A("v_and_b32 v3, 48, v1")
    A("v_add_u32 v0, v3, v0")
    A("s_lshr_b32 s12, s2, 3")
    A("s_mul_i32 s12, s12, 5")
    A("s_mul_i32 s15, s8, 3")
    A("s_add_u32 s12, s12, s15")
    A("s_and_b32 s15, s12, 31")
    A("s_min_u32 s15, s15, 30")
    A(f"s_mul_i32 s12, s15, {BLK}")
    A("s_lshr_b32 s46, s7, 1"); A("s_lshl_b32 s46, s46, 10"); A(f"s_add_u32 s46, s46, {31*BLK}")
    A("s_mov_b32 s47, 0x20000")
    A(f"s_mov_b32 s14, {31*BLK}")
    g.stamp(1, 3)
    A("s_waitcnt lgkmcnt(0)")
    g.stamp(2, 3)
    A("s_add_u32 s44, s18, s10"); A("s_addc_u32 s45, s19, 0")
    def issue(j):
        A(f"buffer_load_dwordx4 {vr(slot(j),4)}, v0, s[44:47], s12 offen {KF}")
        A(f"s_add_u32 s12, s12, {BLK}")
        A("s_cmp_eq_u32 s12, s14")
        A("s_cselect_b32 s12, 0, s12")
    g.stamp(3, 3)
    for j in range(1, D0): issue(j)
    A(f"buffer_load_dwordx4 {vr(slot(0),4)}, v0, s[44:47], s14 offen {KF}")
    g.stamp(4, 3)
    A("s_add_u32 s48, s20, s10"); A("s_addc_u32 s49, s21, 0")
    A("s_mov_b32 s50, s46"); A("s_mov_b32 s51, 0x20000")
    A("s_mov_b32 s52, 0xcccccccc"); A("s_mov_b32 s53, 0xcccccccc")
    A("s_mov_b32 s54, 0xaaaaaaaa"); A("s_mov_b32 s55, 0xaaaaaaaa")
    A(f"v_and_b32 v{L16}, 15, v1")
    A(f"v_lshlrev_b32 v{L16}, 4, v{L16}")
    A("s_lshl_b32 s10, s9, 11")
    A(f"s_add_u32 s10, s10, {L_VX}")
    A("v_lshl_add_u32 v3, v1, 3, s10")
    A("v_mov_b32 v4, 0x7fff0000"); A("v_mov_b32 v5, 0xff800000")
    for n in range(3): A(f"ds_write_b64 v3, v[4:5] offset:{512*n}")
    A("v_lshrrev_b32 v3, 4, v1")
    A(f"v_lshl_add_u32 v{LRD}, v{L16}, 1, s10")
    A(f"v_lshl_add_u32 v{LRD}, v3, 3, v{LRD}")
    A("s_sub_u32 s68, s15, 1")
    A("v_bfrev_b32 v4, v1")
    A("v_lshrrev_b32 v4, 28, v4")
    A("v_lshl_add_u32 v3, v3, 8, s11")
    A("v_cmp_eq_u32 s[70:71], 0, v4")
    for n in range(2):
        A(f"v_add_u32 v{OFF[n]}, s68, v4")
        if n: A(f"v_add_u32 v{OFF[n]}, 16, v{OFF[n]}")
        A(f"v_subrev_u32 v5, 31, v{OFF[n]}")
        A(f"v_min_u32 v{OFF[n]}, v5, v{OFF[n]}")
        if n == 0: A(f"v_cndmask_b32 v{OFF[n]}, v{OFF[n]}, 31, s[70:71]")
        A(f"v_mul_u32_u24 v{OFF[n]}, {BLK}, v{OFF[n]}")
        A(f"v_add_u32 v{OFF[n]}, v3, v{OFF[n]}")
    A("s_lshl_b32 s11, s9, 9")
    A("s_sub_u32 s11, s11, s10")
    A(f"s_mov_b32 s{T_}, {D0}"); A(f"s_mul_i32 s{ACC}, s9, 0x60000000"); A(f"s_add_u32 s{ACC}, s{ACC}, 0x10000000")
    A(f"s_mov_b64 s[{TK[0]}:{TK[0]+1}], 0"); A(f"s_mov_b64 s[{TK[1]}:{TK[1]+1}], 0")
    A(f"s_mov_b32 s{CNT}, 0"); A(f"s_mov_b32 s{STA}, 2"); A(f"s_mov_b32 s{FIN}, 0"); A(f"s_mov_b32 s{X1D}, 0")
    A("s_barrier")
    A("s_waitcnt lgkmcnt(0)")
    A(f"s_mov_b32 s{LB}, s10")
    A(f"s_mov_b32 s{LVL}, {LAG}"); A(f"s_mov_b32 s{NXT}, 0")
    A(f"s_mov_b32 s{DB}, {int(opts.get('d1', 2.65)*4096) + ROFF*LG*16}"); A(f"s_mov_b32 s{KS}, 0")
    A(f"s_mov_b32 s{RW}, {32-D0}"); A(f"s_mov_b32 s{VE}, 0")
    A(f"v_mov_b32 v{RA}, {ROFF + NS_*(32-D0)}"); A(f"v_mov_b32 v{RA+1}, 0"); A(f"v_mov_b32 v{PA}, 0")
    for j in range(D0, 32):
        if j == opts.get("je", 99) and opts.get("dup", 0): A(f"s_sub_u32 s{DB}, s{DB}, {int(opts['dup']*4096)}")
        if j == opts.get("js", 16) and opts.get("dup", 0): A(f"s_add_u32 s{DB}, s{DB}, {int(opts['dup']*4096)}")
        if j == D0:
            g.stamp(5, 3)
            if opts.get("stamps") == 3: A(f"s_waitcnt vmcnt({D0-1})")
            g.stamp(7, 3)
        A(f"s_call_b64 s[{RET}:{RET+1}], {'L_ks' if j >= J0 else ('L_kq2', 'L_kl')[(j - D0) & 1] if opts.get('light', 0) else 'L_kq'}")
        if j == 8: g.stamp(8, 3)
        if j == 12: g.stamp(9, 3)
        issue(j)
        if opts.get("trace") == 2:
            if j > D0: A(f"v_writelane_b32 v36, s98, {j-1}")
            A("s_memrealtime s[98:99]")
    if opts.get("trace") == 2:
        A("s_waitcnt lgkmcnt(0)"); A("v_writelane_b32 v36, s98, 31")
        A("s_mul_i32 s3, s2, 12"); A("s_add_u32 s3, s3, s13"); A("s_lshl_b32 s3, s3, 8"); A("s_add_u32 s3, s3, 0x400000")
        A("v_lshl_add_u32 v3, v1, 2, s3")
        A("global_store_dword v3, v36, s[42:43]")
    g.stamp(1)
    A("s_mov_b32 s10, 0")
    g.lab("L_kw")
    A(f"s_cmp_ge_u32 s{STA}, 6"); A("s_cbranch_scc1 L_v0")
    A(f"s_call_b64 s[{RET2}:{RET2+1}], L_work")
    A("s_sleep 1")
    A("s_add_u32 s10, s10, 1")
    A(f"s_cmp_lt_u32 s10, {SPIN_MAX}"); A("s_cbranch_scc1 L_kw")
    g.lab("L_v0")
    g.stamp(2)
    A(f"s_mov_b32 s{T_}, 0")
    A(f"v_mov_b32 v{PA}, 8")
    A(f"s_mov_b32 s{RW}, s{VE}")
    A(f"ds_read_b64 {vr(RA,2)}, v{PA} offset:{L_RM}")
    A("s_waitcnt lgkmcnt(0)")
    A("v_and_b32 v3, 1, v1"); A("v_lshlrev_b32 v3, 4, v3"); A("v_mov_b32 v20, 0xffff"); A("v_lshlrev_b32 v3, v3, v20")
    A("v_bfe_u32 v20, v1, 1, 3")
    for d in range(4):
        A(f"v_cmp_eq_u32 vcc, {d}, v20"); A("s_nop 1"); A(f"v_cndmask_b32 v{MK[d]}, 0, v3, vcc")
    KA, KB = opts.get('ka2', 3.8), opts.get('kb2', -0.2)
    A(f"s_mov_b32 s{KS}, {round(KA*16)}")
    VB0, VB1 = round(opts.get("vb0", 0) * 4096), round(opts.get("vb1", 0) * 4096)
    A(f"s_mov_b32 s{DB}, {round(KB*4096) + ROFF*LG*16 + VB0}")

    def dots(G_, halves=(0, 1)):
        sl = [8*G_ + e for h in halves for e in range(4*h, 4*h+4)]
        dst = [T] + [slot(x) for x in sl[:-1]]
        A("s_mov_b64 vcc, s[54:55]")
        for x, d in zip(sl, dst): A(f"v_mfma_f32_16x16x32_bf16 {vr(d,4)}, {vr(slot(x),4)}, v[4:7], 0")
        A(f"s_nop {8 - len(sl)}")
        for n, (x, d) in enumerate(zip(sl, dst)):
            bank = 1 << (((x & 1) << 1) | ((x >> 1) & 1))
            for k in range(2):
                A(f"v_cndmask_b32_dpp v{T+4+k}, v{d+2*k}, v{d+2*k+1}, vcc quad_perm:[0,1,2,3] row_mask:0xf bank_mask:0x{bank:x}")
            if n % 4 == 3: A(f"v_cndmask_b32 v{X + ((x >> 2) & 3)}, v{T+4}, v{T+5}, s[52:53]")
    def wave_red(op, v, t):
        for r in (8, 4, 2, 1):
            A("s_nop 1")
            A(f"{op}_dpp v{v}, v{v}, v{v} row_ror:{r} row_mask:0xf bank_mask:0xf")
        for sw in ("v_permlane16_swap_b32", "v_permlane32_swap_b32"):
            A(f"v_mov_b32 v{t}, v{v}")
            A("s_nop 1")
            A(f"{sw} v{t}, v{v}")
            A(f"{op} v{v}, v{v}, v{t}")
    def finish(n):
        sc = OFF[n] + 1
        A("v_mov_b32 v3, 0")
        A("v_mov_b32 v20, 64")
        for i in range(4): A(f"v_add_f32_dpp v{X+i}, v{X+i}, v{X+i} quad_perm:[2,3,0,1] row_mask:0xf bank_mask:0xf")
        for i in range(2): A(f"v_cndmask_b32 v{T+i}, v{X+2*i}, v{X+2*i+1}, s[52:53]")
        A("s_nop 0")
        A("v_lshlrev_b32 v21, 3, s9")
        for i in range(2): A(f"v_add_f32_dpp v{T+i}, v{T+i}, v{T+i} quad_perm:[1,0,3,2] row_mask:0xf bank_mask:0xf")
        A(f"v_cndmask_b32 v{sc}, v{T}, v{T+1}, s[54:55]")
        rnd(g, sc)
        A(f"v_mul_f32 v{sc}, 0x{SCALE:08x}, v{sc}")
        rnd(g, sc)
        if n == 0:
            A(f"v_cmp_gt_u32 vcc, s46, v{OFF[0]}")
            A(f"v_mov_b32 v{MW}, 0xff800000")
            A("s_nop 0")
            A(f"v_cndmask_b32 v{sc}, v{MW}, v{sc}, vcc")
            A(f"v_mov_b32 v{MW}, v{sc}")
        else: A(f"v_max_f32 v{MW}, v{MW}, v{sc}")
        wave_red("v_max_f32", MW, T)
        if n == 0:
            A("s_mov_b64 exec, 1")
            A(f"ds_max_f32 v3, v{MW} offset:{L_E0}")
            A(f"ds_add_u32 v3, v20 offset:{L_ECN}")
            A("s_mov_b64 exec, -1")
    def build(n, thr):
        tk = f"s[{TK[n]}:{TK[n]+1}]"
        A(f"v_cmp_nlt_f32 vcc, v{OFF[n]+1}, v{thr}")
        A(f"s_lshl_b32 s68, s{CNT}, 3")
        A(f"s_add_u32 s68, s68, s{LB}")
        A(f"s_andn2_b64 s[70:71], vcc, {tk}")
        A("v_mbcnt_lo_u32_b32 v3, s70, 0")
        A("v_mbcnt_hi_u32_b32 v3, s71, v3")
        A("s_bcnt1_i32_b64 s69, s[70:71]")
        A("v_lshl_add_u32 v3, v3, 3, s68")
        A("s_mov_b64 exec, s[70:71]")
        A(f"ds_write_b64 v3, {vr(OFF[n],2)}")
        A("s_mov_b64 exec, -1")
        A(f"s_or_b64 {tk}, {tk}, s[70:71]")
        A(f"s_add_u32 s{CNT}, s{CNT}, s69")
    def reread(weights=True, fill=None):
        ns = 3 if weights else 1
        for n in range(ns): A(f"ds_read_b64 {vr(SET[n],2)}, v{LRD} offset:{512*n}")
        if fill: fill()
        A("s_waitcnt lgkmcnt(0)")
        if not weights: return
        for n in range(3): A(f"v_sub_f32 v{SET[n]+1}, v{SET[n]+1}, v{MW}")
        for n in range(3): A(f"v_mul_f32 v{SET[n]+1}, 0x{LOG2E:08x}, v{SET[n]+1}")
        for n in range(3): A(f"v_exp_f32 v{SET[n]+1}, v{SET[n]+1}")
        A("s_nop 0")
        for n in range(3): A(f"v_cvt_pk_bf16_f32 v{SET[n]+1}, v{SET[n]+1}, v{SET[n]+1}")
    def pv(t, data=None, acc=AC_, first=False):
        data = slot(t) if data is None else data
        for d in range(4): A(f"v_and_b32_dpp v{AT_+d}, v{SET[t//16]+1}, v{MK[d]} row_newbcast:{t%16} row_mask:0xf bank_mask:0xf")
        A("s_nop 1")
        A(f"v_mfma_f32_16x16x32_bf16 {vr(acc,4)}, {vr(AT_,4)}, {vr(data,4)}, {vr(acc,4)}")
    def estimate(sh, add, src, vphase=True):
        A(f"s_add_u32 s68, s{src}, {add}")
        A(f"s_lshr_b32 s68, s68, {sh}")
        A(f"s_sub_u32 s69, s68, s{VE}")
        A(f"s_mov_b32 s{VE}, s68")
        if vphase:
            A(f"s_add_u32 s{RW}, s{RW}, s69")
            A(f"s_add_u32 s{SR}, s{SR}, s69")
        A("v_mov_b32 v3, s69")
        A("s_mov_b64 exec, 1")
        A(f"ds_add_u32 v1, v3 offset:{L_RM+8}")
        A(f"ds_add_u32 v1, v3 offset:{L_RM+12}")
        A("s_mov_b64 exec, -1")
    def fetch():
        A(f"v_readfirstlane_b32 s{SR}, v{RA}")
        A(f"v_readfirstlane_b32 s{SBI}, v{RA+1}")
    NST = LAG + 33 + LAG
    assert 4 * (NST - LAG) <= HPOS, NST
    LIGHT = opts.get("light", 0)
    for t in range(NST - LAG + 1):
        sub = "L_vs" if t <= 2 * LAG else "L_vq" if not LIGHT else ("L_vq2", "L_vl")[(t - 2 * LAG - 1) & 1]
        A(f"s_call_b64 s[{RET}:{RET+1}], {sub}")
        if t == NST - LAG: break
        if t: A(f"s_cbranch_scc0 L_dr{max(t, LAG)}")
        A(f"v_add_u32_dpp v3, v{SET[t//16]}, v{L16} row_newbcast:{t%16} row_mask:0xf bank_mask:0xf")
        A(f"buffer_load_dwordx4 {vr(slot(t),4)}, v3, s[48:51], 0 offen {VF}")
        if opts.get("trace") == 1 and t >= LAG:
            A("s_memrealtime s[98:99]"); A("s_waitcnt lgkmcnt(0)"); A(f"v_writelane_b32 v17, s98, {t}")
        if t == 0: dots(3, (0,))
        if t >= LAG: pv(t - LAG)
    A(f"s_branch L_dr{NST-LAG}")
    g.C("nothing left to load, everything has landed: the row groups not used yet")
    for t in range(LAG, NST):
        g.lab(f"L_dr{t}")
        pv(t - LAG)
        A(f"s_cmp_eq_u32 s{FIN}, {t+1}"); A("s_cbranch_scc1 L_epi")
    def out_addr():
        A("v_lshrrev_b32 v3, 4, v1")
        A(f"v_lshl_add_u32 v{EPA}, v3, 3, v{LRD}")
        A(f"v_add_u32 v{EPA}, s11, v{EPA}")
        A("v_mov_b32 v3, 1")
    def prelim(r):
        A("s_mov_b32 exec_hi, 0")
        A(f"ds_write_b128 v{EPA}, {vr(r,4)} offset:{L_OP1}")
        A("s_mov_b64 exec, 1")
        A(f"ds_add_u32 v1, v3 offset:{L_SN}")
        A("s_mov_b64 exec, -1")
    g.lab("L_epi")
    g.stamp(5)
    out_addr()
    A("s_nop 3")
    for h in range(2): A(f"v_pk_add_f32 {vr(AC_+2*h,2)}, {vr(AC_+2*h,2)}, {vr(AH_+2*h,2)}")
    A("s_mov_b32 exec_hi, 0")
    A(f"ds_write_b128 v{EPA}, {vr(AC_,4)} offset:{L_OP}")
    A(f"s_cmp_eq_u32 s{NSP}, 0"); A("s_cbranch_scc1 L_ep2")
    prelim(AC_)
    g.lab("L_ep2")
    A("s_mov_b64 exec, 1")
    A(f"ds_add_u32 v1, v3 offset:{L_TK}")
    g.lab("L_send")
    if opts.get("trace") == 1:
        A("s_mov_b64 exec, -1")
        A("s_mul_i32 s3, s2, 12"); A("s_add_u32 s3, s3, s13"); A("s_lshl_b32 s3, s3, 8"); A("s_add_u32 s3, s3, 0x400000")
        A("v_lshl_add_u32 v2, v1, 2, s3")
        A("global_store_dword v2, v17, s[42:43]")
    if opts.get("stamps"):
        g.stamp(6)
        dump_all(g, [CNT, SBI, SBI])
    A("s_endpgm")
    g.wave_red = wave_red

    g.lab("L_ks")
    A(f"s_cmp_lt_u32 s{T_}, s{NXT}"); A("s_cbranch_scc1 L_kq")
    A(f"s_call_b64 s[{RET2}:{RET2+1}], L_work")
    BASE, FRAC = BUR, 58
    def control(n):
        A("s_mov_b64 exec, 1")
        for _ in range(n): A(f"ds_dec_u32 v{PA}, v{LRD} offset:{L_RM}")
        A(f"ds_read_b64 {vr(RA,2)}, v{PA} offset:{L_RM}")
        A("s_mov_b64 exec, -1")
        A(f"s_mul_i32 s68, s{RW}, {NS_}")
        A(f"s_and_b32 s69, s{SBI}, 0xffff")
        A(f"s_sub_i32 s68, s68, s{SR}")
        A(f"s_mul_i32 s69, s69, s{KS}")
        A(f"s_mul_i32 s68, s68, {LG*16}")
        A(f"s_sub_u32 s{RW}, s{RW}, {n}")
        A("s_add_i32 s68, s68, s69")
        A(f"s_add_i32 s68, s68, s{DB}")
        A(f"s_max_i32 s68, s68, {int(opts.get('lo', 1.2)*4096)}")
        A(f"s_min_i32 s68, s68, {LAG*4096}")
        A(f"s_lshr_b32 s{BASE}, s68, 12")
        A(f"s_lshl_b32 s{FRAC}, s68, 20")
    g.lab("L_kq")
    fetch()
    g.lab("L_ks2")
    control(1)
    g.lab("L_kl")
    A(f"s_add_u32 s{T_}, s{T_}, 1")
    A(f"s_add_u32 s{ACC}, s{ACC}, 0x20000000")
    A(f"s_add_u32 s68, s{ACC}, s{FRAC}")
    A(f"s_addc_u32 s{LVL}, s{BASE}, 0")
    order = [3, 2, 4, 1] + list(range(5, LAG))
    for d in order:
        A(f"s_cmp_eq_u32 s{LVL}, {d}"); A(f"s_cbranch_scc1 L_wt{d}")
    g.lab("L_wtx")
    A(f"s_cmp_eq_u32 s{T_}, s{T_}")
    for d in [LAG] + order:
        g.lab(f"L_wt{d}")
        A(f"s_waitcnt vmcnt({d-1})")
        A(f"s_setpc_b64 s[{RET}:{RET+1}]")
    g.lab("L_kq2")
    fetch()
    g.lab("L_ks3")
    control(2)
    A("s_branch L_kl")
    g.lab("L_vl")
    A(f"s_cmp_lt_u32 s{T_}, s{LIM}"); A("s_cbranch_scc1 L_kl")
    A("s_branch L_ev")
    g.lab("L_vq2")
    fetch()
    if opts.get("early", 0):
        A(f"s_lshr_b32 s68, s{SBI}, 16")
        A(f"s_cmp_gt_u32 s68, s{FIN}"); A("s_cbranch_scc1 L_hand")
    A(f"s_cmp_lt_u32 s{T_}, s{LIM}"); A("s_cbranch_scc1 L_ks3")
    A("s_branch L_ev")

    g.lab("L_vs")
    fetch()
    A(f"s_cmp_eq_u32 s{X1D}, 2"); A("s_cbranch_scc1 L_vs1")
    A(f"s_cmp_eq_u32 s{X1D}, 1"); A("s_cbranch_scc1 L_x3")
    A(f"s_cmp_gt_u32 s{LVL}, s{T_}"); A("s_cbranch_scc1 L_ks2")
    g.lab("L_x1")
    g.stamp(1, 2)
    dots(3, (1,))
    sc = OFF[1] + 1
    A(f"s_lshl_b32 s68, s{NH}, 3")
    A(f"s_add_u32 s68, s68, s{LB}")
    for i in range(4): A(f"v_add_f32_dpp v{X+i}, v{X+i}, v{X+i} quad_perm:[2,3,0,1] row_mask:0xf bank_mask:0xf")
    for i in range(2): A(f"v_cndmask_b32 v{T+i}, v{X+2*i}, v{X+2*i+1}, s[52:53]")
    A("v_mov_b32 v20, 64")
    A("v_lshlrev_b32 v21, 3, s9")
    for i in range(2): A(f"v_add_f32_dpp v{T+i}, v{T+i}, v{T+i} quad_perm:[1,0,3,2] row_mask:0xf bank_mask:0xf")
    A(f"v_cndmask_b32 v{sc}, v{T}, v{T+1}, s[54:55]")
    rnd(g, sc)
    A(f"v_mul_f32 v{sc}, 0x{SCALE:08x}, v{sc}")
    rnd(g, sc)
    mx = lambda r: f"v_max_f32_dpp v{MW}, v{MW}, v{MW} row_ror:{r} row_mask:0xf bank_mask:0xf"
    tk1 = f"s[{TK[1]}:{TK[1]+1}]"
    for t in (f"v_max_f32 v{MW}, v{MW}, v{sc}",
              f"v_cmp_ngt_f32 vcc, s{HTH}, v{sc}", "v_mov_b32 v4, 0", mx(8),
              "s_bcnt1_i32_b64 s69, vcc", f"s_add_u32 s69, s69, s{NH}", mx(4),
              f"s_cmp_gt_u32 s69, {HCAP}", f"s_cselect_b32 s{NSP}, 1, s{NSP}", mx(2),
              f"s_cmp_eq_u32 s{NSP}, 0", f"s_cselect_b64 {tk1}, vcc, 0", f"s_cselect_b32 s{NH}, s69, s{NH}", mx(1),
              f"v_mbcnt_lo_u32_b32 v3, s{TK[1]}, 0", f"v_mov_b32 v{T}, v{MW}", f"v_mbcnt_hi_u32_b32 v3, s{TK[1]+1}, v3", "v_lshl_add_u32 v3, v3, 3, s68",
              f"v_permlane16_swap_b32 v{T}, v{MW}",
              f"s_mov_b64 exec, {tk1}", f"ds_write_b64 v3, {vr(OFF[1],2)} offset:{HPOS*8}", "s_mov_b64 exec, -1",
              f"ds_read_b32 v{SET[2]}, v{LRD} offset:1024",
              f"v_max_f32 v{MW}, v{MW}, v{T}", f"v_mov_b32 v{T}, v{MW}", "v_mov_b32 v5, 0", f"s_mov_b32 s{TH}, s{T_}",
              f"v_permlane32_swap_b32 v{T}, v{MW}", f"v_max_f32 v{MW}, v{MW}, v{T}"): A(t)
    for i in range(2): A(f"v_sub_f32 v{X+1+i}, v{OFF[i]+1}, v{MW}")
    for i in range(2): A(f"v_mul_f32 v{X+1+i}, 0x{LOG2E:08x}, v{X+1+i}")
    for i in range(2): A(f"v_exp_f32 v{X+1+i}, v{X+1+i}")
    A(f"v_mov_b32 v{X}, v{MW}")
    A(f"v_add_f32 v{X+1}, v{X+1}, v{X+2}")
    A("s_waitcnt lgkmcnt(0)")
    for i in range(8):
        A(f"s_cmp_le_u32 s{NH}, {4*i}"); A("s_cbranch_scc1 L_x2")
        A(f"v_add_u32_dpp v3, v{SET[2]}, v{L16} row_newbcast:{8+i} row_mask:0xf bank_mask:0xf")
        A(f"buffer_load_dwordx4 {vr(slot(24+i),4)}, v3, s[48:51], 0 offen {VF}")
    g.lab("L_x2")
    g.stamp(2, 2)
    wave_red("v_add_f32", X+1, T)
    A("s_mov_b64 exec, 1")
    A(f"ds_max_f32 v1, v{MW} offset:{L_MX}")
    A(f"ds_write_b64 v21, {vr(X,2)} offset:{L_ST}")
    A(f"ds_add_u32 v1, v20 offset:{L_SCN}")
    A("s_mov_b64 exec, -1")
    g.stamp(3); g.stamp(3, 2)
    A(f"s_mov_b32 s{X1D}, 1"); A(f"s_mov_b32 s{HST}, 1")
    if VB1 != VB0: A(f"s_add_i32 s{DB}, s{DB}, {VB1-VB0}")
    A(f"s_cmp_lt_u32 s{T_}, {LAG}"); A("s_cbranch_scc1 L_ks2")
    g.lab("L_x3")
    A(f"v_max_f32 v21, s{EV}, v{MW}")
    A(f"s_add_u32 s{CNT}, s{CNT}, 3"); A(f"s_lshr_b32 s{CNT}, s{CNT}, 2")
    A(f"v_add_f32 v21, 0x{f2u(DEL - ZERO_GAP):08x}, v21")
    A(f"s_max_u32 s{CNT}, s{CNT}, s{T_}"); A(f"s_lshl_b32 s{CNT}, s{CNT}, 2")
    build(1, 21)
    def fill():
        for e in range(4): A(f"v_mov_b32 v{AC_+e}, 0")
        for e in range(2, 4): A(f"v_mov_b32 v{AH_+e}, 0")
        A(f"s_lshr_b32 s{LIM}, s{CNT}, 2")
        A(f"s_mov_b32 s{X1D}, 2")
        estimate(2, opts.get("ve2", 13), CNT)
    reread(True, fill)
    A(f"s_cmp_eq_u32 s{NH}, 0")
    A(f"s_cselect_b32 s{LVL}, 0, s{LVL}")
    g.stamp(4, 2)
    g.lab("L_vs1")
    A(f"s_cmp_eq_u32 s{HST}, 0"); A("s_cbranch_scc1 L_vs1b")
    A(f"s_sub_u32 s68, s{T_}, s{TH}")
    A(f"s_cmp_le_u32 s{LVL}, s68"); A("s_cbranch_scc1 L_snap")
    A(f"s_cmp_lt_u32 s{T_}, s{LIM}"); A("s_cbranch_scc1 L_ks2")
    A("s_waitcnt vmcnt(0)")
    g.lab("L_snap")
    g.stamp(5, 2)
    for i in range(8):
        A(f"s_cmp_le_u32 s{NH}, {4*i}"); A("s_cbranch_scc1 L_snp2")
        pv(40 + i, slot(24 + i), AH_)
    g.lab("L_snp2")
    out_addr()
    A("s_nop 0")
    A(f"s_mov_b32 s{HST}, 0")
    if VB1: A(f"s_sub_i32 s{DB}, s{DB}, {VB1}")
    A(f"s_cmp_lg_u32 s{NSP}, 0"); A("s_cbranch_scc1 L_vs1b")
    prelim(AH_)
    g.stamp(9); g.stamp(7, 2)
    A("s_branch L_vs1b")
    g.lab("L_vq")
    fetch()
    g.lab("L_vs1b")
    if opts.get("early", 0):
        A(f"s_lshr_b32 s68, s{SBI}, 16")
        A(f"s_cmp_gt_u32 s68, s{FIN}"); A("s_cbranch_scc1 L_hand")
    g.lab("L_vs2")
    A(f"s_cmp_lt_u32 s{T_}, s{LIM}"); A("s_cbranch_scc1 L_ks2")
    g.lab("L_ev")
    A(f"s_cmp_eq_u32 s{FIN}, 0"); A("s_cbranch_scc1 L_hand")
    A(f"s_add_u32 s68, s{T_}, {LAG}")
    A(f"s_cmp_lt_u32 s68, s{FIN}"); A("s_cbranch_scc0 L_wt1")
    A(f"s_add_u32 s{T_}, s{T_}, 1")
    A("s_mov_b64 exec, 1")
    A(f"ds_dec_u32 v{PA}, v{LRD} offset:{L_RM}")
    A("s_mov_b64 exec, -1")
    A("s_branch L_wtx")

    g.lab("L_hand")
    g.stamp(7)
    A("v_mov_b32 v3, 0")
    wait_cnt(g, f"ds_read_b64 v[18:19], v3 offset:{L_SCN}", 18, 0x10000 + 64 * NS_, 1)
    g.stamp(4)
    A(f"v_add_f32 v21, 0x{f2u(-ZERO_GAP):08x}, v19")
    if opts.get("noskip"): A("v_mov_b32 v21, 0xff800000")
    build(0, 21); build(1, 21)
    def fill2():
        A(f"s_add_u32 s{FIN}, s{CNT}, {3 + 4*LAG}")
        A(f"s_lshr_b32 s{FIN}, s{FIN}, 2")
        A(f"s_sub_u32 s{LIM}, s{FIN}, {LAG + opts.get('burst', 3)}")
        A(f"s_max_i32 s{LIM}, s{LIM}, 0")
        estimate(2, 3, CNT)
    reread(True, fill2)
    A("s_branch L_vs2")

    g.lab("L_work")
    ret2 = f"s_setpc_b64 s[{RET2}:{RET2+1}]"
    for k, l in ((4, "L_w3"), (3, "L_w2b"), (5, "L_w5")):
        A(f"s_cmp_eq_u32 s{STA}, {k}"); A(f"s_cbranch_scc1 {l}")
    def landed(n):
        A(f"s_add_u32 s68, s{LVL}, {n}")
        A(f"s_cmp_lt_u32 s{T_}, s68"); A("s_cbranch_scc1 L_wr")
    g.lab("L_w2")
    assert J0 >= 8 + LAG
    A("v_and_b32 v3, 0xf0, v0")
    A(f"ds_read_b128 v[4:7], v3 offset:{L_QV}")
    A("s_waitcnt lgkmcnt(0)")
    chk_sentinel(g, [4, 5, 6, 7], 8)
    A("s_cmp_lg_u64 vcc, 0"); A("s_cbranch_scc1 L_wr")
    dots(0)
    A(f"s_mov_b32 s{STA}, 3"); A(f"s_mov_b32 s{NXT}, 17")
    g.lab("L_wr")
    A(ret2)
    g.lab("L_w2b")
    landed(16)
    g.stamp(9, 2)
    dots(1)
    finish(0)
    A(f"s_mov_b32 s{STA}, 4")
    A(f"s_mov_b32 s{HST}, 0")
    g.stamp(8)
    A(ret2)
    g.lab("L_w5")
    landed(24)
    dots(2)
    A(f"s_mov_b32 s{STA}, 6"); A(f"s_mov_b32 s{NXT}, 99")
    A(ret2)
    g.lab("L_w3")
    A("v_mov_b32 v3, 0")
    A(f"ds_read_b64 v[18:19], v3 offset:{L_ECN}")
    A("s_waitcnt lgkmcnt(0)")
    A(f"v_cmp_gt_u32 vcc, 0x{0x10000 + 64 * NS_:x}, v18")
    A("s_cmp_lg_u64 vcc, 0"); A("s_cbranch_scc1 L_wr")
    A(f"ds_read_b64 v[20:21], v3 offset:{L_E1}")
    A("s_waitcnt lgkmcnt(0)")
    A(f"v_add_f32 v21, 0x{f2u(-THETA):08x}, v21")
    A(f"v_cmp_nlt_f32 vcc, v{OFF[0]+1}, v21")
    A(f"v_readfirstlane_b32 s{HTH}, v21")
    A(f"v_readfirstlane_b32 s{EV}, v20")
    A(f"s_mov_b32 s{NH}, 0")
    A("s_bcnt1_i32_b64 s68, vcc")
    A(f"s_cmp_gt_u32 s68, {HCAP}")
    A(f"s_cselect_b32 s{NSP}, 1, 0")
    A("s_cbranch_scc1 L_w4")
    A(f"s_mov_b32 s{CNT}, {HPOS}")
    build(0, 21)
    A(f"s_mov_b32 s{NH}, s69"); A(f"s_mov_b32 s{CNT}, 0")
    g.lab("L_w4")
    A(f"v_add_f32 v21, 0x{f2u(DEL - ZERO_GAP):08x}, v20")
    build(0, 21)
    estimate(1, opts.get("ve1", 6), CNT, False)
    if opts.get("ka1", 0):
        A(f"s_sub_i32 s68, s{VE}, {opts.get('kt1', 20)}")
        A(f"s_max_i32 s68, s68, {opts.get('kl1', -4)}")
        A(f"s_mul_i32 s68, s68, {int(opts['ka1']*4096)}")
        A(f"s_add_i32 s{DB}, s{DB}, s68")
    A(f"s_mov_b32 s{STA}, 5"); A(f"s_mov_b32 s{NXT}, 25")
    reread(False)
    A(ret2)

def gen(opts):
    g = G(opts); A = g.A
    opts.setdefault("ka1", 0.06)
    WFL = opts.get("wflags", "nt")
    D0 = opts.get("D0", 4)
    MREP = 8
    TB = 32
    hdr = open(opts["ref"]).read().split("; Override launch")[0]
    g.L.append(hdr.rstrip("\n"))
    g.L.append(""";
;    projections behind the attention overlap the remaining V rows.  When all rows are in, the bf16 attention output is formed
;    numbers of loads in flight only affect speed.""")
    g.L.append(f"; @launch grid=(256,1,1) block=(768,1,1) lds={LDS_BYTES}")
    g.L.append('.amdgcn_target "amdgcn-amd-amdhsa--gfx950"\n.text')
    g.L.append(f".globl {KNAME}\n.p2align 8\n.type {KNAME},@function\n{KNAME}:")
    g.stamp(0, 3)
    A("s_cmp_ge_u32 s2, 256")
    A("s_cbranch_scc1 L_end")
    A("s_load_dwordx16 s[16:31], s[0:1], 0")
    A("s_load_dwordx8 s[32:39], s[0:1], 64")
    A("s_load_dwordx4 s[40:43], s[0:1], 96")
    A("v_lshrrev_b32 v2, 6, v0")
    A("v_and_b32 v1, 63, v0")
    A("v_readfirstlane_b32 s13, v2")
    A("s_bfe_u32 s7, s2, 0x20003")
    A("s_bfe_u32 s6, s2, 0x20005")
    A("s_and_b32 s8, s2, 7")
    A("s_lshl2_add_u32 s6, s8, s6")
    A("s_and_b32 s9, s2, 0x80")
    A("s_lshr_b32 s9, s9, 2")
    A("s_add_u32 s6, s6, s9")
    A("s_mov_b32 s72, 0xfffffffe")
    A("s_mov_b32 s73, 0xffff0000")
    g.stamp(0)
    A("s_cmp_eq_u32 s7, 3")
    A("s_cbranch_scc1 L_serv")
    A("s_cmp_eq_u32 s13, 0")
    A("s_cbranch_scc1 L_pub")
    stream(g, opts)

    def tag():
        A("s_waitcnt lgkmcnt(0)")
        make_tag(g)
    def tag_bytes():
        for i in range(4): A(f"s_bfe_u32 s{TB+i}, s{ST}, 0x{(8 << 16) | (8 * i):x}")
    def table():
        A("s_getpc_b64 s[56:57]")
        l = g.uniq("pc"); g.lab(l)
        A("s_lshr_b32 s3, s2, 5"); A("s_lshl3_add_u32 s3, s3, s8"); A("s_lshl_b32 s3, s3, 2")
        A(f"s_add_u32 s3, s3, L_table-{l}")
        A("s_load_dword s14, s[56:57], s3")

    g.lab("L_pub")
    NT = opts.get("nt", 2)
    if NT:
        A("s_getpc_b64 s[56:57]")
        g.lab("L_pct")
        A("s_lshr_b32 s3, s2, 3"); A("s_lshl_b32 s3, s3, 2")
        A("s_add_u32 s3, s3, L_touch-L_pct")
        A("s_load_dword s14, s[56:57], s3")
        A("s_waitcnt lgkmcnt(0)")
        for k in range(NT):
            e = g.uniq("tq"); e2 = g.uniq("te")
            A(f"s_bfe_u32 s48, s14, 0x{(3 << 16) | (8*k):x}"); A("s_lshl_b32 s48, s48, 6")
            A("v_add_u32 v2, s48, v1")
            A(f"s_bfe_u32 s48, s14, 0x{(3 << 16) | (8*k+3):x}")
            A(f"s_bitcmp1_b32 s14, {8*k+7}"); A(f"s_cbranch_scc1 {e2}")
            A(f"s_bitcmp1_b32 s14, {8*k+6}"); A(f"s_cbranch_scc1 {e}")
            A("s_lshl1_add_u32 s48, s8, s48"); A("s_lshl_b32 s48, s48, 7")
            A("v_mul_u32_u24 v2, 6144, v2")
            A("v_add_u32 v2, s48, v2")
            A("global_load_dword v167, v2, s[36:37]")
            A(f"s_branch {e2}")
            g.lab(e)
            A("s_lshl3_add_u32 s48, s8, s48"); A("s_lshl_b32 s48, s48, 7")
            A("v_lshl_add_u32 v2, v2, 13, s48")
            A("global_load_dword v167, v2, s[22:23]")
            g.lab(e2)
    A("v_mov_b32 v38, 0")
    A("v_mov_b32 v4, -1")
    A("v_mov_b32 v8, 0xff800000"); A("v_mov_b32 v9, 0")
    A("v_lshlrev_b32 v2, 3, v1")
    A(f"ds_write_b64 v2, v[8:9] offset:{L_S4}")
    A("v_mov_b32 v5, 0"); A("v_mov_b32 v6, 0"); A("v_mov_b32 v7, 0")
    A("v_lshlrev_b32 v2, 2, v1")
    A(f"ds_write_b32 v2, v4 offset:{L_QV}")
    A(f"ds_write_b128 v38, v[4:7] offset:{L_ML}")
    A("v_mov_b32 v10, 0"); A("v_mov_b32 v11, v8"); A("v_mov_b32 v12, 0"); A("v_mov_b32 v13, v8")
    A(f"ds_write_b128 v38, v[10:13] offset:{L_SCN}")
    A(f"v_mov_b32 v10, {1024+NS_*(32-D0)}"); A("v_mov_b32 v11, 0"); A("v_mov_b32 v12, 1024"); A("v_mov_b32 v13, 0")
    A(f"ds_write_b128 v38, v[10:13] offset:{L_RM}")
    A("v_mov_b32 v4, 0")
    A(f"ds_write_b128 v38, v[4:7] offset:{L_SN}")
    A(f"s_getreg_b32 s{SXCC}, hwreg(HW_REG_XCC_ID, 0, 4)")
    A("s_waitcnt lgkmcnt(0)")
    A(f"s_load_dword s{ST}, s[42:43], {WS_E}")
    A("s_barrier")
    tag()
    A(f"s_add_u32 s{SXCC}, s{SXCC}, s{ST}")
    def merge(nl, base):
        A(f"v_and_b32 v9, {nl-1}, v1")
        A("v_lshlrev_b32 v9, 3, v9")
        A(f"ds_read_b64 v[10:11], v9 offset:{base}")
        mods = ["quad_perm:[1,0,3,2]", "quad_perm:[2,3,0,1]", "row_half_mirror", "row_mirror"][:nl.bit_length()-1]
        A("s_waitcnt lgkmcnt(0)")
        if nl == 16: A("v_mov_b32 v16, v10")
        for i, m_ in enumerate(mods):
            src = 10 if i == 0 else 8
            A(f"v_max_f32_dpp v8, v{src}, v{src} {m_} row_mask:0xf bank_mask:0xf")
            if i + 1 < len(mods): A("s_nop 1")
        A("v_sub_f32 v9, v10, v8")
        A(f"v_mul_f32 v9, 0x{LOG2E:08x}, v9")
        A("v_exp_f32 v9, v9")
        A("s_nop 0")
        A("v_mul_f32 v10, v9, v11")
        for m_ in mods:
            A("s_nop 1")
            A(f"v_add_f32_dpp v10, v10, v10 {m_} row_mask:0xf bank_mask:0xf")
    SB = 20
    def sissue(n, nd, off):
        for i in range(n): A(f"s_load_dwordx{nd} s[{SB+4*i}:{SB+4*i+nd-1}], s[42:43], s{54+i} offset:{off} glc")
    def spoll(n, nd, off, name, sleep):
        A("s_mov_b32 s70, 0")
        A(f"s_branch {name}c")
        g.lab(name)
        sissue(n, nd, off)
        g.lab(name + "c")
        A("s_waitcnt lgkmcnt(0)")
        tags = [SB + 4*i + k for i in range(n) for k in range(1, nd, 2)]
        A(f"s_xor_b32 s68, s{tags[0]}, s{ST}")
        for k in tags[1:]:
            A(f"s_xor_b32 s69, s{k}, s{ST}"); A("s_or_b32 s68, s68, s69")
        A(f"s_cbranch_scc0 {name}d")
        A(f"s_sleep {sleep}")
        A("s_add_u32 s70, s70, 1")
        A(f"s_cmp_lt_u32 s70, {SPIN_MAX}")
        A(f"s_cbranch_scc1 {name}")
        g.lab(name + "d")
    def sibs():
        A("s_add_u32 s52, s7, 1"); A("s_cmp_eq_u32 s52, 3"); A("s_cselect_b32 s52, 0, s52")
        A("s_add_u32 s53, s52, s7"); A("s_sub_u32 s53, 3, s53")
        for i in range(2):
            A(f"s_lshl2_add_u32 s{54+i}, s6, s{52+i}"); A(f"s_lshl_b32 s{54+i}, s{54+i}, 7")
    A("s_lshl2_add_u32 s64, s6, s7"); A("s_lshl_b32 s64, s64, 7")
    A(f"s_add_u32 s64, s64, {WS_S1}")
    A("v_mov_b32 v18, s64")
    A(f"v_add_u32 v19, {WS_S2-WS_S1}, v18")
    A("v_mov_b32 v17, 0x10000")
    PT = opts.get("pt", 15)
    if PT & 1:
        A("s_lshl2_add_u32 s49, s6, s7"); A("s_lshl_b32 s49, s49, 9"); A(f"s_add_u32 s49, s49, {WS_OP}")
        A("v_and_b32 v10, 3, v1"); A("v_lshl_add_u32 v10, v10, 7, s49")
        A("v_bfe_u32 v11, v1, 2, 1"); A(f"v_mul_u32_u24 v11, {R2}, v11"); A("v_add_u32 v10, v10, v11")
        A("s_mov_b64 exec, 0xff")
        A("global_load_dword v166, v10, s[42:43] sc1")
        A("s_mov_b64 exec, 1")
        A("global_load_dword v166, v18, s[42:43] sc1")
        A("global_load_dword v166, v19, s[42:43] sc1")
        A("s_mov_b64 exec, -1")
    l = g.uniq("qw")
    A("s_mov_b32 s70, 0")
    g.lab(l)
    A(f"ds_read_b32 v8, v38 offset:{L_RM}")
    A("s_waitcnt lgkmcnt(0)")
    A(f"v_cmp_lt_u32 vcc, {1024 + NS_ * (32 - opts.get('jq', 13))}, v8")
    spin_tail(g, l, l + "d", 4, 8)
    WIN = (8, 24, 44, 84)
    A("s_lshl_b32 s3, s6, 9")
    A("s_mov_b64 exec, 1")
    for h in range(2):
        A("s_mov_b32 s70, 0")
        g.lab(f"L_qp{h}")
        for i, w in enumerate(WIN): A(f"s_load_dwordx16 s[{w}:{w+15}], s[42:43], s3 offset:{WS_Q+256*h+64*i} glc")
        A(f"s_mov_b32 s62, -1"); A("s_mov_b32 s63, 0")
        A("s_waitcnt lgkmcnt(0)")
        for w in WIN:
            for k in range(1, 16, 2):
                A(f"s_and_b32 s62, s62, s{w+k}"); A(f"s_or_b32 s63, s63, s{w+k}")
        A(f"s_xor_b32 s62, s62, s{ST}"); A(f"s_xor_b32 s63, s63, s{ST}"); A("s_or_b32 s62, s62, s63")
        A(f"s_cbranch_scc0 L_qp{h}d")
        A(f"s_sleep {opts.get('qsl', 2)}")
        A("s_add_u32 s70, s70, 1")
        A(f"s_cmp_lt_u32 s70, {SPIN_MAX}")
        A(f"s_cbranch_scc1 L_qp{h}")
        g.lab(f"L_qp{h}d")
        for i, w in enumerate(WIN):
            for k in range(8): A(f"v_mov_b32 v{40+32*h+8*i+k}, s{w+2*k}")
    for i in range(16): A(f"ds_write_b128 v38, {vr(40+4*i,4)} offset:{L_QV+16*i}")
    A("s_mov_b64 exec, -1")
    A("s_and_b32 s8, s2, 7"); A("s_mov_b32 s13, 0")
    g.stamp(9)
    sibs()
    wait_cnt(g, f"ds_read_b64 v[8:9], v38 offset:{L_ECN}", 8, 64 * NS_, 2)
    sissue(2, 2, WS_S1)
    A("v_mov_b32 v8, v9")
    A(f"v_mov_b32 v9, s{ST}")
    A("s_mov_b64 exec, 1")
    A("global_store_dwordx2 v18, v[8:9], s[42:43] sc1")
    g.stamp(1)
    spoll(2, 2, WS_S1, "L_s3e", opts.get("ssl", 2))
    A(f"v_mov_b32 v12, s{SB}")
    A(f"v_max3_f32 v10, v8, v12, s{SB+4}")
    A(f"v_min3_f32 v11, v8, v12, s{SB+4}")
    A(f"ds_write_b64 v38, v[10:11] offset:{L_E1}")
    A(f"ds_add_u32 v38, v17 offset:{L_ECN}")
    A("s_mov_b64 exec, -1")
    g.stamp(3)
    if True:
        A("s_lshl_b32 s64, s8, 7")
        A(f"s_load_dwordx8 s[20:27], s[42:43], s64 offset:{WS_HDR} glc")
        A("s_waitcnt lgkmcnt(0)")
        A(f"s_xor_b32 s68, s20, s{SXCC}")
        for k in range(1, 8):
            A(f"s_xor_b32 s69, s{20+k}, s{SXCC}"); A("s_or_b32 s68, s68, s69")
        A(f"s_cselect_b32 s{SLOC}, 0, 1")
        if opts.get("nolocal"): A(f"s_mov_b32 s{SLOC}, 0")
    for i, r in enumerate((7, 52, 53)): A(f"v_lshlrev_b32 v{20+i}, 3, s{r}")
    wait_cnt(g, f"ds_read_b32 v8, v38 offset:{L_SCN}", 8, 64 * NS_, 1)
    merge(16, L_ST)
    sissue(2, 4, WS_S2)
    A(f"v_mov_b32 v9, s{ST}"); A(f"v_mov_b32 v11, s{ST}")
    A("s_mov_b64 exec, 1")
    A("global_store_dwordx4 v19, v[8:11], s[42:43] sc1")
    A(f"ds_write_b32 v20, v8 offset:{L_S4}")
    A(f"ds_write_b32 v20, v10 offset:{L_S4+4}")
    g.stamp(4)
    spoll(2, 4, WS_S2, "L_s3p", opts.get("ssl", 2))
    for i in range(2):
        A(f"v_mov_b32 v{12+2*i}, s{SB+4*i}"); A(f"v_mov_b32 v{13+2*i}, s{SB+4*i+2}")
    A("v_max_f32 v23, v12, v14")
    A(f"ds_max_f32 v38, v23 offset:{L_MX}")
    A(f"ds_add_u32 v38, v17 offset:{L_SCN}")
    A(f"ds_add_u32 v38, v17 offset:{L_RM+12}")
    for i in range(2): A(f"ds_write_b64 v{21+i}, {vr(12+2*i,2)} offset:{L_S4}")
    A("s_mov_b64 exec, -1")
    merge(4, L_S4)
    A("v_sub_f32 v9, v16, v8")
    A("v_rcp_f32 v10, v10")
    A(f"v_mul_f32 v9, 0x{LOG2E:08x}, v9")
    A("v_exp_f32 v9, v9")
    A("v_lshlrev_b32 v8, 2, v1")
    A("v_mul_f32 v9, v9, v10")
    A("s_mov_b64 exec, 0xffff")
    A(f"ds_write_b32 v8, v9 offset:{L_S8}")
    A("s_mov_b64 exec, -1")
    A(f"ds_write_b32 v38, v38 offset:{L_ML}")
    g.stamp(5)
    R = 40
    op_prep(g, R, 38, 0)
    wait_then(g, L_SN, NS_, op_reads(L_OP1, R), NS_ - 1)
    op_sum(g, R, True)
    g.stamp(6)
    R1 = 80
    op_prep(g, R1, 38, R2)
    A("s_waitcnt vmcnt(0)")
    wait_cnt(g, f"ds_read_b32 v8, v38 offset:{L_TK}", 8, opts.get("ctk", 1), 4)
    A(f"global_store_dwordx2 v{R+OPA}, {vr(R,2)}, s[42:43] sc1")
    A("s_cmp_eq_u32 s7, 2"); A("s_cbranch_scc1 L_chk")
    wait_then(g, L_TK, NS_, op_reads(L_OP, R1), NS_ - 1)
    op_sum(g, R1, False)
    g.stamp(7)
    A("s_branch L_fin")

    g.lab("L_chk")
    TG = 160; RB = 136
    for k in range(2): A(f"v_and_b32 v{TG+k}, 0xff, v{R+OPA+1+k}")
    A("s_lshl_b32 s10, s6, 11"); A(f"s_add_u32 s10, s10, {WS_OP}")
    A("v_lshl_add_u32 v2, v1, 3, s10")
    def head_sum(b_, t, src=None):
        src = src or list(range(b_, b_ + 6))
        for i in range(6): A(f"v_xor_b32 v{b_+i}, v{src[i]}, v{TG+(i&1)}")
        A(f"v_or3_b32 v{t}, v{b_}, v{b_+1}, v{b_+2}")
        A(f"v_or3_b32 v{t+1}, v{b_+3}, v{b_+4}, v{b_+5}")
        for i in range(6): A(f"v_or_b32 v{b_+i}, 0x80, v{b_+i}")
        A(f"v_or_b32 v{t}, v{t}, v{t+1}")
        A(f"v_pk_add_f32 {vr(b_,2)}, {vr(b_,2)}, {vr(b_+2,2)}")
        A(f"v_lshlrev_b32 v{t}, 24, v{t}")
        A(f"v_pk_add_f32 {vr(b_,2)}, {vr(b_,2)}, {vr(b_+4,2)}")
        A(f"v_cmp_ne_u32 vcc, 0, v{t}")
        A(f"v_cvt_pk_bf16_f32 v{b_}, v{b_}, v{b_+1}")
    RAW = RB + 18
    def looks(k, v=2):
        for i in range(2): A(f"global_load_dwordx2 {vr(RAW-24*k+2*i,2)}, v{v}, s[42:43] offset:{512*i} sc1")
    def settle(k, sleep, own, depth):
        raw = RAW - 24*k
        A("s_mov_b32 s70, 0")
        A(f"s_branch L_cp{k}c")
        g.lab(f"L_cp{k}")
        looks(k)
        if sleep: A(f"s_sleep {sleep}")
        A(f"s_waitcnt vmcnt({2*(depth-1)})")
        g.lab(f"L_cp{k}c")
        head_sum(RB+8*k, RB+16, [raw, raw+1, raw+2, raw+3, own, own+1])
        spin_tail(g, f"L_cp{k}", f"L_cp{k}d", 0)
    looks(0)
    A(f"v_add_u32 v3, {R2}, v2")
    wait_then(g, L_TK, NS_, op_reads(L_OP, R1), NS_ - 1)
    looks(1, 3)
    op_sum(g, R1, False)
    g.stamp(7)
    A("s_waitcnt vmcnt(1)")
    settle(0, 4, R, 1)
    A(f"v_add_u32 v2, {R2}, v2")
    settle(1, opts.get("csl", 0), R1, opts.get("cpipe", 1))
    A(f"v_cmp_ne_u32 vcc, v{RB}, v{RB+8}")
    A("s_cmp_eq_u64 vcc, 0"); A("s_cbranch_scc1 L_fin")
    A("s_waitcnt vmcnt(0)")
    fallback(g, head_sum, g.wave_red)

    g.lab("L_serv")
    A("s_cmp_ge_u32 s13, 4"); A("s_cbranch_scc1 L_team")
    A("s_cmp_lt_u32 s13, 2"); A("s_cbranch_scc1 L_sv1")
    if opts.get("cpf", 1):
        A("s_getpc_b64 s[56:57]")
        g.lab("L_pcc")
        A(f"s_sub_u32 s56, s56, L_pcc-{KNAME}"); A("s_subb_u32 s57, s57, 0")
        A("s_lshr_b32 s3, s2, 5"); A("s_lshl1_add_u32 s3, s3, s13"); A("s_sub_u32 s3, s3, 2")
        A("s_lshl_b32 s3, s3, 12")
        A("v_lshl_add_u32 v2, v1, 6, s3")
        A(f"v_min_u32 v2, L_end-{KNAME}, v2")
        A("global_load_dword v3, v2, s[56:57]")
    A("s_endpgm")
    g.lab("L_sv1")
    A("v_mov_b32 v38, 0")
    A("v_mov_b32 v4, -1"); A("v_mov_b32 v5, 0"); A("v_mov_b32 v6, 0"); A("v_mov_b32 v7, 0")
    A(f"ds_write_b128 v38, v[4:7] offset:{L_ML}")
    A(f"ds_write_b64 v38, v[6:7] offset:{L_CNA}")
    A(f"s_getreg_b32 s{SXCC}, hwreg(HW_REG_XCC_ID, 0, 4)")
    A("s_waitcnt lgkmcnt(0)")
    A(f"s_load_dword s{ST}, s[42:43], {WS_E}")
    table()
    A("s_barrier")
    tag()
    tag_bytes()
    A("s_cmp_eq_u32 s13, 0"); A("s_cbranch_scc1 L_sv0")
    A("s_bfe_u32 s61, s14, 0x80010")
    A("s_cmp_ge_u32 s61, 32"); A("s_cbranch_scc1 L_fin")
    poll_lds(g, [f"ds_read_b32 v8, v38 offset:{L_ML}"], [8], 9, 16)
    A("s_branch L_r_f2")

    g.lab("L_sv0")
    if True:
        A(f"s_add_u32 s{SXCC}, s{SXCC}, s{ST}")
        A("s_lshr_b32 s49, s2, 5"); A("s_lshl_b32 s50, s8, 5"); A("s_add_u32 s49, s49, s50"); A("s_lshl_b32 s49, s49, 2")
        A("v_mov_b32 v8, s49"); A(f"v_mov_b32 v9, s{SXCC}")
        A("s_mov_b64 exec, 1")
        A(f"global_store_dword v8, v9, s[42:43] offset:{WS_HDR} sc1")
        A("s_mov_b64 exec, -1")
    for i in range(3):
        A(f"s_lshl_b32 s{54+i}, s6, 9"); A(f"s_add_u32 s{54+i}, s{54+i}, {128*i}")
    WDL = opts.get("wdl", 2)
    if WDL:
        wait_cnt(g, f"ds_read_b32 v8, v38 offset:{L_CNA}", 8, opts.get("wdc", 8), 16)
        if opts.get('wds', 0): A(f"s_sleep {opts.get('wds', 0)}")
        if opts.get("wdn", 1):
            sissue(opts.get("wdn", 1), 2, WS_S1)
            spoll(opts.get("wdn", 1), 2, WS_S1, "L_s3w", 8)
        A("v_mov_b32 v8, 1")
        A(f"ds_write_b32 v38, v8 offset:{L_ML+4}")
    wait_cnt(g, f"ds_read_b32 v8, v38 offset:{L_CNA}", 8, 12, 16)
    sissue(3, 2, WS_S2)
    spoll(3, 2, WS_S2, "L_s3s", 8)
    A(f"ds_write_b32 v38, v38 offset:{L_ML}")
    g.stamp(5)
    A("s_branch L_fin")

    g.lab("L_team")
    A("s_and_b32 s5, s13, 3")
    A("v_and_b32 v0, 0xff, v0")
    A("v_mov_b32 v38, 0")
    A(f"s_mov_b32 s{STG}, 0")
    A("s_lshr_b32 s60, s2, 5")
    A("v_lshrrev_b32 v12, 3, v0")
    A("v_lshlrev_b32 v12, 5, v12")
    A("v_bfe_u32 v3, v1, 2, 1")
    A("v_lshl_add_u32 v12, v3, 10, v12")
    A("v_and_b32 v8, 3, v1")
    A("v_lshl_add_u32 v37, v8, 3, v12")
    A("v_and_b32 v12, 0xffffffdf, v12")
    A("v_lshl_add_u32 v12, v8, 4, v12")
    A("v_bfe_u32 v8, v1, 3, 1")
    A("v_lshl_add_u32 v12, v8, 3, v12")
    A("v_lshl_add_u32 v12, v3, 5, v12")
    A("s_waitcnt lgkmcnt(0)")
    A(f"s_load_dword s{ST}, s[42:43], {WS_E}")
    A("s_barrier")
    A("s_cmp_ge_u32 s13, 8"); A("s_cbranch_scc1 L_r_mod")

    def line_out_addr(v, bsh=6, ush=7):
        A(f"v_and_b32 v{v}, 1, v1")
        A(f"v_lshlrev_b32 v{v}, {bsh}, v{v}")
        A("v_lshrrev_b32 v3, 4, v1")
        A(f"v_lshl_add_u32 v{v}, v3, 4, v{v}")
        A(f"s_lshl_b32 s49, s5, {ush}")
        A("s_add_u32 s49, s49, s58")
        A(f"v_add_u32 v{v}, s49, v{v}")
    def pack_tagged():
        A("v_cvt_pk_bf16_f32 v8, v8, v9")
        A("v_cvt_pk_bf16_f32 v10, v10, v11")
        A(f"v_mov_b32 v9, s{ST}")
        A(f"v_mov_b32 v11, s{ST}")
    def go(k):
        A("v_mov_b32 v3, 1")
        A("s_mov_b64 exec, 1")
        A(f"ds_add_u32 v38, v3 offset:{L_GO+4*k}")
        A("s_mov_b64 exec, -1")

    g.T = TA
    g.lab("L_r_q")
    A("s_lshl3_add_u32 s61, s8, s60")
    A("s_lshl_b32 s48, s61, 7")
    A("s_lshl_b32 s58, s61, 8")
    A(f"s_add_u32 s58, s58, {WS_Q}")
    A("global_load_dwordx2 v[14:15], v37, s[16:17]")
    srd(g, 44, 22, 512*8192)
    A("s_cmp_ge_u32 s60, 2"); A("s_cbranch_scc1 L_q_go")
    wait_cnt(g, f"ds_read_b32 v8, v38 offset:{L_GO+4}", 8, 4, 1)
    g.lab("L_q_go")
    dma_tile64(g, 8192, WFL, opts.get("PQ", 0))
    go(0)
    tag()
    A("v_bfe_u32 v6, v1, 2, 1")
    A("v_lshlrev_b32 v6, 5, v6")
    A(f"v_add_u32 v6, {TA.RED}, v6")
    A("s_lshl_b32 s49, s5, 3")
    A("v_add_u32 v5, s49, v6")
    A("s_waitcnt vmcnt(16)")
    unpack4(g, 20, 14)
    ln_partial(g, 20)
    A("s_waitcnt vmcnt(0) lgkmcnt(0)")
    hsync(g, 9)
    ln_apply(g, 20, 24)
    A("s_lshl_b32 s49, s8, 13"); A(f"s_add_u32 s49, s49, {WS_MA}")
    A("v_lshl_add_u32 v15, v0, 4, s49")
    A("v_add_u32 v36, 0x1000, v15")
    def mod_loads():
        A("s_mov_b64 exec, s[64:65]")
        A("global_load_dwordx4 v[16:19], v15, s[42:43] sc1")
        A("s_mov_b64 exec, s[66:67]")
        A("global_load_dwordx4 v[32:35], v36, s[42:43] sc1")
        A("s_mov_b64 exec, -1")
    A("s_mov_b64 s[64:65], -1"); A("s_mov_b64 s[66:67], -1")
    mod_loads()
    tr_tile64(g)
    line_out_addr(13, 14, 6)
    act_addr(g, 14, TA.ACT, ACT_BS)
    g.stamp(1)
    A("s_mov_b32 s70, 0")
    A("s_branch L_q_c")
    g.lab("L_q_p")
    mod_loads()
    g.lab("L_q_c")
    A("s_waitcnt vmcnt(0)")
    A(f"v_cmp_ne_u32 s[64:65], s{ST}, v17"); A(f"v_cmp_ne_u32 s[68:69], s{ST}, v19"); A("s_or_b64 s[64:65], s[64:65], s[68:69]")
    A(f"v_cmp_ne_u32 s[66:67], s{ST}, v33"); A(f"v_cmp_ne_u32 s[68:69], s{ST}, v35"); A("s_or_b64 s[66:67], s[66:67], s[68:69]")
    A("s_or_b64 vcc, s[64:65], s[66:67]")
    A("s_or_b32 s64, s64, 1"); A("s_or_b32 s66, s66, 1")
    spin_tail(g, "L_q_p", "L_q_ok", opts.get("msleep", 2))
    g.stamp(3)
    unpack4(g, 28, 32, 2)
    unpack4(g, 24, 16, 2)
    for i in range(4): A(f"v_add_f32 v{28+i}, 1.0, v{28+i}")
    for i in range(4): rnd(g, 28+i)
    for i in range(4): A(f"v_mul_f32 v{20+i}, v{20+i}, v{28+i}")
    for i in range(4): rnd(g, 20+i)
    for i in range(4): A(f"v_add_f32 v{20+i}, v{20+i}, v{24+i}")
    A("v_cvt_pk_bf16_f32 v16, v20, v21")
    A("v_cvt_pk_bf16_f32 v17, v22, v23")
    A(f"ds_write_b64 v12, v[16:17] offset:{TA.ACT}")
    hsync(g, 9)
    gemv(g, 16, 14, 8)
    pack_tagged()
    guard(g, 8); guard(g, 10)
    for x in EX8: A(x)
    A("global_store_dwordx4 v13, v[8:11], s[42:43] sc1")
    A("s_mov_b64 exec, -1")
    g.stamp(4)

    g.lab("L_r_wo")
    A("s_xor_b32 s61, s60, 1")
    A("s_lshl_b32 s48, s8, 19")
    A("s_lshl_b32 s49, s61, 7")
    A("s_add_u32 s48, s48, s49")
    A("s_lshr_b32 s58, s8, 1"); A("s_lshl_b32 s58, s58, 14")
    A("s_and_b32 s49, s8, 1"); A("s_lshl_b32 s49, s49, 12"); A("s_add_u32 s58, s58, s49")
    A("s_lshl_b32 s49, s61, 9")
    A("s_add_u32 s58, s58, s49")
    A(f"s_add_u32 s58, s58, {WS_AP}")
    srd(g, 44, 24, 4096*1024)
    if WDL & 1: wait_cnt(g, f"ds_read_b32 v8, v38 offset:{L_ML+4}", 8, 1, 8)
    dma_tile64(g, 1024, WFL, opts.get("PW", 3))
    tag_bytes()
    A("s_lshl2_add_u32 s49, s8, s5"); A("s_lshl_b32 s49, s49, 11")
    A(f"s_add_u32 s49, s49, {WS_OP}")
    A("v_lshrrev_b32 v12, 5, v1")
    A("v_and_b32 v16, 31, v1")
    A("v_lshlrev_b32 v15, 16, v12")
    A("v_lshl_add_u32 v15, v16, 4, v15")
    A("v_add_u32 v15, s49, v15")
    A(f"v_mul_u32_u24 v12, {ACT_BS}, v12")
    A("v_bfe_u32 v16, v1, 3, 2")
    A("v_lshl_add_u32 v12, v16, 6, v12")
    A("v_and_b32 v16, 3, v1")
    A("v_lshl_add_u32 v12, v16, 4, v12")
    A("v_bfe_u32 v16, v1, 2, 1")
    A("v_lshl_add_u32 v12, v16, 3, v12")
    A("s_lshl_b32 s49, s5, 8")
    A("v_add_u32 v12, s49, v12")
    line_out_addr(13)
    AREP = opts.get("arep", 2)
    A(f"v_bfe_u32 v3, v1, 1, {max(AREP.bit_length()-1, 0)}")
    A("v_lshl_add_u32 v13, v3, 16, v13")
    A("v_mov_b32 v36, 0xff")
    if PT & 2: A("global_load_dword v11, v13, s[42:43] sc1")
    A("s_waitcnt vmcnt(0)")
    g.stamp(5)
    hsync(g, 9, 4)
    tr_tile64(g)
    poll_lds(g, [f"ds_read_b32 v8, v38 offset:{L_ML}"], [8], 9, 8)
    if opts.get("notail"): go(0); A("s_branch L_fin")

    def sumN(n, src, dst):
        st = n // 2
        for i in range(st):
            for h in range(2):
                A(f"v_pk_add_f32 {vr(dst+4*i+2*h,2)}, {vr(src+4*i+2*h,2)}, {vr(src+4*(i+st)+2*h,2)}")
        st //= 2
        while st:
            for i in range(st):
                for h in range(2):
                    A(f"v_pk_add_f32 {vr(dst+4*i+2*h,2)}, {vr(dst+4*i+2*h,2)}, {vr(dst+4*(i+st)+2*h,2)}")
            st //= 2
    def sum8p(src, dst):
        for p in range(4):
            for h in range(2): A(f"v_pk_add_f32 {vr(dst+8*p+2*h,2)}, {vr(src+8*p+2*h,2)}, {vr(src+8*p+4+2*h,2)}")
        sum8q(dst)
    def sum8q(dst):
        for i in range(2):
            for h in range(2): A(f"v_pk_add_f32 {vr(dst+16*i+2*h,2)}, {vr(dst+16*i+2*h,2)}, {vr(dst+16*i+8+2*h,2)}")
        for h in range(2): A(f"v_pk_add_f32 {vr(dst+2*h,2)}, {vr(dst+2*h,2)}, {vr(dst+16+2*h,2)}")
    def x1_from(S):
        for i in range(4): rnd(g, S+i)
        for i in range(4): A(f"v_mul_f32 v{S+i}, v{S+i}, v{20+i}")
        for i in range(4): rnd(g, S+i)
        for i in range(4): A(f"v_add_f32 v{16+i}, v{16+i}, v{S+i}")
        for i in range(4): rnd(g, 16+i)
    TSL = opts.get("tsl", 0)
    def gather(n, load, raw, tmp, name, depth, gap, fin, msk=20, first=None):
        for i in range(n): A(f"s_mov_b64 s[{msk+2*i}:{msk+2*i+1}], {first[i] if first else -1}")
        def rnd_():
            for i in range(n):
                A(f"s_mov_b64 exec, s[{msk+2*i}:{msk+2*i+1}]")
                load(i, raw + 4*i)
            A("s_mov_b64 exec, -1")
        rnd_()
        A("s_waitcnt vmcnt(0)")
        A("s_mov_b32 s70, 0")
        A(f"s_branch {name}c")
        g.lab(name)
        rnd_()
        if gap: A(f"s_sleep {gap}")
        A(f"s_waitcnt vmcnt({n*(depth-1)})")
        g.lab(name + "c")
        for k in range(4*n): A(f"v_xor_b32 v{tmp+k}, s{TB+k%4}, v{raw+k}")
        for i in range(n): A(f"v_or3_b32 v{28+i}, v{tmp+4*i}, v{tmp+4*i+1}, v{tmp+4*i+2}")
        for i in range(n): A(f"v_or_b32 v{28+i}, v{28+i}, v{tmp+4*i+3}")
        for i in range(n): A(f"v_cmp_ne_u32_sdwa s[{msk+2*i}:{msk+2*i+1}], v{28+i}, v38 src0_sel:BYTE_0 src1_sel:DWORD")
        fin()
        A(f"s_mov_b64 vcc, s[{msk}:{msk+1}]")
        for i in range(1, n): A(f"s_or_b64 vcc, vcc, s[{msk+2*i}:{msk+2*i+1}]")
        for i in range(n): A(f"s_or_b32 s{msk+2*i}, s{msk+2*i}, 1")
        spin_tail(g, name, name + "ok", 0)
    def wo_fin():
        for i in range(12): A(f"v_or_b32 v{VA+32+i}, 0x80, v{VA+32+i}")
        for h in range(2): A(f"v_pk_add_f32 {vr(16+2*h,2)}, {vr(VA+32+2*h,2)}, {vr(VA+36+2*h,2)}")
        for h in range(2): A(f"v_pk_add_f32 {vr(16+2*h,2)}, {vr(16+2*h,2)}, {vr(VA+40+2*h,2)}")
    gather(3, lambda i, r: A(f"global_load_dwordx4 {vr(r,4)}, v15, s[42:43] offset:{512*i} sc1"), VA+48, VA+32, "L_wo_",
           opts.get("wpipe", 1), opts.get("wgap", 0), wo_fin)
    A("v_cvt_pk_bf16_f32 v8, v16, v17")
    A("v_cvt_pk_bf16_f32 v9, v18, v19")
    g.stamp(7)
    A(f"ds_write_b64 v12, v[8:9] offset:{TA.ACT}")
    NSPEC = opts.get("nspec", 4)
    gemv(g, 16, 14, 8, 12, 3, NSPEC)
    for i in range(4): A(f"v_bfi_b32 v{8+i}, v36, s{TB+i}, v{8+i}")
    A(f"s_mov_b32 exec_lo, 0x{((1 << 2*AREP) - 1) * 0x10001:08x}"); A("s_mov_b32 exec_hi, exec_lo")
    A("global_store_dwordx4 v13, v[8:11], s[42:43] sc1")
    g.stamp(2)
    go(0)
    A("s_branch L_fin")

    PG = VA + 32
    def pre_gather(offs):
        n = len(offs)
        l = g.uniq("pg"); e = g.uniq("pge")
        A("global_load_dwordx2 v[8:9], v37, s[16:17]")
        A("s_mov_b32 s70, 0")
        g.lab(l)
        for i, o in enumerate(offs):
            if -4096 <= o < 4096: A(f"global_load_dwordx4 {vr(PG+4*i,4)}, v39, s[42:43] offset:{o} sc1")
            else:
                A(f"v_add_u32 v3, {o}, v39")
                A(f"global_load_dwordx4 {vr(PG+4*i,4)}, v3, s[42:43] sc1")
        A("s_waitcnt vmcnt(0)")
        A("s_mov_b64 vcc, 0")
        for i in range(2 * n):
            A(f"v_cmp_ne_u32 s[68:69], s{ST}, v{PG+1+2*i}")
            A("s_or_b64 vcc, vcc, s[68:69]")
        spin_tail(g, l, e, 8)
    adr = [15, 4, 0, 36]
    def ap_addrs():
        for p in range(1, 4): A(f"v_add_u32 v{adr[p]}, {16384*p}, v15")
    def ap_load(i): A(f"global_load_dwordx4 {vr(VA+4*i,4)}, v{adr[i>>1]}, s[42:43] offset:{-4096 if i % 2 == 0 else 0} sc1")

    g.T = TB_
    g.lab("L_r_mod")
    A("global_load_dwordx2 v[14:15], v37, s[34:35]")
    srd(g, 44, 36, 512*6144)
    def mod_tile(first):
        A("s_lshl_b32 s48, s61, 7")
        A("s_lshl_b32 s58, s61, 9")
        A(f"s_add_u32 s58, s58, {WS_MA if first else WS_MOD}")
        dma_tile64(g, 6144, WFL, 0 if first else opts.get("PB", 6))
        if first:
            go(1)
            table()
            tag()
            A("s_waitcnt vmcnt(16)")
            mod_act()
        line_out_addr(13)
        if first:
            A("v_bfe_u32 v3, v1, 1, 3")
            A("v_lshl_add_u32 v13, v3, 13, v13")
        act_addr(g, 14, TB_.ACT, ACT_BS)
        tr64_addr(g)
        A("s_waitcnt vmcnt(0) lgkmcnt(0)")
        g.stamp(1 if first else 4)
        hsync(g, 9, 0 if first else 4)
        gemv_fused(g, 14, 8)
        pack_tagged()
        if not first:
            for x in EX8: A(x)
        A("global_store_dwordx4 v13, v[8:11], s[42:43] sc1")
        A("s_mov_b64 exec, -1")
        g.stamp(3 if first else 5)
        hsync(g, 9)
    def mod_act():
        unpack4(g, 16, 14)
        silu4(g, 16, 20)
        A("v_cvt_pk_bf16_f32 v14, v16, v17")
        A("v_cvt_pk_bf16_f32 v15, v18, v19")
        A(f"ds_write_b64 v12, v[14:15] offset:{TB_.ACT}")
    A("s_cmp_ge_u32 s60, 2"); A("s_cbranch_scc1 L_mod2")
    A("s_lshl1_add_u32 s61, s8, s60")
    mod_tile(True)
    A("s_branch L_mod3")
    g.lab("L_mod2")
    table()
    tag()
    A("s_waitcnt vmcnt(0)")
    mod_act()
    g.lab("L_mod3")
    EF = opts.get("ef", 0)
    def qfirst(bit=2):
        if WDL & bit: wait_cnt(g, f"ds_read_b32 v8, v38 offset:{L_ML+4}", 8, 1, 8)
        else: wait_cnt(g, f"ds_read_b32 v8, v38 offset:{L_CNA}", 8, 4 * opts.get("bh", 2), 4)
    wait_cnt(g, f"ds_read_b32 v8, v38 offset:{L_GO}", 8, 4, 4)
    A("s_and_b32 s61, s14, 0xff")
    A("s_cmp_ge_u32 s61, 48"); A("s_cbranch_scc1 L_r_f1")
    qfirst(4)
    A("s_and_b32 s61, s14, 0xff")
    g.lab("L_mod4")
    A("s_cmp_ge_u32 s61, 48"); A("s_cbranch_scc1 L_r_f1")
    mod_tile(False)
    A("s_lshr_b32 s61, s14, 24")
    A("s_or_b32 s14, s14, 0xff000000")
    A("s_branch L_mod4")

    g.lab("L_r_f1")
    A("s_bfe_u32 s61, s14, 0x80008")
    A("s_cmp_ge_u32 s61, 43"); A("s_cbranch_scc1 L_fin")
    A("s_lshl_b32 s48, s61, 6")
    A("s_lshl_b32 s58, s61, 7")
    A(f"s_add_u32 s58, s58, {WS_FP}")
    A("s_cmp_lt_u32 s5, 2")
    A("s_cselect_b32 s44, s28, s30")
    A("s_cselect_b32 s45, s29, s31")
    A(f"s_mov_b32 s46, {512*2752}")
    for h in range(2):
        A("s_and_b32 s54, s61, 1" if h == 0 else "s_andn2_b32 s54, 1, s61")
        A("v_lshrrev_b32 v2, 2, v1")
        A("v_mul_u32_u24 v2, 5504, v2")
        A("s_and_b32 s49, s5, 2")
        A("s_or_b32 s49, s49, s54")
        A("v_xor_b32 v3, s49, v1")
        A("v_and_b32 v3, 3, v3")
        A("v_lshl_add_u32 v2, v3, 4, v2")
        A("s_and_b32 s55, s5, 1")
        A(f"s_mul_i32 s49, s55, {256*2752}"); A("s_add_u32 s49, s49, s48")
        A("s_mul_i32 s50, s54, 2752"); A("s_add_u32 s49, s49, s50")
        A("s_lshr_b32 s50, s5, 1"); A("s_lshl_b32 s50, s50, 15")
        A("s_lshl_b32 s54, s54, 14"); A("s_add_u32 s50, s50, s54")
        A("s_lshl_b32 s55, s55, 13"); A("s_add_u32 s50, s50, s55")
        A(f"s_add_u32 s50, s50, {TB_.WT}")
        if opts.get("contig"):
            A("v_lshlrev_b32 v2, 4, v1")
            A("s_and_b32 s49, s5, 1"); A("s_lshl1_add_u32 s49, s61, s49"); A("s_lshl_b32 s49, s49, 14"); A(f"s_add_u32 s49, s49, {8192*h}")
            if h == 0: qfirst()
            dma_loop(g, 8, 1024, WFL, opts.get("P1", 4))
        elif h == 0:
            if EF: dma_loop(g, EF, 32*2752, "", 0)
            qfirst()
            if EF < 8: dma_loop(g, 8 - EF, 32*2752, "", opts.get("P1", 4))
        else: dma_loop(g, 8, 32*2752, WFL, opts.get("P1", 4))
    A("v_lshlrev_b32 v15, 4, v0")
    A(f"v_add_u32 v39, {WS_MOD+3*4096}, v15")
    A(f"s_and_b32 s59, s2, {AREP-1}"); A("s_lshl_b32 s59, s59, 16"); A(f"s_add_u32 s59, s59, {WS_AP+4096}")
    A("v_add_u32 v15, s59, v15")
    A("v_lshrrev_b32 v5, 2, v0")
    A("v_lshlrev_b32 v5, 3, v5")
    A(f"v_add_u32 v5, {TB_.RED}, v5")
    A("v_lshlrev_b32 v7, 3, v1")
    A(f"v_add_u32 v7, {TB_.RED}, v7")
    A("v_and_b32 v14, 7, v1")
    A(f"v_mul_u32_u24 v14, {ACT_BS}, v14")
    A("v_lshrrev_b32 v3, 4, v1")
    A("v_lshl_add_u32 v14, v3, 4, v14")
    A("v_bfe_u32 v6, v1, 2, 2")
    A("v_lshl_add_u32 v6, v3, 3, v6")
    A(f"v_mul_u32_u24 v6, {W2S}, v6")
    A("v_and_b32 v8, 3, v1")
    A("v_lshl_add_u32 v6, v8, 3, v6")
    A("s_lshl_b32 s49, s5, 8"); A(f"s_add_u32 s49, s49, {TB_.WT}")
    A("v_add_u32 v6, s49, v6")
    A("v_lshlrev_b32 v10, 3, v0")
    A(f"v_add_u32 v10, {L_HZ}, v10")
    A("v_mov_b32 v8, 0"); A("v_mov_b32 v9, 0")
    A("ds_write_b64 v10, v[8:9]")
    def f1_addrs():
        A("v_and_b32 v39, 1, v1")
        A("v_lshlrev_b32 v39, 6, v39")
        A(f"v_add_u32 v39, {L_HH}, v39")
        A("v_lshrrev_b32 v3, 4, v1")
        A("v_lshl_add_u32 v37, v3, 4, v39")
        A("v_bfe_u32 v3, v1, 1, 3")
        A("v_lshlrev_b32 v3, 7, v3")
        A("v_sub_u32 v37, v37, v3")
        A("v_bfe_u32 v3, v1, 4, 1")
        A("v_lshl_add_u32 v39, v3, 3, v39")
        A("v_lshrrev_b32 v3, 5, v1")
        A("v_lshl_add_u32 v39, v3, 2, v39")
        A("s_lshl_b32 s49, s5, 4")
        A("v_add_u32 v39, s49, v39")
    line_out_addr(13, 6, 17)
    A("v_bfe_u32 v3, v1, 1, 3")
    A("v_lshl_add_u32 v13, v3, 14, v13")
    A("v_lshrrev_b32 v2, 3, v1")
    A("v_lshlrev_b32 v2, 6, v2")
    A("v_bfe_u32 v3, v1, 2, 1")
    A("v_lshl_add_u32 v2, v3, 14, v2")
    A("v_and_b32 v8, 2, v1")
    A("v_or_b32 v3, v3, v8")
    A("v_xor_b32 v3, s5, v3")
    A("v_lshl_add_u32 v2, v3, 4, v2")
    A("v_lshl_add_u32 v2, v8, 14, v2")
    A("v_and_b32 v3, 1, v1")
    A("v_lshl_add_u32 v2, v3, 3, v2")
    A(f"v_add_u32 v2, {TB_.WT}, v2")
    A("s_waitcnt vmcnt(0)")
    hsync(g, 9, 4)
    tr_reads(g, 16, 1024, 512)
    hsync(g, 9)
    srd(g, 44, 32, 1376*1024)
    A("v_lshlrev_b32 v2, 4, v1")
    A("s_lshl2_add_u32 s49, s61, s5"); A("s_lshl_b32 s49, s49, 13")
    A(f"s_mul_i32 s50, s5, {8*W2S}")
    A(f"s_add_u32 s50, s50, {TB_.WT}")
    dma_loop(g, 8, 1024, WFL, opts.get("P2", 4), W2S)
    tag_bytes()
    g.stamp(6)
    if opts.get("notail"): A("s_branch L_fin")
    ap_addrs()
    pre_gather([-4096, 0, 4096])
    f1_addrs()
    unpack4(g, 16, 8)
    unpack4(g, 20, PG, 2)
    unpack4(g, 28, PG+8, 2)
    for i in range(4): A(f"v_add_f32 v{28+i}, 1.0, v{28+i}")
    A("v_cvt_pk_bf16_f32 v8, v28, v29"); A("v_cvt_pk_bf16_f32 v9, v30, v31")
    A(f"v_mov_b32 v{PG+5}, v{PG+6}")
    A(f"ds_write_b64 v12, v[8:9] offset:{TB_.ACT+2*ACT_BS}")
    A(f"ds_write_b64 v12, {vr(PG+4,2)} offset:{TB_.ACT+4*ACT_BS}")
    for i in range(4): rnd(g, 28+i)
    for i in range(4): A(f"v_mul_f32 v{24+i}, v{20+i}, v{28+i}")
    for i in range(4): A(f"v_mul_f32 v{28+i}, v{16+i}, v{28+i}")
    A("s_waitcnt lgkmcnt(0)")
    A("s_waitcnt vmcnt(0)")
    EARLY = opts.get("aearly", 0)
    wait_cnt(g, f"ds_read_b32 v8, v38 offset:{L_CNA if EARLY else L_GO}", 8, opts.get("acn", 16) if EARLY else 8, 2)
    if opts.get("adel", 0): A(f"s_sleep {opts['adel']}")
    g.stamp(9)
    S = VA + 32
    A("s_mov_b32 s70, 0")
    A("s_movk_i32 s71, 0xff")
    A("s_mov_b32 s63, s71")
    if EARLY: A("s_bitset0_b32 s63, s8")
    A("s_branch L_f1_l")
    g.lab("L_f1_p")
    if opts.get("agap", 0): A(f"s_sleep {opts['agap']}")
    A("s_add_u32 s70, s70, 1")
    A(f"s_cmp_ge_u32 s70, {SPIN_MAX}")
    A("s_cbranch_scc1 L_f1_ok")
    A("s_mov_b32 s63, s71")
    g.lab("L_f1_l")
    for i in range(8):
        l = g.uniq("fl")
        A(f"s_bitcmp1_b32 s63, {i}"); A(f"s_cbranch_scc0 {l}")
        ap_load(i)
        g.lab(l)
    A("s_waitcnt vmcnt(0)")
    for i in range(8):
        l = g.uniq("fc")
        A(f"s_bitcmp1_b32 s63, {i}"); A(f"s_cbranch_scc0 {l}")
        B_ = VA + 4 * i
        for k in range(4): A(f"v_xor_b32 v{B_+k}, s{TB+k}, v{B_+k}")
        A(f"v_or3_b32 v8, v{B_}, v{B_+1}, v{B_+2}")
        A(f"v_or_b32 v8, v8, v{B_+3}")
        A("v_cmp_ne_u32_sdwa vcc, v8, v38 src0_sel:BYTE_0 src1_sel:DWORD")
        A("s_cmp_lg_u64 vcc, 0"); A(f"s_cbranch_scc1 {l}")
        A(f"s_bitset0_b32 s71, {i}")
        g.lab(l)
    A("s_cmp_lg_u32 s71, 0")
    A("s_cbranch_scc1 L_f1_p")
    g.lab("L_f1_ok")
    sum8p(VA, S)
    g.stamp(7)
    for h in range(2): A(f"v_pk_fma_f32 {vr(8+2*h,2)}, {vr(S+2*h,2)}, {vr(24+2*h,2)}, {vr(28+2*h,2)}")
    A("v_cvt_pk_bf16_f32 v8, v8, v9")
    A("v_cvt_pk_bf16_f32 v9, v10, v11")
    A(f"ds_write_b64 v12, v[8:9] offset:{TB_.ACT}")
    for h in range(2): A(f"v_pk_fma_f32 {vr(16+2*h,2)}, {vr(S+2*h,2)}, {vr(20+2*h,2)}, {vr(16+2*h,2)}")
    x = 16
    dpp = lambda r, mod: f"v_add_f32_dpp v{r}, v{r}, v{r} {mod} row_mask:0xf bank_mask:0xf"
    for t in (f"v_add_f32 v24, v{x}, v{x+1}", f"v_mul_f32 v25, v{x}, v{x}", f"v_add_f32 v26, v{x+2}, v{x+3}", f"v_mul_f32 v27, v{x+2}, v{x+2}",
              f"v_fmac_f32 v25, v{x+1}, v{x+1}", f"v_fmac_f32 v27, v{x+3}, v{x+3}", "v_pk_add_f32 v[24:25], v[24:25], v[26:27]", "s_nop 1",
              dpp(24, "quad_perm:[1,0,3,2]"), dpp(25, "quad_perm:[1,0,3,2]"), "s_nop 0",
              dpp(24, "quad_perm:[2,3,0,1]"), dpp(25, "quad_perm:[2,3,0,1]")): A(t)
    A("ds_write_b64 v5, v[24:25]")
    hsync(g, 10, 0, [f"ds_read_b128 {vr(S+4*m,4)}, v14 offset:{TB_.ACT+64*m}" for m in range(min(NSPEC, 4))])
    DF = 32
    q = []
    def rd(m): A(f"ds_read_b128 {vr(S+4*(m%8),4)}, v14 offset:{TB_.ACT+64*m}"); q.append(("r", m))
    def need(op):
        i = q.index(op); A(f"s_waitcnt lgkmcnt({len(q)-1-i})"); del q[:i+1]
    def w2rd(c):
        for h in range(2): A(f"ds_read_b64_tr_b16 {vr(VW+4*c+2*h,2)}, v6 offset:{32*c+4*h*W2S}"); q.append(("w", c, h))
    for m in range(4):
        if m < NSPEC: q.append(("r", m))
        else: rd(m)
    A("ds_read_b64 v[20:21], v7"); q.append(("s",))
    for m in range(4, 8): rd(m)
    fill = {4: [dpp(20, "quad_perm:[2,3,0,1]"), dpp(21, "quad_perm:[2,3,0,1]")],
            5: [dpp(20, "row_ror:4"), dpp(21, "row_ror:4")],
            6: [dpp(20, "row_ror:8"), dpp(21, "row_ror:8")],
            7: ["v_mov_b32 v22, v20", "v_mov_b32 v23, v21"],
            8: ["v_permlane16_swap_b32 v22, v20", "v_permlane16_swap_b32 v23, v21"],
            9: ["v_pk_add_f32 v[20:21], v[20:21], v[22:23]", "v_mov_b32 v22, v20", "v_mov_b32 v23, v21"],
            10: ["v_permlane32_swap_b32 v22, v20", "v_permlane32_swap_b32 v23, v21"],
            11: ["v_pk_add_f32 v[20:21], v[20:21], v[22:23]", f"v_mul_f32 v20, 0x{f2u(-1/512):08x}, v20"],
            12: [f"v_mul_f32 v21, 0x{f2u(1/512):08x}, v21", "v_fma_f32 v21, -v20, v20, v21"],
            13: ["v_max_f32 v21, 0, v21", f"v_add_f32 v21, 0x{EPS:08x}, v21"],
            14: ["v_rsq_f32 v21, v21"]}
    for m in range(16):
        if ("r", m) in q: need(("r", m))
        else: A("s_nop 0")
        c = "0" if m == 0 else vr(DF, 4)
        A(f"v_mfma_f32_16x16x32_bf16 {vr(DF,4)}, {vr(VW+4*m,4)}, {vr(S+4*(m%8),4)}, {c}")
        if 1 <= m <= 8: rd(7 + m)
        for t in fill.get(m, []): A(t)
    for c in range(4): w2rd(c)
    for i in range(4): A(f"v_fmac_f32_dpp v{DF+i}, v{DF+i}, v20 row_shl:2 row_mask:0xf bank_mask:0x1")
    for i in range(4): A(f"v_mul_f32 v{8+i}, v{DF+i}, v21")
    for i in range(4): A(f"v_add_f32_dpp v{8+i}, v{DF+i}, v{8+i} row_shl:4 row_mask:0xf bank_mask:0xf")
    A("s_waitcnt lgkmcnt(4)")
    for c in range(4, 8): w2rd(c)
    A("v_permlane32_swap_b32 v8, v10")
    A("v_permlane32_swap_b32 v9, v11")
    for i in range(2): A(f"v_mul_f32 v{20+i}, 0x{LOG2E ^ 0x80000000:08x}, v{8+i}")
    for i in range(2): A(f"v_exp_f32 v{20+i}, v{20+i}")
    for i in range(2): A(f"v_mul_f32 v{8+i}, v{8+i}, v{10+i}")
    for i in range(2): A(f"v_add_f32 v{20+i}, 1.0, v{20+i}")
    for i in range(2): A(f"v_rcp_f32 v{20+i}, v{20+i}")
    for x in EX8: A(x)
    for i in range(2): A(f"v_mul_f32 v{8+i}, v{8+i}, v{20+i}")
    A("v_cvt_pk_bf16_f32 v8, v8, v9")
    A("ds_write_b32 v39, v8")
    A("s_mov_b64 exec, -1")
    rds = [f"ds_read_b128 {vr(S+4*c,4)}, v37 offset:{128*c}" for c in range(8)]
    A("s_waitcnt lgkmcnt(4)")
    hsync(g, 10, 0, rds[:NSPEC])
    for r in rds[NSPEC:]: A(r)
    A("v_mov_b32 v3, 0xff")
    for c in range(8):
        A(f"s_waitcnt lgkmcnt({7-c})")
        A(f"v_mfma_f32_16x16x32_bf16 v[8:11], {vr(VW+4*c,4)}, {vr(S+4*c,4)}, {'0' if c == 0 else 'v[8:11]'}")
    A("s_nop 7")
    for i in range(4): A(f"v_bfi_b32 v{8+i}, v3, s{TB+i}, v{8+i}")
    A("global_store_dwordx4 v13, v[8:11], s[42:43] sc1")
    g.stamp(2)
    A("s_branch L_fin")

    g.lab("L_r_f2")
    if opts.get("notail"): A("s_branch L_fin")
    A("v_bfe_u32 v12, v1, 2, 1")
    A("v_and_b32 v14, 3, v1")
    A("s_lshl_b32 s49, s61, 5")
    A("v_lshl_add_u32 v3, v14, 3, s49")
    A("v_lshl_add_u32 v37, v12, 10, v3")
    A("v_and_b32 v15, 7, v1")
    A("s_lshl_b32 s49, s61, 7")
    A("v_lshl_add_u32 v15, v15, 4, s49")
    A(f"v_add_u32 v39, {WS_MOD+3*4096}, v15")
    A("v_bfe_u32 v3, v1, 3, 1")
    A("v_lshl_add_u32 v15, v3, 12, v15")
    A("v_lshrrev_b32 v3, 4, v1")
    A("v_lshl_add_u32 v15, v3, 14, v15")
    A(f"s_and_b32 s59, s2, {AREP-1}"); A("s_lshl_b32 s59, s59, 16"); A(f"s_add_u32 s59, s59, {WS_AP}")
    A("v_add_u32 v15, s59, v15")
    A("s_lshl_b32 s49, s61, 14"); A(f"s_add_u32 s49, s49, {WS_FP+2048}")
    A("v_lshl_add_u32 v36, v1, 4, s49")

    A("global_load_dword v11, v37, s[38:39]")
    if PT & 4:
        A("s_lshl_b32 s49, s61, 14"); A(f"s_add_u32 s49, s49, {WS_FP}")
        A("v_min_u32 v10, 42, v1"); A("v_lshl_add_u32 v10, v10, 7, s49")
        A("global_load_dword v11, v10, s[42:43] sc1")
        A("s_lshl_b32 s49, s61, 7"); A(f"s_add_u32 s49, s49, {WS_DN}")
        A("v_mov_b32 v10, s49")
        A("global_load_dword v11, v10, s[42:43] sc1")
    pre_gather([-4096, 8192])
    unpack4(g, 16, 8)
    unpack4(g, 20, PG, 2)
    unpack4(g, 24, PG+4, 2)
    wait_cnt(g, f"ds_read_b32 v8, v38 offset:{L_GO}", 8, 8, 2)
    if opts.get("rdel", 0): A(f"s_sleep {opts['rdel']}")
    g.stamp(9)
    def src_sum(r):
        A("s_nop 1")
        for i in range(4): A(f"v_add_f32_dpp v{r+i}, v{r+i}, v{r+i} row_ror:8 row_mask:0xf bank_mask:0xf")
        for sw in ("v_permlane16_swap_b32", "v_permlane32_swap_b32"):
            for i in range(4): A(f"v_mov_b32 v{r+4+i}, v{r+i}")
            for i in range(4): A(f"{sw} v{r+4+i}, v{r+i}")
            for i in range(4): A(f"v_add_f32 v{r+i}, v{r+i}, v{r+4+i}")
    A("s_mov_b32 s70, 0")
    g.lab("L_f2_a")
    A(f"global_load_dwordx4 {vr(S,4)}, v15, s[42:43] sc1")
    A("s_waitcnt vmcnt(0)")
    for k in range(4): A(f"v_xor_b32 v{S+k}, s{TB+k}, v{S+k}")
    A(f"v_or3_b32 v3, v{S}, v{S+1}, v{S+2}")
    A(f"v_or_b32 v3, v3, v{S+3}")
    A("v_lshlrev_b32 v3, 24, v3")
    A("v_cmp_ne_u32 vcc, 0, v3")
    spin_tail(g, "L_f2_a", "L_f2_ad", 4)
    A("s_cmp_lg_u32 s61, 0")
    A("s_cbranch_scc1 L_f2_e")
    A(f"v_mov_b32 v10, s{ST}")
    A("s_mov_b64 exec, 1")
    A(f"global_store_dword v38, v10, s[42:43] offset:{WS_E} sc1")
    A("s_mov_b64 exec, -1")
    g.lab("L_f2_e")
    src_sum(S)
    x1_from(S)
    if opts.get("fdel", 0): A(f"s_sleep {opts['fdel']}")
    for i in range(4): A(f"v_mov_b32 v{VA+32+20+i}, s{TB+i}")
    def f2_fin():
        for p in range(3):
            for h in range(2): A(f"v_pk_add_f32 {vr(VA+8*p+2*h,2)}, {vr(VA+8*p+2*h,2)}, {vr(VA+8*p+4+2*h,2)}")
        for p in (1, 2):
            for h in range(2): A(f"v_pk_add_f32 {vr(VA+2*h,2)}, {vr(VA+2*h,2)}, {vr(VA+8*p+2*h,2)}")
    gather(6, lambda i, r: A(f"global_load_dwordx4 {vr(r,4)}, v36, s[42:43] offset:{1024*i-2048} sc1"), VA+32, VA, "L_f2_p",
           opts.get("fpipe", 1), opts.get("fgap", 0), f2_fin, 20, [-1]*5 + ["0xffffff"])
    g.stamp(7)
    src_sum(VA)
    for i in range(4): rnd(g, VA+i)
    for i in range(4): A(f"v_mul_f32 v{VA+i}, v{VA+i}, v{24+i}")
    for i in range(4): rnd(g, VA+i)
    for i in range(4): A(f"v_add_f32 v{8+i}, v{VA+i}, v{16+i}")
    A("v_cvt_pk_bf16_f32 v8, v8, v9")
    A("v_cvt_pk_bf16_f32 v9, v10, v11")
    A("s_mov_b64 exec, 0xff")
    A("global_store_dwordx2 v37, v[8:9], s[38:39]" + ("" if opts.get("noosc") else " sc1"))
    A("s_mov_b64 exec, 1")
    A(f"v_mov_b32 v10, s{ST}")
    A("s_lshl_b32 s49, s61, 7"); A(f"s_add_u32 s49, s49, {WS_DN}")
    A("v_mov_b32 v11, s49")
    if not opts.get("nodn"): A("global_store_dword v11, v10, s[42:43] sc1")
    g.stamp(2)

    g.lab("L_fin")
    if opts.get("stamps"):
        A("s_waitcnt vmcnt(0)")
        g.stamp(8)
        dump_all(g, [SLOC])
    g.lab("L_end")
    A("s_endpgm")
    g.L.append(".p2align 7")
    g.lab("L_table")
    J = jobs()
    for j in range(8):
        A(".long " + ", ".join(f"0x{J[x, j][0] | J[x, j][1] << 8 | J[x, j][2] << 16 | J[x, j][3] << 24:08x}" for x in range(8)))
    g.lab("L_touch")
    odd = [1, 3, 5, 7]; evn = [0, 2, 4, 6]
    ch = [(0, t, c) for c in odd + evn for t in (0, 1)] + [(1, t, c) for c in evn + odd for t in (0, 1)] + [(1, 3, c) for c in odd + evn]
    ch += [(1, t, c) for c in odd for t in (2, 4, 5, 6, 7)] + [(1, t, c) for c in evn for t in (2, 4, 5, 6, 7)]
    ch = ch[:opts.get("nch", 60)]
    slots = [idx for idx in range(32) if idx & 3 != 3]
    TT = {sl: 0x80808080 for sl in range(32)}
    for n, (mx, t, c) in enumerate(ch):
        k, sl = divmod(n, len(slots))
        if k < NT: TT[slots[sl]] = TT[slots[sl]] & ~(0xff << 8*k) | (c | t << 3 | mx << 6) << 8*k
    for i in range(0, 32, 8):
        A(".long " + ", ".join(f"0x{TT[i+a]:08x}" for a in range(8)))
    g.L.append(f'''.section .rodata,"a"
.p2align 6
.amdhsa_kernel {KNAME}
  .amdhsa_next_free_vgpr 168
  .amdhsa_next_free_sgpr 102
  .amdhsa_accum_offset 168
  .amdhsa_group_segment_fixed_size 0
  .amdhsa_kernarg_size 112
  .amdhsa_user_sgpr_count 2
  .amdhsa_user_sgpr_kernarg_segment_ptr 1
  .amdhsa_system_sgpr_workgroup_id_x 1
.end_amdhsa_kernel''')
    opts["_jobs"] = J
    return "\n".join(g.L) + "\n"

if __name__ == "__main__":
    import os
    here = os.path.dirname(os.path.abspath(__file__))
    opts = {"ref": os.path.join(here, "..", KNAME[:-7] + ".s.ref")}
    out = sys.argv[1]
    for kv in sys.argv[2:]:
        k, v = kv.split("=")
        try: v = int(v)
        except ValueError:
            try: v = float(v)
            except ValueError: pass
        opts[k] = v
    open(out, "w").write(gen(opts))
```

```python
import sys, struct

KNAME = "adaLN_cond__sliding_block_cached__glu_gated_swiglu__decode_kernel"

def f2u(x): return struct.unpack("<I", struct.pack("<f", x))[0]
LOG2E = f2u(1.4426950408889634)
SCALE = f2u(128 ** -0.5)
EPS = f2u(1e-5)
ZERO_GAP = 93.0

WS_E   = 0x00000
WS_HDR = 0x00400
WS_DN  = 0x07000
WS_MOD = 0x01000
WS_Q   = 0x08000
WS_S1  = 0x10000
WS_S2  = 0x18000
WS_OP  = 0x20000
WS_AP  = 0x200000
WS_FP  = 0x180000
WS_OQ  = 0x80000
WS_MA  = 0xe0000
R2     = WS_OQ - WS_OP
WS_STAMP = 0x100000
ACT_BS = 1056
NS_   = 11
L_QV  = 0
L_ML  = L_QV + 256
L_GO  = L_ML + 8
L_SCN = L_ML + 16
L_MX  = L_ML + 20
L_ECN = L_ML + 24
L_E0  = L_ML + 28
L_RM  = L_ML + 32
L_SN  = L_ML + 48
L_TK  = L_ML + 52
L_CNA = L_ML + 56
L_CNB = L_ML + 60
L_E1  = L_ML + 64
L_S8  = L_ML + 128
L_S4  = L_S8 + 64
L_ST  = L_S4 + 64
L_OP  = L_ST + 512
L_OP1 = L_OP + 512 * NS_
L_VX  = L_OP1 + 512 * NS_
class Team: pass
TA, TB_ = Team(), Team()
TA.CNT, TB_.CNT = L_CNA, L_CNB
TA.ACT = L_OP
TA.RED = TA.ACT + 2 * ACT_BS
TB_.ACT = TA.RED + 64
TB_.RED = TB_.ACT + 6 * ACT_BS
L_HZ  = TB_.RED + 512
L_HH  = L_HZ + 7 * 128
TA.WT = (L_HZ + 2048 + 1023) // 1024 * 1024
TB_.WT = TA.WT + 65536
W2S   = 1024 + 32
LDS_BYTES = TB_.WT + 65536
assert LDS_BYTES <= 163840 and L_VX + 2048 * NS_ <= LDS_BYTES and L_ST + 128 <= L_S4 + 512
assert all(x % 16 == 0 for x in (L_S8, L_ST, L_OP, L_VX, TA.ACT, TA.RED, TB_.ACT, TB_.RED, L_HZ, L_E1))

def jobs():
    J = {}; nf = 0
    for x in range(8):
        six = x in (1, 3, 7)
        mb = sorted(range(16 + 4 * x, 20 + 4 * x), key=lambda t: t % 8 != 3)
        own = {0: mb[0:2], 1: mb[2:4]} if six else {0: mb[0:1], 1: mb[1:2], 2: mb[2:4]}
        for j in range(8):
            m = own.get(j, []) + [255, 255]
            f = 255
            if j >= (2 if six else 3): f = nf; nf += 1
            J[x, j] = (m[0], f, 4 * x + (j & 3) if j in (0, 1, 2, 7) else 255, m[1])
    assert nf == 43 and sorted(v[2] for v in J.values())[:32] == list(range(32))
    return J
SPIN_MAX = 1 << 18
ST, SLOC, SXCC = 74, 75, 76

NOTES = {
    "L_stream": "streaming waves: K (1 KB per load, bounded number in flight), then the V rows of the keys on the row list",
    "L_work": "background work of a streaming wave between two K loads: scores of the rows that have landed, first row list",
    "L_ks": "one K step: background work, then wait until few enough loads are in flight",
    "L_vs": "one V step",
    "L_x1": "second half of the scores, max / sum of this wave, the rows near the top first, more rows for the list",
    "L_snap": "the rows near the top give the preliminary partial output",
    "L_hand": "list used up: with the true row max, add every remaining key whose weight is not exactly zero",
    "L_epi": "all rows consumed: reduce over the lanes, leave the final partial output in LDS",
    "L_pub": "wave 0 of a streaming workgroup: LDS set-up, exchange of the softmax statistics, preliminary output",
    "L_serv": "service workgroup",
    "L_touch": "per streaming workgroup: pieces of the first weights to pull into L2",
    "L_chk": "third streaming workgroup: final partial output; the head's final output against the preliminary one, bit by bit",
    "L_slow": "fallback: everything behind the attention again, from the final outputs, by this wave alone",
    "L_team": "service workgroup: two teams of four waves, MFMA mat-vecs on weight tiles staged by LDS-DMA",
    "L_r_q": "team A: LayerNorm + modulation + 64 columns of h @ wq",
    "L_r_wo": "team A: 512 x 64 tile of wo",
    "L_r_mod": "team B: 64 columns of silu(c) @ w_mod (shift / scale of the first block first)",
    "L_r_f1": "team B: 32 columns of w1 and w3, SwiGLU, their 32 rows of w2",
    "L_r_f2": "service workgroup, wave 1: 16 output columns: residuals, sum of the down-projection partials; advances the epoch word",
    "L_table": "per service workgroup: modulation tile | gate/up tile << 8 | output tile << 16",
}
class G:
    def __init__(s, opts):
        s.L = []; s.o = opts; s.n = 0; s.T = None
    def A(s, t): s.L.append("  " + t)
    def lab(s, t):
        if t in NOTES: s.L.append("; ---- " + NOTES[t])
        s.L.append(t + ":")
    def C(s, t): s.L.append("; ---- " + t)
    def uniq(s, p): s.n += 1; return f"L_{p}_{s.n}"
    def stamp(s, idx, lvl=1):
        m = s.o.get("stamps", 0)
        if m == 3 and lvl != 3 and idx not in (6,): return
        if m and (m == lvl or (idx in (0, 6, 8) and lvl == 1)):
            s.A(f"s_memrealtime s[{80+2*idx}:{81+2*idx}]")

def vr(a, n): return f"v[{a}:{a+n-1}]"
def rnd(g, d, s=None): g.A(f"v_cvt_pk_bf16_f32 v{d}, 0, v{s if s is not None else d}")

def spin_tail(g, l, e, sleep, mult=1):
    A = g.A
    A("s_cmp_eq_u64 vcc, 0")
    A(f"s_cbranch_scc1 {e}")
    if sleep: A(f"s_sleep {sleep}")
    A("s_add_u32 s70, s70, 1")
    A(f"s_cmp_lt_u32 s70, {SPIN_MAX*mult}")
    A(f"s_cbranch_scc1 {l}")
    g.lab(e)

def chk_sentinel(g, regs, tmp):
    A = g.A
    rs = list(regs)
    if len(rs) == 1:
        A(f"v_cmp_eq_u32 vcc, -1, v{rs[0]}")
        return
    if len(rs) == 2:
        A(f"v_max_u32 v{tmp}, v{rs[0]}, v{rs[1]}"); rs = []
    else:
        A(f"v_max3_u32 v{tmp}, v{rs[0]}, v{rs[1]}, v{rs[2]}"); rs = rs[3:]
    while len(rs) >= 2:
        A(f"v_max3_u32 v{tmp}, v{tmp}, v{rs[0]}, v{rs[1]}"); rs = rs[2:]
    if rs: A(f"v_max_u32 v{tmp}, v{tmp}, v{rs[0]}")
    A(f"v_cmp_eq_u32 vcc, -1, v{tmp}")

def poll_lds(g, loads, regs, tmp, sleep):
    A = g.A
    l = g.uniq("pl"); e = g.uniq("pld")
    A("s_mov_b32 s70, 0")
    g.lab(l)
    for x in loads: A(x)
    A("s_waitcnt lgkmcnt(0)")
    chk_sentinel(g, regs, tmp)
    spin_tail(g, l, e, sleep, 4)

def wait_cnt(g, load, reg, target, sleep, mask=None):
    A = g.A
    l = g.uniq("sn"); e = g.uniq("snd")
    A("s_mov_b32 s70, 0")
    g.lab(l)
    A(load)
    A("s_waitcnt lgkmcnt(0)")
    if mask: A(f"v_and_b32 v{reg}, 0x{mask:x}, v{reg}")
    A(f"v_cmp_gt_u32 vcc, 0x{target:x}, v{reg}")
    spin_tail(g, l, e, sleep, 8)

def pub_local(g, ins):
    A = g.A
    l = g.uniq("pf"); e = g.uniq("pe")
    A(f"s_cmp_eq_u32 s{SLOC}, 1")
    A(f"s_cbranch_scc0 {l}")
    A(ins)
    A(f"s_branch {e}")
    g.lab(l)
    A(ins + " sc1")
    g.lab(e)

def hs_signal(g, vt2):
    A = g.A
    A(f"v_mov_b32 v{vt2}, 1")
    A("s_mov_b64 exec, 1")
    A(f"ds_add_u32 v38, v{vt2} offset:{g.T.CNT}")
    A("s_mov_b64 exec, -1")
def hs_wait(g, target, vt2, sleep=1):
    wait_cnt(g, f"ds_read_b32 v{vt2}, v38 offset:{g.T.CNT}", vt2, target, sleep)

STG = 77
def hsync(g, vt, sleep=0, reads=()):
    A = g.A
    l = g.uniq("hy"); e = g.uniq("hyd")
    A(f"s_add_u32 s{STG}, s{STG}, 4")
    hs_signal(g, vt)
    A("s_mov_b32 s70, 0")
    g.lab(l)
    A(f"ds_read_b32 v{vt}, v38 offset:{g.T.CNT}")
    for r in reads: A(r)
    A(f"s_waitcnt lgkmcnt({len(reads)})")
    A(f"v_cmp_gt_u32 vcc, s{STG}, v{vt}")
    A("s_cmp_eq_u64 vcc, 0")
    A(f"s_cbranch_scc1 {e}")
    if reads: A("s_waitcnt lgkmcnt(0)")
    if sleep: A(f"s_sleep {sleep}")
    A("s_add_u32 s70, s70, 1")
    A(f"s_cmp_lt_u32 s70, {SPIN_MAX*8}")
    A(f"s_cbranch_scc1 {l}")
    g.lab(e)

OPA = 2 * NS_ + 12
def op_prep(g, R, zero, off, scales=True):
    A = g.A
    SCB = R + 2 * NS_; AD = R + OPA
    if scales:
        for i in range(3): A(f"ds_read_b128 {vr(SCB+4*i,4)}, v{zero} offset:{L_S8+16*i}")
    A(f"v_lshlrev_b32 v{AD+3}, 3, v1")
    A("s_lshl2_add_u32 s68, s6, s7")
    A("s_lshl_b32 s68, s68, 9"); A(f"s_add_u32 s68, s68, {WS_OP+off}")
    A(f"v_add_u32 v{AD}, s68, v{AD+3}")
    A(f"v_and_b32 v{AD+1}, 1, v1")
    A(f"v_lshlrev_b32 v{AD+1}, 4, v{AD+1}")
    A(f"v_lshrrev_b32 v{AD+1}, v{AD+1}, s{ST}")
    A(f"v_lshrrev_b32 v{AD+2}, 8, v{AD+1}")
def op_reads(lds, R): return [f"ds_read_b64 {vr(R+2*i,2)}, v{R+OPA+3} offset:{lds+512*i}" for i in range(NS_)]
def op_sum(g, R, local):
    A = g.A
    SCB = R + 2 * NS_; AD = R + OPA
    A("s_movk_i32 s69, 0xff")
    def sel(i): return f"op_sel:[0,{i&1},0] op_sel_hi:[1,{i&1},1]"
    for i in range(NS_):
        A(f"s_waitcnt lgkmcnt({NS_-1-i})")
        sp = vr(SCB + (i & ~1), 2); acc = vr(R + 2*(i & 1), 2)
        if i < 2: A(f"v_pk_mul_f32 {acc}, {vr(R+2*i,2)}, {sp} op_sel:[0,{i&1}] op_sel_hi:[1,{i&1}]")
        else: A(f"v_pk_fma_f32 {acc}, {vr(R+2*i,2)}, {sp}, {acc} {sel(i)}")
    A(f"v_pk_add_f32 {vr(R,2)}, {vr(R,2)}, {vr(R+2,2)}")
    A(f"v_bfi_b32 v{R}, s69, v{AD+1}, v{R}")
    A(f"v_bfi_b32 v{R+1}, s69, v{AD+2}, v{R+1}")
    if local: pub_local(g, f"global_store_dwordx2 v{AD}, {vr(R,2)}, s[42:43]")
    else: A(f"global_store_dwordx2 v{AD}, {vr(R,2)}, s[42:43] sc1")
def wait_then(g, off, target, reads, pre):
    A = g.A
    wait_cnt(g, f"ds_read_b32 v8, v38 offset:{off}", 8, pre, 1)
    l = g.uniq("wt"); e = g.uniq("wtd")
    A("s_mov_b32 s70, 0")
    g.lab(l)
    A(f"ds_read_b32 v8, v38 offset:{off}")
    for r in reads: A(r)
    A(f"s_waitcnt lgkmcnt({len(reads)})")
    A(f"v_cmp_gt_u32 vcc, 0x{target:x}, v8")
    A("s_cmp_eq_u64 vcc, 0")
    A(f"s_cbranch_scc1 {e}")
    A("s_waitcnt lgkmcnt(0)")
    A("s_add_u32 s70, s70, 1")
    A(f"s_cmp_lt_u32 s70, {SPIN_MAX*8}")
    A(f"s_cbranch_scc1 {l}")
    g.lab(e)

def dma_loop(g, n, step, flags, pace=0, lstep=1024):
    A = g.A
    l = g.uniq("dma"); e = g.uniq("dmae")
    if isinstance(n, int):
        A(f"s_add_u32 s51, s50, {n*lstep}")
    else:
        A(f"s_add_u32 s51, s50, {n}")
        A("s_cmp_lt_u32 s50, s51")
        A(f"s_cbranch_scc0 {e}")
    g.lab(l)
    A("s_mov_b32 m0, s50")
    A(f"s_add_u32 s50, s50, {lstep}")
    if not (g.o.get("nodma") and pace): A(f"buffer_load_dwordx4 v2, s[44:47], s49 offen {flags} lds")
    A(f"s_add_u32 s49, s49, {step}")
    if pace: A(f"s_waitcnt vmcnt({pace-1})")
    A("s_cmp_lt_u32 s50, s51")
    A(f"s_cbranch_scc1 {l}")
    g.lab(e)

VW, VA = 40, 104

def srd(g, d, base, nbytes):
    A = g.A
    A(f"s_mov_b32 s{d}, s{base}")
    A(f"s_mov_b32 s{d+1}, s{base+1}")
    A(f"s_mov_b32 s{d+2}, {nbytes}")
    A(f"s_mov_b32 s{d+3}, 0x20000")

def dma_tile64(g, stride, flags, pace=0):
    A = g.A
    if g.o.get("contig") and pace:
        if stride == 1024: A("s_lshl3_add_u32 s48, s8, s60"); A("s_lshl_b32 s48, s48, 16")
        else: A("s_lshl_b32 s48, s61, 16")
        stride = 128
    A("v_lshrrev_b32 v2, 3, v1")
    A("v_and_b32 v3, 6, v2")
    A("v_xor_b32 v3, v3, v1")
    A(f"v_mul_u32_u24 v2, {stride}, v2")
    A("v_and_b32 v3, 7, v3")
    A("v_lshl_add_u32 v2, v3, 4, v2")
    A(f"s_mul_i32 s49, s5, {128*stride}")
    A("s_lshl_b32 s50, s5, 14")
    A("s_add_u32 s49, s49, s48")
    A(f"s_add_u32 s50, s50, {g.T.WT}")
    dma_loop(g, 16, 8*stride, flags, pace)

def tr64_addr(g):
    A = g.A
    A("v_lshrrev_b32 v2, 2, v1")
    A("v_bfe_u32 v3, v1, 1, 1")
    A("s_lshl_b32 s49, s5, 1")
    A("v_or_b32 v3, s49, v3")
    A("v_and_b32 v10, 6, v2")
    A("v_xor_b32 v3, v3, v10")
    A("v_lshlrev_b32 v2, 7, v2")
    A("v_lshl_add_u32 v2, v3, 4, v2")
    A("v_and_b32 v3, 1, v1")
    A("v_lshl_add_u32 v2, v3, 3, v2")
    A(f"v_add_u32 v2, {g.T.WT}, v2")
def tr_reads(g, nk, mstep, hstep):
    A = g.A
    for m in range(nk):
        for h in range(2):
            A(f"ds_read_b64_tr_b16 {vr(VW+4*m+2*h,2)}, v2 offset:{m*mstep+h*hstep}")
        if m >= 5: A("s_waitcnt lgkmcnt(10)")
    A("s_waitcnt lgkmcnt(0)")
def tr_tile64(g):
    tr64_addr(g)
    tr_reads(g, 16, 4096, 2048)
def gemv_fused(g, vaddr, D):
    A = g.A
    def rd(m):
        for h in range(2):
            A(f"ds_read_b64_tr_b16 {vr(VW+4*m+2*h,2)}, v2 offset:{m*4096+h*2048}")
        A(f"ds_read_b128 {vr(VA+4*m,4)}, v{vaddr} offset:{64*m}")
    for m in range(5): rd(m)
    for m in range(16):
        A(f"s_waitcnt lgkmcnt({3*(min(m+5,16)-m-1)})")
        c = "0" if m == 0 else vr(D, 4)
        A(f"v_mfma_f32_16x16x32_bf16 {vr(D,4)}, {vr(VW+4*m,4)}, {vr(VA+4*m,4)}, {c}")
        if m + 5 < 16: rd(m + 5)
    A("s_nop 7")

def batch_reduce2(g, va, vb, ta, tb):
    A = g.A
    A("s_nop 0")
    for m in ("quad_perm:[1,0,3,2]", "quad_perm:[2,3,0,1]", "row_ror:8"):
        A(f"v_add_f32_dpp v{va}, v{va}, v{va} {m} row_mask:0xf bank_mask:0xf")
        A(f"v_add_f32_dpp v{vb}, v{vb}, v{vb} {m} row_mask:0xf bank_mask:0xf")
        A("s_nop 0")
    for sw in ("v_permlane16_swap_b32", "v_permlane32_swap_b32"):
        A(f"v_mov_b32 v{ta}, v{va}")
        A(f"v_mov_b32 v{tb}, v{vb}")
        A("s_nop 0")
        A(f"{sw} v{ta}, v{va}")
        A(f"{sw} v{tb}, v{vb}")
        A(f"v_add_f32 v{va}, v{va}, v{ta}")
        A(f"v_add_f32 v{vb}, v{vb}, v{tb}")

def ln_partial(g, x):
    A = g.A
    A(f"v_add_f32 v8, v{x}, v{x+1}"); A(f"v_mul_f32 v9, v{x}, v{x}")
    A(f"v_add_f32 v10, v{x+2}, v{x+3}"); A(f"v_mul_f32 v11, v{x+2}, v{x+2}")
    A(f"v_fmac_f32 v9, v{x+1}, v{x+1}"); A(f"v_fmac_f32 v11, v{x+3}, v{x+3}")
    A("v_add_f32 v8, v8, v10"); A("v_add_f32 v9, v9, v11")
    batch_reduce2(g, 8, 9, 10, 11)
    A("ds_write_b64 v5, v[8:9]")
def ln_apply(g, x, t):
    A = g.A
    A(f"ds_read_b128 {vr(t,4)}, v6")
    A(f"ds_read_b128 {vr(t+4,4)}, v6 offset:16")
    A("s_waitcnt lgkmcnt(0)")
    A(f"v_pk_add_f32 {vr(t,2)}, {vr(t,2)}, {vr(t+2,2)}")
    A(f"v_pk_add_f32 {vr(t+4,2)}, {vr(t+4,2)}, {vr(t+6,2)}")
    A(f"v_pk_add_f32 {vr(t,2)}, {vr(t,2)}, {vr(t+4,2)}")
    A(f"v_mul_f32 v8, 0x{f2u(1/512):08x}, v{t}")
    A(f"v_mul_f32 v9, 0x{f2u(1/512):08x}, v{t+1}")
    A("v_fma_f32 v9, -v8, v8, v9")
    rnd(g, 8)
    A("v_max_f32 v9, 0, v9")
    rnd(g, 9)
    for i in range(2): A(f"v_sub_f32 v{x+i}, v{x+i}, v8")
    A(f"v_add_f32 v9, 0x{EPS:08x}, v9")
    for i in range(2, 4): A(f"v_sub_f32 v{x+i}, v{x+i}, v8")
    rnd(g, 9)
    rnd(g, x)
    A("v_sqrt_f32 v9, v9")
    rnd(g, x+1)
    rnd(g, 9)
    rnd(g, x+2)
    A("v_rcp_f32 v9, v9")
    rnd(g, x+3)
    for i in range(4): A(f"v_mul_f32 v{x+i}, v{x+i}, v9")
    for i in range(4): rnd(g, x+i)

def act_addr(g, v, base, bstride):
    A = g.A
    A(f"v_and_b32 v{v}, 1, v1")
    A(f"v_mul_u32_u24 v{v}, {bstride}, v{v}")
    A(f"v_lshrrev_b32 v3, 4, v1")
    A(f"v_lshl_add_u32 v{v}, v3, 4, v{v}")
    if base: A(f"v_add_u32 v{v}, {base}, v{v}")

def gemv(g, nk, vaddr, D, ring=16, sync=None, nspec=4):
    A = g.A
    first = min(nk, 12, ring)
    rds = [f"ds_read_b128 {vr(VA+4*m,4)}, v{vaddr} offset:{64*m}" for m in range(first)]
    if sync is not None:
        hsync(g, sync, 0, rds[:nspec]); rds = rds[nspec:]
    for r in rds: A(r)
    issued = first
    for m in range(nk):
        A(f"s_waitcnt lgkmcnt({issued-m-1})")
        c = "0" if m == 0 else vr(D, 4)
        A(f"v_mfma_f32_16x16x32_bf16 {vr(D,4)}, {vr(VW+4*m,4)}, {vr(VA+4*(m%ring),4)}, {c}")
        if issued < nk and (ring >= nk or m >= 1):
            A(f"ds_read_b128 {vr(VA+4*(issued%ring),4)}, v{vaddr} offset:{64*issued}")
            issued += 1
    A("s_nop 7")

def guard(g, r): g.A(f"v_min_u32 v{r}, s72, v{r}")
def unpack2(g, d, s):
    g.A(f"v_lshlrev_b32 v{d}, 16, v{s}")
    g.A(f"v_and_b32 v{d+1}, s73, v{s}")
def unpack4(g, d, s, step=1):
    unpack2(g, d, s); unpack2(g, d+2, s+step)

def silu4(g, x, t):
    A = g.A
    for i in range(4): A(f"v_mul_f32 v{t+i}, 0x{LOG2E ^ 0x80000000:08x}, v{x+i}")
    for i in range(4): A(f"v_exp_f32 v{t+i}, v{t+i}")
    A("s_nop 0")
    for i in range(4): A(f"v_add_f32 v{t+i}, 1.0, v{t+i}")
    for i in range(4): A(f"v_rcp_f32 v{t+i}, v{t+i}")
    A("s_nop 0")
    for i in range(4): A(f"v_mul_f32 v{x+i}, v{x+i}, v{t+i}")

def make_tag(g):
    g.A(f"s_mul_i32 s{ST}, s{ST}, 0x9e3779b1")
    g.A(f"s_add_u32 s{ST}, s{ST}, 0x7f4a7c15")

EX8 = ["s_mov_b32 exec_lo, 0x00030003", "s_mov_b32 exec_hi, 0x00030003"]

def dump_all(g, extra):
    A = g.A
    A("s_mov_b64 exec, -1")
    A("s_mul_i32 s3, s2, 12"); A("s_add_u32 s3, s3, s13"); A("s_lshl_b32 s3, s3, 6")
    A(f"s_add_u32 s3, s3, {WS_STAMP}")
    A("v_lshl_add_u32 v2, v1, 2, s3")
    A("v_mov_b32 v3, 0")
    A("s_waitcnt lgkmcnt(0)")
    for i, x in enumerate([80+2*i for i in range(10)] + list(extra)): A(f"v_writelane_b32 v3, s{x}, {i}")
    A("s_mov_b64 exec, 0xffff")
    A("global_store_dword v2, v3, s[42:43]")

def fallback(g, head_sum, wave_red):
    A = g.A
    W, AC, AV = 40, 72, 88
    X1, GS = 104, 120
    g.lab("L_slow")
    A("s_mov_b32 s47, 0x20000")
    A("s_load_dwordx16 s[16:31], s[0:1], 0")
    A("s_load_dwordx8 s[32:39], s[0:1], 64")
    A("v_and_b32 v2, 31, v1")
    A("v_lshlrev_b32 v2, 7, v2")
    A(f"v_add_u32 v2, {WS_DN}, v2")
    A("s_mov_b32 s70, 0")
    g.lab("L_sl_d")
    A("global_load_dword v3, v2, s[42:43] sc1")
    A("s_waitcnt vmcnt(0) lgkmcnt(0)")
    A(f"v_cmp_ne_u32 vcc, s{ST}, v3")
    spin_tail(g, "L_sl_d", "L_sl_dd", 8)
    A("v_lshlrev_b32 v2, 3, v1")
    A(f"v_add_u32 v2, {WS_OQ}, v2")
    A("v_lshlrev_b32 v0, 2, v1")
    A(f"v_add_u32 v0, {L_VX}, v0")
    A("s_mov_b32 s10, 0")
    g.lab("L_sl_h")
    A("s_mov_b32 s70, 0")
    g.lab("L_sl_hp")
    for i in range(3): A(f"global_load_dwordx2 {vr(W+2*i,2)}, v2, s[42:43] offset:{512*i} sc1")
    A("s_waitcnt vmcnt(0)")
    head_sum(W, W+8)
    spin_tail(g, "L_sl_hp", "L_sl_hd", 8)
    A(f"ds_write_b32 v0, v{W}")
    A("v_add_u32 v2, 2048, v2"); A("v_add_u32 v0, 256, v0")
    A("s_add_u32 s10, s10, 1"); A("s_cmp_lt_u32 s10, 64"); A("s_cbranch_scc1 L_sl_h")
    def call(base, nbytes, stride, nrows, act, bstride, col):
        A(f"s_mov_b32 s44, s{base}"); A(f"s_mov_b32 s45, s{base+1}"); A(f"s_mov_b32 s46, {nbytes}")
        A(f"s_mov_b32 s11, {stride}"); A(f"s_mov_b32 s12, {nrows*stride}")
        A(f"v_mov_b32 v4, {act}"); A(f"v_mov_b32 v5, {act+bstride}")
        A(f"v_lshlrev_b32 v2, 4, v1")
        if col: A(f"v_add_u32 v2, {col}, v2")
        A("s_call_b64 s[62:63], L_gv")
    def modrow(row, d):
        A("v_lshrrev_b32 v2, 1, v1"); A("v_lshlrev_b32 v2, 7, v2")
        A("v_and_b32 v3, 1, v1"); A("v_lshl_add_u32 v2, v3, 5, v2")
        A(f"v_add_u32 v2, {WS_MOD+4096*row}, v2")
        for b in range(2):
            for h in range(2): A(f"global_load_dwordx4 {vr(W+8*b+4*h,4)}, v2, s[42:43] offset:{64*b+16*h} sc1")
        A("s_waitcnt vmcnt(0)")
        for k in range(8): unpack2(g, d+2*k, W+2*k)
    def gated_add(row):
        modrow(row, AV)
        for i in range(16): rnd(g, AC+i)
        for i in range(16): A(f"v_mul_f32 v{AC+i}, v{AC+i}, v{AV+i}")
        for i in range(16): rnd(g, AC+i)
        for i in range(16): A(f"v_add_f32 v{X1+i}, v{X1+i}, v{AC+i}")
        for i in range(16): rnd(g, X1+i)
    def pack(d, s_):
        for k in range(8): A(f"v_cvt_pk_bf16_f32 v{d+k}, v{s_+2*k}, v{s_+2*k+1}")
    call(24, 4096*1024, 1024, 4096, L_VX, 8192, 0)
    A("v_lshlrev_b32 v0, 4, v1")
    for b in range(2): A(f"global_load_dwordx4 {vr(W+4*b,4)}, v0, s[16:17] offset:{1024*b}")
    A("s_waitcnt vmcnt(0)")
    for k in range(8): unpack2(g, X1+2*k, W+k)
    gated_add(2)
    for b in range(2):
        x = X1 + 8*b; y = AC + 8*b
        A(f"v_add_f32 v8, v{x}, v{x+1}")
        for i in range(2, 8): A(f"v_add_f32 v8, v8, v{x+i}")
        wave_red("v_add_f32", 8, 9)
        A(f"v_mul_f32 v8, 0x{f2u(1/512):08x}, v8")
        for i in range(8): A(f"v_sub_f32 v{y+i}, v{x+i}, v8")
        A(f"v_mul_f32 v10, v{y}, v{y}")
        for i in range(1, 8): A(f"v_fmac_f32 v10, v{y+i}, v{y+i}")
        wave_red("v_add_f32", 10, 9)
        A(f"v_mul_f32 v10, 0x{f2u(1/512):08x}, v10")
        rnd(g, 8); rnd(g, 10)
        A(f"v_add_f32 v10, 0x{EPS:08x}, v10")
        rnd(g, 10)
        A("v_sqrt_f32 v10, v10")
        for i in range(8): A(f"v_sub_f32 v{y+i}, v{x+i}, v8")
        rnd(g, 10)
        for i in range(8): rnd(g, y+i)
        A("v_rcp_f32 v10, v10")
        A("s_nop 0")
        for i in range(8): A(f"v_mul_f32 v{y+i}, v{y+i}, v10")
        for i in range(8): rnd(g, y+i)
    modrow(4, AV)
    for i in range(16): A(f"v_add_f32 v{AV+i}, 1.0, v{AV+i}")
    for i in range(16): rnd(g, AV+i)
    for i in range(16): A(f"v_mul_f32 v{AC+i}, v{AC+i}, v{AV+i}")
    for i in range(16): rnd(g, AC+i)
    modrow(3, AV)
    for i in range(16): A(f"v_add_f32 v{AC+i}, v{AC+i}, v{AV+i}")
    pack(W, AC)
    A(f"v_add_u32 v3, {L_VX}, v0")
    for b in range(2): A(f"ds_write_b128 v3, {vr(W+4*b,4)} offset:{1024*b}")
    HB = L_VX + 2048
    for p in range(3):
        call(28, 512*2752, 2752, 512, L_VX, 1024, 1024*p)
        for i in range(16): rnd(g, GS+i, AC+i)
        call(30, 512*2752, 2752, 512, L_VX, 1024, 1024*p)
        for q in range(4): silu4(g, GS+4*q, AV)
        for i in range(16): rnd(g, GS+i)
        for i in range(16): rnd(g, AC+i)
        for i in range(16): A(f"v_mul_f32 v{AC+i}, v{AC+i}, v{GS+i}")
        pack(W, AC)
        A(f"v_add_u32 v3, {HB+1024*p}, v0")
        for b in range(2): A(f"ds_write_b128 v3, {vr(W+4*b,4)} offset:{3072*b}")
    call(32, 1376*1024, 1024, 1376, HB, 3072, 0)
    gated_add(5)
    pack(W, X1)
    for b in range(2): A(f"global_store_dwordx4 v0, {vr(W+4*b,4)}, s[38:39] offset:{1024*b} sc1")
    A("s_endpgm")
    g.lab("L_gv")
    for i in range(16): A(f"v_mov_b32 v{AC+i}, 0")
    A("s_mov_b32 s10, 0")
    g.lab("L_gvl")
    for r in range(8):
        A(f"buffer_load_dwordx4 {vr(W+4*r,4)}, v2, s[44:47], s10 offen")
        A("s_add_u32 s10, s10, s11")
    for b in range(2): A(f"ds_read_b128 {vr(AV+4*b,4)}, v{4+b}")
    A("v_add_u32 v4, 16, v4"); A("v_add_u32 v5, 16, v5")
    A("s_waitcnt lgkmcnt(0)")
    for r in range(8):
        for b in range(2):
            a = AV + 4*b + r//2
            if r % 2 == 0: A(f"v_and_b32 v{8+2*b}, 0xffff, v{a}"); A(f"v_lshlrev_b32 v{9+2*b}, 16, v{a}")
            else: A(f"v_lshrrev_b32 v{8+2*b}, 16, v{a}"); A(f"v_and_b32 v{9+2*b}, s73, v{a}")
        A(f"s_waitcnt vmcnt({7-r})")
        for b in range(2):
            for k in range(8): A(f"v_dot2c_f32_bf16 v{AC+8*b+k}, v{8+2*b+(k&1)}, v{W+4*r+k//2}")
    A("s_cmp_lt_u32 s10, s12"); A("s_cbranch_scc1 L_gvl")
    A("s_nop 1")
    A("s_setpc_b64 s[62:63]")

def stream(g, opts):
    A = g.A
    D0 = opts.get("D0", 4)
    LAG = opts.get("LAG", 5)
    DEL = opts.get("delta", 10)
    THETA = opts.get("theta", 24)
    HCAP, HPOS = 32, 160
    TH, HST, NH, NSP, HTH = 18, 19, 20, 21, 22
    PA = 2
    KF, VF = opts.get("kf", "nt"), opts.get("vf", "nt")
    J0 = opts.get("J0", 15)
    T_, ACC, DB, RW, LIM, BUR, CNT, STA, QA, LVL = 32, 33, 34, 35, 36, 37, 38, 39, 40, 41
    SR, SBI, VE = 78, 79, 59
    VG = opts.get('vg', 20); LG = opts.get('lg', 10)
    LB, JS, DN, FIN, X1D, RET, TK, RET2 = 56, 57, 58, 75, 61, 62, (64, 66), 100
    T, X = 8, 16
    OFF = (24, 26); SET = (28, 30, 32); AC_, AT_, AH_, MK = 8, 12, 4, (34, 35, 36, 0); MW, L16, LRD, EPA = 37, 38, 39, 21
    EV = 23
    RA = 22
    ROFF = 1024
    RB = 40
    def slot(j): return RB + 4 * (j % 32)
    NW, KS, NXT = 76, 77, 57
    g.lab("L_stream")
    BLK = 11 * 1024
    A("s_sub_u32 s9, s13, 1")
    A("s_lshl_b32 s11, s9, 10")
    A(f"s_mul_i32 s4, s7, {31*BLK}")
    A("s_lshl_b32 s10, s6, 22")
    A("s_add_u32 s10, s10, s4")
    A("s_add_u32 s10, s10, 0x300000")
    A("v_and_b32 v0, 15, v1")
    A("v_lshl_add_u32 v0, v0, 6, s11")
    A("v_and_b32 v3, 48, v1")
    A("v_add_u32 v0, v3, v0")
    A("s_lshr_b32 s12, s2, 3")
    A("s_mul_i32 s12, s12, 5")
    A("s_mul_i32 s15, s8, 3")
    A("s_add_u32 s12, s12, s15")
    A("s_and_b32 s15, s12, 31")
    A("s_min_u32 s15, s15, 30")
    A(f"s_mul_i32 s12, s15, {BLK}")
    A("s_lshr_b32 s46, s7, 1"); A("s_lshl_b32 s46, s46, 10"); A(f"s_add_u32 s46, s46, {31*BLK}")
    A("s_mov_b32 s47, 0x20000")
    A(f"s_mov_b32 s14, {31*BLK}")
    g.stamp(1, 3)
    A("s_waitcnt lgkmcnt(0)")
    g.stamp(2, 3)
    A("s_add_u32 s44, s18, s10"); A("s_addc_u32 s45, s19, 0")
    def issue(j):
        A(f"buffer_load_dwordx4 {vr(slot(j),4)}, v0, s[44:47], s12 offen {KF}")
        A(f"s_add_u32 s12, s12, {BLK}")
        A("s_cmp_eq_u32 s12, s14")
        A("s_cselect_b32 s12, 0, s12")
    g.stamp(3, 3)
    for j in range(1, D0): issue(j)
    A(f"buffer_load_dwordx4 {vr(slot(0),4)}, v0, s[44:47], s14 offen {KF}")
    g.stamp(4, 3)
    A("s_add_u32 s48, s20, s10"); A("s_addc_u32 s49, s21, 0")
    A("s_mov_b32 s50, s46"); A("s_mov_b32 s51, 0x20000")
    A("s_mov_b32 s52, 0xcccccccc"); A("s_mov_b32 s53, 0xcccccccc")
    A("s_mov_b32 s54, 0xaaaaaaaa"); A("s_mov_b32 s55, 0xaaaaaaaa")
    A(f"v_and_b32 v{L16}, 15, v1")
    A(f"v_lshlrev_b32 v{L16}, 4, v{L16}")
    A("s_lshl_b32 s10, s9, 11")
    A(f"s_add_u32 s10, s10, {L_VX}")
    A("v_lshl_add_u32 v3, v1, 3, s10")
    A("v_mov_b32 v4, 0x7fff0000"); A("v_mov_b32 v5, 0xff800000")
    for n in range(3): A(f"ds_write_b64 v3, v[4:5] offset:{512*n}")
    A("v_lshrrev_b32 v3, 4, v1")
    A(f"v_lshl_add_u32 v{LRD}, v{L16}, 1, s10")
    A(f"v_lshl_add_u32 v{LRD}, v3, 3, v{LRD}")
    A("s_sub_u32 s68, s15, 1")
    A("v_bfrev_b32 v4, v1")
    A("v_lshrrev_b32 v4, 28, v4")
    A("v_lshl_add_u32 v3, v3, 8, s11")
    A("v_cmp_eq_u32 s[70:71], 0, v4")
    for n in range(2):
        A(f"v_add_u32 v{OFF[n]}, s68, v4")
        if n: A(f"v_add_u32 v{OFF[n]}, 16, v{OFF[n]}")
        A(f"v_subrev_u32 v5, 31, v{OFF[n]}")
        A(f"v_min_u32 v{OFF[n]}, v5, v{OFF[n]}")
        if n == 0: A(f"v_cndmask_b32 v{OFF[n]}, v{OFF[n]}, 31, s[70:71]")
        A(f"v_mul_u32_u24 v{OFF[n]}, {BLK}, v{OFF[n]}")
        A(f"v_add_u32 v{OFF[n]}, v3, v{OFF[n]}")
    A("s_lshl_b32 s11, s9, 9")
    A("s_sub_u32 s11, s11, s10")
    A(f"s_mov_b32 s{T_}, {D0}"); A(f"s_mul_i32 s{ACC}, s9, 0x60000000"); A(f"s_add_u32 s{ACC}, s{ACC}, 0x10000000")
    A(f"s_mov_b64 s[{TK[0]}:{TK[0]+1}], 0"); A(f"s_mov_b64 s[{TK[1]}:{TK[1]+1}], 0")
    A(f"s_mov_b32 s{CNT}, 0"); A(f"s_mov_b32 s{STA}, 2"); A(f"s_mov_b32 s{FIN}, 0"); A(f"s_mov_b32 s{X1D}, 0")
    A("v_and_b32 v3, 1, v1"); A("v_lshlrev_b32 v3, 4, v3"); A("v_mov_b32 v20, 0xffff"); A("v_lshlrev_b32 v3, v3, v20")
    A("v_bfe_u32 v20, v1, 1, 3")
    for d in range(3):
        A(f"v_cmp_eq_u32 vcc, {d}, v20"); A("s_nop 1"); A(f"v_cndmask_b32 v{MK[d]}, 0, v3, vcc")
    A("s_barrier")
    A("s_waitcnt lgkmcnt(0)")
    A(f"s_mov_b32 s{LB}, s10")
    A(f"s_mov_b32 s{LVL}, {LAG}"); A(f"s_mov_b32 s{NXT}, 0"); A(f"s_mov_b32 s{NW}, {LAG*4096}")
    A(f"s_mov_b32 s{DB}, {int(opts.get('d1', 2.65)*4096) + ROFF*LG*16}"); A(f"s_mov_b32 s{KS}, 0")
    A(f"s_mov_b32 s{RW}, {32-D0}"); A(f"s_mov_b32 s{VE}, 0")
    A(f"v_mov_b32 v{RA}, {ROFF + NS_*(32-D0)}"); A(f"v_mov_b32 v{RA+1}, 0"); A(f"v_mov_b32 v{PA}, 0")
    for j in range(D0, 32):
        if j == opts.get("je", 99) and opts.get("dup", 0): A(f"s_sub_u32 s{DB}, s{DB}, {int(opts['dup']*4096)}")
        if j == opts.get("js", 16) and opts.get("dup", 0): A(f"s_add_u32 s{DB}, s{DB}, {int(opts['dup']*4096)}")
        if j == D0:
            g.stamp(5, 3)
            if opts.get("stamps") == 3: A(f"s_waitcnt vmcnt({D0-1})")
            g.stamp(7, 3)
        A(f"s_call_b64 s[{RET}:{RET+1}], {'L_ks' if j >= J0 else ('L_kq2', 'L_kl')[(j - D0) & 1] if opts.get('light', 0) else 'L_kq'}")
        if j == 8: g.stamp(8, 3)
        if j == 12: g.stamp(9, 3)
        issue(j)
        if opts.get("trace") == 2:
            if j > D0: A(f"v_writelane_b32 v33, s98, {j-1}")
            A("s_memrealtime s[98:99]")
    if opts.get("trace") == 2:
        A("s_waitcnt lgkmcnt(0)"); A("v_writelane_b32 v33, s98, 31")
        A("s_mul_i32 s3, s2, 12"); A("s_add_u32 s3, s3, s13"); A("s_lshl_b32 s3, s3, 8"); A("s_add_u32 s3, s3, 0x400000")
        A("v_lshl_add_u32 v3, v1, 2, s3")
        A("global_store_dword v3, v33, s[42:43]")
    g.stamp(1)
    A("s_mov_b32 s10, 0")
    g.lab("L_kw")
    A(f"s_cmp_ge_u32 s{STA}, 6"); A("s_cbranch_scc1 L_v0")
    A(f"s_call_b64 s[{RET2}:{RET2+1}], L_work")
    A("s_sleep 1")
    A("s_add_u32 s10, s10, 1")
    A(f"s_cmp_lt_u32 s10, {SPIN_MAX}"); A("s_cbranch_scc1 L_kw")
    g.lab("L_v0")
    g.stamp(2)
    A(f"s_mov_b32 s{T_}, 0")
    A(f"v_mov_b32 v{PA}, 8")
    A(f"s_mov_b32 s{RW}, s{VE}")
    A(f"ds_read_b64 {vr(RA,2)}, v{PA} offset:{L_RM}")
    A(f"v_mov_b32_dpp v{MK[3]}, v{MK[2]} row_shr:2 row_mask:0xf bank_mask:0xf bound_ctrl:0")
    KA, KB = opts.get('ka2', 3.8), opts.get('kb2', -0.2)
    A(f"s_mov_b32 s{KS}, {round(KA*16)}")
    A(f"s_mov_b32 s{NW}, {round(opts.get('hi0', 3)*4096)}")
    VB0, VB1 = round(opts.get("vb0", 0.4) * 4096), round(opts.get("vb1", 0.6) * 4096)
    A(f"s_mov_b32 s{DB}, {round(KB*4096) + ROFF*LG*16 + VB0}")

    A("s_waitcnt lgkmcnt(0)")

    def dots(G_, halves=(0, 1)):
        sl = [8*G_ + e for h in halves for e in range(4*h, 4*h+4)]
        dst = [T] + [slot(x) for x in sl[:-1]]
        A("s_mov_b64 vcc, s[54:55]")
        for x, d in zip(sl, dst): A(f"v_mfma_f32_16x16x32_bf16 {vr(d,4)}, {vr(slot(x),4)}, v[4:7], 0")
        A(f"s_nop {8 - len(sl)}")
        for n, (x, d) in enumerate(zip(sl, dst)):
            bank = 1 << (((x & 1) << 1) | ((x >> 1) & 1))
            for k in range(2):
                A(f"v_cndmask_b32_dpp v{T+4+k}, v{d+2*k}, v{d+2*k+1}, vcc quad_perm:[0,1,2,3] row_mask:0xf bank_mask:0x{bank:x}")
            if n % 4 == 3: A(f"v_cndmask_b32 v{X + ((x >> 2) & 3)}, v{T+4}, v{T+5}, s[52:53]")
    def wave_red(op, v, t):
        for r in (8, 4, 2, 1):
            A("s_nop 1")
            A(f"{op}_dpp v{v}, v{v}, v{v} row_ror:{r} row_mask:0xf bank_mask:0xf")
        for sw in ("v_permlane16_swap_b32", "v_permlane32_swap_b32"):
            A(f"v_mov_b32 v{t}, v{v}")
            A("s_nop 1")
            A(f"{sw} v{t}, v{v}")
            A(f"{op} v{v}, v{v}, v{t}")
    def finish(n):
        sc = OFF[n] + 1
        A("v_mov_b32 v3, 0")
        A("v_mov_b32 v20, 64")
        for i in range(4): A(f"v_add_f32_dpp v{X+i}, v{X+i}, v{X+i} quad_perm:[2,3,0,1] row_mask:0xf bank_mask:0xf")
        for i in range(2): A(f"v_cndmask_b32 v{T+i}, v{X+2*i}, v{X+2*i+1}, s[52:53]")
        A("s_nop 0")
        A("v_lshlrev_b32 v21, 3, s9")
        for i in range(2): A(f"v_add_f32_dpp v{T+i}, v{T+i}, v{T+i} quad_perm:[1,0,3,2] row_mask:0xf bank_mask:0xf")
        A(f"v_cndmask_b32 v{sc}, v{T}, v{T+1}, s[54:55]")
        rnd(g, sc)
        A(f"v_mul_f32 v{sc}, 0x{SCALE:08x}, v{sc}")
        rnd(g, sc)
        if n == 0:
            A(f"v_cmp_gt_u32 vcc, s46, v{OFF[0]}")
            A(f"v_mov_b32 v{MW}, 0xff800000")
            A("s_nop 0")
            A(f"v_cndmask_b32 v{sc}, v{MW}, v{sc}, vcc")
            A(f"v_mov_b32 v{MW}, v{sc}")
        else: A(f"v_max_f32 v{MW}, v{MW}, v{sc}")
        wave_red("v_max_f32", MW, T)
        if n == 0:
            A("s_mov_b64 exec, 1")
            A(f"ds_max_f32 v3, v{MW} offset:{L_E0}")
            A(f"ds_add_u32 v3, v20 offset:{L_ECN}")
            A("s_mov_b64 exec, -1")
    def build(n, thr):
        tk = f"s[{TK[n]}:{TK[n]+1}]"
        A(f"v_cmp_nlt_f32 vcc, v{OFF[n]+1}, v{thr}")
        A(f"s_lshl_b32 s68, s{CNT}, 3")
        A(f"s_add_u32 s68, s68, s{LB}")
        A(f"s_andn2_b64 s[70:71], vcc, {tk}")
        A("v_mbcnt_lo_u32_b32 v3, s70, 0")
        A("v_mbcnt_hi_u32_b32 v3, s71, v3")
        A("s_bcnt1_i32_b64 s69, s[70:71]")
        A("v_lshl_add_u32 v3, v3, 3, s68")
        A("s_mov_b64 exec, s[70:71]")
        A(f"ds_write_b64 v3, {vr(OFF[n],2)}")
        A("s_mov_b64 exec, -1")
        A(f"s_or_b64 {tk}, {tk}, s[70:71]")
        A(f"s_add_u32 s{CNT}, s{CNT}, s69")
    def reread(weights=True, fill=None):
        ns = 3 if weights else 1
        for n in range(ns): A(f"ds_read_b64 {vr(SET[n],2)}, v{LRD} offset:{512*n}")
        if fill: fill()
        A("s_waitcnt lgkmcnt(0)")
        if not weights: return
        for n in range(3): A(f"v_sub_f32 v{SET[n]+1}, v{SET[n]+1}, v{MW}")
        for n in range(3): A(f"v_mul_f32 v{SET[n]+1}, 0x{LOG2E:08x}, v{SET[n]+1}")
        for n in range(3): A(f"v_exp_f32 v{SET[n]+1}, v{SET[n]+1}")
        A("s_nop 0")
        for n in range(3): A(f"v_cvt_pk_bf16_f32 v{SET[n]+1}, v{SET[n]+1}, v{SET[n]+1}")
    def pv(t, data=None, acc=AC_, first=False):
        data = slot(t) if data is None else data
        for d in range(4): A(f"v_and_b32_dpp v{AT_+d}, v{SET[t//16]+1}, v{MK[d]} row_newbcast:{t%16} row_mask:0xf bank_mask:0xf")
        A("s_nop 1")
        A(f"v_mfma_f32_16x16x32_bf16 {vr(acc,4)}, {vr(AT_,4)}, {vr(data,4)}, {vr(acc,4)}")
    def estimate(sh, add, src, vphase=True):
        A(f"s_add_u32 s68, s{src}, {add}")
        A(f"s_lshr_b32 s68, s68, {sh}")
        A(f"s_sub_u32 s69, s68, s{VE}")
        A(f"s_mov_b32 s{VE}, s68")
        if vphase:
            A(f"s_add_u32 s{RW}, s{RW}, s69")
            A(f"s_add_u32 s{SR}, s{SR}, s69")
        A("v_mov_b32 v3, s69")
        A("s_mov_b64 exec, 1")
        A(f"ds_add_u32 v1, v3 offset:{L_RM+8}")
        A(f"ds_add_u32 v1, v3 offset:{L_RM+12}")
        A("s_mov_b64 exec, -1")
    def fetch():
        A(f"v_readfirstlane_b32 s{SR}, v{RA}")
        A(f"v_readfirstlane_b32 s{SBI}, v{RA+1}")
    NST = LAG + 33 + LAG
    assert 4 * (NST - LAG) <= HPOS, NST
    LIGHT = opts.get("light", 0)
    for t in range(NST - LAG + 1):
        sub = "L_vs" if t <= 2 * LAG else "L_vq" if not LIGHT else ("L_vq2", "L_vl")[(t - 2 * LAG - 1) & 1]
        A(f"s_call_b64 s[{RET}:{RET+1}], {sub}")
        if t == NST - LAG: break
        if t: A(f"s_cbranch_scc0 L_dr{max(t, LAG)}")
        A(f"v_add_u32_dpp v3, v{SET[t//16]}, v{L16} row_newbcast:{t%16} row_mask:0xf bank_mask:0xf")
        A(f"buffer_load_dwordx4 {vr(slot(t),4)}, v3, s[48:51], 0 offen {VF}")
        if opts.get("trace") == 1 and t >= LAG:
            A("s_memrealtime s[98:99]"); A("s_waitcnt lgkmcnt(0)"); A(f"v_writelane_b32 v17, s98, {t}")
        if t == 0: dots(3, (0,))
        if t >= LAG: pv(t - LAG)
    A(f"s_branch L_dr{NST-LAG}")
    g.C("nothing left to load, everything has landed: the row groups not used yet")
    for t in range(LAG, NST):
        g.lab(f"L_dr{t}")
        pv(t - LAG)
        A(f"s_cmp_eq_u32 s{FIN}, {t+1}"); A("s_cbranch_scc1 L_epi")
    def out_addr():
        A("v_lshrrev_b32 v3, 4, v1")
        A(f"v_lshl_add_u32 v{EPA}, v3, 3, v{LRD}")
        A(f"v_add_u32 v{EPA}, s11, v{EPA}")
        A("v_mov_b32 v3, 1")
    def prelim(r):
        A("s_mov_b32 exec_hi, 0")
        A(f"ds_write_b128 v{EPA}, {vr(r,4)} offset:{L_OP1}")
        A("s_mov_b64 exec, 1")
        A(f"ds_add_u32 v1, v3 offset:{L_SN}")
        A("s_mov_b64 exec, -1")
    g.lab("L_epi")
    g.stamp(5)
    out_addr()
    A("s_nop 3")
    for h in range(2): A(f"v_pk_add_f32 {vr(AC_+2*h,2)}, {vr(AC_+2*h,2)}, {vr(AH_+2*h,2)}")
    A("s_mov_b32 exec_hi, 0")
    A(f"ds_write_b128 v{EPA}, {vr(AC_,4)} offset:{L_OP}")
    A(f"s_cmp_eq_u32 s{NSP}, 0"); A("s_cbranch_scc1 L_ep2")
    prelim(AC_)
    g.lab("L_ep2")
    A("s_mov_b64 exec, 1")
    A(f"ds_add_u32 v1, v3 offset:{L_TK}")
    g.lab("L_send")
    if opts.get("trace") == 1:
        A("s_mov_b64 exec, -1")
        A("s_mul_i32 s3, s2, 12"); A("s_add_u32 s3, s3, s13"); A("s_lshl_b32 s3, s3, 8"); A("s_add_u32 s3, s3, 0x400000")
        A("v_lshl_add_u32 v2, v1, 2, s3")
        A("global_store_dword v2, v17, s[42:43]")
    if opts.get("stamps"):
        g.stamp(6)
        dump_all(g, [CNT, SBI, SBI])
    A("s_endpgm")
    g.wave_red = wave_red

    g.lab("L_ks")
    A(f"s_cmp_lt_u32 s{T_}, s{NXT}"); A("s_cbranch_scc1 L_kq")
    A(f"s_call_b64 s[{RET2}:{RET2+1}], L_work")
    BASE, FRAC = BUR, 58
    def control(n):
        A("s_mov_b64 exec, 1")
        for _ in range(n): A(f"ds_dec_u32 v{PA}, v{LRD} offset:{L_RM}")
        A(f"ds_read_b64 {vr(RA,2)}, v{PA} offset:{L_RM}")
        A("s_mov_b64 exec, -1")
        A(f"s_mul_i32 s68, s{RW}, {NS_}")
        A(f"s_and_b32 s69, s{SBI}, 0xffff")
        A(f"s_sub_i32 s68, s68, s{SR}")
        A(f"s_mul_i32 s69, s69, s{KS}")
        A(f"s_mul_i32 s68, s68, {LG*16}")
        A(f"s_sub_u32 s{RW}, s{RW}, {n}")
        A("s_add_i32 s68, s68, s69")
        A(f"s_add_i32 s68, s68, s{DB}")
        A(f"s_max_i32 s68, s68, {int(opts.get('lo', 1.2)*4096)}")
        A(f"s_min_i32 s68, s68, s{NW}")
        A(f"s_lshr_b32 s{BASE}, s68, 12")
        A(f"s_lshl_b32 s{FRAC}, s68, 20")
    g.lab("L_kq")
    fetch()
    g.lab("L_ks2")
    control(1)
    g.lab("L_kl")
    A(f"s_add_u32 s{T_}, s{T_}, 1")
    A(f"s_add_u32 s{ACC}, s{ACC}, 0x20000000")
    A(f"s_add_u32 s68, s{ACC}, s{FRAC}")
    A(f"s_addc_u32 s{LVL}, s{BASE}, 0")
    order = [3, 2, 4, 1] + list(range(5, LAG))
    for d in order:
        A(f"s_cmp_eq_u32 s{LVL}, {d}"); A(f"s_cbranch_scc1 L_wt{d}")
    g.lab("L_wtx")
    A(f"s_cmp_eq_u32 s{T_}, s{T_}")
    for d in [LAG] + order:
        g.lab(f"L_wt{d}")
        A(f"s_waitcnt vmcnt({d-1})")
        A(f"s_setpc_b64 s[{RET}:{RET+1}]")
    g.lab("L_kq2")
    fetch()
    g.lab("L_ks3")
    control(2)
    A("s_branch L_kl")
    g.lab("L_vl")
    A(f"s_cmp_lt_u32 s{T_}, s{LIM}"); A("s_cbranch_scc1 L_kl")
    A("s_branch L_ev")
    g.lab("L_vq2")
    fetch()
    if opts.get("early", 0):
        A(f"s_lshr_b32 s68, s{SBI}, 16")
        A(f"s_cmp_gt_u32 s68, s{FIN}"); A("s_cbranch_scc1 L_hand")
    A(f"s_cmp_lt_u32 s{T_}, s{LIM}"); A("s_cbranch_scc1 L_ks3")
    A("s_branch L_ev")

    g.lab("L_vs")
    fetch()
    A(f"s_cmp_eq_u32 s{X1D}, 2"); A("s_cbranch_scc1 L_vs1")
    A(f"s_cmp_eq_u32 s{X1D}, 1"); A("s_cbranch_scc1 L_x3")
    A(f"s_cmp_gt_u32 s{LVL}, s{T_}"); A("s_cbranch_scc1 L_ks2")
    g.lab("L_x1")
    g.stamp(1, 2)
    dots(3, (1,))
    sc = OFF[1] + 1
    A(f"s_lshl_b32 s68, s{NH}, 3")
    A(f"s_add_u32 s68, s68, s{LB}")
    for i in range(4): A(f"v_add_f32_dpp v{X+i}, v{X+i}, v{X+i} quad_perm:[2,3,0,1] row_mask:0xf bank_mask:0xf")
    for i in range(2): A(f"v_cndmask_b32 v{T+i}, v{X+2*i}, v{X+2*i+1}, s[52:53]")
    A("v_mov_b32 v20, 64")
    A("v_lshlrev_b32 v21, 3, s9")
    for i in range(2): A(f"v_add_f32_dpp v{T+i}, v{T+i}, v{T+i} quad_perm:[1,0,3,2] row_mask:0xf bank_mask:0xf")
    A(f"v_cndmask_b32 v{sc}, v{T}, v{T+1}, s[54:55]")
    rnd(g, sc)
    A(f"v_mul_f32 v{sc}, 0x{SCALE:08x}, v{sc}")
    rnd(g, sc)
    mx = lambda r: f"v_max_f32_dpp v{MW}, v{MW}, v{MW} row_ror:{r} row_mask:0xf bank_mask:0xf"
    tk1 = f"s[{TK[1]}:{TK[1]+1}]"
    for t in (f"v_max_f32 v{MW}, v{MW}, v{sc}",
              f"v_cmp_ngt_f32 vcc, s{HTH}, v{sc}", "v_mov_b32 v4, 0", mx(8),
              "s_bcnt1_i32_b64 s69, vcc", f"s_add_u32 s69, s69, s{NH}", mx(4),
              f"s_cmp_gt_u32 s69, {HCAP}", f"s_cselect_b32 s{NSP}, 1, s{NSP}", mx(2),
              f"s_cmp_eq_u32 s{NSP}, 0", f"s_cselect_b64 {tk1}, vcc, 0", f"s_cselect_b32 s{NH}, s69, s{NH}", mx(1),
              f"v_mbcnt_lo_u32_b32 v3, s{TK[1]}, 0", f"v_mov_b32 v{T}, v{MW}", f"v_mbcnt_hi_u32_b32 v3, s{TK[1]+1}, v3", "v_lshl_add_u32 v3, v3, 3, s68",
              f"v_permlane16_swap_b32 v{T}, v{MW}",
              f"s_mov_b64 exec, {tk1}", f"ds_write_b64 v3, {vr(OFF[1],2)} offset:{HPOS*8}", "s_mov_b64 exec, -1",
              f"ds_read_b32 v{SET[2]}, v{LRD} offset:1024",
              f"v_max_f32 v{MW}, v{MW}, v{T}", f"v_mov_b32 v{T}, v{MW}", "v_mov_b32 v5, 0", f"s_mov_b32 s{TH}, s{T_}",
              f"v_permlane32_swap_b32 v{T}, v{MW}", f"v_max_f32 v{MW}, v{MW}, v{T}"): A(t)
    for i in range(2): A(f"v_sub_f32 v{X+1+i}, v{OFF[i]+1}, v{MW}")
    for i in range(2): A(f"v_mul_f32 v{X+1+i}, 0x{LOG2E:08x}, v{X+1+i}")
    for i in range(2): A(f"v_exp_f32 v{X+1+i}, v{X+1+i}")
    A("s_lshl_b32 s68, s9, 9")
    A(f"v_lshl_add_u32 v{X}, v1, 2, s68")
    A(f"v_add_f32 v{X+1}, v{X+1}, v{X+2}")
    A("s_waitcnt lgkmcnt(0)")
    for i in range(8):
        A(f"s_cmp_le_u32 s{NH}, {4*i}"); A("s_cbranch_scc1 L_x2")
        A(f"v_add_u32_dpp v3, v{SET[2]}, v{L16} row_newbcast:{8+i} row_mask:0xf bank_mask:0xf")
        A(f"buffer_load_dwordx4 {vr(slot(24+i),4)}, v3, s[48:51], 0 offen {VF}")
    g.lab("L_x2")
    g.stamp(2, 2)
    A(f"ds_write_b32 v{X}, v{X+1} offset:{L_OP}")
    A("s_mov_b64 exec, 1")
    A(f"ds_write_b32 v21, v{MW} offset:{L_ST}")
    A(f"ds_add_u32 v1, v20 offset:{L_SCN}")
    A("s_mov_b64 exec, -1")
    g.stamp(3); g.stamp(3, 2)
    A(f"s_mov_b32 s{X1D}, 1"); A(f"s_mov_b32 s{HST}, 1")
    if VB1 != VB0: A(f"s_add_i32 s{DB}, s{DB}, {VB1-VB0}")
    A(f"s_cmp_lt_u32 s{T_}, {LAG}"); A("s_cbranch_scc1 L_ks2")
    g.lab("L_x3")
    A(f"v_max_f32 v21, s{EV}, v{MW}")
    A(f"s_add_u32 s{CNT}, s{CNT}, 3"); A(f"s_lshr_b32 s{CNT}, s{CNT}, 2")
    A(f"v_add_f32 v21, 0x{f2u(DEL - ZERO_GAP):08x}, v21")
    A(f"s_max_u32 s{CNT}, s{CNT}, s{T_}"); A(f"s_lshl_b32 s{CNT}, s{CNT}, 2")
    build(1, 21)
    def fill():
        for e in range(4): A(f"v_mov_b32 v{AC_+e}, 0")
        for e in range(2, 4): A(f"v_mov_b32 v{AH_+e}, 0")
        A(f"s_lshr_b32 s{LIM}, s{CNT}, 2")
        A(f"s_mov_b32 s{X1D}, 2")
        estimate(2, opts.get("ve2", 13), CNT)
    reread(True, fill)
    A(f"s_cmp_eq_u32 s{NH}, 0")
    A(f"s_cselect_b32 s{LVL}, 0, s{LVL}")
    g.stamp(4, 2)
    g.lab("L_vs1")
    A(f"s_cmp_eq_u32 s{HST}, 0"); A("s_cbranch_scc1 L_vs1b")
    A(f"s_sub_u32 s68, s{T_}, s{TH}")
    A(f"s_cmp_le_u32 s{LVL}, s68"); A("s_cbranch_scc1 L_snap")
    A(f"s_cmp_lt_u32 s{T_}, s{LIM}"); A("s_cbranch_scc1 L_ks2")
    A("s_waitcnt vmcnt(0)")
    g.lab("L_snap")
    g.stamp(5, 2)
    for i in range(8):
        A(f"s_cmp_le_u32 s{NH}, {4*i}"); A("s_cbranch_scc1 L_snp2")
        pv(40 + i, slot(24 + i), AH_)
    g.lab("L_snp2")
    out_addr()
    A("s_nop 0")
    A(f"s_mov_b32 s{HST}, 0")
    if VB1: A(f"s_sub_i32 s{DB}, s{DB}, {VB1}")
    A(f"s_mov_b32 s{NW}, {LAG*4096}")
    A(f"s_cmp_lg_u32 s{NSP}, 0"); A("s_cbranch_scc1 L_vs1b")
    prelim(AH_)
    g.stamp(9); g.stamp(7, 2)
    A("s_branch L_vs1b")
    g.lab("L_vq")
    fetch()
    g.lab("L_vs1b")
    if opts.get("early", 0):
        A(f"s_lshr_b32 s68, s{SBI}, 16")
        A(f"s_cmp_gt_u32 s68, s{FIN}"); A("s_cbranch_scc1 L_hand")
    g.lab("L_vs2")
    A(f"s_cmp_lt_u32 s{T_}, s{LIM}"); A("s_cbranch_scc1 L_ks2")
    g.lab("L_ev")
    A(f"s_cmp_eq_u32 s{FIN}, 0"); A("s_cbranch_scc1 L_hand")
    A(f"s_add_u32 s68, s{T_}, {LAG}")
    A(f"s_cmp_lt_u32 s68, s{FIN}"); A("s_cbranch_scc0 L_wt1")
    A(f"s_add_u32 s{T_}, s{T_}, 1")
    A("s_mov_b64 exec, 1")
    A(f"ds_dec_u32 v{PA}, v{LRD} offset:{L_RM}")
    A("s_mov_b64 exec, -1")
    A("s_branch L_wtx")

    g.lab("L_hand")
    g.stamp(7)
    A("v_mov_b32 v3, 0")
    wait_cnt(g, f"ds_read_b64 v[18:19], v3 offset:{L_SCN}", 18, 0x10000 + 64 * NS_, 1)
    g.stamp(4)
    A(f"v_add_f32 v21, 0x{f2u(-ZERO_GAP):08x}, v19")
    if opts.get("noskip"): A("v_mov_b32 v21, 0xff800000")
    build(0, 21); build(1, 21)
    def fill2():
        A(f"s_add_u32 s{FIN}, s{CNT}, {3 + 4*LAG}")
        A(f"s_lshr_b32 s{FIN}, s{FIN}, 2")
        A(f"s_sub_u32 s{LIM}, s{FIN}, {LAG + opts.get('burst', 3)}")
        A(f"s_max_i32 s{LIM}, s{LIM}, 0")
        estimate(2, 3, CNT)
    reread(True, fill2)
    A("s_branch L_vs2")

    g.lab("L_work")
    ret2 = f"s_setpc_b64 s[{RET2}:{RET2+1}]"
    for k, l in ((4, "L_w3"), (3, "L_w2b"), (5, "L_w5")):
        A(f"s_cmp_eq_u32 s{STA}, {k}"); A(f"s_cbranch_scc1 {l}")
    def landed(n):
        A(f"s_add_u32 s68, s{LVL}, {n}")
        A(f"s_cmp_lt_u32 s{T_}, s68"); A("s_cbranch_scc1 L_wr")
    g.lab("L_w2")
    assert J0 >= 8 + LAG
    A("v_and_b32 v3, 0xf0, v0")
    A(f"ds_read_b128 v[4:7], v3 offset:{L_QV}")
    A("s_waitcnt lgkmcnt(0)")
    chk_sentinel(g, [4, 5, 6, 7], 8)
    A("s_cmp_lg_u64 vcc, 0"); A("s_cbranch_scc1 L_wr")
    dots(0)
    A(f"s_mov_b32 s{STA}, 3"); A(f"s_mov_b32 s{NXT}, 17")
    g.lab("L_wr")
    A(ret2)
    g.lab("L_w2b")
    landed(16)
    g.stamp(9, 2)
    dots(1)
    finish(0)
    A(f"s_mov_b32 s{STA}, 4")
    A(f"s_mov_b32 s{HST}, 0")
    g.stamp(8)
    A(ret2)
    g.lab("L_w5")
    landed(24)
    dots(2)
    A(f"s_mov_b32 s{STA}, 6"); A(f"s_mov_b32 s{NXT}, 99")
    A(ret2)
    g.lab("L_w3")
    A("v_mov_b32 v3, 0")
    A(f"ds_read_b64 v[18:19], v3 offset:{L_ECN}")
    A("s_waitcnt lgkmcnt(0)")
    A(f"v_cmp_gt_u32 vcc, 0x{0x10000 + 64 * NS_:x}, v18")
    A("s_cmp_lg_u64 vcc, 0"); A("s_cbranch_scc1 L_wr")
    A(f"ds_read_b64 v[20:21], v3 offset:{L_E1}")
    A("s_waitcnt lgkmcnt(0)")
    A(f"v_add_f32 v21, 0x{f2u(-THETA):08x}, v21")
    A(f"v_cmp_nlt_f32 vcc, v{OFF[0]+1}, v21")
    A(f"v_readfirstlane_b32 s{HTH}, v21")
    A(f"v_readfirstlane_b32 s{EV}, v20")
    A(f"s_mov_b32 s{NH}, 0")
    A("s_bcnt1_i32_b64 s68, vcc")
    A(f"s_cmp_gt_u32 s68, {HCAP}")
    A(f"s_cselect_b32 s{NSP}, 1, 0")
    A("s_cbranch_scc1 L_w4")
    A(f"s_mov_b32 s{CNT}, {HPOS}")
    build(0, 21)
    A(f"s_mov_b32 s{NH}, s69"); A(f"s_mov_b32 s{CNT}, 0")
    g.lab("L_w4")
    A(f"v_add_f32 v21, 0x{f2u(DEL - ZERO_GAP):08x}, v20")
    build(0, 21)
    estimate(1, opts.get("ve1", 6), CNT, False)
    if opts.get("ka1", 0):
        A(f"s_sub_i32 s68, s{VE}, {opts.get('kt1', 20)}")
        A(f"s_max_i32 s68, s68, {opts.get('kl1', -4)}")
        A(f"s_mul_i32 s68, s68, {int(opts['ka1']*4096)}")
        A(f"s_add_i32 s{DB}, s{DB}, s68")
    A(f"s_mov_b32 s{STA}, 5"); A(f"s_mov_b32 s{NXT}, 25")
    reread(False)
    A(ret2)

def gen(opts):
    g = G(opts); A = g.A
    opts.setdefault("ka1", 0.06)
    WFL = opts.get("wflags", "nt")
    D0 = opts.get("D0", 4)
    MREP = 8
    TB = 32
    hdr = open(opts["ref"]).read().split("; Override launch")[0]
    g.L.append(hdr.rstrip("\n"))
    g.L.append(""";
;    projections behind the attention overlap the remaining V rows.  When all rows are in, the bf16 attention output is formed
;    numbers of loads in flight only affect speed.""")
    g.L.append(f"; @launch grid=(256,1,1) block=(768,1,1) lds={LDS_BYTES}")
    g.L.append('.amdgcn_target "amdgcn-amd-amdhsa--gfx950"\n.text')
    g.L.append(f".globl {KNAME}\n.p2align 8\n.type {KNAME},@function\n{KNAME}:")
    g.stamp(0, 3)
    A("s_cmp_ge_u32 s2, 256")
    A("s_cbranch_scc1 L_end")
    A("s_load_dwordx16 s[16:31], s[0:1], 0")
    A("s_load_dwordx8 s[32:39], s[0:1], 64")
    A("s_load_dwordx4 s[40:43], s[0:1], 96")
    A("v_lshrrev_b32 v2, 6, v0")
    A("v_and_b32 v1, 63, v0")
    A("v_readfirstlane_b32 s13, v2")
    A("s_bfe_u32 s7, s2, 0x20003")
    A("s_bfe_u32 s6, s2, 0x20005")
    A("s_and_b32 s8, s2, 7")
    A("s_lshl2_add_u32 s6, s8, s6")
    A("s_and_b32 s9, s2, 0x80")
    A("s_lshr_b32 s9, s9, 2")
    A("s_add_u32 s6, s6, s9")
    A("s_mov_b32 s72, 0xfffffffe")
    A("s_mov_b32 s73, 0xffff0000")
    g.stamp(0)
    A("s_cmp_eq_u32 s7, 3")
    A("s_cbranch_scc1 L_serv")
    A("s_cmp_eq_u32 s13, 0")
    A("s_cbranch_scc1 L_pub")
    stream(g, opts)

    def tag():
        A("s_waitcnt lgkmcnt(0)")
        make_tag(g)
    def tag_bytes():
        for i in range(4): A(f"s_bfe_u32 s{TB+i}, s{ST}, 0x{(8 << 16) | (8 * i):x}")
    def table():
        A("s_getpc_b64 s[56:57]")
        l = g.uniq("pc"); g.lab(l)
        A("s_lshr_b32 s3, s2, 5"); A("s_lshl3_add_u32 s3, s3, s8"); A("s_lshl_b32 s3, s3, 2")
        A(f"s_add_u32 s3, s3, L_table-{l}")
        A("s_load_dword s14, s[56:57], s3")

    g.lab("L_pub")
    NT = opts.get("nt", 2)
    if NT:
        A("s_getpc_b64 s[56:57]")
        g.lab("L_pct")
        A("s_lshr_b32 s3, s2, 3"); A("s_lshl_b32 s3, s3, 2")
        A("s_add_u32 s3, s3, L_touch-L_pct")
        A("s_load_dword s14, s[56:57], s3")
        A("s_waitcnt lgkmcnt(0)")
        for k in range(NT):
            e = g.uniq("tq"); e2 = g.uniq("te")
            A(f"s_bfe_u32 s48, s14, 0x{(3 << 16) | (8*k):x}"); A("s_lshl_b32 s48, s48, 6")
            A("v_add_u32 v2, s48, v1")
            A(f"s_bfe_u32 s48, s14, 0x{(3 << 16) | (8*k+3):x}")
            A(f"s_bitcmp1_b32 s14, {8*k+7}"); A(f"s_cbranch_scc1 {e2}")
            A(f"s_bitcmp1_b32 s14, {8*k+6}"); A(f"s_cbranch_scc1 {e}")
            A("s_lshl1_add_u32 s48, s8, s48"); A("s_lshl_b32 s48, s48, 7")
            A("v_mul_u32_u24 v2, 6144, v2")
            A("v_add_u32 v2, s48, v2")
            A("global_load_dword v167, v2, s[36:37]")
            A(f"s_branch {e2}")
            g.lab(e)
            A("s_lshl3_add_u32 s48, s8, s48"); A("s_lshl_b32 s48, s48, 7")
            A("v_lshl_add_u32 v2, v2, 13, s48")
            A("global_load_dword v167, v2, s[22:23]")
            g.lab(e2)
    A("v_mov_b32 v38, 0")
    A("v_mov_b32 v4, -1")
    A("v_mov_b32 v8, 0xff800000"); A("v_mov_b32 v9, 0")
    A("v_lshlrev_b32 v2, 3, v1")
    A(f"ds_write_b64 v2, v[8:9] offset:{L_S4}")
    A("v_mov_b32 v5, 0"); A("v_mov_b32 v6, 0"); A("v_mov_b32 v7, 0")
    A("v_lshlrev_b32 v2, 2, v1")
    A(f"ds_write_b32 v2, v4 offset:{L_QV}")
    A(f"ds_write_b128 v38, v[4:7] offset:{L_ML}")
    A("v_mov_b32 v10, 0"); A("v_mov_b32 v11, v8"); A("v_mov_b32 v12, 0"); A("v_mov_b32 v13, v8")
    A(f"ds_write_b128 v38, v[10:13] offset:{L_SCN}")
    A(f"v_mov_b32 v10, {1024+NS_*(32-D0)}"); A("v_mov_b32 v11, 0"); A("v_mov_b32 v12, 1024"); A("v_mov_b32 v13, 0")
    A(f"ds_write_b128 v38, v[10:13] offset:{L_RM}")
    A("v_mov_b32 v4, 0")
    A(f"ds_write_b128 v38, v[4:7] offset:{L_SN}")
    A(f"s_getreg_b32 s{SXCC}, hwreg(HW_REG_XCC_ID, 0, 4)")
    A("s_waitcnt lgkmcnt(0)")
    A(f"s_load_dword s{ST}, s[42:43], {WS_E}")
    A("s_barrier")
    tag()
    A(f"s_add_u32 s{SXCC}, s{SXCC}, s{ST}")
    def merge(nl, base):
        A(f"v_and_b32 v9, {nl-1}, v1")
        A("v_lshlrev_b32 v9, 3, v9")
        A(f"ds_read_b64 v[10:11], v9 offset:{base}")
        mods = ["quad_perm:[1,0,3,2]", "quad_perm:[2,3,0,1]", "row_half_mirror", "row_mirror"][:nl.bit_length()-1]
        A("s_waitcnt lgkmcnt(0)")
        if nl == 16: A("v_mov_b32 v16, v10")
        for i, m_ in enumerate(mods):
            src = 10 if i == 0 else 8
            A(f"v_max_f32_dpp v8, v{src}, v{src} {m_} row_mask:0xf bank_mask:0xf")
            if i + 1 < len(mods): A("s_nop 1")
        A("v_sub_f32 v9, v10, v8")
        A(f"v_mul_f32 v9, 0x{LOG2E:08x}, v9")
        A("v_exp_f32 v9, v9")
        A("s_nop 0")
        A("v_mul_f32 v10, v9, v11")
        for m_ in mods:
            A("s_nop 1")
            A(f"v_add_f32_dpp v10, v10, v10 {m_} row_mask:0xf bank_mask:0xf")
    SB = 20
    def sissue(n, nd, off):
        for i in range(n): A(f"s_load_dwordx{nd} s[{SB+4*i}:{SB+4*i+nd-1}], s[42:43], s{54+i} offset:{off} glc")
    def spoll(n, nd, off, name, sleep):
        A("s_mov_b32 s70, 0")
        A(f"s_branch {name}c")
        g.lab(name)
        sissue(n, nd, off)
        g.lab(name + "c")
        A("s_waitcnt lgkmcnt(0)")
        tags = [SB + 4*i + k for i in range(n) for k in range(1, nd, 2)]
        A(f"s_xor_b32 s68, s{tags[0]}, s{ST}")
        for k in tags[1:]:
            A(f"s_xor_b32 s69, s{k}, s{ST}"); A("s_or_b32 s68, s68, s69")
        A(f"s_cbranch_scc0 {name}d")
        A(f"s_sleep {sleep}")
        A("s_add_u32 s70, s70, 1")
        A(f"s_cmp_lt_u32 s70, {SPIN_MAX}")
        A(f"s_cbranch_scc1 {name}")
        g.lab(name + "d")
    def sibs():
        A("s_add_u32 s52, s7, 1"); A("s_cmp_eq_u32 s52, 3"); A("s_cselect_b32 s52, 0, s52")
        A("s_add_u32 s53, s52, s7"); A("s_sub_u32 s53, 3, s53")
        for i in range(2):
            A(f"s_lshl2_add_u32 s{54+i}, s6, s{52+i}"); A(f"s_lshl_b32 s{54+i}, s{54+i}, 7")
    A("s_lshl2_add_u32 s64, s6, s7"); A("s_lshl_b32 s64, s64, 7")
    A(f"s_add_u32 s64, s64, {WS_S1}")
    A("v_mov_b32 v18, s64")
    A(f"v_add_u32 v19, {WS_S2-WS_S1}, v18")
    A("v_mov_b32 v17, 0x10000")
    PT = opts.get("pt", 15)
    if PT & 1:
        A("s_lshl2_add_u32 s49, s6, s7"); A("s_lshl_b32 s49, s49, 9"); A(f"s_add_u32 s49, s49, {WS_OP}")
        A("v_and_b32 v10, 3, v1"); A("v_lshl_add_u32 v10, v10, 7, s49")
        A("v_bfe_u32 v11, v1, 2, 1"); A(f"v_mul_u32_u24 v11, {R2}, v11"); A("v_add_u32 v10, v10, v11")
        A("s_mov_b64 exec, 0xff")
        A("global_load_dword v166, v10, s[42:43] sc1")
        A("s_mov_b64 exec, 1")
        A("global_load_dword v166, v18, s[42:43] sc1")
        A("global_load_dword v166, v19, s[42:43] sc1")
        A("s_mov_b64 exec, -1")
    l = g.uniq("qw")
    A("s_mov_b32 s70, 0")
    g.lab(l)
    A(f"ds_read_b32 v8, v38 offset:{L_RM}")
    A("s_waitcnt lgkmcnt(0)")
    A(f"v_cmp_lt_u32 vcc, {1024 + NS_ * (32 - opts.get('jq', 13))}, v8")
    spin_tail(g, l, l + "d", 4, 8)
    WIN = (8, 24, 44, 84)
    A("s_lshl_b32 s3, s6, 9")
    A("s_mov_b64 exec, 1")
    for h in range(2):
        A("s_mov_b32 s70, 0")
        g.lab(f"L_qp{h}")
        for i, w in enumerate(WIN): A(f"s_load_dwordx16 s[{w}:{w+15}], s[42:43], s3 offset:{WS_Q+256*h+64*i} glc")
        A(f"s_mov_b32 s62, -1"); A("s_mov_b32 s63, 0")
        A("s_waitcnt lgkmcnt(0)")
        for w in WIN:
            for k in range(1, 16, 2):
                A(f"s_and_b32 s62, s62, s{w+k}"); A(f"s_or_b32 s63, s63, s{w+k}")
        A(f"s_xor_b32 s62, s62, s{ST}"); A(f"s_xor_b32 s63, s63, s{ST}"); A("s_or_b32 s62, s62, s63")
        A(f"s_cbranch_scc0 L_qp{h}d")
        A(f"s_sleep {opts.get('qsl', 2)}")
        A("s_add_u32 s70, s70, 1")
        A(f"s_cmp_lt_u32 s70, {SPIN_MAX}")
        A(f"s_cbranch_scc1 L_qp{h}")
        g.lab(f"L_qp{h}d")
        for i, w in enumerate(WIN):
            for k in range(8): A(f"v_mov_b32 v{40+32*h+8*i+k}, s{w+2*k}")
    for i in range(16): A(f"ds_write_b128 v38, {vr(40+4*i,4)} offset:{L_QV+16*i}")
    A("s_mov_b64 exec, -1")
    A("s_and_b32 s8, s2, 7"); A("s_mov_b32 s13, 0")
    g.stamp(9)
    sibs()
    wait_cnt(g, f"ds_read_b64 v[8:9], v38 offset:{L_ECN}", 8, 64 * NS_, 2)
    sissue(2, 2, WS_S1)
    A("v_mov_b32 v8, v9")
    A(f"v_mov_b32 v9, s{ST}")
    A("s_mov_b64 exec, 1")
    A("global_store_dwordx2 v18, v[8:9], s[42:43] sc1")
    g.stamp(1)
    spoll(2, 2, WS_S1, "L_s3e", opts.get("ssl", 2))
    A(f"v_mov_b32 v12, s{SB}")
    A(f"v_max3_f32 v10, v8, v12, s{SB+4}")
    A(f"v_min3_f32 v11, v8, v12, s{SB+4}")
    A(f"ds_write_b64 v38, v[10:11] offset:{L_E1}")
    A(f"ds_add_u32 v38, v17 offset:{L_ECN}")
    A("s_mov_b64 exec, -1")
    g.stamp(3)
    if True:
        A("s_lshl_b32 s64, s8, 7")
        A(f"s_load_dwordx8 s[20:27], s[42:43], s64 offset:{WS_HDR} glc")
        A("s_waitcnt lgkmcnt(0)")
        A(f"s_xor_b32 s68, s20, s{SXCC}")
        for k in range(1, 8):
            A(f"s_xor_b32 s69, s{20+k}, s{SXCC}"); A("s_or_b32 s68, s68, s69")
        A(f"s_cselect_b32 s{SLOC}, 0, 1")
        if opts.get("nolocal"): A(f"s_mov_b32 s{SLOC}, 0")
    for i, r in enumerate((7, 52, 53)): A(f"v_lshlrev_b32 v{20+i}, 3, s{r}")
    A("v_and_b32 v9, 15, v1"); A("v_lshlrev_b32 v9, 3, v9"); A("v_lshlrev_b32 v11, 2, v1")
    wait_then(g, L_SCN, 64 * NS_, [f"ds_read_b32 v16, v9 offset:{L_ST}"] + [f"ds_read_b32 v{40+i}, v11 offset:{L_OP+512*i}" for i in range(NS_)], 64 * (NS_ - 1))
    A(f"s_waitcnt lgkmcnt({NS_})")
    for i, m_ in enumerate(["quad_perm:[1,0,3,2]", "quad_perm:[2,3,0,1]", "row_half_mirror", "row_mirror"]):
        src = 16 if i == 0 else 8
        A(f"v_max_f32_dpp v8, v{src}, v{src} {m_} row_mask:0xf bank_mask:0xf")
        if i < 3: A("s_nop 1")
    A("v_sub_f32 v9, v16, v8")
    A(f"v_mul_f32 v9, 0x{LOG2E:08x}, v9")
    A("v_exp_f32 v9, v9")
    A("s_waitcnt lgkmcnt(0)")
    A("s_nop 0")
    for i in range(NS_):
        op = "v_mul_f32_dpp" if i < 2 else "v_fmac_f32_dpp"
        A(f"{op} v{10+2*(i&1)}, v9, v{40+i} row_newbcast:{i} row_mask:0xf bank_mask:0xf")
    A("v_add_f32 v10, v10, v12")
    g.wave_red("v_add_f32", 10, 12)
    sissue(2, 4, WS_S2)
    RK = opts.get("rk2", 0)
    if RK:
        A("s_lshl2_add_u32 s64, s6, s7"); A("s_lshl_b32 s64, s64, 7")
        for k, o in enumerate([20, 168, 60, 196, 88, 236, 116, 140]):
            A(f"s_add_u32 s68, s64, {o*128}"); A("s_and_b32 s68, s68, 0x7fff")
            A(f"s_load_dword s{28+k}, s[42:43], s68 offset:{WS_S2+4} glc")
    A(f"v_mov_b32 v9, s{ST}"); A(f"v_mov_b32 v11, s{ST}")
    A("s_mov_b64 exec, 1")
    A("global_store_dwordx4 v19, v[8:11], s[42:43] sc1")
    A(f"ds_write_b32 v20, v8 offset:{L_S4}")
    A(f"ds_write_b32 v20, v10 offset:{L_S4+4}")
    g.stamp(4)
    spoll(2, 4, WS_S2, "L_s3p", opts.get("ssl", 2))
    for i in range(2):
        A(f"v_mov_b32 v{12+2*i}, s{SB+4*i}"); A(f"v_mov_b32 v{13+2*i}, s{SB+4*i+2}")
    A("v_max3_f32 v23, v12, v14, v8")
    A(f"ds_write_b32 v38, v23 offset:{L_MX}")
    A(f"ds_add_u32 v38, v17 offset:{L_SCN}")
    if RK:
        A(f"s_mov_b32 s68, {-opts.get('rk0', 2)}")
        for k in range(8):
            A(f"s_cmp_eq_u32 s{28+k}, s{ST}"); A("s_addc_u32 s68, s68, 0")
        A(f"s_mul_i32 s68, s68, {RK}")
        A("v_add_u32 v17, s68, v17")
    A(f"ds_add_u32 v38, v17 offset:{L_RM+12}")
    for i in range(2): A(f"ds_write_b64 v{21+i}, {vr(12+2*i,2)} offset:{L_S4}")
    A("s_mov_b64 exec, -1")
    merge(4, L_S4)
    A("v_sub_f32 v9, v16, v8")
    A("v_rcp_f32 v10, v10")
    A(f"v_mul_f32 v9, 0x{LOG2E:08x}, v9")
    A("v_exp_f32 v9, v9")
    A("v_lshlrev_b32 v8, 2, v1")
    A("v_mul_f32 v9, v9, v10")
    A("s_mov_b64 exec, 0xffff")
    A(f"ds_write_b32 v8, v9 offset:{L_S8}")
    A("s_mov_b64 exec, -1")
    A(f"ds_write_b32 v38, v38 offset:{L_ML}")
    g.stamp(5)
    R = 40
    op_prep(g, R, 38, 0)
    wait_then(g, L_SN, NS_, op_reads(L_OP1, R), NS_ - 1)
    op_sum(g, R, True)
    g.stamp(6)
    R1 = 80
    op_prep(g, R1, 38, R2)
    A("s_waitcnt vmcnt(0)")
    wait_cnt(g, f"ds_read_b32 v8, v38 offset:{L_TK}", 8, opts.get("ctk", 1), 4)
    A(f"global_store_dwordx2 v{R+OPA}, {vr(R,2)}, s[42:43] sc1")
    A("s_cmp_eq_u32 s7, 2"); A("s_cbranch_scc1 L_chk")
    wait_then(g, L_TK, NS_, op_reads(L_OP, R1), NS_ - 1)
    op_sum(g, R1, False)
    g.stamp(7)
    A("s_branch L_fin")

    g.lab("L_chk")
    TG = 160; RB = 136
    for k in range(2): A(f"v_and_b32 v{TG+k}, 0xff, v{R+OPA+1+k}")
    A("s_lshl_b32 s10, s6, 11"); A(f"s_add_u32 s10, s10, {WS_OP}")
    A("v_lshl_add_u32 v2, v1, 3, s10")
    def head_sum(b_, t, src=None):
        src = src or list(range(b_, b_ + 6))
        for i in range(6): A(f"v_xor_b32 v{b_+i}, v{src[i]}, v{TG+(i&1)}")
        A(f"v_or3_b32 v{t}, v{b_}, v{b_+1}, v{b_+2}")
        A(f"v_or3_b32 v{t+1}, v{b_+3}, v{b_+4}, v{b_+5}")
        for i in range(6): A(f"v_or_b32 v{b_+i}, 0x80, v{b_+i}")
        A(f"v_or_b32 v{t}, v{t}, v{t+1}")
        A(f"v_pk_add_f32 {vr(b_,2)}, {vr(b_,2)}, {vr(b_+2,2)}")
        A(f"v_lshlrev_b32 v{t}, 24, v{t}")
        A(f"v_pk_add_f32 {vr(b_,2)}, {vr(b_,2)}, {vr(b_+4,2)}")
        A(f"v_cmp_ne_u32 vcc, 0, v{t}")
        A(f"v_cvt_pk_bf16_f32 v{b_}, v{b_}, v{b_+1}")
    RAW = RB + 18
    def looks(k, v=2):
        for i in range(2): A(f"global_load_dwordx2 {vr(RAW-24*k+2*i,2)}, v{v}, s[42:43] offset:{512*i} sc1")
    def settle(k, sleep, own, depth):
        raw = RAW - 24*k
        A("s_mov_b32 s70, 0")
        A(f"s_branch L_cp{k}c")
        g.lab(f"L_cp{k}")
        looks(k)
        if sleep: A(f"s_sleep {sleep}")
        A(f"s_waitcnt vmcnt({2*(depth-1)})")
        g.lab(f"L_cp{k}c")
        head_sum(RB+8*k, RB+16, [raw, raw+1, raw+2, raw+3, own, own+1])
        spin_tail(g, f"L_cp{k}", f"L_cp{k}d", 0)
    looks(0)
    A(f"v_add_u32 v3, {R2}, v2")
    wait_then(g, L_TK, NS_, op_reads(L_OP, R1), NS_ - 1)
    looks(1, 3)
    op_sum(g, R1, False)
    g.stamp(7)
    A("s_waitcnt vmcnt(1)")
    settle(0, 4, R, 1)
    A(f"v_add_u32 v2, {R2}, v2")
    settle(1, opts.get("csl", 0), R1, opts.get("cpipe", 1))
    A(f"v_cmp_ne_u32 vcc, v{RB}, v{RB+8}")
    A("s_cmp_eq_u64 vcc, 0"); A("s_cbranch_scc1 L_fin")
    A("s_waitcnt vmcnt(0)")
    fallback(g, head_sum, g.wave_red)

    g.lab("L_serv")
    A("s_cmp_ge_u32 s13, 4"); A("s_cbranch_scc1 L_team")
    A("s_cmp_lt_u32 s13, 2"); A("s_cbranch_scc1 L_sv1")
    if opts.get("cpf", 1):
        A("s_getpc_b64 s[56:57]")
        g.lab("L_pcc")
        A(f"s_sub_u32 s56, s56, L_pcc-{KNAME}"); A("s_subb_u32 s57, s57, 0")
        A("s_lshr_b32 s3, s2, 5"); A("s_lshl1_add_u32 s3, s3, s13"); A("s_sub_u32 s3, s3, 2")
        A("s_lshl_b32 s3, s3, 12")
        A("v_lshl_add_u32 v2, v1, 6, s3")
        A(f"v_min_u32 v2, L_end-{KNAME}, v2")
        A("global_load_dword v3, v2, s[56:57]")
    if opts.get("amp"):
        A("s_cmp_lg_u32 s2, 24"); A("s_cbranch_scc1 L_end")
        A("s_cmp_lg_u32 s13, 2"); A("s_cbranch_scc1 L_end")
        A("s_memrealtime s[78:79]")
        A("s_waitcnt lgkmcnt(0)")
        A(f"s_load_dword s{ST}, s[42:43], {WS_E}")
        A("s_barrier")
        tag()
        A("s_waitcnt vmcnt(0)")
        A("v_and_b32 v2, 31, v1"); A("v_lshlrev_b32 v2, 7, v2"); A(f"v_add_u32 v2, {WS_DN}, v2")
        A("v_lshlrev_b32 v3, 11, v1"); A(f"v_add_u32 v3, {WS_OQ}, v3")
        A(f"s_and_b32 s60, s{ST}, 0xff")
        g.lab("L_am0")
        A("s_sleep 4"); A("s_memrealtime s[64:65]"); A("s_waitcnt lgkmcnt(0)")
        A("s_sub_u32 s64, s64, s78"); A(f"s_cmp_lt_u32 s64, {opts.get('am0', 1950)}"); A("s_cbranch_scc1 L_am0")
        which = opts.get("amw", 3)
        A("s_mov_b32 s70, 0")
        g.lab("L_am1")
        A("global_load_dword v4, v2, s[42:43] sc1")
        for i in range(3): A(f"global_load_dword v{5+i}, v3, s[42:43] offset:{512*i} sc1")
        A("s_waitcnt vmcnt(0)")
        A("s_mov_b64 vcc, 0")
        if which & 1: A(f"v_cmp_ne_u32 vcc, s{ST}, v4")
        if which & 2:
            for i in range(3):
                A(f"v_and_b32 v{5+i}, 0xff, v{5+i}"); A(f"v_cmp_ne_u32 s[68:69], s60, v{5+i}"); A("s_or_b64 vcc, vcc, s[68:69]")
        spin_tail(g, "L_am1", "L_am2", 0)
        A("s_memrealtime s[66:67]"); A("s_waitcnt lgkmcnt(0)")
        A("s_sub_u32 s66, s66, s78"); A(f"s_mul_i32 s66, s66, {opts['amp']}")
        g.lab("L_am3")
        A("s_sleep 1")
        A("s_memrealtime s[64:65]"); A("s_waitcnt lgkmcnt(0)")
        A("s_sub_u32 s64, s64, s78"); A("s_cmp_lt_u32 s64, s66"); A("s_cbranch_scc1 L_am3")
    A("s_endpgm")
    g.lab("L_sv1")
    A("v_mov_b32 v38, 0")
    A("v_mov_b32 v4, -1"); A("v_mov_b32 v5, 0"); A("v_mov_b32 v6, 0"); A("v_mov_b32 v7, 0")
    A(f"ds_write_b128 v38, v[4:7] offset:{L_ML}")
    A(f"ds_write_b64 v38, v[6:7] offset:{L_CNA}")
    A(f"s_getreg_b32 s{SXCC}, hwreg(HW_REG_XCC_ID, 0, 4)")
    A("s_waitcnt lgkmcnt(0)")
    A(f"s_load_dword s{ST}, s[42:43], {WS_E}")
    table()
    A("s_barrier")
    tag()
    tag_bytes()
    A("s_cmp_eq_u32 s13, 0"); A("s_cbranch_scc1 L_sv0")
    A("s_bfe_u32 s61, s14, 0x80010")
    A("s_cmp_ge_u32 s61, 32"); A("s_cbranch_scc1 L_fin")
    poll_lds(g, [f"ds_read_b32 v8, v38 offset:{L_ML}"], [8], 9, 16)
    A("s_branch L_r_f2")

    g.lab("L_sv0")
    if True:
        A(f"s_add_u32 s{SXCC}, s{SXCC}, s{ST}")
        A("s_lshr_b32 s49, s2, 5"); A("s_lshl_b32 s50, s8, 5"); A("s_add_u32 s49, s49, s50"); A("s_lshl_b32 s49, s49, 2")
        A("v_mov_b32 v8, s49"); A(f"v_mov_b32 v9, s{SXCC}")
        A("s_mov_b64 exec, 1")
        A(f"global_store_dword v8, v9, s[42:43] offset:{WS_HDR} sc1")
        A("s_mov_b64 exec, -1")
    for i in range(3):
        A(f"s_lshl_b32 s{54+i}, s6, 9"); A(f"s_add_u32 s{54+i}, s{54+i}, {128*i}")
    WDL = opts.get("wdl", 2)
    if WDL:
        wait_cnt(g, f"ds_read_b32 v8, v38 offset:{L_CNA}", 8, opts.get("wdc", 8), 16)
        if opts.get('wds', 0): A(f"s_sleep {opts.get('wds', 0)}")
        if opts.get("wdn", 1):
            sissue(opts.get("wdn", 1), 2, WS_S1)
            spoll(opts.get("wdn", 1), 2, WS_S1, "L_s3w", 8)
        A("v_mov_b32 v8, 1")
        A(f"ds_write_b32 v38, v8 offset:{L_ML+4}")
    wait_cnt(g, f"ds_read_b32 v8, v38 offset:{L_CNA}", 8, 12, 16)
    sissue(3, 2, WS_S2)
    spoll(3, 2, WS_S2, "L_s3s", 8)
    A(f"ds_write_b32 v38, v38 offset:{L_ML}")
    g.stamp(5)
    A("s_branch L_fin")

    g.lab("L_team")
    A("s_and_b32 s5, s13, 3")
    A("v_and_b32 v0, 0xff, v0")
    A("v_mov_b32 v38, 0")
    A(f"s_mov_b32 s{STG}, 0")
    A("s_lshr_b32 s60, s2, 5")
    A("v_lshrrev_b32 v12, 3, v0")
    A("v_lshlrev_b32 v12, 5, v12")
    A("v_bfe_u32 v3, v1, 2, 1")
    A("v_lshl_add_u32 v12, v3, 10, v12")
    A("v_and_b32 v8, 3, v1")
    A("v_lshl_add_u32 v37, v8, 3, v12")
    A("v_and_b32 v12, 0xffffffdf, v12")
    A("v_lshl_add_u32 v12, v8, 4, v12")
    A("v_bfe_u32 v8, v1, 3, 1")
    A("v_lshl_add_u32 v12, v8, 3, v12")
    A("v_lshl_add_u32 v12, v3, 5, v12")
    A("s_waitcnt lgkmcnt(0)")
    A(f"s_load_dword s{ST}, s[42:43], {WS_E}")
    A("s_barrier")
    A("s_cmp_ge_u32 s13, 8"); A("s_cbranch_scc1 L_r_mod")

    def line_out_addr(v, bsh=6, ush=7):
        A(f"v_and_b32 v{v}, 1, v1")
        A(f"v_lshlrev_b32 v{v}, {bsh}, v{v}")
        A("v_lshrrev_b32 v3, 4, v1")
        A(f"v_lshl_add_u32 v{v}, v3, 4, v{v}")
        A(f"s_lshl_b32 s49, s5, {ush}")
        A("s_add_u32 s49, s49, s58")
        A(f"v_add_u32 v{v}, s49, v{v}")
    def pack_tagged():
        A("v_cvt_pk_bf16_f32 v8, v8, v9")
        A("v_cvt_pk_bf16_f32 v10, v10, v11")
        A(f"v_mov_b32 v9, s{ST}")
        A(f"v_mov_b32 v11, s{ST}")
    def go(k):
        A("v_mov_b32 v3, 1")
        A("s_mov_b64 exec, 1")
        A(f"ds_add_u32 v38, v3 offset:{L_GO+4*k}")
        A("s_mov_b64 exec, -1")

    g.T = TA
    g.lab("L_r_q")
    A("s_lshl3_add_u32 s61, s8, s60")
    A("s_lshl_b32 s48, s61, 7")
    A("s_lshl_b32 s58, s61, 8")
    A(f"s_add_u32 s58, s58, {WS_Q}")
    A("global_load_dwordx2 v[14:15], v37, s[16:17]")
    srd(g, 44, 22, 512*8192)
    A("s_cmp_ge_u32 s60, 2"); A("s_cbranch_scc1 L_q_go")
    wait_cnt(g, f"ds_read_b32 v8, v38 offset:{L_GO+4}", 8, 4, 1)
    g.lab("L_q_go")
    dma_tile64(g, 8192, WFL, opts.get("PQ", 0))
    go(0)
    tag()
    A("v_bfe_u32 v6, v1, 2, 1")
    A("v_lshlrev_b32 v6, 5, v6")
    A(f"v_add_u32 v6, {TA.RED}, v6")
    A("s_lshl_b32 s49, s5, 3")
    A("v_add_u32 v5, s49, v6")
    A("s_waitcnt vmcnt(16)")
    unpack4(g, 20, 14)
    ln_partial(g, 20)
    A("s_waitcnt vmcnt(0) lgkmcnt(0)")
    hsync(g, 9)
    ln_apply(g, 20, 24)
    A("s_lshl_b32 s49, s8, 13"); A(f"s_add_u32 s49, s49, {WS_MA}")
    A("v_lshl_add_u32 v15, v0, 4, s49")
    A("v_add_u32 v36, 0x1000, v15")
    def mod_loads():
        A("s_mov_b64 exec, s[64:65]")
        A("global_load_dwordx4 v[16:19], v15, s[42:43] sc1")
        A("s_mov_b64 exec, s[66:67]")
        A("global_load_dwordx4 v[32:35], v36, s[42:43] sc1")
        A("s_mov_b64 exec, -1")
    A("s_mov_b64 s[64:65], -1"); A("s_mov_b64 s[66:67], -1")
    mod_loads()
    tr_tile64(g)
    line_out_addr(13, 14, 6)
    act_addr(g, 14, TA.ACT, ACT_BS)
    g.stamp(1)
    A("s_mov_b32 s70, 0")
    A("s_branch L_q_c")
    g.lab("L_q_p")
    mod_loads()
    g.lab("L_q_c")
    A("s_waitcnt vmcnt(0)")
    A(f"v_cmp_ne_u32 s[64:65], s{ST}, v17"); A(f"v_cmp_ne_u32 s[68:69], s{ST}, v19"); A("s_or_b64 s[64:65], s[64:65], s[68:69]")
    A(f"v_cmp_ne_u32 s[66:67], s{ST}, v33"); A(f"v_cmp_ne_u32 s[68:69], s{ST}, v35"); A("s_or_b64 s[66:67], s[66:67], s[68:69]")
    A("s_or_b64 vcc, s[64:65], s[66:67]")
    A("s_or_b32 s64, s64, 1"); A("s_or_b32 s66, s66, 1")
    spin_tail(g, "L_q_p", "L_q_ok", opts.get("msleep", 2))
    g.stamp(3)
    unpack4(g, 28, 32, 2)
    unpack4(g, 24, 16, 2)
    for i in range(4): A(f"v_add_f32 v{28+i}, 1.0, v{28+i}")
    for i in range(4): rnd(g, 28+i)
    for i in range(4): A(f"v_mul_f32 v{20+i}, v{20+i}, v{28+i}")
    for i in range(4): rnd(g, 20+i)
    for i in range(4): A(f"v_add_f32 v{20+i}, v{20+i}, v{24+i}")
    A("v_cvt_pk_bf16_f32 v16, v20, v21")
    A("v_cvt_pk_bf16_f32 v17, v22, v23")
    A(f"ds_write_b64 v12, v[16:17] offset:{TA.ACT}")
    hsync(g, 9)
    gemv(g, 16, 14, 8)
    pack_tagged()
    guard(g, 8); guard(g, 10)
    for x in EX8: A(x)
    A("global_store_dwordx4 v13, v[8:11], s[42:43] sc1")
    A("s_mov_b64 exec, -1")
    g.stamp(4)

    g.lab("L_r_wo")
    A("s_xor_b32 s61, s60, 1")
    A("s_lshl_b32 s48, s8, 19")
    A("s_lshl_b32 s49, s61, 7")
    A("s_add_u32 s48, s48, s49")
    A("s_lshr_b32 s58, s8, 1"); A("s_lshl_b32 s58, s58, 14")
    A("s_and_b32 s49, s8, 1"); A("s_lshl_b32 s49, s49, 12"); A("s_add_u32 s58, s58, s49")
    A("s_lshl_b32 s49, s61, 9")
    A("s_add_u32 s58, s58, s49")
    A(f"s_add_u32 s58, s58, {WS_AP}")
    srd(g, 44, 24, 4096*1024)
    if WDL & 1: wait_cnt(g, f"ds_read_b32 v8, v38 offset:{L_ML+4}", 8, 1, 8)
    dma_tile64(g, 1024, WFL, opts.get("PW", 3))
    tag_bytes()
    A("s_lshl2_add_u32 s49, s8, s5"); A("s_lshl_b32 s49, s49, 11")
    A(f"s_add_u32 s49, s49, {WS_OP}")
    A("v_lshrrev_b32 v12, 5, v1")
    A("v_and_b32 v16, 31, v1")
    A("v_lshlrev_b32 v15, 16, v12")
    A("v_lshl_add_u32 v15, v16, 4, v15")
    A("v_add_u32 v15, s49, v15")
    A(f"v_mul_u32_u24 v12, {ACT_BS}, v12")
    A("v_bfe_u32 v16, v1, 3, 2")
    A("v_lshl_add_u32 v12, v16, 6, v12")
    A("v_and_b32 v16, 3, v1")
    A("v_lshl_add_u32 v12, v16, 4, v12")
    A("v_bfe_u32 v16, v1, 2, 1")
    A("v_lshl_add_u32 v12, v16, 3, v12")
    A("s_lshl_b32 s49, s5, 8")
    A("v_add_u32 v12, s49, v12")
    line_out_addr(13)
    AREP = opts.get("arep", 2)
    A(f"v_bfe_u32 v3, v1, 1, {max(AREP.bit_length()-1, 0)}")
    A("v_lshl_add_u32 v13, v3, 16, v13")
    A("v_mov_b32 v36, 0xff")
    if PT & 2: A("global_load_dword v11, v13, s[42:43] sc1")
    A("s_waitcnt vmcnt(0)")
    g.stamp(5)
    hsync(g, 9, 4)
    tr_tile64(g)
    poll_lds(g, [f"ds_read_b32 v8, v38 offset:{L_ML}"], [8], 9, 8)
    if opts.get("notail"): go(0); A("s_branch L_fin")

    def sumN(n, src, dst):
        st = n // 2
        for i in range(st):
            for h in range(2):
                A(f"v_pk_add_f32 {vr(dst+4*i+2*h,2)}, {vr(src+4*i+2*h,2)}, {vr(src+4*(i+st)+2*h,2)}")
        st //= 2
        while st:
            for i in range(st):
                for h in range(2):
                    A(f"v_pk_add_f32 {vr(dst+4*i+2*h,2)}, {vr(dst+4*i+2*h,2)}, {vr(dst+4*(i+st)+2*h,2)}")
            st //= 2
    def sum8p(src, dst):
        for p in range(4):
            for h in range(2): A(f"v_pk_add_f32 {vr(dst+8*p+2*h,2)}, {vr(src+8*p+2*h,2)}, {vr(src+8*p+4+2*h,2)}")
        sum8q(dst)
    def sum8q(dst):
        for i in range(2):
            for h in range(2): A(f"v_pk_add_f32 {vr(dst+16*i+2*h,2)}, {vr(dst+16*i+2*h,2)}, {vr(dst+16*i+8+2*h,2)}")
        for h in range(2): A(f"v_pk_add_f32 {vr(dst+2*h,2)}, {vr(dst+2*h,2)}, {vr(dst+16+2*h,2)}")
    def x1_from(S):
        for i in range(4): rnd(g, S+i)
        for i in range(4): A(f"v_mul_f32 v{S+i}, v{S+i}, v{20+i}")
        for i in range(4): rnd(g, S+i)
        for i in range(4): A(f"v_add_f32 v{16+i}, v{16+i}, v{S+i}")
        for i in range(4): rnd(g, 16+i)
    TSL = opts.get("tsl", 0)
    def gather(n, load, raw, tmp, name, depth, gap, fin, msk=20, first=None):
        for i in range(n): A(f"s_mov_b64 s[{msk+2*i}:{msk+2*i+1}], {first[i] if first else -1}")
        def rnd_():
            for i in range(n):
                A(f"s_mov_b64 exec, s[{msk+2*i}:{msk+2*i+1}]")
                load(i, raw + 4*i)
            A("s_mov_b64 exec, -1")
        rnd_()
        A("s_waitcnt vmcnt(0)")
        A("s_mov_b32 s70, 0")
        A(f"s_branch {name}c")
        g.lab(name)
        rnd_()
        if gap: A(f"s_sleep {gap}")
        A(f"s_waitcnt vmcnt({n*(depth-1)})")
        g.lab(name + "c")
        for k in range(4*n): A(f"v_xor_b32 v{tmp+k}, s{TB+k%4}, v{raw+k}")
        for i in range(n): A(f"v_or3_b32 v{28+i}, v{tmp+4*i}, v{tmp+4*i+1}, v{tmp+4*i+2}")
        for i in range(n): A(f"v_or_b32 v{28+i}, v{28+i}, v{tmp+4*i+3}")
        for i in range(n): A(f"v_cmp_ne_u32_sdwa s[{msk+2*i}:{msk+2*i+1}], v{28+i}, v38 src0_sel:BYTE_0 src1_sel:DWORD")
        fin()
        A(f"s_mov_b64 vcc, s[{msk}:{msk+1}]")
        for i in range(1, n): A(f"s_or_b64 vcc, vcc, s[{msk+2*i}:{msk+2*i+1}]")
        for i in range(n): A(f"s_or_b32 s{msk+2*i}, s{msk+2*i}, 1")
        spin_tail(g, name, name + "ok", 0)
    def wo_fin():
        for i in range(12): A(f"v_or_b32 v{VA+32+i}, 0x80, v{VA+32+i}")
        for h in range(2): A(f"v_pk_add_f32 {vr(16+2*h,2)}, {vr(VA+32+2*h,2)}, {vr(VA+36+2*h,2)}")
        for h in range(2): A(f"v_pk_add_f32 {vr(16+2*h,2)}, {vr(16+2*h,2)}, {vr(VA+40+2*h,2)}")
    gather(3, lambda i, r: A(f"global_load_dwordx4 {vr(r,4)}, v15, s[42:43] offset:{512*i} sc1"), VA+48, VA+32, "L_wo_",
           opts.get("wpipe", 1), opts.get("wgap", 0), wo_fin)
    A("v_cvt_pk_bf16_f32 v8, v16, v17")
    A("v_cvt_pk_bf16_f32 v9, v18, v19")
    g.stamp(7)
    A(f"ds_write_b64 v12, v[8:9] offset:{TA.ACT}")
    NSPEC = opts.get("nspec", 4)
    gemv(g, 16, 14, 8, 12, 3, NSPEC)
    for i in range(4): A(f"v_bfi_b32 v{8+i}, v36, s{TB+i}, v{8+i}")
    A(f"s_mov_b32 exec_lo, 0x{((1 << 2*AREP) - 1) * 0x10001:08x}"); A("s_mov_b32 exec_hi, exec_lo")
    A("global_store_dwordx4 v13, v[8:11], s[42:43] sc1")
    g.stamp(2)
    go(0)
    A("s_branch L_fin")

    PG = VA + 32
    def pre_gather(offs):
        n = len(offs)
        l = g.uniq("pg"); e = g.uniq("pge")
        A("global_load_dwordx2 v[8:9], v37, s[16:17]")
        A("s_mov_b32 s70, 0")
        g.lab(l)
        for i, o in enumerate(offs):
            if -4096 <= o < 4096: A(f"global_load_dwordx4 {vr(PG+4*i,4)}, v39, s[42:43] offset:{o} sc1")
            else:
                A(f"v_add_u32 v3, {o}, v39")
                A(f"global_load_dwordx4 {vr(PG+4*i,4)}, v3, s[42:43] sc1")
        A("s_waitcnt vmcnt(0)")
        A("s_mov_b64 vcc, 0")
        for i in range(2 * n):
            A(f"v_cmp_ne_u32 s[68:69], s{ST}, v{PG+1+2*i}")
            A("s_or_b64 vcc, vcc, s[68:69]")
        spin_tail(g, l, e, 8)
    adr = [15, 4, 0, 36]
    def ap_addrs():
        for p in range(1, 4): A(f"v_add_u32 v{adr[p]}, {16384*p}, v15")
    def ap_load(i): A(f"global_load_dwordx4 {vr(VA+4*i,4)}, v{adr[i>>1]}, s[42:43] offset:{-4096 if i % 2 == 0 else 0} sc1")

    g.T = TB_
    g.lab("L_r_mod")
    A("global_load_dwordx2 v[14:15], v37, s[34:35]")
    srd(g, 44, 36, 512*6144)
    def mod_tile(first):
        A("s_lshl_b32 s48, s61, 7")
        A("s_lshl_b32 s58, s61, 9")
        A(f"s_add_u32 s58, s58, {WS_MA if first else WS_MOD}")
        dma_tile64(g, 6144, WFL, 0 if first else opts.get("PB", 6))
        if first:
            go(1)
            table()
            tag()
            A("s_waitcnt vmcnt(16)")
            mod_act()
        line_out_addr(13)
        if first:
            A("v_bfe_u32 v3, v1, 1, 3")
            A("v_lshl_add_u32 v13, v3, 13, v13")
        act_addr(g, 14, TB_.ACT, ACT_BS)
        tr64_addr(g)
        A("s_waitcnt vmcnt(0) lgkmcnt(0)")
        g.stamp(1 if first else 4)
        hsync(g, 9, 0 if first else 4)
        gemv_fused(g, 14, 8)
        pack_tagged()
        if not first:
            for x in EX8: A(x)
        A("global_store_dwordx4 v13, v[8:11], s[42:43] sc1")
        A("s_mov_b64 exec, -1")
        g.stamp(3 if first else 5)
        hsync(g, 9)
    def mod_act():
        unpack4(g, 16, 14)
        silu4(g, 16, 20)
        A("v_cvt_pk_bf16_f32 v14, v16, v17")
        A("v_cvt_pk_bf16_f32 v15, v18, v19")
        A(f"ds_write_b64 v12, v[14:15] offset:{TB_.ACT}")
    A("s_cmp_ge_u32 s60, 2"); A("s_cbranch_scc1 L_mod2")
    A("s_lshl1_add_u32 s61, s8, s60")
    mod_tile(True)
    A("s_branch L_mod3")
    g.lab("L_mod2")
    table()
    tag()
    A("s_waitcnt vmcnt(0)")
    mod_act()
    g.lab("L_mod3")
    EF = opts.get("ef", 0)
    def qfirst(bit=2):
        if WDL & bit: wait_cnt(g, f"ds_read_b32 v8, v38 offset:{L_ML+4}", 8, 1, 8)
        else: wait_cnt(g, f"ds_read_b32 v8, v38 offset:{L_CNA}", 8, 4 * opts.get("bh", 2), 4)
    wait_cnt(g, f"ds_read_b32 v8, v38 offset:{L_GO}", 8, 4, 4)
    A("s_and_b32 s61, s14, 0xff")
    A("s_cmp_ge_u32 s61, 48"); A("s_cbranch_scc1 L_r_f1")
    qfirst(4)
    A("s_and_b32 s61, s14, 0xff")
    g.lab("L_mod4")
    A("s_cmp_ge_u32 s61, 48"); A("s_cbranch_scc1 L_r_f1")
    mod_tile(False)
    A("s_lshr_b32 s61, s14, 24")
    A("s_or_b32 s14, s14, 0xff000000")
    A("s_branch L_mod4")

    g.lab("L_r_f1")
    A("s_bfe_u32 s61, s14, 0x80008")
    A("s_cmp_ge_u32 s61, 43"); A("s_cbranch_scc1 L_fin")
    A("s_lshl_b32 s48, s61, 6")
    A("s_lshl_b32 s58, s61, 7")
    A(f"s_add_u32 s58, s58, {WS_FP}")
    A("s_cmp_lt_u32 s5, 2")
    A("s_cselect_b32 s44, s28, s30")
    A("s_cselect_b32 s45, s29, s31")
    A(f"s_mov_b32 s46, {512*2752}")
    for h in range(2):
        A("s_and_b32 s54, s61, 1" if h == 0 else "s_andn2_b32 s54, 1, s61")
        A("v_lshrrev_b32 v2, 2, v1")
        A("v_mul_u32_u24 v2, 5504, v2")
        A("s_and_b32 s49, s5, 2")
        A("s_or_b32 s49, s49, s54")
        A("v_xor_b32 v3, s49, v1")
        A("v_and_b32 v3, 3, v3")
        A("v_lshl_add_u32 v2, v3, 4, v2")
        A("s_and_b32 s55, s5, 1")
        A(f"s_mul_i32 s49, s55, {256*2752}"); A("s_add_u32 s49, s49, s48")
        A("s_mul_i32 s50, s54, 2752"); A("s_add_u32 s49, s49, s50")
        A("s_lshr_b32 s50, s5, 1"); A("s_lshl_b32 s50, s50, 15")
        A("s_lshl_b32 s54, s54, 14"); A("s_add_u32 s50, s50, s54")
        A("s_lshl_b32 s55, s55, 13"); A("s_add_u32 s50, s50, s55")
        A(f"s_add_u32 s50, s50, {TB_.WT}")
        if opts.get("contig"):
            A("v_lshlrev_b32 v2, 4, v1")
            A("s_and_b32 s49, s5, 1"); A("s_lshl1_add_u32 s49, s61, s49"); A("s_lshl_b32 s49, s49, 14"); A(f"s_add_u32 s49, s49, {8192*h}")
            if h == 0: qfirst()
            dma_loop(g, 8, 1024, WFL, opts.get("P1", 4))
        elif h == 0:
            if EF: dma_loop(g, EF, 32*2752, "", 0)
            qfirst()
            if EF < 8: dma_loop(g, 8 - EF, 32*2752, "", opts.get("P1", 4))
        else: dma_loop(g, 8, 32*2752, WFL, opts.get("P1", 4))
    A("v_lshlrev_b32 v15, 4, v0")
    A(f"v_add_u32 v39, {WS_MOD+3*4096}, v15")
    A(f"s_and_b32 s59, s2, {AREP-1}"); A("s_lshl_b32 s59, s59, 16"); A(f"s_add_u32 s59, s59, {WS_AP+4096}")
    A("v_add_u32 v15, s59, v15")
    A("v_lshrrev_b32 v5, 2, v0")
    A("v_lshlrev_b32 v5, 3, v5")
    A(f"v_add_u32 v5, {TB_.RED}, v5")
    A("v_lshlrev_b32 v7, 3, v1")
    A(f"v_add_u32 v7, {TB_.RED}, v7")
    A("v_and_b32 v14, 7, v1")
    A(f"v_mul_u32_u24 v14, {ACT_BS}, v14")
    A("v_lshrrev_b32 v3, 4, v1")
    A("v_lshl_add_u32 v14, v3, 4, v14")
    A("v_bfe_u32 v6, v1, 2, 2")
    A("v_lshl_add_u32 v6, v3, 3, v6")
    A(f"v_mul_u32_u24 v6, {W2S}, v6")
    A("v_and_b32 v8, 3, v1")
    A("v_lshl_add_u32 v6, v8, 3, v6")
    A("s_lshl_b32 s49, s5, 8"); A(f"s_add_u32 s49, s49, {TB_.WT}")
    A("v_add_u32 v6, s49, v6")
    A("v_lshlrev_b32 v10, 3, v0")
    A(f"v_add_u32 v10, {L_HZ}, v10")
    A("v_mov_b32 v8, 0"); A("v_mov_b32 v9, 0")
    A("ds_write_b64 v10, v[8:9]")
    def f1_addrs():
        A("v_and_b32 v39, 1, v1")
        A("v_lshlrev_b32 v39, 6, v39")
        A(f"v_add_u32 v39, {L_HH}, v39")
        A("v_lshrrev_b32 v3, 4, v1")
        A("v_lshl_add_u32 v37, v3, 4, v39")
        A("v_bfe_u32 v3, v1, 1, 3")
        A("v_lshlrev_b32 v3, 7, v3")
        A("v_sub_u32 v37, v37, v3")
        A("v_bfe_u32 v3, v1, 4, 1")
        A("v_lshl_add_u32 v39, v3, 3, v39")
        A("v_lshrrev_b32 v3, 5, v1")
        A("v_lshl_add_u32 v39, v3, 2, v39")
        A("s_lshl_b32 s49, s5, 4")
        A("v_add_u32 v39, s49, v39")
    line_out_addr(13, 6, 17)
    A("v_bfe_u32 v3, v1, 1, 3")
    A("v_lshl_add_u32 v13, v3, 14, v13")
    A("v_lshrrev_b32 v2, 3, v1")
    A("v_lshlrev_b32 v2, 6, v2")
    A("v_bfe_u32 v3, v1, 2, 1")
    A("v_lshl_add_u32 v2, v3, 14, v2")
    A("v_and_b32 v8, 2, v1")
    A("v_or_b32 v3, v3, v8")
    A("v_xor_b32 v3, s5, v3")
    A("v_lshl_add_u32 v2, v3, 4, v2")
    A("v_lshl_add_u32 v2, v8, 14, v2")
    A("v_and_b32 v3, 1, v1")
    A("v_lshl_add_u32 v2, v3, 3, v2")
    A(f"v_add_u32 v2, {TB_.WT}, v2")
    A("s_waitcnt vmcnt(0)")
    hsync(g, 9, 4)
    tr_reads(g, 16, 1024, 512)
    hsync(g, 9)
    srd(g, 44, 32, 1376*1024)
    A("v_lshlrev_b32 v2, 4, v1")
    A("s_lshl2_add_u32 s49, s61, s5"); A("s_lshl_b32 s49, s49, 13")
    A(f"s_mul_i32 s50, s5, {8*W2S}")
    A(f"s_add_u32 s50, s50, {TB_.WT}")
    dma_loop(g, 8, 1024, WFL, opts.get("P2", 4), W2S)
    tag_bytes()
    g.stamp(6)
    if opts.get("notail"): A("s_branch L_fin")
    ap_addrs()
    pre_gather([-4096, 0, 4096])
    f1_addrs()
    unpack4(g, 16, 8)
    unpack4(g, 20, PG, 2)
    unpack4(g, 28, PG+8, 2)
    for i in range(4): A(f"v_add_f32 v{28+i}, 1.0, v{28+i}")
    A("v_cvt_pk_bf16_f32 v8, v28, v29"); A("v_cvt_pk_bf16_f32 v9, v30, v31")
    A(f"v_mov_b32 v{PG+5}, v{PG+6}")
    A(f"ds_write_b64 v12, v[8:9] offset:{TB_.ACT+2*ACT_BS}")
    A(f"ds_write_b64 v12, {vr(PG+4,2)} offset:{TB_.ACT+4*ACT_BS}")
    for i in range(4): rnd(g, 28+i)
    for i in range(4): A(f"v_mul_f32 v{24+i}, v{20+i}, v{28+i}")
    for i in range(4): A(f"v_mul_f32 v{28+i}, v{16+i}, v{28+i}")
    A("s_waitcnt lgkmcnt(0)")
    A("s_waitcnt vmcnt(0)")
    EARLY = opts.get("aearly", 0)
    wait_cnt(g, f"ds_read_b32 v8, v38 offset:{L_CNA if EARLY else L_GO}", 8, opts.get("acn", 16) if EARLY else 8, 2)
    if opts.get("adel", 0): A(f"s_sleep {opts['adel']}")
    g.stamp(9)
    S = VA + 32
    A("s_mov_b32 s70, 0")
    A("s_movk_i32 s71, 0xff")
    A("s_mov_b32 s63, s71")
    if EARLY: A("s_bitset0_b32 s63, s8")
    A("s_branch L_f1_l")
    g.lab("L_f1_p")
    if opts.get("agap", 0): A(f"s_sleep {opts['agap']}")
    A("s_add_u32 s70, s70, 1")
    A(f"s_cmp_ge_u32 s70, {SPIN_MAX}")
    A("s_cbranch_scc1 L_f1_ok")
    A("s_mov_b32 s63, s71")
    g.lab("L_f1_l")
    for i in range(8):
        l = g.uniq("fl")
        A(f"s_bitcmp1_b32 s63, {i}"); A(f"s_cbranch_scc0 {l}")
        ap_load(i)
        g.lab(l)
    A("s_waitcnt vmcnt(0)")
    for i in range(8):
        l = g.uniq("fc")
        A(f"s_bitcmp1_b32 s63, {i}"); A(f"s_cbranch_scc0 {l}")
        B_ = VA + 4 * i
        for k in range(4): A(f"v_xor_b32 v{B_+k}, s{TB+k}, v{B_+k}")
        A(f"v_or3_b32 v8, v{B_}, v{B_+1}, v{B_+2}")
        A(f"v_or_b32 v8, v8, v{B_+3}")
        A("v_cmp_ne_u32_sdwa vcc, v8, v38 src0_sel:BYTE_0 src1_sel:DWORD")
        A("s_cmp_lg_u64 vcc, 0"); A(f"s_cbranch_scc1 {l}")
        A(f"s_bitset0_b32 s71, {i}")
        g.lab(l)
    A("s_cmp_lg_u32 s71, 0")
    A("s_cbranch_scc1 L_f1_p")
    g.lab("L_f1_ok")
    sum8p(VA, S)
    g.stamp(7)
    for h in range(2): A(f"v_pk_fma_f32 {vr(8+2*h,2)}, {vr(S+2*h,2)}, {vr(24+2*h,2)}, {vr(28+2*h,2)}")
    A("v_cvt_pk_bf16_f32 v8, v8, v9")
    A("v_cvt_pk_bf16_f32 v9, v10, v11")
    A(f"ds_write_b64 v12, v[8:9] offset:{TB_.ACT}")
    for h in range(2): A(f"v_pk_fma_f32 {vr(16+2*h,2)}, {vr(S+2*h,2)}, {vr(20+2*h,2)}, {vr(16+2*h,2)}")
    x = 16
    dpp = lambda r, mod: f"v_add_f32_dpp v{r}, v{r}, v{r} {mod} row_mask:0xf bank_mask:0xf"
    for t in (f"v_add_f32 v24, v{x}, v{x+1}", f"v_mul_f32 v25, v{x}, v{x}", f"v_add_f32 v26, v{x+2}, v{x+3}", f"v_mul_f32 v27, v{x+2}, v{x+2}",
              f"v_fmac_f32 v25, v{x+1}, v{x+1}", f"v_fmac_f32 v27, v{x+3}, v{x+3}", "v_pk_add_f32 v[24:25], v[24:25], v[26:27]", "s_nop 1",
              dpp(24, "quad_perm:[1,0,3,2]"), dpp(25, "quad_perm:[1,0,3,2]"), "s_nop 0",
              dpp(24, "quad_perm:[2,3,0,1]"), dpp(25, "quad_perm:[2,3,0,1]")): A(t)
    A("ds_write_b64 v5, v[24:25]")
    hsync(g, 10, 0, [f"ds_read_b128 {vr(S+4*m,4)}, v14 offset:{TB_.ACT+64*m}" for m in range(min(NSPEC, 4))])
    DF = 32
    q = []
    def rd(m): A(f"ds_read_b128 {vr(S+4*(m%8),4)}, v14 offset:{TB_.ACT+64*m}"); q.append(("r", m))
    def need(op):
        i = q.index(op); A(f"s_waitcnt lgkmcnt({len(q)-1-i})"); del q[:i+1]
    def w2rd(c):
        for h in range(2): A(f"ds_read_b64_tr_b16 {vr(VW+4*c+2*h,2)}, v6 offset:{32*c+4*h*W2S}"); q.append(("w", c, h))
    for m in range(4):
        if m < NSPEC: q.append(("r", m))
        else: rd(m)
    A("ds_read_b64 v[20:21], v7"); q.append(("s",))
    for m in range(4, 8): rd(m)
    fill = {4: [dpp(20, "quad_perm:[2,3,0,1]"), dpp(21, "quad_perm:[2,3,0,1]")],
            5: [dpp(20, "row_ror:4"), dpp(21, "row_ror:4")],
            6: [dpp(20, "row_ror:8"), dpp(21, "row_ror:8")],
            7: ["v_mov_b32 v22, v20", "v_mov_b32 v23, v21"],
            8: ["v_permlane16_swap_b32 v22, v20", "v_permlane16_swap_b32 v23, v21"],
            9: ["v_pk_add_f32 v[20:21], v[20:21], v[22:23]", "v_mov_b32 v22, v20", "v_mov_b32 v23, v21"],
            10: ["v_permlane32_swap_b32 v22, v20", "v_permlane32_swap_b32 v23, v21"],
            11: ["v_pk_add_f32 v[20:21], v[20:21], v[22:23]", f"v_mul_f32 v20, 0x{f2u(-1/512):08x}, v20"],
            12: [f"v_mul_f32 v21, 0x{f2u(1/512):08x}, v21", "v_fma_f32 v21, -v20, v20, v21"],
            13: ["v_max_f32 v21, 0, v21", f"v_add_f32 v21, 0x{EPS:08x}, v21"],
            14: ["v_rsq_f32 v21, v21"]}
    for m in range(16):
        if ("r", m) in q: need(("r", m))
        else: A("s_nop 0")
        c = "0" if m == 0 else vr(DF, 4)
        A(f"v_mfma_f32_16x16x32_bf16 {vr(DF,4)}, {vr(VW+4*m,4)}, {vr(S+4*(m%8),4)}, {c}")
        if 1 <= m <= 8: rd(7 + m)
        for t in fill.get(m, []): A(t)
    for c in range(4): w2rd(c)
    for i in range(4): A(f"v_fmac_f32_dpp v{DF+i}, v{DF+i}, v20 row_shl:2 row_mask:0xf bank_mask:0x1")
    for i in range(4): A(f"v_mul_f32 v{8+i}, v{DF+i}, v21")
    for i in range(4): A(f"v_add_f32_dpp v{8+i}, v{DF+i}, v{8+i} row_shl:4 row_mask:0xf bank_mask:0xf")
    A("s_waitcnt lgkmcnt(4)")
    for c in range(4, 8): w2rd(c)
    A("v_permlane32_swap_b32 v8, v10")
    A("v_permlane32_swap_b32 v9, v11")
    for i in range(2): A(f"v_mul_f32 v{20+i}, 0x{LOG2E ^ 0x80000000:08x}, v{8+i}")
    for i in range(2): A(f"v_exp_f32 v{20+i}, v{20+i}")
    for i in range(2): A(f"v_mul_f32 v{8+i}, v{8+i}, v{10+i}")
    for i in range(2): A(f"v_add_f32 v{20+i}, 1.0, v{20+i}")
    for i in range(2): A(f"v_rcp_f32 v{20+i}, v{20+i}")
    for x in EX8: A(x)
    for i in range(2): A(f"v_mul_f32 v{8+i}, v{8+i}, v{20+i}")
    A("v_cvt_pk_bf16_f32 v8, v8, v9")
    A("ds_write_b32 v39, v8")
    A("s_mov_b64 exec, -1")
    rds = [f"ds_read_b128 {vr(S+4*c,4)}, v37 offset:{128*c}" for c in range(8)]
    A("s_waitcnt lgkmcnt(4)")
    hsync(g, 10, 0, rds[:NSPEC])
    for r in rds[NSPEC:]: A(r)
    A("v_mov_b32 v3, 0xff")
    for c in range(8):
        A(f"s_waitcnt lgkmcnt({7-c})")
        A(f"v_mfma_f32_16x16x32_bf16 v[8:11], {vr(VW+4*c,4)}, {vr(S+4*c,4)}, {'0' if c == 0 else 'v[8:11]'}")
    A("s_nop 7")
    for i in range(4): A(f"v_bfi_b32 v{8+i}, v3, s{TB+i}, v{8+i}")
    A("global_store_dwordx4 v13, v[8:11], s[42:43] sc1")
    g.stamp(2)
    A("s_branch L_fin")

    g.lab("L_r_f2")
    if opts.get("notail"): A("s_branch L_fin")
    A("v_bfe_u32 v12, v1, 2, 1")
    A("v_and_b32 v14, 3, v1")
    A("s_lshl_b32 s49, s61, 5")
    A("v_lshl_add_u32 v3, v14, 3, s49")
    A("v_lshl_add_u32 v37, v12, 10, v3")
    A("v_and_b32 v15, 7, v1")
    A("s_lshl_b32 s49, s61, 7")
    A("v_lshl_add_u32 v15, v15, 4, s49")
    A(f"v_add_u32 v39, {WS_MOD+3*4096}, v15")
    A("v_bfe_u32 v3, v1, 3, 1")
    A("v_lshl_add_u32 v15, v3, 12, v15")
    A("v_lshrrev_b32 v3, 4, v1")
    A("v_lshl_add_u32 v15, v3, 14, v15")
    A(f"s_and_b32 s59, s2, {AREP-1}"); A("s_lshl_b32 s59, s59, 16"); A(f"s_add_u32 s59, s59, {WS_AP}")
    A("v_add_u32 v15, s59, v15")
    A("s_lshl_b32 s49, s61, 14"); A(f"s_add_u32 s49, s49, {WS_FP+2048}")
    A("v_lshl_add_u32 v36, v1, 4, s49")

    A("global_load_dword v11, v37, s[38:39]")
    if PT & 4:
        A("s_lshl_b32 s49, s61, 14"); A(f"s_add_u32 s49, s49, {WS_FP}")
        A("v_min_u32 v10, 42, v1"); A("v_lshl_add_u32 v10, v10, 7, s49")
        A("global_load_dword v11, v10, s[42:43] sc1")
        A("s_lshl_b32 s49, s61, 7"); A(f"s_add_u32 s49, s49, {WS_DN}")
        A("v_mov_b32 v10, s49")
        A("global_load_dword v11, v10, s[42:43] sc1")
    pre_gather([-4096, 8192])
    unpack4(g, 16, 8)
    unpack4(g, 20, PG, 2)
    unpack4(g, 24, PG+4, 2)
    wait_cnt(g, f"ds_read_b32 v8, v38 offset:{L_GO}", 8, 8, 2)
    if opts.get("rdel", 0): A(f"s_sleep {opts['rdel']}")
    g.stamp(9)
    def src_sum(r):
        A("s_nop 1")
        for i in range(4): A(f"v_add_f32_dpp v{r+i}, v{r+i}, v{r+i} row_ror:8 row_mask:0xf bank_mask:0xf")
        for sw in ("v_permlane16_swap_b32", "v_permlane32_swap_b32"):
            for i in range(4): A(f"v_mov_b32 v{r+4+i}, v{r+i}")
            for i in range(4): A(f"{sw} v{r+4+i}, v{r+i}")
            for i in range(4): A(f"v_add_f32 v{r+i}, v{r+i}, v{r+4+i}")
    A("s_mov_b32 s70, 0")
    g.lab("L_f2_a")
    A(f"global_load_dwordx4 {vr(S,4)}, v15, s[42:43] sc1")
    A("s_waitcnt vmcnt(0)")
    for k in range(4): A(f"v_xor_b32 v{S+k}, s{TB+k}, v{S+k}")
    A(f"v_or3_b32 v3, v{S}, v{S+1}, v{S+2}")
    A(f"v_or_b32 v3, v3, v{S+3}")
    A("v_lshlrev_b32 v3, 24, v3")
    A("v_cmp_ne_u32 vcc, 0, v3")
    spin_tail(g, "L_f2_a", "L_f2_ad", 4)
    A("s_cmp_lg_u32 s61, 0")
    A("s_cbranch_scc1 L_f2_e")
    A(f"v_mov_b32 v10, s{ST}")
    A("s_mov_b64 exec, 1")
    A(f"global_store_dword v38, v10, s[42:43] offset:{WS_E} sc1")
    A("s_mov_b64 exec, -1")
    g.lab("L_f2_e")
    src_sum(S)
    x1_from(S)
    if opts.get("fdel", 0): A(f"s_sleep {opts['fdel']}")
    for i in range(4): A(f"v_mov_b32 v{VA+32+20+i}, s{TB+i}")
    def f2_fin():
        for p in range(3):
            for h in range(2): A(f"v_pk_add_f32 {vr(VA+8*p+2*h,2)}, {vr(VA+8*p+2*h,2)}, {vr(VA+8*p+4+2*h,2)}")
        for p in (1, 2):
            for h in range(2): A(f"v_pk_add_f32 {vr(VA+2*h,2)}, {vr(VA+2*h,2)}, {vr(VA+8*p+2*h,2)}")
    gather(6, lambda i, r: A(f"global_load_dwordx4 {vr(r,4)}, v36, s[42:43] offset:{1024*i-2048} sc1"), VA+32, VA, "L_f2_p",
           opts.get("fpipe", 1), opts.get("fgap", 0), f2_fin, 20, [-1]*5 + ["0xffffff"])
    g.stamp(7)
    src_sum(VA)
    for i in range(4): rnd(g, VA+i)
    for i in range(4): A(f"v_mul_f32 v{VA+i}, v{VA+i}, v{24+i}")
    for i in range(4): rnd(g, VA+i)
    for i in range(4): A(f"v_add_f32 v{8+i}, v{VA+i}, v{16+i}")
    A("v_cvt_pk_bf16_f32 v8, v8, v9")
    A("v_cvt_pk_bf16_f32 v9, v10, v11")
    A("s_mov_b64 exec, 0xff")
    A("global_store_dwordx2 v37, v[8:9], s[38:39]" + ("" if opts.get("noosc") else " sc1"))
    A("s_mov_b64 exec, 1")
    A(f"v_mov_b32 v10, s{ST}")
    A("s_lshl_b32 s49, s61, 7"); A(f"s_add_u32 s49, s49, {WS_DN}")
    A("v_mov_b32 v11, s49")
    if not opts.get("nodn"): A("global_store_dword v11, v10, s[42:43] sc1")
    g.stamp(2)

    g.lab("L_fin")
    if opts.get("stamps"):
        A("s_waitcnt vmcnt(0)")
        g.stamp(8)
        dump_all(g, [SLOC])
    g.lab("L_end")
    A("s_endpgm")
    g.L.append(".p2align 7")
    g.lab("L_table")
    J = jobs()
    for j in range(8):
        A(".long " + ", ".join(f"0x{J[x, j][0] | J[x, j][1] << 8 | J[x, j][2] << 16 | J[x, j][3] << 24:08x}" for x in range(8)))
    g.lab("L_touch")
    odd = [1, 3, 5, 7]; evn = [0, 2, 4, 6]
    ch = [(0, t, c) for c in odd + evn for t in (0, 1)] + [(1, t, c) for c in evn + odd for t in (0, 1)] + [(1, 3, c) for c in odd + evn]
    ch += [(1, t, c) for c in odd for t in (2, 4, 5, 6, 7)] + [(1, t, c) for c in evn for t in (2, 4, 5, 6, 7)]
    ch = ch[:opts.get("nch", 60)]
    slots = [idx for idx in range(32) if idx & 3 != 3]
    TT = {sl: 0x80808080 for sl in range(32)}
    for n, (mx, t, c) in enumerate(ch):
        k, sl = divmod(n, len(slots))
        if k < NT: TT[slots[sl]] = TT[slots[sl]] & ~(0xff << 8*k) | (c | t << 3 | mx << 6) << 8*k
    for i in range(0, 32, 8):
        A(".long " + ", ".join(f"0x{TT[i+a]:08x}" for a in range(8)))
    g.L.append(f'''.section .rodata,"a"
.p2align 6
.amdhsa_kernel {KNAME}
  .amdhsa_next_free_vgpr 168
  .amdhsa_next_free_sgpr 102
  .amdhsa_accum_offset 168
  .amdhsa_group_segment_fixed_size 0
  .amdhsa_kernarg_size 112
  .amdhsa_user_sgpr_count 2
  .amdhsa_user_sgpr_kernarg_segment_ptr 1
  .amdhsa_system_sgpr_workgroup_id_x 1
.end_amdhsa_kernel''')
    opts["_jobs"] = J
    return "\n".join(g.L) + "\n"

if __name__ == "__main__":
    import os
    here = os.path.dirname(os.path.abspath(__file__))
    opts = {"ref": os.path.join(here, "..", KNAME[:-7] + ".s.ref")}
    out = sys.argv[1]
    for kv in sys.argv[2:]:
        k, v = kv.split("=")
        try: v = int(v)
        except ValueError:
            try: v = float(v)
            except ValueError: pass
        opts[k] = v
    open(out, "w").write(gen(opts))
```

```python
import sys, struct

KNAME = "adaLN_cond__sliding_block_cached__glu_gated_swiglu__decode_kernel"

def f2u(x): return struct.unpack("<I", struct.pack("<f", x))[0]
LOG2E = f2u(1.4426950408889634)
SCALE = f2u(128 ** -0.5)
EPS = f2u(1e-5)
ZERO_GAP = 92.95

WS_E   = 0x00000
WS_HDR = 0x00400
WS_DN  = 0x07000
WS_MOD = 0x01000
WS_Q   = 0x08000
WS_S1  = 0x10000
WS_S2  = 0x18000
WS_OP  = 0x20000
WS_AP  = 0x200000
WS_FP  = 0x180000
WS_OQ  = 0x80000
WS_MA  = 0xe0000
R2     = WS_OQ - WS_OP
WS_STAMP = 0x100000
ACT_BS = 1056
NS_   = 11
L_QV  = 0
L_ML  = L_QV + 256
L_GO  = L_ML + 8
L_SCN = L_ML + 16
L_MX  = L_ML + 20
L_ECN = L_ML + 24
L_E0  = L_ML + 28
L_RM  = L_ML + 32
L_SN  = L_ML + 48
L_TK  = L_ML + 52
L_CNA = L_ML + 56
L_CNB = L_ML + 60
L_E1  = L_ML + 64
L_S8  = L_ML + 128
L_S4  = L_S8 + 64
L_ST  = L_S4 + 64
L_OP  = L_ST + 512
L_OP1 = L_OP + 512 * NS_
L_VX  = L_OP1 + 512 * NS_
class Team: pass
TA, TB_ = Team(), Team()
TA.CNT, TB_.CNT = L_CNA, L_CNB
TA.ACT = L_OP
TA.RED = TA.ACT + 2 * ACT_BS
TB_.ACT = TA.RED + 64
TB_.RED = TB_.ACT + 6 * ACT_BS
L_HZ  = TB_.RED + 512
L_HH  = L_HZ + 7 * 128
TA.WT = (L_HZ + 2048 + 1023) // 1024 * 1024
TB_.WT = TA.WT + 65536
W2S   = 1024 + 32
LDS_BYTES = TB_.WT + 65536
assert LDS_BYTES <= 163840 and L_VX + 2048 * NS_ <= LDS_BYTES and L_ST + 128 <= L_S4 + 512
assert all(x % 16 == 0 for x in (L_S8, L_ST, L_OP, L_VX, TA.ACT, TA.RED, TB_.ACT, TB_.RED, L_HZ, L_E1))

def jobs():
    J = {}; nf = 0
    for x in range(8):
        six = x in (1, 3, 7)
        mb = sorted(range(16 + 4 * x, 20 + 4 * x), key=lambda t: t % 8 != 3)
        own = {0: mb[0:2], 1: mb[2:4]} if six else {0: mb[0:1], 1: mb[1:2], 2: mb[2:4]}
        for j in range(8):
            m = own.get(j, []) + [255, 255]
            f = 255
            if j >= (2 if six else 3): f = nf; nf += 1
            J[x, j] = (m[0], f, 4 * x + (j & 3) if j in (0, 1, 2, 7) else 255, m[1])
    assert nf == 43 and sorted(v[2] for v in J.values())[:32] == list(range(32))
    return J
SPIN_MAX = 1 << 18
ST, SLOC, SXCC = 74, 75, 76

NOTES = {
    "L_stream": "streaming waves: K (1 KB per load, bounded number in flight), then the V rows of the keys on the row list",
    "L_work": "background work of a streaming wave between two K loads: scores of the rows that have landed, first row list",
    "L_ks": "one K step: background work, then wait until few enough loads are in flight",
    "L_vs": "one V step",
    "L_x1": "second half of the scores, max / sum of this wave, the rows near the top first, more rows for the list",
    "L_snap": "the rows near the top give the preliminary partial output",
    "L_hand": "list used up: with the true row max and sum, add every remaining key whose weight is not exactly zero",
    "L_epi": "all rows consumed: reduce over the lanes, leave the final partial output in LDS",
    "L_pub": "wave 0 of a streaming workgroup: LDS set-up, exchange of the softmax statistics, preliminary output",
    "L_serv": "service workgroup",
    "L_touch": "per streaming workgroup: pieces of the first weights to pull into L2",
    "L_chk": "third streaming workgroup: final partial output; the head's final output against the preliminary one, bit by bit",
    "L_slow": "fallback: everything behind the attention again, from the final outputs, by this wave alone",
    "L_team": "service workgroup: two teams of four waves, MFMA mat-vecs on weight tiles staged by LDS-DMA",
    "L_r_q": "team A: LayerNorm + modulation + 64 columns of h @ wq",
    "L_r_wo": "team A: 512 x 64 tile of wo",
    "L_r_mod": "team B: 64 columns of silu(c) @ w_mod (shift / scale of the first block first)",
    "L_r_f1": "team B: 32 columns of w1 and w3, SwiGLU, their 32 rows of w2",
    "L_r_f2": "service workgroup, wave 1: 16 output columns: residuals, sum of the down-projection partials; advances the epoch word",
    "L_table": "per service workgroup: modulation tile | gate/up tile << 8 | output tile << 16",
}
class G:
    def __init__(s, opts):
        s.L = []; s.o = opts; s.n = 0; s.T = None
    def A(s, t): s.L.append("  " + t)
    def lab(s, t):
        if t in NOTES: s.L.append("; ---- " + NOTES[t])
        s.L.append(t + ":")
    def C(s, t): s.L.append("; ---- " + t)
    def uniq(s, p): s.n += 1; return f"L_{p}_{s.n}"
    def stamp(s, idx, lvl=1):
        m = s.o.get("stamps", 0)
        if m == 3 and lvl != 3 and idx not in (6,): return
        if m and (m == lvl or (idx in (0, 6, 8) and lvl == 1)):
            s.A(f"s_memrealtime s[{80+2*idx}:{81+2*idx}]")

def vr(a, n): return f"v[{a}:{a+n-1}]"
def rnd(g, d, s=None): g.A(f"v_cvt_pk_bf16_f32 v{d}, 0, v{s if s is not None else d}")

def spin_tail(g, l, e, sleep, mult=1):
    A = g.A
    A("s_cmp_eq_u64 vcc, 0")
    A(f"s_cbranch_scc1 {e}")
    if sleep: A(f"s_sleep {sleep}")
    A("s_add_u32 s70, s70, 1")
    A(f"s_cmp_lt_u32 s70, {SPIN_MAX*mult}")
    A(f"s_cbranch_scc1 {l}")
    g.lab(e)

def chk_sentinel(g, regs, tmp):
    A = g.A
    rs = list(regs)
    if len(rs) == 1:
        A(f"v_cmp_eq_u32 vcc, -1, v{rs[0]}")
        return
    if len(rs) == 2:
        A(f"v_max_u32 v{tmp}, v{rs[0]}, v{rs[1]}"); rs = []
    else:
        A(f"v_max3_u32 v{tmp}, v{rs[0]}, v{rs[1]}, v{rs[2]}"); rs = rs[3:]
    while len(rs) >= 2:
        A(f"v_max3_u32 v{tmp}, v{tmp}, v{rs[0]}, v{rs[1]}"); rs = rs[2:]
    if rs: A(f"v_max_u32 v{tmp}, v{tmp}, v{rs[0]}")
    A(f"v_cmp_eq_u32 vcc, -1, v{tmp}")

def poll_lds(g, loads, regs, tmp, sleep):
    A = g.A
    l = g.uniq("pl"); e = g.uniq("pld")
    A("s_mov_b32 s70, 0")
    g.lab(l)
    for x in loads: A(x)
    A("s_waitcnt lgkmcnt(0)")
    chk_sentinel(g, regs, tmp)
    spin_tail(g, l, e, sleep, 4)

def wait_cnt(g, load, reg, target, sleep, mask=None):
    A = g.A
    l = g.uniq("sn"); e = g.uniq("snd")
    A("s_mov_b32 s70, 0")
    g.lab(l)
    A(load)
    A("s_waitcnt lgkmcnt(0)")
    if mask: A(f"v_and_b32 v{reg}, 0x{mask:x}, v{reg}")
    A(f"v_cmp_gt_u32 vcc, 0x{target:x}, v{reg}")
    spin_tail(g, l, e, sleep, 8)

def pub_local(g, ins):
    A = g.A
    l = g.uniq("pf"); e = g.uniq("pe")
    A(f"s_cmp_eq_u32 s{SLOC}, 1")
    A(f"s_cbranch_scc0 {l}")
    A(ins)
    A(f"s_branch {e}")
    g.lab(l)
    A(ins + " sc1")
    g.lab(e)

def hs_signal(g, vt2):
    A = g.A
    A(f"v_mov_b32 v{vt2}, 1")
    A("s_mov_b64 exec, 1")
    A(f"ds_add_u32 v38, v{vt2} offset:{g.T.CNT}")
    A("s_mov_b64 exec, -1")
def hs_wait(g, target, vt2, sleep=1):
    wait_cnt(g, f"ds_read_b32 v{vt2}, v38 offset:{g.T.CNT}", vt2, target, sleep)

STG = 77
def hsync(g, vt, sleep=0, reads=()):
    A = g.A
    l = g.uniq("hy"); e = g.uniq("hyd")
    A(f"s_add_u32 s{STG}, s{STG}, 4")
    hs_signal(g, vt)
    A("s_mov_b32 s70, 0")
    g.lab(l)
    A(f"ds_read_b32 v{vt}, v38 offset:{g.T.CNT}")
    for r in reads: A(r)
    A(f"s_waitcnt lgkmcnt({len(reads)})")
    A(f"v_cmp_gt_u32 vcc, s{STG}, v{vt}")
    A("s_cmp_eq_u64 vcc, 0")
    A(f"s_cbranch_scc1 {e}")
    if reads: A("s_waitcnt lgkmcnt(0)")
    if sleep: A(f"s_sleep {sleep}")
    A("s_add_u32 s70, s70, 1")
    A(f"s_cmp_lt_u32 s70, {SPIN_MAX*8}")
    A(f"s_cbranch_scc1 {l}")
    g.lab(e)

OPA = 2 * NS_ + 12
def op_prep(g, R, zero, off, scales=True):
    A = g.A
    SCB = R + 2 * NS_; AD = R + OPA
    if scales:
        for i in range(3): A(f"ds_read_b128 {vr(SCB+4*i,4)}, v{zero} offset:{L_S8+16*i}")
    A(f"v_lshlrev_b32 v{AD+3}, 3, v1")
    A("s_lshl2_add_u32 s68, s6, s7")
    A("s_lshl_b32 s68, s68, 9"); A(f"s_add_u32 s68, s68, {WS_OP+off}")
    A(f"v_add_u32 v{AD}, s68, v{AD+3}")
    A(f"v_and_b32 v{AD+1}, 1, v1")
    A(f"v_lshlrev_b32 v{AD+1}, 4, v{AD+1}")
    A(f"v_lshrrev_b32 v{AD+1}, v{AD+1}, s{ST}")
    A(f"v_lshrrev_b32 v{AD+2}, 8, v{AD+1}")
def op_reads(lds, R): return [f"ds_read_b64 {vr(R+2*i,2)}, v{R+OPA+3} offset:{lds+512*i}" for i in range(NS_)]
def op_sum(g, R, local):
    A = g.A
    SCB = R + 2 * NS_; AD = R + OPA
    A("s_movk_i32 s69, 0xff")
    def sel(i): return f"op_sel:[0,{i&1},0] op_sel_hi:[1,{i&1},1]"
    for i in range(NS_):
        A(f"s_waitcnt lgkmcnt({NS_-1-i})")
        sp = vr(SCB + (i & ~1), 2); acc = vr(R + 2*(i & 1), 2)
        if i < 2: A(f"v_pk_mul_f32 {acc}, {vr(R+2*i,2)}, {sp} op_sel:[0,{i&1}] op_sel_hi:[1,{i&1}]")
        else: A(f"v_pk_fma_f32 {acc}, {vr(R+2*i,2)}, {sp}, {acc} {sel(i)}")
    A(f"v_pk_add_f32 {vr(R,2)}, {vr(R,2)}, {vr(R+2,2)}")
    A(f"v_bfi_b32 v{R}, s69, v{AD+1}, v{R}")
    A(f"v_bfi_b32 v{R+1}, s69, v{AD+2}, v{R+1}")
    if local: pub_local(g, f"global_store_dwordx2 v{AD}, {vr(R,2)}, s[42:43]")
    else: A(f"global_store_dwordx2 v{AD}, {vr(R,2)}, s[42:43] sc1")
def wait_then(g, off, target, reads, pre):
    A = g.A
    wait_cnt(g, f"ds_read_b32 v8, v38 offset:{off}", 8, pre, 1)
    l = g.uniq("wt"); e = g.uniq("wtd")
    A("s_mov_b32 s70, 0")
    g.lab(l)
    A(f"ds_read_b32 v8, v38 offset:{off}")
    for r in reads: A(r)
    A(f"s_waitcnt lgkmcnt({len(reads)})")
    A(f"v_cmp_gt_u32 vcc, 0x{target:x}, v8")
    A("s_cmp_eq_u64 vcc, 0")
    A(f"s_cbranch_scc1 {e}")
    A("s_waitcnt lgkmcnt(0)")
    A("s_add_u32 s70, s70, 1")
    A(f"s_cmp_lt_u32 s70, {SPIN_MAX*8}")
    A(f"s_cbranch_scc1 {l}")
    g.lab(e)

def dma_loop(g, n, step, flags, pace=0, lstep=1024):
    A = g.A
    l = g.uniq("dma"); e = g.uniq("dmae")
    if isinstance(n, int):
        A(f"s_add_u32 s51, s50, {n*lstep}")
    else:
        A(f"s_add_u32 s51, s50, {n}")
        A("s_cmp_lt_u32 s50, s51")
        A(f"s_cbranch_scc0 {e}")
    g.lab(l)
    A("s_mov_b32 m0, s50")
    A(f"s_add_u32 s50, s50, {lstep}")
    if not (g.o.get("nodma") and pace): A(f"buffer_load_dwordx4 v2, s[44:47], s49 offen {flags} lds")
    A(f"s_add_u32 s49, s49, {step}")
    if pace: A(f"s_waitcnt vmcnt({pace-1})")
    A("s_cmp_lt_u32 s50, s51")
    A(f"s_cbranch_scc1 {l}")
    g.lab(e)

VW, VA = 40, 104

def srd(g, d, base, nbytes):
    A = g.A
    A(f"s_mov_b32 s{d}, s{base}")
    A(f"s_mov_b32 s{d+1}, s{base+1}")
    A(f"s_mov_b32 s{d+2}, {nbytes}")
    A(f"s_mov_b32 s{d+3}, 0x20000")

def dma_tile64(g, stride, flags, pace=0):
    A = g.A
    if g.o.get("contig") and pace:
        if stride == 1024: A("s_lshl3_add_u32 s48, s8, s60"); A("s_lshl_b32 s48, s48, 16")
        else: A("s_lshl_b32 s48, s61, 16")
        stride = 128
    A("v_lshrrev_b32 v2, 3, v1")
    A("v_and_b32 v3, 6, v2")
    A("v_xor_b32 v3, v3, v1")
    A(f"v_mul_u32_u24 v2, {stride}, v2")
    A("v_and_b32 v3, 7, v3")
    A("v_lshl_add_u32 v2, v3, 4, v2")
    A(f"s_mul_i32 s49, s5, {128*stride}")
    A("s_lshl_b32 s50, s5, 14")
    A("s_add_u32 s49, s49, s48")
    A(f"s_add_u32 s50, s50, {g.T.WT}")
    dma_loop(g, 16, 8*stride, flags, pace)

def tr64_addr(g):
    A = g.A
    A("v_lshrrev_b32 v2, 2, v1")
    A("v_bfe_u32 v3, v1, 1, 1")
    A("s_lshl_b32 s49, s5, 1")
    A("v_or_b32 v3, s49, v3")
    A("v_and_b32 v10, 6, v2")
    A("v_xor_b32 v3, v3, v10")
    A("v_lshlrev_b32 v2, 7, v2")
    A("v_lshl_add_u32 v2, v3, 4, v2")
    A("v_and_b32 v3, 1, v1")
    A("v_lshl_add_u32 v2, v3, 3, v2")
    A(f"v_add_u32 v2, {g.T.WT}, v2")
def tr_reads(g, nk, mstep, hstep):
    A = g.A
    for m in range(nk):
        for h in range(2):
            A(f"ds_read_b64_tr_b16 {vr(VW+4*m+2*h,2)}, v2 offset:{m*mstep+h*hstep}")
        if m >= 5: A("s_waitcnt lgkmcnt(10)")
    A("s_waitcnt lgkmcnt(0)")
def tr_tile64(g):
    tr64_addr(g)
    tr_reads(g, 16, 4096, 2048)
def gemv_fused(g, vaddr, D):
    A = g.A
    def rd(m):
        for h in range(2):
            A(f"ds_read_b64_tr_b16 {vr(VW+4*m+2*h,2)}, v2 offset:{m*4096+h*2048}")
        A(f"ds_read_b128 {vr(VA+4*m,4)}, v{vaddr} offset:{64*m}")
    for m in range(5): rd(m)
    for m in range(16):
        A(f"s_waitcnt lgkmcnt({3*(min(m+5,16)-m-1)})")
        c = "0" if m == 0 else vr(D, 4)
        A(f"v_mfma_f32_16x16x32_bf16 {vr(D,4)}, {vr(VW+4*m,4)}, {vr(VA+4*m,4)}, {c}")
        if m + 5 < 16: rd(m + 5)
    A("s_nop 7")

def batch_reduce2(g, va, vb, ta, tb):
    A = g.A
    A("s_nop 0")
    for m in ("quad_perm:[1,0,3,2]", "quad_perm:[2,3,0,1]", "row_ror:8"):
        A(f"v_add_f32_dpp v{va}, v{va}, v{va} {m} row_mask:0xf bank_mask:0xf")
        A(f"v_add_f32_dpp v{vb}, v{vb}, v{vb} {m} row_mask:0xf bank_mask:0xf")
        A("s_nop 0")
    for sw in ("v_permlane16_swap_b32", "v_permlane32_swap_b32"):
        A(f"v_mov_b32 v{ta}, v{va}")
        A(f"v_mov_b32 v{tb}, v{vb}")
        A("s_nop 0")
        A(f"{sw} v{ta}, v{va}")
        A(f"{sw} v{tb}, v{vb}")
        A(f"v_add_f32 v{va}, v{va}, v{ta}")
        A(f"v_add_f32 v{vb}, v{vb}, v{tb}")

def ln_partial(g, x):
    A = g.A
    A(f"v_add_f32 v8, v{x}, v{x+1}"); A(f"v_mul_f32 v9, v{x}, v{x}")
    A(f"v_add_f32 v10, v{x+2}, v{x+3}"); A(f"v_mul_f32 v11, v{x+2}, v{x+2}")
    A(f"v_fmac_f32 v9, v{x+1}, v{x+1}"); A(f"v_fmac_f32 v11, v{x+3}, v{x+3}")
    A("v_add_f32 v8, v8, v10"); A("v_add_f32 v9, v9, v11")
    batch_reduce2(g, 8, 9, 10, 11)
    A("ds_write_b64 v5, v[8:9]")
def ln_apply(g, x, t):
    A = g.A
    A(f"ds_read_b128 {vr(t,4)}, v6")
    A(f"ds_read_b128 {vr(t+4,4)}, v6 offset:16")
    A("s_waitcnt lgkmcnt(0)")
    A(f"v_pk_add_f32 {vr(t,2)}, {vr(t,2)}, {vr(t+2,2)}")
    A(f"v_pk_add_f32 {vr(t+4,2)}, {vr(t+4,2)}, {vr(t+6,2)}")
    A(f"v_pk_add_f32 {vr(t,2)}, {vr(t,2)}, {vr(t+4,2)}")
    A(f"v_mul_f32 v8, 0x{f2u(1/512):08x}, v{t}")
    A(f"v_mul_f32 v9, 0x{f2u(1/512):08x}, v{t+1}")
    A("v_fma_f32 v9, -v8, v8, v9")
    rnd(g, 8)
    A("v_max_f32 v9, 0, v9")
    rnd(g, 9)
    for i in range(2): A(f"v_sub_f32 v{x+i}, v{x+i}, v8")
    A(f"v_add_f32 v9, 0x{EPS:08x}, v9")
    for i in range(2, 4): A(f"v_sub_f32 v{x+i}, v{x+i}, v8")
    rnd(g, 9)
    rnd(g, x)
    A("v_sqrt_f32 v9, v9")
    rnd(g, x+1)
    rnd(g, 9)
    rnd(g, x+2)
    A("v_rcp_f32 v9, v9")
    rnd(g, x+3)
    for i in range(4): A(f"v_mul_f32 v{x+i}, v{x+i}, v9")
    for i in range(4): rnd(g, x+i)

def act_addr(g, v, base, bstride):
    A = g.A
    A(f"v_and_b32 v{v}, 1, v1")
    A(f"v_mul_u32_u24 v{v}, {bstride}, v{v}")
    A(f"v_lshrrev_b32 v3, 4, v1")
    A(f"v_lshl_add_u32 v{v}, v3, 4, v{v}")
    if base: A(f"v_add_u32 v{v}, {base}, v{v}")

def gemv(g, nk, vaddr, D, ring=16, sync=None, nspec=4):
    A = g.A
    first = min(nk, 12, ring)
    rds = [f"ds_read_b128 {vr(VA+4*m,4)}, v{vaddr} offset:{64*m}" for m in range(first)]
    if sync is not None:
        hsync(g, sync, 0, rds[:nspec]); rds = rds[nspec:]
    for r in rds: A(r)
    issued = first
    for m in range(nk):
        A(f"s_waitcnt lgkmcnt({issued-m-1})")
        c = "0" if m == 0 else vr(D, 4)
        A(f"v_mfma_f32_16x16x32_bf16 {vr(D,4)}, {vr(VW+4*m,4)}, {vr(VA+4*(m%ring),4)}, {c}")
        if issued < nk and (ring >= nk or m >= 1):
            A(f"ds_read_b128 {vr(VA+4*(issued%ring),4)}, v{vaddr} offset:{64*issued}")
            issued += 1
    A("s_nop 7")

def guard(g, r): g.A(f"v_min_u32 v{r}, s72, v{r}")
def unpack2(g, d, s):
    g.A(f"v_lshlrev_b32 v{d}, 16, v{s}")
    g.A(f"v_and_b32 v{d+1}, s73, v{s}")
def unpack4(g, d, s, step=1):
    unpack2(g, d, s); unpack2(g, d+2, s+step)

def silu4(g, x, t):
    A = g.A
    for i in range(4): A(f"v_mul_f32 v{t+i}, 0x{LOG2E ^ 0x80000000:08x}, v{x+i}")
    for i in range(4): A(f"v_exp_f32 v{t+i}, v{t+i}")
    A("s_nop 0")
    for i in range(4): A(f"v_add_f32 v{t+i}, 1.0, v{t+i}")
    for i in range(4): A(f"v_rcp_f32 v{t+i}, v{t+i}")
    A("s_nop 0")
    for i in range(4): A(f"v_mul_f32 v{x+i}, v{x+i}, v{t+i}")

def make_tag(g):
    g.A(f"s_mul_i32 s{ST}, s{ST}, 0x9e3779b1")
    g.A(f"s_add_u32 s{ST}, s{ST}, 0x7f4a7c15")

EX8 = ["s_mov_b32 exec_lo, 0x00030003", "s_mov_b32 exec_hi, 0x00030003"]

def dump_all(g, extra):
    A = g.A
    A("s_mov_b64 exec, -1")
    A("s_mul_i32 s3, s2, 12"); A("s_add_u32 s3, s3, s13"); A("s_lshl_b32 s3, s3, 6")
    A(f"s_add_u32 s3, s3, {WS_STAMP}")
    A("v_lshl_add_u32 v2, v1, 2, s3")
    A("v_mov_b32 v3, 0")
    A("s_waitcnt lgkmcnt(0)")
    for i, x in enumerate([80+2*i for i in range(10)] + list(extra)): A(f"v_writelane_b32 v3, s{x}, {i}")
    A("s_mov_b64 exec, 0xffff")
    A("global_store_dword v2, v3, s[42:43]")

def fallback(g, head_sum, wave_red):
    A = g.A
    W, AC, AV = 40, 72, 88
    X1, GS = 104, 120
    g.lab("L_slow")
    A("s_mov_b32 s47, 0x20000")
    A("s_load_dwordx16 s[16:31], s[0:1], 0")
    A("s_load_dwordx8 s[32:39], s[0:1], 64")
    A("v_and_b32 v2, 31, v1")
    A("v_lshlrev_b32 v2, 7, v2")
    A(f"v_add_u32 v2, {WS_DN}, v2")
    A("s_mov_b32 s70, 0")
    g.lab("L_sl_d")
    A("global_load_dword v3, v2, s[42:43] sc1")
    A("s_waitcnt vmcnt(0) lgkmcnt(0)")
    A(f"v_cmp_ne_u32 vcc, s{ST}, v3")
    spin_tail(g, "L_sl_d", "L_sl_dd", 8)
    A("v_lshlrev_b32 v2, 3, v1")
    A(f"v_add_u32 v2, {WS_OQ}, v2")
    A("v_lshlrev_b32 v0, 2, v1")
    A(f"v_add_u32 v0, {L_VX}, v0")
    A("s_mov_b32 s10, 0")
    g.lab("L_sl_h")
    A("s_mov_b32 s70, 0")
    g.lab("L_sl_hp")
    for i in range(3): A(f"global_load_dwordx2 {vr(W+2*i,2)}, v2, s[42:43] offset:{512*i} sc1")
    A("s_waitcnt vmcnt(0)")
    head_sum(W, W+8)
    spin_tail(g, "L_sl_hp", "L_sl_hd", 8)
    A(f"ds_write_b32 v0, v{W}")
    A("v_add_u32 v2, 2048, v2"); A("v_add_u32 v0, 256, v0")
    A("s_add_u32 s10, s10, 1"); A("s_cmp_lt_u32 s10, 64"); A("s_cbranch_scc1 L_sl_h")
    def call(base, nbytes, stride, nrows, act, bstride, col):
        A(f"s_mov_b32 s44, s{base}"); A(f"s_mov_b32 s45, s{base+1}"); A(f"s_mov_b32 s46, {nbytes}")
        A(f"s_mov_b32 s11, {stride}"); A(f"s_mov_b32 s12, {nrows*stride}")
        A(f"v_mov_b32 v4, {act}"); A(f"v_mov_b32 v5, {act+bstride}")
        A(f"v_lshlrev_b32 v2, 4, v1")
        if col: A(f"v_add_u32 v2, {col}, v2")
        A("s_call_b64 s[62:63], L_gv")
    def modrow(row, d):
        A("v_lshrrev_b32 v2, 1, v1"); A("v_lshlrev_b32 v2, 7, v2")
        A("v_and_b32 v3, 1, v1"); A("v_lshl_add_u32 v2, v3, 5, v2")
        A(f"v_add_u32 v2, {WS_MOD+4096*row}, v2")
        for b in range(2):
            for h in range(2): A(f"global_load_dwordx4 {vr(W+8*b+4*h,4)}, v2, s[42:43] offset:{64*b+16*h} sc1")
        A("s_waitcnt vmcnt(0)")
        for k in range(8): unpack2(g, d+2*k, W+2*k)
    def gated_add(row):
        modrow(row, AV)
        for i in range(16): rnd(g, AC+i)
        for i in range(16): A(f"v_mul_f32 v{AC+i}, v{AC+i}, v{AV+i}")
        for i in range(16): rnd(g, AC+i)
        for i in range(16): A(f"v_add_f32 v{X1+i}, v{X1+i}, v{AC+i}")
        for i in range(16): rnd(g, X1+i)
    def pack(d, s_):
        for k in range(8): A(f"v_cvt_pk_bf16_f32 v{d+k}, v{s_+2*k}, v{s_+2*k+1}")
    call(24, 4096*1024, 1024, 4096, L_VX, 8192, 0)
    A("v_lshlrev_b32 v0, 4, v1")
    for b in range(2): A(f"global_load_dwordx4 {vr(W+4*b,4)}, v0, s[16:17] offset:{1024*b}")
    A("s_waitcnt vmcnt(0)")
    for k in range(8): unpack2(g, X1+2*k, W+k)
    gated_add(2)
    for b in range(2):
        x = X1 + 8*b; y = AC + 8*b
        A(f"v_add_f32 v8, v{x}, v{x+1}")
        for i in range(2, 8): A(f"v_add_f32 v8, v8, v{x+i}")
        wave_red("v_add_f32", 8, 9)
        A(f"v_mul_f32 v8, 0x{f2u(1/512):08x}, v8")
        for i in range(8): A(f"v_sub_f32 v{y+i}, v{x+i}, v8")
        A(f"v_mul_f32 v10, v{y}, v{y}")
        for i in range(1, 8): A(f"v_fmac_f32 v10, v{y+i}, v{y+i}")
        wave_red("v_add_f32", 10, 9)
        A(f"v_mul_f32 v10, 0x{f2u(1/512):08x}, v10")
        rnd(g, 8); rnd(g, 10)
        A(f"v_add_f32 v10, 0x{EPS:08x}, v10")
        rnd(g, 10)
        A("v_sqrt_f32 v10, v10")
        for i in range(8): A(f"v_sub_f32 v{y+i}, v{x+i}, v8")
        rnd(g, 10)
        for i in range(8): rnd(g, y+i)
        A("v_rcp_f32 v10, v10")
        A("s_nop 0")
        for i in range(8): A(f"v_mul_f32 v{y+i}, v{y+i}, v10")
        for i in range(8): rnd(g, y+i)
    modrow(4, AV)
    for i in range(16): A(f"v_add_f32 v{AV+i}, 1.0, v{AV+i}")
    for i in range(16): rnd(g, AV+i)
    for i in range(16): A(f"v_mul_f32 v{AC+i}, v{AC+i}, v{AV+i}")
    for i in range(16): rnd(g, AC+i)
    modrow(3, AV)
    for i in range(16): A(f"v_add_f32 v{AC+i}, v{AC+i}, v{AV+i}")
    pack(W, AC)
    A(f"v_add_u32 v3, {L_VX}, v0")
    for b in range(2): A(f"ds_write_b128 v3, {vr(W+4*b,4)} offset:{1024*b}")
    HB = L_VX + 2048
    for p in range(3):
        call(28, 512*2752, 2752, 512, L_VX, 1024, 1024*p)
        for i in range(16): rnd(g, GS+i, AC+i)
        call(30, 512*2752, 2752, 512, L_VX, 1024, 1024*p)
        for q in range(4): silu4(g, GS+4*q, AV)
        for i in range(16): rnd(g, GS+i)
        for i in range(16): rnd(g, AC+i)
        for i in range(16): A(f"v_mul_f32 v{AC+i}, v{AC+i}, v{GS+i}")
        pack(W, AC)
        A(f"v_add_u32 v3, {HB+1024*p}, v0")
        for b in range(2): A(f"ds_write_b128 v3, {vr(W+4*b,4)} offset:{3072*b}")
    call(32, 1376*1024, 1024, 1376, HB, 3072, 0)
    gated_add(5)
    pack(W, X1)
    for b in range(2): A(f"global_store_dwordx4 v0, {vr(W+4*b,4)}, s[38:39] offset:{1024*b} sc1")
    A("s_endpgm")
    g.lab("L_gv")
    for i in range(16): A(f"v_mov_b32 v{AC+i}, 0")
    A("s_mov_b32 s10, 0")
    g.lab("L_gvl")
    for r in range(8):
        A(f"buffer_load_dwordx4 {vr(W+4*r,4)}, v2, s[44:47], s10 offen")
        A("s_add_u32 s10, s10, s11")
    for b in range(2): A(f"ds_read_b128 {vr(AV+4*b,4)}, v{4+b}")
    A("v_add_u32 v4, 16, v4"); A("v_add_u32 v5, 16, v5")
    A("s_waitcnt lgkmcnt(0)")
    for r in range(8):
        for b in range(2):
            a = AV + 4*b + r//2
            if r % 2 == 0: A(f"v_and_b32 v{8+2*b}, 0xffff, v{a}"); A(f"v_lshlrev_b32 v{9+2*b}, 16, v{a}")
            else: A(f"v_lshrrev_b32 v{8+2*b}, 16, v{a}"); A(f"v_and_b32 v{9+2*b}, s73, v{a}")
        A(f"s_waitcnt vmcnt({7-r})")
        for b in range(2):
            for k in range(8): A(f"v_dot2c_f32_bf16 v{AC+8*b+k}, v{8+2*b+(k&1)}, v{W+4*r+k//2}")
    A("s_cmp_lt_u32 s10, s12"); A("s_cbranch_scc1 L_gvl")
    A("s_nop 1")
    A("s_setpc_b64 s[62:63]")

def stream(g, opts):
    A = g.A
    D0 = opts.get("D0", 4)
    LAG = opts.get("LAG", 5)
    DEL = opts.get("delta", 10)
    THETA = opts.get("theta", 24)
    HCAP, HPOS = 32, 160
    TH, HST, NH, NSP, HTH = 18, 19, 20, 21, 22
    PA = 2
    KF, VF = opts.get("kf", "nt"), opts.get("vf", "nt")
    J0 = opts.get("J0", 15)
    T_, ACC, DB, RW, LIM, BUR, CNT, STA, QA, LVL = 32, 33, 34, 35, 36, 37, 38, 39, 40, 41
    SR, SBI, VE = 78, 79, 59
    VG = opts.get('vg', 20); LG = opts.get('lg', 10)
    LB, JS, DN, FIN, X1D, RET, TK, RET2 = 56, 57, 58, 75, 61, 62, (64, 66), 100
    T, X = 8, 16
    OFF = (24, 26); SET = (28, 30, 32); AC_, AT_, AH_, MK = 8, 12, 4, (34, 35, 36, 0); MW, L16, LRD, EPA = 37, 38, 39, 21
    EV = 23
    RA = 22
    ROFF = 1024
    RB = 40
    def slot(j): return RB + 4 * (j % 32)
    NW, KS, NXT = 76, 77, 57
    g.lab("L_stream")
    BLK = 11 * 1024
    A("s_sub_u32 s9, s13, 1")
    A("s_lshl_b32 s11, s9, 10")
    A(f"s_mul_i32 s4, s7, {31*BLK}")
    A("s_lshl_b32 s10, s6, 22")
    A("s_add_u32 s10, s10, s4")
    A("s_add_u32 s10, s10, 0x300000")
    A("v_and_b32 v0, 15, v1")
    A("v_lshl_add_u32 v0, v0, 6, s11")
    A("v_and_b32 v3, 48, v1")
    A("v_add_u32 v0, v3, v0")
    A("s_lshr_b32 s12, s2, 3")
    A("s_mul_i32 s12, s12, 5")
    A("s_mul_i32 s15, s8, 3")
    A("s_add_u32 s12, s12, s15")
    A("s_and_b32 s15, s12, 31")
    A("s_min_u32 s15, s15, 30")
    A(f"s_mul_i32 s12, s15, {BLK}")
    A("s_lshr_b32 s46, s7, 1"); A("s_lshl_b32 s46, s46, 10"); A(f"s_add_u32 s46, s46, {31*BLK}")
    A("s_mov_b32 s47, 0x20000")
    A(f"s_mov_b32 s14, {31*BLK}")
    g.stamp(1, 3)
    A("s_waitcnt lgkmcnt(0)")
    g.stamp(2, 3)
    A("s_add_u32 s44, s18, s10"); A("s_addc_u32 s45, s19, 0")
    def issue(j):
        A(f"buffer_load_dwordx4 {vr(slot(j),4)}, v0, s[44:47], s12 offen {KF}")
        A(f"s_add_u32 s12, s12, {BLK}")
        A("s_cmp_eq_u32 s12, s14")
        A("s_cselect_b32 s12, 0, s12")
    g.stamp(3, 3)
    for j in range(1, D0): issue(j)
    A(f"buffer_load_dwordx4 {vr(slot(0),4)}, v0, s[44:47], s14 offen {KF}")
    g.stamp(4, 3)
    A("s_add_u32 s48, s20, s10"); A("s_addc_u32 s49, s21, 0")
    A("s_mov_b32 s50, s46"); A("s_mov_b32 s51, 0x20000")
    A("s_mov_b32 s52, 0xcccccccc"); A("s_mov_b32 s53, 0xcccccccc")
    A("s_mov_b32 s54, 0xaaaaaaaa"); A("s_mov_b32 s55, 0xaaaaaaaa")
    A(f"v_and_b32 v{L16}, 15, v1")
    A(f"v_lshlrev_b32 v{L16}, 4, v{L16}")
    A("s_lshl_b32 s10, s9, 11")
    A(f"s_add_u32 s10, s10, {L_VX}")
    A("v_lshl_add_u32 v3, v1, 3, s10")
    A("v_mov_b32 v4, 0x7fff0000"); A("v_mov_b32 v5, 0xff800000")
    for n in range(3): A(f"ds_write_b64 v3, v[4:5] offset:{512*n}")
    A("v_lshrrev_b32 v3, 4, v1")
    A(f"v_lshl_add_u32 v{LRD}, v{L16}, 1, s10")
    A(f"v_lshl_add_u32 v{LRD}, v3, 3, v{LRD}")
    A("s_sub_u32 s68, s15, 1")
    A("v_bfrev_b32 v4, v1")
    A("v_lshrrev_b32 v4, 28, v4")
    A("v_lshl_add_u32 v3, v3, 8, s11")
    A("v_cmp_eq_u32 s[70:71], 0, v4")
    for n in range(2):
        A(f"v_add_u32 v{OFF[n]}, s68, v4")
        if n: A(f"v_add_u32 v{OFF[n]}, 16, v{OFF[n]}")
        A(f"v_subrev_u32 v5, 31, v{OFF[n]}")
        A(f"v_min_u32 v{OFF[n]}, v5, v{OFF[n]}")
        if n == 0: A(f"v_cndmask_b32 v{OFF[n]}, v{OFF[n]}, 31, s[70:71]")
        A(f"v_mul_u32_u24 v{OFF[n]}, {BLK}, v{OFF[n]}")
        A(f"v_add_u32 v{OFF[n]}, v3, v{OFF[n]}")
    A("s_lshl_b32 s11, s9, 9")
    A("s_sub_u32 s11, s11, s10")
    A(f"s_mov_b32 s{T_}, {D0}"); A(f"s_mul_i32 s{ACC}, s9, 0x60000000"); A(f"s_add_u32 s{ACC}, s{ACC}, 0x10000000")
    A(f"s_mov_b64 s[{TK[0]}:{TK[0]+1}], 0"); A(f"s_mov_b64 s[{TK[1]}:{TK[1]+1}], 0")
    A(f"s_mov_b32 s{CNT}, 0"); A(f"s_mov_b32 s{STA}, 2"); A(f"s_mov_b32 s{FIN}, 0"); A(f"s_mov_b32 s{X1D}, 0")
    A("v_and_b32 v3, 1, v1"); A("v_lshlrev_b32 v3, 4, v3"); A("v_mov_b32 v20, 0xffff"); A("v_lshlrev_b32 v3, v3, v20")
    A("v_bfe_u32 v20, v1, 1, 3")
    for d in range(3):
        A(f"v_cmp_eq_u32 vcc, {d}, v20"); A("s_nop 1"); A(f"v_cndmask_b32 v{MK[d]}, 0, v3, vcc")
    A("s_barrier")
    A("s_waitcnt lgkmcnt(0)")
    A(f"s_mov_b32 s{LB}, s10")
    A(f"s_mov_b32 s{LVL}, {LAG}"); A(f"s_mov_b32 s{NXT}, 0"); A(f"s_mov_b32 s{NW}, {LAG*4096}")
    A(f"s_mov_b32 s{DB}, {int(opts.get('d1', 2.75)*4096) + ROFF*LG*16}"); A(f"s_mov_b32 s{KS}, 0")
    A(f"s_mov_b32 s{RW}, {32-D0}"); A(f"s_mov_b32 s{VE}, 0")
    A(f"v_mov_b32 v{RA}, {ROFF + NS_*(32-D0)}"); A(f"v_mov_b32 v{RA+1}, 0"); A(f"v_mov_b32 v{PA}, 0")
    for j in range(D0, 32):
        if j == opts.get("je", 99) and opts.get("dup", 0): A(f"s_sub_u32 s{DB}, s{DB}, {int(opts['dup']*4096)}")
        if j == opts.get("js", 16) and opts.get("dup", 0): A(f"s_add_u32 s{DB}, s{DB}, {int(opts['dup']*4096)}")
        if j == D0:
            g.stamp(5, 3)
            if opts.get("stamps") == 3: A(f"s_waitcnt vmcnt({D0-1})")
            g.stamp(7, 3)
        A(f"s_call_b64 s[{RET}:{RET+1}], {'L_ks' if j >= J0 else ('L_kq2', 'L_kl')[(j - D0) & 1] if opts.get('light', 0) else 'L_kq'}")
        if j == 8: g.stamp(8, 3)
        if j == 12: g.stamp(9, 3)
        issue(j)
        if opts.get("trace") == 2:
            if j > D0: A(f"v_writelane_b32 v33, s98, {j-1}")
            A("s_memrealtime s[98:99]")
    if opts.get("trace") == 2:
        A("s_waitcnt lgkmcnt(0)"); A("v_writelane_b32 v33, s98, 31")
        A("s_mul_i32 s3, s2, 12"); A("s_add_u32 s3, s3, s13"); A("s_lshl_b32 s3, s3, 8"); A("s_add_u32 s3, s3, 0x400000")
        A("v_lshl_add_u32 v3, v1, 2, s3")
        A("global_store_dword v3, v33, s[42:43]")
    g.stamp(1)
    A("s_mov_b32 s10, 0")
    g.lab("L_kw")
    A(f"s_cmp_ge_u32 s{STA}, 6"); A("s_cbranch_scc1 L_v0")
    A(f"s_call_b64 s[{RET2}:{RET2+1}], L_work")
    A("s_sleep 1")
    A("s_add_u32 s10, s10, 1")
    A(f"s_cmp_lt_u32 s10, {SPIN_MAX}"); A("s_cbranch_scc1 L_kw")
    g.lab("L_v0")
    g.stamp(2)
    A(f"s_mov_b32 s{T_}, 0")
    A(f"v_mov_b32 v{PA}, 8")
    A(f"s_mov_b32 s{RW}, s{VE}")
    A(f"ds_read_b64 {vr(RA,2)}, v{PA} offset:{L_RM}")
    A(f"v_mov_b32_dpp v{MK[3]}, v{MK[2]} row_shr:2 row_mask:0xf bank_mask:0xf bound_ctrl:0")
    KA, KB = opts.get('ka2', 3.9), opts.get('kb2', -0.2)
    A(f"s_mov_b32 s{KS}, {round(KA*16)}")
    A(f"s_mov_b32 s{NW}, {round(opts.get('hi0', 3)*4096)}")
    VB0, VB1 = round(opts.get("vb0", 0.4) * 4096), round(opts.get("vb1", 0.6) * 4096)
    A(f"s_mov_b32 s{DB}, {round(KB*4096) + ROFF*LG*16 + VB0}")

    A("s_waitcnt lgkmcnt(0)")

    def dots(G_, halves=(0, 1)):
        sl = [8*G_ + e for h in halves for e in range(4*h, 4*h+4)]
        dst = [T] + [slot(x) for x in sl[:-1]]
        A("s_mov_b64 vcc, s[54:55]")
        for x, d in zip(sl, dst): A(f"v_mfma_f32_16x16x32_bf16 {vr(d,4)}, {vr(slot(x),4)}, v[4:7], 0")
        A(f"s_nop {8 - len(sl)}")
        for n, (x, d) in enumerate(zip(sl, dst)):
            bank = 1 << (((x & 1) << 1) | ((x >> 1) & 1))
            for k in range(2):
                A(f"v_cndmask_b32_dpp v{T+4+k}, v{d+2*k}, v{d+2*k+1}, vcc quad_perm:[0,1,2,3] row_mask:0xf bank_mask:0x{bank:x}")
            if n % 4 == 3: A(f"v_cndmask_b32 v{X + ((x >> 2) & 3)}, v{T+4}, v{T+5}, s[52:53]")
    def wave_red(op, v, t):
        for r in (8, 4, 2, 1):
            A("s_nop 1")
            A(f"{op}_dpp v{v}, v{v}, v{v} row_ror:{r} row_mask:0xf bank_mask:0xf")
        for sw in ("v_permlane16_swap_b32", "v_permlane32_swap_b32"):
            A(f"v_mov_b32 v{t}, v{v}")
            A("s_nop 1")
            A(f"{sw} v{t}, v{v}")
            A(f"{op} v{v}, v{v}, v{t}")
    def finish(n):
        sc = OFF[n] + 1
        A("v_mov_b32 v3, 0")
        A("v_mov_b32 v20, 64")
        for i in range(4): A(f"v_add_f32_dpp v{X+i}, v{X+i}, v{X+i} quad_perm:[2,3,0,1] row_mask:0xf bank_mask:0xf")
        for i in range(2): A(f"v_cndmask_b32 v{T+i}, v{X+2*i}, v{X+2*i+1}, s[52:53]")
        A("s_nop 0")
        A("v_lshlrev_b32 v21, 3, s9")
        for i in range(2): A(f"v_add_f32_dpp v{T+i}, v{T+i}, v{T+i} quad_perm:[1,0,3,2] row_mask:0xf bank_mask:0xf")
        A(f"v_cndmask_b32 v{sc}, v{T}, v{T+1}, s[54:55]")
        rnd(g, sc)
        A(f"v_mul_f32 v{sc}, 0x{SCALE:08x}, v{sc}")
        rnd(g, sc)
        if n == 0:
            A(f"v_cmp_gt_u32 vcc, s46, v{OFF[0]}")
            A(f"v_mov_b32 v{MW}, 0xff800000")
            A("s_nop 0")
            A(f"v_cndmask_b32 v{sc}, v{MW}, v{sc}, vcc")
            A(f"v_mov_b32 v{MW}, v{sc}")
        else: A(f"v_max_f32 v{MW}, v{MW}, v{sc}")
        wave_red("v_max_f32", MW, T)
        if n == 0:
            A("s_mov_b64 exec, 1")
            A(f"ds_max_f32 v3, v{MW} offset:{L_E0}")
            A(f"ds_add_u32 v3, v20 offset:{L_ECN}")
            A("s_mov_b64 exec, -1")
    def build(n, thr):
        tk = f"s[{TK[n]}:{TK[n]+1}]"
        A(f"v_cmp_nlt_f32 vcc, v{OFF[n]+1}, v{thr}")
        A(f"s_lshl_b32 s68, s{CNT}, 3")
        A(f"s_add_u32 s68, s68, s{LB}")
        A(f"s_andn2_b64 s[70:71], vcc, {tk}")
        A("v_mbcnt_lo_u32_b32 v3, s70, 0")
        A("v_mbcnt_hi_u32_b32 v3, s71, v3")
        A("s_bcnt1_i32_b64 s69, s[70:71]")
        A("v_lshl_add_u32 v3, v3, 3, s68")
        A("s_mov_b64 exec, s[70:71]")
        A(f"ds_write_b64 v3, {vr(OFF[n],2)}")
        A("s_mov_b64 exec, -1")
        A(f"s_or_b64 {tk}, {tk}, s[70:71]")
        A(f"s_add_u32 s{CNT}, s{CNT}, s69")
    def reread(weights=True, fill=None):
        ns = 3 if weights else 1
        for n in range(ns): A(f"ds_read_b64 {vr(SET[n],2)}, v{LRD} offset:{512*n}")
        if fill: fill()
        A("s_waitcnt lgkmcnt(0)")
        if not weights: return
        for n in range(3): A(f"v_sub_f32 v{SET[n]+1}, v{SET[n]+1}, v{MW}")
        for n in range(3): A(f"v_mul_f32 v{SET[n]+1}, 0x{LOG2E:08x}, v{SET[n]+1}")
        for n in range(3): A(f"v_exp_f32 v{SET[n]+1}, v{SET[n]+1}")
        A("s_nop 0")
        for n in range(3): A(f"v_cvt_pk_bf16_f32 v{SET[n]+1}, v{SET[n]+1}, v{SET[n]+1}")
    def pv(t, data=None, acc=AC_, first=False):
        data = slot(t) if data is None else data
        for d in range(4): A(f"v_and_b32_dpp v{AT_+d}, v{SET[t//16]+1}, v{MK[d]} row_newbcast:{t%16} row_mask:0xf bank_mask:0xf")
        A("s_nop 1")
        A(f"v_mfma_f32_16x16x32_bf16 {vr(acc,4)}, {vr(AT_,4)}, {vr(data,4)}, {vr(acc,4)}")
    def estimate(sh, add, src, vphase=True):
        A(f"s_add_u32 s68, s{src}, {add}")
        A(f"s_lshr_b32 s68, s68, {sh}")
        A(f"s_sub_u32 s69, s68, s{VE}")
        A(f"s_mov_b32 s{VE}, s68")
        if vphase:
            A(f"s_add_u32 s{RW}, s{RW}, s69")
            A(f"s_add_u32 s{SR}, s{SR}, s69")
        A("v_mov_b32 v3, s69")
        A("s_mov_b64 exec, 1")
        A(f"ds_add_u32 v1, v3 offset:{L_RM+8}")
        A(f"ds_add_u32 v1, v3 offset:{L_RM+12}")
        A("s_mov_b64 exec, -1")
    def fetch():
        A(f"v_readfirstlane_b32 s{SR}, v{RA}")
        A(f"v_readfirstlane_b32 s{SBI}, v{RA+1}")
    NST = LAG + 33 + LAG
    assert 4 * (NST - LAG) <= HPOS, NST
    LIGHT = opts.get("light", 0)
    for t in range(NST - LAG + 1):
        sub = "L_vs" if t <= 2 * LAG else "L_vq" if not LIGHT else ("L_vq2", "L_vl")[(t - 2 * LAG - 1) & 1]
        A(f"s_call_b64 s[{RET}:{RET+1}], {sub}")
        if t == NST - LAG: break
        if t: A(f"s_cbranch_scc0 L_dr{max(t, LAG)}")
        A(f"v_add_u32_dpp v3, v{SET[t//16]}, v{L16} row_newbcast:{t%16} row_mask:0xf bank_mask:0xf")
        A(f"buffer_load_dwordx4 {vr(slot(t),4)}, v3, s[48:51], 0 offen {VF}")
        if opts.get("trace") == 1 and t >= LAG:
            A("s_memrealtime s[98:99]"); A("s_waitcnt lgkmcnt(0)"); A(f"v_writelane_b32 v17, s98, {t}")
        if t == 0: dots(3, (0,))
        if t >= LAG: pv(t - LAG)
    A(f"s_branch L_dr{NST-LAG}")
    g.C("nothing left to load, everything has landed: the row groups not used yet")
    for t in range(LAG, NST):
        g.lab(f"L_dr{t}")
        pv(t - LAG)
        A(f"s_cmp_eq_u32 s{FIN}, {t+1}"); A("s_cbranch_scc1 L_epi")
    def out_addr():
        A("v_lshrrev_b32 v3, 4, v1")
        A(f"v_lshl_add_u32 v{EPA}, v3, 3, v{LRD}")
        A(f"v_add_u32 v{EPA}, s11, v{EPA}")
        A("v_mov_b32 v3, 1")
    def prelim(r):
        A("s_mov_b32 exec_hi, 0")
        A(f"ds_write_b128 v{EPA}, {vr(r,4)} offset:{L_OP1}")
        A("s_mov_b64 exec, 1")
        A(f"ds_add_u32 v1, v3 offset:{L_SN}")
        A("s_mov_b64 exec, -1")
    g.lab("L_epi")
    g.stamp(5)
    out_addr()
    A("s_nop 3")
    for h in range(2): A(f"v_pk_add_f32 {vr(AC_+2*h,2)}, {vr(AC_+2*h,2)}, {vr(AH_+2*h,2)}")
    A("s_mov_b32 exec_hi, 0")
    A(f"ds_write_b128 v{EPA}, {vr(AC_,4)} offset:{L_OP}")
    A(f"s_cmp_eq_u32 s{NSP}, 0"); A("s_cbranch_scc1 L_ep2")
    prelim(AC_)
    g.lab("L_ep2")
    A("s_mov_b64 exec, 1")
    A(f"ds_add_u32 v1, v3 offset:{L_TK}")
    g.lab("L_send")
    if opts.get("trace") == 1:
        A("s_mov_b64 exec, -1")
        A("s_mul_i32 s3, s2, 12"); A("s_add_u32 s3, s3, s13"); A("s_lshl_b32 s3, s3, 8"); A("s_add_u32 s3, s3, 0x400000")
        A("v_lshl_add_u32 v2, v1, 2, s3")
        A("global_store_dword v2, v17, s[42:43]")
    if opts.get("stamps"):
        g.stamp(6)
        dump_all(g, [CNT, SBI, SBI])
    A("s_endpgm")
    g.wave_red = wave_red

    g.lab("L_ks")
    A(f"s_cmp_lt_u32 s{T_}, s{NXT}"); A("s_cbranch_scc1 L_kq")
    A(f"s_call_b64 s[{RET2}:{RET2+1}], L_work")
    BASE, FRAC = BUR, 58
    def control(n):
        A("s_mov_b64 exec, 1")
        for _ in range(n): A(f"ds_dec_u32 v{PA}, v{LRD} offset:{L_RM}")
        A(f"ds_read_b64 {vr(RA,2)}, v{PA} offset:{L_RM}")
        A("s_mov_b64 exec, -1")
        A(f"s_mul_i32 s68, s{RW}, {NS_}")
        A(f"s_and_b32 s69, s{SBI}, 0xffff")
        A(f"s_sub_i32 s68, s68, s{SR}")
        A(f"s_mul_i32 s69, s69, s{KS}")
        A(f"s_mul_i32 s68, s68, {LG*16}")
        A(f"s_sub_u32 s{RW}, s{RW}, {n}")
        A("s_add_i32 s68, s68, s69")
        A(f"s_add_i32 s68, s68, s{DB}")
        A(f"s_max_i32 s68, s68, {int(opts.get('lo', 1.2)*4096)}")
        A(f"s_min_i32 s68, s68, s{NW}")
        A(f"s_lshr_b32 s{BASE}, s68, 12")
        A(f"s_lshl_b32 s{FRAC}, s68, 20")
    g.lab("L_kq")
    fetch()
    g.lab("L_ks2")
    control(1)
    g.lab("L_kl")
    A(f"s_add_u32 s{T_}, s{T_}, 1")
    A(f"s_add_u32 s{ACC}, s{ACC}, 0x20000000")
    A(f"s_add_u32 s68, s{ACC}, s{FRAC}")
    A(f"s_addc_u32 s{LVL}, s{BASE}, 0")
    order = [3, 2, 4, 1] + list(range(5, LAG))
    for d in order:
        A(f"s_cmp_eq_u32 s{LVL}, {d}"); A(f"s_cbranch_scc1 L_wt{d}")
    g.lab("L_wtx")
    A(f"s_cmp_eq_u32 s{T_}, s{T_}")
    for d in [LAG] + order:
        g.lab(f"L_wt{d}")
        A(f"s_waitcnt vmcnt({d-1})")
        A(f"s_setpc_b64 s[{RET}:{RET+1}]")
    g.lab("L_kq2")
    fetch()
    g.lab("L_ks3")
    control(2)
    A("s_branch L_kl")
    g.lab("L_vl")
    A(f"s_cmp_lt_u32 s{T_}, s{LIM}"); A("s_cbranch_scc1 L_kl")
    A("s_branch L_ev")
    g.lab("L_vq2")
    fetch()
    if opts.get("early", 0):
        A(f"s_lshr_b32 s68, s{SBI}, 16")
        A(f"s_cmp_gt_u32 s68, s{FIN}"); A("s_cbranch_scc1 L_hand")
    A(f"s_cmp_lt_u32 s{T_}, s{LIM}"); A("s_cbranch_scc1 L_ks3")
    A("s_branch L_ev")

    g.lab("L_vs")
    fetch()
    A(f"s_cmp_eq_u32 s{X1D}, 2"); A("s_cbranch_scc1 L_vs1")
    A(f"s_cmp_eq_u32 s{X1D}, 1"); A("s_cbranch_scc1 L_x3")
    A(f"s_cmp_gt_u32 s{LVL}, s{T_}"); A("s_cbranch_scc1 L_ks2")
    g.lab("L_x1")
    g.stamp(1, 2)
    dots(3, (1,))
    sc = OFF[1] + 1
    A(f"s_lshl_b32 s68, s{NH}, 3")
    A(f"s_add_u32 s68, s68, s{LB}")
    for i in range(4): A(f"v_add_f32_dpp v{X+i}, v{X+i}, v{X+i} quad_perm:[2,3,0,1] row_mask:0xf bank_mask:0xf")
    for i in range(2): A(f"v_cndmask_b32 v{T+i}, v{X+2*i}, v{X+2*i+1}, s[52:53]")
    A("v_mov_b32 v20, 64")
    A("v_lshlrev_b32 v21, 3, s9")
    for i in range(2): A(f"v_add_f32_dpp v{T+i}, v{T+i}, v{T+i} quad_perm:[1,0,3,2] row_mask:0xf bank_mask:0xf")
    A(f"v_cndmask_b32 v{sc}, v{T}, v{T+1}, s[54:55]")
    rnd(g, sc)
    A(f"v_mul_f32 v{sc}, 0x{SCALE:08x}, v{sc}")
    rnd(g, sc)
    mx = lambda r: f"v_max_f32_dpp v{MW}, v{MW}, v{MW} row_ror:{r} row_mask:0xf bank_mask:0xf"
    tk1 = f"s[{TK[1]}:{TK[1]+1}]"
    for t in (f"v_max_f32 v{MW}, v{MW}, v{sc}",
              f"v_cmp_ngt_f32 vcc, s{HTH}, v{sc}", "v_mov_b32 v4, 0", mx(8),
              "s_bcnt1_i32_b64 s69, vcc", f"s_add_u32 s69, s69, s{NH}", mx(4),
              f"s_cmp_gt_u32 s69, {HCAP}", f"s_cselect_b32 s{NSP}, 1, s{NSP}", mx(2),
              f"s_cmp_eq_u32 s{NSP}, 0", f"s_cselect_b64 {tk1}, vcc, 0", f"s_cselect_b32 s{NH}, s69, s{NH}", mx(1),
              f"v_mbcnt_lo_u32_b32 v3, s{TK[1]}, 0", f"v_mov_b32 v{T}, v{MW}", f"v_mbcnt_hi_u32_b32 v3, s{TK[1]+1}, v3", "v_lshl_add_u32 v3, v3, 3, s68",
              f"v_permlane16_swap_b32 v{T}, v{MW}",
              f"s_mov_b64 exec, {tk1}", f"ds_write_b64 v3, {vr(OFF[1],2)} offset:{HPOS*8}", "s_mov_b64 exec, -1",
              f"ds_read_b32 v{SET[2]}, v{LRD} offset:1024",
              f"v_max_f32 v{MW}, v{MW}, v{T}", f"v_mov_b32 v{T}, v{MW}", "v_mov_b32 v5, 0", f"s_mov_b32 s{TH}, s{T_}",
              f"v_permlane32_swap_b32 v{T}, v{MW}", f"v_max_f32 v{MW}, v{MW}, v{T}"): A(t)
    for i in range(2): A(f"v_sub_f32 v{X+1+i}, v{OFF[i]+1}, v{MW}")
    for i in range(2): A(f"v_mul_f32 v{X+1+i}, 0x{LOG2E:08x}, v{X+1+i}")
    for i in range(2): A(f"v_exp_f32 v{X+1+i}, v{X+1+i}")
    A("s_lshl_b32 s68, s9, 9")
    A(f"v_lshl_add_u32 v{X}, v1, 2, s68")
    A(f"v_add_f32 v{X+1}, v{X+1}, v{X+2}")
    A("s_waitcnt lgkmcnt(0)")
    for i in range(8):
        A(f"s_cmp_le_u32 s{NH}, {4*i}"); A("s_cbranch_scc1 L_x2")
        A(f"v_add_u32_dpp v3, v{SET[2]}, v{L16} row_newbcast:{8+i} row_mask:0xf bank_mask:0xf")
        A(f"buffer_load_dwordx4 {vr(slot(24+i),4)}, v3, s[48:51], 0 offen {VF}")
    g.lab("L_x2")
    g.stamp(2, 2)
    A(f"ds_write_b32 v{X}, v{X+1} offset:{L_OP}")
    A("s_mov_b64 exec, 1")
    A(f"ds_write_b32 v21, v{MW} offset:{L_ST}")
    A(f"ds_add_u32 v1, v20 offset:{L_SCN}")
    A("s_mov_b64 exec, -1")
    g.stamp(3); g.stamp(3, 2)
    A(f"s_mov_b32 s{X1D}, 1"); A(f"s_mov_b32 s{HST}, 1")
    if VB1 != VB0: A(f"s_add_i32 s{DB}, s{DB}, {VB1-VB0}")
    A(f"s_cmp_lt_u32 s{T_}, {LAG}"); A("s_cbranch_scc1 L_ks2")
    g.lab("L_x3")
    A(f"v_max_f32 v21, s{EV}, v{MW}")
    A(f"s_add_u32 s{CNT}, s{CNT}, 3"); A(f"s_lshr_b32 s{CNT}, s{CNT}, 2")
    A(f"v_add_f32 v21, 0x{f2u(DEL - ZERO_GAP):08x}, v21")
    A(f"s_max_u32 s{CNT}, s{CNT}, s{T_}"); A(f"s_lshl_b32 s{CNT}, s{CNT}, 2")
    build(1, 21)
    def fill():
        for e in range(4): A(f"v_mov_b32 v{AC_+e}, 0")
        for e in range(2, 4): A(f"v_mov_b32 v{AH_+e}, 0")
        A(f"s_lshr_b32 s{LIM}, s{CNT}, 2")
        A(f"s_mov_b32 s{X1D}, 2")
        estimate(2, opts.get("ve2", 13), CNT)
    reread(True, fill)
    A(f"s_cmp_eq_u32 s{NH}, 0")
    A(f"s_cselect_b32 s{LVL}, 0, s{LVL}")
    g.stamp(4, 2)
    g.lab("L_vs1")
    A(f"s_cmp_eq_u32 s{HST}, 0"); A("s_cbranch_scc1 L_vs1b")
    A(f"s_sub_u32 s68, s{T_}, s{TH}")
    A(f"s_cmp_le_u32 s{LVL}, s68"); A("s_cbranch_scc1 L_snap")
    A(f"s_cmp_lt_u32 s{T_}, s{LIM}"); A("s_cbranch_scc1 L_ks2")
    A("s_waitcnt vmcnt(0)")
    g.lab("L_snap")
    g.stamp(5, 2)
    for i in range(8):
        A(f"s_cmp_le_u32 s{NH}, {4*i}"); A("s_cbranch_scc1 L_snp2")
        pv(40 + i, slot(24 + i), AH_)
    g.lab("L_snp2")
    out_addr()
    A("s_nop 0")
    A(f"s_mov_b32 s{HST}, 0")
    if VB1: A(f"s_sub_i32 s{DB}, s{DB}, {VB1}")
    A(f"s_mov_b32 s{NW}, {LAG*4096}")
    A(f"s_cmp_lg_u32 s{NSP}, 0"); A("s_cbranch_scc1 L_vs1b")
    prelim(AH_)
    g.stamp(9); g.stamp(7, 2)
    A("s_branch L_vs1b")
    g.lab("L_vq")
    fetch()
    g.lab("L_vs1b")
    if opts.get("early", 0):
        A(f"s_lshr_b32 s68, s{SBI}, 16")
        A(f"s_cmp_gt_u32 s68, s{FIN}"); A("s_cbranch_scc1 L_hand")
    g.lab("L_vs2")
    A(f"s_cmp_lt_u32 s{T_}, s{LIM}"); A("s_cbranch_scc1 L_ks2")
    g.lab("L_ev")
    A(f"s_cmp_eq_u32 s{FIN}, 0"); A("s_cbranch_scc1 L_hand")
    A(f"s_add_u32 s68, s{T_}, {LAG}")
    A(f"s_cmp_lt_u32 s68, s{FIN}"); A("s_cbranch_scc0 L_wt1")
    A(f"s_add_u32 s{T_}, s{T_}, 1")
    A("s_mov_b64 exec, 1")
    A(f"ds_dec_u32 v{PA}, v{LRD} offset:{L_RM}")
    A("s_mov_b64 exec, -1")
    A("s_branch L_wtx")

    g.lab("L_hand")
    g.stamp(7)
    A("v_mov_b32 v3, 0")
    wait_cnt(g, f"ds_read_b64 v[18:19], v3 offset:{L_SCN}", 18, 0x10000 + 64 * NS_, 1)
    g.stamp(4)
    build(0, 19); build(1, 19)
    def fill2():
        A(f"s_add_u32 s{FIN}, s{CNT}, {3 + 4*LAG}")
        A(f"s_lshr_b32 s{FIN}, s{FIN}, 2")
        A(f"s_sub_u32 s{LIM}, s{FIN}, {LAG + opts.get('burst', 3)}")
        A(f"s_max_i32 s{LIM}, s{LIM}, 0")
        estimate(2, 3, CNT)
    reread(True, fill2)
    A("s_branch L_vs2")

    g.lab("L_work")
    ret2 = f"s_setpc_b64 s[{RET2}:{RET2+1}]"
    for k, l in ((4, "L_w3"), (3, "L_w2b"), (5, "L_w5")):
        A(f"s_cmp_eq_u32 s{STA}, {k}"); A(f"s_cbranch_scc1 {l}")
    def landed(n):
        A(f"s_add_u32 s68, s{LVL}, {n}")
        A(f"s_cmp_lt_u32 s{T_}, s68"); A("s_cbranch_scc1 L_wr")
    g.lab("L_w2")
    assert J0 >= 8 + LAG
    A("v_and_b32 v3, 0xf0, v0")
    A(f"ds_read_b128 v[4:7], v3 offset:{L_QV}")
    A("s_waitcnt lgkmcnt(0)")
    chk_sentinel(g, [4, 5, 6, 7], 8)
    A("s_cmp_lg_u64 vcc, 0"); A("s_cbranch_scc1 L_wr")
    dots(0)
    A(f"s_mov_b32 s{STA}, 3"); A(f"s_mov_b32 s{NXT}, 17")
    g.lab("L_wr")
    A(ret2)
    g.lab("L_w2b")
    landed(16)
    g.stamp(9, 2)
    dots(1)
    finish(0)
    A(f"s_mov_b32 s{STA}, 4")
    A(f"s_mov_b32 s{HST}, 0")
    g.stamp(8)
    A(ret2)
    g.lab("L_w5")
    landed(24)
    dots(2)
    A(f"s_mov_b32 s{STA}, 6"); A(f"s_mov_b32 s{NXT}, 99")
    A(ret2)
    g.lab("L_w3")
    A("v_mov_b32 v3, 0")
    A(f"ds_read_b64 v[18:19], v3 offset:{L_ECN}")
    A("s_waitcnt lgkmcnt(0)")
    A(f"v_cmp_gt_u32 vcc, 0x{0x10000 + 64 * NS_:x}, v18")
    A("s_cmp_lg_u64 vcc, 0"); A("s_cbranch_scc1 L_wr")
    A(f"ds_read_b64 v[20:21], v3 offset:{L_E1}")
    A("s_waitcnt lgkmcnt(0)")
    A(f"v_add_f32 v21, 0x{f2u(-THETA):08x}, v21")
    A(f"v_cmp_nlt_f32 vcc, v{OFF[0]+1}, v21")
    A(f"v_readfirstlane_b32 s{HTH}, v21")
    A(f"v_readfirstlane_b32 s{EV}, v20")
    A(f"s_mov_b32 s{NH}, 0")
    A("s_bcnt1_i32_b64 s68, vcc")
    A(f"s_cmp_gt_u32 s68, {HCAP}")
    A(f"s_cselect_b32 s{NSP}, 1, 0")
    A("s_cbranch_scc1 L_w4")
    A(f"s_mov_b32 s{CNT}, {HPOS}")
    build(0, 21)
    A(f"s_mov_b32 s{NH}, s69"); A(f"s_mov_b32 s{CNT}, 0")
    g.lab("L_w4")
    A(f"v_add_f32 v21, 0x{f2u(DEL - ZERO_GAP):08x}, v20")
    build(0, 21)
    estimate(1, opts.get("ve1", 6), CNT, False)
    if opts.get("ka1", 0):
        A(f"s_sub_i32 s68, s{VE}, {opts.get('kt1', 20)}")
        A(f"s_max_i32 s68, s68, {opts.get('kl1', -4)}")
        A(f"s_mul_i32 s68, s68, {int(opts['ka1']*4096)}")
        A(f"s_add_i32 s{DB}, s{DB}, s68")
    A(f"s_mov_b32 s{STA}, 5"); A(f"s_mov_b32 s{NXT}, 25")
    reread(False)
    A(ret2)

def gen(opts):
    g = G(opts); A = g.A
    opts.setdefault("ka1", 0.06)
    WFL = opts.get("wflags", "nt")
    D0 = opts.get("D0", 4)
    MREP = 8
    TB = 32
    hdr = open(opts["ref"]).read().split("; Override launch")[0]
    g.L.append(hdr.rstrip("\n"))
    g.L.append(""";
;    projections behind the attention overlap the remaining V rows.  When all rows are in, the bf16 attention output is formed
;    numbers of loads in flight only affect speed.""")
    g.L.append(f"; @launch grid=(256,1,1) block=(768,1,1) lds={LDS_BYTES}")
    g.L.append('.amdgcn_target "amdgcn-amd-amdhsa--gfx950"\n.text')
    g.L.append(f".globl {KNAME}\n.p2align 8\n.type {KNAME},@function\n{KNAME}:")
    g.stamp(0, 3)
    A("s_cmp_ge_u32 s2, 256")
    A("s_cbranch_scc1 L_end")
    A("s_load_dwordx16 s[16:31], s[0:1], 0")
    A("s_load_dwordx8 s[32:39], s[0:1], 64")
    A("s_load_dwordx4 s[40:43], s[0:1], 96")
    A("v_lshrrev_b32 v2, 6, v0")
    A("v_and_b32 v1, 63, v0")
    A("v_readfirstlane_b32 s13, v2")
    A("s_bfe_u32 s7, s2, 0x20003")
    A("s_bfe_u32 s6, s2, 0x20005")
    A("s_and_b32 s8, s2, 7")
    A("s_lshl2_add_u32 s6, s8, s6")
    A("s_and_b32 s9, s2, 0x80")
    A("s_lshr_b32 s9, s9, 2")
    A("s_add_u32 s6, s6, s9")
    A("s_mov_b32 s72, 0xfffffffe")
    A("s_mov_b32 s73, 0xffff0000")
    g.stamp(0)
    A("s_cmp_eq_u32 s7, 3")
    A("s_cbranch_scc1 L_serv")
    A("s_cmp_eq_u32 s13, 0")
    A("s_cbranch_scc1 L_pub")
    stream(g, opts)

    def tag():
        A("s_waitcnt lgkmcnt(0)")
        make_tag(g)
    def tag_bytes():
        for i in range(4): A(f"s_bfe_u32 s{TB+i}, s{ST}, 0x{(8 << 16) | (8 * i):x}")
    def table():
        A("s_getpc_b64 s[56:57]")
        l = g.uniq("pc"); g.lab(l)
        A("s_lshr_b32 s3, s2, 5"); A("s_lshl3_add_u32 s3, s3, s8"); A("s_lshl_b32 s3, s3, 2")
        A(f"s_add_u32 s3, s3, L_table-{l}")
        A("s_load_dword s14, s[56:57], s3")

    g.lab("L_pub")
    NT = opts.get("nt", 2)
    if NT:
        A("s_getpc_b64 s[56:57]")
        g.lab("L_pct")
        A("s_lshr_b32 s3, s2, 3"); A("s_lshl_b32 s3, s3, 2")
        A("s_add_u32 s3, s3, L_touch-L_pct")
        A("s_load_dword s14, s[56:57], s3")
        A("s_waitcnt lgkmcnt(0)")
        for k in range(NT):
            e = g.uniq("tq"); e2 = g.uniq("te")
            A(f"s_bfe_u32 s48, s14, 0x{(3 << 16) | (8*k):x}"); A("s_lshl_b32 s48, s48, 6")
            A("v_add_u32 v2, s48, v1")
            A(f"s_bfe_u32 s48, s14, 0x{(3 << 16) | (8*k+3):x}")
            A(f"s_bitcmp1_b32 s14, {8*k+7}"); A(f"s_cbranch_scc1 {e2}")
            A(f"s_bitcmp1_b32 s14, {8*k+6}"); A(f"s_cbranch_scc1 {e}")
            A("s_lshl1_add_u32 s48, s8, s48"); A("s_lshl_b32 s48, s48, 7")
            A("v_mul_u32_u24 v2, 6144, v2")
            A("v_add_u32 v2, s48, v2")
            A("global_load_dword v167, v2, s[36:37]")
            A(f"s_branch {e2}")
            g.lab(e)
            A("s_lshl3_add_u32 s48, s8, s48"); A("s_lshl_b32 s48, s48, 7")
            A("v_lshl_add_u32 v2, v2, 13, s48")
            A("global_load_dword v167, v2, s[22:23]")
            g.lab(e2)
    A("v_mov_b32 v38, 0")
    A("v_mov_b32 v4, -1")
    A("v_mov_b32 v8, 0xff800000"); A("v_mov_b32 v9, 0")
    A("v_lshlrev_b32 v2, 3, v1")
    A(f"ds_write_b64 v2, v[8:9] offset:{L_S4}")
    A("v_mov_b32 v5, 0"); A("v_mov_b32 v6, 0"); A("v_mov_b32 v7, 0")
    A("v_lshlrev_b32 v2, 2, v1")
    A(f"ds_write_b32 v2, v4 offset:{L_QV}")
    A(f"ds_write_b128 v38, v[4:7] offset:{L_ML}")
    A("v_mov_b32 v10, 0"); A("v_mov_b32 v11, v8"); A("v_mov_b32 v12, 0"); A("v_mov_b32 v13, v8")
    A(f"ds_write_b128 v38, v[10:13] offset:{L_SCN}")
    A(f"v_mov_b32 v10, {1024+NS_*(32-D0)}"); A("v_mov_b32 v11, 0"); A("v_mov_b32 v12, 1024"); A("v_mov_b32 v13, 0")
    A(f"ds_write_b128 v38, v[10:13] offset:{L_RM}")
    A("v_mov_b32 v4, 0")
    A(f"ds_write_b128 v38, v[4:7] offset:{L_SN}")
    A(f"s_getreg_b32 s{SXCC}, hwreg(HW_REG_XCC_ID, 0, 4)")
    A("s_waitcnt lgkmcnt(0)")
    A(f"s_load_dword s{ST}, s[42:43], {WS_E}")
    A("s_barrier")
    tag()
    A(f"s_add_u32 s{SXCC}, s{SXCC}, s{ST}")
    def merge(nl, base):
        A(f"v_and_b32 v9, {nl-1}, v1")
        A("v_lshlrev_b32 v9, 3, v9")
        A(f"ds_read_b64 v[10:11], v9 offset:{base}")
        mods = ["quad_perm:[1,0,3,2]", "quad_perm:[2,3,0,1]", "row_half_mirror", "row_mirror"][:nl.bit_length()-1]
        A("s_waitcnt lgkmcnt(0)")
        if nl == 16: A("v_mov_b32 v16, v10")
        for i, m_ in enumerate(mods):
            src = 10 if i == 0 else 8
            A(f"v_max_f32_dpp v8, v{src}, v{src} {m_} row_mask:0xf bank_mask:0xf")
            if i + 1 < len(mods): A("s_nop 1")
        A("v_sub_f32 v9, v10, v8")
        A(f"v_mul_f32 v9, 0x{LOG2E:08x}, v9")
        A("v_exp_f32 v9, v9")
        A("s_nop 0")
        A("v_mul_f32 v10, v9, v11")
        for m_ in mods:
            A("s_nop 1")
            A(f"v_add_f32_dpp v10, v10, v10 {m_} row_mask:0xf bank_mask:0xf")
    SB = 20
    def sissue(n, nd, off):
        for i in range(n): A(f"s_load_dwordx{nd} s[{SB+4*i}:{SB+4*i+nd-1}], s[42:43], s{54+i} offset:{off} glc")
    def spoll(n, nd, off, name, sleep):
        A("s_mov_b32 s70, 0")
        A(f"s_branch {name}c")
        g.lab(name)
        sissue(n, nd, off)
        g.lab(name + "c")
        A("s_waitcnt lgkmcnt(0)")
        tags = [SB + 4*i + k for i in range(n) for k in range(1, nd, 2)]
        A(f"s_xor_b32 s68, s{tags[0]}, s{ST}")
        for k in tags[1:]:
            A(f"s_xor_b32 s69, s{k}, s{ST}"); A("s_or_b32 s68, s68, s69")
        A(f"s_cbranch_scc0 {name}d")
        A(f"s_sleep {sleep}")
        A("s_add_u32 s70, s70, 1")
        A(f"s_cmp_lt_u32 s70, {SPIN_MAX}")
        A(f"s_cbranch_scc1 {name}")
        g.lab(name + "d")
    def sibs():
        A("s_add_u32 s52, s7, 1"); A("s_cmp_eq_u32 s52, 3"); A("s_cselect_b32 s52, 0, s52")
        A("s_add_u32 s53, s52, s7"); A("s_sub_u32 s53, 3, s53")
        for i in range(2):
            A(f"s_lshl2_add_u32 s{54+i}, s6, s{52+i}"); A(f"s_lshl_b32 s{54+i}, s{54+i}, 7")
    A("s_lshl2_add_u32 s64, s6, s7"); A("s_lshl_b32 s64, s64, 7")
    A(f"s_add_u32 s64, s64, {WS_S1}")
    A("v_mov_b32 v18, s64")
    A(f"v_add_u32 v19, {WS_S2-WS_S1}, v18")
    A("v_mov_b32 v17, 0x10000")
    PT = opts.get("pt", 15)
    if PT & 1:
        A("s_lshl2_add_u32 s49, s6, s7"); A("s_lshl_b32 s49, s49, 9"); A(f"s_add_u32 s49, s49, {WS_OP}")
        A("v_and_b32 v10, 3, v1"); A("v_lshl_add_u32 v10, v10, 7, s49")
        A("v_bfe_u32 v11, v1, 2, 1"); A(f"v_mul_u32_u24 v11, {R2}, v11"); A("v_add_u32 v10, v10, v11")
        A("s_mov_b64 exec, 0xff")
        A("global_load_dword v166, v10, s[42:43] sc1")
        A("s_mov_b64 exec, 1")
        A("global_load_dword v166, v18, s[42:43] sc1")
        A("global_load_dword v166, v19, s[42:43] sc1")
        A("s_mov_b64 exec, -1")
    l = g.uniq("qw")
    A("s_mov_b32 s70, 0")
    g.lab(l)
    A(f"ds_read_b32 v8, v38 offset:{L_RM}")
    A("s_waitcnt lgkmcnt(0)")
    A(f"v_cmp_lt_u32 vcc, {1024 + NS_ * (32 - opts.get('jq', 13))}, v8")
    spin_tail(g, l, l + "d", 4, 8)
    WIN = (8, 24, 44, 84)
    A("s_lshl_b32 s3, s6, 9")
    A("s_mov_b64 exec, 1")
    for h in range(2):
        A("s_mov_b32 s70, 0")
        g.lab(f"L_qp{h}")
        for i, w in enumerate(WIN): A(f"s_load_dwordx16 s[{w}:{w+15}], s[42:43], s3 offset:{WS_Q+256*h+64*i} glc")
        A(f"s_mov_b32 s62, -1"); A("s_mov_b32 s63, 0")
        A("s_waitcnt lgkmcnt(0)")
        for w in WIN:
            for k in range(1, 16, 2):
                A(f"s_and_b32 s62, s62, s{w+k}"); A(f"s_or_b32 s63, s63, s{w+k}")
        A(f"s_xor_b32 s62, s62, s{ST}"); A(f"s_xor_b32 s63, s63, s{ST}"); A("s_or_b32 s62, s62, s63")
        A(f"s_cbranch_scc0 L_qp{h}d")
        A(f"s_sleep {opts.get('qsl', 2)}")
        A("s_add_u32 s70, s70, 1")
        A(f"s_cmp_lt_u32 s70, {SPIN_MAX}")
        A(f"s_cbranch_scc1 L_qp{h}")
        g.lab(f"L_qp{h}d")
        for i, w in enumerate(WIN):
            for k in range(8): A(f"v_mov_b32 v{40+32*h+8*i+k}, s{w+2*k}")
    for i in range(16): A(f"ds_write_b128 v38, {vr(40+4*i,4)} offset:{L_QV+16*i}")
    A("s_mov_b64 exec, -1")
    A("s_and_b32 s8, s2, 7"); A("s_mov_b32 s13, 0")
    g.stamp(9)
    sibs()
    wait_cnt(g, f"ds_read_b64 v[8:9], v38 offset:{L_ECN}", 8, 64 * NS_, 2)
    sissue(2, 2, WS_S1)
    A("v_mov_b32 v8, v9")
    A(f"v_mov_b32 v9, s{ST}")
    A("s_mov_b64 exec, 1")
    A("global_store_dwordx2 v18, v[8:9], s[42:43] sc1")
    g.stamp(1)
    spoll(2, 2, WS_S1, "L_s3e", opts.get("ssl", 2))
    A(f"v_mov_b32 v12, s{SB}")
    A(f"v_max3_f32 v10, v8, v12, s{SB+4}")
    A(f"v_min3_f32 v11, v8, v12, s{SB+4}")
    A(f"ds_write_b64 v38, v[10:11] offset:{L_E1}")
    A(f"ds_add_u32 v38, v17 offset:{L_ECN}")
    A("s_mov_b64 exec, -1")
    g.stamp(3)
    if True:
        A("s_lshl_b32 s64, s8, 7")
        A(f"s_load_dwordx8 s[20:27], s[42:43], s64 offset:{WS_HDR} glc")
        A("s_waitcnt lgkmcnt(0)")
        A(f"s_xor_b32 s68, s20, s{SXCC}")
        for k in range(1, 8):
            A(f"s_xor_b32 s69, s{20+k}, s{SXCC}"); A("s_or_b32 s68, s68, s69")
        A(f"s_cselect_b32 s{SLOC}, 0, 1")
        if opts.get("nolocal"): A(f"s_mov_b32 s{SLOC}, 0")
    for i, r in enumerate((7, 52, 53)): A(f"v_lshlrev_b32 v{20+i}, 3, s{r}")
    A("v_and_b32 v9, 15, v1"); A("v_lshlrev_b32 v9, 3, v9"); A("v_lshlrev_b32 v11, 2, v1")
    wait_then(g, L_SCN, 64 * NS_, [f"ds_read_b32 v16, v9 offset:{L_ST}"] + [f"ds_read_b32 v{40+i}, v11 offset:{L_OP+512*i}" for i in range(NS_)], 64 * (NS_ - 1))
    A(f"s_waitcnt lgkmcnt({NS_})")
    for i, m_ in enumerate(["quad_perm:[1,0,3,2]", "quad_perm:[2,3,0,1]", "row_half_mirror", "row_mirror"]):
        src = 16 if i == 0 else 8
        A(f"v_max_f32_dpp v8, v{src}, v{src} {m_} row_mask:0xf bank_mask:0xf")
        if i < 3: A("s_nop 1")
    A("v_sub_f32 v9, v16, v8")
    A(f"v_mul_f32 v9, 0x{LOG2E:08x}, v9")
    A("v_exp_f32 v9, v9")
    A("s_waitcnt lgkmcnt(0)")
    A("s_nop 0")
    for i in range(NS_):
        op = "v_mul_f32_dpp" if i < 2 else "v_fmac_f32_dpp"
        A(f"{op} v{10+2*(i&1)}, v9, v{40+i} row_newbcast:{i} row_mask:0xf bank_mask:0xf")
    A("v_add_f32 v10, v10, v12")
    g.wave_red("v_add_f32", 10, 12)
    sissue(2, 4, WS_S2)
    A(f"v_mov_b32 v9, s{ST}"); A(f"v_mov_b32 v11, s{ST}")
    A("s_mov_b64 exec, 1")
    A("global_store_dwordx4 v19, v[8:11], s[42:43] sc1")
    A(f"ds_write_b32 v20, v8 offset:{L_S4}")
    A(f"ds_write_b32 v20, v10 offset:{L_S4+4}")
    g.stamp(4)
    spoll(2, 4, WS_S2, "L_s3p", opts.get("ssl", 2))
    for i in range(2):
        A(f"v_mov_b32 v{12+2*i}, s{SB+4*i}"); A(f"v_mov_b32 v{13+2*i}, s{SB+4*i+2}")
    for i in range(2): A(f"ds_write_b64 v{21+i}, {vr(12+2*i,2)} offset:{L_S4}")
    A("s_mov_b64 exec, -1")
    merge(4, L_S4)
    A("v_log_f32 v12, v10")
    A("v_sub_f32 v9, v16, v8")
    A("v_rcp_f32 v10, v10")
    A(f"v_mul_f32 v9, 0x{LOG2E:08x}, v9")
    A("v_exp_f32 v9, v9")
    A(f"v_add_f32 v8, 0x{f2u(-ZERO_GAP):08x}, v8")
    A(f"v_fmac_f32 v8, 0x{f2u(0.6931471805599453 if opts.get('lnl', 1) else 0):08x}, v12")
    A("v_lshlrev_b32 v13, 2, v1")
    A("v_mul_f32 v9, v9, v10")
    A("s_mov_b64 exec, 0xffff")
    A(f"ds_write_b32 v13, v9 offset:{L_S8}")
    A("s_mov_b64 exec, 1")
    A(f"ds_write_b32 v38, v8 offset:{L_MX}")
    A(f"ds_add_u32 v38, v17 offset:{L_SCN}")
    A(f"ds_add_u32 v38, v17 offset:{L_RM+12}")
    A("s_mov_b64 exec, -1")
    A(f"ds_write_b32 v38, v38 offset:{L_ML}")
    g.stamp(5)
    R = 40
    op_prep(g, R, 38, 0)
    wait_then(g, L_SN, NS_, op_reads(L_OP1, R), NS_ - 1)
    op_sum(g, R, True)
    g.stamp(6)
    R1 = 80
    op_prep(g, R1, 38, R2)
    A("s_waitcnt vmcnt(0)")
    wait_cnt(g, f"ds_read_b32 v8, v38 offset:{L_TK}", 8, opts.get("ctk", 1), 4)
    A(f"global_store_dwordx2 v{R+OPA}, {vr(R,2)}, s[42:43] sc1")
    A("s_cmp_eq_u32 s7, 2"); A("s_cbranch_scc1 L_chk")
    wait_then(g, L_TK, NS_, op_reads(L_OP, R1), NS_ - 1)
    op_sum(g, R1, False)
    g.stamp(7)
    A("s_branch L_fin")

    g.lab("L_chk")
    TG = 160; RB = 136
    for k in range(2): A(f"v_and_b32 v{TG+k}, 0xff, v{R+OPA+1+k}")
    A("s_lshl_b32 s10, s6, 11"); A(f"s_add_u32 s10, s10, {WS_OP}")
    A("v_lshl_add_u32 v2, v1, 3, s10")
    def head_sum(b_, t, src=None):
        src = src or list(range(b_, b_ + 6))
        for i in range(6): A(f"v_xor_b32 v{b_+i}, v{src[i]}, v{TG+(i&1)}")
        A(f"v_or3_b32 v{t}, v{b_}, v{b_+1}, v{b_+2}")
        A(f"v_or3_b32 v{t+1}, v{b_+3}, v{b_+4}, v{b_+5}")
        for i in range(6): A(f"v_or_b32 v{b_+i}, 0x80, v{b_+i}")
        A(f"v_or_b32 v{t}, v{t}, v{t+1}")
        A(f"v_pk_add_f32 {vr(b_,2)}, {vr(b_,2)}, {vr(b_+2,2)}")
        A(f"v_lshlrev_b32 v{t}, 24, v{t}")
        A(f"v_pk_add_f32 {vr(b_,2)}, {vr(b_,2)}, {vr(b_+4,2)}")
        A(f"v_cmp_ne_u32 vcc, 0, v{t}")
        A(f"v_cvt_pk_bf16_f32 v{b_}, v{b_}, v{b_+1}")
    RAW = RB + 18
    def looks(k, v=2):
        for i in range(2): A(f"global_load_dwordx2 {vr(RAW-24*k+2*i,2)}, v{v}, s[42:43] offset:{512*i} sc1")
    def settle(k, sleep, own, depth):
        raw = RAW - 24*k
        A("s_mov_b32 s70, 0")
        A(f"s_branch L_cp{k}c")
        g.lab(f"L_cp{k}")
        looks(k)
        if sleep: A(f"s_sleep {sleep}")
        A(f"s_waitcnt vmcnt({2*(depth-1)})")
        g.lab(f"L_cp{k}c")
        head_sum(RB+8*k, RB+16, [raw, raw+1, raw+2, raw+3, own, own+1])
        spin_tail(g, f"L_cp{k}", f"L_cp{k}d", 0)
    looks(0)
    A(f"v_add_u32 v3, {R2}, v2")
    wait_then(g, L_TK, NS_, op_reads(L_OP, R1), NS_ - 1)
    looks(1, 3)
    op_sum(g, R1, False)
    g.stamp(7)
    A("s_waitcnt vmcnt(1)")
    settle(0, 4, R, 1)
    A(f"v_add_u32 v2, {R2}, v2")
    settle(1, opts.get("csl", 0), R1, opts.get("cpipe", 1))
    A(f"v_cmp_ne_u32 vcc, v{RB}, v{RB+8}")
    A("s_cmp_eq_u64 vcc, 0"); A("s_cbranch_scc1 L_fin")
    A("s_waitcnt vmcnt(0)")
    fallback(g, head_sum, g.wave_red)

    g.lab("L_serv")
    A("s_cmp_ge_u32 s13, 4"); A("s_cbranch_scc1 L_team")
    A("s_cmp_lt_u32 s13, 2"); A("s_cbranch_scc1 L_sv1")
    if opts.get("cpf", 1):
        A("s_getpc_b64 s[56:57]")
        g.lab("L_pcc")
        A(f"s_sub_u32 s56, s56, L_pcc-{KNAME}"); A("s_subb_u32 s57, s57, 0")
        A("s_lshr_b32 s3, s2, 5"); A("s_lshl1_add_u32 s3, s3, s13"); A("s_sub_u32 s3, s3, 2")
        A("s_lshl_b32 s3, s3, 12")
        A("v_lshl_add_u32 v2, v1, 6, s3")
        A(f"v_min_u32 v2, L_end-{KNAME}, v2")
        A("global_load_dword v3, v2, s[56:57]")
    if opts.get("amp"):
        A("s_cmp_lg_u32 s2, 24"); A("s_cbranch_scc1 L_end")
        A("s_cmp_lg_u32 s13, 2"); A("s_cbranch_scc1 L_end")
        A("s_memrealtime s[78:79]")
        A("s_waitcnt lgkmcnt(0)")
        A(f"s_load_dword s{ST}, s[42:43], {WS_E}")
        A("s_barrier")
        tag()
        A("s_waitcnt vmcnt(0)")
        A("v_and_b32 v2, 31, v1"); A("v_lshlrev_b32 v2, 7, v2"); A(f"v_add_u32 v2, {WS_DN}, v2")
        A("v_lshlrev_b32 v3, 11, v1"); A(f"v_add_u32 v3, {WS_OQ}, v3")
        A(f"s_and_b32 s60, s{ST}, 0xff")
        g.lab("L_am0")
        A("s_sleep 4"); A("s_memrealtime s[64:65]"); A("s_waitcnt lgkmcnt(0)")
        A("s_sub_u32 s64, s64, s78"); A(f"s_cmp_lt_u32 s64, {opts.get('am0', 1950)}"); A("s_cbranch_scc1 L_am0")
        which = opts.get("amw", 3)
        A("s_mov_b32 s70, 0")
        g.lab("L_am1")
        A("global_load_dword v4, v2, s[42:43] sc1")
        for i in range(3): A(f"global_load_dword v{5+i}, v3, s[42:43] offset:{512*i} sc1")
        A("s_waitcnt vmcnt(0)")
        A("s_mov_b64 vcc, 0")
        if which & 1: A(f"v_cmp_ne_u32 vcc, s{ST}, v4")
        if which & 2:
            for i in range(3):
                A(f"v_and_b32 v{5+i}, 0xff, v{5+i}"); A(f"v_cmp_ne_u32 s[68:69], s60, v{5+i}"); A("s_or_b64 vcc, vcc, s[68:69]")
        spin_tail(g, "L_am1", "L_am2", 0)
        A("s_memrealtime s[66:67]"); A("s_waitcnt lgkmcnt(0)")
        A("s_sub_u32 s66, s66, s78"); A(f"s_mul_i32 s66, s66, {opts['amp']}")
        g.lab("L_am3")
        A("s_sleep 1")
        A("s_memrealtime s[64:65]"); A("s_waitcnt lgkmcnt(0)")
        A("s_sub_u32 s64, s64, s78"); A("s_cmp_lt_u32 s64, s66"); A("s_cbranch_scc1 L_am3")
    A("s_endpgm")
    g.lab("L_sv1")
    A("v_mov_b32 v38, 0")
    A("v_mov_b32 v4, -1"); A("v_mov_b32 v5, 0"); A("v_mov_b32 v6, 0"); A("v_mov_b32 v7, 0")
    A(f"ds_write_b128 v38, v[4:7] offset:{L_ML}")
    A(f"ds_write_b64 v38, v[6:7] offset:{L_CNA}")
    A(f"s_getreg_b32 s{SXCC}, hwreg(HW_REG_XCC_ID, 0, 4)")
    A("s_waitcnt lgkmcnt(0)")
    A(f"s_load_dword s{ST}, s[42:43], {WS_E}")
    table()
    A("s_barrier")
    tag()
    tag_bytes()
    A("s_cmp_eq_u32 s13, 0"); A("s_cbranch_scc1 L_sv0")
    A("s_bfe_u32 s61, s14, 0x80010")
    A("s_cmp_ge_u32 s61, 32"); A("s_cbranch_scc1 L_fin")
    poll_lds(g, [f"ds_read_b32 v8, v38 offset:{L_ML}"], [8], 9, 16)
    A("s_branch L_r_f2")

    g.lab("L_sv0")
    if True:
        A(f"s_add_u32 s{SXCC}, s{SXCC}, s{ST}")
        A("s_lshr_b32 s49, s2, 5"); A("s_lshl_b32 s50, s8, 5"); A("s_add_u32 s49, s49, s50"); A("s_lshl_b32 s49, s49, 2")
        A("v_mov_b32 v8, s49"); A(f"v_mov_b32 v9, s{SXCC}")
        A("s_mov_b64 exec, 1")
        A(f"global_store_dword v8, v9, s[42:43] offset:{WS_HDR} sc1")
        A("s_mov_b64 exec, -1")
    for i in range(3):
        A(f"s_lshl_b32 s{54+i}, s6, 9"); A(f"s_add_u32 s{54+i}, s{54+i}, {128*i}")
    WDL = opts.get("wdl", 2)
    if WDL:
        wait_cnt(g, f"ds_read_b32 v8, v38 offset:{L_CNA}", 8, opts.get("wdc", 8), 16)
        if opts.get('wds', 0): A(f"s_sleep {opts.get('wds', 0)}")
        if opts.get("wdn", 1):
            sissue(opts.get("wdn", 1), 2, WS_S1)
            spoll(opts.get("wdn", 1), 2, WS_S1, "L_s3w", 8)
        A("v_mov_b32 v8, 1")
        A(f"ds_write_b32 v38, v8 offset:{L_ML+4}")
    wait_cnt(g, f"ds_read_b32 v8, v38 offset:{L_CNA}", 8, 12, 16)
    sissue(3, 2, WS_S2)
    spoll(3, 2, WS_S2, "L_s3s", 8)
    A(f"ds_write_b32 v38, v38 offset:{L_ML}")
    g.stamp(5)
    A("s_branch L_fin")

    g.lab("L_team")
    A("s_and_b32 s5, s13, 3")
    A("v_and_b32 v0, 0xff, v0")
    A("v_mov_b32 v38, 0")
    A(f"s_mov_b32 s{STG}, 0")
    A("s_lshr_b32 s60, s2, 5")
    A("v_lshrrev_b32 v12, 3, v0")
    A("v_lshlrev_b32 v12, 5, v12")
    A("v_bfe_u32 v3, v1, 2, 1")
    A("v_lshl_add_u32 v12, v3, 10, v12")
    A("v_and_b32 v8, 3, v1")
    A("v_lshl_add_u32 v37, v8, 3, v12")
    A("v_and_b32 v12, 0xffffffdf, v12")
    A("v_lshl_add_u32 v12, v8, 4, v12")
    A("v_bfe_u32 v8, v1, 3, 1")
    A("v_lshl_add_u32 v12, v8, 3, v12")
    A("v_lshl_add_u32 v12, v3, 5, v12")
    A("s_waitcnt lgkmcnt(0)")
    A(f"s_load_dword s{ST}, s[42:43], {WS_E}")
    A("s_barrier")
    A("s_cmp_ge_u32 s13, 8"); A("s_cbranch_scc1 L_r_mod")

    def line_out_addr(v, bsh=6, ush=7):
        A(f"v_and_b32 v{v}, 1, v1")
        A(f"v_lshlrev_b32 v{v}, {bsh}, v{v}")
        A("v_lshrrev_b32 v3, 4, v1")
        A(f"v_lshl_add_u32 v{v}, v3, 4, v{v}")
        A(f"s_lshl_b32 s49, s5, {ush}")
        A("s_add_u32 s49, s49, s58")
        A(f"v_add_u32 v{v}, s49, v{v}")
    def pack_tagged():
        A("v_cvt_pk_bf16_f32 v8, v8, v9")
        A("v_cvt_pk_bf16_f32 v10, v10, v11")
        A(f"v_mov_b32 v9, s{ST}")
        A(f"v_mov_b32 v11, s{ST}")
    def go(k):
        A("v_mov_b32 v3, 1")
        A("s_mov_b64 exec, 1")
        A(f"ds_add_u32 v38, v3 offset:{L_GO+4*k}")
        A("s_mov_b64 exec, -1")

    g.T = TA
    g.lab("L_r_q")
    A("s_lshl3_add_u32 s61, s8, s60")
    A("s_lshl_b32 s48, s61, 7")
    A("s_lshl_b32 s58, s61, 8")
    A(f"s_add_u32 s58, s58, {WS_Q}")
    A("global_load_dwordx2 v[14:15], v37, s[16:17]")
    srd(g, 44, 22, 512*8192)
    A("s_cmp_ge_u32 s60, 2"); A("s_cbranch_scc1 L_q_go")
    wait_cnt(g, f"ds_read_b32 v8, v38 offset:{L_GO+4}", 8, 4, 1)
    g.lab("L_q_go")
    dma_tile64(g, 8192, WFL, opts.get("PQ", 0))
    go(0)
    tag()
    A("v_bfe_u32 v6, v1, 2, 1")
    A("v_lshlrev_b32 v6, 5, v6")
    A(f"v_add_u32 v6, {TA.RED}, v6")
    A("s_lshl_b32 s49, s5, 3")
    A("v_add_u32 v5, s49, v6")
    A("s_waitcnt vmcnt(16)")
    unpack4(g, 20, 14)
    ln_partial(g, 20)
    A("s_waitcnt vmcnt(0) lgkmcnt(0)")
    hsync(g, 9)
    ln_apply(g, 20, 24)
    A("s_lshl_b32 s49, s8, 13"); A(f"s_add_u32 s49, s49, {WS_MA}")
    A("v_lshl_add_u32 v15, v0, 4, s49")
    A("v_add_u32 v36, 0x1000, v15")
    def mod_loads():
        A("s_mov_b64 exec, s[64:65]")
        A("global_load_dwordx4 v[16:19], v15, s[42:43] sc1")
        A("s_mov_b64 exec, s[66:67]")
        A("global_load_dwordx4 v[32:35], v36, s[42:43] sc1")
        A("s_mov_b64 exec, -1")
    A("s_mov_b64 s[64:65], -1"); A("s_mov_b64 s[66:67], -1")
    mod_loads()
    tr_tile64(g)
    line_out_addr(13, 14, 6)
    act_addr(g, 14, TA.ACT, ACT_BS)
    g.stamp(1)
    A("s_mov_b32 s70, 0")
    A("s_branch L_q_c")
    g.lab("L_q_p")
    mod_loads()
    g.lab("L_q_c")
    A("s_waitcnt vmcnt(0)")
    A(f"v_cmp_ne_u32 s[64:65], s{ST}, v17"); A(f"v_cmp_ne_u32 s[68:69], s{ST}, v19"); A("s_or_b64 s[64:65], s[64:65], s[68:69]")
    A(f"v_cmp_ne_u32 s[66:67], s{ST}, v33"); A(f"v_cmp_ne_u32 s[68:69], s{ST}, v35"); A("s_or_b64 s[66:67], s[66:67], s[68:69]")
    A("s_or_b64 vcc, s[64:65], s[66:67]")
    A("s_or_b32 s64, s64, 1"); A("s_or_b32 s66, s66, 1")
    spin_tail(g, "L_q_p", "L_q_ok", opts.get("msleep", 2))
    g.stamp(3)
    unpack4(g, 28, 32, 2)
    unpack4(g, 24, 16, 2)
    for i in range(4): A(f"v_add_f32 v{28+i}, 1.0, v{28+i}")
    for i in range(4): rnd(g, 28+i)
    for i in range(4): A(f"v_mul_f32 v{20+i}, v{20+i}, v{28+i}")
    for i in range(4): rnd(g, 20+i)
    for i in range(4): A(f"v_add_f32 v{20+i}, v{20+i}, v{24+i}")
    A("v_cvt_pk_bf16_f32 v16, v20, v21")
    A("v_cvt_pk_bf16_f32 v17, v22, v23")
    A(f"ds_write_b64 v12, v[16:17] offset:{TA.ACT}")
    hsync(g, 9)
    gemv(g, 16, 14, 8)
    pack_tagged()
    guard(g, 8); guard(g, 10)
    for x in EX8: A(x)
    A("global_store_dwordx4 v13, v[8:11], s[42:43] sc1")
    A("s_mov_b64 exec, -1")
    g.stamp(4)

    g.lab("L_r_wo")
    A("s_xor_b32 s61, s60, 1")
    A("s_lshl_b32 s48, s8, 19")
    A("s_lshl_b32 s49, s61, 7")
    A("s_add_u32 s48, s48, s49")
    A("s_lshr_b32 s58, s8, 1"); A("s_lshl_b32 s58, s58, 14")
    A("s_and_b32 s49, s8, 1"); A("s_lshl_b32 s49, s49, 12"); A("s_add_u32 s58, s58, s49")
    A("s_lshl_b32 s49, s61, 9")
    A("s_add_u32 s58, s58, s49")
    A(f"s_add_u32 s58, s58, {WS_AP}")
    srd(g, 44, 24, 4096*1024)
    if WDL & 1: wait_cnt(g, f"ds_read_b32 v8, v38 offset:{L_ML+4}", 8, 1, 8)
    dma_tile64(g, 1024, WFL, opts.get("PW", 3))
    tag_bytes()
    A("s_lshl2_add_u32 s49, s8, s5"); A("s_lshl_b32 s49, s49, 11")
    A(f"s_add_u32 s49, s49, {WS_OP}")
    A("v_lshrrev_b32 v12, 5, v1")
    A("v_and_b32 v16, 31, v1")
    A("v_lshlrev_b32 v15, 16, v12")
    A("v_lshl_add_u32 v15, v16, 4, v15")
    A("v_add_u32 v15, s49, v15")
    A(f"v_mul_u32_u24 v12, {ACT_BS}, v12")
    A("v_bfe_u32 v16, v1, 3, 2")
    A("v_lshl_add_u32 v12, v16, 6, v12")
    A("v_and_b32 v16, 3, v1")
    A("v_lshl_add_u32 v12, v16, 4, v12")
    A("v_bfe_u32 v16, v1, 2, 1")
    A("v_lshl_add_u32 v12, v16, 3, v12")
    A("s_lshl_b32 s49, s5, 8")
    A("v_add_u32 v12, s49, v12")
    line_out_addr(13)
    AREP = opts.get("arep", 2)
    A(f"v_bfe_u32 v3, v1, 1, {max(AREP.bit_length()-1, 0)}")
    A("v_lshl_add_u32 v13, v3, 16, v13")
    A("v_mov_b32 v36, 0xff")
    if PT & 2: A("global_load_dword v11, v13, s[42:43] sc1")
    A("s_waitcnt vmcnt(0)")
    g.stamp(5)
    hsync(g, 9, 4)
    tr_tile64(g)
    poll_lds(g, [f"ds_read_b32 v8, v38 offset:{L_ML}"], [8], 9, 8)
    if opts.get("notail"): go(0); A("s_branch L_fin")

    def sumN(n, src, dst):
        st = n // 2
        for i in range(st):
            for h in range(2):
                A(f"v_pk_add_f32 {vr(dst+4*i+2*h,2)}, {vr(src+4*i+2*h,2)}, {vr(src+4*(i+st)+2*h,2)}")
        st //= 2
        while st:
            for i in range(st):
                for h in range(2):
                    A(f"v_pk_add_f32 {vr(dst+4*i+2*h,2)}, {vr(dst+4*i+2*h,2)}, {vr(dst+4*(i+st)+2*h,2)}")
            st //= 2
    def sum8p(src, dst):
        for p in range(4):
            for h in range(2): A(f"v_pk_add_f32 {vr(dst+8*p+2*h,2)}, {vr(src+8*p+2*h,2)}, {vr(src+8*p+4+2*h,2)}")
        sum8q(dst)
    def sum8q(dst):
        for i in range(2):
            for h in range(2): A(f"v_pk_add_f32 {vr(dst+16*i+2*h,2)}, {vr(dst+16*i+2*h,2)}, {vr(dst+16*i+8+2*h,2)}")
        for h in range(2): A(f"v_pk_add_f32 {vr(dst+2*h,2)}, {vr(dst+2*h,2)}, {vr(dst+16+2*h,2)}")
    def x1_from(S):
        for i in range(4): rnd(g, S+i)
        for i in range(4): A(f"v_mul_f32 v{S+i}, v{S+i}, v{20+i}")
        for i in range(4): rnd(g, S+i)
        for i in range(4): A(f"v_add_f32 v{16+i}, v{16+i}, v{S+i}")
        for i in range(4): rnd(g, 16+i)
    TSL = opts.get("tsl", 0)
    def gather(n, load, raw, tmp, name, depth, gap, fin, msk=20, first=None):
        for i in range(n): A(f"s_mov_b64 s[{msk+2*i}:{msk+2*i+1}], {first[i] if first else -1}")
        def rnd_():
            for i in range(n):
                A(f"s_mov_b64 exec, s[{msk+2*i}:{msk+2*i+1}]")
                load(i, raw + 4*i)
            A("s_mov_b64 exec, -1")
        rnd_()
        A("s_waitcnt vmcnt(0)")
        A("s_mov_b32 s70, 0")
        A(f"s_branch {name}c")
        g.lab(name)
        rnd_()
        if gap: A(f"s_sleep {gap}")
        A(f"s_waitcnt vmcnt({n*(depth-1)})")
        g.lab(name + "c")
        for k in range(4*n): A(f"v_xor_b32 v{tmp+k}, s{TB+k%4}, v{raw+k}")
        for i in range(n): A(f"v_or3_b32 v{28+i}, v{tmp+4*i}, v{tmp+4*i+1}, v{tmp+4*i+2}")
        for i in range(n): A(f"v_or_b32 v{28+i}, v{28+i}, v{tmp+4*i+3}")
        for i in range(n): A(f"v_cmp_ne_u32_sdwa s[{msk+2*i}:{msk+2*i+1}], v{28+i}, v38 src0_sel:BYTE_0 src1_sel:DWORD")
        fin()
        A(f"s_mov_b64 vcc, s[{msk}:{msk+1}]")
        for i in range(1, n): A(f"s_or_b64 vcc, vcc, s[{msk+2*i}:{msk+2*i+1}]")
        for i in range(n): A(f"s_or_b32 s{msk+2*i}, s{msk+2*i}, 1")
        spin_tail(g, name, name + "ok", 0)
    def wo_fin():
        for i in range(12): A(f"v_or_b32 v{VA+32+i}, 0x80, v{VA+32+i}")
        for h in range(2): A(f"v_pk_add_f32 {vr(16+2*h,2)}, {vr(VA+32+2*h,2)}, {vr(VA+36+2*h,2)}")
        for h in range(2): A(f"v_pk_add_f32 {vr(16+2*h,2)}, {vr(16+2*h,2)}, {vr(VA+40+2*h,2)}")
    gather(3, lambda i, r: A(f"global_load_dwordx4 {vr(r,4)}, v15, s[42:43] offset:{512*i} sc1"), VA+48, VA+32, "L_wo_",
           opts.get("wpipe", 1), opts.get("wgap", 0), wo_fin)
    A("v_cvt_pk_bf16_f32 v8, v16, v17")
    A("v_cvt_pk_bf16_f32 v9, v18, v19")
    g.stamp(7)
    A(f"ds_write_b64 v12, v[8:9] offset:{TA.ACT}")
    NSPEC = opts.get("nspec", 4)
    gemv(g, 16, 14, 8, 12, 3, NSPEC)
    for i in range(4): A(f"v_bfi_b32 v{8+i}, v36, s{TB+i}, v{8+i}")
    A(f"s_mov_b32 exec_lo, 0x{((1 << 2*AREP) - 1) * 0x10001:08x}"); A("s_mov_b32 exec_hi, exec_lo")
    A("global_store_dwordx4 v13, v[8:11], s[42:43] sc1")
    g.stamp(2)
    go(0)
    A("s_branch L_fin")

    PG = VA + 32
    def pre_gather(offs):
        n = len(offs)
        l = g.uniq("pg"); e = g.uniq("pge")
        A("global_load_dwordx2 v[8:9], v37, s[16:17]")
        A("s_mov_b32 s70, 0")
        g.lab(l)
        for i, o in enumerate(offs):
            if -4096 <= o < 4096: A(f"global_load_dwordx4 {vr(PG+4*i,4)}, v39, s[42:43] offset:{o} sc1")
            else:
                A(f"v_add_u32 v3, {o}, v39")
                A(f"global_load_dwordx4 {vr(PG+4*i,4)}, v3, s[42:43] sc1")
        A("s_waitcnt vmcnt(0)")
        A("s_mov_b64 vcc, 0")
        for i in range(2 * n):
            A(f"v_cmp_ne_u32 s[68:69], s{ST}, v{PG+1+2*i}")
            A("s_or_b64 vcc, vcc, s[68:69]")
        spin_tail(g, l, e, 8)
    adr = [15, 4, 0, 36]
    def ap_addrs():
        for p in range(1, 4): A(f"v_add_u32 v{adr[p]}, {16384*p}, v15")
    def ap_load(i): A(f"global_load_dwordx4 {vr(VA+4*i,4)}, v{adr[i>>1]}, s[42:43] offset:{-4096 if i % 2 == 0 else 0} sc1")

    g.T = TB_
    g.lab("L_r_mod")
    A("global_load_dwordx2 v[14:15], v37, s[34:35]")
    srd(g, 44, 36, 512*6144)
    def mod_tile(first):
        A("s_lshl_b32 s48, s61, 7")
        A("s_lshl_b32 s58, s61, 9")
        A(f"s_add_u32 s58, s58, {WS_MA if first else WS_MOD}")
        dma_tile64(g, 6144, WFL, 0 if first else opts.get("PB", 6))
        if first:
            go(1)
            table()
            tag()
            A("s_waitcnt vmcnt(16)")
            mod_act()
        line_out_addr(13)
        if first:
            A("v_bfe_u32 v3, v1, 1, 3")
            A("v_lshl_add_u32 v13, v3, 13, v13")
        act_addr(g, 14, TB_.ACT, ACT_BS)
        tr64_addr(g)
        A("s_waitcnt vmcnt(0) lgkmcnt(0)")
        g.stamp(1 if first else 4)
        hsync(g, 9, 0 if first else 4)
        gemv_fused(g, 14, 8)
        pack_tagged()
        if not first:
            for x in EX8: A(x)
        A("global_store_dwordx4 v13, v[8:11], s[42:43] sc1")
        A("s_mov_b64 exec, -1")
        g.stamp(3 if first else 5)
        hsync(g, 9)
    def mod_act():
        unpack4(g, 16, 14)
        silu4(g, 16, 20)
        A("v_cvt_pk_bf16_f32 v14, v16, v17")
        A("v_cvt_pk_bf16_f32 v15, v18, v19")
        A(f"ds_write_b64 v12, v[14:15] offset:{TB_.ACT}")
    A("s_cmp_ge_u32 s60, 2"); A("s_cbranch_scc1 L_mod2")
    A("s_lshl1_add_u32 s61, s8, s60")
    mod_tile(True)
    A("s_branch L_mod3")
    g.lab("L_mod2")
    table()
    tag()
    A("s_waitcnt vmcnt(0)")
    mod_act()
    g.lab("L_mod3")
    EF = opts.get("ef", 0)
    def qfirst(bit=2):
        if WDL & bit: wait_cnt(g, f"ds_read_b32 v8, v38 offset:{L_ML+4}", 8, 1, 8)
        else: wait_cnt(g, f"ds_read_b32 v8, v38 offset:{L_CNA}", 8, 4 * opts.get("bh", 2), 4)
    wait_cnt(g, f"ds_read_b32 v8, v38 offset:{L_GO}", 8, 4, 4)
    A("s_and_b32 s61, s14, 0xff")
    A("s_cmp_ge_u32 s61, 48"); A("s_cbranch_scc1 L_r_f1")
    qfirst(4)
    A("s_and_b32 s61, s14, 0xff")
    g.lab("L_mod4")
    A("s_cmp_ge_u32 s61, 48"); A("s_cbranch_scc1 L_r_f1")
    mod_tile(False)
    A("s_lshr_b32 s61, s14, 24")
    A("s_or_b32 s14, s14, 0xff000000")
    A("s_branch L_mod4")

    g.lab("L_r_f1")
    A("s_bfe_u32 s61, s14, 0x80008")
    A("s_cmp_ge_u32 s61, 43"); A("s_cbranch_scc1 L_fin")
    A("s_lshl_b32 s48, s61, 6")
    A("s_lshl_b32 s58, s61, 7")
    A(f"s_add_u32 s58, s58, {WS_FP}")
    A("s_cmp_lt_u32 s5, 2")
    A("s_cselect_b32 s44, s28, s30")
    A("s_cselect_b32 s45, s29, s31")
    A(f"s_mov_b32 s46, {512*2752}")
    for h in range(2):
        A("s_and_b32 s54, s61, 1" if h == 0 else "s_andn2_b32 s54, 1, s61")
        A("v_lshrrev_b32 v2, 2, v1")
        A("v_mul_u32_u24 v2, 5504, v2")
        A("s_and_b32 s49, s5, 2")
        A("s_or_b32 s49, s49, s54")
        A("v_xor_b32 v3, s49, v1")
        A("v_and_b32 v3, 3, v3")
        A("v_lshl_add_u32 v2, v3, 4, v2")
        A("s_and_b32 s55, s5, 1")
        A(f"s_mul_i32 s49, s55, {256*2752}"); A("s_add_u32 s49, s49, s48")
        A("s_mul_i32 s50, s54, 2752"); A("s_add_u32 s49, s49, s50")
        A("s_lshr_b32 s50, s5, 1"); A("s_lshl_b32 s50, s50, 15")
        A("s_lshl_b32 s54, s54, 14"); A("s_add_u32 s50, s50, s54")
        A("s_lshl_b32 s55, s55, 13"); A("s_add_u32 s50, s50, s55")
        A(f"s_add_u32 s50, s50, {TB_.WT}")
        if opts.get("contig"):
            A("v_lshlrev_b32 v2, 4, v1")
            A("s_and_b32 s49, s5, 1"); A("s_lshl1_add_u32 s49, s61, s49"); A("s_lshl_b32 s49, s49, 14"); A(f"s_add_u32 s49, s49, {8192*h}")
            if h == 0: qfirst()
            dma_loop(g, 8, 1024, WFL, opts.get("P1", 4))
        elif h == 0:
            if EF: dma_loop(g, EF, 32*2752, "", 0)
            qfirst()
            if EF < 8: dma_loop(g, 8 - EF, 32*2752, "", opts.get("P1", 4))
        else: dma_loop(g, 8, 32*2752, WFL, opts.get("P1", 4))
    A("v_lshlrev_b32 v15, 4, v0")
    A(f"v_add_u32 v39, {WS_MOD+3*4096}, v15")
    A(f"s_and_b32 s59, s2, {AREP-1}"); A("s_lshl_b32 s59, s59, 16"); A(f"s_add_u32 s59, s59, {WS_AP+4096}")
    A("v_add_u32 v15, s59, v15")
    A("v_lshrrev_b32 v5, 2, v0")
    A("v_lshlrev_b32 v5, 3, v5")
    A(f"v_add_u32 v5, {TB_.RED}, v5")
    A("v_lshlrev_b32 v7, 3, v1")
    A(f"v_add_u32 v7, {TB_.RED}, v7")
    A("v_and_b32 v14, 7, v1")
    A(f"v_mul_u32_u24 v14, {ACT_BS}, v14")
    A("v_lshrrev_b32 v3, 4, v1")
    A("v_lshl_add_u32 v14, v3, 4, v14")
    A("v_bfe_u32 v6, v1, 2, 2")
    A("v_lshl_add_u32 v6, v3, 3, v6")
    A(f"v_mul_u32_u24 v6, {W2S}, v6")
    A("v_and_b32 v8, 3, v1")
    A("v_lshl_add_u32 v6, v8, 3, v6")
    A("s_lshl_b32 s49, s5, 8"); A(f"s_add_u32 s49, s49, {TB_.WT}")
    A("v_add_u32 v6, s49, v6")
    A("v_lshlrev_b32 v10, 3, v0")
    A(f"v_add_u32 v10, {L_HZ}, v10")
    A("v_mov_b32 v8, 0"); A("v_mov_b32 v9, 0")
    A("ds_write_b64 v10, v[8:9]")
    def f1_addrs():
        A("v_and_b32 v39, 1, v1")
        A("v_lshlrev_b32 v39, 6, v39")
        A(f"v_add_u32 v39, {L_HH}, v39")
        A("v_lshrrev_b32 v3, 4, v1")
        A("v_lshl_add_u32 v37, v3, 4, v39")
        A("v_bfe_u32 v3, v1, 1, 3")
        A("v_lshlrev_b32 v3, 7, v3")
        A("v_sub_u32 v37, v37, v3")
        A("v_bfe_u32 v3, v1, 4, 1")
        A("v_lshl_add_u32 v39, v3, 3, v39")
        A("v_lshrrev_b32 v3, 5, v1")
        A("v_lshl_add_u32 v39, v3, 2, v39")
        A("s_lshl_b32 s49, s5, 4")
        A("v_add_u32 v39, s49, v39")
    line_out_addr(13, 6, 17)
    A("v_bfe_u32 v3, v1, 1, 3")
    A("v_lshl_add_u32 v13, v3, 14, v13")
    A("v_lshrrev_b32 v2, 3, v1")
    A("v_lshlrev_b32 v2, 6, v2")
    A("v_bfe_u32 v3, v1, 2, 1")
    A("v_lshl_add_u32 v2, v3, 14, v2")
    A("v_and_b32 v8, 2, v1")
    A("v_or_b32 v3, v3, v8")
    A("v_xor_b32 v3, s5, v3")
    A("v_lshl_add_u32 v2, v3, 4, v2")
    A("v_lshl_add_u32 v2, v8, 14, v2")
    A("v_and_b32 v3, 1, v1")
    A("v_lshl_add_u32 v2, v3, 3, v2")
    A(f"v_add_u32 v2, {TB_.WT}, v2")
    A("s_waitcnt vmcnt(0)")
    hsync(g, 9, 4)
    tr_reads(g, 16, 1024, 512)
    hsync(g, 9)
    srd(g, 44, 32, 1376*1024)
    A("v_lshlrev_b32 v2, 4, v1")
    A("s_lshl2_add_u32 s49, s61, s5"); A("s_lshl_b32 s49, s49, 13")
    A(f"s_mul_i32 s50, s5, {8*W2S}")
    A(f"s_add_u32 s50, s50, {TB_.WT}")
    dma_loop(g, 8, 1024, WFL, opts.get("P2", 4), W2S)
    tag_bytes()
    g.stamp(6)
    if opts.get("notail"): A("s_branch L_fin")
    ap_addrs()
    pre_gather([-4096, 0, 4096])
    f1_addrs()
    unpack4(g, 16, 8)
    unpack4(g, 20, PG, 2)
    unpack4(g, 28, PG+8, 2)
    for i in range(4): A(f"v_add_f32 v{28+i}, 1.0, v{28+i}")
    A("v_cvt_pk_bf16_f32 v8, v28, v29"); A("v_cvt_pk_bf16_f32 v9, v30, v31")
    A(f"v_mov_b32 v{PG+5}, v{PG+6}")
    A(f"ds_write_b64 v12, v[8:9] offset:{TB_.ACT+2*ACT_BS}")
    A(f"ds_write_b64 v12, {vr(PG+4,2)} offset:{TB_.ACT+4*ACT_BS}")
    for i in range(4): rnd(g, 28+i)
    for i in range(4): A(f"v_mul_f32 v{24+i}, v{20+i}, v{28+i}")
    for i in range(4): A(f"v_mul_f32 v{28+i}, v{16+i}, v{28+i}")
    A("s_waitcnt lgkmcnt(0)")
    A("s_waitcnt vmcnt(0)")
    EARLY = opts.get("aearly", 0)
    wait_cnt(g, f"ds_read_b32 v8, v38 offset:{L_CNA if EARLY else L_GO}", 8, opts.get("acn", 16) if EARLY else 8, 2)
    if opts.get("adel", 0): A(f"s_sleep {opts['adel']}")
    g.stamp(9)
    S = VA + 32
    A("s_mov_b32 s70, 0")
    A("s_movk_i32 s71, 0xff")
    A("s_mov_b32 s63, s71")
    if EARLY: A("s_bitset0_b32 s63, s8")
    A("s_branch L_f1_l")
    g.lab("L_f1_p")
    if opts.get("agap", 0): A(f"s_sleep {opts['agap']}")
    A("s_add_u32 s70, s70, 1")
    A(f"s_cmp_ge_u32 s70, {SPIN_MAX}")
    A("s_cbranch_scc1 L_f1_ok")
    A("s_mov_b32 s63, s71")
    g.lab("L_f1_l")
    for i in range(8):
        l = g.uniq("fl")
        A(f"s_bitcmp1_b32 s63, {i}"); A(f"s_cbranch_scc0 {l}")
        ap_load(i)
        g.lab(l)
    A("s_waitcnt vmcnt(0)")
    for i in range(8):
        l = g.uniq("fc")
        A(f"s_bitcmp1_b32 s63, {i}"); A(f"s_cbranch_scc0 {l}")
        B_ = VA + 4 * i
        for k in range(4): A(f"v_xor_b32 v{B_+k}, s{TB+k}, v{B_+k}")
        A(f"v_or3_b32 v8, v{B_}, v{B_+1}, v{B_+2}")
        A(f"v_or_b32 v8, v8, v{B_+3}")
        A("v_cmp_ne_u32_sdwa vcc, v8, v38 src0_sel:BYTE_0 src1_sel:DWORD")
        A("s_cmp_lg_u64 vcc, 0"); A(f"s_cbranch_scc1 {l}")
        A(f"s_bitset0_b32 s71, {i}")
        g.lab(l)
    A("s_cmp_lg_u32 s71, 0")
    A("s_cbranch_scc1 L_f1_p")
    g.lab("L_f1_ok")
    sum8p(VA, S)
    g.stamp(7)
    for h in range(2): A(f"v_pk_fma_f32 {vr(8+2*h,2)}, {vr(S+2*h,2)}, {vr(24+2*h,2)}, {vr(28+2*h,2)}")
    A("v_cvt_pk_bf16_f32 v8, v8, v9")
    A("v_cvt_pk_bf16_f32 v9, v10, v11")
    A(f"ds_write_b64 v12, v[8:9] offset:{TB_.ACT}")
    for h in range(2): A(f"v_pk_fma_f32 {vr(16+2*h,2)}, {vr(S+2*h,2)}, {vr(20+2*h,2)}, {vr(16+2*h,2)}")
    x = 16
    dpp = lambda r, mod: f"v_add_f32_dpp v{r}, v{r}, v{r} {mod} row_mask:0xf bank_mask:0xf"
    for t in (f"v_add_f32 v24, v{x}, v{x+1}", f"v_mul_f32 v25, v{x}, v{x}", f"v_add_f32 v26, v{x+2}, v{x+3}", f"v_mul_f32 v27, v{x+2}, v{x+2}",
              f"v_fmac_f32 v25, v{x+1}, v{x+1}", f"v_fmac_f32 v27, v{x+3}, v{x+3}", "v_pk_add_f32 v[24:25], v[24:25], v[26:27]", "s_nop 1",
              dpp(24, "quad_perm:[1,0,3,2]"), dpp(25, "quad_perm:[1,0,3,2]"), "s_nop 0",
              dpp(24, "quad_perm:[2,3,0,1]"), dpp(25, "quad_perm:[2,3,0,1]")): A(t)
    A("ds_write_b64 v5, v[24:25]")
    hsync(g, 10, 0, [f"ds_read_b128 {vr(S+4*m,4)}, v14 offset:{TB_.ACT+64*m}" for m in range(min(NSPEC, 4))])
    DF = 32
    q = []
    def rd(m): A(f"ds_read_b128 {vr(S+4*(m%8),4)}, v14 offset:{TB_.ACT+64*m}"); q.append(("r", m))
    def need(op):
        i = q.index(op); A(f"s_waitcnt lgkmcnt({len(q)-1-i})"); del q[:i+1]
    def w2rd(c):
        for h in range(2): A(f"ds_read_b64_tr_b16 {vr(VW+4*c+2*h,2)}, v6 offset:{32*c+4*h*W2S}"); q.append(("w", c, h))
    for m in range(4):
        if m < NSPEC: q.append(("r", m))
        else: rd(m)
    A("ds_read_b64 v[20:21], v7"); q.append(("s",))
    for m in range(4, 8): rd(m)
    fill = {4: [dpp(20, "quad_perm:[2,3,0,1]"), dpp(21, "quad_perm:[2,3,0,1]")],
            5: [dpp(20, "row_ror:4"), dpp(21, "row_ror:4")],
            6: [dpp(20, "row_ror:8"), dpp(21, "row_ror:8")],
            7: ["v_mov_b32 v22, v20", "v_mov_b32 v23, v21"],
            8: ["v_permlane16_swap_b32 v22, v20", "v_permlane16_swap_b32 v23, v21"],
            9: ["v_pk_add_f32 v[20:21], v[20:21], v[22:23]", "v_mov_b32 v22, v20", "v_mov_b32 v23, v21"],
            10: ["v_permlane32_swap_b32 v22, v20", "v_permlane32_swap_b32 v23, v21"],
            11: ["v_pk_add_f32 v[20:21], v[20:21], v[22:23]", f"v_mul_f32 v20, 0x{f2u(-1/512):08x}, v20"],
            12: [f"v_mul_f32 v21, 0x{f2u(1/512):08x}, v21", "v_fma_f32 v21, -v20, v20, v21"],
            13: ["v_max_f32 v21, 0, v21", f"v_add_f32 v21, 0x{EPS:08x}, v21"],
            14: ["v_rsq_f32 v21, v21"]}
    for m in range(16):
        if ("r", m) in q: need(("r", m))
        else: A("s_nop 0")
        c = "0" if m == 0 else vr(DF, 4)
        A(f"v_mfma_f32_16x16x32_bf16 {vr(DF,4)}, {vr(VW+4*m,4)}, {vr(S+4*(m%8),4)}, {c}")
        if 1 <= m <= 8: rd(7 + m)
        for t in fill.get(m, []): A(t)
    for c in range(4): w2rd(c)
    for i in range(4): A(f"v_fmac_f32_dpp v{DF+i}, v{DF+i}, v20 row_shl:2 row_mask:0xf bank_mask:0x1")
    for i in range(4): A(f"v_mul_f32 v{8+i}, v{DF+i}, v21")
    for i in range(4): A(f"v_add_f32_dpp v{8+i}, v{DF+i}, v{8+i} row_shl:4 row_mask:0xf bank_mask:0xf")
    A("s_waitcnt lgkmcnt(4)")
    for c in range(4, 8): w2rd(c)
    A("v_permlane32_swap_b32 v8, v10")
    A("v_permlane32_swap_b32 v9, v11")
    for i in range(2): A(f"v_mul_f32 v{20+i}, 0x{LOG2E ^ 0x80000000:08x}, v{8+i}")
    for i in range(2): A(f"v_exp_f32 v{20+i}, v{20+i}")
    for i in range(2): A(f"v_mul_f32 v{8+i}, v{8+i}, v{10+i}")
    for i in range(2): A(f"v_add_f32 v{20+i}, 1.0, v{20+i}")
    for i in range(2): A(f"v_rcp_f32 v{20+i}, v{20+i}")
    for x in EX8: A(x)
    for i in range(2): A(f"v_mul_f32 v{8+i}, v{8+i}, v{20+i}")
    A("v_cvt_pk_bf16_f32 v8, v8, v9")
    A("ds_write_b32 v39, v8")
    A("s_mov_b64 exec, -1")
    rds = [f"ds_read_b128 {vr(S+4*c,4)}, v37 offset:{128*c}" for c in range(8)]
    A("s_waitcnt lgkmcnt(4)")
    hsync(g, 10, 0, rds[:NSPEC])
    for r in rds[NSPEC:]: A(r)
    A("v_mov_b32 v3, 0xff")
    for c in range(8):
        A(f"s_waitcnt lgkmcnt({7-c})")
        A(f"v_mfma_f32_16x16x32_bf16 v[8:11], {vr(VW+4*c,4)}, {vr(S+4*c,4)}, {'0' if c == 0 else 'v[8:11]'}")
    A("s_nop 7")
    for i in range(4): A(f"v_bfi_b32 v{8+i}, v3, s{TB+i}, v{8+i}")
    A("global_store_dwordx4 v13, v[8:11], s[42:43] sc1")
    g.stamp(2)
    A("s_branch L_fin")

    g.lab("L_r_f2")
    if opts.get("notail"): A("s_branch L_fin")
    A("v_bfe_u32 v12, v1, 2, 1")
    A("v_and_b32 v14, 3, v1")
    A("s_lshl_b32 s49, s61, 5")
    A("v_lshl_add_u32 v3, v14, 3, s49")
    A("v_lshl_add_u32 v37, v12, 10, v3")
    A("v_and_b32 v15, 7, v1")
    A("s_lshl_b32 s49, s61, 7")
    A("v_lshl_add_u32 v15, v15, 4, s49")
    A(f"v_add_u32 v39, {WS_MOD+3*4096}, v15")
    A("v_bfe_u32 v3, v1, 3, 1")
    A("v_lshl_add_u32 v15, v3, 12, v15")
    A("v_lshrrev_b32 v3, 4, v1")
    A("v_lshl_add_u32 v15, v3, 14, v15")
    A(f"s_and_b32 s59, s2, {AREP-1}"); A("s_lshl_b32 s59, s59, 16"); A(f"s_add_u32 s59, s59, {WS_AP}")
    A("v_add_u32 v15, s59, v15")
    A("s_lshl_b32 s49, s61, 14"); A(f"s_add_u32 s49, s49, {WS_FP+2048}")
    A("v_lshl_add_u32 v36, v1, 4, s49")

    A("global_load_dword v11, v37, s[38:39]")
    if PT & 4:
        A("s_lshl_b32 s49, s61, 14"); A(f"s_add_u32 s49, s49, {WS_FP}")
        A("v_min_u32 v10, 42, v1"); A("v_lshl_add_u32 v10, v10, 7, s49")
        A("global_load_dword v11, v10, s[42:43] sc1")
        A("s_lshl_b32 s49, s61, 7"); A(f"s_add_u32 s49, s49, {WS_DN}")
        A("v_mov_b32 v10, s49")
        A("global_load_dword v11, v10, s[42:43] sc1")
    pre_gather([-4096, 8192])
    unpack4(g, 16, 8)
    unpack4(g, 20, PG, 2)
    unpack4(g, 24, PG+4, 2)
    wait_cnt(g, f"ds_read_b32 v8, v38 offset:{L_GO}", 8, 8, 2)
    if opts.get("rdel", 0): A(f"s_sleep {opts['rdel']}")
    g.stamp(9)
    def src_sum(r):
        A("s_nop 1")
        for i in range(4): A(f"v_add_f32_dpp v{r+i}, v{r+i}, v{r+i} row_ror:8 row_mask:0xf bank_mask:0xf")
        for sw in ("v_permlane16_swap_b32", "v_permlane32_swap_b32"):
            for i in range(4): A(f"v_mov_b32 v{r+4+i}, v{r+i}")
            for i in range(4): A(f"{sw} v{r+4+i}, v{r+i}")
            for i in range(4): A(f"v_add_f32 v{r+i}, v{r+i}, v{r+4+i}")
    A("s_mov_b32 s70, 0")
    g.lab("L_f2_a")
    A(f"global_load_dwordx4 {vr(S,4)}, v15, s[42:43] sc1")
    A("s_waitcnt vmcnt(0)")
    for k in range(4): A(f"v_xor_b32 v{S+k}, s{TB+k}, v{S+k}")
    A(f"v_or3_b32 v3, v{S}, v{S+1}, v{S+2}")
    A(f"v_or_b32 v3, v3, v{S+3}")
    A("v_lshlrev_b32 v3, 24, v3")
    A("v_cmp_ne_u32 vcc, 0, v3")
    spin_tail(g, "L_f2_a", "L_f2_ad", 4)
    A("s_cmp_lg_u32 s61, 0")
    A("s_cbranch_scc1 L_f2_e")
    A(f"v_mov_b32 v10, s{ST}")
    A("s_mov_b64 exec, 1")
    A(f"global_store_dword v38, v10, s[42:43] offset:{WS_E} sc1")
    A("s_mov_b64 exec, -1")
    g.lab("L_f2_e")
    src_sum(S)
    x1_from(S)
    if opts.get("fdel", 0): A(f"s_sleep {opts['fdel']}")
    for i in range(4): A(f"v_mov_b32 v{VA+32+20+i}, s{TB+i}")
    def f2_fin():
        for p in range(3):
            for h in range(2): A(f"v_pk_add_f32 {vr(VA+8*p+2*h,2)}, {vr(VA+8*p+2*h,2)}, {vr(VA+8*p+4+2*h,2)}")
        for p in (1, 2):
            for h in range(2): A(f"v_pk_add_f32 {vr(VA+2*h,2)}, {vr(VA+2*h,2)}, {vr(VA+8*p+2*h,2)}")
    gather(6, lambda i, r: A(f"global_load_dwordx4 {vr(r,4)}, v36, s[42:43] offset:{1024*i-2048} sc1"), VA+32, VA, "L_f2_p",
           opts.get("fpipe", 1), opts.get("fgap", 0), f2_fin, 20, [-1]*5 + ["0xffffff"])
    g.stamp(7)
    src_sum(VA)
    for i in range(4): rnd(g, VA+i)
    for i in range(4): A(f"v_mul_f32 v{VA+i}, v{VA+i}, v{24+i}")
    for i in range(4): rnd(g, VA+i)
    for i in range(4): A(f"v_add_f32 v{8+i}, v{VA+i}, v{16+i}")
    A("v_cvt_pk_bf16_f32 v8, v8, v9")
    A("v_cvt_pk_bf16_f32 v9, v10, v11")
    A("s_mov_b64 exec, 0xff")
    A("global_store_dwordx2 v37, v[8:9], s[38:39]" + ("" if opts.get("noosc") else " sc1"))
    A("s_mov_b64 exec, 1")
    A(f"v_mov_b32 v10, s{ST}")
    A("s_lshl_b32 s49, s61, 7"); A(f"s_add_u32 s49, s49, {WS_DN}")
    A("v_mov_b32 v11, s49")
    if not opts.get("nodn"): A("global_store_dword v11, v10, s[42:43] sc1")
    g.stamp(2)

    g.lab("L_fin")
    if opts.get("stamps"):
        A("s_waitcnt vmcnt(0)")
        g.stamp(8)
        dump_all(g, [SLOC])
    g.lab("L_end")
    A("s_endpgm")
    g.L.append(".p2align 7")
    g.lab("L_table")
    J = jobs()
    for j in range(8):
        A(".long " + ", ".join(f"0x{J[x, j][0] | J[x, j][1] << 8 | J[x, j][2] << 16 | J[x, j][3] << 24:08x}" for x in range(8)))
    g.lab("L_touch")
    odd = [1, 3, 5, 7]; evn = [0, 2, 4, 6]
    ch = [(0, t, c) for c in odd + evn for t in (0, 1)] + [(1, t, c) for c in evn + odd for t in (0, 1)] + [(1, 3, c) for c in odd + evn]
    ch += [(1, t, c) for c in odd for t in (2, 4, 5, 6, 7)] + [(1, t, c) for c in evn for t in (2, 4, 5, 6, 7)]
    ch = ch[:opts.get("nch", 60)]
    slots = [idx for idx in range(32) if idx & 3 != 3]
    TT = {sl: 0x80808080 for sl in range(32)}
    for n, (mx, t, c) in enumerate(ch):
        k, sl = divmod(n, len(slots))
        if k < NT: TT[slots[sl]] = TT[slots[sl]] & ~(0xff << 8*k) | (c | t << 3 | mx << 6) << 8*k
    for i in range(0, 32, 8):
        A(".long " + ", ".join(f"0x{TT[i+a]:08x}" for a in range(8)))
    g.L.append(f'''.section .rodata,"a"
.p2align 6
.amdhsa_kernel {KNAME}
  .amdhsa_next_free_vgpr 168
  .amdhsa_next_free_sgpr 102
  .amdhsa_accum_offset 168
  .amdhsa_group_segment_fixed_size 0
  .amdhsa_kernarg_size 112
  .amdhsa_user_sgpr_count 2
  .amdhsa_user_sgpr_kernarg_segment_ptr 1
  .amdhsa_system_sgpr_workgroup_id_x 1
.end_amdhsa_kernel''')
    opts["_jobs"] = J
    return "\n".join(g.L) + "\n"

if __name__ == "__main__":
    import os
    here = os.path.dirname(os.path.abspath(__file__))
    opts = {"ref": os.path.join(here, "..", KNAME[:-7] + ".s.ref")}
    out = sys.argv[1]
    for kv in sys.argv[2:]:
        k, v = kv.split("=")
        try: v = int(v)
        except ValueError:
            try: v = float(v)
            except ValueError: pass
        opts[k] = v
    open(out, "w").write(gen(opts))
```

```python
import sys, struct

KNAME = "adaLN_cond__sliding_block_cached__glu_gated_swiglu__decode_kernel"

def f2u(x): return struct.unpack("<I", struct.pack("<f", x))[0]
LOG2E = f2u(1.4426950408889634)
SCALE = f2u(128 ** -0.5)
EPS = f2u(1e-5)
ZERO_GAP = 92.95

WS_E   = 0x00000
WS_HDR = 0x00400
WS_DN  = 0x07000
WS_MOD = 0x01000
WS_Q   = 0x08000
WS_S1  = 0x10000
WS_S2  = 0x18000
WS_OP  = 0x20000
WS_AP  = 0x200000
WS_FP  = 0x180000
WS_OQ  = 0x80000
WS_MA  = 0xe0000
R2     = WS_OQ - WS_OP
WS_STAMP = 0x100000
ACT_BS = 1056
NS_   = 11
L_QV  = 0
L_ML  = L_QV + 256
L_GO  = L_ML + 8
L_SCN = L_ML + 16
L_MX  = L_ML + 20
L_ECN = L_ML + 24
L_E0  = L_ML + 28
L_RM  = L_ML + 32
L_SN  = L_ML + 48
L_TK  = L_ML + 52
L_CNA = L_ML + 56
L_CNB = L_ML + 60
L_E1  = L_ML + 64
L_S8  = L_ML + 128
L_S4  = L_S8 + 64
L_ST  = L_S4 + 64
L_OP  = L_ST + 512
L_OP1 = L_OP + 512 * NS_
L_VX  = L_OP1 + 512 * NS_
class Team: pass
TA, TB_ = Team(), Team()
TA.CNT, TB_.CNT = L_CNA, L_CNB
TA.ACT = L_OP
TA.RED = TA.ACT + 2 * ACT_BS
TB_.ACT = TA.RED + 64
TB_.RED = TB_.ACT + 6 * ACT_BS
L_HZ  = TB_.RED + 512
L_HH  = L_HZ + 7 * 128
TA.WT = (L_HZ + 2048 + 1023) // 1024 * 1024
TB_.WT = TA.WT + 65536
W2S   = 1024 + 32
LDS_BYTES = TB_.WT + 65536
assert LDS_BYTES <= 163840 and L_VX + 2048 * NS_ <= LDS_BYTES and L_ST + 128 <= L_S4 + 512
assert all(x % 16 == 0 for x in (L_S8, L_ST, L_OP, L_VX, TA.ACT, TA.RED, TB_.ACT, TB_.RED, L_HZ, L_E1))

def jobs():
    J = {}; nf = 0
    for x in range(8):
        six = x in (1, 3, 7)
        mb = sorted(range(16 + 4 * x, 20 + 4 * x), key=lambda t: t % 8 != 3)
        own = {0: mb[0:2], 1: mb[2:4]} if six else {0: mb[0:1], 1: mb[1:2], 2: mb[2:4]}
        for j in range(8):
            m = own.get(j, []) + [255, 255]
            f = 255
            if j >= (2 if six else 3): f = nf; nf += 1
            J[x, j] = (m[0], f, 4 * x + (j & 3) if j in (0, 1, 2, 7) else 255, m[1])
    assert nf == 43 and sorted(v[2] for v in J.values())[:32] == list(range(32))
    return J
SPIN_MAX = 1 << 18
ST, SLOC, SXCC = 74, 75, 76

NOTES = {
    "L_stream": "streaming waves: K (1 KB per load, bounded number in flight), then the V rows of the keys on the row list",
    "L_work": "background work of a streaming wave between two K loads: scores of the rows that have landed, first row list",
    "L_ks": "one K step: background work, then wait until few enough loads are in flight",
    "L_vs": "one V step",
    "L_x1": "second half of the scores, max / sum of this wave, the rows near the top first, more rows for the list",
    "L_snap": "the rows near the top give the preliminary partial output",
    "L_hand": "list used up: with the true row max and sum, add every remaining key whose weight is not exactly zero",
    "L_epi": "all rows consumed: reduce over the lanes, leave the final partial output in LDS",
    "L_pub": "wave 0 of a streaming workgroup: LDS set-up, exchange of the softmax statistics, preliminary output",
    "L_serv": "service workgroup",
    "L_touch": "per streaming workgroup: pieces of the first weights to pull into L2",
    "L_chk": "third streaming workgroup: final partial output; the head's final output against the preliminary one, bit by bit",
    "L_slow": "fallback: everything behind the attention again, from the final outputs, by this wave alone",
    "L_team": "service workgroup: two teams of four waves, MFMA mat-vecs on weight tiles staged by LDS-DMA",
    "L_r_q": "team A: LayerNorm + modulation + 64 columns of h @ wq",
    "L_r_wo": "team A: 512 x 64 tile of wo",
    "L_r_mod": "team B: 64 columns of silu(c) @ w_mod (shift / scale of the first block first)",
    "L_r_f1": "team B: 32 columns of w1 and w3, SwiGLU, their 32 rows of w2",
    "L_r_f2": "service workgroup, wave 1: 16 output columns: residuals, sum of the down-projection partials; advances the epoch word",
    "L_table": "per service workgroup: modulation tile | gate/up tile << 8 | output tile << 16",
}
class G:
    def __init__(s, opts):
        s.L = []; s.o = opts; s.n = 0; s.T = None
    def A(s, t): s.L.append("  " + t)
    def lab(s, t):
        if t in NOTES: s.L.append("; ---- " + NOTES[t])
        s.L.append(t + ":")
    def C(s, t): s.L.append("; ---- " + t)
    def uniq(s, p): s.n += 1; return f"L_{p}_{s.n}"
    def stamp(s, idx, lvl=1):
        m = s.o.get("stamps", 0)
        if m == 3 and lvl != 3 and idx not in (6,): return
        if m and (m == lvl or (idx in (0, 6, 8) and lvl == 1)):
            s.A(f"s_memrealtime s[{80+2*idx}:{81+2*idx}]")

def vr(a, n): return f"v[{a}:{a+n-1}]"
def rnd(g, d, s=None): g.A(f"v_cvt_pk_bf16_f32 v{d}, 0, v{s if s is not None else d}")

def spin_tail(g, l, e, sleep, mult=1):
    A = g.A
    A("s_cmp_eq_u64 vcc, 0")
    A(f"s_cbranch_scc1 {e}")
    if sleep: A(f"s_sleep {sleep}")
    A("s_add_u32 s70, s70, 1")
    A(f"s_cmp_lt_u32 s70, {SPIN_MAX*mult}")
    A(f"s_cbranch_scc1 {l}")
    g.lab(e)

def chk_sentinel(g, regs, tmp):
    A = g.A
    rs = list(regs)
    if len(rs) == 1:
        A(f"v_cmp_eq_u32 vcc, -1, v{rs[0]}")
        return
    if len(rs) == 2:
        A(f"v_max_u32 v{tmp}, v{rs[0]}, v{rs[1]}"); rs = []
    else:
        A(f"v_max3_u32 v{tmp}, v{rs[0]}, v{rs[1]}, v{rs[2]}"); rs = rs[3:]
    while len(rs) >= 2:
        A(f"v_max3_u32 v{tmp}, v{tmp}, v{rs[0]}, v{rs[1]}"); rs = rs[2:]
    if rs: A(f"v_max_u32 v{tmp}, v{tmp}, v{rs[0]}")
    A(f"v_cmp_eq_u32 vcc, -1, v{tmp}")

def poll_lds(g, loads, regs, tmp, sleep):
    A = g.A
    l = g.uniq("pl"); e = g.uniq("pld")
    A("s_mov_b32 s70, 0")
    g.lab(l)
    for x in loads: A(x)
    A("s_waitcnt lgkmcnt(0)")
    chk_sentinel(g, regs, tmp)
    spin_tail(g, l, e, sleep, 4)

def wait_cnt(g, load, reg, target, sleep, mask=None):
    A = g.A
    l = g.uniq("sn"); e = g.uniq("snd")
    A("s_mov_b32 s70, 0")
    g.lab(l)
    A(load)
    A("s_waitcnt lgkmcnt(0)")
    if mask: A(f"v_and_b32 v{reg}, 0x{mask:x}, v{reg}")
    A(f"v_cmp_gt_u32 vcc, 0x{target:x}, v{reg}")
    spin_tail(g, l, e, sleep, 8)

def pub_local(g, ins):
    A = g.A
    l = g.uniq("pf"); e = g.uniq("pe")
    A(f"s_cmp_eq_u32 s{SLOC}, 1")
    A(f"s_cbranch_scc0 {l}")
    A(ins)
    A(f"s_branch {e}")
    g.lab(l)
    A(ins + " sc1")
    g.lab(e)

def hs_signal(g, vt2):
    A = g.A
    A(f"v_mov_b32 v{vt2}, 1")
    A("s_mov_b64 exec, 1")
    A(f"ds_add_u32 v38, v{vt2} offset:{g.T.CNT}")
    A("s_mov_b64 exec, -1")
def hs_wait(g, target, vt2, sleep=1):
    wait_cnt(g, f"ds_read_b32 v{vt2}, v38 offset:{g.T.CNT}", vt2, target, sleep)

STG = 77
def hsync(g, vt, sleep=0, reads=()):
    A = g.A
    l = g.uniq("hy"); e = g.uniq("hyd")
    A(f"s_add_u32 s{STG}, s{STG}, 4")
    hs_signal(g, vt)
    A("s_mov_b32 s70, 0")
    g.lab(l)
    A(f"ds_read_b32 v{vt}, v38 offset:{g.T.CNT}")
    for r in reads: A(r)
    A(f"s_waitcnt lgkmcnt({len(reads)})")
    A(f"v_cmp_gt_u32 vcc, s{STG}, v{vt}")
    A("s_cmp_eq_u64 vcc, 0")
    A(f"s_cbranch_scc1 {e}")
    if reads: A("s_waitcnt lgkmcnt(0)")
    if sleep: A(f"s_sleep {sleep}")
    A("s_add_u32 s70, s70, 1")
    A(f"s_cmp_lt_u32 s70, {SPIN_MAX*8}")
    A(f"s_cbranch_scc1 {l}")
    g.lab(e)

OPA = 2 * NS_ + 12
def op_prep(g, R, zero, off, scales=True):
    A = g.A
    SCB = R + 2 * NS_; AD = R + OPA
    if scales:
        for i in range(3): A(f"ds_read_b128 {vr(SCB+4*i,4)}, v{zero} offset:{L_S8+16*i}")
    A(f"v_lshlrev_b32 v{AD+3}, 3, v1")
    A("s_lshl2_add_u32 s68, s6, s7")
    A("s_lshl_b32 s68, s68, 9"); A(f"s_add_u32 s68, s68, {WS_OP+off}")
    A(f"v_add_u32 v{AD}, s68, v{AD+3}")
    A(f"v_and_b32 v{AD+1}, 1, v1")
    A(f"v_lshlrev_b32 v{AD+1}, 4, v{AD+1}")
    A(f"v_lshrrev_b32 v{AD+1}, v{AD+1}, s{ST}")
    A(f"v_lshrrev_b32 v{AD+2}, 8, v{AD+1}")
def op_reads(lds, R): return [f"ds_read_b64 {vr(R+2*i,2)}, v{R+OPA+3} offset:{lds+512*i}" for i in range(NS_)]
def op_sum(g, R, local):
    A = g.A
    SCB = R + 2 * NS_; AD = R + OPA
    A("s_movk_i32 s69, 0xff")
    def sel(i): return f"op_sel:[0,{i&1},0] op_sel_hi:[1,{i&1},1]"
    for i in range(NS_):
        A(f"s_waitcnt lgkmcnt({NS_-1-i})")
        sp = vr(SCB + (i & ~1), 2); acc = vr(R + 2*(i & 1), 2)
        if i < 2: A(f"v_pk_mul_f32 {acc}, {vr(R+2*i,2)}, {sp} op_sel:[0,{i&1}] op_sel_hi:[1,{i&1}]")
        else: A(f"v_pk_fma_f32 {acc}, {vr(R+2*i,2)}, {sp}, {acc} {sel(i)}")
    A(f"v_pk_add_f32 {vr(R,2)}, {vr(R,2)}, {vr(R+2,2)}")
    A(f"v_bfi_b32 v{R}, s69, v{AD+1}, v{R}")
    A(f"v_bfi_b32 v{R+1}, s69, v{AD+2}, v{R+1}")
    if local: pub_local(g, f"global_store_dwordx2 v{AD}, {vr(R,2)}, s[42:43]")
    else: A(f"global_store_dwordx2 v{AD}, {vr(R,2)}, s[42:43] sc1")
def wait_then(g, off, target, reads, pre):
    A = g.A
    wait_cnt(g, f"ds_read_b32 v8, v38 offset:{off}", 8, pre, 1)
    l = g.uniq("wt"); e = g.uniq("wtd")
    A("s_mov_b32 s70, 0")
    g.lab(l)
    A(f"ds_read_b32 v8, v38 offset:{off}")
    for r in reads: A(r)
    A(f"s_waitcnt lgkmcnt({len(reads)})")
    A(f"v_cmp_gt_u32 vcc, 0x{target:x}, v8")
    A("s_cmp_eq_u64 vcc, 0")
    A(f"s_cbranch_scc1 {e}")
    A("s_waitcnt lgkmcnt(0)")
    A("s_add_u32 s70, s70, 1")
    A(f"s_cmp_lt_u32 s70, {SPIN_MAX*8}")
    A(f"s_cbranch_scc1 {l}")
    g.lab(e)

def dma_loop(g, n, step, flags, pace=0, lstep=1024):
    A = g.A
    l = g.uniq("dma"); e = g.uniq("dmae")
    if isinstance(n, int):
        A(f"s_add_u32 s51, s50, {n*lstep}")
    else:
        A(f"s_add_u32 s51, s50, {n}")
        A("s_cmp_lt_u32 s50, s51")
        A(f"s_cbranch_scc0 {e}")
    g.lab(l)
    A("s_mov_b32 m0, s50")
    A(f"s_add_u32 s50, s50, {lstep}")
    if not (g.o.get("nodma") and pace): A(f"buffer_load_dwordx4 v2, s[44:47], s49 offen {flags} lds")
    A(f"s_add_u32 s49, s49, {step}")
    if pace: A(f"s_waitcnt vmcnt({pace-1})")
    A("s_cmp_lt_u32 s50, s51")
    A(f"s_cbranch_scc1 {l}")
    g.lab(e)

VW, VA = 40, 104

def srd(g, d, base, nbytes):
    A = g.A
    A(f"s_mov_b32 s{d}, s{base}")
    A(f"s_mov_b32 s{d+1}, s{base+1}")
    A(f"s_mov_b32 s{d+2}, {nbytes}")
    A(f"s_mov_b32 s{d+3}, 0x20000")

def dma_tile64(g, stride, flags, pace=0):
    A = g.A
    if g.o.get("contig") and pace:
        if stride == 1024: A("s_lshl3_add_u32 s48, s8, s60"); A("s_lshl_b32 s48, s48, 16")
        else: A("s_lshl_b32 s48, s61, 16")
        stride = 128
    A("v_lshrrev_b32 v2, 3, v1")
    A("v_and_b32 v3, 6, v2")
    A("v_xor_b32 v3, v3, v1")
    A(f"v_mul_u32_u24 v2, {stride}, v2")
    A("v_and_b32 v3, 7, v3")
    A("v_lshl_add_u32 v2, v3, 4, v2")
    A(f"s_mul_i32 s49, s5, {128*stride}")
    A("s_lshl_b32 s50, s5, 14")
    A("s_add_u32 s49, s49, s48")
    A(f"s_add_u32 s50, s50, {g.T.WT}")
    dma_loop(g, 16, 8*stride, flags, pace)

def tr64_addr(g):
    A = g.A
    A("v_lshrrev_b32 v2, 2, v1")
    A("v_bfe_u32 v3, v1, 1, 1")
    A("s_lshl_b32 s49, s5, 1")
    A("v_or_b32 v3, s49, v3")
    A("v_and_b32 v10, 6, v2")
    A("v_xor_b32 v3, v3, v10")
    A("v_lshlrev_b32 v2, 7, v2")
    A("v_lshl_add_u32 v2, v3, 4, v2")
    A("v_and_b32 v3, 1, v1")
    A("v_lshl_add_u32 v2, v3, 3, v2")
    A(f"v_add_u32 v2, {g.T.WT}, v2")
def tr_reads(g, nk, mstep, hstep):
    A = g.A
    for m in range(nk):
        for h in range(2):
            A(f"ds_read_b64_tr_b16 {vr(VW+4*m+2*h,2)}, v2 offset:{m*mstep+h*hstep}")
        if m >= 5: A("s_waitcnt lgkmcnt(10)")
    A("s_waitcnt lgkmcnt(0)")
def tr_tile64(g):
    tr64_addr(g)
    tr_reads(g, 16, 4096, 2048)
def gemv_fused(g, vaddr, D):
    A = g.A
    def rd(m):
        for h in range(2):
            A(f"ds_read_b64_tr_b16 {vr(VW+4*m+2*h,2)}, v2 offset:{m*4096+h*2048}")
        A(f"ds_read_b128 {vr(VA+4*m,4)}, v{vaddr} offset:{64*m}")
    for m in range(5): rd(m)
    for m in range(16):
        A(f"s_waitcnt lgkmcnt({3*(min(m+5,16)-m-1)})")
        c = "0" if m == 0 else vr(D, 4)
        A(f"v_mfma_f32_16x16x32_bf16 {vr(D,4)}, {vr(VW+4*m,4)}, {vr(VA+4*m,4)}, {c}")
        if m + 5 < 16: rd(m + 5)
    A("s_nop 7")

def batch_reduce2(g, va, vb, ta, tb):
    A = g.A
    A("s_nop 0")
    for m in ("quad_perm:[1,0,3,2]", "quad_perm:[2,3,0,1]", "row_ror:8"):
        A(f"v_add_f32_dpp v{va}, v{va}, v{va} {m} row_mask:0xf bank_mask:0xf")
        A(f"v_add_f32_dpp v{vb}, v{vb}, v{vb} {m} row_mask:0xf bank_mask:0xf")
        A("s_nop 0")
    for sw in ("v_permlane16_swap_b32", "v_permlane32_swap_b32"):
        A(f"v_mov_b32 v{ta}, v{va}")
        A(f"v_mov_b32 v{tb}, v{vb}")
        A("s_nop 0")
        A(f"{sw} v{ta}, v{va}")
        A(f"{sw} v{tb}, v{vb}")
        A(f"v_add_f32 v{va}, v{va}, v{ta}")
        A(f"v_add_f32 v{vb}, v{vb}, v{tb}")

def ln_partial(g, x):
    A = g.A
    A(f"v_add_f32 v8, v{x}, v{x+1}"); A(f"v_mul_f32 v9, v{x}, v{x}")
    A(f"v_add_f32 v10, v{x+2}, v{x+3}"); A(f"v_mul_f32 v11, v{x+2}, v{x+2}")
    A(f"v_fmac_f32 v9, v{x+1}, v{x+1}"); A(f"v_fmac_f32 v11, v{x+3}, v{x+3}")
    A("v_add_f32 v8, v8, v10"); A("v_add_f32 v9, v9, v11")
    batch_reduce2(g, 8, 9, 10, 11)
    A("ds_write_b64 v5, v[8:9]")
def ln_apply(g, x, t):
    A = g.A
    A(f"ds_read_b128 {vr(t,4)}, v6")
    A(f"ds_read_b128 {vr(t+4,4)}, v6 offset:16")
    A("s_waitcnt lgkmcnt(0)")
    A(f"v_pk_add_f32 {vr(t,2)}, {vr(t,2)}, {vr(t+2,2)}")
    A(f"v_pk_add_f32 {vr(t+4,2)}, {vr(t+4,2)}, {vr(t+6,2)}")
    A(f"v_pk_add_f32 {vr(t,2)}, {vr(t,2)}, {vr(t+4,2)}")
    A(f"v_mul_f32 v8, 0x{f2u(1/512):08x}, v{t}")
    A(f"v_mul_f32 v9, 0x{f2u(1/512):08x}, v{t+1}")
    A("v_fma_f32 v9, -v8, v8, v9")
    rnd(g, 8)
    A("v_max_f32 v9, 0, v9")
    rnd(g, 9)
    for i in range(2): A(f"v_sub_f32 v{x+i}, v{x+i}, v8")
    A(f"v_add_f32 v9, 0x{EPS:08x}, v9")
    for i in range(2, 4): A(f"v_sub_f32 v{x+i}, v{x+i}, v8")
    rnd(g, 9)
    rnd(g, x)
    A("v_sqrt_f32 v9, v9")
    rnd(g, x+1)
    rnd(g, 9)
    rnd(g, x+2)
    A("v_rcp_f32 v9, v9")
    rnd(g, x+3)
    for i in range(4): A(f"v_mul_f32 v{x+i}, v{x+i}, v9")
    for i in range(4): rnd(g, x+i)

def act_addr(g, v, base, bstride):
    A = g.A
    A(f"v_and_b32 v{v}, 1, v1")
    A(f"v_mul_u32_u24 v{v}, {bstride}, v{v}")
    A(f"v_lshrrev_b32 v3, 4, v1")
    A(f"v_lshl_add_u32 v{v}, v3, 4, v{v}")
    if base: A(f"v_add_u32 v{v}, {base}, v{v}")

def gemv(g, nk, vaddr, D, ring=16, sync=None, nspec=4):
    A = g.A
    first = min(nk, 12, ring)
    rds = [f"ds_read_b128 {vr(VA+4*m,4)}, v{vaddr} offset:{64*m}" for m in range(first)]
    if sync is not None:
        hsync(g, sync, 0, rds[:nspec]); rds = rds[nspec:]
    for r in rds: A(r)
    issued = first
    for m in range(nk):
        A(f"s_waitcnt lgkmcnt({issued-m-1})")
        c = "0" if m == 0 else vr(D, 4)
        A(f"v_mfma_f32_16x16x32_bf16 {vr(D,4)}, {vr(VW+4*m,4)}, {vr(VA+4*(m%ring),4)}, {c}")
        if issued < nk and (ring >= nk or m >= 1):
            A(f"ds_read_b128 {vr(VA+4*(issued%ring),4)}, v{vaddr} offset:{64*issued}")
            issued += 1
    A("s_nop 7")

def guard(g, r): g.A(f"v_min_u32 v{r}, s72, v{r}")
def unpack2(g, d, s):
    g.A(f"v_lshlrev_b32 v{d}, 16, v{s}")
    g.A(f"v_and_b32 v{d+1}, s73, v{s}")
def unpack4(g, d, s, step=1):
    unpack2(g, d, s); unpack2(g, d+2, s+step)

def silu4(g, x, t):
    A = g.A
    for i in range(4): A(f"v_mul_f32 v{t+i}, 0x{LOG2E ^ 0x80000000:08x}, v{x+i}")
    for i in range(4): A(f"v_exp_f32 v{t+i}, v{t+i}")
    A("s_nop 0")
    for i in range(4): A(f"v_add_f32 v{t+i}, 1.0, v{t+i}")
    for i in range(4): A(f"v_rcp_f32 v{t+i}, v{t+i}")
    A("s_nop 0")
    for i in range(4): A(f"v_mul_f32 v{x+i}, v{x+i}, v{t+i}")

def make_tag(g):
    g.A(f"s_mul_i32 s{ST}, s{ST}, 0x9e3779b1")
    g.A(f"s_add_u32 s{ST}, s{ST}, 0x7f4a7c15")

EX8 = ["s_mov_b32 exec_lo, 0x00030003", "s_mov_b32 exec_hi, 0x00030003"]

def dump_all(g, extra):
    A = g.A
    A("s_mov_b64 exec, -1")
    A("s_mul_i32 s3, s2, 12"); A("s_add_u32 s3, s3, s13"); A("s_lshl_b32 s3, s3, 6")
    A(f"s_add_u32 s3, s3, {WS_STAMP}")
    A("v_lshl_add_u32 v2, v1, 2, s3")
    A("v_mov_b32 v3, 0")
    A("s_waitcnt lgkmcnt(0)")
    for i, x in enumerate([80+2*i for i in range(10)] + list(extra)): A(f"v_writelane_b32 v3, s{x}, {i}")
    A("s_mov_b64 exec, 0xffff")
    A("global_store_dword v2, v3, s[42:43]")

def fallback(g, head_sum, wave_red):
    A = g.A
    W, AC, AV = 40, 72, 88
    X1, GS = 104, 120
    g.lab("L_slow")
    A("s_mov_b32 s47, 0x20000")
    A("s_load_dwordx16 s[16:31], s[0:1], 0")
    A("s_load_dwordx8 s[32:39], s[0:1], 64")
    A("v_and_b32 v2, 31, v1")
    A("v_lshlrev_b32 v2, 7, v2")
    A(f"v_add_u32 v2, {WS_DN}, v2")
    A("s_mov_b32 s70, 0")
    g.lab("L_sl_d")
    A("global_load_dword v3, v2, s[42:43] sc1")
    A("s_waitcnt vmcnt(0) lgkmcnt(0)")
    A(f"v_cmp_ne_u32 vcc, s{ST}, v3")
    spin_tail(g, "L_sl_d", "L_sl_dd", 8)
    A("v_lshlrev_b32 v2, 3, v1")
    A(f"v_add_u32 v2, {WS_OQ}, v2")
    A("v_lshlrev_b32 v0, 2, v1")
    A(f"v_add_u32 v0, {L_VX}, v0")
    A("s_mov_b32 s10, 0")
    g.lab("L_sl_h")
    A("s_mov_b32 s70, 0")
    g.lab("L_sl_hp")
    for i in range(3): A(f"global_load_dwordx2 {vr(W+2*i,2)}, v2, s[42:43] offset:{512*i} sc1")
    A("s_waitcnt vmcnt(0)")
    head_sum(W, W+8)
    spin_tail(g, "L_sl_hp", "L_sl_hd", 8)
    A(f"ds_write_b32 v0, v{W}")
    A("v_add_u32 v2, 2048, v2"); A("v_add_u32 v0, 256, v0")
    A("s_add_u32 s10, s10, 1"); A("s_cmp_lt_u32 s10, 64"); A("s_cbranch_scc1 L_sl_h")
    def call(base, nbytes, stride, nrows, act, bstride, col):
        A(f"s_mov_b32 s44, s{base}"); A(f"s_mov_b32 s45, s{base+1}"); A(f"s_mov_b32 s46, {nbytes}")
        A(f"s_mov_b32 s11, {stride}"); A(f"s_mov_b32 s12, {nrows*stride}")
        A(f"v_mov_b32 v4, {act}"); A(f"v_mov_b32 v5, {act+bstride}")
        A(f"v_lshlrev_b32 v2, 4, v1")
        if col: A(f"v_add_u32 v2, {col}, v2")
        A("s_call_b64 s[62:63], L_gv")
    def modrow(row, d):
        A("v_lshrrev_b32 v2, 1, v1"); A("v_lshlrev_b32 v2, 7, v2")
        A("v_and_b32 v3, 1, v1"); A("v_lshl_add_u32 v2, v3, 5, v2")
        A(f"v_add_u32 v2, {WS_MOD+4096*row}, v2")
        for b in range(2):
            for h in range(2): A(f"global_load_dwordx4 {vr(W+8*b+4*h,4)}, v2, s[42:43] offset:{64*b+16*h} sc1")
        A("s_waitcnt vmcnt(0)")
        for k in range(8): unpack2(g, d+2*k, W+2*k)
    def gated_add(row):
        modrow(row, AV)
        for i in range(16): rnd(g, AC+i)
        for i in range(16): A(f"v_mul_f32 v{AC+i}, v{AC+i}, v{AV+i}")
        for i in range(16): rnd(g, AC+i)
        for i in range(16): A(f"v_add_f32 v{X1+i}, v{X1+i}, v{AC+i}")
        for i in range(16): rnd(g, X1+i)
    def pack(d, s_):
        for k in range(8): A(f"v_cvt_pk_bf16_f32 v{d+k}, v{s_+2*k}, v{s_+2*k+1}")
    call(24, 4096*1024, 1024, 4096, L_VX, 8192, 0)
    A("v_lshlrev_b32 v0, 4, v1")
    for b in range(2): A(f"global_load_dwordx4 {vr(W+4*b,4)}, v0, s[16:17] offset:{1024*b}")
    A("s_waitcnt vmcnt(0)")
    for k in range(8): unpack2(g, X1+2*k, W+k)
    gated_add(2)
    for b in range(2):
        x = X1 + 8*b; y = AC + 8*b
        A(f"v_add_f32 v8, v{x}, v{x+1}")
        for i in range(2, 8): A(f"v_add_f32 v8, v8, v{x+i}")
        wave_red("v_add_f32", 8, 9)
        A(f"v_mul_f32 v8, 0x{f2u(1/512):08x}, v8")
        for i in range(8): A(f"v_sub_f32 v{y+i}, v{x+i}, v8")
        A(f"v_mul_f32 v10, v{y}, v{y}")
        for i in range(1, 8): A(f"v_fmac_f32 v10, v{y+i}, v{y+i}")
        wave_red("v_add_f32", 10, 9)
        A(f"v_mul_f32 v10, 0x{f2u(1/512):08x}, v10")
        rnd(g, 8); rnd(g, 10)
        A(f"v_add_f32 v10, 0x{EPS:08x}, v10")
        rnd(g, 10)
        A("v_sqrt_f32 v10, v10")
        for i in range(8): A(f"v_sub_f32 v{y+i}, v{x+i}, v8")
        rnd(g, 10)
        for i in range(8): rnd(g, y+i)
        A("v_rcp_f32 v10, v10")
        A("s_nop 0")
        for i in range(8): A(f"v_mul_f32 v{y+i}, v{y+i}, v10")
        for i in range(8): rnd(g, y+i)
    modrow(4, AV)
    for i in range(16): A(f"v_add_f32 v{AV+i}, 1.0, v{AV+i}")
    for i in range(16): rnd(g, AV+i)
    for i in range(16): A(f"v_mul_f32 v{AC+i}, v{AC+i}, v{AV+i}")
    for i in range(16): rnd(g, AC+i)
    modrow(3, AV)
    for i in range(16): A(f"v_add_f32 v{AC+i}, v{AC+i}, v{AV+i}")
    pack(W, AC)
    A(f"v_add_u32 v3, {L_VX}, v0")
    for b in range(2): A(f"ds_write_b128 v3, {vr(W+4*b,4)} offset:{1024*b}")
    HB = L_VX + 2048
    for p in range(3):
        call(28, 512*2752, 2752, 512, L_VX, 1024, 1024*p)
        for i in range(16): rnd(g, GS+i, AC+i)
        call(30, 512*2752, 2752, 512, L_VX, 1024, 1024*p)
        for q in range(4): silu4(g, GS+4*q, AV)
        for i in range(16): rnd(g, GS+i)
        for i in range(16): rnd(g, AC+i)
        for i in range(16): A(f"v_mul_f32 v{AC+i}, v{AC+i}, v{GS+i}")
        pack(W, AC)
        A(f"v_add_u32 v3, {HB+1024*p}, v0")
        for b in range(2): A(f"ds_write_b128 v3, {vr(W+4*b,4)} offset:{3072*b}")
    call(32, 1376*1024, 1024, 1376, HB, 3072, 0)
    gated_add(5)
    pack(W, X1)
    for b in range(2): A(f"global_store_dwordx4 v0, {vr(W+4*b,4)}, s[38:39] offset:{1024*b} sc1")
    A("s_endpgm")
    g.lab("L_gv")
    for i in range(16): A(f"v_mov_b32 v{AC+i}, 0")
    A("s_mov_b32 s10, 0")
    g.lab("L_gvl")
    for r in range(8):
        A(f"buffer_load_dwordx4 {vr(W+4*r,4)}, v2, s[44:47], s10 offen")
        A("s_add_u32 s10, s10, s11")
    for b in range(2): A(f"ds_read_b128 {vr(AV+4*b,4)}, v{4+b}")
    A("v_add_u32 v4, 16, v4"); A("v_add_u32 v5, 16, v5")
    A("s_waitcnt lgkmcnt(0)")
    for r in range(8):
        for b in range(2):
            a = AV + 4*b + r//2
            if r % 2 == 0: A(f"v_and_b32 v{8+2*b}, 0xffff, v{a}"); A(f"v_lshlrev_b32 v{9+2*b}, 16, v{a}")
            else: A(f"v_lshrrev_b32 v{8+2*b}, 16, v{a}"); A(f"v_and_b32 v{9+2*b}, s73, v{a}")
        A(f"s_waitcnt vmcnt({7-r})")
        for b in range(2):
            for k in range(8): A(f"v_dot2c_f32_bf16 v{AC+8*b+k}, v{8+2*b+(k&1)}, v{W+4*r+k//2}")
    A("s_cmp_lt_u32 s10, s12"); A("s_cbranch_scc1 L_gvl")
    A("s_nop 1")
    A("s_setpc_b64 s[62:63]")

def stream(g, opts):
    A = g.A
    D0 = opts.get("D0", 4)
    LAG = opts.get("LAG", 5)
    DEL = opts.get("delta", 10)
    THETA = opts.get("theta", 24)
    HCAP, HPOS = 32, 160
    TH, HST, NH, NSP, HTH = 18, 19, 20, 21, 22
    PA = 2
    KF, VF = opts.get("kf", "nt"), opts.get("vf", "nt")
    J0 = opts.get("J0", 15)
    T_, ACC, DB, RW, LIM, BUR, CNT, STA, QA, LVL = 32, 33, 34, 35, 36, 37, 38, 39, 40, 41
    SR, SBI, VE = 78, 79, 59
    VG = opts.get('vg', 20); LG = opts.get('lg', 10)
    LB, JS, DN, FIN, X1D, RET, TK, RET2 = 56, 57, 58, 75, 61, 62, (64, 66), 100
    T, X = 8, 16
    OFF = (24, 26); SET = (28, 30, 32); AC_, AT_, AH_, MK = 8, 12, 4, (34, 35, 36, 0); MW, L16, LRD, EPA = 37, 38, 39, 21
    EV = 23
    RA = 22
    ROFF = 1024
    RB = 40
    def slot(j): return RB + 4 * (j % 32)
    NW, KS, NXT = 76, 77, 57
    g.lab("L_stream")
    BLK = 33 * 1024
    A("s_sub_u32 s9, s13, 1")
    A("s_lshl_b32 s11, s9, 10")
    A(f"s_mul_i32 s4, s7, {11*1024}")
    A("s_lshl_b32 s10, s6, 22")
    A("s_add_u32 s10, s10, s4")
    A("s_add_u32 s10, s10, 0x300000")
    A("v_and_b32 v0, 15, v1")
    A("v_lshl_add_u32 v0, v0, 6, s11")
    A("v_and_b32 v3, 48, v1")
    A("v_add_u32 v0, v3, v0")
    A("s_lshr_b32 s15, s2, 3")
    if opts.get("rot", 0) == 1: A("s_and_b32 s15, s15, 28")
    A(f"s_mul_i32 s12, s15, {BLK}")
    A("s_sub_u32 s46, 0x100000, s4")
    A("s_mov_b32 s47, 0x20000")
    A(f"s_mov_b32 s14, {31*BLK}")
    g.stamp(1, 3)
    A("s_waitcnt lgkmcnt(0)")
    g.stamp(2, 3)
    A("s_add_u32 s44, s18, s10"); A("s_addc_u32 s45, s19, 0")
    def issue(j):
        A(f"buffer_load_dwordx4 {vr(slot(j),4)}, v0, s[44:47], s12 offen {KF}")
        A(f"s_add_u32 s12, s12, {BLK}")
        A("s_cmp_eq_u32 s12, s14")
        A("s_cselect_b32 s12, 0, s12")
    g.stamp(3, 3)
    for j in range(1, D0): issue(j)
    A(f"buffer_load_dwordx4 {vr(slot(0),4)}, v0, s[44:47], s14 offen {KF}")
    g.stamp(4, 3)
    A("s_add_u32 s48, s20, s10"); A("s_addc_u32 s49, s21, 0")
    A("s_mov_b32 s50, s46"); A("s_mov_b32 s51, 0x20000")
    A("s_mov_b32 s52, 0xcccccccc"); A("s_mov_b32 s53, 0xcccccccc")
    A("s_mov_b32 s54, 0xaaaaaaaa"); A("s_mov_b32 s55, 0xaaaaaaaa")
    A(f"v_and_b32 v{L16}, 15, v1")
    A(f"v_lshlrev_b32 v{L16}, 4, v{L16}")
    A("s_lshl_b32 s10, s9, 11")
    A(f"s_add_u32 s10, s10, {L_VX}")
    A("v_lshl_add_u32 v3, v1, 3, s10")
    A("v_mov_b32 v4, 0x7fff0000"); A("v_mov_b32 v5, 0xff800000")
    for n in range(3): A(f"ds_write_b64 v3, v[4:5] offset:{512*n}")
    A("v_lshrrev_b32 v3, 4, v1")
    A(f"v_lshl_add_u32 v{LRD}, v{L16}, 1, s10")
    A(f"v_lshl_add_u32 v{LRD}, v3, 3, v{LRD}")
    A("s_sub_u32 s68, s15, 1")
    A("v_and_b32 v4, 3, v1")
    A("v_lshl_add_u32 v4, v3, 2, v4")
    A("v_bfe_u32 v3, v1, 2, 2")
    A("v_lshl_add_u32 v3, v3, 8, s11")
    A("v_cmp_eq_u32 s[70:71], 0, v4")
    for n in range(2):
        A(f"v_add_u32 v{OFF[n]}, s68, v4")
        if n: A(f"v_add_u32 v{OFF[n]}, 16, v{OFF[n]}")
        A(f"v_subrev_u32 v5, 31, v{OFF[n]}")
        A(f"v_min_u32 v{OFF[n]}, v5, v{OFF[n]}")
        if n == 0: A(f"v_cndmask_b32 v{OFF[n]}, v{OFF[n]}, 31, s[70:71]")
        A(f"v_mul_u32_u24 v{OFF[n]}, {BLK}, v{OFF[n]}")
        A(f"v_add_u32 v{OFF[n]}, v3, v{OFF[n]}")
    A("s_lshl_b32 s11, s9, 9")
    A("s_sub_u32 s11, s11, s10")
    A(f"s_mov_b32 s{T_}, {D0}"); A(f"s_mul_i32 s{ACC}, s9, 0x60000000"); A(f"s_add_u32 s{ACC}, s{ACC}, 0x10000000")
    A(f"s_mov_b64 s[{TK[0]}:{TK[0]+1}], 0"); A(f"s_mov_b64 s[{TK[1]}:{TK[1]+1}], 0")
    A(f"s_mov_b32 s{CNT}, 0"); A(f"s_mov_b32 s{STA}, 2"); A(f"s_mov_b32 s{FIN}, 0"); A(f"s_mov_b32 s{X1D}, 0")
    A("v_and_b32 v3, 1, v1"); A("v_lshlrev_b32 v3, 4, v3"); A("v_mov_b32 v20, 0xffff"); A("v_lshlrev_b32 v3, v3, v20")
    A("v_bfe_u32 v20, v1, 1, 3")
    for d in range(3):
        A(f"v_cmp_eq_u32 vcc, {d}, v20"); A("s_nop 1"); A(f"v_cndmask_b32 v{MK[d]}, 0, v3, vcc")
    A("s_barrier")
    A("s_waitcnt lgkmcnt(0)")
    A(f"s_mov_b32 s{LB}, s10")
    A(f"s_mov_b32 s{LVL}, {LAG}"); A(f"s_mov_b32 s{NXT}, 0"); A(f"s_mov_b32 s{NW}, {LAG*4096}")
    A(f"s_mov_b32 s{DB}, {int(opts.get('d1', 2.75)*4096) + ROFF*LG*16}"); A(f"s_mov_b32 s{KS}, 0")
    A(f"s_mov_b32 s{RW}, {32-D0}"); A(f"s_mov_b32 s{VE}, 0")
    A(f"v_mov_b32 v{RA}, {ROFF + NS_*(32-D0)}"); A(f"v_mov_b32 v{RA+1}, 0"); A(f"v_mov_b32 v{PA}, 0")
    for j in range(D0, 32):
        if j == opts.get("je", 99) and opts.get("dup", 0): A(f"s_sub_u32 s{DB}, s{DB}, {int(opts['dup']*4096)}")
        if j == opts.get("js", 16) and opts.get("dup", 0): A(f"s_add_u32 s{DB}, s{DB}, {int(opts['dup']*4096)}")
        if j == D0:
            g.stamp(5, 3)
            if opts.get("stamps") == 3: A(f"s_waitcnt vmcnt({D0-1})")
            g.stamp(7, 3)
        A(f"s_call_b64 s[{RET}:{RET+1}], {'L_ks' if j >= J0 else ('L_kq2', 'L_kl')[(j - D0) & 1] if opts.get('light', 0) else 'L_kq'}")
        if j == 8: g.stamp(8, 3)
        if j == 12: g.stamp(9, 3)
        issue(j)
        if opts.get("trace") == 2:
            if j > D0: A(f"v_writelane_b32 v33, s98, {j-1}")
            A("s_memrealtime s[98:99]")
    if opts.get("trace") == 2:
        A("s_waitcnt lgkmcnt(0)"); A("v_writelane_b32 v33, s98, 31")
        A("s_mul_i32 s3, s2, 12"); A("s_add_u32 s3, s3, s13"); A("s_lshl_b32 s3, s3, 8"); A("s_add_u32 s3, s3, 0x400000")
        A("v_lshl_add_u32 v3, v1, 2, s3")
        A("global_store_dword v3, v33, s[42:43]")
    g.stamp(1)
    A("s_mov_b32 s10, 0")
    g.lab("L_kw")
    A(f"s_cmp_ge_u32 s{STA}, 6"); A("s_cbranch_scc1 L_v0")
    A(f"s_call_b64 s[{RET2}:{RET2+1}], L_work")
    A("s_sleep 1")
    A("s_add_u32 s10, s10, 1")
    A(f"s_cmp_lt_u32 s10, {SPIN_MAX}"); A("s_cbranch_scc1 L_kw")
    g.lab("L_v0")
    g.stamp(2)
    A(f"s_mov_b32 s{T_}, 0")
    A(f"v_mov_b32 v{PA}, 8")
    A(f"s_mov_b32 s{RW}, s{VE}")
    A(f"ds_read_b64 {vr(RA,2)}, v{PA} offset:{L_RM}")
    A(f"v_mov_b32_dpp v{MK[3]}, v{MK[2]} row_shr:2 row_mask:0xf bank_mask:0xf bound_ctrl:0")
    KA, KB = opts.get('ka2', 3.9), opts.get('kb2', -0.2)
    A(f"s_mov_b32 s{KS}, {round(KA*16)}")
    A(f"s_mov_b32 s{NW}, {round(opts.get('hi0', 3)*4096)}")
    VB0, VB1 = round(opts.get("vb0", 0.4) * 4096), round(opts.get("vb1", 0.6) * 4096)
    A(f"s_mov_b32 s{DB}, {round(KB*4096) + ROFF*LG*16 + VB0}")

    A("s_waitcnt lgkmcnt(0)")

    def dots(G_, halves=(0, 1)):
        sl = [8*G_ + e for h in halves for e in range(4*h, 4*h+4)]
        dst = [T] + [slot(x) for x in sl[:-1]]
        A("s_mov_b64 vcc, s[52:53]")
        for x, d in zip(sl, dst): A(f"v_mfma_f32_16x16x32_bf16 {vr(d,4)}, v[4:7], {vr(slot(x),4)}, 0")
        A(f"s_nop {8 - len(sl)}")
        for d in dst:
            for k in range(2): A(f"v_cndmask_b32 v{d+2*k}, v{d+2*k}, v{d+2*k+1}, s[54:55]")
        for x, d in zip(sl, dst):
            A(f"v_cndmask_b32_dpp v{X + 2*(x & 1) + ((x >> 1) & 1)}, v{d}, v{d+2}, vcc quad_perm:[0,1,2,3] row_mask:0x{1 << ((x >> 2) & 3):x} bank_mask:0xf")
    def wave_red(op, v, t):
        for r in (8, 4, 2, 1):
            A("s_nop 1")
            A(f"{op}_dpp v{v}, v{v}, v{v} row_ror:{r} row_mask:0xf bank_mask:0xf")
        for sw in ("v_permlane16_swap_b32", "v_permlane32_swap_b32"):
            A(f"v_mov_b32 v{t}, v{v}")
            A("s_nop 1")
            A(f"{sw} v{t}, v{v}")
            A(f"{op} v{v}, v{v}, v{t}")
    def finish(n):
        sc = OFF[n] + 1
        A("v_mov_b32 v3, 0")
        A("v_mov_b32 v20, 64")
        for i in range(4): A(f"v_add_f32_dpp v{X+i}, v{X+i}, v{X+i} quad_perm:[2,3,0,1] row_mask:0xf bank_mask:0xf")
        for i in range(2): A(f"v_cndmask_b32 v{T+i}, v{X+2*i}, v{X+2*i+1}, s[52:53]")
        A("s_nop 0")
        A("v_lshlrev_b32 v21, 3, s9")
        for i in range(2): A(f"v_add_f32_dpp v{T+i}, v{T+i}, v{T+i} quad_perm:[1,0,3,2] row_mask:0xf bank_mask:0xf")
        A(f"v_cndmask_b32 v{sc}, v{T}, v{T+1}, s[54:55]")
        rnd(g, sc)
        A(f"v_mul_f32 v{sc}, 0x{SCALE:08x}, v{sc}")
        rnd(g, sc)
        if n == 0:
            A(f"v_cmp_gt_u32 vcc, s46, v{OFF[0]}")
            A(f"v_mov_b32 v{MW}, 0xff800000")
            A("s_nop 0")
            A(f"v_cndmask_b32 v{sc}, v{MW}, v{sc}, vcc")
            A(f"v_mov_b32 v{MW}, v{sc}")
        else: A(f"v_max_f32 v{MW}, v{MW}, v{sc}")
        wave_red("v_max_f32", MW, T)
        if n == 0:
            A("s_mov_b64 exec, 1")
            A(f"ds_max_f32 v3, v{MW} offset:{L_E0}")
            A(f"ds_add_u32 v3, v20 offset:{L_ECN}")
            A("s_mov_b64 exec, -1")
    def build(n, thr):
        tk = f"s[{TK[n]}:{TK[n]+1}]"
        A(f"v_cmp_nlt_f32 vcc, v{OFF[n]+1}, v{thr}")
        A(f"s_lshl_b32 s68, s{CNT}, 3")
        A(f"s_add_u32 s68, s68, s{LB}")
        A(f"s_andn2_b64 s[70:71], vcc, {tk}")
        A("v_mbcnt_lo_u32_b32 v3, s70, 0")
        A("v_mbcnt_hi_u32_b32 v3, s71, v3")
        A("s_bcnt1_i32_b64 s69, s[70:71]")
        A("v_lshl_add_u32 v3, v3, 3, s68")
        A("s_mov_b64 exec, s[70:71]")
        A(f"ds_write_b64 v3, {vr(OFF[n],2)}")
        A("s_mov_b64 exec, -1")
        A(f"s_or_b64 {tk}, {tk}, s[70:71]")
        A(f"s_add_u32 s{CNT}, s{CNT}, s69")
    def reread(weights=True, fill=None):
        ns = 3 if weights else 1
        for n in range(ns): A(f"ds_read_b64 {vr(SET[n],2)}, v{LRD} offset:{512*n}")
        if fill: fill()
        A("s_waitcnt lgkmcnt(0)")
        if not weights: return
        for n in range(3): A(f"v_sub_f32 v{SET[n]+1}, v{SET[n]+1}, v{MW}")
        for n in range(3): A(f"v_mul_f32 v{SET[n]+1}, 0x{LOG2E:08x}, v{SET[n]+1}")
        for n in range(3): A(f"v_exp_f32 v{SET[n]+1}, v{SET[n]+1}")
        A("s_nop 0")
        for n in range(3): A(f"v_cvt_pk_bf16_f32 v{SET[n]+1}, v{SET[n]+1}, v{SET[n]+1}")
    def pv(t, data=None, acc=AC_, first=False):
        data = slot(t) if data is None else data
        for d in range(4): A(f"v_and_b32_dpp v{AT_+d}, v{SET[t//16]+1}, v{MK[d]} row_newbcast:{t%16} row_mask:0xf bank_mask:0xf")
        A("s_nop 1")
        A(f"v_mfma_f32_16x16x32_bf16 {vr(acc,4)}, {vr(AT_,4)}, {vr(data,4)}, {vr(acc,4)}")
    def estimate(sh, add, src, vphase=True):
        A(f"s_add_u32 s68, s{src}, {add}")
        A(f"s_lshr_b32 s68, s68, {sh}")
        A(f"s_sub_u32 s69, s68, s{VE}")
        A(f"s_mov_b32 s{VE}, s68")
        if vphase:
            A(f"s_add_u32 s{RW}, s{RW}, s69")
            A(f"s_add_u32 s{SR}, s{SR}, s69")
        A("v_mov_b32 v3, s69")
        A("s_mov_b64 exec, 1")
        A(f"ds_add_u32 v1, v3 offset:{L_RM+8}")
        A(f"ds_add_u32 v1, v3 offset:{L_RM+12}")
        A("s_mov_b64 exec, -1")
    def fetch():
        A(f"v_readfirstlane_b32 s{SR}, v{RA}")
        A(f"v_readfirstlane_b32 s{SBI}, v{RA+1}")
    NST = LAG + 33 + LAG
    assert 4 * (NST - LAG) <= HPOS, NST
    LIGHT = opts.get("light", 0)
    for t in range(NST - LAG + 1):
        sub = "L_vs" if t <= 2 * LAG else "L_vq" if not LIGHT else ("L_vq2", "L_vl")[(t - 2 * LAG - 1) & 1]
        A(f"s_call_b64 s[{RET}:{RET+1}], {sub}")
        if t == NST - LAG: break
        if t: A(f"s_cbranch_scc0 L_dr{max(t, LAG)}")
        A(f"v_add_u32_dpp v3, v{SET[t//16]}, v{L16} row_newbcast:{t%16} row_mask:0xf bank_mask:0xf")
        A(f"buffer_load_dwordx4 {vr(slot(t),4)}, v3, s[48:51], 0 offen {VF}")
        if opts.get("trace") == 1 and t >= LAG:
            A("s_memrealtime s[98:99]"); A("s_waitcnt lgkmcnt(0)"); A(f"v_writelane_b32 v17, s98, {t}")
        if t == 0: dots(3, (0,))
        if t >= LAG: pv(t - LAG)
    A(f"s_branch L_dr{NST-LAG}")
    g.C("nothing left to load, everything has landed: the row groups not used yet")
    for t in range(LAG, NST):
        g.lab(f"L_dr{t}")
        pv(t - LAG)
        A(f"s_cmp_eq_u32 s{FIN}, {t+1}"); A("s_cbranch_scc1 L_epi")
    def out_addr():
        A("v_lshrrev_b32 v3, 4, v1")
        A(f"v_lshl_add_u32 v{EPA}, v3, 3, v{LRD}")
        A(f"v_add_u32 v{EPA}, s11, v{EPA}")
        A("v_mov_b32 v3, 1")
    def prelim(r):
        A("s_mov_b32 exec_hi, 0")
        A(f"ds_write_b128 v{EPA}, {vr(r,4)} offset:{L_OP1}")
        A("s_mov_b64 exec, 1")
        A(f"ds_add_u32 v1, v3 offset:{L_SN}")
        A("s_mov_b64 exec, -1")
    g.lab("L_epi")
    g.stamp(5)
    out_addr()
    A("s_nop 3")
    for h in range(2): A(f"v_pk_add_f32 {vr(AC_+2*h,2)}, {vr(AC_+2*h,2)}, {vr(AH_+2*h,2)}")
    A("s_mov_b32 exec_hi, 0")
    A(f"ds_write_b128 v{EPA}, {vr(AC_,4)} offset:{L_OP}")
    A(f"s_cmp_eq_u32 s{NSP}, 0"); A("s_cbranch_scc1 L_ep2")
    prelim(AC_)
    g.lab("L_ep2")
    A("s_mov_b64 exec, 1")
    A(f"ds_add_u32 v1, v3 offset:{L_TK}")
    g.lab("L_send")
    if opts.get("trace") == 1:
        A("s_mov_b64 exec, -1")
        A("s_mul_i32 s3, s2, 12"); A("s_add_u32 s3, s3, s13"); A("s_lshl_b32 s3, s3, 8"); A("s_add_u32 s3, s3, 0x400000")
        A("v_lshl_add_u32 v2, v1, 2, s3")
        A("global_store_dword v2, v17, s[42:43]")
    if opts.get("stamps"):
        g.stamp(6)
        dump_all(g, [CNT, SBI, SBI])
    A("s_endpgm")
    g.wave_red = wave_red

    g.lab("L_ks")
    A(f"s_cmp_lt_u32 s{T_}, s{NXT}"); A("s_cbranch_scc1 L_kq")
    A(f"s_call_b64 s[{RET2}:{RET2+1}], L_work")
    BASE, FRAC = BUR, 58
    def control(n):
        A("s_mov_b64 exec, 1")
        for _ in range(n): A(f"ds_dec_u32 v{PA}, v{LRD} offset:{L_RM}")
        A(f"ds_read_b64 {vr(RA,2)}, v{PA} offset:{L_RM}")
        A("s_mov_b64 exec, -1")
        A(f"s_mul_i32 s68, s{RW}, {NS_}")
        A(f"s_and_b32 s69, s{SBI}, 0xffff")
        A(f"s_sub_i32 s68, s68, s{SR}")
        A(f"s_mul_i32 s69, s69, s{KS}")
        A(f"s_mul_i32 s68, s68, {LG*16}")
        A(f"s_sub_u32 s{RW}, s{RW}, {n}")
        A("s_add_i32 s68, s68, s69")
        A(f"s_add_i32 s68, s68, s{DB}")
        A(f"s_max_i32 s68, s68, {int(opts.get('lo', 1.2)*4096)}")
        A(f"s_min_i32 s68, s68, s{NW}")
        A(f"s_lshr_b32 s{BASE}, s68, 12")
        A(f"s_lshl_b32 s{FRAC}, s68, 20")
    g.lab("L_kq")
    fetch()
    g.lab("L_ks2")
    control(1)
    g.lab("L_kl")
    A(f"s_add_u32 s{T_}, s{T_}, 1")
    A(f"s_add_u32 s{ACC}, s{ACC}, 0x20000000")
    A(f"s_add_u32 s68, s{ACC}, s{FRAC}")
    A(f"s_addc_u32 s{LVL}, s{BASE}, 0")
    order = [3, 2, 4, 1] + list(range(5, LAG))
    for d in order:
        A(f"s_cmp_eq_u32 s{LVL}, {d}"); A(f"s_cbranch_scc1 L_wt{d}")
    g.lab("L_wtx")
    A(f"s_cmp_eq_u32 s{T_}, s{T_}")
    for d in [LAG] + order:
        g.lab(f"L_wt{d}")
        A(f"s_waitcnt vmcnt({d-1})")
        A(f"s_setpc_b64 s[{RET}:{RET+1}]")
    g.lab("L_kq2")
    fetch()
    g.lab("L_ks3")
    control(2)
    A("s_branch L_kl")
    g.lab("L_vl")
    A(f"s_cmp_lt_u32 s{T_}, s{LIM}"); A("s_cbranch_scc1 L_kl")
    A("s_branch L_ev")
    g.lab("L_vq2")
    fetch()
    if opts.get("early", 0):
        A(f"s_lshr_b32 s68, s{SBI}, 16")
        A(f"s_cmp_gt_u32 s68, s{FIN}"); A("s_cbranch_scc1 L_hand")
    A(f"s_cmp_lt_u32 s{T_}, s{LIM}"); A("s_cbranch_scc1 L_ks3")
    A("s_branch L_ev")

    g.lab("L_vs")
    fetch()
    A(f"s_cmp_eq_u32 s{X1D}, 2"); A("s_cbranch_scc1 L_vs1")
    A(f"s_cmp_eq_u32 s{X1D}, 1"); A("s_cbranch_scc1 L_x3")
    A(f"s_cmp_gt_u32 s{LVL}, s{T_}"); A("s_cbranch_scc1 L_ks2")
    g.lab("L_x1")
    g.stamp(1, 2)
    dots(3, (1,))
    sc = OFF[1] + 1
    A(f"s_lshl_b32 s68, s{NH}, 3")
    A(f"s_add_u32 s68, s68, s{LB}")
    for i in range(4): A(f"v_add_f32_dpp v{X+i}, v{X+i}, v{X+i} quad_perm:[2,3,0,1] row_mask:0xf bank_mask:0xf")
    for i in range(2): A(f"v_cndmask_b32 v{T+i}, v{X+2*i}, v{X+2*i+1}, s[52:53]")
    A("v_mov_b32 v20, 64")
    A("v_lshlrev_b32 v21, 3, s9")
    for i in range(2): A(f"v_add_f32_dpp v{T+i}, v{T+i}, v{T+i} quad_perm:[1,0,3,2] row_mask:0xf bank_mask:0xf")
    A(f"v_cndmask_b32 v{sc}, v{T}, v{T+1}, s[54:55]")
    rnd(g, sc)
    A(f"v_mul_f32 v{sc}, 0x{SCALE:08x}, v{sc}")
    rnd(g, sc)
    mx = lambda r: f"v_max_f32_dpp v{MW}, v{MW}, v{MW} row_ror:{r} row_mask:0xf bank_mask:0xf"
    tk1 = f"s[{TK[1]}:{TK[1]+1}]"
    for t in (f"v_max_f32 v{MW}, v{MW}, v{sc}",
              f"v_cmp_ngt_f32 vcc, s{HTH}, v{sc}", "v_mov_b32 v4, 0", mx(8),
              "s_bcnt1_i32_b64 s69, vcc", f"s_add_u32 s69, s69, s{NH}", mx(4),
              f"s_cmp_gt_u32 s69, {HCAP}", f"s_cselect_b32 s{NSP}, 1, s{NSP}", mx(2),
              f"s_cmp_eq_u32 s{NSP}, 0", f"s_cselect_b64 {tk1}, vcc, 0", f"s_cselect_b32 s{NH}, s69, s{NH}", mx(1),
              f"v_mbcnt_lo_u32_b32 v3, s{TK[1]}, 0", f"v_mov_b32 v{T}, v{MW}", f"v_mbcnt_hi_u32_b32 v3, s{TK[1]+1}, v3", "v_lshl_add_u32 v3, v3, 3, s68",
              f"v_permlane16_swap_b32 v{T}, v{MW}",
              f"s_mov_b64 exec, {tk1}", f"ds_write_b64 v3, {vr(OFF[1],2)} offset:{HPOS*8}", "s_mov_b64 exec, -1",
              f"ds_read_b32 v{SET[2]}, v{LRD} offset:1024",
              f"v_max_f32 v{MW}, v{MW}, v{T}", f"v_mov_b32 v{T}, v{MW}", "v_mov_b32 v5, 0", f"s_mov_b32 s{TH}, s{T_}",
              f"v_permlane32_swap_b32 v{T}, v{MW}", f"v_max_f32 v{MW}, v{MW}, v{T}"): A(t)
    for i in range(2): A(f"v_sub_f32 v{X+1+i}, v{OFF[i]+1}, v{MW}")
    for i in range(2): A(f"v_mul_f32 v{X+1+i}, 0x{LOG2E:08x}, v{X+1+i}")
    for i in range(2): A(f"v_exp_f32 v{X+1+i}, v{X+1+i}")
    A("s_lshl_b32 s68, s9, 9")
    A(f"v_lshl_add_u32 v{X}, v1, 2, s68")
    A(f"v_add_f32 v{X+1}, v{X+1}, v{X+2}")
    A("s_waitcnt lgkmcnt(0)")
    for i in range(8):
        A(f"s_cmp_le_u32 s{NH}, {4*i}"); A("s_cbranch_scc1 L_x2")
        A(f"v_add_u32_dpp v3, v{SET[2]}, v{L16} row_newbcast:{8+i} row_mask:0xf bank_mask:0xf")
        A(f"buffer_load_dwordx4 {vr(slot(24+i),4)}, v3, s[48:51], 0 offen {VF}")
    g.lab("L_x2")
    g.stamp(2, 2)
    A(f"ds_write_b32 v{X}, v{X+1} offset:{L_OP}")
    A("s_mov_b64 exec, 1")
    A(f"ds_write_b32 v21, v{MW} offset:{L_ST}")
    A(f"ds_add_u32 v1, v20 offset:{L_SCN}")
    A("s_mov_b64 exec, -1")
    g.stamp(3); g.stamp(3, 2)
    A(f"s_mov_b32 s{X1D}, 1"); A(f"s_mov_b32 s{HST}, 1")
    if VB1 != VB0: A(f"s_add_i32 s{DB}, s{DB}, {VB1-VB0}")
    A(f"s_cmp_lt_u32 s{T_}, {LAG}"); A("s_cbranch_scc1 L_ks2")
    g.lab("L_x3")
    A(f"v_max_f32 v21, s{EV}, v{MW}")
    A(f"s_add_u32 s{CNT}, s{CNT}, 3"); A(f"s_lshr_b32 s{CNT}, s{CNT}, 2")
    A(f"v_add_f32 v21, 0x{f2u(DEL - ZERO_GAP):08x}, v21")
    A(f"s_max_u32 s{CNT}, s{CNT}, s{T_}"); A(f"s_lshl_b32 s{CNT}, s{CNT}, 2")
    build(1, 21)
    def fill():
        for e in range(4): A(f"v_mov_b32 v{AC_+e}, 0")
        for e in range(2, 4): A(f"v_mov_b32 v{AH_+e}, 0")
        A(f"s_lshr_b32 s{LIM}, s{CNT}, 2")
        A(f"s_mov_b32 s{X1D}, 2")
        estimate(2, opts.get("ve2", 13), CNT)
    reread(True, fill)
    A(f"s_cmp_eq_u32 s{NH}, 0")
    A(f"s_cselect_b32 s{LVL}, 0, s{LVL}")
    g.stamp(4, 2)
    g.lab("L_vs1")
    A(f"s_cmp_eq_u32 s{HST}, 0"); A("s_cbranch_scc1 L_vs1b")
    A(f"s_sub_u32 s68, s{T_}, s{TH}")
    A(f"s_cmp_le_u32 s{LVL}, s68"); A("s_cbranch_scc1 L_snap")
    A(f"s_cmp_lt_u32 s{T_}, s{LIM}"); A("s_cbranch_scc1 L_ks2")
    A("s_waitcnt vmcnt(0)")
    g.lab("L_snap")
    g.stamp(5, 2)
    for i in range(8):
        A(f"s_cmp_le_u32 s{NH}, {4*i}"); A("s_cbranch_scc1 L_snp2")
        pv(40 + i, slot(24 + i), AH_)
    g.lab("L_snp2")
    out_addr()
    A("s_nop 0")
    A(f"s_mov_b32 s{HST}, 0")
    if VB1: A(f"s_sub_i32 s{DB}, s{DB}, {VB1}")
    A(f"s_mov_b32 s{NW}, {LAG*4096}")
    A(f"s_cmp_lg_u32 s{NSP}, 0"); A("s_cbranch_scc1 L_vs1b")
    prelim(AH_)
    g.stamp(9); g.stamp(7, 2)
    A("s_branch L_vs1b")
    g.lab("L_vq")
    fetch()
    g.lab("L_vs1b")
    if opts.get("early", 0):
        A(f"s_lshr_b32 s68, s{SBI}, 16")
        A(f"s_cmp_gt_u32 s68, s{FIN}"); A("s_cbranch_scc1 L_hand")
    g.lab("L_vs2")
    A(f"s_cmp_lt_u32 s{T_}, s{LIM}"); A("s_cbranch_scc1 L_ks2")
    g.lab("L_ev")
    A(f"s_cmp_eq_u32 s{FIN}, 0"); A("s_cbranch_scc1 L_hand")
    A(f"s_add_u32 s68, s{T_}, {LAG}")
    A(f"s_cmp_lt_u32 s68, s{FIN}"); A("s_cbranch_scc0 L_wt1")
    A(f"s_add_u32 s{T_}, s{T_}, 1")
    A("s_mov_b64 exec, 1")
    A(f"ds_dec_u32 v{PA}, v{LRD} offset:{L_RM}")
    A("s_mov_b64 exec, -1")
    A("s_branch L_wtx")

    g.lab("L_hand")
    g.stamp(7)
    A("v_mov_b32 v3, 0")
    wait_cnt(g, f"ds_read_b64 v[18:19], v3 offset:{L_SCN}", 18, 0x10000 + 64 * NS_, 1)
    g.stamp(4)
    build(0, 19); build(1, 19)
    def fill2():
        A(f"s_add_u32 s{FIN}, s{CNT}, {3 + 4*LAG}")
        A(f"s_lshr_b32 s{FIN}, s{FIN}, 2")
        A(f"s_sub_u32 s{LIM}, s{FIN}, {LAG + opts.get('burst', 3)}")
        A(f"s_max_i32 s{LIM}, s{LIM}, 0")
        estimate(2, 3, CNT)
    reread(True, fill2)
    A("s_branch L_vs2")

    g.lab("L_work")
    ret2 = f"s_setpc_b64 s[{RET2}:{RET2+1}]"
    for k, l in ((4, "L_w3"), (3, "L_w2b"), (5, "L_w5")):
        A(f"s_cmp_eq_u32 s{STA}, {k}"); A(f"s_cbranch_scc1 {l}")
    def landed(n):
        A(f"s_add_u32 s68, s{LVL}, {n}")
        A(f"s_cmp_lt_u32 s{T_}, s68"); A("s_cbranch_scc1 L_wr")
    g.lab("L_w2")
    assert J0 >= 8 + LAG
    A("v_and_b32 v3, 0xf0, v0")
    A(f"ds_read_b128 v[4:7], v3 offset:{L_QV}")
    A("s_waitcnt lgkmcnt(0)")
    chk_sentinel(g, [4, 5, 6, 7], 8)
    A("s_cmp_lg_u64 vcc, 0"); A("s_cbranch_scc1 L_wr")
    dots(0)
    A(f"s_mov_b32 s{STA}, 3"); A(f"s_mov_b32 s{NXT}, 17")
    g.lab("L_wr")
    A(ret2)
    g.lab("L_w2b")
    landed(16)
    g.stamp(9, 2)
    dots(1)
    finish(0)
    A(f"s_mov_b32 s{STA}, 4")
    A(f"s_mov_b32 s{HST}, 0")
    g.stamp(8)
    A(ret2)
    g.lab("L_w5")
    landed(24)
    dots(2)
    A(f"s_mov_b32 s{STA}, 6"); A(f"s_mov_b32 s{NXT}, 99")
    A(ret2)
    g.lab("L_w3")
    A("v_mov_b32 v3, 0")
    A(f"ds_read_b64 v[18:19], v3 offset:{L_ECN}")
    A("s_waitcnt lgkmcnt(0)")
    A(f"v_cmp_gt_u32 vcc, 0x{0x10000 + 64 * NS_:x}, v18")
    A("s_cmp_lg_u64 vcc, 0"); A("s_cbranch_scc1 L_wr")
    A(f"ds_read_b64 v[20:21], v3 offset:{L_E1}")
    A("s_waitcnt lgkmcnt(0)")
    A(f"v_add_f32 v21, 0x{f2u(-THETA):08x}, v21")
    A(f"v_cmp_nlt_f32 vcc, v{OFF[0]+1}, v21")
    A(f"v_readfirstlane_b32 s{HTH}, v21")
    A(f"v_readfirstlane_b32 s{EV}, v20")
    A(f"s_mov_b32 s{NH}, 0")
    A("s_bcnt1_i32_b64 s68, vcc")
    A(f"s_cmp_gt_u32 s68, {HCAP}")
    A(f"s_cselect_b32 s{NSP}, 1, 0")
    A("s_cbranch_scc1 L_w4")
    A(f"s_mov_b32 s{CNT}, {HPOS}")
    build(0, 21)
    A(f"s_mov_b32 s{NH}, s69"); A(f"s_mov_b32 s{CNT}, 0")
    g.lab("L_w4")
    A(f"v_add_f32 v21, 0x{f2u(DEL - ZERO_GAP):08x}, v20")
    build(0, 21)
    estimate(1, opts.get("ve1", 6), CNT, False)
    if opts.get("ka1", 0):
        A(f"s_sub_i32 s68, s{VE}, {opts.get('kt1', 20)}")
        A(f"s_max_i32 s68, s68, {opts.get('kl1', -4)}")
        A(f"s_mul_i32 s68, s68, {int(opts['ka1']*4096)}")
        A(f"s_add_i32 s{DB}, s{DB}, s68")
    A(f"s_mov_b32 s{STA}, 5"); A(f"s_mov_b32 s{NXT}, 25")
    reread(False)
    A(ret2)

def gen(opts):
    g = G(opts); A = g.A
    opts.setdefault("ka1", 0.06)
    WFL = opts.get("wflags", "nt")
    D0 = opts.get("D0", 4)
    MREP = 8
    TB = 32
    hdr = open(opts["ref"]).read().split("; Override launch")[0]
    g.L.append(hdr.rstrip("\n"))
    g.L.append(""";
;    projections behind the attention overlap the remaining V rows.  When all rows are in, the bf16 attention output is formed
;    numbers of loads in flight only affect speed.""")
    g.L.append(f"; @launch grid=(256,1,1) block=(768,1,1) lds={LDS_BYTES}")
    g.L.append('.amdgcn_target "amdgcn-amd-amdhsa--gfx950"\n.text')
    g.L.append(f".globl {KNAME}\n.p2align 8\n.type {KNAME},@function\n{KNAME}:")
    g.stamp(0, 3)
    KA1 = opts.get("ka", 1) and not opts.get("stamps")
    def rest():
        A("s_load_dwordx8 s[24:31], s[0:1], 32")
        A("s_load_dwordx8 s[32:39], s[0:1], 64")
        A("s_load_dwordx4 s[40:43], s[0:1], 96")
        A("s_mov_b32 s72, 0xfffffffe")
        A("s_mov_b32 s73, 0xffff0000")
    A("s_load_dwordx8 s[16:23], s[0:1], 0")
    A("s_cmp_ge_u32 s2, 256")
    A("s_cbranch_scc1 L_end")
    if not KA1: rest()
    A("v_lshrrev_b32 v2, 6, v0")
    A("v_and_b32 v1, 63, v0")
    A("v_readfirstlane_b32 s13, v2")
    A("s_bfe_u32 s7, s2, 0x20003")
    A("s_bfe_u32 s6, s2, 0x20005")
    A("s_and_b32 s8, s2, 7")
    A("s_lshl2_add_u32 s6, s8, s6")
    A("s_and_b32 s9, s2, 0x80")
    A("s_lshr_b32 s9, s9, 2")
    A("s_add_u32 s6, s6, s9")
    g.stamp(0)
    A("s_cmp_eq_u32 s7, 3")
    A("s_cbranch_scc1 L_serv")
    A("s_cmp_eq_u32 s13, 0")
    A("s_cbranch_scc1 L_pub")
    stream(g, opts)

    def tag():
        A("s_waitcnt lgkmcnt(0)")
        make_tag(g)
    def tag_bytes():
        for i in range(4): A(f"s_bfe_u32 s{TB+i}, s{ST}, 0x{(8 << 16) | (8 * i):x}")
    def table():
        A("s_getpc_b64 s[56:57]")
        l = g.uniq("pc"); g.lab(l)
        A("s_lshr_b32 s3, s2, 5"); A("s_lshl3_add_u32 s3, s3, s8"); A("s_lshl_b32 s3, s3, 2")
        A(f"s_add_u32 s3, s3, L_table-{l}")
        A("s_load_dword s14, s[56:57], s3")

    g.lab("L_pub")
    if KA1: rest()
    NT = opts.get("nt", 2)
    if NT:
        A("s_getpc_b64 s[56:57]")
        g.lab("L_pct")
        A("s_lshr_b32 s3, s2, 3"); A("s_lshl_b32 s3, s3, 2")
        A("s_add_u32 s3, s3, L_touch-L_pct")
        A("s_load_dword s14, s[56:57], s3")
        A("s_waitcnt lgkmcnt(0)")
        for k in range(NT):
            e = g.uniq("tq"); e2 = g.uniq("te")
            A(f"s_bfe_u32 s48, s14, 0x{(3 << 16) | (8*k):x}"); A("s_lshl_b32 s48, s48, 6")
            A("v_add_u32 v2, s48, v1")
            A(f"s_bfe_u32 s48, s14, 0x{(3 << 16) | (8*k+3):x}")
            A(f"s_bitcmp1_b32 s14, {8*k+7}"); A(f"s_cbranch_scc1 {e2}")
            A(f"s_bitcmp1_b32 s14, {8*k+6}"); A(f"s_cbranch_scc1 {e}")
            A("s_lshl1_add_u32 s48, s8, s48"); A("s_lshl_b32 s48, s48, 7")
            A("v_mul_u32_u24 v2, 6144, v2")
            A("v_add_u32 v2, s48, v2")
            A("global_load_dword v167, v2, s[36:37]")
            A(f"s_branch {e2}")
            g.lab(e)
            A("s_lshl3_add_u32 s48, s8, s48"); A("s_lshl_b32 s48, s48, 7")
            A("v_lshl_add_u32 v2, v2, 13, s48")
            A("global_load_dword v167, v2, s[22:23]")
            g.lab(e2)
    A("v_mov_b32 v38, 0")
    A("v_mov_b32 v4, -1")
    A("v_mov_b32 v8, 0xff800000"); A("v_mov_b32 v9, 0")
    A("v_lshlrev_b32 v2, 3, v1")
    A(f"ds_write_b64 v2, v[8:9] offset:{L_S4}")
    A("v_mov_b32 v5, 0"); A("v_mov_b32 v6, 0"); A("v_mov_b32 v7, 0")
    A("v_lshlrev_b32 v2, 2, v1")
    A(f"ds_write_b32 v2, v4 offset:{L_QV}")
    A(f"ds_write_b128 v38, v[4:7] offset:{L_ML}")
    A("v_mov_b32 v10, 0"); A("v_mov_b32 v11, v8"); A("v_mov_b32 v12, 0"); A("v_mov_b32 v13, v8")
    A(f"ds_write_b128 v38, v[10:13] offset:{L_SCN}")
    A(f"v_mov_b32 v10, {1024+NS_*(32-D0)}"); A("v_mov_b32 v11, 0"); A("v_mov_b32 v12, 1024"); A("v_mov_b32 v13, 0")
    A(f"ds_write_b128 v38, v[10:13] offset:{L_RM}")
    A("v_mov_b32 v4, 0")
    A(f"ds_write_b128 v38, v[4:7] offset:{L_SN}")
    A(f"s_getreg_b32 s{SXCC}, hwreg(HW_REG_XCC_ID, 0, 4)")
    A("s_waitcnt lgkmcnt(0)")
    A(f"s_load_dword s{ST}, s[42:43], {WS_E}")
    A("s_barrier")
    tag()
    A(f"s_add_u32 s{SXCC}, s{SXCC}, s{ST}")
    def merge(nl, base):
        A(f"v_and_b32 v9, {nl-1}, v1")
        A("v_lshlrev_b32 v9, 3, v9")
        A(f"ds_read_b64 v[10:11], v9 offset:{base}")
        mods = ["quad_perm:[1,0,3,2]", "quad_perm:[2,3,0,1]", "row_half_mirror", "row_mirror"][:nl.bit_length()-1]
        A("s_waitcnt lgkmcnt(0)")
        if nl == 16: A("v_mov_b32 v16, v10")
        for i, m_ in enumerate(mods):
            src = 10 if i == 0 else 8
            A(f"v_max_f32_dpp v8, v{src}, v{src} {m_} row_mask:0xf bank_mask:0xf")
            if i + 1 < len(mods): A("s_nop 1")
        A("v_sub_f32 v9, v10, v8")
        A(f"v_mul_f32 v9, 0x{LOG2E:08x}, v9")
        A("v_exp_f32 v9, v9")
        A("s_nop 0")
        A("v_mul_f32 v10, v9, v11")
        for m_ in mods:
            A("s_nop 1")
            A(f"v_add_f32_dpp v10, v10, v10 {m_} row_mask:0xf bank_mask:0xf")
    SB = 20
    def sissue(n, nd, off):
        for i in range(n): A(f"s_load_dwordx{nd} s[{SB+4*i}:{SB+4*i+nd-1}], s[42:43], s{54+i} offset:{off} glc")
    def spoll(n, nd, off, name, sleep):
        A("s_mov_b32 s70, 0")
        A(f"s_branch {name}c")
        g.lab(name)
        sissue(n, nd, off)
        g.lab(name + "c")
        A("s_waitcnt lgkmcnt(0)")
        tags = [SB + 4*i + k for i in range(n) for k in range(1, nd, 2)]
        A(f"s_xor_b32 s68, s{tags[0]}, s{ST}")
        for k in tags[1:]:
            A(f"s_xor_b32 s69, s{k}, s{ST}"); A("s_or_b32 s68, s68, s69")
        A(f"s_cbranch_scc0 {name}d")
        A(f"s_sleep {sleep}")
        A("s_add_u32 s70, s70, 1")
        A(f"s_cmp_lt_u32 s70, {SPIN_MAX}")
        A(f"s_cbranch_scc1 {name}")
        g.lab(name + "d")
    def sibs():
        A("s_add_u32 s52, s7, 1"); A("s_cmp_eq_u32 s52, 3"); A("s_cselect_b32 s52, 0, s52")
        A("s_add_u32 s53, s52, s7"); A("s_sub_u32 s53, 3, s53")
        for i in range(2):
            A(f"s_lshl2_add_u32 s{54+i}, s6, s{52+i}"); A(f"s_lshl_b32 s{54+i}, s{54+i}, 7")
    A("s_lshl2_add_u32 s64, s6, s7"); A("s_lshl_b32 s64, s64, 7")
    A(f"s_add_u32 s64, s64, {WS_S1}")
    A("v_mov_b32 v18, s64")
    A(f"v_add_u32 v19, {WS_S2-WS_S1}, v18")
    A("v_mov_b32 v17, 0x10000")
    PT = opts.get("pt", 15)
    if PT & 1:
        A("s_lshl2_add_u32 s49, s6, s7"); A("s_lshl_b32 s49, s49, 9"); A(f"s_add_u32 s49, s49, {WS_OP}")
        A("v_and_b32 v10, 3, v1"); A("v_lshl_add_u32 v10, v10, 7, s49")
        A("v_bfe_u32 v11, v1, 2, 1"); A(f"v_mul_u32_u24 v11, {R2}, v11"); A("v_add_u32 v10, v10, v11")
        A("s_mov_b64 exec, 0xff")
        A("global_load_dword v166, v10, s[42:43] sc1")
        A("s_mov_b64 exec, 1")
        A("global_load_dword v166, v18, s[42:43] sc1")
        A("global_load_dword v166, v19, s[42:43] sc1")
        A("s_mov_b64 exec, -1")
    l = g.uniq("qw")
    A("s_mov_b32 s70, 0")
    g.lab(l)
    A(f"ds_read_b32 v8, v38 offset:{L_RM}")
    A("s_waitcnt lgkmcnt(0)")
    A(f"v_cmp_lt_u32 vcc, {1024 + NS_ * (32 - opts.get('jq', 13))}, v8")
    spin_tail(g, l, l + "d", 4, 8)
    WIN = (8, 24, 44, 84)
    A("s_lshl_b32 s3, s6, 9")
    A("s_mov_b64 exec, 1")
    for h in range(2):
        A("s_mov_b32 s70, 0")
        g.lab(f"L_qp{h}")
        for i, w in enumerate(WIN): A(f"s_load_dwordx16 s[{w}:{w+15}], s[42:43], s3 offset:{WS_Q+256*h+64*i} glc")
        A(f"s_mov_b32 s62, -1"); A("s_mov_b32 s63, 0")
        A("s_waitcnt lgkmcnt(0)")
        for w in WIN:
            for k in range(1, 16, 2):
                A(f"s_and_b32 s62, s62, s{w+k}"); A(f"s_or_b32 s63, s63, s{w+k}")
        A(f"s_xor_b32 s62, s62, s{ST}"); A(f"s_xor_b32 s63, s63, s{ST}"); A("s_or_b32 s62, s62, s63")
        A(f"s_cbranch_scc0 L_qp{h}d")
        A(f"s_sleep {opts.get('qsl', 2)}")
        A("s_add_u32 s70, s70, 1")
        A(f"s_cmp_lt_u32 s70, {SPIN_MAX}")
        A(f"s_cbranch_scc1 L_qp{h}")
        g.lab(f"L_qp{h}d")
        for i, w in enumerate(WIN):
            for k in range(8): A(f"v_mov_b32 v{40+32*h+8*i+k}, s{w+2*k}")
    for i in range(16): A(f"ds_write_b128 v38, {vr(40+4*i,4)} offset:{L_QV+16*i}")
    A("s_mov_b64 exec, -1")
    A("s_and_b32 s8, s2, 7"); A("s_mov_b32 s13, 0")
    g.stamp(9)
    sibs()
    wait_cnt(g, f"ds_read_b64 v[8:9], v38 offset:{L_ECN}", 8, 64 * NS_, 2)
    sissue(2, 2, WS_S1)
    A("v_mov_b32 v8, v9")
    A(f"v_mov_b32 v9, s{ST}")
    A("s_mov_b64 exec, 1")
    A("global_store_dwordx2 v18, v[8:9], s[42:43] sc1")
    g.stamp(1)
    spoll(2, 2, WS_S1, "L_s3e", opts.get("ssl", 2))
    A(f"v_mov_b32 v12, s{SB}")
    A(f"v_max3_f32 v10, v8, v12, s{SB+4}")
    A(f"v_min3_f32 v11, v8, v12, s{SB+4}")
    A(f"ds_write_b64 v38, v[10:11] offset:{L_E1}")
    A(f"ds_add_u32 v38, v17 offset:{L_ECN}")
    A("s_mov_b64 exec, -1")
    g.stamp(3)
    if True:
        A("s_lshl_b32 s64, s8, 7")
        A(f"s_load_dwordx8 s[20:27], s[42:43], s64 offset:{WS_HDR} glc")
        A("s_waitcnt lgkmcnt(0)")
        A(f"s_xor_b32 s68, s20, s{SXCC}")
        for k in range(1, 8):
            A(f"s_xor_b32 s69, s{20+k}, s{SXCC}"); A("s_or_b32 s68, s68, s69")
        A(f"s_cselect_b32 s{SLOC}, 0, 1")
        if opts.get("nolocal"): A(f"s_mov_b32 s{SLOC}, 0")
    for i, r in enumerate((7, 52, 53)): A(f"v_lshlrev_b32 v{20+i}, 3, s{r}")
    A("v_and_b32 v9, 15, v1"); A("v_lshlrev_b32 v9, 3, v9"); A("v_lshlrev_b32 v11, 2, v1")
    wait_then(g, L_SCN, 64 * NS_, [f"ds_read_b32 v16, v9 offset:{L_ST}"] + [f"ds_read_b32 v{40+i}, v11 offset:{L_OP+512*i}" for i in range(NS_)], 64 * (NS_ - 1))
    A(f"s_waitcnt lgkmcnt({NS_})")
    for i, m_ in enumerate(["quad_perm:[1,0,3,2]", "quad_perm:[2,3,0,1]", "row_half_mirror", "row_mirror"]):
        src = 16 if i == 0 else 8
        A(f"v_max_f32_dpp v8, v{src}, v{src} {m_} row_mask:0xf bank_mask:0xf")
        if i < 3: A("s_nop 1")
    A("v_sub_f32 v9, v16, v8")
    A(f"v_mul_f32 v9, 0x{LOG2E:08x}, v9")
    A("v_exp_f32 v9, v9")
    A("s_waitcnt lgkmcnt(0)")
    A("s_nop 0")
    for i in range(NS_):
        op = "v_mul_f32_dpp" if i < 2 else "v_fmac_f32_dpp"
        A(f"{op} v{10+2*(i&1)}, v9, v{40+i} row_newbcast:{i} row_mask:0xf bank_mask:0xf")
    A("v_add_f32 v10, v10, v12")
    g.wave_red("v_add_f32", 10, 12)
    sissue(2, 4, WS_S2)
    A(f"v_mov_b32 v9, s{ST}"); A(f"v_mov_b32 v11, s{ST}")
    A("s_mov_b64 exec, 1")
    A("global_store_dwordx4 v19, v[8:11], s[42:43] sc1")
    A(f"ds_write_b32 v20, v8 offset:{L_S4}")
    A(f"ds_write_b32 v20, v10 offset:{L_S4+4}")
    g.stamp(4)
    spoll(2, 4, WS_S2, "L_s3p", opts.get("ssl", 2))
    for i in range(2):
        A(f"v_mov_b32 v{12+2*i}, s{SB+4*i}"); A(f"v_mov_b32 v{13+2*i}, s{SB+4*i+2}")
    for i in range(2): A(f"ds_write_b64 v{21+i}, {vr(12+2*i,2)} offset:{L_S4}")
    A("s_mov_b64 exec, -1")
    merge(4, L_S4)
    A("v_log_f32 v12, v10")
    A("v_sub_f32 v9, v16, v8")
    A("v_rcp_f32 v10, v10")
    A(f"v_mul_f32 v9, 0x{LOG2E:08x}, v9")
    A("v_exp_f32 v9, v9")
    A(f"v_add_f32 v8, 0x{f2u(-ZERO_GAP):08x}, v8")
    A(f"v_fmac_f32 v8, 0x{f2u(0.6931471805599453 if opts.get('lnl', 1) else 0):08x}, v12")
    A("v_lshlrev_b32 v13, 2, v1")
    A("v_mul_f32 v9, v9, v10")
    A("s_mov_b64 exec, 0xffff")
    A(f"ds_write_b32 v13, v9 offset:{L_S8}")
    A("s_mov_b64 exec, 1")
    A(f"ds_write_b32 v38, v8 offset:{L_MX}")
    A(f"ds_add_u32 v38, v17 offset:{L_SCN}")
    A(f"ds_add_u32 v38, v17 offset:{L_RM+12}")
    A("s_mov_b64 exec, -1")
    A(f"ds_write_b32 v38, v38 offset:{L_ML}")
    g.stamp(5)
    R = 40
    op_prep(g, R, 38, 0)
    wait_then(g, L_SN, NS_, op_reads(L_OP1, R), NS_ - 1)
    op_sum(g, R, True)
    g.stamp(6)
    R1 = 80
    op_prep(g, R1, 38, R2)
    A("s_waitcnt vmcnt(0)")
    wait_cnt(g, f"ds_read_b32 v8, v38 offset:{L_TK}", 8, opts.get("ctk", 1), 4)
    A(f"global_store_dwordx2 v{R+OPA}, {vr(R,2)}, s[42:43] sc1")
    A("s_cmp_eq_u32 s7, 2"); A("s_cbranch_scc1 L_chk")
    wait_then(g, L_TK, NS_, op_reads(L_OP, R1), NS_ - 1)
    op_sum(g, R1, False)
    g.stamp(7)
    A("s_branch L_fin")

    g.lab("L_chk")
    TG = 160; RB = 136
    for k in range(2): A(f"v_and_b32 v{TG+k}, 0xff, v{R+OPA+1+k}")
    A("s_lshl_b32 s10, s6, 11"); A(f"s_add_u32 s10, s10, {WS_OP}")
    A("v_lshl_add_u32 v2, v1, 3, s10")
    def head_sum(b_, t, src=None):
        src = src or list(range(b_, b_ + 6))
        for i in range(6): A(f"v_xor_b32 v{b_+i}, v{src[i]}, v{TG+(i&1)}")
        A(f"v_or3_b32 v{t}, v{b_}, v{b_+1}, v{b_+2}")
        A(f"v_or3_b32 v{t+1}, v{b_+3}, v{b_+4}, v{b_+5}")
        for i in range(6): A(f"v_or_b32 v{b_+i}, 0x80, v{b_+i}")
        A(f"v_or_b32 v{t}, v{t}, v{t+1}")
        A(f"v_pk_add_f32 {vr(b_,2)}, {vr(b_,2)}, {vr(b_+2,2)}")
        A(f"v_lshlrev_b32 v{t}, 24, v{t}")
        A(f"v_pk_add_f32 {vr(b_,2)}, {vr(b_,2)}, {vr(b_+4,2)}")
        A(f"v_cmp_ne_u32 vcc, 0, v{t}")
        A(f"v_cvt_pk_bf16_f32 v{b_}, v{b_}, v{b_+1}")
    RAW = RB + 18
    def looks(k, v=2):
        for i in range(2): A(f"global_load_dwordx2 {vr(RAW-24*k+2*i,2)}, v{v}, s[42:43] offset:{512*i} sc1")
    def settle(k, sleep, own, depth):
        raw = RAW - 24*k
        A("s_mov_b32 s70, 0")
        A(f"s_branch L_cp{k}c")
        g.lab(f"L_cp{k}")
        looks(k)
        if sleep: A(f"s_sleep {sleep}")
        A(f"s_waitcnt vmcnt({2*(depth-1)})")
        g.lab(f"L_cp{k}c")
        head_sum(RB+8*k, RB+16, [raw, raw+1, raw+2, raw+3, own, own+1])
        spin_tail(g, f"L_cp{k}", f"L_cp{k}d", 0)
    looks(0)
    A(f"v_add_u32 v3, {R2}, v2")
    wait_then(g, L_TK, NS_, op_reads(L_OP, R1), NS_ - 1)
    looks(1, 3)
    op_sum(g, R1, False)
    g.stamp(7)
    A("s_waitcnt vmcnt(1)")
    settle(0, 4, R, 1)
    A(f"v_add_u32 v2, {R2}, v2")
    settle(1, opts.get("csl", 0), R1, opts.get("cpipe", 1))
    A(f"v_cmp_ne_u32 vcc, v{RB}, v{RB+8}")
    A("s_cmp_eq_u64 vcc, 0"); A("s_cbranch_scc1 L_fin")
    A("s_waitcnt vmcnt(0)")
    fallback(g, head_sum, g.wave_red)

    g.lab("L_serv")
    if KA1: rest()
    A("s_cmp_ge_u32 s13, 4"); A("s_cbranch_scc1 L_team")
    A("s_cmp_lt_u32 s13, 2"); A("s_cbranch_scc1 L_sv1")
    if opts.get("cpf", 1):
        A("s_getpc_b64 s[56:57]")
        g.lab("L_pcc")
        A(f"s_sub_u32 s56, s56, L_pcc-{KNAME}"); A("s_subb_u32 s57, s57, 0")
        A("s_lshr_b32 s3, s2, 5"); A("s_lshl1_add_u32 s3, s3, s13"); A("s_sub_u32 s3, s3, 2")
        A("s_lshl_b32 s3, s3, 12")
        A("v_lshl_add_u32 v2, v1, 6, s3")
        A(f"v_min_u32 v2, L_end-{KNAME}, v2")
        A("global_load_dword v3, v2, s[56:57]")
    if opts.get("amp"):
        A("s_cmp_lg_u32 s2, 24"); A("s_cbranch_scc1 L_end")
        A("s_cmp_lg_u32 s13, 2"); A("s_cbranch_scc1 L_end")
        A("s_memrealtime s[78:79]")
        A("s_waitcnt lgkmcnt(0)")
        A(f"s_load_dword s{ST}, s[42:43], {WS_E}")
        A("s_barrier")
        tag()
        A("s_waitcnt vmcnt(0)")
        A("v_and_b32 v2, 31, v1"); A("v_lshlrev_b32 v2, 7, v2"); A(f"v_add_u32 v2, {WS_DN}, v2")
        A("v_lshlrev_b32 v3, 11, v1"); A(f"v_add_u32 v3, {WS_OQ}, v3")
        A(f"s_and_b32 s60, s{ST}, 0xff")
        g.lab("L_am0")
        A("s_sleep 4"); A("s_memrealtime s[64:65]"); A("s_waitcnt lgkmcnt(0)")
        A("s_sub_u32 s64, s64, s78"); A(f"s_cmp_lt_u32 s64, {opts.get('am0', 1950)}"); A("s_cbranch_scc1 L_am0")
        which = opts.get("amw", 3)
        A("s_mov_b32 s70, 0")
        g.lab("L_am1")
        A("global_load_dword v4, v2, s[42:43] sc1")
        for i in range(3): A(f"global_load_dword v{5+i}, v3, s[42:43] offset:{512*i} sc1")
        A("s_waitcnt vmcnt(0)")
        A("s_mov_b64 vcc, 0")
        if which & 1: A(f"v_cmp_ne_u32 vcc, s{ST}, v4")
        if which & 2:
            for i in range(3):
                A(f"v_and_b32 v{5+i}, 0xff, v{5+i}"); A(f"v_cmp_ne_u32 s[68:69], s60, v{5+i}"); A("s_or_b64 vcc, vcc, s[68:69]")
        spin_tail(g, "L_am1", "L_am2", 0)
        A("s_memrealtime s[66:67]"); A("s_waitcnt lgkmcnt(0)")
        A("s_sub_u32 s66, s66, s78"); A(f"s_mul_i32 s66, s66, {opts['amp']}")
        g.lab("L_am3")
        A("s_sleep 1")
        A("s_memrealtime s[64:65]"); A("s_waitcnt lgkmcnt(0)")
        A("s_sub_u32 s64, s64, s78"); A("s_cmp_lt_u32 s64, s66"); A("s_cbranch_scc1 L_am3")
    A("s_endpgm")
    g.lab("L_sv1")
    A("v_mov_b32 v38, 0")
    A("v_mov_b32 v4, -1"); A("v_mov_b32 v5, 0"); A("v_mov_b32 v6, 0"); A("v_mov_b32 v7, 0")
    A(f"ds_write_b128 v38, v[4:7] offset:{L_ML}")
    A(f"ds_write_b64 v38, v[6:7] offset:{L_CNA}")
    A(f"s_getreg_b32 s{SXCC}, hwreg(HW_REG_XCC_ID, 0, 4)")
    A("s_waitcnt lgkmcnt(0)")
    A(f"s_load_dword s{ST}, s[42:43], {WS_E}")
    table()
    A("s_barrier")
    tag()
    tag_bytes()
    A("s_cmp_eq_u32 s13, 0"); A("s_cbranch_scc1 L_sv0")
    A("s_bfe_u32 s61, s14, 0x80010")
    A("s_cmp_ge_u32 s61, 32"); A("s_cbranch_scc1 L_fin")
    poll_lds(g, [f"ds_read_b32 v8, v38 offset:{L_ML}"], [8], 9, 16)
    A("s_branch L_r_f2")

    g.lab("L_sv0")
    if True:
        A(f"s_add_u32 s{SXCC}, s{SXCC}, s{ST}")
        A("s_lshr_b32 s49, s2, 5"); A("s_lshl_b32 s50, s8, 5"); A("s_add_u32 s49, s49, s50"); A("s_lshl_b32 s49, s49, 2")
        A("v_mov_b32 v8, s49"); A(f"v_mov_b32 v9, s{SXCC}")
        A("s_mov_b64 exec, 1")
        A(f"global_store_dword v8, v9, s[42:43] offset:{WS_HDR} sc1")
        A("s_mov_b64 exec, -1")
    for i in range(3):
        A(f"s_lshl_b32 s{54+i}, s6, 9"); A(f"s_add_u32 s{54+i}, s{54+i}, {128*i}")
    WDL = opts.get("wdl", 2)
    if WDL:
        wait_cnt(g, f"ds_read_b32 v8, v38 offset:{L_CNA}", 8, opts.get("wdc", 8), 16)
        if opts.get('wds', 0): A(f"s_sleep {opts.get('wds', 0)}")
        if opts.get("wdn", 1):
            sissue(opts.get("wdn", 1), 2, WS_S1)
            spoll(opts.get("wdn", 1), 2, WS_S1, "L_s3w", 8)
        A("v_mov_b32 v8, 1")
        A(f"ds_write_b32 v38, v8 offset:{L_ML+4}")
    wait_cnt(g, f"ds_read_b32 v8, v38 offset:{L_CNA}", 8, 12, 16)
    sissue(3, 2, WS_S2)
    spoll(3, 2, WS_S2, "L_s3s", 8)
    A(f"ds_write_b32 v38, v38 offset:{L_ML}")
    g.stamp(5)
    A("s_branch L_fin")

    g.lab("L_team")
    A("s_and_b32 s5, s13, 3")
    A("v_and_b32 v0, 0xff, v0")
    A("v_mov_b32 v38, 0")
    A(f"s_mov_b32 s{STG}, 0")
    A("s_lshr_b32 s60, s2, 5")
    A("v_lshrrev_b32 v12, 3, v0")
    A("v_lshlrev_b32 v12, 5, v12")
    A("v_bfe_u32 v3, v1, 2, 1")
    A("v_lshl_add_u32 v12, v3, 10, v12")
    A("v_and_b32 v8, 3, v1")
    A("v_lshl_add_u32 v37, v8, 3, v12")
    A("v_and_b32 v12, 0xffffffdf, v12")
    A("v_lshl_add_u32 v12, v8, 4, v12")
    A("v_bfe_u32 v8, v1, 3, 1")
    A("v_lshl_add_u32 v12, v8, 3, v12")
    A("v_lshl_add_u32 v12, v3, 5, v12")
    A("s_waitcnt lgkmcnt(0)")
    A(f"s_load_dword s{ST}, s[42:43], {WS_E}")
    A("s_barrier")
    A("s_cmp_ge_u32 s13, 8"); A("s_cbranch_scc1 L_r_mod")

    def line_out_addr(v, bsh=6, ush=7):
        A(f"v_and_b32 v{v}, 1, v1")
        A(f"v_lshlrev_b32 v{v}, {bsh}, v{v}")
        A("v_lshrrev_b32 v3, 4, v1")
        A(f"v_lshl_add_u32 v{v}, v3, 4, v{v}")
        A(f"s_lshl_b32 s49, s5, {ush}")
        A("s_add_u32 s49, s49, s58")
        A(f"v_add_u32 v{v}, s49, v{v}")
    def pack_tagged():
        A("v_cvt_pk_bf16_f32 v8, v8, v9")
        A("v_cvt_pk_bf16_f32 v10, v10, v11")
        A(f"v_mov_b32 v9, s{ST}")
        A(f"v_mov_b32 v11, s{ST}")
    def go(k):
        A("v_mov_b32 v3, 1")
        A("s_mov_b64 exec, 1")
        A(f"ds_add_u32 v38, v3 offset:{L_GO+4*k}")
        A("s_mov_b64 exec, -1")

    g.T = TA
    g.lab("L_r_q")
    A("s_lshl3_add_u32 s61, s8, s60")
    A("s_lshl_b32 s48, s61, 7")
    A("s_lshl_b32 s58, s61, 8")
    A(f"s_add_u32 s58, s58, {WS_Q}")
    A("global_load_dwordx2 v[14:15], v37, s[16:17]")
    srd(g, 44, 22, 512*8192)
    A("s_cmp_ge_u32 s60, 2"); A("s_cbranch_scc1 L_q_go")
    wait_cnt(g, f"ds_read_b32 v8, v38 offset:{L_GO+4}", 8, 4, 1)
    g.lab("L_q_go")
    dma_tile64(g, 8192, WFL, opts.get("PQ", 0))
    go(0)
    tag()
    A("v_bfe_u32 v6, v1, 2, 1")
    A("v_lshlrev_b32 v6, 5, v6")
    A(f"v_add_u32 v6, {TA.RED}, v6")
    A("s_lshl_b32 s49, s5, 3")
    A("v_add_u32 v5, s49, v6")
    A("s_waitcnt vmcnt(16)")
    unpack4(g, 20, 14)
    ln_partial(g, 20)
    A("s_waitcnt vmcnt(0) lgkmcnt(0)")
    hsync(g, 9)
    ln_apply(g, 20, 24)
    A("s_lshl_b32 s49, s8, 13"); A(f"s_add_u32 s49, s49, {WS_MA}")
    A("v_lshl_add_u32 v15, v0, 4, s49")
    A("v_add_u32 v36, 0x1000, v15")
    def mod_loads():
        A("s_mov_b64 exec, s[64:65]")
        A("global_load_dwordx4 v[16:19], v15, s[42:43] sc1")
        A("s_mov_b64 exec, s[66:67]")
        A("global_load_dwordx4 v[32:35], v36, s[42:43] sc1")
        A("s_mov_b64 exec, -1")
    A("s_mov_b64 s[64:65], -1"); A("s_mov_b64 s[66:67], -1")
    mod_loads()
    tr_tile64(g)
    line_out_addr(13, 14, 6)
    act_addr(g, 14, TA.ACT, ACT_BS)
    g.stamp(1)
    A("s_mov_b32 s70, 0")
    A("s_branch L_q_c")
    g.lab("L_q_p")
    mod_loads()
    g.lab("L_q_c")
    A("s_waitcnt vmcnt(0)")
    A(f"v_cmp_ne_u32 s[64:65], s{ST}, v17"); A(f"v_cmp_ne_u32 s[68:69], s{ST}, v19"); A("s_or_b64 s[64:65], s[64:65], s[68:69]")
    A(f"v_cmp_ne_u32 s[66:67], s{ST}, v33"); A(f"v_cmp_ne_u32 s[68:69], s{ST}, v35"); A("s_or_b64 s[66:67], s[66:67], s[68:69]")
    A("s_or_b64 vcc, s[64:65], s[66:67]")
    A("s_or_b32 s64, s64, 1"); A("s_or_b32 s66, s66, 1")
    spin_tail(g, "L_q_p", "L_q_ok", opts.get("msleep", 2))
    g.stamp(3)
    unpack4(g, 28, 32, 2)
    unpack4(g, 24, 16, 2)
    for i in range(4): A(f"v_add_f32 v{28+i}, 1.0, v{28+i}")
    for i in range(4): rnd(g, 28+i)
    for i in range(4): A(f"v_mul_f32 v{20+i}, v{20+i}, v{28+i}")
    for i in range(4): rnd(g, 20+i)
    for i in range(4): A(f"v_add_f32 v{20+i}, v{20+i}, v{24+i}")
    A("v_cvt_pk_bf16_f32 v16, v20, v21")
    A("v_cvt_pk_bf16_f32 v17, v22, v23")
    A(f"ds_write_b64 v12, v[16:17] offset:{TA.ACT}")
    hsync(g, 9)
    gemv(g, 16, 14, 8)
    pack_tagged()
    guard(g, 8); guard(g, 10)
    for x in EX8: A(x)
    A("global_store_dwordx4 v13, v[8:11], s[42:43] sc1")
    A("s_mov_b64 exec, -1")
    g.stamp(4)

    g.lab("L_r_wo")
    A("s_xor_b32 s61, s60, 1")
    A("s_lshl_b32 s48, s8, 19")
    A("s_lshl_b32 s49, s61, 7")
    A("s_add_u32 s48, s48, s49")
    A("s_lshr_b32 s58, s8, 1"); A("s_lshl_b32 s58, s58, 14")
    A("s_and_b32 s49, s8, 1"); A("s_lshl_b32 s49, s49, 12"); A("s_add_u32 s58, s58, s49")
    A("s_lshl_b32 s49, s61, 9")
    A("s_add_u32 s58, s58, s49")
    A(f"s_add_u32 s58, s58, {WS_AP}")
    srd(g, 44, 24, 4096*1024)
    if WDL & 1: wait_cnt(g, f"ds_read_b32 v8, v38 offset:{L_ML+4}", 8, 1, 8)
    dma_tile64(g, 1024, WFL, opts.get("PW", 3))
    tag_bytes()
    A("s_lshl2_add_u32 s49, s8, s5"); A("s_lshl_b32 s49, s49, 11")
    A(f"s_add_u32 s49, s49, {WS_OP}")
    A("v_lshrrev_b32 v12, 5, v1")
    A("v_and_b32 v16, 31, v1")
    A("v_lshlrev_b32 v15, 16, v12")
    A("v_lshl_add_u32 v15, v16, 4, v15")
    A("v_add_u32 v15, s49, v15")
    A(f"v_mul_u32_u24 v12, {ACT_BS}, v12")
    A("v_bfe_u32 v16, v1, 3, 2")
    A("v_lshl_add_u32 v12, v16, 6, v12")
    A("v_and_b32 v16, 3, v1")
    A("v_lshl_add_u32 v12, v16, 4, v12")
    A("v_bfe_u32 v16, v1, 2, 1")
    A("v_lshl_add_u32 v12, v16, 3, v12")
    A("s_lshl_b32 s49, s5, 8")
    A("v_add_u32 v12, s49, v12")
    line_out_addr(13)
    AREP = opts.get("arep", 2)
    A(f"v_bfe_u32 v3, v1, 1, {max(AREP.bit_length()-1, 0)}")
    A("v_lshl_add_u32 v13, v3, 16, v13")
    A("v_mov_b32 v36, 0xff")
    if PT & 2: A("global_load_dword v11, v13, s[42:43] sc1")
    A("s_waitcnt vmcnt(0)")
    g.stamp(5)
    hsync(g, 9, 4)
    tr_tile64(g)
    poll_lds(g, [f"ds_read_b32 v8, v38 offset:{L_ML}"], [8], 9, 8)
    if opts.get("notail"): go(0); A("s_branch L_fin")

    def sumN(n, src, dst):
        st = n // 2
        for i in range(st):
            for h in range(2):
                A(f"v_pk_add_f32 {vr(dst+4*i+2*h,2)}, {vr(src+4*i+2*h,2)}, {vr(src+4*(i+st)+2*h,2)}")
        st //= 2
        while st:
            for i in range(st):
                for h in range(2):
                    A(f"v_pk_add_f32 {vr(dst+4*i+2*h,2)}, {vr(dst+4*i+2*h,2)}, {vr(dst+4*(i+st)+2*h,2)}")
            st //= 2
    def sum8p(src, dst):
        for p in range(4):
            for h in range(2): A(f"v_pk_add_f32 {vr(dst+8*p+2*h,2)}, {vr(src+8*p+2*h,2)}, {vr(src+8*p+4+2*h,2)}")
        sum8q(dst)
    def sum8q(dst):
        for i in range(2):
            for h in range(2): A(f"v_pk_add_f32 {vr(dst+16*i+2*h,2)}, {vr(dst+16*i+2*h,2)}, {vr(dst+16*i+8+2*h,2)}")
        for h in range(2): A(f"v_pk_add_f32 {vr(dst+2*h,2)}, {vr(dst+2*h,2)}, {vr(dst+16+2*h,2)}")
    def x1_from(S):
        for i in range(4): rnd(g, S+i)
        for i in range(4): A(f"v_mul_f32 v{S+i}, v{S+i}, v{20+i}")
        for i in range(4): rnd(g, S+i)
        for i in range(4): A(f"v_add_f32 v{16+i}, v{16+i}, v{S+i}")
        for i in range(4): rnd(g, 16+i)
    TSL = opts.get("tsl", 0)
    def gather(n, load, raw, tmp, name, depth, gap, fin, msk=20, first=None):
        for i in range(n): A(f"s_mov_b64 s[{msk+2*i}:{msk+2*i+1}], {first[i] if first else -1}")
        def rnd_():
            for i in range(n):
                A(f"s_mov_b64 exec, s[{msk+2*i}:{msk+2*i+1}]")
                load(i, raw + 4*i)
            A("s_mov_b64 exec, -1")
        rnd_()
        A("s_waitcnt vmcnt(0)")
        A("s_mov_b32 s70, 0")
        A(f"s_branch {name}c")
        g.lab(name)
        rnd_()
        if gap: A(f"s_sleep {gap}")
        A(f"s_waitcnt vmcnt({n*(depth-1)})")
        g.lab(name + "c")
        for k in range(4*n): A(f"v_xor_b32 v{tmp+k}, s{TB+k%4}, v{raw+k}")
        for i in range(n): A(f"v_or3_b32 v{28+i}, v{tmp+4*i}, v{tmp+4*i+1}, v{tmp+4*i+2}")
        for i in range(n): A(f"v_or_b32 v{28+i}, v{28+i}, v{tmp+4*i+3}")
        for i in range(n): A(f"v_cmp_ne_u32_sdwa s[{msk+2*i}:{msk+2*i+1}], v{28+i}, v38 src0_sel:BYTE_0 src1_sel:DWORD")
        fin()
        A(f"s_mov_b64 vcc, s[{msk}:{msk+1}]")
        for i in range(1, n): A(f"s_or_b64 vcc, vcc, s[{msk+2*i}:{msk+2*i+1}]")
        for i in range(n): A(f"s_or_b32 s{msk+2*i}, s{msk+2*i}, 1")
        spin_tail(g, name, name + "ok", 0)
    def wo_fin():
        for i in range(12): A(f"v_or_b32 v{VA+32+i}, 0x80, v{VA+32+i}")
        for h in range(2): A(f"v_pk_add_f32 {vr(16+2*h,2)}, {vr(VA+32+2*h,2)}, {vr(VA+36+2*h,2)}")
        for h in range(2): A(f"v_pk_add_f32 {vr(16+2*h,2)}, {vr(16+2*h,2)}, {vr(VA+40+2*h,2)}")
    gather(3, lambda i, r: A(f"global_load_dwordx4 {vr(r,4)}, v15, s[42:43] offset:{512*i} sc1"), VA+48, VA+32, "L_wo_",
           opts.get("wpipe", 1), opts.get("wgap", 0), wo_fin)
    A("v_cvt_pk_bf16_f32 v8, v16, v17")
    A("v_cvt_pk_bf16_f32 v9, v18, v19")
    g.stamp(7)
    A(f"ds_write_b64 v12, v[8:9] offset:{TA.ACT}")
    NSPEC = opts.get("nspec", 4)
    gemv(g, 16, 14, 8, 12, 3, NSPEC)
    for i in range(4): A(f"v_bfi_b32 v{8+i}, v36, s{TB+i}, v{8+i}")
    A(f"s_mov_b32 exec_lo, 0x{((1 << 2*AREP) - 1) * 0x10001:08x}"); A("s_mov_b32 exec_hi, exec_lo")
    A("global_store_dwordx4 v13, v[8:11], s[42:43] sc1")
    g.stamp(2)
    go(0)
    A("s_branch L_fin")

    PG = VA + 32
    def pre_gather(offs):
        n = len(offs)
        l = g.uniq("pg"); e = g.uniq("pge")
        A("global_load_dwordx2 v[8:9], v37, s[16:17]")
        A("s_mov_b32 s70, 0")
        g.lab(l)
        for i, o in enumerate(offs):
            if -4096 <= o < 4096: A(f"global_load_dwordx4 {vr(PG+4*i,4)}, v39, s[42:43] offset:{o} sc1")
            else:
                A(f"v_add_u32 v3, {o}, v39")
                A(f"global_load_dwordx4 {vr(PG+4*i,4)}, v3, s[42:43] sc1")
        A("s_waitcnt vmcnt(0)")
        A("s_mov_b64 vcc, 0")
        for i in range(2 * n):
            A(f"v_cmp_ne_u32 s[68:69], s{ST}, v{PG+1+2*i}")
            A("s_or_b64 vcc, vcc, s[68:69]")
        spin_tail(g, l, e, 8)
    adr = [15, 4, 0, 36]
    def ap_addrs():
        for p in range(1, 4): A(f"v_add_u32 v{adr[p]}, {16384*p}, v15")
    def ap_load(i): A(f"global_load_dwordx4 {vr(VA+4*i,4)}, v{adr[i>>1]}, s[42:43] offset:{-4096 if i % 2 == 0 else 0} sc1")

    g.T = TB_
    g.lab("L_r_mod")
    A("global_load_dwordx2 v[14:15], v37, s[34:35]")
    srd(g, 44, 36, 512*6144)
    def mod_tile(first):
        A("s_lshl_b32 s48, s61, 7")
        A("s_lshl_b32 s58, s61, 9")
        A(f"s_add_u32 s58, s58, {WS_MA if first else WS_MOD}")
        dma_tile64(g, 6144, WFL, 0 if first else opts.get("PB", 6))
        if first:
            go(1)
            table()
            tag()
            A("s_waitcnt vmcnt(16)")
            mod_act()
        line_out_addr(13)
        if first:
            A("v_bfe_u32 v3, v1, 1, 3")
            A("v_lshl_add_u32 v13, v3, 13, v13")
        act_addr(g, 14, TB_.ACT, ACT_BS)
        tr64_addr(g)
        A("s_waitcnt vmcnt(0) lgkmcnt(0)")
        g.stamp(1 if first else 4)
        hsync(g, 9, 0 if first else 4)
        gemv_fused(g, 14, 8)
        pack_tagged()
        if not first:
            for x in EX8: A(x)
        A("global_store_dwordx4 v13, v[8:11], s[42:43] sc1")
        A("s_mov_b64 exec, -1")
        g.stamp(3 if first else 5)
        hsync(g, 9)
    def mod_act():
        unpack4(g, 16, 14)
        silu4(g, 16, 20)
        A("v_cvt_pk_bf16_f32 v14, v16, v17")
        A("v_cvt_pk_bf16_f32 v15, v18, v19")
        A(f"ds_write_b64 v12, v[14:15] offset:{TB_.ACT}")
    A("s_cmp_ge_u32 s60, 2"); A("s_cbranch_scc1 L_mod2")
    A("s_lshl1_add_u32 s61, s8, s60")
    mod_tile(True)
    A("s_branch L_mod3")
    g.lab("L_mod2")
    table()
    tag()
    A("s_waitcnt vmcnt(0)")
    mod_act()
    g.lab("L_mod3")
    EF = opts.get("ef", 0)
    def qfirst(bit=2):
        if WDL & bit: wait_cnt(g, f"ds_read_b32 v8, v38 offset:{L_ML+4}", 8, 1, 8)
        else: wait_cnt(g, f"ds_read_b32 v8, v38 offset:{L_CNA}", 8, 4 * opts.get("bh", 2), 4)
    wait_cnt(g, f"ds_read_b32 v8, v38 offset:{L_GO}", 8, 4, 4)
    A("s_and_b32 s61, s14, 0xff")
    A("s_cmp_ge_u32 s61, 48"); A("s_cbranch_scc1 L_r_f1")
    qfirst(4)
    A("s_and_b32 s61, s14, 0xff")
    g.lab("L_mod4")
    A("s_cmp_ge_u32 s61, 48"); A("s_cbranch_scc1 L_r_f1")
    mod_tile(False)
    A("s_lshr_b32 s61, s14, 24")
    A("s_or_b32 s14, s14, 0xff000000")
    A("s_branch L_mod4")

    g.lab("L_r_f1")
    A("s_bfe_u32 s61, s14, 0x80008")
    A("s_cmp_ge_u32 s61, 43"); A("s_cbranch_scc1 L_fin")
    A("s_lshl_b32 s48, s61, 6")
    A("s_lshl_b32 s58, s61, 7")
    A(f"s_add_u32 s58, s58, {WS_FP}")
    A("s_cmp_lt_u32 s5, 2")
    A("s_cselect_b32 s44, s28, s30")
    A("s_cselect_b32 s45, s29, s31")
    A(f"s_mov_b32 s46, {512*2752}")
    for h in range(2):
        A("s_and_b32 s54, s61, 1" if h == 0 else "s_andn2_b32 s54, 1, s61")
        A("v_lshrrev_b32 v2, 2, v1")
        A("v_mul_u32_u24 v2, 5504, v2")
        A("s_and_b32 s49, s5, 2")
        A("s_or_b32 s49, s49, s54")
        A("v_xor_b32 v3, s49, v1")
        A("v_and_b32 v3, 3, v3")
        A("v_lshl_add_u32 v2, v3, 4, v2")
        A("s_and_b32 s55, s5, 1")
        A(f"s_mul_i32 s49, s55, {256*2752}"); A("s_add_u32 s49, s49, s48")
        A("s_mul_i32 s50, s54, 2752"); A("s_add_u32 s49, s49, s50")
        A("s_lshr_b32 s50, s5, 1"); A("s_lshl_b32 s50, s50, 15")
        A("s_lshl_b32 s54, s54, 14"); A("s_add_u32 s50, s50, s54")
        A("s_lshl_b32 s55, s55, 13"); A("s_add_u32 s50, s50, s55")
        A(f"s_add_u32 s50, s50, {TB_.WT}")
        if opts.get("contig"):
            A("v_lshlrev_b32 v2, 4, v1")
            A("s_and_b32 s49, s5, 1"); A("s_lshl1_add_u32 s49, s61, s49"); A("s_lshl_b32 s49, s49, 14"); A(f"s_add_u32 s49, s49, {8192*h}")
            if h == 0: qfirst()
            dma_loop(g, 8, 1024, WFL, opts.get("P1", 4))
        elif h == 0:
            if EF: dma_loop(g, EF, 32*2752, "", 0)
            qfirst()
            if EF < 8: dma_loop(g, 8 - EF, 32*2752, "", opts.get("P1", 4))
        else: dma_loop(g, 8, 32*2752, WFL, opts.get("P1", 4))
    A("v_lshlrev_b32 v15, 4, v0")
    A(f"v_add_u32 v39, {WS_MOD+3*4096}, v15")
    A(f"s_and_b32 s59, s2, {AREP-1}"); A("s_lshl_b32 s59, s59, 16"); A(f"s_add_u32 s59, s59, {WS_AP+4096}")
    A("v_add_u32 v15, s59, v15")
    A("v_lshrrev_b32 v5, 2, v0")
    A("v_lshlrev_b32 v5, 3, v5")
    A(f"v_add_u32 v5, {TB_.RED}, v5")
    A("v_lshlrev_b32 v7, 3, v1")
    A(f"v_add_u32 v7, {TB_.RED}, v7")
    A("v_and_b32 v14, 7, v1")
    A(f"v_mul_u32_u24 v14, {ACT_BS}, v14")
    A("v_lshrrev_b32 v3, 4, v1")
    A("v_lshl_add_u32 v14, v3, 4, v14")
    A("v_bfe_u32 v6, v1, 2, 2")
    A("v_lshl_add_u32 v6, v3, 3, v6")
    A(f"v_mul_u32_u24 v6, {W2S}, v6")
    A("v_and_b32 v8, 3, v1")
    A("v_lshl_add_u32 v6, v8, 3, v6")
    A("s_lshl_b32 s49, s5, 8"); A(f"s_add_u32 s49, s49, {TB_.WT}")
    A("v_add_u32 v6, s49, v6")
    A("v_lshlrev_b32 v10, 3, v0")
    A(f"v_add_u32 v10, {L_HZ}, v10")
    A("v_mov_b32 v8, 0"); A("v_mov_b32 v9, 0")
    A("ds_write_b64 v10, v[8:9]")
    def f1_addrs():
        A("v_and_b32 v39, 1, v1")
        A("v_lshlrev_b32 v39, 6, v39")
        A(f"v_add_u32 v39, {L_HH}, v39")
        A("v_lshrrev_b32 v3, 4, v1")
        A("v_lshl_add_u32 v37, v3, 4, v39")
        A("v_bfe_u32 v3, v1, 1, 3")
        A("v_lshlrev_b32 v3, 7, v3")
        A("v_sub_u32 v37, v37, v3")
        A("v_bfe_u32 v3, v1, 4, 1")
        A("v_lshl_add_u32 v39, v3, 3, v39")
        A("v_lshrrev_b32 v3, 5, v1")
        A("v_lshl_add_u32 v39, v3, 2, v39")
        A("s_lshl_b32 s49, s5, 4")
        A("v_add_u32 v39, s49, v39")
    line_out_addr(13, 6, 17)
    A("v_bfe_u32 v3, v1, 1, 3")
    A("v_lshl_add_u32 v13, v3, 14, v13")
    A("v_lshrrev_b32 v2, 3, v1")
    A("v_lshlrev_b32 v2, 6, v2")
    A("v_bfe_u32 v3, v1, 2, 1")
    A("v_lshl_add_u32 v2, v3, 14, v2")
    A("v_and_b32 v8, 2, v1")
    A("v_or_b32 v3, v3, v8")
    A("v_xor_b32 v3, s5, v3")
    A("v_lshl_add_u32 v2, v3, 4, v2")
    A("v_lshl_add_u32 v2, v8, 14, v2")
    A("v_and_b32 v3, 1, v1")
    A("v_lshl_add_u32 v2, v3, 3, v2")
    A(f"v_add_u32 v2, {TB_.WT}, v2")
    A("s_waitcnt vmcnt(0)")
    hsync(g, 9, 4)
    tr_reads(g, 16, 1024, 512)
    hsync(g, 9)
    srd(g, 44, 32, 1376*1024)
    A("v_lshlrev_b32 v2, 4, v1")
    A("s_lshl2_add_u32 s49, s61, s5"); A("s_lshl_b32 s49, s49, 13")
    A(f"s_mul_i32 s50, s5, {8*W2S}")
    A(f"s_add_u32 s50, s50, {TB_.WT}")
    dma_loop(g, 8, 1024, WFL, opts.get("P2", 4), W2S)
    tag_bytes()
    g.stamp(6)
    if opts.get("notail"): A("s_branch L_fin")
    ap_addrs()
    pre_gather([-4096, 0, 4096])
    f1_addrs()
    unpack4(g, 16, 8)
    unpack4(g, 20, PG, 2)
    unpack4(g, 28, PG+8, 2)
    for i in range(4): A(f"v_add_f32 v{28+i}, 1.0, v{28+i}")
    A("v_cvt_pk_bf16_f32 v8, v28, v29"); A("v_cvt_pk_bf16_f32 v9, v30, v31")
    A(f"v_mov_b32 v{PG+5}, v{PG+6}")
    A(f"ds_write_b64 v12, v[8:9] offset:{TB_.ACT+2*ACT_BS}")
    A(f"ds_write_b64 v12, {vr(PG+4,2)} offset:{TB_.ACT+4*ACT_BS}")
    for i in range(4): rnd(g, 28+i)
    for i in range(4): A(f"v_mul_f32 v{24+i}, v{20+i}, v{28+i}")
    for i in range(4): A(f"v_mul_f32 v{28+i}, v{16+i}, v{28+i}")
    A("s_waitcnt lgkmcnt(0)")
    A("s_waitcnt vmcnt(0)")
    EARLY = opts.get("aearly", 0)
    wait_cnt(g, f"ds_read_b32 v8, v38 offset:{L_CNA if EARLY else L_GO}", 8, opts.get("acn", 16) if EARLY else 8, 2)
    if opts.get("adel", 0): A(f"s_sleep {opts['adel']}")
    g.stamp(9)
    S = VA + 32
    A("s_mov_b32 s70, 0")
    A("s_movk_i32 s71, 0xff")
    A("s_mov_b32 s63, s71")
    if EARLY: A("s_bitset0_b32 s63, s8")
    A("s_branch L_f1_l")
    g.lab("L_f1_p")
    if opts.get("agap", 0): A(f"s_sleep {opts['agap']}")
    A("s_add_u32 s70, s70, 1")
    A(f"s_cmp_ge_u32 s70, {SPIN_MAX}")
    A("s_cbranch_scc1 L_f1_ok")
    A("s_mov_b32 s63, s71")
    g.lab("L_f1_l")
    for i in range(8):
        l = g.uniq("fl")
        A(f"s_bitcmp1_b32 s63, {i}"); A(f"s_cbranch_scc0 {l}")
        ap_load(i)
        g.lab(l)
    A("s_waitcnt vmcnt(0)")
    for i in range(8):
        l = g.uniq("fc")
        A(f"s_bitcmp1_b32 s63, {i}"); A(f"s_cbranch_scc0 {l}")
        B_ = VA + 4 * i
        for k in range(4): A(f"v_xor_b32 v{B_+k}, s{TB+k}, v{B_+k}")
        A(f"v_or3_b32 v8, v{B_}, v{B_+1}, v{B_+2}")
        A(f"v_or_b32 v8, v8, v{B_+3}")
        A("v_cmp_ne_u32_sdwa vcc, v8, v38 src0_sel:BYTE_0 src1_sel:DWORD")
        A("s_cmp_lg_u64 vcc, 0"); A(f"s_cbranch_scc1 {l}")
        A(f"s_bitset0_b32 s71, {i}")
        g.lab(l)
    A("s_cmp_lg_u32 s71, 0")
    A("s_cbranch_scc1 L_f1_p")
    g.lab("L_f1_ok")
    sum8p(VA, S)
    g.stamp(7)
    for h in range(2): A(f"v_pk_fma_f32 {vr(8+2*h,2)}, {vr(S+2*h,2)}, {vr(24+2*h,2)}, {vr(28+2*h,2)}")
    A("v_cvt_pk_bf16_f32 v8, v8, v9")
    A("v_cvt_pk_bf16_f32 v9, v10, v11")
    A(f"ds_write_b64 v12, v[8:9] offset:{TB_.ACT}")
    for h in range(2): A(f"v_pk_fma_f32 {vr(16+2*h,2)}, {vr(S+2*h,2)}, {vr(20+2*h,2)}, {vr(16+2*h,2)}")
    x = 16
    dpp = lambda r, mod: f"v_add_f32_dpp v{r}, v{r}, v{r} {mod} row_mask:0xf bank_mask:0xf"
    for t in (f"v_add_f32 v24, v{x}, v{x+1}", f"v_mul_f32 v25, v{x}, v{x}", f"v_add_f32 v26, v{x+2}, v{x+3}", f"v_mul_f32 v27, v{x+2}, v{x+2}",
              f"v_fmac_f32 v25, v{x+1}, v{x+1}", f"v_fmac_f32 v27, v{x+3}, v{x+3}", "v_pk_add_f32 v[24:25], v[24:25], v[26:27]", "s_nop 1",
              dpp(24, "quad_perm:[1,0,3,2]"), dpp(25, "quad_perm:[1,0,3,2]"), "s_nop 0",
              dpp(24, "quad_perm:[2,3,0,1]"), dpp(25, "quad_perm:[2,3,0,1]")): A(t)
    A("ds_write_b64 v5, v[24:25]")
    hsync(g, 10, 0, [f"ds_read_b128 {vr(S+4*m,4)}, v14 offset:{TB_.ACT+64*m}" for m in range(min(NSPEC, 4))])
    DF = 32
    q = []
    def rd(m): A(f"ds_read_b128 {vr(S+4*(m%8),4)}, v14 offset:{TB_.ACT+64*m}"); q.append(("r", m))
    def need(op):
        i = q.index(op); A(f"s_waitcnt lgkmcnt({len(q)-1-i})"); del q[:i+1]
    def w2rd(c):
        for h in range(2): A(f"ds_read_b64_tr_b16 {vr(VW+4*c+2*h,2)}, v6 offset:{32*c+4*h*W2S}"); q.append(("w", c, h))
    for m in range(4):
        if m < NSPEC: q.append(("r", m))
        else: rd(m)
    A("ds_read_b64 v[20:21], v7"); q.append(("s",))
    for m in range(4, 8): rd(m)
    fill = {4: [dpp(20, "quad_perm:[2,3,0,1]"), dpp(21, "quad_perm:[2,3,0,1]")],
            5: [dpp(20, "row_ror:4"), dpp(21, "row_ror:4")],
            6: [dpp(20, "row_ror:8"), dpp(21, "row_ror:8")],
            7: ["v_mov_b32 v22, v20", "v_mov_b32 v23, v21"],
            8: ["v_permlane16_swap_b32 v22, v20", "v_permlane16_swap_b32 v23, v21"],
            9: ["v_pk_add_f32 v[20:21], v[20:21], v[22:23]", "v_mov_b32 v22, v20", "v_mov_b32 v23, v21"],
            10: ["v_permlane32_swap_b32 v22, v20", "v_permlane32_swap_b32 v23, v21"],
            11: ["v_pk_add_f32 v[20:21], v[20:21], v[22:23]", f"v_mul_f32 v20, 0x{f2u(-1/512):08x}, v20"],
            12: [f"v_mul_f32 v21, 0x{f2u(1/512):08x}, v21", "v_fma_f32 v21, -v20, v20, v21"],
            13: ["v_max_f32 v21, 0, v21", f"v_add_f32 v21, 0x{EPS:08x}, v21"],
            14: ["v_rsq_f32 v21, v21"]}
    for m in range(16):
        if ("r", m) in q: need(("r", m))
        else: A("s_nop 0")
        c = "0" if m == 0 else vr(DF, 4)
        A(f"v_mfma_f32_16x16x32_bf16 {vr(DF,4)}, {vr(VW+4*m,4)}, {vr(S+4*(m%8),4)}, {c}")
        if 1 <= m <= 8: rd(7 + m)
        for t in fill.get(m, []): A(t)
    for c in range(4): w2rd(c)
    for i in range(4): A(f"v_fmac_f32_dpp v{DF+i}, v{DF+i}, v20 row_shl:2 row_mask:0xf bank_mask:0x1")
    for i in range(4): A(f"v_mul_f32 v{8+i}, v{DF+i}, v21")
    for i in range(4): A(f"v_add_f32_dpp v{8+i}, v{DF+i}, v{8+i} row_shl:4 row_mask:0xf bank_mask:0xf")
    A("s_waitcnt lgkmcnt(4)")
    for c in range(4, 8): w2rd(c)
    A("v_permlane32_swap_b32 v8, v10")
    A("v_permlane32_swap_b32 v9, v11")
    for i in range(2): A(f"v_mul_f32 v{20+i}, 0x{LOG2E ^ 0x80000000:08x}, v{8+i}")
    for i in range(2): A(f"v_exp_f32 v{20+i}, v{20+i}")
    for i in range(2): A(f"v_mul_f32 v{8+i}, v{8+i}, v{10+i}")
    for i in range(2): A(f"v_add_f32 v{20+i}, 1.0, v{20+i}")
    for i in range(2): A(f"v_rcp_f32 v{20+i}, v{20+i}")
    for x in EX8: A(x)
    for i in range(2): A(f"v_mul_f32 v{8+i}, v{8+i}, v{20+i}")
    A("v_cvt_pk_bf16_f32 v8, v8, v9")
    A("ds_write_b32 v39, v8")
    A("s_mov_b64 exec, -1")
    rds = [f"ds_read_b128 {vr(S+4*c,4)}, v37 offset:{128*c}" for c in range(8)]
    A("s_waitcnt lgkmcnt(4)")
    hsync(g, 10, 0, rds[:NSPEC])
    for r in rds[NSPEC:]: A(r)
    A("v_mov_b32 v3, 0xff")
    for c in range(8):
        A(f"s_waitcnt lgkmcnt({7-c})")
        A(f"v_mfma_f32_16x16x32_bf16 v[8:11], {vr(VW+4*c,4)}, {vr(S+4*c,4)}, {'0' if c == 0 else 'v[8:11]'}")
    A("s_nop 7")
    for i in range(4): A(f"v_bfi_b32 v{8+i}, v3, s{TB+i}, v{8+i}")
    A("global_store_dwordx4 v13, v[8:11], s[42:43] sc1")
    g.stamp(2)
    A("s_branch L_fin")

    g.lab("L_r_f2")
    if opts.get("notail"): A("s_branch L_fin")
    A("v_bfe_u32 v12, v1, 2, 1")
    A("v_and_b32 v14, 3, v1")
    A("s_lshl_b32 s49, s61, 5")
    A("v_lshl_add_u32 v3, v14, 3, s49")
    A("v_lshl_add_u32 v37, v12, 10, v3")
    A("v_and_b32 v15, 7, v1")
    A("s_lshl_b32 s49, s61, 7")
    A("v_lshl_add_u32 v15, v15, 4, s49")
    A(f"v_add_u32 v39, {WS_MOD+3*4096}, v15")
    A("v_bfe_u32 v3, v1, 3, 1")
    A("v_lshl_add_u32 v15, v3, 12, v15")
    A("v_lshrrev_b32 v3, 4, v1")
    A("v_lshl_add_u32 v15, v3, 14, v15")
    A(f"s_and_b32 s59, s2, {AREP-1}"); A("s_lshl_b32 s59, s59, 16"); A(f"s_add_u32 s59, s59, {WS_AP}")
    A("v_add_u32 v15, s59, v15")
    A("s_lshl_b32 s49, s61, 14"); A(f"s_add_u32 s49, s49, {WS_FP+2048}")
    A("v_lshl_add_u32 v36, v1, 4, s49")

    A("global_load_dword v11, v37, s[38:39]")
    if PT & 4:
        A("s_lshl_b32 s49, s61, 14"); A(f"s_add_u32 s49, s49, {WS_FP}")
        A("v_min_u32 v10, 42, v1"); A("v_lshl_add_u32 v10, v10, 7, s49")
        A("global_load_dword v11, v10, s[42:43] sc1")
        A("s_lshl_b32 s49, s61, 7"); A(f"s_add_u32 s49, s49, {WS_DN}")
        A("v_mov_b32 v10, s49")
        A("global_load_dword v11, v10, s[42:43] sc1")
    pre_gather([-4096, 8192])
    unpack4(g, 16, 8)
    unpack4(g, 20, PG, 2)
    unpack4(g, 24, PG+4, 2)
    wait_cnt(g, f"ds_read_b32 v8, v38 offset:{L_GO}", 8, 8, 2)
    if opts.get("rdel", 0): A(f"s_sleep {opts['rdel']}")
    g.stamp(9)
    def src_sum(r):
        A("s_nop 1")
        for i in range(4): A(f"v_add_f32_dpp v{r+i}, v{r+i}, v{r+i} row_ror:8 row_mask:0xf bank_mask:0xf")
        for sw in ("v_permlane16_swap_b32", "v_permlane32_swap_b32"):
            for i in range(4): A(f"v_mov_b32 v{r+4+i}, v{r+i}")
            for i in range(4): A(f"{sw} v{r+4+i}, v{r+i}")
            for i in range(4): A(f"v_add_f32 v{r+i}, v{r+i}, v{r+4+i}")
    A("s_mov_b32 s70, 0")
    g.lab("L_f2_a")
    A(f"global_load_dwordx4 {vr(S,4)}, v15, s[42:43] sc1")
    A("s_waitcnt vmcnt(0)")
    for k in range(4): A(f"v_xor_b32 v{S+k}, s{TB+k}, v{S+k}")
    A(f"v_or3_b32 v3, v{S}, v{S+1}, v{S+2}")
    A(f"v_or_b32 v3, v3, v{S+3}")
    A("v_lshlrev_b32 v3, 24, v3")
    A("v_cmp_ne_u32 vcc, 0, v3")
    spin_tail(g, "L_f2_a", "L_f2_ad", 4)
    A("s_cmp_lg_u32 s61, 0")
    A("s_cbranch_scc1 L_f2_e")
    A(f"v_mov_b32 v10, s{ST}")
    A("s_mov_b64 exec, 1")
    A(f"global_store_dword v38, v10, s[42:43] offset:{WS_E} sc1")
    A("s_mov_b64 exec, -1")
    g.lab("L_f2_e")
    src_sum(S)
    x1_from(S)
    if opts.get("fdel", 0): A(f"s_sleep {opts['fdel']}")
    for i in range(4): A(f"v_mov_b32 v{VA+32+20+i}, s{TB+i}")
    def f2_fin():
        for p in range(3):
            for h in range(2): A(f"v_pk_add_f32 {vr(VA+8*p+2*h,2)}, {vr(VA+8*p+2*h,2)}, {vr(VA+8*p+4+2*h,2)}")
        for p in (1, 2):
            for h in range(2): A(f"v_pk_add_f32 {vr(VA+2*h,2)}, {vr(VA+2*h,2)}, {vr(VA+8*p+2*h,2)}")
    gather(6, lambda i, r: A(f"global_load_dwordx4 {vr(r,4)}, v36, s[42:43] offset:{1024*i-2048} sc1"), VA+32, VA, "L_f2_p",
           opts.get("fpipe", 1), opts.get("fgap", 0), f2_fin, 20, [-1]*5 + ["0xffffff"])
    g.stamp(7)
    src_sum(VA)
    for i in range(4): rnd(g, VA+i)
    for i in range(4): A(f"v_mul_f32 v{VA+i}, v{VA+i}, v{24+i}")
    for i in range(4): rnd(g, VA+i)
    for i in range(4): A(f"v_add_f32 v{8+i}, v{VA+i}, v{16+i}")
    A("v_cvt_pk_bf16_f32 v8, v8, v9")
    A("v_cvt_pk_bf16_f32 v9, v10, v11")
    A("s_mov_b64 exec, 0xff")
    A("global_store_dwordx2 v37, v[8:9], s[38:39]" + ("" if opts.get("noosc") else " sc1"))
    A("s_mov_b64 exec, 1")
    A(f"v_mov_b32 v10, s{ST}")
    A("s_lshl_b32 s49, s61, 7"); A(f"s_add_u32 s49, s49, {WS_DN}")
    A("v_mov_b32 v11, s49")
    if not opts.get("nodn"): A("global_store_dword v11, v10, s[42:43] sc1")
    g.stamp(2)

    g.lab("L_fin")
    if opts.get("stamps"):
        A("s_waitcnt vmcnt(0)")
        g.stamp(8)
        dump_all(g, [SLOC])
    g.lab("L_end")
    A("s_endpgm")
    g.L.append(".p2align 7")
    g.lab("L_table")
    J = jobs()
    for j in range(8):
        A(".long " + ", ".join(f"0x{J[x, j][0] | J[x, j][1] << 8 | J[x, j][2] << 16 | J[x, j][3] << 24:08x}" for x in range(8)))
    g.lab("L_touch")
    odd = [1, 3, 5, 7]; evn = [0, 2, 4, 6]
    ch = [(0, t, c) for c in odd + evn for t in (0, 1)] + [(1, t, c) for c in evn + odd for t in (0, 1)] + [(1, 3, c) for c in odd + evn]
    ch += [(1, t, c) for c in odd for t in (2, 4, 5, 6, 7)] + [(1, t, c) for c in evn for t in (2, 4, 5, 6, 7)]
    ch = ch[:opts.get("nch", 60)]
    slots = [idx for idx in range(32) if idx & 3 != 3]
    TT = {sl: 0x80808080 for sl in range(32)}
    for n, (mx, t, c) in enumerate(ch):
        k, sl = divmod(n, len(slots))
        if k < NT: TT[slots[sl]] = TT[slots[sl]] & ~(0xff << 8*k) | (c | t << 3 | mx << 6) << 8*k
    for i in range(0, 32, 8):
        A(".long " + ", ".join(f"0x{TT[i+a]:08x}" for a in range(8)))
    g.L.append(f'''.section .rodata,"a"
.p2align 6
.amdhsa_kernel {KNAME}
  .amdhsa_next_free_vgpr 168
  .amdhsa_next_free_sgpr 102
  .amdhsa_accum_offset 168
  .amdhsa_group_segment_fixed_size 0
  .amdhsa_kernarg_size 112
  .amdhsa_user_sgpr_count 2
  .amdhsa_user_sgpr_kernarg_segment_ptr 1
  .amdhsa_system_sgpr_workgroup_id_x 1
.end_amdhsa_kernel''')
    opts["_jobs"] = J
    return "\n".join(g.L) + "\n"

if __name__ == "__main__":
    import os
    here = os.path.dirname(os.path.abspath(__file__))
    opts = {"ref": os.path.join(here, "..", KNAME[:-7] + ".s.ref")}
    out = sys.argv[1]
    for kv in sys.argv[2:]:
        k, v = kv.split("=")
        try: v = int(v)
        except ValueError:
            try: v = float(v)
            except ValueError: pass
        opts[k] = v
    open(out, "w").write(gen(opts))
```

```python
import sys, struct

KNAME = "adaLN_cond__sliding_block_cached__glu_gated_swiglu__decode_kernel"

def f2u(x): return struct.unpack("<I", struct.pack("<f", x))[0]
LOG2E = f2u(1.4426950408889634)
SCALE = f2u(128 ** -0.5)
EPS = f2u(1e-5)
ZERO_GAP = 92.95

WS_E   = 0x00000
WS_HDR = 0x00400
WS_DN  = 0x07000
WS_MOD = 0x01000
WS_Q   = 0x08000
WS_S1  = 0x10000
WS_S2  = 0x18000
WS_OP  = 0x20000
WS_AP  = 0x200000
WS_FP  = 0x180000
WS_OQ  = 0x80000
WS_MA  = 0xe0000
R2     = WS_OQ - WS_OP
WS_STAMP = 0x100000
ACT_BS = 1056
NS_   = 11
L_QV  = 0
L_ML  = L_QV + 256
L_GO  = L_ML + 8
L_SCN = L_ML + 16
L_MX  = L_ML + 20
L_ECN = L_ML + 24
L_E0  = L_ML + 28
L_RM  = L_ML + 32
L_SN  = L_ML + 48
L_TK  = L_ML + 52
L_CNA = L_ML + 56
L_CNB = L_ML + 60
L_E1  = L_ML + 64
L_S8  = L_ML + 128
L_S4  = L_S8 + 64
L_ST  = L_S4 + 64
L_OP  = L_ST + 512
L_OP1 = L_OP + 512 * NS_
L_VX  = L_OP1 + 512 * NS_
class Team: pass
TA, TB_ = Team(), Team()
TA.CNT, TB_.CNT = L_CNA, L_CNB
TA.ACT = L_OP
TA.RED = TA.ACT + 2 * ACT_BS
TB_.ACT = TA.RED + 64
TB_.RED = TB_.ACT + 6 * ACT_BS
L_HZ  = TB_.RED + 512
L_HH  = L_HZ + 7 * 128
TA.WT = (L_HZ + 2048 + 1023) // 1024 * 1024
TB_.WT = TA.WT + 65536
W2S   = 1024 + 32
LDS_BYTES = TB_.WT + 65536
assert LDS_BYTES <= 163840 and L_VX + 2048 * NS_ <= LDS_BYTES and L_ST + 128 <= L_S4 + 512
assert all(x % 16 == 0 for x in (L_S8, L_ST, L_OP, L_VX, TA.ACT, TA.RED, TB_.ACT, TB_.RED, L_HZ, L_E1))

def jobs():
    J = {}; nf = 0
    for x in range(8):
        six = x in (1, 3, 7)
        mb = sorted(range(16 + 4 * x, 20 + 4 * x), key=lambda t: t % 8 != 3)
        own = {0: mb[0:2], 1: mb[2:4]} if six else {0: mb[0:1], 1: mb[1:2], 2: mb[2:4]}
        for j in range(8):
            m = own.get(j, []) + [255, 255]
            f = 255
            if j >= (2 if six else 3): f = nf; nf += 1
            J[x, j] = (m[0], f, 4 * x + (j & 3) if j in (0, 1, 2, 7) else 255, m[1])
    assert nf == 43 and sorted(v[2] for v in J.values())[:32] == list(range(32))
    return J
SPIN_MAX = 1 << 18
ST, SLOC, SXCC = 74, 75, 76

NOTES = {
    "L_stream": "streaming waves: K (1 KB per load, bounded number in flight), then the V rows of the keys on the row list",
    "L_work": "background work of a streaming wave between two K loads: scores of the rows that have landed, first row list",
    "L_ks": "one K step: background work, then wait until few enough loads are in flight",
    "L_vs": "one V step",
    "L_x1": "second half of the scores, max / sum of this wave, the rows near the top first, more rows for the list",
    "L_snap": "the rows near the top give the preliminary partial output",
    "L_hand": "list used up: with the true row max and sum, add every remaining key whose weight is not exactly zero",
    "L_epi": "all rows consumed: reduce over the lanes, leave the final partial output in LDS",
    "L_pub": "wave 0 of a streaming workgroup: LDS set-up, exchange of the softmax statistics, preliminary output",
    "L_serv": "service workgroup",
    "L_touch": "per streaming workgroup: pieces of the first weights to pull into L2",
    "L_chk": "third streaming workgroup: final partial output; the head's final output against the preliminary one, bit by bit",
    "L_slow": "fallback: everything behind the attention again, from the final outputs, by this wave alone",
    "L_team": "service workgroup: two teams of four waves, MFMA mat-vecs on weight tiles staged by LDS-DMA",
    "L_r_q": "team A: LayerNorm + modulation + 64 columns of h @ wq",
    "L_r_wo": "team A: 512 x 64 tile of wo",
    "L_r_mod": "team B: 64 columns of silu(c) @ w_mod (shift / scale of the first block first)",
    "L_r_f1": "team B: 32 columns of w1 and w3, SwiGLU, their 32 rows of w2",
    "L_r_f2": "service workgroup, wave 1: 16 output columns: residuals, sum of the down-projection partials; advances the epoch word",
    "L_table": "per service workgroup: modulation tile | gate/up tile << 8 | output tile << 16",
}
class G:
    def __init__(s, opts):
        s.L = []; s.o = opts; s.n = 0; s.T = None
    def A(s, t): s.L.append("  " + t)
    def lab(s, t):
        if t in NOTES: s.L.append("; ---- " + NOTES[t])
        s.L.append(t + ":")
    def C(s, t): s.L.append("; ---- " + t)
    def uniq(s, p): s.n += 1; return f"L_{p}_{s.n}"
    def stamp(s, idx, lvl=1):
        m = s.o.get("stamps", 0)
        if m == 3 and lvl != 3 and idx not in (6,): return
        if m and (m == lvl or (idx in (0, 6, 8) and lvl == 1)):
            s.A(f"s_memrealtime s[{80+2*idx}:{81+2*idx}]")

def vr(a, n): return f"v[{a}:{a+n-1}]"
def rnd(g, d, s=None): g.A(f"v_cvt_pk_bf16_f32 v{d}, 0, v{s if s is not None else d}")

def spin_tail(g, l, e, sleep, mult=1):
    A = g.A
    A("s_cmp_eq_u64 vcc, 0")
    A(f"s_cbranch_scc1 {e}")
    if sleep: A(f"s_sleep {sleep}")
    A("s_add_u32 s70, s70, 1")
    A(f"s_cmp_lt_u32 s70, {SPIN_MAX*mult}")
    A(f"s_cbranch_scc1 {l}")
    g.lab(e)

def chk_sentinel(g, regs, tmp):
    A = g.A
    rs = list(regs)
    if len(rs) == 1:
        A(f"v_cmp_eq_u32 vcc, -1, v{rs[0]}")
        return
    if len(rs) == 2:
        A(f"v_max_u32 v{tmp}, v{rs[0]}, v{rs[1]}"); rs = []
    else:
        A(f"v_max3_u32 v{tmp}, v{rs[0]}, v{rs[1]}, v{rs[2]}"); rs = rs[3:]
    while len(rs) >= 2:
        A(f"v_max3_u32 v{tmp}, v{tmp}, v{rs[0]}, v{rs[1]}"); rs = rs[2:]
    if rs: A(f"v_max_u32 v{tmp}, v{tmp}, v{rs[0]}")
    A(f"v_cmp_eq_u32 vcc, -1, v{tmp}")

def poll_lds(g, loads, regs, tmp, sleep):
    A = g.A
    l = g.uniq("pl"); e = g.uniq("pld")
    A("s_mov_b32 s70, 0")
    g.lab(l)
    for x in loads: A(x)
    A("s_waitcnt lgkmcnt(0)")
    chk_sentinel(g, regs, tmp)
    spin_tail(g, l, e, sleep, 4)

def wait_cnt(g, load, reg, target, sleep, mask=None):
    A = g.A
    l = g.uniq("sn"); e = g.uniq("snd")
    A("s_mov_b32 s70, 0")
    g.lab(l)
    A(load)
    A("s_waitcnt lgkmcnt(0)")
    if mask: A(f"v_and_b32 v{reg}, 0x{mask:x}, v{reg}")
    A(f"v_cmp_gt_u32 vcc, 0x{target:x}, v{reg}")
    spin_tail(g, l, e, sleep, 8)

def pub_local(g, ins):
    A = g.A
    l = g.uniq("pf"); e = g.uniq("pe")
    A(f"s_cmp_eq_u32 s{SLOC}, 1")
    A(f"s_cbranch_scc0 {l}")
    A(ins)
    A(f"s_branch {e}")
    g.lab(l)
    A(ins + " sc1")
    g.lab(e)

def hs_signal(g, vt2):
    A = g.A
    A(f"v_mov_b32 v{vt2}, 1")
    A("s_mov_b64 exec, 1")
    A(f"ds_add_u32 v38, v{vt2} offset:{g.T.CNT}")
    A("s_mov_b64 exec, -1")

STG = 77
def hsync(g, vt, sleep=0, reads=()):
    A = g.A
    l = g.uniq("hy"); e = g.uniq("hyd")
    A(f"s_add_u32 s{STG}, s{STG}, 4")
    hs_signal(g, vt)
    A("s_mov_b32 s70, 0")
    g.lab(l)
    A(f"ds_read_b32 v{vt}, v38 offset:{g.T.CNT}")
    for r in reads: A(r)
    A(f"s_waitcnt lgkmcnt({len(reads)})")
    A(f"v_cmp_gt_u32 vcc, s{STG}, v{vt}")
    A("s_cmp_eq_u64 vcc, 0")
    A(f"s_cbranch_scc1 {e}")
    if reads: A("s_waitcnt lgkmcnt(0)")
    if sleep: A(f"s_sleep {sleep}")
    A("s_add_u32 s70, s70, 1")
    A(f"s_cmp_lt_u32 s70, {SPIN_MAX*8}")
    A(f"s_cbranch_scc1 {l}")
    g.lab(e)

OPA = 2 * NS_ + 12
def op_prep(g, R, zero, off, scales=True):
    A = g.A
    SCB = R + 2 * NS_; AD = R + OPA
    if scales:
        for i in range(3): A(f"ds_read_b128 {vr(SCB+4*i,4)}, v{zero} offset:{L_S8+16*i}")
    A(f"v_lshlrev_b32 v{AD+3}, 3, v1")
    A("s_lshl2_add_u32 s68, s6, s7")
    A("s_lshl_b32 s68, s68, 9"); A(f"s_add_u32 s68, s68, {WS_OP+off}")
    A(f"v_add_u32 v{AD}, s68, v{AD+3}")
    A(f"v_and_b32 v{AD+1}, 1, v1")
    A(f"v_lshlrev_b32 v{AD+1}, 4, v{AD+1}")
    A(f"v_lshrrev_b32 v{AD+1}, v{AD+1}, s{ST}")
    A(f"v_lshrrev_b32 v{AD+2}, 8, v{AD+1}")
def op_reads(lds, R): return [f"ds_read_b64 {vr(R+2*i,2)}, v{R+OPA+3} offset:{lds+512*i}" for i in range(NS_)]
def op_sum(g, R, local):
    A = g.A
    SCB = R + 2 * NS_; AD = R + OPA
    A("s_movk_i32 s69, 0xff")
    def sel(i): return f"op_sel:[0,{i&1},0] op_sel_hi:[1,{i&1},1]"
    for i in range(NS_):
        A(f"s_waitcnt lgkmcnt({NS_-1-i})")
        sp = vr(SCB + (i & ~1), 2); acc = vr(R + 2*(i & 1), 2)
        if i < 2: A(f"v_pk_mul_f32 {acc}, {vr(R+2*i,2)}, {sp} op_sel:[0,{i&1}] op_sel_hi:[1,{i&1}]")
        else: A(f"v_pk_fma_f32 {acc}, {vr(R+2*i,2)}, {sp}, {acc} {sel(i)}")
    A(f"v_pk_add_f32 {vr(R,2)}, {vr(R,2)}, {vr(R+2,2)}")
    A(f"v_bfi_b32 v{R}, s69, v{AD+1}, v{R}")
    A(f"v_bfi_b32 v{R+1}, s69, v{AD+2}, v{R+1}")
    if local: pub_local(g, f"global_store_dwordx2 v{AD}, {vr(R,2)}, s[42:43]")
    else: A(f"global_store_dwordx2 v{AD}, {vr(R,2)}, s[42:43] sc1")
def wait_then(g, off, target, reads, pre):
    A = g.A
    wait_cnt(g, f"ds_read_b32 v8, v38 offset:{off}", 8, pre, 1)
    l = g.uniq("wt"); e = g.uniq("wtd")
    A("s_mov_b32 s70, 0")
    g.lab(l)
    A(f"ds_read_b32 v8, v38 offset:{off}")
    for r in reads: A(r)
    A(f"s_waitcnt lgkmcnt({len(reads)})")
    A(f"v_cmp_gt_u32 vcc, 0x{target:x}, v8")
    A("s_cmp_eq_u64 vcc, 0")
    A(f"s_cbranch_scc1 {e}")
    A("s_waitcnt lgkmcnt(0)")
    A("s_add_u32 s70, s70, 1")
    A(f"s_cmp_lt_u32 s70, {SPIN_MAX*8}")
    A(f"s_cbranch_scc1 {l}")
    g.lab(e)

def dma_loop(g, n, step, flags, pace=0, lstep=1024):
    A = g.A
    l = g.uniq("dma"); e = g.uniq("dmae")
    if isinstance(n, int):
        A(f"s_add_u32 s51, s50, {n*lstep}")
    else:
        A(f"s_add_u32 s51, s50, {n}")
        A("s_cmp_lt_u32 s50, s51")
        A(f"s_cbranch_scc0 {e}")
    g.lab(l)
    A("s_mov_b32 m0, s50")
    A(f"s_add_u32 s50, s50, {lstep}")
    if not (g.o.get("nodma") and pace): A(f"buffer_load_dwordx4 v2, s[44:47], s49 offen {flags} lds")
    A(f"s_add_u32 s49, s49, {step}")
    if pace: A(f"s_waitcnt vmcnt({pace-1})")
    A("s_cmp_lt_u32 s50, s51")
    A(f"s_cbranch_scc1 {l}")
    g.lab(e)

VW, VA = 40, 104

def srd(g, d, base, nbytes):
    A = g.A
    A(f"s_mov_b32 s{d}, s{base}")
    A(f"s_mov_b32 s{d+1}, s{base+1}")
    A(f"s_mov_b32 s{d+2}, {nbytes}")
    A(f"s_mov_b32 s{d+3}, 0x20000")

def dma_tile64(g, stride, flags, pace=0):
    A = g.A
    A("v_lshrrev_b32 v2, 3, v1")
    A("v_and_b32 v3, 6, v2")
    A("v_xor_b32 v3, v3, v1")
    A(f"v_mul_u32_u24 v2, {stride}, v2")
    A("v_and_b32 v3, 7, v3")
    A("v_lshl_add_u32 v2, v3, 4, v2")
    A(f"s_mul_i32 s49, s5, {128*stride}")
    A("s_lshl_b32 s50, s5, 14")
    A("s_add_u32 s49, s49, s48")
    A(f"s_add_u32 s50, s50, {g.T.WT}")
    dma_loop(g, 16, 8*stride, flags, pace)

def tr64_addr(g):
    A = g.A
    A("v_lshrrev_b32 v2, 2, v1")
    A("v_bfe_u32 v3, v1, 1, 1")
    A("s_lshl_b32 s49, s5, 1")
    A("v_or_b32 v3, s49, v3")
    A("v_and_b32 v10, 6, v2")
    A("v_xor_b32 v3, v3, v10")
    A("v_lshlrev_b32 v2, 7, v2")
    A("v_lshl_add_u32 v2, v3, 4, v2")
    A("v_and_b32 v3, 1, v1")
    A("v_lshl_add_u32 v2, v3, 3, v2")
    A(f"v_add_u32 v2, {g.T.WT}, v2")
def tr_reads(g, nk, mstep, hstep):
    A = g.A
    for m in range(nk):
        for h in range(2):
            A(f"ds_read_b64_tr_b16 {vr(VW+4*m+2*h,2)}, v2 offset:{m*mstep+h*hstep}")
        if m >= 5: A("s_waitcnt lgkmcnt(10)")
    A("s_waitcnt lgkmcnt(0)")
def tr_tile64(g):
    tr64_addr(g)
    tr_reads(g, 16, 4096, 2048)
def gemv_fused(g, vaddr, D):
    A = g.A
    def rd(m):
        for h in range(2):
            A(f"ds_read_b64_tr_b16 {vr(VW+4*m+2*h,2)}, v2 offset:{m*4096+h*2048}")
        A(f"ds_read_b128 {vr(VA+4*m,4)}, v{vaddr} offset:{64*m}")
    for m in range(5): rd(m)
    for m in range(16):
        A(f"s_waitcnt lgkmcnt({3*(min(m+5,16)-m-1)})")
        c = "0" if m == 0 else vr(D, 4)
        A(f"v_mfma_f32_16x16x32_bf16 {vr(D,4)}, {vr(VW+4*m,4)}, {vr(VA+4*m,4)}, {c}")
        if m + 5 < 16: rd(m + 5)
    A("s_nop 7")

def batch_reduce2(g, va, vb, ta, tb):
    A = g.A
    A("s_nop 0")
    for m in ("quad_perm:[1,0,3,2]", "quad_perm:[2,3,0,1]", "row_ror:8"):
        A(f"v_add_f32_dpp v{va}, v{va}, v{va} {m} row_mask:0xf bank_mask:0xf")
        A(f"v_add_f32_dpp v{vb}, v{vb}, v{vb} {m} row_mask:0xf bank_mask:0xf")
        A("s_nop 0")
    for sw in ("v_permlane16_swap_b32", "v_permlane32_swap_b32"):
        A(f"v_mov_b32 v{ta}, v{va}")
        A(f"v_mov_b32 v{tb}, v{vb}")
        A("s_nop 0")
        A(f"{sw} v{ta}, v{va}")
        A(f"{sw} v{tb}, v{vb}")
        A(f"v_add_f32 v{va}, v{va}, v{ta}")
        A(f"v_add_f32 v{vb}, v{vb}, v{tb}")

def ln_partial(g, x):
    A = g.A
    A(f"v_add_f32 v8, v{x}, v{x+1}"); A(f"v_mul_f32 v9, v{x}, v{x}")
    A(f"v_add_f32 v10, v{x+2}, v{x+3}"); A(f"v_mul_f32 v11, v{x+2}, v{x+2}")
    A(f"v_fmac_f32 v9, v{x+1}, v{x+1}"); A(f"v_fmac_f32 v11, v{x+3}, v{x+3}")
    A("v_add_f32 v8, v8, v10"); A("v_add_f32 v9, v9, v11")
    batch_reduce2(g, 8, 9, 10, 11)
    A("ds_write_b64 v5, v[8:9]")
def ln_apply(g, x, t):
    A = g.A
    A(f"ds_read_b128 {vr(t,4)}, v6")
    A(f"ds_read_b128 {vr(t+4,4)}, v6 offset:16")
    A("s_waitcnt lgkmcnt(0)")
    A(f"v_pk_add_f32 {vr(t,2)}, {vr(t,2)}, {vr(t+2,2)}")
    A(f"v_pk_add_f32 {vr(t+4,2)}, {vr(t+4,2)}, {vr(t+6,2)}")
    A(f"v_pk_add_f32 {vr(t,2)}, {vr(t,2)}, {vr(t+4,2)}")
    A(f"v_mul_f32 v8, 0x{f2u(1/512):08x}, v{t}")
    A(f"v_mul_f32 v9, 0x{f2u(1/512):08x}, v{t+1}")
    A("v_fma_f32 v9, -v8, v8, v9")
    rnd(g, 8)
    A("v_max_f32 v9, 0, v9")
    rnd(g, 9)
    for i in range(2): A(f"v_sub_f32 v{x+i}, v{x+i}, v8")
    A(f"v_add_f32 v9, 0x{EPS:08x}, v9")
    for i in range(2, 4): A(f"v_sub_f32 v{x+i}, v{x+i}, v8")
    rnd(g, 9)
    rnd(g, x)
    A("v_sqrt_f32 v9, v9")
    rnd(g, x+1)
    rnd(g, 9)
    rnd(g, x+2)
    A("v_rcp_f32 v9, v9")
    rnd(g, x+3)
    for i in range(4): A(f"v_mul_f32 v{x+i}, v{x+i}, v9")
    for i in range(4): rnd(g, x+i)

def act_addr(g, v, base, bstride):
    A = g.A
    A(f"v_and_b32 v{v}, 1, v1")
    A(f"v_mul_u32_u24 v{v}, {bstride}, v{v}")
    A(f"v_lshrrev_b32 v3, 4, v1")
    A(f"v_lshl_add_u32 v{v}, v3, 4, v{v}")
    if base: A(f"v_add_u32 v{v}, {base}, v{v}")

def gemv(g, nk, vaddr, D, ring=16, sync=None, nspec=4):
    A = g.A
    first = min(nk, 12, ring)
    rds = [f"ds_read_b128 {vr(VA+4*m,4)}, v{vaddr} offset:{64*m}" for m in range(first)]
    if sync is not None:
        hsync(g, sync, 0, rds[:nspec]); rds = rds[nspec:]
    for r in rds: A(r)
    issued = first
    for m in range(nk):
        A(f"s_waitcnt lgkmcnt({issued-m-1})")
        c = "0" if m == 0 else vr(D, 4)
        A(f"v_mfma_f32_16x16x32_bf16 {vr(D,4)}, {vr(VW+4*m,4)}, {vr(VA+4*(m%ring),4)}, {c}")
        if issued < nk and (ring >= nk or m >= 1):
            A(f"ds_read_b128 {vr(VA+4*(issued%ring),4)}, v{vaddr} offset:{64*issued}")
            issued += 1
    A("s_nop 7")

def guard(g, r): g.A(f"v_min_u32 v{r}, s72, v{r}")
def unpack2(g, d, s):
    g.A(f"v_lshlrev_b32 v{d}, 16, v{s}")
    g.A(f"v_and_b32 v{d+1}, s73, v{s}")
def unpack4(g, d, s, step=1):
    unpack2(g, d, s); unpack2(g, d+2, s+step)

def silu4(g, x, t):
    A = g.A
    for i in range(4): A(f"v_mul_f32 v{t+i}, 0x{LOG2E ^ 0x80000000:08x}, v{x+i}")
    for i in range(4): A(f"v_exp_f32 v{t+i}, v{t+i}")
    A("s_nop 0")
    for i in range(4): A(f"v_add_f32 v{t+i}, 1.0, v{t+i}")
    for i in range(4): A(f"v_rcp_f32 v{t+i}, v{t+i}")
    A("s_nop 0")
    for i in range(4): A(f"v_mul_f32 v{x+i}, v{x+i}, v{t+i}")

def make_tag(g):
    g.A(f"s_mul_i32 s{ST}, s{ST}, 0x9e3779b1")
    g.A(f"s_add_u32 s{ST}, s{ST}, 0x7f4a7c15")

EX8 = ["s_mov_b32 exec_lo, 0x00030003", "s_mov_b32 exec_hi, 0x00030003"]

def dump_all(g, extra):
    A = g.A
    A("s_mov_b64 exec, -1")
    A("s_mul_i32 s3, s2, 12"); A("s_add_u32 s3, s3, s13"); A("s_lshl_b32 s3, s3, 6")
    A(f"s_add_u32 s3, s3, {WS_STAMP}")
    A("v_lshl_add_u32 v2, v1, 2, s3")
    A("v_mov_b32 v3, 0")
    A("s_waitcnt lgkmcnt(0)")
    for i, x in enumerate([80+2*i for i in range(10)] + list(extra)): A(f"v_writelane_b32 v3, s{x}, {i}")
    A("s_mov_b64 exec, 0xffff")
    A("global_store_dword v2, v3, s[42:43]")

def fallback(g, head_sum, wave_red):
    A = g.A
    W, AC, AV = 40, 72, 88
    X1, GS = 104, 120
    g.lab("L_slow")
    A("s_mov_b32 s47, 0x20000")
    A("s_load_dwordx16 s[16:31], s[0:1], 0")
    A("s_load_dwordx8 s[32:39], s[0:1], 64")
    A("v_and_b32 v2, 31, v1")
    A("v_lshlrev_b32 v2, 7, v2")
    A(f"v_add_u32 v2, {WS_DN}, v2")
    A("s_mov_b32 s70, 0")
    g.lab("L_sl_d")
    A("global_load_dword v3, v2, s[42:43] sc1")
    A("s_waitcnt vmcnt(0) lgkmcnt(0)")
    A(f"v_cmp_ne_u32 vcc, s{ST}, v3")
    spin_tail(g, "L_sl_d", "L_sl_dd", 8)
    A("v_lshlrev_b32 v2, 3, v1")
    A(f"v_add_u32 v2, {WS_OQ}, v2")
    A("v_lshlrev_b32 v0, 2, v1")
    A(f"v_add_u32 v0, {L_VX}, v0")
    A("s_mov_b32 s10, 0")
    g.lab("L_sl_h")
    A("s_mov_b32 s70, 0")
    g.lab("L_sl_hp")
    for i in range(3): A(f"global_load_dwordx2 {vr(W+2*i,2)}, v2, s[42:43] offset:{512*i} sc1")
    A("s_waitcnt vmcnt(0)")
    head_sum(W, W+8)
    spin_tail(g, "L_sl_hp", "L_sl_hd", 8)
    A(f"ds_write_b32 v0, v{W}")
    A("v_add_u32 v2, 2048, v2"); A("v_add_u32 v0, 256, v0")
    A("s_add_u32 s10, s10, 1"); A("s_cmp_lt_u32 s10, 64"); A("s_cbranch_scc1 L_sl_h")
    def call(base, nbytes, stride, nrows, act, bstride, col):
        A(f"s_mov_b32 s44, s{base}"); A(f"s_mov_b32 s45, s{base+1}"); A(f"s_mov_b32 s46, {nbytes}")
        A(f"s_mov_b32 s11, {stride}"); A(f"s_mov_b32 s12, {nrows*stride}")
        A(f"v_mov_b32 v4, {act}"); A(f"v_mov_b32 v5, {act+bstride}")
        A(f"v_lshlrev_b32 v2, 4, v1")
        if col: A(f"v_add_u32 v2, {col}, v2")
        A("s_call_b64 s[62:63], L_gv")
    def modrow(row, d):
        A("v_lshrrev_b32 v2, 1, v1"); A("v_lshlrev_b32 v2, 7, v2")
        A("v_and_b32 v3, 1, v1"); A("v_lshl_add_u32 v2, v3, 5, v2")
        A(f"v_add_u32 v2, {WS_MOD+4096*row}, v2")
        for b in range(2):
            for h in range(2): A(f"global_load_dwordx4 {vr(W+8*b+4*h,4)}, v2, s[42:43] offset:{64*b+16*h} sc1")
        A("s_waitcnt vmcnt(0)")
        for k in range(8): unpack2(g, d+2*k, W+2*k)
    def gated_add(row):
        modrow(row, AV)
        for i in range(16): rnd(g, AC+i)
        for i in range(16): A(f"v_mul_f32 v{AC+i}, v{AC+i}, v{AV+i}")
        for i in range(16): rnd(g, AC+i)
        for i in range(16): A(f"v_add_f32 v{X1+i}, v{X1+i}, v{AC+i}")
        for i in range(16): rnd(g, X1+i)
    def pack(d, s_):
        for k in range(8): A(f"v_cvt_pk_bf16_f32 v{d+k}, v{s_+2*k}, v{s_+2*k+1}")
    call(24, 4096*1024, 1024, 4096, L_VX, 8192, 0)
    A("v_lshlrev_b32 v0, 4, v1")
    for b in range(2): A(f"global_load_dwordx4 {vr(W+4*b,4)}, v0, s[16:17] offset:{1024*b}")
    A("s_waitcnt vmcnt(0)")
    for k in range(8): unpack2(g, X1+2*k, W+k)
    gated_add(2)
    for b in range(2):
        x = X1 + 8*b; y = AC + 8*b
        A(f"v_add_f32 v8, v{x}, v{x+1}")
        for i in range(2, 8): A(f"v_add_f32 v8, v8, v{x+i}")
        wave_red("v_add_f32", 8, 9)
        A(f"v_mul_f32 v8, 0x{f2u(1/512):08x}, v8")
        for i in range(8): A(f"v_sub_f32 v{y+i}, v{x+i}, v8")
        A(f"v_mul_f32 v10, v{y}, v{y}")
        for i in range(1, 8): A(f"v_fmac_f32 v10, v{y+i}, v{y+i}")
        wave_red("v_add_f32", 10, 9)
        A(f"v_mul_f32 v10, 0x{f2u(1/512):08x}, v10")
        rnd(g, 8); rnd(g, 10)
        A(f"v_add_f32 v10, 0x{EPS:08x}, v10")
        rnd(g, 10)
        A("v_sqrt_f32 v10, v10")
        for i in range(8): A(f"v_sub_f32 v{y+i}, v{x+i}, v8")
        rnd(g, 10)
        for i in range(8): rnd(g, y+i)
        A("v_rcp_f32 v10, v10")
        A("s_nop 0")
        for i in range(8): A(f"v_mul_f32 v{y+i}, v{y+i}, v10")
        for i in range(8): rnd(g, y+i)
    modrow(4, AV)
    for i in range(16): A(f"v_add_f32 v{AV+i}, 1.0, v{AV+i}")
    for i in range(16): rnd(g, AV+i)
    for i in range(16): A(f"v_mul_f32 v{AC+i}, v{AC+i}, v{AV+i}")
    for i in range(16): rnd(g, AC+i)
    modrow(3, AV)
    for i in range(16): A(f"v_add_f32 v{AC+i}, v{AC+i}, v{AV+i}")
    pack(W, AC)
    A(f"v_add_u32 v3, {L_VX}, v0")
    for b in range(2): A(f"ds_write_b128 v3, {vr(W+4*b,4)} offset:{1024*b}")
    HB = L_VX + 2048
    for p in range(3):
        call(28, 512*2752, 2752, 512, L_VX, 1024, 1024*p)
        for i in range(16): rnd(g, GS+i, AC+i)
        call(30, 512*2752, 2752, 512, L_VX, 1024, 1024*p)
        for q in range(4): silu4(g, GS+4*q, AV)
        for i in range(16): rnd(g, GS+i)
        for i in range(16): rnd(g, AC+i)
        for i in range(16): A(f"v_mul_f32 v{AC+i}, v{AC+i}, v{GS+i}")
        pack(W, AC)
        A(f"v_add_u32 v3, {HB+1024*p}, v0")
        for b in range(2): A(f"ds_write_b128 v3, {vr(W+4*b,4)} offset:{3072*b}")
    call(32, 1376*1024, 1024, 1376, HB, 3072, 0)
    gated_add(5)
    pack(W, X1)
    for b in range(2): A(f"global_store_dwordx4 v0, {vr(W+4*b,4)}, s[38:39] offset:{1024*b} sc1")
    A("s_endpgm")
    g.lab("L_gv")
    for i in range(16): A(f"v_mov_b32 v{AC+i}, 0")
    A("s_mov_b32 s10, 0")
    g.lab("L_gvl")
    for r in range(8):
        A(f"buffer_load_dwordx4 {vr(W+4*r,4)}, v2, s[44:47], s10 offen")
        A("s_add_u32 s10, s10, s11")
    for b in range(2): A(f"ds_read_b128 {vr(AV+4*b,4)}, v{4+b}")
    A("v_add_u32 v4, 16, v4"); A("v_add_u32 v5, 16, v5")
    A("s_waitcnt lgkmcnt(0)")
    for r in range(8):
        for b in range(2):
            a = AV + 4*b + r//2
            if r % 2 == 0: A(f"v_and_b32 v{8+2*b}, 0xffff, v{a}"); A(f"v_lshlrev_b32 v{9+2*b}, 16, v{a}")
            else: A(f"v_lshrrev_b32 v{8+2*b}, 16, v{a}"); A(f"v_and_b32 v{9+2*b}, s73, v{a}")
        A(f"s_waitcnt vmcnt({7-r})")
        for b in range(2):
            for k in range(8): A(f"v_dot2c_f32_bf16 v{AC+8*b+k}, v{8+2*b+(k&1)}, v{W+4*r+k//2}")
    A("s_cmp_lt_u32 s10, s12"); A("s_cbranch_scc1 L_gvl")
    A("s_nop 1")
    A("s_setpc_b64 s[62:63]")

def stream(g, opts):
    A = g.A
    D0 = opts.get("D0", 4)
    LAG = opts.get("LAG", 5)
    DEL = opts.get("delta", 10)
    THETA = opts.get("theta", 24)
    HCAP, HPOS = 32, 160
    TH, HST, NH, NSP, HTH = 18, 19, 20, 21, 22
    PA = 2
    KF, VF = opts.get("kf", "nt"), opts.get("vf", "nt")
    J0 = opts.get("J0", 15)
    T_, ACC, DB, RW, LIM, BUR, CNT, STA, QA, LVL = 32, 33, 34, 35, 36, 37, 38, 39, 40, 41
    SR, SBI, VE = 78, 79, 59
    VG = opts.get('vg', 20); LG = opts.get('lg', 10)
    LB, JS, DN, FIN, X1D, RET, TK, RET2 = 56, 57, 58, 75, 61, 62, (64, 66), 100
    T, X = 8, 16
    OFF = (24, 26); SET = (28, 30, 32); AC_, AT_, AH_, MK = 8, 12, 4, (34, 35, 36, 0); MW, L16, LRD, EPA = 37, 38, 39, 21
    EV = 23
    RA = 22
    ROFF = 1024
    RB = 40
    def slot(j): return RB + 4 * (j % 32)
    NW, KS, NXT = 76, 77, 57
    g.lab("L_stream")
    BLK = 33 * 1024
    A("s_sub_u32 s9, s13, 1")
    A("s_lshl_b32 s11, s9, 10")
    A(f"s_mul_i32 s4, s7, {11*1024}")
    A("s_lshl_b32 s10, s6, 22")
    A("s_add_u32 s10, s10, s4")
    A("s_add_u32 s10, s10, 0x300000")
    A("v_and_b32 v0, 15, v1")
    A("v_lshl_add_u32 v0, v0, 6, s11")
    A("v_and_b32 v3, 48, v1")
    A("v_add_u32 v0, v3, v0")
    A("s_lshr_b32 s15, s2, 3")
    A(f"s_mul_i32 s12, s15, {BLK}")
    A("s_sub_u32 s46, 0x100000, s4")
    A("s_mov_b32 s47, 0x20000")
    A(f"s_mov_b32 s14, {31*BLK}")
    g.stamp(1, 3)
    A("s_waitcnt lgkmcnt(0)")
    g.stamp(2, 3)
    A("s_add_u32 s44, s18, s10"); A("s_addc_u32 s45, s19, 0")
    def issue(j):
        A(f"buffer_load_dwordx4 {vr(slot(j),4)}, v0, s[44:47], s12 offen {KF}")
        A(f"s_add_u32 s12, s12, {BLK}")
        A("s_cmp_eq_u32 s12, s14")
        A("s_cselect_b32 s12, 0, s12")
    g.stamp(3, 3)
    for j in range(1, D0): issue(j)
    A(f"buffer_load_dwordx4 {vr(slot(0),4)}, v0, s[44:47], s14 offen {KF}")
    g.stamp(4, 3)
    A("s_add_u32 s48, s20, s10"); A("s_addc_u32 s49, s21, 0")
    A("s_mov_b32 s50, s46"); A("s_mov_b32 s51, 0x20000")
    A("s_mov_b32 s52, 0xcccccccc"); A("s_mov_b32 s53, 0xcccccccc")
    A("s_mov_b32 s54, 0xaaaaaaaa"); A("s_mov_b32 s55, 0xaaaaaaaa")
    A(f"v_and_b32 v{L16}, 15, v1")
    A(f"v_lshlrev_b32 v{L16}, 4, v{L16}")
    A("s_lshl_b32 s10, s9, 11")
    A(f"s_add_u32 s10, s10, {L_VX}")
    A("v_lshl_add_u32 v3, v1, 3, s10")
    A("v_mov_b32 v4, 0x7fff0000"); A("v_mov_b32 v5, 0xff800000")
    for n in range(3): A(f"ds_write_b64 v3, v[4:5] offset:{512*n}")
    A("v_lshrrev_b32 v3, 4, v1")
    A(f"v_lshl_add_u32 v{LRD}, v{L16}, 1, s10")
    A(f"v_lshl_add_u32 v{LRD}, v3, 3, v{LRD}")
    A("s_sub_u32 s68, s15, 1")
    A("v_and_b32 v4, 3, v1")
    A("v_lshl_add_u32 v4, v3, 2, v4")
    A("v_bfe_u32 v3, v1, 2, 2")
    A("v_lshl_add_u32 v3, v3, 8, s11")
    A("v_cmp_eq_u32 s[70:71], 0, v4")
    for n in range(2):
        A(f"v_add_u32 v{OFF[n]}, s68, v4")
        if n: A(f"v_add_u32 v{OFF[n]}, 16, v{OFF[n]}")
        A(f"v_subrev_u32 v5, 31, v{OFF[n]}")
        A(f"v_min_u32 v{OFF[n]}, v5, v{OFF[n]}")
        if n == 0: A(f"v_cndmask_b32 v{OFF[n]}, v{OFF[n]}, 31, s[70:71]")
        A(f"v_mul_u32_u24 v{OFF[n]}, {BLK}, v{OFF[n]}")
        A(f"v_add_u32 v{OFF[n]}, v3, v{OFF[n]}")
    A("s_lshl_b32 s11, s9, 9")
    A("s_sub_u32 s11, s11, s10")
    A(f"s_mov_b32 s{T_}, {D0}"); A(f"s_mul_i32 s{ACC}, s9, 0x60000000"); A(f"s_add_u32 s{ACC}, s{ACC}, 0x10000000")
    A(f"s_mov_b64 s[{TK[0]}:{TK[0]+1}], 0"); A(f"s_mov_b64 s[{TK[1]}:{TK[1]+1}], 0")
    A(f"s_mov_b32 s{CNT}, 0"); A(f"s_mov_b32 s{STA}, 2"); A(f"s_mov_b32 s{FIN}, 0"); A(f"s_mov_b32 s{X1D}, 0")
    A("v_and_b32 v3, 1, v1"); A("v_lshlrev_b32 v3, 4, v3"); A("v_mov_b32 v20, 0xffff"); A("v_lshlrev_b32 v3, v3, v20")
    A("v_bfe_u32 v20, v1, 1, 3")
    for d in range(3):
        A(f"v_cmp_eq_u32 vcc, {d}, v20"); A("s_nop 1"); A(f"v_cndmask_b32 v{MK[d]}, 0, v3, vcc")
    A("s_barrier")
    A("s_waitcnt lgkmcnt(0)")
    A(f"s_mov_b32 s{LB}, s10")
    A(f"s_mov_b32 s{LVL}, {LAG}"); A(f"s_mov_b32 s{NXT}, 0"); A(f"s_mov_b32 s{NW}, {LAG*4096}")
    A(f"s_mov_b32 s{DB}, {int(opts.get('d1', 2.75)*4096) + ROFF*LG*16}"); A(f"s_mov_b32 s{KS}, 0")
    A(f"s_mov_b32 s{RW}, {32-D0}"); A(f"s_mov_b32 s{VE}, 0")
    A(f"v_mov_b32 v{RA}, {ROFF + NS_*(32-D0)}"); A(f"v_mov_b32 v{RA+1}, 0"); A(f"v_mov_b32 v{PA}, 0")
    for j in range(D0, 32):
        if j == opts.get("je", 99) and opts.get("dup", 0): A(f"s_sub_u32 s{DB}, s{DB}, {int(opts['dup']*4096)}")
        if j == opts.get("js", 29) and opts.get("dup", 0): A(f"s_add_u32 s{DB}, s{DB}, {int(opts['dup']*4096)}")
        if j == D0:
            g.stamp(5, 3)
            if opts.get("stamps") == 3: A(f"s_waitcnt vmcnt({D0-1})")
            g.stamp(7, 3)
        A(f"s_call_b64 s[{RET}:{RET+1}], {'L_ks' if j >= J0 else 'L_kq'}")
        if j == 8: g.stamp(8, 3)
        if j == 12: g.stamp(9, 3)
        issue(j)
        if opts.get("trace") == 2:
            if j > D0: A(f"v_writelane_b32 v33, s98, {j-1}")
            A("s_memrealtime s[98:99]")
    if opts.get("trace") == 2:
        A("s_waitcnt lgkmcnt(0)"); A("v_writelane_b32 v33, s98, 31")
        A("s_mul_i32 s3, s2, 12"); A("s_add_u32 s3, s3, s13"); A("s_lshl_b32 s3, s3, 8"); A("s_add_u32 s3, s3, 0x400000")
        A("v_lshl_add_u32 v3, v1, 2, s3")
        A("global_store_dword v3, v33, s[42:43]")
    g.stamp(1)
    A("s_mov_b32 s10, 0")
    g.lab("L_kw")
    A(f"s_cmp_ge_u32 s{STA}, 6"); A("s_cbranch_scc1 L_v0")
    A(f"s_call_b64 s[{RET2}:{RET2+1}], L_work")
    A("s_sleep 1")
    A("s_add_u32 s10, s10, 1")
    A(f"s_cmp_lt_u32 s10, {SPIN_MAX}"); A("s_cbranch_scc1 L_kw")
    g.lab("L_v0")
    g.stamp(2)
    A(f"s_mov_b32 s{T_}, 0")
    A(f"v_mov_b32 v{PA}, 8")
    A(f"s_mov_b32 s{RW}, s{VE}")
    A(f"ds_read_b64 {vr(RA,2)}, v{PA} offset:{L_RM}")
    A(f"v_mov_b32_dpp v{MK[3]}, v{MK[2]} row_shr:2 row_mask:0xf bank_mask:0xf bound_ctrl:0")
    KA, KB = opts.get('ka2', 3.9), opts.get('kb2', -0.2)
    A(f"s_mov_b32 s{KS}, {round(KA*16)}")
    A(f"s_mov_b32 s{NW}, {round(opts.get('hi0', 3)*4096)}")
    VB0, VB1 = round(opts.get("vb0", 0.0) * 4096), round(opts.get("vb1", 0.6) * 4096)
    A(f"s_mov_b32 s{DB}, {round(KB*4096) + ROFF*LG*16 + VB0}")

    A("s_waitcnt lgkmcnt(0)")

    def dots(G_, halves=(0, 1)):
        sl = [8*G_ + e for h in halves for e in range(4*h, 4*h+4)]
        dst = [T] + [slot(x) for x in sl[:-1]]
        A("s_mov_b64 vcc, s[52:53]")
        for x, d in zip(sl, dst): A(f"v_mfma_f32_16x16x32_bf16 {vr(d,4)}, v[4:7], {vr(slot(x),4)}, 0")
        A(f"s_nop {8 - len(sl)}")
        for d in dst:
            for k in range(2): A(f"v_cndmask_b32 v{d+2*k}, v{d+2*k}, v{d+2*k+1}, s[54:55]")
        for x, d in zip(sl, dst):
            A(f"v_cndmask_b32_dpp v{X + 2*(x & 1) + ((x >> 1) & 1)}, v{d}, v{d+2}, vcc quad_perm:[0,1,2,3] row_mask:0x{1 << ((x >> 2) & 3):x} bank_mask:0xf")
    def wave_red(op, v, t):
        for r in (8, 4, 2, 1):
            A("s_nop 1")
            A(f"{op}_dpp v{v}, v{v}, v{v} row_ror:{r} row_mask:0xf bank_mask:0xf")
        for sw in ("v_permlane16_swap_b32", "v_permlane32_swap_b32"):
            A(f"v_mov_b32 v{t}, v{v}")
            A("s_nop 1")
            A(f"{sw} v{t}, v{v}")
            A(f"{op} v{v}, v{v}, v{t}")
    def finish(n):
        sc = OFF[n] + 1
        A("v_mov_b32 v3, 0")
        A("v_mov_b32 v20, 64")
        for i in range(4): A(f"v_add_f32_dpp v{X+i}, v{X+i}, v{X+i} quad_perm:[2,3,0,1] row_mask:0xf bank_mask:0xf")
        for i in range(2): A(f"v_cndmask_b32 v{T+i}, v{X+2*i}, v{X+2*i+1}, s[52:53]")
        A("s_nop 0")
        A("v_lshlrev_b32 v21, 3, s9")
        for i in range(2): A(f"v_add_f32_dpp v{T+i}, v{T+i}, v{T+i} quad_perm:[1,0,3,2] row_mask:0xf bank_mask:0xf")
        A(f"v_cndmask_b32 v{sc}, v{T}, v{T+1}, s[54:55]")
        rnd(g, sc)
        A(f"v_mul_f32 v{sc}, 0x{SCALE:08x}, v{sc}")
        rnd(g, sc)
        if n == 0:
            A(f"v_cmp_gt_u32 vcc, s46, v{OFF[0]}")
            A(f"v_mov_b32 v{MW}, 0xff800000")
            A("s_nop 0")
            A(f"v_cndmask_b32 v{sc}, v{MW}, v{sc}, vcc")
            A(f"v_mov_b32 v{MW}, v{sc}")
        else: A(f"v_max_f32 v{MW}, v{MW}, v{sc}")
        wave_red("v_max_f32", MW, T)
        if n == 0:
            A("s_mov_b64 exec, 1")
            A(f"ds_max_f32 v3, v{MW} offset:{L_E0}")
            A(f"ds_add_u32 v3, v20 offset:{L_ECN}")
            A("s_mov_b64 exec, -1")
    def build(n, thr):
        tk = f"s[{TK[n]}:{TK[n]+1}]"
        A(f"v_cmp_nlt_f32 vcc, v{OFF[n]+1}, v{thr}")
        A(f"s_lshl_b32 s68, s{CNT}, 3")
        A(f"s_add_u32 s68, s68, s{LB}")
        A(f"s_andn2_b64 s[70:71], vcc, {tk}")
        A("v_mbcnt_lo_u32_b32 v3, s70, 0")
        A("v_mbcnt_hi_u32_b32 v3, s71, v3")
        A("s_bcnt1_i32_b64 s69, s[70:71]")
        A("v_lshl_add_u32 v3, v3, 3, s68")
        A("s_mov_b64 exec, s[70:71]")
        A(f"ds_write_b64 v3, {vr(OFF[n],2)}")
        A("s_mov_b64 exec, -1")
        A(f"s_or_b64 {tk}, {tk}, s[70:71]")
        A(f"s_add_u32 s{CNT}, s{CNT}, s69")
    def reread(weights=True, fill=None):
        ns = 3 if weights else 1
        for n in range(ns): A(f"ds_read_b64 {vr(SET[n],2)}, v{LRD} offset:{512*n}")
        if fill: fill()
        A("s_waitcnt lgkmcnt(0)")
        if not weights: return
        for n in range(3): A(f"v_sub_f32 v{SET[n]+1}, v{SET[n]+1}, v{MW}")
        for n in range(3): A(f"v_mul_f32 v{SET[n]+1}, 0x{LOG2E:08x}, v{SET[n]+1}")
        for n in range(3): A(f"v_exp_f32 v{SET[n]+1}, v{SET[n]+1}")
        A("s_nop 0")
        for n in range(3): A(f"v_cvt_pk_bf16_f32 v{SET[n]+1}, v{SET[n]+1}, v{SET[n]+1}")
    def pv(t, data=None, acc=AC_, first=False):
        data = slot(t) if data is None else data
        for d in range(4): A(f"v_and_b32_dpp v{AT_+d}, v{SET[t//16]+1}, v{MK[d]} row_newbcast:{t%16} row_mask:0xf bank_mask:0xf")
        A("s_nop 1")
        A(f"v_mfma_f32_16x16x32_bf16 {vr(acc,4)}, {vr(AT_,4)}, {vr(data,4)}, {vr(acc,4)}")
    def estimate(sh, add, src, vphase=True):
        A(f"s_add_u32 s68, s{src}, {add}")
        A(f"s_lshr_b32 s68, s68, {sh}")
        A(f"s_sub_u32 s69, s68, s{VE}")
        A(f"s_mov_b32 s{VE}, s68")
        if vphase:
            A(f"s_add_u32 s{RW}, s{RW}, s69")
            A(f"s_add_u32 s{SR}, s{SR}, s69")
        A("v_mov_b32 v3, s69")
        A("s_mov_b64 exec, 1")
        A(f"ds_add_u32 v1, v3 offset:{L_RM+8}")
        A(f"ds_add_u32 v1, v3 offset:{L_RM+12}")
        A("s_mov_b64 exec, -1")
    def fetch():
        A(f"v_readfirstlane_b32 s{SR}, v{RA}")
        A(f"v_readfirstlane_b32 s{SBI}, v{RA+1}")
    NST = LAG + 33 + LAG
    assert 4 * (NST - LAG) <= HPOS, NST
    for t in range(NST - LAG + 1):
        sub = "L_vs" if t <= 2 * LAG else "L_vq"
        A(f"s_call_b64 s[{RET}:{RET+1}], {sub}")
        if t == NST - LAG: break
        if t: A(f"s_cbranch_scc0 L_dr{max(t, LAG)}")
        A(f"v_add_u32_dpp v3, v{SET[t//16]}, v{L16} row_newbcast:{t%16} row_mask:0xf bank_mask:0xf")
        A(f"buffer_load_dwordx4 {vr(slot(t),4)}, v3, s[48:51], 0 offen {VF}")
        if opts.get("trace") == 1 and t >= LAG:
            A("s_memrealtime s[98:99]"); A("s_waitcnt lgkmcnt(0)"); A(f"v_writelane_b32 v17, s98, {t}")
        if t == 0: dots(3, (0,))
        if t >= LAG: pv(t - LAG)
    A(f"s_branch L_dr{NST-LAG}")
    g.C("nothing left to load, everything has landed: the row groups not used yet")
    for t in range(LAG, NST):
        g.lab(f"L_dr{t}")
        pv(t - LAG)
        A(f"s_cmp_eq_u32 s{FIN}, {t+1}"); A("s_cbranch_scc1 L_epi")
    def out_addr():
        A("v_lshrrev_b32 v3, 4, v1")
        A(f"v_lshl_add_u32 v{EPA}, v3, 3, v{LRD}")
        A(f"v_add_u32 v{EPA}, s11, v{EPA}")
        A("v_mov_b32 v3, 1")
    def prelim(r):
        A("s_mov_b32 exec_hi, 0")
        A(f"ds_write_b128 v{EPA}, {vr(r,4)} offset:{L_OP1}")
        A("s_mov_b64 exec, 1")
        A(f"ds_add_u32 v1, v3 offset:{L_SN}")
        A("s_mov_b64 exec, -1")
    g.lab("L_epi")
    g.stamp(5)
    out_addr()
    A("s_nop 3")
    for h in range(2): A(f"v_pk_add_f32 {vr(AC_+2*h,2)}, {vr(AC_+2*h,2)}, {vr(AH_+2*h,2)}")
    A("s_mov_b32 exec_hi, 0")
    A(f"ds_write_b128 v{EPA}, {vr(AC_,4)} offset:{L_OP}")
    A(f"s_cmp_eq_u32 s{NSP}, 0"); A("s_cbranch_scc1 L_ep2")
    prelim(AC_)
    g.lab("L_ep2")
    A("s_mov_b64 exec, 1")
    A(f"ds_add_u32 v1, v3 offset:{L_TK}")
    g.lab("L_send")
    if opts.get("trace") == 1:
        A("s_mov_b64 exec, -1")
        A("s_mul_i32 s3, s2, 12"); A("s_add_u32 s3, s3, s13"); A("s_lshl_b32 s3, s3, 8"); A("s_add_u32 s3, s3, 0x400000")
        A("v_lshl_add_u32 v2, v1, 2, s3")
        A("global_store_dword v2, v17, s[42:43]")
    if opts.get("stamps"):
        g.stamp(6)
        dump_all(g, [CNT, SBI, SBI])
    A("s_endpgm")
    g.wave_red = wave_red

    g.lab("L_ks")
    A(f"s_cmp_lt_u32 s{T_}, s{NXT}"); A("s_cbranch_scc1 L_kq")
    A(f"s_call_b64 s[{RET2}:{RET2+1}], L_work")
    BASE, FRAC = BUR, 58
    def control(n):
        A("s_mov_b64 exec, 1")
        for _ in range(n): A(f"ds_dec_u32 v{PA}, v{LRD} offset:{L_RM}")
        A(f"ds_read_b64 {vr(RA,2)}, v{PA} offset:{L_RM}")
        A("s_mov_b64 exec, -1")
        A(f"s_mul_i32 s68, s{RW}, {NS_}")
        A(f"s_mul_i32 s69, s{SBI}, s{KS}")
        A(f"s_sub_i32 s68, s68, s{SR}")
        A(f"s_mul_i32 s68, s68, {LG*16}")
        A(f"s_sub_u32 s{RW}, s{RW}, {n}")
        A("s_add_i32 s68, s68, s69")
        A(f"s_add_i32 s68, s68, s{DB}")
        A(f"s_max_i32 s68, s68, {int(opts.get('lo', 1.2)*4096)}")
        A(f"s_min_i32 s68, s68, s{NW}")
        A(f"s_lshr_b32 s{BASE}, s68, 12")
        A(f"s_lshl_b32 s{FRAC}, s68, 20")
    g.lab("L_kq")
    fetch()
    g.lab("L_ks2")
    control(1)
    A(f"s_add_u32 s{T_}, s{T_}, 1")
    A(f"s_add_u32 s{ACC}, s{ACC}, 0x20000000")
    A(f"s_add_u32 s68, s{ACC}, s{FRAC}")
    A(f"s_addc_u32 s{LVL}, s{BASE}, 0")
    order = [3, 2, 4, 1] + list(range(5, LAG))
    for d in order:
        A(f"s_cmp_eq_u32 s{LVL}, {d}"); A(f"s_cbranch_scc1 L_wt{d}")
    g.lab("L_wtx")
    A(f"s_cmp_eq_u32 s{T_}, s{T_}")
    for d in [LAG] + order:
        g.lab(f"L_wt{d}")
        A(f"s_waitcnt vmcnt({d-1})")
        A(f"s_setpc_b64 s[{RET}:{RET+1}]")

    g.lab("L_vs")
    fetch()
    A(f"s_cmp_eq_u32 s{X1D}, 2"); A("s_cbranch_scc1 L_vs1")
    A(f"s_cmp_eq_u32 s{X1D}, 1"); A("s_cbranch_scc1 L_x3")
    A(f"s_cmp_gt_u32 s{LVL}, s{T_}"); A("s_cbranch_scc1 L_ks2")
    g.lab("L_x1")
    g.stamp(1, 2)
    dots(3, (1,))
    sc = OFF[1] + 1
    A(f"s_lshl_b32 s68, s{NH}, 3")
    A(f"s_add_u32 s68, s68, s{LB}")
    for i in range(4): A(f"v_add_f32_dpp v{X+i}, v{X+i}, v{X+i} quad_perm:[2,3,0,1] row_mask:0xf bank_mask:0xf")
    for i in range(2): A(f"v_cndmask_b32 v{T+i}, v{X+2*i}, v{X+2*i+1}, s[52:53]")
    A("v_mov_b32 v20, 64")
    A("v_lshlrev_b32 v21, 3, s9")
    for i in range(2): A(f"v_add_f32_dpp v{T+i}, v{T+i}, v{T+i} quad_perm:[1,0,3,2] row_mask:0xf bank_mask:0xf")
    A(f"v_cndmask_b32 v{sc}, v{T}, v{T+1}, s[54:55]")
    rnd(g, sc)
    A(f"v_mul_f32 v{sc}, 0x{SCALE:08x}, v{sc}")
    rnd(g, sc)
    mx = lambda r: f"v_max_f32_dpp v{MW}, v{MW}, v{MW} row_ror:{r} row_mask:0xf bank_mask:0xf"
    tk1 = f"s[{TK[1]}:{TK[1]+1}]"
    for t in (f"v_max_f32 v{MW}, v{MW}, v{sc}",
              f"v_cmp_ngt_f32 vcc, s{HTH}, v{sc}", "v_mov_b32 v4, 0", mx(8),
              "s_bcnt1_i32_b64 s69, vcc", f"s_add_u32 s69, s69, s{NH}", mx(4),
              f"s_cmp_gt_u32 s69, {HCAP}", f"s_cselect_b32 s{NSP}, 1, s{NSP}", mx(2),
              f"s_cmp_eq_u32 s{NSP}, 0", f"s_cselect_b64 {tk1}, vcc, 0", f"s_cselect_b32 s{NH}, s69, s{NH}", mx(1),
              f"v_mbcnt_lo_u32_b32 v3, s{TK[1]}, 0", f"v_mov_b32 v{T}, v{MW}", f"v_mbcnt_hi_u32_b32 v3, s{TK[1]+1}, v3", "v_lshl_add_u32 v3, v3, 3, s68",
              f"v_permlane16_swap_b32 v{T}, v{MW}",
              f"s_mov_b64 exec, {tk1}", f"ds_write_b64 v3, {vr(OFF[1],2)} offset:{HPOS*8}", "s_mov_b64 exec, -1",
              f"ds_read_b32 v{SET[2]}, v{LRD} offset:1024",
              f"v_max_f32 v{MW}, v{MW}, v{T}", f"v_mov_b32 v{T}, v{MW}", "v_mov_b32 v5, 0", f"s_mov_b32 s{TH}, s{T_}",
              f"v_permlane32_swap_b32 v{T}, v{MW}", f"v_max_f32 v{MW}, v{MW}, v{T}"): A(t)
    for i in range(2): A(f"v_sub_f32 v{X+1+i}, v{OFF[i]+1}, v{MW}")
    for i in range(2): A(f"v_mul_f32 v{X+1+i}, 0x{LOG2E:08x}, v{X+1+i}")
    for i in range(2): A(f"v_exp_f32 v{X+1+i}, v{X+1+i}")
    A("s_lshl_b32 s68, s9, 9")
    A(f"v_lshl_add_u32 v{X}, v1, 2, s68")
    A(f"v_add_f32 v{X+1}, v{X+1}, v{X+2}")
    A("s_waitcnt lgkmcnt(0)")
    for i in range(8):
        A(f"s_cmp_le_u32 s{NH}, {4*i}"); A("s_cbranch_scc1 L_x2")
        A(f"v_add_u32_dpp v3, v{SET[2]}, v{L16} row_newbcast:{8+i} row_mask:0xf bank_mask:0xf")
        A(f"buffer_load_dwordx4 {vr(slot(24+i),4)}, v3, s[48:51], 0 offen {VF}")
    g.lab("L_x2")
    g.stamp(2, 2)
    A(f"ds_write_b32 v{X}, v{X+1} offset:{L_OP}")
    A("s_mov_b64 exec, 1")
    A(f"ds_write_b32 v21, v{MW} offset:{L_ST}")
    A(f"ds_add_u32 v1, v20 offset:{L_SCN}")
    A("s_mov_b64 exec, -1")
    g.stamp(3); g.stamp(3, 2)
    A(f"s_mov_b32 s{X1D}, 1"); A(f"s_mov_b32 s{HST}, 1")
    if VB1 != VB0: A(f"s_add_i32 s{DB}, s{DB}, {VB1-VB0}")
    A(f"s_cmp_lt_u32 s{T_}, {LAG}"); A("s_cbranch_scc1 L_ks2")
    g.lab("L_x3")
    A(f"v_max_f32 v21, s{EV}, v{MW}")
    A(f"s_add_u32 s{CNT}, s{CNT}, 3"); A(f"s_lshr_b32 s{CNT}, s{CNT}, 2")
    A(f"v_add_f32 v21, 0x{f2u(DEL - ZERO_GAP):08x}, v21")
    A(f"s_max_u32 s{CNT}, s{CNT}, s{T_}"); A(f"s_lshl_b32 s{CNT}, s{CNT}, 2")
    build(1, 21)
    def fill():
        for e in range(4): A(f"v_mov_b32 v{AC_+e}, 0")
        for e in range(2, 4): A(f"v_mov_b32 v{AH_+e}, 0")
        A(f"s_lshr_b32 s{LIM}, s{CNT}, 2")
        A(f"s_mov_b32 s{X1D}, 2")
        estimate(2, opts.get("ve2", 13), CNT)
    reread(True, fill)
    A(f"s_cmp_eq_u32 s{NH}, 0")
    A(f"s_cselect_b32 s{LVL}, 0, s{LVL}")
    g.stamp(4, 2)
    g.lab("L_vs1")
    A(f"s_cmp_eq_u32 s{HST}, 0"); A("s_cbranch_scc1 L_vs1b")
    A(f"s_sub_u32 s68, s{T_}, s{TH}")
    A(f"s_cmp_le_u32 s{LVL}, s68"); A("s_cbranch_scc1 L_snap")
    A(f"s_cmp_lt_u32 s{T_}, s{LIM}"); A("s_cbranch_scc1 L_ks2")
    A("s_waitcnt vmcnt(0)")
    g.lab("L_snap")
    g.stamp(5, 2)
    for i in range(8):
        A(f"s_cmp_le_u32 s{NH}, {4*i}"); A("s_cbranch_scc1 L_snp2")
        pv(40 + i, slot(24 + i), AH_)
    g.lab("L_snp2")
    out_addr()
    A("s_nop 0")
    A(f"s_mov_b32 s{HST}, 0")
    if VB1: A(f"s_sub_i32 s{DB}, s{DB}, {VB1}")
    A(f"s_mov_b32 s{NW}, {LAG*4096}")
    A(f"s_cmp_lg_u32 s{NSP}, 0"); A("s_cbranch_scc1 L_vs1b")
    prelim(AH_)
    g.stamp(9); g.stamp(7, 2)
    A("s_branch L_vs1b")
    g.lab("L_vq")
    fetch()
    g.lab("L_vs1b")
    g.lab("L_vs2")
    A(f"s_cmp_lt_u32 s{T_}, s{LIM}"); A("s_cbranch_scc1 L_ks2")
    g.lab("L_ev")
    A(f"s_cmp_eq_u32 s{FIN}, 0"); A("s_cbranch_scc1 L_hand")
    A(f"s_add_u32 s68, s{T_}, {LAG}")
    A(f"s_cmp_lt_u32 s68, s{FIN}"); A("s_cbranch_scc0 L_wt1")
    A(f"s_add_u32 s{T_}, s{T_}, 1")
    A("s_mov_b64 exec, 1")
    A(f"ds_dec_u32 v{PA}, v{LRD} offset:{L_RM}")
    A("s_mov_b64 exec, -1")
    A("s_branch L_wtx")

    g.lab("L_hand")
    g.stamp(7)
    A("v_mov_b32 v3, 0")
    wait_cnt(g, f"ds_read_b64 v[18:19], v3 offset:{L_SCN}", 18, 0x10000 + 64 * NS_, 1)
    g.stamp(4)
    build(0, 19); build(1, 19)
    def fill2():
        A(f"s_add_u32 s{FIN}, s{CNT}, {3 + 4*LAG}")
        A(f"s_lshr_b32 s{FIN}, s{FIN}, 2")
        A(f"s_sub_u32 s{LIM}, s{FIN}, {LAG + opts.get('burst', 3)}")
        A(f"s_max_i32 s{LIM}, s{LIM}, 0")
        estimate(2, 3, CNT)
    reread(True, fill2)
    A("s_branch L_vs2")

    g.lab("L_work")
    ret2 = f"s_setpc_b64 s[{RET2}:{RET2+1}]"
    for k, l in ((4, "L_w3"), (3, "L_w2b"), (5, "L_w5")):
        A(f"s_cmp_eq_u32 s{STA}, {k}"); A(f"s_cbranch_scc1 {l}")
    def landed(n):
        A(f"s_add_u32 s68, s{LVL}, {n}")
        A(f"s_cmp_lt_u32 s{T_}, s68"); A("s_cbranch_scc1 L_wr")
    g.lab("L_w2")
    assert J0 >= 8 + LAG
    A("v_and_b32 v3, 0xf0, v0")
    A(f"ds_read_b128 v[4:7], v3 offset:{L_QV}")
    A("s_waitcnt lgkmcnt(0)")
    chk_sentinel(g, [4, 5, 6, 7], 8)
    A("s_cmp_lg_u64 vcc, 0"); A("s_cbranch_scc1 L_wr")
    dots(0)
    A(f"s_mov_b32 s{STA}, 3"); A(f"s_mov_b32 s{NXT}, 17")
    g.lab("L_wr")
    A(ret2)
    g.lab("L_w2b")
    landed(16)
    g.stamp(9, 2)
    dots(1)
    finish(0)
    A(f"s_mov_b32 s{STA}, 4")
    A(f"s_mov_b32 s{HST}, 0")
    g.stamp(8)
    A(ret2)
    g.lab("L_w5")
    landed(24)
    dots(2)
    A(f"s_mov_b32 s{STA}, 6"); A(f"s_mov_b32 s{NXT}, 99")
    A(ret2)
    g.lab("L_w3")
    A("v_mov_b32 v3, 0")
    A(f"ds_read_b64 v[18:19], v3 offset:{L_ECN}")
    A("s_waitcnt lgkmcnt(0)")
    A(f"v_cmp_gt_u32 vcc, 0x{0x10000 + 64 * NS_:x}, v18")
    A("s_cmp_lg_u64 vcc, 0"); A("s_cbranch_scc1 L_wr")
    A(f"ds_read_b64 v[20:21], v3 offset:{L_E1}")
    A("s_waitcnt lgkmcnt(0)")
    A(f"v_add_f32 v21, 0x{f2u(-THETA):08x}, v21")
    A(f"v_cmp_nlt_f32 vcc, v{OFF[0]+1}, v21")
    A(f"v_readfirstlane_b32 s{HTH}, v21")
    A(f"v_readfirstlane_b32 s{EV}, v20")
    A(f"s_mov_b32 s{NH}, 0")
    A("s_bcnt1_i32_b64 s68, vcc")
    A(f"s_cmp_gt_u32 s68, {HCAP}")
    A(f"s_cselect_b32 s{NSP}, 1, 0")
    A("s_cbranch_scc1 L_w4")
    A(f"s_mov_b32 s{CNT}, {HPOS}")
    build(0, 21)
    A(f"s_mov_b32 s{NH}, s69"); A(f"s_mov_b32 s{CNT}, 0")
    g.lab("L_w4")
    A(f"v_add_f32 v21, 0x{f2u(DEL - ZERO_GAP):08x}, v20")
    build(0, 21)
    estimate(1, opts.get("ve1", 6), CNT, False)
    if opts.get("ka1", 0):
        A(f"s_sub_i32 s68, s{VE}, {opts.get('kt1', 20)}")
        A(f"s_max_i32 s68, s68, {opts.get('kl1', -4)}")
        A(f"s_mul_i32 s68, s68, {int(opts['ka1']*4096)}")
        A(f"s_add_i32 s{DB}, s{DB}, s68")
    A(f"s_mov_b32 s{STA}, 5"); A(f"s_mov_b32 s{NXT}, 25")
    reread(False)
    A(ret2)

def gen(opts):
    g = G(opts); A = g.A
    opts.setdefault("ka1", 0.06); opts.setdefault("dup", 1.0)
    WFL = opts.get("wflags", "nt")
    D0 = opts.get("D0", 4)
    MREP = 8
    TB = 32
    hdr = open(opts["ref"]).read().split("; Override launch")[0]
    g.L.append(hdr.rstrip("\n"))
    g.L.append(""";
;    projections behind the attention overlap the remaining V rows.  When all rows are in, the bf16 attention output is formed
;    numbers of loads in flight only affect speed.""")
    g.L.append(f"; @launch grid=(256,1,1) block=(768,1,1) lds={LDS_BYTES}")
    g.L.append('.amdgcn_target "amdgcn-amd-amdhsa--gfx950"\n.text')
    g.L.append(f".globl {KNAME}\n.p2align 8\n.type {KNAME},@function\n{KNAME}:")
    g.stamp(0, 3)
    KA1 = opts.get("ka", 1) and not opts.get("stamps")
    def rest():
        A("s_load_dwordx8 s[24:31], s[0:1], 32")
        A("s_load_dwordx8 s[32:39], s[0:1], 64")
        A("s_load_dwordx4 s[40:43], s[0:1], 96")
        A("s_mov_b32 s72, 0xfffffffe")
        A("s_mov_b32 s73, 0xffff0000")
    A("s_load_dwordx8 s[16:23], s[0:1], 0")
    A("s_cmp_ge_u32 s2, 256")
    A("s_cbranch_scc1 L_end")
    if not KA1: rest()
    A("v_lshrrev_b32 v2, 6, v0")
    A("v_and_b32 v1, 63, v0")
    A("v_readfirstlane_b32 s13, v2")
    A("s_bfe_u32 s7, s2, 0x20003")
    A("s_bfe_u32 s6, s2, 0x20005")
    A("s_and_b32 s8, s2, 7")
    A("s_lshl2_add_u32 s6, s8, s6")
    A("s_and_b32 s9, s2, 0x80")
    A("s_lshr_b32 s9, s9, 2")
    A("s_add_u32 s6, s6, s9")
    g.stamp(0)
    A("s_cmp_eq_u32 s7, 3")
    A("s_cbranch_scc1 L_serv")
    A("s_cmp_eq_u32 s13, 0")
    A("s_cbranch_scc1 L_pub")
    stream(g, opts)

    def tag():
        A("s_waitcnt lgkmcnt(0)")
        make_tag(g)
    def tag_bytes():
        for i in range(4): A(f"s_bfe_u32 s{TB+i}, s{ST}, 0x{(8 << 16) | (8 * i):x}")
    def table():
        A("s_getpc_b64 s[56:57]")
        l = g.uniq("pc"); g.lab(l)
        A("s_lshr_b32 s3, s2, 5"); A("s_lshl3_add_u32 s3, s3, s8"); A("s_lshl_b32 s3, s3, 2")
        A(f"s_add_u32 s3, s3, L_table-{l}")
        A("s_load_dword s14, s[56:57], s3")

    g.lab("L_pub")
    if KA1: rest()
    NT = opts.get("nt", 2)
    if NT:
        A("s_getpc_b64 s[56:57]")
        g.lab("L_pct")
        A("s_lshr_b32 s3, s2, 3"); A("s_lshl_b32 s3, s3, 2")
        A("s_add_u32 s3, s3, L_touch-L_pct")
        A("s_load_dword s14, s[56:57], s3")
        A("s_waitcnt lgkmcnt(0)")
        for k in range(NT):
            e = g.uniq("tq"); e2 = g.uniq("te")
            A(f"s_bfe_u32 s48, s14, 0x{(3 << 16) | (8*k):x}"); A("s_lshl_b32 s48, s48, 6")
            A("v_add_u32 v2, s48, v1")
            A(f"s_bfe_u32 s48, s14, 0x{(3 << 16) | (8*k+3):x}")
            A(f"s_bitcmp1_b32 s14, {8*k+7}"); A(f"s_cbranch_scc1 {e2}")
            A(f"s_bitcmp1_b32 s14, {8*k+6}"); A(f"s_cbranch_scc1 {e}")
            A("s_lshl1_add_u32 s48, s8, s48"); A("s_lshl_b32 s48, s48, 7")
            A("v_mul_u32_u24 v2, 6144, v2")
            A("v_add_u32 v2, s48, v2")
            A("global_load_dword v167, v2, s[36:37]")
            A(f"s_branch {e2}")
            g.lab(e)
            A("s_lshl3_add_u32 s48, s8, s48"); A("s_lshl_b32 s48, s48, 7")
            A("v_lshl_add_u32 v2, v2, 13, s48")
            A("global_load_dword v167, v2, s[22:23]")
            g.lab(e2)
    A("v_mov_b32 v38, 0")
    A("v_mov_b32 v4, -1")
    A("v_mov_b32 v8, 0xff800000"); A("v_mov_b32 v9, 0")
    A("v_lshlrev_b32 v2, 3, v1")
    A(f"ds_write_b64 v2, v[8:9] offset:{L_S4}")
    A("v_mov_b32 v5, 0"); A("v_mov_b32 v6, 0"); A("v_mov_b32 v7, 0")
    A("v_lshlrev_b32 v2, 2, v1")
    A(f"ds_write_b32 v2, v4 offset:{L_QV}")
    A(f"ds_write_b128 v38, v[4:7] offset:{L_ML}")
    A("v_mov_b32 v10, 0"); A("v_mov_b32 v11, v8"); A("v_mov_b32 v12, 0"); A("v_mov_b32 v13, v8")
    A(f"ds_write_b128 v38, v[10:13] offset:{L_SCN}")
    A(f"v_mov_b32 v10, {1024+NS_*(32-D0)}"); A("v_mov_b32 v11, 0"); A("v_mov_b32 v12, 1024"); A("v_mov_b32 v13, 0")
    A(f"ds_write_b128 v38, v[10:13] offset:{L_RM}")
    A("v_mov_b32 v4, 0")
    A(f"ds_write_b128 v38, v[4:7] offset:{L_SN}")
    A(f"s_getreg_b32 s{SXCC}, hwreg(HW_REG_XCC_ID, 0, 4)")
    A("s_waitcnt lgkmcnt(0)")
    A(f"s_load_dword s{ST}, s[42:43], {WS_E}")
    A("s_barrier")
    tag()
    A(f"s_add_u32 s{SXCC}, s{SXCC}, s{ST}")
    def merge(nl, base):
        A(f"v_and_b32 v9, {nl-1}, v1")
        A("v_lshlrev_b32 v9, 3, v9")
        A(f"ds_read_b64 v[10:11], v9 offset:{base}")
        mods = ["quad_perm:[1,0,3,2]", "quad_perm:[2,3,0,1]", "row_half_mirror", "row_mirror"][:nl.bit_length()-1]
        A("s_waitcnt lgkmcnt(0)")
        if nl == 16: A("v_mov_b32 v16, v10")
        for i, m_ in enumerate(mods):
            src = 10 if i == 0 else 8
            A(f"v_max_f32_dpp v8, v{src}, v{src} {m_} row_mask:0xf bank_mask:0xf")
            if i + 1 < len(mods): A("s_nop 1")
        A("v_sub_f32 v9, v10, v8")
        A(f"v_mul_f32 v9, 0x{LOG2E:08x}, v9")
        A("v_exp_f32 v9, v9")
        A("s_nop 0")
        A("v_mul_f32 v10, v9, v11")
        for m_ in mods:
            A("s_nop 1")
            A(f"v_add_f32_dpp v10, v10, v10 {m_} row_mask:0xf bank_mask:0xf")
    SB = 20
    def sissue(n, nd, off):
        for i in range(n): A(f"s_load_dwordx{nd} s[{SB+4*i}:{SB+4*i+nd-1}], s[42:43], s{54+i} offset:{off} glc")
    def spoll(n, nd, off, name, sleep):
        A("s_mov_b32 s70, 0")
        A(f"s_branch {name}c")
        g.lab(name)
        sissue(n, nd, off)
        g.lab(name + "c")
        A("s_waitcnt lgkmcnt(0)")
        tags = [SB + 4*i + k for i in range(n) for k in range(1, nd, 2)]
        A(f"s_xor_b32 s68, s{tags[0]}, s{ST}")
        for k in tags[1:]:
            A(f"s_xor_b32 s69, s{k}, s{ST}"); A("s_or_b32 s68, s68, s69")
        A(f"s_cbranch_scc0 {name}d")
        A(f"s_sleep {sleep}")
        A("s_add_u32 s70, s70, 1")
        A(f"s_cmp_lt_u32 s70, {SPIN_MAX}")
        A(f"s_cbranch_scc1 {name}")
        g.lab(name + "d")
    def sibs():
        A("s_add_u32 s52, s7, 1"); A("s_cmp_eq_u32 s52, 3"); A("s_cselect_b32 s52, 0, s52")
        A("s_add_u32 s53, s52, s7"); A("s_sub_u32 s53, 3, s53")
        for i in range(2):
            A(f"s_lshl2_add_u32 s{54+i}, s6, s{52+i}"); A(f"s_lshl_b32 s{54+i}, s{54+i}, 7")
    A("s_lshl2_add_u32 s64, s6, s7"); A("s_lshl_b32 s64, s64, 7")
    A(f"s_add_u32 s64, s64, {WS_S1}")
    A("v_mov_b32 v18, s64")
    A(f"v_add_u32 v19, {WS_S2-WS_S1}, v18")
    A("v_mov_b32 v17, 0x10000")
    PT = opts.get("pt", 15)
    if PT & 1:
        A("s_lshl2_add_u32 s49, s6, s7"); A("s_lshl_b32 s49, s49, 9"); A(f"s_add_u32 s49, s49, {WS_OP}")
        A("v_and_b32 v10, 3, v1"); A("v_lshl_add_u32 v10, v10, 7, s49")
        A("v_bfe_u32 v11, v1, 2, 1"); A(f"v_mul_u32_u24 v11, {R2}, v11"); A("v_add_u32 v10, v10, v11")
        A("s_mov_b64 exec, 0xff")
        A("global_load_dword v166, v10, s[42:43] sc1")
        A("s_mov_b64 exec, 1")
        A("global_load_dword v166, v18, s[42:43] sc1")
        A("global_load_dword v166, v19, s[42:43] sc1")
        A("s_mov_b64 exec, -1")
    l = g.uniq("qw")
    A("s_mov_b32 s70, 0")
    g.lab(l)
    A(f"ds_read_b32 v8, v38 offset:{L_RM}")
    A("s_waitcnt lgkmcnt(0)")
    A(f"v_cmp_lt_u32 vcc, {1024 + NS_ * (32 - opts.get('jq', 14))}, v8")
    spin_tail(g, l, l + "d", 4, 8)
    A("s_lshl_b32 s3, s6, 9"); A(f"s_add_u32 s3, s3, {WS_Q}")
    A("v_lshl_add_u32 v10, v1, 4, s3")
    A("v_lshlrev_b32 v11, 3, v1")
    A("s_mov_b32 exec_hi, 0")
    A("s_mov_b32 s70, 0")
    g.lab("L_qp")
    NQ = opts.get("nq", 2)
    for i in range(NQ): A(f"s_load_dword s{20+i}, s[42:43], s3 offset:{512//NQ*(i+1)-4} glc")
    A("s_add_u32 s70, s70, 1")
    A(f"s_cmp_ge_u32 s70, {SPIN_MAX}"); A("s_cbranch_scc1 L_qpd")
    A("s_waitcnt lgkmcnt(0)")
    A(f"s_xor_b32 s68, s20, s{ST}")
    for i in range(1, NQ): A(f"s_xor_b32 s69, s{20+i}, s{ST}"); A("s_or_b32 s68, s68, s69")
    A("s_cbranch_scc1 L_qp")
    A("global_load_dwordx4 v[12:15], v10, s[42:43] sc1")
    A("s_waitcnt vmcnt(0)")
    A(f"v_cmp_ne_u32 vcc, s{ST}, v13"); A(f"v_cmp_ne_u32 s[68:69], s{ST}, v15"); A("s_or_b64 vcc, vcc, s[68:69]")
    A("s_cbranch_scc1 L_qp")
    g.lab("L_qpd")
    A("s_waitcnt lgkmcnt(0)")
    A("v_mov_b32 v13, v14")
    A(f"ds_write_b64 v11, v[12:13] offset:{L_QV}")
    A("s_mov_b64 exec, -1")
    g.stamp(9)
    sibs()
    wait_cnt(g, f"ds_read_b64 v[8:9], v38 offset:{L_ECN}", 8, 64 * NS_, 2)
    sissue(2, 2, WS_S1)
    A("v_mov_b32 v8, v9")
    A(f"v_mov_b32 v9, s{ST}")
    A("s_mov_b64 exec, 1")
    A("global_store_dwordx2 v18, v[8:9], s[42:43] sc1")
    g.stamp(1)
    spoll(2, 2, WS_S1, "L_s3e", opts.get("ssl", 2))
    A(f"v_mov_b32 v12, s{SB}")
    A(f"v_max3_f32 v10, v8, v12, s{SB+4}")
    A(f"v_min3_f32 v11, v8, v12, s{SB+4}")
    A(f"ds_write_b64 v38, v[10:11] offset:{L_E1}")
    A(f"ds_add_u32 v38, v17 offset:{L_ECN}")
    A("s_mov_b64 exec, -1")
    g.stamp(3)
    A("s_lshl_b32 s64, s8, 7")
    A(f"s_load_dwordx8 s[20:27], s[42:43], s64 offset:{WS_HDR} glc")
    A("s_waitcnt lgkmcnt(0)")
    A(f"s_xor_b32 s68, s20, s{SXCC}")
    for k in range(1, 8):
        A(f"s_xor_b32 s69, s{20+k}, s{SXCC}"); A("s_or_b32 s68, s68, s69")
    A(f"s_cselect_b32 s{SLOC}, 0, 1")
    if opts.get("nolocal"): A(f"s_mov_b32 s{SLOC}, 0")
    for i, r in enumerate((7, 52, 53)): A(f"v_lshlrev_b32 v{20+i}, 3, s{r}")
    A("v_and_b32 v9, 15, v1"); A("v_lshlrev_b32 v9, 3, v9"); A("v_lshlrev_b32 v11, 2, v1")
    wait_then(g, L_SCN, 64 * NS_, [f"ds_read_b32 v16, v9 offset:{L_ST}"] + [f"ds_read_b32 v{40+i}, v11 offset:{L_OP+512*i}" for i in range(NS_)], 64 * (NS_ - 1))
    A(f"s_waitcnt lgkmcnt({NS_})")
    for i, m_ in enumerate(["quad_perm:[1,0,3,2]", "quad_perm:[2,3,0,1]", "row_half_mirror", "row_mirror"]):
        src = 16 if i == 0 else 8
        A(f"v_max_f32_dpp v8, v{src}, v{src} {m_} row_mask:0xf bank_mask:0xf")
        if i < 3: A("s_nop 1")
    A("v_sub_f32 v9, v16, v8")
    A(f"v_mul_f32 v9, 0x{LOG2E:08x}, v9")
    A("v_exp_f32 v9, v9")
    A("s_waitcnt lgkmcnt(0)")
    A("s_nop 0")
    for i in range(NS_):
        op = "v_mul_f32_dpp" if i < 2 else "v_fmac_f32_dpp"
        A(f"{op} v{10+2*(i&1)}, v9, v{40+i} row_newbcast:{i} row_mask:0xf bank_mask:0xf")
    A("v_add_f32 v10, v10, v12")
    g.wave_red("v_add_f32", 10, 12)
    sissue(2, 4, WS_S2)
    A(f"v_mov_b32 v9, s{ST}"); A(f"v_mov_b32 v11, s{ST}")
    A("s_mov_b64 exec, 1")
    A("global_store_dwordx4 v19, v[8:11], s[42:43] sc1")
    A(f"ds_write_b32 v20, v8 offset:{L_S4}")
    A(f"ds_write_b32 v20, v10 offset:{L_S4+4}")
    g.stamp(4)
    spoll(2, 4, WS_S2, "L_s3p", opts.get("ssl", 2))
    for i in range(2):
        A(f"v_mov_b32 v{12+2*i}, s{SB+4*i}"); A(f"v_mov_b32 v{13+2*i}, s{SB+4*i+2}")
    for i in range(2): A(f"ds_write_b64 v{21+i}, {vr(12+2*i,2)} offset:{L_S4}")
    A("s_mov_b64 exec, -1")
    merge(4, L_S4)
    A("v_log_f32 v12, v10")
    A("v_sub_f32 v9, v16, v8")
    A("v_rcp_f32 v10, v10")
    A(f"v_mul_f32 v9, 0x{LOG2E:08x}, v9")
    A("v_exp_f32 v9, v9")
    A(f"v_add_f32 v8, 0x{f2u(-ZERO_GAP):08x}, v8")
    A(f"v_fmac_f32 v8, 0x{f2u(0.6931471805599453 if opts.get('lnl', 1) else 0):08x}, v12")
    A("v_lshlrev_b32 v13, 2, v1")
    A("v_mul_f32 v9, v9, v10")
    A("s_mov_b64 exec, 0xffff")
    A(f"ds_write_b32 v13, v9 offset:{L_S8}")
    A("s_mov_b64 exec, 1")
    A(f"ds_write_b32 v38, v8 offset:{L_MX}")
    A(f"ds_add_u32 v38, v17 offset:{L_SCN}")
    A("s_mov_b64 exec, -1")
    g.stamp(5)
    R = 40
    op_prep(g, R, 38, 0)
    wait_then(g, L_SN, NS_, op_reads(L_OP1, R), NS_ - 1)
    op_sum(g, R, True)
    g.stamp(6)
    R1 = 80
    op_prep(g, R1, 38, R2)
    A("s_waitcnt vmcnt(0)")
    wait_cnt(g, f"ds_read_b32 v8, v38 offset:{L_TK}", 8, opts.get("ctk", 1), 4)
    A(f"global_store_dwordx2 v{R+OPA}, {vr(R,2)}, s[42:43] sc1")
    A("s_cmp_eq_u32 s7, 2"); A("s_cbranch_scc1 L_chk")
    wait_then(g, L_TK, NS_, op_reads(L_OP, R1), NS_ - 1)
    op_sum(g, R1, False)
    g.stamp(7)
    A("s_branch L_fin")

    g.lab("L_chk")
    TG = 160; RB = 136
    for k in range(2): A(f"v_and_b32 v{TG+k}, 0xff, v{R+OPA+1+k}")
    A("s_lshl_b32 s10, s6, 11"); A(f"s_add_u32 s10, s10, {WS_OP}")
    A("v_lshl_add_u32 v2, v1, 3, s10")
    def head_sum(b_, t, src=None):
        src = src or list(range(b_, b_ + 6))
        for i in range(6): A(f"v_xor_b32 v{b_+i}, v{src[i]}, v{TG+(i&1)}")
        A(f"v_or3_b32 v{t}, v{b_}, v{b_+1}, v{b_+2}")
        A(f"v_or3_b32 v{t+1}, v{b_+3}, v{b_+4}, v{b_+5}")
        for i in range(6): A(f"v_or_b32 v{b_+i}, 0x80, v{b_+i}")
        A(f"v_or_b32 v{t}, v{t}, v{t+1}")
        A(f"v_pk_add_f32 {vr(b_,2)}, {vr(b_,2)}, {vr(b_+2,2)}")
        A(f"v_lshlrev_b32 v{t}, 24, v{t}")
        A(f"v_pk_add_f32 {vr(b_,2)}, {vr(b_,2)}, {vr(b_+4,2)}")
        A(f"v_cmp_ne_u32 vcc, 0, v{t}")
        A(f"v_cvt_pk_bf16_f32 v{b_}, v{b_}, v{b_+1}")
    RAW = RB + 18
    def looks(k, v=2):
        for i in range(2): A(f"global_load_dwordx2 {vr(RAW-24*k+2*i,2)}, v{v}, s[42:43] offset:{512*i} sc1")
    def settle(k, sleep, own, depth):
        raw = RAW - 24*k
        A("s_mov_b32 s70, 0")
        A(f"s_branch L_cp{k}c")
        g.lab(f"L_cp{k}")
        looks(k)
        if sleep: A(f"s_sleep {sleep}")
        A(f"s_waitcnt vmcnt({2*(depth-1)})")
        g.lab(f"L_cp{k}c")
        head_sum(RB+8*k, RB+16, [raw, raw+1, raw+2, raw+3, own, own+1])
        spin_tail(g, f"L_cp{k}", f"L_cp{k}d", 0)
    looks(0)
    A(f"v_add_u32 v3, {R2}, v2")
    wait_then(g, L_TK, NS_, op_reads(L_OP, R1), NS_ - 1)
    looks(1, 3)
    op_sum(g, R1, False)
    g.stamp(7)
    A("s_waitcnt vmcnt(1)")
    settle(0, 4, R, 1)
    A(f"v_add_u32 v2, {R2}, v2")
    settle(1, opts.get("csl", 0), R1, opts.get("cpipe", 1))
    A(f"v_cmp_ne_u32 vcc, v{RB}, v{RB+8}")
    A("s_cmp_eq_u64 vcc, 0"); A("s_cbranch_scc1 L_fin")
    A("s_waitcnt vmcnt(0)")
    fallback(g, head_sum, g.wave_red)

    g.lab("L_serv")
    if KA1: rest()
    A("s_cmp_ge_u32 s13, 4"); A("s_cbranch_scc1 L_team")
    A("s_cmp_lt_u32 s13, 2"); A("s_cbranch_scc1 L_sv1")
    if opts.get("cpf", 1):
        A("s_getpc_b64 s[56:57]")
        g.lab("L_pcc")
        A(f"s_sub_u32 s56, s56, L_pcc-{KNAME}"); A("s_subb_u32 s57, s57, 0")
        A("s_lshr_b32 s3, s2, 5"); A("s_lshl1_add_u32 s3, s3, s13"); A("s_sub_u32 s3, s3, 2")
        A("s_lshl_b32 s3, s3, 12")
        A("v_lshl_add_u32 v2, v1, 6, s3")
        A(f"v_min_u32 v2, L_end-{KNAME}, v2")
        A("global_load_dword v3, v2, s[56:57]")
    if opts.get("amp"):
        A("s_cmp_lg_u32 s2, 24"); A("s_cbranch_scc1 L_end")
        A("s_cmp_lg_u32 s13, 2"); A("s_cbranch_scc1 L_end")
        A("s_memrealtime s[78:79]")
        A("s_waitcnt lgkmcnt(0)")
        A(f"s_load_dword s{ST}, s[42:43], {WS_E}")
        A("s_barrier")
        tag()
        A("s_waitcnt vmcnt(0)")
        A("v_and_b32 v2, 31, v1"); A("v_lshlrev_b32 v2, 7, v2"); A(f"v_add_u32 v2, {WS_DN}, v2")
        A("v_lshlrev_b32 v3, 11, v1"); A(f"v_add_u32 v3, {WS_OQ}, v3")
        A(f"s_and_b32 s60, s{ST}, 0xff")
        g.lab("L_am0")
        A("s_sleep 4"); A("s_memrealtime s[64:65]"); A("s_waitcnt lgkmcnt(0)")
        A("s_sub_u32 s64, s64, s78"); A(f"s_cmp_lt_u32 s64, {opts.get('am0', 1950)}"); A("s_cbranch_scc1 L_am0")
        which = opts.get("amw", 3)
        A("s_mov_b32 s70, 0")
        g.lab("L_am1")
        A("global_load_dword v4, v2, s[42:43] sc1")
        for i in range(3): A(f"global_load_dword v{5+i}, v3, s[42:43] offset:{512*i} sc1")
        A("s_waitcnt vmcnt(0)")
        A("s_mov_b64 vcc, 0")
        if which & 1: A(f"v_cmp_ne_u32 vcc, s{ST}, v4")
        if which & 2:
            for i in range(3):
                A(f"v_and_b32 v{5+i}, 0xff, v{5+i}"); A(f"v_cmp_ne_u32 s[68:69], s60, v{5+i}"); A("s_or_b64 vcc, vcc, s[68:69]")
        spin_tail(g, "L_am1", "L_am2", 0)
        A("s_memrealtime s[66:67]"); A("s_waitcnt lgkmcnt(0)")
        A("s_sub_u32 s66, s66, s78"); A(f"s_mul_i32 s66, s66, {opts['amp']}")
        g.lab("L_am3")
        A("s_sleep 1")
        A("s_memrealtime s[64:65]"); A("s_waitcnt lgkmcnt(0)")
        A("s_sub_u32 s64, s64, s78"); A("s_cmp_lt_u32 s64, s66"); A("s_cbranch_scc1 L_am3")
    A("s_endpgm")
    g.lab("L_sv1")
    A("v_mov_b32 v38, 0")
    A("v_mov_b32 v4, -1"); A("v_mov_b32 v5, 0"); A("v_mov_b32 v6, 0"); A("v_mov_b32 v7, 0")
    A(f"ds_write_b128 v38, v[4:7] offset:{L_ML}")
    A(f"ds_write_b64 v38, v[6:7] offset:{L_CNA}")
    A(f"s_getreg_b32 s{SXCC}, hwreg(HW_REG_XCC_ID, 0, 4)")
    A("s_waitcnt lgkmcnt(0)")
    A(f"s_load_dword s{ST}, s[42:43], {WS_E}")
    table()
    A("s_barrier")
    tag()
    tag_bytes()
    A("s_cmp_eq_u32 s13, 0"); A("s_cbranch_scc1 L_sv0")
    A("s_bfe_u32 s61, s14, 0x80010")
    A("s_cmp_ge_u32 s61, 32"); A("s_cbranch_scc1 L_fin")
    poll_lds(g, [f"ds_read_b32 v8, v38 offset:{L_ML}"], [8], 9, 16)
    A("s_branch L_r_f2")

    g.lab("L_sv0")
    if PT & 8:
        A("s_lshr_b32 s49, s2, 5"); A("s_lshl3_add_u32 s50, s8, s49"); A("s_lshl_b32 s50, s50, 8"); A(f"s_add_u32 s50, s50, {WS_Q}")
        A("v_and_b32 v10, 1, v1"); A("v_lshl_add_u32 v10, v10, 7, s50")
        A("v_bfe_u32 v11, v1, 1, 1"); A("v_lshl_add_u32 v10, v11, 14, v10")
        A("s_mov_b64 exec, 15")
        A("global_load_dword v166, v10, s[42:43] sc1")
        A("s_mov_b64 exec, -1")
        A("s_cmp_ge_u32 s49, 2"); A("s_cbranch_scc1 L_sv0b")
        A("s_lshl1_add_u32 s50, s8, s49"); A("s_lshl_b32 s50, s50, 9"); A(f"s_add_u32 s50, s50, {WS_MA}")
        A("v_and_b32 v10, 3, v1"); A("v_lshl_add_u32 v10, v10, 7, s50")
        A("v_bfe_u32 v11, v1, 2, 3"); A("v_lshl_add_u32 v10, v11, 13, v10")
        A("s_mov_b32 exec_hi, 0")
        A("global_load_dword v166, v10, s[42:43] sc1")
        A("s_mov_b64 exec, -1")
        g.lab("L_sv0b")
    A(f"s_add_u32 s{SXCC}, s{SXCC}, s{ST}")
    A("s_lshr_b32 s49, s2, 5"); A("s_lshl_b32 s50, s8, 5"); A("s_add_u32 s49, s49, s50"); A("s_lshl_b32 s49, s49, 2")
    A("v_mov_b32 v8, s49"); A(f"v_mov_b32 v9, s{SXCC}")
    A("s_mov_b64 exec, 1")
    A(f"global_store_dword v8, v9, s[42:43] offset:{WS_HDR} sc1")
    A("s_mov_b64 exec, -1")
    for i in range(3):
        A(f"s_lshl_b32 s{54+i}, s6, 9"); A(f"s_add_u32 s{54+i}, s{54+i}, {128*i}")
    WDL = opts.get("wdl", 2)
    if WDL:
        wait_cnt(g, f"ds_read_b32 v8, v38 offset:{L_CNA}", 8, opts.get("wdc", 8), 16)
        if opts.get("wdn", 1):
            sissue(opts.get("wdn", 1), 2, WS_S1)
            spoll(opts.get("wdn", 1), 2, WS_S1, "L_s3w", 8)
        A("v_mov_b32 v8, 1")
        A(f"ds_write_b32 v38, v8 offset:{L_ML+4}")
    wait_cnt(g, f"ds_read_b32 v8, v38 offset:{L_CNA}", 8, 12, 16)
    sissue(3, 2, WS_S2)
    spoll(3, 2, WS_S2, "L_s3s", 8)
    A(f"ds_write_b32 v38, v38 offset:{L_ML}")
    g.stamp(5)
    A("s_branch L_fin")

    g.lab("L_team")
    A("s_and_b32 s5, s13, 3")
    A("v_and_b32 v0, 0xff, v0")
    A("v_mov_b32 v38, 0")
    A(f"s_mov_b32 s{STG}, 0")
    A("s_lshr_b32 s60, s2, 5")
    A("v_lshrrev_b32 v12, 3, v0")
    A("v_lshlrev_b32 v12, 5, v12")
    A("v_bfe_u32 v3, v1, 2, 1")
    A("v_lshl_add_u32 v12, v3, 10, v12")
    A("v_and_b32 v8, 3, v1")
    A("v_lshl_add_u32 v37, v8, 3, v12")
    A("v_and_b32 v12, 0xffffffdf, v12")
    A("v_lshl_add_u32 v12, v8, 4, v12")
    A("v_bfe_u32 v8, v1, 3, 1")
    A("v_lshl_add_u32 v12, v8, 3, v12")
    A("v_lshl_add_u32 v12, v3, 5, v12")
    A("s_waitcnt lgkmcnt(0)")
    A(f"s_load_dword s{ST}, s[42:43], {WS_E}")
    A("s_barrier")
    A("s_cmp_ge_u32 s13, 8"); A("s_cbranch_scc1 L_r_mod")

    def line_out_addr(v, bsh=6, ush=7):
        A(f"v_and_b32 v{v}, 1, v1")
        A(f"v_lshlrev_b32 v{v}, {bsh}, v{v}")
        A("v_lshrrev_b32 v3, 4, v1")
        A(f"v_lshl_add_u32 v{v}, v3, 4, v{v}")
        A(f"s_lshl_b32 s49, s5, {ush}")
        A("s_add_u32 s49, s49, s58")
        A(f"v_add_u32 v{v}, s49, v{v}")
    def pack_tagged():
        A("v_cvt_pk_bf16_f32 v8, v8, v9")
        A("v_cvt_pk_bf16_f32 v10, v10, v11")
        A(f"v_mov_b32 v9, s{ST}")
        A(f"v_mov_b32 v11, s{ST}")
    def go(k):
        A("v_mov_b32 v3, 1")
        A("s_mov_b64 exec, 1")
        A(f"ds_add_u32 v38, v3 offset:{L_GO+4*k}")
        A("s_mov_b64 exec, -1")

    g.T = TA
    g.lab("L_r_q")
    A("s_lshl3_add_u32 s61, s8, s60")
    A("s_lshl_b32 s48, s61, 7")
    A("s_lshl_b32 s58, s61, 8")
    A(f"s_add_u32 s58, s58, {WS_Q}")
    A("global_load_dwordx2 v[14:15], v37, s[16:17]")
    srd(g, 44, 22, 512*8192)
    A("s_cmp_ge_u32 s60, 2"); A("s_cbranch_scc1 L_q_go")
    wait_cnt(g, f"ds_read_b32 v8, v38 offset:{L_GO+4}", 8, 4, 1)
    g.lab("L_q_go")
    dma_tile64(g, 8192, WFL, opts.get("PQ", 0))
    go(0)
    tag()
    A("v_bfe_u32 v6, v1, 2, 1")
    A("v_lshlrev_b32 v6, 5, v6")
    A(f"v_add_u32 v6, {TA.RED}, v6")
    A("s_lshl_b32 s49, s5, 3")
    A("v_add_u32 v5, s49, v6")
    A("s_waitcnt vmcnt(16)")
    unpack4(g, 20, 14)
    ln_partial(g, 20)
    A("s_waitcnt vmcnt(0) lgkmcnt(0)")
    hsync(g, 9)
    ln_apply(g, 20, 24)
    A("s_lshl_b32 s49, s8, 13"); A(f"s_add_u32 s49, s49, {WS_MA}")
    A("v_lshl_add_u32 v15, v0, 4, s49")
    A("v_add_u32 v36, 0x1000, v15")
    def mod_loads():
        A("s_mov_b64 exec, s[64:65]")
        A("global_load_dwordx4 v[16:19], v15, s[42:43] sc1")
        A("s_mov_b64 exec, s[66:67]")
        A("global_load_dwordx4 v[32:35], v36, s[42:43] sc1")
        A("s_mov_b64 exec, -1")
    A("s_mov_b64 s[64:65], -1"); A("s_mov_b64 s[66:67], -1")
    mod_loads()
    tr_tile64(g)
    line_out_addr(13, 14, 6)
    act_addr(g, 14, TA.ACT, ACT_BS)
    g.stamp(1)
    A("s_mov_b32 s70, 0")
    A("s_branch L_q_c")
    g.lab("L_q_p")
    mod_loads()
    g.lab("L_q_c")
    A("s_waitcnt vmcnt(0)")
    A(f"v_cmp_ne_u32 s[64:65], s{ST}, v17"); A(f"v_cmp_ne_u32 s[68:69], s{ST}, v19"); A("s_or_b64 s[64:65], s[64:65], s[68:69]")
    A(f"v_cmp_ne_u32 s[66:67], s{ST}, v33"); A(f"v_cmp_ne_u32 s[68:69], s{ST}, v35"); A("s_or_b64 s[66:67], s[66:67], s[68:69]")
    A("s_or_b64 vcc, s[64:65], s[66:67]")
    A("s_or_b32 s64, s64, 1"); A("s_or_b32 s66, s66, 1")
    spin_tail(g, "L_q_p", "L_q_ok", opts.get("msleep", 2))
    g.stamp(3)
    unpack4(g, 28, 32, 2)
    unpack4(g, 24, 16, 2)
    for i in range(4): A(f"v_add_f32 v{28+i}, 1.0, v{28+i}")
    for i in range(4): rnd(g, 28+i)
    for i in range(4): A(f"v_mul_f32 v{20+i}, v{20+i}, v{28+i}")
    for i in range(4): rnd(g, 20+i)
    for i in range(4): A(f"v_add_f32 v{20+i}, v{20+i}, v{24+i}")
    A("v_cvt_pk_bf16_f32 v16, v20, v21")
    A("v_cvt_pk_bf16_f32 v17, v22, v23")
    A(f"ds_write_b64 v12, v[16:17] offset:{TA.ACT}")
    hsync(g, 9)
    gemv(g, 16, 14, 8)
    pack_tagged()
    guard(g, 8); guard(g, 10)
    for x in EX8: A(x)
    A("global_store_dwordx4 v13, v[8:11], s[42:43] sc1")
    A("s_mov_b64 exec, -1")
    g.stamp(4)

    g.lab("L_r_wo")
    A("s_xor_b32 s61, s60, 1")
    A("s_lshl_b32 s48, s8, 19")
    A("s_lshl_b32 s49, s61, 7")
    A("s_add_u32 s48, s48, s49")
    A("s_lshr_b32 s58, s8, 1"); A("s_lshl_b32 s58, s58, 14")
    A("s_and_b32 s49, s8, 1"); A("s_lshl_b32 s49, s49, 12"); A("s_add_u32 s58, s58, s49")
    A("s_lshl_b32 s49, s61, 9")
    A("s_add_u32 s58, s58, s49")
    A(f"s_add_u32 s58, s58, {WS_AP}")
    srd(g, 44, 24, 4096*1024)
    if WDL & 1: wait_cnt(g, f"ds_read_b32 v8, v38 offset:{L_ML+4}", 8, 1, 8)
    dma_tile64(g, 1024, WFL, opts.get("PW", 3))
    tag_bytes()
    A("s_lshl2_add_u32 s49, s8, s5"); A("s_lshl_b32 s49, s49, 11")
    A(f"s_add_u32 s49, s49, {WS_OP}")
    A("v_lshrrev_b32 v12, 5, v1")
    A("v_and_b32 v16, 31, v1")
    A("v_lshlrev_b32 v15, 16, v12")
    A("v_lshl_add_u32 v15, v16, 4, v15")
    A("v_add_u32 v15, s49, v15")
    A(f"v_mul_u32_u24 v12, {ACT_BS}, v12")
    A("v_bfe_u32 v16, v1, 3, 2")
    A("v_lshl_add_u32 v12, v16, 6, v12")
    A("v_and_b32 v16, 3, v1")
    A("v_lshl_add_u32 v12, v16, 4, v12")
    A("v_bfe_u32 v16, v1, 2, 1")
    A("v_lshl_add_u32 v12, v16, 3, v12")
    A("s_lshl_b32 s49, s5, 8")
    A("v_add_u32 v12, s49, v12")
    line_out_addr(13)
    AREP = opts.get("arep", 2)
    A(f"v_bfe_u32 v3, v1, 1, {max(AREP.bit_length()-1, 0)}")
    A("v_lshl_add_u32 v13, v3, 16, v13")
    A("v_mov_b32 v36, 0xff")
    if PT & 2: A("global_load_dword v11, v13, s[42:43] sc1")
    A("s_waitcnt vmcnt(0)")
    g.stamp(5)
    hsync(g, 9, 4)
    tr_tile64(g)
    poll_lds(g, [f"ds_read_b32 v8, v38 offset:{L_ML}"], [8], 9, 8)
    if opts.get("notail"): go(0); A("s_branch L_fin")

    def sum8p(src, dst):
        for p in range(4):
            for h in range(2): A(f"v_pk_add_f32 {vr(dst+8*p+2*h,2)}, {vr(src+8*p+2*h,2)}, {vr(src+8*p+4+2*h,2)}")
        sum8q(dst)
    def sum8q(dst):
        for i in range(2):
            for h in range(2): A(f"v_pk_add_f32 {vr(dst+16*i+2*h,2)}, {vr(dst+16*i+2*h,2)}, {vr(dst+16*i+8+2*h,2)}")
        for h in range(2): A(f"v_pk_add_f32 {vr(dst+2*h,2)}, {vr(dst+2*h,2)}, {vr(dst+16+2*h,2)}")
    def x1_from(S):
        for i in range(4): rnd(g, S+i)
        for i in range(4): A(f"v_mul_f32 v{S+i}, v{S+i}, v{20+i}")
        for i in range(4): rnd(g, S+i)
        for i in range(4): A(f"v_add_f32 v{16+i}, v{16+i}, v{S+i}")
        for i in range(4): rnd(g, 16+i)
    TSL = opts.get("tsl", 0)
    def gather(n, load, raw, tmp, name, depth, gap, fin, msk=20, first=None):
        for i in range(n): A(f"s_mov_b64 s[{msk+2*i}:{msk+2*i+1}], {first[i] if first else -1}")
        def rnd_():
            for i in range(n):
                A(f"s_mov_b64 exec, s[{msk+2*i}:{msk+2*i+1}]")
                load(i, raw + 4*i)
            A("s_mov_b64 exec, -1")
        rnd_()
        A("s_waitcnt vmcnt(0)")
        A("s_mov_b32 s70, 0")
        A(f"s_branch {name}c")
        g.lab(name)
        rnd_()
        if gap: A(f"s_sleep {gap}")
        A(f"s_waitcnt vmcnt({n*(depth-1)})")
        g.lab(name + "c")
        for k in range(4*n): A(f"v_xor_b32 v{tmp+k}, s{TB+k%4}, v{raw+k}")
        for i in range(n): A(f"v_or3_b32 v{28+i}, v{tmp+4*i}, v{tmp+4*i+1}, v{tmp+4*i+2}")
        for i in range(n): A(f"v_or_b32 v{28+i}, v{28+i}, v{tmp+4*i+3}")
        for i in range(n): A(f"v_cmp_ne_u32_sdwa s[{msk+2*i}:{msk+2*i+1}], v{28+i}, v38 src0_sel:BYTE_0 src1_sel:DWORD")
        fin()
        A(f"s_mov_b64 vcc, s[{msk}:{msk+1}]")
        for i in range(1, n): A(f"s_or_b64 vcc, vcc, s[{msk+2*i}:{msk+2*i+1}]")
        for i in range(n): A(f"s_or_b32 s{msk+2*i}, s{msk+2*i}, 1")
        spin_tail(g, name, name + "ok", 0)
    def wo_fin():
        for i in range(12): A(f"v_or_b32 v{VA+32+i}, 0x80, v{VA+32+i}")
        for h in range(2): A(f"v_pk_add_f32 {vr(16+2*h,2)}, {vr(VA+32+2*h,2)}, {vr(VA+36+2*h,2)}")
        for h in range(2): A(f"v_pk_add_f32 {vr(16+2*h,2)}, {vr(16+2*h,2)}, {vr(VA+40+2*h,2)}")
    gather(3, lambda i, r: A(f"global_load_dwordx4 {vr(r,4)}, v15, s[42:43] offset:{512*i} sc1"), VA+48, VA+32, "L_wo_",
           opts.get("wpipe", 1), opts.get("wgap", 0), wo_fin)
    A("v_cvt_pk_bf16_f32 v8, v16, v17")
    A("v_cvt_pk_bf16_f32 v9, v18, v19")
    g.stamp(7)
    A(f"ds_write_b64 v12, v[8:9] offset:{TA.ACT}")
    NSPEC = opts.get("nspec", 4)
    gemv(g, 16, 14, 8, 12, 3, NSPEC)
    for i in range(4): A(f"v_bfi_b32 v{8+i}, v36, s{TB+i}, v{8+i}")
    A(f"s_mov_b32 exec_lo, 0x{((1 << 2*AREP) - 1) * 0x10001:08x}"); A("s_mov_b32 exec_hi, exec_lo")
    A("global_store_dwordx4 v13, v[8:11], s[42:43] sc1")
    g.stamp(2)
    go(0)
    A("s_branch L_fin")

    PG = VA + 32
    def pre_gather(offs):
        n = len(offs)
        l = g.uniq("pg"); e = g.uniq("pge")
        A("global_load_dwordx2 v[8:9], v37, s[16:17]")
        A("s_mov_b32 s70, 0")
        g.lab(l)
        for i, o in enumerate(offs):
            if -4096 <= o < 4096: A(f"global_load_dwordx4 {vr(PG+4*i,4)}, v39, s[42:43] offset:{o} sc1")
            else:
                A(f"v_add_u32 v3, {o}, v39")
                A(f"global_load_dwordx4 {vr(PG+4*i,4)}, v3, s[42:43] sc1")
        A("s_waitcnt vmcnt(0)")
        A("s_mov_b64 vcc, 0")
        for i in range(2 * n):
            A(f"v_cmp_ne_u32 s[68:69], s{ST}, v{PG+1+2*i}")
            A("s_or_b64 vcc, vcc, s[68:69]")
        spin_tail(g, l, e, 8)
    adr = [15, 4, 0, 36]
    def ap_addrs():
        for p in range(1, 4): A(f"v_add_u32 v{adr[p]}, {16384*p}, v15")
    def ap_load(i): A(f"global_load_dwordx4 {vr(VA+4*i,4)}, v{adr[i>>1]}, s[42:43] offset:{-4096 if i % 2 == 0 else 0} sc1")

    g.T = TB_
    g.lab("L_r_mod")
    A("global_load_dwordx2 v[14:15], v37, s[34:35]")
    srd(g, 44, 36, 512*6144)
    def mod_tile(first):
        A("s_lshl_b32 s48, s61, 7")
        A("s_lshl_b32 s58, s61, 9")
        A(f"s_add_u32 s58, s58, {WS_MA if first else WS_MOD}")
        dma_tile64(g, 6144, WFL, 0 if first else opts.get("PB", 6))
        if first:
            go(1)
            table()
            tag()
            A("s_waitcnt vmcnt(16)")
            mod_act()
        line_out_addr(13)
        if first:
            A("v_bfe_u32 v3, v1, 1, 3")
            A("v_lshl_add_u32 v13, v3, 13, v13")
        act_addr(g, 14, TB_.ACT, ACT_BS)
        tr64_addr(g)
        A("s_waitcnt vmcnt(0) lgkmcnt(0)")
        g.stamp(1 if first else 4)
        hsync(g, 9, 0 if first else 4)
        gemv_fused(g, 14, 8)
        pack_tagged()
        if not first:
            for x in EX8: A(x)
        A("global_store_dwordx4 v13, v[8:11], s[42:43] sc1")
        A("s_mov_b64 exec, -1")
        g.stamp(3 if first else 5)
        hsync(g, 9)
    def mod_act():
        unpack4(g, 16, 14)
        silu4(g, 16, 20)
        A("v_cvt_pk_bf16_f32 v14, v16, v17")
        A("v_cvt_pk_bf16_f32 v15, v18, v19")
        A(f"ds_write_b64 v12, v[14:15] offset:{TB_.ACT}")
    A("s_cmp_ge_u32 s60, 2"); A("s_cbranch_scc1 L_mod2")
    A("s_lshl1_add_u32 s61, s8, s60")
    mod_tile(True)
    A("s_branch L_mod3")
    g.lab("L_mod2")
    table()
    tag()
    A("s_waitcnt vmcnt(0)")
    mod_act()
    g.lab("L_mod3")
    def qfirst(bit=2):
        if WDL & bit: wait_cnt(g, f"ds_read_b32 v8, v38 offset:{L_ML+4}", 8, 1, 8)
        else: wait_cnt(g, f"ds_read_b32 v8, v38 offset:{L_CNA}", 8, 4 * opts.get("bh", 2), 4)
    wait_cnt(g, f"ds_read_b32 v8, v38 offset:{L_GO}", 8, 4, 4)
    A("s_and_b32 s61, s14, 0xff")
    A("s_cmp_ge_u32 s61, 48"); A("s_cbranch_scc1 L_r_f1")
    qfirst(4)
    A("s_and_b32 s61, s14, 0xff")
    g.lab("L_mod4")
    A("s_cmp_ge_u32 s61, 48"); A("s_cbranch_scc1 L_r_f1")
    mod_tile(False)
    A("s_lshr_b32 s61, s14, 24")
    A("s_or_b32 s14, s14, 0xff000000")
    A("s_branch L_mod4")

    g.lab("L_r_f1")
    A("s_bfe_u32 s61, s14, 0x80008")
    A("s_cmp_ge_u32 s61, 43"); A("s_cbranch_scc1 L_fin")
    A("s_lshl_b32 s48, s61, 6")
    A("s_lshl_b32 s58, s61, 7")
    A(f"s_add_u32 s58, s58, {WS_FP}")
    A("s_cmp_lt_u32 s5, 2")
    A("s_cselect_b32 s44, s28, s30")
    A("s_cselect_b32 s45, s29, s31")
    A(f"s_mov_b32 s46, {512*2752}")
    for h in range(2):
        A("s_and_b32 s54, s61, 1" if h == 0 else "s_andn2_b32 s54, 1, s61")
        A("v_lshrrev_b32 v2, 2, v1")
        A("v_mul_u32_u24 v2, 5504, v2")
        A("s_and_b32 s49, s5, 2")
        A("s_or_b32 s49, s49, s54")
        A("v_xor_b32 v3, s49, v1")
        A("v_and_b32 v3, 3, v3")
        A("v_lshl_add_u32 v2, v3, 4, v2")
        A("s_and_b32 s55, s5, 1")
        A(f"s_mul_i32 s49, s55, {256*2752}"); A("s_add_u32 s49, s49, s48")
        A("s_mul_i32 s50, s54, 2752"); A("s_add_u32 s49, s49, s50")
        A("s_lshr_b32 s50, s5, 1"); A("s_lshl_b32 s50, s50, 15")
        A("s_lshl_b32 s54, s54, 14"); A("s_add_u32 s50, s50, s54")
        A("s_lshl_b32 s55, s55, 13"); A("s_add_u32 s50, s50, s55")
        A(f"s_add_u32 s50, s50, {TB_.WT}")
        if h == 0: qfirst()
        dma_loop(g, 8, 32*2752, "" if h == 0 else WFL, opts.get("P1", 4))
    A("v_lshlrev_b32 v15, 4, v0")
    A(f"v_add_u32 v39, {WS_MOD+3*4096}, v15")
    A(f"s_and_b32 s59, s2, {AREP-1}"); A("s_lshl_b32 s59, s59, 16"); A(f"s_add_u32 s59, s59, {WS_AP+4096}")
    A("v_add_u32 v15, s59, v15")
    A("v_lshrrev_b32 v5, 2, v0")
    A("v_lshlrev_b32 v5, 3, v5")
    A(f"v_add_u32 v5, {TB_.RED}, v5")
    A("v_lshlrev_b32 v7, 3, v1")
    A(f"v_add_u32 v7, {TB_.RED}, v7")
    A("v_and_b32 v14, 7, v1")
    A(f"v_mul_u32_u24 v14, {ACT_BS}, v14")
    A("v_lshrrev_b32 v3, 4, v1")
    A("v_lshl_add_u32 v14, v3, 4, v14")
    A("v_bfe_u32 v6, v1, 2, 2")
    A("v_lshl_add_u32 v6, v3, 3, v6")
    A(f"v_mul_u32_u24 v6, {W2S}, v6")
    A("v_and_b32 v8, 3, v1")
    A("v_lshl_add_u32 v6, v8, 3, v6")
    A("s_lshl_b32 s49, s5, 8"); A(f"s_add_u32 s49, s49, {TB_.WT}")
    A("v_add_u32 v6, s49, v6")
    A("v_lshlrev_b32 v10, 3, v0")
    A(f"v_add_u32 v10, {L_HZ}, v10")
    A("v_mov_b32 v8, 0"); A("v_mov_b32 v9, 0")
    A("ds_write_b64 v10, v[8:9]")
    def f1_addrs():
        A("v_and_b32 v39, 1, v1")
        A("v_lshlrev_b32 v39, 6, v39")
        A(f"v_add_u32 v39, {L_HH}, v39")
        A("v_lshrrev_b32 v3, 4, v1")
        A("v_lshl_add_u32 v37, v3, 4, v39")
        A("v_bfe_u32 v3, v1, 1, 3")
        A("v_lshlrev_b32 v3, 7, v3")
        A("v_sub_u32 v37, v37, v3")
        A("v_bfe_u32 v3, v1, 4, 1")
        A("v_lshl_add_u32 v39, v3, 3, v39")
        A("v_lshrrev_b32 v3, 5, v1")
        A("v_lshl_add_u32 v39, v3, 2, v39")
        A("s_lshl_b32 s49, s5, 4")
        A("v_add_u32 v39, s49, v39")
    line_out_addr(13, 6, 17)
    A("v_bfe_u32 v3, v1, 1, 3")
    A("v_lshl_add_u32 v13, v3, 14, v13")
    A("v_lshrrev_b32 v2, 3, v1")
    A("v_lshlrev_b32 v2, 6, v2")
    A("v_bfe_u32 v3, v1, 2, 1")
    A("v_lshl_add_u32 v2, v3, 14, v2")
    A("v_and_b32 v8, 2, v1")
    A("v_or_b32 v3, v3, v8")
    A("v_xor_b32 v3, s5, v3")
    A("v_lshl_add_u32 v2, v3, 4, v2")
    A("v_lshl_add_u32 v2, v8, 14, v2")
    A("v_and_b32 v3, 1, v1")
    A("v_lshl_add_u32 v2, v3, 3, v2")
    A(f"v_add_u32 v2, {TB_.WT}, v2")
    A("s_waitcnt vmcnt(0)")
    hsync(g, 9, 4)
    tr_reads(g, 16, 1024, 512)
    hsync(g, 9)
    srd(g, 44, 32, 1376*1024)
    A("v_lshlrev_b32 v2, 4, v1")
    A("s_lshl2_add_u32 s49, s61, s5"); A("s_lshl_b32 s49, s49, 13")
    A(f"s_mul_i32 s50, s5, {8*W2S}")
    A(f"s_add_u32 s50, s50, {TB_.WT}")
    dma_loop(g, 8, 1024, WFL, opts.get("P2", 4), W2S)
    tag_bytes()
    g.stamp(6)
    if opts.get("notail"): A("s_branch L_fin")
    ap_addrs()
    pre_gather([-4096, 0, 4096])
    f1_addrs()
    unpack4(g, 16, 8)
    unpack4(g, 20, PG, 2)
    unpack4(g, 28, PG+8, 2)
    for i in range(4): A(f"v_add_f32 v{28+i}, 1.0, v{28+i}")
    A("v_cvt_pk_bf16_f32 v8, v28, v29"); A("v_cvt_pk_bf16_f32 v9, v30, v31")
    A(f"v_mov_b32 v{PG+5}, v{PG+6}")
    A(f"ds_write_b64 v12, v[8:9] offset:{TB_.ACT+2*ACT_BS}")
    A(f"ds_write_b64 v12, {vr(PG+4,2)} offset:{TB_.ACT+4*ACT_BS}")
    for i in range(4): rnd(g, 28+i)
    for i in range(4): A(f"v_mul_f32 v{24+i}, v{20+i}, v{28+i}")
    for i in range(4): A(f"v_mul_f32 v{28+i}, v{16+i}, v{28+i}")
    A("s_waitcnt lgkmcnt(0)")
    A("s_waitcnt vmcnt(0)")
    wait_cnt(g, f"ds_read_b32 v8, v38 offset:{L_GO}", 8, 8, 2)
    g.stamp(9)
    S = VA + 32
    A("s_mov_b32 s70, 0")
    A("s_movk_i32 s71, 0xff")
    A("s_mov_b32 s63, s71")
    A("s_branch L_f1_l")
    g.lab("L_f1_p")
    A("s_add_u32 s70, s70, 1")
    A(f"s_cmp_ge_u32 s70, {SPIN_MAX}")
    A("s_cbranch_scc1 L_f1_ok")
    A("s_mov_b32 s63, s71")
    g.lab("L_f1_l")
    for i in range(8):
        l = g.uniq("fl")
        A(f"s_bitcmp1_b32 s63, {i}"); A(f"s_cbranch_scc0 {l}")
        ap_load(i)
        g.lab(l)
    A("s_waitcnt vmcnt(0)")
    for i in range(8):
        l = g.uniq("fc")
        A(f"s_bitcmp1_b32 s63, {i}"); A(f"s_cbranch_scc0 {l}")
        B_ = VA + 4 * i
        for k in range(4): A(f"v_xor_b32 v{B_+k}, s{TB+k}, v{B_+k}")
        A(f"v_or3_b32 v8, v{B_}, v{B_+1}, v{B_+2}")
        A(f"v_or_b32 v8, v8, v{B_+3}")
        A("v_cmp_ne_u32_sdwa vcc, v8, v38 src0_sel:BYTE_0 src1_sel:DWORD")
        A("s_cmp_lg_u64 vcc, 0"); A(f"s_cbranch_scc1 {l}")
        A(f"s_bitset0_b32 s71, {i}")
        g.lab(l)
    A("s_cmp_lg_u32 s71, 0")
    A("s_cbranch_scc1 L_f1_p")
    g.lab("L_f1_ok")
    sum8p(VA, S)
    g.stamp(7)
    for h in range(2): A(f"v_pk_fma_f32 {vr(8+2*h,2)}, {vr(S+2*h,2)}, {vr(24+2*h,2)}, {vr(28+2*h,2)}")
    A("v_cvt_pk_bf16_f32 v8, v8, v9")
    A("v_cvt_pk_bf16_f32 v9, v10, v11")
    A(f"ds_write_b64 v12, v[8:9] offset:{TB_.ACT}")
    for h in range(2): A(f"v_pk_fma_f32 {vr(16+2*h,2)}, {vr(S+2*h,2)}, {vr(20+2*h,2)}, {vr(16+2*h,2)}")
    x = 16
    dpp = lambda r, mod: f"v_add_f32_dpp v{r}, v{r}, v{r} {mod} row_mask:0xf bank_mask:0xf"
    for t in (f"v_add_f32 v24, v{x}, v{x+1}", f"v_mul_f32 v25, v{x}, v{x}", f"v_add_f32 v26, v{x+2}, v{x+3}", f"v_mul_f32 v27, v{x+2}, v{x+2}",
              f"v_fmac_f32 v25, v{x+1}, v{x+1}", f"v_fmac_f32 v27, v{x+3}, v{x+3}", "v_pk_add_f32 v[24:25], v[24:25], v[26:27]", "s_nop 1",
              dpp(24, "quad_perm:[1,0,3,2]"), dpp(25, "quad_perm:[1,0,3,2]"), "s_nop 0",
              dpp(24, "quad_perm:[2,3,0,1]"), dpp(25, "quad_perm:[2,3,0,1]")): A(t)
    A("ds_write_b64 v5, v[24:25]")
    hsync(g, 10, 0, [f"ds_read_b128 {vr(S+4*m,4)}, v14 offset:{TB_.ACT+64*m}" for m in range(min(NSPEC, 4))])
    DF = 32
    q = []
    def rd(m): A(f"ds_read_b128 {vr(S+4*(m%8),4)}, v14 offset:{TB_.ACT+64*m}"); q.append(("r", m))
    def need(op):
        i = q.index(op); A(f"s_waitcnt lgkmcnt({len(q)-1-i})"); del q[:i+1]
    def w2rd(c):
        for h in range(2): A(f"ds_read_b64_tr_b16 {vr(VW+4*c+2*h,2)}, v6 offset:{32*c+4*h*W2S}"); q.append(("w", c, h))
    for m in range(4):
        if m < NSPEC: q.append(("r", m))
        else: rd(m)
    A("ds_read_b64 v[20:21], v7"); q.append(("s",))
    for m in range(4, 8): rd(m)
    fill = {4: [dpp(20, "quad_perm:[2,3,0,1]"), dpp(21, "quad_perm:[2,3,0,1]")],
            5: [dpp(20, "row_ror:4"), dpp(21, "row_ror:4")],
            6: [dpp(20, "row_ror:8"), dpp(21, "row_ror:8")],
            7: ["v_mov_b32 v22, v20", "v_mov_b32 v23, v21"],
            8: ["v_permlane16_swap_b32 v22, v20", "v_permlane16_swap_b32 v23, v21"],
            9: ["v_pk_add_f32 v[20:21], v[20:21], v[22:23]", "v_mov_b32 v22, v20", "v_mov_b32 v23, v21"],
            10: ["v_permlane32_swap_b32 v22, v20", "v_permlane32_swap_b32 v23, v21"],
            11: ["v_pk_add_f32 v[20:21], v[20:21], v[22:23]", f"v_mul_f32 v20, 0x{f2u(-1/512):08x}, v20"],
            12: [f"v_mul_f32 v21, 0x{f2u(1/512):08x}, v21", "v_fma_f32 v21, -v20, v20, v21"],
            13: ["v_max_f32 v21, 0, v21", f"v_add_f32 v21, 0x{EPS:08x}, v21"],
            14: ["v_rsq_f32 v21, v21"]}
    for m in range(16):
        if ("r", m) in q: need(("r", m))
        else: A("s_nop 0")
        c = "0" if m == 0 else vr(DF, 4)
        A(f"v_mfma_f32_16x16x32_bf16 {vr(DF,4)}, {vr(VW+4*m,4)}, {vr(S+4*(m%8),4)}, {c}")
        if 1 <= m <= 8: rd(7 + m)
        for t in fill.get(m, []): A(t)
    for c in range(4): w2rd(c)
    for i in range(4): A(f"v_fmac_f32_dpp v{DF+i}, v{DF+i}, v20 row_shl:2 row_mask:0xf bank_mask:0x1")
    for i in range(4): A(f"v_mul_f32 v{8+i}, v{DF+i}, v21")
    for i in range(4): A(f"v_add_f32_dpp v{8+i}, v{DF+i}, v{8+i} row_shl:4 row_mask:0xf bank_mask:0xf")
    A("s_waitcnt lgkmcnt(4)")
    for c in range(4, 8): w2rd(c)
    A("v_permlane32_swap_b32 v8, v10")
    A("v_permlane32_swap_b32 v9, v11")
    for i in range(2): A(f"v_mul_f32 v{20+i}, 0x{LOG2E ^ 0x80000000:08x}, v{8+i}")
    for i in range(2): A(f"v_exp_f32 v{20+i}, v{20+i}")
    for i in range(2): A(f"v_mul_f32 v{8+i}, v{8+i}, v{10+i}")
    for i in range(2): A(f"v_add_f32 v{20+i}, 1.0, v{20+i}")
    for i in range(2): A(f"v_rcp_f32 v{20+i}, v{20+i}")
    for x in EX8: A(x)
    for i in range(2): A(f"v_mul_f32 v{8+i}, v{8+i}, v{20+i}")
    A("v_cvt_pk_bf16_f32 v8, v8, v9")
    A("ds_write_b32 v39, v8")
    A("s_mov_b64 exec, -1")
    rds = [f"ds_read_b128 {vr(S+4*c,4)}, v37 offset:{128*c}" for c in range(8)]
    A("s_waitcnt lgkmcnt(4)")
    hsync(g, 10, 0, rds[:NSPEC])
    for r in rds[NSPEC:]: A(r)
    A("v_mov_b32 v3, 0xff")
    for c in range(8):
        A(f"s_waitcnt lgkmcnt({7-c})")
        A(f"v_mfma_f32_16x16x32_bf16 v[8:11], {vr(VW+4*c,4)}, {vr(S+4*c,4)}, {'0' if c == 0 else 'v[8:11]'}")
    A("s_nop 7")
    for i in range(4): A(f"v_bfi_b32 v{8+i}, v3, s{TB+i}, v{8+i}")
    A("global_store_dwordx4 v13, v[8:11], s[42:43] sc1")
    g.stamp(2)
    A("s_branch L_fin")

    g.lab("L_r_f2")
    if opts.get("notail"): A("s_branch L_fin")
    A("v_bfe_u32 v12, v1, 2, 1")
    A("v_and_b32 v14, 3, v1")
    A("s_lshl_b32 s49, s61, 5")
    A("v_lshl_add_u32 v3, v14, 3, s49")
    A("v_lshl_add_u32 v37, v12, 10, v3")
    A("v_and_b32 v15, 7, v1")
    A("s_lshl_b32 s49, s61, 7")
    A("v_lshl_add_u32 v15, v15, 4, s49")
    A(f"v_add_u32 v39, {WS_MOD+3*4096}, v15")
    A("v_bfe_u32 v3, v1, 3, 1")
    A("v_lshl_add_u32 v15, v3, 12, v15")
    A("v_lshrrev_b32 v3, 4, v1")
    A("v_lshl_add_u32 v15, v3, 14, v15")
    A(f"s_and_b32 s59, s2, {AREP-1}"); A("s_lshl_b32 s59, s59, 16"); A(f"s_add_u32 s59, s59, {WS_AP}")
    A("v_add_u32 v15, s59, v15")
    A("s_lshl_b32 s49, s61, 14"); A(f"s_add_u32 s49, s49, {WS_FP+2048}")
    A("v_lshl_add_u32 v36, v1, 4, s49")

    A("global_load_dword v11, v37, s[38:39]")
    if PT & 4:
        A("s_lshl_b32 s49, s61, 14"); A(f"s_add_u32 s49, s49, {WS_FP}")
        A("v_min_u32 v10, 42, v1"); A("v_lshl_add_u32 v10, v10, 7, s49")
        A("global_load_dword v11, v10, s[42:43] sc1")
        A("s_lshl_b32 s49, s61, 7"); A(f"s_add_u32 s49, s49, {WS_DN}")
        A("v_mov_b32 v10, s49")
        A("global_load_dword v11, v10, s[42:43] sc1")
    pre_gather([-4096, 8192])
    unpack4(g, 16, 8)
    unpack4(g, 20, PG, 2)
    unpack4(g, 24, PG+4, 2)
    wait_cnt(g, f"ds_read_b32 v8, v38 offset:{L_GO}", 8, 8, 2)
    g.stamp(9)
    def src_sum(r):
        A("s_nop 1")
        for i in range(4): A(f"v_add_f32_dpp v{r+i}, v{r+i}, v{r+i} row_ror:8 row_mask:0xf bank_mask:0xf")
        for sw in ("v_permlane16_swap_b32", "v_permlane32_swap_b32"):
            for i in range(4): A(f"v_mov_b32 v{r+4+i}, v{r+i}")
            for i in range(4): A(f"{sw} v{r+4+i}, v{r+i}")
            for i in range(4): A(f"v_add_f32 v{r+i}, v{r+i}, v{r+4+i}")
    A("s_mov_b32 s70, 0")
    g.lab("L_f2_a")
    A(f"global_load_dwordx4 {vr(S,4)}, v15, s[42:43] sc1")
    A("s_waitcnt vmcnt(0)")
    for k in range(4): A(f"v_xor_b32 v{S+k}, s{TB+k}, v{S+k}")
    A(f"v_or3_b32 v3, v{S}, v{S+1}, v{S+2}")
    A(f"v_or_b32 v3, v3, v{S+3}")
    A("v_lshlrev_b32 v3, 24, v3")
    A("v_cmp_ne_u32 vcc, 0, v3")
    spin_tail(g, "L_f2_a", "L_f2_ad", 4)
    A("s_cmp_lg_u32 s61, 0")
    A("s_cbranch_scc1 L_f2_e")
    A(f"v_mov_b32 v10, s{ST}")
    A("s_mov_b64 exec, 1")
    A(f"global_store_dword v38, v10, s[42:43] offset:{WS_E} sc1")
    A("s_mov_b64 exec, -1")
    g.lab("L_f2_e")
    src_sum(S)
    x1_from(S)
    for i in range(4): A(f"v_mov_b32 v{VA+32+20+i}, s{TB+i}")
    def f2_fin():
        for p in range(3):
            for h in range(2): A(f"v_pk_add_f32 {vr(VA+8*p+2*h,2)}, {vr(VA+8*p+2*h,2)}, {vr(VA+8*p+4+2*h,2)}")
        for p in (1, 2):
            for h in range(2): A(f"v_pk_add_f32 {vr(VA+2*h,2)}, {vr(VA+2*h,2)}, {vr(VA+8*p+2*h,2)}")
    gather(6, lambda i, r: A(f"global_load_dwordx4 {vr(r,4)}, v36, s[42:43] offset:{1024*i-2048} sc1"), VA+32, VA, "L_f2_p",
           opts.get("fpipe", 1), opts.get("fgap", 0), f2_fin, 20, [-1]*5 + ["0xffffff"])
    g.stamp(7)
    src_sum(VA)
    for i in range(4): rnd(g, VA+i)
    for i in range(4): A(f"v_mul_f32 v{VA+i}, v{VA+i}, v{24+i}")
    for i in range(4): rnd(g, VA+i)
    for i in range(4): A(f"v_add_f32 v{8+i}, v{VA+i}, v{16+i}")
    A("v_cvt_pk_bf16_f32 v8, v8, v9")
    A("v_cvt_pk_bf16_f32 v9, v10, v11")
    A("s_mov_b64 exec, 0xff")
    A("global_store_dwordx2 v37, v[8:9], s[38:39]" + ("" if opts.get("noosc") else " sc1"))
    A("s_mov_b64 exec, 1")
    A(f"v_mov_b32 v10, s{ST}")
    A("s_lshl_b32 s49, s61, 7"); A(f"s_add_u32 s49, s49, {WS_DN}")
    A("v_mov_b32 v11, s49")
    if not opts.get("nodn"): A("global_store_dword v11, v10, s[42:43] sc1")
    g.stamp(2)

    g.lab("L_fin")
    if opts.get("stamps"):
        A("s_waitcnt vmcnt(0)")
        g.stamp(8)
        dump_all(g, [SLOC])
    g.lab("L_end")
    A("s_endpgm")
    g.L.append(".p2align 7")
    g.lab("L_table")
    J = jobs()
    for j in range(8):
        A(".long " + ", ".join(f"0x{J[x, j][0] | J[x, j][1] << 8 | J[x, j][2] << 16 | J[x, j][3] << 24:08x}" for x in range(8)))
    g.lab("L_touch")
    odd = [1, 3, 5, 7]; evn = [0, 2, 4, 6]
    ch = [(0, t, c) for c in odd + evn for t in (0, 1)] + [(1, t, c) for c in evn + odd for t in (0, 1)] + [(1, 3, c) for c in odd + evn]
    ch += [(1, t, c) for c in odd for t in (2, 4, 5, 6, 7)] + [(1, t, c) for c in evn for t in (2, 4, 5, 6, 7)]
    ch = ch[:opts.get("nch", 60)]
    slots = [idx for idx in range(32) if idx & 3 != 3]
    TT = {sl: 0x80808080 for sl in range(32)}
    for n, (mx, t, c) in enumerate(ch):
        k, sl = divmod(n, len(slots))
        if k < NT: TT[slots[sl]] = TT[slots[sl]] & ~(0xff << 8*k) | (c | t << 3 | mx << 6) << 8*k
    for i in range(0, 32, 8):
        A(".long " + ", ".join(f"0x{TT[i+a]:08x}" for a in range(8)))
    g.L.append(f'''.section .rodata,"a"
.p2align 6
.amdhsa_kernel {KNAME}
  .amdhsa_next_free_vgpr 168
  .amdhsa_next_free_sgpr 102
  .amdhsa_accum_offset 168
  .amdhsa_group_segment_fixed_size 0
  .amdhsa_kernarg_size 112
  .amdhsa_user_sgpr_count 2
  .amdhsa_user_sgpr_kernarg_segment_ptr 1
  .amdhsa_system_sgpr_workgroup_id_x 1
.end_amdhsa_kernel''')
    opts["_jobs"] = J
    return "\n".join(g.L) + "\n"

if __name__ == "__main__":
    import os
    here = os.path.dirname(os.path.abspath(__file__))
    opts = {"ref": os.path.join(here, "..", KNAME[:-7] + ".s.ref")}
    out = sys.argv[1]
    for kv in sys.argv[2:]:
        k, v = kv.split("=")
        try: v = int(v)
        except ValueError:
            try: v = float(v)
            except ValueError: pass
        opts[k] = v
    open(out, "w").write(gen(opts))
```
